```python
import torch

def _softmax(x, axis=-1):
    return torch.softmax(x, dim=axis)
def _gelu(x):
    return torch.nn.functional.gelu(x, approximate="tanh")
def _silu(x):
    return torch.nn.functional.silu(x)
def _sigmoid(x):
    return torch.sigmoid(x)
def _layernorm(x, axis=-1, eps=1e-5):
    m = x.mean(dim=axis, keepdim=True)
    v = x.var(dim=axis, keepdim=True, unbiased=False)
    return (x - m) / torch.sqrt(v + eps)
def _scatter_add(tgt, idx, src, axis=0):
    return tgt.clone().index_add_(axis, idx, src)
def _segment_sum(src, seg, n):
    out = torch.zeros((n,) + src.shape[1:], dtype=src.dtype)
    return out.index_add_(0, seg, src)
def _pad(x, pw):
    flat = tuple(v for pair in reversed(pw) for v in pair)
    return torch.nn.functional.pad(x, flat)

kernel_name = 'interleave_layers__linear_attn_block__dense_activation_relu__prompt'

def setup_inputs():

    _w = (lambda a: (lambda t: t.to(torch.bfloat16) if t.is_floating_point() else t)(torch.as_tensor(a)))
    def _A_setup():
        B, S, D = 1, 2048, 512
        return {
            "x": _w((lambda *s: torch.randn(*s, dtype=torch.bfloat16) * 0.05)(B, S, D)),
            "wqkv": _w((lambda *s: torch.randn(*s, dtype=torch.bfloat16) * 0.05)(D, 3 * D)),
            "wo": _w((lambda *s: torch.randn(*s, dtype=torch.bfloat16) * 0.05)(D, D)),
        }
    _A_in = _A_setup()

    def _B_setup():
        B, S, D, Dff = 1, 2048, 512, 1792
        return {
            "x": _w((lambda *s: torch.randn(*s, dtype=torch.bfloat16) * 0.05)(B, S, D)),
            "w1": _w((lambda *s: torch.randn(*s, dtype=torch.bfloat16) * 0.05)(D, Dff)),
            "w2": _w((lambda *s: torch.randn(*s, dtype=torch.bfloat16) * 0.05)(Dff, D)),
        }
    _B_in = _B_setup()

    return {
        "A_x": _A_in["x"],
        "A_wqkv": _A_in["wqkv"],
        "A_wo": _A_in["wo"],
        "B_x": _B_in["x"],
        "B_w1": _B_in["w1"],
        "B_w2": _B_in["w2"],
    }

def reference(A_x, A_wqkv, A_wo, B_x, B_w1, B_w2):
    def _A_ref(x, wqkv, wo):
        B, S, D = x.shape
        H = 32; Dh = D // H
        qkv = (lambda x, *d: x.permute(*d))((x @ wqkv).reshape(B, S, 3, H, Dh), 2, 0, 3, 1, 4)
        q, k, v = qkv[0], qkv[1], qkv[2]
        phi = lambda t: torch.where(t > 0, t + 1, torch.exp(t)) + 1e-6
        pq, pk = phi(q), phi(k)
        kv = torch.einsum("bhsd,bhse->bhde", pk, v)
        z = torch.einsum("bhsd->bhd", pk)
        num = torch.einsum("bhqd,bhde->bhqe", pq, kv)
        den = torch.einsum("bhqd,bhd->bhq", pq, z)[..., None] + 1e-6
        o = num / den
        return (lambda x, *d: x.permute(*d))(o, 0, 2, 1, 3).reshape(B, S, D) @ wo

    def _B_ref(x, w1, w2):
        h = torch.einsum("bsd,df->bsf", x, w1)
        zero = torch.zeros_like(h)
        h = torch.maximum(h, zero)
        return torch.einsum("bsf,fd->bsd", h, w2)

    x = A_x
    x = x + _A_ref(_layernorm(x, axis=-1), A_wqkv, A_wo)
    x = x + _B_ref(_layernorm(x, axis=-1), B_w1, B_w2)
    x = x + _A_ref(_layernorm(x, axis=-1), A_wqkv, A_wo)
    x = x + _B_ref(_layernorm(x, axis=-1), B_w1, B_w2)
    return x
```

```python
import sys

NAME = "interleave_layers__linear_attn_block__dense_activation_relu__prompt_kernel"

WS_EPOCH = 0
WS_XID = 0x1000
GRP0 = 0x100000
G_FO, G_FX1, G_FX2, G_FH = 0, 512, 1024, 1536
G_ST1 = 0x1000
G_ST2 = 0x5000
G_O = 0x8000
G_X1 = G_O + 0x20000
G_X2 = G_X1 + 0x20000
G_H = G_X2 + 0x20000
WS_KVX = 0x1200000
WS_W2T = 0x1400000
WS_STAMP = 0x1800000
WS_USED = 0x1900000

L_KV = 0
L_Q = 65536
L_LONE = 98304
L_WO = 114688
L_TP = 147456
L_SM = 155648
L_CS = L_SM
L_STAT = L_SM + 1024
L_XB = L_SM + 2048
L_ZB = L_SM + 3072
L_XST = 65536
L_RED = 65536
LDS_BYTES = 163840

S_X, S_WQKV, S_WO, S_W1, S_W2, S_OUT, S_WS = 4, 8, 12, 16, 20, 24, 28
sW, sC, sG, sTAG, sSLOW, sGB, sBUD, sEP = 32, 33, 34, 35, 36, 37, 38, 39
sEPS = 40
sT0, sT1, sT2, sT3, sT4, sT5 = 42, 43, 44, 45, 46, 47
sACT = 48
sDH, sCT = 49, 50
sXCC = 51
sRB = 52
sST = 60
sSTI = 62
sPC = 64

vLANE, vL16, vTR0, vTR1, vA0, vA1, vA2, vP, vCH, vDM, vL4, vSTAMP = range(12)
vT0, vT1, vT2, vT3 = 12, 13, 14, 15
vRES = 16
vPQ = 24
vWB = 32
vACC = 64
vACT = 128


def srd(s):
    return f"s[{s}:{s+3}]"


def vr(a, n=1):
    return f"v{a}" if n == 1 else f"v[{a}:{a+n-1}]"


def ar(a, n=1):
    return f"a{a}" if n == 1 else f"a[{a}:{a+n-1}]"


class K:
    def __init__(self, stamps=False, opts=None):
        self.lines = []
        self.nlab = 0
        self.vm = []
        self.ds = []
        self.stamps = stamps
        self.stamp_names = []
        self.o = opts or {}

    def __call__(self, s):
        for l in s.split("\n"):
            l = l.strip()
            if l:
                self.lines.append(("" if l.endswith(":") else "    ") + l)

    def label(self, base="L"):
        self.nlab += 1
        return f"{base}_{self.nlab}"

    def vmem(self, s, tag=None):
        self(s)
        self.vm.append(tag)

    def vm_wait(self, tag):
        if tag not in self.vm:
            return
        idx = len(self.vm) - 1 - self.vm[::-1].index(tag)
        n = len(self.vm) - idx - 1
        self(f"s_waitcnt vmcnt({min(n, 63)})")
        self.vm = self.vm[len(self.vm) - min(n, 63):] if n else []

    def vm_all(self):
        self("s_waitcnt vmcnt(0)")
        self.vm = []

    def lds(self, s, tag=None):
        self(s)
        self.ds.append(tag)

    def ds_wait(self, tag):
        if tag not in self.ds:
            return
        idx = len(self.ds) - 1 - self.ds[::-1].index(tag)
        n = len(self.ds) - idx - 1
        self(f"s_waitcnt lgkmcnt({min(n, 15)})")
        self.ds = self.ds[len(self.ds) - min(n, 15):] if n else []

    def ds_all(self):
        self("s_waitcnt lgkmcnt(0)")
        self.ds = []

    def barrier(self):
        self.ds_all()
        self("s_barrier")

    def stamp(self, name):
        if not self.stamps:
            return
        i = len(self.stamp_names)
        assert i < 62
        self.stamp_names.append(name)
        self(f"s_memtime s[{sST}:{sST+1}]")
        self.ds_all()
        self(f"v_writelane_b32 v{vSTAMP}, s{sST}, {i}")

    def dma(self, sr, voff, soff_expr, lds_expr, tag=None):
        r, imm = lds_expr
        if r is None:
            self(f"s_mov_b32 m0, {imm}")
        else:
            self(f"s_add_u32 m0, s{r}, {imm}")
        r, imm = soff_expr
        if r is None:
            self(f"s_mov_b32 s{sT5}, {imm}")
        else:
            self(f"s_add_u32 s{sT5}, s{r}, {imm}")
        self.vmem(f"buffer_load_dwordx4 v{voff}, {srd(sr)}, s{sT5} offen lds", tag)

    def poll(self, nl, soff, expect=sTAG):
        lp, done = self.label("L_poll"), self.label("L_pd")
        self(f"s_mov_b64 exec, {(1 << nl) - 1}")
        self(f"{lp}:")
        self(f"buffer_load_dword v{vT0}, v{vL4}, {srd(S_WS)}, s{soff} offen sc1")
        self("s_waitcnt vmcnt(0)")
        self.vm = []
        self(f"v_cmp_ne_u32 vcc, s{expect}, v{vT0}")
        self(f"s_cbranch_vccz {done}")
        self(f"s_sub_u32 s{sBUD}, s{sBUD}, 1")
        self(f"s_cbranch_scc0 {lp}")
        self(f"s_mov_b32 s{sBUD}, 0")
        self(f"{done}:")
        self("s_mov_b64 exec, -1")

    def stores(self, items, force_sc1):
        def emit(flag, count):
            for it in items:
                if it.startswith("!"):
                    self(it[1:])
                elif count:
                    self.vmem(it + flag, "st")
                else:
                    self(it + flag)
        if force_sc1:
            emit(" sc1", True)
            return
        ls, le = self.label("L_ss"), self.label("L_se")
        self(f"s_cmp_lg_u32 s{sSLOW}, 0")
        self(f"s_cbranch_scc1 {ls}")
        emit("", True)
        self(f"s_branch {le}")
        self(f"{ls}:")
        emit(" sc1", False)
        self(f"{le}:")

    def flag(self, soff):
        self.vm_wait("st")
        self(f"v_mov_b32 v{vT1}, s{sTAG}")
        self("s_mov_b64 exec, 1")
        self.stores([f"buffer_store_dword v{vT1}, v{vL4}, {srd(S_WS)}, s{soff} offen"], False)
        self.vm[-1] = "flag"
        self("s_mov_b64 exec, -1")

    def gemm(self, frags, D=6):
        n = len(frags)

        def rd(t, hh):
            f = frags[t]
            s = vWB + 4 * (t % 8)
            self.lds(f"ds_read_b64_tr_b16 {vr(s + 2*hh, 2)}, v{f['addr']} offset:{f['o0'] if hh == 0 else f['o1']}", ("w", t))
        for t in range(min(D, n)):
            rd(t, 0)
            rd(t, 1)
        for t in range(n):
            f = frags[t]
            s = vWB + 4 * (t % 8)
            self.ds_wait(("w", t))
            for j, (acc, act, sw, first, wt) in enumerate(f["mf"]):
                if wt is not None:
                    self.vm_wait(wt)
                c = "0" if first else vr(acc, 4)
                if sw:
                    self(f"v_mfma_f32_16x16x32_bf16 {vr(acc,4)}, {vr(s,4)}, {vr(act,4)}, {c}")
                else:
                    self(f"v_mfma_f32_16x16x32_bf16 {vr(acc,4)}, {vr(act,4)}, {vr(s,4)}, {c}")
                if t + D < n:
                    if len(f["mf"]) == 1:
                        rd(t + D, 0)
                        rd(t + D, 1)
                    elif j < 2:
                        rd(t + D, j)


def act(ks, rb):
    return vACT + 8 * ks + 4 * rb


def gen(stamps=False, opts=None):
    k = K(stamps, opts)
    o = k.o
    if stamps:
        k(f"s_memtime s[{sST}:{sST+1}]")
        k(f"s_memrealtime s[{sST+6}:{sST+7}]")
    k(f"""
    s_cmp_ge_u32 s2, 256
    s_cbranch_scc1 L_end
    s_load_dwordx2 s[{S_X}:{S_X+1}], s[0:1], 0
    s_load_dwordx2 s[{S_WQKV}:{S_WQKV+1}], s[0:1], 8
    s_load_dwordx2 s[{S_WS}:{S_WS+1}], s[0:1], 64
    s_load_dwordx2 s[{S_WO}:{S_WO+1}], s[0:1], 16
    s_load_dwordx2 s[{S_W1}:{S_W1+1}], s[0:1], 32
    s_load_dwordx2 s[{S_W2}:{S_W2+1}], s[0:1], 40
    s_load_dwordx2 s[{S_OUT}:{S_OUT+1}], s[0:1], 48
    v_lshrrev_b32 v{vT0}, 6, v0
    v_and_b32 v{vLANE}, 63, v0
    s_mov_b32 s{S_X+2}, {2048*1024}
    v_readfirstlane_b32 s{sW}, v{vT0}
    s_mov_b32 s{S_X+3}, 0x20000
    s_mov_b32 s{S_WQKV+2}, {512*3072}
    s_mov_b32 s{S_WQKV+3}, 0x20000
    s_mov_b32 s{S_WO+2}, {512*1024}
    s_mov_b32 s{S_WO+3}, 0x20000
    s_mov_b32 s{S_W1+2}, {512*3584}
    s_mov_b32 s{S_W1+3}, 0x20000
    s_mov_b32 s{S_W2+2}, {1792*1024}
    s_mov_b32 s{S_W2+3}, 0x20000
    s_mov_b32 s{S_OUT+2}, {2048*1024}
    s_mov_b32 s{S_OUT+3}, 0x20000
    s_mov_b32 s{S_WS+2}, {WS_USED}
    s_mov_b32 s{S_WS+3}, 0x20000
    s_lshr_b32 s{sT0}, s2, 3
    s_and_b32 s{sC}, s{sT0}, 15
    s_lshr_b32 s{sT0}, s{sT0}, 4
    s_and_b32 s{sG}, s2, 7
    s_lshl_b32 s{sG}, s{sG}, 1
    s_add_u32 s{sG}, s{sG}, s{sT0}
    s_lshl_b32 s{sGB}, s{sG}, 20
    s_add_u32 s{sGB}, s{sGB}, {GRP0}
    s_lshl_b32 s{sACT}, s{sW}, 15
    s_add_u32 s{sACT}, s{sACT}, s{sGB}
    s_lshr_b32 s{sDH}, s{sC}, 3
    s_and_b32 s{sCT}, s{sC}, 7
    s_mov_b32 s{sBUD}, 150000
    s_mov_b32 s{sEPS}, 0x358637bd
    s_mov_b32 s{sEPS+1}, 0x358637bd
    s_getreg_b32 s{sXCC}, hwreg(HW_REG_XCC_ID, 0, 4)
    v_lshlrev_b32 v{vL16}, 4, v{vLANE}
    v_lshlrev_b32 v{vL4}, 2, v{vLANE}
    """)
    if stamps:
        k(f"v_mov_b32 v{vSTAMP}, 0")
    k(f"""
    v_lshrrev_b32 v{vT0}, 4, v{vLANE}
    v_and_b32 v{vT1}, 15, v{vLANE}
    v_xor_b32 v{vT2}, v{vT0}, v{vT1}
    v_lshlrev_b32 v{vT2}, 4, v{vT2}
    v_lshl_add_u32 v{vWB}, v{vT0}, 10, v{vT2}
    v_xor_b32 v{vWB+1}, 64, v{vWB}
    v_xor_b32 v{vWB+2}, 0x80, v{vWB}
    v_xor_b32 v{vWB+3}, 0xc0, v{vWB}
    v_lshl_add_u32 v{vWB+4}, v{vT1}, 8, v{vT2}
    s_mul_i32 s{sT0}, s{sW}, 24576
    s_add_u32 s{sT0}, s{sT0}, {L_XST}
    v_add_u32 v{vWB+4}, s{sT0}, v{vWB+4}
    v_xor_b32 v{vWB+5}, 64, v{vWB+4}
    v_xor_b32 v{vWB+6}, 0x80, v{vWB+4}
    v_xor_b32 v{vWB+7}, 0xc0, v{vWB+4}
    """)
    k(f"""
    v_lshrrev_b32 v{vP}, 2, v{vLANE}
    v_and_b32 v{vCH}, 3, v{vLANE}
    v_lshrrev_b32 v{vT3}, 3, v{vLANE}
    v_and_b32 v{vT3}, 2, v{vT3}
    v_xor_b32 v{vCH}, v{vCH}, v{vT3}
    v_lshlrev_b32 v{vCH}, 4, v{vCH}
    """)
    k(f"""
    v_and_b32 v{vT3}, 3, v{vP}
    v_lshl_add_u32 v{vT3}, v{vT0}, 3, v{vT3}
    s_movk_i32 s{sT1}, 3072
    v_mad_u32_u24 v{vDM}, v{vT3}, s{sT1}, v{vCH}
    """)
    k(f"""
    v_and_b32 v{vT3}, 3, v{vLANE}
    v_lshlrev_b32 v{vT3}, 3, v{vT3}
    v_lshl_add_u32 v{vTR0}, v{vP}, 6, v{vT3}
    v_and_b32 v{vT3}, 1, v{vT0}
    v_lshlrev_b32 v{vT3}, 5, v{vT3}
    v_add_u32 v{vTR0}, v{vTR0}, v{vT3}
    v_xor_b32 v{vTR1}, 32, v{vTR0}
    """)
    k(f"""
    s_lshl_b32 s{sT1}, s{sG}, 17
    s_lshl_b32 s{sT2}, s{sW}, 15
    s_add_u32 s{sT1}, s{sT1}, s{sT2}
    s_waitcnt lgkmcnt(0)
    s_load_dword s{sEP}, s[{S_WS}:{S_WS+1}], {WS_EPOCH}
    """)
    if stamps:
        k(f"v_writelane_b32 v{vSTAMP}, s{sST}, 62")
        k(f"v_writelane_b32 v{vSTAMP}, s{sST+6}, 63")

    def xslot(q):
        for j in range(8):
            k.dma(S_X, vWB + (j & 3), (sT1, j * 4096 + q * 256), (sT0, (q % 3) * 8192 + j * 1024), ("xs", q))

    def wqkv_dma(layer, part):
        hstep = (4 if layer == 0 else 16) * 3072
        k(f"s_mul_i32 s{sT2}, s{sW}, {128*3072}")
        k(f"s_lshl_b32 s{sT3}, s{sC}, 6")
        k(f"s_add_u32 s{sT2}, s{sT2}, s{sT3}")
        if part == "kv":
            k(f"s_lshl_b32 s{sT3}, s{sW}, 14")
            for j in range(4):
                for pr in range(2):
                    for hh in range(2):
                        k.dma(S_WQKV, vDM, (sT2, j * 32 * 3072 + hh * hstep + 1024 * (pr + 1)),
                              (sT3, L_KV + j * 4096 + pr * 2048 + hh * 1024), "wkv")
        else:
            k(f"s_lshl_b32 s{sT3}, s{sW}, 13")
            for j in range(4):
                for hh in range(2):
                    k.dma(S_WQKV, vDM, (sT2, j * 32 * 3072 + hh * hstep), (sT3, L_Q + j * 2048 + hh * 1024), "wq")

    xslot(0); xslot(1); xslot(2)
    wqkv_dma(0, "kv")

    def xread(q):
        k.vm_wait(("xs", q))
        for ksl in range(4):
            for rb in range(2):
                k.lds(f"ds_read_b128 {vr(act(4*q+ksl, rb),4)}, v{vWB+4+ksl} offset:{(q%3)*8192 + rb*4096}", ("xr", q))

    SUM0, SQ0, SUM1, SQ1 = vACC + 56, vACC + 57, vACC + 58, vACC + 59

    def xstats(q):
        k.ds_wait(("xr", q))
        for ksl in range(4):
            for j in range(4):
                a0, a1 = act(4*q+ksl, 0) + j, act(4*q+ksl, 1) + j
                k(f"v_dot2c_f32_bf16 v{SUM0}, 0x3f803f80, v{a0}")
                k(f"v_dot2c_f32_bf16 v{SQ0}, v{a0}, v{a0}")
                k(f"v_dot2c_f32_bf16 v{SUM1}, 0x3f803f80, v{a1}")
                k(f"v_dot2c_f32_bf16 v{SQ1}, v{a1}, v{a1}")

    for r in (SUM0, SQ0, SUM1, SQ1):
        k(f"v_mov_b32 v{r}, 0")
    xread(0)
    k.ds_all()
    k.stamp("x0")
    xslot(3)
    k(f"""
    s_mul_i32 s{sTAG}, s{sEP}, 0x9E3779B1
    s_add_u32 s{sTAG}, s{sTAG}, 0x7F4A7C15
    s_add_u32 s{sT2}, s{sTAG}, s{sXCC}
    s_add_u32 s{sT2}, s{sT2}, 2
    v_mov_b32 v{vT1}, s{sT2}
    s_lshl_b32 s{sT2}, s{sG}, 7
    s_lshl2_add_u32 s{sT2}, s{sC}, s{sT2}
    s_add_u32 s{sT2}, s{sT2}, {WS_XID}
    s_mov_b64 exec, 1
    """)
    k.vmem(f"buffer_store_dword v{vT1}, v{vL4}, {srd(S_WS)}, s{sT2} offen sc1", "xid")
    k("s_mov_b64 exec, -1")
    k(f"""
    v_and_b32 v{vT1}, 15, v{vLANE}
    v_lshlrev_b32 v{vT1}, 10, v{vT1}
    v_lshrrev_b32 v{vT0}, 4, v{vLANE}
    v_lshl_add_u32 v{vT2}, v{vT0}, 3, v{vT1}
    s_lshl_b32 s{sT2}, s{sC}, 6
    s_add_u32 s{sT2}, s{sT2}, s{sT1}
    s_add_u32 s{sT3}, s{sT2}, 16384
    """)
    for rb in range(2):
        for b in range(2):
            k.vmem(f"buffer_load_dwordx2 {vr(vRES+4*rb+2*b,2)}, v{vT2}, {srd(S_X)}, s{sT2 if rb == 0 else sT3} offen offset:{32*b}", "res")
    k(f"v_lshlrev_b32 v{vT3}, 7, v{vLANE}")
    k("s_mov_b64 exec, 0xfffffff")
    k.vmem(f"buffer_load_dword v{vPQ}, v{vT3}, {srd(S_WS)}, s{sGB} offen sc1", "touch")
    if o.get("codewarm", 1):
        k(f"""
        s_getpc_b64 s[{sPC}:{sPC+1}]
        s_lshr_b32 s{sT2}, s2, 3
        s_lshl2_add_u32 s{sT2}, s{sT2}, s{sW}
        s_lshl_b32 s{sT2}, s{sT2}, 9
        s_min_u32 s{sT2}, s{sT2}, CODE_BYTES
        s_add_u32 s{sPC}, s{sPC}, s{sT2}
        s_addc_u32 s{sPC+1}, s{sPC+1}, 0
        s_mov_b64 exec, 0xf
        """)
        k.vmem(f"global_load_dword v{vPQ+1}, v{vT3}, s[{sPC}:{sPC+1}]", "touch")
    k("s_mov_b64 exec, -1")
    xread(1)
    xstats(0)
    xread(2)
    xstats(1)
    xstats(2)
    xread(3)
    xstats(3)
    k.stamp("xall")
    lz = k.label("L_z")
    k(f"s_cmp_lg_u32 s{sW}, 3")
    k(f"s_cbranch_scc1 {lz}")
    k(f"v_mov_b32 v{vWB}, 0\nv_mov_b32 v{vWB+1}, 0\nv_mov_b32 v{vWB+2}, 0\nv_mov_b32 v{vWB+3}, 0")
    k(f"v_add_u32 v{vT0}, {L_CS}, v{vL16}")
    k(f"ds_write_b128 v{vT0}, {vr(vWB,4)}")
    k(f"{lz}:")

    NM_A, RS_A, RL_A = vACC + 60, vACC + 62, vACC + 56
    NM_B, RS_B, RL_B = vACC + 32, vACC + 40, vACC + 48

    def stats_finalize(need_b):
        k(f"""
        s_nop 2
        v_permlane32_swap_b32 v{SUM0}, v{SUM1}
        v_permlane32_swap_b32 v{SQ0}, v{SQ1}
        s_nop 0
        v_add_f32 v{SUM0}, v{SUM0}, v{SUM1}
        v_add_f32 v{SQ0}, v{SQ0}, v{SQ1}
        v_mov_b32 v{SUM1}, v{SUM0}
        v_mov_b32 v{SQ1}, v{SQ0}
        s_nop 1
        v_permlane16_swap_b32 v{SUM0}, v{SUM1}
        v_permlane16_swap_b32 v{SQ0}, v{SQ1}
        s_nop 0
        v_add_f32 v{SUM0}, v{SUM0}, v{SUM1}
        v_add_f32 v{SQ0}, v{SQ0}, v{SQ1}
        v_mul_f32 v{SUM0}, 0xbb000000, v{SUM0}
        v_mul_f32 v{SQ0}, 0x3b000000, v{SQ0}
        v_fma_f32 v{SQ0}, -v{SUM0}, v{SUM0}, v{SQ0}
        v_max_f32 v{SQ0}, 0, v{SQ0}
        v_add_f32 v{SQ0}, 0x3727c5ac, v{SQ0}
        v_rsq_f32 v{SQ0}, v{SQ0}
        v_and_b32 v{vT0}, 15, v{vLANE}
        v_lshrrev_b32 v{vT1}, 5, v{vLANE}
        v_lshl_add_u32 v{vT1}, v{vT1}, 4, v{vT0}
        s_lshl_b32 s{sT2}, s{sW}, 8
        s_add_u32 s{sT2}, s{sT2}, {L_STAT}
        v_lshl_add_u32 v{vT1}, v{vT1}, 2, s{sT2}
        v_lshl_add_u32 v{vT0}, v{vT0}, 2, s{sT2}
        """)
        k.lds(f"ds_write2_b32 v{vT1}, v{SUM0}, v{SQ0} offset0:0 offset1:32")
        k.lds(f"ds_read2_b32 {vr(NM_A,2)}, v{vT0} offset0:0 offset1:16", "sta")
        k.lds(f"ds_read2_b32 {vr(RS_A,2)}, v{vT0} offset0:32 offset1:48", "sta")
        if need_b:
            k(f"v_and_b32 v{vT1}, 48, v{vLANE}")
            k(f"v_add_u32 v{vT1}, s{sT2}, v{vT1}")
            for rb in range(2):
                k.lds(f"ds_read_b128 {vr(NM_B+4*rb,4)}, v{vT1} offset:{64*rb}", "stb")
                k.lds(f"ds_read_b128 {vr(RS_B+4*rb,4)}, v{vT1} offset:{128+64*rb}", "stb")
            k.ds_all()
            for j in range(8):
                k(f"v_mul_f32 v{RL_B+j}, 0x3fb8aa3b, v{RS_B+j}")
            for j in range(2):
                k(f"v_mul_f32 v{RL_A+j}, 0x3fb8aa3b, v{RS_A+j}")
        else:
            k.ds_all()

    ONES = vPQ + 4

    def set_ones(r):
        for j in range(4):
            k(f"v_mov_b32 v{r+j}, 0x3f803f80")

    def colsum(units, ones, outacc):
        frags = []
        blocks = []
        for (base, stride, kind, blk) in units:
            nb = 2 if kind == "pair" else 1
            for b in range(nb):
                blocks.append(blk + b)
        bi = 0
        for (base, stride, kind, blk) in units:
            k(f"s_mul_i32 s{sT2}, s{sW}, {4*stride}")
            k(f"s_add_u32 s{sT2}, s{sT2}, {base}")
            fr = []
            if kind == "pair":
                k(f"v_add_u32 v{vA0}, s{sT2}, v{vTR0}")
                k(f"v_add_u32 v{vA1}, s{sT2}, v{vTR1}")
                for j in range(4):
                    for b in range(2):
                        fr.append(dict(addr=(vA0, vA1)[b], o0=j * stride, o1=j * stride + 1024,
                                       mf=[(outacc + 4 * (bi + b), ones, False, j == 0, None)]))
                bi += 2
            else:
                k(f"v_lshl_add_u32 v{vA2}, v{vLANE}, 3, s{sT2}")
                for j in range(4):
                    fr.append(dict(addr=vA2, o0=j * stride, o1=j * stride + 512,
                                   mf=[(outacc + 4 * bi, ones, False, j == 0, None)]))
                bi += 1
            k.gemm(fr, D=7)
        k("s_nop 7")
        k(f"v_add_u32 v{vT0}, {L_CS}, v{vL4}")
        k("s_mov_b64 exec, 0xffff")
        for j, blk in enumerate(blocks):
            k.lds(f"ds_add_f32 v{vT0}, v{outacc+4*j} offset:{blk*64}")
        k("s_mov_b64 exec, -1")

    def phi_block(acc, nm, cs, rl, rs, dst, tmp, lay):
        bc = bcast
        s1, s2, s3, s4, s5 = [], [], [], [], []
        for p in range(2):
            a2 = vr(acc + 2*p, 2)
            t2 = vr(tmp + 2*p, 2)
            if lay == "b":
                c2, m = bc(cs, 1, 3)
                s1.append(f"v_pk_fma_f32 {a2}, {vr(nm+2*p,2)}, {c2}, {a2}{m}")
                s2.append(f"v_pk_mul_f32 {t2}, {a2}, {vr(rl+2*p,2)}")
                s4.append(f"v_pk_fma_f32 {a2}, {a2}, {vr(rs+2*p,2)}, {t2}")
            else:
                c2, m = bc(nm, 1, 3)
                s1.append(f"v_pk_fma_f32 {a2}, {vr(cs+2*p,2)}, {c2}, {a2}{m}")
                c2, m = bc(rl, 1, 2)
                s2.append(f"v_pk_mul_f32 {t2}, {a2}, {c2}{m}")
                c2, m = bc(rs, 1, 3)
                s4.append(f"v_pk_fma_f32 {a2}, {a2}, {c2}, {t2}{m}")
            for j in range(2):
                s3.append(f"v_exp_f32 v{tmp+2*p+j}, v{tmp+2*p+j} clamp")
            s5.append(f"v_pk_add_f32 {a2}, {a2}, s[{sEPS}:{sEPS+1}]")
        for s in s1 + s2 + s3:
            k(s)
        for j in range(4):
            k(f"v_max_f32 v{acc+j}, 0, v{acc+j}")
        for s in s4 + s5:
            k(s)
        for p in range(2):
            k(f"v_cvt_pk_bf16_f32 v{dst+p}, v{acc+2*p}, v{acc+2*p+1}")

    def bcast(r, pos, n):
        lo = [0] * n
        hi = [1] * n
        if r % 2 == 0:
            hi[pos] = 0
        else:
            lo[pos] = 1
        f = lambda x: "[" + ",".join(map(str, x)) + "]"
        return vr(r & ~1, 2), f" op_sel:{f(lo)} op_sel_hi:{f(hi)}"

    def load_act(bufoff, nst, stoff):
        if nst:
            k(f"s_mul_i32 s{sT2}, s{sW}, {nst*1024}")
            k(f"s_add_u32 s{sT2}, s{sT2}, s{sGB}")
            k(f"s_add_u32 s{sT2}, s{sT2}, {stoff}")
            for j in range(nst):
                k.vmem(f"buffer_load_dwordx4 {vr(vACC+32+4*j,4)}, v{vL16}, {srd(S_WS)}, s{sT2} offen offset:{j*1024} sc1", "stg")
        for ks in range(16):
            if ks % 4 == 0:
                k(f"s_add_u32 s{sT2}, s{sACT}, {bufoff + ks*1024}")
                k(f"s_add_u32 s{sT3}, s{sACT}, {bufoff + ks*1024 + 16384}")
            for rb in range(2):
                k.vmem(f"buffer_load_dwordx4 {vr(act(ks,rb),4)}, v{vL16}, {srd(S_WS)}, s{sT2 if rb == 0 else sT3} offen offset:{(ks%4)*1024} sc1",
                       ("act", ks, rb))

    def sum_stat_granules(nst):
        k.vm_wait("stg")
        g0 = vACC + 32
        if nst == 4:
            k(f"v_pk_add_f32 {vr(g0,2)}, {vr(g0,2)}, {vr(g0+8,2)}")
            k(f"v_pk_add_f32 {vr(g0+2,2)}, {vr(g0+2,2)}, {vr(g0+10,2)}")
            k(f"v_pk_add_f32 {vr(g0+4,2)}, {vr(g0+4,2)}, {vr(g0+12,2)}")
            k(f"v_pk_add_f32 {vr(g0+6,2)}, {vr(g0+6,2)}, {vr(g0+14,2)}")
        k(f"v_pk_add_f32 {vr(SUM0,2)}, {vr(g0,2)}, {vr(g0+4,2)}")
        k(f"v_pk_add_f32 {vr(SUM1,2)}, {vr(g0+2,2)}, {vr(g0+6,2)}")

    def pair_frags(base, stride, accs, sw, nks=16, wait=True, a0=vA0, a1=vA1):
        out = []
        for ks in range(nks):
            l = []
            for b in range(2):
                l.append(dict(addr=(a0, a1)[b], o0=base + ks * stride, o1=base + ks * stride + 1024,
                              mf=[(accs[b] + 4 * rb, act(ks, rb), sw, ks == 0, ("act", ks, rb) if wait else None) for rb in range(2)]))
            out.append(l)
        return out

    def w1_dma(part):
        k(f"s_movk_i32 s{sT1}, 3584")
        k(f"s_lshr_b32 s{sT2}, s{sC}, 2")
        k(f"s_mul_i32 s{sT2}, s{sT2}, 896")
        k(f"s_mul_i32 s{sT3}, s{sW}, {128*3584}")
        k(f"s_add_u32 s{sT2}, s{sT2}, s{sT3}")
        k(f"s_and_b32 s{sT4}, s{sC}, 3")
        if part == 1:
            k(f"v_mad_u32_u24 v{vDM}, v{vP}, s{sT1}, v{vCH}")
            k(f"s_lshl_b32 s{sT4}, s{sT4}, 7")
            k(f"s_add_u32 s{sT2}, s{sT2}, s{sT4}")
            k(f"s_lshl_b32 s{sT3}, s{sW}, 14")
            for j in range(4):
                for hh in range(2):
                    for pr in range(2):
                        k.dma(S_W1, vDM, (sT2, (j * 32 + hh * 16) * 3584 + 64 * pr),
                              (sT3, L_KV + j * 4096 + pr * 2048 + hh * 1024), "w1")
        else:
            k(f"v_mad_u32_u24 v{vDM}, v{vP}, s{sT1}, v{vCH}")
            k(f"s_mul_i32 s{sT0}, s{sT4}, 3")
            k(f"s_add_u32 s{sT0}, s{sT0}, 17")
            k(f"s_lshr_b32 s{sT0}, s{sT0}, 1")
            k(f"s_lshl_b32 s{sT0}, s{sT0}, 6")
            k(f"s_add_u32 s{sT0}, s{sT0}, s{sT2}")
            k(f"s_lshl_b32 s{sT3}, s{sW}, 13")
            for j in range(4):
                for hh in range(2):
                    k.dma(S_W1, vDM, (sT0, (j * 32 + hh * 16) * 3584), (sT3, L_Q + j * 2048 + hh * 1024), "w1")
            k(f"s_lshr_b32 s{sT0}, s{sT4}, 1")
            k(f"s_mul_i32 s{sT0}, s{sT0}, 6")
            k(f"s_and_b32 s{sT4}, s{sT4}, 1")
            k(f"s_add_u32 s{sT0}, s{sT0}, s{sT4}")
            k(f"s_add_u32 s{sT0}, s{sT0}, 18")
            k(f"s_lshl_b32 s{sT0}, s{sT0}, 5")
            k(f"s_add_u32 s{sT0}, s{sT0}, s{sT2}")
            k(f"v_lshrrev_b32 v{vT0}, 1, v{vLANE}")
            k(f"v_and_b32 v{vT1}, 1, v{vLANE}")
            k(f"v_lshlrev_b32 v{vT1}, 4, v{vT1}")
            k(f"v_mad_u32_u24 v{vDM}, v{vT0}, s{sT1}, v{vT1}")
            k(f"s_lshl_b32 s{sT3}, s{sW}, 12")
            for j in range(4):
                k.dma(S_W1, vDM, (sT0, j * 32 * 3584), (sT3, L_LONE + j * 1024), "w1")

    def row_stats(regs0, regs1):
        a, b, c, d = vT0, vT1, vT2, vT3
        for r in (a, b, c, d):
            k(f"v_mov_b32 v{r}, 0")
        for r0, r1 in zip(regs0, regs1):
            k(f"v_dot2c_f32_bf16 v{a}, 0x3f803f80, v{r0}")
            k(f"v_dot2c_f32_bf16 v{b}, v{r0}, v{r0}")
            k(f"v_dot2c_f32_bf16 v{c}, 0x3f803f80, v{r1}")
            k(f"v_dot2c_f32_bf16 v{d}, v{r1}, v{r1}")

    for layer in range(2):
        L1 = layer == 0
        pay_sc1 = L1 and not o.get("l1plain", 0)
        if not L1:
            k(f"s_lshl_b32 s{sT4}, s{sW}, 7")
            k(f"s_add_u32 s{sT4}, s{sT4}, s{sGB}")
            k(f"s_add_u32 s{sT4}, s{sT4}, {G_FX2}")
            k.poll(16, sT4)
            k.stamp("A.poll")
            k(f"s_add_u32 s{sTAG}, s{sTAG}, 1")
            load_act(G_X2, 2, G_ST2)
            k(f"s_lshl_b32 s{sT2}, s{sC}, 10")
            k(f"s_add_u32 s{sT2}, s{sT2}, s{sACT}")
            k(f"s_add_u32 s{sT2}, s{sT2}, {G_X2}")
            k(f"s_add_u32 s{sT3}, s{sT2}, 16384")
            for rb in range(2):
                k.vmem(f"buffer_load_dwordx4 {vr(vRES+4*rb,4)}, v{vL16}, {srd(S_WS)}, s{sT2 if rb == 0 else sT3} offen sc1", "res")
        else:
            k.vm_wait("wkv")
        k.barrier()
        k.stamp("A.wbar")
        wqkv_dma(layer, "q")
        if L1:
            k(f"v_lshl_add_u32 v{vDM}, v{vP}, 10, v{vCH}")
            k(f"s_lshl_b32 s{sT2}, s{sW}, 17")
            k(f"s_lshl_b32 s{sT3}, s{sC}, 6")
            k(f"s_add_u32 s{sT2}, s{sT2}, s{sT3}")
            k(f"s_lshl_b32 s{sT3}, s{sW}, 13")
            for j in range(4):
                for hh in range(2):
                    k.dma(S_WO, vDM, (sT2, (j * 32 + hh * 16) * 1024), (sT3, L_WO + j * 2048 + hh * 1024), "wo")
            k(f"s_and_b32 s{sT2}, s{sW}, 1")
            k(f"s_lshl1_add_u32 s{sT2}, s2, s{sT2}")
            k(f"s_lshr_b32 s{sT3}, s{sW}, 1")
            k(f"s_lshl_b32 s{sT3}, s{sT3}, 10")
            k(f"s_add_u32 s{sRB+3}, s{sT2}, s{sT3}")
            k(f"s_lshr_b32 s{sT3}, s{sT2}, 3")
            k(f"s_and_b32 s{sT2}, s{sT2}, 7")
            k(f"s_mul_i32 s{sRB}, s{sT2}, 56")
            k(f"s_add_u32 s{sRB}, s{sRB}, s{sT3}")
            k(f"s_lshl_b32 s{sRB}, s{sRB}, 12")
            k(f"s_add_u32 s{sRB}, s{sRB}, {WS_W2T}")
            k(f"s_lshl_b32 s{sT3}, s{sT3}, 15")
            k(f"s_lshl_b32 s{sT2}, s{sT2}, 7")
            k(f"s_add_u32 s{sT2}, s{sT2}, s{sT3}")
            lsk = k.label("L_tp")
            k(f"s_cmp_ge_u32 s{sRB+3}, 448")
            k(f"s_cbranch_scc1 {lsk}")
            k(f"s_lshl_b32 s{sT3}, s{sW}, 12")
            for hh in range(2):
                for pr in range(2):
                    k.dma(S_W2, vDM, (sT2, hh * 16 * 1024 + pr * 64), (sT3, L_TP + pr * 2048 + hh * 1024), None)
                    k.vm.pop()
            k(f"{lsk}:")
            set_ones(ONES)
            colsum([(L_KV, 4096, "pair", 0), (L_KV + 2048, 4096, "pair", 2)], ONES, vACC)
            stats_finalize(True)
            k.stamp("A.cs")
        k(f"v_mov_b32 v{vA0}, v{vTR0}")
        k(f"v_mov_b32 v{vA1}, v{vTR1}")
        if not L1:
            sum_stat_granules(2)
            stats_finalize(True)
        fk = pair_frags(L_KV, 4096, [vACC, vACC + 8], False, wait=not L1)
        fv = pair_frags(L_KV + 2048, 4096, [vACC + 16, vACC + 24], False, wait=not L1)
        k.gemm([f for ks in range(16) for f in fk[ks] + fv[ks]])
        k.stamp("A.kv")
        if L1:
            k.barrier()
        CS = vT0
        k(f"v_and_b32 v{vWB}, 15, v{vLANE}")
        k(f"v_lshlrev_b32 v{vWB}, 2, v{vWB}")
        k(f"v_add_u32 v{vWB}, {L_CS}, v{vWB}")
        k.lds(f"ds_read2_b32 {vr(CS,2)}, v{vWB} offset0:0 offset1:16")
        k.lds(f"ds_read2_b32 {vr(CS+2,2)}, v{vWB} offset0:32 offset1:48")
        set_ones(vWB + 28)
        k.ds_all()
        k("s_nop 2")
        PK, PV = vWB + 8, vWB + 16
        for h in range(2):
            for rb in range(2):
                phi_block(vACC + 8*h + 4*rb, NM_B + 4*rb, CS + h, RL_B + 4*rb, RS_B + 4*rb, PK + 4*h + 2*rb, vWB, "b")
        for h in range(2):
            for rb in range(2):
                a = vACC + 16 + 8*h + 4*rb
                c2, m = bcast(CS + 2 + h, 1, 3)
                for p in range(2):
                    k(f"v_pk_fma_f32 {vr(a+2*p,2)}, {vr(NM_B+4*rb+2*p,2)}, {c2}, {vr(a+2*p,2)}{m}")
                for p in range(2):
                    k(f"v_pk_mul_f32 {vr(a+2*p,2)}, {vr(a+2*p,2)}, {vr(RS_B+4*rb+2*p,2)}")
                for p in range(2):
                    k(f"v_cvt_pk_bf16_f32 v{PV+4*h+2*rb+p}, v{a+2*p}, v{a+2*p+1}")
        k(f"s_lshl_b32 s{sT2}, s{sW}, 10")
        k(f"s_add_u32 s{sT2}, s{sT2}, {L_LONE}")
        k(f"v_add_u32 v{vT0}, s{sT2}, v{vL16}")
        for h in range(2):
            k(f"v_mfma_f32_16x16x32_bf16 {vr(vACC+8*h,4)}, {vr(PK+4*h,4)}, {vr(PV+4*h,4)}, 0")
            k(f"v_mfma_f32_16x16x32_bf16 {vr(vACC+8*h+4,4)}, {vr(vWB+28,4)}, {vr(PK+4*h,4)}, 0")
        k(f"s_lshl_b32 s{sT2}, s{sW}, 12")
        k(f"s_add_u32 s{sT2}, s{sT2}, {L_LONE}")
        k(f"v_add_u32 v{vT1}, s{sT2}, v{vL16}")
        k("s_nop 5")
        for h in range(2):
            k.lds(f"ds_write_b128 v{vT0}, {vr(vACC+8*h,4)} offset:{(2*h)*4096}")
            k.lds(f"ds_write_b128 v{vT0}, {vr(vACC+8*h+2,4)} offset:{(2*h+1)*4096}")
        if L1:
            k.vm_all()
            lsk = k.label("L_tq")
            k(f"s_cmp_ge_u32 s{sRB+3}, 448")
            k(f"s_cbranch_scc1 {lsk}")
            k(f"s_lshl_b32 s{sT3}, s{sW}, 12")
            k(f"s_add_u32 s{sT3}, s{sT3}, {L_TP}")
            k(f"v_add_u32 v{vA0}, s{sT3}, v{vTR0}")
            k(f"v_add_u32 v{vA1}, s{sT3}, v{vTR1}")
            for f in range(4):
                for hh in range(2):
                    k(f"ds_read_b64_tr_b16 {vr(vWB+4*f+2*hh,2)}, v{(vA0,vA1)[f&1]} offset:{(f>>1)*2048+hh*1024}")
            k("s_waitcnt lgkmcnt(0)")
            for f in range(4):
                k(f"buffer_store_dwordx4 {vr(vWB+4*f,4)}, v{vL16}, {srd(S_WS)}, s{sRB} offen offset:{f*1024} sc1")
            k("s_waitcnt vmcnt(0)")
            k(f"{lsk}:")
        else:
            k.vm_wait("wq")
        k.barrier()
        for s in range(4):
            k.lds(f"ds_read_b128 {vr(vWB+4*s,4)}, v{vT1} offset:{s*1024}", ("kr", s))
        k(f"s_lshl_b32 s{sT2}, s{sC}, 2")
        k(f"s_add_u32 s{sT2}, s{sT2}, s{sW}")
        k(f"s_lshl_b32 s{sT2}, s{sT2}, 14")
        k(f"s_add_u32 s{sRB}, s{sT2}, {WS_KVX + layer*0x100000}")
        k(f"s_lshl_b32 s{sT2}, s{sG}, 10")
        k(f"s_add_u32 s{sT2}, s{sT2}, s{sRB}")
        k.ds_wait(("kr", 1))
        k(f"v_pk_add_f32 {vr(vWB,2)}, {vr(vWB,2)}, {vr(vWB+4,2)}")
        k(f"v_add_f32 v{vWB+2}, v{vWB+2}, v{vWB+6}")
        k.ds_wait(("kr", 3))
        k(f"v_pk_add_f32 {vr(vWB+8,2)}, {vr(vWB+8,2)}, {vr(vWB+12,2)}")
        k(f"v_add_f32 v{vWB+10}, v{vWB+10}, v{vWB+14}")
        k(f"v_mov_b32 v{vWB+3}, s{sTAG}")
        k(f"v_pk_add_f32 {vr(vWB,2)}, {vr(vWB,2)}, {vr(vWB+8,2)}")
        k(f"v_add_f32 v{vWB+2}, v{vWB+2}, v{vWB+10}")
        k.vmem(f"buffer_store_dwordx4 {vr(vWB,4)}, v{vL16}, {srd(S_WS)}, s{sT2} offen sc1", "kvst")
        k.stamp("A.kvpub")
        w1_dma(1)
        if L1:
            set_ones(ONES)
            colsum([(L_Q, 2048, "pair", 4)], ONES, vACC)
        k(f"v_add_u32 v{vA0}, {L_Q}, v{vTR0}")
        k(f"v_add_u32 v{vA1}, {L_Q}, v{vTR1}")
        fq = pair_frags(0, 2048, [vACC, vACC + 8], True, wait=False)
        k.gemm([f for ks in range(16) for f in fq[ks]])
        if L1:
            k.barrier()
        k(f"v_and_b32 v{vT0}, 48, v{vLANE}")
        k(f"v_add_u32 v{vT0}, {L_CS}, v{vT0}")
        for h in range(2):
            k.lds(f"ds_read_b128 {vr(vWB+8+4*h,4)}, v{vT0} offset:{(4+h)*64}")
        k.ds_all()
        k("s_nop 4")
        for h in range(2):
            for rb in range(2):
                phi_block(vACC + 8*h + 4*rb, NM_A + rb, vWB + 8 + 4*h, RL_A + rb, RS_A + rb, vPQ + 4*h + 2*rb, vWB, "a")
        k.stamp("A.q")
        if L1:
            lp, done = k.label("L_xp"), k.label("L_xd")
            k(f"s_lshl_b32 s{sT4}, s{sG}, 7")
            k(f"s_add_u32 s{sT4}, s{sT4}, {WS_XID}")
            k(f"s_add_u32 s{sT3}, s{sTAG}, 2")
            k("s_mov_b64 exec, 0xffff")
            k(f"{lp}:")
            k(f"buffer_load_dword v{vT0}, v{vL4}, {srd(S_WS)}, s{sT4} offen sc1")
            k.vm_all()
            k(f"v_subrev_u32 v{vT0}, s{sT3}, v{vT0}")
            k(f"v_cmp_lt_u32 vcc, 8, v{vT0}")
            k(f"s_cbranch_vccz {done}")
            k(f"s_sub_u32 s{sBUD}, s{sBUD}, 1")
            k(f"s_cbranch_scc0 {lp}")
            k(f"s_mov_b32 s{sBUD}, 0")
            k(f"{done}:")
            k(f"v_cmp_ne_u32 vcc, s{sXCC}, v{vT0}")
            k("s_mov_b64 exec, -1")
            k("s_nop 3")
            k(f"s_or_b32 s{sSLOW}, vcc_lo, {1 if o.get('forceslow') else 0}")
        lp, done = k.label("L_kp"), k.label("L_kd")
        k.vm_all()
        k(f"{lp}:")
        for j in range(16):
            if j % 4 == 0:
                k(f"s_add_u32 s{sT2}, s{sRB}, {j*1024}")
            k.vmem(f"buffer_load_dwordx4 {vr(vACT+4*j,4)}, v{vL16}, {srd(S_WS)}, s{sT2} offen offset:{(j%4)*1024} sc1", ("kv", j))
        SM = vWB
        for j in range(0, 16, 2):
            a, b = vACT + 4*j, vACT + 4*j + 4
            k.vm_wait(("kv", j + 1))
            if j == 0:
                k(f"v_pk_add_f32 {vr(SM,2)}, {vr(a,2)}, {vr(b,2)}")
                k(f"v_add_f32 v{SM+2}, v{a+2}, v{b+2}")
                k(f"v_min_u32 v{SM+4}, v{a+3}, v{b+3}")
                k(f"v_max_u32 v{SM+5}, v{a+3}, v{b+3}")
            else:
                k(f"v_pk_add_f32 {vr(a,2)}, {vr(a,2)}, {vr(b,2)}")
                k(f"v_add_f32 v{a+2}, v{a+2}, v{b+2}")
                k(f"v_min3_u32 v{SM+4}, v{a+3}, v{b+3}, v{SM+4}")
                k(f"v_max3_u32 v{SM+5}, v{a+3}, v{b+3}, v{SM+5}")
                k(f"v_pk_add_f32 {vr(SM,2)}, {vr(SM,2)}, {vr(a,2)}")
                k(f"v_add_f32 v{SM+2}, v{SM+2}, v{a+2}")
        k(f"v_xor_b32 v{SM+4}, s{sTAG}, v{SM+4}")
        k(f"v_xor_b32 v{SM+5}, s{sTAG}, v{SM+5}")
        k(f"v_or_b32 v{SM+4}, v{SM+4}, v{SM+5}")
        k(f"v_cmp_ne_u32 vcc, 0, v{SM+4}")
        k(f"s_cbranch_vccz {done}")
        k(f"s_sub_u32 s{sBUD}, s{sBUD}, 4")
        k(f"s_cbranch_scc0 {lp}")
        k(f"s_mov_b32 s{sBUD}, 0")
        k(f"{done}:")
        k.stamp("A.kvget")
        k(f"""
        v_cvt_pk_bf16_f32 v{SM}, v{SM}, v{SM+1}
        v_cvt_pk_bf16_f32 v{SM+2}, v{SM+2}, v{SM+2}
        s_lshr_b32 s{sT2}, s{sW}, 1
        s_lshl_b32 s{sT2}, s{sT2}, 9
        s_and_b32 s{sT3}, s{sW}, 1
        s_lshl2_add_u32 s{sT2}, s{sT3}, s{sT2}
        s_add_u32 s{sT2}, s{sT2}, {L_XB}
        v_lshl_add_u32 v{vT0}, v{vLANE}, 3, s{sT2}
        s_lshl_b32 s{sT2}, s{sW}, 5
        s_add_u32 s{sT2}, s{sT2}, {L_ZB}
        v_and_b32 v{vT1}, 15, v{vLANE}
        v_lshl_add_u32 v{vT1}, v{vT1}, 1, s{sT2}
        """)
        k.lds(f"ds_write_b32 v{vT0}, v{SM}")
        k.lds(f"ds_write_b16 v{vT1}, v{SM+2}")
        k(f"v_lshlrev_b32 v{vT0}, 3, v{vLANE}")
        k(f"v_add_u32 v{vT0}, {L_XB}, v{vT0}")
        k(f"v_lshrrev_b32 v{vT1}, 4, v{vLANE}")
        k(f"v_lshlrev_b32 v{vT1}, 3, v{vT1}")
        k(f"v_add_u32 v{vT1}, {L_ZB}, v{vT1}")
        k.barrier()
        for h in range(2):
            k.lds(f"ds_read_b64 {vr(vWB+4*h,2)}, v{vT0} offset:{512*h}")
            k.lds(f"ds_read_b64 {vr(vWB+4*h+2,2)}, v{vT1} offset:{(2*h+1)*32}")
        k.ds_all()
        for rb in range(2):
            for h in range(2):
                d = vACC + 16*rb + 8*h
                k(f"v_mfma_f32_16x16x16_bf16 {vr(d+4,4)}, {vr(vWB+4*h+2,2)}, {vr(vPQ+4*h+2*rb,2)}, 0")
                k(f"v_mfma_f32_16x16x16_bf16 {vr(d,4)}, {vr(vWB+4*h,2)}, {vr(vPQ+4*h+2*rb,2)}, 0")
        k(f"s_lshl_b32 s{sT2}, s{sC}, 10")
        k(f"s_add_u32 s{sT2}, s{sT2}, s{sACT}")
        k(f"s_add_u32 s{sT2}, s{sT2}, {G_O}")
        k(f"s_add_u32 s{sT3}, s{sT2}, 16384")
        k("s_nop 3")
        for rb in range(2):
            for h in range(2):
                d = vACC + 16*rb + 8*h
                k(f"v_add_f32 v{d+4}, s{sEPS}, v{d+4}")
        for rb in range(2):
            for h in range(2):
                d = vACC + 16*rb + 8*h
                k(f"v_rcp_f32 v{d+4}, v{d+4}")
        k("s_nop 0")
        for rb in range(2):
            for h in range(2):
                d = vACC + 16*rb + 8*h
                for p in range(2):
                    k(f"v_pk_mul_f32 {vr(d+2*p,2)}, {vr(d+2*p,2)}, {vr(d+4,2)} op_sel_hi:[1,0]")
                for p in range(2):
                    k(f"v_cvt_pk_bf16_f32 v{vWB+8+4*rb+2*h+p}, v{d+2*p}, v{d+2*p+1}")
        k.stores([f"buffer_store_dwordx4 {vr(vWB+8+4*rb,4)}, v{vL16}, {srd(S_WS)}, s{sT2 if rb == 0 else sT3} offen" for rb in range(2)], pay_sc1)
        k(f"s_lshl_b32 s{sT4}, s{sW}, 7")
        k(f"s_add_u32 s{sT4}, s{sT4}, s{sGB}")
        k(f"s_lshl2_add_u32 s{sT2}, s{sC}, s{sT4}")
        for rb in range(2):
            for b in range(2):
                for p in range(2):
                    r = vRES + 4*rb + 2*b + p
                    d = vACC + 8*b + 4*rb + 2*p
                    k(f"v_lshlrev_b32 v{d}, 16, v{r}")
                    k(f"v_and_b32 v{d+1}, 0xffff0000, v{r}")
        k.flag(sT2)
        k.stamp("A.opub")
        k.poll(16, sT4)
        k.stamp("B.poll")
        load_act(G_O, 0, 0)
        w1_dma(2)
        k(f"v_add_u32 v{vA0}, {L_WO}, v{vTR0}")
        k(f"v_add_u32 v{vA1}, {L_WO}, v{vTR1}")
        fb = pair_frags(0, 2048, [vACC, vACC + 8], True)
        for l in fb[0]:
            l["mf"] = [(a, b, c, False, e) for (a, b, c, d, e) in l["mf"]]
        k.gemm([f for ks in range(16) for f in fb[ks]])
        k.stamp("B.mm")
        k(f"s_lshl_b32 s{sT2}, s{sC}, 10")
        k(f"s_add_u32 s{sT2}, s{sT2}, s{sACT}")
        k(f"s_add_u32 s{sT2}, s{sT2}, {G_X1}")
        k(f"s_add_u32 s{sT3}, s{sT2}, 16384")
        k(f"s_lshl_b32 s{sT0}, s{sW}, 4")
        k(f"s_add_u32 s{sT0}, s{sT0}, s{sC}")
        k(f"s_lshl_b32 s{sT0}, s{sT0}, 8")
        k(f"s_add_u32 s{sT0}, s{sT0}, s{sGB}")
        k(f"s_add_u32 s{sT0}, s{sT0}, {G_ST1}")
        XO = vWB
        for rb in range(2):
            for b in range(2):
                for p in range(2):
                    d = vACC + 8*b + 4*rb + 2*p
                    k(f"v_cvt_pk_bf16_f32 v{XO+4*rb+2*b+p}, v{d}, v{d+1}")
        k.stores([f"buffer_store_dwordx4 {vr(XO+4*rb,4)}, v{vL16}, {srd(S_WS)}, s{sT2 if rb == 0 else sT3} offen" for rb in range(2)], pay_sc1)
        row_stats([XO + j for j in range(4)], [XO + 4 + j for j in range(4)])
        k(f"""
        v_and_b32 v{vWB+8}, 15, v{vLANE}
        v_lshrrev_b32 v{vWB+9}, 4, v{vLANE}
        v_lshlrev_b32 v{vWB+9}, 2, v{vWB+9}
        v_lshl_add_u32 v{vWB+8}, v{vWB+8}, 4, v{vWB+9}
        v_permlane32_swap_b32 v{vT0}, v{vT2}
        v_permlane32_swap_b32 v{vT1}, v{vT3}
        s_nop 0
        v_add_f32 v{vT0}, v{vT0}, v{vT2}
        v_add_f32 v{vT1}, v{vT1}, v{vT3}
        s_nop 1
        v_permlane16_swap_b32 v{vT0}, v{vT1}
        s_nop 0
        v_add_f32 v{vT2}, v{vT0}, v{vT1}
        """)
        k.stores([f"buffer_store_dword v{vT2}, v{vWB+8}, {srd(S_WS)}, s{sT0} offen"], pay_sc1)
        k(f"s_lshl_b32 s{sT4}, s{sW}, 7")
        k(f"s_add_u32 s{sT4}, s{sT4}, s{sGB}")
        k(f"s_add_u32 s{sT4}, s{sT4}, {G_FX1}")
        k(f"s_lshl2_add_u32 s{sT2}, s{sC}, s{sT4}")
        k.flag(sT2)
        k.stamp("B.pub")
        k.barrier()
        if L1:
            set_ones(ONES)
            colsum([(L_KV, 4096, "pair", 6), (L_KV + 2048, 4096, "pair", 8), (L_Q, 2048, "pair", 10), (L_LONE, 1024, "lone", 12)], ONES, vACC)
            k.barrier()
        k.poll(16, sT4)
        k.stamp("C.poll")
        load_act(G_X1, 4, G_ST1)
        k(f"v_mov_b32 v{vA0}, v{vTR0}")
        k(f"v_mov_b32 v{vA1}, v{vTR1}")
        sum_stat_granules(4)
        stats_finalize(False)
        f0 = pair_frags(L_KV, 4096, [vACC, vACC + 8], True)
        f1 = pair_frags(L_KV + 2048, 4096, [vACC + 16, vACC + 24], True)
        k.gemm([f for ks in range(16) for f in f0[ks] + f1[ks]])
        k.stamp("C.mm1")

        def relu_block(acc, cs, rb, dst):
            c2, m = bcast(NM_A + rb, 1, 3)
            for p in range(2):
                k(f"v_pk_fma_f32 {vr(acc+2*p,2)}, {vr(cs+2*p,2)}, {c2}, {vr(acc+2*p,2)}{m}")
            c2, m = bcast(RS_A + rb, 1, 2)
            for p in range(2):
                k(f"v_pk_mul_f32 {vr(acc+2*p,2)}, {vr(acc+2*p,2)}, {c2}{m}")
            for p in range(2):
                k(f"v_cvt_pk_bf16_f32 v{dst+p}, v{acc+2*p}, v{acc+2*p+1}")
            for p in range(2):
                k(f"v_pk_max_i16 v{dst+p}, v{dst+p}, 0")

        k(f"s_mul_i32 s{sT0}, s{sW}, {2*57344}")
        k(f"s_add_u32 s{sT0}, s{sT0}, s{sGB}")
        k(f"s_lshr_b32 s{sT1}, s{sC}, 2")
        k(f"s_mul_i32 s{sT1}, s{sT1}, 14336")
        k(f"s_add_u32 s{sT0}, s{sT0}, s{sT1}")
        k(f"s_add_u32 s{sRB}, s{sT0}, {G_H}")
        k(f"s_and_b32 s{sRB+1}, s{sC}, 3")
        k(f"s_lshl_b32 s{sT1}, s{sRB+1}, 11")
        k(f"s_add_u32 s{sT2}, s{sRB}, s{sT1}")
        k(f"s_add_u32 s{sT3}, s{sT2}, 57344")
        k(f"s_lshr_b32 s{sT0}, s{sW}, 1")
        k(f"s_lshl_b32 s{sT0}, s{sT0}, 2")
        k(f"s_lshr_b32 s{sT1}, s{sC}, 2")
        k(f"s_add_u32 s{sT0}, s{sT0}, s{sT1}")
        k(f"s_lshl_b32 s{sT0}, s{sT0}, 7")
        k(f"s_and_b32 s{sT1}, s{sW}, 1")
        k(f"s_lshl1_add_u32 s{sT1}, s{sRB+1}, s{sT1}")
        k(f"s_lshl2_add_u32 s{sT0}, s{sT1}, s{sT0}")
        k(f"s_add_u32 s{sT0}, s{sT0}, s{sGB}")
        k(f"s_add_u32 s{sRB+2}, s{sT0}, {G_FH}")
        k(f"v_and_b32 v{vT0}, 48, v{vLANE}")
        k(f"v_add_u32 v{vT0}, {L_CS}, v{vT0}")
        for b in range(4):
            k.lds(f"ds_read_b128 {vr(vWB+4*b,4)}, v{vT0} offset:{(6+b)*64}")
        k.ds_all()
        HO = vWB + 16
        for rb in range(2):
            for b in range(4):
                relu_block(vACC + 8*b + 4*rb, vWB + 4*b, rb, HO + 8*rb + 2*b)
        k.stores([f"buffer_store_dwordx4 {vr(HO+8*rb+4*s,4)}, v{vL16}, {srd(S_WS)}, s{sT2 if rb == 0 else sT3} offen offset:{s*1024}"
                  for rb in range(2) for s in range(2)], pay_sc1)
        k.flag(sRB + 2)
        k.stamp("C.pub1")
        if L1:
            k(f"s_lshl_b32 s{sT0}, s{sCT}, 2")
            k(f"s_add_u32 s{sT0}, s{sT0}, s{sW}")
            k(f"s_mul_i32 s{sT0}, s{sT0}, 57344")
            k(f"s_add_u32 s{sT0}, s{sT0}, {WS_W2T}")
            for j in range(56):
                if j % 4 == 0:
                    k(f"s_add_u32 s{sT2}, s{sT0}, {j*1024}")
                k.vmem(f"buffer_load_dwordx4 {ar(4*j,4)}, v{vL16}, {srd(S_WS)}, s{sT2} offen offset:{(j%4)*1024} sc1", "w2t")
        k(f"v_add_u32 v{vA0}, {L_Q}, v{vTR0}")
        k(f"v_add_u32 v{vA1}, {L_Q}, v{vTR1}")
        k(f"v_lshlrev_b32 v{vA2}, 3, v{vLANE}")
        k(f"v_add_u32 v{vA2}, {L_LONE}, v{vA2}")
        f2 = pair_frags(0, 2048, [vACC, vACC + 8], True, wait=False)
        f3 = [dict(addr=vA2, o0=ks * 1024, o1=ks * 1024 + 512,
                   mf=[(vACC + 16 + 4 * rb, act(ks, rb), True, ks == 0, None) for rb in range(2)]) for ks in range(16)]
        k.gemm([f for ks in range(16) for f in f2[ks] + [f3[ks]]])
        k.stamp("C.mm2")
        k(f"v_and_b32 v{vT0}, 48, v{vLANE}")
        k(f"v_add_u32 v{vT0}, {L_CS}, v{vT0}")
        for b in range(3):
            k.lds(f"ds_read_b128 {vr(vWB+4*b,4)}, v{vT0} offset:{(10+b)*64}")
        k(f"s_mul_i32 s{sT0}, s{sRB+1}, 3")
        k(f"s_add_u32 s{sT0}, s{sT0}, 17")
        k(f"s_lshr_b32 s{sT0}, s{sT0}, 1")
        k(f"s_lshl_b32 s{sT0}, s{sT0}, 10")
        k(f"s_add_u32 s{sT2}, s{sRB}, s{sT0}")
        k(f"s_add_u32 s{sT3}, s{sT2}, 57344")
        k(f"s_lshr_b32 s{sT0}, s{sRB+1}, 1")
        k(f"s_mul_i32 s{sT0}, s{sT0}, 3072")
        k(f"s_and_b32 s{sT1}, s{sRB+1}, 1")
        k(f"s_lshl3_add_u32 s{sT0}, s{sT1}, s{sT0}")
        k(f"s_add_u32 s{sT0}, s{sT0}, {9*1024}")
        k(f"s_add_u32 s{sT0}, s{sT0}, s{sRB}")
        k(f"s_add_u32 s{sT1}, s{sT0}, 57344")
        k.barrier()
        for rb in range(2):
            for b in range(3):
                relu_block(vACC + 8*b + 4*rb, vWB + 4*b, rb, HO + 8*rb + 2*b)
        its = []
        for rb in range(2):
            its.append(f"buffer_store_dwordx4 {vr(HO+8*rb,4)}, v{vL16}, {srd(S_WS)}, s{sT2 if rb == 0 else sT3} offen")
            its.append(f"buffer_store_dwordx2 {vr(HO+8*rb+4,2)}, v{vL16}, {srd(S_WS)}, s{sT0 if rb == 0 else sT1} offen")
        k.stores(its, pay_sc1)
        k(f"s_add_u32 s{sRB+2}, s{sRB+2}, 1024")
        k.flag(sRB + 2)
        k.stamp("C.pub2")
        k(f"s_lshl2_add_u32 s{sT4}, s{sDH}, s{sW}")
        k(f"s_lshl_b32 s{sT4}, s{sT4}, 7")
        k(f"s_add_u32 s{sT4}, s{sT4}, s{sGB}")
        k(f"s_add_u32 s{sT4}, s{sT4}, {G_FH}")
        for j in range(4):
            k(f"s_add_u32 s{sT0}, s{sW}, {j}")
            k(f"s_and_b32 s{sT0}, s{sT0}, 3")
            k(f"s_lshl2_add_u32 s{sT0}, s{sDH}, s{sT0}")
            k(f"s_mul_i32 s{sT0}, s{sT0}, 57344")
            k(f"s_mul_i32 s{sT1}, s{sW}, 14336")
            k(f"s_add_u32 s{sT0}, s{sT0}, s{sT1}")
            k(f"s_add_u32 s{sT0}, s{sT0}, s{sGB}")
            k(f"s_add_u32 s{sRB+j}, s{sT0}, {G_H}")
        k.poll(8, sT4)
        k.stamp("D.poll1")

        def hload(ksl, j):
            t = ksl * 4 + j
            if ksl % 4 == 0 and ksl:
                k(f"s_add_u32 s{sRB+j}, s{sRB+j}, 4096")
            k.vmem(f"buffer_load_dwordx4 {vr(vACT+4*(t%32),4)}, v{vL16}, {srd(S_WS)}, s{sRB+j} offen offset:{(ksl%4)*1024} sc1", ("h", t))

        def hmm(t):
            ksl, j = divmod(t, 4)
            k.vm_wait(("h", t))
            for f in range(4):
                a = vACC + 16*j + 4*f
                c = "0" if ksl == 0 else vr(a, 4)
                k(f"v_mfma_f32_16x16x32_bf16 {vr(a,4)}, {ar((ksl*4+f)*4,4)}, {vr(vACT+4*(t%32),4)}, {c}")

        for ksl in range(8):
            for j in range(4):
                hload(ksl, j)
        k(f"s_lshl2_add_u32 s{sT0}, s{sDH}, s{sW}")
        k(f"s_lshl_b32 s{sT0}, s{sT0}, 14")
        k(f"s_lshl_b32 s{sT1}, s{sCT}, 11")
        k(f"s_add_u32 s{sT0}, s{sT0}, s{sT1}")
        k(f"s_add_u32 s{sT0}, s{sT0}, s{sGB}")
        k(f"s_add_u32 s{sT1}, s{sT0}, {G_X1}")
        for s in range(2):
            k.vmem(f"buffer_load_dwordx4 {vr(vRES+4*s,4)}, v{vL16}, {srd(S_WS)}, s{sT1} offen offset:{s*1024} sc1", "res")
        NPRE = o.get("dpre", 16)
        for t in range(NPRE):
            hmm(t)
        k(f"s_add_u32 s{sT4}, s{sT4}, 1024")
        k.poll(8, sT4)
        k.stamp("D.poll2")
        nl = 32
        for t in range(32, 32 + NPRE):
            hload(*divmod(t, 4)); nl += 1
        for t in range(NPRE, 56):
            hmm(t)
            if nl < 56:
                hload(*divmod(nl, 4)); nl += 1
                if nl == 56 and L1:
                    k(f"s_movk_i32 s{sT1}, 3072")
                    k(f"v_mad_u32_u24 v{vDM}, v{vP}, s{sT1}, v{vCH}")
                    wqkv_dma(1, "kv")
        k.stamp("D.mm")
        for j in range(1, 4):
            k(f"s_add_u32 s{sT2}, s{sW}, {j}")
            k(f"s_and_b32 s{sT2}, s{sT2}, 3")
            k(f"s_mul_i32 s{sT2}, s{sT2}, 12288")
            k(f"s_add_u32 s{sT2}, s{sT2}, {L_RED + (j-1)*4096}")
            k(f"v_add_u32 v{vT0+j}, s{sT2}, v{vL16}")
        k(f"s_mul_i32 s{sT2}, s{sW}, 12288")
        k(f"s_add_u32 s{sT2}, s{sT2}, {L_RED}")
        k(f"v_add_u32 v{vT0}, s{sT2}, v{vL16}")
        for j in range(1, 4):
            for f in range(4):
                k.lds(f"ds_write_b128 v{vT0+j}, {vr(vACC+16*j+4*f,4)} offset:{f*1024}")
        for f in range(4):
            for p in range(2):
                r = vRES + 2*f + p
                k(f"v_lshlrev_b32 v{vWB+4*f+2*p}, 16, v{r}")
                k(f"v_and_b32 v{vWB+4*f+2*p+1}, 0xffff0000, v{r}")
        for q in range(8):
            k(f"v_pk_add_f32 {vr(vACC+2*q,2)}, {vr(vACC+2*q,2)}, {vr(vWB+2*q,2)}")
        k.barrier()
        for j in range(3):
            for f in range(4):
                k.lds(f"ds_read_b128 {vr(vACC+16+16*j+4*f,4)}, v{vT0} offset:{j*4096+f*1024}", ("rd", j, f))
        for j in range(3):
            for f in range(4):
                k.ds_wait(("rd", j, f))
                for p in range(2):
                    k(f"v_pk_add_f32 {vr(vACC+4*f+2*p,2)}, {vr(vACC+4*f+2*p,2)}, {vr(vACC+16+16*j+4*f+2*p,2)}")
        XO = vWB
        for f in range(4):
            for p in range(2):
                k(f"v_cvt_pk_bf16_f32 v{XO+2*f+p}, v{vACC+4*f+2*p}, v{vACC+4*f+2*p+1}")
        k.stamp("D.red")
        if L1:
            k(f"s_add_u32 s{sT1}, s{sT0}, {G_X2}")
            k.stores([f"buffer_store_dwordx4 {vr(XO+4*s,4)}, v{vL16}, {srd(S_WS)}, s{sT1} offen offset:{s*1024}" for s in range(2)], pay_sc1)
            row_stats([XO + j for j in range(4)], [XO + 4 + j for j in range(4)])
            k(f"""
            s_lshr_b32 s{sT2}, s{sW}, 1
            s_lshl1_add_u32 s{sT2}, s{sDH}, s{sT2}
            s_lshl3_add_u32 s{sT3}, s{sT2}, s{sCT}
            s_lshl_b32 s{sT3}, s{sT3}, 8
            s_and_b32 s{sT1}, s{sW}, 1
            s_lshl3_add_u32 s{sT3}, s{sT1}, s{sT3}
            s_add_u32 s{sT3}, s{sT3}, s{sGB}
            s_add_u32 s{sT3}, s{sT3}, {G_ST2}
            v_add_f32 v{vT0}, v{vT0}, v{vT2}
            v_add_f32 v{vT1}, v{vT1}, v{vT3}
            v_and_b32 v{vWB+8}, 15, v{vLANE}
            v_lshrrev_b32 v{vWB+9}, 4, v{vLANE}
            v_lshlrev_b32 v{vWB+9}, 2, v{vWB+9}
            v_lshl_add_u32 v{vWB+8}, v{vWB+8}, 4, v{vWB+9}
            v_permlane16_swap_b32 v{vT0}, v{vT1}
            s_nop 0
            v_add_f32 v{vT0}, v{vT0}, v{vT1}
            v_mov_b32 v{vT1}, v{vT0}
            s_nop 1
            v_permlane32_swap_b32 v{vT0}, v{vT1}
            s_nop 0
            v_add_f32 v{vT2}, v{vT0}, v{vT1}
            s_mov_b32 exec_hi, 0
            """)
            k.stores([f"buffer_store_dword v{vT2}, v{vWB+8}, {srd(S_WS)}, s{sT3} offen"], pay_sc1)
            k("s_mov_b64 exec, -1")
            k(f"""
            s_lshl_b32 s{sT2}, s{sT2}, 7
            s_lshl1_add_u32 s{sT1}, s{sCT}, s{sT1}
            s_lshl2_add_u32 s{sT2}, s{sT1}, s{sT2}
            s_add_u32 s{sT2}, s{sT2}, s{sGB}
            s_add_u32 s{sT2}, s{sT2}, {G_FX2}
            """)
            k.flag(sT2)
            k.stamp("D.pub")
        else:
            k(f"""
            v_and_b32 v{vT1}, 15, v{vLANE}
            v_lshlrev_b32 v{vT1}, 10, v{vT1}
            v_lshrrev_b32 v{vT0}, 4, v{vLANE}
            v_lshl_add_u32 v{vT2}, v{vT0}, 3, v{vT1}
            s_lshl2_add_u32 s{sT2}, s{sDH}, s{sW}
            s_lshl3_add_u32 s{sT2}, s{sG}, s{sT2}
            s_lshl_b32 s{sT2}, s{sT2}, 14
            s_lshl_b32 s{sT3}, s{sCT}, 7
            s_add_u32 s{sT2}, s{sT2}, s{sT3}
            """)
            for f in range(4):
                k.vmem(f"buffer_store_dwordx2 {vr(XO+2*f,2)}, v{vT2}, {srd(S_OUT)}, s{sT2} offen offset:{32*f}")
            le = k.label("L_ep")
            k(f"s_or_b32 s{sT2}, s2, s{sW}")
            k(f"s_cbranch_scc1 {le}")
            k(f"s_add_u32 s{sEP}, s{sEP}, 1")
            k(f"v_mov_b32 v{vT1}, s{sEP}")
            k("s_mov_b64 exec, 1")
            k(f"buffer_store_dword v{vT1}, v{vL4}, {srd(S_WS)}, 0 offen offset:{WS_EPOCH}")
            k("s_mov_b64 exec, -1")
            k(f"{le}:")
            if stamps:
                k.vm_all()
                k.stamp("end")
                k(f"s_memrealtime s[{sST}:{sST+1}]")
                k("s_waitcnt lgkmcnt(0)")
                k(f"v_writelane_b32 v{vSTAMP}, s{sST}, 61")
                k(f"v_writelane_b32 v{vSTAMP}, s{sBUD}, 60")
                k(f"v_writelane_b32 v{vSTAMP}, s{sSLOW}, 59")
                k(f"s_lshl2_add_u32 s{sT2}, s2, s{sW}")
                k(f"s_lshl_b32 s{sT2}, s{sT2}, 8")
                k(f"s_add_u32 s{sT2}, s{sT2}, {WS_STAMP}")
                k(f"buffer_store_dword v{vSTAMP}, v{vL4}, {srd(S_WS)}, s{sT2} offen")
    k("L_end:")
    body = "\n".join(k.lines)
    hdr = open("interleave_layers__linear_attn_block__dense_activation_relu__prompt.s.ref").read().split("; Override")[0]
    txt = f"""{hdr}; Generated by a hand-written generator (persistent kernel, one workgroup per CU).
; @launch grid=(256,1,1) block=(256,1,1) lds={LDS_BYTES}
.amdgcn_target "amdgcn-amd-amdhsa--gfx950"
.text
.globl {NAME}
.p2align 8
.type {NAME},@function
.set CODE_BYTES, L_code_end - {NAME} - 4096
{NAME}:
{body}
    s_endpgm
L_code_end:
.section .rodata,"a"
.p2align 6
.amdhsa_kernel {NAME}
  .amdhsa_next_free_vgpr 512
  .amdhsa_next_free_sgpr 80
  .amdhsa_accum_offset 256
  .amdhsa_group_segment_fixed_size 0
  .amdhsa_kernarg_size 72
  .amdhsa_user_sgpr_count 2
  .amdhsa_user_sgpr_kernarg_segment_ptr 1
  .amdhsa_system_sgpr_workgroup_id_x 1
.end_amdhsa_kernel
"""
    return txt, k.stamp_names


if __name__ == "__main__":
    out = sys.argv[1]
    stamps = "stamps" in sys.argv[2:]
    opts = {}
    for a in sys.argv[2:]:
        if "=" in a:
            x, y = a.split("=")
            opts[x] = int(y)
    txt, names = gen(stamps, opts)
    open(out, "w").write(txt)
    if stamps:
        open(out + ".names", "w").write("\n".join(names))
```

```python
import sys
from contextlib import contextmanager

NAME = "interleave_layers__linear_attn_block__dense_activation_relu__prompt_kernel"

WS_EPOCH = 0
WS_XID = 0x1000
GRP0 = 0x100000
G_FO, G_FX1, G_FX2, G_FH = 0, 512, 1024, 1536
G_ST1 = 0x1000
G_ST2 = 0x3000
G_O = 0x8000
G_X1 = G_O + 0x20000
G_X2 = G_X1 + 0x20000
G_H = G_X2 + 0x20000
WS_KVX = 0x1200000
WS_W2T = 0x1400000
WS_PK = 0x1600000
PK_Q, PK_W1, PK_SZ = 65536, 98304, 147456
WS_STAMP = 0x1900000
WS_USED = 0x1A00000

R0, R1, R2, R3 = 0, 65536, 98304, 131072
L_SM = 159744
L_CS = L_SM
L_STAT = L_SM + 1024
L_XB = L_SM + 2048
L_ZB = L_SM + 3072
L_XST = 65536
L_RED = R2
L_PST = R2
LDS_BYTES = 163840

S_X, S_WQKV, S_WO, S_W1, S_W2, S_OUT, S_WS = 4, 8, 12, 16, 20, 24, 28
(sW, sC, sG, sTAG, sSLOW, sGB, sBUD, sEP, sEPS, _e1, sT0, sT1, sT2, sT3, sT4, sT5,
 sACT, sACT1, sBACT, sTILE, sOST, sOST1, sFOo, sFOp, sFXo, sFXp, sSTo, sSTg,
 sH1, sH1b, sH2, sH2b, sH3, sH3b, sFHo, sFHp, sRB, _r1, _r2, _r3, sKVC, sKVP,
 sDH, sCT, sXCC, sRHO, sD0, sD1, sD2, sD3, sL0, sL1, sPKB, sPD, sPU) = range(32, 87)
assert sEPS % 2 == 0
sST = 88
sPC = 92

vLANE, vL16, vTR0, vTR1, vQ0, vQ1, vQ2, vQ3, vP, vCH, vDM, vSTAMP = range(12)
vT0, vT1, vT2, vT3 = 12, 13, 14, 15
vRES = 16
vPQ = 24
vWB = 32
vACC = 64
vACT = 128
BF1 = "0x3f803f80"


def srd(s):
    return f"s[{s}:{s+3}]"


def vr(a, n=1):
    return f"v{a}" if n == 1 else f"v[{a}:{a+n-1}]"


def ar(a, n=1):
    return f"a{a}" if n == 1 else f"a[{a}:{a+n-1}]"


def bcast(r, pos, n):
    lo = [0] * n
    hi = [1] * n
    if r % 2 == 0:
        hi[pos] = 0
    else:
        lo[pos] = 1
    f = lambda x: "[" + ",".join(map(str, x)) + "]"
    return vr(r & ~1, 2), f" op_sel:{f(lo)} op_sel_hi:{f(hi)}"


class K:
    def __init__(self, stamps=False, opts=None):
        self.lines = []
        self.nlab = 0
        self.vm = []
        self.ds = []
        self.stamps = stamps
        self.stamp_names = []
        self.o = opts or {}
        self._rec = None
        self.seen = set()

    def _do(self, fn):
        if self._rec is not None:
            self._rec.append(fn)
        else:
            fn()

    def rec(self, f):
        assert self._rec is None
        self._rec = []
        f()
        r, self._rec = self._rec, None
        return r

    @contextmanager
    def atomic(self):
        if self._rec is None:
            yield
            return
        outer, self._rec = self._rec, []
        yield
        inner, self._rec = self._rec, outer
        outer.append(lambda: [x() for x in inner])

    def play(self, items):
        for x in items:
            self._do(x)

    def _emit(self, l):
        self.lines.append(("" if l.endswith(":") else "    ") + l)

    def __call__(self, s):
        for l in s.split("\n"):
            l = l.strip()
            if l:
                self._do(lambda l=l: self._emit(l))

    def label(self, base="L"):
        self.nlab += 1
        return f"{base}_{self.nlab}"

    def vmem(self, s, tag=None):
        def f():
            self._emit(s)
            self.vm.append(tag)
            self.seen.add(tag)
        self._do(f)

    def vm_note(self, n, tag=None):
        self._do(lambda: self.vm.extend([tag] * n))

    def _wait(self, lst, tag, name, mx):
        if tag not in lst:
            return lst
        idx = len(lst) - 1 - lst[::-1].index(tag)
        n = min(len(lst) - idx - 1, mx)
        self._emit(f"s_waitcnt {name}({n})")
        return lst[len(lst) - n:] if n else []

    def vm_wait(self, tag):
        def f():
            assert tag in self.seen, tag
            self.vm = self._wait(self.vm, tag, "vmcnt", 63)
        self._do(f)

    def vm_all(self):
        def f():
            self._emit("s_waitcnt vmcnt(0)")
            self.vm = []
        self._do(f)

    def lds(self, s, tag=None):
        def f():
            self._emit(s)
            self.ds.append(tag)
        self._do(f)

    def ds_wait(self, tag):
        def f():
            self.ds = self._wait(self.ds, tag, "lgkmcnt", 15)
        self._do(f)

    def ds_all(self, force=False):
        def f():
            if self.ds or force:
                self._emit("s_waitcnt lgkmcnt(0)")
            self.ds = []
        self._do(f)

    def barrier(self, force=False):
        self.ds_all(force)
        self("s_barrier")

    def stamp(self, name):
        if not self.stamps:
            return
        i = len(self.stamp_names)
        assert i < 59
        self.stamp_names.append(name)
        self(f"s_memtime s[{sST}:{sST+1}]")
        self.ds_all(True)
        self(f"v_writelane_b32 v{vSTAMP}, s{sST}, {i}")

    def dma(self, sr, voff, soff, simm, lreg, limm, tag=None, flag=""):
        with self.atomic():
            self(f"s_add_u32 m0, s{lreg}, {limm}")
            self(f"s_add_u32 s{sT5}, s{soff}, {simm}")
            self.vmem(f"buffer_load_dwordx4 v{voff}, {srd(sr)}, s{sT5} offen{flag} lds", tag)

    def poll_prep(self, mask):
        self(f"v_lshrrev_b32 v{vT3}, 2, v{vL16}")
        self(f"v_and_b32 v{vT3}, {mask*4}, v{vT3}")

    def poll(self, soff, imm, clear=True):
        if clear:
            self.seen = {t for t in self.seen if not (isinstance(t, tuple) and t[0] in ("act", "h"))}
        lp, done = self.label("L_poll"), self.label("L_pd")
        with self.atomic():
            self(f"{lp}:")
            self(f"buffer_load_dword v{vT0}, v{vT3}, {srd(S_WS)}, s{soff} offen offset:{imm} sc1")
            self.vm_all()
            self(f"v_cmp_ne_u32 vcc, s{sTAG}, v{vT0}")
            self(f"s_cbranch_vccz {done}")
            self(f"s_sub_u32 s{sBUD}, s{sBUD}, 1")
            self(f"s_cbranch_scc0 {lp}")
            self(f"s_mov_b32 s{sBUD}, 0")
            self(f"{done}:")

    def stores(self, items, force_sc1, tag="st"):
        with self.atomic():
            if force_sc1:
                for it in items:
                    self.vmem(it + " sc1", tag)
                return
            ls, le = self.label("L_ss"), self.label("L_se")
            self(f"s_cmp_lg_u32 s{sSLOW}, 0")
            self(f"s_cbranch_scc1 {ls}")
            for it in items:
                self.vmem(it, tag)
            self(f"s_branch {le}")
            self(f"{ls}:")
            for it in items:
                self(it + " sc1")
            self(f"{le}:")

    def flag(self, soff, imm):
        with self.atomic():
            self(f"v_mov_b32 v{vT1}, s{sTAG}")
            self.vm_wait("st")
            self("s_mov_b64 exec, 1")
            self.stores([f"buffer_store_dword v{vT1}, v{vL16}, {srd(S_WS)}, s{soff} offen offset:{imm}"], False, "flag")
            self("s_mov_b64 exec, -1")

    def gemm(self, frags, fill=None, D=6):
        n = len(frags)
        fill = fill or {}
        self.gid = getattr(self, "gid", 0) + 1
        gid = self.gid
        reads = []
        for t, f in enumerate(frags):
            s = vWB + 4 * (t % 8)
            if len(f["offs"]) == 2:
                for hh in range(2):
                    reads.append((t, f"ds_read_b64_tr_b16 {vr(s + 2*hh, 2)}, v{f['addr']} offset:{f['offs'][hh]}"))
            else:
                reads.append((t, f"ds_read_b128 {vr(s, 4)}, v{f['addr']} offset:{f['offs'][0]}"))
        rp = 0

        def issue_upto(tmax, maxn):
            nonlocal rp
            c = 0
            while rp < len(reads) and reads[rp][0] <= tmax and c < maxn:
                self.lds(reads[rp][1], ("w", gid, reads[rp][0]))
                rp += 1
                c += 1
        issue_upto(D - 1, 99)
        mi = 0
        for t, f in enumerate(frags):
            s = vWB + 4 * (t % 8)
            self.ds_wait(("w", gid, t))
            nm = len(f["mf"])
            for j, (acc, act_, sw, first, wt) in enumerate(f["mf"]):
                if wt is not None:
                    self.vm_wait(wt)
                c = "0" if first else vr(acc, 4)
                if sw:
                    self(f"v_mfma_f32_16x16x32_bf16 {vr(acc,4)}, {vr(s,4)}, {vr(act_,4)}, {c}")
                else:
                    self(f"v_mfma_f32_16x16x32_bf16 {vr(acc,4)}, {vr(act_,4)}, {vr(s,4)}, {c}")
                issue_upto(t + D, 99 if j == nm - 1 else 1)
                self.play(fill.pop(mi, []))
                mi += 1
        for key in sorted(fill):
            self.play(fill[key])


def spread(fill, items, start, step, per=1):
    p = start
    for i in range(0, len(items), per):
        fill.setdefault(int(p), []).extend(items[i:i + per])
        p += step
    return p


def act(ks, rb):
    return vACT + 8 * ks + 4 * rb


def gen(stamps=False, opts=None):
    k = K(stamps, opts)
    o = k.o
    if stamps:
        k(f"s_memtime s[{sST}:{sST+1}]")
        k(f"s_memrealtime s[{sST+2}:{sST+3}]")
    k(f"""
    s_cmp_ge_u32 s2, 256
    s_cbranch_scc1 L_end
    s_load_dwordx2 s[{S_X}:{S_X+1}], s[0:1], 0
    s_load_dwordx2 s[{S_WQKV}:{S_WQKV+1}], s[0:1], 8
    s_load_dwordx2 s[{S_WS}:{S_WS+1}], s[0:1], 64
    s_load_dwordx2 s[{S_WO}:{S_WO+1}], s[0:1], 16
    s_load_dwordx2 s[{S_W1}:{S_W1+1}], s[0:1], 32
    s_load_dwordx2 s[{S_W2}:{S_W2+1}], s[0:1], 40
    s_load_dwordx2 s[{S_OUT}:{S_OUT+1}], s[0:1], 48
    v_lshrrev_b32 v{vT0}, 6, v0
    v_and_b32 v{vLANE}, 63, v0
    s_mov_b32 s{S_X+2}, {2048*1024}
    v_readfirstlane_b32 s{sW}, v{vT0}
    s_mov_b32 s{S_X+3}, 0x20000
    s_mov_b32 s{S_WQKV+2}, {512*3072}
    s_mov_b32 s{S_WQKV+3}, 0x20000
    s_lshr_b32 s{sT0}, s2, 3
    s_and_b32 s{sC}, s{sT0}, 15
    s_lshr_b32 s{sT0}, s{sT0}, 4
    s_and_b32 s{sG}, s2, 7
    s_lshl1_add_u32 s{sG}, s{sG}, s{sT0}
    s_lshr_b32 s{sT1}, s{sC}, 1
    s_xor_b32 s{sT1}, s{sT1}, s{sT0}
    s_and_b32 s{sT1}, s{sT1}, 1
    s_and_b32 s{sRHO}, s{sC}, 1
    s_lshl1_add_u32 s{sRHO}, s{sT1}, s{sRHO}
    v_lshlrev_b32 v{vL16}, 4, v{vLANE}
    """)
    if stamps:
        k(f"v_mov_b32 v{vSTAMP}, 0")
    XS, XR = vWB, vWB + 4
    k(f"""
    v_lshrrev_b32 v{vT0}, 4, v{vLANE}
    v_and_b32 v{vT1}, 15, v{vLANE}
    v_xor_b32 v{vT2}, v{vT0}, v{vT1}
    v_lshlrev_b32 v{vT2}, 4, v{vT2}
    v_lshl_add_u32 v{XS}, v{vT0}, 10, v{vT2}
    v_xor_b32 v{XS+1}, 64, v{XS}
    v_xor_b32 v{XS+2}, 0x80, v{XS}
    v_xor_b32 v{XS+3}, 0xc0, v{XS}
    v_lshrrev_b32 v{vP}, 2, v{vLANE}
    v_and_b32 v{vCH}, 3, v{vLANE}
    v_lshrrev_b32 v{vT3}, 3, v{vLANE}
    v_and_b32 v{vT3}, 2, v{vT3}
    v_xor_b32 v{vCH}, v{vCH}, v{vT3}
    v_lshlrev_b32 v{vCH}, 4, v{vCH}
    v_and_b32 v{vT3}, 3, v{vP}
    v_lshl_add_u32 v{vT3}, v{vT0}, 3, v{vT3}
    s_movk_i32 s{sT1}, 3072
    v_mad_u32_u24 v{vDM}, v{vT3}, s{sT1}, v{vCH}
    s_mul_i32 s{sL0}, s{sW}, 24576
    s_add_u32 s{sL0}, s{sL0}, {L_XST}
    s_lshl_b32 s{sT1}, s{sG}, 17
    s_lshl_b32 s{sT2}, s{sW}, 15
    s_add_u32 s{sT1}, s{sT1}, s{sT2}
    s_lshl_b32 s{sL1}, s{sW}, 12
    """)
    for r in range(4):
        k(f"""
        s_add_u32 s{sT2}, s{sRHO}, {r}
        s_and_b32 s{sT2}, s{sT2}, 3
        s_lshl_b32 s{sT3}, s{sT2}, 8
        s_add_u32 s{sD0+r}, s{sT1}, s{sT3}
        s_lshl2_add_u32 s{sT2}, s{sT2}, s{sW}
        s_mul_i32 s{sT2}, s{sT2}, {32*3072}
        s_lshl_b32 s{sT3}, s{sC}, 6
        s_add_u32 s{sRB+r}, s{sT2}, s{sT3}
        """)
    k("s_waitcnt lgkmcnt(0)")
    k(f"s_load_dword s{sEP}, s[{S_WS}:{S_WS+1}], {WS_EPOCH}")
    if stamps:
        k(f"v_writelane_b32 v{vSTAMP}, s{sST}, 62")
        k(f"v_writelane_b32 v{vSTAMP}, s{sST+2}, 63")

    def xslot(q):
        for j in range(8):
            k.dma(S_X, XS + (j & 3), sD0 + q, j * 4096, sL0, (q % 3) * 8192 + j * 1024, ("xs", q))

    def wkv_raw(r):
        for pr in range(2):
            for hh in range(2):
                k.dma(S_WQKV, vDM, sRB + r, hh * 4 * 3072 + 1024 * (pr + 1), sL1, R0 + r * 16384 + pr * 2048 + hh * 1024, ("wkv", r))

    order = o.get("order", 0)
    if order == 0:
        xslot(0); wkv_raw(0); xslot(1); xslot(2)
    elif order == 1:
        wkv_raw(0); xslot(0); xslot(1); xslot(2)
    else:
        xslot(0); xslot(1); wkv_raw(0); xslot(2)

    k(f"""
    s_mov_b32 s{S_WO+2}, {512*1024}
    s_mov_b32 s{S_WO+3}, 0x20000
    s_mov_b32 s{S_W1+2}, {512*3584}
    s_mov_b32 s{S_W1+3}, 0x20000
    s_mov_b32 s{S_W2+2}, {1792*1024}
    s_mov_b32 s{S_W2+3}, 0x20000
    s_mov_b32 s{S_OUT+2}, {2048*1024}
    s_mov_b32 s{S_OUT+3}, 0x20000
    s_mov_b32 s{S_WS+2}, {WS_USED}
    s_mov_b32 s{S_WS+3}, 0x20000
    s_lshl_b32 s{sGB}, s{sG}, 20
    s_add_u32 s{sGB}, s{sGB}, {GRP0}
    s_lshr_b32 s{sDH}, s{sC}, 3
    s_and_b32 s{sCT}, s{sC}, 7
    s_mov_b32 s{sBUD}, 150000
    s_mov_b32 s{sEPS}, 0x358637bd
    s_mov_b32 s{sEPS+1}, 0x358637bd
    s_getreg_b32 s{sXCC}, hwreg(HW_REG_XCC_ID, 0, 4)
    s_lshl_b32 s{sACT}, s{sW}, 15
    s_add_u32 s{sACT}, s{sACT}, s{sGB}
    s_add_u32 s{sACT1}, s{sACT}, 16384
    s_lshl2_add_u32 s{sT0}, s{sDH}, s{sW}
    s_lshl_b32 s{sBACT}, s{sT0}, 14
    s_add_u32 s{sBACT}, s{sBACT}, s{sGB}
    s_lshl_b32 s{sTILE}, s{sCT}, 11
    s_add_u32 s{sTILE}, s{sTILE}, s{sBACT}
    s_lshl_b32 s{sOST}, s{sC}, 10
    s_add_u32 s{sOST}, s{sOST}, s{sACT}
    s_add_u32 s{sOST}, s{sOST}, {G_O}
    s_add_u32 s{sOST1}, s{sOST}, 16384
    s_lshl_b32 s{sFXp}, s{sW}, 7
    s_add_u32 s{sFXp}, s{sFXp}, s{sGB}
    s_lshl2_add_u32 s{sFOo}, s{sC}, s{sFXp}
    s_lshl_b32 s{sFHp}, s{sT0}, 7
    s_add_u32 s{sFHp}, s{sFHp}, s{sGB}
    s_lshr_b32 s{sT0}, s{sT0}, 1
    s_lshl_b32 s{sFOp}, s{sT0}, 7
    s_add_u32 s{sFOp}, s{sFOp}, s{sGB}
    s_and_b32 s{sT2}, s{sW}, 1
    s_lshl1_add_u32 s{sT3}, s{sCT}, s{sT2}
    s_lshl2_add_u32 s{sFXo}, s{sT3}, s{sFOp}
    s_lshl3_add_u32 s{sT3}, s{sT0}, s{sCT}
    s_lshl_b32 s{sT3}, s{sT3}, 8
    s_lshl3_add_u32 s{sT3}, s{sT2}, s{sT3}
    s_add_u32 s{sSTo}, s{sT3}, s{sGB}
    s_lshl_b32 s{sSTg}, s{sW}, 11
    s_add_u32 s{sSTg}, s{sSTg}, s{sGB}
    s_mul_i32 s{sT0}, s{sW}, {2*57344}
    s_add_u32 s{sT0}, s{sT0}, s{sGB}
    s_lshr_b32 s{sT3}, s{sC}, 2
    s_mul_i32 s{sT4}, s{sT3}, 14336
    s_add_u32 s{sT0}, s{sT0}, s{sT4}
    s_add_u32 s{sT0}, s{sT0}, {G_H}
    s_and_b32 s{sT4}, s{sC}, 3
    s_lshl_b32 s{sH1}, s{sT4}, 11
    s_add_u32 s{sH1}, s{sH1}, s{sT0}
    s_add_u32 s{sH1b}, s{sH1}, 57344
    s_mul_i32 s{sH2}, s{sT4}, 3
    s_add_u32 s{sH2}, s{sH2}, 17
    s_lshr_b32 s{sH2}, s{sH2}, 1
    s_lshl_b32 s{sH2}, s{sH2}, 10
    s_add_u32 s{sH2}, s{sH2}, s{sT0}
    s_add_u32 s{sH2b}, s{sH2}, 57344
    s_lshr_b32 s{sH3}, s{sT4}, 1
    s_mul_i32 s{sH3}, s{sH3}, 3072
    s_and_b32 s{sH3b}, s{sT4}, 1
    s_lshl3_add_u32 s{sH3}, s{sH3b}, s{sH3}
    s_add_u32 s{sH3}, s{sH3}, {9*1024}
    s_add_u32 s{sH3}, s{sH3}, s{sT0}
    s_add_u32 s{sH3b}, s{sH3}, 57344
    s_lshr_b32 s{sT0}, s{sW}, 1
    s_lshl2_add_u32 s{sT0}, s{sT0}, s{sT3}
    s_lshl_b32 s{sT0}, s{sT0}, 7
    s_lshl1_add_u32 s{sT2}, s{sT4}, s{sT2}
    s_lshl2_add_u32 s{sT0}, s{sT2}, s{sT0}
    s_add_u32 s{sFHo}, s{sT0}, s{sGB}
    s_lshl2_add_u32 s{sT2}, s{sC}, s{sW}
    s_lshl_b32 s{sT2}, s{sT2}, 14
    s_add_u32 s{sKVC}, s{sT2}, {WS_KVX}
    s_lshl_b32 s{sT2}, s{sG}, 10
    s_add_u32 s{sKVP}, s{sT2}, s{sKVC}
    s_mul_i32 s{sPKB}, s{sC}, {PK_SZ}
    s_add_u32 s{sPKB}, s{sPKB}, {WS_PK}
    """)
    k(f"""
    v_lshl_add_u32 v{XR}, v{vT1}, 8, v{vT2}
    v_add_u32 v{XR}, s{sL0}, v{XR}
    v_xor_b32 v{XR+1}, 64, v{XR}
    v_xor_b32 v{XR+2}, 0x80, v{XR}
    v_xor_b32 v{XR+3}, 0xc0, v{XR}
    v_and_b32 v{vT3}, 3, v{vLANE}
    v_lshlrev_b32 v{vT3}, 3, v{vT3}
    v_lshl_add_u32 v{vTR0}, v{vP}, 6, v{vT3}
    v_lshl_add_u32 v{vQ0}, v{vP}, 7, v{vT3}
    v_and_b32 v{vT3}, 1, v{vT0}
    v_lshlrev_b32 v{vT3}, 5, v{vT3}
    v_add_u32 v{vTR0}, v{vTR0}, v{vT3}
    v_xor_b32 v{vTR1}, 32, v{vTR0}
    v_bfe_u32 v{vT3}, v{vLANE}, 3, 2
    v_lshl_add_u32 v{vQ0}, v{vT3}, 5, v{vQ0}
    v_xor_b32 v{vQ1}, 32, v{vQ0}
    v_xor_b32 v{vQ2}, 64, v{vQ0}
    v_xor_b32 v{vQ3}, 0x60, v{vQ0}
    """)

    def xread(q):
        k.vm_wait(("xs", q))
        for ksl in range(4):
            for rb in range(2):
                k.lds(f"ds_read_b128 {vr(act(4*q+ksl, rb),4)}, v{XR+ksl} offset:{(q%3)*8192 + rb*4096}", ("xr", q))

    SUM0, SQ0, SUM1, SQ1 = vACC + 56, vACC + 57, vACC + 58, vACC + 59

    def xstats(q):
        k.ds_wait(("xr", q))
        for ksl in range(4):
            for j in range(4):
                a0, a1 = act(4*q+ksl, 0) + j, act(4*q+ksl, 1) + j
                k(f"v_dot2c_f32_bf16 v{SUM0}, {BF1}, v{a0}")
                k(f"v_dot2c_f32_bf16 v{SQ0}, v{a0}, v{a0}")
                k(f"v_dot2c_f32_bf16 v{SUM1}, {BF1}, v{a1}")
                k(f"v_dot2c_f32_bf16 v{SQ1}, v{a1}, v{a1}")

    def mix(a, b, ratio):
        out = []
        bi = 0
        for i, x in enumerate(a):
            out.append(x)
            if (i + 1) % ratio == 0 and bi < len(b):
                out.append(b[bi]); bi += 1
        out.extend(b[bi:])
        return out

    for r in (SUM0, SQ0, SUM1, SQ1):
        k(f"v_mov_b32 v{r}, 0")
    xread(0)
    k.ds_all(True)
    k.stamp("x0")
    k(f"s_mul_i32 s{sTAG}, s{sEP}, 0x9E3779B1")
    k(f"s_add_u32 s{sTAG}, s{sTAG}, 0x7F4A7C15")
    k.play(mix(k.rec(lambda: xstats(0)), k.rec(lambda: xslot(3)), 8))
    xread(1)
    k.play(mix(k.rec(lambda: xstats(1)), k.rec(lambda: wkv_raw(1)), 16))
    xread(2)
    k.play(mix(k.rec(lambda: xstats(2)), k.rec(lambda: wkv_raw(2)), 16))
    xread(3)
    wkv_raw(3)
    k.ds_all()
    k.stamp("xall")
    lz = k.label("L_z")
    k(f"s_cmp_lg_u32 s{sW}, 3")
    k(f"s_cbranch_scc1 {lz}")
    k(f"v_mov_b32 v{vWB}, 0\nv_mov_b32 v{vWB+1}, 0\nv_mov_b32 v{vWB+2}, 0\nv_mov_b32 v{vWB+3}, 0")
    k(f"v_add_u32 v{vT0}, {L_CS}, v{vL16}")
    k(f"ds_write_b128 v{vT0}, {vr(vWB,4)}")
    k(f"{lz}:")

    NM_A, RS_A, RL_A = vACC + 60, vACC + 62, vACC + 56
    NM_B, RS_B, RL_B = vACC + 32, vACC + 40, vACC + 48
    STG = vACC + 48

    def stats_finalize(need_b):
        k(f"""
        s_nop 2
        v_permlane32_swap_b32 v{SUM0}, v{SUM1}
        v_permlane32_swap_b32 v{SQ0}, v{SQ1}
        v_and_b32 v{vT0}, 15, v{vLANE}
        v_add_f32 v{SUM0}, v{SUM0}, v{SUM1}
        v_add_f32 v{SQ0}, v{SQ0}, v{SQ1}
        v_mov_b32 v{SUM1}, v{SUM0}
        v_mov_b32 v{SQ1}, v{SQ0}
        v_lshrrev_b32 v{vT1}, 5, v{vLANE}
        v_lshl_add_u32 v{vT1}, v{vT1}, 4, v{vT0}
        v_permlane16_swap_b32 v{SUM0}, v{SUM1}
        v_permlane16_swap_b32 v{SQ0}, v{SQ1}
        s_lshl_b32 s{sT4}, s{sW}, 8
        v_add_f32 v{SUM0}, v{SUM0}, v{SUM1}
        v_add_f32 v{SQ0}, v{SQ0}, v{SQ1}
        v_mul_f32 v{SUM0}, 0xbb000000, v{SUM0}
        v_mul_f32 v{SQ0}, 0x3b000000, v{SQ0}
        v_fma_f32 v{SQ0}, -v{SUM0}, v{SUM0}, v{SQ0}
        v_max_f32 v{SQ0}, 0, v{SQ0}
        v_add_f32 v{SQ0}, 0x3727c5ac, v{SQ0}
        v_rsq_f32 v{SQ0}, v{SQ0}
        s_add_u32 s{sT4}, s{sT4}, {L_STAT}
        v_lshl_add_u32 v{vT1}, v{vT1}, 2, s{sT4}
        v_lshl_add_u32 v{vT0}, v{vT0}, 2, s{sT4}
        """)
        k.lds(f"ds_write2_b32 v{vT1}, v{SUM0}, v{SQ0} offset0:0 offset1:32")
        k.lds(f"ds_read2_b32 {vr(NM_A,2)}, v{vT0} offset0:0 offset1:16", "sta")
        k.lds(f"ds_read2_b32 {vr(RS_A,2)}, v{vT0} offset0:32 offset1:48", "sta")
        if need_b:
            k(f"v_and_b32 v{vT1}, 48, v{vLANE}")
            k(f"v_add_u32 v{vT1}, s{sT4}, v{vT1}")
            for rb in range(2):
                k.lds(f"ds_read_b128 {vr(NM_B+4*rb,4)}, v{vT1} offset:{64*rb}", "sta")
                k.lds(f"ds_read_b128 {vr(RS_B+4*rb,4)}, v{vT1} offset:{128+64*rb}", "sta")

    def stats_scale():
        k.ds_wait("sta")
        for j in range(8):
            k(f"v_mul_f32 v{RL_B+j}, 0x3fb8aa3b, v{RS_B+j}")
        for j in range(2):
            k(f"v_mul_f32 v{RL_A+j}, 0x3fb8aa3b, v{RS_A+j}")

    def set_ones(r):
        for j in range(4):
            k(f"v_mov_b32 v{r+j}, {BF1}")

    def cs_add(outacc, blocks):
        k("s_nop 6")
        k(f"v_lshrrev_b32 v{vT0}, 2, v{vL16}")
        k(f"v_add_u32 v{vT0}, {L_CS}, v{vT0}")
        k("s_mov_b64 exec, 0xffff")
        for j, blk in enumerate(blocks):
            k.lds(f"ds_add_f32 v{vT0}, v{outacc+4*j} offset:{blk*64}")
        k("s_mov_b64 exec, -1")

    def phi_block(acc, nm, cs, rl, rs, dst, tmp, lay):
        s1, s2, s3, s4, s5 = [], [], [], [], []
        for p in range(2):
            a2 = vr(acc + 2*p, 2)
            t2 = vr(tmp + 2*p, 2)
            if lay == "b":
                c2, m = bcast(cs, 1, 3)
                s1.append(f"v_pk_fma_f32 {a2}, {vr(nm+2*p,2)}, {c2}, {a2}{m}")
                s2.append(f"v_pk_mul_f32 {t2}, {a2}, {vr(rl+2*p,2)}")
                s4.append(f"v_pk_fma_f32 {a2}, {a2}, {vr(rs+2*p,2)}, {t2}")
            else:
                c2, m = bcast(nm, 1, 3)
                s1.append(f"v_pk_fma_f32 {a2}, {vr(cs+2*p,2)}, {c2}, {a2}{m}")
                c2, m = bcast(rl, 1, 2)
                s2.append(f"v_pk_mul_f32 {t2}, {a2}, {c2}{m}")
                c2, m = bcast(rs, 1, 3)
                s4.append(f"v_pk_fma_f32 {a2}, {a2}, {c2}, {t2}{m}")
            for j in range(2):
                s3.append(f"v_exp_f32 v{tmp+2*p+j}, v{tmp+2*p+j} clamp")
            s5.append(f"v_pk_add_f32 {a2}, {a2}, s[{sEPS}:{sEPS+1}]")
        for s in s1 + s2 + s3:
            k(s)
        for j in range(4):
            k(f"v_max_f32 v{acc+j}, 0, v{acc+j}")
        for s in s4 + s5:
            k(s)
        for p in range(2):
            k(f"v_cvt_pk_bf16_f32 v{dst+p}, v{acc+2*p}, v{acc+2*p+1}")

    def act_loads(bufoff):
        for ks in range(16):
            for rb in range(2):
                with k.atomic():
                    if ks % 4 == 0:
                        k(f"s_add_u32 s{sT2+rb}, s{sACT+rb}, {bufoff + ks*1024}")
                    k.vmem(f"buffer_load_dwordx4 {vr(act(ks,rb),4)}, v{vL16}, {srd(S_WS)}, s{sT2+rb} offen offset:{(ks%4)*1024} sc1",
                           ("act", ks, rb))

    def stat_loads(stoff):
        with k.atomic():
            k(f"s_add_u32 s{sT4}, s{sSTg}, {stoff}")
            for j in range(2):
                k.vmem(f"buffer_load_dwordx4 {vr(STG+4*j,4)}, v{vL16}, {srd(S_WS)}, s{sT4} offen offset:{j*1024} sc1", "stg")

    def stat_sum():
        k.vm_wait("stg")
        for j in range(4):
            k(f"v_add_f32 v{SUM0+j}, v{STG+j}, v{STG+4+j}")

    def mf2(acc, ks, sw, wait, first=None):
        return [(acc + 4 * rb, act(ks, rb), sw, (ks == 0) if first is None else first, ("act", ks, rb) if wait else None) for rb in range(2)]

    def quad_lane(pitch):
        k(f"v_lshrrev_b32 v{vDM}, 3, v{vLANE}")
        k(f"v_and_b32 v{vT2}, 6, v{vDM}")
        k(f"v_xor_b32 v{vT2}, v{vT2}, v{vLANE}")
        k(f"v_and_b32 v{vT2}, 7, v{vT2}")
        k(f"v_lshlrev_b32 v{vT2}, 4, v{vT2}")
        k(f"s_movk_i32 s{sD3}, {pitch}")
        k(f"v_mad_u32_u24 v{vDM}, v{vDM}, s{sD3}, v{vT2}")

    def wo_dma():
        quad_lane(1024)
        k(f"s_lshl_b32 s{sD0}, s{sW}, 17")
        k(f"s_lshl_b32 s{sD1}, s{sCT}, 7")
        k(f"s_add_u32 s{sD0}, s{sD0}, s{sD1}")
        k(f"s_lshl_b32 s{sL0}, s{sW}, 14")
        for j in range(16):
            k.dma(S_WO, vDM, sD0, j * 8 * 1024, sL0, R0 + j * 1024, "wo")

    def w1c1_dma(half):
        quad_lane(3584)
        k(f"s_lshr_b32 s{sD0}, s{sC}, 2")
        k(f"s_mul_i32 s{sD0}, s{sD0}, 896")
        k(f"s_and_b32 s{sD1}, s{sC}, 3")
        k(f"s_lshl_b32 s{sD1}, s{sD1}, 7")
        k(f"s_add_u32 s{sD0}, s{sD0}, s{sD1}")
        k(f"s_mul_i32 s{sD1}, s{sW}, {64*3584}")
        k(f"s_add_u32 s{sD0}, s{sD0}, s{sD1}")
        k(f"s_lshl_b32 s{sL0}, s{sW}, 13")
        for j in range(8):
            k.dma(S_W1, vDM, sD0, (half * 256 + j * 8) * 3584, sL0, R1 + half * 32768 + j * 1024, "w1a")

    def lin_dma(src, dst, n, tag):
        k(f"s_mul_i32 s{sL0}, s{sW}, {n*1024}")
        k(f"s_add_u32 s{sD0}, s{sL0}, s{sPKB}")
        for j in range(n):
            k.dma(S_WS, vL16, sD0, src + j * 1024, sL0, dst + j * 1024, tag, " sc1")

    def publish_x(bufoff, stoff, floff, pay_sc1):
        k(f"s_add_u32 s{sT1}, s{sTILE}, {bufoff}")
        k.stores([f"buffer_store_dwordx4 {vr(vRES+4*s,4)}, v{vL16}, {srd(S_WS)}, s{sT1} offen offset:{s*1024}" for s in range(2)], pay_sc1)
        a, b, c, d = vT0, vT1, vT2, vT3
        for r in (a, b, c, d):
            k(f"v_mov_b32 v{r}, 0")
        for j in range(4):
            r0, r1 = vRES + j, vRES + 4 + j
            k(f"v_dot2c_f32_bf16 v{a}, {BF1}, v{r0}")
            k(f"v_dot2c_f32_bf16 v{b}, v{r0}, v{r0}")
            k(f"v_dot2c_f32_bf16 v{c}, {BF1}, v{r1}")
            k(f"v_dot2c_f32_bf16 v{d}, v{r1}, v{r1}")
        k(f"""
        v_and_b32 v{vWB+8}, 0xff, v{vL16}
        v_lshrrev_b32 v{vWB+9}, 4, v{vLANE}
        v_lshl_add_u32 v{vWB+8}, v{vWB+9}, 2, v{vWB+8}
        v_add_f32 v{a}, v{a}, v{c}
        v_add_f32 v{b}, v{b}, v{d}
        s_add_u32 s{sT3}, s{sSTo}, {stoff}
        s_nop 0
        v_permlane16_swap_b32 v{a}, v{b}
        s_nop 0
        v_add_f32 v{a}, v{a}, v{b}
        v_mov_b32 v{b}, v{a}
        s_nop 1
        v_permlane32_swap_b32 v{a}, v{b}
        s_nop 0
        v_add_f32 v{c}, v{a}, v{b}
        s_mov_b32 exec_hi, 0
        """)
        k.stores([f"buffer_store_dword v{c}, v{vWB+8}, {srd(S_WS)}, s{sT3} offen"], pay_sc1)
        k("s_mov_b64 exec, -1")
        k.poll_prep(15)
        k.flag(sFXo, floff)

    def unpack_res(dst):
        for f in range(4):
            for p in range(2):
                r = vRES + 2*f + p
                k(f"v_lshlrev_b32 v{dst+4*f+2*p}, 16, v{r}")
                k(f"v_and_b32 v{dst+4*f+2*p+1}, 0xffff0000, v{r}")

    def misc_l1():
        k(f"""
        s_add_u32 s{sT2}, s{sTAG}, s{sXCC}
        s_add_u32 s{sT2}, s{sT2}, 2
        v_mov_b32 v{vT1}, s{sT2}
        s_lshl_b32 s{sT2}, s{sG}, 7
        s_lshl2_add_u32 s{sT2}, s{sC}, s{sT2}
        s_add_u32 s{sT2}, s{sT2}, {WS_XID}
        """)
        with k.atomic():
            k("s_mov_b64 exec, 1")
            k.vmem(f"buffer_store_dword v{vT1}, v{vL16}, {srd(S_WS)}, s{sT2} offen sc1", "xid")
            k("s_mov_b64 exec, -1")
        k(f"""
        v_and_b32 v{vT1}, 15, v{vLANE}
        v_lshlrev_b32 v{vT1}, 10, v{vT1}
        v_lshrrev_b32 v{vT0}, 4, v{vLANE}
        v_lshl_add_u32 v{vT2}, v{vT0}, 3, v{vT1}
        s_lshl2_add_u32 s{sT2}, s{sDH}, s{sW}
        s_lshl3_add_u32 s{sT2}, s{sG}, s{sT2}
        s_lshl_b32 s{sT2}, s{sT2}, 14
        s_lshl_b32 s{sT3}, s{sCT}, 7
        s_add_u32 s{sT2}, s{sT2}, s{sT3}
        """)
        for f in range(4):
            k.vmem(f"buffer_load_dwordx2 {vr(vRES+2*f,2)}, v{vT2}, {srd(S_X)}, s{sT2} offen offset:{32*f}", "res")
        k(f"v_lshlrev_b32 v{vT3}, 7, v{vLANE}")
        k(f"s_mul_i32 s{sT2}, s{sW}, 896")
        k(f"s_add_u32 s{sT2}, s{sT2}, s{sGB}")
        with k.atomic():
            k("s_mov_b64 exec, 0x7f")
            k.vmem(f"buffer_load_dword v{vPQ}, v{vT3}, {srd(S_WS)}, s{sT2} offen sc1", "touch")
            k("s_mov_b64 exec, -1")

    def codewarm():
        k(f"""
        v_lshlrev_b32 v{vT3}, 7, v{vLANE}
        s_getpc_b64 s[{sPC}:{sPC+1}]
        L_pcref:
        s_lshr_b32 s{sT2}, s2, 3
        s_lshl2_add_u32 s{sT2}, s{sT2}, s{sW}
        s_lshl_b32 s{sT2}, s{sT2}, 9
        s_min_u32 s{sT2}, s{sT2}, CODE_BYTES
        s_add_u32 s{sPC}, s{sPC}, s{sT2}
        s_addc_u32 s{sPC+1}, s{sPC+1}, 0
        s_mov_b64 exec, 0xf
        """)
        k.vmem(f"global_load_dword v{vPQ+1}, v{vT3}, s[{sPC}:{sPC+1}]", "touch")
        k("s_mov_b64 exec, -1")

    def pack_issue():
        l2, l3, le = k.label("L_p2"), k.label("L_p3"), k.label("L_pe")
        with k.atomic():
            k(f"s_lshl_b32 s{sL0}, s{sW}, 13")
            k(f"s_cmp_eq_u32 s{sW}, 2")
            k(f"s_cbranch_scc1 {l2}")
            k(f"s_cmp_eq_u32 s{sW}, 3")
            k(f"s_cbranch_scc1 {l3}")
            quad_lane(1024)
            k(f"s_lshl1_add_u32 s{sPU}, s2, s{sW}")
            k(f"s_min_u32 s{sD0}, s{sPU}, 447")
            k(f"s_lshr_b32 s{sD1}, s{sD0}, 3")
            k(f"s_and_b32 s{sD0}, s{sD0}, 7")
            k(f"s_mul_i32 s{sPD}, s{sD0}, 56")
            k(f"s_add_u32 s{sPD}, s{sPD}, s{sD1}")
            k(f"s_lshl_b32 s{sPD}, s{sPD}, 12")
            k(f"s_add_u32 s{sPD}, s{sPD}, {WS_W2T}")
            k(f"s_lshl_b32 s{sD1}, s{sD1}, 15")
            k(f"s_lshl_b32 s{sD0}, s{sD0}, 7")
            k(f"s_add_u32 s{sD0}, s{sD0}, s{sD1}")
            for j in range(4):
                k(f"s_add_u32 m0, s{sL0}, {L_PST + j*1024}")
                k(f"s_add_u32 s{sT5}, s{sD0}, {j*8192}")
                k(f"buffer_load_dwordx4 v{vDM}, {srd(S_W2)}, s{sT5} offen lds")
            k(f"s_branch {le}")
            k(f"{l2}:")
            k(f"s_movk_i32 s{sD3}, 3072")
            k(f"v_mad_u32_u24 v{vDM}, v{vP}, s{sD3}, v{vCH}")
            k(f"s_mul_i32 s{sD0}, s{sG}, {32*3072}")
            k(f"s_lshl_b32 s{sD1}, s{sC}, 6")
            k(f"s_add_u32 s{sD0}, s{sD0}, s{sD1}")
            for pr in range(2):
                for hh in range(2):
                    k(f"s_add_u32 m0, s{sL0}, {L_PST + pr*2048 + hh*1024}")
                    k(f"s_add_u32 s{sT5}, s{sD0}, {hh*16*3072 + 1024*(pr+1)}")
                    k(f"buffer_load_dwordx4 v{vDM}, {srd(S_WQKV)}, s{sT5} offen lds")
            k(f"s_branch {le}")
            k(f"{l3}:")
            k(f"s_movk_i32 s{sD3}, 3072")
            k(f"v_mad_u32_u24 v{vDM}, v{vP}, s{sD3}, v{vCH}")
            k(f"s_mul_i32 s{sD0}, s{sG}, {32*3072}")
            k(f"s_lshl_b32 s{sD1}, s{sC}, 6")
            k(f"s_add_u32 s{sD0}, s{sD0}, s{sD1}")
            for hh in range(2):
                k(f"s_add_u32 m0, s{sL0}, {L_PST + hh*1024}")
                k(f"s_add_u32 s{sT5}, s{sD0}, {hh*16*3072}")
                k(f"buffer_load_dwordx4 v{vDM}, {srd(S_WQKV)}, s{sT5} offen lds")
            k(f"s_movk_i32 s{sD3}, 3584")
            k(f"v_mad_u32_u24 v{vDM}, v{vP}, s{sD3}, v{vCH}")
            k(f"s_lshr_b32 s{sD0}, s{sC}, 2")
            k(f"s_mul_i32 s{sD0}, s{sD0}, 896")
            k(f"s_mul_i32 s{sD1}, s{sG}, {32*3584}")
            k(f"s_add_u32 s{sD0}, s{sD0}, s{sD1}")
            k(f"s_and_b32 s{sD2}, s{sC}, 3")
            k(f"s_mul_i32 s{sD1}, s{sD2}, 3")
            k(f"s_add_u32 s{sD1}, s{sD1}, 17")
            k(f"s_lshr_b32 s{sD1}, s{sD1}, 1")
            k(f"s_lshl_b32 s{sD1}, s{sD1}, 6")
            k(f"s_add_u32 s{sD1}, s{sD1}, s{sD0}")
            for hh in range(2):
                k(f"s_add_u32 m0, s{sL0}, {L_PST + 2048 + hh*1024}")
                k(f"s_add_u32 s{sT5}, s{sD1}, {hh*16*3584}")
                k(f"buffer_load_dwordx4 v{vDM}, {srd(S_W1)}, s{sT5} offen lds")
            k(f"s_lshr_b32 s{sD1}, s{sD2}, 1")
            k(f"s_mul_i32 s{sD1}, s{sD1}, 6")
            k(f"s_and_b32 s{sD2}, s{sD2}, 1")
            k(f"s_add_u32 s{sD1}, s{sD1}, s{sD2}")
            k(f"s_add_u32 s{sD1}, s{sD1}, 18")
            k(f"s_lshl_b32 s{sD1}, s{sD1}, 5")
            k(f"s_add_u32 s{sT5}, s{sD1}, s{sD0}")
            k(f"v_lshrrev_b32 v{vDM}, 1, v{vLANE}")
            k(f"v_and_b32 v{vT2}, 16, v{vL16}")
            k(f"v_mad_u32_u24 v{vDM}, v{vDM}, s{sD3}, v{vT2}")
            k(f"s_add_u32 m0, s{sL0}, {L_PST + 4096}")
            k("s_nop 0")
            k(f"buffer_load_dwordx4 v{vDM}, {srd(S_W1)}, s{sT5} offen lds")
            k(f"{le}:")
            k.vm_note(4, "pk")

    def pack_finish(T):
        l2, l3, le = k.label("L_q2"), k.label("L_q3"), k.label("L_qe")
        k(f"s_lshl_b32 s{sL0}, s{sW}, 13")
        k(f"s_add_u32 s{sL0}, s{sL0}, {L_PST}")
        k(f"s_cmp_ge_u32 s{sW}, 2")
        k(f"s_cbranch_scc1 {l2}")
        k(f"s_cmp_ge_u32 s{sPU}, 448")
        k(f"s_cbranch_scc1 {le}")
        for f in range(4):
            k(f"v_add_u32 v{vT0+f}, s{sL0}, v{vQ0+f}")
        for f in range(4):
            for hh in range(2):
                k(f"ds_read_b64_tr_b16 {vr(T+4*f+2*hh,2)}, v{vT0+f} offset:{hh*2048}")
        k("s_waitcnt lgkmcnt(0)")
        for f in range(4):
            k(f"buffer_store_dwordx4 {vr(T+4*f,4)}, v{vL16}, {srd(S_WS)}, s{sPD} offen offset:{f*1024} sc1")
        k(f"s_branch {le}")
        k(f"{l2}:")
        k(f"v_add_u32 v{vT0}, s{sL0}, v{vTR0}")
        k(f"v_add_u32 v{vT1}, s{sL0}, v{vTR1}")
        k(f"v_lshl_add_u32 v{vT2}, v{vLANE}, 3, s{sL0}")
        for f in range(4):
            for hh in range(2):
                k(f"ds_read_b64_tr_b16 {vr(T+4*f+2*hh,2)}, v{vT0+(f&1)} offset:{(f>>1)*2048+hh*1024}")
        for hh in range(2):
            k(f"ds_read_b64_tr_b16 {vr(T+16+2*hh,2)}, v{vT2} offset:{4096+hh*512}")
        k(f"s_cmp_eq_u32 s{sW}, 3")
        k(f"s_cbranch_scc1 {l3}")
        k(f"s_lshl_b32 s{sD0}, s{sG}, 12")
        k(f"s_add_u32 s{sD0}, s{sD0}, s{sPKB}")
        k("s_waitcnt lgkmcnt(0)")
        for f in range(4):
            k(f"buffer_store_dwordx4 {vr(T+4*f,4)}, v{vL16}, {srd(S_WS)}, s{sD0} offen offset:{f*1024} sc1")
        k(f"s_branch {le}")
        k(f"{l3}:")
        k(f"s_lshl_b32 s{sD0}, s{sG}, 11")
        k(f"s_add_u32 s{sD0}, s{sD0}, s{sPKB}")
        k(f"s_add_u32 s{sD0}, s{sD0}, {PK_Q}")
        k(f"s_mul_i32 s{sD1}, s{sG}, 3072")
        k(f"s_add_u32 s{sD1}, s{sD1}, s{sPKB}")
        k(f"s_add_u32 s{sD1}, s{sD1}, {PK_W1}")
        k("s_waitcnt lgkmcnt(0)")
        for f in range(2):
            k(f"buffer_store_dwordx4 {vr(T+4*f,4)}, v{vL16}, {srd(S_WS)}, s{sD0} offen offset:{f*1024} sc1")
        for f in range(3):
            k(f"buffer_store_dwordx4 {vr(T+8+4*f,4)}, v{vL16}, {srd(S_WS)}, s{sD1} offen offset:{f*1024} sc1")
        k(f"{le}:")

    def wq_raw():
        k(f"v_and_b32 v{vT2}, 3, v{vP}")
        k(f"v_lshrrev_b32 v{vDM}, 4, v{vLANE}")
        k(f"v_lshl_add_u32 v{vT2}, v{vDM}, 3, v{vT2}")
        k(f"s_movk_i32 s{sD3}, 3072")
        k(f"v_mad_u32_u24 v{vDM}, v{vT2}, s{sD3}, v{vCH}")
        k(f"s_lshl_b32 s{sL0}, s{sW}, 11")
        for r in range(4):
            for hh in range(2):
                k.dma(S_WQKV, vDM, sRB + r, hh * 4 * 3072, sL0, R1 + r * 8192 + hh * 1024, "wq")

    for layer in range(1 if o.get("one") else 2):
        L1 = layer == 0
        pay_sc1 = L1 and not o.get("l1plain", 0)
        PRE = o.get("pre", 8)
        ONES = vPQ + 4
        if L1:
            CSA = vACC + 32
            set_ones(ONES)
            k(f"v_add_u32 v{vPQ+2}, s{sL1}, v{vTR0}")
            k(f"v_add_u32 v{vPQ+3}, s{sL1}, v{vTR1}")
            bg = []
            for r in range(4):
                k.vm_wait(("wkv", r))
                k.barrier(r == 0)
                if r == 0:
                    k.stamp("A.wbar")
                    codewarm()
                    bg = k.rec(lambda: (xstats(3),)) + k.rec(lambda: (wq_raw(), pack_issue(), misc_l1()))
                fr = []
                for ks in range(4 * r, 4 * r + 4):
                    for pr in range(2):
                        for b in range(2):
                            base = R0 + ks * 4096 + pr * 2048
                            fr.append(dict(addr=(vTR0, vTR1)[b], offs=(base, base + 1024), mf=mf2(vACC + 16 * pr + 8 * b, ks, False, False)))
                for pr in range(2):
                    for b in range(2):
                        base = R0 + r * 16384 + pr * 2048
                        fr.append(dict(addr=vPQ + 2 + b, offs=(base, base + 1024), mf=[(CSA + 8 * pr + 4 * b, ONES, False, r == 0, None)]))
                fill = {}
                n = (len(bg) + (3 - r)) // (4 - r) if r < 3 else len(bg)
                n = min(len(bg), 36) if r < 3 else len(bg)
                spread(fill, bg[:n], 0, 1)
                bg = bg[n:]
                k.gemm(fr, fill)
            k.stamp("A.kv")
            cs_add(CSA, [0, 1, 2, 3])
            stats_finalize(True)
            k.vm_all()
            k.ds_all()
            pack_finish(vWB)
            k.barrier()
            stats_scale()
            k.stamp("A.cs")
        else:
            k.poll(sFXp, G_FX2)
            k.stamp("A.poll")
            k(f"s_add_u32 s{sTAG}, s{sTAG}, 1")
            al = k.rec(lambda: act_loads(G_X2))
            k.play(al[:PRE])
            stat_loads(G_ST2)
            fill = {}
            e = spread(fill, al[PRE:], 0, 4)
            spread(fill, k.rec(lambda: (stat_sum(), stats_finalize(True))), 18, 2)
            spread(fill, k.rec(stats_scale), 106, 2)
            w1b = k.rec(lambda: w1c1_dma(1))
            spread(fill, w1b[:15], e - 16, 1)
            spread(fill, w1b[15:], e, 4)
            fr = []
            for ks in range(16):
                for b in range(4):
                    fr.append(dict(addr=vL16, offs=(R0 + ks * 4096 + b * 1024,), mf=mf2(vACC + 8 * b, ks, False, True)))
            k.gemm(fr, fill)
            k.stamp("A.kv")
        CS = vT0
        k(f"v_and_b32 v{vWB+24}, 15, v{vLANE}")
        k(f"v_lshlrev_b32 v{vWB+24}, 2, v{vWB+24}")
        k(f"v_add_u32 v{vWB+24}, {L_CS}, v{vWB+24}")
        k.lds(f"ds_read2_b32 {vr(CS,2)}, v{vWB+24} offset0:0 offset1:16")
        k.lds(f"ds_read2_b32 {vr(CS+2,2)}, v{vWB+24} offset0:32 offset1:48")
        set_ones(vWB + 28)
        k.ds_all()
        PK, PV, TMP = vPQ, vACC, vWB + 24
        for h in range(2):
            for rb in range(2):
                phi_block(vACC + 8*h + 4*rb, NM_B + 4*rb, CS + h, RL_B + 4*rb, RS_B + 4*rb, PK + 4*h + 2*rb, TMP, "b")
        for h in range(2):
            for rb in range(2):
                a = vACC + 16 + 8*h + 4*rb
                c2, m = bcast(CS + 2 + h, 1, 3)
                for p in range(2):
                    k(f"v_pk_fma_f32 {vr(a+2*p,2)}, {vr(NM_B+4*rb+2*p,2)}, {c2}, {vr(a+2*p,2)}{m}")
                for p in range(2):
                    k(f"v_pk_mul_f32 {vr(a+2*p,2)}, {vr(a+2*p,2)}, {vr(RS_B+4*rb+2*p,2)}")
                for p in range(2):
                    k(f"v_cvt_pk_bf16_f32 v{PV+4*h+2*rb+p}, v{a+2*p}, v{a+2*p+1}")
        k(f"s_lshl_b32 s{sT2}, s{sW}, 10")
        k(f"s_add_u32 s{sT2}, s{sT2}, {R3}")
        k(f"v_add_u32 v{vT0}, s{sT2}, v{vL16}")
        KVA = vACC + 16
        for h in range(2):
            k(f"v_mfma_f32_16x16x32_bf16 {vr(KVA+8*h,4)}, {vr(PK+4*h,4)}, {vr(PV+4*h,4)}, 0")
            k(f"v_mfma_f32_16x16x32_bf16 {vr(KVA+8*h+4,4)}, {vr(vWB+28,4)}, {vr(PK+4*h,4)}, 0")
        k(f"s_lshl_b32 s{sT2}, s{sW}, 12")
        k(f"s_add_u32 s{sT2}, s{sT2}, {R3}")
        k(f"v_add_u32 v{vT1}, s{sT2}, v{vL16}")
        k("s_nop 3")
        for h in range(2):
            k.lds(f"ds_write_b64 v{vT0}, {vr(KVA+8*h,2)} offset:{(2*h)*4096}")
            k.lds(f"ds_write_b96 v{vT0}, {vr(KVA+8*h+2,3)} offset:{(2*h+1)*4096}")
        if L1:
            k.vm_all()
        k.barrier()
        for s in range(4):
            k.lds(f"ds_read_b128 {vr(vWB+4*s,4)}, v{vT1} offset:{s*1024}", ("kr", s))
        k.ds_wait(("kr", 1))
        k(f"v_pk_add_f32 {vr(vWB,2)}, {vr(vWB,2)}, {vr(vWB+4,2)}")
        k(f"v_add_f32 v{vWB+2}, v{vWB+2}, v{vWB+6}")
        k.ds_wait(("kr", 3))
        k(f"v_pk_add_f32 {vr(vWB+8,2)}, {vr(vWB+8,2)}, {vr(vWB+12,2)}")
        k(f"v_add_f32 v{vWB+10}, v{vWB+10}, v{vWB+14}")
        k(f"v_mov_b32 v{vACC+35}, s{sTAG}")
        k(f"v_pk_add_f32 {vr(vACC+32,2)}, {vr(vWB,2)}, {vr(vWB+8,2)}")
        k(f"v_add_f32 v{vACC+34}, v{vWB+2}, v{vWB+10}")
        k.vmem(f"buffer_store_dwordx4 {vr(vACC+32,4)}, v{vL16}, {srd(S_WS)}, s{sKVP} offen sc1", "kvst")
        k.stamp("A.kvpub")
        fill = {}
        wod = k.rec(wo_dma)
        spread(fill, wod[:11], 0, 1, 2)
        e = spread(fill, wod[11:], 6, 4)
        fr = []
        if L1:
            set_ones(ONES)
            k(f"v_add_u32 v{vPQ}, {R1}, v{vTR0}")
            k(f"v_add_u32 v{vPQ+1}, {R1}, v{vTR1}")
            k(f"s_lshl_b32 s{sT2}, s{sW}, 13")
            k(f"v_add_u32 v{vPQ+2}, s{sT2}, v{vPQ}")
            k(f"v_add_u32 v{vPQ+3}, s{sT2}, v{vPQ+1}")
            for j in range(4):
                for b in range(2):
                    fr.append(dict(addr=vPQ + 2 + b, offs=(j * 2048, j * 2048 + 1024), mf=[(vACC + 16 + 4 * b, ONES, False, j == 0, None)]))
            for ks in range(16):
                for b in range(2):
                    fr.append(dict(addr=vPQ + b, offs=(ks * 2048, ks * 2048 + 1024), mf=mf2(vACC + 8 * b, ks, True, False)))
            k.gemm(fr, fill)
            cs_add(vACC + 16, [4, 5])
            k.barrier()
            w1c1_dma(1)
        else:
            k(f"v_add_u32 v{vPQ}, {R1}, v{vL16}")
            for ks in range(16):
                for b in range(2):
                    fr.append(dict(addr=vPQ, offs=(ks * 2048 + b * 1024,), mf=mf2(vACC + 8 * b, ks, True, False)))
            k.gemm(fr, fill)
        k(f"v_and_b32 v{vT0}, 48, v{vLANE}")
        k(f"v_add_u32 v{vT0}, {L_CS}, v{vT0}")
        for h in range(2):
            k.lds(f"ds_read_b128 {vr(vWB+8+4*h,4)}, v{vT0} offset:{(4+h)*64}")
        k("s_nop 3")
        k.ds_all()
        for h in range(2):
            for rb in range(2):
                phi_block(vACC + 8*h + 4*rb, NM_A + rb, vWB + 8 + 4*h, RL_A + rb, RS_A + rb, vPQ + 4*h + 2*rb, vWB, "a")
        k.stamp("A.q")
        if L1:
            lp, done = k.label("L_xp"), k.label("L_xd")
            k(f"s_lshl_b32 s{sT4}, s{sG}, 7")
            k(f"s_add_u32 s{sT4}, s{sT4}, {WS_XID}")
            k(f"s_add_u32 s{sT3}, s{sTAG}, 2")
            k.poll_prep(15)
            k(f"{lp}:")
            k(f"buffer_load_dword v{vT0}, v{vT3}, {srd(S_WS)}, s{sT4} offen sc1")
            k.vm_all()
            k(f"v_subrev_u32 v{vT0}, s{sT3}, v{vT0}")
            k(f"v_cmp_lt_u32 vcc, 8, v{vT0}")
            k(f"s_cbranch_vccz {done}")
            k(f"s_sub_u32 s{sBUD}, s{sBUD}, 1")
            k(f"s_cbranch_scc0 {lp}")
            k(f"s_mov_b32 s{sBUD}, 0")
            k(f"{done}:")
            k(f"v_cmp_ne_u32 vcc, s{sXCC}, v{vT0}")
            k("s_nop 4")
            k(f"s_or_b32 s{sSLOW}, vcc_lo, {1 if o.get('forceslow') else 0}")
        lp, done = k.label("L_kp"), k.label("L_kd")
        k(f"{lp}:")
        for j in range(16):
            if j % 4 == 0:
                k(f"s_add_u32 s{sT2}, s{sKVC}, {j*1024}")
            k.vmem(f"buffer_load_dwordx4 {vr(vACT+4*j,4)}, v{vL16}, {srd(S_WS)}, s{sT2} offen offset:{(j%4)*1024} sc1", ("kv", j))
        SM = vWB
        for j in range(0, 16, 2):
            a, b = vACT + 4*j, vACT + 4*j + 4
            k.vm_wait(("kv", j + 1))
            if j == 0:
                k(f"v_pk_add_f32 {vr(SM,2)}, {vr(a,2)}, {vr(b,2)}")
                k(f"v_add_f32 v{SM+2}, v{a+2}, v{b+2}")
                k(f"v_min_u32 v{SM+4}, v{a+3}, v{b+3}")
                k(f"v_max_u32 v{SM+5}, v{a+3}, v{b+3}")
            else:
                k(f"v_pk_add_f32 {vr(a,2)}, {vr(a,2)}, {vr(b,2)}")
                k(f"v_add_f32 v{a+2}, v{a+2}, v{b+2}")
                k(f"v_min3_u32 v{SM+4}, v{a+3}, v{b+3}, v{SM+4}")
                k(f"v_max3_u32 v{SM+5}, v{a+3}, v{b+3}, v{SM+5}")
                k(f"v_pk_add_f32 {vr(SM,2)}, {vr(SM,2)}, {vr(a,2)}")
                k(f"v_add_f32 v{SM+2}, v{SM+2}, v{a+2}")
        k(f"v_xor_b32 v{SM+4}, s{sTAG}, v{SM+4}")
        k(f"v_xor_b32 v{SM+5}, s{sTAG}, v{SM+5}")
        k(f"v_or_b32 v{SM+4}, v{SM+4}, v{SM+5}")
        k(f"v_cmp_ne_u32 vcc, 0, v{SM+4}")
        k(f"s_cbranch_vccz {done}")
        k(f"s_sub_u32 s{sBUD}, s{sBUD}, 4")
        k(f"s_cbranch_scc0 {lp}")
        k(f"s_mov_b32 s{sBUD}, 0")
        k(f"{done}:")
        k.stamp("A.kvget")
        k(f"""
        v_cvt_pk_bf16_f32 v{SM}, v{SM}, v{SM+1}
        v_cvt_pk_bf16_f32 v{SM+2}, v{SM+2}, v{SM+2}
        s_lshr_b32 s{sT2}, s{sW}, 1
        s_lshl_b32 s{sT2}, s{sT2}, 9
        s_and_b32 s{sT3}, s{sW}, 1
        s_lshl2_add_u32 s{sT2}, s{sT3}, s{sT2}
        s_add_u32 s{sT2}, s{sT2}, {L_XB}
        v_lshl_add_u32 v{vT0}, v{vLANE}, 3, s{sT2}
        s_lshl_b32 s{sT2}, s{sW}, 5
        s_add_u32 s{sT2}, s{sT2}, {L_ZB}
        v_and_b32 v{vT1}, 15, v{vLANE}
        v_lshl_add_u32 v{vT1}, v{vT1}, 1, s{sT2}
        """)
        k.lds(f"ds_write_b32 v{vT0}, v{SM}")
        k.lds(f"ds_write_b16 v{vT1}, v{SM+2}")
        k(f"v_lshlrev_b32 v{vT0}, 3, v{vLANE}")
        k(f"v_add_u32 v{vT0}, {L_XB}, v{vT0}")
        k(f"v_lshrrev_b32 v{vT1}, 4, v{vLANE}")
        k(f"v_lshlrev_b32 v{vT1}, 3, v{vT1}")
        k(f"v_add_u32 v{vT1}, {L_ZB}, v{vT1}")
        k.barrier()
        for h in range(2):
            k.lds(f"ds_read_b64 {vr(vWB+4*h,2)}, v{vT0} offset:{512*h}")
            k.lds(f"ds_read_b64 {vr(vWB+4*h+2,2)}, v{vT1} offset:{(2*h+1)*32}")
        w1a = k.rec(lambda: w1c1_dma(0))
        k.play(w1a[:15])
        k.ds_all()
        OA = vACC + 16
        for rb in range(2):
            for h in range(2):
                d = OA + 16*rb + 8*h
                k(f"v_mfma_f32_16x16x16_bf16 {vr(d+4,4)}, {vr(vWB+4*h+2,2)}, {vr(vPQ+4*h+2*rb,2)}, 0")
                k(f"v_mfma_f32_16x16x16_bf16 {vr(d,4)}, {vr(vWB+4*h,2)}, {vr(vPQ+4*h+2*rb,2)}, 0")
        k("s_nop 1")
        for rb in range(2):
            for h in range(2):
                d = OA + 16*rb + 8*h
                k(f"v_add_f32 v{d+4}, s{sEPS}, v{d+4}")
                k("s_nop 0")
        for rb in range(2):
            for h in range(2):
                d = OA + 16*rb + 8*h
                k(f"v_rcp_f32 v{d+4}, v{d+4}")
        k("s_nop 0")
        for rb in range(2):
            for h in range(2):
                d = OA + 16*rb + 8*h
                for p in range(2):
                    k(f"v_pk_mul_f32 {vr(d+2*p,2)}, {vr(d+2*p,2)}, {vr(d+4,2)} op_sel_hi:[1,0]")
                for p in range(2):
                    k(f"v_cvt_pk_bf16_f32 v{vPQ+4*rb+2*h+p}, v{d+2*p}, v{d+2*p+1}")
        k.stores([f"buffer_store_dwordx4 {vr(vPQ+4*rb,4)}, v{vL16}, {srd(S_WS)}, s{sOST+rb} offen" for rb in range(2)], pay_sc1)
        nb = o.get("w1a_pre", 4)
        k.play(w1a[15:15+nb])
        unpack_res(vACC)
        k.poll_prep(15)
        k.flag(sFOo, G_FO)
        k.stamp("A.opub")
        k.poll(sFOp, G_FO)
        k.stamp("B.poll")

        def b_loads():
            for ks in range(16):
                with k.atomic():
                    if ks % 4 == 0:
                        k(f"s_add_u32 s{sT2}, s{sBACT}, {G_O + ks*1024}")
                    k.vmem(f"buffer_load_dwordx4 {vr(vACT+4*ks,4)}, v{vL16}, {srd(S_WS)}, s{sT2} offen offset:{(ks%4)*1024} sc1", ("act", ks))
        bl = k.rec(b_loads)
        k.play(bl[:PRE])
        fill = {}
        e = spread(fill, bl[PRE:], 0, 3)
        spread(fill, w1a[15+nb:], e, 4)
        fr = []
        for ks in range(16):
            for f in range(4):
                fr.append(dict(addr=vQ0 + f, offs=(R0 + ks * 4096, R0 + ks * 4096 + 2048),
                               mf=[(vACC + 4 * f, vACT + 4 * ks, True, False, ("act", ks))]))
        k.gemm(fr, fill, D=7)
        k.stamp("B.mm")
        k("s_barrier")
        for f in range(4):
            k(f"v_add_u32 v{vQ0+f}, {R1}, v{vQ0+f}")
        k("s_nop 2")
        for f in range(4):
            for p in range(2):
                k(f"v_cvt_pk_bf16_f32 v{vRES+2*f+p}, v{vACC+4*f+2*p}, v{vACC+4*f+2*p+1}")
        publish_x(G_X1, G_ST1, G_FX1, pay_sc1)
        k.stamp("B.pub")
        k("s_barrier")
        w1c2 = k.rec(lambda: lin_dma(PK_W1, R0, 12, "w1c2"))
        nc = o.get("w1c2_pre", 6)
        k.play(w1c2[:2+nc])
        if L1:
            set_ones(ONES)
            k(f"s_lshl_b32 s{sT2}, s{sW}, 14")
            for f in range(4):
                k(f"v_add_u32 v{vPQ+f}, s{sT2}, v{vQ0+f}")
            fr = []
            for j in range(4):
                for f in range(4):
                    fr.append(dict(addr=vPQ + f, offs=(j * 4096, j * 4096 + 2048), mf=[(vACC + 4 * f, ONES, False, j == 0, None)]))
            k.gemm(fr, D=7)
            cs_add(vACC, [6, 7, 8, 9])
        k.poll(sFXp, G_FX1)
        k.stamp("C.poll")
        al = k.rec(lambda: act_loads(G_X1))
        k.play(al[:PRE])
        stat_loads(G_ST1)
        fill = {}
        e = spread(fill, al[PRE:], 0, 4)
        spread(fill, k.rec(lambda: (stat_sum(), stats_finalize(False))), 18, 3)
        spread(fill, w1c2[2+nc:], e, 3)
        fr = []
        for ks in range(16):
            for f in range(4):
                fr.append(dict(addr=vQ0 + f, offs=(ks * 4096, ks * 4096 + 2048), mf=mf2(vACC + 8 * f, ks, True, True)))
        k.gemm(fr, fill)
        k.stamp("C.mm1")
        for f in range(4):
            k(f"v_subrev_u32 v{vQ0+f}, {R1}, v{vQ0+f}")
        k.vm_wait("w1c2")
        k.barrier()

        def relu_block(acc, cs, rb, dst, scalar=False):
            if scalar:
                for j in range(4):
                    k(f"v_fmac_f32 v{acc+j}, v{cs+j}, v{NM_A+rb}")
                for j in range(4):
                    k(f"v_mul_f32 v{acc+j}, v{acc+j}, v{RS_A+rb}")
                for p in range(2):
                    k(f"v_cvt_pk_bf16_f32 v{dst+p}, v{acc+2*p}, v{acc+2*p+1}")
                for p in range(2):
                    k(f"v_pk_max_i16 v{dst+p}, v{dst+p}, 0")
                return
            c2, m = bcast(NM_A + rb, 1, 3)
            for p in range(2):
                k(f"v_pk_fma_f32 {vr(acc+2*p,2)}, {vr(cs+2*p,2)}, {c2}, {vr(acc+2*p,2)}{m}")
            c2, m = bcast(RS_A + rb, 1, 2)
            for p in range(2):
                k(f"v_pk_mul_f32 {vr(acc+2*p,2)}, {vr(acc+2*p,2)}, {c2}{m}")
            for p in range(2):
                k(f"v_cvt_pk_bf16_f32 v{dst+p}, v{acc+2*p}, v{acc+2*p+1}")
            for p in range(2):
                k(f"v_pk_max_i16 v{dst+p}, v{dst+p}, 0")

        def epi1():
            k(f"v_and_b32 v{vT0}, 48, v{vLANE}")
            k(f"v_add_u32 v{vT0}, {L_CS}, v{vT0}")
            for s in range(2):
                for b in range(2):
                    k.lds(f"ds_read_b128 {vr(vPQ+4*b,4)}, v{vT0} offset:{(6+2*s+b)*64}", "cs")
                k("s_nop 0")
                k("s_nop 0")
                k("s_nop 0")
                k.ds_wait("cs")
                for rb in range(2):
                    for b in range(2):
                        relu_block(vACC + 16*s + 8*b + 4*rb, vPQ + 4*b, rb, vACC + 16*s + 4*rb + 2*b, True)
                k.stores([f"buffer_store_dwordx4 {vr(vACC+16*s+4*rb,4)}, v{vL16}, {srd(S_WS)}, s{sH1+rb} offen offset:{s*1024}"
                          for rb in range(2)], pay_sc1)

        def w2t_loads():
            k(f"s_lshl2_add_u32 s{sD0}, s{sCT}, s{sW}")
            k(f"s_mul_i32 s{sD0}, s{sD0}, 57344")
            k(f"s_add_u32 s{sD0}, s{sD0}, {WS_W2T}")
            for j in range(56):
                with k.atomic():
                    if j % 4 == 0:
                        k(f"s_add_u32 s{sD1}, s{sD0}, {j*1024}")
                    k.vmem(f"buffer_load_dwordx4 {ar(4*j,4)}, v{vL16}, {srd(S_WS)}, s{sD1} offen offset:{(j%4)*1024} sc1", ("w2t", j // 4))
        C2 = vACC + 32
        fill = {}
        fr = []
        m0 = 0
        if L1:
            set_ones(ONES)
            k(f"s_mul_i32 s{sT2}, s{sW}, {4*3072}")
            k(f"v_add_u32 v{vPQ}, s{sT2}, v{vL16}")
            fc = []
            for j in range(4):
                for b in range(3):
                    fc.append(dict(addr=vPQ, offs=(R0 + j * 3072 + b * 1024,), mf=[(C2 + 4 * b, ONES, False, j == 0, None)]))
            k.gemm(fc, D=7)
            cs_add(C2, [10, 11, 12])
            k.ds_all()
        e1 = k.rec(epi1)
        e = spread(fill, e1, 0, 2 / 3)
        fl1 = k.rec(lambda: k.flag(sFHo, G_FH))
        spread(fill, fl1, min(e + o.get("fl1", 16), 95), 1)
        if L1:
            w2 = k.rec(w2t_loads)
            nw2 = o.get("nw2", 24)
            spread(fill, w2[:3 + nw2], 0, 96 / (3 + nw2))
        for ks in range(16):
            for b in range(3):
                fr.append(dict(addr=vL16, offs=(R0 + ks * 3072 + b * 1024,), mf=mf2(C2 + 8 * b, ks, True, False)))
        k.gemm(fr, fill)
        k.stamp("C.mm2")
        k.barrier()
        k(f"v_and_b32 v{vT0}, 48, v{vLANE}")
        k(f"v_add_u32 v{vT0}, {L_CS}, v{vT0}")
        for b in range(3):
            k.lds(f"ds_read_b128 {vr(vWB+4*b,4)}, v{vT0} offset:{(10+b)*64}")
        for j in range(4):
            k(f"s_add_u32 s{sT0}, s{sW}, {j}")
            k(f"s_and_b32 s{sT0}, s{sT0}, 3")
            k(f"s_lshl2_add_u32 s{sT0}, s{sDH}, s{sT0}")
            k(f"s_lshl2_add_u32 s{sT0}, s{sT0}, s{sW}")
            k(f"s_mul_i32 s{sT0}, s{sT0}, 14336")
            k(f"s_add_u32 s{sT0}, s{sT0}, s{sGB}")
            k(f"s_add_u32 s{sRB+j}, s{sT0}, {G_H}")
        k.ds_all()
        HO = vWB + 16
        for rb in range(2):
            for b in range(3):
                relu_block(C2 + 8*b + 4*rb, vWB + 4*b, rb, HO + 8*rb + 2*b)
        its = []
        for rb in range(2):
            its.append(f"buffer_store_dwordx4 {vr(HO+8*rb,4)}, v{vL16}, {srd(S_WS)}, s{sH2+rb} offen")
            its.append(f"buffer_store_dwordx2 {vr(HO+8*rb+4,2)}, v{vL16}, {srd(S_WS)}, s{sH3+rb} offen")
        k.stores(its, pay_sc1)
        k.stamp("C.st2")
        k.poll_prep(7)
        k.poll(sFHp, G_FH)
        k.vm_note(1, "st")
        k.flag(sFHo, G_FH + 1024)
        k.stamp("D.poll1")

        def hload(t):
            ksl, j = divmod(t, 4)
            if ksl % 4 == 0 and ksl:
                k(f"s_add_u32 s{sRB+j}, s{sRB+j}, 4096")
            k.vmem(f"buffer_load_dwordx4 {vr(vACT+4*(t%32),4)}, v{vL16}, {srd(S_WS)}, s{sRB+j} offen offset:{(ksl%4)*1024} sc1", ("h", t))

        LA = o.get("dla", 10)
        rest = w2[3 + nw2:] if L1 else []
        tail = k.rec(lambda: (lin_dma(0, R0, 16, "wkv2"), lin_dma(PK_Q, R1, 8, "wq2"))) if L1 else []
        for t in range(LA):
            hload(t)
        for t in range(56):
            ksl, j = divmod(t, 4)
            if L1:
                k.vm_wait(("w2t", ksl))
            k.vm_wait(("h", t))
            for f in range(4):
                a = vACC + 16*j + 4*f
                c = "0" if ksl == 0 else vr(a, 4)
                k(f"v_mfma_f32_16x16x32_bf16 {vr(a,4)}, {ar((ksl*4+f)*4,4)}, {vr(vACT+4*(t%32),4)}, {c}")
                if f == 0:
                    nt = t + LA
                    if nt == 32 - 6:
                        k.vmem(f"buffer_load_dword v{vT0}, v{vT3}, {srd(S_WS)}, s{sFHp} offen offset:{G_FH+1024} sc1", "p2")
                    if nt == 32:
                        ok = k.label("L_p2ok")
                        k.vm_wait("p2")
                        k(f"v_cmp_ne_u32 vcc, s{sTAG}, v{vT0}")
                        k(f"s_cbranch_vccz {ok}")
                        sv = list(k.vm)
                        k.poll(sFHp, G_FH + 1024, False)
                        k.vm = sv
                        k(f"{ok}:")
                    if nt < 56:
                        hload(nt)
                if f == 2:
                    if rest:
                        k.play(rest[:1]); rest = rest[1:]
                        if rest and t % 2 == 0:
                            k.play(rest[:1]); rest = rest[1:]
                    elif t + LA >= 56 and tail:
                        k.play(tail[:2]); tail = tail[2:]
        assert not rest
        k.stamp("D.mm")
        for j in range(1, 4):
            k(f"s_add_u32 s{sT2}, s{sW}, {j}")
            k(f"s_and_b32 s{sT2}, s{sT2}, 3")
            k(f"s_mul_i32 s{sT2}, s{sT2}, 12288")
            k(f"s_add_u32 s{sT2}, s{sT2}, {L_RED + (j-1)*4096}")
            k(f"v_add_u32 v{vT0+j}, s{sT2}, v{vL16}")
        k(f"s_mul_i32 s{sT2}, s{sW}, 12288")
        k(f"s_add_u32 s{sT2}, s{sT2}, {L_RED}")
        k(f"v_add_u32 v{vT0}, s{sT2}, v{vL16}")
        for j in range(1, 4):
            for f in range(4):
                k.lds(f"ds_write_b128 v{vT0+j}, {vr(vACC+16*j+4*f,4)} offset:{f*1024}")
                if tail:
                    k.play(tail[:1]); tail = tail[1:]
        assert not tail
        unpack_res(vWB)
        for q in range(8):
            k(f"v_pk_add_f32 {vr(vACC+2*q,2)}, {vr(vACC+2*q,2)}, {vr(vWB+2*q,2)}")
        k.barrier()
        for j in range(3):
            for f in range(4):
                k.lds(f"ds_read_b128 {vr(vACC+16+16*j+4*f,4)}, v{vT0} offset:{j*4096+f*1024}", ("rd", j, f))
        for j in range(3):
            for f in range(4):
                k.ds_wait(("rd", j, f))
                for p in range(2):
                    k(f"v_pk_add_f32 {vr(vACC+4*f+2*p,2)}, {vr(vACC+4*f+2*p,2)}, {vr(vACC+16+16*j+4*f+2*p,2)}")
        for f in range(4):
            for p in range(2):
                k(f"v_cvt_pk_bf16_f32 v{vRES+2*f+p}, v{vACC+4*f+2*p}, v{vACC+4*f+2*p+1}")
        k.stamp("D.red")
        if L1:
            publish_x(G_X2, G_ST2, G_FX2, pay_sc1)
            k(f"s_add_u32 s{sKVC}, s{sKVC}, 0x100000")
            k(f"s_add_u32 s{sKVP}, s{sKVP}, 0x100000")
            k.stamp("D.pub")
            k("s_barrier")
        else:
            k(f"""
            v_and_b32 v{vT1}, 15, v{vLANE}
            v_lshlrev_b32 v{vT1}, 10, v{vT1}
            v_lshrrev_b32 v{vT0}, 4, v{vLANE}
            v_lshl_add_u32 v{vT2}, v{vT0}, 3, v{vT1}
            s_lshl2_add_u32 s{sT2}, s{sDH}, s{sW}
            s_lshl3_add_u32 s{sT2}, s{sG}, s{sT2}
            s_lshl_b32 s{sT2}, s{sT2}, 14
            s_lshl_b32 s{sT3}, s{sCT}, 7
            s_add_u32 s{sT2}, s{sT2}, s{sT3}
            """)
            for f in range(4):
                k.vmem(f"buffer_store_dwordx2 {vr(vRES+2*f,2)}, v{vT2}, {srd(S_OUT)}, s{sT2} offen offset:{32*f}")
            le = k.label("L_ep")
            k(f"s_or_b32 s{sT2}, s2, s{sW}")
            k(f"s_cbranch_scc1 {le}")
            k(f"s_add_u32 s{sEP}, s{sEP}, 1")
            k(f"v_mov_b32 v{vT1}, s{sEP}")
            k("s_mov_b64 exec, 1")
            k(f"buffer_store_dword v{vT1}, v{vL16}, {srd(S_WS)}, 0 offen offset:{WS_EPOCH}")
            k("s_mov_b64 exec, -1")
            k(f"{le}:")
            if stamps:
                k.vm_all()
                k.stamp("end")
                k(f"s_memrealtime s[{sST}:{sST+1}]")
                k("s_waitcnt lgkmcnt(0)")
                k(f"v_writelane_b32 v{vSTAMP}, s{sST}, 61")
                k(f"v_writelane_b32 v{vSTAMP}, s{sBUD}, 60")
                k(f"v_writelane_b32 v{vSTAMP}, s{sSLOW}, 59")
                k(f"s_lshl2_add_u32 s{sT2}, s2, s{sW}")
                k(f"s_lshl_b32 s{sT2}, s{sT2}, 8")
                k(f"s_add_u32 s{sT2}, s{sT2}, {WS_STAMP}")
                k(f"v_lshrrev_b32 v{vT0}, 2, v{vL16}")
                k(f"buffer_store_dword v{vSTAMP}, v{vT0}, {srd(S_WS)}, s{sT2} offen")
                if o.get("dbgout"):
                    ld = k.label("L_dbg")
                    k(f"s_cmp_lg_u32 s2, 37")
                    k(f"s_cbranch_scc1 {ld}")
                    k(f"s_cmp_lg_u32 s{sW}, 0")
                    k(f"s_cbranch_scc1 {ld}")
                    k(f"s_load_dwordx2 s[{S_X}:{S_X+1}], s[0:1], 56")
                    k(f"v_readlane_b32 s{sT0}, v{vSTAMP}, 62")
                    k(f"v_readlane_b32 s{sT1}, v{vSTAMP}, 63")
                    k(f"v_readlane_b32 s{sT2}, v{vSTAMP}, 61")
                    k("s_nop 4")
                    k(f"s_sub_u32 s{sT2}, s{sT2}, s{sT1}")
                    k(f"v_subrev_u32 v{vSTAMP}, s{sT0}, v{vSTAMP}")
                    k(f"v_mov_b32 v{vT1}, 0")
                    sel = [0, 2, 3, 5, 7, 9, 12, 13, 16, 17, 19, 21, 24, 30, len(k.stamp_names) - 1]
                    for j, ix in enumerate(sel):
                        k(f"v_readlane_b32 s{sT3}, v{vSTAMP}, {ix}")
                        k("s_nop 3")
                        k(f"v_writelane_b32 v{vT1}, s{sT3}, {j}")
                    k(f"v_writelane_b32 v{vT1}, s{sT2}, 15")
                    k("s_waitcnt lgkmcnt(0)")
                    k(f"s_mov_b32 s{S_X+2}, 256")
                    k(f"buffer_store_dword v{vT1}, v{vT0}, {srd(S_X)}, 0 offen")
                    k(f"{ld}:")
    k("L_end:")
    body = "\n".join(k.lines)
    hdr = open("interleave_layers__linear_attn_block__dense_activation_relu__prompt.s.ref").read().split("; Override")[0]
    txt = f"""{hdr}; Generated by a hand-written generator (persistent kernel, one workgroup per CU).
; @launch grid=(256,1,1) block=(256,1,1) lds={LDS_BYTES}
.amdgcn_target "amdgcn-amd-amdhsa--gfx950"
.text
.globl {NAME}
.p2align 8
.type {NAME},@function
.set CODE_BYTES, L_code_end - L_pcref - 512
{NAME}:
{body}
    s_endpgm
L_code_end:
.section .rodata,"a"
.p2align 6
.amdhsa_kernel {NAME}
  .amdhsa_next_free_vgpr 512
  .amdhsa_next_free_sgpr 96
  .amdhsa_accum_offset 256
  .amdhsa_group_segment_fixed_size 0
  .amdhsa_kernarg_size 72
  .amdhsa_user_sgpr_count 2
  .amdhsa_user_sgpr_kernarg_segment_ptr 1
  .amdhsa_system_sgpr_workgroup_id_x 1
.end_amdhsa_kernel
"""
    return txt, k.stamp_names


if __name__ == "__main__":
    out = sys.argv[1]
    stamps = "stamps" in sys.argv[2:]
    opts = {}
    for a in sys.argv[2:]:
        if "=" in a:
            x, y = a.split("=")
            opts[x] = int(y)
    txt, names = gen(stamps, opts)
    open(out, "w").write(txt)
    if stamps:
        open(out + ".names", "w").write("\n".join(names))
```

```python
import sys
from contextlib import contextmanager

NAME = "interleave_layers__linear_attn_block__dense_activation_relu__prompt_kernel"

WS_EPOCH = 0
WS_XID = 0x1000
WS_PF = 0x2000
WS_W2F = 0x3000
GRP0 = 0x100000
G_FO, G_FX1, G_FX2, G_FH = 0, 512, 1024, 1536
G_ST1 = 0x1000
G_ST2 = 0x3000
G_O = 0x8000
G_X1 = G_O + 0x20000
G_X2 = G_X1 + 0x20000
G_H = G_X2 + 0x20000
WS_KVX = 0x1200000
WS_W2T = 0x1400000
WS_PK = 0x1600000
PK_Q, PK_W1, PK_SZ = 65536, 98304, 147456
WS_STAMP = 0x1900000
WS_USED = 0x1A00000

R0, R1, R2, R3 = 0, 65536, 98304, 131072
L_SM = 159744
L_CS = L_SM
L_STAT = L_SM + 1024
L_XB = L_SM + 2048
L_ZB = L_SM + 3072
L_XST = 98304
L_RED = R2
L_PST = R2
LDS_BYTES = 163840

S_X, S_WQKV, S_WO, S_W1, S_W2, S_OUT, S_WS = 4, 8, 12, 16, 20, 24, 28
(sW, sC, sG, sTAG, sSLOW, sGB, sBUD, sEP, sEPS, _e1, sT0, sT1, sT2, sT3, sT4, sT5,
 sACT, sACT1, sBACT, sTILE, sOST, sOST1, sFOo, sFOp, sFXo, sFXp, sSTo, sSTg,
 sH1, sH1b, sH2, sH2b, sH3, sH3b, sFHo, sFHp, sRB, _r1, _r2, _r3, sKVC, sKVP,
 sDH, sCT, sXCC, sRHO, sD0, sD1, sD2, sD3, sL0, sL1, sPKB, sPD, sPU, sJ0) = range(32, 88)
assert sEPS % 2 == 0
sST = 88
sPC = 92

vLANE, vL16, vTR0, vTR1, vQ0, vQ1, vQ2, vQ3, vP, vCH, vDM, vSTAMP = range(12)
vT0, vT1, vT2, vT3 = 12, 13, 14, 15
vSP, vSP2 = vP, vCH
vRES = 16
vPQ = 24
vWB = 32
vACC = 64
vACT = 128
BF1 = "0x3f803f80"


def srd(s):
    return f"s[{s}:{s+3}]"


def vr(a, n=1):
    return f"v{a}" if n == 1 else f"v[{a}:{a+n-1}]"


def ar(a, n=1):
    return f"a{a}" if n == 1 else f"a[{a}:{a+n-1}]"


def bcast(r, pos, n):
    lo = [0] * n
    hi = [1] * n
    if r % 2 == 0:
        hi[pos] = 0
    else:
        lo[pos] = 1
    f = lambda x: "[" + ",".join(map(str, x)) + "]"
    return vr(r & ~1, 2), f" op_sel:{f(lo)} op_sel_hi:{f(hi)}"


class K:
    def __init__(self, stamps=False, opts=None):
        self.lines = []
        self.nlab = 0
        self.vm = []
        self.ds = []
        self.stamps = stamps
        self.stamp_names = []
        self.o = opts or {}
        self._rec = None
        self.seen = set()

    def _do(self, fn):
        if self._rec is not None:
            self._rec.append(fn)
        else:
            fn()

    def rec(self, f):
        assert self._rec is None
        self._rec = []
        f()
        r, self._rec = self._rec, None
        return r

    @contextmanager
    def atomic(self):
        if self._rec is None:
            yield
            return
        outer, self._rec = self._rec, []
        yield
        inner, self._rec = self._rec, outer
        outer.append(lambda: [x() for x in inner])

    def play(self, items):
        for x in items:
            self._do(x)

    def _emit(self, l):
        self.lines.append(("" if l.endswith(":") else "    ") + l)

    def __call__(self, s):
        for l in s.split("\n"):
            l = l.strip()
            if l:
                self._do(lambda l=l: self._emit(l))

    def label(self, base="L"):
        self.nlab += 1
        return f"{base}_{self.nlab}"

    def vmem(self, s, tag=None):
        def f():
            self._emit(s)
            self.vm.append(tag)
            self.seen.add(tag)
        self._do(f)

    def vm_note(self, n, tag=None):
        self._do(lambda: (self.vm.extend([tag] * n), self.seen.add(tag)))

    def _wait(self, lst, tag, name, mx):
        if tag not in lst:
            return lst
        idx = len(lst) - 1 - lst[::-1].index(tag)
        n = min(len(lst) - idx - 1, mx)
        self._emit(f"s_waitcnt {name}({n})")
        return lst[len(lst) - n:] if n else []

    def vm_wait(self, tag):
        def f():
            assert tag in self.seen, tag
            self.vm = self._wait(self.vm, tag, "vmcnt", 63)
        self._do(f)

    def vm_all(self):
        def f():
            self._emit("s_waitcnt vmcnt(0)")
            self.vm = []
        self._do(f)

    def lds(self, s, tag=None):
        def f():
            self._emit(s)
            self.ds.append(tag)
        self._do(f)

    def ds_wait(self, tag):
        def f():
            self.ds = self._wait(self.ds, tag, "lgkmcnt", 15)
        self._do(f)

    def ds_all(self, force=False):
        def f():
            if self.ds or force:
                self._emit("s_waitcnt lgkmcnt(0)")
            self.ds = []
        self._do(f)

    def barrier(self, force=False):
        self.ds_all(force)
        self("s_barrier")

    def stamp(self, name):
        if not self.stamps:
            return
        self.nst = getattr(self, "nst", 0) + 1
        if "leak" in self.o and self.nst - 1 != self.o["leak"]:
            return
        i = len(self.stamp_names)
        assert i < 59
        self.stamp_names.append(name)
        self(f"s_memtime s[{sST}:{sST+1}]")
        self.ds_all(True)
        self(f"v_writelane_b32 v{vSTAMP}, s{sST}, {i}")

    def dma(self, sr, voff, soff, simm, lreg, limm, tag=None, flag=""):
        with self.atomic():
            self(f"s_add_u32 m0, s{lreg}, {limm}")
            self(f"s_add_u32 s{sT5}, s{soff}, {simm}")
            self.vmem(f"buffer_load_dwordx4 v{voff}, {srd(sr)}, s{sT5} offen{flag} lds", tag)

    def poll_prep(self, mask):
        self(f"v_lshrrev_b32 v{vT3}, 2, v{vL16}")
        self(f"v_and_b32 v{vT3}, {mask*4}, v{vT3}")

    def poll(self, soff, imm, clear=True):
        if clear:
            self.seen = {t for t in self.seen if not (isinstance(t, tuple) and t[0] in ("act", "h"))}
        lp, done = self.label("L_poll"), self.label("L_pd")
        with self.atomic():
            self(f"{lp}:")
            self(f"buffer_load_dword v{vT0}, v{vT3}, {srd(S_WS)}, s{soff} offen offset:{imm} sc1")
            self.vm_all()
            self(f"v_cmp_ne_u32 vcc, s{sTAG}, v{vT0}")
            self(f"s_cbranch_vccz {done}")
            self(f"s_sub_u32 s{sBUD}, s{sBUD}, 1")
            self(f"s_cbranch_scc0 {lp}")
            self(f"s_mov_b32 s{sBUD}, 0")
            self(f"{done}:")

    def stores(self, items, force_sc1, tag="st"):
        with self.atomic():
            if force_sc1:
                for it in items:
                    self.vmem(it + " sc1", tag)
                return
            ls, le = self.label("L_ss"), self.label("L_se")
            self(f"s_cmp_lg_u32 s{sSLOW}, 0")
            self(f"s_cbranch_scc1 {ls}")
            for it in items:
                self.vmem(it, tag)
            self(f"s_branch {le}")
            self(f"{ls}:")
            for it in items:
                self(it + " sc1")
            self(f"{le}:")

    def flag(self, soff, imm):
        with self.atomic():
            self(f"v_mov_b32 v{vT1}, s{sTAG}")
            self.vm_wait("st")
            self("s_mov_b64 exec, 1")
            self.stores([f"buffer_store_dword v{vT1}, v{vL16}, {srd(S_WS)}, s{soff} offen offset:{imm}"], False, "flag")
            self("s_mov_b64 exec, -1")

    def gemm(self, frags, fill=None, D=6):
        n = len(frags)
        fill = fill or {}
        self.gid = getattr(self, "gid", 0) + 1
        gid = self.gid
        reads = []
        for t, f in enumerate(frags):
            s = vWB + 4 * (t % 8)
            if len(f["offs"]) == 2:
                for hh in range(2):
                    reads.append((t, f"ds_read_b64_tr_b16 {vr(s + 2*hh, 2)}, v{f['addr']} offset:{f['offs'][hh]}"))
            else:
                reads.append((t, f"ds_read_b128 {vr(s, 4)}, v{f['addr']} offset:{f['offs'][0]}"))
        rp = 0

        def issue_upto(tmax, maxn):
            nonlocal rp
            c = 0
            while rp < len(reads) and reads[rp][0] <= tmax and c < maxn:
                self.lds(reads[rp][1], ("w", gid, reads[rp][0]))
                rp += 1
                c += 1
        issue_upto(D - 1, 99)
        mi = 0
        for t, f in enumerate(frags):
            s = vWB + 4 * (t % 8)
            self.ds_wait(("w", gid, t))
            nm = len(f["mf"])
            for j, (acc, act_, sw, first, wt) in enumerate(f["mf"]):
                if wt is not None:
                    self.vm_wait(wt)
                c = "0" if first else vr(acc, 4)
                if sw:
                    self(f"v_mfma_f32_16x16x32_bf16 {vr(acc,4)}, {vr(s,4)}, {vr(act_,4)}, {c}")
                else:
                    self(f"v_mfma_f32_16x16x32_bf16 {vr(acc,4)}, {vr(act_,4)}, {vr(s,4)}, {c}")
                issue_upto(t + D, 99 if j == nm - 1 else 1)
                self.play(fill.pop(mi, []))
                mi += 1
        for key in sorted(fill):
            self.play(fill[key])


def spread(fill, items, start, step, per=1):
    p = start
    for i in range(0, len(items), per):
        fill.setdefault(int(p), []).extend(items[i:i + per])
        p += step
    return p


def act(ks, rb):
    return vACT + 8 * ks + 4 * rb


def gen(stamps=False, opts=None):
    k = K(stamps, opts)
    o = k.o
    if stamps:
        k(f"s_memtime s[{sST}:{sST+1}]")
        k(f"s_memrealtime s[{sST+2}:{sST+3}]")
    k(f"""
    s_cmp_ge_u32 s2, 256
    s_cbranch_scc1 L_end
    s_load_dwordx2 s[{S_X}:{S_X+1}], s[0:1], 0
    s_load_dwordx2 s[{S_WQKV}:{S_WQKV+1}], s[0:1], 8
    s_load_dwordx2 s[{S_WS}:{S_WS+1}], s[0:1], 64
    s_load_dwordx2 s[{S_WO}:{S_WO+1}], s[0:1], 16
    s_load_dwordx2 s[{S_W1}:{S_W1+1}], s[0:1], 32
    s_load_dwordx2 s[{S_W2}:{S_W2+1}], s[0:1], 40
    s_load_dwordx2 s[{S_OUT}:{S_OUT+1}], s[0:1], 48
    v_lshrrev_b32 v{vT0}, 6, v0
    v_and_b32 v{vLANE}, 63, v0
    s_mov_b32 s{S_X+2}, {2048*1024}
    v_readfirstlane_b32 s{sW}, v{vT0}
    s_mov_b32 s{S_X+3}, 0x20000
    s_mov_b32 s{S_WQKV+2}, {512*3072}
    s_mov_b32 s{S_WQKV+3}, 0x20000
    s_lshr_b32 s{sT0}, s2, 3
    s_and_b32 s{sC}, s{sT0}, 15
    s_lshr_b32 s{sT0}, s{sT0}, 4
    s_and_b32 s{sG}, s2, 7
    s_lshl1_add_u32 s{sG}, s{sG}, s{sT0}
    s_lshr_b32 s{sT1}, s{sC}, 1
    s_xor_b32 s{sT1}, s{sT1}, s{sT0}
    s_and_b32 s{sT1}, s{sT1}, 1
    s_and_b32 s{sRHO}, s{sC}, 1
    s_lshl1_add_u32 s{sRHO}, s{sT1}, s{sRHO}
    v_lshlrev_b32 v{vL16}, 4, v{vLANE}
    """)
    if stamps:
        k(f"v_mov_b32 v{vSTAMP}, 0")
    XS, XR = vRES, vRES + 4
    k(f"""
    v_lshrrev_b32 v{vT0}, 4, v{vLANE}
    v_and_b32 v{vT1}, 15, v{vLANE}
    v_xor_b32 v{vT2}, v{vT0}, v{vT1}
    v_lshlrev_b32 v{vT2}, 4, v{vT2}
    v_lshl_add_u32 v{XS}, v{vT0}, 10, v{vT2}
    s_lshr_b32 s{sJ0}, s{sC}, 2
    s_and_b32 s{sT2}, s{sJ0}, 1
    s_lshl_b32 s{sT2}, s{sT2}, 7
    s_lshl_b32 s{sJ0}, s{sJ0}, 11
    v_xor_b32 v{XS}, s{sT2}, v{XS}
    v_xor_b32 v{XS+1}, 64, v{XS}
    v_xor_b32 v{XS+2}, 0x80, v{XS}
    v_xor_b32 v{XS+3}, 0xc0, v{XS}
    v_lshrrev_b32 v{vP}, 2, v{vLANE}
    v_and_b32 v{vCH}, 3, v{vLANE}
    v_lshrrev_b32 v{vT3}, 3, v{vLANE}
    v_and_b32 v{vT3}, 2, v{vT3}
    v_xor_b32 v{vCH}, v{vCH}, v{vT3}
    v_lshlrev_b32 v{vCH}, 4, v{vCH}
    v_and_b32 v{vT3}, 3, v{vP}
    v_lshl_add_u32 v{vT3}, v{vT0}, 3, v{vT3}
    s_movk_i32 s{sT1}, 3072
    v_mad_u32_u24 v{vDM}, v{vT3}, s{sT1}, v{vCH}
    s_lshl_b32 s{sL0}, s{sW}, 14
    s_add_u32 s{sL0}, s{sL0}, {L_XST}
    s_lshl_b32 s{sT1}, s{sG}, 17
    s_lshl_b32 s{sT2}, s{sW}, 15
    s_add_u32 s{sT1}, s{sT1}, s{sT2}
    s_lshl_b32 s{sL1}, s{sW}, 12
    s_mov_b32 s{S_WO+2}, {512*1024}
    s_mov_b32 s{S_WO+3}, 0x20000
    s_mov_b32 s{S_W1+2}, {512*3584}
    s_mov_b32 s{S_W1+3}, 0x20000
    """)
    for r in range(4):
        k(f"""
        s_add_u32 s{sT2}, s{sRHO}, {r}
        s_and_b32 s{sT2}, s{sT2}, 3
        s_lshl_b32 s{sT3}, s{sT2}, 8
        s_add_u32 s{sD0+r}, s{sT1}, s{sT3}
        s_lshl2_add_u32 s{sT2}, s{sT2}, s{sW}
        s_mul_i32 s{sT2}, s{sT2}, {32*3072}
        s_lshl_b32 s{sT3}, s{sC}, 6
        s_add_u32 s{sRB+r}, s{sT2}, s{sT3}
        """)
    k("s_waitcnt lgkmcnt(0)")
    k(f"s_load_dword s{sEP}, s[{S_WS}:{S_WS+1}], {WS_EPOCH}")
    if stamps:
        k(f"v_writelane_b32 v{vSTAMP}, s{sST}, 62")
        k(f"v_writelane_b32 v{vSTAMP}, s{sST+2}, 63")

    def xslot(q, js=range(8)):
        for j in js:
            with k.atomic():
                k(f"s_xor_b32 s{sT4}, s{sJ0}, {j*1024}")
                k(f"s_add_u32 m0, s{sT4}, s{sL0}")
                if q & 1:
                    k(f"s_add_u32 m0, m0, 8192")
                k(f"s_lshl2_add_u32 s{sT5}, s{sT4}, s{sD0+q}")
                k.vmem(f"buffer_load_dwordx4 v{XS+(j&3)}, {srd(S_X)}, s{sT5} offen lds", ("xs", q))

    def wkv_raw(r):
        for pr in range(2):
            for hh in range(2):
                k.dma(S_WQKV, vDM, sRB + r, hh * 4 * 3072 + 1024 * (pr + 1), sL1, R0 + r * 16384 + pr * 2048 + hh * 1024, ("wkv", r))

    def warm():
        k(f"s_lshl2_add_u32 s{sT2}, s2, s{sW}")
        k(f"v_lshlrev_b32 v{vT3}, 7, v{vLANE}")
        k(f"s_mul_i32 s{sT3}, s{sT2}, 1792")
        k("s_mov_b64 exec, 0x3fff")
        k.vmem(f"buffer_load_dword a255, v{vT3}, {srd(S_W1)}, s{sT3} offen")
        k(f"s_lshl_b32 s{sT3}, s{sT2}, 9")
        k("s_mov_b64 exec, 0xf")
        k.vmem(f"buffer_load_dword a255, v{vT3}, {srd(S_WO)}, s{sT3} offen")
        k(f"s_lshr_b32 s{sT3}, s{sT2}, 1")
        k(f"s_mul_i32 s{sT3}, s{sT3}, 3072")
        k(f"s_and_b32 s{sT2}, s{sT2}, 1")
        k(f"s_lshl_b32 s{sT2}, s{sT2}, 9")
        k(f"s_add_u32 s{sT3}, s{sT3}, s{sT2}")
        k.vmem(f"buffer_load_dword a255, v{vT3}, {srd(S_WQKV)}, s{sT3} offen")
        k(f"""
        s_getpc_b64 s[{sPC}:{sPC+1}]
        L_pcref:
        s_lshr_b32 s{sT2}, s2, 3
        s_lshl2_add_u32 s{sT2}, s{sT2}, s{sW}
        s_lshl_b32 s{sT2}, s{sT2}, 9
        s_min_u32 s{sT2}, s{sT2}, CODE_BYTES
        s_add_u32 s{sPC}, s{sPC}, s{sT2}
        s_addc_u32 s{sPC+1}, s{sPC+1}, 0
        """)
        k.vmem(f"global_load_dword a255, v{vT3}, s[{sPC}:{sPC+1}]")
        k("s_mov_b64 exec, -1")

    if o.get("tlb", 0):
        k("s_mov_b64 exec, 1")
        k.vmem(f"buffer_load_dword a255, v{vL16}, {srd(S_X)}, s{sD0} offen")
        k.vmem(f"buffer_load_dword a255, v{vL16}, {srd(S_WQKV)}, s{sRB} offen offset:1024")
        if o.get("tlb", 0) > 1:
            k.vmem(f"global_load_dword a255, v{vL16}, s[{S_WO}:{S_WO+1}]")
            k.vmem(f"global_load_dword a255, v{vL16}, s[{S_W1}:{S_W1+1}]")
            k.vmem(f"global_load_dword a255, v{vL16}, s[{S_W2}:{S_W2+1}]")
            k.vmem(f"global_load_dword a255, v{vL16}, s[{S_OUT}:{S_OUT+1}]")
            k(f"v_lshlrev_b32 v{vT3}, 21, v{vLANE}")
            k("s_mov_b64 exec, 0x1fff")
            k(f"v_lshlrev_b32 v{vT3}, 21, v{vLANE}")
            k.vmem(f"global_load_dword a255, v{vT3}, s[{S_WS}:{S_WS+1}] offset:128")
        k("s_mov_b64 exec, -1")
    xslot(0, range(2)); wkv_raw(0)
    if o.get("diag"):
        k.stamp("iss0")
        k("s_waitcnt vmcnt(4)")
        k.stamp("x0a")
        k("s_waitcnt vmcnt(3)")
        k.stamp("w0a")
        k("s_waitcnt vmcnt(0)")
        k.stamp("w0")
    if o.get("warm", 1):
        warm()
    else:
        k("L_pcref:")

    k(f"""
    s_mov_b32 s{S_W2+2}, {1792*1024}
    s_mov_b32 s{S_W2+3}, 0x20000
    s_mov_b32 s{S_OUT+2}, {2048*1024}
    s_mov_b32 s{S_OUT+3}, 0x20000
    s_mov_b32 s{S_WS+2}, {WS_USED}
    s_mov_b32 s{S_WS+3}, 0x20000
    s_lshl_b32 s{sGB}, s{sG}, 20
    s_add_u32 s{sGB}, s{sGB}, {GRP0}
    s_lshr_b32 s{sDH}, s{sC}, 3
    s_and_b32 s{sCT}, s{sC}, 7
    s_mov_b32 s{sBUD}, 150000
    s_mov_b32 s{sEPS}, 0x358637bd
    s_mov_b32 s{sEPS+1}, 0x358637bd
    s_getreg_b32 s{sXCC}, hwreg(HW_REG_XCC_ID, 0, 4)
    s_lshl_b32 s{sACT}, s{sW}, 15
    s_add_u32 s{sACT}, s{sACT}, s{sGB}
    s_add_u32 s{sACT1}, s{sACT}, 16384
    s_lshl2_add_u32 s{sT0}, s{sDH}, s{sW}
    s_lshl_b32 s{sBACT}, s{sT0}, 14
    s_add_u32 s{sBACT}, s{sBACT}, s{sGB}
    s_lshl_b32 s{sTILE}, s{sCT}, 11
    s_add_u32 s{sTILE}, s{sTILE}, s{sBACT}
    s_lshl_b32 s{sOST}, s{sC}, 10
    s_add_u32 s{sOST}, s{sOST}, s{sACT}
    s_add_u32 s{sOST}, s{sOST}, {G_O}
    s_add_u32 s{sOST1}, s{sOST}, 16384
    s_lshl_b32 s{sFXp}, s{sW}, 7
    s_add_u32 s{sFXp}, s{sFXp}, s{sGB}
    s_lshl2_add_u32 s{sFOo}, s{sC}, s{sFXp}
    s_lshl_b32 s{sFHp}, s{sT0}, 7
    s_add_u32 s{sFHp}, s{sFHp}, s{sGB}
    s_lshr_b32 s{sT0}, s{sT0}, 1
    s_lshl_b32 s{sFOp}, s{sT0}, 7
    s_add_u32 s{sFOp}, s{sFOp}, s{sGB}
    s_and_b32 s{sT2}, s{sW}, 1
    s_lshl1_add_u32 s{sT3}, s{sCT}, s{sT2}
    s_lshl2_add_u32 s{sFXo}, s{sT3}, s{sFOp}
    s_lshl3_add_u32 s{sT3}, s{sT0}, s{sCT}
    s_lshl_b32 s{sT3}, s{sT3}, 8
    s_lshl3_add_u32 s{sT3}, s{sT2}, s{sT3}
    s_add_u32 s{sSTo}, s{sT3}, s{sGB}
    s_lshl_b32 s{sSTg}, s{sW}, 11
    s_add_u32 s{sSTg}, s{sSTg}, s{sGB}
    s_mul_i32 s{sT0}, s{sW}, {2*57344}
    s_add_u32 s{sT0}, s{sT0}, s{sGB}
    s_lshr_b32 s{sT3}, s{sC}, 2
    s_mul_i32 s{sT4}, s{sT3}, 14336
    s_add_u32 s{sT0}, s{sT0}, s{sT4}
    s_add_u32 s{sT0}, s{sT0}, {G_H}
    s_and_b32 s{sT4}, s{sC}, 3
    s_lshl_b32 s{sH1}, s{sT4}, 11
    s_add_u32 s{sH1}, s{sH1}, s{sT0}
    s_add_u32 s{sH1b}, s{sH1}, 57344
    s_mul_i32 s{sH2}, s{sT4}, 3
    s_add_u32 s{sH2}, s{sH2}, 17
    s_lshr_b32 s{sH2}, s{sH2}, 1
    s_lshl_b32 s{sH2}, s{sH2}, 10
    s_add_u32 s{sH2}, s{sH2}, s{sT0}
    s_add_u32 s{sH2b}, s{sH2}, 57344
    s_lshr_b32 s{sH3}, s{sT4}, 1
    s_mul_i32 s{sH3}, s{sH3}, 3072
    s_and_b32 s{sH3b}, s{sT4}, 1
    s_lshl3_add_u32 s{sH3}, s{sH3b}, s{sH3}
    s_add_u32 s{sH3}, s{sH3}, {9*1024}
    s_add_u32 s{sH3}, s{sH3}, s{sT0}
    s_add_u32 s{sH3b}, s{sH3}, 57344
    s_lshr_b32 s{sT0}, s{sW}, 1
    s_lshl2_add_u32 s{sT0}, s{sT0}, s{sT3}
    s_lshl_b32 s{sT0}, s{sT0}, 7
    s_lshl1_add_u32 s{sT2}, s{sT4}, s{sT2}
    s_lshl2_add_u32 s{sT0}, s{sT2}, s{sT0}
    s_add_u32 s{sFHo}, s{sT0}, s{sGB}
    s_lshl2_add_u32 s{sT2}, s{sC}, s{sW}
    s_lshl_b32 s{sT2}, s{sT2}, 14
    s_add_u32 s{sKVC}, s{sT2}, {WS_KVX}
    s_lshl_b32 s{sT2}, s{sG}, 10
    s_add_u32 s{sKVP}, s{sT2}, s{sKVC}
    s_mul_i32 s{sPKB}, s{sC}, {PK_SZ}
    s_add_u32 s{sPKB}, s{sPKB}, {WS_PK}
    """)
    k(f"""
    v_lshl_add_u32 v{XR}, v{vT1}, 8, v{vT2}
    v_add_u32 v{XR}, s{sL0}, v{XR}
    v_xor_b32 v{XR+1}, 64, v{XR}
    v_xor_b32 v{XR+2}, 0x80, v{XR}
    v_xor_b32 v{XR+3}, 0xc0, v{XR}
    v_and_b32 v{vT3}, 3, v{vLANE}
    v_lshlrev_b32 v{vT3}, 3, v{vT3}
    v_lshl_add_u32 v{vTR0}, v{vP}, 6, v{vT3}
    v_lshl_add_u32 v{vQ0}, v{vP}, 7, v{vT3}
    v_and_b32 v{vT3}, 1, v{vT0}
    v_lshlrev_b32 v{vT3}, 5, v{vT3}
    v_add_u32 v{vTR0}, v{vTR0}, v{vT3}
    v_xor_b32 v{vTR1}, 32, v{vTR0}
    v_bfe_u32 v{vT3}, v{vLANE}, 3, 2
    v_lshl_add_u32 v{vQ0}, v{vT3}, 5, v{vQ0}
    v_xor_b32 v{vQ1}, 32, v{vQ0}
    v_xor_b32 v{vQ2}, 64, v{vQ0}
    v_xor_b32 v{vQ3}, 0x60, v{vQ0}
    """)

    def xread(q):
        k.vm_wait(("xs", q))
        for ksl in range(4):
            for rb in range(2):
                k.lds(f"ds_read_b128 {vr(act(4*q+ksl, rb),4)}, v{XR+ksl} offset:{(q%2)*8192 + rb*4096}", ("xr", q))

    SUM0, SQ0, SUM1, SQ1 = vACC + 56, vACC + 57, vACC + 58, vACC + 59
    SUMA, SQA = vACC + 48, vACC + 56
    ONES = vPQ + 4

    def xstats(q, fill):
        k.ds_wait(("xr", q))
        mi = 0
        for ksl in range(4):
            for rb in range(2):
                a_ = vr(act(4*q+ksl, rb), 4)
                first = q == 0 and ksl == 0
                for (acc, A) in ((SUMA + 4*rb, vr(ONES, 4)), (SQA + 4*rb, a_)):
                    k(f"v_mfma_f32_16x16x32_bf16 {vr(acc,4)}, {A}, {a_}, {'0' if first else vr(acc,4)}")
                    k.play(fill.pop(mi, []))
                    mi += 1
        assert not fill

    def xstats_extract():
        k(f"v_mov_b32 v{vT0}, 0")
        k(f"v_mov_b32 v{vT1}, 0")
        for r in range(4):
            m = (1 | 1 << 20 | 1 << 40 | 1 << 60) << r
            with k.atomic():
                k(f"s_mov_b32 vcc_lo, {m & 0xffffffff}")
                k(f"s_mov_b32 vcc_hi, {m >> 32}")
                k(f"v_cndmask_b32 v{vT0}, v{vT0}, v{SQA+r}, vcc")
                k(f"v_cndmask_b32 v{vT1}, v{vT1}, v{SQA+4+r}, vcc")
        k(f"v_mul_f32 v{SUM0}, 0x3e800000, v{SUMA}")
        k(f"v_mul_f32 v{SUM1}, 0x3e800000, v{SUMA+4}")
        k(f"v_mov_b32 v{SQ0}, v{vT0}")
        k(f"v_mov_b32 v{SQ1}, v{vT1}")

    def cs_zero():
        lz = k.label("L_z")
        with k.atomic():
            k(f"s_cmp_lg_u32 s{sW}, 3")
            k(f"s_cbranch_scc1 {lz}")
            k(f"v_mov_b32 v{vT0}, 0\nv_mov_b32 v{vT1}, 0\nv_mov_b32 v{vT2}, 0\nv_mov_b32 v{vT3}, 0")
            k(f"v_add_u32 v{vPQ}, {L_CS}, v{vL16}")
            k(f"ds_write_b128 v{vPQ}, {vr(vT0,4)}")
            k(f"{lz}:")

    NM_A, RS_A, RL_A = vACC + 60, vACC + 62, vACC + 56
    NM_B, RS_B, RL_B = vACC + 32, vACC + 40, vACC + 48
    STG = vACC + 48

    def stats_finalize(need_b):
        k(f"""
        s_nop 2
        v_permlane32_swap_b32 v{SUM0}, v{SUM1}
        v_permlane32_swap_b32 v{SQ0}, v{SQ1}
        v_and_b32 v{vT0}, 15, v{vLANE}
        v_add_f32 v{SUM0}, v{SUM0}, v{SUM1}
        v_add_f32 v{SQ0}, v{SQ0}, v{SQ1}
        v_mov_b32 v{SUM1}, v{SUM0}
        v_mov_b32 v{SQ1}, v{SQ0}
        v_lshrrev_b32 v{vT1}, 5, v{vLANE}
        v_lshl_add_u32 v{vT1}, v{vT1}, 4, v{vT0}
        v_permlane16_swap_b32 v{SUM0}, v{SUM1}
        v_permlane16_swap_b32 v{SQ0}, v{SQ1}
        s_lshl_b32 s{sT4}, s{sW}, 8
        v_add_f32 v{SUM0}, v{SUM0}, v{SUM1}
        v_add_f32 v{SQ0}, v{SQ0}, v{SQ1}
        v_mul_f32 v{SUM0}, 0xbb000000, v{SUM0}
        v_mul_f32 v{SQ0}, 0x3b000000, v{SQ0}
        v_fma_f32 v{SQ0}, -v{SUM0}, v{SUM0}, v{SQ0}
        v_max_f32 v{SQ0}, 0, v{SQ0}
        v_add_f32 v{SQ0}, 0x3727c5ac, v{SQ0}
        v_rsq_f32 v{SQ0}, v{SQ0}
        s_add_u32 s{sT4}, s{sT4}, {L_STAT}
        v_lshl_add_u32 v{vT1}, v{vT1}, 2, s{sT4}
        v_lshl_add_u32 v{vT0}, v{vT0}, 2, s{sT4}
        """)
        k.lds(f"ds_write2_b32 v{vT1}, v{SUM0}, v{SQ0} offset0:0 offset1:32")
        k.lds(f"ds_read2_b32 {vr(NM_A,2)}, v{vT0} offset0:0 offset1:16", "sta")
        k.lds(f"ds_read2_b32 {vr(RS_A,2)}, v{vT0} offset0:32 offset1:48", "sta")
        if need_b:
            stats_b()

    def stats_b():
        k(f"s_lshl_b32 s{sT4}, s{sW}, 8")
        k(f"s_add_u32 s{sT4}, s{sT4}, {L_STAT}")
        k(f"v_and_b32 v{vT1}, 48, v{vLANE}")
        k(f"v_add_u32 v{vT1}, s{sT4}, v{vT1}")
        for rb in range(2):
            k.lds(f"ds_read_b128 {vr(NM_B+4*rb,4)}, v{vT1} offset:{64*rb}", "sta")
            k.lds(f"ds_read_b128 {vr(RS_B+4*rb,4)}, v{vT1} offset:{128+64*rb}", "sta")

    def stats_scale():
        k.ds_wait("sta")
        for j in range(8):
            k(f"v_mul_f32 v{RL_B+j}, 0x3fb8aa3b, v{RS_B+j}")
        for j in range(2):
            k(f"v_mul_f32 v{RL_A+j}, 0x3fb8aa3b, v{RS_A+j}")

    def set_ones(r):
        for j in range(4):
            k(f"v_mov_b32 v{r+j}, {BF1}")

    def cs_add(outacc, blocks):
        k("s_nop 6")
        k(f"v_lshrrev_b32 v{vT0}, 2, v{vL16}")
        k(f"v_add_u32 v{vT0}, {L_CS}, v{vT0}")
        k("s_mov_b64 exec, 0xffff")
        for j, blk in enumerate(blocks):
            k.lds(f"ds_add_f32 v{vT0}, v{outacc+4*j} offset:{blk*64}")
        k("s_mov_b64 exec, -1")

    def phi_block(acc, nm, cs, rl, rs, dst, tmp, lay):
        s1, s2, s3, s4, s5 = [], [], [], [], []
        for p in range(2):
            a2 = vr(acc + 2*p, 2)
            t2 = vr(tmp + 2*p, 2)
            if lay == "b":
                c2, m = bcast(cs, 1, 3)
                s1.append(f"v_pk_fma_f32 {a2}, {vr(nm+2*p,2)}, {c2}, {a2}{m}")
                s2.append(f"v_pk_mul_f32 {t2}, {a2}, {vr(rl+2*p,2)}")
                s4.append(f"v_pk_fma_f32 {a2}, {a2}, {vr(rs+2*p,2)}, {t2}")
            else:
                c2, m = bcast(nm, 1, 3)
                s1.append(f"v_pk_fma_f32 {a2}, {vr(cs+2*p,2)}, {c2}, {a2}{m}")
                c2, m = bcast(rl, 1, 2)
                s2.append(f"v_pk_mul_f32 {t2}, {a2}, {c2}{m}")
                c2, m = bcast(rs, 1, 3)
                s4.append(f"v_pk_fma_f32 {a2}, {a2}, {c2}, {t2}{m}")
            for j in range(2):
                s3.append(f"v_exp_f32 v{tmp+2*p+j}, v{tmp+2*p+j} clamp")
            s5.append(f"v_pk_add_f32 {a2}, {a2}, s[{sEPS}:{sEPS+1}]")
        for s in s1 + s2 + s3:
            k(s)
        for j in range(4):
            k(f"v_max_f32 v{acc+j}, 0, v{acc+j}")
        for s in s4 + s5:
            k(s)
        for p in range(2):
            k(f"v_cvt_pk_bf16_f32 v{dst+p}, v{acc+2*p}, v{acc+2*p+1}")

    def act_loads(bufoff):
        for ks in range(16):
            for rb in range(2):
                with k.atomic():
                    if ks % 4 == 0:
                        k(f"s_add_u32 s{sT2+rb}, s{sACT+rb}, {bufoff + ks*1024}")
                    k.vmem(f"buffer_load_dwordx4 {vr(act(ks,rb),4)}, v{vL16}, {srd(S_WS)}, s{sT2+rb} offen offset:{(ks%4)*1024} sc1",
                           ("act", ks, rb))

    def stat_loads(stoff):
        with k.atomic():
            k(f"s_add_u32 s{sT4}, s{sSTg}, {stoff}")
            for j in range(2):
                k.vmem(f"buffer_load_dwordx4 {vr(STG+4*j,4)}, v{vL16}, {srd(S_WS)}, s{sT4} offen offset:{j*1024} sc1", "stg")

    def stat_sum():
        k.vm_wait("stg")
        for j in range(4):
            k(f"v_add_f32 v{SUM0+j}, v{STG+j}, v{STG+4+j}")

    def mf2(acc, ks, sw, wait, first=None):
        return [(acc + 4 * rb, act(ks, rb), sw, (ks == 0) if first is None else first, ("act", ks, rb) if wait else None) for rb in range(2)]

    def quad_lane(pitch):
        k(f"v_lshrrev_b32 v{vDM}, 3, v{vLANE}")
        k(f"v_and_b32 v{vT2}, 6, v{vDM}")
        k(f"v_xor_b32 v{vT2}, v{vT2}, v{vLANE}")
        k(f"v_and_b32 v{vT2}, 7, v{vT2}")
        k(f"v_lshlrev_b32 v{vT2}, 4, v{vT2}")
        k(f"s_movk_i32 s{sD3}, {pitch}")
        k(f"v_mad_u32_u24 v{vDM}, v{vDM}, s{sD3}, v{vT2}")

    def wo_dma():
        quad_lane(1024)
        k(f"s_lshl_b32 s{sD0}, s{sW}, 17")
        k(f"s_lshl_b32 s{sD1}, s{sCT}, 7")
        k(f"s_add_u32 s{sD0}, s{sD0}, s{sD1}")
        k(f"s_lshl_b32 s{sL0}, s{sW}, 14")
        for j in range(16):
            k.dma(S_WO, vDM, sD0, j * 8 * 1024, sL0, R0 + j * 1024, "wo")

    def w1c1_dma(half):
        quad_lane(3584)
        k(f"s_lshr_b32 s{sD0}, s{sC}, 2")
        k(f"s_mul_i32 s{sD0}, s{sD0}, 896")
        k(f"s_and_b32 s{sD1}, s{sC}, 3")
        k(f"s_lshl_b32 s{sD1}, s{sD1}, 7")
        k(f"s_add_u32 s{sD0}, s{sD0}, s{sD1}")
        k(f"s_mul_i32 s{sD1}, s{sW}, {64*3584}")
        k(f"s_add_u32 s{sD0}, s{sD0}, s{sD1}")
        k(f"s_lshl_b32 s{sL0}, s{sW}, 13")
        for j in range(8):
            k.dma(S_W1, vDM, sD0, (half * 256 + j * 8) * 3584, sL0, R1 + half * 32768 + j * 1024, "w1a")

    def lin_dma(src, dst, n, tag):
        k(f"s_mul_i32 s{sL0}, s{sW}, {n*1024}")
        k(f"s_add_u32 s{sD0}, s{sL0}, s{sPKB}")
        for j in range(n):
            k.dma(S_WS, vL16, sD0, src + j * 1024, sL0, dst + j * 1024, tag, " sc1 nt" if (o.get("ntpk") and tag != "w1c2") else " sc1")

    def publish_x(bufoff, stoff, floff, pay_sc1):
        k(f"s_add_u32 s{sT1}, s{sTILE}, {bufoff}")
        k.stores([f"buffer_store_dwordx4 {vr(vRES+4*s,4)}, v{vL16}, {srd(S_WS)}, s{sT1} offen offset:{s*1024}" for s in range(2)], pay_sc1)
        a, b, c, d = vT0, vT1, vT2, vT3
        for r in (a, b, c, d):
            k(f"v_mov_b32 v{r}, 0")
        for j in range(4):
            r0, r1 = vRES + j, vRES + 4 + j
            k(f"v_dot2c_f32_bf16 v{a}, {BF1}, v{r0}")
            k(f"v_dot2c_f32_bf16 v{b}, v{r0}, v{r0}")
            k(f"v_dot2c_f32_bf16 v{c}, {BF1}, v{r1}")
            k(f"v_dot2c_f32_bf16 v{d}, v{r1}, v{r1}")
        k(f"""
        v_and_b32 v{vWB+8}, 0xff, v{vL16}
        v_lshrrev_b32 v{vWB+9}, 4, v{vLANE}
        v_lshl_add_u32 v{vWB+8}, v{vWB+9}, 2, v{vWB+8}
        v_add_f32 v{a}, v{a}, v{c}
        v_add_f32 v{b}, v{b}, v{d}
        s_add_u32 s{sT3}, s{sSTo}, {stoff}
        s_nop 0
        v_permlane16_swap_b32 v{a}, v{b}
        s_nop 0
        v_add_f32 v{a}, v{a}, v{b}
        v_mov_b32 v{b}, v{a}
        s_nop 1
        v_permlane32_swap_b32 v{a}, v{b}
        s_nop 0
        v_add_f32 v{c}, v{a}, v{b}
        s_mov_b32 exec_hi, 0
        """)
        k.stores([f"buffer_store_dword v{c}, v{vWB+8}, {srd(S_WS)}, s{sT3} offen"], pay_sc1)
        k("s_mov_b64 exec, -1")
        k.poll_prep(15)
        k.flag(sFXo, floff)

    def unpack_res(dst):
        for f in range(4):
            for p in range(2):
                r = vRES + 2*f + p
                k(f"v_lshlrev_b32 v{dst+4*f+2*p}, 16, v{r}")
                k(f"v_and_b32 v{dst+4*f+2*p+1}, 0xffff0000, v{r}")

    def misc_l1():
        k(f"""
        s_add_u32 s{sT2}, s{sTAG}, s{sXCC}
        s_add_u32 s{sT2}, s{sT2}, 2
        v_mov_b32 v{vT1}, s{sT2}
        s_lshl_b32 s{sT2}, s{sG}, 7
        s_lshl2_add_u32 s{sT2}, s{sC}, s{sT2}
        s_add_u32 s{sT2}, s{sT2}, {WS_XID}
        """)
        with k.atomic():
            k("s_mov_b64 exec, 1")
            k.vmem(f"buffer_store_dword v{vT1}, v{vL16}, {srd(S_WS)}, s{sT2} offen sc1", "xid")
            k("s_mov_b64 exec, -1")
        k(f"""
        v_and_b32 v{vT1}, 15, v{vLANE}
        v_lshlrev_b32 v{vT1}, 10, v{vT1}
        v_lshrrev_b32 v{vT0}, 4, v{vLANE}
        v_lshl_add_u32 v{vT2}, v{vT0}, 3, v{vT1}
        s_lshl2_add_u32 s{sT2}, s{sDH}, s{sW}
        s_lshl3_add_u32 s{sT2}, s{sG}, s{sT2}
        s_lshl_b32 s{sT2}, s{sT2}, 14
        s_lshl_b32 s{sT3}, s{sCT}, 7
        s_add_u32 s{sT2}, s{sT2}, s{sT3}
        """)
        for f in range(4):
            k.vmem(f"buffer_load_dwordx2 {vr(vRES+2*f,2)}, v{vT2}, {srd(S_X)}, s{sT2} offen offset:{32*f}", "res")
        k(f"v_lshlrev_b32 v{vT3}, 7, v{vLANE}")
        k(f"s_mul_i32 s{sT2}, s{sW}, 896")
        k(f"s_add_u32 s{sT2}, s{sT2}, s{sGB}")
        with k.atomic():
            k("s_mov_b64 exec, 0x7f")
            k.vmem(f"buffer_load_dword a255, v{vT3}, {srd(S_WS)}, s{sT2} offen sc1", "touch")
            k("s_mov_b64 exec, -1")

    def touch(kind):
        with k.atomic():
            k(f"s_lshl2_add_u32 s{sD2}, s{sC}, s{sW}")
            if kind == "h":
                k(f"s_mul_i32 s{sD2}, s{sD2}, 7168")
                k(f"s_add_u32 s{sD2}, s{sD2}, s{sGB}")
                k(f"s_add_u32 s{sD2}, s{sD2}, {G_H}")
                k(f"v_lshlrev_b32 v{vSP}, 7, v{vLANE}")
                k("s_mov_b32 exec_hi, 0xffffff")
                k.vmem(f"buffer_load_dword a255, v{vSP}, {srd(S_WS)}, s{sD2} offen sc1", "touch")
                k("s_mov_b32 exec_hi, -1")
            else:
                k(f"v_lshlrev_b32 v{vSP}, 13, v{vLANE}")
                k(f"v_and_b32 v{vSP}, 0x60000, v{vSP}")
                k(f"v_lshlrev_b32 v{vSP2}, 3, v{vL16}")
                k(f"v_and_b32 v{vSP2}, 0x780, v{vSP2}")
                k(f"v_add_u32 v{vSP}, v{vSP}, v{vSP2}")
                k(f"s_lshl_b32 s{sT5}, s{sD2}, 11")
                k(f"s_add_u32 s{sT5}, s{sT5}, s{sGB}")
                k(f"s_add_u32 s{sT5}, s{sT5}, {G_O}")
                lo, hi = {"ox": (-1, 0), "oxx": (-1, 0xffff), "x2": (0, 0xffff)}[kind]
                k(f"s_mov_b32 exec_lo, {lo}")
                k(f"s_mov_b32 exec_hi, {hi}")
                k.vmem(f"buffer_load_dword a255, v{vSP}, {srd(S_WS)}, s{sT5} offen sc1", "touch")
                k(f"s_lshl_b32 s{sD2}, s{sD2}, 8")
                k(f"s_add_u32 s{sD2}, s{sD2}, s{sGB}")
                k("s_mov_b64 exec, 3")
                k(f"s_add_u32 s{sD2}, s{sD2}, {G_ST1}")
                k.vmem(f"buffer_load_dword a255, v{vSP2}, {srd(S_WS)}, s{sD2} offen sc1", "touch")
                k("s_mov_b64 exec, -1")

    def pack_issue():
        l2, l3, le = k.label("L_p2"), k.label("L_p3"), k.label("L_pe")
        with k.atomic():
            k(f"s_lshl_b32 s{sL0}, s{sW}, 14")
            k(f"s_cmp_eq_u32 s{sW}, 2")
            k(f"s_cbranch_scc1 {l2}")
            k(f"s_cmp_eq_u32 s{sW}, 3")
            k(f"s_cbranch_scc1 {l3}")
            quad_lane(1024)
            k(f"s_lshl1_add_u32 s{sPU}, s2, s{sW}")
            k(f"s_min_u32 s{sD0}, s{sPU}, 447")
            k(f"s_lshr_b32 s{sD1}, s{sD0}, 3")
            k(f"s_and_b32 s{sD0}, s{sD0}, 7")
            k(f"s_mul_i32 s{sPD}, s{sD0}, 56")
            k(f"s_add_u32 s{sPD}, s{sPD}, s{sD1}")
            k(f"s_lshl_b32 s{sPD}, s{sPD}, 12")
            k(f"s_add_u32 s{sPD}, s{sPD}, {WS_W2T}")
            k(f"s_lshl_b32 s{sD1}, s{sD1}, 15")
            k(f"s_lshl_b32 s{sD0}, s{sD0}, 7")
            k(f"s_add_u32 s{sD0}, s{sD0}, s{sD1}")
            for j in range(4):
                k(f"s_add_u32 m0, s{sL0}, {L_PST + j*1024}")
                k(f"s_add_u32 s{sT5}, s{sD0}, {j*8192}")
                k(f"buffer_load_dwordx4 v{vDM}, {srd(S_W2)}, s{sT5} offen lds")
            k(f"s_branch {le}")
            k(f"{l2}:")
            k(f"s_movk_i32 s{sD3}, 3072")
            k(f"v_mad_u32_u24 v{vDM}, v{vP}, s{sD3}, v{vCH}")
            k(f"s_mul_i32 s{sD0}, s{sG}, {32*3072}")
            k(f"s_lshl_b32 s{sD1}, s{sC}, 6")
            k(f"s_add_u32 s{sD0}, s{sD0}, s{sD1}")
            for pr in range(2):
                for hh in range(2):
                    k(f"s_add_u32 m0, s{sL0}, {L_PST + pr*2048 + hh*1024}")
                    k(f"s_add_u32 s{sT5}, s{sD0}, {hh*16*3072 + 1024*(pr+1)}")
                    k(f"buffer_load_dwordx4 v{vDM}, {srd(S_WQKV)}, s{sT5} offen lds")
            k(f"s_branch {le}")
            k(f"{l3}:")
            k(f"s_movk_i32 s{sD3}, 3072")
            k(f"v_mad_u32_u24 v{vDM}, v{vP}, s{sD3}, v{vCH}")
            k(f"s_mul_i32 s{sD0}, s{sG}, {32*3072}")
            k(f"s_lshl_b32 s{sD1}, s{sC}, 6")
            k(f"s_add_u32 s{sD0}, s{sD0}, s{sD1}")
            for hh in range(2):
                k(f"s_add_u32 m0, s{sL0}, {L_PST + hh*1024}")
                k(f"s_add_u32 s{sT5}, s{sD0}, {hh*16*3072}")
                k(f"buffer_load_dwordx4 v{vDM}, {srd(S_WQKV)}, s{sT5} offen lds")
            k(f"s_movk_i32 s{sD3}, 3584")
            k(f"v_mad_u32_u24 v{vDM}, v{vP}, s{sD3}, v{vCH}")
            k(f"s_lshr_b32 s{sD0}, s{sC}, 2")
            k(f"s_mul_i32 s{sD0}, s{sD0}, 896")
            k(f"s_mul_i32 s{sD1}, s{sG}, {32*3584}")
            k(f"s_add_u32 s{sD0}, s{sD0}, s{sD1}")
            k(f"s_and_b32 s{sD2}, s{sC}, 3")
            k(f"s_mul_i32 s{sD1}, s{sD2}, 3")
            k(f"s_add_u32 s{sD1}, s{sD1}, 17")
            k(f"s_lshr_b32 s{sD1}, s{sD1}, 1")
            k(f"s_lshl_b32 s{sD1}, s{sD1}, 6")
            k(f"s_add_u32 s{sD1}, s{sD1}, s{sD0}")
            for hh in range(2):
                k(f"s_add_u32 m0, s{sL0}, {L_PST + 2048 + hh*1024}")
                k(f"s_add_u32 s{sT5}, s{sD1}, {hh*16*3584}")
                k(f"buffer_load_dwordx4 v{vDM}, {srd(S_W1)}, s{sT5} offen lds")
            k(f"s_lshr_b32 s{sD1}, s{sD2}, 1")
            k(f"s_mul_i32 s{sD1}, s{sD1}, 6")
            k(f"s_and_b32 s{sD2}, s{sD2}, 1")
            k(f"s_add_u32 s{sD1}, s{sD1}, s{sD2}")
            k(f"s_add_u32 s{sD1}, s{sD1}, 18")
            k(f"s_lshl_b32 s{sD1}, s{sD1}, 5")
            k(f"s_add_u32 s{sT5}, s{sD1}, s{sD0}")
            k(f"v_lshrrev_b32 v{vDM}, 1, v{vLANE}")
            k(f"v_and_b32 v{vT2}, 16, v{vL16}")
            k(f"v_mad_u32_u24 v{vDM}, v{vDM}, s{sD3}, v{vT2}")
            k(f"s_add_u32 m0, s{sL0}, {L_PST + 4096}")
            k("s_nop 0")
            k(f"buffer_load_dwordx4 v{vDM}, {srd(S_W1)}, s{sT5} offen lds")
            k(f"{le}:")
            k.vm_note(4, "pk")

    def pack_finish(T):
        l2, l3, le = k.label("L_q2"), k.label("L_q3"), k.label("L_qe")
        k(f"s_lshl_b32 s{sL0}, s{sW}, 14")
        k(f"s_add_u32 s{sL0}, s{sL0}, {L_PST}")
        k(f"s_cmp_ge_u32 s{sW}, 2")
        k(f"s_cbranch_scc1 {l2}")
        k(f"s_cmp_ge_u32 s{sPU}, 448")
        k(f"s_cbranch_scc1 {le}")
        for f in range(4):
            k(f"v_add_u32 v{vT0+f}, s{sL0}, v{vQ0+f}")
        for f in range(4):
            for hh in range(2):
                k(f"ds_read_b64_tr_b16 {vr(T+4*f+2*hh,2)}, v{vT0+f} offset:{hh*2048}")
        k("s_waitcnt lgkmcnt(0)")
        for f in range(4):
            k(f"buffer_store_dwordx4 {vr(T+4*f,4)}, v{vL16}, {srd(S_WS)}, s{sPD} offen offset:{f*1024} sc1")
        k(f"s_branch {le}")
        k(f"{l2}:")
        k(f"v_add_u32 v{vT0}, s{sL0}, v{vTR0}")
        k(f"v_add_u32 v{vT1}, s{sL0}, v{vTR1}")
        k(f"v_lshl_add_u32 v{vT2}, v{vLANE}, 3, s{sL0}")
        for f in range(4):
            for hh in range(2):
                k(f"ds_read_b64_tr_b16 {vr(T+4*f+2*hh,2)}, v{vT0+(f&1)} offset:{(f>>1)*2048+hh*1024}")
        for hh in range(2):
            k(f"ds_read_b64_tr_b16 {vr(T+16+2*hh,2)}, v{vT2} offset:{4096+hh*512}")
        k(f"s_cmp_eq_u32 s{sW}, 3")
        k(f"s_cbranch_scc1 {l3}")
        k(f"s_lshl_b32 s{sD0}, s{sG}, 12")
        k(f"s_add_u32 s{sD0}, s{sD0}, s{sPKB}")
        k("s_waitcnt lgkmcnt(0)")
        for f in range(4):
            k(f"buffer_store_dwordx4 {vr(T+4*f,4)}, v{vL16}, {srd(S_WS)}, s{sD0} offen offset:{f*1024} sc1")
        k(f"s_branch {le}")
        k(f"{l3}:")
        k(f"s_lshl_b32 s{sD0}, s{sG}, 11")
        k(f"s_add_u32 s{sD0}, s{sD0}, s{sPKB}")
        k(f"s_add_u32 s{sD0}, s{sD0}, {PK_Q}")
        k(f"s_mul_i32 s{sD1}, s{sG}, 3072")
        k(f"s_add_u32 s{sD1}, s{sD1}, s{sPKB}")
        k(f"s_add_u32 s{sD1}, s{sD1}, {PK_W1}")
        k("s_waitcnt lgkmcnt(0)")
        for f in range(2):
            k(f"buffer_store_dwordx4 {vr(T+4*f,4)}, v{vL16}, {srd(S_WS)}, s{sD0} offen offset:{f*1024} sc1")
        for f in range(3):
            k(f"buffer_store_dwordx4 {vr(T+8+4*f,4)}, v{vL16}, {srd(S_WS)}, s{sD1} offen offset:{f*1024} sc1")
        k(f"{le}:")

    def wq_raw():
        k(f"s_lshl_b32 s{sL1}, s{sW}, 11")
        for r in range(4):
            for hh in range(2):
                k.dma(S_WQKV, vDM, sRB + r, hh * 4 * 3072, sL1, R1 + r * 8192 + hh * 1024, "wq")

    def pack_flag():
        lw, le = k.label("L_f2"), k.label("L_fe")
        with k.atomic():
            k(f"s_cmp_ge_u32 s{sW}, 2")
            k(f"s_cbranch_scc1 {lw}")
            k(f"s_cmp_ge_u32 s{sPU}, 448")
            k(f"s_cbranch_scc1 {le}")
            k(f"s_and_b32 s{sD0}, s{sPU}, 7")
            k(f"s_lshl_b32 s{sD0}, s{sD0}, 8")
            k(f"s_lshr_b32 s{sD1}, s{sPU}, 3")
            k(f"s_lshl2_add_u32 s{sD0}, s{sD1}, s{sD0}")
            k(f"s_add_u32 s{sD0}, s{sD0}, {WS_W2F}")
            k(f"s_branch {lw}_st")
            k(f"{lw}:")
            k(f"s_lshl1_add_u32 s{sD0}, s{sG}, s{sW}")
            k(f"s_lshl_b32 s{sD1}, s{sC}, 7")
            k(f"s_lshl2_add_u32 s{sD0}, s{sD0}, s{sD1}")
            k(f"s_add_u32 s{sD0}, s{sD0}, {WS_PF - 8}")
            k(f"{lw}_st:")
            k(f"v_mov_b32 v{vT1}, s{sTAG}")
            k("s_mov_b64 exec, 1")
            k(f"buffer_store_dword v{vT1}, v{vL16}, {srd(S_WS)}, s{sD0} offen sc1")
            k("s_mov_b64 exec, -1")
            k(f"{le}:")

    def pack_check():
        k(f"s_lshl_b32 s{sD0}, s{sC}, 7")
        k(f"s_add_u32 s{sD0}, s{sD0}, {WS_PF}")
        k(f"s_lshl_b32 s{sD1}, s{sCT}, 8")
        k(f"s_mul_i32 s{sD2}, s{sW}, 56")
        k(f"s_add_u32 s{sD1}, s{sD1}, s{sD2}")
        k(f"s_add_u32 s{sD1}, s{sD1}, {WS_W2F - 128}")
        k(f"v_min_u32 v{vT2}, 45, v{vLANE}")
        k(f"v_lshlrev_b32 v{vT2}, 2, v{vT2}")
        k(f"v_add_u32 v{vT3}, s{sD0}, v{vT2}")
        k("s_mov_b32 exec_lo, 0")
        k(f"v_add_u32 v{vT3}, s{sD1}, v{vT2}")
        k("s_mov_b32 exec_lo, -1")
        k(f"s_mov_b32 s{sD0}, 0")
        k.poll(sD0, 0, False)

    for layer in range(1 if o.get("one") else 2):
        L1 = layer == 0
        pay_sc1 = (L1 and not o.get("l1plain", 0)) or o.get("allsc1", 0)
        PRE = o.get("pre", 8)
        if L1:
            CSA = vACC + 32
            set_ones(ONES)
            k(f"v_add_u32 v{vPQ+2}, s{sL1}, v{vTR0}")
            k(f"v_add_u32 v{vPQ+3}, s{sL1}, v{vTR1}")
            xslot(0, range(2, 8)); xslot(1); wkv_raw(1)
            k.stamp("issued")
            xread(0)
            k.ds_all(True)
            k.stamp("x0")
            k(f"s_mul_i32 s{sTAG}, s{sEP}, 0x9E3779B1")
            k(f"s_add_u32 s{sTAG}, s{sTAG}, 0x7F4A7C15")

            def rnd(r, fill):
                k.vm_wait(("wkv", r))
                k.barrier(True)
                fr = []
                for ks in range(4 * r, 4 * r + 4):
                    for pr in range(2):
                        for b in range(2):
                            base = R0 + ks * 4096 + pr * 2048
                            fr.append(dict(addr=(vTR0, vTR1)[b], offs=(base, base + 1024), mf=mf2(vACC + 16 * pr + 8 * b, ks, False, False)))
                for pr in range(2):
                    for b in range(2):
                        base = R0 + r * 16384 + pr * 2048
                        fr.append(dict(addr=vPQ + 2 + b, offs=(base, base + 1024), mf=[(CSA + 8 * pr + 4 * b, ONES, False, r == 0, None)]))
                k.gemm(fr, fill)
            f = {}; spread(f, k.rec(lambda: xslot(2)), 0, 2); xstats(0, f)
            f = {}; spread(f, k.rec(lambda: xread(1)), 30, 1, 2); rnd(0, f)
            k.stamp("r0")
            f = {}; spread(f, k.rec(lambda: xslot(3)), 0, 2); xstats(1, f)
            f = {}; spread(f, k.rec(lambda: (wkv_raw(2), wkv_raw(3))), 0, 4); spread(f, k.rec(lambda: xread(2)), 31, 1, 2); rnd(1, f)
            k.stamp("r1")
            f = {}; spread(f, k.rec(lambda: xread(3)), 7, 1); xstats(2, f)
            f = {}; spread(f, k.rec(cs_zero), 2, 1); spread(f, k.rec(wq_raw), 3, 1.5); xstats(3, f)
            f = {}; spread(f, k.rec(lambda: (xstats_extract(), stats_finalize(False))), 0, 1); rnd(2, f)
            k.stamp("r2")
            f = {}; spread(f, k.rec(lambda: (misc_l1(), pack_issue())), 0, 1); rnd(3, f)
            k.stamp("A.kv")
            cs_add(CSA, [0, 1, 2, 3])
            stats_b()
            k.barrier()
            stats_scale()
            k.stamp("A.cs")
        else:
            k.poll(sFXp, G_FX2)
            k.stamp("A.poll")
            k(f"s_add_u32 s{sTAG}, s{sTAG}, 1")
            al = k.rec(lambda: act_loads(G_X2))
            k.play(al[:PRE])
            stat_loads(G_ST2)
            fill = {}
            e = spread(fill, al[PRE:], 0, 4)
            spread(fill, k.rec(lambda: (stat_sum(), stats_finalize(True))), 18, 2)
            spread(fill, k.rec(stats_scale), 106, 2)
            w1b = k.rec(lambda: w1c1_dma(1))
            spread(fill, w1b[:15], e - 16, 1)
            spread(fill, w1b[15:], e, 4)
            fr = []
            for ks in range(16):
                for b in range(4):
                    fr.append(dict(addr=vL16, offs=(R0 + ks * 4096 + b * 1024,), mf=mf2(vACC + 8 * b, ks, False, True)))
            k.gemm(fr, fill)
            k.stamp("A.kv")
        CS = vT0
        k(f"v_and_b32 v{vWB+24}, 15, v{vLANE}")
        k(f"v_lshlrev_b32 v{vWB+24}, 2, v{vWB+24}")
        k(f"v_add_u32 v{vWB+24}, {L_CS}, v{vWB+24}")
        k.lds(f"ds_read2_b32 {vr(CS,2)}, v{vWB+24} offset0:0 offset1:16")
        k.lds(f"ds_read2_b32 {vr(CS+2,2)}, v{vWB+24} offset0:32 offset1:48")
        set_ones(vWB + 28)
        k.ds_all()
        PK, PV, TMP = vPQ, vACC, vWB + 24
        for h in range(2):
            for rb in range(2):
                phi_block(vACC + 8*h + 4*rb, NM_B + 4*rb, CS + h, RL_B + 4*rb, RS_B + 4*rb, PK + 4*h + 2*rb, TMP, "b")
        for h in range(2):
            for rb in range(2):
                a = vACC + 16 + 8*h + 4*rb
                c2, m = bcast(CS + 2 + h, 1, 3)
                for p in range(2):
                    k(f"v_pk_fma_f32 {vr(a+2*p,2)}, {vr(NM_B+4*rb+2*p,2)}, {c2}, {vr(a+2*p,2)}{m}")
                for p in range(2):
                    k(f"v_pk_mul_f32 {vr(a+2*p,2)}, {vr(a+2*p,2)}, {vr(RS_B+4*rb+2*p,2)}")
                for p in range(2):
                    k(f"v_cvt_pk_bf16_f32 v{PV+4*h+2*rb+p}, v{a+2*p}, v{a+2*p+1}")
        KRB, KRS = (R2 + 8192, 14) if L1 else (R3, 12)
        k(f"s_lshl_b32 s{sT2}, s{sW}, 10")
        k(f"s_add_u32 s{sT2}, s{sT2}, {KRB}")
        k(f"v_add_u32 v{vT0}, s{sT2}, v{vL16}")
        KVA = vACC + 16
        for h in range(2):
            k(f"v_mfma_f32_16x16x32_bf16 {vr(KVA+8*h,4)}, {vr(PK+4*h,4)}, {vr(PV+4*h,4)}, 0")
            k(f"v_mfma_f32_16x16x32_bf16 {vr(KVA+8*h+4,4)}, {vr(vWB+28,4)}, {vr(PK+4*h,4)}, 0")
        k(f"s_lshl_b32 s{sT2}, s{sW}, {KRS}")
        k(f"s_add_u32 s{sT2}, s{sT2}, {KRB}")
        k(f"v_add_u32 v{vT1}, s{sT2}, v{vL16}")
        k("s_nop 3")
        for h in range(2):
            k.lds(f"ds_write_b64 v{vT0}, {vr(KVA+8*h,2)} offset:{(2*h) << KRS}")
            k.lds(f"ds_write_b96 v{vT0}, {vr(KVA+8*h+2,3)} offset:{(2*h+1) << KRS}")
        if L1:
            k.vm_wait("wq")
        k.barrier()
        for s in range(4):
            k.lds(f"ds_read_b128 {vr(vWB+4*s,4)}, v{vT1} offset:{s*1024}", ("kr", s))
        k.ds_wait(("kr", 1))
        k(f"v_pk_add_f32 {vr(vWB,2)}, {vr(vWB,2)}, {vr(vWB+4,2)}")
        k(f"v_add_f32 v{vWB+2}, v{vWB+2}, v{vWB+6}")
        k.ds_wait(("kr", 3))
        k(f"v_pk_add_f32 {vr(vWB+8,2)}, {vr(vWB+8,2)}, {vr(vWB+12,2)}")
        k(f"v_add_f32 v{vWB+10}, v{vWB+10}, v{vWB+14}")
        k(f"v_mov_b32 v{vACC+35}, s{sTAG}")
        k(f"v_pk_add_f32 {vr(vACC+32,2)}, {vr(vWB,2)}, {vr(vWB+8,2)}")
        k(f"v_add_f32 v{vACC+34}, v{vWB+2}, v{vWB+10}")
        k.vmem(f"buffer_store_dwordx4 {vr(vACC+32,4)}, v{vL16}, {srd(S_WS)}, s{sKVP} offen sc1", "kvst")
        k.stamp("A.kvpub")
        fill = {}
        if o.get("tq", 0):
            spread(fill, k.rec(lambda: touch("ox")), 0, 1)
        if o.get("th", 0) == 2:
            spread(fill, k.rec(lambda: touch("h")), 2, 1)
        wod = k.rec(wo_dma)
        spread(fill, wod[:11], 0, 1, 2)
        e = spread(fill, wod[11:], 6, 4)
        fr = []
        if L1:
            set_ones(ONES)
            k(f"v_add_u32 v{vPQ}, {R1}, v{vTR0}")
            k(f"v_add_u32 v{vPQ+1}, {R1}, v{vTR1}")
            k(f"s_lshl_b32 s{sT2}, s{sW}, 13")
            k(f"v_add_u32 v{vPQ+2}, s{sT2}, v{vPQ}")
            k(f"v_add_u32 v{vPQ+3}, s{sT2}, v{vPQ+1}")
            for j in range(4):
                for b in range(2):
                    fr.append(dict(addr=vPQ + 2 + b, offs=(j * 2048, j * 2048 + 1024), mf=[(vACC + 16 + 4 * b, ONES, False, j == 0, None)]))
            for ks in range(16):
                for b in range(2):
                    fr.append(dict(addr=vPQ + b, offs=(ks * 2048, ks * 2048 + 1024), mf=mf2(vACC + 8 * b, ks, True, False)))
            k.gemm(fr, fill)
            cs_add(vACC + 16, [4, 5])
            k.vm_wait("pk")
            k.ds_all()
            pack_finish(vACC + 24)
            k.barrier()
        else:
            k(f"v_add_u32 v{vPQ}, {R1}, v{vL16}")
            for ks in range(16):
                for b in range(2):
                    fr.append(dict(addr=vPQ, offs=(ks * 2048 + b * 1024,), mf=mf2(vACC + 8 * b, ks, True, False)))
            k.gemm(fr, fill)
        k(f"v_and_b32 v{vT0}, 48, v{vLANE}")
        k(f"v_add_u32 v{vT0}, {L_CS}, v{vT0}")
        for h in range(2):
            k.lds(f"ds_read_b128 {vr(vWB+8+4*h,4)}, v{vT0} offset:{(4+h)*64}")
        k("s_nop 3")
        k.ds_all()
        for h in range(2):
            for rb in range(2):
                phi_block(vACC + 8*h + 4*rb, NM_A + rb, vWB + 8 + 4*h, RL_A + rb, RS_A + rb, vPQ + 4*h + 2*rb, vWB, "a")
        k.stamp("A.q")
        if L1:
            lp, done = k.label("L_xp"), k.label("L_xd")
            k(f"s_lshl_b32 s{sT4}, s{sG}, 7")
            k(f"s_add_u32 s{sT4}, s{sT4}, {WS_XID}")
            k(f"s_add_u32 s{sT3}, s{sTAG}, 2")
            k.poll_prep(15)
            k(f"{lp}:")
            k(f"buffer_load_dword v{vT0}, v{vT3}, {srd(S_WS)}, s{sT4} offen sc1")
            k.vm_all()
            k(f"v_subrev_u32 v{vT0}, s{sT3}, v{vT0}")
            k(f"v_cmp_lt_u32 vcc, 8, v{vT0}")
            k(f"s_cbranch_vccz {done}")
            k(f"s_sub_u32 s{sBUD}, s{sBUD}, 1")
            k(f"s_cbranch_scc0 {lp}")
            k(f"s_mov_b32 s{sBUD}, 0")
            k(f"{done}:")
            k(f"v_cmp_ne_u32 vcc, s{sXCC}, v{vT0}")
            k("s_nop 4")
            k(f"s_or_b32 s{sSLOW}, vcc_lo, {1 if o.get('forceslow') else 0}")
            pack_flag()
        lp, done = k.label("L_kp"), k.label("L_kd")
        k(f"{lp}:")
        for j in range(16):
            if j % 4 == 0:
                k(f"s_add_u32 s{sT2}, s{sKVC}, {j*1024}")
            k.vmem(f"buffer_load_dwordx4 {vr(vACT+4*j,4)}, v{vL16}, {srd(S_WS)}, s{sT2} offen offset:{(j%4)*1024} sc1{' nt' if o.get('ntkv') else ''}", ("kv", j))
        SM = vWB
        for j in range(0, 16, 2):
            a, b = vACT + 4*j, vACT + 4*j + 4
            k.vm_wait(("kv", j + 1))
            if j == 0:
                k(f"v_pk_add_f32 {vr(SM,2)}, {vr(a,2)}, {vr(b,2)}")
                k(f"v_add_f32 v{SM+2}, v{a+2}, v{b+2}")
                k(f"v_min_u32 v{SM+4}, v{a+3}, v{b+3}")
                k(f"v_max_u32 v{SM+5}, v{a+3}, v{b+3}")
            else:
                k(f"v_pk_add_f32 {vr(a,2)}, {vr(a,2)}, {vr(b,2)}")
                k(f"v_add_f32 v{a+2}, v{a+2}, v{b+2}")
                k(f"v_min3_u32 v{SM+4}, v{a+3}, v{b+3}, v{SM+4}")
                k(f"v_max3_u32 v{SM+5}, v{a+3}, v{b+3}, v{SM+5}")
                k(f"v_pk_add_f32 {vr(SM,2)}, {vr(SM,2)}, {vr(a,2)}")
                k(f"v_add_f32 v{SM+2}, v{SM+2}, v{a+2}")
        k(f"v_xor_b32 v{SM+4}, s{sTAG}, v{SM+4}")
        k(f"v_xor_b32 v{SM+5}, s{sTAG}, v{SM+5}")
        k(f"v_or_b32 v{SM+4}, v{SM+4}, v{SM+5}")
        k(f"v_cmp_ne_u32 vcc, 0, v{SM+4}")
        k(f"s_cbranch_vccz {done}")
        k(f"s_sub_u32 s{sBUD}, s{sBUD}, 4")
        k(f"s_cbranch_scc0 {lp}")
        k(f"s_mov_b32 s{sBUD}, 0")
        k(f"{done}:")
        k.stamp("A.kvget")
        k(f"""
        v_cvt_pk_bf16_f32 v{SM}, v{SM}, v{SM+1}
        v_cvt_pk_bf16_f32 v{SM+2}, v{SM+2}, v{SM+2}
        s_lshr_b32 s{sT2}, s{sW}, 1
        s_lshl_b32 s{sT2}, s{sT2}, 9
        s_and_b32 s{sT3}, s{sW}, 1
        s_lshl2_add_u32 s{sT2}, s{sT3}, s{sT2}
        s_add_u32 s{sT2}, s{sT2}, {L_XB}
        v_lshl_add_u32 v{vT0}, v{vLANE}, 3, s{sT2}
        s_lshl_b32 s{sT2}, s{sW}, 5
        s_add_u32 s{sT2}, s{sT2}, {L_ZB}
        v_and_b32 v{vT1}, 15, v{vLANE}
        v_lshl_add_u32 v{vT1}, v{vT1}, 1, s{sT2}
        """)
        k.lds(f"ds_write_b32 v{vT0}, v{SM}")
        k.lds(f"ds_write_b16 v{vT1}, v{SM+2}")
        k(f"v_lshlrev_b32 v{vT0}, 3, v{vLANE}")
        k(f"v_add_u32 v{vT0}, {L_XB}, v{vT0}")
        k(f"v_lshrrev_b32 v{vT1}, 4, v{vLANE}")
        k(f"v_lshlrev_b32 v{vT1}, 3, v{vT1}")
        k(f"v_add_u32 v{vT1}, {L_ZB}, v{vT1}")
        k.barrier()
        for h in range(2):
            k.lds(f"ds_read_b64 {vr(vWB+4*h,2)}, v{vT0} offset:{512*h}")
            k.lds(f"ds_read_b64 {vr(vWB+4*h+2,2)}, v{vT1} offset:{(2*h+1)*32}")
        w1a = k.rec(lambda: w1c1_dma(0))
        if L1:
            w1a += k.rec(lambda: w1c1_dma(1))[15:]
        k.play(w1a[:15])
        k.ds_all()
        OA = vACC + 16
        for rb in range(2):
            for h in range(2):
                d = OA + 16*rb + 8*h
                k(f"v_mfma_f32_16x16x16_bf16 {vr(d+4,4)}, {vr(vWB+4*h+2,2)}, {vr(vPQ+4*h+2*rb,2)}, 0")
                k(f"v_mfma_f32_16x16x16_bf16 {vr(d,4)}, {vr(vWB+4*h,2)}, {vr(vPQ+4*h+2*rb,2)}, 0")
        k("s_nop 1")
        for rb in range(2):
            for h in range(2):
                d = OA + 16*rb + 8*h
                k(f"v_add_f32 v{d+4}, s{sEPS}, v{d+4}")
                k("s_nop 0")
        for rb in range(2):
            for h in range(2):
                d = OA + 16*rb + 8*h
                k(f"v_rcp_f32 v{d+4}, v{d+4}")
        k("s_nop 0")
        for rb in range(2):
            for h in range(2):
                d = OA + 16*rb + 8*h
                for p in range(2):
                    k(f"v_pk_mul_f32 {vr(d+2*p,2)}, {vr(d+2*p,2)}, {vr(d+4,2)} op_sel_hi:[1,0]")
                for p in range(2):
                    k(f"v_cvt_pk_bf16_f32 v{vPQ+4*rb+2*h+p}, v{d+2*p}, v{d+2*p+1}")
        k.stores([f"buffer_store_dwordx4 {vr(vPQ+4*rb,4)}, v{vL16}, {srd(S_WS)}, s{sOST+rb} offen" for rb in range(2)], pay_sc1)
        nb = o.get("w1a_pre", 4)
        k.play(w1a[15:15+nb])
        unpack_res(vACC)
        k.poll_prep(15)
        k.flag(sFOo, G_FO)
        k.stamp("A.opub")
        k.poll(sFOp, G_FO)
        k.stamp("B.poll")

        def b_loads():
            for ks in range(16):
                with k.atomic():
                    if ks % 4 == 0:
                        k(f"s_add_u32 s{sT2}, s{sBACT}, {G_O + ks*1024}")
                    k.vmem(f"buffer_load_dwordx4 {vr(vACT+4*ks,4)}, v{vL16}, {srd(S_WS)}, s{sT2} offen offset:{(ks%4)*1024} sc1", ("act", ks))
        bl = k.rec(b_loads)
        k.play(bl[:PRE])
        fill = {}
        e = spread(fill, bl[PRE:], 0, 3)
        spread(fill, w1a[15+nb:], e, 4)
        fr = []
        for ks in range(16):
            for f in range(4):
                fr.append(dict(addr=vQ0 + f, offs=(R0 + ks * 4096, R0 + ks * 4096 + 2048),
                               mf=[(vACC + 4 * f, vACT + 4 * ks, True, False, ("act", ks))]))
        k.gemm(fr, fill, D=7)
        k.stamp("B.mm")
        k("s_barrier")
        for f in range(4):
            k(f"v_add_u32 v{vQ0+f}, {R1}, v{vQ0+f}")
        k("s_nop 2")
        for f in range(4):
            for p in range(2):
                k(f"v_cvt_pk_bf16_f32 v{vRES+2*f+p}, v{vACC+4*f+2*p}, v{vACC+4*f+2*p+1}")
        publish_x(G_X1, G_ST1, G_FX1, pay_sc1)
        k.stamp("B.pub")
        k("s_barrier")
        if L1:
            pack_check()
            k.poll_prep(15)
        w1c2 = k.rec(lambda: lin_dma(PK_W1, R0, 12, "w1c2"))
        nc = o.get("w1c2_pre", 6)
        k.play(w1c2[:2+nc])
        if L1:
            set_ones(ONES)
            k(f"s_lshl_b32 s{sT2}, s{sW}, 14")
            for f in range(4):
                k(f"v_add_u32 v{vPQ+f}, s{sT2}, v{vQ0+f}")
            fr = []
            for j in range(4):
                for f in range(4):
                    fr.append(dict(addr=vPQ + f, offs=(j * 4096, j * 4096 + 2048), mf=[(vACC + 4 * f, ONES, False, j == 0, None)]))
            k.gemm(fr, D=7)
            cs_add(vACC, [6, 7, 8, 9])
        k.poll(sFXp, G_FX1)
        k.stamp("C.poll")
        al = k.rec(lambda: act_loads(G_X1))
        k.play(al[:PRE])
        stat_loads(G_ST1)
        fill = {}
        e = spread(fill, al[PRE:], 0, 4)
        spread(fill, k.rec(lambda: (stat_sum(), stats_finalize(False))), 18, 3)
        e = spread(fill, w1c2[2+nc:], e, 3)
        fr = []
        for ks in range(16):
            for f in range(4):
                fr.append(dict(addr=vQ0 + f, offs=(ks * 4096, ks * 4096 + 2048), mf=mf2(vACC + 8 * f, ks, True, True)))
        k.gemm(fr, fill)
        k.stamp("C.mm1")
        for f in range(4):
            k(f"v_subrev_u32 v{vQ0+f}, {R1}, v{vQ0+f}")
        k.vm_wait("w1c2")
        k.barrier()

        def relu_block(acc, cs, rb, dst, scalar=False):
            if scalar:
                for j in range(4):
                    k(f"v_fmac_f32 v{acc+j}, v{cs+j}, v{NM_A+rb}")
                for j in range(4):
                    k(f"v_mul_f32 v{acc+j}, v{acc+j}, v{RS_A+rb}")
                for p in range(2):
                    k(f"v_cvt_pk_bf16_f32 v{dst+p}, v{acc+2*p}, v{acc+2*p+1}")
                for p in range(2):
                    k(f"v_pk_max_i16 v{dst+p}, v{dst+p}, 0")
                return
            c2, m = bcast(NM_A + rb, 1, 3)
            for p in range(2):
                k(f"v_pk_fma_f32 {vr(acc+2*p,2)}, {vr(cs+2*p,2)}, {c2}, {vr(acc+2*p,2)}{m}")
            c2, m = bcast(RS_A + rb, 1, 2)
            for p in range(2):
                k(f"v_pk_mul_f32 {vr(acc+2*p,2)}, {vr(acc+2*p,2)}, {c2}{m}")
            for p in range(2):
                k(f"v_cvt_pk_bf16_f32 v{dst+p}, v{acc+2*p}, v{acc+2*p+1}")
            for p in range(2):
                k(f"v_pk_max_i16 v{dst+p}, v{dst+p}, 0")

        def epi1():
            k(f"v_and_b32 v{vT0}, 48, v{vLANE}")
            k(f"v_add_u32 v{vT0}, {L_CS}, v{vT0}")
            for s in range(2):
                for b in range(2):
                    k.lds(f"ds_read_b128 {vr(vPQ+4*b,4)}, v{vT0} offset:{(6+2*s+b)*64}", "cs")
                k("s_nop 0")
                k("s_nop 0")
                k("s_nop 0")
                k.ds_wait("cs")
                for rb in range(2):
                    for b in range(2):
                        relu_block(vACC + 16*s + 8*b + 4*rb, vPQ + 4*b, rb, vACC + 16*s + 4*rb + 2*b, True)
                k.stores([f"buffer_store_dwordx4 {vr(vACC+16*s+4*rb,4)}, v{vL16}, {srd(S_WS)}, s{sH1+rb} offen offset:{s*1024}"
                          for rb in range(2)], pay_sc1)

        def w2t_loads():
            k(f"s_lshl2_add_u32 s{sD0}, s{sCT}, s{sW}")
            k(f"s_mul_i32 s{sD0}, s{sD0}, 57344")
            k(f"s_add_u32 s{sD0}, s{sD0}, {WS_W2T}")
            for j in range(56):
                with k.atomic():
                    if j % 4 == 0:
                        k(f"s_add_u32 s{sD1}, s{sD0}, {j*1024}")
                    k.vmem(f"buffer_load_dwordx4 {ar(4*j,4)}, v{vL16}, {srd(S_WS)}, s{sD1} offen offset:{(j%4)*1024} sc1{' nt' if o.get('ntw2') else ''}", ("w2t", j // 4))
        C2 = vACC + 32
        fill = {}
        fr = []
        m0 = 0
        if L1:
            set_ones(ONES)
            k(f"s_mul_i32 s{sT2}, s{sW}, {4*3072}")
            k(f"v_add_u32 v{vPQ}, s{sT2}, v{vL16}")
            fc = []
            for j in range(4):
                for b in range(3):
                    fc.append(dict(addr=vPQ, offs=(R0 + j * 3072 + b * 1024,), mf=[(C2 + 4 * b, ONES, False, j == 0, None)]))
            k.gemm(fc, D=7)
            cs_add(C2, [10, 11, 12])
            k.ds_all()
        if o.get("th", 0) == 1:
            spread(fill, k.rec(lambda: touch("h")), 0, 1)
        if o.get("th", 0) and L1:
            spread(fill, k.rec(lambda: touch("x2")), 1, 1)
        e1 = k.rec(epi1)
        e = spread(fill, e1, 0, 2 / 3)
        fl1 = k.rec(lambda: k.flag(sFHo, G_FH))
        spread(fill, fl1, min(e + o.get("fl1", 16), 95), 1)
        if L1:
            w2 = k.rec(w2t_loads)
            nw2 = o.get("nw2", 24)
            spread(fill, w2[:3 + nw2], 0, 96 / (3 + nw2))
        for ks in range(16):
            for b in range(3):
                fr.append(dict(addr=vL16, offs=(R0 + ks * 3072 + b * 1024,), mf=mf2(C2 + 8 * b, ks, True, False)))
        k.gemm(fr, fill)
        k.stamp("C.mm2")
        k.barrier()
        k(f"v_and_b32 v{vT0}, 48, v{vLANE}")
        k(f"v_add_u32 v{vT0}, {L_CS}, v{vT0}")
        for b in range(3):
            k.lds(f"ds_read_b128 {vr(vWB+4*b,4)}, v{vT0} offset:{(10+b)*64}")
        for j in range(4):
            k(f"s_add_u32 s{sT0}, s{sW}, {j}")
            k(f"s_and_b32 s{sT0}, s{sT0}, 3")
            k(f"s_lshl2_add_u32 s{sT0}, s{sDH}, s{sT0}")
            k(f"s_lshl2_add_u32 s{sT0}, s{sT0}, s{sW}")
            k(f"s_mul_i32 s{sT0}, s{sT0}, 14336")
            k(f"s_add_u32 s{sT0}, s{sT0}, s{sGB}")
            k(f"s_add_u32 s{sRB+j}, s{sT0}, {G_H}")
        k.ds_all()
        HO = vWB + 16
        for rb in range(2):
            for b in range(3):
                relu_block(C2 + 8*b + 4*rb, vWB + 4*b, rb, HO + 8*rb + 2*b)
        its = []
        for rb in range(2):
            its.append(f"buffer_store_dwordx4 {vr(HO+8*rb,4)}, v{vL16}, {srd(S_WS)}, s{sH2+rb} offen")
            its.append(f"buffer_store_dwordx2 {vr(HO+8*rb+4,2)}, v{vL16}, {srd(S_WS)}, s{sH3+rb} offen")
        k.stores(its, pay_sc1)
        k.stamp("C.st2")
        k.poll_prep(7)
        k.poll(sFHp, G_FH)
        k.vm_note(1, "st")
        k.flag(sFHo, G_FH + 1024)
        k.stamp("D.poll1")

        def hload(t):
            ksl, j = divmod(t, 4)
            if ksl % 4 == 0 and ksl:
                k(f"s_add_u32 s{sRB+j}, s{sRB+j}, 4096")
            k.vmem(f"buffer_load_dwordx4 {vr(vACT+4*(t%32),4)}, v{vL16}, {srd(S_WS)}, s{sRB+j} offen offset:{(ksl%4)*1024} sc1", ("h", t))

        LA = o.get("dla", 10)
        rest = w2[3 + nw2:] if L1 else []
        tail = k.rec(lambda: (lin_dma(0, R0, 16, "wkv2"), lin_dma(PK_Q, R1, 8, "wq2"))) if L1 else []
        for t in range(LA):
            hload(t)
        for t in range(56):
            ksl, j = divmod(t, 4)
            if L1:
                k.vm_wait(("w2t", ksl))
            k.vm_wait(("h", t))
            for f in range(4):
                a = vACC + 16*j + 4*f
                c = "0" if ksl == 0 else vr(a, 4)
                k(f"v_mfma_f32_16x16x32_bf16 {vr(a,4)}, {ar((ksl*4+f)*4,4)}, {vr(vACT+4*(t%32),4)}, {c}")
                if f == 0:
                    nt = t + LA
                    if nt == 32 - 6:
                        k.vmem(f"buffer_load_dword v{vT0}, v{vT3}, {srd(S_WS)}, s{sFHp} offen offset:{G_FH+1024} sc1", "p2")
                    if nt == 32:
                        ok = k.label("L_p2ok")
                        k.vm_wait("p2")
                        k(f"v_cmp_ne_u32 vcc, s{sTAG}, v{vT0}")
                        k(f"s_cbranch_vccz {ok}")
                        sv = list(k.vm)
                        k.poll(sFHp, G_FH + 1024, False)
                        k.vm = sv
                        k(f"{ok}:")
                    if nt < 56:
                        hload(nt)
                if f == 2:
                    if rest:
                        k.play(rest[:1]); rest = rest[1:]
                        if rest and t % 2 == 0:
                            k.play(rest[:1]); rest = rest[1:]
                    elif t + LA >= 56 and tail:
                        k.play(tail[:2]); tail = tail[2:]
        assert not rest
        k.stamp("D.mm")
        for j in range(1, 4):
            k(f"s_add_u32 s{sT2}, s{sW}, {j}")
            k(f"s_and_b32 s{sT2}, s{sT2}, 3")
            k(f"s_mul_i32 s{sT2}, s{sT2}, 12288")
            k(f"s_add_u32 s{sT2}, s{sT2}, {L_RED + (j-1)*4096}")
            k(f"v_add_u32 v{vT0+j}, s{sT2}, v{vL16}")
        k(f"s_mul_i32 s{sT2}, s{sW}, 12288")
        k(f"s_add_u32 s{sT2}, s{sT2}, {L_RED}")
        k(f"v_add_u32 v{vT0}, s{sT2}, v{vL16}")
        for j in range(1, 4):
            for f in range(4):
                k.lds(f"ds_write_b128 v{vT0+j}, {vr(vACC+16*j+4*f,4)} offset:{f*1024}")
                if tail:
                    k.play(tail[:1]); tail = tail[1:]
        assert not tail
        unpack_res(vWB)
        for q in range(8):
            k(f"v_pk_add_f32 {vr(vACC+2*q,2)}, {vr(vACC+2*q,2)}, {vr(vWB+2*q,2)}")
        k.barrier()
        for j in range(3):
            for f in range(4):
                k.lds(f"ds_read_b128 {vr(vACC+16+16*j+4*f,4)}, v{vT0} offset:{j*4096+f*1024}", ("rd", j, f))
        for j in range(3):
            for f in range(4):
                k.ds_wait(("rd", j, f))
                for p in range(2):
                    k(f"v_pk_add_f32 {vr(vACC+4*f+2*p,2)}, {vr(vACC+4*f+2*p,2)}, {vr(vACC+16+16*j+4*f+2*p,2)}")
        for f in range(4):
            for p in range(2):
                k(f"v_cvt_pk_bf16_f32 v{vRES+2*f+p}, v{vACC+4*f+2*p}, v{vACC+4*f+2*p+1}")
        k.stamp("D.red")
        if L1:
            publish_x(G_X2, G_ST2, G_FX2, pay_sc1)
            k(f"s_add_u32 s{sKVC}, s{sKVC}, 0x100000")
            k(f"s_add_u32 s{sKVP}, s{sKVP}, 0x100000")
            k.stamp("D.pub")
            k("s_barrier")
        else:
            k(f"""
            v_and_b32 v{vT1}, 15, v{vLANE}
            v_lshlrev_b32 v{vT1}, 10, v{vT1}
            v_lshrrev_b32 v{vT0}, 4, v{vLANE}
            v_lshl_add_u32 v{vT2}, v{vT0}, 3, v{vT1}
            s_lshl2_add_u32 s{sT2}, s{sDH}, s{sW}
            s_lshl3_add_u32 s{sT2}, s{sG}, s{sT2}
            s_lshl_b32 s{sT2}, s{sT2}, 14
            s_lshl_b32 s{sT3}, s{sCT}, 7
            s_add_u32 s{sT2}, s{sT2}, s{sT3}
            """)
            for f in range(4):
                k.vmem(f"buffer_store_dwordx2 {vr(vRES+2*f,2)}, v{vT2}, {srd(S_OUT)}, s{sT2} offen offset:{32*f}")
            le = k.label("L_ep")
            k(f"s_or_b32 s{sT2}, s2, s{sW}")
            k(f"s_cbranch_scc1 {le}")
            k(f"s_add_u32 s{sEP}, s{sEP}, 1")
            k(f"v_mov_b32 v{vT1}, s{sEP}")
            k("s_mov_b64 exec, 1")
            k(f"buffer_store_dword v{vT1}, v{vL16}, {srd(S_WS)}, 0 offen offset:{WS_EPOCH}")
            k("s_mov_b64 exec, -1")
            k(f"{le}:")
            if stamps:
                k.vm_all()
                k.stamp("end")
                k(f"s_memrealtime s[{sST}:{sST+1}]")
                k("s_waitcnt lgkmcnt(0)")
                k(f"v_writelane_b32 v{vSTAMP}, s{sST}, 61")
                k(f"v_writelane_b32 v{vSTAMP}, s{sBUD}, 60")
                k(f"v_writelane_b32 v{vSTAMP}, s{sSLOW}, 59")
                k(f"s_lshl2_add_u32 s{sT2}, s2, s{sW}")
                k(f"s_lshl_b32 s{sT2}, s{sT2}, 8")
                k(f"s_add_u32 s{sT2}, s{sT2}, {WS_STAMP}")
                k(f"v_lshrrev_b32 v{vT0}, 2, v{vL16}")
                k(f"buffer_store_dword v{vSTAMP}, v{vT0}, {srd(S_WS)}, s{sT2} offen")
                if o.get("dbgout"):
                    ld = k.label("L_dbg")
                    k(f"s_cmp_lg_u32 s2, 37")
                    k(f"s_cbranch_scc1 {ld}")
                    k(f"s_cmp_lg_u32 s{sW}, 0")
                    k(f"s_cbranch_scc1 {ld}")
                    k(f"s_load_dwordx2 s[{S_X}:{S_X+1}], s[0:1], 56")
                    k(f"v_readlane_b32 s{sT0}, v{vSTAMP}, 62")
                    k(f"v_readlane_b32 s{sT1}, v{vSTAMP}, 63")
                    k(f"v_readlane_b32 s{sT2}, v{vSTAMP}, 61")
                    k("s_nop 4")
                    k(f"s_sub_u32 s{sT2}, s{sT2}, s{sT1}")
                    k(f"v_subrev_u32 v{vSTAMP}, s{sT0}, v{vSTAMP}")
                    k(f"v_mov_b32 v{vT1}, 0")
                    sel = [0, 2, 3, 5, 7, 9, 12, 13, 16, 17, 19, 21, 24, 30, len(k.stamp_names) - 1]
                    for j, ix in enumerate(sel):
                        k(f"v_readlane_b32 s{sT3}, v{vSTAMP}, {ix}")
                        k("s_nop 3")
                        k(f"v_writelane_b32 v{vT1}, s{sT3}, {j}")
                    k(f"v_writelane_b32 v{vT1}, s{sT2}, 15")
                    k("s_waitcnt lgkmcnt(0)")
                    k(f"s_mov_b32 s{S_X+2}, 256")
                    k(f"buffer_store_dword v{vT1}, v{vT0}, {srd(S_X)}, 0 offen")
                    k(f"{ld}:")
    if "leak" in o:
        k(f"v_readlane_b32 s{sT0}, v{vSTAMP}, 62")
        k(f"v_readlane_b32 s{sT1}, v{vSTAMP}, 0")
        k(f"s_memtime s[{sST}:{sST+1}]")
        k("s_waitcnt lgkmcnt(0)")
        k(f"s_sub_u32 s{sT1}, s{sT1}, s{sT0}")
        k(f"s_mul_i32 s{sT1}, s{sT1}, {o.get('leakx', 1)}")
        k(f"s_min_u32 s{sT1}, s{sT1}, 2000000")
        k(f"s_mov_b32 s{sT0}, s{sST}")
        k("L_leak:")
        k(f"s_memtime s[{sST}:{sST+1}]")
        k("s_waitcnt lgkmcnt(0)")
        k(f"s_sub_u32 s{sT2}, s{sST}, s{sT0}")
        k(f"s_cmp_lt_u32 s{sT2}, s{sT1}")
        k("s_cbranch_scc1 L_leak")
    if o.get("pad"):
        k(f"s_mov_b32 s{sT0}, {o['pad']}")
        k("L_pad:")
        for j in range(16):
            k(f"v_mfma_f32_16x16x32_bf16 {vr(vACC+4*(j%8),4)}, {vr(vACT,4)}, {vr(vACT+4,4)}, {vr(vACC+4*(j%8),4)}")
        k(f"s_sub_u32 s{sT0}, s{sT0}, 1")
        k("s_cbranch_scc0 L_pad")
    k("L_end:")
    body = "\n".join(k.lines)
    hdr = open("interleave_layers__linear_attn_block__dense_activation_relu__prompt.s.ref").read().split("; Override")[0]
    txt = f"""{hdr}; Generated by a hand-written generator (persistent kernel, one workgroup per CU).
; @launch grid=(256,1,1) block=(256,1,1) lds={LDS_BYTES}
.amdgcn_target "amdgcn-amd-amdhsa--gfx950"
.text
.globl {NAME}
.p2align 8
.type {NAME},@function
.set CODE_BYTES, L_code_end - L_pcref - 512
{NAME}:
{body}
    s_endpgm
L_code_end:
.section .rodata,"a"
.p2align 6
.amdhsa_kernel {NAME}
  .amdhsa_next_free_vgpr 512
  .amdhsa_next_free_sgpr 96
  .amdhsa_accum_offset 256
  .amdhsa_group_segment_fixed_size 0
  .amdhsa_kernarg_size 72
  .amdhsa_user_sgpr_count 2
  .amdhsa_user_sgpr_kernarg_segment_ptr 1
  .amdhsa_system_sgpr_workgroup_id_x 1
.end_amdhsa_kernel
"""
    return txt, k.stamp_names


if __name__ == "__main__":
    out = sys.argv[1]
    stamps = "stamps" in sys.argv[2:]
    opts = {}
    for a in sys.argv[2:]:
        if "=" in a:
            x, y = a.split("=")
            opts[x] = int(y)
    txt, names = gen(stamps, opts)
    open(out, "w").write(txt)
    if stamps:
        open(out + ".names", "w").write("\n".join(names))
```

```python
import sys
from contextlib import contextmanager

NAME = "interleave_layers__linear_attn_block__dense_activation_relu__prompt_kernel"

WS_EPOCH = 0
WS_XID = 0x1000
WS_PF = 0x2000
WS_W2F = 0x3000
GRP0 = 0x100000
G_FO, G_FX1, G_FX2, G_FH = 0, 512, 1024, 1536
G_ST1 = 0x1000
G_ST2 = 0x3000
G_O = 0x8000
G_X1 = G_O + 0x20000
G_X2 = G_X1 + 0x20000
G_H = G_X2 + 0x20000
WS_KVX = 0x1200000
WS_W2T = 0x1400000
WS_PK = 0x1600000
PK_Q, PK_W1, PK_SZ = 65536, 98304, 147456
WS_STAMP = 0x1900000
WS_USED = 0x1A00000

R0, R1, R2, R3 = 0, 65536, 98304, 131072
L_SM = 159744
L_CS = L_SM
L_STAT = L_SM + 1024
L_XB = L_SM + 2048
L_ZB = L_SM + 3072
L_XST = 98304
L_RED = R2
L_PST = R2
LDS_BYTES = 163840

S_X, S_WQKV, S_WO, S_W1, S_W2, S_OUT, S_WS = 4, 8, 12, 16, 20, 24, 28
(sW, sC, sG, sTAG, sSLOW, sGB, sBUD, sEP, sEPS, _e1, sT0, sT1, sT2, sT3, sT4, sT5,
 sACT, sACT1, sBACT, sTILE, sOST, sOST1, sFOo, sFOp, sFXo, sFXp, sSTo, sSTg,
 sH1, sH1b, sH2, sH2b, sH3, sH3b, sFHo, sFHp, sRB, _r1, _r2, _r3, sKVC, sKVP,
 sDH, sCT, sXCC, sRHO, sD0, sD1, sD2, sD3, sL0, sL1, sPKB, sPD, sPU, sJ0) = range(32, 88)
assert sEPS % 2 == 0
sST = 88
sPC = 92

vLANE, vL16, vTR0, vTR1, vQ0, vQ1, vQ2, vQ3, vP, vCH, vDM, vSTAMP = range(12)
vT0, vT1, vT2, vT3 = 12, 13, 14, 15
vSP, vSP2 = vP, vCH
vRES = 16
vPQ = 24
vWB = 32
vACC = 64
vACT = 128
BF1 = "0x3f803f80"


def srd(s):
    return f"s[{s}:{s+3}]"


def vr(a, n=1):
    return f"v{a}" if n == 1 else f"v[{a}:{a+n-1}]"


def ar(a, n=1):
    return f"a{a}" if n == 1 else f"a[{a}:{a+n-1}]"


def bcast(r, pos, n):
    lo = [0] * n
    hi = [1] * n
    if r % 2 == 0:
        hi[pos] = 0
    else:
        lo[pos] = 1
    f = lambda x: "[" + ",".join(map(str, x)) + "]"
    return vr(r & ~1, 2), f" op_sel:{f(lo)} op_sel_hi:{f(hi)}"


class K:
    def __init__(self, stamps=False, opts=None):
        self.lines = []
        self.nlab = 0
        self.vm = []
        self.ds = []
        self.stamps = stamps
        self.stamp_names = []
        self.o = opts or {}
        self._rec = None
        self.seen = set()

    def _do(self, fn):
        if self._rec is not None:
            self._rec.append(fn)
        else:
            fn()

    def rec(self, f):
        assert self._rec is None
        self._rec = []
        f()
        r, self._rec = self._rec, None
        return r

    @contextmanager
    def atomic(self):
        if self._rec is None:
            yield
            return
        outer, self._rec = self._rec, []
        yield
        inner, self._rec = self._rec, outer
        outer.append(lambda: [x() for x in inner])

    def play(self, items):
        for x in items:
            self._do(x)

    def _emit(self, l):
        self.lines.append(("" if l.endswith(":") else "    ") + l)

    def __call__(self, s):
        for l in s.split("\n"):
            l = l.strip()
            if l:
                self._do(lambda l=l: self._emit(l))

    def label(self, base="L"):
        self.nlab += 1
        return f"{base}_{self.nlab}"

    def vmem(self, s, tag=None):
        def f():
            self._emit(s)
            self.vm.append(tag)
            self.seen.add(tag)
        self._do(f)

    def vm_note(self, n, tag=None):
        self._do(lambda: (self.vm.extend([tag] * n), self.seen.add(tag)))

    def _wait(self, lst, tag, name, mx):
        if tag not in lst:
            return lst
        idx = len(lst) - 1 - lst[::-1].index(tag)
        n = min(len(lst) - idx - 1, mx)
        self._emit(f"s_waitcnt {name}({n})")
        return lst[len(lst) - n:] if n else []

    def vm_wait(self, tag):
        def f():
            assert tag in self.seen, tag
            self.vm = self._wait(self.vm, tag, "vmcnt", 63)
        self._do(f)

    def vm_all(self):
        def f():
            self._emit("s_waitcnt vmcnt(0)")
            self.vm = []
        self._do(f)

    def lds(self, s, tag=None):
        def f():
            self._emit(s)
            self.ds.append(tag)
        self._do(f)

    def ds_wait(self, tag):
        def f():
            self.ds = self._wait(self.ds, tag, "lgkmcnt", 15)
        self._do(f)

    def ds_all(self, force=False):
        def f():
            if self.ds or force:
                self._emit("s_waitcnt lgkmcnt(0)")
            self.ds = []
        self._do(f)

    def barrier(self, force=False):
        self.ds_all(force)
        self("s_barrier")

    def stamp(self, name):
        if not self.stamps:
            return
        self.nst = getattr(self, "nst", 0) + 1
        if "leak" in self.o and self.nst - 1 != self.o["leak"]:
            return
        i = len(self.stamp_names)
        assert i < 59
        self.stamp_names.append(name)
        self(f"s_memtime s[{sST}:{sST+1}]")
        self.ds_all(True)
        self(f"v_writelane_b32 v{vSTAMP}, s{sST}, {i}")

    def dma(self, sr, voff, soff, simm, lreg, limm, tag=None, flag=""):
        with self.atomic():
            self(f"s_add_u32 m0, s{lreg}, {limm}")
            self(f"s_add_u32 s{sT5}, s{soff}, {simm}")
            self.vmem(f"buffer_load_dwordx4 v{voff}, {srd(sr)}, s{sT5} offen{flag} lds", tag)

    def poll_prep(self, mask):
        self(f"v_lshrrev_b32 v{vT3}, 2, v{vL16}")
        self(f"v_and_b32 v{vT3}, {mask*4}, v{vT3}")

    def poll(self, soff, imm, clear=True):
        if clear:
            self.seen = {t for t in self.seen if not (isinstance(t, tuple) and t[0] in ("act", "h"))}
        lp, done = self.label("L_poll"), self.label("L_pd")
        with self.atomic():
            self(f"{lp}:")
            self(f"buffer_load_dword v{vT0}, v{vT3}, {srd(S_WS)}, s{soff} offen offset:{imm} sc1")
            self.vm_all()
            self(f"v_cmp_ne_u32 vcc, s{sTAG}, v{vT0}")
            self(f"s_cbranch_vccz {done}")
            self(f"s_sub_u32 s{sBUD}, s{sBUD}, 1")
            self(f"s_cbranch_scc0 {lp}")
            self(f"s_mov_b32 s{sBUD}, 0")
            self(f"{done}:")

    def stores(self, items, force_sc1, tag="st"):
        with self.atomic():
            if force_sc1:
                for it in items:
                    self.vmem(it + " sc1", tag)
                return
            ls, le = self.label("L_ss"), self.label("L_se")
            self(f"s_cmp_lg_u32 s{sSLOW}, 0")
            self(f"s_cbranch_scc1 {ls}")
            for it in items:
                self.vmem(it, tag)
            self(f"s_branch {le}")
            self(f"{ls}:")
            for it in items:
                self(it + " sc1")
            self(f"{le}:")

    def flag(self, soff, imm):
        with self.atomic():
            self(f"v_mov_b32 v{vT1}, s{sTAG}")
            self.vm_wait("st")
            self("s_mov_b64 exec, 1")
            self.stores([f"buffer_store_dword v{vT1}, v{vL16}, {srd(S_WS)}, s{soff} offen offset:{imm}"], False, "flag")
            self("s_mov_b64 exec, -1")

    def gemm(self, frags, fill=None, D=6):
        n = len(frags)
        fill = fill or {}
        self.gid = getattr(self, "gid", 0) + 1
        gid = self.gid
        reads = []
        for t, f in enumerate(frags):
            s = vWB + 4 * (t % 8)
            if len(f["offs"]) == 2:
                for hh in range(2):
                    reads.append((t, f"ds_read_b64_tr_b16 {vr(s + 2*hh, 2)}, v{f['addr']} offset:{f['offs'][hh]}"))
            else:
                reads.append((t, f"ds_read_b128 {vr(s, 4)}, v{f['addr']} offset:{f['offs'][0]}"))
        rp = 0

        def issue_upto(tmax, maxn):
            nonlocal rp
            c = 0
            while rp < len(reads) and reads[rp][0] <= tmax and c < maxn:
                self.lds(reads[rp][1], ("w", gid, reads[rp][0]))
                rp += 1
                c += 1
        issue_upto(D - 1, 99)
        mi = 0
        for t, f in enumerate(frags):
            s = vWB + 4 * (t % 8)
            self.ds_wait(("w", gid, t))
            nm = len(f["mf"])
            for j, (acc, act_, sw, first, wt) in enumerate(f["mf"]):
                if wt is not None:
                    self.vm_wait(wt)
                c = "0" if first else vr(acc, 4)
                if sw:
                    self(f"v_mfma_f32_16x16x32_bf16 {vr(acc,4)}, {vr(s,4)}, {vr(act_,4)}, {c}")
                else:
                    self(f"v_mfma_f32_16x16x32_bf16 {vr(acc,4)}, {vr(act_,4)}, {vr(s,4)}, {c}")
                issue_upto(t + D, 99 if j == nm - 1 else 1)
                self.play(fill.pop(mi, []))
                mi += 1
        for key in sorted(fill):
            self.play(fill[key])


def spread(fill, items, start, step, per=1):
    p = start
    for i in range(0, len(items), per):
        fill.setdefault(int(p), []).extend(items[i:i + per])
        p += step
    return p


def act(ks, rb):
    return vACT + 8 * ks + 4 * rb


def gen(stamps=False, opts=None):
    k = K(stamps, opts)
    o = k.o
    if stamps:
        k(f"s_memtime s[{sST}:{sST+1}]")
        k(f"s_memrealtime s[{sST+2}:{sST+3}]")
    k(f"""
    s_cmp_ge_u32 s2, 256
    s_cbranch_scc1 L_end
    s_load_dwordx2 s[{S_X}:{S_X+1}], s[0:1], 0
    s_load_dwordx2 s[{S_WQKV}:{S_WQKV+1}], s[0:1], 8
    s_load_dwordx2 s[{S_WS}:{S_WS+1}], s[0:1], 64
    s_load_dwordx2 s[{S_WO}:{S_WO+1}], s[0:1], 16
    s_load_dwordx2 s[{S_W1}:{S_W1+1}], s[0:1], 32
    s_load_dwordx2 s[{S_W2}:{S_W2+1}], s[0:1], 40
    s_load_dwordx2 s[{S_OUT}:{S_OUT+1}], s[0:1], 48
    v_lshrrev_b32 v{vT0}, 6, v0
    v_and_b32 v{vLANE}, 63, v0
    s_mov_b32 s{S_X+2}, {2048*1024}
    v_readfirstlane_b32 s{sW}, v{vT0}
    s_mov_b32 s{S_X+3}, 0x20000
    s_mov_b32 s{S_WQKV+2}, {512*3072}
    s_mov_b32 s{S_WQKV+3}, 0x20000
    s_lshr_b32 s{sT0}, s2, 3
    s_and_b32 s{sC}, s{sT0}, 15
    s_lshr_b32 s{sT0}, s{sT0}, 4
    s_and_b32 s{sG}, s2, 7
    s_lshl1_add_u32 s{sG}, s{sG}, s{sT0}
    s_lshr_b32 s{sT1}, s{sC}, 1
    s_xor_b32 s{sT1}, s{sT1}, s{sT0}
    s_and_b32 s{sT1}, s{sT1}, 1
    s_and_b32 s{sRHO}, s{sC}, 1
    s_lshl1_add_u32 s{sRHO}, s{sT1}, s{sRHO}
    v_lshlrev_b32 v{vL16}, 4, v{vLANE}
    """)
    if stamps:
        k(f"v_mov_b32 v{vSTAMP}, 0")
    XS, XR = vRES, vRES + 4
    k(f"""
    v_lshrrev_b32 v{vT0}, 4, v{vLANE}
    v_and_b32 v{vT1}, 15, v{vLANE}
    v_xor_b32 v{vT2}, v{vT0}, v{vT1}
    v_lshlrev_b32 v{vT2}, 4, v{vT2}
    v_lshl_add_u32 v{XS}, v{vT0}, 10, v{vT2}
    s_lshr_b32 s{sJ0}, s{sC}, 2
    s_and_b32 s{sT2}, s{sJ0}, 1
    s_lshl_b32 s{sT2}, s{sT2}, 7
    s_lshl_b32 s{sJ0}, s{sJ0}, 11
    v_xor_b32 v{XS}, s{sT2}, v{XS}
    v_xor_b32 v{XS+1}, 64, v{XS}
    v_xor_b32 v{XS+2}, 0x80, v{XS}
    v_xor_b32 v{XS+3}, 0xc0, v{XS}
    v_lshrrev_b32 v{vP}, 2, v{vLANE}
    v_and_b32 v{vCH}, 3, v{vLANE}
    v_lshrrev_b32 v{vT3}, 3, v{vLANE}
    v_and_b32 v{vT3}, 2, v{vT3}
    v_xor_b32 v{vCH}, v{vCH}, v{vT3}
    v_lshlrev_b32 v{vCH}, 4, v{vCH}
    v_and_b32 v{vT3}, 3, v{vP}
    v_lshl_add_u32 v{vT3}, v{vT0}, 3, v{vT3}
    s_movk_i32 s{sT1}, 3072
    v_mad_u32_u24 v{vDM}, v{vT3}, s{sT1}, v{vCH}
    s_lshl_b32 s{sL0}, s{sW}, 14
    s_add_u32 s{sL0}, s{sL0}, {L_XST}
    s_lshl_b32 s{sT1}, s{sG}, 17
    s_lshl_b32 s{sT2}, s{sW}, 15
    s_add_u32 s{sT1}, s{sT1}, s{sT2}
    s_lshl_b32 s{sL1}, s{sW}, 12
    s_mov_b32 s{S_WO+2}, {512*1024}
    s_mov_b32 s{S_WO+3}, 0x20000
    s_mov_b32 s{S_W1+2}, {512*3584}
    s_mov_b32 s{S_W1+3}, 0x20000
    """)
    for r in range(4):
        k(f"""
        s_add_u32 s{sT2}, s{sRHO}, {r}
        s_and_b32 s{sT2}, s{sT2}, 3
        s_lshl_b32 s{sT3}, s{sT2}, 8
        s_add_u32 s{sD0+r}, s{sT1}, s{sT3}
        s_lshl2_add_u32 s{sT2}, s{sT2}, s{sW}
        s_mul_i32 s{sT2}, s{sT2}, {32*3072}
        s_lshl_b32 s{sT3}, s{sC}, 6
        s_add_u32 s{sRB+r}, s{sT2}, s{sT3}
        """)
    k("s_waitcnt lgkmcnt(0)")
    k(f"s_load_dword s{sEP}, s[{S_WS}:{S_WS+1}], {WS_EPOCH}")
    if stamps:
        k(f"v_writelane_b32 v{vSTAMP}, s{sST}, 62")
        k(f"v_writelane_b32 v{vSTAMP}, s{sST+2}, 63")

    def xslot(q, js=range(8)):
        for j in js:
            with k.atomic():
                k(f"s_xor_b32 s{sT4}, s{sJ0}, {j*1024}")
                k(f"s_add_u32 m0, s{sT4}, s{sL0}")
                if q & 1:
                    k(f"s_add_u32 m0, m0, 8192")
                k(f"s_lshl2_add_u32 s{sT5}, s{sT4}, s{sD0+q}")
                k.vmem(f"buffer_load_dwordx4 v{XS+(j&3)}, {srd(S_X)}, s{sT5} offen lds", ("xs", q))

    def wkv_raw(r):
        for pr in range(2):
            for hh in range(2):
                k.dma(S_WQKV, vDM, sRB + r, hh * 4 * 3072 + 1024 * (pr + 1), sL1, R0 + r * 16384 + pr * 2048 + hh * 1024, ("wkv", r))

    def warm():
        k(f"s_lshl2_add_u32 s{sT2}, s2, s{sW}")
        k(f"v_lshlrev_b32 v{vT3}, 7, v{vLANE}")
        k(f"s_mul_i32 s{sT3}, s{sT2}, 1792")
        k("s_mov_b64 exec, 0x3fff")
        k.vmem(f"buffer_load_dword a255, v{vT3}, {srd(S_W1)}, s{sT3} offen")
        k(f"s_lshl_b32 s{sT3}, s{sT2}, 9")
        k("s_mov_b64 exec, 0xf")
        k.vmem(f"buffer_load_dword a255, v{vT3}, {srd(S_WO)}, s{sT3} offen")
        k(f"s_lshr_b32 s{sT3}, s{sT2}, 1")
        k(f"s_mul_i32 s{sT3}, s{sT3}, 3072")
        k(f"s_and_b32 s{sT2}, s{sT2}, 1")
        k(f"s_lshl_b32 s{sT2}, s{sT2}, 9")
        k(f"s_add_u32 s{sT3}, s{sT3}, s{sT2}")
        k.vmem(f"buffer_load_dword a255, v{vT3}, {srd(S_WQKV)}, s{sT3} offen")
        k(f"""
        s_getpc_b64 s[{sPC}:{sPC+1}]
        L_pcref:
        s_lshr_b32 s{sT2}, s2, 3
        s_lshl2_add_u32 s{sT2}, s{sT2}, s{sW}
        s_lshl_b32 s{sT2}, s{sT2}, 9
        s_min_u32 s{sT2}, s{sT2}, CODE_BYTES
        s_add_u32 s{sPC}, s{sPC}, s{sT2}
        s_addc_u32 s{sPC+1}, s{sPC+1}, 0
        """)
        k.vmem(f"global_load_dword a255, v{vT3}, s[{sPC}:{sPC+1}]")
        k("s_mov_b64 exec, -1")

    if o.get("tlb", 0):
        k("s_mov_b64 exec, 1")
        k.vmem(f"buffer_load_dword a255, v{vL16}, {srd(S_X)}, s{sD0} offen")
        k.vmem(f"buffer_load_dword a255, v{vL16}, {srd(S_WQKV)}, s{sRB} offen offset:1024")
        if o.get("tlb", 0) > 1:
            k.vmem(f"global_load_dword a255, v{vL16}, s[{S_WO}:{S_WO+1}]")
            k.vmem(f"global_load_dword a255, v{vL16}, s[{S_W1}:{S_W1+1}]")
            k.vmem(f"global_load_dword a255, v{vL16}, s[{S_W2}:{S_W2+1}]")
            k.vmem(f"global_load_dword a255, v{vL16}, s[{S_OUT}:{S_OUT+1}]")
            k(f"v_lshlrev_b32 v{vT3}, 21, v{vLANE}")
            k("s_mov_b64 exec, 0x1fff")
            k(f"v_lshlrev_b32 v{vT3}, 21, v{vLANE}")
            k.vmem(f"global_load_dword a255, v{vT3}, s[{S_WS}:{S_WS+1}] offset:128")
        k("s_mov_b64 exec, -1")
    xslot(0, range(2)); wkv_raw(0)
    if o.get("diag"):
        k.stamp("iss0")
        k("s_waitcnt vmcnt(4)")
        k.stamp("x0a")
        k("s_waitcnt vmcnt(3)")
        k.stamp("w0a")
        k("s_waitcnt vmcnt(0)")
        k.stamp("w0")
    if o.get("warm", 1):
        warm()
    else:
        k("L_pcref:")

    k(f"""
    s_mov_b32 s{S_W2+2}, {1792*1024}
    s_mov_b32 s{S_W2+3}, 0x20000
    s_mov_b32 s{S_OUT+2}, {2048*1024}
    s_mov_b32 s{S_OUT+3}, 0x20000
    s_mov_b32 s{S_WS+2}, {WS_USED}
    s_mov_b32 s{S_WS+3}, 0x20000
    s_lshl_b32 s{sGB}, s{sG}, 20
    s_add_u32 s{sGB}, s{sGB}, {GRP0}
    s_lshr_b32 s{sDH}, s{sC}, 3
    s_and_b32 s{sCT}, s{sC}, 7
    s_mov_b32 s{sBUD}, 150000
    s_mov_b32 s{sEPS}, 0x358637bd
    s_mov_b32 s{sEPS+1}, 0x358637bd
    s_getreg_b32 s{sXCC}, hwreg(HW_REG_XCC_ID, 0, 4)
    s_lshl_b32 s{sACT}, s{sW}, 15
    s_add_u32 s{sACT}, s{sACT}, s{sGB}
    s_add_u32 s{sACT1}, s{sACT}, 16384
    s_lshl2_add_u32 s{sT0}, s{sDH}, s{sW}
    s_lshl_b32 s{sBACT}, s{sT0}, 14
    s_add_u32 s{sBACT}, s{sBACT}, s{sGB}
    s_lshl_b32 s{sTILE}, s{sCT}, 11
    s_add_u32 s{sTILE}, s{sTILE}, s{sBACT}
    s_lshl_b32 s{sOST}, s{sC}, 10
    s_add_u32 s{sOST}, s{sOST}, s{sACT}
    s_add_u32 s{sOST}, s{sOST}, {G_O}
    s_add_u32 s{sOST1}, s{sOST}, 16384
    s_lshl_b32 s{sFXp}, s{sW}, 7
    s_add_u32 s{sFXp}, s{sFXp}, s{sGB}
    s_lshl2_add_u32 s{sFOo}, s{sC}, s{sFXp}
    s_lshl_b32 s{sFHp}, s{sT0}, 7
    s_add_u32 s{sFHp}, s{sFHp}, s{sGB}
    s_lshr_b32 s{sT0}, s{sT0}, 1
    s_lshl_b32 s{sFOp}, s{sT0}, 7
    s_add_u32 s{sFOp}, s{sFOp}, s{sGB}
    s_and_b32 s{sT2}, s{sW}, 1
    s_lshl1_add_u32 s{sT3}, s{sCT}, s{sT2}
    s_lshl2_add_u32 s{sFXo}, s{sT3}, s{sFOp}
    s_lshl3_add_u32 s{sT3}, s{sT0}, s{sCT}
    s_lshl_b32 s{sT3}, s{sT3}, 8
    s_lshl3_add_u32 s{sT3}, s{sT2}, s{sT3}
    s_add_u32 s{sSTo}, s{sT3}, s{sGB}
    s_lshl_b32 s{sSTg}, s{sW}, 11
    s_add_u32 s{sSTg}, s{sSTg}, s{sGB}
    s_mul_i32 s{sT0}, s{sW}, {2*57344}
    s_add_u32 s{sT0}, s{sT0}, s{sGB}
    s_lshr_b32 s{sT3}, s{sC}, 2
    s_mul_i32 s{sT4}, s{sT3}, 14336
    s_add_u32 s{sT0}, s{sT0}, s{sT4}
    s_add_u32 s{sT0}, s{sT0}, {G_H}
    s_and_b32 s{sT4}, s{sC}, 3
    s_lshl_b32 s{sH1}, s{sT4}, 11
    s_add_u32 s{sH1}, s{sH1}, s{sT0}
    s_add_u32 s{sH1b}, s{sH1}, 57344
    s_mul_i32 s{sH2}, s{sT4}, 3
    s_add_u32 s{sH2}, s{sH2}, 17
    s_lshr_b32 s{sH2}, s{sH2}, 1
    s_lshl_b32 s{sH2}, s{sH2}, 10
    s_add_u32 s{sH2}, s{sH2}, s{sT0}
    s_add_u32 s{sH2b}, s{sH2}, 57344
    s_lshr_b32 s{sH3}, s{sT4}, 1
    s_mul_i32 s{sH3}, s{sH3}, 3072
    s_and_b32 s{sH3b}, s{sT4}, 1
    s_lshl3_add_u32 s{sH3}, s{sH3b}, s{sH3}
    s_add_u32 s{sH3}, s{sH3}, {9*1024}
    s_add_u32 s{sH3}, s{sH3}, s{sT0}
    s_add_u32 s{sH3b}, s{sH3}, 57344
    s_lshr_b32 s{sT0}, s{sW}, 1
    s_lshl2_add_u32 s{sT0}, s{sT0}, s{sT3}
    s_lshl_b32 s{sT0}, s{sT0}, 7
    s_lshl1_add_u32 s{sT2}, s{sT4}, s{sT2}
    s_lshl2_add_u32 s{sT0}, s{sT2}, s{sT0}
    s_add_u32 s{sFHo}, s{sT0}, s{sGB}
    s_lshl2_add_u32 s{sT2}, s{sC}, s{sW}
    s_lshl_b32 s{sT2}, s{sT2}, 14
    s_add_u32 s{sKVC}, s{sT2}, {WS_KVX}
    s_lshl_b32 s{sT2}, s{sG}, 10
    s_add_u32 s{sKVP}, s{sT2}, s{sKVC}
    s_mul_i32 s{sPKB}, s{sC}, {PK_SZ}
    s_add_u32 s{sPKB}, s{sPKB}, {WS_PK}
    """)
    k(f"""
    v_lshl_add_u32 v{XR}, v{vT1}, 8, v{vT2}
    v_add_u32 v{XR}, s{sL0}, v{XR}
    v_xor_b32 v{XR+1}, 64, v{XR}
    v_xor_b32 v{XR+2}, 0x80, v{XR}
    v_xor_b32 v{XR+3}, 0xc0, v{XR}
    v_and_b32 v{vT3}, 3, v{vLANE}
    v_lshlrev_b32 v{vT3}, 3, v{vT3}
    v_lshl_add_u32 v{vTR0}, v{vP}, 6, v{vT3}
    v_lshl_add_u32 v{vQ0}, v{vP}, 7, v{vT3}
    v_and_b32 v{vT3}, 1, v{vT0}
    v_lshlrev_b32 v{vT3}, 5, v{vT3}
    v_add_u32 v{vTR0}, v{vTR0}, v{vT3}
    v_xor_b32 v{vTR1}, 32, v{vTR0}
    v_bfe_u32 v{vT3}, v{vLANE}, 3, 2
    v_lshl_add_u32 v{vQ0}, v{vT3}, 5, v{vQ0}
    v_xor_b32 v{vQ1}, 32, v{vQ0}
    v_xor_b32 v{vQ2}, 64, v{vQ0}
    v_xor_b32 v{vQ3}, 0x60, v{vQ0}
    """)

    def xread(q):
        k.vm_wait(("xs", q))
        for ksl in range(4):
            for rb in range(2):
                k.lds(f"ds_read_b128 {vr(act(4*q+ksl, rb),4)}, v{XR+ksl} offset:{(q%2)*8192 + rb*4096}", ("xr", q))

    SUM0, SQ0, SUM1, SQ1 = vACC + 56, vACC + 57, vACC + 58, vACC + 59
    SUMA, SQA = vACC + 48, vACC + 56
    ONES = vPQ + 4

    def xstats(q, fill):
        k.ds_wait(("xr", q))
        mi = 0
        for ksl in range(4):
            for rb in range(2):
                a_ = vr(act(4*q+ksl, rb), 4)
                first = q == 0 and ksl == 0
                for (acc, A) in ((SUMA + 4*rb, vr(ONES, 4)), (SQA + 4*rb, a_)):
                    k(f"v_mfma_f32_16x16x32_bf16 {vr(acc,4)}, {A}, {a_}, {'0' if first else vr(acc,4)}")
                    k.play(fill.pop(mi, []))
                    mi += 1
        assert not fill

    def xstats_extract():
        k(f"v_mov_b32 v{vT0}, 0")
        k(f"v_mov_b32 v{vT1}, 0")
        for r in range(4):
            m = (1 | 1 << 20 | 1 << 40 | 1 << 60) << r
            with k.atomic():
                k(f"s_mov_b32 vcc_lo, {m & 0xffffffff}")
                k(f"s_mov_b32 vcc_hi, {m >> 32}")
                k(f"v_cndmask_b32 v{vT0}, v{vT0}, v{SQA+r}, vcc")
                k(f"v_cndmask_b32 v{vT1}, v{vT1}, v{SQA+4+r}, vcc")
        k(f"v_mul_f32 v{SUM0}, 0x3e800000, v{SUMA}")
        k(f"v_mul_f32 v{SUM1}, 0x3e800000, v{SUMA+4}")
        k(f"v_mov_b32 v{SQ0}, v{vT0}")
        k(f"v_mov_b32 v{SQ1}, v{vT1}")

    def cs_zero():
        lz = k.label("L_z")
        with k.atomic():
            k(f"s_cmp_lg_u32 s{sW}, 3")
            k(f"s_cbranch_scc1 {lz}")
            k(f"v_mov_b32 v{vT0}, 0\nv_mov_b32 v{vT1}, 0\nv_mov_b32 v{vT2}, 0\nv_mov_b32 v{vT3}, 0")
            k(f"v_add_u32 v{vPQ}, {L_CS}, v{vL16}")
            k(f"ds_write_b128 v{vPQ}, {vr(vT0,4)}")
            k(f"{lz}:")

    NM_A, RS_A, RL_A = vACC + 60, vACC + 62, vACC + 56
    NM_B, RS_B, RL_B = vACC + 32, vACC + 40, vACC + 48
    STG = vACC + 48

    def stats_finalize(need_b):
        k(f"""
        s_nop 2
        v_permlane32_swap_b32 v{SUM0}, v{SUM1}
        v_permlane32_swap_b32 v{SQ0}, v{SQ1}
        v_and_b32 v{vT0}, 15, v{vLANE}
        v_add_f32 v{SUM0}, v{SUM0}, v{SUM1}
        v_add_f32 v{SQ0}, v{SQ0}, v{SQ1}
        v_mov_b32 v{SUM1}, v{SUM0}
        v_mov_b32 v{SQ1}, v{SQ0}
        v_lshrrev_b32 v{vT1}, 5, v{vLANE}
        v_lshl_add_u32 v{vT1}, v{vT1}, 4, v{vT0}
        v_permlane16_swap_b32 v{SUM0}, v{SUM1}
        v_permlane16_swap_b32 v{SQ0}, v{SQ1}
        s_lshl_b32 s{sT4}, s{sW}, 8
        v_add_f32 v{SUM0}, v{SUM0}, v{SUM1}
        v_add_f32 v{SQ0}, v{SQ0}, v{SQ1}
        v_mul_f32 v{SUM0}, 0xbb000000, v{SUM0}
        v_mul_f32 v{SQ0}, 0x3b000000, v{SQ0}
        v_fma_f32 v{SQ0}, -v{SUM0}, v{SUM0}, v{SQ0}
        v_max_f32 v{SQ0}, 0, v{SQ0}
        v_add_f32 v{SQ0}, 0x3727c5ac, v{SQ0}
        v_rsq_f32 v{SQ0}, v{SQ0}
        s_add_u32 s{sT4}, s{sT4}, {L_STAT}
        v_lshl_add_u32 v{vT1}, v{vT1}, 2, s{sT4}
        v_lshl_add_u32 v{vT0}, v{vT0}, 2, s{sT4}
        """)
        k.lds(f"ds_write2_b32 v{vT1}, v{SUM0}, v{SQ0} offset0:0 offset1:32")
        k.lds(f"ds_read2_b32 {vr(NM_A,2)}, v{vT0} offset0:0 offset1:16", "sta")
        k.lds(f"ds_read2_b32 {vr(RS_A,2)}, v{vT0} offset0:32 offset1:48", "sta")
        if need_b:
            stats_b()

    def stats_b():
        k(f"s_lshl_b32 s{sT4}, s{sW}, 8")
        k(f"s_add_u32 s{sT4}, s{sT4}, {L_STAT}")
        k(f"v_and_b32 v{vT1}, 48, v{vLANE}")
        k(f"v_add_u32 v{vT1}, s{sT4}, v{vT1}")
        for rb in range(2):
            k.lds(f"ds_read_b128 {vr(NM_B+4*rb,4)}, v{vT1} offset:{64*rb}", "sta")
            k.lds(f"ds_read_b128 {vr(RS_B+4*rb,4)}, v{vT1} offset:{128+64*rb}", "sta")

    def stats_scale():
        k.ds_wait("sta")
        for j in range(8):
            k(f"v_mul_f32 v{RL_B+j}, 0x3fb8aa3b, v{RS_B+j}")
        for j in range(2):
            k(f"v_mul_f32 v{RL_A+j}, 0x3fb8aa3b, v{RS_A+j}")

    def set_ones(r):
        for j in range(4):
            k(f"v_mov_b32 v{r+j}, {BF1}")

    def cs_add(outacc, blocks):
        k("s_nop 6")
        k(f"v_lshrrev_b32 v{vT0}, 2, v{vL16}")
        k(f"v_add_u32 v{vT0}, {L_CS}, v{vT0}")
        k("s_mov_b64 exec, 0xffff")
        for j, blk in enumerate(blocks):
            k.lds(f"ds_add_f32 v{vT0}, v{outacc+4*j} offset:{blk*64}")
        k("s_mov_b64 exec, -1")

    def phi_block(acc, nm, cs, rl, rs, dst, tmp, lay):
        s1, s2, s3, s4, s5 = [], [], [], [], []
        for p in range(2):
            a2 = vr(acc + 2*p, 2)
            t2 = vr(tmp + 2*p, 2)
            if lay == "b":
                c2, m = bcast(cs, 1, 3)
                s1.append(f"v_pk_fma_f32 {a2}, {vr(nm+2*p,2)}, {c2}, {a2}{m}")
                s2.append(f"v_pk_mul_f32 {t2}, {a2}, {vr(rl+2*p,2)}")
                s4.append(f"v_pk_fma_f32 {a2}, {a2}, {vr(rs+2*p,2)}, {t2}")
            else:
                c2, m = bcast(nm, 1, 3)
                s1.append(f"v_pk_fma_f32 {a2}, {vr(cs+2*p,2)}, {c2}, {a2}{m}")
                c2, m = bcast(rl, 1, 2)
                s2.append(f"v_pk_mul_f32 {t2}, {a2}, {c2}{m}")
                c2, m = bcast(rs, 1, 3)
                s4.append(f"v_pk_fma_f32 {a2}, {a2}, {c2}, {t2}{m}")
            for j in range(2):
                s3.append(f"v_exp_f32 v{tmp+2*p+j}, v{tmp+2*p+j} clamp")
            s5.append(f"v_pk_add_f32 {a2}, {a2}, s[{sEPS}:{sEPS+1}]")
        for s in s1 + s2 + s3:
            k(s)
        for j in range(4):
            k(f"v_max_f32 v{acc+j}, 0, v{acc+j}")
        for s in s4 + s5:
            k(s)
        for p in range(2):
            k(f"v_cvt_pk_bf16_f32 v{dst+p}, v{acc+2*p}, v{acc+2*p+1}")

    def act_loads(bufoff):
        for ks in range(16):
            for rb in range(2):
                with k.atomic():
                    if ks % 4 == 0:
                        k(f"s_add_u32 s{sT2+rb}, s{sACT+rb}, {bufoff + ks*1024}")
                    k.vmem(f"buffer_load_dwordx4 {vr(act(ks,rb),4)}, v{vL16}, {srd(S_WS)}, s{sT2+rb} offen offset:{(ks%4)*1024} sc1",
                           ("act", ks, rb))

    def stat_loads(stoff):
        with k.atomic():
            k(f"s_add_u32 s{sT4}, s{sSTg}, {stoff}")
            for j in range(2):
                k.vmem(f"buffer_load_dwordx4 {vr(STG+4*j,4)}, v{vL16}, {srd(S_WS)}, s{sT4} offen offset:{j*1024} sc1", "stg")

    def stat_sum():
        k.vm_wait("stg")
        for j in range(4):
            k(f"v_add_f32 v{SUM0+j}, v{STG+j}, v{STG+4+j}")

    def mf2(acc, ks, sw, wait, first=None):
        return [(acc + 4 * rb, act(ks, rb), sw, (ks == 0) if first is None else first, ("act", ks, rb) if wait else None) for rb in range(2)]

    def quad_lane(pitch):
        k(f"v_lshrrev_b32 v{vDM}, 3, v{vLANE}")
        k(f"v_and_b32 v{vT2}, 6, v{vDM}")
        k(f"v_xor_b32 v{vT2}, v{vT2}, v{vLANE}")
        k(f"v_and_b32 v{vT2}, 7, v{vT2}")
        k(f"v_lshlrev_b32 v{vT2}, 4, v{vT2}")
        k(f"s_movk_i32 s{sD3}, {pitch}")
        k(f"v_mad_u32_u24 v{vDM}, v{vDM}, s{sD3}, v{vT2}")

    def wo_dma():
        quad_lane(1024)
        k(f"s_lshl_b32 s{sD0}, s{sW}, 17")
        k(f"s_lshl_b32 s{sD1}, s{sCT}, 7")
        k(f"s_add_u32 s{sD0}, s{sD0}, s{sD1}")
        k(f"s_lshl_b32 s{sL0}, s{sW}, 14")
        for j in range(16):
            k.dma(S_WO, vDM, sD0, j * 8 * 1024, sL0, R0 + j * 1024, "wo")

    def w1c1_dma(half):
        quad_lane(3584)
        k(f"s_lshr_b32 s{sD0}, s{sC}, 2")
        k(f"s_mul_i32 s{sD0}, s{sD0}, 896")
        k(f"s_and_b32 s{sD1}, s{sC}, 3")
        k(f"s_lshl_b32 s{sD1}, s{sD1}, 7")
        k(f"s_add_u32 s{sD0}, s{sD0}, s{sD1}")
        k(f"s_mul_i32 s{sD1}, s{sW}, {64*3584}")
        k(f"s_add_u32 s{sD0}, s{sD0}, s{sD1}")
        k(f"s_lshl_b32 s{sL0}, s{sW}, 13")
        for j in range(8):
            k.dma(S_W1, vDM, sD0, (half * 256 + j * 8) * 3584, sL0, R1 + half * 32768 + j * 1024, "w1a")

    def lin_dma(src, dst, n, tag):
        k(f"s_mul_i32 s{sL0}, s{sW}, {n*1024}")
        k(f"s_add_u32 s{sD0}, s{sL0}, s{sPKB}")
        for j in range(n):
            k.dma(S_WS, vL16, sD0, src + j * 1024, sL0, dst + j * 1024, tag, " sc1 nt" if (o.get("ntpk") and tag != "w1c2") else " sc1")

    def publish_x(bufoff, stoff, floff, pay_sc1):
        k(f"s_add_u32 s{sT1}, s{sTILE}, {bufoff}")
        k.stores([f"buffer_store_dwordx4 {vr(vRES+4*s,4)}, v{vL16}, {srd(S_WS)}, s{sT1} offen offset:{s*1024}" for s in range(2)], pay_sc1)
        a, b, c, d = vT0, vT1, vT2, vT3
        for r in (a, b, c, d):
            k(f"v_mov_b32 v{r}, 0")
        for j in range(4):
            r0, r1 = vRES + j, vRES + 4 + j
            k(f"v_dot2c_f32_bf16 v{a}, {BF1}, v{r0}")
            k(f"v_dot2c_f32_bf16 v{b}, v{r0}, v{r0}")
            k(f"v_dot2c_f32_bf16 v{c}, {BF1}, v{r1}")
            k(f"v_dot2c_f32_bf16 v{d}, v{r1}, v{r1}")
        k(f"""
        v_and_b32 v{vWB+8}, 0xff, v{vL16}
        v_lshrrev_b32 v{vWB+9}, 4, v{vLANE}
        v_lshl_add_u32 v{vWB+8}, v{vWB+9}, 2, v{vWB+8}
        v_add_f32 v{a}, v{a}, v{c}
        v_add_f32 v{b}, v{b}, v{d}
        s_add_u32 s{sT3}, s{sSTo}, {stoff}
        s_nop 0
        v_permlane16_swap_b32 v{a}, v{b}
        s_nop 0
        v_add_f32 v{a}, v{a}, v{b}
        v_mov_b32 v{b}, v{a}
        s_nop 1
        v_permlane32_swap_b32 v{a}, v{b}
        s_nop 0
        v_add_f32 v{c}, v{a}, v{b}
        s_mov_b32 exec_hi, 0
        """)
        k.stores([f"buffer_store_dword v{c}, v{vWB+8}, {srd(S_WS)}, s{sT3} offen"], pay_sc1)
        k("s_mov_b64 exec, -1")
        k.poll_prep(15)
        k.flag(sFXo, floff)

    def unpack_res(dst):
        for f in range(4):
            for p in range(2):
                r = vRES + 2*f + p
                k(f"v_lshlrev_b32 v{dst+4*f+2*p}, 16, v{r}")
                k(f"v_and_b32 v{dst+4*f+2*p+1}, 0xffff0000, v{r}")

    def misc_l1():
        k(f"""
        s_add_u32 s{sT2}, s{sTAG}, s{sXCC}
        s_add_u32 s{sT2}, s{sT2}, 2
        v_mov_b32 v{vT1}, s{sT2}
        s_lshl_b32 s{sT2}, s{sG}, 7
        s_lshl2_add_u32 s{sT2}, s{sC}, s{sT2}
        s_add_u32 s{sT2}, s{sT2}, {WS_XID}
        """)
        with k.atomic():
            k("s_mov_b64 exec, 1")
            k.vmem(f"buffer_store_dword v{vT1}, v{vL16}, {srd(S_WS)}, s{sT2} offen sc1", "xid")
            k("s_mov_b64 exec, -1")
        k(f"""
        v_and_b32 v{vT1}, 15, v{vLANE}
        v_lshlrev_b32 v{vT1}, 10, v{vT1}
        v_lshrrev_b32 v{vT0}, 4, v{vLANE}
        v_lshl_add_u32 v{vT2}, v{vT0}, 3, v{vT1}
        s_lshl2_add_u32 s{sT2}, s{sDH}, s{sW}
        s_lshl3_add_u32 s{sT2}, s{sG}, s{sT2}
        s_lshl_b32 s{sT2}, s{sT2}, 14
        s_lshl_b32 s{sT3}, s{sCT}, 7
        s_add_u32 s{sT2}, s{sT2}, s{sT3}
        """)
        for f in range(4):
            k.vmem(f"buffer_load_dwordx2 {vr(vRES+2*f,2)}, v{vT2}, {srd(S_X)}, s{sT2} offen offset:{32*f}", "res")
        k(f"v_lshlrev_b32 v{vT3}, 7, v{vLANE}")
        k(f"s_mul_i32 s{sT2}, s{sW}, 896")
        k(f"s_add_u32 s{sT2}, s{sT2}, s{sGB}")
        with k.atomic():
            k("s_mov_b64 exec, 0x7f")
            k.vmem(f"buffer_load_dword a255, v{vT3}, {srd(S_WS)}, s{sT2} offen sc1", "touch")
            k("s_mov_b64 exec, -1")

    def touch(kind):
        with k.atomic():
            k(f"s_lshl2_add_u32 s{sD2}, s{sC}, s{sW}")
            if kind == "h":
                k(f"s_mul_i32 s{sD2}, s{sD2}, 7168")
                k(f"s_add_u32 s{sD2}, s{sD2}, s{sGB}")
                k(f"s_add_u32 s{sD2}, s{sD2}, {G_H}")
                k(f"v_lshlrev_b32 v{vSP}, 7, v{vLANE}")
                k("s_mov_b32 exec_hi, 0xffffff")
                k.vmem(f"buffer_load_dword a255, v{vSP}, {srd(S_WS)}, s{sD2} offen sc1", "touch")
                k("s_mov_b32 exec_hi, -1")
            else:
                k(f"v_lshlrev_b32 v{vSP}, 13, v{vLANE}")
                k(f"v_and_b32 v{vSP}, 0x60000, v{vSP}")
                k(f"v_lshlrev_b32 v{vSP2}, 3, v{vL16}")
                k(f"v_and_b32 v{vSP2}, 0x780, v{vSP2}")
                k(f"v_add_u32 v{vSP}, v{vSP}, v{vSP2}")
                k(f"s_lshl_b32 s{sT5}, s{sD2}, 11")
                k(f"s_add_u32 s{sT5}, s{sT5}, s{sGB}")
                k(f"s_add_u32 s{sT5}, s{sT5}, {G_O}")
                lo, hi = {"ox": (-1, 0), "oxx": (-1, 0xffff), "x2": (0, 0xffff)}[kind]
                k(f"s_mov_b32 exec_lo, {lo}")
                k(f"s_mov_b32 exec_hi, {hi}")
                k.vmem(f"buffer_load_dword a255, v{vSP}, {srd(S_WS)}, s{sT5} offen sc1", "touch")
                k(f"s_lshl_b32 s{sD2}, s{sD2}, 8")
                k(f"s_add_u32 s{sD2}, s{sD2}, s{sGB}")
                k("s_mov_b64 exec, 3")
                k(f"s_add_u32 s{sD2}, s{sD2}, {G_ST1}")
                k.vmem(f"buffer_load_dword a255, v{vSP2}, {srd(S_WS)}, s{sD2} offen sc1", "touch")
                k("s_mov_b64 exec, -1")

    def pack_issue():
        l2, l3, le = k.label("L_p2"), k.label("L_p3"), k.label("L_pe")
        with k.atomic():
            k(f"s_lshl_b32 s{sL0}, s{sW}, 14")
            k(f"s_cmp_eq_u32 s{sW}, 2")
            k(f"s_cbranch_scc1 {l2}")
            k(f"s_cmp_eq_u32 s{sW}, 3")
            k(f"s_cbranch_scc1 {l3}")
            quad_lane(1024)
            k(f"s_lshl1_add_u32 s{sPU}, s2, s{sW}")
            k(f"s_min_u32 s{sD0}, s{sPU}, 447")
            k(f"s_lshr_b32 s{sD1}, s{sD0}, 3")
            k(f"s_and_b32 s{sD0}, s{sD0}, 7")
            k(f"s_mul_i32 s{sPD}, s{sD0}, 56")
            k(f"s_add_u32 s{sPD}, s{sPD}, s{sD1}")
            k(f"s_lshl_b32 s{sPD}, s{sPD}, 12")
            k(f"s_add_u32 s{sPD}, s{sPD}, {WS_W2T}")
            k(f"s_lshl_b32 s{sD1}, s{sD1}, 15")
            k(f"s_lshl_b32 s{sD0}, s{sD0}, 7")
            k(f"s_add_u32 s{sD0}, s{sD0}, s{sD1}")
            for j in range(4):
                k(f"s_add_u32 m0, s{sL0}, {L_PST + j*1024}")
                k(f"s_add_u32 s{sT5}, s{sD0}, {j*8192}")
                k(f"buffer_load_dwordx4 v{vDM}, {srd(S_W2)}, s{sT5} offen lds")
            k(f"s_branch {le}")
            k(f"{l2}:")
            k(f"s_movk_i32 s{sD3}, 3072")
            k(f"v_mad_u32_u24 v{vDM}, v{vP}, s{sD3}, v{vCH}")
            k(f"s_mul_i32 s{sD0}, s{sG}, {32*3072}")
            k(f"s_lshl_b32 s{sD1}, s{sC}, 6")
            k(f"s_add_u32 s{sD0}, s{sD0}, s{sD1}")
            for pr in range(2):
                for hh in range(2):
                    k(f"s_add_u32 m0, s{sL0}, {L_PST + pr*2048 + hh*1024}")
                    k(f"s_add_u32 s{sT5}, s{sD0}, {hh*16*3072 + 1024*(pr+1)}")
                    k(f"buffer_load_dwordx4 v{vDM}, {srd(S_WQKV)}, s{sT5} offen lds")
            k(f"s_branch {le}")
            k(f"{l3}:")
            k(f"s_movk_i32 s{sD3}, 3072")
            k(f"v_mad_u32_u24 v{vDM}, v{vP}, s{sD3}, v{vCH}")
            k(f"s_mul_i32 s{sD0}, s{sG}, {32*3072}")
            k(f"s_lshl_b32 s{sD1}, s{sC}, 6")
            k(f"s_add_u32 s{sD0}, s{sD0}, s{sD1}")
            for hh in range(2):
                k(f"s_add_u32 m0, s{sL0}, {L_PST + hh*1024}")
                k(f"s_add_u32 s{sT5}, s{sD0}, {hh*16*3072}")
                k(f"buffer_load_dwordx4 v{vDM}, {srd(S_WQKV)}, s{sT5} offen lds")
            k(f"s_movk_i32 s{sD3}, 3584")
            k(f"v_mad_u32_u24 v{vDM}, v{vP}, s{sD3}, v{vCH}")
            k(f"s_lshr_b32 s{sD0}, s{sC}, 2")
            k(f"s_mul_i32 s{sD0}, s{sD0}, 896")
            k(f"s_mul_i32 s{sD1}, s{sG}, {32*3584}")
            k(f"s_add_u32 s{sD0}, s{sD0}, s{sD1}")
            k(f"s_and_b32 s{sD2}, s{sC}, 3")
            k(f"s_mul_i32 s{sD1}, s{sD2}, 3")
            k(f"s_add_u32 s{sD1}, s{sD1}, 17")
            k(f"s_lshr_b32 s{sD1}, s{sD1}, 1")
            k(f"s_lshl_b32 s{sD1}, s{sD1}, 6")
            k(f"s_add_u32 s{sD1}, s{sD1}, s{sD0}")
            for hh in range(2):
                k(f"s_add_u32 m0, s{sL0}, {L_PST + 2048 + hh*1024}")
                k(f"s_add_u32 s{sT5}, s{sD1}, {hh*16*3584}")
                k(f"buffer_load_dwordx4 v{vDM}, {srd(S_W1)}, s{sT5} offen lds")
            k(f"s_lshr_b32 s{sD1}, s{sD2}, 1")
            k(f"s_mul_i32 s{sD1}, s{sD1}, 6")
            k(f"s_and_b32 s{sD2}, s{sD2}, 1")
            k(f"s_add_u32 s{sD1}, s{sD1}, s{sD2}")
            k(f"s_add_u32 s{sD1}, s{sD1}, 18")
            k(f"s_lshl_b32 s{sD1}, s{sD1}, 5")
            k(f"s_add_u32 s{sT5}, s{sD1}, s{sD0}")
            k(f"v_lshrrev_b32 v{vDM}, 1, v{vLANE}")
            k(f"v_and_b32 v{vT2}, 16, v{vL16}")
            k(f"v_mad_u32_u24 v{vDM}, v{vDM}, s{sD3}, v{vT2}")
            k(f"s_add_u32 m0, s{sL0}, {L_PST + 4096}")
            k("s_nop 0")
            k(f"buffer_load_dwordx4 v{vDM}, {srd(S_W1)}, s{sT5} offen lds")
            k(f"{le}:")
            k.vm_note(4, "pk")

    def pack_finish(T):
        l2, l3, le = k.label("L_q2"), k.label("L_q3"), k.label("L_qe")
        k(f"s_lshl_b32 s{sL0}, s{sW}, 14")
        k(f"s_add_u32 s{sL0}, s{sL0}, {L_PST}")
        k(f"s_cmp_ge_u32 s{sW}, 2")
        k(f"s_cbranch_scc1 {l2}")
        k(f"s_cmp_ge_u32 s{sPU}, 448")
        k(f"s_cbranch_scc1 {le}")
        for f in range(4):
            k(f"v_add_u32 v{vT0+f}, s{sL0}, v{vQ0+f}")
        for f in range(4):
            for hh in range(2):
                k(f"ds_read_b64_tr_b16 {vr(T+4*f+2*hh,2)}, v{vT0+f} offset:{hh*2048}")
        k("s_waitcnt lgkmcnt(0)")
        for f in range(4):
            k(f"buffer_store_dwordx4 {vr(T+4*f,4)}, v{vL16}, {srd(S_WS)}, s{sPD} offen offset:{f*1024} sc1")
        k(f"s_branch {le}")
        k(f"{l2}:")
        k(f"v_add_u32 v{vT0}, s{sL0}, v{vTR0}")
        k(f"v_add_u32 v{vT1}, s{sL0}, v{vTR1}")
        k(f"v_lshl_add_u32 v{vT2}, v{vLANE}, 3, s{sL0}")
        for f in range(4):
            for hh in range(2):
                k(f"ds_read_b64_tr_b16 {vr(T+4*f+2*hh,2)}, v{vT0+(f&1)} offset:{(f>>1)*2048+hh*1024}")
        for hh in range(2):
            k(f"ds_read_b64_tr_b16 {vr(T+16+2*hh,2)}, v{vT2} offset:{4096+hh*512}")
        k(f"s_cmp_eq_u32 s{sW}, 3")
        k(f"s_cbranch_scc1 {l3}")
        k(f"s_lshl_b32 s{sD0}, s{sG}, 12")
        k(f"s_add_u32 s{sD0}, s{sD0}, s{sPKB}")
        k("s_waitcnt lgkmcnt(0)")
        for f in range(4):
            k(f"buffer_store_dwordx4 {vr(T+4*f,4)}, v{vL16}, {srd(S_WS)}, s{sD0} offen offset:{f*1024} sc1")
        k(f"s_branch {le}")
        k(f"{l3}:")
        k(f"s_lshl_b32 s{sD0}, s{sG}, 11")
        k(f"s_add_u32 s{sD0}, s{sD0}, s{sPKB}")
        k(f"s_add_u32 s{sD0}, s{sD0}, {PK_Q}")
        k(f"s_mul_i32 s{sD1}, s{sG}, 3072")
        k(f"s_add_u32 s{sD1}, s{sD1}, s{sPKB}")
        k(f"s_add_u32 s{sD1}, s{sD1}, {PK_W1}")
        k("s_waitcnt lgkmcnt(0)")
        for f in range(2):
            k(f"buffer_store_dwordx4 {vr(T+4*f,4)}, v{vL16}, {srd(S_WS)}, s{sD0} offen offset:{f*1024} sc1")
        for f in range(3):
            k(f"buffer_store_dwordx4 {vr(T+8+4*f,4)}, v{vL16}, {srd(S_WS)}, s{sD1} offen offset:{f*1024} sc1")
        k(f"{le}:")

    def wq_raw():
        k(f"s_lshl_b32 s{sL1}, s{sW}, 11")
        for r in range(4):
            for hh in range(2):
                k.dma(S_WQKV, vDM, sRB + r, hh * 4 * 3072, sL1, R1 + r * 8192 + hh * 1024, "wq")

    def pack_flag():
        lw, le = k.label("L_f2"), k.label("L_fe")
        with k.atomic():
            k(f"s_cmp_ge_u32 s{sW}, 2")
            k(f"s_cbranch_scc1 {lw}")
            k(f"s_cmp_ge_u32 s{sPU}, 448")
            k(f"s_cbranch_scc1 {le}")
            k(f"s_and_b32 s{sD0}, s{sPU}, 7")
            k(f"s_lshl_b32 s{sD0}, s{sD0}, 8")
            k(f"s_lshr_b32 s{sD1}, s{sPU}, 3")
            k(f"s_lshl2_add_u32 s{sD0}, s{sD1}, s{sD0}")
            k(f"s_add_u32 s{sD0}, s{sD0}, {WS_W2F}")
            k(f"s_branch {lw}_st")
            k(f"{lw}:")
            k(f"s_lshl1_add_u32 s{sD0}, s{sG}, s{sW}")
            k(f"s_lshl_b32 s{sD1}, s{sC}, 7")
            k(f"s_lshl2_add_u32 s{sD0}, s{sD0}, s{sD1}")
            k(f"s_add_u32 s{sD0}, s{sD0}, {WS_PF - 8}")
            k(f"{lw}_st:")
            k(f"v_mov_b32 v{vT1}, s{sTAG}")
            k("s_mov_b64 exec, 1")
            k(f"buffer_store_dword v{vT1}, v{vL16}, {srd(S_WS)}, s{sD0} offen sc1")
            k("s_mov_b64 exec, -1")
            k(f"{le}:")

    def pack_check():
        k(f"s_lshl_b32 s{sD0}, s{sC}, 7")
        k(f"s_add_u32 s{sD0}, s{sD0}, {WS_PF}")
        k(f"s_lshl_b32 s{sD1}, s{sCT}, 8")
        k(f"s_mul_i32 s{sD2}, s{sW}, 56")
        k(f"s_add_u32 s{sD1}, s{sD1}, s{sD2}")
        k(f"s_add_u32 s{sD1}, s{sD1}, {WS_W2F - 128}")
        k(f"v_min_u32 v{vT2}, 45, v{vLANE}")
        k(f"v_lshlrev_b32 v{vT2}, 2, v{vT2}")
        k(f"v_add_u32 v{vT3}, s{sD0}, v{vT2}")
        k("s_mov_b32 exec_lo, 0")
        k(f"v_add_u32 v{vT3}, s{sD1}, v{vT2}")
        k("s_mov_b32 exec_lo, -1")
        k(f"s_mov_b32 s{sD0}, 0")
        k.poll(sD0, 0, False)

    for layer in range(1 if o.get("one") else 2):
        L1 = layer == 0
        pay_sc1 = (L1 and not o.get("l1plain", 0)) or o.get("allsc1", 0)
        PRE = o.get("pre", 8)
        if L1:
            CSA = vACC + 32
            set_ones(ONES)
            k(f"v_add_u32 v{vPQ+2}, s{sL1}, v{vTR0}")
            k(f"v_add_u32 v{vPQ+3}, s{sL1}, v{vTR1}")
            xslot(0, range(2, 8)); xslot(1); wkv_raw(1)
            k.stamp("issued")
            xread(0)
            k.ds_all(True)
            k.stamp("x0")
            k(f"s_mul_i32 s{sTAG}, s{sEP}, 0x9E3779B1")
            k(f"s_add_u32 s{sTAG}, s{sTAG}, 0x7F4A7C15")

            def rnd(r, fill):
                k.vm_wait(("wkv", r))
                k.barrier(True)
                fr = []
                for ks in range(4 * r, 4 * r + 4):
                    for pr in range(2):
                        for b in range(2):
                            base = R0 + ks * 4096 + pr * 2048
                            fr.append(dict(addr=(vTR0, vTR1)[b], offs=(base, base + 1024), mf=mf2(vACC + 16 * pr + 8 * b, ks, False, False)))
                for pr in range(2):
                    for b in range(2):
                        base = R0 + r * 16384 + pr * 2048
                        fr.append(dict(addr=vPQ + 2 + b, offs=(base, base + 1024), mf=[(CSA + 8 * pr + 4 * b, ONES, False, r == 0, None)]))
                k.gemm(fr, fill)
            f = {}; spread(f, k.rec(lambda: xslot(2)), 0, 2); xstats(0, f)
            f = {}; spread(f, k.rec(lambda: xread(1)), 30, 1, 2); rnd(0, f)
            k.stamp("r0")
            f = {}; spread(f, k.rec(lambda: xslot(3)), 0, 2); xstats(1, f)
            f = {}; spread(f, k.rec(lambda: (wkv_raw(2), wkv_raw(3))), 0, 4); spread(f, k.rec(lambda: xread(2)), 31, 1, 2); rnd(1, f)
            k.stamp("r1")
            f = {}; spread(f, k.rec(lambda: xread(3)), 7, 1); xstats(2, f)
            f = {}; spread(f, k.rec(cs_zero), 2, 1); spread(f, k.rec(wq_raw), 3, 1.5); xstats(3, f)
            f = {}; spread(f, k.rec(lambda: (xstats_extract(), stats_finalize(False))), 0, 1); rnd(2, f)
            k.stamp("r2")
            f = {}; spread(f, k.rec(lambda: (misc_l1(), pack_issue())), 0, 1); rnd(3, f)
            k.stamp("A.kv")
            cs_add(CSA, [0, 1, 2, 3])
            stats_b()
            k.barrier()
            stats_scale()
            k.stamp("A.cs")
        else:
            k.poll(sFXp, G_FX2)
            k.stamp("A.poll")
            k(f"s_add_u32 s{sTAG}, s{sTAG}, 1")
            al = k.rec(lambda: act_loads(G_X2))
            k.play(al[:PRE])
            stat_loads(G_ST2)
            fill = {}
            e = spread(fill, al[PRE:], 0, 4)
            spread(fill, k.rec(lambda: (stat_sum(), stats_finalize(True))), 18, 2)
            spread(fill, k.rec(stats_scale), 106, 2)
            w1b = k.rec(lambda: w1c1_dma(1))
            spread(fill, w1b[:15], e - 16, 1)
            spread(fill, w1b[15:], e, 4)
            fr = []
            for ks in range(16):
                for b in range(4):
                    fr.append(dict(addr=vL16, offs=(R0 + ks * 4096 + b * 1024,), mf=mf2(vACC + 8 * b, ks, False, True)))
            k.gemm(fr, fill)
            k.stamp("A.kv")
        CS = vT0
        k(f"v_and_b32 v{vWB+24}, 15, v{vLANE}")
        k(f"v_lshlrev_b32 v{vWB+24}, 2, v{vWB+24}")
        k(f"v_add_u32 v{vWB+24}, {L_CS}, v{vWB+24}")
        k.lds(f"ds_read2_b32 {vr(CS,2)}, v{vWB+24} offset0:0 offset1:16")
        k.lds(f"ds_read2_b32 {vr(CS+2,2)}, v{vWB+24} offset0:32 offset1:48")
        set_ones(vWB + 28)
        k.ds_all()
        PK, PV, TMP = vPQ, vACC, vWB + 24
        for h in range(2):
            for rb in range(2):
                phi_block(vACC + 8*h + 4*rb, NM_B + 4*rb, CS + h, RL_B + 4*rb, RS_B + 4*rb, PK + 4*h + 2*rb, TMP, "b")
        for h in range(2):
            for rb in range(2):
                a = vACC + 16 + 8*h + 4*rb
                c2, m = bcast(CS + 2 + h, 1, 3)
                for p in range(2):
                    k(f"v_pk_fma_f32 {vr(a+2*p,2)}, {vr(NM_B+4*rb+2*p,2)}, {c2}, {vr(a+2*p,2)}{m}")
                for p in range(2):
                    k(f"v_pk_mul_f32 {vr(a+2*p,2)}, {vr(a+2*p,2)}, {vr(RS_B+4*rb+2*p,2)}")
                for p in range(2):
                    k(f"v_cvt_pk_bf16_f32 v{PV+4*h+2*rb+p}, v{a+2*p}, v{a+2*p+1}")
        KRB, KRS = (R2 + 8192, 14) if L1 else (R3, 12)
        k(f"s_lshl_b32 s{sT2}, s{sW}, 10")
        k(f"s_add_u32 s{sT2}, s{sT2}, {KRB}")
        k(f"v_add_u32 v{vT0}, s{sT2}, v{vL16}")
        KVA = vACC + 16
        for h in range(2):
            k(f"v_mfma_f32_16x16x32_bf16 {vr(KVA+8*h,4)}, {vr(PK+4*h,4)}, {vr(PV+4*h,4)}, 0")
            k(f"v_mfma_f32_16x16x32_bf16 {vr(KVA+8*h+4,4)}, {vr(vWB+28,4)}, {vr(PK+4*h,4)}, 0")
        k(f"s_lshl_b32 s{sT2}, s{sW}, {KRS}")
        k(f"s_add_u32 s{sT2}, s{sT2}, {KRB}")
        k(f"v_add_u32 v{vT1}, s{sT2}, v{vL16}")
        k("s_nop 3")
        for h in range(2):
            k.lds(f"ds_write_b64 v{vT0}, {vr(KVA+8*h,2)} offset:{(2*h) << KRS}")
            k.lds(f"ds_write_b96 v{vT0}, {vr(KVA+8*h+2,3)} offset:{(2*h+1) << KRS}")
        if L1:
            k.vm_wait("wq")
        k.barrier()
        for s in range(4):
            k.lds(f"ds_read_b128 {vr(vWB+4*s,4)}, v{vT1} offset:{s*1024}", ("kr", s))
        k.ds_wait(("kr", 1))
        k(f"v_pk_add_f32 {vr(vWB,2)}, {vr(vWB,2)}, {vr(vWB+4,2)}")
        k(f"v_add_f32 v{vWB+2}, v{vWB+2}, v{vWB+6}")
        k.ds_wait(("kr", 3))
        k(f"v_pk_add_f32 {vr(vWB+8,2)}, {vr(vWB+8,2)}, {vr(vWB+12,2)}")
        k(f"v_add_f32 v{vWB+10}, v{vWB+10}, v{vWB+14}")
        k(f"v_mov_b32 v{vACC+35}, s{sTAG}")
        k(f"v_pk_add_f32 {vr(vACC+32,2)}, {vr(vWB,2)}, {vr(vWB+8,2)}")
        k(f"v_add_f32 v{vACC+34}, v{vWB+2}, v{vWB+10}")
        k.vmem(f"buffer_store_dwordx4 {vr(vACC+32,4)}, v{vL16}, {srd(S_WS)}, s{sKVP} offen sc1", "kvst")
        k.stamp("A.kvpub")
        fill = {}
        if o.get("tq", 0):
            spread(fill, k.rec(lambda: touch("ox")), 0, 1)
        if o.get("th", 0) == 2:
            spread(fill, k.rec(lambda: touch("h")), 2, 1)
        wod = k.rec(wo_dma)
        spread(fill, wod[:11], 0, 1, 2)
        e = spread(fill, wod[11:], 6, 4)
        fr = []
        if L1:
            set_ones(ONES)
            k(f"v_add_u32 v{vPQ}, {R1}, v{vTR0}")
            k(f"v_add_u32 v{vPQ+1}, {R1}, v{vTR1}")
            k(f"s_lshl_b32 s{sT2}, s{sW}, 13")
            k(f"v_add_u32 v{vPQ+2}, s{sT2}, v{vPQ}")
            k(f"v_add_u32 v{vPQ+3}, s{sT2}, v{vPQ+1}")
            for j in range(4):
                for b in range(2):
                    fr.append(dict(addr=vPQ + 2 + b, offs=(j * 2048, j * 2048 + 1024), mf=[(vACC + 16 + 4 * b, ONES, False, j == 0, None)]))
            for ks in range(16):
                for b in range(2):
                    fr.append(dict(addr=vPQ + b, offs=(ks * 2048, ks * 2048 + 1024), mf=mf2(vACC + 8 * b, ks, True, False)))
            k.gemm(fr, fill)
            cs_add(vACC + 16, [4, 5])
            k.vm_wait("pk")
            k.ds_all()
            pack_finish(vACC + 24)
            k.barrier()
        else:
            k(f"v_add_u32 v{vPQ}, {R1}, v{vL16}")
            for ks in range(16):
                for b in range(2):
                    fr.append(dict(addr=vPQ, offs=(ks * 2048 + b * 1024,), mf=mf2(vACC + 8 * b, ks, True, False)))
            k.gemm(fr, fill)
        k(f"v_and_b32 v{vT0}, 48, v{vLANE}")
        k(f"v_add_u32 v{vT0}, {L_CS}, v{vT0}")
        for h in range(2):
            k.lds(f"ds_read_b128 {vr(vWB+8+4*h,4)}, v{vT0} offset:{(4+h)*64}")
        k("s_nop 3")
        k.ds_all()
        for h in range(2):
            for rb in range(2):
                phi_block(vACC + 8*h + 4*rb, NM_A + rb, vWB + 8 + 4*h, RL_A + rb, RS_A + rb, vPQ + 4*h + 2*rb, vWB, "a")
        k.stamp("A.q")
        if L1:
            lp, done = k.label("L_xp"), k.label("L_xd")
            k(f"s_lshl_b32 s{sT4}, s{sG}, 7")
            k(f"s_add_u32 s{sT4}, s{sT4}, {WS_XID}")
            k(f"s_add_u32 s{sT3}, s{sTAG}, 2")
            k.poll_prep(15)
            k(f"{lp}:")
            k(f"buffer_load_dword v{vT0}, v{vT3}, {srd(S_WS)}, s{sT4} offen sc1")
            k.vm_all()
            k(f"v_subrev_u32 v{vT0}, s{sT3}, v{vT0}")
            k(f"v_cmp_lt_u32 vcc, 8, v{vT0}")
            k(f"s_cbranch_vccz {done}")
            k(f"s_sub_u32 s{sBUD}, s{sBUD}, 1")
            k(f"s_cbranch_scc0 {lp}")
            k(f"s_mov_b32 s{sBUD}, 0")
            k(f"{done}:")
            k(f"v_cmp_ne_u32 vcc, s{sXCC}, v{vT0}")
            k("s_nop 4")
            k(f"s_or_b32 s{sSLOW}, vcc_lo, {1 if o.get('forceslow') else 0}")
            pack_flag()
        lp, done = k.label("L_kp"), k.label("L_kd")
        k(f"{lp}:")
        for j in range(16):
            if j % 4 == 0:
                k(f"s_add_u32 s{sT2}, s{sKVC}, {j*1024}")
            k.vmem(f"buffer_load_dwordx4 {vr(vACT+4*j,4)}, v{vL16}, {srd(S_WS)}, s{sT2} offen offset:{(j%4)*1024} sc1{' nt' if o.get('ntkv') else ''}", ("kv", j))
        SM = vWB
        for j in range(0, 16, 2):
            a, b = vACT + 4*j, vACT + 4*j + 4
            k.vm_wait(("kv", j + 1))
            if j == 0:
                k(f"v_pk_add_f32 {vr(SM,2)}, {vr(a,2)}, {vr(b,2)}")
                k(f"v_add_f32 v{SM+2}, v{a+2}, v{b+2}")
                k(f"v_min_u32 v{SM+4}, v{a+3}, v{b+3}")
                k(f"v_max_u32 v{SM+5}, v{a+3}, v{b+3}")
            else:
                k(f"v_pk_add_f32 {vr(a,2)}, {vr(a,2)}, {vr(b,2)}")
                k(f"v_add_f32 v{a+2}, v{a+2}, v{b+2}")
                k(f"v_min3_u32 v{SM+4}, v{a+3}, v{b+3}, v{SM+4}")
                k(f"v_max3_u32 v{SM+5}, v{a+3}, v{b+3}, v{SM+5}")
                k(f"v_pk_add_f32 {vr(SM,2)}, {vr(SM,2)}, {vr(a,2)}")
                k(f"v_add_f32 v{SM+2}, v{SM+2}, v{a+2}")
        k(f"v_xor_b32 v{SM+4}, s{sTAG}, v{SM+4}")
        k(f"v_xor_b32 v{SM+5}, s{sTAG}, v{SM+5}")
        k(f"v_or_b32 v{SM+4}, v{SM+4}, v{SM+5}")
        k(f"v_cmp_ne_u32 vcc, 0, v{SM+4}")
        k(f"s_cbranch_vccz {done}")
        k(f"s_sub_u32 s{sBUD}, s{sBUD}, 4")
        k(f"s_cbranch_scc0 {lp}")
        k(f"s_mov_b32 s{sBUD}, 0")
        k(f"{done}:")
        k.stamp("A.kvget")
        k(f"""
        v_cvt_pk_bf16_f32 v{SM}, v{SM}, v{SM+1}
        v_cvt_pk_bf16_f32 v{SM+2}, v{SM+2}, v{SM+2}
        s_lshr_b32 s{sT2}, s{sW}, 1
        s_lshl_b32 s{sT2}, s{sT2}, 9
        s_and_b32 s{sT3}, s{sW}, 1
        s_lshl2_add_u32 s{sT2}, s{sT3}, s{sT2}
        s_add_u32 s{sT2}, s{sT2}, {L_XB}
        v_lshl_add_u32 v{vT0}, v{vLANE}, 3, s{sT2}
        s_lshl_b32 s{sT2}, s{sW}, 5
        s_add_u32 s{sT2}, s{sT2}, {L_ZB}
        v_and_b32 v{vT1}, 15, v{vLANE}
        v_lshl_add_u32 v{vT1}, v{vT1}, 1, s{sT2}
        """)
        k.lds(f"ds_write_b32 v{vT0}, v{SM}")
        k.lds(f"ds_write_b16 v{vT1}, v{SM+2}")
        k(f"v_lshlrev_b32 v{vT0}, 3, v{vLANE}")
        k(f"v_add_u32 v{vT0}, {L_XB}, v{vT0}")
        k(f"v_lshrrev_b32 v{vT1}, 4, v{vLANE}")
        k(f"v_lshlrev_b32 v{vT1}, 3, v{vT1}")
        k(f"v_add_u32 v{vT1}, {L_ZB}, v{vT1}")
        k.barrier()
        for h in range(2):
            k.lds(f"ds_read_b64 {vr(vWB+4*h,2)}, v{vT0} offset:{512*h}")
            k.lds(f"ds_read_b64 {vr(vWB+4*h+2,2)}, v{vT1} offset:{(2*h+1)*32}")
        w1a = k.rec(lambda: w1c1_dma(0))
        if L1:
            w1a += k.rec(lambda: w1c1_dma(1))[15:]
        k.play(w1a[:15])
        k.ds_all()
        OA = vACC + 16
        for rb in range(2):
            for h in range(2):
                d = OA + 16*rb + 8*h
                k(f"v_mfma_f32_16x16x16_bf16 {vr(d+4,4)}, {vr(vWB+4*h+2,2)}, {vr(vPQ+4*h+2*rb,2)}, 0")
                k(f"v_mfma_f32_16x16x16_bf16 {vr(d,4)}, {vr(vWB+4*h,2)}, {vr(vPQ+4*h+2*rb,2)}, 0")
        k("s_nop 1")
        for rb in range(2):
            for h in range(2):
                d = OA + 16*rb + 8*h
                k(f"v_add_f32 v{d+4}, s{sEPS}, v{d+4}")
                k("s_nop 0")
        for rb in range(2):
            for h in range(2):
                d = OA + 16*rb + 8*h
                k(f"v_rcp_f32 v{d+4}, v{d+4}")
        k("s_nop 0")
        for rb in range(2):
            for h in range(2):
                d = OA + 16*rb + 8*h
                for p in range(2):
                    k(f"v_pk_mul_f32 {vr(d+2*p,2)}, {vr(d+2*p,2)}, {vr(d+4,2)} op_sel_hi:[1,0]")
                for p in range(2):
                    k(f"v_cvt_pk_bf16_f32 v{vPQ+4*rb+2*h+p}, v{d+2*p}, v{d+2*p+1}")
        k.stores([f"buffer_store_dwordx4 {vr(vPQ+4*rb,4)}, v{vL16}, {srd(S_WS)}, s{sOST+rb} offen" for rb in range(2)], pay_sc1)
        nb = o.get("w1a_pre", 4)
        k.play(w1a[15:15+nb])
        unpack_res(vACC)
        k.poll_prep(15)
        k.flag(sFOo, G_FO)
        k.stamp("A.opub")
        k.poll(sFOp, G_FO)
        k.stamp("B.poll")

        def b_loads():
            for ks in range(16):
                with k.atomic():
                    if ks % 4 == 0:
                        k(f"s_add_u32 s{sT2}, s{sBACT}, {G_O + ks*1024}")
                    k.vmem(f"buffer_load_dwordx4 {vr(vACT+4*ks,4)}, v{vL16}, {srd(S_WS)}, s{sT2} offen offset:{(ks%4)*1024} sc1", ("act", ks))
        bl = k.rec(b_loads)
        k.play(bl[:PRE])
        fill = {}
        e = spread(fill, bl[PRE:], 0, 3)
        spread(fill, w1a[15+nb:], e, 4)
        fr = []
        for ks in range(16):
            for f in range(4):
                fr.append(dict(addr=vQ0 + f, offs=(R0 + ks * 4096, R0 + ks * 4096 + 2048),
                               mf=[(vACC + 4 * f, vACT + 4 * ks, True, False, ("act", ks))]))
        k.gemm(fr, fill, D=7)
        k.stamp("B.mm")
        k("s_barrier")
        for f in range(4):
            k(f"v_add_u32 v{vQ0+f}, {R1}, v{vQ0+f}")
        k("s_nop 2")
        for f in range(4):
            for p in range(2):
                k(f"v_cvt_pk_bf16_f32 v{vRES+2*f+p}, v{vACC+4*f+2*p}, v{vACC+4*f+2*p+1}")
        publish_x(G_X1, G_ST1, G_FX1, pay_sc1)
        k.stamp("B.pub")
        k("s_barrier")
        if L1:
            pack_check()
            k.poll_prep(15)
        w1c2 = k.rec(lambda: lin_dma(PK_W1, R0, 12, "w1c2"))
        nc = o.get("w1c2_pre", 6)
        k.play(w1c2[:2+nc])
        if L1:
            set_ones(ONES)
            k(f"s_lshl_b32 s{sT2}, s{sW}, 14")
            for f in range(4):
                k(f"v_add_u32 v{vPQ+f}, s{sT2}, v{vQ0+f}")
            fr = []
            for j in range(4):
                for f in range(4):
                    fr.append(dict(addr=vPQ + f, offs=(j * 4096, j * 4096 + 2048), mf=[(vACC + 4 * f, ONES, False, j == 0, None)]))
            k.gemm(fr, D=7)
            cs_add(vACC, [6, 7, 8, 9])
        k.poll(sFXp, G_FX1)
        k.stamp("C.poll")
        al = k.rec(lambda: act_loads(G_X1))
        k.play(al[:PRE])
        stat_loads(G_ST1)
        fill = {}
        e = spread(fill, al[PRE:], 0, 4)
        spread(fill, k.rec(lambda: (stat_sum(), stats_finalize(False))), 18, 3)
        e = spread(fill, w1c2[2+nc:], e, 3)
        fr = []
        for ks in range(16):
            for f in range(4):
                fr.append(dict(addr=vQ0 + f, offs=(ks * 4096, ks * 4096 + 2048), mf=mf2(vACC + 8 * f, ks, True, True)))
        k.gemm(fr, fill)
        k.stamp("C.mm1")
        for f in range(4):
            k(f"v_subrev_u32 v{vQ0+f}, {R1}, v{vQ0+f}")
        k.vm_wait("w1c2")
        k.barrier()

        def relu_block(acc, cs, rb, dst, scalar=False):
            if scalar:
                for j in range(4):
                    k(f"v_fmac_f32 v{acc+j}, v{cs+j}, v{NM_A+rb}")
                for j in range(4):
                    k(f"v_mul_f32 v{acc+j}, v{acc+j}, v{RS_A+rb}")
                for p in range(2):
                    k(f"v_cvt_pk_bf16_f32 v{dst+p}, v{acc+2*p}, v{acc+2*p+1}")
                for p in range(2):
                    k(f"v_pk_max_i16 v{dst+p}, v{dst+p}, 0")
                return
            c2, m = bcast(NM_A + rb, 1, 3)
            for p in range(2):
                k(f"v_pk_fma_f32 {vr(acc+2*p,2)}, {vr(cs+2*p,2)}, {c2}, {vr(acc+2*p,2)}{m}")
            c2, m = bcast(RS_A + rb, 1, 2)
            for p in range(2):
                k(f"v_pk_mul_f32 {vr(acc+2*p,2)}, {vr(acc+2*p,2)}, {c2}{m}")
            for p in range(2):
                k(f"v_cvt_pk_bf16_f32 v{dst+p}, v{acc+2*p}, v{acc+2*p+1}")
            for p in range(2):
                k(f"v_pk_max_i16 v{dst+p}, v{dst+p}, 0")

        def epi1():
            k(f"v_and_b32 v{vT0}, 48, v{vLANE}")
            k(f"v_add_u32 v{vT0}, {L_CS}, v{vT0}")
            for s in range(2):
                for b in range(2):
                    k.lds(f"ds_read_b128 {vr(vPQ+4*b,4)}, v{vT0} offset:{(6+2*s+b)*64}", "cs")
                k("s_nop 0")
                k("s_nop 0")
                k("s_nop 0")
                k.ds_wait("cs")
                for rb in range(2):
                    for b in range(2):
                        relu_block(vACC + 16*s + 8*b + 4*rb, vPQ + 4*b, rb, vACC + 16*s + 4*rb + 2*b, True)
                k.stores([f"buffer_store_dwordx4 {vr(vACC+16*s+4*rb,4)}, v{vL16}, {srd(S_WS)}, s{sH1+rb} offen offset:{s*1024}"
                          for rb in range(2)], pay_sc1)

        def w2t_loads():
            k(f"s_lshl2_add_u32 s{sD0}, s{sCT}, s{sW}")
            k(f"s_mul_i32 s{sD0}, s{sD0}, 57344")
            k(f"s_add_u32 s{sD0}, s{sD0}, {WS_W2T}")
            for j in range(56):
                with k.atomic():
                    if j % 4 == 0:
                        k(f"s_add_u32 s{sD1}, s{sD0}, {j*1024}")
                    k.vmem(f"buffer_load_dwordx4 {ar(4*j,4)}, v{vL16}, {srd(S_WS)}, s{sD1} offen offset:{(j%4)*1024} sc1{' nt' if o.get('ntw2') else ''}", ("w2t", j // 4))
        C2 = vACC + 32
        fill = {}
        fr = []
        m0 = 0
        if L1:
            set_ones(ONES)
            k(f"s_mul_i32 s{sT2}, s{sW}, {4*3072}")
            k(f"v_add_u32 v{vPQ}, s{sT2}, v{vL16}")
            fc = []
            for j in range(4):
                for b in range(3):
                    fc.append(dict(addr=vPQ, offs=(R0 + j * 3072 + b * 1024,), mf=[(C2 + 4 * b, ONES, False, j == 0, None)]))
            k.gemm(fc, D=7)
            cs_add(C2, [10, 11, 12])
            k.ds_all()
        if o.get("th", 0) == 1:
            spread(fill, k.rec(lambda: touch("h")), 0, 1)
        if o.get("th", 0) and L1:
            spread(fill, k.rec(lambda: touch("x2")), 1, 1)
        e1 = k.rec(epi1)
        e = spread(fill, e1, 0, 2 / 3)
        fl1 = k.rec(lambda: k.flag(sFHo, G_FH))
        spread(fill, fl1, min(e + o.get("fl1", 16), 95), 1)
        if L1:
            w2 = k.rec(w2t_loads)
            nw2 = o.get("nw2", 24)
            spread(fill, w2[:3 + nw2], 0, 96 / (3 + nw2))
        for ks in range(16):
            for b in range(3):
                fr.append(dict(addr=vL16, offs=(R0 + ks * 3072 + b * 1024,), mf=mf2(C2 + 8 * b, ks, True, False)))
        k.gemm(fr, fill)
        k.stamp("C.mm2")
        k.barrier()
        k(f"v_and_b32 v{vT0}, 48, v{vLANE}")
        k(f"v_add_u32 v{vT0}, {L_CS}, v{vT0}")
        for b in range(3):
            k.lds(f"ds_read_b128 {vr(vWB+4*b,4)}, v{vT0} offset:{(10+b)*64}")
        for j in range(4):
            k(f"s_add_u32 s{sT0}, s{sW}, {j}")
            k(f"s_and_b32 s{sT0}, s{sT0}, 3")
            k(f"s_lshl2_add_u32 s{sT0}, s{sDH}, s{sT0}")
            k(f"s_lshl2_add_u32 s{sT0}, s{sT0}, s{sW}")
            k(f"s_mul_i32 s{sT0}, s{sT0}, 14336")
            k(f"s_add_u32 s{sT0}, s{sT0}, s{sGB}")
            k(f"s_add_u32 s{sRB+j}, s{sT0}, {G_H}")
        k.ds_all()
        HO = vWB + 16
        for rb in range(2):
            for b in range(3):
                relu_block(C2 + 8*b + 4*rb, vWB + 4*b, rb, HO + 8*rb + 2*b)
        its = []
        for rb in range(2):
            its.append(f"buffer_store_dwordx4 {vr(HO+8*rb,4)}, v{vL16}, {srd(S_WS)}, s{sH2+rb} offen")
            its.append(f"buffer_store_dwordx2 {vr(HO+8*rb+4,2)}, v{vL16}, {srd(S_WS)}, s{sH3+rb} offen")
        k.stores(its, pay_sc1)
        k.stamp("C.st2")
        k.poll_prep(7)
        k.poll(sFHp, G_FH)
        k.vm_note(1, "st")
        k.flag(sFHo, G_FH + 1024)
        k.stamp("D.poll1")

        def hload(t):
            ksl, j = divmod(t, 4)
            if ksl % 4 == 0 and ksl:
                k(f"s_add_u32 s{sRB+j}, s{sRB+j}, 4096")
            k.vmem(f"buffer_load_dwordx4 {vr(vACT+4*(t%32),4)}, v{vL16}, {srd(S_WS)}, s{sRB+j} offen offset:{(ksl%4)*1024} sc1", ("h", t))

        LA = o.get("dla", 10)
        rest = w2[3 + nw2:] if L1 else []
        tail = k.rec(lambda: (lin_dma(0, R0, 16, "wkv2"), lin_dma(PK_Q, R1, 8, "wq2"))) if L1 else []
        for t in range(LA):
            hload(t)
        for t in range(56):
            ksl, j = divmod(t, 4)
            if L1:
                k.vm_wait(("w2t", ksl))
            k.vm_wait(("h", t))
            for f in range(4):
                a = vACC + 16*j + 4*f
                c = "0" if ksl == 0 else vr(a, 4)
                k(f"v_mfma_f32_16x16x32_bf16 {vr(a,4)}, {ar((ksl*4+f)*4,4)}, {vr(vACT+4*(t%32),4)}, {c}")
                if f == 0:
                    nt = t + LA
                    if nt == 32 - 6:
                        k.vmem(f"buffer_load_dword v{vT0}, v{vT3}, {srd(S_WS)}, s{sFHp} offen offset:{G_FH+1024} sc1", "p2")
                    if nt == 32:
                        ok = k.label("L_p2ok")
                        k.vm_wait("p2")
                        k(f"v_cmp_ne_u32 vcc, s{sTAG}, v{vT0}")
                        k(f"s_cbranch_vccz {ok}")
                        sv = list(k.vm)
                        k.poll(sFHp, G_FH + 1024, False)
                        k.vm = sv
                        k(f"{ok}:")
                    if nt < 56:
                        hload(nt)
                if f == 2:
                    if rest:
                        k.play(rest[:1]); rest = rest[1:]
                        if rest and t % 2 == 0:
                            k.play(rest[:1]); rest = rest[1:]
                    elif t + LA >= 56 and tail:
                        k.play(tail[:2]); tail = tail[2:]
        assert not rest
        k.stamp("D.mm")
        for j in range(1, 4):
            k(f"s_add_u32 s{sT2}, s{sW}, {j}")
            k(f"s_and_b32 s{sT2}, s{sT2}, 3")
            k(f"s_mul_i32 s{sT2}, s{sT2}, 12288")
            k(f"s_add_u32 s{sT2}, s{sT2}, {L_RED + (j-1)*4096}")
            k(f"v_add_u32 v{vT0+j}, s{sT2}, v{vL16}")
        k(f"s_mul_i32 s{sT2}, s{sW}, 12288")
        k(f"s_add_u32 s{sT2}, s{sT2}, {L_RED}")
        k(f"v_add_u32 v{vT0}, s{sT2}, v{vL16}")
        for j in range(1, 4):
            for f in range(4):
                k.lds(f"ds_write_b128 v{vT0+j}, {vr(vACC+16*j+4*f,4)} offset:{f*1024}")
                if tail:
                    k.play(tail[:1]); tail = tail[1:]
        assert not tail
        unpack_res(vWB)
        for q in range(8):
            k(f"v_pk_add_f32 {vr(vACC+2*q,2)}, {vr(vACC+2*q,2)}, {vr(vWB+2*q,2)}")
        k.barrier()
        for j in range(3):
            for f in range(4):
                k.lds(f"ds_read_b128 {vr(vACC+16+16*j+4*f,4)}, v{vT0} offset:{j*4096+f*1024}", ("rd", j, f))
        for j in range(3):
            for f in range(4):
                k.ds_wait(("rd", j, f))
                for p in range(2):
                    k(f"v_pk_add_f32 {vr(vACC+4*f+2*p,2)}, {vr(vACC+4*f+2*p,2)}, {vr(vACC+16+16*j+4*f+2*p,2)}")
        for f in range(4):
            for p in range(2):
                k(f"v_cvt_pk_bf16_f32 v{vRES+2*f+p}, v{vACC+4*f+2*p}, v{vACC+4*f+2*p+1}")
        k.stamp("D.red")
        if L1:
            publish_x(G_X2, G_ST2, G_FX2, pay_sc1)
            k(f"s_add_u32 s{sKVC}, s{sKVC}, 0x100000")
            k(f"s_add_u32 s{sKVP}, s{sKVP}, 0x100000")
            k.stamp("D.pub")
            k("s_barrier")
        else:
            k(f"""
            v_and_b32 v{vT1}, 15, v{vLANE}
            v_lshlrev_b32 v{vT1}, 10, v{vT1}
            v_lshrrev_b32 v{vT0}, 4, v{vLANE}
            v_lshl_add_u32 v{vT2}, v{vT0}, 3, v{vT1}
            s_lshl2_add_u32 s{sT2}, s{sDH}, s{sW}
            s_lshl3_add_u32 s{sT2}, s{sG}, s{sT2}
            s_lshl_b32 s{sT2}, s{sT2}, 14
            s_lshl_b32 s{sT3}, s{sCT}, 7
            s_add_u32 s{sT2}, s{sT2}, s{sT3}
            """)
            for f in range(4):
                k.vmem(f"buffer_store_dwordx2 {vr(vRES+2*f,2)}, v{vT2}, {srd(S_OUT)}, s{sT2} offen offset:{32*f}")
            le = k.label("L_ep")
            k(f"s_or_b32 s{sT2}, s2, s{sW}")
            k(f"s_cbranch_scc1 {le}")
            k(f"s_add_u32 s{sEP}, s{sEP}, 1")
            k(f"v_mov_b32 v{vT1}, s{sEP}")
            k("s_mov_b64 exec, 1")
            k(f"buffer_store_dword v{vT1}, v{vL16}, {srd(S_WS)}, 0 offen offset:{WS_EPOCH}")
            k("s_mov_b64 exec, -1")
            k(f"{le}:")
            if stamps:
                k.vm_all()
                k.stamp("end")
                k(f"s_memrealtime s[{sST}:{sST+1}]")
                k("s_waitcnt lgkmcnt(0)")
                k(f"v_writelane_b32 v{vSTAMP}, s{sST}, 61")
                k(f"v_writelane_b32 v{vSTAMP}, s{sBUD}, 60")
                k(f"v_writelane_b32 v{vSTAMP}, s{sSLOW}, 59")
                k(f"s_lshl2_add_u32 s{sT2}, s2, s{sW}")
                k(f"s_lshl_b32 s{sT2}, s{sT2}, 8")
                k(f"s_add_u32 s{sT2}, s{sT2}, {WS_STAMP}")
                k(f"v_lshrrev_b32 v{vT0}, 2, v{vL16}")
                k(f"buffer_store_dword v{vSTAMP}, v{vT0}, {srd(S_WS)}, s{sT2} offen")
                if o.get("dbgout"):
                    ld = k.label("L_dbg")
                    k(f"s_cmp_lg_u32 s2, 37")
                    k(f"s_cbranch_scc1 {ld}")
                    k(f"s_cmp_lg_u32 s{sW}, 0")
                    k(f"s_cbranch_scc1 {ld}")
                    k(f"s_load_dwordx2 s[{S_X}:{S_X+1}], s[0:1], 56")
                    k(f"v_readlane_b32 s{sT0}, v{vSTAMP}, 62")
                    k(f"v_readlane_b32 s{sT1}, v{vSTAMP}, 63")
                    k(f"v_readlane_b32 s{sT2}, v{vSTAMP}, 61")
                    k("s_nop 4")
                    k(f"s_sub_u32 s{sT2}, s{sT2}, s{sT1}")
                    k(f"v_subrev_u32 v{vSTAMP}, s{sT0}, v{vSTAMP}")
                    k(f"v_mov_b32 v{vT1}, 0")
                    sel = [0, 2, 3, 5, 7, 9, 12, 13, 16, 17, 19, 21, 24, 30, len(k.stamp_names) - 1]
                    for j, ix in enumerate(sel):
                        k(f"v_readlane_b32 s{sT3}, v{vSTAMP}, {ix}")
                        k("s_nop 3")
                        k(f"v_writelane_b32 v{vT1}, s{sT3}, {j}")
                    k(f"v_writelane_b32 v{vT1}, s{sT2}, 15")
                    k("s_waitcnt lgkmcnt(0)")
                    k(f"s_mov_b32 s{S_X+2}, 256")
                    k(f"buffer_store_dword v{vT1}, v{vT0}, {srd(S_X)}, 0 offen")
                    k(f"{ld}:")
    if "leak" in o:
        k(f"v_readlane_b32 s{sT0}, v{vSTAMP}, 62")
        k(f"v_readlane_b32 s{sT1}, v{vSTAMP}, 0")
        k(f"s_memtime s[{sST}:{sST+1}]")
        k("s_waitcnt lgkmcnt(0)")
        k(f"s_sub_u32 s{sT1}, s{sT1}, s{sT0}")
        k(f"s_mul_i32 s{sT1}, s{sT1}, {o.get('leakx', 1)}")
        k(f"s_min_u32 s{sT1}, s{sT1}, 2000000")
        k(f"s_mov_b32 s{sT0}, s{sST}")
        k("L_leak:")
        k(f"s_memtime s[{sST}:{sST+1}]")
        k("s_waitcnt lgkmcnt(0)")
        k(f"s_sub_u32 s{sT2}, s{sST}, s{sT0}")
        k(f"s_cmp_lt_u32 s{sT2}, s{sT1}")
        k("s_cbranch_scc1 L_leak")
    if o.get("leakrt"):
        k(f"v_readlane_b32 s{sT0}, v{vSTAMP}, 63")
        k(f"s_memrealtime s[{sST}:{sST+1}]")
        k("s_waitcnt lgkmcnt(0)")
        k(f"s_sub_u32 s{sT1}, s{sST}, s{sT0}")
        k(f"s_min_u32 s{sT1}, s{sT1}, 100000")
        k(f"s_mov_b32 s{sT0}, s{sST}")
        k("L_leakrt:")
        k(f"s_memrealtime s[{sST}:{sST+1}]")
        k("s_waitcnt lgkmcnt(0)")
        k(f"s_sub_u32 s{sT2}, s{sST}, s{sT0}")
        k(f"s_cmp_lt_u32 s{sT2}, s{sT1}")
        k("s_cbranch_scc1 L_leakrt")
    if o.get("pad"):
        k(f"s_mov_b32 s{sT0}, {o['pad']}")
        k("L_pad:")
        for j in range(16):
            k(f"v_mfma_f32_16x16x32_bf16 {vr(vACC+4*(j%8),4)}, {vr(vACT,4)}, {vr(vACT+4,4)}, {vr(vACC+4*(j%8),4)}")
        k(f"s_sub_u32 s{sT0}, s{sT0}, 1")
        k("s_cbranch_scc0 L_pad")
    k("L_end:")
    body = "\n".join(k.lines)
    hdr = open("interleave_layers__linear_attn_block__dense_activation_relu__prompt.s.ref").read().split("; Override")[0]
    txt = f"""{hdr}; Generated by a hand-written generator (persistent kernel, one workgroup per CU).
; @launch grid=(256,1,1) block=(256,1,1) lds={LDS_BYTES}
.amdgcn_target "amdgcn-amd-amdhsa--gfx950"
.text
.globl {NAME}
.p2align 8
.type {NAME},@function
.set CODE_BYTES, L_code_end - L_pcref - 512
{NAME}:
{body}
    s_endpgm
L_code_end:
.section .rodata,"a"
.p2align 6
.amdhsa_kernel {NAME}
  .amdhsa_next_free_vgpr 512
  .amdhsa_next_free_sgpr 96
  .amdhsa_accum_offset 256
  .amdhsa_group_segment_fixed_size 0
  .amdhsa_kernarg_size 72
  .amdhsa_user_sgpr_count 2
  .amdhsa_user_sgpr_kernarg_segment_ptr 1
  .amdhsa_system_sgpr_workgroup_id_x 1
.end_amdhsa_kernel
"""
    return txt, k.stamp_names


if __name__ == "__main__":
    out = sys.argv[1]
    stamps = "stamps" in sys.argv[2:]
    opts = {}
    for a in sys.argv[2:]:
        if "=" in a:
            x, y = a.split("=")
            opts[x] = int(y)
    txt, names = gen(stamps, opts)
    open(out, "w").write(txt)
    if stamps:
        open(out + ".names", "w").write("\n".join(names))
```

```python
import sys
from contextlib import contextmanager

NAME = "interleave_layers__linear_attn_block__dense_activation_relu__prompt_kernel"

WS_EPOCH = 0
WS_XID = 0x8000
WS_PD = 0x10000
GRP0 = 0x100000
G_FO, G_FX1, G_FX2, G_FH = 0, 512, 1024, 1536
G_ST1 = 0x1000
G_ST2 = G_ST1
G_X1 = 0x8000
G_X2 = G_X1
G_H = G_X1 + 0x20000
G_O = G_H
WS_KVX = 0x1200000
KVX_C = 0x9000
WS_W2T = 0x1400000
WS_PK = 0x1600000
PK_KV, PK_Q, PK_W1A, PK_W1B, PK_WO, PK_SZ = 0, 65536, 98304, 163840, 212992, 278528
WS_STAMP = 0x1B00000
WS_USED = 0x1C00000
OOB = 0x7f000000

R0, R1, R2, R3 = 0, 65536, 98304, 131072
L_SM = 159744
L_CS = L_SM
L_STAT = L_SM + 1024
L_XB = L_SM + 2048
L_ZB = L_SM + 3072
L_XST = 98304
L_RED = R2
L_PST = R2
LDS_BYTES = 163840

S_X, S_WQKV, S_WO, S_W1, S_W2, S_OUT, S_WS = 4, 8, 12, 16, 20, 24, 28
(sW, sC, sG, sTAG, sSLOW, sGB, sBUD, sEP, sEPS, _e1, sT0, sT1, sT2, sT3, sT4, sT5,
 sACT, sACT1, sBACT, sTILE, sOST, sOST1, sFOo, sFOp, sFXo, sFXp, sSTo, sSTg,
 sH1, sH1b, sH2, sH2b, sH3, sH3b, sFHo, sFHp, sRB, _r1, _r2, _r3, sKVC, sKVP,
 sDH, sCT, sXCC, sT8, sD0, sD1, sD2, sD3, sL0, sL1, sPKB, sPDA, sPDB, sJ0) = range(32, 88)
assert sEPS % 2 == 0
sRHO = sT8
S_A, S_B = 88, 92
sKEX = 88
sKM = 96
sST = 98
sPC = 100

vLANE, vL16, vTR0, vTR1, vQ0, vQ1, vQ2, vQ3, vP, vCH, vDM, vSTAMP = range(12)
vT0, vT1, vT2, vT3 = 12, 13, 14, 15
vSP, vSP2 = vP, vCH
vRES = 16
vPQ = 24
vWB = 32
vACC = 64
vACT = 128
BF1 = "0x3f803f80"
(cCSA, cCSB, cP16, cP8, cSTO, cSTW, cSTA, cSTB, cKW, cKR, cKW1, cKR1, cKVS, cXW, cXR, cZR,
 cRD0, cRD1, cRD2, cRD3, cRSD, cOUT, cZL) = range(224, 247)


def srd(s):
    return f"s[{s}:{s+3}]"


def vr(a, n=1):
    return f"v{a}" if n == 1 else f"v[{a}:{a+n-1}]"


def ar(a, n=1):
    return f"a{a}" if n == 1 else f"a[{a}:{a+n-1}]"


def bcast(r, pos, n):
    lo = [0] * n
    hi = [1] * n
    if r % 2 == 0:
        hi[pos] = 0
    else:
        lo[pos] = 1
    f = lambda x: "[" + ",".join(map(str, x)) + "]"
    return vr(r & ~1, 2), f" op_sel:{f(lo)} op_sel_hi:{f(hi)}"


class K:
    def __init__(self, stamps=False, opts=None):
        self.lines = []
        self.nlab = 0
        self.vm = []
        self.ds = []
        self.stamps = stamps
        self.stamp_names = []
        self.o = opts or {}
        self._rec = None
        self.seen = set()

    def _do(self, fn):
        if self._rec is not None:
            self._rec.append(fn)
        else:
            fn()

    def rec(self, f):
        assert self._rec is None
        self._rec = []
        f()
        r, self._rec = self._rec, None
        return r

    @contextmanager
    def atomic(self):
        if self._rec is None:
            yield
            return
        outer, self._rec = self._rec, []
        yield
        inner, self._rec = self._rec, outer
        outer.append(lambda: [x() for x in inner])

    def play(self, items):
        for x in items:
            self._do(x)

    def _emit(self, l):
        self.lines.append(("" if l.endswith(":") else "    ") + l)

    def __call__(self, s):
        for l in s.split("\n"):
            l = l.strip()
            if l:
                self._do(lambda l=l: self._emit(l))

    def label(self, base="L"):
        self.nlab += 1
        return f"{base}_{self.nlab}"

    def vmem(self, s, tag=None):
        def f():
            self._emit(s)
            self.vm.append(tag)
            self.seen.add(tag)
        self._do(f)

    def vm_note(self, n, tag=None):
        self._do(lambda: (self.vm.extend([tag] * n), self.seen.add(tag)))

    def _wait(self, lst, tag, name, mx):
        if tag not in lst:
            return lst
        idx = len(lst) - 1 - lst[::-1].index(tag)
        n = min(len(lst) - idx - 1, mx)
        self._emit(f"s_waitcnt {name}({n})")
        return lst[len(lst) - n:] if n else []

    def vm_wait(self, tag):
        def f():
            assert tag in self.seen, tag
            self.vm = self._wait(self.vm, tag, "vmcnt", 63)
        self._do(f)

    def save_vm(self):
        def f():
            self._sv = list(self.vm)
        self._do(f)

    def restore_vm(self):
        def f():
            self.vm = self._sv
        self._do(f)

    def vm_all(self):
        def f():
            self._emit("s_waitcnt vmcnt(0)")
            self.vm = []
        self._do(f)

    def lds(self, s, tag=None):
        def f():
            self._emit(s)
            self.ds.append(tag)
        self._do(f)

    def ds_wait(self, tag):
        def f():
            self.ds = self._wait(self.ds, tag, "lgkmcnt", 15)
        self._do(f)

    def ds_all(self, force=False):
        def f():
            if self.ds or force:
                self._emit("s_waitcnt lgkmcnt(0)")
            self.ds = []
        self._do(f)

    def barrier(self, force=False):
        self.ds_all(force)
        self("s_barrier")

    def stamp(self, name):
        if not self.stamps:
            return
        self.nst = getattr(self, "nst", 0) + 1
        if "leak" in self.o and self.nst - 1 != self.o["leak"]:
            return
        i = len(self.stamp_names)
        assert i < 59
        self.stamp_names.append(name)
        self(f"s_memtime s[{sST}:{sST+1}]")
        self.ds_all(True)
        self(f"v_writelane_b32 v{vSTAMP}, s{sST}, {i}")

    def dma(self, sr, voff, soff, simm, lreg, limm, tag=None, flag=""):
        with self.atomic():
            self(f"s_add_u32 m0, s{lreg}, {limm}")
            self(f"s_add_u32 s{sT5}, s{soff}, {simm}")
            self.vmem(f"buffer_load_dwordx4 v{voff}, {srd(sr)}, s{sT5} offen{flag} lds", tag)

    def get(self, v, c):
        self(f"v_accvgpr_read_b32 v{v}, a{c}")

    def poll_prep(self, mask):
        self.get(vT3, cP16 if mask == 15 else cP8)

    def poll(self, soff, imm, clear=True):
        if clear:
            self.seen = {t for t in self.seen if not (isinstance(t, tuple) and t[0] in ("act", "h"))}
        lp, done = self.label("L_poll"), self.label("L_pd")
        with self.atomic():
            self(f"{lp}:")
            self(f"buffer_load_dword v{vT0}, v{vT3}, {srd(S_WS)}, s{soff} offen offset:{imm} sc1")
            self.vm_all()
            self(f"v_cmp_ne_u32 vcc, s{sTAG}, v{vT0}")
            self(f"s_cbranch_vccz {done}")
            self(f"s_sub_u32 s{sBUD}, s{sBUD}, 1")
            self(f"s_cbranch_scc0 {lp}")
            self(f"s_mov_b32 s{sBUD}, 0")
            self(f"{done}:")

    def stores(self, items, force_sc1, tag="st"):
        with self.atomic():
            if force_sc1:
                for it in items:
                    self.vmem(it + " sc1", tag)
                return
            ls, le = self.label("L_ss"), self.label("L_se")
            self(f"s_cmp_lg_u32 s{sSLOW}, 0")
            self(f"s_cbranch_scc1 {ls}")
            for it in items:
                self.vmem(it, tag)
            self(f"s_branch {le}")
            self(f"{ls}:")
            for it in items:
                self(it + " sc1")
            self(f"{le}:")

    def flag(self, soff, imm):
        with self.atomic():
            self(f"v_mov_b32 v{vT1}, s{sTAG}")
            self.vm_wait("st")
            self("s_mov_b64 exec, 1")
            self.stores([f"buffer_store_dword v{vT1}, v{vL16}, {srd(S_WS)}, s{soff} offen offset:{imm}"], False, "flag")
            self("s_mov_b64 exec, -1")

    def gemm_begin(self, frags, D=6):
        self.gid = getattr(self, "gid", 0) + 1
        g = dict(frags=frags, D=D, gid=self.gid, rp=0, reads=[])
        for t, f in enumerate(frags):
            s = vWB + 4 * (t % 8)
            if len(f["offs"]) == 2:
                for hh in range(2):
                    g["reads"].append((t, f"ds_read_b64_tr_b16 {vr(s + 2*hh, 2)}, v{f['addr']} offset:{f['offs'][hh]}"))
            else:
                g["reads"].append((t, f"ds_read_b128 {vr(s, 4)}, v{f['addr']} offset:{f['offs'][0]}"))
        self._issue(g, D - 1, 99)
        return g

    def _issue(self, g, tmax, maxn):
        c = 0
        reads = g["reads"]
        while g["rp"] < len(reads) and reads[g["rp"]][0] <= tmax and c < maxn:
            self.lds(reads[g["rp"]][1], ("w", g["gid"], reads[g["rp"]][0]))
            g["rp"] += 1
            c += 1

    def gemm_run(self, g, fill=None):
        fill = fill or {}
        frags, D, gid = g["frags"], g["D"], g["gid"]
        n = len(frags)
        mi = 0
        for t, f in enumerate(frags):
            s = vWB + 4 * (t % 8)
            if t % 2 == 0:
                self.ds_wait(("w", gid, min(t + 1, n - 1)))
            nm = len(f["mf"])
            for j, (acc, act_, sw, first, wt) in enumerate(f["mf"]):
                if wt is not None:
                    self.vm_wait(wt)
                c = "0" if first else vr(acc, 4)
                if sw:
                    self(f"v_mfma_f32_16x16x32_bf16 {vr(acc,4)}, {vr(s,4)}, {vr(act_,4)}, {c}")
                else:
                    self(f"v_mfma_f32_16x16x32_bf16 {vr(acc,4)}, {vr(act_,4)}, {vr(s,4)}, {c}")
                self._issue(g, t + D, 99 if j == nm - 1 else 1)
                self.play(fill.pop(mi, []))
                mi += 1
        for key in sorted(fill):
            self.play(fill[key])

    def gemm(self, frags, fill=None, D=6):
        self.gemm_run(self.gemm_begin(frags, D), fill)


def merge_waits(lines):
    import re
    out = []
    for l in lines:
        m = re.match(r"\s*s_waitcnt (\w+)\((\d+)\)$", l)
        if m and out:
            p = re.match(r"\s*s_waitcnt (\w+)\((\d+)\)$", out[-1])
            if p and p.group(1) != m.group(1):
                out[-1] = out[-1] + f" {m.group(1)}({m.group(2)})"
                continue
        out.append(l)
    return out


def spread(fill, items, start, step, per=1):
    p = start
    for i in range(0, len(items), per):
        fill.setdefault(int(p), []).extend(items[i:i + per])
        p += step
    return p


def act(ks, rb):
    return vACT + 8 * ks + 4 * rb


def gen(stamps=False, opts=None):
    k = K(stamps, opts)
    o = k.o
    if stamps:
        k(f"s_memtime s[{sST}:{sST+1}]")
        k(f"s_memrealtime s[{sPC}:{sPC+1}]")
    k(f"""
    s_cmp_ge_u32 s2, 256
    s_cbranch_scc1 L_end
    s_load_dwordx2 s[{S_X}:{S_X+1}], s[0:1], 0
    s_load_dwordx2 s[{S_WQKV}:{S_WQKV+1}], s[0:1], 8
    s_load_dwordx2 s[{S_WS}:{S_WS+1}], s[0:1], 64
    s_load_dwordx2 s[{S_WO}:{S_WO+1}], s[0:1], 16
    s_load_dwordx2 s[{S_W1}:{S_W1+1}], s[0:1], 32
    s_load_dwordx2 s[{S_W2}:{S_W2+1}], s[0:1], 40
    s_load_dwordx2 s[{S_OUT}:{S_OUT+1}], s[0:1], 48
    v_lshrrev_b32 v{vT0}, 6, v0
    v_and_b32 v{vLANE}, 63, v0
    s_mov_b32 s{S_X+2}, {2048*1024}
    v_readfirstlane_b32 s{sW}, v{vT0}
    s_mov_b32 s{S_X+3}, 0x20000
    s_mov_b32 s{S_WQKV+2}, {512*3072}
    s_mov_b32 s{S_WQKV+3}, 0x20000
    s_lshr_b32 s{sT0}, s2, 3
    s_and_b32 s{sC}, s{sT0}, 15
    s_lshr_b32 s{sT0}, s{sT0}, 4
    s_and_b32 s{sG}, s2, 7
    s_lshl1_add_u32 s{sG}, s{sG}, s{sT0}
    s_lshr_b32 s{sT1}, s{sC}, 1
    s_xor_b32 s{sT1}, s{sT1}, s{sT0}
    s_and_b32 s{sT1}, s{sT1}, 1
    s_and_b32 s{sRHO}, s{sC}, 1
    s_lshl1_add_u32 s{sRHO}, s{sT1}, s{sRHO}
    v_lshlrev_b32 v{vL16}, 4, v{vLANE}
    """)
    if stamps:
        k(f"v_mov_b32 v{vSTAMP}, 0")
    XS, XR, X2R = vRES, vRES + 4, act(15, 1)
    aRES = 246
    k(f"""
    v_lshrrev_b32 v{vT0}, 4, v{vLANE}
    v_and_b32 v{vT1}, 15, v{vLANE}
    v_xor_b32 v{vT2}, v{vT0}, v{vT1}
    v_lshlrev_b32 v{vT2}, 4, v{vT2}
    v_lshl_add_u32 v{XS}, v{vT0}, 10, v{vT2}
    s_lshr_b32 s{sJ0}, s{sC}, 2
    s_and_b32 s{sT2}, s{sJ0}, 1
    s_lshl_b32 s{sT2}, s{sT2}, 7
    s_lshl_b32 s{sJ0}, s{sJ0}, 11
    v_xor_b32 v{XS}, s{sT2}, v{XS}
    v_xor_b32 v{XS+1}, 64, v{XS}
    v_xor_b32 v{XS+2}, 0x80, v{XS}
    v_xor_b32 v{XS+3}, 0xc0, v{XS}
    v_lshrrev_b32 v{vP}, 2, v{vLANE}
    v_and_b32 v{vCH}, 3, v{vLANE}
    v_lshrrev_b32 v{vT3}, 3, v{vLANE}
    v_and_b32 v{vT3}, 2, v{vT3}
    v_xor_b32 v{vCH}, v{vCH}, v{vT3}
    v_lshlrev_b32 v{vCH}, 4, v{vCH}
    v_and_b32 v{vT3}, 3, v{vP}
    v_lshl_add_u32 v{vT3}, v{vT0}, 3, v{vT3}
    s_movk_i32 s{sT1}, 3072
    v_mad_u32_u24 v{vDM}, v{vT3}, s{sT1}, v{vCH}
    s_lshl_b32 s{sL0}, s{sW}, 14
    s_add_u32 s{sL0}, s{sL0}, {L_XST}
    s_lshl_b32 s{sT1}, s{sG}, 17
    s_lshl_b32 s{sT2}, s{sW}, 15
    s_add_u32 s{sT1}, s{sT1}, s{sT2}
    s_lshl_b32 s{sL1}, s{sW}, 12
    """)
    for r in range(4):
        k(f"""
        s_add_u32 s{sT2}, s{sRHO}, {r}
        s_and_b32 s{sT2}, s{sT2}, 3
        s_lshl_b32 s{sT3}, s{sT2}, 8
        s_add_u32 s{sD0+r}, s{sT1}, s{sT3}
        s_lshl2_add_u32 s{sT2}, s{sT2}, s{sW}
        s_mul_i32 s{sT2}, s{sT2}, {32*3072}
        s_lshl_b32 s{sT3}, s{sC}, 6
        s_add_u32 s{sRB+r}, s{sT2}, s{sT3}
        """)
    k("s_waitcnt lgkmcnt(0)")
    k(f"s_load_dword s{sEP}, s[{S_WS}:{S_WS+1}], {WS_EPOCH}")
    if stamps:
        k(f"v_writelane_b32 v{vSTAMP}, s{sST}, 62")
        k(f"v_writelane_b32 v{vSTAMP}, s{sPC}, 63")

    def xslot(q, js=range(8)):
        for j in js:
            with k.atomic():
                k(f"s_xor_b32 s{sT4}, s{sJ0}, {j*1024}")
                k(f"s_add_u32 m0, s{sT4}, s{sL0}")
                if q & 1:
                    k(f"s_add_u32 m0, m0, 8192")
                k(f"s_lshl2_add_u32 s{sT5}, s{sT4}, s{sD0+q}")
                k.vmem(f"buffer_load_dwordx4 v{XS+(j&3)}, {srd(S_X)}, s{sT5} offen lds", ("xs", q))

    def wkv_raw(r):
        for pr in range(2):
            for hh in range(2):
                k.dma(S_WQKV, vDM, sRB + r, hh * 4 * 3072 + 1024 * (pr + 1), sL1, R0 + r * 16384 + pr * 2048 + hh * 1024, ("wkv", r))

    def warm():
        k(f"v_lshlrev_b32 v{vT3}, 7, v{vLANE}")
        k("s_mov_b64 exec, 0xf")
        k(f"""
        s_getpc_b64 s[{sPC}:{sPC+1}]
        L_pcref:
        s_lshr_b32 s{sT2}, s2, 3
        s_lshl2_add_u32 s{sT2}, s{sT2}, s{sW}
        s_lshl_b32 s{sT2}, s{sT2}, 9
        s_min_u32 s{sT2}, s{sT2}, CODE_BYTES
        s_add_u32 s{sPC}, s{sPC}, s{sT2}
        s_addc_u32 s{sPC+1}, s{sPC+1}, 0
        """)
        k.vmem(f"global_load_dword a255, v{vT3}, s[{sPC}:{sPC+1}]")
        if o.get("warm", 1) >= 1:
            k(f"s_lshl2_add_u32 s{sT2}, s2, s{sW}")
            k(f"s_lshr_b32 s{sT3}, s{sT2}, 1")
            k(f"s_mul_i32 s{sT3}, s{sT3}, 3072")
            k(f"s_and_b32 s{sT4}, s{sT2}, 1")
            k(f"s_lshl_b32 s{sT4}, s{sT4}, 9")
            k(f"s_add_u32 s{sT3}, s{sT3}, s{sT4}")
            k.vmem(f"buffer_load_dword a255, v{vT3}, {srd(S_WQKV)}, s{sT3} offen")
        if o.get("warm", 1) >= 2:
            k(f"s_lshl_b32 s{sT3}, s{sT2}, 9")
            k.vmem(f"buffer_load_dword a255, v{vT3}, {srd(S_WO)}, s{sT3} offen")
            k(f"s_mul_i32 s{sT3}, s{sT2}, 1792")
            k("s_mov_b64 exec, 0x3fff")
            k.vmem(f"buffer_load_dword a255, v{vT3}, {srd(S_W1)}, s{sT3} offen")
            k.vmem(f"buffer_load_dword a255, v{vT3}, {srd(S_W2)}, s{sT3} offen")
        k(f"s_lshl2_add_u32 s{sT2}, s{sC}, s{sW}")
        k(f"s_lshl_b32 s{sT2}, s{sT2}, 8")
        k(f"s_add_u32 s{sT2}, s{sT2}, s{sGB}")
        k("s_mov_b64 exec, 3")
        k.vmem(f"buffer_load_dword a255, v{vT3}, {srd(S_WS)}, s{sT2} offen sc1", "touch")
        k("s_mov_b64 exec, -1")

    xslot(0, range(2)); wkv_raw(0)
    k(f"""
    s_mov_b32 s{S_WO+2}, {512*1024}
    s_mov_b32 s{S_WO+3}, 0x20000
    s_mov_b32 s{S_W1+2}, {512*3584}
    s_mov_b32 s{S_W1+3}, 0x20000
    s_mov_b32 s{S_W2+2}, {1792*1024}
    s_mov_b32 s{S_W2+3}, 0x20000
    s_mov_b32 s{S_WS+2}, {WS_USED}
    s_mov_b32 s{S_WS+3}, 0x20000
    s_lshl_b32 s{sGB}, s{sG}, 20
    s_add_u32 s{sGB}, s{sGB}, {GRP0}
    """)
    warm()

    def arm():
        k(f"s_lshl2_add_u32 s{sT2}, s{sC}, s{sW}")
        k(f"s_mul_i32 s{sT2}, s{sT2}, 9216")
        k(f"s_add_u32 s{sT2}, s{sT2}, s{sGB}")
        for j in range(9):
            with k.atomic():
                if j % 4 == 0:
                    k(f"s_add_u32 s{sT3}, s{sT2}, {G_X1 + j*1024}")
                k.vmem(f"buffer_store_dwordx4 {vr(vTR0+2,4)}, v{vL16}, {srd(S_WS)}, s{sT3} offen offset:{(j%4)*1024} sc1", "arm")
    if o.get("arm", 0) == 1:
        arm()

    k(f"""
    s_mov_b32 s{S_OUT+2}, {2048*1024}
    s_mov_b32 s{S_OUT+3}, 0x20000
    s_lshr_b32 s{sDH}, s{sC}, 3
    s_and_b32 s{sCT}, s{sC}, 7
    s_mov_b32 s{sBUD}, 150000
    s_mov_b32 s{sEPS}, 0x358637bd
    s_mov_b32 s{sEPS+1}, 0x358637bd
    s_getreg_b32 s{sXCC}, hwreg(HW_REG_XCC_ID, 0, 4)
    s_lshl_b32 s{sACT}, s{sW}, 15
    s_add_u32 s{sACT}, s{sACT}, s{sGB}
    s_add_u32 s{sACT1}, s{sACT}, 16384
    s_lshl2_add_u32 s{sT0}, s{sDH}, s{sW}
    s_lshl_b32 s{sBACT}, s{sT0}, 14
    s_add_u32 s{sBACT}, s{sBACT}, s{sGB}
    s_lshl_b32 s{sTILE}, s{sCT}, 11
    s_add_u32 s{sTILE}, s{sTILE}, s{sBACT}
    s_mul_i32 s{sBACT}, s{sT0}, 57344
    s_add_u32 s{sBACT}, s{sBACT}, s{sGB}
    s_mul_i32 s{sOST}, s{sW}, {2*57344}
    s_lshl_b32 s{sOST1}, s{sC}, 10
    s_add_u32 s{sOST}, s{sOST}, s{sOST1}
    s_add_u32 s{sOST}, s{sOST}, s{sGB}
    s_add_u32 s{sOST}, s{sOST}, {G_O}
    s_add_u32 s{sOST1}, s{sOST}, 57344
    s_lshl_b32 s{sFXp}, s{sW}, 7
    s_add_u32 s{sFXp}, s{sFXp}, s{sGB}
    s_lshl2_add_u32 s{sFOo}, s{sC}, s{sFXp}
    s_lshl_b32 s{sFHp}, s{sT0}, 7
    s_add_u32 s{sFHp}, s{sFHp}, s{sGB}
    s_lshr_b32 s{sT0}, s{sT0}, 1
    s_mov_b32 s{sT1}, s{sT0}
    s_lshl_b32 s{sFOp}, s{sT0}, 7
    s_add_u32 s{sFOp}, s{sFOp}, s{sGB}
    s_and_b32 s{sT2}, s{sW}, 1
    s_lshl1_add_u32 s{sT3}, s{sCT}, s{sT2}
    s_lshl2_add_u32 s{sFXo}, s{sT3}, s{sFOp}
    s_lshl3_add_u32 s{sT3}, s{sT0}, s{sCT}
    s_lshl_b32 s{sT3}, s{sT3}, 8
    s_lshl3_add_u32 s{sT3}, s{sT2}, s{sT3}
    s_add_u32 s{sSTo}, s{sT3}, s{sGB}
    s_lshl_b32 s{sSTg}, s{sW}, 11
    s_add_u32 s{sSTg}, s{sSTg}, s{sGB}
    s_lshl2_add_u32 s{sT1}, s{sT1}, s{sT2}
    s_lshl_b32 s{sT1}, s{sT1}, 6
    s_add_u32 s{sT1}, s{sT1}, {L_STAT + 128}
    v_lshl_add_u32 v{vT3}, v{vT1}, 2, s{sT1}
    v_accvgpr_write_b32 a{cRSD}, v{vT3}
    s_mul_i32 s{sT0}, s{sW}, {2*57344}
    s_add_u32 s{sT0}, s{sT0}, s{sGB}
    s_lshr_b32 s{sT3}, s{sC}, 2
    s_mul_i32 s{sT4}, s{sT3}, 14336
    s_add_u32 s{sT0}, s{sT0}, s{sT4}
    s_add_u32 s{sT0}, s{sT0}, {G_H}
    s_and_b32 s{sT4}, s{sC}, 3
    s_lshl_b32 s{sH1}, s{sT4}, 11
    s_add_u32 s{sH1}, s{sH1}, s{sT0}
    s_add_u32 s{sH1b}, s{sH1}, 57344
    s_mul_i32 s{sH2}, s{sT4}, 3
    s_add_u32 s{sH2}, s{sH2}, 17
    s_lshr_b32 s{sH2}, s{sH2}, 1
    s_lshl_b32 s{sH2}, s{sH2}, 10
    s_add_u32 s{sH2}, s{sH2}, s{sT0}
    s_add_u32 s{sH2b}, s{sH2}, 57344
    s_lshr_b32 s{sH3}, s{sT4}, 1
    s_mul_i32 s{sH3}, s{sH3}, 3072
    s_and_b32 s{sH3b}, s{sT4}, 1
    s_lshl3_add_u32 s{sH3}, s{sH3b}, s{sH3}
    s_add_u32 s{sH3}, s{sH3}, {9*1024}
    s_add_u32 s{sH3}, s{sH3}, s{sT0}
    s_add_u32 s{sH3b}, s{sH3}, 57344
    s_lshr_b32 s{sT0}, s{sW}, 1
    s_lshl2_add_u32 s{sT0}, s{sT0}, s{sT3}
    s_lshl_b32 s{sT0}, s{sT0}, 7
    s_lshl1_add_u32 s{sT2}, s{sT4}, s{sT2}
    s_lshl2_add_u32 s{sT0}, s{sT2}, s{sT0}
    s_add_u32 s{sFHo}, s{sT0}, s{sGB}
    s_mul_i32 s{sPKB}, s{sC}, {PK_SZ}
    s_add_u32 s{sPKB}, s{sPKB}, {WS_PK}
    """)
    k(f"""
    s_mul_i32 s{sT0}, s{sC}, {KVX_C}
    s_add_u32 s{sT0}, s{sT0}, {WS_KVX}
    s_lshl_b32 s{sT1}, s{sW}, 14
    s_lshl_b32 s{sT2}, s{sW}, 6
    s_add_u32 s{sT2}, s{sT2}, {32768 - 128}
    s_lshl_b32 s{sT3}, s{sG}, 10
    s_lshl_b32 s{sT4}, s{sG}, 7
    s_cmp_lt_u32 s{sW}, 2
    s_cselect_b32 s{sT1}, s{sT1}, s{sT2}
    s_cselect_b32 s{sT3}, s{sT3}, s{sT4}
    s_cselect_b32 s{sKM}, -1, 0x30003
    s_cselect_b32 s{sKM+1}, -1, 0x30003
    s_cselect_b64 vcc, -1, 0
    s_add_u32 s{sKVC}, s{sT0}, s{sT1}
    s_add_u32 s{sKVP}, s{sKVC}, s{sT3}
    s_cmp_eq_u32 s{sW}, 3
    s_cselect_b32 s{sKVP}, {OOB}, s{sKVP}
    v_lshlrev_b32 v{vT3}, 4, v{vT0}
    v_lshl_add_u32 v{vT3}, v{vT1}, 6, v{vT3}
    v_cndmask_b32 v{vT3}, v{vT3}, v{vL16}, vcc
    v_accvgpr_write_b32 a{cKVS}, v{vT3}
    v_lshlrev_b32 v{vT3}, 2, v{vL16}
    v_and_b32 v{vT3}, 0xf00, v{vT3}
    v_lshrrev_b32 v{vT3}, 1, v{vT3}
    v_and_b32 v{vWB}, 48, v{vL16}
    v_add_u32 v{vT3}, v{vT3}, v{vWB}
    v_accvgpr_write_b32 a{cZL}, v{vT3}
    v_and_b32 v{vWB+5}, 1, v{vLANE}
    v_cndmask_b32 v{vWB+5}, v{vWB+5}, 0, vcc
    s_min_u32 s{sT5}, s{sW}, 2
    """)
    W = vWB
    k(f"""
    v_lshl_add_u32 v{XR}, v{vT1}, 8, v{vT2}
    v_add_u32 v{XR}, s{sL0}, v{XR}
    v_xor_b32 v{XR+1}, 64, v{XR}
    v_xor_b32 v{XR+2}, 0x80, v{XR}
    v_xor_b32 v{XR+3}, 0xc0, v{XR}
    v_and_b32 v{vT3}, 3, v{vLANE}
    v_lshlrev_b32 v{vT3}, 3, v{vT3}
    v_lshl_add_u32 v{vTR0}, v{vP}, 6, v{vT3}
    v_lshl_add_u32 v{vQ0}, v{vP}, 7, v{vT3}
    v_and_b32 v{vT3}, 1, v{vT0}
    v_lshlrev_b32 v{vT3}, 5, v{vT3}
    v_add_u32 v{vTR0}, v{vTR0}, v{vT3}
    v_xor_b32 v{vTR1}, 32, v{vTR0}
    v_bfe_u32 v{vT3}, v{vLANE}, 3, 2
    v_lshl_add_u32 v{vQ0}, v{vT3}, 5, v{vQ0}
    v_xor_b32 v{vQ1}, 32, v{vQ0}
    v_xor_b32 v{vQ2}, 64, v{vQ0}
    v_xor_b32 v{vQ3}, 0x60, v{vQ0}
    v_lshlrev_b32 v{W}, 2, v{vT1}
    v_accvgpr_write_b32 a{cP16}, v{W}
    v_and_b32 v{W+1}, 28, v{W}
    v_accvgpr_write_b32 a{cP8}, v{W+1}
    v_add_u32 v{W+1}, {L_CS}, v{W}
    v_accvgpr_write_b32 a{cCSA}, v{W+1}
    v_and_b32 v{W+2}, 48, v{vLANE}
    v_add_u32 v{W+1}, {L_CS}, v{W+2}
    v_accvgpr_write_b32 a{cCSB}, v{W+1}
    v_lshlrev_b32 v{W+1}, 2, v{vT0}
    v_lshl_add_u32 v{W+1}, v{vT1}, 4, v{W+1}
    v_accvgpr_write_b32 a{cSTO}, v{W+1}
    s_lshl_b32 s{sT0}, s{sW}, 8
    s_add_u32 s{sT0}, s{sT0}, {L_STAT}
    v_add_u32 v{W+1}, s{sT0}, v{W}
    v_accvgpr_write_b32 a{cSTA}, v{W+1}
    v_and_b32 v{W+3}, 32, v{vLANE}
    v_lshl_add_u32 v{W+1}, v{W+3}, 1, v{W+1}
    v_accvgpr_write_b32 a{cSTW}, v{W+1}
    v_add_u32 v{W+1}, s{sT0}, v{W+2}
    v_accvgpr_write_b32 a{cSTB}, v{W+1}
    s_lshl_b32 s{sT0}, s{sW}, 10
    v_add_u32 v{W+1}, s{sT0}, v{vL16}
    v_add_u32 v{W+3}, {R3}, v{W+1}
    v_accvgpr_write_b32 a{cKW}, v{W+3}
    v_add_u32 v{W+3}, {R2 + 8192}, v{W+1}
    v_accvgpr_write_b32 a{cKW1}, v{W+3}
    s_lshl_b32 s{sT0}, s{sT5}, 12
    s_add_u32 s{sT0}, s{sT0}, {R3}
    v_add_u32 v{W+1}, s{sT0}, v{vL16}
    v_lshl_add_u32 v{W+1}, v{W+5}, 12, v{W+1}
    v_accvgpr_write_b32 a{cKR}, v{W+1}
    s_lshl_b32 s{sT0}, s{sT5}, 14
    s_add_u32 s{sT0}, s{sT0}, {R2 + 8192}
    v_add_u32 v{W+1}, s{sT0}, v{vL16}
    v_lshl_add_u32 v{W+1}, v{W+5}, 14, v{W+1}
    v_accvgpr_write_b32 a{cKR1}, v{W+1}
    v_lshlrev_b32 v{W+1}, 3, v{vLANE}
    v_add_u32 v{W+1}, {L_XB}, v{W+1}
    v_accvgpr_write_b32 a{cXR}, v{W+1}
    v_lshlrev_b32 v{W+3}, 3, v{vT0}
    v_add_u32 v{W+3}, {L_ZB}, v{W+3}
    v_accvgpr_write_b32 a{cZR}, v{W+3}
    """)
    k(f"""
    s_lshl_b32 s{sT0}, s{sW}, 9
    v_add_u32 v{W+1}, s{sT0}, v{W+1}
    v_and_b32 v{W+3}, 1, v{vT0}
    v_lshrrev_b32 v{W+4}, 1, v{vT0}
    v_lshl_add_u32 v{W+3}, v{W+3}, 1, v{W+4}
    v_and_b32 v{W+4}, 3, v{vLANE}
    v_lshl_add_u32 v{W+3}, v{W+4}, 2, v{W+3}
    s_lshl_b32 s{sT0}, s{sW}, 5
    s_add_u32 s{sT0}, s{sT0}, {L_ZB - 64}
    v_lshl_add_u32 v{W+3}, v{W+3}, 1, s{sT0}
    s_cmp_lt_u32 s{sW}, 2
    s_cselect_b64 vcc, -1, 0
    v_cndmask_b32 v{W+1}, v{W+3}, v{W+1}, vcc
    v_accvgpr_write_b32 a{cXW}, v{W+1}
    """)
    for j in range(4):
        k(f"s_add_u32 s{sT0}, s{sW}, {j}")
        k(f"s_and_b32 s{sT0}, s{sT0}, 3")
        k(f"s_mul_i32 s{sT0}, s{sT0}, 12288")
        k(f"s_add_u32 s{sT0}, s{sT0}, {L_RED + max(j-1, 0)*4096}")
        k(f"v_add_u32 v{W+1}, s{sT0}, v{vL16}")
        k(f"v_accvgpr_write_b32 a{cRD0+j}, v{W+1}")
    k(f"""
    s_lshl2_add_u32 s{sT0}, s{sDH}, s{sW}
    s_lshl3_add_u32 s{sT0}, s{sG}, s{sT0}
    s_lshl_b32 s{sT0}, s{sT0}, 14
    s_lshl_b32 s{sT1}, s{sCT}, 7
    s_add_u32 s{sT0}, s{sT0}, s{sT1}
    v_lshl_add_u32 v{W+1}, v{vT1}, 10, s{sT0}
    v_and_b32 v{W+3}, 1, v{vT0}
    v_lshl_add_u32 v{W+1}, v{W+3}, 5, v{W+1}
    v_lshrrev_b32 v{W+3}, 1, v{vT0}
    v_lshl_add_u32 v{W+1}, v{W+3}, 4, v{W+1}
    v_accvgpr_write_b32 a{cOUT}, v{W+1}
    """)

    def xread(q):
        k.vm_wait(("xs", q))
        for ksl in range(4):
            for rb in range(2):
                k.lds(f"ds_read_b128 {vr(act(4*q+ksl, rb),4)}, v{XR+ksl} offset:{(q%2)*8192 + rb*4096}", ("xr", q))

    SUM0, SQ0, SUM1, SQ1 = vACC + 56, vACC + 57, vACC + 58, vACC + 59
    SUMA, SQA = vACC + 48, vACC + 56
    ONES = vPQ + 4
    NM_A, RS_A, RL_A = vACC + 60, vACC + 62, vACC + 56
    NM_B, RS_B, RL_B = vACC + 32, vACC + 40, vACC + 48
    STG = vACC + 48

    def xstats(q, fill):
        k.ds_wait(("xr", q))
        mi = 0
        for ksl in range(4):
            for rb in range(2):
                a_ = vr(act(4*q+ksl, rb), 4)
                first = q == 0 and ksl == 0
                for (acc, A) in ((SUMA + 4*rb, vr(ONES, 4)), (SQA + 4*rb, a_)):
                    k(f"v_mfma_f32_16x16x32_bf16 {vr(acc,4)}, {A}, {a_}, {'0' if first else vr(acc,4)}")
                    k.play(fill.pop(mi, []))
                    mi += 1
        assert not fill

    def xstats_extract():
        k(f"v_mov_b32 v{vT0}, 0")
        k(f"v_mov_b32 v{vT1}, 0")
        for r in range(4):
            m = (1 | 1 << 20 | 1 << 40 | 1 << 60) << r
            with k.atomic():
                k(f"s_mov_b32 vcc_lo, {m & 0xffffffff}")
                k(f"s_mov_b32 vcc_hi, {m >> 32}")
                k(f"v_cndmask_b32 v{vT0}, v{vT0}, v{SQA+r}, vcc")
                k(f"v_cndmask_b32 v{vT1}, v{vT1}, v{SQA+4+r}, vcc")
        k(f"v_mul_f32 v{SUM0}, 0x3e800000, v{SUMA}")
        k(f"v_mul_f32 v{SUM1}, 0x3e800000, v{SUMA+4}")
        k(f"v_mov_b32 v{SQ0}, v{vT0}")
        k(f"v_mov_b32 v{SQ1}, v{vT1}")

    def stats_finalize(need_rs):
        k.get(vT1, cSTW)
        k.get(vT0, cSTA)
        k(f"""
        v_permlane32_swap_b32 v{SUM0}, v{SUM1}
        v_permlane32_swap_b32 v{SQ0}, v{SQ1}
        v_add_f32 v{SUM0}, v{SUM0}, v{SUM1}
        v_add_f32 v{SQ0}, v{SQ0}, v{SQ1}
        v_mov_b32 v{SUM1}, v{SUM0}
        v_mov_b32 v{SQ1}, v{SQ0}
        s_nop 0
        v_permlane16_swap_b32 v{SUM0}, v{SUM1}
        v_permlane16_swap_b32 v{SQ0}, v{SQ1}
        v_add_f32 v{SUM0}, v{SUM0}, v{SUM1}
        v_add_f32 v{SQ0}, v{SQ0}, v{SQ1}
        v_mul_f32 v{SUM0}, 0xbb000000, v{SUM0}
        v_mul_f32 v{SQ0}, 0x3b000000, v{SQ0}
        v_fma_f32 v{SQ0}, -v{SUM0}, v{SUM0}, v{SQ0}
        v_max_f32 v{SQ0}, 0, v{SQ0}
        v_add_f32 v{SQ0}, 0x3727c5ac, v{SQ0}
        v_rsq_f32 v{SQ0}, v{SQ0}
        s_nop 0
        """)
        k.lds(f"ds_write2_b32 v{vT1}, v{SUM0}, v{SQ0} offset0:0 offset1:32")
        k.lds(f"ds_read2_b32 {vr(NM_A,2)}, v{vT0} offset0:0 offset1:16", "sta")
        if need_rs:
            k.lds(f"ds_read2_b32 {vr(RS_A,2)}, v{vT0} offset0:32 offset1:48", "sta")

    def stats_b():
        k.get(vT1, cSTB)
        for rb in range(2):
            k.lds(f"ds_read_b128 {vr(NM_B+4*rb,4)}, v{vT1} offset:{64*rb}", "sta")
            k.lds(f"ds_read_b128 {vr(RS_B+4*rb,4)}, v{vT1} offset:{128+64*rb}", "sta")

    def stats_scale():
        k.ds_wait("sta")
        for j in range(8):
            k(f"v_mul_f32 v{RL_B+j}, 0x3fb8aa3b, v{RS_B+j}")
        for j in range(2):
            k(f"v_mul_f32 v{RL_A+j}, 0x3fb8aa3b, v{RS_A+j}")

    def set_ones(r):
        for j in range(4):
            k(f"v_mov_b32 v{r+j}, {BF1}")

    def cs_put(acc, first, sblk):
        k.get(vT0, cCSA)
        k(f"s_lshl_b32 s{sT5}, s{sblk}, 6")
        k(f"v_add_u32 v{vT0}, s{sT5}, v{vT0}")
        k.lds(f"ds_write_b32 v{vT0}, v{acc} offset:{first*64}")

    def phi_block(acc, nm, cs, rl, rs, dst, tmp, lay):
        s1, s2, s3, s4, s5 = [], [], [], [], []
        for p in range(2):
            a2 = vr(acc + 2*p, 2)
            t2 = vr(tmp + 2*p, 2)
            if lay == "b":
                c2, m = bcast(cs, 1, 3)
                s1.append(f"v_pk_fma_f32 {a2}, {vr(nm+2*p,2)}, {c2}, {a2}{m}")
                s2.append(f"v_pk_mul_f32 {t2}, {a2}, {vr(rl+2*p,2)}")
                s4.append(f"v_pk_fma_f32 {a2}, {a2}, {vr(rs+2*p,2)}, {t2}")
            else:
                c2, m = bcast(nm, 1, 3)
                s1.append(f"v_pk_fma_f32 {a2}, {vr(cs+2*p,2)}, {c2}, {a2}{m}")
                c2, m = bcast(rl, 1, 2)
                s2.append(f"v_pk_mul_f32 {t2}, {a2}, {c2}{m}")
                c2, m = bcast(rs, 1, 3)
                s4.append(f"v_pk_fma_f32 {a2}, {a2}, {c2}, {t2}{m}")
            for j in range(2):
                s3.append(f"v_exp_f32 v{tmp+2*p+j}, v{tmp+2*p+j} clamp")
            s5.append(f"v_pk_add_f32 {a2}, {a2}, s[{sEPS}:{sEPS+1}]")
        for s in s1 + s2 + s3:
            k(s)
        for j in range(4):
            k(f"v_max_f32 v{acc+j}, 0, v{acc+j}")
        for s in s4 + s5:
            k(s)
        for p in range(2):
            k(f"v_cvt_pk_bf16_f32 v{dst+p}, v{acc+2*p}, v{acc+2*p+1}")

    def act_loads(bufoff):
        for ks in range(16):
            for rb in range(2):
                with k.atomic():
                    if ks % 4 == 0:
                        k(f"s_add_u32 s{sT2+rb}, s{sACT+rb}, {bufoff + ks*1024}")
                    k.vmem(f"buffer_load_dwordx4 {vr(act(ks,rb),4)}, v{vL16}, {srd(S_WS)}, s{sT2+rb} offen offset:{(ks%4)*1024} sc1",
                           ("act", ks, rb))

    def stat_loads(stoff):
        k(f"s_add_u32 s{sT4}, s{sSTg}, {stoff}")
        for j in range(2):
            k.vmem(f"buffer_load_dwordx4 {vr(STG+4*j,4)}, v{vL16}, {srd(S_WS)}, s{sT4} offen offset:{j*1024} sc1", "stg")

    def stat_sum():
        k.vm_wait("stg")
        for j in range(4):
            k(f"v_add_f32 v{SUM0+j}, v{STG+j}, v{STG+4+j}")

    def mf2(acc, ks, sw, wait, first=None):
        return [(acc + 4 * rb, act(ks, rb), sw, (ks == 0) if first is None else first,
                 (("act", ks, 1) if ks else ("act", ks, rb)) if wait else None) for rb in range(2)]

    def quad_lane(pitch, dst=vDM):
        k(f"v_lshrrev_b32 v{dst}, 3, v{vLANE}")
        k(f"v_and_b32 v{vT2}, 6, v{dst}")
        k(f"v_xor_b32 v{vT2}, v{vT2}, v{vLANE}")
        k(f"v_and_b32 v{vT2}, 7, v{vT2}")
        k(f"v_lshlrev_b32 v{vT2}, 4, v{vT2}")
        if isinstance(pitch, int):
            k(f"s_movk_i32 s{sD3}, {pitch}")
            pitch = f"s{sD3}"
        k(f"v_mad_u32_u24 v{dst}, v{dst}, {pitch}, v{vT2}")

    def wo_raw():
        with k.atomic():
            quad_lane(1024)
            k(f"s_lshl_b32 s{sD0}, s{sW}, 17")
            k(f"s_lshl_b32 s{sD1}, s{sCT}, 7")
            k(f"s_add_u32 s{sD0}, s{sD0}, s{sD1}")
            k(f"s_lshl_b32 s{sL0}, s{sW}, 14")
        for j in range(16):
            k.dma(S_WO, vDM, sD0, j * 8 * 1024, sL0, R0 + j * 1024, "wo")

    def w1c1_raw():
        with k.atomic():
            quad_lane(3584)
            k(f"s_lshr_b32 s{sD0}, s{sC}, 2")
            k(f"s_mul_i32 s{sD0}, s{sD0}, 896")
            k(f"s_and_b32 s{sD1}, s{sC}, 3")
            k(f"s_lshl_b32 s{sD1}, s{sD1}, 7")
            k(f"s_add_u32 s{sD0}, s{sD0}, s{sD1}")
            k(f"s_mul_i32 s{sD1}, s{sW}, {64*3584}")
            k(f"s_add_u32 s{sD0}, s{sD0}, s{sD1}")
            k(f"s_lshl_b32 s{sL0}, s{sW}, 13")
        for half in range(2):
            for j in range(8):
                k.dma(S_W1, vDM, sD0, (half * 256 + j * 8) * 3584, sL0, R1 + half * 32768 + j * 1024, "w1a")

    def lin_dma(src, dst, n, tag, shared=False):
        for j in range(n):
            with k.atomic():
                if j == 0:
                    k(f"s_mul_i32 s{sL0}, s{sW}, {n*1024}")
                    k(f"s_add_u32 s{sD0}, s{sL0}, s{sPKB}")
                    if shared:
                        k(f"s_mul_i32 s{sD1}, s{sDH}, {8*PK_SZ}")
                        k(f"s_sub_u32 s{sD0}, s{sD0}, s{sD1}")
                if j % 4 == 0:
                    k(f"s_add_u32 m0, s{sL0}, {dst + j*1024}")
                    k(f"s_add_u32 s{sD1}, s{sD0}, {src + j*1024}")
                k.vmem(f"buffer_load_dwordx4 v{vL16}, {srd(S_WS)}, s{sD1} offen offset:{(j%4)*1024} sc1 lds", tag)

    def publish_x(bufoff, stoff, floff, pay_sc1):
        k(f"s_add_u32 s{sT1}, s{sTILE}, {bufoff}")
        k.stores([f"buffer_store_dwordx4 {vr(vRES+4*s,4)}, v{vL16}, {srd(S_WS)}, s{sT1} offen offset:{s*1024}" for s in range(2)], pay_sc1)
        a, b, c, d = vT0, vT1, vT2, vT3
        for j in range(4):
            r0, r1 = vRES + j, vRES + 4 + j
            if j == 0:
                k(f"v_mov_b32 v{vWB+9}, {BF1}")
                k(f"v_dot2_f32_bf16 v{b}, v{r0}, v{r0}, 0")
                k(f"v_dot2_f32_bf16 v{d}, v{r1}, v{r1}, 0")
                k(f"v_dot2_f32_bf16 v{a}, v{vWB+9}, v{r0}, 0")
                k(f"v_dot2_f32_bf16 v{c}, v{vWB+9}, v{r1}, 0")
            else:
                k(f"v_dot2_f32_bf16 v{b}, v{r0}, v{r0}, v{b}")
                k(f"v_dot2_f32_bf16 v{d}, v{r1}, v{r1}, v{d}")
                k(f"v_dot2_f32_bf16 v{a}, v{vWB+9}, v{r0}, v{a}")
                k(f"v_dot2_f32_bf16 v{c}, v{vWB+9}, v{r1}, v{c}")
        k.get(vWB + 8, cSTO)
        k(f"""
        s_add_u32 s{sT3}, s{sSTo}, {stoff}
        v_add_f32 v{b}, v{b}, v{d}
        v_add_f32 v{a}, v{a}, v{c}
        s_nop 1
        v_permlane16_swap_b32 v{a}, v{b}
        v_add_f32 v{a}, v{a}, v{b}
        v_mov_b32 v{b}, v{a}
        s_nop 1
        v_permlane32_swap_b32 v{a}, v{b}
        v_add_f32 v{c}, v{a}, v{b}
        s_mov_b32 exec_hi, 0
        """)
        k.stores([f"buffer_store_dword v{c}, v{vWB+8}, {srd(S_WS)}, s{sT3} offen"], False)
        k("s_mov_b64 exec, -1")
        k.poll_prep(15)

    def unpack_res(dst):
        for f in range(4):
            for p in range(2):
                r = vRES + 2*f + p
                k(f"v_lshlrev_b32 v{dst+4*f+2*p}, 16, v{r}")
                k(f"v_and_b32 v{dst+4*f+2*p+1}, 0xffff0000, v{r}")

    def misc_l1():
        k(f"""
        s_add_u32 s{sT2}, s{sTAG}, s{sXCC}
        s_add_u32 s{sT2}, s{sT2}, 2
        v_mov_b32 v{vT1}, s{sT2}
        s_lshl4_add_u32 s{sT2}, s{sG}, s{sC}
        s_lshl_b32 s{sT2}, s{sT2}, 7
        s_add_u32 s{sT2}, s{sT2}, {WS_XID}
        """)
        with k.atomic():
            k(f"s_cmp_lg_u32 s{sW}, 0")
            k(f"s_cselect_b32 s{sT2}, {OOB}, s{sT2}")
            k("s_mov_b64 exec, 1")
            k.vmem(f"buffer_store_dword v{vT1}, v{vL16}, {srd(S_WS)}, s{sT2} offen sc1", "xid")
            k("s_mov_b64 exec, -1")

    def res_load():
        k.get(vT0, cOUT)
        k(f"v_and_b32 v{vT0}, 0xffffff80, v{vT0}")
        k(f"v_lshrrev_b32 v{vT1}, 4, v{vLANE}")
        k(f"v_lshl_add_u32 v{vT0}, v{vT1}, 3, v{vT0}")
        for f in range(4):
            k.vmem(f"buffer_load_dwordx2 {vr(vRES+2*f,2)}, v{vT0}, {srd(S_X)}, 0 offen offset:{32*f}", "res")

    def touch(kind):
        with k.atomic():
            k(f"s_lshl2_add_u32 s{sJ0}, s{sC}, s{sW}")
            sD2 = sJ0
            if kind == "h":
                k(f"s_mul_i32 s{sD2}, s{sD2}, 7168")
                k(f"s_add_u32 s{sD2}, s{sD2}, s{sGB}")
                k(f"s_add_u32 s{sD2}, s{sD2}, {G_H}")
                k(f"v_lshlrev_b32 v{vSP}, 7, v{vLANE}")
                k("s_mov_b32 exec_hi, 0xffffff")
                k.vmem(f"buffer_load_dword a255, v{vSP}, {srd(S_WS)}, s{sD2} offen sc1", "touch")
                k("s_mov_b32 exec_hi, -1")
            else:
                k(f"v_lshlrev_b32 v{vSP}, 7, v{vLANE}")
                k(f"s_lshl_b32 s{sT5}, s{sD2}, 11")
                k(f"s_add_u32 s{sT5}, s{sT5}, s{sGB}")
                k(f"s_add_u32 s{sT5}, s{sT5}, {G_X1}")
                k("s_mov_b64 exec, 0xffff")
                k.vmem(f"buffer_load_dword a255, v{vSP}, {srd(S_WS)}, s{sT5} offen sc1", "touch")
                k(f"s_lshl_b32 s{sD2}, s{sD2}, 7")
                k(f"s_add_u32 s{sD2}, s{sD2}, s{sGB}")
                k("s_mov_b64 exec, 1")
                k(f"s_add_u32 s{sD2}, s{sD2}, {G_ST1}")
                k.vmem(f"buffer_load_dword a255, v{vSP}, {srd(S_WS)}, s{sD2} offen sc1", "touch")
                k("s_mov_b64 exec, -1")

    def pack_setup():
        l2, l3, le = k.label("L_p2"), k.label("L_p3"), k.label("L_pe")
        with k.atomic():
            k(f"""
            s_mov_b32 s{S_B}, s{S_WQKV}
            s_mov_b32 s{S_B+1}, s{S_WQKV+1}
            s_mov_b32 s{S_B+2}, {512*3072}
            s_movk_i32 s{sD3}, 3072
            s_movk_i32 s{sD2}, 1024
            s_mul_i32 s{sD1}, s{sG}, {32*3072}
            s_lshl_b32 s{sT2}, s{sC}, 6
            s_add_u32 s{sD1}, s{sD1}, s{sT2}
            s_lshl_b32 s{sPDA}, s{sG}, 12
            s_add_u32 s{sPDA}, s{sPDA}, s{sPKB}
            s_lshr_b32 s{sT2}, s{sC}, 2
            s_mul_i32 s{sT2}, s{sT2}, 896
            s_mul_i32 s{sT3}, s{sG}, {32*3584}
            s_add_u32 s{sT2}, s{sT2}, s{sT3}
            s_and_b32 s{sT3}, s{sC}, 3
            s_cmp_eq_u32 s{sW}, 2
            s_cbranch_scc1 {l2}
            s_cmp_eq_u32 s{sW}, 3
            s_cbranch_scc1 {l3}
            s_mov_b32 s{S_A}, s{S_W2}
            s_mov_b32 s{S_A+1}, s{S_W2+1}
            s_mov_b32 s{S_A+2}, {1792*1024}
            s_lshl_b32 s{sT2}, s{sW}, 11
            s_add_u32 s{sPDB}, s{sPDA}, s{sT2}
            s_lshl_b32 s{sT2}, s{sW}, 10
            s_add_u32 s{sD1}, s{sD1}, s{sT2}
            s_add_u32 s{sD1}, s{sD1}, 1024
            s_lshl1_add_u32 s{sT2}, s2, s{sW}
            s_lshr_b32 s{sT3}, s{sT2}, 3
            s_and_b32 s{sT2}, s{sT2}, 7
            s_mul_i32 s{sPDA}, s{sT2}, 56
            s_add_u32 s{sPDA}, s{sPDA}, s{sT3}
            s_lshl_b32 s{sPDA}, s{sPDA}, 12
            s_add_u32 s{sPDA}, s{sPDA}, {WS_W2T}
            s_lshl_b32 s{sD0}, s{sT3}, 15
            s_lshl_b32 s{sT2}, s{sT2}, 7
            s_add_u32 s{sD0}, s{sD0}, s{sT2}
            s_cmp_ge_u32 s{sT3}, 56
            s_cselect_b32 s{sPDA}, {OOB}, s{sPDA}
            s_branch {le}
            {l2}:
            s_mov_b32 s{S_A}, s{S_W1}
            s_mov_b32 s{S_A+1}, s{S_W1+1}
            s_mov_b32 s{S_A+2}, {512*3584}
            s_movk_i32 s{sD2}, 3584
            s_lshl_b32 s{sT3}, s{sT3}, 7
            s_add_u32 s{sD0}, s{sT2}, s{sT3}
            s_add_u32 s{sPDA}, s{sPDA}, {PK_W1A}
            s_lshl_b32 s{sPDB}, s{sG}, 11
            s_add_u32 s{sPDB}, s{sPDB}, s{sPKB}
            s_add_u32 s{sPDB}, s{sPDB}, {PK_Q}
            s_branch {le}
            {l3}:
            s_mov_b32 s{S_A}, s{S_WO}
            s_mov_b32 s{S_A+1}, s{S_WO+1}
            s_mov_b32 s{S_A+2}, {512*1024}
            s_mov_b32 s{S_B}, s{S_W1}
            s_mov_b32 s{S_B+1}, s{S_W1+1}
            s_mov_b32 s{S_B+2}, {512*3584}
            s_movk_i32 s{sD3}, 3584
            s_lshl_b32 s{sD0}, s{sG}, 15
            s_lshl_b32 s{sD1}, s{sCT}, 7
            s_add_u32 s{sD0}, s{sD0}, s{sD1}
            s_add_u32 s{sPDA}, s{sPDA}, {PK_WO}
            s_cmp_ge_u32 s{sC}, 8
            s_cselect_b32 s{sPDA}, {OOB}, s{sPDA}
            s_cselect_b32 s{sD0}, {OOB}, s{sD0}
            s_mul_i32 s{sPDB}, s{sG}, 3072
            s_add_u32 s{sPDB}, s{sPDB}, s{sPKB}
            s_add_u32 s{sPDB}, s{sPDB}, {PK_W1B}
            s_mul_i32 s{sD1}, s{sT3}, 3
            s_add_u32 s{sD1}, s{sD1}, 17
            s_lshr_b32 s{sD1}, s{sD1}, 1
            s_lshl_b32 s{sD1}, s{sD1}, 6
            s_add_u32 s{sD1}, s{sD1}, s{sT2}
            s_lshr_b32 s{sT5}, s{sT3}, 1
            s_mul_i32 s{sT5}, s{sT5}, 6
            s_and_b32 s{sT3}, s{sT3}, 1
            s_add_u32 s{sT5}, s{sT5}, s{sT3}
            s_add_u32 s{sT5}, s{sT5}, 18
            s_lshl_b32 s{sT5}, s{sT5}, 5
            s_add_u32 s{sT5}, s{sT5}, s{sT2}
            v_lshrrev_b32 v{vDM}, 1, v{vLANE}
            v_and_b32 v{vT2}, 16, v{vL16}
            v_mad_u32_u24 v{vDM}, v{vDM}, s{sD3}, v{vT2}
            s_add_u32 m0, s{sL0}, 6144
            s_nop 0
            buffer_load_dwordx4 v{vDM}, {srd(S_W1)}, s{sT5} offen lds
            {le}:
            s_mov_b32 s{S_A+3}, 0x20000
            s_mov_b32 s{S_B+3}, 0x20000
            """)

    def pack_issue():
        pack_setup()
        with k.atomic():
            quad_lane(f"s{sD2}")
            k(f"s_lshl_b32 s{sD2}, s{sD2}, 3")
        for j in range(4):
            with k.atomic():
                k(f"s_add_u32 m0, s{sL0}, {j*1024}")
                if j:
                    k(f"s_add_u32 s{sD0}, s{sD0}, s{sD2}")
                else:
                    k("s_nop 0")
                k.vmem(f"buffer_load_dwordx4 v{vDM}, {srd(S_A)}, s{sD0} offen lds", "pk")
        with k.atomic():
            k(f"v_mad_u32_u24 v{vDM}, v{vP}, s{sD3}, v{vCH}")
            k(f"s_lshl_b32 s{sD3}, s{sD3}, 4")
        for hh in range(2):
            with k.atomic():
                k(f"s_add_u32 m0, s{sL0}, {4096 + hh*1024}")
                if hh:
                    k(f"s_add_u32 s{sD1}, s{sD1}, s{sD3}")
                else:
                    k("s_nop 0")
                k.vmem(f"buffer_load_dwordx4 v{vDM}, {srd(S_B)}, s{sD1} offen lds", "pk")

    def pack_finish(T):
        le = k.label("L_qe")
        k(f"s_lshl_b32 s{sT2}, s{sW}, 14")
        k(f"s_add_u32 s{sT2}, s{sT2}, {L_PST}")
        for f in range(4):
            k(f"v_add_u32 v{vT0+f}, s{sT2}, v{vQ0+f}")
        k.vm_wait("pk")
        for f in range(4):
            for hh in range(2):
                k.lds(f"ds_read_b64_tr_b16 {vr(T+4*f+2*hh,2)}, v{vT0+f} offset:{hh*2048}", "pa")
        k(f"v_add_u32 v{vT0}, s{sT2}, v{vTR0}")
        k(f"v_add_u32 v{vT1}, s{sT2}, v{vTR1}")
        k(f"v_lshl_add_u32 v{vT2}, v{vLANE}, 3, s{sT2}")
        for f in range(2):
            for hh in range(2):
                k.lds(f"ds_read_b64_tr_b16 {vr(T+16+4*f+2*hh,2)}, v{vT0+f} offset:{4096+hh*1024}")
        for hh in range(2):
            k.lds(f"ds_read_b64_tr_b16 {vr(T+24+2*hh,2)}, v{vT2} offset:{6144+hh*512}")
        k.ds_wait("pa")
        for f in range(4):
            k.vmem(f"buffer_store_dwordx4 {vr(T+4*f,4)}, v{vL16}, {srd(S_WS)}, s{sPDA} offen offset:{f*1024} sc1", "pst")
        k.ds_all()
        k(f"s_cmp_lg_u32 s{sW}, 3")
        k(f"s_cbranch_scc1 {le}")
        k(f"buffer_store_dwordx4 {vr(T+24,4)}, v{vL16}, {srd(S_WS)}, s{sPDB} offen offset:2048 sc1")
        k(f"{le}:")
        for f in range(2):
            k.vmem(f"buffer_store_dwordx4 {vr(T+16+4*f,4)}, v{vL16}, {srd(S_WS)}, s{sPDB} offen offset:{f*1024} sc1", "pst")

    def pack_flag():
        k(f"""
        s_lshl_b32 s{sD2}, s2, 7
        s_add_u32 s{sD2}, s{sD2}, {WS_PD}
        s_cmp_lg_u32 s{sW}, 0
        s_cselect_b32 s{sD2}, {OOB}, s{sD2}
        v_mov_b32 v{vT1}, s{sTAG}
        s_mov_b64 exec, 1
        """)
        k.vmem(f"buffer_store_dword v{vT1}, v{vL16}, {srd(S_WS)}, s{sD2} offen sc1")
        k("s_mov_b64 exec, -1")

    def pack_check_issue():
        with k.atomic():
            k(f"v_and_b32 v{vSP}, 1, v{vLANE}")
            k(f"v_lshlrev_b32 v{vSP}, 7, v{vSP}")
            k(f"v_lshrrev_b32 v{vSP2}, 1, v{vLANE}")
            k(f"s_lshl_b32 s{sT5}, s{sC}, 3")
            k(f"v_add3_u32 v{vSP}, v{vSP}, v{vSP2}, s{sT5}")
            k(f"v_min_u32 v{vSP2}, 29, v{vLANE}")
            k(f"s_mul_i32 s{sT5}, s{sW}, 56")
            k(f"s_lshr_b32 s{sPDA}, s{sCT}, 1")
            k(f"s_add_u32 s{sT5}, s{sT5}, s{sPDA}")
            k(f"s_sub_u32 s{sT5}, s{sT5}, 64")
            k(f"v_lshl_add_u32 v{vSP2}, v{vSP2}, 2, s{sT5}")
            k(f"v_cmp_gt_u32 vcc, 16, v{vLANE}")
            k(f"s_mov_b32 s{sPDA}, {WS_PD}")
            k("s_nop 0")
            k(f"v_cndmask_b32 v{vSP}, v{vSP2}, v{vSP}, vcc")
            k(f"v_lshlrev_b32 v{vSP}, 7, v{vSP}")
            k.vmem(f"buffer_load_dword v{vPQ}, v{vSP}, {srd(S_WS)}, s{sPDA} offen sc1", "pc")

    def pack_check():
        lp, ok = k.label("L_pc"), k.label("L_pcok")
        k.vm_wait("pc")
        k(f"{lp}:")
        k(f"v_cmp_ne_u32 vcc, s{sTAG}, v{vPQ}")
        k(f"s_cbranch_vccz {ok}")
        k(f"buffer_load_dword v{vPQ}, v{vSP}, {srd(S_WS)}, s{sPDA} offen sc1")
        k("s_waitcnt vmcnt(0)")
        k(f"s_sub_u32 s{sBUD}, s{sBUD}, 1")
        k(f"s_cbranch_scc0 {lp}")
        k(f"s_mov_b32 s{sBUD}, 0")
        k(f"{ok}:")

    def wq_raw():
        k(f"s_lshl_b32 s{sL1}, s{sW}, 11")
        for r in range(4):
            for hh in range(2):
                k.dma(S_WQKV, vDM, sRB + r, hh * 4 * 3072, sL1, R1 + r * 8192 + hh * 1024, "wq")

    def async_check(tag, soff, imm):
        ok = k.label("L_aok")
        with k.atomic():
            k.vm_wait(tag)
            k(f"v_cmp_ne_u32 vcc, s{sTAG}, v{vT0}")
            k(f"s_cbranch_vccz {ok}")
            k.save_vm()
            k.poll(soff, imm, False)
            k.restore_vm()
            k(f"{ok}:")

    CSK = vT0
    gA = None
    for layer in range(1 if o.get("one") else 2):
        L1 = layer == 0
        sc = o.get("sc1", 0x07)
        psc = lambda i: bool(sc >> (4 * layer + i) & 1)
        PRE = o.get("pre", 8)

        def kv_consts():
            k.get(vPQ, cCSA)
            k.lds(f"ds_read2_b32 {vr(CSK,2)}, v{vPQ} offset0:0 offset1:16", "cs")
            k.lds(f"ds_read2_b32 {vr(CSK+2,2)}, v{vPQ} offset0:32 offset1:48", "cs")
        if L1:
            CSA = vACC + 32
            set_ones(ONES)
            k(f"s_and_b32 s{sT0}, s{sW}, 1")
            k(f"s_lshl_b32 s{sT0}, s{sT0}, 5")
            k(f"v_xor_b32 v{vPQ+3}, s{sT0}, v{vTR0}")
            k(f"s_lshr_b32 s{sT0}, s{sW}, 1")
            k(f"s_lshl_b32 s{sT0}, s{sT0}, 11")
            k(f"v_add_u32 v{vPQ+2}, s{sT0}, v{vPQ+3}")
            xslot(0, range(2, 8)); xslot(1, range(o.get("x1pre", 4)))
            xread(0)
            xslot(1, range(o.get("x1pre", 4), 8))
            k.ds_all(True)
            k.stamp("x0")
            k(f"s_mul_i32 s{sTAG}, s{sEP}, 0x9E3779B1")
            k(f"s_add_u32 s{sTAG}, s{sTAG}, 0x7F4A7C15")
            k(f"s_add_u32 s{sT8}, s{sEP}, 1")
            k(f"s_and_b32 s{sT8}, s{sT8}, 0xff")

            def rnd_begin(r):
                k.vm_wait(("wkv", r))
                k.barrier(True)
                fr = []
                for ks in range(4 * r, 4 * r + 4):
                    fr.append(dict(addr=vPQ + 2, offs=(R0 + ks * 4096, R0 + ks * 4096 + 1024), mf=[(CSA, ONES, False, ks == 0, None)]))
                for ks in range(4 * r, 4 * r + 4):
                    for pr in range(2):
                        for b in range(2):
                            base = R0 + ks * 4096 + pr * 2048
                            fr.append(dict(addr=(vTR0, vTR1)[b], offs=(base, base + 1024), mf=mf2(vACC + 16 * pr + 8 * b, ks, False, False)))
                return k.gemm_begin(fr)
            g = rnd_begin(0)
            f = {}; spread(f, k.rec(lambda: (wkv_raw(1), xslot(2, range(4)))), 0, 2); xstats(0, f)
            f = {}; spread(f, k.rec(lambda: (xslot(2, range(4, 8)), wkv_raw(2))), 0, 4); spread(f, k.rec(lambda: xread(1)), 29, 1, 2); k.gemm_run(g, f)
            k.stamp("r0")
            g = rnd_begin(1)
            f = {}; spread(f, k.rec(lambda: xslot(3)), 0, 2); xstats(1, f)
            wq = k.rec(wq_raw)
            f = {}; spread(f, k.rec(lambda: wkv_raw(3)) + wq[:5], 0, 4); spread(f, k.rec(lambda: xread(2)), 31, 1, 2); k.gemm_run(g, f)
            k.stamp("r1")
            f = {}; spread(f, k.rec(lambda: xread(3)), 7, 1); xstats(2, f)
            g = rnd_begin(2)
            f = {}; spread(f, wq[5:7], 0, 8); xstats(3, f)
            f = {}; spread(f, k.rec(lambda: (xstats_extract(), stats_finalize(True))), 3, 1); spread(f, wq[7:], 4, 16); k.gemm_run(g, f)
            k.stamp("r2")
            g = rnd_begin(3)
            f = {}
            bg = k.rec(pack_issue)
            npk = o.get("npk", 9)
            spread(f, k.rec(lambda: cs_put(CSA, 0, sW)), 8, 0.5)
            spread(f, k.rec(stats_b), 10, 1)
            spread(f, k.rec(stats_scale), 24, 1)
            spread(f, bg[:npk], 1, 4)
            bg = bg[npk:] + (k.rec(arm) if o.get("arm", 0) == 2 else []) + k.rec(lambda: k.vm_wait("arm") if o.get("arm", 0) else None) + k.rec(misc_l1)
            k.gemm_run(g, f)
            k.stamp("A.kv")
            k.barrier()
            kv_consts()
        else:
            k.poll(sFXp, G_FX2)
            k.stamp("A.poll")
            al = k.rec(lambda: act_loads(G_X2))
            k.play(al[:PRE])
            k(f"s_add_u32 s{sTAG}, s{sTAG}, 1")
            fill = {}
            sl = k.rec(lambda: stat_loads(G_ST2))
            e = spread(fill, al[PRE:PRE+8] + [lambda: k.play(sl[:2]), sl[2]] + al[PRE+8:], 0, 4)
            e2 = spread(fill, k.rec(lambda: (stat_sum(), stats_finalize(True), stats_b())), 66, 1)
            e2 = spread(fill, k.rec(stats_scale), e2 + 6, 1)
            spread(fill, k.rec(kv_consts), e2, 1)
            spread(fill, k.rec(lambda: lin_dma(PK_W1A + 32768, R2, 8, "w1a")), e, 3)
            k.gemm_run(gA, fill)
            k.stamp("A.kv")
            bg = []
        set_ones(vWB + 28)
        k.get(vWB + 22, cKW1 if L1 else cKW)
        k.get(vWB + 23, cKR1 if L1 else cKR)
        k.ds_all()
        PK, PV, TMP = vPQ, vACC, vWB + 24
        KVA = vACC + 16

        def kv_epi():
            for h in range(2):
                for rb in range(2):
                    phi_block(vACC + 8*h + 4*rb, NM_B + 4*rb, CSK + h, RL_B + 4*rb, RS_B + 4*rb, PK + 4*h + 2*rb, TMP, "b")
            for h in range(2):
                for rb in range(2):
                    a = vACC + 16 + 8*h + 4*rb
                    c2, m = bcast(CSK + 2 + h, 1, 3)
                    for p in range(2):
                        k(f"v_pk_fma_f32 {vr(a+2*p,2)}, {vr(NM_B+4*rb+2*p,2)}, {c2}, {vr(a+2*p,2)}{m}")
                    for p in range(2):
                        k(f"v_pk_mul_f32 {vr(a+2*p,2)}, {vr(a+2*p,2)}, {vr(RS_B+4*rb+2*p,2)}")
                    for p in range(2):
                        k(f"v_cvt_pk_bf16_f32 v{PV+4*h+2*rb+p}, v{a+2*p}, v{a+2*p+1}")
                    if rb == 0:
                        k(f"v_mfma_f32_16x16x32_bf16 {vr(vACC+8+4*h,4)}, {vr(PK+4*h,4)}, {vr(vWB+28,4)}, 0")
                if h == 0:
                    pass
        kv_epi()
        KRS = 14 if L1 else 12
        k.lds(f"ds_write_b128 v{vWB+22}, {vr(vACC+8,4)} offset:{2 << KRS}")
        for h in range(2):
            k(f"v_mfma_f32_16x16x32_bf16 {vr(KVA+4*h,4)}, {vr(PK+4*h,4)}, {vr(PV+4*h,4)}, 0")
        k.lds(f"ds_write_b128 v{vWB+22}, {vr(vACC+12,4)} offset:{3 << KRS}")
        k.get(vWB + 21, cKVS)
        k("s_nop 4")
        for h in range(2):
            k.lds(f"ds_write_b128 v{vWB+22}, {vr(KVA+4*h,4)} offset:{h << KRS}")
        if L1:
            k.vm_wait("wq")
        k.barrier()
        for s in range(4):
            k.lds(f"ds_read_b128 {vr(vWB+4*s,4)}, v{vWB+23} offset:{s*1024}", ("kr", s))
        KO = vACC + 32
        k.ds_wait(("kr", 1))
        for p in range(2):
            k(f"v_pk_add_f32 {vr(vWB+2*p,2)}, {vr(vWB+2*p,2)}, {vr(vWB+4+2*p,2)}")
        k.ds_wait(("kr", 3))
        for p in range(2):
            k(f"v_pk_add_f32 {vr(vWB+8+2*p,2)}, {vr(vWB+8+2*p,2)}, {vr(vWB+12+2*p,2)}")
        for p in range(2):
            k(f"v_pk_add_f32 {vr(KO+2*p,2)}, {vr(vWB+2*p,2)}, {vr(vWB+8+2*p,2)}")
        k(f"v_and_b32 v{KO}, 0xffffff00, v{KO}")
        k(f"v_or_b32 v{KO}, s{sT8}, v{KO}")
        k(f"s_mov_b64 exec, s[{sKM}:{sKM+1}]")
        k.vmem(f"buffer_store_dwordx4 {vr(KO,4)}, v{vWB+21}, {srd(S_WS)}, s{sKVP} offen sc1", "kvst")
        k("s_mov_b64 exec, -1")
        k.stamp("A.kvpub")
        fill = {}
        fr = []
        CSQ = vACC + 24

        def q_consts():
            k.get(vT0, cCSB)
            for h in range(2):
                k.lds(f"ds_read_b128 {vr(CSQ+4*h,4)}, v{vT0} offset:{(4+h)*64}")
        if L1:
            set_ones(ONES)
            k(f"v_add_u32 v{vPQ}, {R1}, v{vTR0}")
            k(f"v_add_u32 v{vPQ+1}, {R1}, v{vTR1}")
            k(f"s_and_b32 s{sT0}, s{sW}, 1")
            k(f"s_lshl_b32 s{sT1}, s{sT0}, 5")
            k(f"v_xor_b32 v{vPQ+2}, s{sT1}, v{vPQ}")
            for j in range(16):
                fr.append(dict(addr=vPQ + 2, offs=(j * 2048, j * 2048 + 1024), mf=[(vACC + 16, ONES, False, j == 0, None)]))
            for ks in range(16):
                for b in range(2):
                    fr.append(dict(addr=vPQ + b, offs=(ks * 2048, ks * 2048 + 1024), mf=mf2(vACC + 8 * b, ks, True, False)))
            wor = k.rec(wo_raw)
            if o.get("qord", 0) == 0:
                e = spread(fill, bg + k.rec(res_load), 0, 1)
            else:
                e = spread(fill, k.rec(res_load), 0, 1)
            if o.get("tq", 0) & 1:
                e = spread(fill, k.rec(lambda: touch("x")), e, 1)
            if o.get("tq", 0) & 4:
                e = spread(fill, k.rec(lambda: touch("h")), e, 1)
            spread(fill, wor, e, 3)
            k.gemm(fr, fill)
            if o.get("diag"): k.stamp("q.mm")
            cs_put(vACC + 16, 4, sT0)
            k.barrier()
            q_consts()
        else:
            k(f"v_add_u32 v{vPQ}, {R1}, v{vL16}")
            for ks in range(16):
                for b in range(2):
                    fr.append(dict(addr=vPQ, offs=(ks * 2048 + b * 1024,), mf=mf2(vACC + 8 * b, ks, True, False)))
            e = 0
            if o.get("tq", 0) & 2:
                e = spread(fill, k.rec(lambda: touch("h")), e, 1)
            spread(fill, k.rec(lambda: lin_dma(PK_WO, R0, 16, "wo", True)), e, o.get("wostep", 3))
            spread(fill, k.rec(q_consts), 50, 1)
            k.gemm(fr, fill)
        lz, lj = k.label("L_kz"), k.label("L_kj")
        lp2, done2 = k.label("L_kp"), k.label("L_kd")
        SM = vWB + 8

        def kv_loads(track):
            for j in range(16):
                if j % 4 == 0:
                    k(f"s_add_u32 s{sT2}, s{sKVC}, {j*1024}")
                ins = f"buffer_load_dwordx4 {vr(vACT+4*j,4)}, v{vL16}, {srd(S_WS)}, s{sT2} offen offset:{(j%4)*1024} sc1"
                if track:
                    k.vmem(ins, ("kv", j))
                else:
                    k(ins)
        if L1:
            if o.get("diag"):
                k.stamp("q.bar")
                k.vm_wait("pk"); k.stamp("q.pk")
                k.vm_wait("res"); k.stamp("q.res")
                k.vm_wait("wo"); k.stamp("q.wo")
            pack_finish(vACT + 64)
            if o.get("diag"):
                k.stamp("q.pf")
                k.vm_all(); k.stamp("q.pst")
            w1a = k.rec(w1c1_raw)
            na = 1 + o.get("w1a0", 0)
            k.play(w1a[:na]); w1a = w1a[na:]
            lp, done = k.label("L_xp"), k.label("L_xd")
            k(f"s_lshl_b32 s{sT4}, s{sG}, 11")
            k(f"s_add_u32 s{sT4}, s{sT4}, {WS_XID}")
            k(f"s_add_u32 s{sT3}, s{sTAG}, 2")
            k.poll_prep(15)
            k(f"v_lshlrev_b32 v{vT3}, 5, v{vT3}")
            k.vmem(f"buffer_load_dword v{vT0}, v{vT3}, {srd(S_WS)}, s{sT4} offen sc1", "xidl")
        k(f"s_cmp_ge_u32 s{sW}, 2")
        k(f"s_cbranch_scc1 {lz}_a")
        kv_loads(False)
        k(f"s_branch {lj}_a")
        k(f"{lz}_a:")
        k.get(vT2, cZL)
        k(f"buffer_load_dwordx4 {vr(SM,4)}, v{vT2}, {srd(S_WS)}, s{sKVC} offen sc1")
        k("s_nop 5")
        k(f"{lj}_a:")
        k.ds_all()
        for h in range(2):
            for rb in range(2):
                phi_block(vACC + 8*h + 4*rb, NM_A + rb, CSQ + 4*h, RL_A + rb, RS_A + rb, vPQ + 4*h + 2*rb, vWB, "a")
        k.stamp("A.q")
        k.get(vT1, cXW)
        k.get(vWB + 16, cXR)
        k.get(vWB + 17, cZR)
        k(f"s_cmp_ge_u32 s{sW}, 2")
        k(f"s_cbranch_scc1 {lz}_w")
        k(f"s_branch {lp2}_s")
        k(f"{lp2}:")
        kv_loads(True)
        k(f"{lp2}_s:")
        for j in range(0, 16, 2):
            a, b = vACT + 4*j, vACT + 4*j + 4
            k.vm_wait(("kv", j + 1))
            if j == 0:
                k(f"v_and_b32 v{SM+4}, v{a}, v{b}")
                k(f"v_or_b32 v{SM+5}, v{a}, v{b}")
                for p in range(2):
                    k(f"v_pk_add_f32 {vr(SM+2*p,2)}, {vr(a+2*p,2)}, {vr(b+2*p,2)}")
            else:
                k(f"v_and_b32 v{SM+4}, v{SM+4}, v{a}")
                k(f"v_and_b32 v{SM+4}, v{SM+4}, v{b}")
                k(f"v_or3_b32 v{SM+5}, v{SM+5}, v{a}, v{b}")
                for p in range(2):
                    k(f"v_pk_add_f32 {vr(a+2*p,2)}, {vr(a+2*p,2)}, {vr(b+2*p,2)}")
                for p in range(2):
                    k(f"v_pk_add_f32 {vr(SM+2*p,2)}, {vr(SM+2*p,2)}, {vr(a+2*p,2)}")
        k(f"""
        v_xor_b32 v{SM+4}, s{sT8}, v{SM+4}
        v_xor_b32 v{SM+5}, s{sT8}, v{SM+5}
        v_or_b32 v{SM+4}, v{SM+4}, v{SM+5}
        v_and_b32 v{SM+4}, 0xff, v{SM+4}
        v_cmp_ne_u32 vcc, 0, v{SM+4}
        v_cvt_pk_bf16_f32 v{SM}, v{SM}, v{SM+1}
        v_cvt_pk_bf16_f32 v{SM+1}, v{SM+2}, v{SM+3}
        s_cbranch_vccz {done2}
        s_sub_u32 s{sBUD}, s{sBUD}, 4
        s_cbranch_scc0 {lp2}
        s_mov_b32 s{sBUD}, 0
        {done2}:
        ds_write_b64 v{vT1}, {vr(SM,2)}
        s_branch {lj}
        {lz}:
        buffer_load_dwordx4 {vr(SM,4)}, v{vT2}, {srd(S_WS)}, s{sKVC} offen sc1
        {lz}_w:
        s_waitcnt vmcnt(0)
        v_xor_b32 v{SM+4}, s{sT8}, v{SM}
        v_and_b32 v{SM+4}, 0xff, v{SM+4}
        v_cmp_ne_u32 vcc, 0, v{SM+4}
        s_cbranch_vccz {lz}_ok
        s_sleep 2
        s_sub_u32 s{sBUD}, s{sBUD}, 1
        s_cbranch_scc0 {lz}
        s_mov_b32 s{sBUD}, 0
        {lz}_ok:
        v_permlane32_swap_b32 v{SM}, v{SM+1}
        v_permlane32_swap_b32 v{SM+2}, v{SM+3}
        v_add_f32 v{SM}, v{SM}, v{SM+1}
        v_add_f32 v{SM+2}, v{SM+2}, v{SM+3}
        s_nop 1
        v_permlane16_swap_b32 v{SM}, v{SM+2}
        v_add_f32 v{SM}, v{SM}, v{SM+2}
        s_nop 1
        v_add_f32_dpp v{SM}, v{SM}, v{SM} row_ror:4 row_mask:0xf bank_mask:0xf
        s_nop 1
        v_add_f32_dpp v{SM}, v{SM}, v{SM} row_ror:8 row_mask:0xf bank_mask:0xf
        v_cvt_pk_bf16_f32 v{SM}, v{SM}, v{SM}
        ds_write_b16 v{vT1}, v{SM}
        {lj}:
        """)
        k.stamp("A.kvget")
        k.barrier(True)
        for h in range(2):
            k.lds(f"ds_read_b64 {vr(vWB+4*h+2,2)}, v{vWB+17} offset:{h*32}")
            k.lds(f"ds_read_b64 {vr(vWB+4*h,2)}, v{vWB+16} offset:{512*h}")
        if L1:
            k(f"{lp}:")
            k(f"v_subrev_u32 v{vT0}, s{sT3}, v{vT0}")
            k(f"v_cmp_lt_u32 vcc, 8, v{vT0}")
            k(f"s_cbranch_vccz {done}")
            k(f"buffer_load_dword v{vT0}, v{vT3}, {srd(S_WS)}, s{sT4} offen sc1")
            k("s_waitcnt vmcnt(0)")
            k(f"s_sub_u32 s{sBUD}, s{sBUD}, 1")
            k(f"s_cbranch_scc0 {lp}")
            k(f"s_mov_b32 s{sBUD}, 0")
            k(f"{done}:")
            k(f"v_cmp_ne_u32 vcc, s{sXCC}, v{vT0}")
            k("s_nop 4")
            k(f"s_or_b32 s{sSLOW}, vcc_lo, {1 if o.get('forceslow') else 0}")
        k.ds_all()
        OA = vACC + 16
        for rb in range(2):
            for h in range(2):
                d = OA + 16*rb + 8*h
                k(f"v_mfma_f32_16x16x16_bf16 {vr(d+4,4)}, {vr(vWB+4*h+2,2)}, {vr(vPQ+4*h+2*rb,2)}, 0")
        for rb in range(2):
            for h in range(2):
                d = OA + 16*rb + 8*h
                k(f"v_mfma_f32_16x16x16_bf16 {vr(d,4)}, {vr(vWB+4*h,2)}, {vr(vPQ+4*h+2*rb,2)}, 0")
        k("s_nop 1")
        for rb in range(2):
            for h in range(2):
                d = OA + 16*rb + 8*h
                k(f"v_add_f32 v{d+4}, s{sEPS}, v{d+4}")
        for rb in range(2):
            for h in range(2):
                d = OA + 16*rb + 8*h
                k(f"v_rcp_f32 v{d+4}, v{d+4}")
        for rb in range(2):
            for h in range(2):
                d = OA + 16*rb + 8*h
                for p in range(2):
                    k(f"v_pk_mul_f32 {vr(d+2*p,2)}, {vr(d+2*p,2)}, {vr(d+4,2)} op_sel_hi:[1,0]")
                for p in range(2):
                    k(f"v_cvt_pk_bf16_f32 v{vPQ+4*rb+2*h+p}, v{d+2*p}, v{d+2*p+1}")
        k.stores([f"buffer_store_dwordx4 {vr(vPQ+4*rb,4)}, v{vL16}, {srd(S_WS)}, s{sOST+rb} offen" for rb in range(2)], psc(0))
        if L1:
            pack_flag()
        else:
            w1a = k.rec(lambda: lin_dma(PK_W1A, R1, 8, "w1a"))
        nb = o.get("w1a_pre1", 8) if L1 else o.get("w1a_pre", 4)
        k.play(w1a[:nb])
        unpack_res(vACC)
        fr = []
        for ks in range(16):
            for f in range(4):
                mf = [(vACC + 4 * f, vACT + 4 * ks, True, False, ("act", ks))]
                if L1:
                    fr.append(dict(addr=vQ0 + f, offs=(R0 + ks * 4096, R0 + ks * 4096 + 2048), mf=mf))
                else:
                    fr.append(dict(addr=vL16, offs=(R0 + ks * 4096 + f * 1024,), mf=mf))
        g = k.gemm_begin(fr, 7)
        k.poll_prep(15)
        k.flag(sFOo, G_FO)
        k.stamp("A.opub")
        k.poll(sFOp, G_FO)
        k.stamp("B.poll")

        def b_loads():
            for ks in range(16):
                with k.atomic():
                    if ks % 4 == 0:
                        k(f"s_add_u32 s{sT2}, s{sBACT}, {G_O + ks*1024}")
                    k.vmem(f"buffer_load_dwordx4 {vr(vACT+4*ks,4)}, v{vL16}, {srd(S_WS)}, s{sT2} offen offset:{(ks%4)*1024} sc1", ("act", ks))
        bl = k.rec(b_loads)
        k.play(bl[:PRE])
        fill = {}
        e = spread(fill, bl[PRE:], 0, 3)
        e = spread(fill, w1a[nb:], e, 3)
        if L1:
            spread(fill, k.rec(pack_check_issue), min(e, 63), 1)
        k.gemm_run(g, fill)
        k.stamp("B.mm")
        if L1:
            for f in range(4):
                k(f"v_add_u32 v{vQ0+f}, {R1}, v{vQ0+f}")
            k("s_nop 3")
        else:
            k(f"v_add_u32 v{vQ0}, {R1}, v{vL16}")
            k("s_nop 6")
        for f in range(4):
            for p in range(2):
                k(f"v_cvt_pk_bf16_f32 v{vRES+2*f+p}, v{vACC+4*f+2*p}, v{vACC+4*f+2*p+1}")
        publish_x(G_X1, G_ST1, G_FX1, psc(1))
        k.flag(sFXo, G_FX1)
        k.stamp("B.pub")
        k("s_barrier")
        if L1:
            pack_check()
        w1c2 = k.rec(lambda: lin_dma(PK_W1B, R0, 12, "w1c2"))
        nc = o.get("w1c2_pre1", 8) if L1 else o.get("w1c2_pre", 4)
        k.play(w1c2[:nc])
        if L1:
            set_ones(ONES)
            k(f"s_lshl_b32 s{sT2}, s{sW}, 5")
            k(f"v_xor_b32 v{vPQ}, s{sT2}, v{vQ0}")
            fr = []
            for j in range(16):
                fr.append(dict(addr=vPQ, offs=(j * 4096, j * 4096 + 2048), mf=[(vACC + 32, ONES, False, j == 0, None)]))
            k.gemm(fr, D=7)
            k("s_nop 5")
            cs_put(vACC + 32, 6, sW)
        fr = []
        for ks in range(16):
            for f in range(4):
                if L1:
                    fr.append(dict(addr=vQ0 + f, offs=(ks * 4096, ks * 4096 + 2048), mf=mf2(vACC + 8 * f, ks, True, True)))
                else:
                    fr.append(dict(addr=vQ0, offs=(ks * 4096 + f * 1024,), mf=mf2(vACC + 8 * f, ks, True, True)))
        g = k.gemm_begin(fr)
        k.poll(sFXp, G_FX1)
        k.stamp("C.poll")
        C2 = vACC + 32

        def w2t_loads():
            for j in range(56):
                with k.atomic():
                    if j == 0:
                        k(f"s_lshl2_add_u32 s{sD2}, s{sCT}, s{sW}")
                        k(f"s_mul_i32 s{sD2}, s{sD2}, 57344")
                        k(f"s_add_u32 s{sD2}, s{sD2}, {WS_W2T}")
                    if j % 4 == 0:
                        k(f"s_add_u32 s{sD3}, s{sD2}, {j*1024}")
                    k.vmem(f"buffer_load_dwordx4 {ar(4*j,4)}, v{vL16}, {srd(S_WS)}, s{sD3} offen offset:{(j%4)*1024} sc1", ("w2t", j // 4))

        def c2_init():
            k.get(vT0, cCSB)
            for b in range(3):
                k.lds(f"ds_read_b128 {vr(C2+8*b+4,4)}, v{vT0} offset:{(10+b)*64}", "cs2")
            k("s_nop 0")
            k("s_nop 0")
            k("s_nop 0")
            k.ds_wait("cs2")
            for b in range(3):
                for rb in range(2):
                    for j in range(4):
                        k(f"v_mul_f32 v{C2+8*b+4*rb+j}, v{C2+8*b+4+j}, v{NM_A+rb}")
        al = k.rec(lambda: act_loads(G_X1))
        k.play(al[:PRE])
        fill = {}
        sl = k.rec(lambda: stat_loads(G_ST1))
        e = spread(fill, al[PRE:PRE+4] + [lambda: k.play(sl[:2]), sl[2]] + al[PRE+4:], 0, 4)
        e2 = spread(fill, k.rec(lambda: (stat_sum(), stats_finalize(False))), 52, 1.5 if L1 else 1)
        if not L1:
            spread(fill, k.rec(c2_init), e2 + 2, 1)
        e = spread(fill, w1c2[nc:], e, 2)
        w2 = []
        if L1:
            w2 = k.rec(w2t_loads)
            n0 = o.get("nw2a", 4)
            spread(fill, w2[:n0], e, 4)
            w2 = w2[n0:]
        k.gemm_run(g, fill)
        k.stamp("C.mm1")
        k.vm_wait("w1c2")
        if o.get("diagd"): k.stamp("C.w1c2")
        k.barrier()

        def relu_block(acc, cs, rb, dst):
            if cs is not None:
                for j in range(4):
                    k(f"v_fmac_f32 v{acc+j}, v{cs+j}, v{NM_A+rb}")
            for p in range(2):
                k(f"v_cvt_pk_bf16_f32 v{dst+p}, v{acc+2*p}, v{acc+2*p+1}")
            for p in range(2):
                k(f"v_pk_max_i16 v{dst+p}, v{dst+p}, 0")

        def epi1():
            k.get(vT2, cCSB)
            for s in range(2):
                for b in range(2):
                    k.lds(f"ds_read_b128 {vr(vPQ+4*b,4)}, v{vT2} offset:{(6+2*s+b)*64}", "cs")
                for _ in range(6):
                    k.play([lambda: None])
                k.ds_wait("cs")
                for rb in range(2):
                    for b in range(2):
                        relu_block(vACC + 16*s + 8*b + 4*rb, vPQ + 4*b, rb, vACC + 16*s + 4*rb + 2*b)
                k.stores([f"buffer_store_dwordx4 {vr(vACC+16*s+4*rb,4)}, v{vL16}, {srd(S_WS)}, s{sH1+rb} offen offset:{s*1024}"
                          for rb in range(2)], psc(2))

        def d_setup():
            for j in range(4):
                with k.atomic():
                    k(f"s_add_u32 s{sT0}, s{sW}, {j}")
                    k(f"s_and_b32 s{sT0}, s{sT0}, 3")
                    k(f"s_lshl2_add_u32 s{sT0}, s{sDH}, s{sT0}")
                    k(f"s_lshl2_add_u32 s{sT0}, s{sT0}, s{sW}")
                with k.atomic():
                    k(f"s_mul_i32 s{sT0}, s{sT0}, 14336")
                    k(f"s_add_u32 s{sT0}, s{sT0}, s{sGB}")
                    k(f"s_add_u32 s{sRB+j}, s{sT0}, {G_H}")
            k.poll_prep(7)
        fill = {}
        fr = []
        if L1:
            set_ones(ONES)
            k(f"s_min_u32 s{sT0}, s{sW}, 2")
            k(f"s_lshl_b32 s{sT2}, s{sT0}, 10")
            k(f"v_add_u32 v{vPQ}, s{sT2}, v{vL16}")
            fc = []
            for j in range(16):
                fc.append(dict(addr=vPQ, offs=(R0 + j * 3072,), mf=[(vACC + 56, ONES, False, j == 0, None)]))
            n0 = o.get("nw2c", 3)
            f = {}; spread(f, w2[:n0], 0, 5); w2 = w2[n0:]
            k.gemm(fc, f, D=7)
            k("s_nop 5")
            cs_put(vACC + 56, 10, sT0)
        if o.get("th", 0) >> layer & 1:
            spread(fill, k.rec(lambda: touch("h")), 0, 1)
        e = spread(fill, k.rec(epi1), 0, 0.5)
        e2 = spread(fill, k.rec(d_setup), e, 1)
        spread(fill, k.rec(lambda: k.flag(sFHo, G_FH)), min(e + o.get("fl1", 24), 94), 1)
        spread(fill, k.rec(lambda: k.vmem(f"buffer_load_dword v{vT0}, v{vT3}, {srd(S_WS)}, s{sFHp} offen offset:{G_FH} sc1", "p1")), o.get("p1", 95), 1)
        if L1:
            nw2 = o.get("nw2", 18)
            spread(fill, w2[:nw2], 0, 94 / max(nw2, 1))
            w2 = w2[nw2:]
        for ks in range(16):
            for b in range(3):
                fr.append(dict(addr=vL16, offs=(R0 + ks * 3072 + b * 1024,), mf=mf2(C2 + 8 * b, ks, True, False, None if L1 else False)))
        k.gemm(fr, fill)
        k.stamp("C.mm2")
        seq = [(ksl, j) for ksl in range(11) for j in range(4)] + [(ksl, j) for j in (1, 2, 3, 0) for ksl in (11, 12, 13)]
        hb = [0, 0, 0, 0]

        def hload(t):
            ksl, j = seq[t]
            if ksl // 4 != hb[j]:
                k(f"s_add_u32 s{sRB+j}, s{sRB+j}, 4096")
                hb[j] += 1
            k.vmem(f"buffer_load_dwordx4 {vr(vACT+4*(t%28),4)}, v{vL16}, {srd(S_WS)}, s{sRB+j} offen offset:{(ksl%4)*1024} sc1", ("h", t))
        HO = vWB + 16
        LA = o.get("dla", 10)
        k.seen = {t for t in k.seen if not (isinstance(t, tuple) and t[0] == "h")}
        if L1:
            k.barrier()
            k.get(vT2, cCSB)
            for b in range(3):
                k.lds(f"ds_read_b128 {vr(vWB+4*b,4)}, v{vT2} offset:{(10+b)*64}")
            k.ds_all()
        else:
            k("s_nop 7")
        for rb in range(2):
            for b in range(3):
                relu_block(C2 + 8*b + 4*rb, vWB + 4*b if L1 else None, rb, HO + 8*rb + 2*b)
        its = []
        for rb in range(2):
            its.append(f"buffer_store_dwordx4 {vr(HO+8*rb,4)}, v{vL16}, {srd(S_WS)}, s{sH2+rb} offen")
            its.append(f"buffer_store_dwordx2 {vr(HO+8*rb+4,2)}, v{vL16}, {srd(S_WS)}, s{sH3+rb} offen")
        k.stores(its, psc(2))
        async_check("p1", sFHp, G_FH)
        k.stamp("D.poll1")
        tail = k.rec(lambda: (lin_dma(PK_KV, R0, 16, "wkv2"), lin_dma(PK_Q, R1, 8, "wq2"))) if L1 else []
        for t in range(LA):
            hload(t)
            if w2 and t % 2:
                k.play(w2[:1]); w2 = w2[1:]
        k.vm_note(0)
        k.flag(sFHo, G_FH + 1024)
        RSD = vPQ
        k.get(vPQ + 1, cRSD)
        k.lds(f"ds_read_b32 v{RSD}, v{vPQ+1}", "rsd")
        for j in range(4):
            k.get(vPQ + 4 + j, cRD0 + j)
        ur = k.rec(lambda: unpack_res(vWB))
        wr = []
        for t in range(56):
            ksl, j = seq[t]
            if L1:
                k.vm_wait(("w2t", ksl))
            k.vm_wait(("h", t))
            if o.get("diagd") and t in (0, 8, 16, 24, 32, 40, 48):
                k.stamp(f"D.t{t}")
            for f in range(4):
                a = vACC + 16*j + 4*f
                c = "0" if ksl == 0 else vr(a, 4)
                k(f"v_mfma_f32_16x16x32_bf16 {vr(a,4)}, {ar((ksl*4+f)*4,4)}, {vr(vACT+4*(t%28),4)}, {c}")
                if f == 0:
                    nt = t + LA
                    if nt == 32 - 6:
                        k.vmem(f"buffer_load_dword v{vT0}, v{vT3}, {srd(S_WS)}, s{sFHp} offen offset:{G_FH+1024} sc1", "p2")
                    if nt == 32:
                        async_check("p2", sFHp, G_FH + 1024)
                    if nt < 56:
                        hload(nt)
                if f == 2:
                    if w2:
                        k.play(w2[:1]); w2 = w2[1:]
                    elif t + LA >= 56 and tail:
                        k.play(tail[:2]); tail = tail[2:]
                if f == 1 and t >= 8 and ur:
                    k.play(ur[:1]); ur = ur[1:]
                if wr and wr[0][0] <= 4 * t + f:
                    k.lds(wr.pop(0)[1])
            if ksl == 13 and j:
                for f in range(4):
                    wr.append((4 * t + 9 + 2 * f, f"ds_write_b128 v{vPQ+4+j}, {vr(vACC+16*j+4*f,4)} offset:{f*1024}"))
        assert not w2 and not ur
        for _, wi in wr:
            k.lds(wi)
        k.play(tail)
        k.stamp("D.mm")
        k.barrier()
        for j in range(3):
            for f in range(4):
                k.lds(f"ds_read_b128 {vr(vACC+16+16*j+4*f,4)}, v{vPQ+4} offset:{j*4096+f*1024}", ("rd", j, f))
        if not L1:
            k.get(vT2, cOUT)
        for j in range(3):
            for f in range(4):
                k.ds_wait(("rd", j, f))
                for p in range(2):
                    k(f"v_pk_add_f32 {vr(vACC+4*f+2*p,2)}, {vr(vACC+4*f+2*p,2)}, {vr(vACC+16+16*j+4*f+2*p,2)}")
                if j == 2:
                    for p in range(2):
                        k(f"v_pk_fma_f32 {vr(vACC+4*f+2*p,2)}, {vr(vACC+4*f+2*p,2)}, {vr(RSD,2)}, {vr(vWB+4*f+2*p,2)} op_sel_hi:[1,0,1]")
                    for p in range(2):
                        k(f"v_cvt_pk_bf16_f32 v{vRES+2*f+p}, v{vACC+4*f+2*p}, v{vACC+4*f+2*p+1}")
        k.stamp("D.red")
        if L1:
            publish_x(G_X2, G_ST2, G_FX2, psc(3))
            k(f"s_add_u32 s{sKVC}, s{sKVC}, 0x100000")
            k(f"s_add_u32 s{sKVP}, s{sKVP}, 0x100000")
            k.flag(sFXo, G_FX2)
            k.stamp("D.pub")
            k("s_barrier")
            fr = []
            for ks in range(16):
                for b in range(4):
                    fr.append(dict(addr=vL16, offs=(R0 + ks * 4096 + b * 1024,), mf=mf2(vACC + 8 * b, ks, False, True)))
            gA = k.gemm_begin(fr)
        else:
            k("s_nop 1")
            for s in range(2):
                for p in range(2):
                    k(f"v_permlane16_swap_b32 v{vRES+4*s+p}, v{vRES+4*s+2+p}")
                k.vmem(f"buffer_store_dwordx4 {vr(vRES+4*s,4)}, v{vT2}, {srd(S_OUT)}, 0 offen offset:{64*s}{' sc1' if o.get('outsc1', 1) else ''}")
            le = k.label("L_ep")
            k(f"s_or_b32 s{sT2}, s2, s{sW}")
            k(f"s_cbranch_scc1 {le}")
            k(f"s_add_u32 s{sEP}, s{sEP}, 1")
            k(f"v_mov_b32 v{vT1}, s{sEP}")
            k("s_mov_b64 exec, 1")
            k(f"buffer_store_dword v{vT1}, v{vL16}, {srd(S_WS)}, 0 offen offset:{WS_EPOCH}")
            k("s_mov_b64 exec, -1")
            k(f"{le}:")
            if stamps:
                k.vm_all()
                k.stamp("end")
                k(f"s_memrealtime s[{sST}:{sST+1}]")
                k("s_waitcnt lgkmcnt(0)")
                k(f"v_writelane_b32 v{vSTAMP}, s{sST}, 61")
                k(f"v_writelane_b32 v{vSTAMP}, s{sBUD}, 60")
                k(f"v_writelane_b32 v{vSTAMP}, s{sSLOW}, 59")
                k(f"s_lshl2_add_u32 s{sT2}, s2, s{sW}")
                k(f"s_lshl_b32 s{sT2}, s{sT2}, 8")
                k(f"s_add_u32 s{sT2}, s{sT2}, {WS_STAMP}")
                k(f"v_lshrrev_b32 v{vT0}, 2, v{vL16}")
                k(f"buffer_store_dword v{vSTAMP}, v{vT0}, {srd(S_WS)}, s{sT2} offen")
    k("L_end:")
    body = "\n".join(merge_waits(k.lines))
    hdr = open("interleave_layers__linear_attn_block__dense_activation_relu__prompt.s.ref").read().split("; Override")[0]
    txt = f"""{hdr}; Generated by a hand-written generator (persistent kernel, one workgroup per CU).
; @launch grid=(256,1,1) block=(256,1,1) lds={LDS_BYTES}
.amdgcn_target "amdgcn-amd-amdhsa--gfx950"
.text
.globl {NAME}
.p2align 8
.type {NAME},@function
.set CODE_BYTES, L_code_end - L_pcref - 512
{NAME}:
{body}
    s_endpgm
L_code_end:
.section .rodata,"a"
.p2align 6
.amdhsa_kernel {NAME}
  .amdhsa_next_free_vgpr 512
  .amdhsa_next_free_sgpr 102
  .amdhsa_accum_offset 256
  .amdhsa_group_segment_fixed_size 0
  .amdhsa_kernarg_size 72
  .amdhsa_user_sgpr_count 2
  .amdhsa_user_sgpr_kernarg_segment_ptr 1
  .amdhsa_system_sgpr_workgroup_id_x 1
.end_amdhsa_kernel
"""
    return txt, k.stamp_names


if __name__ == "__main__":
    out = sys.argv[1]
    stamps = "stamps" in sys.argv[2:]
    opts = {}
    for a in sys.argv[2:]:
        if "=" in a:
            x, y = a.split("=")
            opts[x] = int(y)
    txt, names = gen(stamps, opts)
    open(out, "w").write(txt)
    if stamps:
        open(out + ".names", "w").write("\n".join(names))
```

```python
import sys
from contextlib import contextmanager

NAME = "interleave_layers__linear_attn_block__dense_activation_relu__prompt_kernel"

WS_EPOCH = 0
WS_XID = 0x8000
WS_PD = 0x10000
GRP0 = 0x100000
G_FO, G_FX1, G_FX2, G_FH = 0, 512, 1024, 1536
G_ST1 = 0x1000
G_ST2 = G_ST1
G_X1 = 0x8000
G_X2 = G_X1
G_H = G_X1 + 0x20000
G_O = G_H
WS_KVX = 0x1200000
KVX_C = 0x9000
WS_W2T = 0x1400000
WS_PK = 0x1600000
PK_KV, PK_Q, PK_W1A, PK_W1B, PK_WO, PK_SZ = 0, 65536, 98304, 163840, 212992, 278528
WS_STAMP = 0x1B00000
WS_USED = 0x1C00000
OOB = 0x7f000000

R0, R1, R2, R3 = 0, 65536, 98304, 131072
L_SM = 159744
L_CS = L_SM
L_STAT = L_SM + 1024
L_XB = L_SM + 2048
L_ZB = L_SM + 3072
L_XST = 98304
L_RED = R2
L_PST = R2
LDS_BYTES = 163840

S_X, S_WQKV, S_WO, S_W1, S_W2, S_OUT, S_WS = 4, 8, 12, 16, 20, 24, 28
(sW, sC, sG, sTAG, sSLOW, sGB, sBUD, sEP, sEPS, _e1, sT0, sT1, sT2, sT3, sT4, sT5,
 sACT, sACT1, sBACT, sTILE, sOST, sOST1, sFOo, sFOp, sFXo, sFXp, sSTo, sSTg,
 sH1, sH1b, sH2, sH2b, sH3, sH3b, sFHo, sFHp, sRB, _r1, _r2, _r3, sKVC, sKVP,
 sDH, sCT, sXCC, sT8, sD0, sD1, sD2, sD3, sL0, sL1, sPKB, sPDA, sPDB, sJ0) = range(32, 88)
assert sEPS % 2 == 0
sRHO = sT8
S_A, S_B = 88, 92
sKEX = 88
sKM = 96
sST = 98
sPC = 100

vLANE, vL16, vTR0, vTR1, vQ0, vQ1, vQ2, vQ3, vP, vCH, vDM, vSTAMP = range(12)
vT0, vT1, vT2, vT3 = 12, 13, 14, 15
vSP, vSP2 = vP, vCH
vRES = 16
vPQ = 24
vWB = 32
vACC = 64
vACT = 128
BF1 = "0x3f803f80"
(cCSA, cCSB, cP16, cP8, cSTO, cSTW, cSTA, cSTB, cKW, cKR, cKW1, cKR1, cKVS, cXW, cXR, cZR,
 cRD0, cRD1, cRD2, cRD3, cRSD, cOUT, cZL) = range(224, 247)


def srd(s):
    return f"s[{s}:{s+3}]"


def vr(a, n=1):
    return f"v{a}" if n == 1 else f"v[{a}:{a+n-1}]"


def ar(a, n=1):
    return f"a{a}" if n == 1 else f"a[{a}:{a+n-1}]"


def bcast(r, pos, n):
    lo = [0] * n
    hi = [1] * n
    if r % 2 == 0:
        hi[pos] = 0
    else:
        lo[pos] = 1
    f = lambda x: "[" + ",".join(map(str, x)) + "]"
    return vr(r & ~1, 2), f" op_sel:{f(lo)} op_sel_hi:{f(hi)}"


class K:
    def __init__(self, stamps=False, opts=None):
        self.lines = []
        self.nlab = 0
        self.vm = []
        self.ds = []
        self.stamps = stamps
        self.stamp_names = []
        self.o = opts or {}
        self._rec = None
        self.seen = set()

    def _do(self, fn):
        if self._rec is not None:
            self._rec.append(fn)
        else:
            fn()

    def rec(self, f):
        assert self._rec is None
        self._rec = []
        f()
        r, self._rec = self._rec, None
        return r

    @contextmanager
    def atomic(self):
        if self._rec is None:
            yield
            return
        outer, self._rec = self._rec, []
        yield
        inner, self._rec = self._rec, outer
        outer.append(lambda: [x() for x in inner])

    def play(self, items):
        for x in items:
            self._do(x)

    def _emit(self, l):
        self.lines.append(("" if l.endswith(":") else "    ") + l)

    def __call__(self, s):
        for l in s.split("\n"):
            l = l.strip()
            if l:
                self._do(lambda l=l: self._emit(l))

    def label(self, base="L"):
        self.nlab += 1
        return f"{base}_{self.nlab}"

    def vmem(self, s, tag=None):
        def f():
            self._emit(s)
            self.vm.append(tag)
            self.seen.add(tag)
        self._do(f)

    def vm_note(self, n, tag=None):
        self._do(lambda: (self.vm.extend([tag] * n), self.seen.add(tag)))

    def _wait(self, lst, tag, name, mx):
        if tag not in lst:
            return lst
        idx = len(lst) - 1 - lst[::-1].index(tag)
        n = min(len(lst) - idx - 1, mx)
        self._emit(f"s_waitcnt {name}({n})")
        return lst[len(lst) - n:] if n else []

    def vm_wait(self, tag):
        def f():
            assert tag in self.seen, tag
            self.vm = self._wait(self.vm, tag, "vmcnt", 63)
        self._do(f)

    def save_vm(self):
        def f():
            self._sv = list(self.vm)
        self._do(f)

    def restore_vm(self):
        def f():
            self.vm = self._sv
        self._do(f)

    def vm_all(self):
        def f():
            self._emit("s_waitcnt vmcnt(0)")
            self.vm = []
        self._do(f)

    def lds(self, s, tag=None):
        def f():
            self._emit(s)
            self.ds.append(tag)
        self._do(f)

    def ds_wait(self, tag):
        def f():
            self.ds = self._wait(self.ds, tag, "lgkmcnt", 15)
        self._do(f)

    def ds_all(self, force=False):
        def f():
            if self.ds or force:
                self._emit("s_waitcnt lgkmcnt(0)")
            self.ds = []
        self._do(f)

    def barrier(self, force=False):
        self.ds_all(force)
        self("s_barrier")

    def stamp(self, name):
        if not self.stamps:
            return
        self.nst = getattr(self, "nst", 0) + 1
        if "leak" in self.o and self.nst - 1 != self.o["leak"]:
            return
        i = len(self.stamp_names)
        assert i < 59
        self.stamp_names.append(name)
        self(f"s_memtime s[{sST}:{sST+1}]")
        self.ds_all(True)
        self(f"v_writelane_b32 v{vSTAMP}, s{sST}, {i}")

    def dma(self, sr, voff, soff, simm, lreg, limm, tag=None, flag=""):
        with self.atomic():
            self(f"s_add_u32 m0, s{lreg}, {limm}")
            self(f"s_add_u32 s{sT5}, s{soff}, {simm}")
            self.vmem(f"buffer_load_dwordx4 v{voff}, {srd(sr)}, s{sT5} offen{flag} lds", tag)

    def get(self, v, c):
        self(f"v_accvgpr_read_b32 v{v}, a{c}")

    def poll_prep(self, mask):
        self.get(vT3, cP16 if mask == 15 else cP8)

    def poll(self, soff, imm, clear=True):
        if clear:
            self.seen = {t for t in self.seen if not (isinstance(t, tuple) and t[0] in ("act", "h"))}
        lp, done = self.label("L_poll"), self.label("L_pd")
        with self.atomic():
            self(f"{lp}:")
            self(f"buffer_load_dword v{vT0}, v{vT3}, {srd(S_WS)}, s{soff} offen offset:{imm} sc1")
            self.vm_all()
            self(f"v_cmp_ne_u32 vcc, s{sTAG}, v{vT0}")
            self(f"s_cbranch_vccz {done}")
            self(f"s_sub_u32 s{sBUD}, s{sBUD}, 1")
            self(f"s_cbranch_scc0 {lp}")
            self(f"s_mov_b32 s{sBUD}, 0")
            self(f"{done}:")

    def stores(self, items, force_sc1, tag="st"):
        with self.atomic():
            if force_sc1:
                for it in items:
                    self.vmem(it + " sc1", tag)
                return
            ls, le = self.label("L_ss"), self.label("L_se")
            self(f"s_cmp_lg_u32 s{sSLOW}, 0")
            self(f"s_cbranch_scc1 {ls}")
            for it in items:
                self.vmem(it, tag)
            self(f"s_branch {le}")
            self(f"{ls}:")
            for it in items:
                self(it + " sc1")
            self(f"{le}:")

    def flag(self, soff, imm):
        with self.atomic():
            self(f"v_mov_b32 v{vT1}, s{sTAG}")
            self.vm_wait("st")
            self("s_mov_b64 exec, 1")
            self.stores([f"buffer_store_dword v{vT1}, v{vL16}, {srd(S_WS)}, s{soff} offen offset:{imm}"], False, "flag")
            self("s_mov_b64 exec, -1")

    def gemm_begin(self, frags, D=6):
        self.gid = getattr(self, "gid", 0) + 1
        g = dict(frags=frags, D=D, gid=self.gid, rp=0, reads=[])
        for t, f in enumerate(frags):
            s = vWB + 4 * (t % 8)
            if len(f["offs"]) == 2:
                for hh in range(2):
                    g["reads"].append((t, f"ds_read_b64_tr_b16 {vr(s + 2*hh, 2)}, v{f['addr']} offset:{f['offs'][hh]}"))
            else:
                g["reads"].append((t, f"ds_read_b128 {vr(s, 4)}, v{f['addr']} offset:{f['offs'][0]}"))
        self._issue(g, D - 1, 99)
        return g

    def _issue(self, g, tmax, maxn):
        c = 0
        reads = g["reads"]
        while g["rp"] < len(reads) and reads[g["rp"]][0] <= tmax and c < maxn:
            self.lds(reads[g["rp"]][1], ("w", g["gid"], reads[g["rp"]][0]))
            g["rp"] += 1
            c += 1

    def gemm_run(self, g, fill=None):
        fill = fill or {}
        frags, D, gid = g["frags"], g["D"], g["gid"]
        n = len(frags)
        mi = 0
        for t, f in enumerate(frags):
            s = vWB + 4 * (t % 8)
            if t % 2 == 0:
                self.ds_wait(("w", gid, min(t + 1, n - 1)))
            nm = len(f["mf"])
            for j, (acc, act_, sw, first, wt) in enumerate(f["mf"]):
                if wt is not None:
                    self.vm_wait(wt)
                c = "0" if first else vr(acc, 4)
                if sw:
                    self(f"v_mfma_f32_16x16x32_bf16 {vr(acc,4)}, {vr(s,4)}, {vr(act_,4)}, {c}")
                else:
                    self(f"v_mfma_f32_16x16x32_bf16 {vr(acc,4)}, {vr(act_,4)}, {vr(s,4)}, {c}")
                self._issue(g, t + D, 99 if j == nm - 1 else 1)
                self.play(fill.pop(mi, []))
                mi += 1
        for key in sorted(fill):
            self.play(fill[key])

    def gemm(self, frags, fill=None, D=6):
        self.gemm_run(self.gemm_begin(frags, D), fill)


def merge_waits(lines):
    import re
    out = []
    for l in lines:
        m = re.match(r"\s*s_waitcnt (\w+)\((\d+)\)$", l)
        if m and out:
            p = re.match(r"\s*s_waitcnt (\w+)\((\d+)\)$", out[-1])
            if p and p.group(1) != m.group(1):
                out[-1] = out[-1] + f" {m.group(1)}({m.group(2)})"
                continue
        out.append(l)
    return out


def spread(fill, items, start, step, per=1):
    p = start
    for i in range(0, len(items), per):
        fill.setdefault(int(p), []).extend(items[i:i + per])
        p += step
    return p


def act(ks, rb):
    return vACT + 8 * ks + 4 * rb


def gen(stamps=False, opts=None):
    k = K(stamps, opts)
    o = k.o
    if stamps:
        k(f"s_memtime s[{sST}:{sST+1}]")
        k(f"s_memrealtime s[{sPC}:{sPC+1}]")
    k(f"""
    s_cmp_ge_u32 s2, 256
    s_cbranch_scc1 L_end
    s_load_dwordx2 s[{S_X}:{S_X+1}], s[0:1], 0
    s_load_dwordx2 s[{S_WQKV}:{S_WQKV+1}], s[0:1], 8
    s_load_dwordx2 s[{S_WS}:{S_WS+1}], s[0:1], 64
    s_load_dwordx2 s[{S_WO}:{S_WO+1}], s[0:1], 16
    s_load_dwordx2 s[{S_W1}:{S_W1+1}], s[0:1], 32
    s_load_dwordx2 s[{S_W2}:{S_W2+1}], s[0:1], 40
    s_load_dwordx2 s[{S_OUT}:{S_OUT+1}], s[0:1], 48
    v_lshrrev_b32 v{vT0}, 6, v0
    v_and_b32 v{vLANE}, 63, v0
    s_mov_b32 s{S_X+2}, {2048*1024}
    v_readfirstlane_b32 s{sW}, v{vT0}
    s_mov_b32 s{S_X+3}, 0x20000
    s_mov_b32 s{S_WQKV+2}, {512*3072}
    s_mov_b32 s{S_WQKV+3}, 0x20000
    s_lshr_b32 s{sT0}, s2, 3
    s_and_b32 s{sC}, s{sT0}, 15
    s_lshr_b32 s{sT0}, s{sT0}, 4
    s_and_b32 s{sG}, s2, 7
    s_lshl1_add_u32 s{sG}, s{sG}, s{sT0}
    s_lshr_b32 s{sT1}, s{sC}, 1
    s_xor_b32 s{sT1}, s{sT1}, s{sT0}
    s_and_b32 s{sT1}, s{sT1}, 1
    s_and_b32 s{sRHO}, s{sC}, 1
    s_lshl1_add_u32 s{sRHO}, s{sT1}, s{sRHO}
    v_lshlrev_b32 v{vL16}, 4, v{vLANE}
    """)
    if stamps:
        k(f"v_mov_b32 v{vSTAMP}, 0")
    XS, XR, X2R = vRES, vRES + 4, act(15, 1)
    aRES = 246
    k(f"""
    v_lshrrev_b32 v{vT0}, 4, v{vLANE}
    v_and_b32 v{vT1}, 15, v{vLANE}
    v_xor_b32 v{vT2}, v{vT0}, v{vT1}
    v_lshlrev_b32 v{vT2}, 4, v{vT2}
    v_lshl_add_u32 v{XS}, v{vT0}, 10, v{vT2}
    s_lshr_b32 s{sJ0}, s{sC}, 2
    s_and_b32 s{sT2}, s{sJ0}, 1
    s_lshl_b32 s{sT2}, s{sT2}, 7
    s_lshl_b32 s{sJ0}, s{sJ0}, 11
    v_xor_b32 v{XS}, s{sT2}, v{XS}
    v_xor_b32 v{XS+1}, 64, v{XS}
    v_xor_b32 v{XS+2}, 0x80, v{XS}
    v_xor_b32 v{XS+3}, 0xc0, v{XS}
    v_lshrrev_b32 v{vP}, 2, v{vLANE}
    v_and_b32 v{vCH}, 3, v{vLANE}
    v_lshrrev_b32 v{vT3}, 3, v{vLANE}
    v_and_b32 v{vT3}, 2, v{vT3}
    v_xor_b32 v{vCH}, v{vCH}, v{vT3}
    v_lshlrev_b32 v{vCH}, 4, v{vCH}
    v_and_b32 v{vT3}, 3, v{vP}
    v_lshl_add_u32 v{vT3}, v{vT0}, 3, v{vT3}
    s_movk_i32 s{sT1}, 3072
    v_mad_u32_u24 v{vDM}, v{vT3}, s{sT1}, v{vCH}
    s_lshl_b32 s{sL0}, s{sW}, 14
    s_add_u32 s{sL0}, s{sL0}, {L_XST}
    s_lshl_b32 s{sT1}, s{sG}, 17
    s_lshl_b32 s{sT2}, s{sW}, 15
    s_add_u32 s{sT1}, s{sT1}, s{sT2}
    s_lshl_b32 s{sL1}, s{sW}, 12
    """)
    for r in range(4):
        k(f"""
        s_add_u32 s{sT2}, s{sRHO}, {r}
        s_and_b32 s{sT2}, s{sT2}, 3
        s_lshl_b32 s{sT3}, s{sT2}, 8
        s_add_u32 s{sD0+r}, s{sT1}, s{sT3}
        s_lshl2_add_u32 s{sT2}, s{sT2}, s{sW}
        s_mul_i32 s{sT2}, s{sT2}, {32*3072}
        s_lshl_b32 s{sT3}, s{sC}, 6
        s_add_u32 s{sRB+r}, s{sT2}, s{sT3}
        """)
    k("s_waitcnt lgkmcnt(0)")
    k(f"s_load_dword s{sEP}, s[{S_WS}:{S_WS+1}], {WS_EPOCH}")
    if stamps:
        k(f"v_writelane_b32 v{vSTAMP}, s{sST}, 62")
        k(f"v_writelane_b32 v{vSTAMP}, s{sPC}, 63")

    def xslot(q, js=range(8)):
        for j in js:
            with k.atomic():
                k(f"s_xor_b32 s{sT4}, s{sJ0}, {j*1024}")
                k(f"s_add_u32 m0, s{sT4}, s{sL0}")
                if q & 1:
                    k(f"s_add_u32 m0, m0, 8192")
                k(f"s_lshl2_add_u32 s{sT5}, s{sT4}, s{sD0+q}")
                k.vmem(f"buffer_load_dwordx4 v{XS+(j&3)}, {srd(S_X)}, s{sT5} offen lds", ("xs", q))

    def wkv_raw(r):
        for pr in range(2):
            for hh in range(2):
                k.dma(S_WQKV, vDM, sRB + r, hh * 4 * 3072 + 1024 * (pr + 1), sL1, R0 + r * 16384 + pr * 2048 + hh * 1024, ("wkv", r))

    def warm():
        k(f"v_lshlrev_b32 v{vT3}, 7, v{vLANE}")
        k("s_mov_b64 exec, 0xf")
        k(f"""
        s_getpc_b64 s[{sPC}:{sPC+1}]
        L_pcref:
        s_lshr_b32 s{sT2}, s2, 3
        s_lshl2_add_u32 s{sT2}, s{sT2}, s{sW}
        s_lshl_b32 s{sT2}, s{sT2}, 9
        s_min_u32 s{sT2}, s{sT2}, CODE_BYTES
        s_add_u32 s{sPC}, s{sPC}, s{sT2}
        s_addc_u32 s{sPC+1}, s{sPC+1}, 0
        """)
        k.vmem(f"global_load_dword a255, v{vT3}, s[{sPC}:{sPC+1}]")
        if o.get("warm", 1) >= 1:
            k(f"s_lshl2_add_u32 s{sT2}, s2, s{sW}")
            k(f"s_lshr_b32 s{sT3}, s{sT2}, 1")
            k(f"s_mul_i32 s{sT3}, s{sT3}, 3072")
            k(f"s_and_b32 s{sT4}, s{sT2}, 1")
            k(f"s_lshl_b32 s{sT4}, s{sT4}, 9")
            k(f"s_add_u32 s{sT3}, s{sT3}, s{sT4}")
            k.vmem(f"buffer_load_dword a255, v{vT3}, {srd(S_WQKV)}, s{sT3} offen")
        if o.get("warm", 1) >= 2:
            k(f"s_lshl_b32 s{sT3}, s{sT2}, 9")
            k.vmem(f"buffer_load_dword a255, v{vT3}, {srd(S_WO)}, s{sT3} offen")
            k(f"s_mul_i32 s{sT3}, s{sT2}, 1792")
            k("s_mov_b64 exec, 0x3fff")
            k.vmem(f"buffer_load_dword a255, v{vT3}, {srd(S_W1)}, s{sT3} offen")
            k.vmem(f"buffer_load_dword a255, v{vT3}, {srd(S_W2)}, s{sT3} offen")
        k(f"s_lshl2_add_u32 s{sT2}, s{sC}, s{sW}")
        k(f"s_lshl_b32 s{sT2}, s{sT2}, 8")
        k(f"s_add_u32 s{sT2}, s{sT2}, s{sGB}")
        k("s_mov_b64 exec, 3")
        k.vmem(f"buffer_load_dword a255, v{vT3}, {srd(S_WS)}, s{sT2} offen sc1", "touch")
        k("s_mov_b64 exec, -1")

    xslot(0, range(2)); wkv_raw(0)
    k(f"""
    s_mov_b32 s{S_WO+2}, {512*1024}
    s_mov_b32 s{S_WO+3}, 0x20000
    s_mov_b32 s{S_W1+2}, {512*3584}
    s_mov_b32 s{S_W1+3}, 0x20000
    s_mov_b32 s{S_W2+2}, {1792*1024}
    s_mov_b32 s{S_W2+3}, 0x20000
    s_mov_b32 s{S_WS+2}, {WS_USED}
    s_mov_b32 s{S_WS+3}, 0x20000
    s_lshl_b32 s{sGB}, s{sG}, 20
    s_add_u32 s{sGB}, s{sGB}, {GRP0}
    """)
    warm()

    def arm():
        k(f"s_lshl2_add_u32 s{sT2}, s{sC}, s{sW}")
        k(f"s_mul_i32 s{sT2}, s{sT2}, 9216")
        k(f"s_add_u32 s{sT2}, s{sT2}, s{sGB}")
        for j in range(9):
            with k.atomic():
                if j % 4 == 0:
                    k(f"s_add_u32 s{sT3}, s{sT2}, {G_X1 + j*1024}")
                k.vmem(f"buffer_store_dwordx4 {vr(vTR0+2,4)}, v{vL16}, {srd(S_WS)}, s{sT3} offen offset:{(j%4)*1024} sc1", "arm")
    if o.get("arm", 0) == 1:
        arm()

    k(f"""
    s_mov_b32 s{S_OUT+2}, {2048*1024}
    s_mov_b32 s{S_OUT+3}, 0x20000
    s_lshr_b32 s{sDH}, s{sC}, 3
    s_and_b32 s{sCT}, s{sC}, 7
    s_mov_b32 s{sBUD}, 150000
    s_mov_b32 s{sEPS}, 0x358637bd
    s_mov_b32 s{sEPS+1}, 0x358637bd
    s_getreg_b32 s{sXCC}, hwreg(HW_REG_XCC_ID, 0, 4)
    s_lshl_b32 s{sACT}, s{sW}, 15
    s_add_u32 s{sACT}, s{sACT}, s{sGB}
    s_add_u32 s{sACT1}, s{sACT}, 16384
    s_lshl2_add_u32 s{sT0}, s{sDH}, s{sW}
    s_lshl_b32 s{sBACT}, s{sT0}, 14
    s_add_u32 s{sBACT}, s{sBACT}, s{sGB}
    s_lshl_b32 s{sTILE}, s{sCT}, 11
    s_add_u32 s{sTILE}, s{sTILE}, s{sBACT}
    s_mul_i32 s{sBACT}, s{sT0}, 57344
    s_add_u32 s{sBACT}, s{sBACT}, s{sGB}
    s_mul_i32 s{sOST}, s{sW}, {2*57344}
    s_lshl_b32 s{sOST1}, s{sC}, 10
    s_add_u32 s{sOST}, s{sOST}, s{sOST1}
    s_add_u32 s{sOST}, s{sOST}, s{sGB}
    s_add_u32 s{sOST}, s{sOST}, {G_O}
    s_add_u32 s{sOST1}, s{sOST}, 57344
    s_lshl_b32 s{sFXp}, s{sW}, 7
    s_add_u32 s{sFXp}, s{sFXp}, s{sGB}
    s_lshl2_add_u32 s{sFOo}, s{sC}, s{sFXp}
    s_lshl_b32 s{sFHp}, s{sT0}, 7
    s_add_u32 s{sFHp}, s{sFHp}, s{sGB}
    s_lshr_b32 s{sT0}, s{sT0}, 1
    s_mov_b32 s{sT1}, s{sT0}
    s_lshl_b32 s{sFOp}, s{sT0}, 7
    s_add_u32 s{sFOp}, s{sFOp}, s{sGB}
    s_and_b32 s{sT2}, s{sW}, 1
    s_lshl1_add_u32 s{sT3}, s{sCT}, s{sT2}
    s_lshl2_add_u32 s{sFXo}, s{sT3}, s{sFOp}
    s_lshl3_add_u32 s{sT3}, s{sT0}, s{sCT}
    s_lshl_b32 s{sT3}, s{sT3}, 8
    s_lshl3_add_u32 s{sT3}, s{sT2}, s{sT3}
    s_add_u32 s{sSTo}, s{sT3}, s{sGB}
    s_lshl_b32 s{sSTg}, s{sW}, 11
    s_add_u32 s{sSTg}, s{sSTg}, s{sGB}
    s_lshl2_add_u32 s{sT1}, s{sT1}, s{sT2}
    s_lshl_b32 s{sT1}, s{sT1}, 6
    s_add_u32 s{sT1}, s{sT1}, {L_STAT + 128}
    v_lshl_add_u32 v{vT3}, v{vT1}, 2, s{sT1}
    v_accvgpr_write_b32 a{cRSD}, v{vT3}
    s_mul_i32 s{sT0}, s{sW}, {2*57344}
    s_add_u32 s{sT0}, s{sT0}, s{sGB}
    s_lshr_b32 s{sT3}, s{sC}, 2
    s_add_u32 s{sT0}, s{sT0}, {G_H}
    s_lshl_b32 s{sH1}, s{sC}, 11
    s_add_u32 s{sH1}, s{sH1}, {24*1024}
    s_add_u32 s{sH1}, s{sH1}, s{sT0}
    s_add_u32 s{sH1b}, s{sH1}, 57344
    s_mul_i32 s{sT4}, s{sT3}, 6144
    s_add_u32 s{sT0}, s{sT0}, s{sT4}
    s_and_b32 s{sT4}, s{sC}, 3
    s_mul_i32 s{sH2}, s{sT4}, 3
    s_add_u32 s{sH2}, s{sH2}, 1
    s_lshr_b32 s{sH2}, s{sH2}, 1
    s_lshl_b32 s{sH2}, s{sH2}, 10
    s_add_u32 s{sH2}, s{sH2}, s{sT0}
    s_add_u32 s{sH2b}, s{sH2}, 57344
    s_lshr_b32 s{sH3}, s{sT4}, 1
    s_mul_i32 s{sH3}, s{sH3}, 3072
    s_and_b32 s{sH3b}, s{sT4}, 1
    s_lshl3_add_u32 s{sH3}, s{sH3b}, s{sH3}
    s_add_u32 s{sH3}, s{sH3}, 1024
    s_add_u32 s{sH3}, s{sH3}, s{sT0}
    s_add_u32 s{sH3b}, s{sH3}, 57344
    s_lshr_b32 s{sT0}, s{sW}, 1
    s_lshl2_add_u32 s{sT0}, s{sT0}, s{sT3}
    s_lshl_b32 s{sT0}, s{sT0}, 7
    s_lshl1_add_u32 s{sT2}, s{sT4}, s{sT2}
    s_lshl2_add_u32 s{sT0}, s{sT2}, s{sT0}
    s_add_u32 s{sFHo}, s{sT0}, s{sGB}
    s_mul_i32 s{sPKB}, s{sC}, {PK_SZ}
    s_add_u32 s{sPKB}, s{sPKB}, {WS_PK}
    """)
    k(f"""
    s_mul_i32 s{sT0}, s{sC}, {KVX_C}
    s_add_u32 s{sT0}, s{sT0}, {WS_KVX}
    s_lshl_b32 s{sT1}, s{sW}, 14
    s_lshl_b32 s{sT2}, s{sW}, 6
    s_add_u32 s{sT2}, s{sT2}, {32768 - 128}
    s_lshl_b32 s{sT3}, s{sG}, 10
    s_lshl_b32 s{sT4}, s{sG}, 7
    s_cmp_lt_u32 s{sW}, 2
    s_cselect_b32 s{sT1}, s{sT1}, s{sT2}
    s_cselect_b32 s{sT3}, s{sT3}, s{sT4}
    s_cselect_b32 s{sKM}, -1, 0x30003
    s_cselect_b32 s{sKM+1}, -1, 0x30003
    s_cselect_b64 vcc, -1, 0
    s_add_u32 s{sKVC}, s{sT0}, s{sT1}
    s_add_u32 s{sKVP}, s{sKVC}, s{sT3}
    s_cmp_eq_u32 s{sW}, 3
    s_cselect_b32 s{sKVP}, {OOB}, s{sKVP}
    v_lshlrev_b32 v{vT3}, 4, v{vT0}
    v_lshl_add_u32 v{vT3}, v{vT1}, 6, v{vT3}
    v_cndmask_b32 v{vT3}, v{vT3}, v{vL16}, vcc
    v_accvgpr_write_b32 a{cKVS}, v{vT3}
    v_lshlrev_b32 v{vT3}, 2, v{vL16}
    v_and_b32 v{vT3}, 0xf00, v{vT3}
    v_lshrrev_b32 v{vT3}, 1, v{vT3}
    v_and_b32 v{vWB}, 48, v{vL16}
    v_add_u32 v{vT3}, v{vT3}, v{vWB}
    v_accvgpr_write_b32 a{cZL}, v{vT3}
    v_and_b32 v{vWB+5}, 1, v{vLANE}
    v_cndmask_b32 v{vWB+5}, v{vWB+5}, 0, vcc
    s_min_u32 s{sT5}, s{sW}, 2
    """)
    W = vWB
    k(f"""
    v_lshl_add_u32 v{XR}, v{vT1}, 8, v{vT2}
    v_add_u32 v{XR}, s{sL0}, v{XR}
    v_xor_b32 v{XR+1}, 64, v{XR}
    v_xor_b32 v{XR+2}, 0x80, v{XR}
    v_xor_b32 v{XR+3}, 0xc0, v{XR}
    v_and_b32 v{vT3}, 3, v{vLANE}
    v_lshlrev_b32 v{vT3}, 3, v{vT3}
    v_lshl_add_u32 v{vTR0}, v{vP}, 6, v{vT3}
    v_lshl_add_u32 v{vQ0}, v{vP}, 7, v{vT3}
    v_and_b32 v{vT3}, 1, v{vT0}
    v_lshlrev_b32 v{vT3}, 5, v{vT3}
    v_add_u32 v{vTR0}, v{vTR0}, v{vT3}
    v_xor_b32 v{vTR1}, 32, v{vTR0}
    v_bfe_u32 v{vT3}, v{vLANE}, 3, 2
    v_lshl_add_u32 v{vQ0}, v{vT3}, 5, v{vQ0}
    v_xor_b32 v{vQ1}, 32, v{vQ0}
    v_xor_b32 v{vQ2}, 64, v{vQ0}
    v_xor_b32 v{vQ3}, 0x60, v{vQ0}
    v_lshlrev_b32 v{W}, 2, v{vT1}
    v_accvgpr_write_b32 a{cP16}, v{W}
    v_and_b32 v{W+1}, 28, v{W}
    v_accvgpr_write_b32 a{cP8}, v{W+1}
    v_add_u32 v{W+1}, {L_CS}, v{W}
    v_accvgpr_write_b32 a{cCSA}, v{W+1}
    v_and_b32 v{W+2}, 48, v{vLANE}
    v_add_u32 v{W+1}, {L_CS}, v{W+2}
    v_accvgpr_write_b32 a{cCSB}, v{W+1}
    v_lshlrev_b32 v{W+1}, 2, v{vT0}
    v_lshl_add_u32 v{W+1}, v{vT1}, 4, v{W+1}
    v_accvgpr_write_b32 a{cSTO}, v{W+1}
    s_lshl_b32 s{sT0}, s{sW}, 8
    s_add_u32 s{sT0}, s{sT0}, {L_STAT}
    v_add_u32 v{W+1}, s{sT0}, v{W}
    v_accvgpr_write_b32 a{cSTA}, v{W+1}
    v_and_b32 v{W+3}, 32, v{vLANE}
    v_lshl_add_u32 v{W+1}, v{W+3}, 1, v{W+1}
    v_accvgpr_write_b32 a{cSTW}, v{W+1}
    v_add_u32 v{W+1}, s{sT0}, v{W+2}
    v_accvgpr_write_b32 a{cSTB}, v{W+1}
    s_lshl_b32 s{sT0}, s{sW}, 10
    v_add_u32 v{W+1}, s{sT0}, v{vL16}
    v_add_u32 v{W+3}, {R3}, v{W+1}
    v_accvgpr_write_b32 a{cKW}, v{W+3}
    v_add_u32 v{W+3}, {R2 + 8192}, v{W+1}
    v_accvgpr_write_b32 a{cKW1}, v{W+3}
    s_lshl_b32 s{sT0}, s{sT5}, 12
    s_add_u32 s{sT0}, s{sT0}, {R3}
    v_add_u32 v{W+1}, s{sT0}, v{vL16}
    v_lshl_add_u32 v{W+1}, v{W+5}, 12, v{W+1}
    v_accvgpr_write_b32 a{cKR}, v{W+1}
    s_lshl_b32 s{sT0}, s{sT5}, 14
    s_add_u32 s{sT0}, s{sT0}, {R2 + 8192}
    v_add_u32 v{W+1}, s{sT0}, v{vL16}
    v_lshl_add_u32 v{W+1}, v{W+5}, 14, v{W+1}
    v_accvgpr_write_b32 a{cKR1}, v{W+1}
    v_lshlrev_b32 v{W+1}, 3, v{vLANE}
    v_add_u32 v{W+1}, {L_XB}, v{W+1}
    v_accvgpr_write_b32 a{cXR}, v{W+1}
    v_lshlrev_b32 v{W+3}, 3, v{vT0}
    v_add_u32 v{W+3}, {L_ZB}, v{W+3}
    v_accvgpr_write_b32 a{cZR}, v{W+3}
    """)
    k(f"""
    s_lshl_b32 s{sT0}, s{sW}, 9
    v_add_u32 v{W+1}, s{sT0}, v{W+1}
    v_and_b32 v{W+3}, 1, v{vT0}
    v_lshrrev_b32 v{W+4}, 1, v{vT0}
    v_lshl_add_u32 v{W+3}, v{W+3}, 1, v{W+4}
    v_and_b32 v{W+4}, 3, v{vLANE}
    v_lshl_add_u32 v{W+3}, v{W+4}, 2, v{W+3}
    s_lshl_b32 s{sT0}, s{sW}, 5
    s_add_u32 s{sT0}, s{sT0}, {L_ZB - 64}
    v_lshl_add_u32 v{W+3}, v{W+3}, 1, s{sT0}
    s_cmp_lt_u32 s{sW}, 2
    s_cselect_b64 vcc, -1, 0
    v_cndmask_b32 v{W+1}, v{W+3}, v{W+1}, vcc
    v_accvgpr_write_b32 a{cXW}, v{W+1}
    """)
    for j in range(4):
        k(f"s_add_u32 s{sT0}, s{sW}, {j}")
        k(f"s_and_b32 s{sT0}, s{sT0}, 3")
        k(f"s_mul_i32 s{sT0}, s{sT0}, 12288")
        k(f"s_add_u32 s{sT0}, s{sT0}, {L_RED + max(j-1, 0)*4096}")
        k(f"v_add_u32 v{W+1}, s{sT0}, v{vL16}")
        k(f"v_accvgpr_write_b32 a{cRD0+j}, v{W+1}")
    k(f"""
    s_lshl2_add_u32 s{sT0}, s{sDH}, s{sW}
    s_lshl3_add_u32 s{sT0}, s{sG}, s{sT0}
    s_lshl_b32 s{sT0}, s{sT0}, 14
    s_lshl_b32 s{sT1}, s{sCT}, 7
    s_add_u32 s{sT0}, s{sT0}, s{sT1}
    v_lshl_add_u32 v{W+1}, v{vT1}, 10, s{sT0}
    v_and_b32 v{W+3}, 1, v{vT0}
    v_lshl_add_u32 v{W+1}, v{W+3}, 5, v{W+1}
    v_lshrrev_b32 v{W+3}, 1, v{vT0}
    v_lshl_add_u32 v{W+1}, v{W+3}, 4, v{W+1}
    v_accvgpr_write_b32 a{cOUT}, v{W+1}
    """)

    def xread(q):
        k.vm_wait(("xs", q))
        for ksl in range(4):
            for rb in range(2):
                k.lds(f"ds_read_b128 {vr(act(4*q+ksl, rb),4)}, v{XR+ksl} offset:{(q%2)*8192 + rb*4096}", ("xr", q))

    SUM0, SQ0, SUM1, SQ1 = vACC + 56, vACC + 57, vACC + 58, vACC + 59
    SUMA, SQA = vACC + 48, vACC + 56
    ONES = vPQ + 4
    NM_A, RS_A, RL_A = vACC + 60, vACC + 62, vACC + 56
    NM_B, RS_B, RL_B = vACC + 32, vACC + 40, vACC + 48
    STG = vACC + 48

    def xstats(q, fill):
        k.ds_wait(("xr", q))
        mi = 0
        for ksl in range(4):
            for rb in range(2):
                a_ = vr(act(4*q+ksl, rb), 4)
                first = q == 0 and ksl == 0
                for (acc, A) in ((SUMA + 4*rb, vr(ONES, 4)), (SQA + 4*rb, a_)):
                    k(f"v_mfma_f32_16x16x32_bf16 {vr(acc,4)}, {A}, {a_}, {'0' if first else vr(acc,4)}")
                    k.play(fill.pop(mi, []))
                    mi += 1
        assert not fill

    def xstats_extract():
        k(f"v_mov_b32 v{vT0}, 0")
        k(f"v_mov_b32 v{vT1}, 0")
        for r in range(4):
            m = (1 | 1 << 20 | 1 << 40 | 1 << 60) << r
            with k.atomic():
                k(f"s_mov_b32 vcc_lo, {m & 0xffffffff}")
                k(f"s_mov_b32 vcc_hi, {m >> 32}")
                k(f"v_cndmask_b32 v{vT0}, v{vT0}, v{SQA+r}, vcc")
                k(f"v_cndmask_b32 v{vT1}, v{vT1}, v{SQA+4+r}, vcc")
        k(f"v_mul_f32 v{SUM0}, 0x3e800000, v{SUMA}")
        k(f"v_mul_f32 v{SUM1}, 0x3e800000, v{SUMA+4}")
        k(f"v_mov_b32 v{SQ0}, v{vT0}")
        k(f"v_mov_b32 v{SQ1}, v{vT1}")

    def stats_finalize(need_rs):
        k.get(vT1, cSTW)
        k.get(vT0, cSTA)
        k(f"""
        v_permlane32_swap_b32 v{SUM0}, v{SUM1}
        v_permlane32_swap_b32 v{SQ0}, v{SQ1}
        v_add_f32 v{SUM0}, v{SUM0}, v{SUM1}
        v_add_f32 v{SQ0}, v{SQ0}, v{SQ1}
        v_mov_b32 v{SUM1}, v{SUM0}
        v_mov_b32 v{SQ1}, v{SQ0}
        s_nop 0
        v_permlane16_swap_b32 v{SUM0}, v{SUM1}
        v_permlane16_swap_b32 v{SQ0}, v{SQ1}
        v_add_f32 v{SUM0}, v{SUM0}, v{SUM1}
        v_add_f32 v{SQ0}, v{SQ0}, v{SQ1}
        v_mul_f32 v{SUM0}, 0xbb000000, v{SUM0}
        v_mul_f32 v{SQ0}, 0x3b000000, v{SQ0}
        v_fma_f32 v{SQ0}, -v{SUM0}, v{SUM0}, v{SQ0}
        v_max_f32 v{SQ0}, 0, v{SQ0}
        v_add_f32 v{SQ0}, 0x3727c5ac, v{SQ0}
        v_rsq_f32 v{SQ0}, v{SQ0}
        s_nop 0
        """)
        k.lds(f"ds_write2_b32 v{vT1}, v{SUM0}, v{SQ0} offset0:0 offset1:32")
        k.lds(f"ds_read2_b32 {vr(NM_A,2)}, v{vT0} offset0:0 offset1:16", "sta")
        if need_rs:
            k.lds(f"ds_read2_b32 {vr(RS_A,2)}, v{vT0} offset0:32 offset1:48", "sta")

    def stats_b():
        k.get(vT1, cSTB)
        for rb in range(2):
            k.lds(f"ds_read_b128 {vr(NM_B+4*rb,4)}, v{vT1} offset:{64*rb}", "sta")
            k.lds(f"ds_read_b128 {vr(RS_B+4*rb,4)}, v{vT1} offset:{128+64*rb}", "sta")

    def stats_scale():
        k.ds_wait("sta")
        for j in range(8):
            k(f"v_mul_f32 v{RL_B+j}, 0x3fb8aa3b, v{RS_B+j}")
        for j in range(2):
            k(f"v_mul_f32 v{RL_A+j}, 0x3fb8aa3b, v{RS_A+j}")

    def set_ones(r):
        for j in range(4):
            k(f"v_mov_b32 v{r+j}, {BF1}")

    def cs_put(acc, first, sblk):
        k.get(vT0, cCSA)
        k(f"s_lshl_b32 s{sT5}, s{sblk}, 6")
        k(f"v_add_u32 v{vT0}, s{sT5}, v{vT0}")
        k.lds(f"ds_write_b32 v{vT0}, v{acc} offset:{first*64}")

    def phi_block(acc, nm, cs, rl, rs, dst, tmp, lay):
        s1, s2, s3, s4, s5 = [], [], [], [], []
        for p in range(2):
            a2 = vr(acc + 2*p, 2)
            t2 = vr(tmp + 2*p, 2)
            if lay == "b":
                c2, m = bcast(cs, 1, 3)
                s1.append(f"v_pk_fma_f32 {a2}, {vr(nm+2*p,2)}, {c2}, {a2}{m}")
                s2.append(f"v_pk_mul_f32 {t2}, {a2}, {vr(rl+2*p,2)}")
                s4.append(f"v_pk_fma_f32 {a2}, {a2}, {vr(rs+2*p,2)}, {t2}")
            else:
                c2, m = bcast(nm, 1, 3)
                s1.append(f"v_pk_fma_f32 {a2}, {vr(cs+2*p,2)}, {c2}, {a2}{m}")
                c2, m = bcast(rl, 1, 2)
                s2.append(f"v_pk_mul_f32 {t2}, {a2}, {c2}{m}")
                c2, m = bcast(rs, 1, 3)
                s4.append(f"v_pk_fma_f32 {a2}, {a2}, {c2}, {t2}{m}")
            for j in range(2):
                s3.append(f"v_exp_f32 v{tmp+2*p+j}, v{tmp+2*p+j} clamp")
            s5.append(f"v_pk_add_f32 {a2}, {a2}, s[{sEPS}:{sEPS+1}]")
        for s in s1 + s2 + s3:
            k(s)
        for j in range(4):
            k(f"v_max_f32 v{acc+j}, 0, v{acc+j}")
        for s in s4 + s5:
            k(s)
        for p in range(2):
            k(f"v_cvt_pk_bf16_f32 v{dst+p}, v{acc+2*p}, v{acc+2*p+1}")

    def act_loads(bufoff):
        for ks in range(16):
            for rb in range(2):
                with k.atomic():
                    if ks % 4 == 0:
                        k(f"s_add_u32 s{sT2+rb}, s{sACT+rb}, {bufoff + ks*1024}")
                    k.vmem(f"buffer_load_dwordx4 {vr(act(ks,rb),4)}, v{vL16}, {srd(S_WS)}, s{sT2+rb} offen offset:{(ks%4)*1024} sc1",
                           ("act", ks, rb))

    def stat_loads(stoff):
        k(f"s_add_u32 s{sT4}, s{sSTg}, {stoff}")
        for j in range(2):
            k.vmem(f"buffer_load_dwordx4 {vr(STG+4*j,4)}, v{vL16}, {srd(S_WS)}, s{sT4} offen offset:{j*1024} sc1", "stg")

    def stat_sum():
        k.vm_wait("stg")
        for j in range(4):
            k(f"v_add_f32 v{SUM0+j}, v{STG+j}, v{STG+4+j}")

    def mf2(acc, ks, sw, wait, first=None):
        return [(acc + 4 * rb, act(ks, rb), sw, (ks == 0) if first is None else first,
                 (("act", ks, 1) if ks else ("act", ks, rb)) if wait else None) for rb in range(2)]

    def quad_lane(pitch, dst=vDM):
        k(f"v_lshrrev_b32 v{dst}, 3, v{vLANE}")
        k(f"v_and_b32 v{vT2}, 6, v{dst}")
        k(f"v_xor_b32 v{vT2}, v{vT2}, v{vLANE}")
        k(f"v_and_b32 v{vT2}, 7, v{vT2}")
        k(f"v_lshlrev_b32 v{vT2}, 4, v{vT2}")
        if isinstance(pitch, int):
            k(f"s_movk_i32 s{sD3}, {pitch}")
            pitch = f"s{sD3}"
        k(f"v_mad_u32_u24 v{dst}, v{dst}, {pitch}, v{vT2}")

    def wo_raw():
        with k.atomic():
            quad_lane(1024)
            k(f"s_lshl_b32 s{sD0}, s{sW}, 17")
            k(f"s_lshl_b32 s{sD1}, s{sCT}, 7")
            k(f"s_add_u32 s{sD0}, s{sD0}, s{sD1}")
            k(f"s_lshl_b32 s{sL0}, s{sW}, 14")
        for j in range(16):
            k.dma(S_WO, vDM, sD0, j * 8 * 1024, sL0, R0 + j * 1024, "wo")

    def w1c1_raw():
        with k.atomic():
            quad_lane(3584)
            k(f"s_lshr_b32 s{sD0}, s{sC}, 2")
            k(f"s_mul_i32 s{sD0}, s{sD0}, 896")
            k(f"s_and_b32 s{sD1}, s{sC}, 3")
            k(f"s_lshl_b32 s{sD1}, s{sD1}, 7")
            k(f"s_add_u32 s{sD0}, s{sD0}, s{sD1}")
            k(f"s_mul_i32 s{sD1}, s{sW}, {64*3584}")
            k(f"s_add_u32 s{sD0}, s{sD0}, s{sD1}")
            k(f"s_lshl_b32 s{sL0}, s{sW}, 13")
        for half in range(2):
            for j in range(8):
                k.dma(S_W1, vDM, sD0, (half * 256 + j * 8) * 3584, sL0, R1 + half * 32768 + j * 1024, "w1a")

    def lin_dma(src, dst, n, tag, shared=False):
        for j in range(n):
            with k.atomic():
                if j == 0:
                    k(f"s_mul_i32 s{sL0}, s{sW}, {n*1024}")
                    k(f"s_add_u32 s{sD0}, s{sL0}, s{sPKB}")
                    if shared:
                        k(f"s_mul_i32 s{sD1}, s{sDH}, {8*PK_SZ}")
                        k(f"s_sub_u32 s{sD0}, s{sD0}, s{sD1}")
                if j % 4 == 0:
                    k(f"s_add_u32 m0, s{sL0}, {dst + j*1024}")
                    k(f"s_add_u32 s{sD1}, s{sD0}, {src + j*1024}")
                k.vmem(f"buffer_load_dwordx4 v{vL16}, {srd(S_WS)}, s{sD1} offen offset:{(j%4)*1024} sc1 lds", tag)

    def publish_x(bufoff, stoff, floff, pay_sc1):
        k(f"s_add_u32 s{sT1}, s{sTILE}, {bufoff}")
        k.stores([f"buffer_store_dwordx4 {vr(vRES+4*s,4)}, v{vL16}, {srd(S_WS)}, s{sT1} offen offset:{s*1024}" for s in range(2)], pay_sc1)
        a, b, c, d = vT0, vT1, vT2, vT3
        for j in range(4):
            r0, r1 = vRES + j, vRES + 4 + j
            if j == 0:
                k(f"v_mov_b32 v{vWB+9}, {BF1}")
                k(f"v_dot2_f32_bf16 v{b}, v{r0}, v{r0}, 0")
                k(f"v_dot2_f32_bf16 v{d}, v{r1}, v{r1}, 0")
                k(f"v_dot2_f32_bf16 v{a}, v{vWB+9}, v{r0}, 0")
                k(f"v_dot2_f32_bf16 v{c}, v{vWB+9}, v{r1}, 0")
            else:
                k(f"v_dot2_f32_bf16 v{b}, v{r0}, v{r0}, v{b}")
                k(f"v_dot2_f32_bf16 v{d}, v{r1}, v{r1}, v{d}")
                k(f"v_dot2_f32_bf16 v{a}, v{vWB+9}, v{r0}, v{a}")
                k(f"v_dot2_f32_bf16 v{c}, v{vWB+9}, v{r1}, v{c}")
        k.get(vWB + 8, cSTO)
        k(f"""
        s_add_u32 s{sT3}, s{sSTo}, {stoff}
        v_add_f32 v{b}, v{b}, v{d}
        v_add_f32 v{a}, v{a}, v{c}
        s_nop 1
        v_permlane16_swap_b32 v{a}, v{b}
        v_add_f32 v{a}, v{a}, v{b}
        v_mov_b32 v{b}, v{a}
        s_nop 1
        v_permlane32_swap_b32 v{a}, v{b}
        v_add_f32 v{c}, v{a}, v{b}
        s_mov_b32 exec_hi, 0
        """)
        k.stores([f"buffer_store_dword v{c}, v{vWB+8}, {srd(S_WS)}, s{sT3} offen"], False)
        k("s_mov_b64 exec, -1")
        k.poll_prep(15)

    def unpack_res(dst):
        for f in range(4):
            for p in range(2):
                r = vRES + 2*f + p
                k(f"v_lshlrev_b32 v{dst+4*f+2*p}, 16, v{r}")
                k(f"v_and_b32 v{dst+4*f+2*p+1}, 0xffff0000, v{r}")

    def misc_l1():
        k(f"""
        s_add_u32 s{sT2}, s{sTAG}, s{sXCC}
        s_add_u32 s{sT2}, s{sT2}, 2
        v_mov_b32 v{vT1}, s{sT2}
        s_lshl4_add_u32 s{sT2}, s{sG}, s{sC}
        s_lshl_b32 s{sT2}, s{sT2}, 7
        s_add_u32 s{sT2}, s{sT2}, {WS_XID}
        """)
        with k.atomic():
            k(f"s_cmp_lg_u32 s{sW}, 0")
            k(f"s_cselect_b32 s{sT2}, {OOB}, s{sT2}")
            k("s_mov_b64 exec, 1")
            k.vmem(f"buffer_store_dword v{vT1}, v{vL16}, {srd(S_WS)}, s{sT2} offen sc1", "xid")
            k("s_mov_b64 exec, -1")

    def res_load():
        k.get(vT0, cOUT)
        for s_ in range(2):
            k.vmem(f"buffer_load_dwordx4 {vr(vRES+4*s_,4)}, v{vT0}, {srd(S_X)}, 0 offen offset:{64*s_}", "res")

    def touch(kind):
        with k.atomic():
            k(f"s_lshl2_add_u32 s{sJ0}, s{sC}, s{sW}")
            sD2 = sJ0
            if kind == "h":
                k(f"s_mul_i32 s{sD2}, s{sD2}, 7168")
                k(f"s_add_u32 s{sD2}, s{sD2}, s{sGB}")
                k(f"s_add_u32 s{sD2}, s{sD2}, {G_H}")
                k(f"v_lshlrev_b32 v{vSP}, 7, v{vLANE}")
                k("s_mov_b32 exec_hi, 0xffffff")
                k.vmem(f"buffer_load_dword a255, v{vSP}, {srd(S_WS)}, s{sD2} offen sc1", "touch")
                k("s_mov_b32 exec_hi, -1")
            else:
                k(f"v_lshlrev_b32 v{vSP}, 7, v{vLANE}")
                k(f"s_lshl_b32 s{sT5}, s{sD2}, 11")
                k(f"s_add_u32 s{sT5}, s{sT5}, s{sGB}")
                k(f"s_add_u32 s{sT5}, s{sT5}, {G_X1}")
                k("s_mov_b64 exec, 0xffff")
                k.vmem(f"buffer_load_dword a255, v{vSP}, {srd(S_WS)}, s{sT5} offen sc1", "touch")
                k(f"s_lshl_b32 s{sD2}, s{sD2}, 7")
                k(f"s_add_u32 s{sD2}, s{sD2}, s{sGB}")
                k("s_mov_b64 exec, 1")
                k(f"s_add_u32 s{sD2}, s{sD2}, {G_ST1}")
                k.vmem(f"buffer_load_dword a255, v{vSP}, {srd(S_WS)}, s{sD2} offen sc1", "touch")
                k("s_mov_b64 exec, -1")

    def touch_early(mode):
        with k.atomic():
            k(f"s_lshl2_add_u32 s{sJ0}, s{sC}, s{sW}")
            k(f"v_lshlrev_b32 v{vT3}, 7, v{vLANE}")
            if mode & 1:
                k(f"s_lshl_b32 s{sT5}, s{sJ0}, 11")
                k(f"s_add_u32 s{sT5}, s{sT5}, s{sGB}")
                k(f"s_add_u32 s{sT5}, s{sT5}, {G_X1}")
                k("s_mov_b64 exec, 0xffff")
                k.vmem(f"buffer_load_dword a255, v{vT3}, {srd(S_WS)}, s{sT5} offen sc1", "touch")
            if mode & 6:
                n, first = {2: (16, 0), 4: (8, 16), 6: (24, 0)}[mode & 6]
                k(f"s_lshr_b32 s{sT5}, s{sJ0}, 3")
                k(f"s_mul_i32 s{sT5}, s{sT5}, 57344")
                k(f"s_and_b32 s{sJ0}, s{sJ0}, 7")
                k(f"s_mul_i32 s{sJ0}, s{sJ0}, {n*128}")
                k(f"s_add_u32 s{sT5}, s{sT5}, s{sJ0}")
                k(f"s_add_u32 s{sT5}, s{sT5}, s{sGB}")
                k(f"s_add_u32 s{sT5}, s{sT5}, {G_H + first*1024}")
                k(f"s_mov_b64 exec, {(1 << n) - 1}")
                k.vmem(f"buffer_load_dword a255, v{vT3}, {srd(S_WS)}, s{sT5} offen sc1", "touch")
            k("s_mov_b64 exec, -1")

    def pack_setup():
        l2, l3, le = k.label("L_p2"), k.label("L_p3"), k.label("L_pe")
        with k.atomic():
            k(f"""
            s_mov_b32 s{S_B}, s{S_WQKV}
            s_mov_b32 s{S_B+1}, s{S_WQKV+1}
            s_mov_b32 s{S_B+2}, {512*3072}
            s_movk_i32 s{sD3}, 3072
            s_movk_i32 s{sD2}, 1024
            s_mul_i32 s{sD1}, s{sG}, {32*3072}
            s_lshl_b32 s{sT2}, s{sC}, 6
            s_add_u32 s{sD1}, s{sD1}, s{sT2}
            s_lshl_b32 s{sPDA}, s{sG}, 12
            s_add_u32 s{sPDA}, s{sPDA}, s{sPKB}
            s_lshr_b32 s{sT2}, s{sC}, 2
            s_mul_i32 s{sT2}, s{sT2}, 896
            s_mul_i32 s{sT3}, s{sG}, {32*3584}
            s_add_u32 s{sT2}, s{sT2}, s{sT3}
            s_and_b32 s{sT3}, s{sC}, 3
            s_cmp_eq_u32 s{sW}, 2
            s_cbranch_scc1 {l2}
            s_cmp_eq_u32 s{sW}, 3
            s_cbranch_scc1 {l3}
            s_mov_b32 s{S_A}, s{S_W2}
            s_mov_b32 s{S_A+1}, s{S_W2+1}
            s_mov_b32 s{S_A+2}, {1792*1024}
            s_lshl_b32 s{sT2}, s{sW}, 11
            s_add_u32 s{sPDB}, s{sPDA}, s{sT2}
            s_lshl_b32 s{sT2}, s{sW}, 10
            s_add_u32 s{sD1}, s{sD1}, s{sT2}
            s_add_u32 s{sD1}, s{sD1}, 1024
            s_lshl1_add_u32 s{sT2}, s2, s{sW}
            s_lshr_b32 s{sT3}, s{sT2}, 3
            s_and_b32 s{sT2}, s{sT2}, 7
            s_mul_i32 s{sPDA}, s{sT2}, 56
            s_add_u32 s{sPDA}, s{sPDA}, s{sT3}
            s_lshl_b32 s{sPDA}, s{sPDA}, 12
            s_add_u32 s{sPDA}, s{sPDA}, {WS_W2T}
            s_lshl_b32 s{sD0}, s{sT3}, 15
            s_lshl_b32 s{sT2}, s{sT2}, 7
            s_add_u32 s{sD0}, s{sD0}, s{sT2}
            s_cmp_ge_u32 s{sT3}, 56
            s_cselect_b32 s{sPDA}, {OOB}, s{sPDA}
            s_branch {le}
            {l2}:
            s_mov_b32 s{S_A}, s{S_W1}
            s_mov_b32 s{S_A+1}, s{S_W1+1}
            s_mov_b32 s{S_A+2}, {512*3584}
            s_movk_i32 s{sD2}, 3584
            s_lshl_b32 s{sT3}, s{sT3}, 7
            s_add_u32 s{sD0}, s{sT2}, s{sT3}
            s_add_u32 s{sPDA}, s{sPDA}, {PK_W1A}
            s_lshl_b32 s{sPDB}, s{sG}, 11
            s_add_u32 s{sPDB}, s{sPDB}, s{sPKB}
            s_add_u32 s{sPDB}, s{sPDB}, {PK_Q}
            s_branch {le}
            {l3}:
            s_mov_b32 s{S_A}, s{S_WO}
            s_mov_b32 s{S_A+1}, s{S_WO+1}
            s_mov_b32 s{S_A+2}, {512*1024}
            s_mov_b32 s{S_B}, s{S_W1}
            s_mov_b32 s{S_B+1}, s{S_W1+1}
            s_mov_b32 s{S_B+2}, {512*3584}
            s_movk_i32 s{sD3}, 3584
            s_lshl_b32 s{sD0}, s{sG}, 15
            s_lshl_b32 s{sD1}, s{sCT}, 7
            s_add_u32 s{sD0}, s{sD0}, s{sD1}
            s_add_u32 s{sPDA}, s{sPDA}, {PK_WO}
            s_cmp_ge_u32 s{sC}, 8
            s_cselect_b32 s{sPDA}, {OOB}, s{sPDA}
            s_cselect_b32 s{sD0}, {OOB}, s{sD0}
            s_mul_i32 s{sPDB}, s{sG}, 3072
            s_add_u32 s{sPDB}, s{sPDB}, s{sPKB}
            s_add_u32 s{sPDB}, s{sPDB}, {PK_W1B}
            s_mul_i32 s{sD1}, s{sT3}, 3
            s_add_u32 s{sD1}, s{sD1}, 17
            s_lshr_b32 s{sD1}, s{sD1}, 1
            s_lshl_b32 s{sD1}, s{sD1}, 6
            s_add_u32 s{sD1}, s{sD1}, s{sT2}
            s_lshr_b32 s{sT5}, s{sT3}, 1
            s_mul_i32 s{sT5}, s{sT5}, 6
            s_and_b32 s{sT3}, s{sT3}, 1
            s_add_u32 s{sT5}, s{sT5}, s{sT3}
            s_add_u32 s{sT5}, s{sT5}, 18
            s_lshl_b32 s{sT5}, s{sT5}, 5
            s_add_u32 s{sT5}, s{sT5}, s{sT2}
            v_lshrrev_b32 v{vDM}, 1, v{vLANE}
            v_and_b32 v{vT2}, 16, v{vL16}
            v_mad_u32_u24 v{vDM}, v{vDM}, s{sD3}, v{vT2}
            s_add_u32 m0, s{sL0}, 6144
            s_nop 0
            buffer_load_dwordx4 v{vDM}, {srd(S_W1)}, s{sT5} offen lds
            {le}:
            s_mov_b32 s{S_A+3}, 0x20000
            s_mov_b32 s{S_B+3}, 0x20000
            """)

    def pack_issue():
        pack_setup()
        with k.atomic():
            quad_lane(f"s{sD2}")
            k(f"s_lshl_b32 s{sD2}, s{sD2}, 3")
        for j in range(4):
            with k.atomic():
                k(f"s_add_u32 m0, s{sL0}, {j*1024}")
                if j:
                    k(f"s_add_u32 s{sD0}, s{sD0}, s{sD2}")
                else:
                    k("s_nop 0")
                k.vmem(f"buffer_load_dwordx4 v{vDM}, {srd(S_A)}, s{sD0} offen lds", "pk")
        with k.atomic():
            k(f"v_mad_u32_u24 v{vDM}, v{vP}, s{sD3}, v{vCH}")
            k(f"s_lshl_b32 s{sD3}, s{sD3}, 4")
        for hh in range(2):
            with k.atomic():
                k(f"s_add_u32 m0, s{sL0}, {4096 + hh*1024}")
                if hh:
                    k(f"s_add_u32 s{sD1}, s{sD1}, s{sD3}")
                else:
                    k("s_nop 0")
                k.vmem(f"buffer_load_dwordx4 v{vDM}, {srd(S_B)}, s{sD1} offen lds", "pk")

    def pack_finish(T):
        le = k.label("L_qe")
        k(f"s_lshl_b32 s{sT2}, s{sW}, 14")
        k(f"s_add_u32 s{sT2}, s{sT2}, {L_PST}")
        for f in range(4):
            k(f"v_add_u32 v{vT0+f}, s{sT2}, v{vQ0+f}")
        k.vm_wait("pk")
        for f in range(4):
            for hh in range(2):
                k.lds(f"ds_read_b64_tr_b16 {vr(T+4*f+2*hh,2)}, v{vT0+f} offset:{hh*2048}", "pa")
        k(f"v_add_u32 v{vT0}, s{sT2}, v{vTR0}")
        k(f"v_add_u32 v{vT1}, s{sT2}, v{vTR1}")
        k(f"v_lshl_add_u32 v{vT2}, v{vLANE}, 3, s{sT2}")
        for f in range(2):
            for hh in range(2):
                k.lds(f"ds_read_b64_tr_b16 {vr(T+16+4*f+2*hh,2)}, v{vT0+f} offset:{4096+hh*1024}")
        for hh in range(2):
            k.lds(f"ds_read_b64_tr_b16 {vr(T+24+2*hh,2)}, v{vT2} offset:{6144+hh*512}")
        k.ds_wait("pa")
        for f in range(4):
            k.vmem(f"buffer_store_dwordx4 {vr(T+4*f,4)}, v{vL16}, {srd(S_WS)}, s{sPDA} offen offset:{f*1024} sc1", "pst")
        k.ds_all()
        k(f"s_cmp_lg_u32 s{sW}, 3")
        k(f"s_cbranch_scc1 {le}")
        k(f"buffer_store_dwordx4 {vr(T+24,4)}, v{vL16}, {srd(S_WS)}, s{sPDB} offen offset:2048 sc1")
        k(f"{le}:")
        for f in range(2):
            k.vmem(f"buffer_store_dwordx4 {vr(T+16+4*f,4)}, v{vL16}, {srd(S_WS)}, s{sPDB} offen offset:{f*1024} sc1", "pst")

    def pack_flag():
        k(f"""
        s_lshl_b32 s{sD2}, s2, 7
        s_add_u32 s{sD2}, s{sD2}, {WS_PD}
        s_cmp_lg_u32 s{sW}, 0
        s_cselect_b32 s{sD2}, {OOB}, s{sD2}
        v_mov_b32 v{vT1}, s{sTAG}
        s_mov_b64 exec, 1
        """)
        k.vmem(f"buffer_store_dword v{vT1}, v{vL16}, {srd(S_WS)}, s{sD2} offen sc1")
        k("s_mov_b64 exec, -1")

    def pack_check_issue():
        with k.atomic():
            k(f"v_and_b32 v{vSP}, 1, v{vLANE}")
            k(f"v_lshlrev_b32 v{vSP}, 7, v{vSP}")
            k(f"v_lshrrev_b32 v{vSP2}, 1, v{vLANE}")
            k(f"s_lshl_b32 s{sT5}, s{sC}, 3")
            k(f"v_add3_u32 v{vSP}, v{vSP}, v{vSP2}, s{sT5}")
            k(f"v_min_u32 v{vSP2}, 29, v{vLANE}")
            k(f"s_mul_i32 s{sT5}, s{sW}, 56")
            k(f"s_lshr_b32 s{sPDA}, s{sCT}, 1")
            k(f"s_add_u32 s{sT5}, s{sT5}, s{sPDA}")
            k(f"s_sub_u32 s{sT5}, s{sT5}, 64")
            k(f"v_lshl_add_u32 v{vSP2}, v{vSP2}, 2, s{sT5}")
            k(f"v_cmp_gt_u32 vcc, 16, v{vLANE}")
            k(f"s_mov_b32 s{sPDA}, {WS_PD}")
            k("s_nop 0")
            k(f"v_cndmask_b32 v{vSP}, v{vSP2}, v{vSP}, vcc")
            k(f"v_lshlrev_b32 v{vSP}, 7, v{vSP}")
            k.vmem(f"buffer_load_dword v{vTR0}, v{vSP}, {srd(S_WS)}, s{sPDA} offen sc1", "pc")

    def pack_check():
        lp, ok = k.label("L_pc"), k.label("L_pcok")
        k.vm_wait("pc")
        k(f"{lp}:")
        k(f"v_cmp_ne_u32 vcc, s{sTAG}, v{vTR0}")
        k(f"s_cbranch_vccz {ok}")
        k(f"buffer_load_dword v{vTR0}, v{vSP}, {srd(S_WS)}, s{sPDA} offen sc1")
        k("s_waitcnt vmcnt(0)")
        k(f"s_sub_u32 s{sBUD}, s{sBUD}, 1")
        k(f"s_cbranch_scc0 {lp}")
        k(f"s_mov_b32 s{sBUD}, 0")
        k(f"{ok}:")

    def wq_raw():
        k(f"s_lshl_b32 s{sL1}, s{sW}, 11")
        with k.atomic():
            k(f"v_and_b32 v{vT2}, 3, v{vP}")
            k(f"v_lshrrev_b32 v{vDM}, 4, v{vLANE}")
            k(f"v_lshl_add_u32 v{vT2}, v{vDM}, 3, v{vT2}")
            k(f"s_movk_i32 s{sD3}, 3072")
            k(f"v_mad_u32_u24 v{vDM}, v{vT2}, s{sD3}, v{vCH}")
        for r in range(4):
            for hh in range(2):
                k.dma(S_WQKV, vDM, sRB + r, hh * 4 * 3072, sL1, R1 + r * 8192 + hh * 1024, "wq")

    def async_check(tag, soff, imm):
        ok = k.label("L_aok")
        with k.atomic():
            k.vm_wait(tag)
            k(f"v_cmp_ne_u32 vcc, s{sTAG}, v{vT0}")
            k(f"s_cbranch_vccz {ok}")
            k.save_vm()
            k.poll(soff, imm, False)
            k.restore_vm()
            k(f"{ok}:")

    CSK = vT0
    gA = None
    for layer in range(1 if o.get("one") else 2):
        L1 = layer == 0
        sc = o.get("sc1", 0x07)
        psc = lambda i: bool(sc >> (4 * layer + i) & 1)
        PRE = o.get("pre", 8)

        def kv_consts():
            k.get(vPQ, cCSA)
            k.lds(f"ds_read2_b32 {vr(CSK,2)}, v{vPQ} offset0:0 offset1:16", "cs")
            k.lds(f"ds_read2_b32 {vr(CSK+2,2)}, v{vPQ} offset0:32 offset1:48", "cs")
        if L1:
            CSA = vACC + 32
            set_ones(ONES)
            k(f"s_and_b32 s{sT0}, s{sW}, 1")
            k(f"s_lshl_b32 s{sT0}, s{sT0}, 5")
            k(f"v_xor_b32 v{vPQ+3}, s{sT0}, v{vTR0}")
            k(f"s_lshr_b32 s{sT0}, s{sW}, 1")
            k(f"s_lshl_b32 s{sT0}, s{sT0}, 11")
            k(f"v_add_u32 v{vPQ+2}, s{sT0}, v{vPQ+3}")
            xslot(0, range(2, 8)); xslot(1, range(o.get("x1pre", 4)))
            xread(0)
            xslot(1, range(o.get("x1pre", 4), 8))
            k.ds_all(True)
            k.stamp("x0")
            k(f"s_mul_i32 s{sTAG}, s{sEP}, 0x9E3779B1")
            k(f"s_add_u32 s{sTAG}, s{sTAG}, 0x7F4A7C15")
            k(f"s_add_u32 s{sT8}, s{sEP}, 1")
            k(f"s_and_b32 s{sT8}, s{sT8}, 0xff")

            def rnd_begin(r):
                k.vm_wait(("wkv", r))
                k.barrier(True)
                fr = []
                for ks in range(4 * r, 4 * r + 4):
                    fr.append(dict(addr=vPQ + 2, offs=(R0 + ks * 4096, R0 + ks * 4096 + 1024), mf=[(CSA, ONES, False, ks == 0, None)]))
                for ks in range(4 * r, 4 * r + 4):
                    for pr in range(2):
                        for b in range(2):
                            base = R0 + ks * 4096 + pr * 2048
                            fr.append(dict(addr=(vTR0, vTR1)[b], offs=(base, base + 1024), mf=mf2(vACC + 16 * pr + 8 * b, ks, False, False)))
                return k.gemm_begin(fr)
            g = rnd_begin(0)
            f = {}; spread(f, k.rec(lambda: (wkv_raw(1), xslot(2, range(4)))), 0, 2); xstats(0, f)
            f = {}; spread(f, k.rec(lambda: (xslot(2, range(4, 8)), wkv_raw(2))), 0, 4); spread(f, k.rec(lambda: xread(1)), 29, 1, 2); k.gemm_run(g, f)
            k.stamp("r0")
            g = rnd_begin(1)
            f = {}; spread(f, k.rec(lambda: xslot(3)), 0, 2); xstats(1, f)
            wq = k.rec(wq_raw)
            pk = k.rec(pack_issue)
            if o.get("te", 0):
                pk += k.rec(lambda: touch_early(o["te"]))
            early = o.get("pkearly", 1)
            f = {}; spread(f, k.rec(lambda: wkv_raw(3)) + ([] if early else wq[:6]), 0, 4); spread(f, k.rec(lambda: xread(2)), 31, 1, 2); k.gemm_run(g, f)
            k.stamp("r1")
            f = {}; spread(f, k.rec(lambda: xread(3)), 7, 1)
            if early:
                spread(f, pk[:6], 0, 2.5)
            xstats(2, f)
            g = rnd_begin(2)
            f = {}; spread(f, pk[6:] + wq[:2] if early else wq[6:8], 0, 2.5 if early else 8); xstats(3, f)
            f = {}; spread(f, k.rec(lambda: (xstats_extract(), stats_finalize(True))), 3, 1)
            nq = o.get("nq", 2)
            spread(f, wq[2:2+nq] if early else wq[8:], 4, 16); k.gemm_run(g, f)
            k.stamp("r2")
            g = rnd_begin(3)
            f = {}
            spread(f, k.rec(lambda: cs_put(CSA, 0, sW)), 8, 0)
            spread(f, k.rec(stats_b), 10, 1)
            spread(f, k.rec(stats_scale), 24, 1)
            nq2 = o.get("nq2", 6)
            if early:
                spread(f, wq[2+nq:2+nq+nq2], 1, 6)
                wq = wq[2+nq+nq2:]
            else:
                spread(f, pk, 1, 4)
                wq = []
            bg = k.rec(misc_l1)
            k.gemm_run(g, f)
            k.stamp("A.kv")
            k.barrier()
            kv_consts()
        else:
            k.poll(sFXp, G_FX2)
            k.stamp("A.poll")
            al = k.rec(lambda: act_loads(G_X2))
            k.play(al[:PRE])
            k(f"s_add_u32 s{sTAG}, s{sTAG}, 1")
            fill = {}
            sl = k.rec(lambda: stat_loads(G_ST2))
            e = spread(fill, al[PRE:PRE+8] + [lambda: k.play(sl[:2]), sl[2]] + al[PRE+8:], 0, 4)
            e2 = spread(fill, k.rec(lambda: (stat_sum(), stats_finalize(True), stats_b())), 66, 1)
            e2 = spread(fill, k.rec(stats_scale), e2 + 6, 1)
            spread(fill, k.rec(kv_consts), e2, 1)
            spread(fill, k.rec(lambda: lin_dma(PK_W1A + 32768, R2, 8, "w1a")), e, 3)
            k.gemm_run(gA, fill)
            k.stamp("A.kv")
            bg = []
        set_ones(vWB + 28)
        k.get(vWB + 22, cKW1 if L1 else cKW)
        k.get(vWB + 23, cKR1 if L1 else cKR)
        k.ds_all()
        PK, PV, TMP = vPQ, vACC, vWB + 24
        KVA = vACC + 16

        def kv_epi():
            for h in range(2):
                for rb in range(2):
                    phi_block(vACC + 8*h + 4*rb, NM_B + 4*rb, CSK + h, RL_B + 4*rb, RS_B + 4*rb, PK + 4*h + 2*rb, TMP, "b")
            for h in range(2):
                for rb in range(2):
                    a = vACC + 16 + 8*h + 4*rb
                    c2, m = bcast(CSK + 2 + h, 1, 3)
                    for p in range(2):
                        k(f"v_pk_fma_f32 {vr(a+2*p,2)}, {vr(NM_B+4*rb+2*p,2)}, {c2}, {vr(a+2*p,2)}{m}")
                    for p in range(2):
                        k(f"v_pk_mul_f32 {vr(a+2*p,2)}, {vr(a+2*p,2)}, {vr(RS_B+4*rb+2*p,2)}")
                    for p in range(2):
                        k(f"v_cvt_pk_bf16_f32 v{PV+4*h+2*rb+p}, v{a+2*p}, v{a+2*p+1}")
                    if rb == 0:
                        k(f"v_mfma_f32_16x16x32_bf16 {vr(vACC+8+4*h,4)}, {vr(PK+4*h,4)}, {vr(vWB+28,4)}, 0")
                if h == 0:
                    pass
        kv_epi()
        KRS = 14 if L1 else 12
        k.lds(f"ds_write_b128 v{vWB+22}, {vr(vACC+8,4)} offset:{2 << KRS}")
        for h in range(2):
            k(f"v_mfma_f32_16x16x32_bf16 {vr(KVA+4*h,4)}, {vr(PK+4*h,4)}, {vr(PV+4*h,4)}, 0")
        k.lds(f"ds_write_b128 v{vWB+22}, {vr(vACC+12,4)} offset:{3 << KRS}")
        k.get(vWB + 21, cKVS)
        k("s_nop 4")
        for h in range(2):
            k.lds(f"ds_write_b128 v{vWB+22}, {vr(KVA+4*h,4)} offset:{h << KRS}")
        k.barrier()
        for s in range(4):
            k.lds(f"ds_read_b128 {vr(vWB+4*s,4)}, v{vWB+23} offset:{s*1024}", ("kr", s))
        KO = vACC + 32
        k.ds_wait(("kr", 1))
        for p in range(2):
            k(f"v_pk_add_f32 {vr(vWB+2*p,2)}, {vr(vWB+2*p,2)}, {vr(vWB+4+2*p,2)}")
        k.ds_wait(("kr", 3))
        for p in range(2):
            k(f"v_pk_add_f32 {vr(vWB+8+2*p,2)}, {vr(vWB+8+2*p,2)}, {vr(vWB+12+2*p,2)}")
        for p in range(2):
            k(f"v_pk_add_f32 {vr(KO+2*p,2)}, {vr(vWB+2*p,2)}, {vr(vWB+8+2*p,2)}")
        k(f"v_and_b32 v{KO}, 0xffffff00, v{KO}")
        k(f"v_or_b32 v{KO}, s{sT8}, v{KO}")
        k(f"s_mov_b64 exec, s[{sKM}:{sKM+1}]")
        k.vmem(f"buffer_store_dwordx4 {vr(KO,4)}, v{vWB+21}, {srd(S_WS)}, s{sKVP} offen sc1", "kvst")
        k("s_mov_b64 exec, -1")
        k.stamp("A.kvpub")
        fill = {}
        fr = []
        CSQ = vACC + 24

        def q_consts():
            k.get(vT0, cCSB)
            for h in range(2):
                k.lds(f"ds_read_b128 {vr(CSQ+4*h,4)}, v{vT0} offset:{(4+h)*64}")
        if L1:
            k.play(wq)
            pack_finish(vWB)
            if o.get("diag"): k.stamp("q.pf")
            k.vm_wait("wq")
            k("s_barrier")
            if o.get("diag"): k.stamp("q.wq")
            set_ones(ONES)
            k(f"v_add_u32 v{vPQ}, {R1}, v{vTR0}")
            k(f"v_add_u32 v{vPQ+1}, {R1}, v{vTR1}")
            k(f"s_and_b32 s{sT0}, s{sW}, 1")
            k(f"s_lshl_b32 s{sT1}, s{sT0}, 5")
            k(f"v_xor_b32 v{vPQ+2}, s{sT1}, v{vPQ}")
            for j in range(16):
                fr.append(dict(addr=vPQ + 2, offs=(j * 2048, j * 2048 + 1024), mf=[(vACC + 16, ONES, False, j == 0, None)]))
            for ks in range(16):
                for b in range(2):
                    fr.append(dict(addr=vPQ + b, offs=(ks * 2048, ks * 2048 + 1024), mf=mf2(vACC + 8 * b, ks, True, False)))
            wor = k.rec(wo_raw)
            if o.get("qord", 0) == 0:
                e = spread(fill, bg + k.rec(res_load), 0, 1)
            else:
                e = spread(fill, k.rec(res_load), 0, 1)
            if o.get("tq", 0) & 1:
                e = spread(fill, k.rec(lambda: touch("x")), e, 1)
            if o.get("tq", 0) & 4:
                e = spread(fill, k.rec(lambda: touch("h")), e, 1)
            spread(fill, wor, e, 3)
            k.gemm(fr, fill)
            if o.get("diag"): k.stamp("q.mm")
            cs_put(vACC + 16, 4, sT0)
            k.vm_wait("pst")
            k.barrier()
            q_consts()
            pack_flag()
        else:
            k(f"v_add_u32 v{vPQ}, {R1}, v{vL16}")
            for ks in range(16):
                for b in range(2):
                    fr.append(dict(addr=vPQ, offs=(ks * 2048 + b * 1024,), mf=mf2(vACC + 8 * b, ks, True, False)))
            e = 0
            if o.get("tq", 0) & 2:
                e = spread(fill, k.rec(lambda: touch("h")), e, 1)
            spread(fill, k.rec(lambda: lin_dma(PK_WO, R0, 16, "wo", True)), e, o.get("wostep", 3))
            spread(fill, k.rec(q_consts), 50, 1)
            k.gemm(fr, fill)
        lz, lj = k.label("L_kz"), k.label("L_kj")
        lp2, done2 = k.label("L_kp"), k.label("L_kd")
        SM = vWB + 8

        def kv_loads(track):
            for j in range(16):
                if j % 4 == 0:
                    k(f"s_add_u32 s{sT2}, s{sKVC}, {j*1024}")
                ins = f"buffer_load_dwordx4 {vr(vACT+4*j,4)}, v{vL16}, {srd(S_WS)}, s{sT2} offen offset:{(j%4)*1024} sc1"
                if track:
                    k.vmem(ins, ("kv", j))
                else:
                    k(ins)
        if L1:
            w1a = k.rec(w1c1_raw)
            na = 1 + o.get("w1a0", 8)
            k.play(w1a[:na]); w1a = w1a[na:]
            lp, done = k.label("L_xp"), k.label("L_xd")
            k(f"s_lshl_b32 s{sT4}, s{sG}, 11")
            k(f"s_add_u32 s{sT4}, s{sT4}, {WS_XID}")
            k(f"s_add_u32 s{sT3}, s{sTAG}, 2")
            k.poll_prep(15)
            k(f"v_lshlrev_b32 v{vT3}, 5, v{vT3}")
            k.vmem(f"buffer_load_dword v{vT0}, v{vT3}, {srd(S_WS)}, s{sT4} offen sc1", "xidl")
        k(f"s_cmp_ge_u32 s{sW}, 2")
        k(f"s_cbranch_scc1 {lz}_a")
        kv_loads(False)
        k(f"s_branch {lj}_a")
        k(f"{lz}_a:")
        k.get(vT2, cZL)
        k(f"buffer_load_dwordx4 {vr(SM,4)}, v{vT2}, {srd(S_WS)}, s{sKVC} offen sc1")
        k("s_nop 5")
        k(f"{lj}_a:")
        k.ds_all()
        for h in range(2):
            for rb in range(2):
                phi_block(vACC + 8*h + 4*rb, NM_A + rb, CSQ + 4*h, RL_A + rb, RS_A + rb, vPQ + 4*h + 2*rb, vWB, "a")
        k.stamp("A.q")
        k.get(vT1, cXW)
        k.get(vWB + 16, cXR)
        k.get(vWB + 17, cZR)
        k(f"s_cmp_ge_u32 s{sW}, 2")
        k(f"s_cbranch_scc1 {lz}_w")
        k(f"s_branch {lp2}_s")
        k(f"{lp2}:")
        kv_loads(True)
        k(f"{lp2}_s:")
        for j in range(0, 16, 2):
            a, b = vACT + 4*j, vACT + 4*j + 4
            k.vm_wait(("kv", j + 1))
            if j == 0:
                k(f"v_and_b32 v{SM+4}, v{a}, v{b}")
                k(f"v_or_b32 v{SM+5}, v{a}, v{b}")
                for p in range(2):
                    k(f"v_pk_add_f32 {vr(SM+2*p,2)}, {vr(a+2*p,2)}, {vr(b+2*p,2)}")
            else:
                k(f"v_and_b32 v{SM+4}, v{SM+4}, v{a}")
                k(f"v_and_b32 v{SM+4}, v{SM+4}, v{b}")
                k(f"v_or3_b32 v{SM+5}, v{SM+5}, v{a}, v{b}")
                for p in range(2):
                    k(f"v_pk_add_f32 {vr(a+2*p,2)}, {vr(a+2*p,2)}, {vr(b+2*p,2)}")
                for p in range(2):
                    k(f"v_pk_add_f32 {vr(SM+2*p,2)}, {vr(SM+2*p,2)}, {vr(a+2*p,2)}")
        k(f"""
        v_xor_b32 v{SM+4}, s{sT8}, v{SM+4}
        v_xor_b32 v{SM+5}, s{sT8}, v{SM+5}
        v_or_b32 v{SM+4}, v{SM+4}, v{SM+5}
        v_and_b32 v{SM+4}, 0xff, v{SM+4}
        v_cmp_ne_u32 vcc, 0, v{SM+4}
        v_cvt_pk_bf16_f32 v{SM}, v{SM}, v{SM+1}
        v_cvt_pk_bf16_f32 v{SM+1}, v{SM+2}, v{SM+3}
        s_cbranch_vccz {done2}
        s_sub_u32 s{sBUD}, s{sBUD}, 4
        s_cbranch_scc0 {lp2}
        s_mov_b32 s{sBUD}, 0
        {done2}:
        ds_write_b64 v{vT1}, {vr(SM,2)}
        s_branch {lj}
        {lz}:
        buffer_load_dwordx4 {vr(SM,4)}, v{vT2}, {srd(S_WS)}, s{sKVC} offen sc1
        {lz}_w:
        s_waitcnt vmcnt(0)
        v_xor_b32 v{SM+4}, s{sT8}, v{SM}
        v_and_b32 v{SM+4}, 0xff, v{SM+4}
        v_cmp_ne_u32 vcc, 0, v{SM+4}
        s_cbranch_vccz {lz}_ok
        s_sleep 2
        s_sub_u32 s{sBUD}, s{sBUD}, 1
        s_cbranch_scc0 {lz}
        s_mov_b32 s{sBUD}, 0
        {lz}_ok:
        v_permlane32_swap_b32 v{SM}, v{SM+1}
        v_permlane32_swap_b32 v{SM+2}, v{SM+3}
        v_add_f32 v{SM}, v{SM}, v{SM+1}
        v_add_f32 v{SM+2}, v{SM+2}, v{SM+3}
        s_nop 1
        v_permlane16_swap_b32 v{SM}, v{SM+2}
        v_add_f32 v{SM}, v{SM}, v{SM+2}
        s_nop 1
        v_add_f32_dpp v{SM}, v{SM}, v{SM} row_ror:4 row_mask:0xf bank_mask:0xf
        s_nop 1
        v_add_f32_dpp v{SM}, v{SM}, v{SM} row_ror:8 row_mask:0xf bank_mask:0xf
        v_cvt_pk_bf16_f32 v{SM}, v{SM}, v{SM}
        ds_write_b16 v{vT1}, v{SM}
        {lj}:
        """)
        k.stamp("A.kvget")
        k.barrier(True)
        for h in range(2):
            k.lds(f"ds_read_b64 {vr(vWB+4*h+2,2)}, v{vWB+17} offset:{h*32}")
            k.lds(f"ds_read_b64 {vr(vWB+4*h,2)}, v{vWB+16} offset:{512*h}")
        if L1:
            k(f"{lp}:")
            k(f"v_subrev_u32 v{vT0}, s{sT3}, v{vT0}")
            k(f"v_cmp_lt_u32 vcc, 8, v{vT0}")
            k(f"s_cbranch_vccz {done}")
            k(f"buffer_load_dword v{vT0}, v{vT3}, {srd(S_WS)}, s{sT4} offen sc1")
            k("s_waitcnt vmcnt(0)")
            k(f"s_sub_u32 s{sBUD}, s{sBUD}, 1")
            k(f"s_cbranch_scc0 {lp}")
            k(f"s_mov_b32 s{sBUD}, 0")
            k(f"{done}:")
            k(f"v_cmp_ne_u32 vcc, s{sXCC}, v{vT0}")
            k("s_nop 4")
            k(f"s_or_b32 s{sSLOW}, vcc_lo, {1 if o.get('forceslow') else 0}")
        k.ds_all()
        OA = vACC + 16
        for rb in range(2):
            for h in range(2):
                d = OA + 16*rb + 8*h
                k(f"v_mfma_f32_16x16x16_bf16 {vr(d+4,4)}, {vr(vWB+4*h+2,2)}, {vr(vPQ+4*h+2*rb,2)}, 0")
        for rb in range(2):
            for h in range(2):
                d = OA + 16*rb + 8*h
                k(f"v_mfma_f32_16x16x16_bf16 {vr(d,4)}, {vr(vWB+4*h,2)}, {vr(vPQ+4*h+2*rb,2)}, 0")
        k("s_nop 1")
        for rb in range(2):
            for h in range(2):
                d = OA + 16*rb + 8*h
                k(f"v_add_f32 v{d+4}, s{sEPS}, v{d+4}")
        for rb in range(2):
            for h in range(2):
                d = OA + 16*rb + 8*h
                k(f"v_rcp_f32 v{d+4}, v{d+4}")
        for rb in range(2):
            for h in range(2):
                d = OA + 16*rb + 8*h
                for p in range(2):
                    k(f"v_pk_mul_f32 {vr(d+2*p,2)}, {vr(d+2*p,2)}, {vr(d+4,2)} op_sel_hi:[1,0]")
                for p in range(2):
                    k(f"v_cvt_pk_bf16_f32 v{vPQ+4*rb+2*h+p}, v{d+2*p}, v{d+2*p+1}")
        k.stores([f"buffer_store_dwordx4 {vr(vPQ+4*rb,4)}, v{vL16}, {srd(S_WS)}, s{sOST+rb} offen" for rb in range(2)], psc(0))
        if not L1:
            w1a = k.rec(lambda: lin_dma(PK_W1A, R1, 8, "w1a"))
        nb = o.get("w1a_pre1", 8) if L1 else o.get("w1a_pre", 4)
        k.play(w1a[:nb])
        if L1:
            pack_check_issue()
            for s_ in range(2):
                for p in range(2):
                    k(f"v_permlane16_swap_b32 v{vRES+4*s_+p}, v{vRES+4*s_+2+p}")
        unpack_res(vACC)
        fr = []
        for ks in range(16):
            for f in range(4):
                mf = [(vACC + 4 * f, vACT + 4 * ks, True, False, ("act", ks))]
                if L1:
                    fr.append(dict(addr=vQ0 + f, offs=(R0 + ks * 4096, R0 + ks * 4096 + 2048), mf=mf))
                else:
                    fr.append(dict(addr=vL16, offs=(R0 + ks * 4096 + f * 1024,), mf=mf))
        g = k.gemm_begin(fr, 7)
        k.poll_prep(15)
        k.flag(sFOo, G_FO)
        k.stamp("A.opub")
        k.poll(sFOp, G_FO)
        k.stamp("B.poll")

        def w2t_loads():
            for j in range(56):
                with k.atomic():
                    if j == 0:
                        k(f"s_lshl2_add_u32 s{sD2}, s{sCT}, s{sW}")
                        k(f"s_mul_i32 s{sD2}, s{sD2}, 57344")
                        k(f"s_add_u32 s{sD2}, s{sD2}, {WS_W2T}")
                    if j % 4 == 0:
                        k(f"s_add_u32 s{sD3}, s{sD2}, {j*1024}")
                    k.vmem(f"buffer_load_dwordx4 {ar(4*j,4)}, v{vL16}, {srd(S_WS)}, s{sD3} offen offset:{(j%4)*1024} sc1", ("w2t", j // 4))

        def b_loads():
            for ks in range(16):
                with k.atomic():
                    if ks % 4 == 0:
                        k(f"s_add_u32 s{sT2}, s{sBACT}, {G_O + ks*1024}")
                    k.vmem(f"buffer_load_dwordx4 {vr(vACT+4*ks,4)}, v{vL16}, {srd(S_WS)}, s{sT2} offen offset:{(ks%4)*1024} sc1", ("act", ks))
        bl = k.rec(b_loads)
        k.play(bl[:PRE])
        fill = {}
        e = spread(fill, bl[PRE:], 0, 3)
        e = spread(fill, w1a[nb:], e, 3)
        w2 = []
        if L1:
            pack_check()
            w2 = k.rec(w2t_loads)
            n0 = o.get("nw2b", 4)
            spread(fill, w2[:n0], e, 4)
            w2 = w2[n0:]
        k.gemm_run(g, fill)
        k.stamp("B.mm")
        if L1:
            for f in range(4):
                k(f"v_add_u32 v{vQ0+f}, {R1}, v{vQ0+f}")
            k("s_nop 3")
        else:
            k(f"v_add_u32 v{vQ0}, {R1}, v{vL16}")
            k("s_nop 6")
        for f in range(4):
            for p in range(2):
                k(f"v_cvt_pk_bf16_f32 v{vRES+2*f+p}, v{vACC+4*f+2*p}, v{vACC+4*f+2*p+1}")
        publish_x(G_X1, G_ST1, G_FX1, psc(1))
        k.flag(sFXo, G_FX1)
        k.stamp("B.pub")
        k("s_barrier")
        w1c2 = k.rec(lambda: lin_dma(PK_W1B, R0, 12, "w1c2"))
        nc = o.get("w1c2_pre1", 8) if L1 else o.get("w1c2_pre", 4)
        k.play(w1c2[:nc])
        if L1:
            set_ones(ONES)
            k(f"s_lshl_b32 s{sT2}, s{sW}, 5")
            k(f"v_xor_b32 v{vPQ}, s{sT2}, v{vQ0}")
            fr = []
            for j in range(16):
                fr.append(dict(addr=vPQ, offs=(j * 4096, j * 4096 + 2048), mf=[(vACC + 32, ONES, False, j == 0, None)]))
            k.gemm(fr, D=7)
            k("s_nop 5")
            cs_put(vACC + 32, 6, sW)
        fr = []
        for ks in range(16):
            for f in range(4):
                if L1:
                    fr.append(dict(addr=vQ0 + f, offs=(ks * 4096, ks * 4096 + 2048), mf=mf2(vACC + 8 * f, ks, True, True)))
                else:
                    fr.append(dict(addr=vQ0, offs=(ks * 4096 + f * 1024,), mf=mf2(vACC + 8 * f, ks, True, True)))
        g = k.gemm_begin(fr)
        k.poll(sFXp, G_FX1)
        k.stamp("C.poll")
        C2 = vACC + 32

        def c2_init():
            k.get(vT0, cCSB)
            for b in range(3):
                k.lds(f"ds_read_b128 {vr(C2+8*b+4,4)}, v{vT0} offset:{(10+b)*64}", "cs2")
            k("s_nop 0")
            k("s_nop 0")
            k("s_nop 0")
            k.ds_wait("cs2")
            for b in range(3):
                for rb in range(2):
                    for j in range(4):
                        k(f"v_mul_f32 v{C2+8*b+4*rb+j}, v{C2+8*b+4+j}, v{NM_A+rb}")
        al = k.rec(lambda: act_loads(G_X1))
        k.play(al[:PRE])
        fill = {}
        sl = k.rec(lambda: stat_loads(G_ST1))
        e = spread(fill, al[PRE:PRE+4] + [lambda: k.play(sl[:2]), sl[2]] + al[PRE+4:], 0, 4)
        e2 = spread(fill, k.rec(lambda: (stat_sum(), stats_finalize(False))), 52, 1.5 if L1 else 1)
        if not L1:
            spread(fill, k.rec(c2_init), e2 + 2, 1)
        e = spread(fill, w1c2[nc:], e, 2)
        if L1:
            n0 = o.get("nw2a", 4)
            spread(fill, w2[:n0], e, 4)
            w2 = w2[n0:]
        k.gemm_run(g, fill)
        k.stamp("C.mm1")
        k.vm_wait("w1c2")
        if o.get("diagd"): k.stamp("C.w1c2")
        k.barrier()

        def relu_block(acc, cs, rb, dst):
            if cs is not None:
                for j in range(4):
                    k(f"v_fmac_f32 v{acc+j}, v{cs+j}, v{NM_A+rb}")
            for p in range(2):
                k(f"v_cvt_pk_bf16_f32 v{dst+p}, v{acc+2*p}, v{acc+2*p+1}")
            for p in range(2):
                k(f"v_pk_max_i16 v{dst+p}, v{dst+p}, 0")

        def epi1():
            k.get(vT2, cCSB)
            for s in range(2):
                for b in range(2):
                    k.lds(f"ds_read_b128 {vr(vPQ+4*b,4)}, v{vT2} offset:{(6+2*s+b)*64}", "cs")
                for _ in range(6):
                    k.play([lambda: None])
                k.ds_wait("cs")
                for rb in range(2):
                    for b in range(2):
                        relu_block(vACC + 16*s + 8*b + 4*rb, vPQ + 4*b, rb, vACC + 16*s + 4*rb + 2*b)
                k.stores([f"buffer_store_dwordx4 {vr(vACC+16*s+4*rb,4)}, v{vL16}, {srd(S_WS)}, s{sH1+rb} offen offset:{s*1024}"
                          for rb in range(2)], psc(2))

        def d_setup():
            with k.atomic():
                k(f"s_lshl_b32 s{sT1}, s{sW}, 13")
                k(f"s_add_u32 s{sT1}, s{sT1}, s{sGB}")
                k(f"s_add_u32 s{sT1}, s{sT1}, {G_H + 24*1024}")
            with k.atomic():
                k(f"s_lshl_b32 s{sT4}, s{sW}, 11")
                k(f"s_add_u32 s{sT4}, s{sT4}, {28*1024}")
            for j in range(4):
                with k.atomic():
                    k(f"s_add_u32 s{sT0}, s{sW}, {j}")
                    k(f"s_and_b32 s{sT0}, s{sT0}, 3")
                    k(f"s_lshl2_add_u32 s{sT0}, s{sDH}, s{sT0}")
                with k.atomic():
                    k(f"s_mul_i32 s{sT0}, s{sT0}, 57344")
                    k(f"s_add_u32 s{sRB+j}, s{sT0}, s{sT1}")
            k.poll_prep(7)
        fill = {}
        fr = []
        if L1:
            set_ones(ONES)
            k(f"s_min_u32 s{sT0}, s{sW}, 2")
            k(f"s_lshl_b32 s{sT2}, s{sT0}, 10")
            k(f"v_add_u32 v{vPQ}, s{sT2}, v{vL16}")
            fc = []
            for j in range(16):
                fc.append(dict(addr=vPQ, offs=(R0 + j * 3072,), mf=[(vACC + 56, ONES, False, j == 0, None)]))
            n0 = o.get("nw2c", 3)
            f = {}; spread(f, w2[:n0], 0, 5); w2 = w2[n0:]
            k.gemm(fc, f, D=7)
            k("s_nop 5")
            cs_put(vACC + 56, 10, sT0)
        if o.get("th", 0) >> layer & 1:
            spread(fill, k.rec(lambda: touch("h")), 0, 1)
        e = spread(fill, k.rec(epi1), 0, 0.5)
        e2 = spread(fill, k.rec(d_setup), e, 1)
        spread(fill, k.rec(lambda: k.flag(sFHo, G_FH)), min(e + o.get("fl1", 24), 94), 1)
        spread(fill, k.rec(lambda: k.vmem(f"buffer_load_dword v{vT0}, v{vT3}, {srd(S_WS)}, s{sFHp} offen offset:{G_FH} sc1", "p1")), o.get("p1", 95), 1)
        if L1:
            nw2 = o.get("nw2", 18)
            spread(fill, w2[:nw2], 0, 94 / max(nw2, 1))
            w2 = w2[nw2:]
        for ks in range(16):
            for b in range(3):
                fr.append(dict(addr=vL16, offs=(R0 + ks * 3072 + b * 1024,), mf=mf2(C2 + 8 * b, ks, True, False, None if L1 else False)))
        k.gemm(fr, fill)
        k.stamp("C.mm2")
        seq = [(ksl, j) for ksl in range(11) for j in range(4)] + [(ksl, j) for j in (1, 2, 3, 0) for ksl in (11, 12, 13)]
        hb = [0, 0, 0, 0]

        def hload(t):
            ksl, j = seq[t]
            if ksl // 4 != hb[j]:
                if ksl == 8:
                    k(f"s_sub_u32 s{sRB+j}, s{sRB+j}, s{sT4}")
                else:
                    k(f"s_add_u32 s{sRB+j}, s{sRB+j}, 4096")
                hb[j] += 1
            k.vmem(f"buffer_load_dwordx4 {vr(vACT+4*(t%28),4)}, v{vL16}, {srd(S_WS)}, s{sRB+j} offen offset:{(ksl%4)*1024} sc1", ("h", t))
        HO = vWB + 16
        LA = o.get("dla1", 10) if L1 else o.get("dla", 10)
        k.seen = {t for t in k.seen if not (isinstance(t, tuple) and t[0] == "h")}
        if L1:
            k.barrier()
            k.get(vT2, cCSB)
            for b in range(3):
                k.lds(f"ds_read_b128 {vr(vWB+4*b,4)}, v{vT2} offset:{(10+b)*64}")
            k.ds_all()
        else:
            k("s_nop 7")
        epi2 = k.rec(lambda: [relu_block(C2 + 8*b + 4*rb, vWB + 4*b if L1 else None, rb, HO + 8*rb + 2*b) for rb in range(2) for b in range(3)])
        h2sc = psc(2) and not o.get("h2plain", 0)
        its = []
        for rb in range(2):
            its.append(f"buffer_store_dwordx4 {vr(HO+8*rb,4)}, v{vL16}, {srd(S_WS)}, s{sH2+rb} offen")
            its.append(f"buffer_store_dwordx2 {vr(HO+8*rb+4,2)}, v{vL16}, {srd(S_WS)}, s{sH3+rb} offen")
        LB = o.get("dlb1", 0) if L1 else o.get("dlb", 0)
        if LB == 0:
            k.play(epi2)
            k.stores(its, h2sc)
        async_check("p1", sFHp, G_FH)
        k.stamp("D.poll1")
        tail = k.rec(lambda: (lin_dma(PK_KV, R0, 16, "wkv2"), lin_dma(PK_Q, R1, 8, "wq2"))) if L1 else []
        for t in range(LA):
            hload(t)
            if t < LB:
                n = -(-len(epi2) // (LB - t))
                k.play(epi2[:n]); epi2 = epi2[n:]
                if t == LB - 1:
                    k.stores(its, h2sc)
            if w2 and t % 2:
                k.play(w2[:1]); w2 = w2[1:]
        if LB == 0:
            k.flag(sFHo, G_FH + 1024)
        RSD = vPQ
        k.get(vPQ + 1, cRSD)
        k.lds(f"ds_read_b32 v{RSD}, v{vPQ+1}", "rsd")
        for j in range(4):
            k.get(vPQ + 4 + j, cRD0 + j)
        ur = k.rec(lambda: unpack_res(vWB))
        wr = []
        for t in range(56):
            ksl, j = seq[t]
            if L1:
                k.vm_wait(("w2t", ksl))
            k.vm_wait(("h", t))
            if o.get("diagd") and t in (0, 8, 16, 24, 32, 40, 48):
                k.stamp(f"D.t{t}")
            for f in range(4):
                a = vACC + 16*j + 4*f
                c = "0" if ksl == 0 else vr(a, 4)
                k(f"v_mfma_f32_16x16x32_bf16 {vr(a,4)}, {ar((ksl*4+f)*4,4)}, {vr(vACT+4*(t%28),4)}, {c}")
                if f == 0:
                    nt = t + LA
                    if nt == 32 - 6:
                        k.vmem(f"buffer_load_dword v{vT0}, v{vT3}, {srd(S_WS)}, s{sFHp} offen offset:{G_FH+1024} sc1", "p2")
                    if nt == 32:
                        async_check("p2", sFHp, G_FH + 1024)
                    if nt < 56:
                        hload(nt)
                    if nt == 55 + o.get("wbd", 0) and not L1 and o.get("wb", 0):
                        lw = k.label("L_wb")
                        k(f"s_lshl3_add_u32 s{sT0}, s{sW}, s2" if o["wb"] == 1 else f"s_lshl_b32 s{sT0}, s{sW}, 8\ns_add_u32 s{sT0}, s{sT0}, s2")
                        k(f"s_cmp_ge_u32 s{sT0}, {8 if o['wb'] == 1 else 8 * o['wb']}")
                        k(f"s_cbranch_scc1 {lw}")
                        k("buffer_wbl2 sc1")
                        k(f"s_branch {lw}_e")
                        k(f"{lw}:")
                        k(f"buffer_load_dword a255, v{vT3}, {srd(S_WS)}, s{sFHp} offen offset:{G_FH} sc1")
                        k(f"{lw}_e:")
                        k.vm_note(1, "wb")
                if f == 2:
                    if w2:
                        k.play(w2[:1]); w2 = w2[1:]
                    elif t + LA >= 56 and tail:
                        k.play(tail[:2]); tail = tail[2:]
                if f == 3 and LB and t == LB - 1 - o.get("fl2", 0):
                    k.flag(sFHo, G_FH + 1024)
                if f == 1 and t >= 8 and ur:
                    k.play(ur[:1]); ur = ur[1:]
                if wr and wr[0][0] <= 4 * t + f:
                    k.lds(wr.pop(0)[1])
            if ksl == 13 and j:
                for f in range(4):
                    wr.append((4 * t + 9 + 2 * f, f"ds_write_b128 v{vPQ+4+j}, {vr(vACC+16*j+4*f,4)} offset:{f*1024}"))
        assert not w2 and not ur
        for _, wi in wr:
            k.lds(wi)
        k.play(tail)
        k.stamp("D.mm")
        k.barrier()
        for j in range(3):
            for f in range(4):
                k.lds(f"ds_read_b128 {vr(vACC+16+16*j+4*f,4)}, v{vPQ+4} offset:{j*4096+f*1024}", ("rd", j, f))
        if not L1:
            k.get(vT2, cOUT)
        for j in range(3):
            for f in range(4):
                k.ds_wait(("rd", j, f))
                for p in range(2):
                    k(f"v_pk_add_f32 {vr(vACC+4*f+2*p,2)}, {vr(vACC+4*f+2*p,2)}, {vr(vACC+16+16*j+4*f+2*p,2)}")
                if j == 2:
                    for p in range(2):
                        k(f"v_pk_fma_f32 {vr(vACC+4*f+2*p,2)}, {vr(vACC+4*f+2*p,2)}, {vr(RSD,2)}, {vr(vWB+4*f+2*p,2)} op_sel_hi:[1,0,1]")
                    for p in range(2):
                        k(f"v_cvt_pk_bf16_f32 v{vRES+2*f+p}, v{vACC+4*f+2*p}, v{vACC+4*f+2*p+1}")
        k.stamp("D.red")
        if L1:
            publish_x(G_X2, G_ST2, G_FX2, psc(3))
            k(f"s_add_u32 s{sKVC}, s{sKVC}, 0x100000")
            k(f"s_add_u32 s{sKVP}, s{sKVP}, 0x100000")
            k.flag(sFXo, G_FX2)
            k.stamp("D.pub")
            k("s_barrier")
            fr = []
            for ks in range(16):
                for b in range(4):
                    fr.append(dict(addr=vL16, offs=(R0 + ks * 4096 + b * 1024,), mf=mf2(vACC + 8 * b, ks, False, True)))
            gA = k.gemm_begin(fr)
        else:
            k("s_nop 1")
            for s in range(2):
                for p in range(2):
                    k(f"v_permlane16_swap_b32 v{vRES+4*s+p}, v{vRES+4*s+2+p}")
                k.vmem(f"buffer_store_dwordx4 {vr(vRES+4*s,4)}, v{vT2}, {srd(S_OUT)}, 0 offen offset:{64*s}{' sc1' if o.get('outsc1', 1) else ''}")
            le = k.label("L_ep")
            k(f"s_or_b32 s{sT2}, s2, s{sW}")
            k(f"s_cbranch_scc1 {le}")
            k(f"s_add_u32 s{sEP}, s{sEP}, 1")
            k(f"v_mov_b32 v{vT1}, s{sEP}")
            k("s_mov_b64 exec, 1")
            k(f"buffer_store_dword v{vT1}, v{vL16}, {srd(S_WS)}, 0 offen offset:{WS_EPOCH}")
            k("s_mov_b64 exec, -1")
            k(f"{le}:")
            if stamps:
                k.vm_all()
                k.stamp("end")
                k(f"s_memrealtime s[{sST}:{sST+1}]")
                k("s_waitcnt lgkmcnt(0)")
                k(f"v_writelane_b32 v{vSTAMP}, s{sST}, 61")
                k(f"v_writelane_b32 v{vSTAMP}, s{sBUD}, 60")
                k(f"v_writelane_b32 v{vSTAMP}, s{sSLOW}, 59")
                k(f"s_lshl2_add_u32 s{sT2}, s2, s{sW}")
                k(f"s_lshl_b32 s{sT2}, s{sT2}, 8")
                k(f"s_add_u32 s{sT2}, s{sT2}, {WS_STAMP}")
                k(f"v_lshrrev_b32 v{vT0}, 2, v{vL16}")
                k(f"buffer_store_dword v{vSTAMP}, v{vT0}, {srd(S_WS)}, s{sT2} offen")
    k("L_end:")
    body = "\n".join(merge_waits(k.lines))
    hdr = open("interleave_layers__linear_attn_block__dense_activation_relu__prompt.s.ref").read().split("; Override")[0]
    txt = f"""{hdr}; Generated by a hand-written generator (persistent kernel, one workgroup per CU).
; @launch grid=(256,1,1) block=(256,1,1) lds={LDS_BYTES}
.amdgcn_target "amdgcn-amd-amdhsa--gfx950"
.text
.globl {NAME}
.p2align 8
.type {NAME},@function
.set CODE_BYTES, L_code_end - L_pcref - 512
{NAME}:
{body}
    s_endpgm
L_code_end:
.section .rodata,"a"
.p2align 6
.amdhsa_kernel {NAME}
  .amdhsa_next_free_vgpr 512
  .amdhsa_next_free_sgpr 102
  .amdhsa_accum_offset 256
  .amdhsa_group_segment_fixed_size 0
  .amdhsa_kernarg_size 72
  .amdhsa_user_sgpr_count 2
  .amdhsa_user_sgpr_kernarg_segment_ptr 1
  .amdhsa_system_sgpr_workgroup_id_x 1
.end_amdhsa_kernel
"""
    return txt, k.stamp_names


if __name__ == "__main__":
    out = sys.argv[1]
    stamps = "stamps" in sys.argv[2:]
    opts = {}
    for a in sys.argv[2:]:
        if "=" in a:
            x, y = a.split("=")
            opts[x] = int(y)
    txt, names = gen(stamps, opts)
    open(out, "w").write(txt)
    if stamps:
        open(out + ".names", "w").write("\n".join(names))
```

```python
import sys
from contextlib import contextmanager

NAME = "interleave_layers__linear_attn_block__dense_activation_relu__prompt_kernel"

WS_EPOCH = 0
WS_XID = 0x8000
WS_PD = 0x10000
GRP0 = 0x100000
G_FO, G_FX1, G_FX2, G_FH = 0, 512, 1024, 1536
G_ST1 = 0x1000
G_ST2 = G_ST1
G_X1 = 0x8000
G_X2 = G_X1
G_H = G_X1 + 0x20000
G_O = G_H
WS_KVX = 0x1200000
KVX_C = 0x9000
WS_W2T = 0x1400000
WS_PK = 0x1600000
PK_KV, PK_Q, PK_W1A, PK_W1B, PK_WO, PK_SZ = 0, 65536, 98304, 163840, 212992, 278528
WS_STAMP = 0x1B00000
WS_USED = 0x1C00000
OOB = 0x7f000000

R0, R1, R2, R3 = 0, 65536, 98304, 131072
L_SM = 161792
L_CS = L_SM
L_ZB = L_SM + 896
L_STAT = L_SM + 1024
L_XB = L_SM - 4096
W1B_N1 = 8
L_XST = 98304
L_RED = R2
L_PST = R2
LDS_BYTES = 163840

S_X, S_WQKV, S_WO, S_W1, S_W2, S_OUT, S_WS = 4, 8, 12, 16, 20, 24, 28
(sW, sC, sG, sTAG, sSLOW, sGB, sBUD, sEP, sEPS, _e1, sT0, sT1, sT2, sT3, sT4, sT5,
 sACT, sACT1, sBACT, sTILE, sOST, sOST1, sFOo, sFOp, sFXo, sFXp, sSTo, sSTg,
 sH1, sH1b, sH2, sH2b, sH3, sH3b, sFHo, sFHp, sRB, _r1, _r2, _r3, sKVC, sKVP,
 sDH, sCT, sXCC, sT8, sD0, sD1, sD2, sD3, sL0, sL1, sPKB, sPDA, sPDB, sJ0) = range(32, 88)
assert sEPS % 2 == 0
sRHO = sT8
S_A, S_B = 88, 92
sKEX = 88
sKM = 96
sST = 98
sPC = 100

vLANE, vL16, vTR0, vTR1, vQ0, vQ1, vQ2, vQ3, vP, vCH, vDM, vSTAMP = range(12)
vT0, vT1, vT2, vT3 = 12, 13, 14, 15
vSP, vSP2 = vP, vCH
vRES = 16
vPQ = 24
vWB = 32
vACC = 64
vACT = 128
BF1 = "0x3f803f80"
(cCSA, cCSB, cP16, aDUM, cSTO, cSTW, cSTA, cSTB, cKW, cKR, cKW1, cKR1, cKVS, cXW, cXR, cZR,
 cRD0, cRD1, cRD2, cRD3, cRSD, cOUT, cZL, cZW) = range(224, 248)
aONES, aCS = 248, 252


def srd(s):
    return f"s[{s}:{s+3}]"


def vr(a, n=1):
    return f"v{a}" if n == 1 else f"v[{a}:{a+n-1}]"


def ar(a, n=1):
    return f"a{a}" if n == 1 else f"a[{a}:{a+n-1}]"


def bcast(r, pos, n):
    lo = [0] * n
    hi = [1] * n
    if r % 2 == 0:
        hi[pos] = 0
    else:
        lo[pos] = 1
    f = lambda x: "[" + ",".join(map(str, x)) + "]"
    return vr(r & ~1, 2), f" op_sel:{f(lo)} op_sel_hi:{f(hi)}"


class K:
    def __init__(self, stamps=False, opts=None):
        self.lines = []
        self.nlab = 0
        self.vm = []
        self.ds = []
        self.stamps = stamps
        self.stamp_names = []
        self.o = opts or {}
        self._rec = None
        self.seen = set()

    def _do(self, fn):
        if self._rec is not None:
            self._rec.append(fn)
        else:
            fn()

    def rec(self, f):
        assert self._rec is None
        self._rec = []
        f()
        r, self._rec = self._rec, None
        return r

    @contextmanager
    def atomic(self):
        if self._rec is None:
            yield
            return
        outer, self._rec = self._rec, []
        yield
        inner, self._rec = self._rec, outer
        outer.append(lambda: [x() for x in inner])

    def play(self, items):
        for x in items:
            self._do(x)

    def _emit(self, l):
        self.lines.append(("" if l.endswith(":") else "    ") + l)

    def __call__(self, s):
        for l in s.split("\n"):
            l = l.strip()
            if l:
                self._do(lambda l=l: self._emit(l))

    def label(self, base="L"):
        self.nlab += 1
        return f"{base}_{self.nlab}"

    def vmem(self, s, tag=None):
        def f():
            self._emit(s)
            self.vm.append(tag)
            self.seen.add(tag)
        self._do(f)

    def vm_note(self, n, tag=None):
        self._do(lambda: (self.vm.extend([tag] * n), self.seen.add(tag)))

    def _wait(self, lst, tag, name, mx):
        if tag not in lst:
            return lst
        idx = len(lst) - 1 - lst[::-1].index(tag)
        n = min(len(lst) - idx - 1, mx)
        self._emit(f"s_waitcnt {name}({n})")
        return lst[len(lst) - n:] if n else []

    def vm_wait(self, tag):
        def f():
            assert tag in self.seen, tag
            self.vm = self._wait(self.vm, tag, "vmcnt", 63)
        self._do(f)

    def save_vm(self):
        def f():
            self._sv = list(self.vm)
        self._do(f)

    def restore_vm(self):
        def f():
            self.vm = self._sv
        self._do(f)

    def vm_all(self):
        def f():
            self._emit("s_waitcnt vmcnt(0)")
            self.vm = []
        self._do(f)

    def lds(self, s, tag=None):
        def f():
            self._emit(s)
            self.ds.append(tag)
        self._do(f)

    def ds_wait(self, tag):
        def f():
            self.ds = self._wait(self.ds, tag, "lgkmcnt", 15)
        self._do(f)

    def ds_all(self, force=False):
        def f():
            if self.ds or force:
                self._emit("s_waitcnt lgkmcnt(0)")
            self.ds = []
        self._do(f)

    def barrier(self, force=False):
        self.ds_all(force)
        self("s_barrier")

    def stamp(self, name):
        if not self.stamps:
            return
        self.nst = getattr(self, "nst", 0) + 1
        if self.o.get("lite") and name not in ("end", "D.pub"):
            return
        i = len(self.stamp_names)
        assert i < 59
        self.stamp_names.append(name)
        self(f"s_memtime s[{sST}:{sST+1}]")
        self.ds_all(True)
        self(f"v_writelane_b32 v{vSTAMP}, s{sST}, {i}")

    def dma(self, sr, voff, soff, simm, lreg, limm, tag=None, flag=""):
        with self.atomic():
            self(f"s_add_u32 m0, s{lreg}, {limm}")
            self(f"s_add_u32 s{sT5}, s{soff}, {simm}")
            self.vmem(f"buffer_load_dwordx4 v{voff}, {srd(sr)}, s{sT5} offen{flag} lds", tag)

    def get(self, v, c):
        self(f"v_accvgpr_read_b32 v{v}, a{c}")

    def poll_prep(self, mask):
        self.get(vT3, cP16)
        if mask == 7:
            self(f"v_and_b32 v{vT3}, 28, v{vT3}")

    def poll(self, soff, imm, clear=True):
        if clear:
            self.seen = {t for t in self.seen if not (isinstance(t, tuple) and t[0] in ("act", "h"))}
        lp, done = self.label("L_poll"), self.label("L_pd")
        with self.atomic():
            self(f"{lp}:")
            self(f"buffer_load_dword v{vT0}, v{vT3}, {srd(S_WS)}, s{soff} offen offset:{imm} sc1")
            self.vm_all()
            self(f"v_cmp_ne_u32 vcc, s{sTAG}, v{vT0}")
            self(f"s_cbranch_vccz {done}")
            self(f"s_sub_u32 s{sBUD}, s{sBUD}, 1")
            self(f"s_cbranch_scc0 {lp}")
            self(f"s_mov_b32 s{sBUD}, 0")
            self(f"{done}:")

    def stores(self, items, force_sc1, tag="st"):
        with self.atomic():
            if force_sc1:
                for it in items:
                    self.vmem(it + " sc1", tag)
                return
            ls, le = self.label("L_ss"), self.label("L_se")
            self(f"s_cmp_lg_u32 s{sSLOW}, 0")
            self(f"s_cbranch_scc1 {ls}")
            for it in items:
                self.vmem(it, tag)
            self(f"s_branch {le}")
            self(f"{ls}:")
            for it in items:
                self(it + " sc1")
            self(f"{le}:")

    def flag(self, soff, imm):
        with self.atomic():
            self(f"v_mov_b32 v{vT1}, s{sTAG}")
            self.vm_wait("st")
            self("s_mov_b64 exec, 1")
            self.stores([f"buffer_store_dword v{vT1}, v{vL16}, {srd(S_WS)}, s{soff} offen offset:{imm}"], False, "flag")
            self("s_mov_b64 exec, -1")

    def gemm_begin(self, frags, D=6):
        self.gid = getattr(self, "gid", 0) + 1
        g = dict(frags=frags, D=D, gid=self.gid, rp=0, reads=[])
        for t, f in enumerate(frags):
            s = vWB + 4 * (t % 8)
            if len(f["offs"]) == 2:
                for hh in range(2):
                    g["reads"].append((t, f"ds_read_b64_tr_b16 {vr(s + 2*hh, 2)}, v{f['addr']} offset:{f['offs'][hh]}"))
            else:
                g["reads"].append((t, f"ds_read_b128 {vr(s, 4)}, v{f['addr']} offset:{f['offs'][0]}"))
        self._issue(g, D - 1, 99)
        return g

    def _issue(self, g, tmax, maxn):
        c = 0
        reads = g["reads"]
        while g["rp"] < len(reads) and reads[g["rp"]][0] <= tmax and c < maxn:
            self.lds(reads[g["rp"]][1], ("w", g["gid"], reads[g["rp"]][0]))
            g["rp"] += 1
            c += 1

    def gemm_run(self, g, fill=None):
        fill = fill or {}
        frags, D, gid = g["frags"], g["D"], g["gid"]
        n = len(frags)
        mi = 0
        for t, f in enumerate(frags):
            s = vWB + 4 * (t % 8)
            if t % 2 == 0:
                self.ds_wait(("w", gid, min(t + 1, n - 1)))
            nm = len(f["mf"])
            for j, (acc, act_, sw, first, wt) in enumerate(f["mf"]):
                if wt is not None:
                    self.vm_wait(wt)
                c = "0" if first else vr(acc, 4) if acc is not None else ar(aCS, 4)
                if acc is None:
                    self(f"v_mfma_f32_16x16x32_bf16 {ar(aCS,4)}, {ar(aONES,4)}, {vr(s,4)}, {c}")
                elif sw:
                    self(f"v_mfma_f32_16x16x32_bf16 {vr(acc,4)}, {vr(s,4)}, {vr(act_,4)}, {c}")
                else:
                    self(f"v_mfma_f32_16x16x32_bf16 {vr(acc,4)}, {vr(act_,4)}, {vr(s,4)}, {c}")
                self._issue(g, t + D, 99 if j == nm - 1 else 1)
                self.play(fill.pop(mi, []))
                mi += 1
        for key in sorted(fill):
            self.play(fill[key])

    def gemm(self, frags, fill=None, D=6):
        self.gemm_run(self.gemm_begin(frags, D), fill)


def merge_waits(lines):
    import re
    out = []
    for l in lines:
        m = re.match(r"\s*s_waitcnt (\w+)\((\d+)\)$", l)
        if m and out:
            p = re.match(r"\s*s_waitcnt (\w+)\((\d+)\)$", out[-1])
            if p and p.group(1) != m.group(1):
                out[-1] = out[-1] + f" {m.group(1)}({m.group(2)})"
                continue
        out.append(l)
    return out


def spread(fill, items, start, step, per=1):
    p = start
    for i in range(0, len(items), per):
        fill.setdefault(int(p), []).extend(items[i:i + per])
        p += step
    return p


def mix(a, b, ratio):
    out = []
    bi = 0
    for i, x in enumerate(a):
        out.append(x)
        if (i + 1) % ratio == 0 and bi < len(b):
            out.append(b[bi]); bi += 1
    out.extend(b[bi:])
    return out


def act(ks, rb):
    return vACT + 8 * ks + 4 * rb


def gen(stamps=False, opts=None):
    k = K(stamps, opts)
    o = k.o
    if stamps:
        k(f"s_memtime s[{sST}:{sST+1}]")
        k(f"s_memrealtime s[{sPC}:{sPC+1}]")
    k(f"""
    s_cmp_ge_u32 s2, 256
    s_cbranch_scc1 L_end
    s_load_dwordx2 s[{S_X}:{S_X+1}], s[0:1], 0
    s_load_dwordx2 s[{S_WQKV}:{S_WQKV+1}], s[0:1], 8
    s_load_dwordx2 s[{S_WS}:{S_WS+1}], s[0:1], 64
    s_load_dwordx2 s[{S_WO}:{S_WO+1}], s[0:1], 16
    s_load_dwordx2 s[{S_W1}:{S_W1+1}], s[0:1], 32
    s_load_dwordx2 s[{S_W2}:{S_W2+1}], s[0:1], 40
    s_load_dwordx2 s[{S_OUT}:{S_OUT+1}], s[0:1], 48
    v_lshrrev_b32 v{vT0}, 6, v0
    v_and_b32 v{vLANE}, 63, v0
    s_mov_b32 s{S_X+2}, {2048*1024}
    v_readfirstlane_b32 s{sW}, v{vT0}
    s_mov_b32 s{S_X+3}, 0x20000
    s_mov_b32 s{S_WQKV+2}, {512*3072}
    s_mov_b32 s{S_WQKV+3}, 0x20000
    s_lshr_b32 s{sT0}, s2, 3
    s_and_b32 s{sC}, s{sT0}, 15
    s_lshr_b32 s{sT0}, s{sT0}, 4
    s_and_b32 s{sG}, s2, 7
    s_lshl1_add_u32 s{sG}, s{sG}, s{sT0}
    s_lshr_b32 s{sT1}, s{sC}, 1
    s_xor_b32 s{sT1}, s{sT1}, s{sT0}
    s_and_b32 s{sT1}, s{sT1}, 1
    s_and_b32 s{sRHO}, s{sC}, 1
    s_lshl1_add_u32 s{sRHO}, s{sT1}, s{sRHO}
    v_lshlrev_b32 v{vL16}, 4, v{vLANE}
    """)
    if stamps:
        k(f"v_mov_b32 v{vSTAMP}, 0")
    XS, XR, X2R = vRES, vRES + 4, act(15, 1)
    aRES = 246
    k(f"""
    v_lshrrev_b32 v{vT0}, 4, v{vLANE}
    v_and_b32 v{vT1}, 15, v{vLANE}
    v_xor_b32 v{vT2}, v{vT0}, v{vT1}
    v_lshlrev_b32 v{vT2}, 4, v{vT2}
    v_lshl_add_u32 v{XS}, v{vT0}, 10, v{vT2}
    s_lshr_b32 s{sJ0}, s{sC}, 2
    s_and_b32 s{sT2}, s{sJ0}, 1
    s_lshl_b32 s{sT2}, s{sT2}, 7
    s_lshl_b32 s{sJ0}, s{sJ0}, 11
    v_xor_b32 v{XS}, s{sT2}, v{XS}
    v_xor_b32 v{XS+1}, 64, v{XS}
    v_xor_b32 v{XS+2}, 0x80, v{XS}
    v_xor_b32 v{XS+3}, 0xc0, v{XS}
    v_lshrrev_b32 v{vP}, 2, v{vLANE}
    v_and_b32 v{vCH}, 3, v{vLANE}
    v_lshrrev_b32 v{vT3}, 3, v{vLANE}
    v_and_b32 v{vT3}, 2, v{vT3}
    v_xor_b32 v{vCH}, v{vCH}, v{vT3}
    v_lshlrev_b32 v{vCH}, 4, v{vCH}
    v_and_b32 v{vT3}, 3, v{vP}
    v_lshl_add_u32 v{vT3}, v{vT0}, 3, v{vT3}
    s_movk_i32 s{sT1}, 3072
    v_mad_u32_u24 v{vDM}, v{vT3}, s{sT1}, v{vCH}
    s_lshl_b32 s{sL0}, s{sW}, 14
    s_add_u32 s{sL0}, s{sL0}, {L_XST}
    s_lshl_b32 s{sT1}, s{sG}, 17
    s_lshl_b32 s{sT2}, s{sW}, 15
    s_add_u32 s{sT1}, s{sT1}, s{sT2}
    s_lshl_b32 s{sL1}, s{sW}, 12
    """)
    for r in range(4):
        k(f"""
        s_add_u32 s{sT2}, s{sRHO}, {r}
        s_and_b32 s{sT2}, s{sT2}, 3
        s_lshl_b32 s{sT3}, s{sT2}, 8
        s_add_u32 s{sD0+r}, s{sT1}, s{sT3}
        s_lshl2_add_u32 s{sT2}, s{sT2}, s{sW}
        s_mul_i32 s{sT2}, s{sT2}, {32*3072}
        s_lshl_b32 s{sT3}, s{sC}, 6
        s_add_u32 s{sRB+r}, s{sT2}, s{sT3}
        """)
    k("s_waitcnt lgkmcnt(0)")
    k(f"s_load_dword s{sEP}, s[{S_WS}:{S_WS+1}], {WS_EPOCH}")
    if stamps:
        k(f"v_writelane_b32 v{vSTAMP}, s{sST}, 62")
        k(f"v_writelane_b32 v{vSTAMP}, s{sPC}, 63")

    def xslot(q, js=range(8)):
        for j in js:
            with k.atomic():
                k(f"s_xor_b32 s{sT4}, s{sJ0}, {j*1024}")
                k(f"s_add_u32 m0, s{sT4}, s{sL0}")
                if q & 1:
                    k(f"s_add_u32 m0, m0, 8192")
                k(f"s_lshl2_add_u32 s{sT5}, s{sT4}, s{sD0+q}")
                k.vmem(f"buffer_load_dwordx4 v{XS+(j&3)}, {srd(S_X)}, s{sT5} offen lds", ("xs", q))

    def wkv_raw(r):
        for pr in range(2):
            for hh in range(2):
                k.dma(S_WQKV, vDM, sRB + r, hh * 4 * 3072 + 1024 * (pr + 1), sL1, R0 + r * 16384 + pr * 2048 + hh * 1024, ("wkv", r))

    def warm():
        k(f"v_lshlrev_b32 v{vT3}, 7, v{vLANE}")
        k("s_mov_b64 exec, 0xf")
        k(f"""
        s_getpc_b64 s[{sPC}:{sPC+1}]
        L_pcref:
        s_lshr_b32 s{sT2}, s2, 3
        s_lshl2_add_u32 s{sT2}, s{sT2}, s{sW}
        s_lshl_b32 s{sT2}, s{sT2}, 9
        s_min_u32 s{sT2}, s{sT2}, CODE_BYTES
        s_add_u32 s{sPC}, s{sPC}, s{sT2}
        s_addc_u32 s{sPC+1}, s{sPC+1}, 0
        """)
        k.vmem(f"global_load_dword a{aDUM}, v{vT3}, s[{sPC}:{sPC+1}]")
        if o.get("warm", 1) >= 1:
            k(f"s_lshl2_add_u32 s{sT2}, s2, s{sW}")
            k(f"s_lshr_b32 s{sT3}, s{sT2}, 1")
            k(f"s_mul_i32 s{sT3}, s{sT3}, 3072")
            k(f"s_and_b32 s{sT4}, s{sT2}, 1")
            k(f"s_lshl_b32 s{sT4}, s{sT4}, 9")
            k(f"s_add_u32 s{sT3}, s{sT3}, s{sT4}")
            k.vmem(f"buffer_load_dword a{aDUM}, v{vT3}, {srd(S_WQKV)}, s{sT3} offen")
        if o.get("warm", 1) >= 2:
            k(f"s_lshl_b32 s{sT3}, s{sT2}, 9")
            k.vmem(f"buffer_load_dword a{aDUM}, v{vT3}, {srd(S_WO)}, s{sT3} offen")
            k(f"s_mul_i32 s{sT3}, s{sT2}, 1792")
            k("s_mov_b64 exec, 0x3fff")
            k.vmem(f"buffer_load_dword a{aDUM}, v{vT3}, {srd(S_W1)}, s{sT3} offen")
            k.vmem(f"buffer_load_dword a{aDUM}, v{vT3}, {srd(S_W2)}, s{sT3} offen")
        k(f"s_lshl2_add_u32 s{sT2}, s{sC}, s{sW}")
        k(f"s_lshl_b32 s{sT2}, s{sT2}, 8")
        k(f"s_add_u32 s{sT2}, s{sT2}, s{sGB}")
        k("s_mov_b64 exec, 3")
        k.vmem(f"buffer_load_dword a{aDUM}, v{vT3}, {srd(S_WS)}, s{sT2} offen sc1", "touch")
        k("s_mov_b64 exec, -1")

    xslot(0, range(2)); wkv_raw(0)
    k(f"""
    s_mov_b32 s{S_WO+2}, {512*1024}
    s_mov_b32 s{S_WO+3}, 0x20000
    s_mov_b32 s{S_W1+2}, {512*3584}
    s_mov_b32 s{S_W1+3}, 0x20000
    s_mov_b32 s{S_W2+2}, {1792*1024}
    s_mov_b32 s{S_W2+3}, 0x20000
    s_mov_b32 s{S_WS+2}, {WS_USED}
    s_mov_b32 s{S_WS+3}, 0x20000
    s_lshl_b32 s{sGB}, s{sG}, 20
    s_add_u32 s{sGB}, s{sGB}, {GRP0}
    """)
    warm()

    def arm():
        k(f"s_lshl2_add_u32 s{sT2}, s{sC}, s{sW}")
        k(f"s_mul_i32 s{sT2}, s{sT2}, 9216")
        k(f"s_add_u32 s{sT2}, s{sT2}, s{sGB}")
        for j in range(9):
            with k.atomic():
                if j % 4 == 0:
                    k(f"s_add_u32 s{sT3}, s{sT2}, {G_X1 + j*1024}")
                k.vmem(f"buffer_store_dwordx4 {vr(vTR0+2,4)}, v{vL16}, {srd(S_WS)}, s{sT3} offen offset:{(j%4)*1024} sc1", "arm")
    if o.get("arm", 0) == 1:
        arm()

    k(f"""
    s_mov_b32 s{S_OUT+2}, {2048*1024}
    s_mov_b32 s{S_OUT+3}, 0x20000
    s_lshr_b32 s{sDH}, s{sC}, 3
    s_and_b32 s{sCT}, s{sC}, 7
    s_mov_b32 s{sBUD}, 150000
    s_mov_b32 s{sEPS}, 0x358637bd
    s_mov_b32 s{sEPS+1}, 0x358637bd
    s_getreg_b32 s{sXCC}, hwreg(HW_REG_XCC_ID, 0, 4)
    s_lshl_b32 s{sACT}, s{sW}, 15
    s_add_u32 s{sACT}, s{sACT}, s{sGB}
    s_add_u32 s{sACT1}, s{sACT}, 16384
    s_lshl2_add_u32 s{sT0}, s{sDH}, s{sW}
    s_lshl_b32 s{sBACT}, s{sT0}, 14
    s_add_u32 s{sBACT}, s{sBACT}, s{sGB}
    s_lshl_b32 s{sTILE}, s{sCT}, 11
    s_add_u32 s{sTILE}, s{sTILE}, s{sBACT}
    s_mul_i32 s{sBACT}, s{sT0}, 57344
    s_add_u32 s{sBACT}, s{sBACT}, s{sGB}
    s_mul_i32 s{sOST}, s{sW}, {2*57344}
    s_lshl_b32 s{sOST1}, s{sC}, 10
    s_add_u32 s{sOST}, s{sOST}, s{sOST1}
    s_add_u32 s{sOST}, s{sOST}, s{sGB}
    s_add_u32 s{sOST}, s{sOST}, {G_O}
    s_add_u32 s{sOST1}, s{sOST}, 57344
    s_lshl_b32 s{sFXp}, s{sW}, 7
    s_add_u32 s{sFXp}, s{sFXp}, s{sGB}
    s_lshl2_add_u32 s{sFOo}, s{sC}, s{sFXp}
    s_lshl_b32 s{sFHp}, s{sT0}, 7
    s_add_u32 s{sFHp}, s{sFHp}, s{sGB}
    s_lshr_b32 s{sT0}, s{sT0}, 1
    s_mov_b32 s{sT1}, s{sT0}
    s_lshl_b32 s{sFOp}, s{sT0}, 7
    s_add_u32 s{sFOp}, s{sFOp}, s{sGB}
    s_and_b32 s{sT2}, s{sW}, 1
    s_lshl1_add_u32 s{sT3}, s{sCT}, s{sT2}
    s_lshl2_add_u32 s{sFXo}, s{sT3}, s{sFOp}
    s_lshl3_add_u32 s{sT3}, s{sT0}, s{sCT}
    s_lshl_b32 s{sT3}, s{sT3}, 8
    s_lshl3_add_u32 s{sT3}, s{sT2}, s{sT3}
    s_add_u32 s{sSTo}, s{sT3}, s{sGB}
    s_lshl_b32 s{sSTg}, s{sW}, 11
    s_add_u32 s{sSTg}, s{sSTg}, s{sGB}
    s_lshl2_add_u32 s{sT1}, s{sT1}, s{sT2}
    s_lshl_b32 s{sT1}, s{sT1}, 6
    s_add_u32 s{sT1}, s{sT1}, {L_STAT + 128}
    v_lshl_add_u32 v{vT3}, v{vT1}, 2, s{sT1}
    v_accvgpr_write_b32 a{cRSD}, v{vT3}
    s_mul_i32 s{sT0}, s{sW}, {2*57344}
    s_add_u32 s{sT0}, s{sT0}, s{sGB}
    s_lshr_b32 s{sT3}, s{sC}, 2
    s_add_u32 s{sT0}, s{sT0}, {G_H}
    s_lshl_b32 s{sH1}, s{sC}, 11
    s_add_u32 s{sH1}, s{sH1}, {24*1024}
    s_add_u32 s{sH1}, s{sH1}, s{sT0}
    s_add_u32 s{sH1b}, s{sH1}, 57344
    s_mul_i32 s{sT4}, s{sT3}, 6144
    s_add_u32 s{sT0}, s{sT0}, s{sT4}
    s_and_b32 s{sT4}, s{sC}, 3
    s_mul_i32 s{sH2}, s{sT4}, 3
    s_add_u32 s{sH2}, s{sH2}, 1
    s_lshr_b32 s{sH2}, s{sH2}, 1
    s_lshl_b32 s{sH2}, s{sH2}, 10
    s_add_u32 s{sH2}, s{sH2}, s{sT0}
    s_add_u32 s{sH2b}, s{sH2}, 57344
    s_lshr_b32 s{sH3}, s{sT4}, 1
    s_mul_i32 s{sH3}, s{sH3}, 3072
    s_and_b32 s{sH3b}, s{sT4}, 1
    s_lshl3_add_u32 s{sH3}, s{sH3b}, s{sH3}
    s_add_u32 s{sH3}, s{sH3}, 1024
    s_add_u32 s{sH3}, s{sH3}, s{sT0}
    s_add_u32 s{sH3b}, s{sH3}, 57344
    s_lshr_b32 s{sT0}, s{sW}, 1
    s_lshl2_add_u32 s{sT0}, s{sT0}, s{sT3}
    s_lshl_b32 s{sT0}, s{sT0}, 7
    s_lshl1_add_u32 s{sT2}, s{sT4}, s{sT2}
    s_lshl2_add_u32 s{sT0}, s{sT2}, s{sT0}
    s_add_u32 s{sFHo}, s{sT0}, s{sGB}
    s_mul_i32 s{sPKB}, s{sC}, {PK_SZ}
    s_add_u32 s{sPKB}, s{sPKB}, {WS_PK}
    """)
    k(f"""
    s_mul_i32 s{sT0}, s{sC}, {KVX_C}
    s_add_u32 s{sT0}, s{sT0}, {WS_KVX}
    s_lshl_b32 s{sT1}, s{sW}, 13
    s_add_u32 s{sKVC}, s{sT0}, s{sT1}
    s_lshl_b32 s{sT2}, s{sW}, 14
    s_lshl_b32 s{sT3}, s{sG}, 10
    s_lshl_b32 s{sT4}, s{sG}, 7
    s_cmp_lt_u32 s{sW}, 2
    s_cselect_b32 s{sT3}, s{sT3}, s{sT4}
    s_cselect_b32 s{sKM}, -1, 0x30003
    s_cselect_b32 s{sKM+1}, -1, 0x30003
    s_cselect_b64 vcc, -1, 0
    s_add_u32 s{sKVP}, s{sT0}, s{sT2}
    s_add_u32 s{sKVP}, s{sKVP}, s{sT3}
    s_cmp_eq_u32 s{sW}, 3
    s_cselect_b32 s{sKVP}, {OOB}, s{sKVP}
    v_lshlrev_b32 v{vT3}, 4, v{vT0}
    v_lshl_add_u32 v{vT3}, v{vT1}, 6, v{vT3}
    v_cndmask_b32 v{vT3}, v{vT3}, v{vL16}, vcc
    v_accvgpr_write_b32 a{cKVS}, v{vT3}
    v_lshlrev_b32 v{vT3}, 2, v{vL16}
    v_and_b32 v{vT3}, 0xf00, v{vT3}
    v_lshrrev_b32 v{vT3}, 1, v{vT3}
    v_and_b32 v{vWB}, 48, v{vL16}
    s_lshr_b32 s{sT2}, s{sW}, 1
    s_lshl_b32 s{sT2}, s{sT2}, 6
    s_add_u32 s{sT2}, s{sT2}, 32768
    s_sub_u32 s{sT2}, s{sT2}, s{sT1}
    v_add3_u32 v{vT3}, v{vT3}, v{vWB}, s{sT2}
    v_accvgpr_write_b32 a{cZL}, v{vT3}
    v_and_b32 v{vWB+5}, 1, v{vLANE}
    v_cndmask_b32 v{vWB+5}, v{vWB+5}, 0, vcc
    s_min_u32 s{sT5}, s{sW}, 2
    """)
    W = vWB
    k(f"""
    v_lshl_add_u32 v{XR}, v{vT1}, 8, v{vT2}
    v_add_u32 v{XR}, s{sL0}, v{XR}
    v_xor_b32 v{XR+1}, 64, v{XR}
    v_xor_b32 v{XR+2}, 0x80, v{XR}
    v_xor_b32 v{XR+3}, 0xc0, v{XR}
    v_and_b32 v{vT3}, 3, v{vLANE}
    v_lshlrev_b32 v{vT3}, 3, v{vT3}
    v_lshl_add_u32 v{vTR0}, v{vP}, 6, v{vT3}
    v_lshl_add_u32 v{vQ0}, v{vP}, 7, v{vT3}
    v_and_b32 v{vT3}, 1, v{vT0}
    v_lshlrev_b32 v{vT3}, 5, v{vT3}
    v_add_u32 v{vTR0}, v{vTR0}, v{vT3}
    v_xor_b32 v{vTR1}, 32, v{vTR0}
    v_bfe_u32 v{vT3}, v{vLANE}, 3, 2
    v_lshl_add_u32 v{vQ0}, v{vT3}, 5, v{vQ0}
    v_xor_b32 v{vQ1}, 32, v{vQ0}
    v_xor_b32 v{vQ2}, 64, v{vQ0}
    v_xor_b32 v{vQ3}, 0x60, v{vQ0}
    v_lshlrev_b32 v{W}, 2, v{vT1}
    v_accvgpr_write_b32 a{cP16}, v{W}
    v_mov_b32 v{W+1}, {BF1}
    v_accvgpr_write_b32 a{aONES}, v{W+1}
    v_accvgpr_write_b32 a{aONES+1}, v{W+1}
    v_accvgpr_write_b32 a{aONES+2}, v{W+1}
    v_accvgpr_write_b32 a{aONES+3}, v{W+1}
    v_add_u32 v{W+1}, {L_CS}, v{W}
    v_accvgpr_write_b32 a{cCSA}, v{W+1}
    v_and_b32 v{W+2}, 48, v{vLANE}
    v_add_u32 v{W+1}, {L_CS}, v{W+2}
    v_accvgpr_write_b32 a{cCSB}, v{W+1}
    v_lshlrev_b32 v{W+1}, 2, v{vT0}
    v_lshl_add_u32 v{W+1}, v{vT1}, 4, v{W+1}
    v_accvgpr_write_b32 a{cSTO}, v{W+1}
    s_lshl_b32 s{sT0}, s{sW}, 8
    s_add_u32 s{sT0}, s{sT0}, {L_STAT}
    v_add_u32 v{W+1}, s{sT0}, v{W}
    v_accvgpr_write_b32 a{cSTA}, v{W+1}
    v_and_b32 v{W+3}, 32, v{vLANE}
    v_lshl_add_u32 v{W+1}, v{W+3}, 1, v{W+1}
    v_accvgpr_write_b32 a{cSTW}, v{W+1}
    v_add_u32 v{W+1}, s{sT0}, v{W+2}
    v_accvgpr_write_b32 a{cSTB}, v{W+1}
    s_lshl_b32 s{sT0}, s{sW}, 10
    v_add_u32 v{W+1}, s{sT0}, v{vL16}
    v_add_u32 v{W+3}, {R3}, v{W+1}
    v_accvgpr_write_b32 a{cKW}, v{W+3}
    v_add_u32 v{W+3}, {R2 + 8192}, v{W+1}
    v_accvgpr_write_b32 a{cKW1}, v{W+3}
    s_lshl_b32 s{sT0}, s{sT5}, 12
    s_add_u32 s{sT0}, s{sT0}, {R3}
    v_add_u32 v{W+1}, s{sT0}, v{vL16}
    v_lshl_add_u32 v{W+1}, v{W+5}, 12, v{W+1}
    v_accvgpr_write_b32 a{cKR}, v{W+1}
    s_lshl_b32 s{sT0}, s{sT5}, 14
    s_add_u32 s{sT0}, s{sT0}, {R2 + 8192}
    v_add_u32 v{W+1}, s{sT0}, v{vL16}
    v_lshl_add_u32 v{W+1}, v{W+5}, 14, v{W+1}
    v_accvgpr_write_b32 a{cKR1}, v{W+1}
    v_add_u32 v{W+1}, {L_XB}, v{vL16}
    v_accvgpr_write_b32 a{cXR}, v{W+1}
    v_lshlrev_b32 v{W+3}, 3, v{vT0}
    v_add_u32 v{W+3}, {L_ZB}, v{W+3}
    v_accvgpr_write_b32 a{cZR}, v{W+3}
    """)
    k(f"""
    s_lshl_b32 s{sT0}, s{sW}, 10
    v_add_u32 v{W+1}, s{sT0}, v{W+1}
    v_accvgpr_write_b32 a{cXW}, v{W+1}
    v_and_b32 v{W+3}, 1, v{vT0}
    v_lshrrev_b32 v{W+4}, 1, v{vT0}
    v_lshl_add_u32 v{W+3}, v{W+3}, 1, v{W+4}
    v_and_b32 v{W+4}, 3, v{vLANE}
    v_lshl_add_u32 v{W+3}, v{W+4}, 2, v{W+3}
    s_lshr_b32 s{sT0}, s{sW}, 1
    s_lshl_b32 s{sT0}, s{sT0}, 5
    s_add_u32 s{sT0}, s{sT0}, {L_ZB}
    v_lshl_add_u32 v{W+3}, v{W+3}, 1, s{sT0}
    v_accvgpr_write_b32 a{cZW}, v{W+3}
    """)
    for j in range(4):
        k(f"s_add_u32 s{sT0}, s{sW}, {j}")
        k(f"s_and_b32 s{sT0}, s{sT0}, 3")
        k(f"s_mul_i32 s{sT0}, s{sT0}, 12288")
        k(f"s_add_u32 s{sT0}, s{sT0}, {L_RED + max(j-1, 0)*4096}")
        k(f"v_add_u32 v{W+1}, s{sT0}, v{vL16}")
        k(f"v_accvgpr_write_b32 a{cRD0+j}, v{W+1}")
    k(f"""
    s_lshl2_add_u32 s{sT0}, s{sDH}, s{sW}
    s_lshl3_add_u32 s{sT0}, s{sG}, s{sT0}
    s_lshl_b32 s{sT0}, s{sT0}, 14
    s_lshl_b32 s{sT1}, s{sCT}, 7
    s_add_u32 s{sT0}, s{sT0}, s{sT1}
    v_lshl_add_u32 v{W+1}, v{vT1}, 10, s{sT0}
    v_and_b32 v{W+3}, 1, v{vT0}
    v_lshl_add_u32 v{W+1}, v{W+3}, 5, v{W+1}
    v_lshrrev_b32 v{W+3}, 1, v{vT0}
    v_lshl_add_u32 v{W+1}, v{W+3}, 4, v{W+1}
    v_accvgpr_write_b32 a{cOUT}, v{W+1}
    """)

    def xread(q):
        k.vm_wait(("xs", q))
        for ksl in range(4):
            for rb in range(2):
                k.lds(f"ds_read_b128 {vr(act(4*q+ksl, rb),4)}, v{XR+ksl} offset:{(q%2)*8192 + rb*4096}", ("xr", q))

    SUM0, SQ0, SUM1, SQ1 = vACC + 56, vACC + 57, vACC + 58, vACC + 59
    SUMA, SQA = vACC + 48, vACC + 56
    ONES = vPQ + 4
    NM_A, RS_A, RL_A = vACC + 60, vACC + 62, vACC + 56
    NM_B, RS_B, RL_B = vACC + 32, vACC + 40, vACC + 48
    STG = vACC + 48

    def xstats(q, fill):
        k.ds_wait(("xr", q))
        mi = 0
        for ksl in range(4):
            for rb in range(2):
                a_ = vr(act(4*q+ksl, rb), 4)
                first = q == 0 and ksl == 0
                for (acc, A) in ((SUMA + 4*rb, ar(aONES, 4)), (SQA + 4*rb, a_)):
                    k(f"v_mfma_f32_16x16x32_bf16 {vr(acc,4)}, {A}, {a_}, {'0' if first else vr(acc,4)}")
                    k.play(fill.pop(mi, []))
                    mi += 1
        assert not fill

    def xstats_extract():
        k(f"v_mov_b32 v{vT0}, 0")
        k(f"v_mov_b32 v{vT1}, 0")
        for r in range(4):
            m = (1 | 1 << 20 | 1 << 40 | 1 << 60) << r
            with k.atomic():
                k(f"s_mov_b32 vcc_lo, {m & 0xffffffff}")
                k(f"s_mov_b32 vcc_hi, {m >> 32}")
                k(f"v_cndmask_b32 v{vT0}, v{vT0}, v{SQA+r}, vcc")
                k(f"v_cndmask_b32 v{vT1}, v{vT1}, v{SQA+4+r}, vcc")
        k(f"v_mul_f32 v{SUM0}, 0x3e800000, v{SUMA}")
        k(f"v_mul_f32 v{SUM1}, 0x3e800000, v{SUMA+4}")
        k(f"v_mov_b32 v{SQ0}, v{vT0}")
        k(f"v_mov_b32 v{SQ1}, v{vT1}")

    def stats_finalize(need_rs):
        k.get(vT1, cSTW)
        k.get(vT0, cSTA)
        k(f"""
        v_permlane32_swap_b32 v{SUM0}, v{SUM1}
        v_permlane32_swap_b32 v{SQ0}, v{SQ1}
        v_add_f32 v{SUM0}, v{SUM0}, v{SUM1}
        v_add_f32 v{SQ0}, v{SQ0}, v{SQ1}
        v_mov_b32 v{SUM1}, v{SUM0}
        v_mov_b32 v{SQ1}, v{SQ0}
        s_nop 0
        v_permlane16_swap_b32 v{SUM0}, v{SUM1}
        v_permlane16_swap_b32 v{SQ0}, v{SQ1}
        v_add_f32 v{SUM0}, v{SUM0}, v{SUM1}
        v_add_f32 v{SQ0}, v{SQ0}, v{SQ1}
        v_mul_f32 v{SUM0}, 0xbb000000, v{SUM0}
        v_mul_f32 v{SQ0}, 0x3b000000, v{SQ0}
        v_fma_f32 v{SQ0}, -v{SUM0}, v{SUM0}, v{SQ0}
        v_max_f32 v{SQ0}, 0, v{SQ0}
        v_add_f32 v{SQ0}, 0x3727c5ac, v{SQ0}
        v_rsq_f32 v{SQ0}, v{SQ0}
        s_nop 0
        """)
        k.lds(f"ds_write2_b32 v{vT1}, v{SUM0}, v{SQ0} offset0:0 offset1:32")
        k.lds(f"ds_read2_b32 {vr(NM_A,2)}, v{vT0} offset0:0 offset1:16", "sta")
        if need_rs:
            k.lds(f"ds_read2_b32 {vr(RS_A,2)}, v{vT0} offset0:32 offset1:48", "sta")

    def stats_b():
        k.get(vT1, cSTB)
        for rb in range(2):
            k.lds(f"ds_read_b128 {vr(NM_B+4*rb,4)}, v{vT1} offset:{64*rb}", "sta")
            k.lds(f"ds_read_b128 {vr(RS_B+4*rb,4)}, v{vT1} offset:{128+64*rb}", "sta")

    def stats_scale():
        k.ds_wait("sta")
        for j in range(8):
            k(f"v_mul_f32 v{RL_B+j}, 0x3fb8aa3b, v{RS_B+j}")
        for j in range(2):
            k(f"v_mul_f32 v{RL_A+j}, 0x3fb8aa3b, v{RS_A+j}")

    def set_ones(r):
        for j in range(4):
            k(f"v_mov_b32 v{r+j}, {BF1}")

    def cs_put(first, sblk):
        k.get(vT0, cCSA)
        k(f"s_lshl_b32 s{sT5}, s{sblk}, 6")
        k(f"v_add_u32 v{vT0}, s{sT5}, v{vT0}")
        k.lds(f"ds_write_b32 v{vT0}, a{aCS} offset:{first*64}")

    def phi_block(acc, nm, cs, rl, rs, dst, tmp, lay):
        s1, s2, s3, s4, s5 = [], [], [], [], []
        for p in range(2):
            a2 = vr(acc + 2*p, 2)
            t2 = vr(tmp + 2*p, 2)
            if lay == "b":
                c2, m = bcast(cs, 1, 3)
                s1.append(f"v_pk_fma_f32 {a2}, {vr(nm+2*p,2)}, {c2}, {a2}{m}")
                s2.append(f"v_pk_mul_f32 {t2}, {a2}, {vr(rl+2*p,2)}")
                s4.append(f"v_pk_fma_f32 {a2}, {a2}, {vr(rs+2*p,2)}, {t2}")
            else:
                c2, m = bcast(nm, 1, 3)
                s1.append(f"v_pk_fma_f32 {a2}, {vr(cs+2*p,2)}, {c2}, {a2}{m}")
                c2, m = bcast(rl, 1, 2)
                s2.append(f"v_pk_mul_f32 {t2}, {a2}, {c2}{m}")
                c2, m = bcast(rs, 1, 3)
                s4.append(f"v_pk_fma_f32 {a2}, {a2}, {c2}, {t2}{m}")
            for j in range(2):
                s3.append(f"v_exp_f32 v{tmp+2*p+j}, v{tmp+2*p+j} clamp")
            s5.append(f"v_pk_add_f32 {a2}, {a2}, s[{sEPS}:{sEPS+1}]")
        for s in s1 + s2 + s3:
            k(s)
        for j in range(4):
            k(f"v_max_f32 v{acc+j}, 0, v{acc+j}")
        for s in s4 + s5:
            k(s)
        for p in range(2):
            k(f"v_cvt_pk_bf16_f32 v{dst+p}, v{acc+2*p}, v{acc+2*p+1}")

    def act_loads(bufoff):
        for ks in range(16):
            for rb in range(2):
                with k.atomic():
                    if ks % 4 == 0:
                        k(f"s_add_u32 s{sT2+rb}, s{sACT+rb}, {bufoff + ks*1024}")
                    k.vmem(f"buffer_load_dwordx4 {vr(act(ks,rb),4)}, v{vL16}, {srd(S_WS)}, s{sT2+rb} offen offset:{(ks%4)*1024} sc1",
                           ("act", ks, rb))

    def stat_loads(stoff):
        k(f"s_add_u32 s{sT4}, s{sSTg}, {stoff}")
        for j in range(2):
            k.vmem(f"buffer_load_dwordx4 {vr(STG+4*j,4)}, v{vL16}, {srd(S_WS)}, s{sT4} offen offset:{j*1024} sc1", "stg")

    def stat_sum():
        k.vm_wait("stg")
        for j in range(4):
            k(f"v_add_f32 v{SUM0+j}, v{STG+j}, v{STG+4+j}")

    def mf2(acc, ks, sw, wait, first=None):
        return [(acc + 4 * rb, act(ks, rb), sw, (ks == 0) if first is None else first,
                 (("act", ks, 1) if ks else ("act", ks, rb)) if wait else None) for rb in range(2)]

    def quad_lane(pitch, dst=vDM):
        k(f"v_lshrrev_b32 v{dst}, 3, v{vLANE}")
        k(f"v_and_b32 v{vT2}, 6, v{dst}")
        k(f"v_xor_b32 v{vT2}, v{vT2}, v{vLANE}")
        k(f"v_and_b32 v{vT2}, 7, v{vT2}")
        k(f"v_lshlrev_b32 v{vT2}, 4, v{vT2}")
        if isinstance(pitch, int):
            k(f"s_movk_i32 s{sD3}, {pitch}")
            pitch = f"s{sD3}"
        k(f"v_mad_u32_u24 v{dst}, v{dst}, {pitch}, v{vT2}")

    def wo_raw():
        with k.atomic():
            quad_lane(1024)
            k(f"s_lshl_b32 s{sD0}, s{sW}, 17")
            k(f"s_lshl_b32 s{sD1}, s{sCT}, 7")
            k(f"s_add_u32 s{sD0}, s{sD0}, s{sD1}")
            k(f"s_lshl_b32 s{sL0}, s{sW}, 14")
        for j in range(16):
            k.dma(S_WO, vDM, sD0, j * 8 * 1024, sL0, R0 + j * 1024, "wo")

    def w1c1_raw():
        with k.atomic():
            quad_lane(3584)
            k(f"s_lshr_b32 s{sD0}, s{sC}, 2")
            k(f"s_mul_i32 s{sD0}, s{sD0}, 896")
            k(f"s_and_b32 s{sD1}, s{sC}, 3")
            k(f"s_lshl_b32 s{sD1}, s{sD1}, 7")
            k(f"s_add_u32 s{sD0}, s{sD0}, s{sD1}")
            k(f"s_mul_i32 s{sD1}, s{sW}, {64*3584}")
            k(f"s_add_u32 s{sD0}, s{sD0}, s{sD1}")
            k(f"s_lshl_b32 s{sL0}, s{sW}, 13")
        for half in range(2):
            for j in range(8):
                k.dma(S_W1, vDM, sD0, (half * 256 + j * 8) * 3584, sL0, R1 + half * 32768 + j * 1024, "w1a")

    def lin_dma(src, dst, n, tag, shared=False):
        for j in range(n):
            with k.atomic():
                if j == 0:
                    k(f"s_mul_i32 s{sL0}, s{sW}, {n*1024}")
                    k(f"s_add_u32 s{sD0}, s{sL0}, s{sPKB}")
                    if shared:
                        k(f"s_mul_i32 s{sD1}, s{sDH}, {8*PK_SZ}")
                        k(f"s_sub_u32 s{sD0}, s{sD0}, s{sD1}")
                if j % 4 == 0:
                    k(f"s_add_u32 m0, s{sL0}, {dst + j*1024}")
                    k(f"s_add_u32 s{sD1}, s{sD0}, {src + j*1024}")
                k.vmem(f"buffer_load_dwordx4 v{vL16}, {srd(S_WS)}, s{sD1} offen offset:{(j%4)*1024} sc1 lds", tag)

    def publish_x(bufoff, stoff, floff, pay_sc1):
        k(f"s_add_u32 s{sT1}, s{sTILE}, {bufoff}")
        k.stores([f"buffer_store_dwordx4 {vr(vRES+4*s,4)}, v{vL16}, {srd(S_WS)}, s{sT1} offen offset:{s*1024}" for s in range(2)], pay_sc1)
        a, b, c, d = vT0, vT1, vT2, vT3
        for j in range(4):
            r0, r1 = vRES + j, vRES + 4 + j
            if j == 0:
                k(f"v_mov_b32 v{vWB+9}, {BF1}")
                k(f"v_dot2_f32_bf16 v{b}, v{r0}, v{r0}, 0")
                k(f"v_dot2_f32_bf16 v{d}, v{r1}, v{r1}, 0")
                k(f"v_dot2_f32_bf16 v{a}, v{vWB+9}, v{r0}, 0")
                k(f"v_dot2_f32_bf16 v{c}, v{vWB+9}, v{r1}, 0")
            else:
                k(f"v_dot2_f32_bf16 v{b}, v{r0}, v{r0}, v{b}")
                k(f"v_dot2_f32_bf16 v{d}, v{r1}, v{r1}, v{d}")
                k(f"v_dot2_f32_bf16 v{a}, v{vWB+9}, v{r0}, v{a}")
                k(f"v_dot2_f32_bf16 v{c}, v{vWB+9}, v{r1}, v{c}")
        k.get(vWB + 8, cSTO)
        k(f"""
        s_add_u32 s{sT3}, s{sSTo}, {stoff}
        v_add_f32 v{b}, v{b}, v{d}
        v_add_f32 v{a}, v{a}, v{c}
        s_nop 1
        v_permlane16_swap_b32 v{a}, v{b}
        v_add_f32 v{a}, v{a}, v{b}
        v_mov_b32 v{b}, v{a}
        s_nop 1
        v_permlane32_swap_b32 v{a}, v{b}
        v_add_f32 v{c}, v{a}, v{b}
        s_mov_b32 exec_hi, 0
        """)
        k.stores([f"buffer_store_dword v{c}, v{vWB+8}, {srd(S_WS)}, s{sT3} offen"], False)
        k("s_mov_b64 exec, -1")
        k.poll_prep(15)

    def unpack_res(dst):
        for f in range(4):
            for p in range(2):
                r = vRES + 2*f + p
                k(f"v_lshlrev_b32 v{dst+4*f+2*p}, 16, v{r}")
                k(f"v_and_b32 v{dst+4*f+2*p+1}, 0xffff0000, v{r}")

    def misc_l1():
        k(f"""
        s_add_u32 s{sT2}, s{sTAG}, s{sXCC}
        s_add_u32 s{sT2}, s{sT2}, 2
        v_mov_b32 v{vT1}, s{sT2}
        s_lshl4_add_u32 s{sT2}, s{sG}, s{sC}
        s_lshl_b32 s{sT2}, s{sT2}, 7
        s_add_u32 s{sT2}, s{sT2}, {WS_XID}
        """)
        with k.atomic():
            k(f"s_cmp_lg_u32 s{sW}, 0")
            k(f"s_cselect_b32 s{sT2}, {OOB}, s{sT2}")
            k("s_mov_b64 exec, 1")
            k.vmem(f"buffer_store_dword v{vT1}, v{vL16}, {srd(S_WS)}, s{sT2} offen sc1", "xid")
            k("s_mov_b64 exec, -1")

    def res_load():
        k.get(vT0, cOUT)
        for s_ in range(2):
            k.vmem(f"buffer_load_dwordx4 {vr(vRES+4*s_,4)}, v{vT0}, {srd(S_X)}, 0 offen offset:{64*s_}", "res")

    def touch(kind):
        with k.atomic():
            k(f"s_lshl2_add_u32 s{sJ0}, s{sC}, s{sW}")
            sD2 = sJ0
            if kind == "h":
                k(f"s_mul_i32 s{sD2}, s{sD2}, 7168")
                k(f"s_add_u32 s{sD2}, s{sD2}, s{sGB}")
                k(f"s_add_u32 s{sD2}, s{sD2}, {G_H}")
                k(f"v_lshlrev_b32 v{vSP}, 7, v{vLANE}")
                k("s_mov_b32 exec_hi, 0xffffff")
                k.vmem(f"buffer_load_dword a{aDUM}, v{vSP}, {srd(S_WS)}, s{sD2} offen sc1", "touch")
                k("s_mov_b32 exec_hi, -1")
            else:
                k(f"v_lshlrev_b32 v{vSP}, 7, v{vLANE}")
                k(f"s_lshl_b32 s{sT5}, s{sD2}, 11")
                k(f"s_add_u32 s{sT5}, s{sT5}, s{sGB}")
                k(f"s_add_u32 s{sT5}, s{sT5}, {G_X1}")
                k("s_mov_b64 exec, 0xffff")
                k.vmem(f"buffer_load_dword a{aDUM}, v{vSP}, {srd(S_WS)}, s{sT5} offen sc1", "touch")
                k(f"s_lshl_b32 s{sD2}, s{sD2}, 7")
                k(f"s_add_u32 s{sD2}, s{sD2}, s{sGB}")
                k("s_mov_b64 exec, 1")
                k(f"s_add_u32 s{sD2}, s{sD2}, {G_ST1}")
                k.vmem(f"buffer_load_dword a{aDUM}, v{vSP}, {srd(S_WS)}, s{sD2} offen sc1", "touch")
                k("s_mov_b64 exec, -1")

    def touch_early(mode):
        with k.atomic():
            k(f"s_lshl2_add_u32 s{sJ0}, s{sC}, s{sW}")
            k(f"v_lshlrev_b32 v{vT3}, 7, v{vLANE}")
            if mode & 1:
                k(f"s_lshl_b32 s{sT5}, s{sJ0}, 11")
                k(f"s_add_u32 s{sT5}, s{sT5}, s{sGB}")
                k(f"s_add_u32 s{sT5}, s{sT5}, {G_X1}")
                k("s_mov_b64 exec, 0xffff")
                k.vmem(f"buffer_load_dword a{aDUM}, v{vT3}, {srd(S_WS)}, s{sT5} offen sc1", "touch")
            if mode & 6:
                n, first = {2: (16, 0), 4: (8, 16), 6: (24, 0)}[mode & 6]
                k(f"s_lshr_b32 s{sT5}, s{sJ0}, 3")
                k(f"s_mul_i32 s{sT5}, s{sT5}, 57344")
                k(f"s_and_b32 s{sJ0}, s{sJ0}, 7")
                k(f"s_mul_i32 s{sJ0}, s{sJ0}, {n*128}")
                k(f"s_add_u32 s{sT5}, s{sT5}, s{sJ0}")
                k(f"s_add_u32 s{sT5}, s{sT5}, s{sGB}")
                k(f"s_add_u32 s{sT5}, s{sT5}, {G_H + first*1024}")
                k(f"s_mov_b64 exec, {(1 << n) - 1}")
                k.vmem(f"buffer_load_dword a{aDUM}, v{vT3}, {srd(S_WS)}, s{sT5} offen sc1", "touch")
            k("s_mov_b64 exec, -1")

    def pack_setup():
        l2, l3, le = k.label("L_p2"), k.label("L_p3"), k.label("L_pe")
        with k.atomic():
            k(f"""
            s_mov_b32 s{S_B}, s{S_WQKV}
            s_mov_b32 s{S_B+1}, s{S_WQKV+1}
            s_mov_b32 s{S_B+2}, {512*3072}
            s_movk_i32 s{sD3}, 3072
            s_movk_i32 s{sD2}, 1024
            s_mul_i32 s{sD1}, s{sG}, {32*3072}
            s_lshl_b32 s{sT2}, s{sC}, 6
            s_add_u32 s{sD1}, s{sD1}, s{sT2}
            s_lshl_b32 s{sPDA}, s{sG}, 12
            s_add_u32 s{sPDA}, s{sPDA}, s{sPKB}
            s_lshr_b32 s{sT2}, s{sC}, 2
            s_mul_i32 s{sT2}, s{sT2}, 896
            s_mul_i32 s{sT3}, s{sG}, {32*3584}
            s_add_u32 s{sT2}, s{sT2}, s{sT3}
            s_and_b32 s{sT3}, s{sC}, 3
            s_cmp_eq_u32 s{sW}, 2
            s_cbranch_scc1 {l2}
            s_cmp_eq_u32 s{sW}, 3
            s_cbranch_scc1 {l3}
            s_mov_b32 s{S_A}, s{S_W2}
            s_mov_b32 s{S_A+1}, s{S_W2+1}
            s_mov_b32 s{S_A+2}, {1792*1024}
            s_lshl_b32 s{sT2}, s{sW}, 11
            s_add_u32 s{sPDB}, s{sPDA}, s{sT2}
            s_lshl_b32 s{sT2}, s{sW}, 10
            s_add_u32 s{sD1}, s{sD1}, s{sT2}
            s_add_u32 s{sD1}, s{sD1}, 1024
            s_lshl1_add_u32 s{sT2}, s2, s{sW}
            s_lshr_b32 s{sT3}, s{sT2}, 3
            s_and_b32 s{sT2}, s{sT2}, 7
            s_mul_i32 s{sPDA}, s{sT2}, 56
            s_add_u32 s{sPDA}, s{sPDA}, s{sT3}
            s_lshl_b32 s{sPDA}, s{sPDA}, 12
            s_add_u32 s{sPDA}, s{sPDA}, {WS_W2T}
            s_lshl_b32 s{sD0}, s{sT3}, 15
            s_lshl_b32 s{sT2}, s{sT2}, 7
            s_add_u32 s{sD0}, s{sD0}, s{sT2}
            s_cmp_ge_u32 s{sT3}, 56
            s_cselect_b32 s{sPDA}, {OOB}, s{sPDA}
            s_branch {le}
            {l2}:
            s_mov_b32 s{S_A}, s{S_W1}
            s_mov_b32 s{S_A+1}, s{S_W1+1}
            s_mov_b32 s{S_A+2}, {512*3584}
            s_movk_i32 s{sD2}, 3584
            s_lshl_b32 s{sT3}, s{sT3}, 7
            s_add_u32 s{sD0}, s{sT2}, s{sT3}
            s_add_u32 s{sPDA}, s{sPDA}, {PK_W1A}
            s_lshl_b32 s{sPDB}, s{sG}, 11
            s_add_u32 s{sPDB}, s{sPDB}, s{sPKB}
            s_add_u32 s{sPDB}, s{sPDB}, {PK_Q}
            s_branch {le}
            {l3}:
            s_mov_b32 s{S_A}, s{S_WO}
            s_mov_b32 s{S_A+1}, s{S_WO+1}
            s_mov_b32 s{S_A+2}, {512*1024}
            s_mov_b32 s{S_B}, s{S_W1}
            s_mov_b32 s{S_B+1}, s{S_W1+1}
            s_mov_b32 s{S_B+2}, {512*3584}
            s_movk_i32 s{sD3}, 3584
            s_lshl_b32 s{sD0}, s{sG}, 15
            s_lshl_b32 s{sD1}, s{sCT}, 7
            s_add_u32 s{sD0}, s{sD0}, s{sD1}
            s_add_u32 s{sPDA}, s{sPDA}, {PK_WO}
            s_cmp_ge_u32 s{sC}, 8
            s_cselect_b32 s{sPDA}, {OOB}, s{sPDA}
            s_cselect_b32 s{sD0}, {OOB}, s{sD0}
            s_mul_i32 s{sPDB}, s{sG}, 3072
            s_add_u32 s{sPDB}, s{sPDB}, s{sPKB}
            s_add_u32 s{sPDB}, s{sPDB}, {PK_W1B}
            s_mul_i32 s{sD1}, s{sT3}, 3
            s_add_u32 s{sD1}, s{sD1}, 17
            s_lshr_b32 s{sD1}, s{sD1}, 1
            s_lshl_b32 s{sD1}, s{sD1}, 6
            s_add_u32 s{sD1}, s{sD1}, s{sT2}
            s_lshr_b32 s{sT5}, s{sT3}, 1
            s_mul_i32 s{sT5}, s{sT5}, 6
            s_and_b32 s{sT3}, s{sT3}, 1
            s_add_u32 s{sT5}, s{sT5}, s{sT3}
            s_add_u32 s{sT5}, s{sT5}, 18
            s_lshl_b32 s{sT5}, s{sT5}, 5
            s_add_u32 s{sT5}, s{sT5}, s{sT2}
            v_lshrrev_b32 v{vDM}, 1, v{vLANE}
            v_and_b32 v{vT2}, 16, v{vL16}
            v_mad_u32_u24 v{vDM}, v{vDM}, s{sD3}, v{vT2}
            s_add_u32 m0, s{sL0}, 6144
            s_nop 0
            buffer_load_dwordx4 v{vDM}, {srd(S_W1)}, s{sT5} offen lds
            {le}:
            s_mov_b32 s{S_A+3}, 0x20000
            s_mov_b32 s{S_B+3}, 0x20000
            """)

    def pack_issue():
        pack_setup()
        with k.atomic():
            quad_lane(f"s{sD2}")
            k(f"s_lshl_b32 s{sD2}, s{sD2}, 3")
        for j in range(4):
            with k.atomic():
                k(f"s_add_u32 m0, s{sL0}, {j*1024}")
                if j:
                    k(f"s_add_u32 s{sD0}, s{sD0}, s{sD2}")
                else:
                    k("s_nop 0")
                k.vmem(f"buffer_load_dwordx4 v{vDM}, {srd(S_A)}, s{sD0} offen lds", "pk")
        with k.atomic():
            k(f"v_mad_u32_u24 v{vDM}, v{vP}, s{sD3}, v{vCH}")
            k(f"s_lshl_b32 s{sD3}, s{sD3}, 4")
        for hh in range(2):
            with k.atomic():
                k(f"s_add_u32 m0, s{sL0}, {4096 + hh*1024}")
                if hh:
                    k(f"s_add_u32 s{sD1}, s{sD1}, s{sD3}")
                else:
                    k("s_nop 0")
                k.vmem(f"buffer_load_dwordx4 v{vDM}, {srd(S_B)}, s{sD1} offen lds", "pk")

    def pack_finish(T):
        le = k.label("L_qe")
        k(f"s_lshl_b32 s{sT2}, s{sW}, 14")
        k(f"s_add_u32 s{sT2}, s{sT2}, {L_PST}")
        for f in range(4):
            k(f"v_add_u32 v{vT0+f}, s{sT2}, v{vQ0+f}")
        k.vm_wait("pk")
        for f in range(4):
            for hh in range(2):
                k.lds(f"ds_read_b64_tr_b16 {vr(T+4*f+2*hh,2)}, v{vT0+f} offset:{hh*2048}", "pa")
        k(f"v_add_u32 v{vT0}, s{sT2}, v{vTR0}")
        k(f"v_add_u32 v{vT1}, s{sT2}, v{vTR1}")
        k(f"v_lshl_add_u32 v{vT2}, v{vLANE}, 3, s{sT2}")
        for f in range(2):
            for hh in range(2):
                k.lds(f"ds_read_b64_tr_b16 {vr(T+16+4*f+2*hh,2)}, v{vT0+f} offset:{4096+hh*1024}")
        for hh in range(2):
            k.lds(f"ds_read_b64_tr_b16 {vr(T+24+2*hh,2)}, v{vT2} offset:{6144+hh*512}")
        k.ds_wait("pa")
        for f in range(4):
            k.vmem(f"buffer_store_dwordx4 {vr(T+4*f,4)}, v{vL16}, {srd(S_WS)}, s{sPDA} offen offset:{f*1024} sc1", "pst")
        k.ds_all()
        k(f"s_cmp_lg_u32 s{sW}, 3")
        k(f"s_cbranch_scc1 {le}")
        k(f"buffer_store_dwordx4 {vr(T+24,4)}, v{vL16}, {srd(S_WS)}, s{sPDB} offen offset:2048 sc1")
        k(f"{le}:")
        for f in range(2):
            k.vmem(f"buffer_store_dwordx4 {vr(T+16+4*f,4)}, v{vL16}, {srd(S_WS)}, s{sPDB} offen offset:{f*1024} sc1", "pst")

    def pack_flag():
        k(f"""
        s_lshl_b32 s{sD2}, s2, 7
        s_add_u32 s{sD2}, s{sD2}, {WS_PD}
        s_cmp_lg_u32 s{sW}, 0
        s_cselect_b32 s{sD2}, {OOB}, s{sD2}
        v_mov_b32 v{vT1}, s{sTAG}
        s_mov_b64 exec, 1
        """)
        k.vmem(f"buffer_store_dword v{vT1}, v{vL16}, {srd(S_WS)}, s{sD2} offen sc1")
        k("s_mov_b64 exec, -1")

    def pack_check_issue():
        with k.atomic():
            k(f"v_and_b32 v{vSP}, 1, v{vLANE}")
            k(f"v_lshlrev_b32 v{vSP}, 7, v{vSP}")
            k(f"v_lshrrev_b32 v{vSP2}, 1, v{vLANE}")
            k(f"s_lshl_b32 s{sT5}, s{sC}, 3")
            k(f"v_add3_u32 v{vSP}, v{vSP}, v{vSP2}, s{sT5}")
            k(f"v_min_u32 v{vSP2}, 29, v{vLANE}")
            k(f"s_mul_i32 s{sT5}, s{sW}, 56")
            k(f"s_lshr_b32 s{sPDA}, s{sCT}, 1")
            k(f"s_add_u32 s{sT5}, s{sT5}, s{sPDA}")
            k(f"s_sub_u32 s{sT5}, s{sT5}, 64")
            k(f"v_lshl_add_u32 v{vSP2}, v{vSP2}, 2, s{sT5}")
            k(f"v_cmp_gt_u32 vcc, 16, v{vLANE}")
            k(f"s_mov_b32 s{sPDA}, {WS_PD}")
            k("s_nop 0")
            k(f"v_cndmask_b32 v{vSP}, v{vSP2}, v{vSP}, vcc")
            k(f"v_lshlrev_b32 v{vSP}, 7, v{vSP}")
            k.vmem(f"buffer_load_dword v{vTR0}, v{vSP}, {srd(S_WS)}, s{sPDA} offen sc1", "pc")

    def pack_check():
        lp, ok = k.label("L_pc"), k.label("L_pcok")
        k.vm_wait("pc")
        k(f"{lp}:")
        k(f"v_cmp_ne_u32 vcc, s{sTAG}, v{vTR0}")
        k(f"s_cbranch_vccz {ok}")
        k(f"buffer_load_dword v{vTR0}, v{vSP}, {srd(S_WS)}, s{sPDA} offen sc1")
        k("s_waitcnt vmcnt(0)")
        k(f"s_sub_u32 s{sBUD}, s{sBUD}, 1")
        k(f"s_cbranch_scc0 {lp}")
        k(f"s_mov_b32 s{sBUD}, 0")
        k(f"{ok}:")

    def wq_raw():
        k(f"s_lshl_b32 s{sL1}, s{sW}, 11")
        with k.atomic():
            k(f"v_and_b32 v{vT2}, 3, v{vP}")
            k(f"v_lshrrev_b32 v{vDM}, 4, v{vLANE}")
            k(f"v_lshl_add_u32 v{vT2}, v{vDM}, 3, v{vT2}")
            k(f"s_movk_i32 s{sD3}, 3072")
            k(f"v_mad_u32_u24 v{vDM}, v{vT2}, s{sD3}, v{vCH}")
        for r in range(4):
            for hh in range(2):
                k.dma(S_WQKV, vDM, sRB + r, hh * 4 * 3072, sL1, R1 + r * 8192 + hh * 1024, "wq")

    def async_check(tag, soff, imm):
        ok = k.label("L_aok")
        with k.atomic():
            k.vm_wait(tag)
            k(f"v_cmp_ne_u32 vcc, s{sTAG}, v{vT0}")
            k(f"s_cbranch_vccz {ok}")
            k.save_vm()
            k.poll(soff, imm, False)
            k.restore_vm()
            k(f"{ok}:")

    CSK = vT0
    gA = None
    for layer in range(1 if o.get("one") else 2):
        L1 = layer == 0
        sc = o.get("sc1", 0x07)
        psc = lambda i: bool(sc >> (4 * layer + i) & 1)
        PRE = o.get("pre", 8)

        def kv_consts():
            k.get(vPQ, cCSA)
            k.lds(f"ds_read2_b32 {vr(CSK,2)}, v{vPQ} offset0:0 offset1:16", "cs")
            k.lds(f"ds_read2_b32 {vr(CSK+2,2)}, v{vPQ} offset0:32 offset1:48", "cs")
        if L1:
            CSA = vACC + 32
            k(f"s_and_b32 s{sT0}, s{sW}, 1")
            k(f"s_lshl_b32 s{sT0}, s{sT0}, 5")
            k(f"v_xor_b32 v{vPQ+3}, s{sT0}, v{vTR0}")
            k(f"s_lshr_b32 s{sT0}, s{sW}, 1")
            k(f"s_lshl_b32 s{sT0}, s{sT0}, 11")
            k(f"v_add_u32 v{vPQ+2}, s{sT0}, v{vPQ+3}")
            xslot(0, range(2, 8)); xslot(1, range(o.get("x1pre", 4)))
            xread(0)
            xslot(1, range(o.get("x1pre", 4), 8))
            k.ds_all(True)
            k.stamp("x0")
            k(f"s_mul_i32 s{sTAG}, s{sEP}, 0x9E3779B1")
            k(f"s_add_u32 s{sTAG}, s{sTAG}, 0x7F4A7C15")
            k(f"s_add_u32 s{sT8}, s{sEP}, 1")
            k(f"s_and_b32 s{sT8}, s{sT8}, 0xff")

            def rnd_begin(r):
                k.vm_wait(("wkv", r))
                k.barrier(True)
                fr = []
                for ks in range(4 * r, 4 * r + 4):
                    fr.append(dict(addr=vPQ + 2, offs=(R0 + ks * 4096, R0 + ks * 4096 + 1024), mf=[(None, None, False, ks == 0, None)]))
                for ks in range(4 * r, 4 * r + 4):
                    for pr in range(2):
                        for b in range(2):
                            base = R0 + ks * 4096 + pr * 2048
                            fr.append(dict(addr=(vTR0, vTR1)[b], offs=(base, base + 1024), mf=mf2(vACC + 16 * pr + 8 * b, ks, False, False)))
                return k.gemm_begin(fr)
            g = rnd_begin(0)
            f = {}; spread(f, k.rec(lambda: (wkv_raw(1), xslot(2, range(4)))), 0, 2); xstats(0, f)
            f = {}; spread(f, k.rec(lambda: (xslot(2, range(4, 8)), wkv_raw(2))), 0, 4); spread(f, k.rec(lambda: xread(1)), 29, 1, 2); k.gemm_run(g, f)
            k.stamp("r0")
            g = rnd_begin(1)
            f = {}; spread(f, k.rec(lambda: xslot(3)), 0, 2); xstats(1, f)
            wq = k.rec(wq_raw)
            pk = k.rec(pack_issue)
            if o.get("te", 4):
                pk += k.rec(lambda: touch_early(o.get("te", 4)))
            early = o.get("pkearly", 1)
            f = {}; spread(f, k.rec(lambda: wkv_raw(3)) + ([] if early else wq[:6]), 0, 4); spread(f, k.rec(lambda: xread(2)), 31, 1, 2); k.gemm_run(g, f)
            k.stamp("r1")
            f = {}; spread(f, k.rec(lambda: xread(3)), 7, 1)
            if early:
                spread(f, pk[:6], 0, 2.5)
            xstats(2, f)
            g = rnd_begin(2)
            f = {}; spread(f, pk[6:] + wq[:2] if early else wq[6:8], 0, 2.5 if early else 8); xstats(3, f)
            f = {}; spread(f, k.rec(lambda: (xstats_extract(), stats_finalize(True))), 3, 1)
            nq = o.get("nq", 2)
            spread(f, wq[2:2+nq] if early else wq[8:], 4, 16); k.gemm_run(g, f)
            k.stamp("r2")
            g = rnd_begin(3)
            f = {}
            spread(f, k.rec(lambda: cs_put(0, sW)), 8, 0)
            spread(f, k.rec(stats_b), 10, 1)
            spread(f, k.rec(stats_scale), 24, 1)
            nq2 = o.get("nq2", 6)
            if early:
                spread(f, wq[2+nq:2+nq+nq2], 1, 6)
                wq = wq[2+nq+nq2:]
            else:
                spread(f, pk, 1, 4)
                wq = []
            bg = k.rec(misc_l1)
            k.gemm_run(g, f)
            k.stamp("A.kv")
            k.barrier()
            kv_consts()
        else:
            k.poll(sFXp, G_FX2)
            k.stamp("A.poll")
            al = k.rec(lambda: act_loads(G_X2))
            k.play(al[:PRE])
            k(f"s_add_u32 s{sTAG}, s{sTAG}, 1")
            fill = {}
            sl = k.rec(lambda: stat_loads(G_ST2))
            e = spread(fill, al[PRE:PRE+8] + [lambda: k.play(sl[:2]), sl[2]] + al[PRE+8:], 0, 4)
            e2 = spread(fill, k.rec(lambda: (stat_sum(), stats_finalize(True), stats_b())), 66, 1)
            e2 = spread(fill, k.rec(stats_scale), e2 + 6, 1)
            spread(fill, k.rec(kv_consts), e2, 1)
            spread(fill, k.rec(lambda: lin_dma(PK_W1A + 32768, R2, 8, "w1a")), e, 3)
            k.gemm_run(gA, fill)
            k.stamp("A.kv")
            bg = []
        k("s_nop 2")
        k.get(vWB + 22, cKW1 if L1 else cKW)
        k.get(vWB + 23, cKR1 if L1 else cKR)
        k.ds_all()
        PK, PV, TMP = vPQ, vACC, vWB + 24
        KVA = vACC + 16

        def kv_epi():
            for h in range(2):
                for rb in range(2):
                    phi_block(vACC + 8*h + 4*rb, NM_B + 4*rb, CSK + h, RL_B + 4*rb, RS_B + 4*rb, PK + 4*h + 2*rb, TMP, "b")
            for h in range(2):
                for rb in range(2):
                    a = vACC + 16 + 8*h + 4*rb
                    c2, m = bcast(CSK + 2 + h, 1, 3)
                    for p in range(2):
                        k(f"v_pk_fma_f32 {vr(a+2*p,2)}, {vr(NM_B+4*rb+2*p,2)}, {c2}, {vr(a+2*p,2)}{m}")
                    for p in range(2):
                        k(f"v_pk_mul_f32 {vr(a+2*p,2)}, {vr(a+2*p,2)}, {vr(RS_B+4*rb+2*p,2)}")
                    for p in range(2):
                        k(f"v_cvt_pk_bf16_f32 v{PV+4*h+2*rb+p}, v{a+2*p}, v{a+2*p+1}")
                    if rb == 0:
                        k(f"v_mfma_f32_16x16x32_bf16 {vr(vACC+8+4*h,4)}, {vr(PK+4*h,4)}, {ar(aONES,4)}, 0")
                if h == 0:
                    pass
        kv_epi()
        KRS = 14 if L1 else 12
        k.lds(f"ds_write_b128 v{vWB+22}, {vr(vACC+8,4)} offset:{2 << KRS}")
        for h in range(2):
            k(f"v_mfma_f32_16x16x32_bf16 {vr(KVA+4*h,4)}, {vr(PK+4*h,4)}, {vr(PV+4*h,4)}, 0")
        k.lds(f"ds_write_b128 v{vWB+22}, {vr(vACC+12,4)} offset:{3 << KRS}")
        k.get(vWB + 21, cKVS)
        k("s_nop 4")
        for h in range(2):
            k.lds(f"ds_write_b128 v{vWB+22}, {vr(KVA+4*h,4)} offset:{h << KRS}")
        k.barrier()
        for s in range(4):
            k.lds(f"ds_read_b128 {vr(vWB+4*s,4)}, v{vWB+23} offset:{s*1024}", ("kr", s))
        KO = vACC + 32
        k.ds_wait(("kr", 1))
        for p in range(2):
            k(f"v_pk_add_f32 {vr(vWB+2*p,2)}, {vr(vWB+2*p,2)}, {vr(vWB+4+2*p,2)}")
        k.ds_wait(("kr", 3))
        for p in range(2):
            k(f"v_pk_add_f32 {vr(vWB+8+2*p,2)}, {vr(vWB+8+2*p,2)}, {vr(vWB+12+2*p,2)}")
        for p in range(2):
            k(f"v_pk_add_f32 {vr(KO+2*p,2)}, {vr(vWB+2*p,2)}, {vr(vWB+8+2*p,2)}")
        k(f"v_and_b32 v{KO}, 0xffffff00, v{KO}")
        k(f"v_or_b32 v{KO}, s{sT8}, v{KO}")
        k(f"s_mov_b64 exec, s[{sKM}:{sKM+1}]")
        k.vmem(f"buffer_store_dwordx4 {vr(KO,4)}, v{vWB+21}, {srd(S_WS)}, s{sKVP} offen sc1", "kvst")
        k("s_mov_b64 exec, -1")
        k.stamp("A.kvpub")
        fill = {}
        fr = []
        CSQ = vACC + 24

        def q_consts():
            k.get(vT0, cCSB)
            for h in range(2):
                k.lds(f"ds_read_b128 {vr(CSQ+4*h,4)}, v{vT0} offset:{(4+h)*64}")
        if L1:
            k.play(wq)
            pack_finish(vWB)
            if o.get("diag"): k.stamp("q.pf")
            k.vm_wait("wq")
            k("s_barrier")
            if o.get("diag"): k.stamp("q.wq")
            k(f"v_add_u32 v{vPQ}, {R1}, v{vTR0}")
            k(f"v_add_u32 v{vPQ+1}, {R1}, v{vTR1}")
            k(f"s_and_b32 s{sT0}, s{sW}, 1")
            k(f"s_lshl_b32 s{sT1}, s{sT0}, 5")
            k(f"v_xor_b32 v{vPQ+2}, s{sT1}, v{vPQ}")
            for j in range(16):
                fr.append(dict(addr=vPQ + 2, offs=(j * 2048, j * 2048 + 1024), mf=[(None, None, False, j == 0, None)]))
            for ks in range(16):
                for b in range(2):
                    fr.append(dict(addr=vPQ + b, offs=(ks * 2048, ks * 2048 + 1024), mf=mf2(vACC + 8 * b, ks, True, False)))
            wor = k.rec(wo_raw)
            if o.get("qord", 0) == 0:
                e = spread(fill, bg + k.rec(res_load), 0, 1)
            else:
                e = spread(fill, k.rec(res_load), 0, 1)
            if o.get("tq", 0) & 1:
                e = spread(fill, k.rec(lambda: touch("x")), e, 1)
            if o.get("tq", 0) & 4:
                e = spread(fill, k.rec(lambda: touch("h")), e, 1)
            spread(fill, wor, e, 3)
            k.gemm(fr, fill)
            if o.get("diag"): k.stamp("q.mm")
            cs_put(4, sT0)
            k.vm_wait("pst")
            k.barrier()
            q_consts()
            pack_flag()
        else:
            k(f"v_add_u32 v{vPQ}, {R1}, v{vL16}")
            for ks in range(16):
                for b in range(2):
                    fr.append(dict(addr=vPQ, offs=(ks * 2048 + b * 1024,), mf=mf2(vACC + 8 * b, ks, True, False)))
            e = 0
            if o.get("tq", 0) & 2:
                e = spread(fill, k.rec(lambda: touch("h")), e, 1)
            spread(fill, k.rec(lambda: lin_dma(PK_WO, R0, 16, "wo", True)), e, o.get("wostep", 3))
            spread(fill, k.rec(q_consts), 50, 1)
            k.gemm(fr, fill)
        lp2, done2 = k.label("L_kp"), k.label("L_kd")
        SM = vWB + 8
        ZL = vACT + 32

        def kv_loads(track):
            ins = [(f"buffer_load_dwordx4 {vr(ZL,4)}, v{vT2}, {srd(S_WS)}, s{sKVC} offen sc1", "zl")]
            for j in range(8):
                ins.append((f"buffer_load_dwordx4 {vr(vACT+4*j,4)}, v{vL16}, {srd(S_WS)}, s{sKVC if j < 4 else sT2} offen offset:{(j%4)*1024} sc1", ("kv", j)))
            for i_, t_ in ins:
                if track:
                    k.vmem(i_, t_)
                else:
                    k(i_)
        if L1:
            lp, done = k.label("L_xp"), k.label("L_xd")
            k(f"s_lshl_b32 s{sT4}, s{sG}, 11")
            k(f"s_add_u32 s{sT4}, s{sT4}, {WS_XID}")
            k(f"s_add_u32 s{sT3}, s{sTAG}, 2")
            k.poll_prep(15)
            k(f"v_lshlrev_b32 v{vT3}, 5, v{vT3}")
            k.vmem(f"buffer_load_dword v{vT0}, v{vT3}, {srd(S_WS)}, s{sT4} offen sc1", "xidl")
            w1a = k.rec(w1c1_raw)
            k.play(w1a[:1]); w1a = w1a[1:]
        else:
            w1a = k.rec(lambda: (lin_dma(PK_W1A, R1, 8, "w1a"), lin_dma(PK_W1B, R3, 6, "w1c2")))
        k.get(vT2, cZL)
        k(f"s_add_u32 s{sT2}, s{sKVC}, 4096")
        kl = k.rec(lambda: kv_loads(True))
        k.play(kl[:5])
        if not L1:
            k("s_barrier")
        k.ds_all()
        ph = k.rec(lambda: [phi_block(vACC + 8*h + 4*rb, NM_A + rb, CSQ + 4*h, RL_A + rb, RS_A + rb, vPQ + 4*h + 2*rb, vWB, "a")
                            for h in range(2) for rb in range(2)])
        na = o.get("w1a0", 4) if L1 else o.get("w1a02", 4)
        k.play(mix(ph, kl[5:] + w1a[:na], o.get("phr", 10)))
        w1a = w1a[na:]
        k.stamp("A.q")
        k.get(vT1, cXW)
        k.get(vWB + 18, cZW)
        k.get(vWB + 16, cXR)
        k.get(vWB + 17, cZR)
        k(f"s_branch {lp2}_s")
        k(f"{lp2}:")
        kv_loads(False)
        k("s_waitcnt vmcnt(0)")
        k(f"{lp2}_s:")
        k.vm_wait("zl")
        k(f"""
        v_mov_b32 v{SM+4}, v{ZL}
        v_mov_b32 v{SM+5}, v{ZL}
        v_permlane32_swap_b32 v{ZL}, v{ZL+1}
        v_permlane32_swap_b32 v{ZL+2}, v{ZL+3}
        v_add_f32 v{ZL}, v{ZL}, v{ZL+1}
        v_add_f32 v{ZL+2}, v{ZL+2}, v{ZL+3}
        s_nop 1
        v_permlane16_swap_b32 v{ZL}, v{ZL+2}
        v_add_f32 v{ZL}, v{ZL}, v{ZL+2}
        s_nop 1
        v_add_f32_dpp v{ZL}, v{ZL}, v{ZL} row_ror:4 row_mask:0xf bank_mask:0xf
        s_nop 1
        v_add_f32_dpp v{ZL}, v{ZL}, v{ZL} row_ror:8 row_mask:0xf bank_mask:0xf
        v_cvt_pk_bf16_f32 v{ZL}, v{ZL}, v{ZL}
        ds_write_b16 v{vWB+18}, v{ZL}
        """)
        for j in range(0, 8, 2):
            a, b = vACT + 4*j, vACT + 4*j + 4
            k.vm_wait(("kv", j + 1))
            k(f"v_and_b32 v{SM+4}, v{SM+4}, v{a}")
            k(f"v_and_b32 v{SM+4}, v{SM+4}, v{b}")
            k(f"v_or3_b32 v{SM+5}, v{SM+5}, v{a}, v{b}")
            if j == 0:
                for p in range(2):
                    k(f"v_pk_add_f32 {vr(SM+2*p,2)}, {vr(a+2*p,2)}, {vr(b+2*p,2)}")
            else:
                for p in range(2):
                    k(f"v_pk_add_f32 {vr(a+2*p,2)}, {vr(a+2*p,2)}, {vr(b+2*p,2)}")
                for p in range(2):
                    k(f"v_pk_add_f32 {vr(SM+2*p,2)}, {vr(SM+2*p,2)}, {vr(a+2*p,2)}")
        k(f"""
        ds_write_b128 v{vT1}, {vr(SM,4)}
        v_xor_b32 v{SM+4}, s{sT8}, v{SM+4}
        v_xor_b32 v{SM+5}, s{sT8}, v{SM+5}
        v_or_b32 v{SM+4}, v{SM+4}, v{SM+5}
        v_and_b32 v{SM+4}, 0xff, v{SM+4}
        v_cmp_ne_u32 vcc, 0, v{SM+4}
        s_cbranch_vccz {done2}
        s_waitcnt lgkmcnt(0)
        s_sub_u32 s{sBUD}, s{sBUD}, 4
        s_cbranch_scc0 {lp2}
        s_mov_b32 s{sBUD}, 0
        {done2}:
        """)
        k.stamp("A.kvget")
        n1 = o.get("w1a1", 4) if L1 else o.get("w1a12", 4)
        k.play(w1a[:n1]); w1a = w1a[n1:]
        k.barrier(True)
        for h in range(2):
            k.lds(f"ds_read_b64 {vr(vWB+4*h+2,2)}, v{vWB+17} offset:{h*32}", "zf")
        for j in range(4):
            k.lds(f"ds_read_b128 {vr(vACT+4*j,4)}, v{vWB+16} offset:{1024*j}")
        if L1:
            k(f"{lp}:")
            k(f"v_subrev_u32 v{vT0}, s{sT3}, v{vT0}")
            k(f"v_cmp_lt_u32 vcc, 8, v{vT0}")
            k(f"s_cbranch_vccz {done}")
            k(f"buffer_load_dword v{vT0}, v{vT3}, {srd(S_WS)}, s{sT4} offen sc1")
            k("s_waitcnt vmcnt(0)")
            k(f"s_sub_u32 s{sBUD}, s{sBUD}, 1")
            k(f"s_cbranch_scc0 {lp}")
            k(f"s_mov_b32 s{sBUD}, 0")
            k(f"{done}:")
            k(f"v_cmp_ne_u32 vcc, s{sXCC}, v{vT0}")
            k("s_nop 4")
            k(f"s_or_b32 s{sSLOW}, vcc_lo, {1 if o.get('forceslow') else 0}")
        k.ds_wait("zf")
        OA = vACC + 16
        for rb in range(2):
            for h in range(2):
                d = OA + 16*rb + 8*h
                k(f"v_mfma_f32_16x16x16_bf16 {vr(d+4,4)}, {vr(vWB+4*h+2,2)}, {vr(vPQ+4*h+2*rb,2)}, 0")
        k.ds_all()
        for h in range(2):
            for p in range(2):
                k(f"v_pk_add_f32 {vr(vACT+8*h+2*p,2)}, {vr(vACT+8*h+2*p,2)}, {vr(vACT+8*h+4+2*p,2)}")
        for h in range(2):
            for p in range(2):
                k(f"v_cvt_pk_bf16_f32 v{vWB+4*h+p}, v{vACT+8*h+2*p}, v{vACT+8*h+2*p+1}")
        for rb in range(2):
            for h in range(2):
                d = OA + 16*rb + 8*h
                k(f"v_add_f32 v{d+4}, s{sEPS}, v{d+4}")
        for rb in range(2):
            for h in range(2):
                d = OA + 16*rb + 8*h
                k(f"v_mfma_f32_16x16x16_bf16 {vr(d,4)}, {vr(vWB+4*h,2)}, {vr(vPQ+4*h+2*rb,2)}, 0")
        for rb in range(2):
            for h in range(2):
                d = OA + 16*rb + 8*h
                k(f"v_rcp_f32 v{d+4}, v{d+4}")
        k("s_nop 1")
        for rb in range(2):
            for h in range(2):
                d = OA + 16*rb + 8*h
                for p in range(2):
                    k(f"v_pk_mul_f32 {vr(d+2*p,2)}, {vr(d+2*p,2)}, {vr(d+4,2)} op_sel_hi:[1,0]")
                for p in range(2):
                    k(f"v_cvt_pk_bf16_f32 v{vPQ+4*rb+2*h+p}, v{d+2*p}, v{d+2*p+1}")
        k.stores([f"buffer_store_dwordx4 {vr(vPQ+4*rb,4)}, v{vL16}, {srd(S_WS)}, s{sOST+rb} offen" for rb in range(2)], psc(0))
        nb = o.get("w1a_pre1", 4) if L1 else o.get("w1a_pre", 0)
        k.play(w1a[:nb])
        if L1:
            pack_check_issue()
            for s_ in range(2):
                for p in range(2):
                    k(f"v_permlane16_swap_b32 v{vRES+4*s_+p}, v{vRES+4*s_+2+p}")
        unpack_res(vACC)
        fr = []
        for ks in range(16):
            for f in range(4):
                mf = [(vACC + 4 * f, vACT + 4 * ks, True, False, ("act", ks))]
                if L1:
                    fr.append(dict(addr=vQ0 + f, offs=(R0 + ks * 4096, R0 + ks * 4096 + 2048), mf=mf))
                else:
                    fr.append(dict(addr=vL16, offs=(R0 + ks * 4096 + f * 1024,), mf=mf))
        g = k.gemm_begin(fr, 7)
        k.poll_prep(15)
        k.flag(sFOo, G_FO)
        k.stamp("A.opub")
        k.poll(sFOp, G_FO)
        k.stamp("B.poll")

        def w2t_loads():
            for j in range(56):
                with k.atomic():
                    if j == 0:
                        k(f"s_lshl2_add_u32 s{sD2}, s{sCT}, s{sW}")
                        k(f"s_mul_i32 s{sD2}, s{sD2}, 57344")
                        k(f"s_add_u32 s{sD2}, s{sD2}, {WS_W2T}")
                    if j % 4 == 0:
                        k(f"s_add_u32 s{sD3}, s{sD2}, {j*1024}")
                    k.vmem(f"buffer_load_dwordx4 {ar(4*j,4)}, v{vL16}, {srd(S_WS)}, s{sD3} offen offset:{(j%4)*1024} sc1", ("w2t", j // 4))

        def b_loads():
            for ks in range(16):
                with k.atomic():
                    if ks % 4 == 0:
                        k(f"s_add_u32 s{sT2}, s{sBACT}, {G_O + ks*1024}")
                    k.vmem(f"buffer_load_dwordx4 {vr(vACT+4*ks,4)}, v{vL16}, {srd(S_WS)}, s{sT2} offen offset:{(ks%4)*1024} sc1", ("act", ks))
        bl = k.rec(b_loads)
        PB = o.get("preb", PRE)
        k.play(bl[:PB])
        fill = {}
        e = spread(fill, bl[PB:], 0, 3)
        e = spread(fill, w1a[nb:], e, 3)
        w2 = []
        if L1:
            pack_check()
            e = spread(fill, k.rec(lambda: lin_dma(PK_W1B, R3, 6, "w1c2")), e, 3)
            w2 = k.rec(w2t_loads)
            n0 = o.get("nw2b", 0)
            spread(fill, w2[:n0], e, 4)
            w2 = w2[n0:]
        k.gemm_run(g, fill)
        k.stamp("B.mm")
        if L1:
            for f in range(4):
                k(f"v_add_u32 v{vQ0+f}, {R1}, v{vQ0+f}")
            k("s_nop 3")
        else:
            k(f"v_add_u32 v{vTR1}, {R1}, v{vL16}")
            k("s_nop 6")
        for f in range(4):
            for p in range(2):
                k(f"v_cvt_pk_bf16_f32 v{vRES+2*f+p}, v{vACC+4*f+2*p}, v{vACC+4*f+2*p+1}")
        publish_x(G_X1, G_ST1, G_FX1, psc(1))
        k.flag(sFXo, G_FX1)
        k.stamp("B.pub")
        k("s_barrier")
        w1c2 = k.rec(lambda: lin_dma(PK_W1B + 24576, R0, 6, "w1c2"))
        nc = o.get("w1c2_pre1", 6) if L1 else o.get("w1c2_pre", 0)
        k.play(w1c2[:nc])
        if L1:
            k(f"s_lshl_b32 s{sT2}, s{sW}, 5")
            k(f"v_xor_b32 v{vPQ}, s{sT2}, v{vQ0}")
            fr = []
            for j in range(16):
                fr.append(dict(addr=vPQ, offs=(j * 4096, j * 4096 + 2048), mf=[(None, None, False, j == 0, None)]))
            k.gemm(fr, D=7)
            k("s_nop 5")
            cs_put(6, sW)
        C2 = vACC + 32
        vC1, vC2, vCc, vCd = vTR1, vDM, vP, vCH
        k(f"v_add_u32 v{vC2}, {R3}, v{vL16}")
        if L1:
            k(f"s_min_u32 s{sPDB}, s{sW}, 2")
            k(f"s_lshl_b32 s{sT2}, s{sPDB}, 10")
            k(f"v_add_u32 v{vCd}, s{sT2}, v{vL16}")
            k(f"v_add_u32 v{vCc}, {R3}, v{vCd}")
        fr = []
        for ks in range(16):
            for f in range(4):
                if L1:
                    fr.append(dict(addr=vQ0 + f, offs=(ks * 4096, ks * 4096 + 2048), mf=mf2(vACC + 8 * f, ks, True, True)))
                else:
                    fr.append(dict(addr=vC1, offs=(ks * 4096 + f * 1024,), mf=mf2(vACC + 8 * f, ks, True, True)))
        for ks in range(16):
            if L1:
                fr.append(dict(addr=vCc if ks < 8 else vCd, offs=((ks % 8) * 3072,), mf=[(None, None, False, ks == 0, None)]))
            for b in range(3):
                fr.append(dict(addr=vC2 if ks < 8 else vL16, offs=((ks % 8) * 3072 + b * 1024,), mf=mf2(C2 + 8 * b, ks, True, False, None if L1 else False)))
        MK = 7 if L1 else 6
        NM = 128 + 16 * MK
        g = k.gemm_begin(fr)
        k.poll(sFXp, G_FX1)
        k.stamp("C.poll")
        CS1 = [vPQ, vPQ + 4, vACC + 56, vQ0]

        def c2_init():
            k.get(vT0, cCSB)
            for b in range(3):
                k.lds(f"ds_read_b128 {vr(C2+8*b+4,4)}, v{vT0} offset:{(10+b)*64}", "cs2")
            for _ in range(4):
                k.play([lambda: None])
            k.ds_wait("cs2")
            for b in range(3):
                for rb in range(2):
                    for j in range(4):
                        k(f"v_mul_f32 v{C2+8*b+4*rb+j}, v{C2+8*b+4+j}, v{NM_A+rb}")

        def relu_block(acc, cs, rb, dst):
            if cs is not None:
                for j in range(4):
                    k(f"v_fmac_f32 v{acc+j}, v{cs+j}, v{NM_A+rb}")
            for p in range(2):
                k(f"v_cvt_pk_bf16_f32 v{dst+p}, v{acc+2*p}, v{acc+2*p+1}")
            for p in range(2):
                k(f"v_pk_max_i16 v{dst+p}, v{dst+p}, 0")

        def cs1_reads():
            k.get(vT2, cCSB)
            for b in range(4):
                k.lds(f"ds_read_b128 {vr(CS1[b],4)}, v{vT2} offset:{(6+b)*64}", "cs")

        def epi1():
            k.ds_wait("cs")
            for s in range(2):
                for rb in range(2):
                    for b in range(2):
                        relu_block(vACC + 16*s + 8*b + 4*rb, CS1[2*s+b], rb, vACC + 16*s + 4*rb + 2*b)
                k.stores([f"buffer_store_dwordx4 {vr(vACC+16*s+4*rb,4)}, v{vL16}, {srd(S_WS)}, s{sH1+rb} offen offset:{s*1024}"
                          for rb in range(2)], psc(2))

        def d_setup():
            with k.atomic():
                k(f"s_lshl_b32 s{sT1}, s{sW}, 13")
                k(f"s_add_u32 s{sT1}, s{sT1}, s{sGB}")
                k(f"s_add_u32 s{sT1}, s{sT1}, {G_H + 24*1024}")
            with k.atomic():
                k(f"s_lshl_b32 s{sT4}, s{sW}, 11")
                k(f"s_add_u32 s{sT4}, s{sT4}, {28*1024}")
            for j in range(4):
                with k.atomic():
                    k(f"s_add_u32 s{sT0}, s{sW}, {j}")
                    k(f"s_and_b32 s{sT0}, s{sT0}, 3")
                    k(f"s_lshl2_add_u32 s{sT0}, s{sDH}, s{sT0}")
                with k.atomic():
                    k(f"s_mul_i32 s{sT0}, s{sT0}, 57344")
                    k(f"s_add_u32 s{sRB+j}, s{sT0}, s{sT1}")
            k.poll_prep(7)
        seq = [(ksl, j) for ksl in range(11) for j in range(4)] + [(ksl, j) for j in (1, 2, 3, 0) for ksl in (11, 12, 13)]
        hb = [0, 0, 0, 0]

        def hload(t):
            ksl, j = seq[t]
            with k.atomic():
                if ksl // 4 != hb[j]:
                    if ksl == 8:
                        k(f"s_sub_u32 s{sRB+j}, s{sRB+j}, s{sT4}")
                    else:
                        k(f"s_add_u32 s{sRB+j}, s{sRB+j}, 4096")
                    hb[j] += 1
                k.vmem(f"buffer_load_dwordx4 {vr(vACT+4*(t%28),4)}, v{vL16}, {srd(S_WS)}, s{sRB+j} offen offset:{(ksl%4)*1024} sc1", ("h", t))
        PC = o.get("prec", PRE)
        al = k.rec(lambda: act_loads(G_X1))
        k.play(al[:PC])
        fill = {}
        sl = k.rec(lambda: stat_loads(G_ST1))
        e = spread(fill, al[PC:PC+4] + [lambda: k.play(sl[:2]), sl[2]] + al[PC+4:], 0, 4)
        e2 = spread(fill, k.rec(lambda: (stat_sum(), stats_finalize(False))), 52, 1.5 if L1 else 1)
        if not L1:
            spread(fill, k.rec(c2_init), e2 + 2, 1)
        else:
            spread(fill, k.rec(lambda: k("s_barrier")), 100, 1)
        e = spread(fill, w1c2[nc:], e, 3)
        spread(fill, k.rec(cs1_reads), 119, 1)
        if o.get("diagd"):
            spread(fill, k.rec(lambda: k.stamp("C.mm1")), 127, 0)
        e1 = spread(fill, k.rec(epi1), 129, 1 / o.get("epr", 3))
        spread(fill, k.rec(lambda: (k.vm_wait("w1c2"), k("s_barrier"))), 128 + 5 * MK, 0)
        spread(fill, k.rec(d_setup), e1, 1)
        pf = min(e1 + (o.get("fl11", 50) if L1 else o.get("fl1", 22)), NM - 2)
        spread(fill, k.rec(lambda: k.flag(sFHo, G_FH)), pf, 1)
        NE = o.get("ne1", 0) if L1 else o.get("ne", 4)
        pp = NM - 1 if NE == 0 else NM - 3 * NE - 18
        assert pp > pf
        spread(fill, k.rec(lambda: k.vmem(f"buffer_load_dword v{vT0}, v{vT3}, {srd(S_WS)}, s{sFHp} offen offset:{G_FH} sc1", "p1")), pp, 1)
        if NE:
            spread(fill, k.rec(lambda: async_check("p1", sFHp, G_FH)), NM - 3 * NE - 1, 1)
            spread(fill, k.rec(lambda: [hload(t) for t in range(NE)]), NM - 3 * NE, 3)
        if L1:
            nw2 = o.get("nw2", 24)
            spread(fill, w2[:nw2], e, (pp - 1 - e) / max(nw2, 1))
            w2 = w2[nw2:]
        k.gemm_run(g, fill)
        k.stamp("C.mm2")
        HO = vWB + 16
        LA = o.get("dla1", 10) if L1 else o.get("dla", 10)
        if L1:
            k.get(vT1, cCSA)
            k(f"s_lshl_b32 s{sT5}, s{sPDB}, 6")
            k(f"v_add_u32 v{vT1}, s{sT5}, v{vT1}")
            k.lds(f"ds_write_b32 v{vT1}, a{aCS} offset:{10*64}")
            k.barrier()
            k.get(vT2, cCSB)
            for b in range(3):
                k.lds(f"ds_read_b128 {vr(vWB+4*b,4)}, v{vT2} offset:{(10+b)*64}")
            k.ds_all()
        else:
            k("s_nop 3")
        epi2 = k.rec(lambda: [relu_block(C2 + 8*b + 4*rb, vWB + 4*b if L1 else None, rb, HO + 8*rb + 2*b) for b in range(3) for rb in range(2)])
        h2sc = psc(2) and not o.get("h2plain", 1)
        its = []
        for rb in range(2):
            its.append(f"buffer_store_dwordx4 {vr(HO+8*rb,4)}, v{vL16}, {srd(S_WS)}, s{sH2+rb} offen")
            its.append(f"buffer_store_dwordx2 {vr(HO+8*rb+4,2)}, v{vL16}, {srd(S_WS)}, s{sH3+rb} offen")
        tail = k.rec(lambda: (lin_dma(PK_KV, R0, 16, "wkv2"), lin_dma(PK_Q, R1, 8, "wq2"))) if L1 else []
        if NE:
            n2 = o.get("ne2", 2)
            k.play(mix(epi2, k.rec(lambda: [hload(t) for t in range(NE, NE + n2)]), 10))
            k.stores(its, h2sc)
            nxt = NE + n2
            FL2 = o.get("fl2", 5)
        else:
            k.play(epi2)
            k.stores(its, h2sc)
            async_check("p1", sFHp, G_FH)
            for t in range(LA):
                hload(t)
                if w2 and t % 2:
                    k.play(w2[:1]); w2 = w2[1:]
            k.flag(sFHo, G_FH + 1024)
            nxt = LA
            FL2 = -1
        k.stamp("D.poll1")
        RSD = vPQ
        k.get(vPQ + 1, cRSD)
        k.lds(f"ds_read_b32 v{RSD}, v{vPQ+1}", "rsd")
        for j in range(4):
            k.get(vPQ + 4 + j, cRD0 + j)
        ur = k.rec(lambda: unpack_res(vWB))
        wr = []
        for t in range(56):
            ksl, j = seq[t]
            if L1:
                k.vm_wait(("w2t", ksl))
            k.vm_wait(("h", t))
            if o.get("diagd") and t in (0, 8, 16, 24, 32, 40, 48):
                k.stamp(f"D.t{t}")
            for f in range(4):
                a = vACC + 16*j + 4*f
                c = "0" if ksl == 0 else vr(a, 4)
                k(f"v_mfma_f32_16x16x32_bf16 {vr(a,4)}, {ar((ksl*4+f)*4,4)}, {vr(vACT+4*(t%28),4)}, {c}")
                if f in (0, 2) and nxt < 56 and nxt <= t + LA and (f == 0 or nxt < t + LA):
                    if nxt == 32 - 6:
                        k.vmem(f"buffer_load_dword v{vT0}, v{vT3}, {srd(S_WS)}, s{sFHp} offen offset:{G_FH+1024} sc1", "p2")
                    if nxt == 32:
                        async_check("p2", sFHp, G_FH + 1024)
                    hload(nxt)
                    nxt += 1
                    if nxt == 56 and not L1 and o.get("wb", 1):
                        lw = k.label("L_wb")
                        k(f"s_lshl3_add_u32 s{sT0}, s{sW}, s2")
                        k(f"s_cmp_ge_u32 s{sT0}, 8")
                        k(f"s_cbranch_scc1 {lw}")
                        k("buffer_wbl2 sc1")
                        k(f"s_branch {lw}_e")
                        k(f"{lw}:")
                        k(f"buffer_load_dword a{aDUM}, v{vT3}, {srd(S_WS)}, s{sFHp} offen offset:{G_FH} sc1")
                        k(f"{lw}_e:")
                        k.vm_note(1, "wb")
                if f == 2:
                    if w2:
                        k.play(w2[:1]); w2 = w2[1:]
                    elif t + LA >= 56 and tail:
                        k.play(tail[:2]); tail = tail[2:]
                if f == 3 and t == FL2:
                    k.flag(sFHo, G_FH + 1024)
                if f == 3 and t == 30 and not L1:
                    k("s_barrier")
                if f == 3 and t == o.get("tx", 30) and L1:
                    touch("x")
                if f == 1 and t >= 8 and ur:
                    k.play(ur[:1]); ur = ur[1:]
                if wr and wr[0][0] <= 4 * t + f:
                    k.lds(wr.pop(0)[1])
            if ksl == 13 and j:
                for f in range(4):
                    wr.append((4 * t + 9 + 2 * f, f"ds_write_b128 v{vPQ+4+j}, {vr(vACC+16*j+4*f,4)} offset:{f*1024}"))
        assert not w2 and not ur
        for _, wi in wr:
            k.lds(wi)
        k.play(tail)
        k.stamp("D.mm")
        k.barrier()
        for j in range(3):
            for f in range(4):
                k.lds(f"ds_read_b128 {vr(vACC+16+16*j+4*f,4)}, v{vPQ+4} offset:{j*4096+f*1024}", ("rd", j, f))
        if not L1:
            k.get(vT2, cOUT)
        for j in range(3):
            for f in range(4):
                k.ds_wait(("rd", j, f))
                for p in range(2):
                    k(f"v_pk_add_f32 {vr(vACC+4*f+2*p,2)}, {vr(vACC+4*f+2*p,2)}, {vr(vACC+16+16*j+4*f+2*p,2)}")
                if j == 2:
                    for p in range(2):
                        k(f"v_pk_fma_f32 {vr(vACC+4*f+2*p,2)}, {vr(vACC+4*f+2*p,2)}, {vr(RSD,2)}, {vr(vWB+4*f+2*p,2)} op_sel_hi:[1,0,1]")
                    for p in range(2):
                        k(f"v_cvt_pk_bf16_f32 v{vRES+2*f+p}, v{vACC+4*f+2*p}, v{vACC+4*f+2*p+1}")
        k.stamp("D.red")
        if L1:
            publish_x(G_X2, G_ST2, G_FX2, psc(3))
            k(f"s_add_u32 s{sKVC}, s{sKVC}, 0x100000")
            k(f"s_add_u32 s{sKVP}, s{sKVP}, 0x100000")
            k.flag(sFXo, G_FX2)
            k.stamp("D.pub")
            k("s_barrier")
            fr = []
            for ks in range(16):
                for b in range(4):
                    fr.append(dict(addr=vL16, offs=(R0 + ks * 4096 + b * 1024,), mf=mf2(vACC + 8 * b, ks, False, True)))
            gA = k.gemm_begin(fr)
        else:
            k("s_nop 1")
            for s in range(2):
                for p in range(2):
                    k(f"v_permlane16_swap_b32 v{vRES+4*s+p}, v{vRES+4*s+2+p}")
                k.vmem(f"buffer_store_dwordx4 {vr(vRES+4*s,4)}, v{vT2}, {srd(S_OUT)}, 0 offen offset:{64*s}{' sc1' if o.get('outsc1', 1) else ''}")
            le = k.label("L_ep")
            k(f"s_or_b32 s{sT2}, s2, s{sW}")
            k(f"s_cbranch_scc1 {le}")
            k(f"s_add_u32 s{sEP}, s{sEP}, 1")
            k(f"v_mov_b32 v{vT1}, s{sEP}")
            k("s_mov_b64 exec, 1")
            k(f"buffer_store_dword v{vT1}, v{vL16}, {srd(S_WS)}, 0 offen offset:{WS_EPOCH}")
            k("s_mov_b64 exec, -1")
            k(f"{le}:")
            if stamps:
                k.vm_all()
                k.stamp("end")
                k(f"s_memrealtime s[{sST}:{sST+1}]")
                k("s_waitcnt lgkmcnt(0)")
                k(f"v_writelane_b32 v{vSTAMP}, s{sST}, 61")
                k(f"v_writelane_b32 v{vSTAMP}, s{sBUD}, 60")
                k(f"v_writelane_b32 v{vSTAMP}, s{sSLOW}, 59")
                k(f"s_lshl2_add_u32 s{sT2}, s2, s{sW}")
                k(f"s_lshl_b32 s{sT2}, s{sT2}, 8")
                k(f"s_add_u32 s{sT2}, s{sT2}, {WS_STAMP}")
                k(f"v_lshrrev_b32 v{vT0}, 2, v{vL16}")
                k(f"buffer_store_dword v{vSTAMP}, v{vT0}, {srd(S_WS)}, s{sT2} offen")
    k("L_end:")
    body = "\n".join(merge_waits(k.lines))
    hdr = open("interleave_layers__linear_attn_block__dense_activation_relu__prompt.s.ref").read().split("; Override")[0]
    txt = f"""{hdr}; Generated by a hand-written generator (persistent kernel, one workgroup per CU).
; @launch grid=(256,1,1) block=(256,1,1) lds={LDS_BYTES}
.amdgcn_target "amdgcn-amd-amdhsa--gfx950"
.text
.globl {NAME}
.p2align 8
.type {NAME},@function
.set CODE_BYTES, L_code_end - L_pcref - 512
{NAME}:
{body}
    s_endpgm
L_code_end:
.section .rodata,"a"
.p2align 6
.amdhsa_kernel {NAME}
  .amdhsa_next_free_vgpr 512
  .amdhsa_next_free_sgpr 102
  .amdhsa_accum_offset 256
  .amdhsa_group_segment_fixed_size 0
  .amdhsa_kernarg_size 72
  .amdhsa_user_sgpr_count 2
  .amdhsa_user_sgpr_kernarg_segment_ptr 1
  .amdhsa_system_sgpr_workgroup_id_x 1
.end_amdhsa_kernel
"""
    return txt, k.stamp_names


if __name__ == "__main__":
    out = sys.argv[1]
    stamps = "stamps" in sys.argv[2:]
    opts = {}
    for a in sys.argv[2:]:
        if "=" in a:
            x, y = a.split("=")
            opts[x] = int(y)
    txt, names = gen(stamps, opts)
    open(out, "w").write(txt)
    if stamps:
        open(out + ".names", "w").write("\n".join(names))
```

```python
import sys
from contextlib import contextmanager

NAME = "interleave_layers__linear_attn_block__dense_activation_relu__prompt_kernel"

WS_EPOCH = 0
WS_XID = 0x8000
WS_PD = 0x10000
GRP0 = 0x100000
G_FO, G_FX1, G_FX2, G_FH = 0, 512, 1024, 1536
G_ST1 = 0x1000
G_ST2 = G_ST1
G_ST0 = 0x4000
G_X1 = 0x8000
G_X2 = G_X1
G_H = G_X1 + 0x20000
G_O = G_H
WS_KVX = 0x1200000
KVX_C = 0x9000
WS_W2T = 0x1400000
WS_PK = 0x1600000
PK_KV, PK_Q, PK_W1A, PK_W1B, PK_WO, PK_SZ = 0, 65536, 98304, 163840, 212992, 278528
WS_STAMP = 0x1B00000
WS_USED = 0x1C00000
OOB = 0x7f000000

R0, R1, R2, R3 = 0, 65536, 98304, 131072
L_SM = 161792
L_CS = L_SM
L_ZB = L_SM + 896
L_STAT = L_SM + 1024
L_XB = L_SM - 4096
W1B_N1 = 8
L_XST = 98304
L_RED = R2
L_PST = R2
LDS_BYTES = 163840

S_X, S_WQKV, S_WO, S_W1, S_W2, S_OUT, S_WS = 4, 8, 12, 16, 20, 24, 28
(sW, sC, sG, sTAG, sSLOW, sGB, sBUD, sEP, sEPS, _e1, sT0, sT1, sT2, sT3, sT4, sT5,
 sACT, sACT1, sBACT, sTILE, sOST, sOST1, sFOo, sFOp, sFXo, sFXp, sSTo, sSTg,
 sH1, sH1b, sH2, sH2b, sH3, sH3b, sFHo, sFHp, sRB, _r1, _r2, _r3, sKVC, sKVP,
 sDH, sCT, sXCC, sT8, sD0, sD1, sD2, sD3, sL0, sL1, sPKB, sPDA, sPDB, sJ0) = range(32, 88)
assert sEPS % 2 == 0
sRHO = sT8
S_A, S_B = 88, 92
sKEX = 88
sKM = 96
sST = 98
sPC = 100

vLANE, vL16, vTR0, vTR1, vQ0, vQ1, vQ2, vQ3, vP, vCH, vDM, vSTAMP = range(12)
vT0, vT1, vT2, vT3 = 12, 13, 14, 15
vSP, vSP2 = vP, vCH
vRES = 16
vPQ = 24
vWB = 32
vACC = 64
vACT = 128
BF1 = "0x3f803f80"
(cCSA, cCSB, cP16, aDUM, cSTO, cSTW, cSTA, cSTB, cKW, cKR, cKW1, cKR1, cKVS, cXW, cXR, cZR,
 cRD0, cRD1, cRD2, cRD3, cRSD, cOUT, cZL, cZW) = range(224, 248)
aONES, aCS = 248, 252


def srd(s):
    return f"s[{s}:{s+3}]"


def vr(a, n=1):
    return f"v{a}" if n == 1 else f"v[{a}:{a+n-1}]"


def ar(a, n=1):
    return f"a{a}" if n == 1 else f"a[{a}:{a+n-1}]"


def bcast(r, pos, n):
    lo = [0] * n
    hi = [1] * n
    if r % 2 == 0:
        hi[pos] = 0
    else:
        lo[pos] = 1
    f = lambda x: "[" + ",".join(map(str, x)) + "]"
    return vr(r & ~1, 2), f" op_sel:{f(lo)} op_sel_hi:{f(hi)}"


class K:
    def __init__(self, stamps=False, opts=None):
        self.lines = []
        self.nlab = 0
        self.vm = []
        self.ds = []
        self.stamps = stamps
        self.stamp_names = []
        self.o = opts or {}
        self._rec = None
        self.seen = set()

    def _do(self, fn):
        if self._rec is not None:
            self._rec.append(fn)
        else:
            fn()

    def rec(self, f):
        assert self._rec is None
        self._rec = []
        f()
        r, self._rec = self._rec, None
        return r

    @contextmanager
    def atomic(self):
        if self._rec is None:
            yield
            return
        outer, self._rec = self._rec, []
        yield
        inner, self._rec = self._rec, outer
        outer.append(lambda: [x() for x in inner])

    def play(self, items):
        for x in items:
            self._do(x)

    def _emit(self, l):
        self.lines.append(("" if l.endswith(":") else "    ") + l)

    def __call__(self, s):
        for l in s.split("\n"):
            l = l.strip()
            if l:
                self._do(lambda l=l: self._emit(l))

    def label(self, base="L"):
        self.nlab += 1
        return f"{base}_{self.nlab}"

    def vmem(self, s, tag=None):
        def f():
            self._emit(s)
            self.vm.append(tag)
            self.seen.add(tag)
        self._do(f)

    def vm_note(self, n, tag=None):
        self._do(lambda: (self.vm.extend([tag] * n), self.seen.add(tag)))

    def _wait(self, lst, tag, name, mx):
        if tag not in lst:
            return lst
        idx = len(lst) - 1 - lst[::-1].index(tag)
        n = min(len(lst) - idx - 1, mx)
        self._emit(f"s_waitcnt {name}({n})")
        return lst[len(lst) - n:] if n else []

    def vm_wait(self, tag):
        def f():
            assert tag in self.seen, tag
            self.vm = self._wait(self.vm, tag, "vmcnt", 63)
        self._do(f)

    def save_vm(self):
        def f():
            self._sv = list(self.vm)
        self._do(f)

    def restore_vm(self):
        def f():
            self.vm = self._sv
        self._do(f)

    def vm_all(self):
        def f():
            self._emit("s_waitcnt vmcnt(0)")
            self.vm = []
        self._do(f)

    def lds(self, s, tag=None):
        def f():
            self._emit(s)
            self.ds.append(tag)
        self._do(f)

    def ds_wait(self, tag):
        def f():
            self.ds = self._wait(self.ds, tag, "lgkmcnt", 15)
        self._do(f)

    def ds_all(self, force=False):
        def f():
            if self.ds or force:
                self._emit("s_waitcnt lgkmcnt(0)")
            self.ds = []
        self._do(f)

    def barrier(self, force=False):
        self.ds_all(force)
        self("s_barrier")

    def stamp(self, name):
        if not self.stamps:
            return
        self.nst = getattr(self, "nst", 0) + 1
        if self.o.get("lite") and name not in ("end", "D.pub"):
            return
        i = len(self.stamp_names)
        assert i < 59
        self.stamp_names.append(name)
        self(f"{'s_memrealtime' if self.o.get('rt') else 's_memtime'} s[{sST}:{sST+1}]")
        self.ds_all(True)
        self(f"v_writelane_b32 v{vSTAMP}, s{sST}, {i}")

    def dma(self, sr, voff, soff, simm, lreg, limm, tag=None, flag=""):
        with self.atomic():
            self(f"s_add_u32 m0, s{lreg}, {limm}")
            self(f"s_add_u32 s{sT5}, s{soff}, {simm}")
            self.vmem(f"buffer_load_dwordx4 v{voff}, {srd(sr)}, s{sT5} offen{flag} lds", tag)

    def get(self, v, c):
        self(f"v_accvgpr_read_b32 v{v}, a{c}")

    def poll_prep(self, mask):
        self.get(vT3, cP16)
        if mask == 7:
            self(f"v_and_b32 v{vT3}, 28, v{vT3}")

    def poll(self, soff, imm, clear=True):
        if clear:
            self.seen = {t for t in self.seen if not (isinstance(t, tuple) and t[0] in ("act", "h"))}
        lp, done = self.label("L_poll"), self.label("L_pd")
        with self.atomic():
            self(f"{lp}:")
            self(f"buffer_load_dword v{vT0}, v{vT3}, {srd(S_WS)}, s{soff} offen offset:{imm} sc1")
            self.vm_all()
            self(f"v_cmp_ne_u32 vcc, s{sTAG}, v{vT0}")
            self(f"s_cbranch_vccz {done}")
            self(f"s_sub_u32 s{sBUD}, s{sBUD}, 1")
            self(f"s_cbranch_scc0 {lp}")
            self(f"s_mov_b32 s{sBUD}, 0")
            self(f"{done}:")

    def stores(self, items, force_sc1, tag="st"):
        with self.atomic():
            if force_sc1:
                for it in items:
                    self.vmem(it + " sc1", tag)
                return
            ls, le = self.label("L_ss"), self.label("L_se")
            self(f"s_cmp_lg_u32 s{sSLOW}, 0")
            self(f"s_cbranch_scc1 {ls}")
            for it in items:
                self.vmem(it, tag)
            self(f"s_branch {le}")
            self(f"{ls}:")
            for it in items:
                self(it + " sc1")
            self(f"{le}:")

    def flag(self, soff, imm):
        with self.atomic():
            self(f"v_mov_b32 v{vT1}, s{sTAG}")
            self.vm_wait("st")
            self("s_mov_b64 exec, 1")
            self.stores([f"buffer_store_dword v{vT1}, v{vL16}, {srd(S_WS)}, s{soff} offen offset:{imm}"], False, "flag")
            self("s_mov_b64 exec, -1")

    def gemm_begin(self, frags, D=6):
        self.gid = getattr(self, "gid", 0) + 1
        g = dict(frags=frags, D=D, gid=self.gid, rp=0, reads=[])
        for t, f in enumerate(frags):
            s = vWB + 4 * (t % 8)
            if len(f["offs"]) == 2:
                for hh in range(2):
                    g["reads"].append((t, f"ds_read_b64_tr_b16 {vr(s + 2*hh, 2)}, v{f['addr']} offset:{f['offs'][hh]}"))
            else:
                g["reads"].append((t, f"ds_read_b128 {vr(s, 4)}, v{f['addr']} offset:{f['offs'][0]}"))
        self._issue(g, D - 1, 99)
        return g

    def _issue(self, g, tmax, maxn):
        c = 0
        reads = g["reads"]
        while g["rp"] < len(reads) and reads[g["rp"]][0] <= tmax and c < maxn:
            self.lds(reads[g["rp"]][1], ("w", g["gid"], reads[g["rp"]][0]))
            g["rp"] += 1
            c += 1

    def gemm_run(self, g, fill=None):
        fill = fill or {}
        frags, D, gid = g["frags"], g["D"], g["gid"]
        n = len(frags)
        mi = 0
        for t, f in enumerate(frags):
            s = vWB + 4 * (t % 8)
            if t % 2 == 0:
                self.ds_wait(("w", gid, min(t + 1, n - 1)))
            nm = len(f["mf"])
            for j, (acc, act_, sw, first, wt) in enumerate(f["mf"]):
                if wt is not None:
                    self.vm_wait(wt)
                c = "0" if first else vr(acc, 4) if acc is not None else ar(aCS, 4)
                if acc is None:
                    self(f"v_mfma_f32_16x16x32_bf16 {ar(aCS,4)}, {ar(aONES,4)}, {vr(s,4)}, {c}")
                elif sw:
                    self(f"v_mfma_f32_16x16x32_bf16 {vr(acc,4)}, {vr(s,4)}, {vr(act_,4)}, {c}")
                else:
                    self(f"v_mfma_f32_16x16x32_bf16 {vr(acc,4)}, {vr(act_,4)}, {vr(s,4)}, {c}")
                self._issue(g, t + D, 99 if j == nm - 1 else 1)
                self.play(fill.pop(mi, []))
                mi += 1
        for key in sorted(fill):
            self.play(fill[key])

    def gemm(self, frags, fill=None, D=6):
        self.gemm_run(self.gemm_begin(frags, D), fill)


def merge_waits(lines):
    import re
    out = []
    for l in lines:
        m = re.match(r"\s*s_waitcnt (\w+)\((\d+)\)$", l)
        if m and out:
            p = re.match(r"\s*s_waitcnt (\w+)\((\d+)\)$", out[-1])
            if p and p.group(1) != m.group(1):
                out[-1] = out[-1] + f" {m.group(1)}({m.group(2)})"
                continue
        out.append(l)
    return out


def spread(fill, items, start, step, per=1):
    p = start
    for i in range(0, len(items), per):
        fill.setdefault(int(p), []).extend(items[i:i + per])
        p += step
    return p


def mix(a, b, ratio):
    out = []
    bi = 0
    for i, x in enumerate(a):
        out.append(x)
        if (i + 1) % ratio == 0 and bi < len(b):
            out.append(b[bi]); bi += 1
    out.extend(b[bi:])
    return out


def act(ks, rb):
    return vACT + 8 * ks + 4 * rb


def gen(stamps=False, opts=None):
    k = K(stamps, opts)
    o = k.o
    if stamps:
        k(f"{'s_memrealtime' if o.get('rt') else 's_memtime'} s[{sST}:{sST+1}]")
        k(f"s_memrealtime s[{sPC}:{sPC+1}]")
    k(f"""
    s_cmp_ge_u32 s2, 256
    s_cbranch_scc1 L_end
    s_load_dwordx2 s[{S_X}:{S_X+1}], s[0:1], 0
    s_load_dwordx2 s[{S_WQKV}:{S_WQKV+1}], s[0:1], 8
    s_load_dwordx2 s[{S_WS}:{S_WS+1}], s[0:1], 64
    s_load_dwordx2 s[{S_WO}:{S_WO+1}], s[0:1], 16
    s_load_dwordx2 s[{S_W1}:{S_W1+1}], s[0:1], 32
    s_load_dwordx2 s[{S_W2}:{S_W2+1}], s[0:1], 40
    s_load_dwordx2 s[{S_OUT}:{S_OUT+1}], s[0:1], 48
    v_lshrrev_b32 v{vT0}, 6, v0
    v_and_b32 v{vLANE}, 63, v0
    s_mov_b32 s{S_X+2}, {2048*1024}
    v_readfirstlane_b32 s{sW}, v{vT0}
    s_mov_b32 s{S_X+3}, 0x20000
    s_mov_b32 s{S_WQKV+2}, {512*3072}
    s_mov_b32 s{S_WQKV+3}, 0x20000
    s_lshr_b32 s{sT0}, s2, 3
    s_and_b32 s{sC}, s{sT0}, 15
    s_lshr_b32 s{sT0}, s{sT0}, 4
    s_and_b32 s{sG}, s2, 7
    s_lshl1_add_u32 s{sG}, s{sG}, s{sT0}
    s_lshr_b32 s{sT1}, s{sC}, 1
    s_xor_b32 s{sT1}, s{sT1}, s{sT0}
    s_and_b32 s{sT1}, s{sT1}, 1
    s_and_b32 s{sRHO}, s{sC}, 1
    s_lshl1_add_u32 s{sRHO}, s{sT1}, s{sRHO}
    v_lshlrev_b32 v{vL16}, 4, v{vLANE}
    """)
    if stamps:
        k(f"v_mov_b32 v{vSTAMP}, 0")
    XS, XR, X2R = vRES, vRES + 4, act(15, 1)
    aRES = 246
    k(f"""
    v_lshrrev_b32 v{vT0}, 4, v{vLANE}
    v_and_b32 v{vT1}, 15, v{vLANE}
    v_xor_b32 v{vT2}, v{vT0}, v{vT1}
    v_lshlrev_b32 v{vT2}, 4, v{vT2}
    v_lshl_add_u32 v{XS}, v{vT0}, 10, v{vT2}
    v_xor_b32 v{XS+1}, 64, v{XS}
    v_xor_b32 v{XS+2}, 0x80, v{XS}
    v_xor_b32 v{XS+3}, 0xc0, v{XS}
    v_lshrrev_b32 v{vP}, 2, v{vLANE}
    v_and_b32 v{vCH}, 3, v{vLANE}
    v_lshrrev_b32 v{vT3}, 3, v{vLANE}
    v_and_b32 v{vT3}, 2, v{vT3}
    v_xor_b32 v{vCH}, v{vCH}, v{vT3}
    v_lshlrev_b32 v{vCH}, 4, v{vCH}
    v_and_b32 v{vT3}, 3, v{vP}
    v_lshl_add_u32 v{vT3}, v{vT0}, 3, v{vT3}
    s_movk_i32 s{sT1}, 3072
    v_mad_u32_u24 v{vDM}, v{vT3}, s{sT1}, v{vCH}
    s_lshl_b32 s{sL0}, s{sW}, 14
    s_add_u32 s{sL0}, s{sL0}, {L_XST}
    s_lshl_b32 s{sT1}, s{sG}, 17
    s_lshl_b32 s{sT2}, s{sW}, 15
    s_add_u32 s{sT1}, s{sT1}, s{sT2}
    s_lshl_b32 s{sL1}, s{sW}, 12
    """)
    for r in range(4):
        k(f"""
        s_add_u32 s{sT2}, s{sRHO}, {r}
        s_and_b32 s{sT2}, s{sT2}, 3
        s_lshl_b32 s{sT3}, s{sT2}, 8
        s_add_u32 s{sD0+r}, s{sT1}, s{sT3}
        s_lshl2_add_u32 s{sT2}, s{sT2}, s{sW}
        s_mul_i32 s{sT2}, s{sT2}, {32*3072}
        s_lshl_b32 s{sT3}, s{sC}, 6
        s_add_u32 s{sRB+r}, s{sT2}, s{sT3}
        """)
    k("s_waitcnt lgkmcnt(0)")
    k(f"s_load_dword s{sEP}, s[{S_WS}:{S_WS+1}], {WS_EPOCH}")
    if stamps:
        k(f"v_writelane_b32 v{vSTAMP}, s{sST}, 62")
        k(f"v_writelane_b32 v{vSTAMP}, s{sPC}, 63")

    def xslot(q, js=range(8)):
        for j in js:
            k.dma(S_X, XS + (j & 3), sD0 + q, j * 4096, sL0, (q & 1) * 8192 + j * 1024, ("xs", q))

    def wkv_raw(r):
        for pr in range(2):
            for hh in range(2):
                k.dma(S_WQKV, vDM, sRB + r, hh * 4 * 3072 + 1024 * (pr + 1), sL1, R0 + r * 16384 + pr * 2048 + hh * 1024, ("wkv", r))

    def quad_lane(pitch, dst=vDM, tmp=vT2):
        vT2 = tmp
        k(f"v_lshrrev_b32 v{dst}, 3, v{vLANE}")
        k(f"v_and_b32 v{vT2}, 6, v{dst}")
        k(f"v_xor_b32 v{vT2}, v{vT2}, v{vLANE}")
        k(f"v_and_b32 v{vT2}, 7, v{vT2}")
        k(f"v_lshlrev_b32 v{vT2}, 4, v{vT2}")
        if isinstance(pitch, int):
            k(f"s_movk_i32 s{sD3}, {pitch}")
            pitch = f"s{sD3}"
        k(f"v_mad_u32_u24 v{dst}, v{dst}, {pitch}, v{vT2}")

    def dma_raw(sr, lds_imm, first, R=None):
        sD0_, sD2_, sL0_, vDM_ = R or (sD0, sD2, sL0, vDM)
        with k.atomic():
            k(f"s_add_u32 m0, s{sL0_}, {lds_imm}")
            k("s_nop 0" if first else f"s_add_u32 s{sD0_}, s{sD0_}, s{sD2_}")
            k(f"buffer_load_dwordx4 v{vDM_}, {srd(sr)}, s{sD0_} offen lds")

    def packU_issue(base, sD0, sD1, sD2, sD3, sL0, vDM, sPDA):
        R = (sD0, sD2, sL0, vDM)
        l2, l3, lq, le = k.label("L_u2"), k.label("L_u3"), k.label("L_uq"), k.label("L_ue")
        with k.atomic():
            k(f"""
            s_lshl_b32 s{sL0}, s{sW}, 12
            s_add_u32 s{sL0}, s{sL0}, {base}
            s_lshr_b32 s{sD0}, s{sC}, 2
            s_mul_i32 s{sD0}, s{sD0}, 896
            s_mul_i32 s{sD1}, s{sG}, {32*3584}
            s_add_u32 s{sD0}, s{sD0}, s{sD1}
            s_and_b32 s{sD1}, s{sC}, 3
            s_cmp_eq_u32 s{sW}, 3
            s_cbranch_scc1 {l3}
            s_cmp_eq_u32 s{sW}, 2
            s_cbranch_scc1 {l2}
            s_mov_b32 s{S_A}, s{S_W2}
            s_mov_b32 s{S_A+1}, s{S_W2+1}
            s_mov_b32 s{S_A+2}, {1792*1024}
            s_movk_i32 s{sD2}, 1024
            s_lshl1_add_u32 s{sD0}, s2, s{sW}
            s_lshr_b32 s{sD1}, s{sD0}, 3
            s_and_b32 s{sD0}, s{sD0}, 7
            s_mul_i32 s{sPDA}, s{sD0}, 56
            s_add_u32 s{sPDA}, s{sPDA}, s{sD1}
            s_lshl_b32 s{sPDA}, s{sPDA}, 12
            s_add_u32 s{sPDA}, s{sPDA}, {WS_W2T}
            s_cmp_ge_u32 s{sD1}, 56
            s_cselect_b32 s{sPDA}, {OOB}, s{sPDA}
            s_lshl_b32 s{sD1}, s{sD1}, 15
            s_lshl_b32 s{sD0}, s{sD0}, 7
            s_add_u32 s{sD0}, s{sD0}, s{sD1}
            s_branch {lq}
            {l2}:
            s_mov_b32 s{S_A}, s{S_W1}
            s_mov_b32 s{S_A+1}, s{S_W1+1}
            s_mov_b32 s{S_A+2}, {512*3584}
            s_movk_i32 s{sD2}, 3584
            s_lshl_b32 s{sD1}, s{sD1}, 7
            s_add_u32 s{sD0}, s{sD0}, s{sD1}
            s_lshl_b32 s{sPDA}, s{sG}, 12
            s_add_u32 s{sPDA}, s{sPDA}, s{sPKB}
            s_add_u32 s{sPDA}, s{sPDA}, {PK_W1A}
            {lq}:
            s_mov_b32 s{S_A+3}, 0x20000
            """)
            quad_lane(f"s{sD2}", vDM, vACT + 127)
            k(f"s_lshl_b32 s{sD2}, s{sD2}, 3")
            for j in range(4):
                dma_raw(S_A, j * 1024, j == 0, R)
            k(f"""
            s_branch {le}
            {l3}:
            s_movk_i32 s{sD3}, 3584
            s_mul_i32 s{sPDA}, s{sG}, 3072
            s_add_u32 s{sPDA}, s{sPDA}, s{sPKB}
            s_add_u32 s{sPDA}, s{sPDA}, {PK_W1B}
            s_lshr_b32 s{sT5}, s{sD1}, 1
            s_mul_i32 s{sT5}, s{sT5}, 6
            s_and_b32 s{sD2}, s{sD1}, 1
            s_add_u32 s{sT5}, s{sT5}, s{sD2}
            s_add_u32 s{sT5}, s{sT5}, 18
            s_lshl_b32 s{sT5}, s{sT5}, 5
            s_add_u32 s{sT5}, s{sT5}, s{sD0}
            v_lshrrev_b32 v{vDM}, 1, v{vLANE}
            v_and_b32 v{vACT+127}, 16, v{vL16}
            v_mad_u32_u24 v{vDM}, v{vDM}, s{sD3}, v{vACT+127}
            s_add_u32 m0, s{sL0}, 2048
            s_mul_i32 s{sD1}, s{sD1}, 3
            buffer_load_dwordx4 v{vDM}, {srd(S_W1)}, s{sT5} offen lds
            s_add_u32 s{sD1}, s{sD1}, 17
            s_lshr_b32 s{sD1}, s{sD1}, 1
            s_lshl_b32 s{sD1}, s{sD1}, 6
            s_add_u32 s{sD0}, s{sD0}, s{sD1}
            s_mov_b32 s{sD2}, {16*3584}
            v_mad_u32_u24 v{vDM}, v{vP}, s{sD3}, v{vCH}
            """)
            for hh in range(2):
                dma_raw(S_W1, hh * 1024, hh == 0, R)
            k(f"buffer_load_dword a{aDUM}, v{vL16}, {srd(S_W1)}, s{S_W1+2} offen")
            k(f"{le}:")
            k.vm_note(4, "pu")

    def warm():
        k(f"v_lshlrev_b32 v{vT3}, 7, v{vLANE}")
        k("s_mov_b64 exec, 0xf")
        k(f"""
        s_getpc_b64 s[{sPC}:{sPC+1}]
        L_pcref:
        s_lshr_b32 s{sT2}, s2, 3
        s_lshl2_add_u32 s{sT2}, s{sT2}, s{sW}
        s_lshl_b32 s{sT2}, s{sT2}, 9
        s_min_u32 s{sT2}, s{sT2}, CODE_BYTES
        s_add_u32 s{sPC}, s{sPC}, s{sT2}
        s_addc_u32 s{sPC+1}, s{sPC+1}, 0
        """)
        k.vmem(f"global_load_dword a{aDUM}, v{vT3}, s[{sPC}:{sPC+1}]")
        if o.get("warm", 1) >= 1:
            k(f"s_lshl2_add_u32 s{sT2}, s2, s{sW}")
            k(f"s_lshr_b32 s{sT3}, s{sT2}, 1")
            k(f"s_mul_i32 s{sT3}, s{sT3}, 3072")
            k(f"s_and_b32 s{sT4}, s{sT2}, 1")
            k(f"s_lshl_b32 s{sT4}, s{sT4}, 9")
            k(f"s_add_u32 s{sT3}, s{sT3}, s{sT4}")
            k.vmem(f"buffer_load_dword a{aDUM}, v{vT3}, {srd(S_WQKV)}, s{sT3} offen")
            k(f"s_lshl_b32 s{sT3}, s{sT2}, 9")
            k.vmem(f"buffer_load_dword a{aDUM}, v{vT3}, {srd(S_WO)}, s{sT3} offen")
        if o.get("tlb", 0):
            k("s_mov_b64 exec, 1")
            k(f"s_mul_i32 s{sT3}, s{sT2}, 1792")
            k.vmem(f"buffer_load_dword a{aDUM}, v{vT3}, {srd(S_W1)}, s{sT3} offen")
            k.vmem(f"buffer_load_dword a{aDUM}, v{vT3}, {srd(S_W2)}, s{sT3} offen")
            if o["tlb"] > 1:
                k("s_mov_b64 exec, 0x1f")
                k(f"v_lshlrev_b32 v{vWB}, 21, v{vLANE}")
                k(f"s_mov_b32 s{sT3}, {WS_KVX + 0x1f0000}")
                k.vmem(f"buffer_load_dword a{aDUM}, v{vWB}, {srd(S_WS)}, s{sT3} offen")
        if o.get("warm", 1) >= 2:
            k(f"s_mul_i32 s{sT3}, s{sT2}, 1792")
            k("s_mov_b64 exec, 0x3fff")
            k.vmem(f"buffer_load_dword a{aDUM}, v{vT3}, {srd(S_W1)}, s{sT3} offen")
            k.vmem(f"buffer_load_dword a{aDUM}, v{vT3}, {srd(S_W2)}, s{sT3} offen")
        k(f"s_lshl2_add_u32 s{sT2}, s{sC}, s{sW}")
        k(f"s_lshl_b32 s{sT2}, s{sT2}, 8")
        k(f"s_add_u32 s{sT2}, s{sT2}, s{sGB}")
        k("s_mov_b64 exec, 3")
        k.vmem(f"buffer_load_dword a{aDUM}, v{vT3}, {srd(S_WS)}, s{sT2} offen sc1", "touch")
        k("s_mov_b64 exec, -1")

    OWN = vACC
    k(f"s_lshl_b32 s{sT2}, s{sC}, 11")
    k(f"s_add_u32 s{sT2}, s{sT2}, s{sT1}")
    for r in range(2):
        k.vmem(f"buffer_load_dwordx4 {vr(OWN+4*r,4)}, v{vL16}, {srd(S_X)}, s{sT2} offen offset:{r*1024}", "own")
    wkv_raw(0)
    k(f"""
    s_mov_b32 s{S_WO+2}, {512*1024}
    s_mov_b32 s{S_WO+3}, 0x20000
    s_mov_b32 s{S_W1+2}, {512*3584}
    s_mov_b32 s{S_W1+3}, 0x20000
    s_mov_b32 s{S_W2+2}, {1792*1024}
    s_mov_b32 s{S_W2+3}, 0x20000
    s_mov_b32 s{S_WS+2}, {WS_USED}
    s_mov_b32 s{S_WS+3}, 0x20000
    s_lshl_b32 s{sGB}, s{sG}, 20
    s_add_u32 s{sGB}, s{sGB}, {GRP0}
    """)
    warm()
    UF = o.get("uf", 1)
    k(f"s_mul_i32 s{sPKB}, s{sC}, {PK_SZ}")
    k(f"s_add_u32 s{sPKB}, s{sPKB}, {WS_PK}")
    if UF == 1:
        packU_issue(R1, sH1, sH1b, sH2, sH2b, sH3, vWB + 8, sPDB)

    def arm(mode):
        with k.atomic():
            k(f"s_lshl2_add_u32 s{sT2}, s{sC}, s{sW}")
            k(f"s_lshl_b32 s{sT3}, s{sT2}, 11")
            k(f"s_add_u32 s{sT3}, s{sT3}, s{sGB}")
            k(f"s_add_u32 s{sT3}, s{sT3}, {G_X1}")
            k(f"s_lshr_b32 s{sT4}, s{sT2}, 3")
            k(f"s_mul_i32 s{sT4}, s{sT4}, 57344")
            k(f"s_and_b32 s{sT2}, s{sT2}, 7")
            k(f"s_mul_i32 s{sT2}, s{sT2}, {5120 if mode & 4 else 1024}")
            k(f"s_add_u32 s{sT4}, s{sT4}, s{sT2}")
            k(f"s_add_u32 s{sT4}, s{sT4}, s{sGB}")
            k(f"s_add_u32 s{sT4}, s{sT4}, {G_H + 16*1024}")
            k(f"s_add_u32 s{sT2}, s{sT4}, 4096")
        if mode & 1:
            for j in range(2):
                k.vmem(f"buffer_store_dwordx4 {vr(vQ0,4)}, v{vL16}, {srd(S_WS)}, s{sT3} offen offset:{j*1024} sc1", "arm")
        for j in range(5 if mode & 4 else 1 if mode & 2 else 0):
            k.vmem(f"buffer_store_dwordx4 {vr(vQ0,4)}, v{vL16}, {srd(S_WS)}, s{sT4 if j < 4 else sT2} offen offset:{(j%4)*1024} sc1", "arm")

    k(f"""
    s_mov_b32 s{S_OUT+2}, {2048*1024}
    s_mov_b32 s{S_OUT+3}, 0x20000
    s_lshr_b32 s{sDH}, s{sC}, 3
    s_and_b32 s{sCT}, s{sC}, 7
    s_mov_b32 s{sBUD}, 150000
    s_mov_b32 s{sEPS}, 0x358637bd
    s_mov_b32 s{sEPS+1}, 0x358637bd
    s_getreg_b32 s{sXCC}, hwreg(HW_REG_XCC_ID, 0, 4)
    s_lshl_b32 s{sACT}, s{sW}, 15
    s_add_u32 s{sACT}, s{sACT}, s{sGB}
    s_add_u32 s{sACT1}, s{sACT}, 16384
    s_lshl2_add_u32 s{sT0}, s{sDH}, s{sW}
    s_lshl_b32 s{sBACT}, s{sT0}, 14
    s_add_u32 s{sBACT}, s{sBACT}, s{sGB}
    s_lshl_b32 s{sTILE}, s{sCT}, 11
    s_add_u32 s{sTILE}, s{sTILE}, s{sBACT}
    s_mul_i32 s{sBACT}, s{sT0}, 57344
    s_add_u32 s{sBACT}, s{sBACT}, s{sGB}
    s_mul_i32 s{sOST}, s{sW}, {2*57344}
    s_lshl_b32 s{sOST1}, s{sC}, 10
    s_add_u32 s{sOST}, s{sOST}, s{sOST1}
    s_add_u32 s{sOST}, s{sOST}, s{sGB}
    s_add_u32 s{sOST}, s{sOST}, {G_O}
    s_add_u32 s{sOST1}, s{sOST}, 57344
    s_lshl_b32 s{sFXp}, s{sW}, 7
    s_add_u32 s{sFXp}, s{sFXp}, s{sGB}
    s_lshl2_add_u32 s{sFOo}, s{sC}, s{sFXp}
    s_lshl_b32 s{sFHp}, s{sT0}, 7
    s_add_u32 s{sFHp}, s{sFHp}, s{sGB}
    s_lshr_b32 s{sT0}, s{sT0}, 1
    s_mov_b32 s{sT1}, s{sT0}
    s_lshl_b32 s{sFOp}, s{sT0}, 7
    s_add_u32 s{sFOp}, s{sFOp}, s{sGB}
    s_and_b32 s{sT2}, s{sW}, 1
    s_lshl1_add_u32 s{sT3}, s{sCT}, s{sT2}
    s_lshl2_add_u32 s{sFXo}, s{sT3}, s{sFOp}
    s_lshl3_add_u32 s{sT3}, s{sT0}, s{sCT}
    s_lshl_b32 s{sT3}, s{sT3}, 8
    s_lshl3_add_u32 s{sT3}, s{sT2}, s{sT3}
    s_add_u32 s{sSTo}, s{sT3}, s{sGB}
    s_lshl_b32 s{sSTg}, s{sW}, 11
    s_add_u32 s{sSTg}, s{sSTg}, s{sGB}
    s_lshl2_add_u32 s{sT1}, s{sT1}, s{sT2}
    s_lshl_b32 s{sT1}, s{sT1}, 6
    s_add_u32 s{sT1}, s{sT1}, {L_STAT + 128}
    v_lshl_add_u32 v{vT3}, v{vT1}, 2, s{sT1}
    v_accvgpr_write_b32 a{cRSD}, v{vT3}
    s_mul_i32 s{sT0}, s{sW}, {2*57344}
    s_add_u32 s{sT0}, s{sT0}, s{sGB}
    s_lshr_b32 s{sT3}, s{sC}, 2
    s_add_u32 s{sT0}, s{sT0}, {G_H}
    s_lshl_b32 s{sH1}, s{sC}, 11
    s_add_u32 s{sH1}, s{sH1}, {24*1024}
    s_add_u32 s{sH1}, s{sH1}, s{sT0}
    s_add_u32 s{sH1b}, s{sH1}, 57344
    s_mul_i32 s{sT4}, s{sT3}, 6144
    s_add_u32 s{sT0}, s{sT0}, s{sT4}
    s_and_b32 s{sT4}, s{sC}, 3
    s_mul_i32 s{sH2}, s{sT4}, 3
    s_add_u32 s{sH2}, s{sH2}, 1
    s_lshr_b32 s{sH2}, s{sH2}, 1
    s_lshl_b32 s{sH2}, s{sH2}, 10
    s_add_u32 s{sH2}, s{sH2}, s{sT0}
    s_add_u32 s{sH2b}, s{sH2}, 57344
    s_lshr_b32 s{sH3}, s{sT4}, 1
    s_mul_i32 s{sH3}, s{sH3}, 3072
    s_and_b32 s{sH3b}, s{sT4}, 1
    s_lshl3_add_u32 s{sH3}, s{sH3b}, s{sH3}
    s_add_u32 s{sH3}, s{sH3}, 1024
    s_add_u32 s{sH3}, s{sH3}, s{sT0}
    s_add_u32 s{sH3b}, s{sH3}, 57344
    s_lshr_b32 s{sT0}, s{sW}, 1
    s_lshl2_add_u32 s{sT0}, s{sT0}, s{sT3}
    s_lshl_b32 s{sT0}, s{sT0}, 7
    s_lshl1_add_u32 s{sT2}, s{sT4}, s{sT2}
    s_lshl2_add_u32 s{sT0}, s{sT2}, s{sT0}
    s_add_u32 s{sFHo}, s{sT0}, s{sGB}
    """)
    k(f"""
    s_mul_i32 s{sT0}, s{sC}, {KVX_C}
    s_add_u32 s{sT0}, s{sT0}, {WS_KVX}
    s_lshl_b32 s{sT1}, s{sW}, 13
    s_add_u32 s{sKVC}, s{sT0}, s{sT1}
    s_lshl_b32 s{sT2}, s{sW}, 14
    s_lshl_b32 s{sT3}, s{sG}, 10
    s_lshl_b32 s{sT4}, s{sG}, 7
    s_cmp_lt_u32 s{sW}, 2
    s_cselect_b32 s{sT3}, s{sT3}, s{sT4}
    s_cselect_b32 s{sKM}, -1, 0x30003
    s_cselect_b32 s{sKM+1}, -1, 0x30003
    s_cselect_b64 vcc, -1, 0
    s_add_u32 s{sKVP}, s{sT0}, s{sT2}
    s_add_u32 s{sKVP}, s{sKVP}, s{sT3}
    s_cmp_eq_u32 s{sW}, 3
    s_cselect_b32 s{sKVP}, {OOB}, s{sKVP}
    v_lshlrev_b32 v{vT3}, 4, v{vT0}
    v_lshl_add_u32 v{vT3}, v{vT1}, 6, v{vT3}
    v_cndmask_b32 v{vT3}, v{vT3}, v{vL16}, vcc
    v_accvgpr_write_b32 a{cKVS}, v{vT3}
    v_lshlrev_b32 v{vT3}, 2, v{vL16}
    v_and_b32 v{vT3}, 0xf00, v{vT3}
    v_lshrrev_b32 v{vT3}, 1, v{vT3}
    v_and_b32 v{vWB}, 48, v{vL16}
    s_lshr_b32 s{sT2}, s{sW}, 1
    s_lshl_b32 s{sT2}, s{sT2}, 6
    s_add_u32 s{sT2}, s{sT2}, 32768
    s_sub_u32 s{sT2}, s{sT2}, s{sT1}
    v_add3_u32 v{vT3}, v{vT3}, v{vWB}, s{sT2}
    v_accvgpr_write_b32 a{cZL}, v{vT3}
    v_and_b32 v{vWB+5}, 1, v{vLANE}
    v_cndmask_b32 v{vWB+5}, v{vWB+5}, 0, vcc
    s_min_u32 s{sT5}, s{sW}, 2
    """)
    W = vWB
    k(f"""
    v_lshl_add_u32 v{XR}, v{vT1}, 8, v{vT2}
    v_add_u32 v{XR}, s{sL0}, v{XR}
    v_xor_b32 v{XR+1}, 64, v{XR}
    v_xor_b32 v{XR+2}, 0x80, v{XR}
    v_xor_b32 v{XR+3}, 0xc0, v{XR}
    v_and_b32 v{vT3}, 3, v{vLANE}
    v_lshlrev_b32 v{vT3}, 3, v{vT3}
    v_lshl_add_u32 v{vTR0}, v{vP}, 6, v{vT3}
    v_lshl_add_u32 v{vQ0}, v{vP}, 7, v{vT3}
    v_and_b32 v{vT3}, 1, v{vT0}
    v_lshlrev_b32 v{vT3}, 5, v{vT3}
    v_add_u32 v{vTR0}, v{vTR0}, v{vT3}
    v_xor_b32 v{vTR1}, 32, v{vTR0}
    v_bfe_u32 v{vT3}, v{vLANE}, 3, 2
    v_lshl_add_u32 v{vQ0}, v{vT3}, 5, v{vQ0}
    v_xor_b32 v{vQ1}, 32, v{vQ0}
    v_xor_b32 v{vQ2}, 64, v{vQ0}
    v_xor_b32 v{vQ3}, 0x60, v{vQ0}
    v_lshlrev_b32 v{W}, 2, v{vT1}
    v_accvgpr_write_b32 a{cP16}, v{W}
    v_mov_b32 v{W+1}, {BF1}
    v_accvgpr_write_b32 a{aONES}, v{W+1}
    v_accvgpr_write_b32 a{aONES+1}, v{W+1}
    v_accvgpr_write_b32 a{aONES+2}, v{W+1}
    v_accvgpr_write_b32 a{aONES+3}, v{W+1}
    v_add_u32 v{W+1}, {L_CS}, v{W}
    v_accvgpr_write_b32 a{cCSA}, v{W+1}
    v_and_b32 v{W+2}, 48, v{vLANE}
    v_add_u32 v{W+1}, {L_CS}, v{W+2}
    v_accvgpr_write_b32 a{cCSB}, v{W+1}
    v_lshlrev_b32 v{W+1}, 2, v{vT0}
    v_lshl_add_u32 v{W+1}, v{vT1}, 4, v{W+1}
    v_accvgpr_write_b32 a{cSTO}, v{W+1}
    s_lshl_b32 s{sT0}, s{sW}, 8
    s_add_u32 s{sT0}, s{sT0}, {L_STAT}
    v_add_u32 v{W+1}, s{sT0}, v{W}
    v_accvgpr_write_b32 a{cSTA}, v{W+1}
    v_and_b32 v{W+3}, 32, v{vLANE}
    v_lshl_add_u32 v{W+1}, v{W+3}, 1, v{W+1}
    v_accvgpr_write_b32 a{cSTW}, v{W+1}
    v_add_u32 v{W+1}, s{sT0}, v{W+2}
    v_accvgpr_write_b32 a{cSTB}, v{W+1}
    s_lshl_b32 s{sT0}, s{sW}, 10
    v_add_u32 v{W+1}, s{sT0}, v{vL16}
    v_add_u32 v{W+3}, {R3}, v{W+1}
    v_accvgpr_write_b32 a{cKW}, v{W+3}
    v_add_u32 v{W+3}, {R2 + 8192}, v{W+1}
    v_accvgpr_write_b32 a{cKW1}, v{W+3}
    s_lshl_b32 s{sT0}, s{sT5}, 12
    s_add_u32 s{sT0}, s{sT0}, {R3}
    v_add_u32 v{W+1}, s{sT0}, v{vL16}
    v_lshl_add_u32 v{W+1}, v{W+5}, 12, v{W+1}
    v_accvgpr_write_b32 a{cKR}, v{W+1}
    s_lshl_b32 s{sT0}, s{sT5}, 14
    s_add_u32 s{sT0}, s{sT0}, {R2 + 8192}
    v_add_u32 v{W+1}, s{sT0}, v{vL16}
    v_lshl_add_u32 v{W+1}, v{W+5}, 14, v{W+1}
    v_accvgpr_write_b32 a{cKR1}, v{W+1}
    v_add_u32 v{W+1}, {L_XB}, v{vL16}
    v_accvgpr_write_b32 a{cXR}, v{W+1}
    v_lshlrev_b32 v{W+3}, 3, v{vT0}
    v_add_u32 v{W+3}, {L_ZB}, v{W+3}
    v_accvgpr_write_b32 a{cZR}, v{W+3}
    """)
    k(f"""
    s_lshl_b32 s{sT0}, s{sW}, 10
    v_add_u32 v{W+1}, s{sT0}, v{W+1}
    v_accvgpr_write_b32 a{cXW}, v{W+1}
    v_and_b32 v{W+3}, 1, v{vT0}
    v_lshrrev_b32 v{W+4}, 1, v{vT0}
    v_lshl_add_u32 v{W+3}, v{W+3}, 1, v{W+4}
    v_and_b32 v{W+4}, 3, v{vLANE}
    v_lshl_add_u32 v{W+3}, v{W+4}, 2, v{W+3}
    s_lshr_b32 s{sT0}, s{sW}, 1
    s_lshl_b32 s{sT0}, s{sT0}, 5
    s_add_u32 s{sT0}, s{sT0}, {L_ZB}
    v_lshl_add_u32 v{W+3}, v{W+3}, 1, s{sT0}
    v_accvgpr_write_b32 a{cZW}, v{W+3}
    """)
    for j in range(4):
        k(f"s_add_u32 s{sT0}, s{sW}, {j}")
        k(f"s_and_b32 s{sT0}, s{sT0}, 3")
        k(f"s_mul_i32 s{sT0}, s{sT0}, 12288")
        k(f"s_add_u32 s{sT0}, s{sT0}, {L_RED + max(j-1, 0)*4096}")
        k(f"v_add_u32 v{W+1}, s{sT0}, v{vL16}")
        k(f"v_accvgpr_write_b32 a{cRD0+j}, v{W+1}")
    k(f"""
    s_lshl2_add_u32 s{sT0}, s{sDH}, s{sW}
    s_lshl3_add_u32 s{sT0}, s{sG}, s{sT0}
    s_lshl_b32 s{sT0}, s{sT0}, 14
    s_lshl_b32 s{sT1}, s{sCT}, 7
    s_add_u32 s{sT0}, s{sT0}, s{sT1}
    v_lshl_add_u32 v{W+1}, v{vT1}, 10, s{sT0}
    v_and_b32 v{W+3}, 1, v{vT0}
    v_lshl_add_u32 v{W+1}, v{W+3}, 5, v{W+1}
    v_lshrrev_b32 v{W+3}, 1, v{vT0}
    v_lshl_add_u32 v{W+1}, v{W+3}, 4, v{W+1}
    v_accvgpr_write_b32 a{cOUT}, v{W+1}
    """)

    def xread(q):
        k.vm_wait(("xs", q))
        for ksl in range(4):
            for rb in range(2):
                k.lds(f"ds_read_b128 {vr(act(4*q+ksl, rb),4)}, v{XR+ksl} offset:{(q%2)*8192 + rb*4096}", ("xr", q))

    SUM0, SQ0, SUM1, SQ1 = vACC + 56, vACC + 57, vACC + 58, vACC + 59
    SUMA, SQA = vACC + 48, vACC + 56
    ONES = vPQ + 4
    NM_A, RS_A, RL_A = vACC + 60, vACC + 62, vACC + 56
    NM_B, RS_B, RL_B = vACC + 32, vACC + 40, vACC + 48
    STG = vACC + 48

    def own_stats():
        a, b, c, d = OWN + 8, OWN + 9, OWN + 10, OWN + 11
        k(f"v_mov_b32 v{OWN+12}, {BF1}")
        k.vm_wait("own")
        for j in range(4):
            r0, r1 = OWN + j, OWN + 4 + j
            k(f"v_dot2_f32_bf16 v{a}, v{OWN+12}, v{r0}, {'0' if j == 0 else f'v{a}'}")
            k(f"v_dot2_f32_bf16 v{c}, v{OWN+12}, v{r1}, {'0' if j == 0 else f'v{c}'}")
            k(f"v_dot2_f32_bf16 v{b}, v{r0}, v{r0}, {'0' if j == 0 else f'v{b}'}")
            k(f"v_dot2_f32_bf16 v{d}, v{r1}, v{r1}, {'0' if j == 0 else f'v{d}'}")
        k(f"""
        s_waitcnt lgkmcnt(0)
        s_mul_i32 s{sTAG}, s{sEP}, 0x9E3779B1
        s_add_u32 s{sTAG}, s{sTAG}, 0x7F4A7C15
        s_add_u32 s{sT8}, s{sEP}, 1
        s_and_b32 s{sT8}, s{sT8}, 0xff
        v_permlane32_swap_b32 v{a}, v{c}
        v_permlane32_swap_b32 v{b}, v{d}
        v_add_f32 v{a}, v{a}, v{c}
        v_add_f32 v{b}, v{b}, v{d}
        v_mov_b32 v{c}, v{a}
        v_mov_b32 v{d}, v{b}
        s_nop 1
        v_permlane16_swap_b32 v{a}, v{c}
        v_permlane16_swap_b32 v{b}, v{d}
        v_add_f32 v{a}, v{a}, v{c}
        v_add_f32 v{b}, v{b}, v{d}
        """)
        for sh in (8, 4, 2, 1):
            k("s_nop 0")
            k(f"v_add_f32_dpp v{a}, v{a}, v{a} row_ror:{sh} row_mask:0xf bank_mask:0xf")
            k(f"v_add_f32_dpp v{b}, v{b}, v{b} row_ror:{sh} row_mask:0xf bank_mask:0xf")
        k(f"""
        v_mul_f32 v{a}, 0xbb000000, v{a}
        v_mul_f32 v{b}, 0x3b000000, v{b}
        v_fma_f32 v{b}, -v{a}, v{a}, v{b}
        v_max_f32 v{b}, 0, v{b}
        v_add_f32 v{b}, 0x3727c5ac, v{b}
        v_rsq_f32 v{b}, v{b}
        v_mov_b32 v{c}, s{sTAG}
        v_lshrrev_b32 v{vT3}, 1, v{vLANE}
        s_lshl4_add_u32 s{sT2}, s{sW}, s{sC}
        s_lshl_b32 s{sT2}, s{sT2}, 7
        s_add_u32 s{sT2}, s{sT2}, s{sGB}
        s_add_u32 s{sT2}, s{sT2}, {G_ST0}
        s_mov_b32 exec_lo, 1
        s_mov_b32 exec_hi, 1
        """)
        k.vmem(f"buffer_store_dwordx4 {vr(a,4)}, v{vT3}, {srd(S_WS)}, s{sT2} offen sc1", "ownst")
        k("s_mov_b64 exec, -1")

    S0 = vACC + 52

    def st0_issue():
        with k.atomic():
            k(f"v_and_b32 v{vT0}, 30, v{vLANE}")
            k(f"v_lshlrev_b32 v{vT0}, 6, v{vT0}")
            k(f"v_and_b32 v{vT1}, 16, v{vL16}")
            k(f"v_add_u32 v{vT0}, v{vT0}, v{vT1}")
            k(f"s_add_u32 s{sT4}, s{sSTg}, {G_ST0}")
            k.vmem(f"buffer_load_dwordx4 {vr(S0,4)}, v{vT0}, {srd(S_WS)}, s{sT4} offen sc1", "st0")

    def st0_use():
        lp, ok = k.label("L_s0"), k.label("L_s0ok")
        with k.atomic():
            k.vm_wait("st0")
            k(f"{lp}:")
            k(f"v_cmp_ne_u32 vcc, s{sTAG}, v{S0+2}")
            k(f"s_cbranch_vccz {ok}")
            k(f"buffer_load_dwordx4 {vr(S0,4)}, v{vT0}, {srd(S_WS)}, s{sT4} offen sc1")
            k("s_waitcnt vmcnt(0)")
            k(f"s_sub_u32 s{sBUD}, s{sBUD}, 1")
            k(f"s_cbranch_scc0 {lp}")
            k(f"s_mov_b32 s{sBUD}, 0")
            k(f"{ok}:")
        k.get(vT0, cSTA)
        k(f"v_and_b32 v{vT1}, 16, v{vLANE}")
        k(f"v_lshl_add_u32 v{vT1}, v{vT1}, 2, v{vT0}")
        k.lds(f"ds_write2_b32 v{vT1}, v{S0}, v{S0+1} offset0:0 offset1:32")
        k.lds(f"ds_read2_b32 {vr(NM_A,2)}, v{vT0} offset0:0 offset1:16", "sta")
        k.lds(f"ds_read2_b32 {vr(RS_A,2)}, v{vT0} offset0:32 offset1:48", "sta")

    def stats_finalize(need_rs):
        k.get(vT1, cSTW)
        k.get(vT0, cSTA)
        k(f"""
        v_permlane32_swap_b32 v{SUM0}, v{SUM1}
        v_permlane32_swap_b32 v{SQ0}, v{SQ1}
        v_add_f32 v{SUM0}, v{SUM0}, v{SUM1}
        v_add_f32 v{SQ0}, v{SQ0}, v{SQ1}
        v_mov_b32 v{SUM1}, v{SUM0}
        v_mov_b32 v{SQ1}, v{SQ0}
        s_nop 0
        v_permlane16_swap_b32 v{SUM0}, v{SUM1}
        v_permlane16_swap_b32 v{SQ0}, v{SQ1}
        v_add_f32 v{SUM0}, v{SUM0}, v{SUM1}
        v_add_f32 v{SQ0}, v{SQ0}, v{SQ1}
        v_mul_f32 v{SUM0}, 0xbb000000, v{SUM0}
        v_mul_f32 v{SQ0}, 0x3b000000, v{SQ0}
        v_fma_f32 v{SQ0}, -v{SUM0}, v{SUM0}, v{SQ0}
        v_max_f32 v{SQ0}, 0, v{SQ0}
        v_add_f32 v{SQ0}, 0x3727c5ac, v{SQ0}
        v_rsq_f32 v{SQ0}, v{SQ0}
        s_nop 0
        """)
        k.lds(f"ds_write2_b32 v{vT1}, v{SUM0}, v{SQ0} offset0:0 offset1:32")
        k.lds(f"ds_read2_b32 {vr(NM_A,2)}, v{vT0} offset0:0 offset1:16", "sta")
        if need_rs:
            k.lds(f"ds_read2_b32 {vr(RS_A,2)}, v{vT0} offset0:32 offset1:48", "sta")

    def stats_b():
        k.get(vT1, cSTB)
        for rb in range(2):
            k.lds(f"ds_read_b128 {vr(NM_B+4*rb,4)}, v{vT1} offset:{64*rb}", "sta")
            k.lds(f"ds_read_b128 {vr(RS_B+4*rb,4)}, v{vT1} offset:{128+64*rb}", "sta")

    def stats_scale():
        k.ds_wait("sta")
        for j in range(8):
            k(f"v_mul_f32 v{RL_B+j}, 0x3fb8aa3b, v{RS_B+j}")
        for j in range(2):
            k(f"v_mul_f32 v{RL_A+j}, 0x3fb8aa3b, v{RS_A+j}")

    def set_ones(r):
        for j in range(4):
            k(f"v_mov_b32 v{r+j}, {BF1}")

    def cs_put(first, sblk):
        k.get(vT0, cCSA)
        k(f"s_lshl_b32 s{sT5}, s{sblk}, 6")
        k(f"v_add_u32 v{vT0}, s{sT5}, v{vT0}")
        k.lds(f"ds_write_b32 v{vT0}, a{aCS} offset:{first*64}")

    def phi_block(acc, nm, cs, rl, rs, dst, tmp, lay):
        s1, s2, s3, s4, s5 = [], [], [], [], []
        for p in range(2):
            a2 = vr(acc + 2*p, 2)
            t2 = vr(tmp + 2*p, 2)
            if lay == "b":
                c2, m = bcast(cs, 1, 3)
                s1.append(f"v_pk_fma_f32 {a2}, {vr(nm+2*p,2)}, {c2}, {a2}{m}")
                s2.append(f"v_pk_mul_f32 {t2}, {a2}, {vr(rl+2*p,2)}")
                s4.append(f"v_pk_fma_f32 {a2}, {a2}, {vr(rs+2*p,2)}, {t2}")
            else:
                c2, m = bcast(nm, 1, 3)
                s1.append(f"v_pk_fma_f32 {a2}, {vr(cs+2*p,2)}, {c2}, {a2}{m}")
                c2, m = bcast(rl, 1, 2)
                s2.append(f"v_pk_mul_f32 {t2}, {a2}, {c2}{m}")
                c2, m = bcast(rs, 1, 3)
                s4.append(f"v_pk_fma_f32 {a2}, {a2}, {c2}, {t2}{m}")
            for j in range(2):
                s3.append(f"v_exp_f32 v{tmp+2*p+j}, v{tmp+2*p+j} clamp")
            s5.append(f"v_pk_add_f32 {a2}, {a2}, s[{sEPS}:{sEPS+1}]")
        for s in s1 + s2 + s3:
            k(s)
        for j in range(4):
            k(f"v_max_f32 v{acc+j}, 0, v{acc+j}")
        for s in s4 + s5:
            k(s)
        for p in range(2):
            k(f"v_cvt_pk_bf16_f32 v{dst+p}, v{acc+2*p}, v{acc+2*p+1}")

    def act_loads(bufoff):
        for ks in range(16):
            for rb in range(2):
                with k.atomic():
                    if ks % 4 == 0:
                        k(f"s_add_u32 s{sT2+rb}, s{sACT+rb}, {bufoff + ks*1024}")
                    k.vmem(f"buffer_load_dwordx4 {vr(act(ks,rb),4)}, v{vL16}, {srd(S_WS)}, s{sT2+rb} offen offset:{(ks%4)*1024} sc1",
                           ("act", ks, rb))

    def stat_loads(stoff):
        k(f"s_add_u32 s{sT4}, s{sSTg}, {stoff}")
        for j in range(2):
            k.vmem(f"buffer_load_dwordx4 {vr(STG+4*j,4)}, v{vL16}, {srd(S_WS)}, s{sT4} offen offset:{j*1024} sc1", "stg")

    def stat_sum():
        k.vm_wait("stg")
        for j in range(4):
            k(f"v_add_f32 v{SUM0+j}, v{STG+j}, v{STG+4+j}")

    def mf2(acc, ks, sw, wait, first=None):
        return [(acc + 4 * rb, act(ks, rb), sw, (ks == 0) if first is None else first,
                 (("act", ks, 1) if ks else ("act", ks, rb)) if wait else None) for rb in range(2)]

    def wo_raw():
        with k.atomic():
            quad_lane(1024)
            k(f"s_lshl_b32 s{sD0}, s{sW}, 17")
            k(f"s_lshl_b32 s{sD1}, s{sCT}, 7")
            k(f"s_add_u32 s{sD0}, s{sD0}, s{sD1}")
            k(f"s_lshl_b32 s{sL0}, s{sW}, 14")
        for j in range(16):
            k.dma(S_WO, vDM, sD0, j * 8 * 1024, sL0, R0 + j * 1024, "wo")

    def w1c1_raw():
        with k.atomic():
            quad_lane(3584, tmp=vACT + 127)
            k(f"s_lshr_b32 s{sD0}, s{sC}, 2")
            k(f"s_mul_i32 s{sD0}, s{sD0}, 896")
            k(f"s_and_b32 s{sD1}, s{sC}, 3")
            k(f"s_lshl_b32 s{sD1}, s{sD1}, 7")
            k(f"s_add_u32 s{sD0}, s{sD0}, s{sD1}")
            k(f"s_mul_i32 s{sD1}, s{sW}, {64*3584}")
            k(f"s_add_u32 s{sD0}, s{sD0}, s{sD1}")
            k(f"s_lshl_b32 s{sL0}, s{sW}, 13")
        for half in range(2):
            for j in range(8):
                k.dma(S_W1, vDM, sD0, (half * 256 + j * 8) * 3584, sL0, R1 + half * 32768 + j * 1024, "w1a")

    def lin_dma(src, dst, n, tag, shared=False):
        for j in range(n):
            with k.atomic():
                if j == 0:
                    k(f"s_mul_i32 s{sL0}, s{sW}, {n*1024}")
                    k(f"s_add_u32 s{sD0}, s{sL0}, s{sPKB}")
                    if shared:
                        k(f"s_mul_i32 s{sD1}, s{sDH}, {8*PK_SZ}")
                        k(f"s_sub_u32 s{sD0}, s{sD0}, s{sD1}")
                if j % 4 == 0:
                    k(f"s_add_u32 m0, s{sL0}, {dst + j*1024}")
                    k(f"s_add_u32 s{sD1}, s{sD0}, {src + j*1024}")
                k.vmem(f"buffer_load_dwordx4 v{vL16}, {srd(S_WS)}, s{sD1} offen offset:{(j%4)*1024} sc1 lds", tag)

    def publish_x(bufoff, stoff, floff, pay_sc1):
        k(f"s_add_u32 s{sT1}, s{sTILE}, {bufoff}")
        k.stores([f"buffer_store_dwordx4 {vr(vRES+4*s,4)}, v{vL16}, {srd(S_WS)}, s{sT1} offen offset:{s*1024}" for s in range(2)], pay_sc1)
        a, b, c, d = vT0, vT1, vT2, vT3
        for j in range(4):
            r0, r1 = vRES + j, vRES + 4 + j
            if j == 0:
                k(f"v_mov_b32 v{vWB+9}, {BF1}")
                k(f"v_dot2_f32_bf16 v{b}, v{r0}, v{r0}, 0")
                k(f"v_dot2_f32_bf16 v{d}, v{r1}, v{r1}, 0")
                k(f"v_dot2_f32_bf16 v{a}, v{vWB+9}, v{r0}, 0")
                k(f"v_dot2_f32_bf16 v{c}, v{vWB+9}, v{r1}, 0")
            else:
                k(f"v_dot2_f32_bf16 v{b}, v{r0}, v{r0}, v{b}")
                k(f"v_dot2_f32_bf16 v{d}, v{r1}, v{r1}, v{d}")
                k(f"v_dot2_f32_bf16 v{a}, v{vWB+9}, v{r0}, v{a}")
                k(f"v_dot2_f32_bf16 v{c}, v{vWB+9}, v{r1}, v{c}")
        k.get(vWB + 8, cSTO)
        k(f"""
        s_add_u32 s{sT3}, s{sSTo}, {stoff}
        v_add_f32 v{b}, v{b}, v{d}
        v_add_f32 v{a}, v{a}, v{c}
        s_nop 1
        v_permlane16_swap_b32 v{a}, v{b}
        v_add_f32 v{a}, v{a}, v{b}
        v_mov_b32 v{b}, v{a}
        s_nop 1
        v_permlane32_swap_b32 v{a}, v{b}
        v_add_f32 v{c}, v{a}, v{b}
        s_mov_b32 exec_hi, 0
        """)
        k.stores([f"buffer_store_dword v{c}, v{vWB+8}, {srd(S_WS)}, s{sT3} offen"], False)
        k("s_mov_b64 exec, -1")
        k.poll_prep(15)

    def unpack_res(dst):
        for f in range(4):
            for p in range(2):
                r = vRES + 2*f + p
                k(f"v_lshlrev_b32 v{dst+4*f+2*p}, 16, v{r}")
                k(f"v_and_b32 v{dst+4*f+2*p+1}, 0xffff0000, v{r}")

    def misc_l1():
        k(f"""
        s_add_u32 s{sT2}, s{sTAG}, s{sXCC}
        s_add_u32 s{sT2}, s{sT2}, 2
        v_mov_b32 v{vT1}, s{sT2}
        s_lshl4_add_u32 s{sT2}, s{sG}, s{sC}
        s_lshl_b32 s{sT2}, s{sT2}, 7
        s_add_u32 s{sT2}, s{sT2}, {WS_XID}
        """)
        with k.atomic():
            k(f"s_cmp_lg_u32 s{sW}, 0")
            k(f"s_cselect_b32 s{sT2}, {OOB}, s{sT2}")
            k("s_mov_b64 exec, 1")
            k.vmem(f"buffer_store_dword v{vT1}, v{vL16}, {srd(S_WS)}, s{sT2} offen sc1", "xid")
            k("s_mov_b64 exec, -1")

    def res_load():
        k.get(vT0, cOUT)
        for s_ in range(2):
            k.vmem(f"buffer_load_dwordx4 {vr(vRES+4*s_,4)}, v{vT0}, {srd(S_X)}, 0 offen offset:{64*s_}", "res")

    def touch(kind, vSP=vSP):
        with k.atomic():
            k(f"s_lshl2_add_u32 s{sD3}, s{sC}, s{sW}")
            sD2 = sD3
            if kind == "h":
                k(f"s_mul_i32 s{sD2}, s{sD2}, 7168")
                k(f"s_add_u32 s{sD2}, s{sD2}, s{sGB}")
                k(f"s_add_u32 s{sD2}, s{sD2}, {G_H}")
                k(f"v_lshlrev_b32 v{vSP}, 7, v{vLANE}")
                k("s_mov_b32 exec_hi, 0xffffff")
                k.vmem(f"buffer_load_dword a{aDUM}, v{vSP}, {srd(S_WS)}, s{sD2} offen sc1", "touch")
                k("s_mov_b32 exec_hi, -1")
            else:
                k(f"v_lshlrev_b32 v{vSP}, 7, v{vLANE}")
                k(f"s_lshl_b32 s{sT5}, s{sD2}, 11")
                k(f"s_add_u32 s{sT5}, s{sT5}, s{sGB}")
                k(f"s_add_u32 s{sT5}, s{sT5}, {G_X1}")
                k("s_mov_b64 exec, 0xffff")
                k.vmem(f"buffer_load_dword a{aDUM}, v{vSP}, {srd(S_WS)}, s{sT5} offen sc1", "touch")
                k(f"s_lshl_b32 s{sD2}, s{sD2}, 7")
                k(f"s_add_u32 s{sD2}, s{sD2}, s{sGB}")
                k("s_mov_b64 exec, 1")
                k(f"s_add_u32 s{sD2}, s{sD2}, {G_ST1}")
                k.vmem(f"buffer_load_dword a{aDUM}, v{vSP}, {srd(S_WS)}, s{sD2} offen sc1", "touch")
                k("s_mov_b64 exec, -1")

    def touch_early(mode):
        with k.atomic():
            k(f"s_lshl2_add_u32 s{sJ0}, s{sC}, s{sW}")
            vT3 = vACT + 126
            k(f"v_lshlrev_b32 v{vT3}, 7, v{vLANE}")
            if mode & 1:
                k(f"s_lshl_b32 s{sT5}, s{sJ0}, 11")
                k(f"s_add_u32 s{sT5}, s{sT5}, s{sGB}")
                k(f"s_add_u32 s{sT5}, s{sT5}, {G_X1}")
                k("s_mov_b64 exec, 0xffff")
                k.vmem(f"buffer_load_dword a{aDUM}, v{vT3}, {srd(S_WS)}, s{sT5} offen sc1", "touch")
            if mode & 6:
                n, first = {2: (16, 0), 4: (8, 16), 6: (24, 0)}[mode & 6]
                k(f"s_lshr_b32 s{sT5}, s{sJ0}, 3")
                k(f"s_mul_i32 s{sT5}, s{sT5}, 57344")
                k(f"s_and_b32 s{sJ0}, s{sJ0}, 7")
                k(f"s_mul_i32 s{sJ0}, s{sJ0}, {n*128}")
                k(f"s_add_u32 s{sT5}, s{sT5}, s{sJ0}")
                k(f"s_add_u32 s{sT5}, s{sT5}, s{sGB}")
                k(f"s_add_u32 s{sT5}, s{sT5}, {G_H + first*1024}")
                k(f"s_mov_b64 exec, {(1 << n) - 1}")
                k.vmem(f"buffer_load_dword a{aDUM}, v{vT3}, {srd(S_WS)}, s{sT5} offen sc1", "touch")
            k("s_mov_b64 exec, -1")

    def packN_issue():
        with k.atomic():
            quad_lane(1024)
            k(f"""
            s_movk_i32 s{sD2}, 8192
            s_lshl_b32 s{sD0}, s{sG}, 15
            s_lshl_b32 s{sD1}, s{sCT}, 7
            s_add_u32 s{sD0}, s{sD0}, s{sD1}
            s_lshl_b32 s{sPDA}, s{sG}, 12
            s_add_u32 s{sPDA}, s{sPDA}, s{sPKB}
            s_add_u32 s{sPDA}, s{sPDA}, {PK_WO}
            s_lshl2_add_u32 s{sD1}, s{sDH}, s{sW}
            s_cmp_lg_u32 s{sD1}, 3
            s_cbranch_scc1 L_nskip
            """)
            for j in range(4):
                dma_raw(S_WO, j * 1024, j == 0)
            k("L_nskip:")

    def packN_finish(T):
        k(f"s_lshl2_add_u32 s{sD1}, s{sDH}, s{sW}")
        k(f"s_cmp_lg_u32 s{sD1}, 3")
        k("s_cbranch_scc1 L_nfskip")
        for f in range(4):
            k(f"v_add_u32 v{T+16+f}, {L_XST + 3*16384}, v{vQ0+f}")
        for f in range(4):
            for hh in range(2):
                k(f"ds_read_b64_tr_b16 {vr(T+4*f+2*hh,2)}, v{T+16+f} offset:{hh*2048}")
        k("s_waitcnt lgkmcnt(0)")
        for f in range(4):
            k(f"buffer_store_dwordx4 {vr(T+4*f,4)}, v{vL16}, {srd(S_WS)}, s{sPDA} offen offset:{f*1024} sc1")
        k("L_nfskip:")

    def pack_finish(T, base, shift, quad_if_3, tag="pk", sPDA=sPDA):
        lb, le = k.label("L_qb"), k.label("L_qe")
        k(f"s_lshl_b32 s{sT5}, s{sW}, {shift}")
        k(f"s_add_u32 s{sT5}, s{sT5}, {base}")
        k.vm_wait(tag)
        k.ds_all()
        k(f"s_cmp_eq_u32 s{sW}, 3")
        k(f"s_cbranch_scc{0 if quad_if_3 else 1} {lb}")
        for f in range(4):
            k(f"v_add_u32 v{T+16+f}, s{sT5}, v{vQ0+f}")
        for f in range(4):
            for hh in range(2):
                k(f"ds_read_b64_tr_b16 {vr(T+4*f+2*hh,2)}, v{T+16+f} offset:{hh*2048}")
        k("s_waitcnt lgkmcnt(0)")
        for f in range(4):
            k(f"buffer_store_dwordx4 {vr(T+4*f,4)}, v{vL16}, {srd(S_WS)}, s{sPDA} offen offset:{f*1024} sc1")
        k(f"s_branch {le}")
        k(f"{lb}:")
        k(f"v_add_u32 v{T+16}, s{sT5}, v{vTR0}")
        k(f"v_add_u32 v{T+17}, s{sT5}, v{vTR1}")
        k(f"v_lshl_add_u32 v{T+18}, v{vLANE}, 3, s{sT5}")
        for f in range(2):
            for hh in range(2):
                k(f"ds_read_b64_tr_b16 {vr(T+4*f+2*hh,2)}, v{T+16+f} offset:{hh*1024}")
        nf = 2 if quad_if_3 else 3
        if nf == 3:
            for hh in range(2):
                k(f"ds_read_b64_tr_b16 {vr(T+8+2*hh,2)}, v{T+18} offset:{2048+hh*512}")
        k("s_waitcnt lgkmcnt(0)")
        for f in range(nf):
            k(f"buffer_store_dwordx4 {vr(T+4*f,4)}, v{vL16}, {srd(S_WS)}, s{sPDA} offen offset:{f*1024} sc1")
        if nf == 3:
            k(f"buffer_load_dword a{aDUM}, v{vL16}, {srd(S_W1)}, s{S_W1+2} offen")
            nf = 4
        k(f"{le}:")
        k.vm_note(nf, "pst")

    def pack_flag(off=0):
        k(f"""
        s_lshl_b32 s{sT5}, s2, 7
        s_add_u32 s{sT5}, s{sT5}, {WS_PD + off}
        s_cmp_lg_u32 s{sW}, 0
        s_cselect_b32 s{sT5}, {OOB}, s{sT5}
        v_mov_b32 v{vT1}, s{sTAG}
        s_mov_b64 exec, 1
        """)
        k.vmem(f"buffer_store_dword v{vT1}, v{vL16}, {srd(S_WS)}, s{sT5} offen sc1")
        k("s_mov_b64 exec, -1")

    def pack_check_issue(off, va, vd, sb):
        with k.atomic():
            k(f"v_and_b32 v{va}, 1, v{vLANE}")
            k(f"v_lshlrev_b32 v{va}, 7, v{va}")
            k(f"v_lshrrev_b32 v{vd}, 1, v{vLANE}")
            k(f"s_lshl_b32 s{sT5}, s{sC}, 3")
            k(f"v_add3_u32 v{va}, v{va}, v{vd}, s{sT5}")
            k(f"v_min_u32 v{vd}, 29, v{vLANE}")
            k(f"s_mul_i32 s{sT5}, s{sW}, 56")
            k(f"s_lshr_b32 s{sb}, s{sCT}, 1")
            k(f"s_add_u32 s{sT5}, s{sT5}, s{sb}")
            k(f"s_sub_u32 s{sT5}, s{sT5}, 64")
            k(f"v_lshl_add_u32 v{vd}, v{vd}, 2, s{sT5}")
            k(f"v_cmp_gt_u32 vcc, 16, v{vLANE}")
            k(f"s_mov_b32 s{sb}, {WS_PD + off}")
            k("s_nop 0")
            k(f"v_cndmask_b32 v{va}, v{vd}, v{va}, vcc")
            k(f"v_lshlrev_b32 v{va}, 7, v{va}")
            k.vmem(f"buffer_load_dword v{vd}, v{va}, {srd(S_WS)}, s{sb} offen sc1", "pc")

    def pack_check(va, vd, sb):
        lp, ok = k.label("L_pc"), k.label("L_pcok")
        with k.atomic():
            k.vm_wait("pc")
            k(f"{lp}:")
            k(f"v_cmp_ne_u32 vcc, s{sTAG}, v{vd}")
            k(f"s_cbranch_vccz {ok}")
            k(f"buffer_load_dword v{vd}, v{va}, {srd(S_WS)}, s{sb} offen sc1")
            k("s_waitcnt vmcnt(0)")
            k(f"s_sub_u32 s{sBUD}, s{sBUD}, 1")
            k(f"s_cbranch_scc0 {lp}")
            k(f"s_mov_b32 s{sBUD}, 0")
            k(f"{ok}:")

    aPK = 128

    def park_addr(va, base, shift):
        k(f"v_bfe_u32 v{va}, v{vLANE}, 4, 1")
        k(f"v_lshlrev_b32 v{va}, 10, v{va}")
        k(f"v_lshrrev_b32 v{va+1}, 5, v{vLANE}")
        k(f"v_mul_u32_u24 v{va+1}, 0x120, v{va+1}")
        k(f"v_add_u32 v{va}, v{va}, v{va+1}")
        k(f"v_and_b32 v{va+1}, 0xd8, v{vTR0}")
        k(f"s_lshl_b32 s{sT5}, s{sW}, {shift}")
        k(f"s_add_u32 s{sT5}, s{sT5}, {base}")
        k(f"v_add3_u32 v{va}, v{va}, v{va+1}, s{sT5}")
        k(f"v_xor_b32 v{va+1}, 32, v{va}")

    def park_kv(va):
        for r in range(4):
            for blk in range(4):
                for hh in range(2):
                    k.lds(f"ds_read_b64_tr_b16 {ar(aPK + 16*r + 4*blk + 2*hh, 2)}, v{va + (blk & 1)} offset:{r*16384 + (blk >> 1)*2048 + hh*512}")

    def park_q(va):
        for r in range(4):
            for b in range(2):
                for hh in range(2):
                    k.lds(f"ds_read_b64_tr_b16 {ar(aPK + 64 + 8*r + 4*b + 2*hh, 2)}, v{va + b} offset:{r*8192 + hh*512}")

    def unpark(va):
        with k.atomic():
            k(f"s_lshr_b32 s{sD0}, s{sC}, 1")
            k(f"s_xor_b32 s{sD0}, s{sD0}, s{sG}")
            k(f"s_and_b32 s{sD0}, s{sD0}, 1")
            k(f"s_and_b32 s{sD1}, s{sC}, 1")
            k(f"s_lshl1_add_u32 s{sD0}, s{sD0}, s{sD1}")
        for kind in range(2):
            for r in range(4):
                for b in range(2 if kind else 4):
                    with k.atomic():
                        if b == 0:
                            k(f"s_add_u32 s{sD1}, s{sD0}, {r}")
                            k(f"s_and_b32 s{sD1}, s{sD1}, 3")
                            k(f"s_lshl2_add_u32 s{sD1}, s{sD1}, s{sW}")
                            k(f"s_lshl_b32 s{sD1}, s{sD1}, {11 if kind else 12}")
                            if kind:
                                k(f"s_add_u32 s{sD1}, s{sD1}, {R1}")
                            k(f"v_add_u32 v{va}, s{sD1}, v{vL16}")
                        j = 16 + 2 * r + b if kind else 4 * r + b
                        k.lds(f"ds_write_b128 v{va}, {ar(aPK + 4*j, 4)} offset:{b*1024}", ("up", j // 4))

    def wq_raw():
        k(f"s_lshl_b32 s{sL1}, s{sW}, 11")
        with k.atomic():
            k(f"v_and_b32 v{vT2}, 3, v{vP}")
            k(f"v_lshrrev_b32 v{vDM}, 4, v{vLANE}")
            k(f"v_lshl_add_u32 v{vT2}, v{vDM}, 3, v{vT2}")
            k(f"s_movk_i32 s{sD3}, 3072")
            k(f"v_mad_u32_u24 v{vDM}, v{vT2}, s{sD3}, v{vCH}")
        for r in range(4):
            for hh in range(2):
                k.dma(S_WQKV, vDM, sRB + r, hh * 4 * 3072, sL1, R1 + r * 8192 + hh * 1024, "wq")

    def async_check(tag, soff, imm):
        ok = k.label("L_aok")
        with k.atomic():
            k.vm_wait(tag)
            k(f"v_cmp_ne_u32 vcc, s{sTAG}, v{vT0}")
            k(f"s_cbranch_vccz {ok}")
            k.save_vm()
            k.poll(soff, imm, False)
            k.restore_vm()
            k(f"{ok}:")

    CSK = vT0
    gA = None
    for layer in range(1 if o.get("one") else 2):
        L1 = layer == 0
        sc = o.get("sc1", 0x05)
        psc = lambda i: bool(sc >> (4 * layer + i) & 1)
        PRE = o.get("pre", 8)

        def kv_consts():
            k.get(vPQ, cCSA)
            k.lds(f"ds_read2_b32 {vr(CSK,2)}, v{vPQ} offset0:0 offset1:16", "cs")
            k.lds(f"ds_read2_b32 {vr(CSK+2,2)}, v{vPQ} offset0:32 offset1:48", "cs")
        if L1:
            CSA = vACC + 32
            k(f"s_and_b32 s{sT0}, s{sW}, 1")
            k(f"s_lshl_b32 s{sT0}, s{sT0}, 5")
            k(f"v_xor_b32 v{vPQ+3}, s{sT0}, v{vTR0}")
            k(f"s_lshr_b32 s{sT0}, s{sW}, 1")
            k(f"s_lshl_b32 s{sT0}, s{sT0}, 11")
            k(f"v_add_u32 v{vPQ+2}, s{sT0}, v{vPQ+3}")
            own_stats()
            xslot(0); xslot(1, range(o.get("x1pre", 4)))
            pack_finish(vACT + 64, R1, 12, False, "pu", sPDB)
            xread(0)
            def rnd_begin(r):
                k.vm_wait(("wkv", r))
                k.barrier(True)
                fr = []
                for ks in range(4 * r, 4 * r + 4):
                    fr.append(dict(addr=vPQ + 2, offs=(R0 + ks * 4096, R0 + ks * 4096 + 1024), mf=[(None, None, False, ks == 0, None)]))
                for ks in range(4 * r, 4 * r + 4):
                    for pr in range(2):
                        for b in range(2):
                            base = R0 + ks * 4096 + pr * 2048
                            fr.append(dict(addr=(vTR0, vTR1)[b], offs=(base, base + 1024), mf=mf2(vACC + 16 * pr + 8 * b, ks, False, False)))
                return k.gemm_begin(fr)
            wq = k.rec(wq_raw)
            xslot(1, range(o.get("x1pre", 4), 8))
            g = rnd_begin(0)
            k.stamp("x0")
            f = {}; spread(f, k.rec(lambda: (wkv_raw(1), xslot(2))), 0, 3); spread(f, k.rec(lambda: xread(1)), 30, 1, 2); k.gemm_run(g, f)
            k.stamp("r0")
            g = rnd_begin(1)
            f = {}; spread(f, k.rec(pack_flag), 1, 0); spread(f, k.rec(lambda: (wkv_raw(2), xslot(3))), 0, 3); spread(f, k.rec(lambda: xread(2)), 31, 1, 2); k.gemm_run(g, f)
            k.stamp("r1")
            g = rnd_begin(2)
            nq = o.get("nq", 6)
            f = {}; spread(f, k.rec(lambda: (wkv_raw(3), st0_issue())) + wq[:nq], 0, 3); spread(f, k.rec(lambda: xread(3)), 31, 1, 2); k.gemm_run(g, f)
            k.stamp("r2")
            g = rnd_begin(3)
            f = {}
            spread(f, k.rec(st0_use), 0, 1)
            spread(f, k.rec(lambda: cs_put(0, sW)), 8, 0)
            spread(f, k.rec(stats_b), 10, 1)
            spread(f, k.rec(stats_scale), 24, 1)
            spread(f, k.rec(lambda: park_addr(vRES + 2, R0, 12)), 15, 0)
            spread(f, wq[nq:] + k.rec(packN_issue) + k.rec(lambda: pack_check_issue(0, vRES, vRES + 1, sPDB)), 1, 6)
            bg = k.rec(misc_l1)
            k.gemm_run(g, f)
            k.stamp("A.kv")
            k.barrier()
            kv_consts()
        else:
            k.poll(sFXp, G_FX2)
            k.stamp("A.poll")
            al = k.rec(lambda: act_loads(G_X2))
            k.play(al[:PRE])
            k(f"s_add_u32 s{sTAG}, s{sTAG}, 1")
            fill = {}
            sl = k.rec(lambda: stat_loads(G_ST2))
            e = spread(fill, al[PRE:PRE+8] + [lambda: k.play(sl[:2]), sl[2]] + al[PRE+8:], 0, 4)
            e2 = spread(fill, k.rec(lambda: (stat_sum(), stats_finalize(True), stats_b())), 66, 1)
            e2 = spread(fill, k.rec(stats_scale), e2 + 6, 1)
            spread(fill, k.rec(kv_consts), e2, 1)
            spread(fill, k.rec(lambda: lin_dma(PK_W1A + 32768, R2, 8, "w1a")), e, 3)
            k.gemm_run(gA, fill)
            k.stamp("A.kv")
            bg = []
        k("s_nop 2")
        k.get(vWB + 22, cKW1 if L1 else cKW)
        k.get(vWB + 23, cKR1 if L1 else cKR)
        k.ds_all()
        PK, PV, TMP = vPQ, vACC, vWB + 24
        KVA = vACC + 16

        def kv_epi():
            for h in range(2):
                for rb in range(2):
                    phi_block(vACC + 8*h + 4*rb, NM_B + 4*rb, CSK + h, RL_B + 4*rb, RS_B + 4*rb, PK + 4*h + 2*rb, TMP, "b")
            for h in range(2):
                for rb in range(2):
                    a = vACC + 16 + 8*h + 4*rb
                    c2, m = bcast(CSK + 2 + h, 1, 3)
                    for p in range(2):
                        k(f"v_pk_fma_f32 {vr(a+2*p,2)}, {vr(NM_B+4*rb+2*p,2)}, {c2}, {vr(a+2*p,2)}{m}")
                    for p in range(2):
                        k(f"v_pk_mul_f32 {vr(a+2*p,2)}, {vr(a+2*p,2)}, {vr(RS_B+4*rb+2*p,2)}")
                    for p in range(2):
                        k(f"v_cvt_pk_bf16_f32 v{PV+4*h+2*rb+p}, v{a+2*p}, v{a+2*p+1}")
                    if rb == 0:
                        k(f"v_mfma_f32_16x16x32_bf16 {vr(vACC+8+4*h,4)}, {vr(PK+4*h,4)}, {ar(aONES,4)}, 0")
                if h == 0:
                    pass
        if L1:
            k.play(mix(k.rec(kv_epi), k.rec(lambda: park_kv(vRES + 2)), 3))
        else:
            kv_epi()
        KRS = 14 if L1 else 12
        k.lds(f"ds_write_b128 v{vWB+22}, {vr(vACC+8,4)} offset:{2 << KRS}")
        for h in range(2):
            k(f"v_mfma_f32_16x16x32_bf16 {vr(KVA+4*h,4)}, {vr(PK+4*h,4)}, {vr(PV+4*h,4)}, 0")
        k.lds(f"ds_write_b128 v{vWB+22}, {vr(vACC+12,4)} offset:{3 << KRS}")
        k.get(vWB + 21, cKVS)
        k("s_nop 4")
        for h in range(2):
            k.lds(f"ds_write_b128 v{vWB+22}, {vr(KVA+4*h,4)} offset:{h << KRS}")
        if L1:
            k.vm_wait("wq")
        k.barrier()
        for s in range(4):
            k.lds(f"ds_read_b128 {vr(vWB+4*s,4)}, v{vWB+23} offset:{s*1024}", ("kr", s))
        KO = vACC + 32
        k.ds_wait(("kr", 1))
        for p in range(2):
            k(f"v_pk_add_f32 {vr(vWB+2*p,2)}, {vr(vWB+2*p,2)}, {vr(vWB+4+2*p,2)}")
        k.ds_wait(("kr", 3))
        for p in range(2):
            k(f"v_pk_add_f32 {vr(vWB+8+2*p,2)}, {vr(vWB+8+2*p,2)}, {vr(vWB+12+2*p,2)}")
        for p in range(2):
            k(f"v_pk_add_f32 {vr(KO+2*p,2)}, {vr(vWB+2*p,2)}, {vr(vWB+8+2*p,2)}")
        k(f"v_and_b32 v{KO}, 0xffffff00, v{KO}")
        k(f"v_or_b32 v{KO}, s{sT8}, v{KO}")
        k(f"s_mov_b64 exec, s[{sKM}:{sKM+1}]")
        k.vmem(f"buffer_store_dwordx4 {vr(KO,4)}, v{vWB+21}, {srd(S_WS)}, s{sKVP} offen sc1", "kvst")
        k("s_mov_b64 exec, -1")
        k.stamp("A.kvpub")
        fill = {}
        fr = []
        CSQ = vACC + 24

        def w2t_loads():
            for j in range(56):
                with k.atomic():
                    if j == 0:
                        k(f"s_lshl2_add_u32 s{sPDB}, s{sCT}, s{sW}")
                        k(f"s_mul_i32 s{sPDB}, s{sPDB}, 57344")
                        k(f"s_add_u32 s{sPDB}, s{sPDB}, {WS_W2T}")
                    if j % 4 == 0:
                        k(f"s_add_u32 s{sJ0}, s{sPDB}, {j*1024}")
                    k.vmem(f"buffer_load_dwordx4 {ar(4*j,4)}, v{vL16}, {srd(S_WS)}, s{sJ0} offen offset:{(j%4)*1024} sc1", ("w2t", j // 4))

        w2 = k.rec(w2t_loads) if L1 else []

        def takew2(name, dflt):
            nonlocal w2
            n = min(o.get(name, dflt), len(w2) - 24) if L1 else 0
            r, w2 = w2[:n], w2[n:]
            return r

        def q_consts():
            k.get(vT0, cCSB)
            for h in range(2):
                k.lds(f"ds_read_b128 {vr(CSQ+4*h,4)}, v{vT0} offset:{(4+h)*64}")
        if L1:
            pack_check(vRES, vRES + 1, sPDB)
            packN_finish(vWB)
            park_addr(vPQ + 4, R1, 11)
            if o.get("diag"): k.stamp("q.pf")
            k(f"v_add_u32 v{vPQ}, {R1}, v{vTR0}")
            k(f"v_add_u32 v{vPQ+1}, {R1}, v{vTR1}")
            k(f"s_and_b32 s{sT0}, s{sW}, 1")
            k(f"s_lshl_b32 s{sT1}, s{sT0}, 5")
            k(f"v_xor_b32 v{vPQ+2}, s{sT1}, v{vPQ}")
            for j in range(16):
                fr.append(dict(addr=vPQ + 2, offs=(j * 2048, j * 2048 + 1024), mf=[(None, None, False, j == 0, None)]))
            for ks in range(16):
                for b in range(2):
                    fr.append(dict(addr=vPQ + b, offs=(ks * 2048, ks * 2048 + 1024), mf=mf2(vACC + 8 * b, ks, True, False)))
            wor = k.rec(wo_raw)
            e = spread(fill, bg + k.rec(res_load), 0, 1)
            if o.get("arm", 3):
                e = spread(fill, k.rec(lambda: arm(o.get("arm", 3))), e, 2)
            if o.get("tq", 0) & 1:
                e = spread(fill, k.rec(lambda: touch("x")), e, 1)
            if o.get("tq", 0) & 4:
                e = spread(fill, k.rec(lambda: touch("h")), e, 1)
            e = spread(fill, wor, e, 3)
            spread(fill, takew2("w2q", 0), e, 4)
            spread(fill, k.rec(lambda: park_q(vPQ + 4)), 20, 3)
            k.gemm(fr, fill)
            if o.get("diag"): k.stamp("q.mm")
            cs_put(4, sT0)
            k.barrier()
            q_consts()
        else:
            k(f"v_add_u32 v{vPQ}, {R1}, v{vL16}")
            for ks in range(16):
                for b in range(2):
                    fr.append(dict(addr=vPQ, offs=(ks * 2048 + b * 1024,), mf=mf2(vACC + 8 * b, ks, True, False)))
            e = 0
            if o.get("tq", 0) & 2:
                e = spread(fill, k.rec(lambda: touch("h")), e, 1)
            spread(fill, k.rec(lambda: lin_dma(PK_WO, R0, 16, "wo", True)), e, o.get("wostep", 3))
            spread(fill, k.rec(q_consts), 50, 1)
            k.gemm(fr, fill)
        lp2, done2 = k.label("L_kp"), k.label("L_kd")
        SM = vWB + 8
        ZL = vACT + 32

        def kv_loads(track):
            ins = [(f"buffer_load_dwordx4 {vr(ZL,4)}, v{vT2}, {srd(S_WS)}, s{sKVC} offen sc1", "zl")]
            for j in range(8):
                ins.append((f"buffer_load_dwordx4 {vr(vACT+4*j,4)}, v{vL16}, {srd(S_WS)}, s{sKVC if j < 4 else sT2} offen offset:{(j%4)*1024} sc1", ("kv", j)))
            for i_, t_ in ins:
                if track:
                    k.vmem(i_, t_)
                else:
                    k(i_)
        if L1:
            lp, done = k.label("L_xp"), k.label("L_xd")
            k(f"s_lshl_b32 s{sT4}, s{sG}, 11")
            k(f"s_add_u32 s{sT4}, s{sT4}, {WS_XID}")
            k(f"s_add_u32 s{sT3}, s{sTAG}, 2")
            k.poll_prep(15)
            k(f"v_lshlrev_b32 v{vT3}, 5, v{vT3}")
            k.vmem(f"buffer_load_dword v{vT0}, v{vT3}, {srd(S_WS)}, s{sT4} offen sc1", "xidl")
            w1a = k.rec(lambda: (lin_dma(PK_W1A, R1, 16, "w1a"), lin_dma(PK_W1B, R3, 6, "w1c2")))
        else:
            w1a = k.rec(lambda: (lin_dma(PK_W1A, R1, 8, "w1a"), lin_dma(PK_W1B, R3, 6, "w1c2")))
        k.get(vT2, cZL)
        k(f"s_add_u32 s{sT2}, s{sKVC}, 4096")
        kl = k.rec(lambda: kv_loads(True))
        k.play(kl[:5])
        if not L1:
            k("s_barrier")
        k.ds_all()
        ph = k.rec(lambda: [phi_block(vACC + 8*h + 4*rb, NM_A + rb, CSQ + 4*h, RL_A + rb, RS_A + rb, vPQ + 4*h + 2*rb, vWB, "a")
                            for h in range(2) for rb in range(2)])
        na = o.get("w1a0", 4) if L1 else o.get("w1a02", 4)
        k.play(mix(ph, kl[5:] + w1a[:na], o.get("phr", 10)))
        w1a = w1a[na:]
        k.stamp("A.q")
        k.get(vT1, cXW)
        k.get(vWB + 18, cZW)
        k.get(vWB + 16, cXR)
        k.get(vWB + 17, cZR)
        k(f"s_branch {lp2}_s")
        k(f"{lp2}:")
        kv_loads(False)
        k("s_waitcnt vmcnt(0)")
        k(f"{lp2}_s:")
        k.vm_wait("zl")
        k(f"""
        v_mov_b32 v{SM+4}, v{ZL}
        v_mov_b32 v{SM+5}, v{ZL}
        v_permlane32_swap_b32 v{ZL}, v{ZL+1}
        v_permlane32_swap_b32 v{ZL+2}, v{ZL+3}
        v_add_f32 v{ZL}, v{ZL}, v{ZL+1}
        v_add_f32 v{ZL+2}, v{ZL+2}, v{ZL+3}
        s_nop 1
        v_permlane16_swap_b32 v{ZL}, v{ZL+2}
        v_add_f32 v{ZL}, v{ZL}, v{ZL+2}
        s_nop 1
        v_add_f32_dpp v{ZL}, v{ZL}, v{ZL} row_ror:4 row_mask:0xf bank_mask:0xf
        s_nop 1
        v_add_f32_dpp v{ZL}, v{ZL}, v{ZL} row_ror:8 row_mask:0xf bank_mask:0xf
        v_cvt_pk_bf16_f32 v{ZL}, v{ZL}, v{ZL}
        ds_write_b16 v{vWB+18}, v{ZL}
        """)
        for j in range(0, 8, 2):
            a, b = vACT + 4*j, vACT + 4*j + 4
            k.vm_wait(("kv", j + 1))
            k(f"v_and_b32 v{SM+4}, v{SM+4}, v{a}")
            k(f"v_and_b32 v{SM+4}, v{SM+4}, v{b}")
            k(f"v_or3_b32 v{SM+5}, v{SM+5}, v{a}, v{b}")
            if j == 0:
                for p in range(2):
                    k(f"v_pk_add_f32 {vr(SM+2*p,2)}, {vr(a+2*p,2)}, {vr(b+2*p,2)}")
            else:
                for p in range(2):
                    k(f"v_pk_add_f32 {vr(a+2*p,2)}, {vr(a+2*p,2)}, {vr(b+2*p,2)}")
                for p in range(2):
                    k(f"v_pk_add_f32 {vr(SM+2*p,2)}, {vr(SM+2*p,2)}, {vr(a+2*p,2)}")
        k(f"""
        ds_write_b128 v{vT1}, {vr(SM,4)}
        v_xor_b32 v{SM+4}, s{sT8}, v{SM+4}
        v_xor_b32 v{SM+5}, s{sT8}, v{SM+5}
        v_or_b32 v{SM+4}, v{SM+4}, v{SM+5}
        v_and_b32 v{SM+4}, 0xff, v{SM+4}
        v_cmp_ne_u32 vcc, 0, v{SM+4}
        s_cbranch_vccz {done2}
        s_waitcnt lgkmcnt(0)
        s_sub_u32 s{sBUD}, s{sBUD}, 4
        s_cbranch_scc0 {lp2}
        s_mov_b32 s{sBUD}, 0
        {done2}:
        """)
        k.stamp("A.kvget")
        n1 = o.get("w1a1", 4) if L1 else o.get("w1a12", 4)
        k.play(w1a[:n1]); w1a = w1a[n1:]
        k.barrier(True)
        for h in range(2):
            k.lds(f"ds_read_b64 {vr(vWB+4*h+2,2)}, v{vWB+17} offset:{h*32}", "zf")
        for j in range(4):
            k.lds(f"ds_read_b128 {vr(vACT+4*j,4)}, v{vWB+16} offset:{1024*j}")
        if L1:
            k(f"{lp}:")
            k(f"v_subrev_u32 v{vT0}, s{sT3}, v{vT0}")
            k(f"v_cmp_lt_u32 vcc, 8, v{vT0}")
            k(f"s_cbranch_vccz {done}")
            k(f"buffer_load_dword v{vT0}, v{vT3}, {srd(S_WS)}, s{sT4} offen sc1")
            k("s_waitcnt vmcnt(0)")
            k(f"s_sub_u32 s{sBUD}, s{sBUD}, 1")
            k(f"s_cbranch_scc0 {lp}")
            k(f"s_mov_b32 s{sBUD}, 0")
            k(f"{done}:")
            k(f"v_cmp_ne_u32 vcc, s{sXCC}, v{vT0}")
            k("s_nop 4")
            k(f"s_or_b32 s{sSLOW}, vcc_lo, {1 if o.get('forceslow') else 0}")
        k.ds_wait("zf")
        OA = vACC + 16
        for rb in range(2):
            for h in range(2):
                d = OA + 16*rb + 8*h
                k(f"v_mfma_f32_16x16x16_bf16 {vr(d+4,4)}, {vr(vWB+4*h+2,2)}, {vr(vPQ+4*h+2*rb,2)}, 0")
        k.ds_all()
        for h in range(2):
            for p in range(2):
                k(f"v_pk_add_f32 {vr(vACT+8*h+2*p,2)}, {vr(vACT+8*h+2*p,2)}, {vr(vACT+8*h+4+2*p,2)}")
        for h in range(2):
            for p in range(2):
                k(f"v_cvt_pk_bf16_f32 v{vWB+4*h+p}, v{vACT+8*h+2*p}, v{vACT+8*h+2*p+1}")
        for rb in range(2):
            for h in range(2):
                d = OA + 16*rb + 8*h
                k(f"v_add_f32 v{d+4}, s{sEPS}, v{d+4}")
        for rb in range(2):
            for h in range(2):
                d = OA + 16*rb + 8*h
                k(f"v_mfma_f32_16x16x16_bf16 {vr(d,4)}, {vr(vWB+4*h,2)}, {vr(vPQ+4*h+2*rb,2)}, 0")
        for rb in range(2):
            for h in range(2):
                d = OA + 16*rb + 8*h
                k(f"v_rcp_f32 v{d+4}, v{d+4}")
        k("s_nop 1")
        for rb in range(2):
            for h in range(2):
                d = OA + 16*rb + 8*h
                for p in range(2):
                    k(f"v_pk_mul_f32 {vr(d+2*p,2)}, {vr(d+2*p,2)}, {vr(d+4,2)} op_sel_hi:[1,0]")
                for p in range(2):
                    k(f"v_cvt_pk_bf16_f32 v{vPQ+4*rb+2*h+p}, v{d+2*p}, v{d+2*p+1}")
        k.stores([f"buffer_store_dwordx4 {vr(vPQ+4*rb,4)}, v{vL16}, {srd(S_WS)}, s{sOST+rb} offen" for rb in range(2)], psc(0))
        nb = o.get("w1a_pre1", 6) if L1 else o.get("w1a_pre", 0)
        k.play(w1a[:nb])
        if L1:
            for s_ in range(2):
                for p in range(2):
                    k(f"v_permlane16_swap_b32 v{vRES+4*s_+p}, v{vRES+4*s_+2+p}")
        unpack_res(vACC)
        fr = []
        for ks in range(16):
            for f in range(4):
                mf = [(vACC + 4 * f, vACT + 4 * ks, True, False, ("act", ks))]
                if L1:
                    fr.append(dict(addr=vQ0 + f, offs=(R0 + ks * 4096, R0 + ks * 4096 + 2048), mf=mf))
                else:
                    fr.append(dict(addr=vL16, offs=(R0 + ks * 4096 + f * 1024,), mf=mf))
        g = k.gemm_begin(fr, 7)
        k.poll_prep(15)
        k.flag(sFOo, G_FO)
        k.stamp("A.opub")
        k.poll(sFOp, G_FO)
        k.stamp("B.poll")

        def b_loads():
            for ks in range(16):
                with k.atomic():
                    if ks % 4 == 0:
                        k(f"s_add_u32 s{sT2}, s{sBACT}, {G_O + ks*1024}")
                    k.vmem(f"buffer_load_dwordx4 {vr(vACT+4*ks,4)}, v{vL16}, {srd(S_WS)}, s{sT2} offen offset:{(ks%4)*1024} sc1", ("act", ks))
        bl = k.rec(b_loads)
        PB = o.get("preb", PRE)
        k.play(bl[:PB])
        fill = {}
        e = spread(fill, bl[PB:], 0, 3)
        e = spread(fill, w1a[nb:], e, o.get("w1st", 3))
        if L1 and o.get("txb", 1):
            e = spread(fill, k.rec(lambda: touch("x")), e, 1)
        spread(fill, takew2("w2b", 4), e, 4)
        k.gemm_run(g, fill)
        k.stamp("B.mm")
        k(f"v_add_u32 v{vTR1}, {R1}, v{vL16}")
        k("s_nop 6")
        for f in range(4):
            for p in range(2):
                k(f"v_cvt_pk_bf16_f32 v{vRES+2*f+p}, v{vACC+4*f+2*p}, v{vACC+4*f+2*p+1}")
        publish_x(G_X1, G_ST1, G_FX1, psc(1))
        k.play(takew2("w2x", 8))
        k.flag(sFXo, G_FX1)
        k.stamp("B.pub")
        k("s_barrier")
        w1c2 = k.rec(lambda: lin_dma(PK_W1B + 24576, R0, 6, "w1c2"))
        if L1:
            pack_flag(0x8000)
        nc = o.get("w1c2_pre1", 0) if L1 else o.get("w1c2_pre", 0)
        k.play(w1c2[:nc])
        if L1:
            k(f"s_lshl_b32 s{sT2}, s{sW}, 10")
            k(f"v_add_u32 v{vPQ}, s{sT2}, v{vTR1}")
            fr = []
            for j in range(16):
                fr.append(dict(addr=vPQ, offs=(j * 4096,), mf=[(None, None, False, j == 0, None)]))
            k.gemm(fr, D=7)
            k("s_nop 5")
            cs_put(6, sW)
        C2 = vACC + 32
        vC1, vC2, vCc, vCd = vTR1, vDM, vP, vCH
        k(f"v_add_u32 v{vC2}, {R3}, v{vL16}")
        if L1:
            k(f"s_min_u32 s{sPDA}, s{sW}, 2")
            k(f"s_lshl_b32 s{sT2}, s{sPDA}, 10")
            k(f"v_add_u32 v{vCd}, s{sT2}, v{vL16}")
            k(f"v_add_u32 v{vCc}, {R3}, v{vCd}")
        fr = []
        for ks in range(16):
            for f in range(4):
                fr.append(dict(addr=vC1, offs=(ks * 4096 + f * 1024,), mf=mf2(vACC + 8 * f, ks, True, True)))
        for ks in range(16):
            if L1:
                fr.append(dict(addr=vCc if ks < 8 else vCd, offs=((ks % 8) * 3072,), mf=[(None, None, False, ks == 0, None)]))
            for b in range(3):
                fr.append(dict(addr=vC2 if ks < 8 else vL16, offs=((ks % 8) * 3072 + b * 1024,), mf=mf2(C2 + 8 * b, ks, True, False, None if L1 else False)))
        MK = 7 if L1 else 6
        NM = 128 + 16 * MK
        g = k.gemm_begin(fr)
        k.poll(sFXp, G_FX1)
        k.stamp("C.poll")
        CS1 = [vPQ, vPQ + 4, vACC + 56, vQ0]

        def c2_init():
            k.get(vT0, cCSB)
            for b in range(3):
                k.lds(f"ds_read_b128 {vr(C2+8*b+4,4)}, v{vT0} offset:{(10+b)*64}", "cs2")
            for _ in range(4):
                k.play([lambda: None])
            k.ds_wait("cs2")
            for b in range(3):
                for rb in range(2):
                    for j in range(4):
                        k(f"v_mul_f32 v{C2+8*b+4*rb+j}, v{C2+8*b+4+j}, v{NM_A+rb}")

        def relu_block(acc, cs, rb, dst):
            if cs is not None:
                for j in range(4):
                    k(f"v_fmac_f32 v{acc+j}, v{cs+j}, v{NM_A+rb}")
            for p in range(2):
                k(f"v_cvt_pk_bf16_f32 v{dst+p}, v{acc+2*p}, v{acc+2*p+1}")
            for p in range(2):
                k(f"v_pk_max_i16 v{dst+p}, v{dst+p}, 0")

        def cs1_reads():
            k.get(vT2, cCSB)
            for b in range(4):
                k.lds(f"ds_read_b128 {vr(CS1[b],4)}, v{vT2} offset:{(6+b)*64}", "cs")

        def epi1():
            k.ds_wait("cs")
            for s in range(2):
                for rb in range(2):
                    for b in range(2):
                        relu_block(vACC + 16*s + 8*b + 4*rb, CS1[2*s+b], rb, vACC + 16*s + 4*rb + 2*b)
                k.stores([f"buffer_store_dwordx4 {vr(vACC+16*s+4*rb,4)}, v{vL16}, {srd(S_WS)}, s{sH1+rb} offen offset:{s*1024}"
                          for rb in range(2)], psc(2))

        def d_setup():
            with k.atomic():
                k(f"s_lshl_b32 s{sT1}, s{sW}, 13")
                k(f"s_add_u32 s{sT1}, s{sT1}, s{sGB}")
                k(f"s_add_u32 s{sT1}, s{sT1}, {G_H + 24*1024}")
            with k.atomic():
                k(f"s_lshl_b32 s{sT4}, s{sW}, 11")
                k(f"s_add_u32 s{sT4}, s{sT4}, {28*1024}")
            for j in range(4):
                with k.atomic():
                    k(f"s_add_u32 s{sT0}, s{sW}, {j}")
                    k(f"s_and_b32 s{sT0}, s{sT0}, 3")
                    k(f"s_lshl2_add_u32 s{sT0}, s{sDH}, s{sT0}")
                with k.atomic():
                    k(f"s_mul_i32 s{sT0}, s{sT0}, 57344")
                    k(f"s_add_u32 s{sRB+j}, s{sT0}, s{sT1}")
            k.poll_prep(7)
        seq = [(ksl, j) for ksl in range(11) for j in range(4)] + [(ksl, j) for j in (1, 2, 3, 0) for ksl in (11, 12, 13)]
        hb = [0, 0, 0, 0]

        def hload(t):
            ksl, j = seq[t]
            with k.atomic():
                if ksl // 4 != hb[j]:
                    if ksl == 8:
                        k(f"s_sub_u32 s{sRB+j}, s{sRB+j}, s{sT4}")
                    else:
                        k(f"s_add_u32 s{sRB+j}, s{sRB+j}, 4096")
                    hb[j] += 1
                k.vmem(f"buffer_load_dwordx4 {vr(vACT+4*(t%28),4)}, v{vL16}, {srd(S_WS)}, s{sRB+j} offen offset:{(ksl%4)*1024} sc1", ("h", t))
        PC = o.get("prec", PRE)
        al = k.rec(lambda: act_loads(G_X1))
        k.play(al[:PC])
        fill = {}
        sl = k.rec(lambda: stat_loads(G_ST1))
        e = spread(fill, al[PC:PC+4] + [lambda: k.play(sl[:2]), sl[2]] + al[PC+4:], 0, 4)
        e2 = spread(fill, k.rec(lambda: (stat_sum(), stats_finalize(False))), 52, 1)
        if not L1:
            spread(fill, k.rec(c2_init), e2 + 2, 1)
        if L1:
            spread(fill, k.rec(lambda: k("s_barrier")), 100, 0)
        e = spread(fill, w1c2[nc:], e, 3)
        if o.get("th", 0) >> layer & 1:
            e = spread(fill, k.rec(lambda: touch("h", vT0)), e, 1)
        spread(fill, k.rec(cs1_reads), 119, 1)
        if o.get("diagd"):
            spread(fill, k.rec(lambda: k.stamp("C.mm1")), 127, 0)
        e1 = spread(fill, k.rec(epi1), 129, 1 / o.get("epr", 4))
        spread(fill, k.rec(lambda: (k.vm_wait("w1c2"), k("s_barrier"))), 128 + 5 * MK, 0)
        spread(fill, k.rec(d_setup), e1, 1)
        pf = min(e1 + (o.get("fl11", 50) if L1 else o.get("fl1", 20)), NM - 2)
        spread(fill, k.rec(lambda: k.flag(sFHo, G_FH)), pf, 1)
        NE = o.get("ne1", 0) if L1 else o.get("ne", 6)
        pp = NM - 1 if NE == 0 else NM - 3 * NE - 18
        assert pp > pf
        spread(fill, k.rec(lambda: k.vmem(f"buffer_load_dword v{vT0}, v{vT3}, {srd(S_WS)}, s{sFHp} offen offset:{G_FH} sc1", "p1")), pp, 1)
        if NE:
            spread(fill, k.rec(lambda: async_check("p1", sFHp, G_FH)), NM - 3 * NE - 1, 1)
            spread(fill, k.rec(lambda: [hload(t) for t in range(NE)]), NM - 3 * NE, 3)
        if L1:
            wc = takew2("nw2", 24)
            spread(fill, wc, e, (pp - 1 - e) / max(len(wc), 1))
        k.gemm_run(g, fill)
        k.stamp("C.mm2")
        HO = vWB + 16
        LA = o.get("dla1", 10) if L1 else o.get("dla", 10)
        if L1:
            k.get(vT1, cCSA)
            k(f"s_lshl_b32 s{sT5}, s{sPDA}, 6")
            k(f"v_add_u32 v{vT1}, s{sT5}, v{vT1}")
            k.lds(f"ds_write_b32 v{vT1}, a{aCS} offset:{10*64}")
            k.barrier()
            k.get(vT2, cCSB)
            for b in range(3):
                k.lds(f"ds_read_b128 {vr(vWB+4*b,4)}, v{vT2} offset:{(10+b)*64}")
            k.ds_all()
        else:
            k("s_nop 3")
        epi2 = k.rec(lambda: [relu_block(C2 + 8*b + 4*rb, vWB + 4*b if L1 else None, rb, HO + 8*rb + 2*b) for b in range(3) for rb in range(2)])
        h2sc = psc(2) and not o.get("h2plain", 1)
        its = []
        for rb in range(2):
            its.append(f"buffer_store_dwordx4 {vr(HO+8*rb,4)}, v{vL16}, {srd(S_WS)}, s{sH2+rb} offen")
            its.append(f"buffer_store_dwordx2 {vr(HO+8*rb+4,2)}, v{vL16}, {srd(S_WS)}, s{sH3+rb} offen")
        tail = []
        up = k.rec(lambda: unpark(vP)) if L1 else []
        if NE:
            n2 = o.get("ne2", 2)
            k.play(mix(epi2, k.rec(lambda: [hload(t) for t in range(NE, NE + n2)]), 10))
            k.stores(its, h2sc)
            nxt = NE + n2
            FL2 = o.get("fl2", 5)
        else:
            k.play(epi2)
            k.stores(its, h2sc)
            async_check("p1", sFHp, G_FH)
            for t in range(LA):
                hload(t)
                if len(w2) > 24 and t % 2:
                    k.play(w2[:1]); w2 = w2[1:]
                k.play(up[:1]); up = up[1:]
            k.flag(sFHo, G_FH + 1024)
            nxt = LA
            FL2 = -1
        k.stamp("D.poll1")
        RSD = vPQ
        k.get(vPQ + 1, cRSD)
        k.lds(f"ds_read_b32 v{RSD}, v{vPQ+1}", "rsd")
        for j in range(4):
            k.get(vPQ + 4 + j, cRD0 + j)
        ur = k.rec(lambda: unpack_res(vWB))
        wr = []
        for t in range(56):
            ksl, j = seq[t]
            if L1:
                k.vm_wait(("w2t", ksl))
            k.vm_wait(("h", t))
            if o.get("diagd") and t in (0, 8, 16, 24, 32, 40, 48):
                k.stamp(f"D.t{t}")
            for f in range(4):
                a = vACC + 16*j + 4*f
                c = "0" if ksl == 0 else vr(a, 4)
                k(f"v_mfma_f32_16x16x32_bf16 {vr(a,4)}, {ar((ksl*4+f)*4,4)}, {vr(vACT+4*(t%28),4)}, {c}")
                if f in (0, 2) and nxt < 56 and nxt <= t + LA and (f == 0 or nxt < t + LA):
                    if nxt == 32 - 6:
                        k.vmem(f"buffer_load_dword v{vT0}, v{vT3}, {srd(S_WS)}, s{sFHp} offen offset:{G_FH+1024} sc1", "p2")
                    if nxt == 32:
                        async_check("p2", sFHp, G_FH + 1024)
                    hload(nxt)
                    nxt += 1
                    if nxt == 56 and not L1 and o.get("wb", 1):
                        lw = k.label("L_wb")
                        k(f"s_lshl3_add_u32 s{sT0}, s{sW}, s2")
                        k(f"s_cmp_ge_u32 s{sT0}, 8")
                        k(f"s_cbranch_scc1 {lw}")
                        k("buffer_wbl2 sc1")
                        k(f"s_branch {lw}_e")
                        k(f"{lw}:")
                        k(f"buffer_load_dword a{aDUM}, v{vT3}, {srd(S_WS)}, s{sFHp} offen offset:{G_FH} sc1")
                        k(f"{lw}_e:")
                        k.vm_note(1, "wb")
                if f in (1, 3) and up:
                    k.play(up[:1]); up = up[1:]
                if f == 2:
                    if w2 and (len(w2) > 24 or not up):
                        if len(w2) <= 24:
                            k.ds_wait(("up", (24 - len(w2)) // 4))
                        k.play(w2[:1]); w2 = w2[1:]
                    elif t >= o.get("tl0", 46) and tail:
                        nn = o.get("tln", 2)
                        k.play(tail[:nn]); tail = tail[nn:]
                if f == 3 and t == FL2:
                    k.flag(sFHo, G_FH + 1024)
                if f == 3 and t == 30 and not L1:
                    k("s_barrier")
                if f == 3 and t == 2 and L1:
                    pack_check_issue(0x8000, vTR0, vTR1, sPDA)
                if f == 3 and t == 14 and L1:
                    pack_check(vTR0, vTR1, sPDA)
                if f == 3 and t == o.get("tx", 30) and L1:
                    touch("x", vCH)
                if f == 1 and t >= 8 and ur:
                    k.play(ur[:1]); ur = ur[1:]
                if wr and wr[0][0] <= 4 * t + f:
                    k.lds(wr.pop(0)[1])
            if ksl == 13 and j:
                for f in range(4):
                    wr.append((4 * t + 9 + 2 * f, f"ds_write_b128 v{vPQ+4+j}, {vr(vACC+16*j+4*f,4)} offset:{f*1024}"))
        assert not w2 and not ur
        for _, wi in wr:
            k.lds(wi)
        k.play(tail)
        k.stamp("D.mm")
        k.barrier()
        for j in range(3):
            for f in range(4):
                k.lds(f"ds_read_b128 {vr(vACC+16+16*j+4*f,4)}, v{vPQ+4} offset:{j*4096+f*1024}", ("rd", j, f))
        if not L1:
            k.get(vT2, cOUT)
        for j in range(3):
            for f in range(4):
                k.ds_wait(("rd", j, f))
                for p in range(2):
                    k(f"v_pk_add_f32 {vr(vACC+4*f+2*p,2)}, {vr(vACC+4*f+2*p,2)}, {vr(vACC+16+16*j+4*f+2*p,2)}")
                if j == 2:
                    for p in range(2):
                        k(f"v_pk_fma_f32 {vr(vACC+4*f+2*p,2)}, {vr(vACC+4*f+2*p,2)}, {vr(RSD,2)}, {vr(vWB+4*f+2*p,2)} op_sel_hi:[1,0,1]")
                    for p in range(2):
                        k(f"v_cvt_pk_bf16_f32 v{vRES+2*f+p}, v{vACC+4*f+2*p}, v{vACC+4*f+2*p+1}")
        k.stamp("D.red")
        if L1:
            publish_x(G_X2, G_ST2, G_FX2, psc(3))
            k(f"s_add_u32 s{sKVC}, s{sKVC}, 0x100000")
            k(f"s_add_u32 s{sKVP}, s{sKVP}, 0x100000")
            k.flag(sFXo, G_FX2)
            k.stamp("D.pub")
            k("s_barrier")
            fr = []
            for ks in range(16):
                for b in range(4):
                    fr.append(dict(addr=vL16, offs=(R0 + ks * 4096 + b * 1024,), mf=mf2(vACC + 8 * b, ks, False, True)))
            gA = k.gemm_begin(fr)
        else:
            k("s_nop 1")
            for s in range(2):
                for p in range(2):
                    k(f"v_permlane16_swap_b32 v{vRES+4*s+p}, v{vRES+4*s+2+p}")
                k.vmem(f"buffer_store_dwordx4 {vr(vRES+4*s,4)}, v{vT2}, {srd(S_OUT)}, 0 offen offset:{64*s}{' sc1' if o.get('outsc1', 1) else ''}")
            le = k.label("L_ep")
            k(f"s_or_b32 s{sT2}, s2, s{sW}")
            k(f"s_cbranch_scc1 {le}")
            k(f"s_add_u32 s{sEP}, s{sEP}, 1")
            k(f"v_mov_b32 v{vT1}, s{sEP}")
            k("s_mov_b64 exec, 1")
            k(f"buffer_store_dword v{vT1}, v{vL16}, {srd(S_WS)}, 0 offen offset:{WS_EPOCH}")
            k("s_mov_b64 exec, -1")
            k(f"{le}:")
            if stamps:
                k.vm_all()
                k.stamp("end")
                k(f"s_memrealtime s[{sST}:{sST+1}]")
                k("s_waitcnt lgkmcnt(0)")
                k(f"v_writelane_b32 v{vSTAMP}, s{sST}, 61")
                k(f"v_writelane_b32 v{vSTAMP}, s{sBUD}, 60")
                k(f"v_writelane_b32 v{vSTAMP}, s{sSLOW}, 59")
                k(f"s_lshl2_add_u32 s{sT2}, s2, s{sW}")
                k(f"s_lshl_b32 s{sT2}, s{sT2}, 8")
                k(f"s_add_u32 s{sT2}, s{sT2}, {WS_STAMP}")
                k(f"v_lshrrev_b32 v{vT0}, 2, v{vL16}")
                k(f"buffer_store_dword v{vSTAMP}, v{vT0}, {srd(S_WS)}, s{sT2} offen")
    k("L_end:")
    body = "\n".join(merge_waits(k.lines))
    hdr = open("interleave_layers__linear_attn_block__dense_activation_relu__prompt.s.ref").read().split("; Override")[0]
    txt = f"""{hdr}; Generated by a hand-written generator (persistent kernel, one workgroup per CU).
; @launch grid=(256,1,1) block=(256,1,1) lds={LDS_BYTES}
.amdgcn_target "amdgcn-amd-amdhsa--gfx950"
.text
.globl {NAME}
.p2align 8
.type {NAME},@function
.set CODE_BYTES, L_code_end - L_pcref - 512
{NAME}:
{body}
    s_endpgm
L_code_end:
.section .rodata,"a"
.p2align 6
.amdhsa_kernel {NAME}
  .amdhsa_next_free_vgpr 512
  .amdhsa_next_free_sgpr 102
  .amdhsa_accum_offset 256
  .amdhsa_group_segment_fixed_size 0
  .amdhsa_kernarg_size 72
  .amdhsa_user_sgpr_count 2
  .amdhsa_user_sgpr_kernarg_segment_ptr 1
  .amdhsa_system_sgpr_workgroup_id_x 1
.end_amdhsa_kernel
"""
    return txt, k.stamp_names


if __name__ == "__main__":
    out = sys.argv[1]
    stamps = "stamps" in sys.argv[2:]
    opts = {}
    for a in sys.argv[2:]:
        if "=" in a:
            x, y = a.split("=")
            opts[x] = int(y)
    txt, names = gen(stamps, opts)
    open(out, "w").write(txt)
    if stamps:
        open(out + ".names", "w").write("\n".join(names))
```

```python
import sys
from contextlib import contextmanager

NAME = "interleave_layers__linear_attn_block__dense_activation_relu__prompt_kernel"

WS_EPOCH = 0
WS_XID = 0x8000
WS_PD = 0x10000
GRP0 = 0x100000
G_FO, G_FX1, G_FX2, G_FH = 0, 512, 1024, 1536
G_ST1 = 0x1000
G_ST2 = G_ST1
G_ST0 = 0x4000
G_X1 = 0x8000
G_X2 = G_X1
G_H = G_X1 + 0x20000
G_O = G_H
WS_KVX = 0x1200000
KVX_C = 0x9000
WS_W2T = 0x1400000
WS_PK = 0x1600000
PK_KV, PK_Q, PK_W1A, PK_W1B, PK_WO, PK_SZ = 0, 65536, 98304, 163840, 212992, 278528
WS_STAMP = 0x1B00000
WS_USED = 0x1C00000
OOB = 0x7f000000

R0, R1, R2, R3 = 0, 65536, 98304, 131072
L_SM = 161792
L_CS = L_SM
L_ZB = L_SM + 896
L_STAT = L_SM + 1024
L_XB = L_SM - 4096
W1B_N1 = 8
L_XST = 98304
L_RED = R2
L_PST = R2
LDS_BYTES = 163840

S_X, S_WQKV, S_WO, S_W1, S_W2, S_OUT, S_WS = 4, 8, 12, 16, 20, 24, 28
(sW, sC, sG, sTAG, sSLOW, sGB, sBUD, sEP, sEPS, _e1, sT0, sT1, sT2, sT3, sT4, sT5,
 sACT, sACT1, sBACT, sTILE, sOST, sOST1, sFOo, sFOp, sFXo, sFXp, sSTo, sSTg,
 sH1, sH1b, sH2, sH2b, sH3, sH3b, sFHo, sFHp, sRB, _r1, _r2, _r3, sKVC, sKVP,
 sDH, sCT, sXCC, sT8, sD0, sD1, sD2, sD3, sL0, sL1, sPKB, sPDA, sPDB, sJ0) = range(32, 88)
assert sEPS % 2 == 0
sRHO = sT8
S_A, S_B = 88, 92
sKEX = 88
sKM = 96
sST = 98
sPC = 100

vLANE, vL16, vTR0, vTR1, vQ0, vQ1, vQ2, vQ3, vP, vCH, vDM, vSTAMP = range(12)
vT0, vT1, vT2, vT3 = 12, 13, 14, 15
vSP, vSP2 = vP, vCH
vRES = 16
vPQ = 24
vWB = 32
vACC = 64
vACT = 128
BF1 = "0x3f803f80"
(cCSA, cCSB, cP16, aDUM, cSTO, cSTW, cSTA, cSTB, cKW, cKR, cKW1, cKR1, cKVS, cXW, cXR, cZR,
 cRD0, cRD1, cRD2, cRD3, cRSD, cOUT, cZL, cZW) = range(224, 248)
aONES, aCS = 248, 252


def srd(s):
    return f"s[{s}:{s+3}]"


def vr(a, n=1):
    return f"v{a}" if n == 1 else f"v[{a}:{a+n-1}]"


def ar(a, n=1):
    return f"a{a}" if n == 1 else f"a[{a}:{a+n-1}]"


def bcast(r, pos, n):
    lo = [0] * n
    hi = [1] * n
    if r % 2 == 0:
        hi[pos] = 0
    else:
        lo[pos] = 1
    f = lambda x: "[" + ",".join(map(str, x)) + "]"
    return vr(r & ~1, 2), f" op_sel:{f(lo)} op_sel_hi:{f(hi)}"


class K:
    def __init__(self, stamps=False, opts=None):
        self.lines = []
        self.nlab = 0
        self.vm = []
        self.ds = []
        self.stamps = stamps
        self.stamp_names = []
        self.o = opts or {}
        self._rec = None
        self.seen = set()

    def _do(self, fn, cost=None):
        if cost is not None:
            fn.cost = cost
        if self._rec is not None:
            self._rec.append(fn)
        else:
            fn()

    def rec(self, f):
        assert self._rec is None
        self._rec = []
        f()
        r, self._rec = self._rec, None
        return r

    @contextmanager
    def atomic(self):
        if self._rec is None:
            yield
            return
        outer, self._rec = self._rec, []
        yield
        inner, self._rec = self._rec, outer
        g = lambda: [x() for x in inner]
        g.cost = sum(getattr(x, "cost", 4) for x in inner)
        outer.append(g)

    def play(self, items):
        for x in items:
            self._do(x)

    def _emit(self, l):
        self.lines.append(("" if l.endswith(":") else "    ") + l)

    def __call__(self, s):
        for l in s.split("\n"):
            l = l.strip()
            if l:
                self._do(lambda l=l: self._emit(l), 8 if l.startswith(("v_exp", "v_rsq", "v_rcp", "buffer_")) else 4)

    def label(self, base="L"):
        self.nlab += 1
        return f"{base}_{self.nlab}"

    def vmem(self, s, tag=None):
        def f():
            self._emit(s)
            self.vm.append(tag)
            self.seen.add(tag)
        self._do(f, 8)

    def vm_note(self, n, tag=None):
        self._do(lambda: (self.vm.extend([tag] * n), self.seen.add(tag)))

    def _wait(self, lst, tag, name, mx):
        if tag not in lst:
            return lst
        idx = len(lst) - 1 - lst[::-1].index(tag)
        n = min(len(lst) - idx - 1, mx)
        self._emit(f"s_waitcnt {name}({n})")
        return lst[len(lst) - n:] if n else []

    def vm_wait(self, tag):
        def f():
            assert tag in self.seen, tag
            self.vm = self._wait(self.vm, tag, "vmcnt", 63)
        self._do(f)

    def save_vm(self):
        def f():
            self._sv = list(self.vm)
        self._do(f)

    def restore_vm(self):
        def f():
            self.vm = self._sv
        self._do(f)

    def vm_all(self):
        def f():
            self._emit("s_waitcnt vmcnt(0)")
            self.vm = []
        self._do(f)

    def lds(self, s, tag=None):
        def f():
            self._emit(s)
            self.ds.append(tag)
        self._do(f)

    def ds_wait(self, tag):
        def f():
            self.ds = self._wait(self.ds, tag, "lgkmcnt", 15)
        self._do(f)

    def ds_all(self, force=False):
        def f():
            if self.ds or force:
                self._emit("s_waitcnt lgkmcnt(0)")
            self.ds = []
        self._do(f)

    def barrier(self, force=False):
        self.ds_all(force)
        self("s_barrier")

    def stamp(self, name):
        if not self.stamps:
            return
        self.nst = getattr(self, "nst", 0) + 1
        if self.o.get("lite") and name not in ("end", "D.pub"):
            return
        i = len(self.stamp_names)
        assert i < 59
        self.stamp_names.append(name)
        self(f"{'s_memrealtime' if self.o.get('rt') else 's_memtime'} s[{sST}:{sST+1}]")
        self.ds_all(True)
        self(f"v_writelane_b32 v{vSTAMP}, s{sST}, {i}")

    def dma(self, sr, voff, soff, simm, lreg, limm, tag=None, flag=""):
        with self.atomic():
            self(f"s_add_u32 m0, s{lreg}, {limm}")
            self(f"s_add_u32 s{sT5}, s{soff}, {simm}")
            self.vmem(f"buffer_load_dwordx4 v{voff}, {srd(sr)}, s{sT5} offen{flag} lds", tag)

    def get(self, v, c):
        self(f"v_accvgpr_read_b32 v{v}, a{c}")

    def poll_prep(self, mask):
        self.get(vT3, cP16)
        if mask == 7:
            self(f"v_and_b32 v{vT3}, 28, v{vT3}")

    def poll(self, soff, imm, clear=True):
        if clear:
            self.seen = {t for t in self.seen if not (isinstance(t, tuple) and t[0] in ("act", "h"))}
        lp, done = self.label("L_poll"), self.label("L_pd")
        with self.atomic():
            self(f"{lp}:")
            self(f"buffer_load_dword v{vT0}, v{vT3}, {srd(S_WS)}, s{soff} offen offset:{imm} sc1")
            self.vm_all()
            self(f"v_cmp_ne_u32 vcc, s{sTAG}, v{vT0}")
            self(f"s_cbranch_vccz {done}")
            self(f"s_sub_u32 s{sBUD}, s{sBUD}, 1")
            self(f"s_cbranch_scc0 {lp}")
            self(f"s_mov_b32 s{sBUD}, 0")
            self(f"{done}:")

    def stores(self, items, force_sc1, tag="st"):
        with self.atomic():
            if force_sc1:
                for it in items:
                    self.vmem(it + " sc1", tag)
                return
            ls, le = self.label("L_ss"), self.label("L_se")
            self(f"s_cmp_lg_u32 s{sSLOW}, 0")
            self(f"s_cbranch_scc1 {ls}")
            for it in items:
                self.vmem(it, tag)
            self(f"s_branch {le}")
            self(f"{ls}:")
            for it in items:
                self(it + " sc1")
            self(f"{le}:")

    def flag(self, soff, imm):
        with self.atomic():
            self(f"v_mov_b32 v{vT1}, s{sTAG}")
            self.vm_wait("st")
            self("s_mov_b64 exec, 1")
            self.stores([f"buffer_store_dword v{vT1}, v{vL16}, {srd(S_WS)}, s{soff} offen offset:{imm}"], False, "flag")
            self("s_mov_b64 exec, -1")

    def gemm_begin(self, frags, D=6):
        self.gid = getattr(self, "gid", 0) + 1
        g = dict(frags=frags, D=D, gid=self.gid, rp=0, reads=[])
        for t, f in enumerate(frags):
            s = vWB + 4 * (t % 8)
            if len(f["offs"]) == 2:
                for hh in range(2):
                    g["reads"].append((t, f"ds_read_b64_tr_b16 {vr(s + 2*hh, 2)}, v{f['addr']} offset:{f['offs'][hh]}"))
            else:
                g["reads"].append((t, f"ds_read_b128 {vr(s, 4)}, v{f['addr']} offset:{f['offs'][0]}"))
        self._issue(g, D - 1, 99)
        return g

    def _issue(self, g, tmax, maxn):
        c = 0
        reads = g["reads"]
        while g["rp"] < len(reads) and reads[g["rp"]][0] <= tmax and c < maxn:
            self.lds(reads[g["rp"]][1], ("w", g["gid"], reads[g["rp"]][0]))
            g["rp"] += 1
            c += 1

    def gemm_run(self, g, fill=None):
        fill = fill or {}
        frags, D, gid = g["frags"], g["D"], g["gid"]
        n = len(frags)
        mi = 0
        pend = []
        LATE = self.o.get("late", 3)
        for t, f in enumerate(frags):
            s = vWB + 4 * (t % 8)
            if t % 2 == 0:
                self.ds_wait(("w", gid, min(t + 1, n - 1)))
            nm = len(f["mf"])
            for j, (acc, act_, sw, first, wt) in enumerate(f["mf"]):
                if wt is not None:
                    self.vm_wait(wt)
                c = "0" if first else vr(acc, 4) if acc is not None else ar(aCS, 4)
                if acc is None:
                    self(f"v_mfma_f32_16x16x32_bf16 {ar(aCS,4)}, {ar(aONES,4)}, {vr(s,4)}, {c}")
                elif sw:
                    self(f"v_mfma_f32_16x16x32_bf16 {vr(acc,4)}, {vr(s,4)}, {vr(act_,4)}, {c}")
                else:
                    self(f"v_mfma_f32_16x16x32_bf16 {vr(acc,4)}, {vr(act_,4)}, {vr(s,4)}, {c}")
                rp0 = g["rp"]
                self._issue(g, t + D, 99 if j == nm - 1 else 1)
                room = 8 - 4 * (g["rp"] - rp0) - (4 if (j == nm - 1 and t % 2 == 1) else 0)
                pend += [(mi, x) for x in fill.pop(mi, [])]
                while pend:
                    cst = getattr(pend[0][1], "cost", 4)
                    if cst <= room or (room == 8 and cst > 8) or mi - pend[0][0] >= LATE:
                        self.play([pend.pop(0)[1]])
                        room -= cst
                    else:
                        break
                mi += 1
        self.play([x for _, x in pend])
        for key in sorted(fill):
            self.play(fill[key])

    def gemm(self, frags, fill=None, D=6):
        self.gemm_run(self.gemm_begin(frags, D), fill)


def merge_waits(lines):
    import re
    out = []
    for l in lines:
        m = re.match(r"\s*s_waitcnt (\w+)\((\d+)\)$", l)
        if m and out:
            p = re.match(r"\s*s_waitcnt (\w+)\((\d+)\)$", out[-1])
            if p and p.group(1) != m.group(1):
                out[-1] = out[-1] + f" {m.group(1)}({m.group(2)})"
                continue
        out.append(l)
    return out


def spread(fill, items, start, step, per=1):
    p = start
    if step == 0:
        g = lambda: [x() for x in items]
        g.cost = sum(getattr(x, "cost", 4) for x in items)
        fill.setdefault(int(p), []).append(g)
        return p
    for i in range(0, len(items), per):
        fill.setdefault(int(p), []).extend(items[i:i + per])
        p += step
    return p


def mix(a, b, ratio):
    out = []
    bi = 0
    for i, x in enumerate(a):
        out.append(x)
        if (i + 1) % ratio == 0 and bi < len(b):
            out.append(b[bi]); bi += 1
    out.extend(b[bi:])
    return out


def act(ks, rb):
    return vACT + 8 * ks + 4 * rb


def gen(stamps=False, opts=None):
    k = K(stamps, opts)
    o = k.o
    if stamps:
        k(f"{'s_memrealtime' if o.get('rt') else 's_memtime'} s[{sST}:{sST+1}]")
        k(f"s_memrealtime s[{sPC}:{sPC+1}]")
    k(f"""
    s_cmp_ge_u32 s2, 256
    s_cbranch_scc1 L_end
    s_load_dwordx2 s[{S_X}:{S_X+1}], s[0:1], 0
    s_load_dwordx2 s[{S_WQKV}:{S_WQKV+1}], s[0:1], 8
    s_load_dwordx2 s[{S_WS}:{S_WS+1}], s[0:1], 64
    s_load_dwordx2 s[{S_WO}:{S_WO+1}], s[0:1], 16
    s_load_dwordx2 s[{S_W1}:{S_W1+1}], s[0:1], 32
    s_load_dwordx2 s[{S_W2}:{S_W2+1}], s[0:1], 40
    s_load_dwordx2 s[{S_OUT}:{S_OUT+1}], s[0:1], 48
    v_lshrrev_b32 v{vT0}, 6, v0
    v_and_b32 v{vLANE}, 63, v0
    s_mov_b32 s{S_X+2}, {2048*1024}
    v_readfirstlane_b32 s{sW}, v{vT0}
    s_mov_b32 s{S_X+3}, 0x20000
    s_mov_b32 s{S_WQKV+2}, {512*3072}
    s_mov_b32 s{S_WQKV+3}, 0x20000
    s_lshr_b32 s{sT0}, s2, 3
    s_and_b32 s{sC}, s{sT0}, 15
    s_lshr_b32 s{sT0}, s{sT0}, 4
    s_and_b32 s{sG}, s2, 7
    s_lshl1_add_u32 s{sG}, s{sG}, s{sT0}
    s_lshr_b32 s{sT1}, s{sC}, 1
    s_xor_b32 s{sT1}, s{sT1}, s{sT0}
    s_and_b32 s{sT1}, s{sT1}, 1
    s_and_b32 s{sRHO}, s{sC}, 1
    s_lshl1_add_u32 s{sRHO}, s{sT1}, s{sRHO}
    v_lshlrev_b32 v{vL16}, 4, v{vLANE}
    """)
    if stamps:
        k(f"v_mov_b32 v{vSTAMP}, 0")
    XS, XR, X2R = vRES, vRES + 4, act(15, 1)
    aRES = 246
    k(f"""
    v_lshrrev_b32 v{vT0}, 4, v{vLANE}
    v_and_b32 v{vT1}, 15, v{vLANE}
    v_xor_b32 v{vT2}, v{vT0}, v{vT1}
    v_lshlrev_b32 v{vT2}, 4, v{vT2}
    v_lshl_add_u32 v{XS}, v{vT0}, 10, v{vT2}
    v_xor_b32 v{XS+1}, 64, v{XS}
    v_xor_b32 v{XS+2}, 0x80, v{XS}
    v_xor_b32 v{XS+3}, 0xc0, v{XS}
    v_lshrrev_b32 v{vP}, 2, v{vLANE}
    v_and_b32 v{vCH}, 3, v{vLANE}
    v_lshrrev_b32 v{vT3}, 3, v{vLANE}
    v_and_b32 v{vT3}, 2, v{vT3}
    v_xor_b32 v{vCH}, v{vCH}, v{vT3}
    v_lshlrev_b32 v{vCH}, 4, v{vCH}
    v_and_b32 v{vT3}, 3, v{vP}
    v_lshl_add_u32 v{vT3}, v{vT0}, 3, v{vT3}
    s_movk_i32 s{sT1}, 3072
    v_mad_u32_u24 v{vDM}, v{vT3}, s{sT1}, v{vCH}
    s_lshl_b32 s{sL0}, s{sW}, 14
    s_add_u32 s{sL0}, s{sL0}, {L_XST}
    s_lshl_b32 s{sT1}, s{sG}, 17
    s_lshl_b32 s{sT2}, s{sW}, 15
    s_add_u32 s{sT1}, s{sT1}, s{sT2}
    s_lshl_b32 s{sL1}, s{sW}, 12
    """)
    for r in range(4):
        k(f"""
        s_add_u32 s{sT2}, s{sRHO}, {r}
        s_and_b32 s{sT2}, s{sT2}, 3
        s_lshl_b32 s{sT3}, s{sT2}, 8
        s_add_u32 s{sD0+r}, s{sT1}, s{sT3}
        s_lshl2_add_u32 s{sT2}, s{sT2}, s{sW}
        s_mul_i32 s{sT2}, s{sT2}, {32*3072}
        s_lshl_b32 s{sT3}, s{sC}, 6
        s_add_u32 s{sRB+r}, s{sT2}, s{sT3}
        """)
    k("s_waitcnt lgkmcnt(0)")
    k(f"s_load_dword s{sEP}, s[{S_WS}:{S_WS+1}], {WS_EPOCH}")
    if stamps:
        k(f"v_writelane_b32 v{vSTAMP}, s{sST}, 62")
        k(f"v_writelane_b32 v{vSTAMP}, s{sPC}, 63")

    def xslot(q, js=range(8)):
        for j in js:
            k.dma(S_X, XS + (j & 3), sD0 + q, j * 4096, sL0, (q & 1) * 8192 + j * 1024, ("xs", q))

    def wkv_raw(r):
        for pr in range(2):
            for hh in range(2):
                k.dma(S_WQKV, vDM, sRB + r, hh * 4 * 3072 + 1024 * (pr + 1), sL1, R0 + r * 16384 + pr * 2048 + hh * 1024, ("wkv", r))

    def quad_lane(pitch, dst=vDM, tmp=vT2):
        vT2 = tmp
        k(f"v_lshrrev_b32 v{dst}, 3, v{vLANE}")
        k(f"v_and_b32 v{vT2}, 6, v{dst}")
        k(f"v_xor_b32 v{vT2}, v{vT2}, v{vLANE}")
        k(f"v_and_b32 v{vT2}, 7, v{vT2}")
        k(f"v_lshlrev_b32 v{vT2}, 4, v{vT2}")
        if isinstance(pitch, int):
            k(f"s_movk_i32 s{sD3}, {pitch}")
            pitch = f"s{sD3}"
        k(f"v_mad_u32_u24 v{dst}, v{dst}, {pitch}, v{vT2}")

    def dma_raw(sr, lds_imm, first, R=None):
        sD0_, sD2_, sL0_, vDM_ = R or (sD0, sD2, sL0, vDM)
        with k.atomic():
            k(f"s_add_u32 m0, s{sL0_}, {lds_imm}")
            k("s_nop 0" if first else f"s_add_u32 s{sD0_}, s{sD0_}, s{sD2_}")
            k(f"buffer_load_dwordx4 v{vDM_}, {srd(sr)}, s{sD0_} offen lds")

    def packU_issue(base, sD0, sD1, sD2, sD3, sL0, vDM, sPDA, shift=12):
        R = (sD0, sD2, sL0, vDM)
        l2, l3, lq, le = k.label("L_u2"), k.label("L_u3"), k.label("L_uq"), k.label("L_ue")
        with k.atomic():
            k(f"""
            s_lshl_b32 s{sL0}, s{sW}, {shift}
            s_add_u32 s{sL0}, s{sL0}, {base}
            s_lshr_b32 s{sD0}, s{sC}, 2
            s_mul_i32 s{sD0}, s{sD0}, 896
            s_mul_i32 s{sD1}, s{sG}, {32*3584}
            s_add_u32 s{sD0}, s{sD0}, s{sD1}
            s_and_b32 s{sD1}, s{sC}, 3
            s_cmp_eq_u32 s{sW}, 3
            s_cbranch_scc1 {l3}
            s_cmp_eq_u32 s{sW}, 2
            s_cbranch_scc1 {l2}
            s_mov_b32 s{S_A}, s{S_W2}
            s_mov_b32 s{S_A+1}, s{S_W2+1}
            s_mov_b32 s{S_A+2}, {1792*1024}
            s_movk_i32 s{sD2}, 1024
            s_lshl1_add_u32 s{sD0}, s2, s{sW}
            s_lshr_b32 s{sD1}, s{sD0}, 3
            s_and_b32 s{sD0}, s{sD0}, 7
            s_mul_i32 s{sPDA}, s{sD0}, 56
            s_add_u32 s{sPDA}, s{sPDA}, s{sD1}
            s_lshl_b32 s{sPDA}, s{sPDA}, 12
            s_add_u32 s{sPDA}, s{sPDA}, {WS_W2T}
            s_cmp_ge_u32 s{sD1}, 56
            s_cselect_b32 s{sPDA}, {OOB}, s{sPDA}
            s_lshl_b32 s{sD1}, s{sD1}, 15
            s_lshl_b32 s{sD0}, s{sD0}, 7
            s_add_u32 s{sD0}, s{sD0}, s{sD1}
            s_branch {lq}
            {l2}:
            s_mov_b32 s{S_A}, s{S_W1}
            s_mov_b32 s{S_A+1}, s{S_W1+1}
            s_mov_b32 s{S_A+2}, {512*3584}
            s_movk_i32 s{sD2}, 3584
            s_lshl_b32 s{sD1}, s{sD1}, 7
            s_add_u32 s{sD0}, s{sD0}, s{sD1}
            s_lshl_b32 s{sPDA}, s{sG}, 12
            s_add_u32 s{sPDA}, s{sPDA}, s{sPKB}
            s_add_u32 s{sPDA}, s{sPDA}, {PK_W1A}
            {lq}:
            s_mov_b32 s{S_A+3}, 0x20000
            """)
            quad_lane(f"s{sD2}", vDM, vT2 if shift == 14 else vACT + 127)
            k(f"s_lshl_b32 s{sD2}, s{sD2}, 3")
            for j in range(4):
                dma_raw(S_A, j * 1024, j == 0, R)
            k(f"""
            s_branch {le}
            {l3}:
            s_movk_i32 s{sD3}, 3584
            s_mul_i32 s{sPDA}, s{sG}, 3072
            s_add_u32 s{sPDA}, s{sPDA}, s{sPKB}
            s_add_u32 s{sPDA}, s{sPDA}, {PK_W1B}
            s_lshr_b32 s{sT5}, s{sD1}, 1
            s_mul_i32 s{sT5}, s{sT5}, 6
            s_and_b32 s{sD2}, s{sD1}, 1
            s_add_u32 s{sT5}, s{sT5}, s{sD2}
            s_add_u32 s{sT5}, s{sT5}, 18
            s_lshl_b32 s{sT5}, s{sT5}, 5
            s_add_u32 s{sT5}, s{sT5}, s{sD0}
            v_lshrrev_b32 v{vDM}, 1, v{vLANE}
            v_and_b32 v{vT2 if shift == 14 else vACT + 127}, 16, v{vL16}
            v_mad_u32_u24 v{vDM}, v{vDM}, s{sD3}, v{vT2 if shift == 14 else vACT + 127}
            s_add_u32 m0, s{sL0}, 2048
            s_mul_i32 s{sD1}, s{sD1}, 3
            buffer_load_dwordx4 v{vDM}, {srd(S_W1)}, s{sT5} offen lds
            s_add_u32 s{sD1}, s{sD1}, 17
            s_lshr_b32 s{sD1}, s{sD1}, 1
            s_lshl_b32 s{sD1}, s{sD1}, 6
            s_add_u32 s{sD0}, s{sD0}, s{sD1}
            s_mov_b32 s{sD2}, {16*3584}
            v_mad_u32_u24 v{vDM}, v{vP}, s{sD3}, v{vCH}
            """)
            for hh in range(2):
                dma_raw(S_W1, hh * 1024, hh == 0, R)
            k(f"buffer_load_dword a{aDUM}, v{vL16}, {srd(S_W1)}, s{S_W1+2} offen")
            k(f"{le}:")
            k.vm_note(4, "pu")

    def warm():
        k(f"v_lshlrev_b32 v{vT3}, 7, v{vLANE}")
        k("s_mov_b64 exec, 0xf")
        k(f"""
        s_getpc_b64 s[{sPC}:{sPC+1}]
        L_pcref:
        s_lshr_b32 s{sT2}, s2, 3
        s_lshl2_add_u32 s{sT2}, s{sT2}, s{sW}
        s_lshl_b32 s{sT2}, s{sT2}, 9
        s_min_u32 s{sT2}, s{sT2}, CODE_BYTES
        s_add_u32 s{sPC}, s{sPC}, s{sT2}
        s_addc_u32 s{sPC+1}, s{sPC+1}, 0
        """)
        k.vmem(f"global_load_dword a{aDUM}, v{vT3}, s[{sPC}:{sPC+1}]")
        if o.get("warm", 1) >= 1:
            k(f"s_lshl2_add_u32 s{sT2}, s2, s{sW}")
            k(f"s_lshr_b32 s{sT3}, s{sT2}, 1")
            k(f"s_mul_i32 s{sT3}, s{sT3}, 3072")
            k(f"s_and_b32 s{sT4}, s{sT2}, 1")
            k(f"s_lshl_b32 s{sT4}, s{sT4}, 9")
            k(f"s_add_u32 s{sT3}, s{sT3}, s{sT4}")
            k.vmem(f"buffer_load_dword a{aDUM}, v{vT3}, {srd(S_WQKV)}, s{sT3} offen")
            k(f"s_lshl_b32 s{sT3}, s{sT2}, 9")
            k.vmem(f"buffer_load_dword a{aDUM}, v{vT3}, {srd(S_WO)}, s{sT3} offen")
        if o.get("tlb", 0):
            k("s_mov_b64 exec, 1")
            k(f"s_mul_i32 s{sT3}, s{sT2}, 1792")
            k.vmem(f"buffer_load_dword a{aDUM}, v{vT3}, {srd(S_W1)}, s{sT3} offen")
            k.vmem(f"buffer_load_dword a{aDUM}, v{vT3}, {srd(S_W2)}, s{sT3} offen")
            if o["tlb"] > 1:
                k("s_mov_b64 exec, 0x1f")
                k(f"v_lshlrev_b32 v{vWB}, 21, v{vLANE}")
                k(f"s_mov_b32 s{sT3}, {WS_KVX + 0x1f0000}")
                k.vmem(f"buffer_load_dword a{aDUM}, v{vWB}, {srd(S_WS)}, s{sT3} offen")
        if o.get("warm", 1) >= 2:
            k(f"s_mul_i32 s{sT3}, s{sT2}, 1792")
            k("s_mov_b64 exec, 0x3fff")
            k.vmem(f"buffer_load_dword a{aDUM}, v{vT3}, {srd(S_W1)}, s{sT3} offen")
            k.vmem(f"buffer_load_dword a{aDUM}, v{vT3}, {srd(S_W2)}, s{sT3} offen")
        k(f"s_lshl2_add_u32 s{sT2}, s{sC}, s{sW}")
        k(f"s_lshl_b32 s{sT2}, s{sT2}, 8")
        k(f"s_add_u32 s{sT2}, s{sT2}, s{sGB}")
        k("s_mov_b64 exec, 3")
        k.vmem(f"buffer_load_dword a{aDUM}, v{vT3}, {srd(S_WS)}, s{sT2} offen sc1", "touch")
        k("s_mov_b64 exec, -1")

    OWN = vACC
    k(f"s_lshl_b32 s{sT2}, s{sC}, 11")
    k(f"s_add_u32 s{sT2}, s{sT2}, s{sT1}")
    for r in range(2):
        k.vmem(f"buffer_load_dwordx4 {vr(OWN+4*r,4)}, v{vL16}, {srd(S_X)}, s{sT2} offen offset:{r*1024}", "own")
    wkv_raw(0)
    k(f"""
    s_mov_b32 s{S_WO+2}, {512*1024}
    s_mov_b32 s{S_WO+3}, 0x20000
    s_mov_b32 s{S_W1+2}, {512*3584}
    s_mov_b32 s{S_W1+3}, 0x20000
    s_mov_b32 s{S_W2+2}, {1792*1024}
    s_mov_b32 s{S_W2+3}, 0x20000
    s_mov_b32 s{S_WS+2}, {WS_USED}
    s_mov_b32 s{S_WS+3}, 0x20000
    s_lshl_b32 s{sGB}, s{sG}, 20
    s_add_u32 s{sGB}, s{sGB}, {GRP0}
    """)
    warm()
    UF = o.get("uf", 1)
    k(f"s_mul_i32 s{sPKB}, s{sC}, {PK_SZ}")
    k(f"s_add_u32 s{sPKB}, s{sPKB}, {WS_PK}")
    if UF == 1:
        packU_issue(R1, sH1, sH1b, sH2, sH2b, sH3, vWB + 8, sPDB)

    def arm(mode):
        with k.atomic():
            k(f"s_lshl2_add_u32 s{sT2}, s{sC}, s{sW}")
            k(f"s_lshl_b32 s{sT3}, s{sT2}, 11")
            k(f"s_add_u32 s{sT3}, s{sT3}, s{sGB}")
            k(f"s_add_u32 s{sT3}, s{sT3}, {G_X1}")
            k(f"s_lshr_b32 s{sT4}, s{sT2}, 3")
            k(f"s_mul_i32 s{sT4}, s{sT4}, 57344")
            k(f"s_and_b32 s{sT2}, s{sT2}, 7")
            k(f"s_mul_i32 s{sT2}, s{sT2}, {5120 if mode & 4 else 1024}")
            k(f"s_add_u32 s{sT4}, s{sT4}, s{sT2}")
            k(f"s_add_u32 s{sT4}, s{sT4}, s{sGB}")
            k(f"s_add_u32 s{sT4}, s{sT4}, {G_H + 16*1024}")
            k(f"s_add_u32 s{sT2}, s{sT4}, 4096")
        if mode & 1:
            for j in range(2):
                k.vmem(f"buffer_store_dwordx4 {vr(vQ0,4)}, v{vL16}, {srd(S_WS)}, s{sT3} offen offset:{j*1024} sc1", "arm")
        for j in range(5 if mode & 4 else 1 if mode & 2 else 0):
            k.vmem(f"buffer_store_dwordx4 {vr(vQ0,4)}, v{vL16}, {srd(S_WS)}, s{sT4 if j < 4 else sT2} offen offset:{(j%4)*1024} sc1", "arm")

    k(f"""
    s_mov_b32 s{S_OUT+2}, {2048*1024}
    s_mov_b32 s{S_OUT+3}, 0x20000
    s_lshr_b32 s{sDH}, s{sC}, 3
    s_and_b32 s{sCT}, s{sC}, 7
    s_mov_b32 s{sBUD}, 150000
    s_mov_b32 s{sEPS}, 0x358637bd
    s_mov_b32 s{sEPS+1}, 0x358637bd
    s_getreg_b32 s{sXCC}, hwreg(HW_REG_XCC_ID, 0, 4)
    s_lshl_b32 s{sACT}, s{sW}, 15
    s_add_u32 s{sACT}, s{sACT}, s{sGB}
    s_add_u32 s{sACT1}, s{sACT}, 16384
    s_lshl2_add_u32 s{sT0}, s{sDH}, s{sW}
    s_lshl_b32 s{sBACT}, s{sT0}, 14
    s_add_u32 s{sBACT}, s{sBACT}, s{sGB}
    s_lshl_b32 s{sTILE}, s{sCT}, 11
    s_add_u32 s{sTILE}, s{sTILE}, s{sBACT}
    s_mul_i32 s{sBACT}, s{sT0}, 57344
    s_add_u32 s{sBACT}, s{sBACT}, s{sGB}
    s_mul_i32 s{sOST}, s{sW}, {2*57344}
    s_lshl_b32 s{sOST1}, s{sC}, 10
    s_add_u32 s{sOST}, s{sOST}, s{sOST1}
    s_add_u32 s{sOST}, s{sOST}, s{sGB}
    s_add_u32 s{sOST}, s{sOST}, {G_O}
    s_add_u32 s{sOST1}, s{sOST}, 57344
    s_lshl_b32 s{sFXp}, s{sW}, 7
    s_add_u32 s{sFXp}, s{sFXp}, s{sGB}
    s_lshl2_add_u32 s{sFOo}, s{sC}, s{sFXp}
    s_lshl_b32 s{sFHp}, s{sT0}, 7
    s_add_u32 s{sFHp}, s{sFHp}, s{sGB}
    s_lshr_b32 s{sT0}, s{sT0}, 1
    s_mov_b32 s{sT1}, s{sT0}
    s_lshl_b32 s{sFOp}, s{sT0}, 7
    s_add_u32 s{sFOp}, s{sFOp}, s{sGB}
    s_and_b32 s{sT2}, s{sW}, 1
    s_lshl1_add_u32 s{sT3}, s{sCT}, s{sT2}
    s_lshl2_add_u32 s{sFXo}, s{sT3}, s{sFOp}
    s_lshl3_add_u32 s{sT3}, s{sT0}, s{sCT}
    s_lshl_b32 s{sT3}, s{sT3}, 8
    s_lshl3_add_u32 s{sT3}, s{sT2}, s{sT3}
    s_add_u32 s{sSTo}, s{sT3}, s{sGB}
    s_lshl_b32 s{sSTg}, s{sW}, 11
    s_add_u32 s{sSTg}, s{sSTg}, s{sGB}
    s_lshl2_add_u32 s{sT1}, s{sT1}, s{sT2}
    s_lshl_b32 s{sT1}, s{sT1}, 6
    s_add_u32 s{sT1}, s{sT1}, {L_STAT + 128}
    v_lshl_add_u32 v{vT3}, v{vT1}, 2, s{sT1}
    v_accvgpr_write_b32 a{cRSD}, v{vT3}
    s_mul_i32 s{sT0}, s{sW}, {2*57344}
    s_add_u32 s{sT0}, s{sT0}, s{sGB}
    s_lshr_b32 s{sT3}, s{sC}, 2
    s_add_u32 s{sT0}, s{sT0}, {G_H}
    s_lshl_b32 s{sH1}, s{sC}, 11
    s_add_u32 s{sH1}, s{sH1}, {24*1024}
    s_add_u32 s{sH1}, s{sH1}, s{sT0}
    s_add_u32 s{sH1b}, s{sH1}, 57344
    s_mul_i32 s{sT4}, s{sT3}, 6144
    s_add_u32 s{sT0}, s{sT0}, s{sT4}
    s_and_b32 s{sT4}, s{sC}, 3
    s_mul_i32 s{sH2}, s{sT4}, 3
    s_add_u32 s{sH2}, s{sH2}, 1
    s_lshr_b32 s{sH2}, s{sH2}, 1
    s_lshl_b32 s{sH2}, s{sH2}, 10
    s_add_u32 s{sH2}, s{sH2}, s{sT0}
    s_add_u32 s{sH2b}, s{sH2}, 57344
    s_lshr_b32 s{sH3}, s{sT4}, 1
    s_mul_i32 s{sH3}, s{sH3}, 3072
    s_and_b32 s{sH3b}, s{sT4}, 1
    s_lshl3_add_u32 s{sH3}, s{sH3b}, s{sH3}
    s_add_u32 s{sH3}, s{sH3}, 1024
    s_add_u32 s{sH3}, s{sH3}, s{sT0}
    s_add_u32 s{sH3b}, s{sH3}, 57344
    s_lshr_b32 s{sT0}, s{sW}, 1
    s_lshl2_add_u32 s{sT0}, s{sT0}, s{sT3}
    s_lshl_b32 s{sT0}, s{sT0}, 7
    s_lshl1_add_u32 s{sT2}, s{sT4}, s{sT2}
    s_lshl2_add_u32 s{sT0}, s{sT2}, s{sT0}
    s_add_u32 s{sFHo}, s{sT0}, s{sGB}
    """)
    k(f"""
    s_mul_i32 s{sT0}, s{sC}, {KVX_C}
    s_add_u32 s{sT0}, s{sT0}, {WS_KVX}
    s_lshl_b32 s{sT1}, s{sW}, 13
    s_add_u32 s{sKVC}, s{sT0}, s{sT1}
    s_lshl_b32 s{sT2}, s{sW}, 14
    s_lshl_b32 s{sT3}, s{sG}, 10
    s_lshl_b32 s{sT4}, s{sG}, 7
    s_cmp_lt_u32 s{sW}, 2
    s_cselect_b32 s{sT3}, s{sT3}, s{sT4}
    s_cselect_b32 s{sKM}, -1, 0x30003
    s_cselect_b32 s{sKM+1}, -1, 0x30003
    s_cselect_b64 vcc, -1, 0
    s_add_u32 s{sKVP}, s{sT0}, s{sT2}
    s_add_u32 s{sKVP}, s{sKVP}, s{sT3}
    s_cmp_eq_u32 s{sW}, 3
    s_cselect_b32 s{sKVP}, {OOB}, s{sKVP}
    v_lshlrev_b32 v{vT3}, 4, v{vT0}
    v_lshl_add_u32 v{vT3}, v{vT1}, 6, v{vT3}
    v_cndmask_b32 v{vT3}, v{vT3}, v{vL16}, vcc
    v_accvgpr_write_b32 a{cKVS}, v{vT3}
    v_lshlrev_b32 v{vT3}, 2, v{vL16}
    v_and_b32 v{vT3}, 0xf00, v{vT3}
    v_lshrrev_b32 v{vT3}, 1, v{vT3}
    v_and_b32 v{vWB}, 48, v{vL16}
    s_lshr_b32 s{sT2}, s{sW}, 1
    s_lshl_b32 s{sT2}, s{sT2}, 6
    s_add_u32 s{sT2}, s{sT2}, 32768
    s_sub_u32 s{sT2}, s{sT2}, s{sT1}
    v_add3_u32 v{vT3}, v{vT3}, v{vWB}, s{sT2}
    v_accvgpr_write_b32 a{cZL}, v{vT3}
    v_and_b32 v{vWB+5}, 1, v{vLANE}
    v_cndmask_b32 v{vWB+5}, v{vWB+5}, 0, vcc
    s_min_u32 s{sT5}, s{sW}, 2
    """)
    W = vWB
    k(f"""
    v_lshl_add_u32 v{XR}, v{vT1}, 8, v{vT2}
    v_add_u32 v{XR}, s{sL0}, v{XR}
    v_xor_b32 v{XR+1}, 64, v{XR}
    v_xor_b32 v{XR+2}, 0x80, v{XR}
    v_xor_b32 v{XR+3}, 0xc0, v{XR}
    v_and_b32 v{vT3}, 3, v{vLANE}
    v_lshlrev_b32 v{vT3}, 3, v{vT3}
    v_lshl_add_u32 v{vTR0}, v{vP}, 6, v{vT3}
    v_lshl_add_u32 v{vQ0}, v{vP}, 7, v{vT3}
    v_and_b32 v{vT3}, 1, v{vT0}
    v_lshlrev_b32 v{vT3}, 5, v{vT3}
    v_add_u32 v{vTR0}, v{vTR0}, v{vT3}
    v_xor_b32 v{vTR1}, 32, v{vTR0}
    v_bfe_u32 v{vT3}, v{vLANE}, 3, 2
    v_lshl_add_u32 v{vQ0}, v{vT3}, 5, v{vQ0}
    v_xor_b32 v{vQ1}, 32, v{vQ0}
    v_xor_b32 v{vQ2}, 64, v{vQ0}
    v_xor_b32 v{vQ3}, 0x60, v{vQ0}
    v_lshlrev_b32 v{W}, 2, v{vT1}
    v_accvgpr_write_b32 a{cP16}, v{W}
    v_mov_b32 v{W+1}, {BF1}
    v_accvgpr_write_b32 a{aONES}, v{W+1}
    v_accvgpr_write_b32 a{aONES+1}, v{W+1}
    v_accvgpr_write_b32 a{aONES+2}, v{W+1}
    v_accvgpr_write_b32 a{aONES+3}, v{W+1}
    v_add_u32 v{W+1}, {L_CS}, v{W}
    v_accvgpr_write_b32 a{cCSA}, v{W+1}
    v_and_b32 v{W+2}, 48, v{vLANE}
    v_add_u32 v{W+1}, {L_CS}, v{W+2}
    v_accvgpr_write_b32 a{cCSB}, v{W+1}
    v_lshlrev_b32 v{W+1}, 2, v{vT0}
    v_lshl_add_u32 v{W+1}, v{vT1}, 4, v{W+1}
    v_accvgpr_write_b32 a{cSTO}, v{W+1}
    s_lshl_b32 s{sT0}, s{sW}, 8
    s_add_u32 s{sT0}, s{sT0}, {L_STAT}
    v_add_u32 v{W+1}, s{sT0}, v{W}
    v_accvgpr_write_b32 a{cSTA}, v{W+1}
    v_and_b32 v{W+3}, 32, v{vLANE}
    v_lshl_add_u32 v{W+1}, v{W+3}, 1, v{W+1}
    v_accvgpr_write_b32 a{cSTW}, v{W+1}
    v_add_u32 v{W+1}, s{sT0}, v{W+2}
    v_accvgpr_write_b32 a{cSTB}, v{W+1}
    s_lshl_b32 s{sT0}, s{sW}, 10
    v_add_u32 v{W+1}, s{sT0}, v{vL16}
    v_accvgpr_write_b32 a{cKW}, v{W+1}
    v_add_u32 v{W+3}, {R2 + 8192}, v{W+1}
    v_accvgpr_write_b32 a{cKW1}, v{W+3}
    s_lshl_b32 s{sT0}, s{sT5}, 14
    v_add_u32 v{W+1}, s{sT0}, v{vL16}
    v_lshl_add_u32 v{W+1}, v{W+5}, 12, v{W+1}
    v_accvgpr_write_b32 a{cKR}, v{W+1}
    s_lshl_b32 s{sT0}, s{sT5}, 14
    s_add_u32 s{sT0}, s{sT0}, {R2 + 8192}
    v_add_u32 v{W+1}, s{sT0}, v{vL16}
    v_lshl_add_u32 v{W+1}, v{W+5}, 14, v{W+1}
    v_accvgpr_write_b32 a{cKR1}, v{W+1}
    v_add_u32 v{W+1}, {L_XB}, v{vL16}
    v_accvgpr_write_b32 a{cXR}, v{W+1}
    v_lshlrev_b32 v{W+3}, 3, v{vT0}
    v_add_u32 v{W+3}, {L_ZB}, v{W+3}
    v_accvgpr_write_b32 a{cZR}, v{W+3}
    """)
    k(f"""
    s_lshl_b32 s{sT0}, s{sW}, 10
    v_add_u32 v{W+1}, s{sT0}, v{W+1}
    v_accvgpr_write_b32 a{cXW}, v{W+1}
    v_and_b32 v{W+3}, 1, v{vT0}
    v_lshrrev_b32 v{W+4}, 1, v{vT0}
    v_lshl_add_u32 v{W+3}, v{W+3}, 1, v{W+4}
    v_and_b32 v{W+4}, 3, v{vLANE}
    v_lshl_add_u32 v{W+3}, v{W+4}, 2, v{W+3}
    s_lshr_b32 s{sT0}, s{sW}, 1
    s_lshl_b32 s{sT0}, s{sT0}, 5
    s_add_u32 s{sT0}, s{sT0}, {L_ZB}
    v_lshl_add_u32 v{W+3}, v{W+3}, 1, s{sT0}
    v_accvgpr_write_b32 a{cZW}, v{W+3}
    """)
    for j in range(4):
        k(f"s_add_u32 s{sT0}, s{sW}, {j}")
        k(f"s_and_b32 s{sT0}, s{sT0}, 3")
        k(f"s_lshl_b32 s{sT0}, s{sT0}, 13")
        k(f"s_add_u32 s{sT0}, s{sT0}, {L_RED + (4096 if j == 2 else 0)}")
        k(f"v_add_u32 v{W+1}, s{sT0}, v{vL16}")
        k(f"v_accvgpr_write_b32 a{cRD0+j}, v{W+1}")
    k(f"""
    s_lshl2_add_u32 s{sT0}, s{sDH}, s{sW}
    s_lshl3_add_u32 s{sT0}, s{sG}, s{sT0}
    s_lshl_b32 s{sT0}, s{sT0}, 14
    s_lshl_b32 s{sT1}, s{sCT}, 7
    s_add_u32 s{sT0}, s{sT0}, s{sT1}
    v_lshl_add_u32 v{W+1}, v{vT1}, 10, s{sT0}
    v_and_b32 v{W+3}, 1, v{vT0}
    v_lshl_add_u32 v{W+1}, v{W+3}, 5, v{W+1}
    v_lshrrev_b32 v{W+3}, 1, v{vT0}
    v_lshl_add_u32 v{W+1}, v{W+3}, 4, v{W+1}
    v_accvgpr_write_b32 a{cOUT}, v{W+1}
    """)

    def xread(q):
        k.vm_wait(("xs", q))
        for ksl in range(4):
            for rb in range(2):
                k.lds(f"ds_read_b128 {vr(act(4*q+ksl, rb),4)}, v{XR+ksl} offset:{(q%2)*8192 + rb*4096}", ("xr", q))

    SUM0, SQ0, SUM1, SQ1 = vACC + 56, vACC + 57, vACC + 58, vACC + 59
    SUMA, SQA = vACC + 48, vACC + 56
    ONES = vPQ + 4
    NM_A, RS_A, RL_A = vACC + 60, vACC + 62, vACC + 56
    NM_B, RS_B, RL_B = vACC + 32, vACC + 40, vACC + 48
    STG = vACC + 48

    def own_stats():
        a, b, c, d = OWN + 8, OWN + 9, OWN + 10, OWN + 11
        k(f"v_mov_b32 v{OWN+12}, {BF1}")
        k.vm_wait("own")
        for j in range(4):
            r0, r1 = OWN + j, OWN + 4 + j
            k(f"v_dot2_f32_bf16 v{a}, v{OWN+12}, v{r0}, {'0' if j == 0 else f'v{a}'}")
            k(f"v_dot2_f32_bf16 v{c}, v{OWN+12}, v{r1}, {'0' if j == 0 else f'v{c}'}")
            k(f"v_dot2_f32_bf16 v{b}, v{r0}, v{r0}, {'0' if j == 0 else f'v{b}'}")
            k(f"v_dot2_f32_bf16 v{d}, v{r1}, v{r1}, {'0' if j == 0 else f'v{d}'}")
        k(f"""
        s_waitcnt lgkmcnt(0)
        s_mul_i32 s{sTAG}, s{sEP}, 0x9E3779B1
        s_add_u32 s{sTAG}, s{sTAG}, 0x7F4A7C15
        s_add_u32 s{sT8}, s{sEP}, 1
        s_and_b32 s{sT8}, s{sT8}, 0xff
        v_permlane32_swap_b32 v{a}, v{c}
        v_permlane32_swap_b32 v{b}, v{d}
        v_add_f32 v{a}, v{a}, v{c}
        v_add_f32 v{b}, v{b}, v{d}
        v_mov_b32 v{c}, v{a}
        v_mov_b32 v{d}, v{b}
        s_nop 1
        v_permlane16_swap_b32 v{a}, v{c}
        v_permlane16_swap_b32 v{b}, v{d}
        v_add_f32 v{a}, v{a}, v{c}
        v_add_f32 v{b}, v{b}, v{d}
        """)
        for sh in (8, 4, 2, 1):
            k("s_nop 0")
            k(f"v_add_f32_dpp v{a}, v{a}, v{a} row_ror:{sh} row_mask:0xf bank_mask:0xf")
            k(f"v_add_f32_dpp v{b}, v{b}, v{b} row_ror:{sh} row_mask:0xf bank_mask:0xf")
        k(f"""
        v_mul_f32 v{a}, 0xbb000000, v{a}
        v_mul_f32 v{b}, 0x3b000000, v{b}
        v_fma_f32 v{b}, -v{a}, v{a}, v{b}
        v_max_f32 v{b}, 0, v{b}
        v_add_f32 v{b}, 0x3727c5ac, v{b}
        v_rsq_f32 v{b}, v{b}
        v_mov_b32 v{c}, s{sTAG}
        v_lshrrev_b32 v{vT3}, 1, v{vLANE}
        s_lshl4_add_u32 s{sT2}, s{sW}, s{sC}
        s_lshl_b32 s{sT2}, s{sT2}, 7
        s_add_u32 s{sT2}, s{sT2}, s{sGB}
        s_add_u32 s{sT2}, s{sT2}, {G_ST0}
        s_mov_b32 exec_lo, 1
        s_mov_b32 exec_hi, 1
        """)
        k.vmem(f"buffer_store_dwordx4 {vr(a,4)}, v{vT3}, {srd(S_WS)}, s{sT2} offen sc1", "ownst")
        k("s_mov_b64 exec, -1")

    S0 = vACC + 52

    def st0_issue():
        with k.atomic():
            k(f"v_and_b32 v{vT0}, 30, v{vLANE}")
            k(f"v_lshlrev_b32 v{vT0}, 6, v{vT0}")
            k(f"v_and_b32 v{vT1}, 16, v{vL16}")
            k(f"v_add_u32 v{vT0}, v{vT0}, v{vT1}")
            k(f"s_add_u32 s{sT4}, s{sSTg}, {G_ST0}")
            k.vmem(f"buffer_load_dwordx4 {vr(S0,4)}, v{vT0}, {srd(S_WS)}, s{sT4} offen sc1", "st0")

    def st0_use():
        lp, ok = k.label("L_s0"), k.label("L_s0ok")
        with k.atomic():
            k.vm_wait("st0")
            k(f"{lp}:")
            k(f"v_cmp_ne_u32 vcc, s{sTAG}, v{S0+2}")
            k(f"s_cbranch_vccz {ok}")
            k(f"buffer_load_dwordx4 {vr(S0,4)}, v{vT0}, {srd(S_WS)}, s{sT4} offen sc1")
            k("s_waitcnt vmcnt(0)")
            k(f"s_sub_u32 s{sBUD}, s{sBUD}, 1")
            k(f"s_cbranch_scc0 {lp}")
            k(f"s_mov_b32 s{sBUD}, 0")
            k(f"{ok}:")
        k.get(vT0, cSTA)
        k(f"v_and_b32 v{vT1}, 16, v{vLANE}")
        k(f"v_lshl_add_u32 v{vT1}, v{vT1}, 2, v{vT0}")
        k.lds(f"ds_write2_b32 v{vT1}, v{S0}, v{S0+1} offset0:0 offset1:32")
        k.lds(f"ds_read2_b32 {vr(NM_A,2)}, v{vT0} offset0:0 offset1:16", "sta")
        k.lds(f"ds_read2_b32 {vr(RS_A,2)}, v{vT0} offset0:32 offset1:48", "sta")

    def stats_finalize(need_rs):
        k.get(vT1, cSTW)
        k.get(vT0, cSTA)
        k(f"""
        v_permlane32_swap_b32 v{SUM0}, v{SUM1}
        v_permlane32_swap_b32 v{SQ0}, v{SQ1}
        v_add_f32 v{SUM0}, v{SUM0}, v{SUM1}
        v_add_f32 v{SQ0}, v{SQ0}, v{SQ1}
        v_mov_b32 v{SUM1}, v{SUM0}
        v_mov_b32 v{SQ1}, v{SQ0}
        s_nop 0
        v_permlane16_swap_b32 v{SUM0}, v{SUM1}
        v_permlane16_swap_b32 v{SQ0}, v{SQ1}
        v_add_f32 v{SUM0}, v{SUM0}, v{SUM1}
        v_add_f32 v{SQ0}, v{SQ0}, v{SQ1}
        v_mul_f32 v{SUM0}, 0xbb000000, v{SUM0}
        v_mul_f32 v{SQ0}, 0x3b000000, v{SQ0}
        v_fma_f32 v{SQ0}, -v{SUM0}, v{SUM0}, v{SQ0}
        v_max_f32 v{SQ0}, 0, v{SQ0}
        v_add_f32 v{SQ0}, 0x3727c5ac, v{SQ0}
        v_rsq_f32 v{SQ0}, v{SQ0}
        s_nop 0
        """)
        k.lds(f"ds_write2_b32 v{vT1}, v{SUM0}, v{SQ0} offset0:0 offset1:32")
        k.lds(f"ds_read2_b32 {vr(NM_A,2)}, v{vT0} offset0:0 offset1:16", "sta")
        if need_rs:
            k.lds(f"ds_read2_b32 {vr(RS_A,2)}, v{vT0} offset0:32 offset1:48", "sta")

    def stats_b():
        k.get(vT1, cSTB)
        for rb in range(2):
            k.lds(f"ds_read_b128 {vr(NM_B+4*rb,4)}, v{vT1} offset:{64*rb}", "sta")
            k.lds(f"ds_read_b128 {vr(RS_B+4*rb,4)}, v{vT1} offset:{128+64*rb}", "sta")

    def stats_scale():
        k.ds_wait("sta")
        for j in range(8):
            k(f"v_mul_f32 v{RL_B+j}, 0x3fb8aa3b, v{RS_B+j}")
        for j in range(2):
            k(f"v_mul_f32 v{RL_A+j}, 0x3fb8aa3b, v{RS_A+j}")

    def set_ones(r):
        for j in range(4):
            k(f"v_mov_b32 v{r+j}, {BF1}")

    def cs_put(first, sblk):
        k.get(vT0, cCSA)
        k(f"s_lshl_b32 s{sT5}, s{sblk}, 6")
        k(f"v_add_u32 v{vT0}, s{sT5}, v{vT0}")
        k.lds(f"ds_write_b32 v{vT0}, a{aCS} offset:{first*64}")

    def phi_block(acc, nm, cs, rl, rs, dst, tmp, lay):
        s1, s2, s3, s4, s5 = [], [], [], [], []
        for p in range(2):
            a2 = vr(acc + 2*p, 2)
            t2 = vr(tmp + 2*p, 2)
            if lay == "b":
                c2, m = bcast(cs, 1, 3)
                s1.append(f"v_pk_fma_f32 {a2}, {vr(nm+2*p,2)}, {c2}, {a2}{m}")
                s2.append(f"v_pk_mul_f32 {t2}, {a2}, {vr(rl+2*p,2)}")
                s4.append(f"v_pk_fma_f32 {a2}, {a2}, {vr(rs+2*p,2)}, {t2}")
            else:
                c2, m = bcast(nm, 1, 3)
                s1.append(f"v_pk_fma_f32 {a2}, {vr(cs+2*p,2)}, {c2}, {a2}{m}")
                c2, m = bcast(rl, 1, 2)
                s2.append(f"v_pk_mul_f32 {t2}, {a2}, {c2}{m}")
                c2, m = bcast(rs, 1, 3)
                s4.append(f"v_pk_fma_f32 {a2}, {a2}, {c2}, {t2}{m}")
            for j in range(2):
                s3.append(f"v_exp_f32 v{tmp+2*p+j}, v{tmp+2*p+j} clamp")
            s5.append(f"v_pk_add_f32 {a2}, {a2}, s[{sEPS}:{sEPS+1}]")
        for s in s1 + s2 + s3:
            k(s)
        for j in range(4):
            k(f"v_max_f32 v{acc+j}, 0, v{acc+j}")
        for s in s4 + s5:
            k(s)
        for p in range(2):
            k(f"v_cvt_pk_bf16_f32 v{dst+p}, v{acc+2*p}, v{acc+2*p+1}")

    def ring(ks, rb):
        return vACT + 8 * (ks % 6) + 4 * rb
    QA, vPARK = vACT + 48, vACT + 64

    def act_loads(bufoff, act=act):
        for ks in range(16):
            for rb in range(2):
                with k.atomic():
                    if ks % 4 == 0:
                        k(f"s_add_u32 s{sT2+rb}, s{sACT+rb}, {bufoff + ks*1024}")
                    k.vmem(f"buffer_load_dwordx4 {vr(act(ks,rb),4)}, v{vL16}, {srd(S_WS)}, s{sT2+rb} offen offset:{(ks%4)*1024} sc1",
                           ("act", ks, rb))

    def stat_loads(stoff):
        k(f"s_add_u32 s{sT4}, s{sSTg}, {stoff}")
        for j in range(2):
            k.vmem(f"buffer_load_dwordx4 {vr(STG+4*j,4)}, v{vL16}, {srd(S_WS)}, s{sT4} offen offset:{j*1024} sc1", "stg")

    def stat_sum():
        k.vm_wait("stg")
        for j in range(4):
            k(f"v_add_f32 v{SUM0+j}, v{STG+j}, v{STG+4+j}")

    def mf2(acc, ks, sw, wait, first=None, act=act):
        return [(acc + 4 * rb, act(ks, rb), sw, (ks == 0) if first is None else first,
                 (("act", ks, 1) if ks else ("act", ks, rb)) if wait else None) for rb in range(2)]

    def wo_raw():
        with k.atomic():
            quad_lane(1024)
            k(f"s_lshl_b32 s{sD0}, s{sW}, 17")
            k(f"s_lshl_b32 s{sD1}, s{sCT}, 7")
            k(f"s_add_u32 s{sD0}, s{sD0}, s{sD1}")
            k(f"s_lshl_b32 s{sL0}, s{sW}, 14")
        for j in range(16):
            k.dma(S_WO, vDM, sD0, j * 8 * 1024, sL0, R0 + j * 1024, "wo")

    def w1c1_raw():
        with k.atomic():
            quad_lane(3584, tmp=vACT + 127)
            k(f"s_lshr_b32 s{sD0}, s{sC}, 2")
            k(f"s_mul_i32 s{sD0}, s{sD0}, 896")
            k(f"s_and_b32 s{sD1}, s{sC}, 3")
            k(f"s_lshl_b32 s{sD1}, s{sD1}, 7")
            k(f"s_add_u32 s{sD0}, s{sD0}, s{sD1}")
            k(f"s_mul_i32 s{sD1}, s{sW}, {64*3584}")
            k(f"s_add_u32 s{sD0}, s{sD0}, s{sD1}")
            k(f"s_lshl_b32 s{sL0}, s{sW}, 13")
        for half in range(2):
            for j in range(8):
                k.dma(S_W1, vDM, sD0, (half * 256 + j * 8) * 3584, sL0, R1 + half * 32768 + j * 1024, "w1a")

    def lin_dma(src, dst, n, tag, shared=False):
        for j in range(n):
            with k.atomic():
                if j == 0:
                    k(f"s_mul_i32 s{sL0}, s{sW}, {n*1024}")
                    k(f"s_add_u32 s{sD0}, s{sL0}, s{sPKB}")
                    if shared:
                        k(f"s_mul_i32 s{sD1}, s{sDH}, {8*PK_SZ}")
                        k(f"s_sub_u32 s{sD0}, s{sD0}, s{sD1}")
                if j % 4 == 0:
                    k(f"s_add_u32 m0, s{sL0}, {dst + j*1024}")
                    k(f"s_add_u32 s{sD1}, s{sD0}, {src + j*1024}")
                k.vmem(f"buffer_load_dwordx4 v{vL16}, {srd(S_WS)}, s{sD1} offen offset:{(j%4)*1024} sc1 lds", tag)

    def publish_x(bufoff, stoff, floff, pay_sc1):
        k(f"s_add_u32 s{sT1}, s{sTILE}, {bufoff}")
        k.stores([f"buffer_store_dwordx4 {vr(vRES+4*s,4)}, v{vL16}, {srd(S_WS)}, s{sT1} offen offset:{s*1024}" for s in range(2)], pay_sc1)
        a, b, c, d = vT0, vT1, vT2, vT3
        for j in range(4):
            r0, r1 = vRES + j, vRES + 4 + j
            if j == 0:
                k(f"v_mov_b32 v{vWB+9}, {BF1}")
                k(f"v_dot2_f32_bf16 v{b}, v{r0}, v{r0}, 0")
                k(f"v_dot2_f32_bf16 v{d}, v{r1}, v{r1}, 0")
                k(f"v_dot2_f32_bf16 v{a}, v{vWB+9}, v{r0}, 0")
                k(f"v_dot2_f32_bf16 v{c}, v{vWB+9}, v{r1}, 0")
            else:
                k(f"v_dot2_f32_bf16 v{b}, v{r0}, v{r0}, v{b}")
                k(f"v_dot2_f32_bf16 v{d}, v{r1}, v{r1}, v{d}")
                k(f"v_dot2_f32_bf16 v{a}, v{vWB+9}, v{r0}, v{a}")
                k(f"v_dot2_f32_bf16 v{c}, v{vWB+9}, v{r1}, v{c}")
        k.get(vWB + 8, cSTO)
        k(f"""
        s_add_u32 s{sT3}, s{sSTo}, {stoff}
        v_add_f32 v{b}, v{b}, v{d}
        v_add_f32 v{a}, v{a}, v{c}
        s_nop 1
        v_permlane16_swap_b32 v{a}, v{b}
        v_add_f32 v{a}, v{a}, v{b}
        v_mov_b32 v{b}, v{a}
        s_nop 1
        v_permlane32_swap_b32 v{a}, v{b}
        v_add_f32 v{c}, v{a}, v{b}
        s_mov_b32 exec_hi, 0
        """)
        k.stores([f"buffer_store_dword v{c}, v{vWB+8}, {srd(S_WS)}, s{sT3} offen"], False)
        k("s_mov_b64 exec, -1")
        k.poll_prep(15)

    def unpack_res(dst):
        for f in range(4):
            for p in range(2):
                r = vRES + 2*f + p
                k(f"v_lshlrev_b32 v{dst+4*f+2*p}, 16, v{r}")
                k(f"v_and_b32 v{dst+4*f+2*p+1}, 0xffff0000, v{r}")

    def misc_l1():
        k(f"""
        s_add_u32 s{sT2}, s{sTAG}, s{sXCC}
        s_add_u32 s{sT2}, s{sT2}, 2
        v_mov_b32 v{vT1}, s{sT2}
        s_lshl4_add_u32 s{sT2}, s{sG}, s{sC}
        s_lshl_b32 s{sT2}, s{sT2}, 7
        s_add_u32 s{sT2}, s{sT2}, {WS_XID}
        """)
        with k.atomic():
            k(f"s_cmp_lg_u32 s{sW}, 0")
            k(f"s_cselect_b32 s{sT2}, {OOB}, s{sT2}")
            k("s_mov_b64 exec, 1")
            k.vmem(f"buffer_store_dword v{vT1}, v{vL16}, {srd(S_WS)}, s{sT2} offen sc1", "xid")
            k("s_mov_b64 exec, -1")

    def res_load():
        k.get(vT0, cOUT)
        for s_ in range(2):
            k.vmem(f"buffer_load_dwordx4 {vr(vRES+4*s_,4)}, v{vT0}, {srd(S_X)}, 0 offen offset:{64*s_}", "res")

    def touch(kind, vSP=vSP):
        with k.atomic():
            k(f"s_lshl2_add_u32 s{sD3}, s{sC}, s{sW}")
            sD2 = sD3
            if kind == "h":
                k(f"s_mul_i32 s{sD2}, s{sD2}, 7168")
                k(f"s_add_u32 s{sD2}, s{sD2}, s{sGB}")
                k(f"s_add_u32 s{sD2}, s{sD2}, {G_H}")
                k(f"v_lshlrev_b32 v{vSP}, 7, v{vLANE}")
                k("s_mov_b32 exec_hi, 0xffffff")
                k.vmem(f"buffer_load_dword a{aDUM}, v{vSP}, {srd(S_WS)}, s{sD2} offen sc1", "touch")
                k("s_mov_b32 exec_hi, -1")
            else:
                k(f"v_lshlrev_b32 v{vSP}, 7, v{vLANE}")
                k(f"s_lshl_b32 s{sT5}, s{sD2}, 11")
                k(f"s_add_u32 s{sT5}, s{sT5}, s{sGB}")
                k(f"s_add_u32 s{sT5}, s{sT5}, {G_X1}")
                k("s_mov_b64 exec, 0xffff")
                k.vmem(f"buffer_load_dword a{aDUM}, v{vSP}, {srd(S_WS)}, s{sT5} offen sc1", "touch")
                k(f"s_lshl_b32 s{sD2}, s{sD2}, 7")
                k(f"s_add_u32 s{sD2}, s{sD2}, s{sGB}")
                k("s_mov_b64 exec, 1")
                k(f"s_add_u32 s{sD2}, s{sD2}, {G_ST1}")
                k.vmem(f"buffer_load_dword a{aDUM}, v{vSP}, {srd(S_WS)}, s{sD2} offen sc1", "touch")
                k("s_mov_b64 exec, -1")

    def touch_early(mode):
        with k.atomic():
            k(f"s_lshl2_add_u32 s{sJ0}, s{sC}, s{sW}")
            vT3 = vACT + 126
            k(f"v_lshlrev_b32 v{vT3}, 7, v{vLANE}")
            if mode & 1:
                k(f"s_lshl_b32 s{sT5}, s{sJ0}, 11")
                k(f"s_add_u32 s{sT5}, s{sT5}, s{sGB}")
                k(f"s_add_u32 s{sT5}, s{sT5}, {G_X1}")
                k("s_mov_b64 exec, 0xffff")
                k.vmem(f"buffer_load_dword a{aDUM}, v{vT3}, {srd(S_WS)}, s{sT5} offen sc1", "touch")
            if mode & 6:
                n, first = {2: (16, 0), 4: (8, 16), 6: (24, 0)}[mode & 6]
                k(f"s_lshr_b32 s{sT5}, s{sJ0}, 3")
                k(f"s_mul_i32 s{sT5}, s{sT5}, 57344")
                k(f"s_and_b32 s{sJ0}, s{sJ0}, 7")
                k(f"s_mul_i32 s{sJ0}, s{sJ0}, {n*128}")
                k(f"s_add_u32 s{sT5}, s{sT5}, s{sJ0}")
                k(f"s_add_u32 s{sT5}, s{sT5}, s{sGB}")
                k(f"s_add_u32 s{sT5}, s{sT5}, {G_H + first*1024}")
                k(f"s_mov_b64 exec, {(1 << n) - 1}")
                k.vmem(f"buffer_load_dword a{aDUM}, v{vT3}, {srd(S_WS)}, s{sT5} offen sc1", "touch")
            k("s_mov_b64 exec, -1")

    def packN_issue():
        with k.atomic():
            quad_lane(1024)
            k(f"""
            s_movk_i32 s{sD2}, 8192
            s_lshl_b32 s{sD0}, s{sG}, 15
            s_lshl_b32 s{sD1}, s{sCT}, 7
            s_add_u32 s{sD0}, s{sD0}, s{sD1}
            s_lshl_b32 s{sPDA}, s{sG}, 12
            s_add_u32 s{sPDA}, s{sPDA}, s{sPKB}
            s_add_u32 s{sPDA}, s{sPDA}, {PK_WO}
            s_lshl2_add_u32 s{sD1}, s{sDH}, s{sW}
            s_cmp_lg_u32 s{sD1}, 3
            s_cbranch_scc1 L_nskip
            """)
            for j in range(4):
                dma_raw(S_WO, j * 1024, j == 0)
            k("L_nskip:")

    def packN_finish(T):
        k(f"s_lshl2_add_u32 s{sD1}, s{sDH}, s{sW}")
        k(f"s_cmp_lg_u32 s{sD1}, 3")
        k("s_cbranch_scc1 L_nfskip")
        for f in range(4):
            k(f"v_add_u32 v{T+16+f}, {L_XST + 3*16384}, v{vQ0+f}")
        for f in range(4):
            for hh in range(2):
                k(f"ds_read_b64_tr_b16 {vr(T+4*f+2*hh,2)}, v{T+16+f} offset:{hh*2048}")
        k("s_waitcnt lgkmcnt(0)")
        for f in range(4):
            k(f"buffer_store_dwordx4 {vr(T+4*f,4)}, v{vL16}, {srd(S_WS)}, s{sPDA} offen offset:{f*1024} sc1")
        k("L_nfskip:")

    def pack_finish(T, base, shift, quad_if_3, tag="pk", sPDA=sPDA):
        lb, le = k.label("L_qb"), k.label("L_qe")
        k(f"s_lshl_b32 s{sT5}, s{sW}, {shift}")
        k(f"s_add_u32 s{sT5}, s{sT5}, {base}")
        k.vm_wait(tag)
        k.ds_all()
        k(f"s_cmp_eq_u32 s{sW}, 3")
        k(f"s_cbranch_scc{0 if quad_if_3 else 1} {lb}")
        for f in range(4):
            k(f"v_add_u32 v{T+16+f}, s{sT5}, v{vQ0+f}")
        for f in range(4):
            for hh in range(2):
                k(f"ds_read_b64_tr_b16 {vr(T+4*f+2*hh,2)}, v{T+16+f} offset:{hh*2048}")
        k("s_waitcnt lgkmcnt(0)")
        for f in range(4):
            k(f"buffer_store_dwordx4 {vr(T+4*f,4)}, v{vL16}, {srd(S_WS)}, s{sPDA} offen offset:{f*1024} sc1")
        k(f"s_branch {le}")
        k(f"{lb}:")
        k(f"v_add_u32 v{T+16}, s{sT5}, v{vTR0}")
        k(f"v_add_u32 v{T+17}, s{sT5}, v{vTR1}")
        k(f"v_lshl_add_u32 v{T+18}, v{vLANE}, 3, s{sT5}")
        for f in range(2):
            for hh in range(2):
                k(f"ds_read_b64_tr_b16 {vr(T+4*f+2*hh,2)}, v{T+16+f} offset:{hh*1024}")
        nf = 2 if quad_if_3 else 3
        if nf == 3:
            for hh in range(2):
                k(f"ds_read_b64_tr_b16 {vr(T+8+2*hh,2)}, v{T+18} offset:{2048+hh*512}")
        k("s_waitcnt lgkmcnt(0)")
        for f in range(nf):
            k(f"buffer_store_dwordx4 {vr(T+4*f,4)}, v{vL16}, {srd(S_WS)}, s{sPDA} offen offset:{f*1024} sc1")
        if nf == 3:
            k(f"buffer_load_dword a{aDUM}, v{vL16}, {srd(S_W1)}, s{S_W1+2} offen")
            nf = 4
        k(f"{le}:")
        k.vm_note(nf, "pst")

    def pack_flag(off=0):
        k(f"""
        s_lshl_b32 s{sT5}, s2, 7
        s_add_u32 s{sT5}, s{sT5}, {WS_PD + off}
        s_cmp_lg_u32 s{sW}, 0
        s_cselect_b32 s{sT5}, {OOB}, s{sT5}
        v_mov_b32 v{vT1}, s{sTAG}
        s_mov_b64 exec, 1
        """)
        k.vmem(f"buffer_store_dword v{vT1}, v{vL16}, {srd(S_WS)}, s{sT5} offen sc1")
        k("s_mov_b64 exec, -1")

    def pack_check_issue(off, va, vd, sb):
        with k.atomic():
            k(f"v_and_b32 v{va}, 1, v{vLANE}")
            k(f"v_lshlrev_b32 v{va}, 7, v{va}")
            k(f"v_lshrrev_b32 v{vd}, 1, v{vLANE}")
            k(f"s_lshl_b32 s{sT5}, s{sCT if off else sC}, 3")
            k(f"v_add3_u32 v{va}, v{va}, v{vd}, s{sT5}")
            k(f"v_min_u32 v{vd}, 29, v{vLANE}")
            k(f"s_mul_i32 s{sT5}, s{sW}, 56")
            k(f"s_lshr_b32 s{sb}, s{sCT}, 1")
            k(f"s_add_u32 s{sT5}, s{sT5}, s{sb}")
            k(f"s_sub_u32 s{sT5}, s{sT5}, 64")
            k(f"v_lshl_add_u32 v{vd}, v{vd}, 2, s{sT5}")
            k(f"v_cmp_gt_u32 vcc, 16, v{vLANE}")
            k(f"s_mov_b32 s{sb}, {WS_PD + off}")
            k("s_nop 0")
            k(f"v_cndmask_b32 v{va}, v{vd}, v{va}, vcc")
            k(f"v_lshlrev_b32 v{va}, 7, v{va}")
            k.vmem(f"buffer_load_dword v{vd}, v{va}, {srd(S_WS)}, s{sb} offen sc1", "pc")

    def pack_check(va, vd, sb):
        lp, ok = k.label("L_pc"), k.label("L_pcok")
        with k.atomic():
            k.vm_wait("pc")
            k(f"{lp}:")
            k(f"v_cmp_ne_u32 vcc, s{sTAG}, v{vd}")
            k(f"s_cbranch_vccz {ok}")
            k(f"buffer_load_dword v{vd}, v{va}, {srd(S_WS)}, s{sb} offen sc1")
            k("s_waitcnt vmcnt(0)")
            k(f"s_sub_u32 s{sBUD}, s{sBUD}, 1")
            k(f"s_cbranch_scc0 {lp}")
            k(f"s_mov_b32 s{sBUD}, 0")
            k(f"{ok}:")

    aPK = 128

    def park_addr(va, base, shift):
        k(f"v_bfe_u32 v{va}, v{vLANE}, 4, 1")
        k(f"v_lshlrev_b32 v{va}, 10, v{va}")
        k(f"v_lshrrev_b32 v{va+1}, 5, v{vLANE}")
        k(f"v_mul_u32_u24 v{va+1}, 0x120, v{va+1}")
        k(f"v_add_u32 v{va}, v{va}, v{va+1}")
        k(f"v_and_b32 v{va+1}, 0xd8, v{vTR0}")
        k(f"s_lshl_b32 s{sT5}, s{sW}, {shift}")
        k(f"s_add_u32 s{sT5}, s{sT5}, {base}")
        k(f"v_add3_u32 v{va}, v{va}, v{va+1}, s{sT5}")
        k(f"v_xor_b32 v{va+1}, 32, v{va}")

    def park_kv(va):
        for r in range(4):
            for blk in range(4):
                for hh in range(2):
                    k.lds(f"ds_read_b64_tr_b16 {ar(aPK + 16*r + 4*blk + 2*hh, 2)}, v{va + (blk & 1)} offset:{r*16384 + (blk >> 1)*2048 + hh*512}")

    def park_q(va):
        for r in range(4):
            for b in range(2):
                for hh in range(2):
                    k.lds(f"ds_read_b64_tr_b16 {ar(aPK + 64 + 8*r + 4*b + 2*hh, 2)}, v{va + b} offset:{r*8192 + hh*512}")

    def unpark(va):
        with k.atomic():
            k(f"s_lshr_b32 s{sD0}, s{sC}, 1")
            k(f"s_xor_b32 s{sD0}, s{sD0}, s{sG}")
            k(f"s_and_b32 s{sD0}, s{sD0}, 1")
            k(f"s_and_b32 s{sD1}, s{sC}, 1")
            k(f"s_lshl1_add_u32 s{sD0}, s{sD0}, s{sD1}")
        for kind in range(2):
            for r in range(4):
                for b in range(2 if kind else 4):
                    with k.atomic():
                        if b == 0:
                            k(f"s_add_u32 s{sD1}, s{sD0}, {r}")
                            k(f"s_and_b32 s{sD1}, s{sD1}, 3")
                            k(f"s_lshl2_add_u32 s{sD1}, s{sD1}, s{sW}")
                            k(f"s_lshl_b32 s{sD1}, s{sD1}, {11 if kind else 12}")
                            if kind:
                                k(f"s_add_u32 s{sD1}, s{sD1}, {R1}")
                            k(f"v_add_u32 v{va}, s{sD1}, v{vL16}")
                        j = 16 + 2 * r + b if kind else 4 * r + b
                        k.lds(f"ds_write_b128 v{va}, {ar(aPK + 4*j, 4)} offset:{b*1024}", ("up", j // 4))

    def wq_raw():
        k(f"s_lshl_b32 s{sL1}, s{sW}, 11")
        with k.atomic():
            k(f"v_and_b32 v{vT2}, 3, v{vP}")
            k(f"v_lshrrev_b32 v{vDM}, 4, v{vLANE}")
            k(f"v_lshl_add_u32 v{vT2}, v{vDM}, 3, v{vT2}")
            k(f"s_movk_i32 s{sD3}, 3072")
            k(f"v_mad_u32_u24 v{vDM}, v{vT2}, s{sD3}, v{vCH}")
        for r in range(4):
            for hh in range(2):
                k.dma(S_WQKV, vDM, sRB + r, hh * 4 * 3072, sL1, R1 + r * 8192 + hh * 1024, "wq")

    def async_check(tag, soff, imm):
        ok = k.label("L_aok")
        with k.atomic():
            k.vm_wait(tag)
            k(f"v_cmp_ne_u32 vcc, s{sTAG}, v{vT0}")
            k(f"s_cbranch_vccz {ok}")
            k.save_vm()
            k.poll(soff, imm, False)
            k.restore_vm()
            k(f"{ok}:")

    CSK = vT0
    gA = None
    for layer in range(1 if o.get("one") else 2):
        L1 = layer == 0
        sc = o.get("sc1", 0x05)
        psc = lambda i: bool(sc >> (4 * layer + i) & 1)
        PRE = o.get("pre", 8)

        def kv_consts():
            k.get(vPQ, cCSA)
            k.lds(f"ds_read2_b32 {vr(CSK,2)}, v{vPQ} offset0:0 offset1:16", "cs")
            k.lds(f"ds_read2_b32 {vr(CSK+2,2)}, v{vPQ} offset0:32 offset1:48", "cs")
        if L1:
            CSA = vACC + 32
            k(f"s_and_b32 s{sT0}, s{sW}, 1")
            k(f"s_lshl_b32 s{sT0}, s{sT0}, 5")
            k(f"v_xor_b32 v{vPQ+3}, s{sT0}, v{vTR0}")
            k(f"s_lshr_b32 s{sT0}, s{sW}, 1")
            k(f"s_lshl_b32 s{sT0}, s{sT0}, 11")
            k(f"v_add_u32 v{vPQ+2}, s{sT0}, v{vPQ+3}")
            own_stats()
            xslot(0); xslot(1, range(o.get("x1pre", 4)))
            if UF == 1:
                pack_finish(vACT + 64, R1, 12, False, "pu", sPDB)
            xread(0)
            def rnd_begin(r):
                k.vm_wait(("wkv", r))
                k.barrier(True)
                fr = []
                for ks in range(4 * r, 4 * r + 4):
                    fr.append(dict(addr=vPQ + 2, offs=(R0 + ks * 4096, R0 + ks * 4096 + 1024), mf=[(None, None, False, ks == 0, None)]))
                for ks in range(4 * r, 4 * r + 4):
                    for pr in range(2):
                        for b in range(2):
                            base = R0 + ks * 4096 + pr * 2048
                            fr.append(dict(addr=(vTR0, vTR1)[b], offs=(base, base + 1024), mf=mf2(vACC + 16 * pr + 8 * b, ks, False, False)))
                return k.gemm_begin(fr)
            wq = k.rec(wq_raw)
            xslot(1, range(o.get("x1pre", 4), 8))
            g = rnd_begin(0)
            k.stamp("x0")
            f = {}; spread(f, k.rec(lambda: (wkv_raw(1), xslot(2))), 0, 3); spread(f, k.rec(lambda: xread(1)), 30, 1, 2); k.gemm_run(g, f)
            k.stamp("r0")
            g = rnd_begin(1)
            f = {}
            if UF == 1:
                spread(f, k.rec(pack_flag), 1, 0)
            spread(f, k.rec(lambda: (wkv_raw(2), xslot(3))), 0, 3); spread(f, k.rec(lambda: xread(2)), 31, 1, 2); k.gemm_run(g, f)
            k.stamp("r1")
            g = rnd_begin(2)
            nq = o.get("nq", 6)
            if UF == 2:
                pu_ = k.rec(lambda: packU_issue(L_XST + 4096, sD0, sD1, sD2, sD3, sJ0, vDM, sPDB, 14))
                wq = pu_ + wq if o.get("pufirst", 1) else wq + pu_
            f = {}; spread(f, k.rec(lambda: (wkv_raw(3), st0_issue())) + wq[:nq], 0, 3); spread(f, k.rec(lambda: xread(3)), 31, 1, 2); k.gemm_run(g, f)
            k.stamp("r2")
            g = rnd_begin(3)
            f = {}
            spread(f, k.rec(st0_use), 0, 1)
            spread(f, k.rec(lambda: cs_put(0, sW)), 8, 0)
            spread(f, k.rec(stats_b), 10, 1)
            spread(f, k.rec(stats_scale), 24, 1)
            spread(f, k.rec(lambda: park_addr(vRES + 2, R0, 12)), 15, 0)
            pn = k.rec(lambda: (packN_issue(), k.vmem(f"buffer_load_dword a{aDUM}, v{vL16}, {srd(S_W1)}, s{S_W1+2} offen", "pn")))
            pci = k.rec(lambda: pack_check_issue(0, vRES, vRES + 1, sPDB)) if UF == 1 else []
            spread(f, wq[nq:] + pn + pci, 1, o.get("r3s", 5))
            bg = k.rec(misc_l1)
            k.gemm_run(g, f)
            k.stamp("A.kv")
            k.barrier()
            kv_consts()
        else:
            k.poll(sFXp, G_FX2)
            k.stamp("A.poll")
            al = k.rec(lambda: act_loads(G_X2, ring))
            PA = o.get("prea", 6)
            k.play(al[:PA])
            k(f"s_add_u32 s{sTAG}, s{sTAG}, 1")
            fill = {}
            sl = k.rec(lambda: stat_loads(G_ST2))
            e = spread(fill, al[PA:12] + [lambda: k.play(sl[:2]), sl[2]], 0, 4)
            for i_ in range(12, 32):
                pos = max(12 * (i_ // 2 - 6) + 11 + 6 * (i_ & 1), e)
                spread(fill, [al[i_]], pos, 1)
                e = pos + 3
            e2 = spread(fill, k.rec(lambda: (stat_sum(), stats_finalize(True), stats_b())), 70, 1.5)
            e2 = spread(fill, k.rec(stats_scale), e2 + 6, 1.5)
            spread(fill, k.rec(kv_consts), e2, 1.5)
            spread(fill, k.rec(lambda: lin_dma(PK_WO + 32768, R2, 8, "wo", True)), e, o.get("wos", 6))
            QL = o.get("qlag", 0)
            if QL:
                pe = k.rec(lambda: (k.ds_wait("cs"), [phi_block(vACC + 4*rb, NM_B + 4*rb, CSK, RL_B + 4*rb, RS_B + 4*rb, vPQ + 2*rb, vACT + 40, "b") for rb in range(2)]))
                spread(fill, pe, 192 - 4 * QL, 4 * QL / len(pe))
            k.gemm_run(gA, fill)
            k.stamp("A.kv")
            k("s_barrier")
            bg = []
        k("s_nop 2")
        k.get(vWB + 22, cKW1 if L1 else cKW)
        k.get(vWB + 23, cKR1 if L1 else cKR)
        k.ds_all()
        PK, PV, TMP = vPQ, vACC, vWB + 24
        KVA = vACC + 16

        def kv_epi():
            for h in range(1 if (not L1 and o.get("qlag", 0)) else 0, 2):
                for rb in range(2):
                    phi_block(vACC + 8*h + 4*rb, NM_B + 4*rb, CSK + h, RL_B + 4*rb, RS_B + 4*rb, PK + 4*h + 2*rb, TMP, "b")
            for h in range(2):
                for rb in range(2):
                    a = vACC + 16 + 8*h + 4*rb
                    c2, m = bcast(CSK + 2 + h, 1, 3)
                    for p in range(2):
                        k(f"v_pk_fma_f32 {vr(a+2*p,2)}, {vr(NM_B+4*rb+2*p,2)}, {c2}, {vr(a+2*p,2)}{m}")
                    for p in range(2):
                        k(f"v_pk_mul_f32 {vr(a+2*p,2)}, {vr(a+2*p,2)}, {vr(RS_B+4*rb+2*p,2)}")
                    for p in range(2):
                        k(f"v_cvt_pk_bf16_f32 v{PV+4*h+2*rb+p}, v{a+2*p}, v{a+2*p+1}")
                    if rb == 0:
                        k(f"v_mfma_f32_16x16x32_bf16 {vr(vACC+8+4*h,4)}, {vr(PK+4*h,4)}, {ar(aONES,4)}, 0")
                if h == 0:
                    pass
        if L1:
            k.play(mix(k.rec(kv_epi), k.rec(lambda: park_kv(vRES + 2)), 3))
        else:
            wod = k.rec(lambda: lin_dma(PK_WO, R1, 8, "wo", True))
            nwo = o.get("nwo", 0)
            k.play(mix(k.rec(kv_epi), wod[:nwo], 100 // max(nwo, 1))); wod = wod[nwo:]
        KRO = [0, 16384, 32768, 49152 if L1 else 36864]
        k.lds(f"ds_write_b128 v{vWB+22}, {vr(vACC+8,4)} offset:{KRO[2]}")
        for h in range(2):
            k(f"v_mfma_f32_16x16x32_bf16 {vr(KVA+4*h,4)}, {vr(PK+4*h,4)}, {vr(PV+4*h,4)}, 0")
        k.lds(f"ds_write_b128 v{vWB+22}, {vr(vACC+12,4)} offset:{KRO[3]}")
        k.get(vWB + 21, cKVS)
        k("s_nop 4")
        for h in range(2):
            k.lds(f"ds_write_b128 v{vWB+22}, {vr(KVA+4*h,4)} offset:{KRO[h]}")
        if L1 and UF == 1:
            k.vm_wait("wq")
        k.barrier()
        for s in range(4):
            k.lds(f"ds_read_b128 {vr(vWB+4*s,4)}, v{vWB+23} offset:{s*1024}", ("kr", s))
        KO = vACC + 32
        k.ds_wait(("kr", 1))
        for p in range(2):
            k(f"v_pk_add_f32 {vr(vWB+2*p,2)}, {vr(vWB+2*p,2)}, {vr(vWB+4+2*p,2)}")
        k.ds_wait(("kr", 3))
        for p in range(2):
            k(f"v_pk_add_f32 {vr(vWB+8+2*p,2)}, {vr(vWB+8+2*p,2)}, {vr(vWB+12+2*p,2)}")
        for p in range(2):
            k(f"v_pk_add_f32 {vr(KO+2*p,2)}, {vr(vWB+2*p,2)}, {vr(vWB+8+2*p,2)}")
        k(f"v_and_b32 v{KO}, 0xffffff00, v{KO}")
        k(f"v_or_b32 v{KO}, s{sT8}, v{KO}")
        k(f"s_mov_b64 exec, s[{sKM}:{sKM+1}]")
        k.vmem(f"buffer_store_dwordx4 {vr(KO,4)}, v{vWB+21}, {srd(S_WS)}, s{sKVP} offen sc1", "kvst")
        k("s_mov_b64 exec, -1")
        k.stamp("A.kvpub")
        fill = {}
        fr = []
        CSQ = vACC + 24

        def w2t_loads():
            for j in range(56):
                with k.atomic():
                    if j == 0:
                        k(f"s_lshl2_add_u32 s{sPDB}, s{sCT}, s{sW}")
                        k(f"s_mul_i32 s{sPDB}, s{sPDB}, 57344")
                        k(f"s_add_u32 s{sPDB}, s{sPDB}, {WS_W2T}")
                    if j % 4 == 0:
                        k(f"s_add_u32 s{sJ0}, s{sPDB}, {j*1024}")
                    k.vmem(f"buffer_load_dwordx4 {ar(4*j,4)}, v{vL16}, {srd(S_WS)}, s{sJ0} offen offset:{(j%4)*1024} sc1", ("w2t", j // 4))

        w2 = k.rec(w2t_loads) if L1 else []

        def takew2(name, dflt):
            nonlocal w2
            n = min(o.get(name, dflt), len(w2) - 24) if L1 else 0
            r, w2 = w2[:n], w2[n:]
            return r

        def q_consts():
            k.get(vT0, cCSB)
            for h in range(2):
                k.lds(f"ds_read_b128 {vr(CSQ+4*h,4)}, v{vT0} offset:{(4+h)*64}")
        if L1:
            if UF == 1:
                pack_check(vRES, vRES + 1, sPDB)
            else:
                pack_finish(vWB, L_XST + 4096, 14, False, "pu", sPDB)
                k.vm_wait("pn")
                k("s_barrier")
            packN_finish(vWB)
            park_addr(vPQ + 4, R1, 11)
            if o.get("diag"): k.stamp("q.pf")
            k(f"v_add_u32 v{vPQ}, {R1}, v{vTR0}")
            k(f"v_add_u32 v{vPQ+1}, {R1}, v{vTR1}")
            k(f"s_and_b32 s{sT0}, s{sW}, 1")
            k(f"s_lshl_b32 s{sT1}, s{sT0}, 5")
            k(f"v_xor_b32 v{vPQ+2}, s{sT1}, v{vPQ}")
            for j in range(16):
                fr.append(dict(addr=vPQ + 2, offs=(j * 2048, j * 2048 + 1024), mf=[(None, None, False, j == 0, None)]))
            for ks in range(16):
                for b in range(2):
                    fr.append(dict(addr=vPQ + b, offs=(ks * 2048, ks * 2048 + 1024), mf=mf2(vACC + 8 * b, ks, True, False)))
            wor = k.rec(wo_raw)
            e = spread(fill, bg + k.rec(res_load), 0, 1)
            if o.get("arm", 3):
                e = spread(fill, k.rec(lambda: arm(o.get("arm", 3))), e, 2)
            if o.get("tq", 0) & 1:
                e = spread(fill, k.rec(lambda: touch("x")), e, 1)
            if o.get("tq", 0) & 4:
                e = spread(fill, k.rec(lambda: touch("h")), e, 1)
            e = spread(fill, wor, e, o.get("wors", 3))
            spread(fill, takew2("w2q", 0), e, 4)
            spread(fill, k.rec(lambda: park_q(vPQ + 4)), 20, 3)
            k.gemm(fr, fill)
            if o.get("diag"): k.stamp("q.mm")
            cs_put(4, sT0)
            if UF == 2:
                k.vm_wait("pst")
            k.barrier()
            if o.get("diag"): k.stamp("q.bar")
            q_consts()
            if UF == 2:
                pack_flag()
        else:
            q_consts()
        lp2, done2 = k.label("L_kp"), k.label("L_kd")
        SM = vWB + 8
        ZL = vACT + 32

        def kv_loads(track):
            ins = [(f"buffer_load_dwordx4 {vr(ZL,4)}, v{vT2}, {srd(S_WS)}, s{sKVC} offen sc1", "zl")]
            for j in range(8):
                ins.append((f"buffer_load_dwordx4 {vr(vACT+4*j,4)}, v{vL16}, {srd(S_WS)}, s{sKVC if j < 4 else sT2} offen offset:{(j%4)*1024} sc1", ("kv", j)))
            for i_, t_ in ins:
                if track:
                    k.vmem(i_, t_)
                else:
                    k(i_)
        if L1:
            lp, done = k.label("L_xp"), k.label("L_xd")
            k(f"s_lshl_b32 s{sT4}, s{sG}, 11")
            k(f"s_add_u32 s{sT4}, s{sT4}, {WS_XID}")
            k(f"s_add_u32 s{sT3}, s{sTAG}, 2")
            k.poll_prep(15)
            k(f"v_lshlrev_b32 v{vT3}, 5, v{vT3}")
            k.vmem(f"buffer_load_dword v{vT0}, v{vT3}, {srd(S_WS)}, s{sT4} offen sc1", "xidl")
            w1a = k.rec(lambda: (lin_dma(PK_W1A, R1, 16, "w1a"), lin_dma(PK_W1B, R3, 6, "w1c2")))
        else:
            w1a = []
        k.get(vT2, cZL)
        k(f"s_add_u32 s{sT2}, s{sKVC}, 4096")
        kl = k.rec(lambda: kv_loads(True))
        QS = vACC if L1 else QA
        ph = k.rec(lambda: [phi_block(QS + 8*h + 4*rb, NM_A + rb, CSQ + 4*h, RL_A + rb, RS_A + rb, vPQ + 4*h + 2*rb, vWB, "a")
                            for h in range(2) for rb in range(2)])
        if L1:
            k.play(kl[:5])
            k.ds_all()
            if o.get("diag"): k.stamp("q.kl5")
            na = o.get("w1a0", 4) if UF == 1 else 0
            k.play(mix(ph, kl[5:] + w1a[:na], o.get("phr", 10)))
            w1a = w1a[na:]
        else:
            def unpark_w1():
                for j in range(16):
                    k.lds(f"ds_write_b128 v{vT3}, {vr(vPARK+4*j,4)} offset:{j*1024}")
            k(f"s_lshl_b32 s{sT5}, s{sW}, 14")
            k(f"v_add_u32 v{vT3}, s{sT5}, v{vL16}")
            k.play(wod[:4]); wod = wod[4:]
            k.ds_all()
            uw = k.rec(unpark_w1)
            nu = o.get("nu", 16)
            k.play(mix(mix(ph, uw[:nu], 5), wod, 10))
            k.play(mix(kl, uw[nu:], 1))
        k.stamp("A.q")
        k.get(vT1, cXW)
        k.get(vWB + 18, cZW)
        k.get(vWB + 16, cXR)
        k.get(vWB + 17, cZR)
        k(f"s_branch {lp2}_s")
        k(f"{lp2}:")
        kv_loads(False)
        k("s_waitcnt vmcnt(0)")
        k(f"{lp2}_s:")
        k.vm_wait("zl")
        k(f"""
        v_mov_b32 v{SM+4}, v{ZL}
        v_mov_b32 v{SM+5}, v{ZL}
        v_permlane32_swap_b32 v{ZL}, v{ZL+1}
        v_permlane32_swap_b32 v{ZL+2}, v{ZL+3}
        v_add_f32 v{ZL}, v{ZL}, v{ZL+1}
        v_add_f32 v{ZL+2}, v{ZL+2}, v{ZL+3}
        s_nop 1
        v_permlane16_swap_b32 v{ZL}, v{ZL+2}
        v_add_f32 v{ZL}, v{ZL}, v{ZL+2}
        s_nop 1
        v_add_f32_dpp v{ZL}, v{ZL}, v{ZL} row_ror:4 row_mask:0xf bank_mask:0xf
        s_nop 1
        v_add_f32_dpp v{ZL}, v{ZL}, v{ZL} row_ror:8 row_mask:0xf bank_mask:0xf
        v_cvt_pk_bf16_f32 v{ZL}, v{ZL}, v{ZL}
        ds_write_b16 v{vWB+18}, v{ZL}
        """)
        for j in range(0, 8, 2):
            a, b = vACT + 4*j, vACT + 4*j + 4
            k.vm_wait(("kv", j + 1))
            k(f"v_and_b32 v{SM+4}, v{SM+4}, v{a}")
            k(f"v_and_b32 v{SM+4}, v{SM+4}, v{b}")
            k(f"v_or3_b32 v{SM+5}, v{SM+5}, v{a}, v{b}")
            if j == 0:
                for p in range(2):
                    k(f"v_pk_add_f32 {vr(SM+2*p,2)}, {vr(a+2*p,2)}, {vr(b+2*p,2)}")
            else:
                for p in range(2):
                    k(f"v_pk_add_f32 {vr(a+2*p,2)}, {vr(a+2*p,2)}, {vr(b+2*p,2)}")
                for p in range(2):
                    k(f"v_pk_add_f32 {vr(SM+2*p,2)}, {vr(SM+2*p,2)}, {vr(a+2*p,2)}")
        k(f"""
        ds_write_b128 v{vT1}, {vr(SM,4)}
        v_xor_b32 v{SM+4}, s{sT8}, v{SM+4}
        v_xor_b32 v{SM+5}, s{sT8}, v{SM+5}
        v_or_b32 v{SM+4}, v{SM+4}, v{SM+5}
        v_and_b32 v{SM+4}, 0xff, v{SM+4}
        v_cmp_ne_u32 vcc, 0, v{SM+4}
        s_cbranch_vccz {done2}
        s_waitcnt lgkmcnt(0)
        s_sub_u32 s{sBUD}, s{sBUD}, 4
        s_cbranch_scc0 {lp2}
        s_mov_b32 s{sBUD}, 0
        {done2}:
        """)
        k.stamp("A.kvget")
        n1 = o.get("w1a1", 4) if L1 and UF == 1 else 0
        if L1 and UF == 2:
            pack_check_issue(0, vTR0, vTR1, sPDB)
        k.play(w1a[:n1]); w1a = w1a[n1:]
        k.barrier(True)
        for h in range(2):
            k.lds(f"ds_read_b64 {vr(vWB+4*h+2,2)}, v{vWB+17} offset:{h*32}", "zf")
        for j in range(4):
            k.lds(f"ds_read_b128 {vr(vACT+4*j,4)}, v{vWB+16} offset:{1024*j}")
        if L1:
            k(f"{lp}:")
            k(f"v_subrev_u32 v{vT0}, s{sT3}, v{vT0}")
            k(f"v_cmp_lt_u32 vcc, 8, v{vT0}")
            k(f"s_cbranch_vccz {done}")
            k(f"buffer_load_dword v{vT0}, v{vT3}, {srd(S_WS)}, s{sT4} offen sc1")
            k("s_waitcnt vmcnt(0)")
            k(f"s_sub_u32 s{sBUD}, s{sBUD}, 1")
            k(f"s_cbranch_scc0 {lp}")
            k(f"s_mov_b32 s{sBUD}, 0")
            k(f"{done}:")
            k(f"v_cmp_ne_u32 vcc, s{sXCC}, v{vT0}")
            k("s_nop 4")
            k(f"s_or_b32 s{sSLOW}, vcc_lo, {1 if o.get('forceslow') else 0}")
        k.ds_wait("zf")
        OA = vACC + 16
        for rb in range(2):
            for h in range(2):
                d = OA + 16*rb + 8*h
                k(f"v_mfma_f32_16x16x16_bf16 {vr(d+4,4)}, {vr(vWB+4*h+2,2)}, {vr(vPQ+4*h+2*rb,2)}, 0")
        k.ds_all()
        for h in range(2):
            for p in range(2):
                k(f"v_pk_add_f32 {vr(vACT+8*h+2*p,2)}, {vr(vACT+8*h+2*p,2)}, {vr(vACT+8*h+4+2*p,2)}")
        for h in range(2):
            for p in range(2):
                k(f"v_cvt_pk_bf16_f32 v{vWB+4*h+p}, v{vACT+8*h+2*p}, v{vACT+8*h+2*p+1}")
        for rb in range(2):
            for h in range(2):
                d = OA + 16*rb + 8*h
                k(f"v_add_f32 v{d+4}, s{sEPS}, v{d+4}")
        for rb in range(2):
            for h in range(2):
                d = OA + 16*rb + 8*h
                k(f"v_mfma_f32_16x16x16_bf16 {vr(d,4)}, {vr(vWB+4*h,2)}, {vr(vPQ+4*h+2*rb,2)}, 0")
        for rb in range(2):
            for h in range(2):
                d = OA + 16*rb + 8*h
                k(f"v_rcp_f32 v{d+4}, v{d+4}")
        k("s_nop 1")
        for rb in range(2):
            for h in range(2):
                d = OA + 16*rb + 8*h
                for p in range(2):
                    k(f"v_pk_mul_f32 {vr(d+2*p,2)}, {vr(d+2*p,2)}, {vr(d+4,2)} op_sel_hi:[1,0]")
                for p in range(2):
                    k(f"v_cvt_pk_bf16_f32 v{vPQ+4*rb+2*h+p}, v{d+2*p}, v{d+2*p+1}")
        k.stores([f"buffer_store_dwordx4 {vr(vPQ+4*rb,4)}, v{vL16}, {srd(S_WS)}, s{sOST+rb} offen" for rb in range(2)], psc(0))
        nb = o.get("w1a_pre1", 6) if L1 else o.get("w1a_pre", 0)
        if L1 and UF == 2:
            pack_check(vTR0, vTR1, sPDB)
        k.play(w1a[:nb])
        if L1:
            for s_ in range(2):
                for p in range(2):
                    k(f"v_permlane16_swap_b32 v{vRES+4*s_+p}, v{vRES+4*s_+2+p}")
        unpack_res(vACC)
        fr = []
        for ks in range(16):
            for f in range(4):
                mf = [(vACC + 4 * f, vACT + 4 * ks, True, False, ("act", ks))]
                if L1:
                    fr.append(dict(addr=vQ0 + f, offs=(R0 + ks * 4096, R0 + ks * 4096 + 2048), mf=mf))
                else:
                    fr.append(dict(addr=vTR0, offs=(ks * 4096 + f * 1024,), mf=mf))
        g = k.gemm_begin(fr, 7)
        k.poll_prep(15)
        k.flag(sFOo, G_FO)
        k.stamp("A.opub")
        k.poll(sFOp, G_FO)
        k.stamp("B.poll")

        def b_loads():
            for ks in range(16):
                with k.atomic():
                    if ks % 4 == 0:
                        k(f"s_add_u32 s{sT2}, s{sBACT}, {G_O + ks*1024}")
                    k.vmem(f"buffer_load_dwordx4 {vr(vACT+4*ks,4)}, v{vL16}, {srd(S_WS)}, s{sT2} offen offset:{(ks%4)*1024} sc1", ("act", ks))
        bl = k.rec(b_loads)
        PB = o.get("preb", PRE)
        k.play(bl[:PB])
        fill = {}
        e = spread(fill, bl[PB:], 0, 3)
        e = spread(fill, w1a[nb:], e, o.get("w1st", 3))
        if L1 and o.get("txb", 1):
            e = spread(fill, k.rec(lambda: touch("x")), e, 1)
        spread(fill, takew2("w2b", 4), e, 4)
        k.gemm_run(g, fill)
        k.stamp("B.mm")
        k(f"v_add_u32 v{vTR1}, {R1}, v{vL16}")
        k("s_nop 6")
        for f in range(4):
            for p in range(2):
                k(f"v_cvt_pk_bf16_f32 v{vRES+2*f+p}, v{vACC+4*f+2*p}, v{vACC+4*f+2*p+1}")
        publish_x(G_X1, G_ST1, G_FX1, psc(1))
        k.play(takew2("w2x", 8))
        k.flag(sFXo, G_FX1)
        k.stamp("B.pub")
        k("s_barrier")
        w1c2 = k.rec(lambda: lin_dma(PK_W1B + 24576, R0 if L1 else R1, 6, "w1c2"))
        if L1:
            pack_flag(0x8000)
        nc = o.get("w1c2_pre1", 0) if L1 else o.get("w1c2_pre", 0)
        k.play(w1c2[:nc])
        if L1:
            k(f"s_lshl_b32 s{sT2}, s{sW}, 10")
            k(f"v_add_u32 v{vPQ}, s{sT2}, v{vTR1}")
            fr = []
            for j in range(16):
                fr.append(dict(addr=vPQ, offs=(j * 4096,), mf=[(None, None, False, j == 0, None)]))
            k.gemm(fr, D=7)
            k("s_nop 5")
            cs_put(6, sW)
        C2 = vACC + 32
        vC1, vC2, vCc, vCd = (vTR1 if L1 else vL16), vDM, vP, vCH
        k(f"v_add_u32 v{vC2}, {R3}, v{vL16}")
        if L1:
            k(f"s_min_u32 s{sPDA}, s{sW}, 2")
            k(f"s_lshl_b32 s{sT2}, s{sPDA}, 10")
            k(f"v_add_u32 v{vCd}, s{sT2}, v{vL16}")
            k(f"v_add_u32 v{vCc}, {R3}, v{vCd}")
        fr = []
        for ks in range(16):
            for f in range(4):
                fr.append(dict(addr=vC1, offs=(ks * 4096 + f * 1024,), mf=mf2(vACC + 8 * f, ks, True, True)))
        for ks in range(16):
            if L1:
                fr.append(dict(addr=vCc if ks < 8 else vCd, offs=((ks % 8) * 3072,), mf=[(None, None, False, ks == 0, None)]))
            for b in range(3):
                fr.append(dict(addr=vC2 if ks < 8 else vL16 if L1 else vTR1, offs=((ks % 8) * 3072 + b * 1024,), mf=mf2(C2 + 8 * b, ks, True, False, None if L1 else False)))
        MK = 7 if L1 else 6
        NM = 128 + 16 * MK
        g = k.gemm_begin(fr)
        k.poll(sFXp, G_FX1)
        k.stamp("C.poll")
        CS1 = [vPQ, vPQ + 4, vACC + 56, vQ0]

        def c2_init():
            k.get(vT0, cCSB)
            for b in range(3):
                k.lds(f"ds_read_b128 {vr(C2+8*b+4,4)}, v{vT0} offset:{(10+b)*64}", "cs2")
            for _ in range(4):
                k.play([lambda: None])
            k.ds_wait("cs2")
            for b in range(3):
                for rb in range(2):
                    for j in range(4):
                        k(f"v_mul_f32 v{C2+8*b+4*rb+j}, v{C2+8*b+4+j}, v{NM_A+rb}")

        def relu_block(acc, cs, rb, dst):
            if cs is not None:
                for j in range(4):
                    k(f"v_fmac_f32 v{acc+j}, v{cs+j}, v{NM_A+rb}")
            for p in range(2):
                k(f"v_cvt_pk_bf16_f32 v{dst+p}, v{acc+2*p}, v{acc+2*p+1}")
            for p in range(2):
                k(f"v_pk_max_i16 v{dst+p}, v{dst+p}, 0")

        def cs1_reads():
            k.get(vT2, cCSB)
            for b in range(4):
                k.lds(f"ds_read_b128 {vr(CS1[b],4)}, v{vT2} offset:{(6+b)*64}", "cs")

        def epi1():
            k.ds_wait("cs")
            for s in range(2):
                for rb in range(2):
                    for b in range(2):
                        relu_block(vACC + 16*s + 8*b + 4*rb, CS1[2*s+b], rb, vACC + 16*s + 4*rb + 2*b)
                k.stores([f"buffer_store_dwordx4 {vr(vACC+16*s+4*rb,4)}, v{vL16}, {srd(S_WS)}, s{sH1+rb} offen offset:{s*1024}"
                          for rb in range(2)], psc(2))

        def d_setup():
            with k.atomic():
                k(f"s_lshl_b32 s{sT1}, s{sW}, 13")
                k(f"s_add_u32 s{sT1}, s{sT1}, s{sGB}")
                k(f"s_add_u32 s{sT1}, s{sT1}, {G_H + 24*1024}")
            with k.atomic():
                k(f"s_lshl_b32 s{sT4}, s{sW}, 11")
                k(f"s_add_u32 s{sT4}, s{sT4}, {28*1024}")
            for j in range(4):
                with k.atomic():
                    k(f"s_add_u32 s{sT0}, s{sW}, {j}")
                    k(f"s_and_b32 s{sT0}, s{sT0}, 3")
                    k(f"s_lshl2_add_u32 s{sT0}, s{sDH}, s{sT0}")
                with k.atomic():
                    k(f"s_mul_i32 s{sT0}, s{sT0}, 57344")
                    k(f"s_add_u32 s{sRB+j}, s{sT0}, s{sT1}")
            k.poll_prep(7)
        seq = [(ksl, j) for ksl in range(11) for j in range(4)] + [(ksl, j) for j in (1, 2, 3, 0) for ksl in (11, 12, 13)]
        hb = [0, 0, 0, 0]

        def hload(t):
            ksl, j = seq[t]
            with k.atomic():
                if ksl // 4 != hb[j]:
                    if ksl == 8:
                        k(f"s_sub_u32 s{sRB+j}, s{sRB+j}, s{sT4}")
                    else:
                        k(f"s_add_u32 s{sRB+j}, s{sRB+j}, 4096")
                    hb[j] += 1
                k.vmem(f"buffer_load_dwordx4 {vr(vACT+4*(t%16),4)}, v{vL16}, {srd(S_WS)}, s{sRB+j} offen offset:{(ksl%4)*1024} sc1", ("h", t))
        PC = o.get("prec", PRE)
        al = k.rec(lambda: act_loads(G_X1))
        k.play(al[:PC])
        fill = {}
        sl = k.rec(lambda: stat_loads(G_ST1))
        e = spread(fill, al[PC:PC+4] + [lambda: k.play(sl[:2]), sl[2]] + al[PC+4:], 0, 4)
        e2 = spread(fill, k.rec(lambda: (stat_sum(), stats_finalize(False))), 52, 1)
        if not L1:
            spread(fill, k.rec(c2_init), e2 + 2, 1)
        if L1:
            spread(fill, k.rec(lambda: k("s_barrier")), 100, 0)
        e = spread(fill, w1c2[nc:], e, 3)
        if o.get("th", 0) >> layer & 1:
            e = spread(fill, k.rec(lambda: touch("h", vT0)), e, 1)
        spread(fill, k.rec(cs1_reads), 119, 1)
        if o.get("diagd"):
            spread(fill, k.rec(lambda: k.stamp("C.mm1")), 127, 0)
        e1 = spread(fill, k.rec(epi1), 129, 1 / o.get("epr", 4))
        spread(fill, k.rec(lambda: (k.vm_wait("w1c2"), k("s_barrier"))), 128 + 5 * MK, 0)
        spread(fill, k.rec(d_setup), e1, 1)
        pf = min(e1 + (o.get("fl11", 50) if L1 else o.get("fl1", 20)), NM - 2)
        spread(fill, k.rec(lambda: k.flag(sFHo, G_FH)), pf, 1)
        NE = o.get("ne1", 0) if L1 else o.get("ne", 6)
        pp = NM - 1 if NE == 0 else NM - 3 * NE - 18
        assert pp > pf
        spread(fill, k.rec(lambda: k.vmem(f"buffer_load_dword v{vT0}, v{vT3}, {srd(S_WS)}, s{sFHp} offen offset:{G_FH} sc1", "p1")), pp, 1)
        if NE:
            spread(fill, k.rec(lambda: async_check("p1", sFHp, G_FH)), NM - 3 * NE - 1, 1)
            spread(fill, k.rec(lambda: [hload(t) for t in range(NE)]), NM - 3 * NE, 3)
        if L1:
            wc = takew2("nw2", 24)
            spread(fill, wc, e, (pp - 1 - e) / max(len(wc), 1))
        k.gemm_run(g, fill)
        k.stamp("C.mm2")
        HO = vWB + 16
        LA = o.get("dla1", 10) if L1 else o.get("dla", 10)
        if L1:
            k.get(vT1, cCSA)
            k(f"s_lshl_b32 s{sT5}, s{sPDA}, 6")
            k(f"v_add_u32 v{vT1}, s{sT5}, v{vT1}")
            k.lds(f"ds_write_b32 v{vT1}, a{aCS} offset:{10*64}")
            k.barrier()
            k.get(vT2, cCSB)
            for b in range(3):
                k.lds(f"ds_read_b128 {vr(vWB+4*b,4)}, v{vT2} offset:{(10+b)*64}")
            k.ds_all()
        else:
            k("s_nop 3")
        epi2 = k.rec(lambda: [relu_block(C2 + 8*b + 4*rb, vWB + 4*b if L1 else None, rb, HO + 8*rb + 2*b) for b in range(3) for rb in range(2)])
        h2sc = psc(2) and not o.get("h2plain", 1)
        its = []
        for rb in range(2):
            its.append(f"buffer_store_dwordx4 {vr(HO+8*rb,4)}, v{vL16}, {srd(S_WS)}, s{sH2+rb} offen")
            its.append(f"buffer_store_dwordx2 {vr(HO+8*rb+4,2)}, v{vL16}, {srd(S_WS)}, s{sH3+rb} offen")
        tail = []
        up = []
        if L1:
            def park_w1():
                with k.atomic():
                    k(f"s_lshl_b32 s{sT5}, s{sW}, 14")
                    k(f"s_add_u32 s{sT5}, s{sT5}, {R1}")
                    k(f"v_add_u32 v{vCH}, s{sT5}, v{vL16}")
                for j in range(0, 16, 2):
                    with k.atomic():
                        for jj in (j, j + 1):
                            k.lds(f"ds_read_b128 {vr(vPARK+4*jj,4)}, v{vCH} offset:{jj*1024}", "pw")
            u_ = k.rec(lambda: unpark(vP))
            bar = k.rec(lambda: (k.ds_wait("pw"), k("s_barrier")))
            up = k.rec(park_w1) + u_[:17] + [lambda: k.play(bar)] + u_[17:]
        if NE:
            n2 = o.get("ne2", 2)
            k.play(mix(epi2, k.rec(lambda: [hload(t) for t in range(NE, NE + n2)]), 10))
            k.stores(its, h2sc)
            nxt = NE + n2
            FL2 = o.get("fl2", 5)
        else:
            k.play(epi2)
            k.stores(its, h2sc)
            async_check("p1", sFHp, G_FH)
            for t in range(LA):
                hload(t)
                if len(w2) > 24 and t % 2:
                    k.play(w2[:1]); w2 = w2[1:]
                k.play(up[:1]); up = up[1:]
            k.flag(sFHo, G_FH + 1024)
            nxt = LA
            FL2 = -1
        k.stamp("D.poll1")
        RSD = vPQ
        k.get(vPQ + 1, cRSD)
        k.lds(f"ds_read_b32 v{RSD}, v{vPQ+1}", "rsd")
        for j in range(4):
            k.get(vPQ + 4 + j, cRD0 + j)
        ur = k.rec(lambda: unpack_res(vWB))
        wr = []
        for t in range(56):
            ksl, j = seq[t]
            if L1:
                k.vm_wait(("w2t", ksl))
            k.vm_wait(("h", t))
            if o.get("diagd") and t in (0, 8, 16, 24, 32, 40, 48):
                k.stamp(f"D.t{t}")
            for f in range(4):
                a = vACC + 16*j + 4*f
                c = "0" if ksl == 0 else vr(a, 4)
                k(f"v_mfma_f32_16x16x32_bf16 {vr(a,4)}, {ar((ksl*4+f)*4,4)}, {vr(vACT+4*(t%16),4)}, {c}")
                if f in (0, 2) and nxt < 56 and nxt <= t + LA and (f == 0 or nxt < t + LA):
                    if nxt == 32 - 6:
                        k.vmem(f"buffer_load_dword v{vT0}, v{vT3}, {srd(S_WS)}, s{sFHp} offen offset:{G_FH+1024} sc1", "p2")
                    if nxt == 32:
                        async_check("p2", sFHp, G_FH + 1024)
                    hload(nxt)
                    nxt += 1
                    if nxt == 56 and not L1 and o.get("wb", 0):
                        lw = k.label("L_wb")
                        k(f"s_lshl3_add_u32 s{sT0}, s{sW}, s2")
                        k(f"s_cmp_ge_u32 s{sT0}, 8")
                        k(f"s_cbranch_scc1 {lw}")
                        k("buffer_wbl2 sc1")
                        k(f"s_branch {lw}_e")
                        k(f"{lw}:")
                        k(f"buffer_load_dword a{aDUM}, v{vT3}, {srd(S_WS)}, s{sFHp} offen offset:{G_FH} sc1")
                        k(f"{lw}_e:")
                        k.vm_note(1, "wb")
                if f in (1, 3) and up:
                    k.play(up[:1]); up = up[1:]
                if f == 2:
                    if w2 and (len(w2) > 24 or not up):
                        if len(w2) <= 24:
                            k.ds_wait(("up", (24 - len(w2)) // 4))
                        k.play(w2[:1]); w2 = w2[1:]
                    elif t >= o.get("tl0", 46) and tail:
                        nn = o.get("tln", 2)
                        k.play(tail[:nn]); tail = tail[nn:]
                if f == 3 and t == FL2:
                    k.flag(sFHo, G_FH + 1024)
                if 4 * t + f == 203:
                    k.ds_wait(("rw", 1))
                    k("s_barrier")
                    for f_ in range(4):
                        k.lds(f"ds_read_b128 {vr(vACC+16+4*f_,4)}, v{vPQ+4} offset:{f_*1024}", "rd0")
                if 4 * t + f == 215:
                    k.ds_wait("rd0")
                    k("s_barrier")
                if f == 3 and t == 2 and L1:
                    pack_check_issue(0x8000, vTR0, vTR1, sPDA)
                if f == 3 and t == 14 and L1:
                    pack_check(vTR0, vTR1, sPDA)
                if f == 3 and t == o.get("tx", 30) and L1:
                    touch("x", vDM)
                if f == 1 and t >= 8 and ur:
                    k.play(ur[:1]); ur = ur[1:]
                if wr and wr[0][0] <= 4 * t + f:
                    k.lds(*wr.pop(0)[1:])
            if ksl == 13 and j:
                for f in range(4):
                    wr.append((4 * t + 9 + 2 * f, f"ds_write_b128 v{vPQ+4+j}, {vr(vACC+16*j+4*f,4)} offset:{f*1024}", ("rw", j)))
        assert not w2 and not ur and not wr and not up
        k.stamp("D.mm")
        if not L1:
            k.get(vT2, cOUT)
        k("s_nop 3")
        for f in range(4):
            for p in range(2):
                k(f"v_pk_add_f32 {vr(vACC+4*f+2*p,2)}, {vr(vACC+4*f+2*p,2)}, {vr(vACC+16+4*f+2*p,2)}")
        k.barrier()
        for f in range(4):
            for j in range(2):
                k.lds(f"ds_read_b128 {vr(vACC+32+16*j+4*f,4)}, v{vPQ+4} offset:{j*4096+f*1024}", ("rd", f))
        for f in range(4):
            k.ds_wait(("rd", f))
            for j in range(2):
                for p in range(2):
                    k(f"v_pk_add_f32 {vr(vACC+4*f+2*p,2)}, {vr(vACC+4*f+2*p,2)}, {vr(vACC+32+16*j+4*f+2*p,2)}")
            for p in range(2):
                k(f"v_pk_fma_f32 {vr(vACC+4*f+2*p,2)}, {vr(vACC+4*f+2*p,2)}, {vr(RSD,2)}, {vr(vWB+4*f+2*p,2)} op_sel_hi:[1,0,1]")
            for p in range(2):
                k(f"v_cvt_pk_bf16_f32 v{vRES+2*f+p}, v{vACC+4*f+2*p}, v{vACC+4*f+2*p+1}")
        k.stamp("D.red")
        if L1:
            publish_x(G_X2, G_ST2, G_FX2, psc(3))
            k(f"s_add_u32 s{sKVC}, s{sKVC}, 0x100000")
            k(f"s_add_u32 s{sKVP}, s{sKVP}, 0x100000")
            k.flag(sFXo, G_FX2)
            k.stamp("D.pub")
            k("s_barrier")
            fr = []
            k(f"v_add_u32 v{vTR0}, {R1}, v{vL16}")
            late = []
            for ks in range(16):
                fq = [dict(addr=vTR0, offs=(ks * 2048 + b * 1024,), mf=mf2(QA + 8 * b, ks, True, True, act=ring)) for b in range(2)]
                fk = [dict(addr=vL16, offs=(R0 + ks * 4096 + b * 1024,), mf=mf2(vACC + 8 * b, ks, False, True, act=ring)) for b in range(4)]
                if ks < 16 - o.get("qlag", 0):
                    fr += fk + fq
                else:
                    fr += fk
                    late += fq
            fr += late
            gA = k.gemm_begin(fr)
        else:
            k("s_nop 1")
            for s in range(2):
                for p in range(2):
                    k(f"v_permlane16_swap_b32 v{vRES+4*s+p}, v{vRES+4*s+2+p}")
                k.vmem(f"buffer_store_dwordx4 {vr(vRES+4*s,4)}, v{vT2}, {srd(S_OUT)}, 0 offen offset:{64*s}{' sc1' if o.get('outsc1', 1) else ''}")
            le = k.label("L_ep")
            k(f"s_or_b32 s{sT2}, s2, s{sW}")
            k(f"s_cbranch_scc1 {le}")
            k(f"s_add_u32 s{sEP}, s{sEP}, 1")
            k(f"v_mov_b32 v{vT1}, s{sEP}")
            k("s_mov_b64 exec, 1")
            k(f"buffer_store_dword v{vT1}, v{vL16}, {srd(S_WS)}, 0 offen offset:{WS_EPOCH}")
            k("s_mov_b64 exec, -1")
            k(f"{le}:")
            if stamps:
                k.vm_all()
                k.stamp("end")
                k(f"s_memrealtime s[{sST}:{sST+1}]")
                k("s_waitcnt lgkmcnt(0)")
                k(f"v_writelane_b32 v{vSTAMP}, s{sST}, 61")
                k(f"v_writelane_b32 v{vSTAMP}, s{sBUD}, 60")
                k(f"v_writelane_b32 v{vSTAMP}, s{sSLOW}, 59")
                k(f"s_lshl2_add_u32 s{sT2}, s2, s{sW}")
                k(f"s_lshl_b32 s{sT2}, s{sT2}, 8")
                k(f"s_add_u32 s{sT2}, s{sT2}, {WS_STAMP}")
                k(f"v_lshrrev_b32 v{vT0}, 2, v{vL16}")
                k(f"buffer_store_dword v{vSTAMP}, v{vT0}, {srd(S_WS)}, s{sT2} offen")
    k("L_end:")
    body = "\n".join(merge_waits(k.lines))
    hdr = open("interleave_layers__linear_attn_block__dense_activation_relu__prompt.s.ref").read().split("; Override")[0]
    txt = f"""{hdr}; Generated by a hand-written generator (persistent kernel, one workgroup per CU).
; @launch grid=(256,1,1) block=(256,1,1) lds={LDS_BYTES}
.amdgcn_target "amdgcn-amd-amdhsa--gfx950"
.text
.globl {NAME}
.p2align 8
.type {NAME},@function
.set CODE_BYTES, L_code_end - L_pcref - 512
{NAME}:
{body}
    s_endpgm
L_code_end:
.section .rodata,"a"
.p2align 6
.amdhsa_kernel {NAME}
  .amdhsa_next_free_vgpr 512
  .amdhsa_next_free_sgpr 102
  .amdhsa_accum_offset 256
  .amdhsa_group_segment_fixed_size 0
  .amdhsa_kernarg_size 72
  .amdhsa_user_sgpr_count 2
  .amdhsa_user_sgpr_kernarg_segment_ptr 1
  .amdhsa_system_sgpr_workgroup_id_x 1
.end_amdhsa_kernel
"""
    return txt, k.stamp_names


if __name__ == "__main__":
    out = sys.argv[1]
    stamps = "stamps" in sys.argv[2:]
    opts = {}
    for a in sys.argv[2:]:
        if "=" in a:
            x, y = a.split("=")
            opts[x] = int(y)
    txt, names = gen(stamps, opts)
    open(out, "w").write(txt)
    if stamps:
        open(out + ".names", "w").write("\n".join(names))
```

```python
import sys
from contextlib import contextmanager

NAME = "interleave_layers__linear_attn_block__dense_activation_relu__prompt_kernel"

WS_EPOCH = 0
WS_XID = 0x8000
WS_PD = 0x10000
GRP0 = 0x100000
G_FO, G_FX1, G_FX2, G_FH = 0, 512, 1024, 1536
G_ST1 = 0x1000
G_ST2 = G_ST1
G_ST0 = 0x4000
G_X1 = 0x8000
G_X2 = G_X1
G_H = G_X1 + 0x20000
G_O = G_H
WS_KVX = 0x1200000
KVX_C = 0x9000
WS_W2T = 0x1400000
WS_PK = 0x1600000
PK_KV, PK_Q, PK_W1A, PK_W1B, PK_WO, PK_SZ = 0, 65536, 98304, 163840, 212992, 278528
WS_STAMP = 0x1B00000
WS_USED = 0x1C00000
OOB = 0x7f000000

R0, R1, R2, R3 = 0, 65536, 98304, 131072
L_SM = 161792
L_CS = L_SM
L_ZB = L_SM + 896
L_STAT = L_SM + 1024
L_XB = L_SM - 4096
W1B_N1 = 8
L_XST = 98304
L_RED = R2
L_PST = R2
LDS_BYTES = 163840

S_X, S_WQKV, S_WO, S_W1, S_W2, S_OUT, S_WS = 4, 8, 12, 16, 20, 24, 28
(sW, sC, sG, sTAG, sSLOW, sGB, sBUD, sEP, sEPS, _e1, sT0, sT1, sT2, sT3, sT4, sT5,
 sACT, sACT1, sBACT, sTILE, sOST, sOST1, sFOo, sFOp, sFXo, sFXp, sSTo, sSTg,
 sH1, sH1b, sH2, sH2b, sH3, sH3b, sFHo, sFHp, sRB, _r1, _r2, _r3, sKVC, sKVP,
 sDH, sCT, sXCC, sT8, sD0, sD1, sD2, sD3, sL0, sL1, sPKB, sPDA, sPDB, sJ0) = range(32, 88)
assert sEPS % 2 == 0
sRHO = sT8
S_A, S_B = 88, 92
sKEX = 88
sDK = 92
sKM = 96
sST = 98
sPC = 100

vLANE, vL16, vTR0, vTR1, vQ0, vQ1, vQ2, vQ3, vP, vCH, vDM, vSTAMP = range(12)
vT0, vT1, vT2, vT3 = 12, 13, 14, 15
vSP, vSP2 = vP, vCH
vRES = 16
vPQ = 24
vWB = 32
vACC = 64
vACT = 128
BF1 = "0x3f803f80"
(cCSA, cCSB, cP16, aDUM, cSTO, cSTW, cSTA, cSTB, cKW, cKR, cKW1, cKR1, cKVS, cXW, cXR, cZR,
 cRD0, cRD1, cRD2, cRD3, cRSD, cOUT, cZL, cZW) = range(224, 248)
aONES, aCS = 248, 252


def srd(s):
    return f"s[{s}:{s+3}]"


def vr(a, n=1):
    return f"v{a}" if n == 1 else f"v[{a}:{a+n-1}]"


def ar(a, n=1):
    return f"a{a}" if n == 1 else f"a[{a}:{a+n-1}]"


def bcast(r, pos, n):
    lo = [0] * n
    hi = [1] * n
    if r % 2 == 0:
        hi[pos] = 0
    else:
        lo[pos] = 1
    f = lambda x: "[" + ",".join(map(str, x)) + "]"
    return vr(r & ~1, 2), f" op_sel:{f(lo)} op_sel_hi:{f(hi)}"


class K:
    def __init__(self, stamps=False, opts=None):
        self.lines = []
        self.nlab = 0
        self.vm = []
        self.ds = []
        self.stamps = stamps
        self.stamp_names = []
        self.o = opts or {}
        self._rec = None
        self.seen = set()
        self.tailcode = []

    def _do(self, fn, cost=None):
        if cost is not None:
            fn.cost = cost
        if self._rec is not None:
            self._rec.append(fn)
        else:
            fn()

    def rec(self, f):
        assert self._rec is None
        self._rec = []
        f()
        r, self._rec = self._rec, None
        return r

    @contextmanager
    def atomic(self):
        if self._rec is None:
            yield
            return
        outer, self._rec = self._rec, []
        yield
        inner, self._rec = self._rec, outer
        g = lambda: [x() for x in inner]
        g.cost = sum(getattr(x, "cost", 4) for x in inner)
        outer.append(g)

    def play(self, items):
        for x in items:
            self._do(x)

    def _emit(self, l):
        self.lines.append(("" if l.endswith(":") else "    ") + l)

    def __call__(self, s):
        for l in s.split("\n"):
            l = l.strip()
            if l:
                self._do(lambda l=l: self._emit(l), 8 if l.startswith(("v_exp", "v_rsq", "v_rcp", "buffer_")) else 0 if l.endswith(":") else 4)

    def label(self, base="L"):
        self.nlab += 1
        return f"{base}_{self.nlab}"

    def vmem(self, s, tag=None):
        def f():
            self._emit(s)
            self.vm.append(tag)
            self.seen.add(tag)
        self._do(f, 8)

    def vm_note(self, n, tag=None):
        self._do(lambda: (self.vm.extend([tag] * n), self.seen.add(tag)))

    def _wait(self, lst, tag, name, mx):
        if tag not in lst:
            return lst
        idx = len(lst) - 1 - lst[::-1].index(tag)
        n = min(len(lst) - idx - 1, mx)
        self._emit(f"s_waitcnt {name}({n})")
        return lst[len(lst) - n:] if n else []

    def vm_wait(self, tag):
        def f():
            assert tag in self.seen, tag
            self.vm = self._wait(self.vm, tag, "vmcnt", 63)
        self._do(f)

    def save_vm(self):
        def f():
            self._sv = list(self.vm)
        self._do(f)

    def restore_vm(self):
        def f():
            self.vm = self._sv
        self._do(f)

    def vm_all(self):
        def f():
            self._emit("s_waitcnt vmcnt(0)")
            self.vm = []
        self._do(f)

    def lds(self, s, tag=None):
        def f():
            self._emit(s)
            self.ds.append(tag)
        self._do(f)

    def ds_wait(self, tag):
        def f():
            self.ds = self._wait(self.ds, tag, "lgkmcnt", 15)
        self._do(f)

    def ds_all(self, force=False):
        def f():
            if self.ds or force:
                self._emit("s_waitcnt lgkmcnt(0)")
            self.ds = []
        self._do(f)

    def barrier(self, force=False):
        self.ds_all(force)
        self("s_barrier")

    def stamp(self, name):
        if not self.stamps:
            return
        self.nst = getattr(self, "nst", 0) + 1
        if self.o.get("lite") and name not in ("end", "D.pub"):
            return
        i = len(self.stamp_names)
        assert i < 59
        self.stamp_names.append(name)
        self(f"{'s_memrealtime' if self.o.get('rt') else 's_memtime'} s[{sST}:{sST+1}]")
        self.ds_all(True)
        self(f"v_writelane_b32 v{vSTAMP}, s{sST}, {i}")

    def dma(self, sr, voff, soff, simm, lreg, limm, tag=None, flag=""):
        with self.atomic():
            self(f"s_add_u32 m0, s{lreg}, {limm}")
            self(f"s_add_u32 s{sT5}, s{soff}, {simm}")
            self.vmem(f"buffer_load_dwordx4 v{voff}, {srd(sr)}, s{sT5} offen{flag} lds", tag)

    def get(self, v, c):
        self(f"v_accvgpr_read_b32 v{v}, a{c}")

    def poll_prep(self, mask):
        self.get(vT3, cP16)
        if mask == 7:
            self(f"v_and_b32 v{vT3}, 28, v{vT3}")

    def poll(self, soff, imm, clear=True):
        if clear:
            self.seen = {t for t in self.seen if not (isinstance(t, tuple) and t[0] in ("act", "h"))}
        lp, done = self.label("L_poll"), self.label("L_pd")
        with self.atomic():
            self(f"{lp}:")
            self(f"buffer_load_dword v{vT0}, v{vT3}, {srd(S_WS)}, s{soff} offen offset:{imm} sc1")
            self.vm_all()
            self(f"v_cmp_ne_u32 vcc, s{sTAG}, v{vT0}")
            self(f"s_cbranch_vccz {done}")
            self(f"s_sub_u32 s{sBUD}, s{sBUD}, 1")
            self(f"s_cbranch_scc0 {lp}")
            self(f"s_mov_b32 s{sBUD}, 0")
            self(f"{done}:")

    def stores(self, items, force_sc1, tag="st"):
        with self.atomic():
            if force_sc1:
                for it in items:
                    self.vmem(it + " sc1", tag)
                return
            ls, le = self.label("L_ss"), self.label("L_se")
            self(f"s_cmp_lg_u32 s{sSLOW}, 0")
            self(f"s_cbranch_scc1 {ls}")
            for it in items:
                self.vmem(it, tag)
            self(f"{le}:")
            self.tailcode += [f"{ls}:"] + ["    " + it + " sc1" for it in items] + [f"    s_branch {le}"]

    def flag(self, soff, imm):
        with self.atomic():
            self(f"v_mov_b32 v{vT1}, s{sTAG}")
            self.vm_wait("st")
            self("s_mov_b64 exec, 1")
            self.stores([f"buffer_store_dword v{vT1}, v{vL16}, {srd(S_WS)}, s{soff} offen offset:{imm}"], False, "flag")
            self("s_mov_b64 exec, -1")

    def gemm_begin(self, frags, D=6):
        self.gid = getattr(self, "gid", 0) + 1
        g = dict(frags=frags, D=D, gid=self.gid, rp=0, reads=[])
        for t, f in enumerate(frags):
            s = vWB + 4 * (t % 8)
            if len(f["offs"]) == 2:
                for hh in range(2):
                    g["reads"].append((t, f"ds_read_b64_tr_b16 {vr(s + 2*hh, 2)}, v{f['addr']} offset:{f['offs'][hh]}"))
            else:
                g["reads"].append((t, f"ds_read_b128 {vr(s, 4)}, v{f['addr']} offset:{f['offs'][0]}"))
        self._issue(g, D - 1, 99)
        return g

    def _issue(self, g, tmax, maxn):
        c = 0
        reads = g["reads"]
        while g["rp"] < len(reads) and reads[g["rp"]][0] <= tmax and c < maxn:
            self.lds(reads[g["rp"]][1], ("w", g["gid"], reads[g["rp"]][0]))
            g["rp"] += 1
            c += 1

    def gemm_run(self, g, fill=None):
        fill = fill or {}
        frags, D, gid = g["frags"], g["D"], g["gid"]
        n = len(frags)
        mi = 0
        pend = []
        LATE = self.o.get("late", 3)
        for t, f in enumerate(frags):
            s = vWB + 4 * (t % 8)
            if t % 2 == 0:
                self.ds_wait(("w", gid, min(t + 1, n - 1)))
            nm = len(f["mf"])
            for j, (acc, act_, sw, first, wt) in enumerate(f["mf"]):
                if wt is not None:
                    self.vm_wait(wt)
                c = "0" if first else vr(acc, 4) if acc is not None else ar(aCS, 4)
                if acc is None:
                    self(f"v_mfma_f32_16x16x32_bf16 {ar(aCS,4)}, {ar(aONES,4)}, {vr(s,4)}, {c}")
                elif act_ is None:
                    self(f"v_mfma_f32_16x16x32_bf16 {vr(acc,4)}, {ar(aONES,4)}, {vr(s,4)}, {c}")
                elif sw:
                    self(f"v_mfma_f32_16x16x32_bf16 {vr(acc,4)}, {vr(s,4)}, {vr(act_,4)}, {c}")
                else:
                    self(f"v_mfma_f32_16x16x32_bf16 {vr(acc,4)}, {vr(act_,4)}, {vr(s,4)}, {c}")
                rp0 = g["rp"]
                self._issue(g, t + D, 99 if j == nm - 1 else 1)
                room = 8 - 4 * (g["rp"] - rp0) - (4 if (j == nm - 1 and t % 2 == 1) else 0)
                pend += [(mi, x) for x in fill.pop(mi, [])]
                while pend:
                    cst = getattr(pend[0][1], "cost", 4)
                    if cst <= room or (room == 8 and cst > 8) or mi - pend[0][0] >= LATE:
                        self.play([pend.pop(0)[1]])
                        room -= cst
                    else:
                        break
                mi += 1
        self.play([x for _, x in pend])
        for key in sorted(fill):
            self.play(fill[key])

    def gemm(self, frags, fill=None, D=6):
        self.gemm_run(self.gemm_begin(frags, D), fill)


def merge_waits(lines):
    import re
    out = []
    for l in lines:
        m = re.match(r"\s*s_waitcnt (\w+)\((\d+)\)$", l)
        if m and out:
            p = re.match(r"\s*s_waitcnt (\w+)\((\d+)\)$", out[-1])
            if p and p.group(1) != m.group(1):
                out[-1] = out[-1] + f" {m.group(1)}({m.group(2)})"
                continue
        out.append(l)
    return out


def spread(fill, items, start, step, per=1):
    p = start
    if step == 0:
        g = lambda: [x() for x in items]
        g.cost = sum(getattr(x, "cost", 4) for x in items)
        fill.setdefault(int(p), []).append(g)
        return p
    for i in range(0, len(items), per):
        fill.setdefault(int(p), []).extend(items[i:i + per])
        p += step
    return p


def insn_sizes(lines, tailcode):
    import subprocess, tempfile, re, os
    src = [".amdgcn_target \"amdgcn-amd-amdhsa--gfx950\"", ".text", ".set CODE_BYTES, 0x12345"]
    for i, l in enumerate(lines):
        src.append(f"Lz{i}:")
        src.append(l)
    src.append(f"Lz{len(lines)}:")
    src += tailcode
    with tempfile.TemporaryDirectory() as d:
        open(d + "/a.s", "w").write("\n".join(src) + "\n")
        subprocess.run(["clang", "-x", "assembler", "-target", "amdgcn-amd-amdhsa", "-mcpu=gfx950", "-c", d + "/a.s", "-o", d + "/a.o"], check=True)
        out = subprocess.run(["llvm-objdump", "-t", d + "/a.o"], capture_output=True, text=True, check=True).stdout
    addr = {}
    for l in out.splitlines():
        m = re.match(r"([0-9a-f]+) .*\sLz(\d+)$", l)
        if m:
            addr[int(m.group(2))] = int(m.group(1), 16)
    return [addr[i + 1] - addr[i] for i in range(len(lines))]


def add_pads(lines, tailcode, step):
    ci = [i for i, l in enumerate(lines) if l.strip() == "PADCALL"][0]
    lines = lines[:ci] + lines[ci + 1:]
    sz = insn_sizes(lines, tailcode)
    body, pos, nxt, n = [], 4, step, 0
    for i in range(ci, len(lines)):
        if pos >= nxt and sz[i] > 0:
            body.append(("PAD", n))
            n += 1
            pos += 4
            nxt = (pos // step + 1) * step
        body.append(lines[i])
        pos += sz[i]
    out = lines[:ci]
    out += ["    s_mov_b64 exec, 0"]
    for w in range(3):
        out += [f"    s_cmp_eq_u32 s{sW}, {w}", f"    s_cbranch_scc1 L_pad{w}"]
    out += ["    s_branch L_pad3", ".p2align 12", "L_padret:", "    s_mov_b64 exec, -1"]
    for x in body:
        if isinstance(x, tuple):
            j = x[1]
            out += [f"L_pad{j}:", f"    s_cbranch_execz {'L_pad%d' % (j + 4) if j + 4 < n else 'L_padret'}"]
        else:
            out.append(x)
    return out


def mix(a, b, ratio):
    out = []
    bi = 0
    for i, x in enumerate(a):
        out.append(x)
        if (i + 1) % ratio == 0 and bi < len(b):
            out.append(b[bi]); bi += 1
    out.extend(b[bi:])
    return out


def act(ks, rb):
    return vACT + 8 * ks + 4 * rb


def gen(stamps=False, opts=None):
    k = K(stamps, opts)
    o = k.o
    if stamps:
        k(f"{'s_memrealtime' if o.get('rt') else 's_memtime'} s[{sST}:{sST+1}]")
        k(f"s_memrealtime s[{sPC}:{sPC+1}]")
    k(f"""
    s_cmp_ge_u32 s2, 256
    s_cbranch_scc1 L_end
    s_load_dwordx2 s[{S_X}:{S_X+1}], s[0:1], 0
    s_load_dwordx2 s[{S_WQKV}:{S_WQKV+1}], s[0:1], 8
    s_load_dwordx2 s[{S_WS}:{S_WS+1}], s[0:1], 64
    s_load_dwordx2 s[{S_WO}:{S_WO+1}], s[0:1], 16
    s_load_dwordx2 s[{S_W1}:{S_W1+1}], s[0:1], 32
    s_load_dwordx2 s[{S_W2}:{S_W2+1}], s[0:1], 40
    s_load_dwordx2 s[{S_OUT}:{S_OUT+1}], s[0:1], 48
    s_getpc_b64 s[{S_A}:{S_A+1}]
    L_pcref:
    s_lshr_b32 s{sT2}, s2, 3
    s_lshl_b32 s{sT2}, s{sT2}, 11
    v_lshlrev_b32 v{vT3}, 3, v0
    v_add_u32 v{vT3}, s{sT2}, v{vT3}
    v_min_u32 v{vT3}, CODE_BYTES, v{vT3}
    s_mov_b32 exec_lo, 0x10001
    s_mov_b32 exec_hi, 0x10001
    global_load_dword a{aDUM}, v{vT3}, s[{S_A}:{S_A+1}]
    s_mov_b64 exec, -1
    v_lshrrev_b32 v{vT0}, 6, v0
    v_and_b32 v{vLANE}, 63, v0
    s_mov_b32 s{S_X+2}, {2048*1024}
    v_readfirstlane_b32 s{sW}, v{vT0}
    s_mov_b32 s{S_X+3}, 0x20000
    s_mov_b32 s{S_WQKV+2}, {512*3072}
    s_mov_b32 s{S_WQKV+3}, 0x20000
    s_lshr_b32 s{sT0}, s2, 3
    s_and_b32 s{sC}, s{sT0}, 15
    s_lshr_b32 s{sT0}, s{sT0}, 4
    s_and_b32 s{sG}, s2, 7
    s_lshl1_add_u32 s{sG}, s{sG}, s{sT0}
    s_lshr_b32 s{sT1}, s{sC}, 1
    s_xor_b32 s{sT1}, s{sT1}, s{sT0}
    s_and_b32 s{sT1}, s{sT1}, 1
    s_and_b32 s{sRHO}, s{sC}, 1
    s_lshl1_add_u32 s{sRHO}, s{sT1}, s{sRHO}
    v_lshlrev_b32 v{vL16}, 4, v{vLANE}
    """)
    if stamps:
        k(f"v_mov_b32 v{vSTAMP}, 0")
    XS, XR, X2R = vRES, vRES + 4, act(15, 1)
    aRES = 246
    k(f"""
    v_lshrrev_b32 v{vT0}, 4, v{vLANE}
    v_and_b32 v{vT1}, 15, v{vLANE}
    v_xor_b32 v{vT2}, v{vT0}, v{vT1}
    v_lshlrev_b32 v{vT2}, 4, v{vT2}
    v_lshl_add_u32 v{XS}, v{vT0}, 10, v{vT2}
    v_xor_b32 v{XS+1}, 64, v{XS}
    v_xor_b32 v{XS+2}, 0x80, v{XS}
    v_xor_b32 v{XS+3}, 0xc0, v{XS}
    v_lshrrev_b32 v{vP}, 2, v{vLANE}
    v_and_b32 v{vCH}, 3, v{vLANE}
    v_lshrrev_b32 v{vT3}, 3, v{vLANE}
    v_and_b32 v{vT3}, 2, v{vT3}
    v_xor_b32 v{vCH}, v{vCH}, v{vT3}
    v_lshlrev_b32 v{vCH}, 4, v{vCH}
    v_and_b32 v{vT3}, 3, v{vP}
    v_lshl_add_u32 v{vT3}, v{vT0}, 3, v{vT3}
    s_movk_i32 s{sT1}, 3072
    v_mad_u32_u24 v{vDM}, v{vT3}, s{sT1}, v{vCH}
    s_lshl_b32 s{sL0}, s{sW}, 14
    s_add_u32 s{sL0}, s{sL0}, {L_XST}
    s_lshl_b32 s{sT1}, s{sG}, 17
    s_lshl_b32 s{sT2}, s{sW}, 15
    s_add_u32 s{sT1}, s{sT1}, s{sT2}
    s_lshl_b32 s{sL1}, s{sW}, 12
    s_lshl_b32 s{sJ0}, s{sW}, 11
    """)
    for r in range(4):
        k(f"""
        s_add_u32 s{sT2}, s{sRHO}, {r}
        s_and_b32 s{sT2}, s{sT2}, 3
        s_lshl_b32 s{sT3}, s{sT2}, 8
        s_add_u32 s{sD0+r}, s{sT1}, s{sT3}
        s_lshl2_add_u32 s{sT2}, s{sT2}, s{sW}
        s_mul_i32 s{sT2}, s{sT2}, {32*3072}
        s_lshl_b32 s{sT3}, s{sC}, 6
        s_add_u32 s{sRB+r}, s{sT2}, s{sT3}
        """)
    k("s_waitcnt lgkmcnt(0)")
    k(f"s_load_dword s{sEP}, s[{S_WS}:{S_WS+1}], {WS_EPOCH}")
    if stamps:
        k(f"v_writelane_b32 v{vSTAMP}, s{sST}, 62")
        k(f"v_writelane_b32 v{vSTAMP}, s{sPC}, 63")

    def xslot(q, js=range(8)):
        for j in js:
            k.dma(S_X, XS + (j & 3), sD0 + q, j * 4096, sL0, (q & 1) * 8192 + j * 1024, ("xs", q))

    def wkv_raw(r):
        for pr in range(2):
            for hh in range(2):
                k.dma(S_WQKV, vDM, sRB + r, hh * 4 * 3072 + 1024 * (pr + 1), sL1, R0 + r * 16384 + pr * 2048 + hh * 1024, ("wkv", r))
        for hh in range(2):
            k.dma(S_WQKV, vDM, sRB + r, hh * 4 * 3072, sJ0, R1 + r * 8192 + hh * 1024, ("wkv", r))

    def quad_lane(pitch, dst=vDM, tmp=vT2, sD3=sD3):
        vT2 = tmp
        k(f"v_lshrrev_b32 v{dst}, 3, v{vLANE}")
        k(f"v_and_b32 v{vT2}, 6, v{dst}")
        k(f"v_xor_b32 v{vT2}, v{vT2}, v{vLANE}")
        k(f"v_and_b32 v{vT2}, 7, v{vT2}")
        k(f"v_lshlrev_b32 v{vT2}, 4, v{vT2}")
        if isinstance(pitch, int):
            k(f"s_movk_i32 s{sD3}, {pitch}")
            pitch = f"s{sD3}"
        k(f"v_mad_u32_u24 v{dst}, v{dst}, {pitch}, v{vT2}")

    def dma_raw(sr, lds_imm, first, R=None):
        sD0_, sD2_, sL0_, vDM_ = R or (sD0, sD2, sL0, vDM)
        with k.atomic():
            k(f"s_add_u32 m0, s{sL0_}, {lds_imm}")
            k("s_nop 0" if first else f"s_add_u32 s{sD0_}, s{sD0_}, s{sD2_}")
            k(f"buffer_load_dwordx4 v{vDM_}, {srd(sr)}, s{sD0_} offen lds")

    def packU_issue(base, sD0, sD1, sD2, sD3, sL0, vDM, sPDA, shift=12):
        R = (sD0, sD2, sL0, vDM)
        l2, l3, lq, le = k.label("L_u2"), k.label("L_u3"), k.label("L_uq"), k.label("L_ue")
        with k.atomic():
            k(f"""
            s_lshl_b32 s{sL0}, s{sW}, {shift}
            s_add_u32 s{sL0}, s{sL0}, {base}
            s_lshr_b32 s{sD0}, s{sC}, 2
            s_mul_i32 s{sD0}, s{sD0}, 896
            s_mul_i32 s{sD1}, s{sG}, {32*3584}
            s_add_u32 s{sD0}, s{sD0}, s{sD1}
            s_and_b32 s{sD1}, s{sC}, 3
            s_cmp_eq_u32 s{sW}, 3
            s_cbranch_scc1 {l3}
            s_cmp_eq_u32 s{sW}, 2
            s_cbranch_scc1 {l2}
            s_mov_b32 s{S_A}, s{S_W2}
            s_mov_b32 s{S_A+1}, s{S_W2+1}
            s_mov_b32 s{S_A+2}, {1792*1024}
            s_movk_i32 s{sD2}, 1024
            s_lshl1_add_u32 s{sD0}, s2, s{sW}
            s_lshr_b32 s{sD1}, s{sD0}, 3
            s_and_b32 s{sD0}, s{sD0}, 7
            s_mul_i32 s{sPDA}, s{sD0}, 56
            s_add_u32 s{sPDA}, s{sPDA}, s{sD1}
            s_lshl_b32 s{sPDA}, s{sPDA}, 12
            s_add_u32 s{sPDA}, s{sPDA}, {WS_W2T}
            s_cmp_ge_u32 s{sD1}, 56
            s_cselect_b32 s{sPDA}, {OOB}, s{sPDA}
            s_lshl_b32 s{sD1}, s{sD1}, 15
            s_lshl_b32 s{sD0}, s{sD0}, 7
            s_add_u32 s{sD0}, s{sD0}, s{sD1}
            s_branch {lq}
            {l2}:
            s_mov_b32 s{S_A}, s{S_W1}
            s_mov_b32 s{S_A+1}, s{S_W1+1}
            s_mov_b32 s{S_A+2}, {512*3584}
            s_movk_i32 s{sD2}, 3584
            s_lshl_b32 s{sD1}, s{sD1}, 7
            s_add_u32 s{sD0}, s{sD0}, s{sD1}
            s_lshl_b32 s{sPDA}, s{sG}, 12
            s_add_u32 s{sPDA}, s{sPDA}, s{sPKB}
            s_add_u32 s{sPDA}, s{sPDA}, {PK_W1A}
            {lq}:
            s_mov_b32 s{S_A+3}, 0x20000
            """)
            quad_lane(f"s{sD2}", vDM, vT2 if shift == 14 else vACT + 127)
            k(f"s_lshl_b32 s{sD2}, s{sD2}, 3")
            for j in range(4):
                dma_raw(S_A, j * 1024, j == 0, R)
            k(f"""
            s_branch {le}
            {l3}:
            s_movk_i32 s{sD3}, 3584
            s_mul_i32 s{sPDA}, s{sG}, 3072
            s_add_u32 s{sPDA}, s{sPDA}, s{sPKB}
            s_add_u32 s{sPDA}, s{sPDA}, {PK_W1B}
            s_lshr_b32 s{sT5}, s{sD1}, 1
            s_mul_i32 s{sT5}, s{sT5}, 6
            s_and_b32 s{sD2}, s{sD1}, 1
            s_add_u32 s{sT5}, s{sT5}, s{sD2}
            s_add_u32 s{sT5}, s{sT5}, 18
            s_lshl_b32 s{sT5}, s{sT5}, 5
            s_add_u32 s{sT5}, s{sT5}, s{sD0}
            v_lshrrev_b32 v{vDM}, 1, v{vLANE}
            v_and_b32 v{vT2 if shift == 14 else vACT + 127}, 16, v{vL16}
            v_mad_u32_u24 v{vDM}, v{vDM}, s{sD3}, v{vT2 if shift == 14 else vACT + 127}
            s_add_u32 m0, s{sL0}, 2048
            s_mul_i32 s{sD1}, s{sD1}, 3
            buffer_load_dwordx4 v{vDM}, {srd(S_W1)}, s{sT5} offen lds
            s_add_u32 s{sD1}, s{sD1}, 17
            s_lshr_b32 s{sD1}, s{sD1}, 1
            s_lshl_b32 s{sD1}, s{sD1}, 6
            s_add_u32 s{sD0}, s{sD0}, s{sD1}
            s_mov_b32 s{sD2}, {16*3584}
            v_mad_u32_u24 v{vDM}, v{vP}, s{sD3}, v{vCH}
            """)
            for hh in range(2):
                dma_raw(S_W1, hh * 1024, hh == 0, R)
            k(f"buffer_load_dword a{aDUM}, v{vL16}, {srd(S_W1)}, s{S_W1+2} offen")
            k(f"{le}:")
            k.vm_note(4, "pu")

    def warm():
        k(f"v_lshlrev_b32 v{vT3}, 7, v{vLANE}")
        k(f"s_lshl2_add_u32 s{sT2}, s{sC}, s{sW}")
        k(f"s_lshl_b32 s{sT2}, s{sT2}, 8")
        k(f"s_add_u32 s{sT2}, s{sT2}, s{sGB}")
        k("s_mov_b64 exec, 3")
        k.vmem(f"buffer_load_dword a{aDUM}, v{vT3}, {srd(S_WS)}, s{sT2} offen sc1", "touch")
        k("s_mov_b64 exec, -1")

    OWN = vACC
    k(f"s_lshl_b32 s{sT2}, s{sC}, 11")
    k(f"s_add_u32 s{sT2}, s{sT2}, s{sT1}")
    for r in range(2):
        k.vmem(f"buffer_load_dwordx4 {vr(OWN+4*r,4)}, v{vL16}, {srd(S_X)}, s{sT2} offen offset:{r*1024}", "own")
    wkv_raw(0)
    k(f"""
    s_mov_b32 s{S_WO+2}, {512*1024}
    s_mov_b32 s{S_WO+3}, 0x20000
    s_mov_b32 s{S_W1+2}, {512*3584}
    s_mov_b32 s{S_W1+3}, 0x20000
    s_mov_b32 s{S_W2+2}, {1792*1024}
    s_mov_b32 s{S_W2+3}, 0x20000
    s_mov_b32 s{S_WS+2}, {WS_USED}
    s_mov_b32 s{S_WS+3}, 0x20000
    s_lshl_b32 s{sGB}, s{sG}, 20
    s_add_u32 s{sGB}, s{sGB}, {GRP0}
    """)
    warm()
    UF = o.get("uf", 1)
    k(f"s_mul_i32 s{sPKB}, s{sC}, {PK_SZ}")
    k(f"s_add_u32 s{sPKB}, s{sPKB}, {WS_PK}")
    packU_issue(R1 + 16384, sH1, sH1b, sH2, sH2b, sH3, vWB + 8, sPDB)
    quad_lane(1024, vWB + 8, vACT + 127, sH2b)
    k(f"""
    s_lshl2_add_u32 s{sH1}, s{sG}, s{sW}
    s_lshl_b32 s{sPDA}, s{sH1}, 10
    s_add_u32 s{sPDA}, s{sPDA}, s{sPKB}
    s_add_u32 s{sPDA}, s{sPDA}, {PK_WO}
    s_lshl_b32 s{sH1}, s{sH1}, 13
    s_lshl_b32 s{sH1b}, s{sC}, 7
    s_add_u32 s{sH1}, s{sH1}, s{sH1b}
    s_cmp_ge_u32 s{sC}, 8
    s_cselect_b32 s{sH1}, {OOB}, s{sH1}
    s_cselect_b32 s{sPDA}, {OOB}, s{sPDA}
    s_lshl_b32 s{sH1b}, s{sW}, 10
    s_add_u32 m0, s{sH1b}, {R0 + 49152}
    s_nop 0
    """)
    k.vmem(f"buffer_load_dwordx4 v{vWB+8}, {srd(S_WO)}, s{sH1} offen lds", "pw")

    def arm(mode):
        with k.atomic():
            k(f"s_lshl2_add_u32 s{sT2}, s{sC}, s{sW}")
            k(f"s_lshl_b32 s{sT3}, s{sT2}, 11")
            k(f"s_add_u32 s{sT3}, s{sT3}, s{sGB}")
            k(f"s_add_u32 s{sT3}, s{sT3}, {G_X1}")
            k(f"s_lshr_b32 s{sT4}, s{sT2}, 3")
            k(f"s_mul_i32 s{sT4}, s{sT4}, 57344")
            k(f"s_and_b32 s{sT2}, s{sT2}, 7")
            k(f"s_mul_i32 s{sT2}, s{sT2}, {5120 if mode & 4 else 1024}")
            k(f"s_add_u32 s{sT4}, s{sT4}, s{sT2}")
            k(f"s_add_u32 s{sT4}, s{sT4}, s{sGB}")
            k(f"s_add_u32 s{sT4}, s{sT4}, {G_H + 16*1024}")
            k(f"s_add_u32 s{sT2}, s{sT4}, 4096")
        if mode & 1:
            for j in range(2):
                k.vmem(f"buffer_store_dwordx4 {vr(vQ0,4)}, v{vL16}, {srd(S_WS)}, s{sT3} offen offset:{j*1024} sc1", "arm")
        for j in range(5 if mode & 4 else 1 if mode & 2 else 0):
            k.vmem(f"buffer_store_dwordx4 {vr(vQ0,4)}, v{vL16}, {srd(S_WS)}, s{sT4 if j < 4 else sT2} offen offset:{(j%4)*1024} sc1", "arm")

    k(f"""
    s_mov_b32 s{S_OUT+2}, {2048*1024}
    s_mov_b32 s{S_OUT+3}, 0x20000
    s_lshr_b32 s{sDH}, s{sC}, 3
    s_and_b32 s{sCT}, s{sC}, 7
    s_mov_b32 s{sBUD}, 150000
    s_mov_b32 s{sEPS}, 0x358637bd
    s_mov_b32 s{sEPS+1}, 0x358637bd
    s_getreg_b32 s{sXCC}, hwreg(HW_REG_XCC_ID, 0, 4)
    s_lshl_b32 s{sACT}, s{sW}, 15
    s_add_u32 s{sACT}, s{sACT}, s{sGB}
    s_add_u32 s{sACT1}, s{sACT}, 16384
    s_lshl2_add_u32 s{sT0}, s{sDH}, s{sW}
    s_lshl_b32 s{sBACT}, s{sT0}, 14
    s_add_u32 s{sBACT}, s{sBACT}, s{sGB}
    s_lshl_b32 s{sTILE}, s{sCT}, 11
    s_add_u32 s{sTILE}, s{sTILE}, s{sBACT}
    s_mul_i32 s{sBACT}, s{sT0}, 57344
    s_add_u32 s{sBACT}, s{sBACT}, s{sGB}
    s_mul_i32 s{sOST}, s{sW}, {2*57344}
    s_lshl_b32 s{sOST1}, s{sC}, 10
    s_add_u32 s{sOST}, s{sOST}, s{sOST1}
    s_add_u32 s{sOST}, s{sOST}, s{sGB}
    s_add_u32 s{sOST}, s{sOST}, {G_O}
    s_add_u32 s{sOST1}, s{sOST}, 57344
    s_lshl_b32 s{sFXp}, s{sW}, 7
    s_add_u32 s{sFXp}, s{sFXp}, s{sGB}
    s_lshl2_add_u32 s{sFOo}, s{sC}, s{sFXp}
    s_lshl_b32 s{sFHp}, s{sT0}, 7
    s_add_u32 s{sFHp}, s{sFHp}, s{sGB}
    s_lshr_b32 s{sT0}, s{sT0}, 1
    s_mov_b32 s{sT1}, s{sT0}
    s_lshl_b32 s{sFOp}, s{sT0}, 7
    s_add_u32 s{sFOp}, s{sFOp}, s{sGB}
    s_and_b32 s{sT2}, s{sW}, 1
    s_lshl1_add_u32 s{sT3}, s{sCT}, s{sT2}
    s_lshl2_add_u32 s{sFXo}, s{sT3}, s{sFOp}
    s_lshl3_add_u32 s{sT3}, s{sT0}, s{sCT}
    s_lshl_b32 s{sT3}, s{sT3}, 8
    s_lshl3_add_u32 s{sT3}, s{sT2}, s{sT3}
    s_add_u32 s{sSTo}, s{sT3}, s{sGB}
    s_lshl_b32 s{sSTg}, s{sW}, 11
    s_add_u32 s{sSTg}, s{sSTg}, s{sGB}
    s_lshl2_add_u32 s{sT1}, s{sT1}, s{sT2}
    s_lshl_b32 s{sT1}, s{sT1}, 6
    s_add_u32 s{sT1}, s{sT1}, {L_STAT + 128}
    v_lshl_add_u32 v{vT3}, v{vT1}, 2, s{sT1}
    v_accvgpr_write_b32 a{cRSD}, v{vT3}
    s_mul_i32 s{sT0}, s{sW}, {2*57344}
    s_add_u32 s{sT0}, s{sT0}, s{sGB}
    s_lshr_b32 s{sT3}, s{sC}, 2
    s_add_u32 s{sT0}, s{sT0}, {G_H}
    s_lshl_b32 s{sH1}, s{sC}, 11
    s_add_u32 s{sH1}, s{sH1}, {24*1024}
    s_add_u32 s{sH1}, s{sH1}, s{sT0}
    s_add_u32 s{sH1b}, s{sH1}, 57344
    s_mul_i32 s{sT4}, s{sT3}, 6144
    s_add_u32 s{sT0}, s{sT0}, s{sT4}
    s_and_b32 s{sT4}, s{sC}, 3
    s_mul_i32 s{sH2}, s{sT4}, 3
    s_add_u32 s{sH2}, s{sH2}, 1
    s_lshr_b32 s{sH2}, s{sH2}, 1
    s_lshl_b32 s{sH2}, s{sH2}, 10
    s_add_u32 s{sH2}, s{sH2}, s{sT0}
    s_add_u32 s{sH2b}, s{sH2}, 57344
    s_lshr_b32 s{sH3}, s{sT4}, 1
    s_mul_i32 s{sH3}, s{sH3}, 3072
    s_and_b32 s{sH3b}, s{sT4}, 1
    s_lshl3_add_u32 s{sH3}, s{sH3b}, s{sH3}
    s_add_u32 s{sH3}, s{sH3}, 1024
    s_add_u32 s{sH3}, s{sH3}, s{sT0}
    s_add_u32 s{sH3b}, s{sH3}, 57344
    s_lshr_b32 s{sT0}, s{sW}, 1
    s_lshl2_add_u32 s{sT0}, s{sT0}, s{sT3}
    s_lshl_b32 s{sT0}, s{sT0}, 7
    s_lshl1_add_u32 s{sT2}, s{sT4}, s{sT2}
    s_lshl2_add_u32 s{sT0}, s{sT2}, s{sT0}
    s_add_u32 s{sFHo}, s{sT0}, s{sGB}
    """)
    k(f"""
    s_mul_i32 s{sT0}, s{sC}, {KVX_C}
    s_add_u32 s{sT0}, s{sT0}, {WS_KVX}
    s_lshl_b32 s{sT1}, s{sW}, 13
    s_add_u32 s{sKVC}, s{sT0}, s{sT1}
    s_lshl_b32 s{sT2}, s{sW}, 14
    s_lshl_b32 s{sT3}, s{sG}, 10
    s_lshl_b32 s{sT4}, s{sG}, 7
    s_cmp_lt_u32 s{sW}, 2
    s_cselect_b32 s{sT3}, s{sT3}, s{sT4}
    s_cselect_b32 s{sKM}, -1, 0x30003
    s_cselect_b32 s{sKM+1}, -1, 0x30003
    s_cselect_b64 vcc, -1, 0
    s_add_u32 s{sKVP}, s{sT0}, s{sT2}
    s_add_u32 s{sKVP}, s{sKVP}, s{sT3}
    s_cmp_eq_u32 s{sW}, 3
    s_cselect_b32 s{sKVP}, {OOB}, s{sKVP}
    v_lshlrev_b32 v{vT3}, 4, v{vT0}
    v_lshl_add_u32 v{vT3}, v{vT1}, 6, v{vT3}
    v_cndmask_b32 v{vT3}, v{vT3}, v{vL16}, vcc
    v_accvgpr_write_b32 a{cKVS}, v{vT3}
    v_lshlrev_b32 v{vT3}, 2, v{vL16}
    v_and_b32 v{vT3}, 0xf00, v{vT3}
    v_lshrrev_b32 v{vT3}, 1, v{vT3}
    v_and_b32 v{vWB}, 48, v{vL16}
    s_lshr_b32 s{sT2}, s{sW}, 1
    s_lshl_b32 s{sT2}, s{sT2}, 6
    s_add_u32 s{sT2}, s{sT2}, 32768
    s_sub_u32 s{sT2}, s{sT2}, s{sT1}
    v_add3_u32 v{vT3}, v{vT3}, v{vWB}, s{sT2}
    v_accvgpr_write_b32 a{cZL}, v{vT3}
    v_and_b32 v{vWB+5}, 1, v{vLANE}
    v_cndmask_b32 v{vWB+5}, v{vWB+5}, 0, vcc
    s_min_u32 s{sT5}, s{sW}, 2
    """)
    W = vWB
    k(f"""
    v_lshl_add_u32 v{XR}, v{vT1}, 8, v{vT2}
    v_add_u32 v{XR}, s{sL0}, v{XR}
    v_xor_b32 v{XR+1}, 64, v{XR}
    v_xor_b32 v{XR+2}, 0x80, v{XR}
    v_xor_b32 v{XR+3}, 0xc0, v{XR}
    v_and_b32 v{vT3}, 3, v{vLANE}
    v_lshlrev_b32 v{vT3}, 3, v{vT3}
    v_lshl_add_u32 v{vTR0}, v{vP}, 6, v{vT3}
    v_lshl_add_u32 v{vQ0}, v{vP}, 7, v{vT3}
    v_and_b32 v{vT3}, 1, v{vT0}
    v_lshlrev_b32 v{vT3}, 5, v{vT3}
    v_add_u32 v{vTR0}, v{vTR0}, v{vT3}
    v_xor_b32 v{vTR1}, 32, v{vTR0}
    v_bfe_u32 v{vT3}, v{vLANE}, 3, 2
    v_lshl_add_u32 v{vQ0}, v{vT3}, 5, v{vQ0}
    v_xor_b32 v{vQ1}, 32, v{vQ0}
    v_xor_b32 v{vQ2}, 64, v{vQ0}
    v_xor_b32 v{vQ3}, 0x60, v{vQ0}
    v_lshlrev_b32 v{W}, 2, v{vT1}
    v_accvgpr_write_b32 a{cP16}, v{W}
    v_mov_b32 v{W+1}, {BF1}
    v_accvgpr_write_b32 a{aONES}, v{W+1}
    v_accvgpr_write_b32 a{aONES+1}, v{W+1}
    v_accvgpr_write_b32 a{aONES+2}, v{W+1}
    v_accvgpr_write_b32 a{aONES+3}, v{W+1}
    v_add_u32 v{W+1}, {L_CS}, v{W}
    v_accvgpr_write_b32 a{cCSA}, v{W+1}
    v_and_b32 v{W+2}, 48, v{vLANE}
    v_add_u32 v{W+1}, {L_CS}, v{W+2}
    v_accvgpr_write_b32 a{cCSB}, v{W+1}
    v_lshlrev_b32 v{W+1}, 2, v{vT0}
    v_lshl_add_u32 v{W+1}, v{vT1}, 4, v{W+1}
    v_accvgpr_write_b32 a{cSTO}, v{W+1}
    s_lshl_b32 s{sT0}, s{sW}, 8
    s_add_u32 s{sT0}, s{sT0}, {L_STAT}
    v_add_u32 v{W+1}, s{sT0}, v{W}
    v_accvgpr_write_b32 a{cSTA}, v{W+1}
    v_and_b32 v{W+3}, 32, v{vLANE}
    v_lshl_add_u32 v{W+1}, v{W+3}, 1, v{W+1}
    v_accvgpr_write_b32 a{cSTW}, v{W+1}
    v_add_u32 v{W+1}, s{sT0}, v{W+2}
    v_accvgpr_write_b32 a{cSTB}, v{W+1}
    s_lshl_b32 s{sT0}, s{sW}, 10
    v_add_u32 v{W+1}, s{sT0}, v{vL16}
    v_accvgpr_write_b32 a{cKW}, v{W+1}
    v_add_u32 v{W+3}, {R3}, v{W+1}
    v_accvgpr_write_b32 a{cKW1}, v{W+3}
    s_lshl_b32 s{sT0}, s{sT5}, 14
    v_add_u32 v{W+1}, s{sT0}, v{vL16}
    v_lshl_add_u32 v{W+1}, v{W+5}, 12, v{W+1}
    v_accvgpr_write_b32 a{cKR}, v{W+1}
    s_lshl_b32 s{sT0}, s{sT5}, 12
    s_add_u32 s{sT0}, s{sT0}, {R3}
    v_add_u32 v{W+1}, s{sT0}, v{vL16}
    v_lshl_add_u32 v{W+1}, v{W+5}, 12, v{W+1}
    v_accvgpr_write_b32 a{cKR1}, v{W+1}
    v_add_u32 v{W+1}, {L_XB}, v{vL16}
    v_accvgpr_write_b32 a{cXR}, v{W+1}
    v_lshlrev_b32 v{W+3}, 3, v{vT0}
    v_add_u32 v{W+3}, {L_ZB}, v{W+3}
    v_accvgpr_write_b32 a{cZR}, v{W+3}
    """)
    k(f"""
    s_lshl_b32 s{sT0}, s{sW}, 10
    v_add_u32 v{W+1}, s{sT0}, v{W+1}
    v_accvgpr_write_b32 a{cXW}, v{W+1}
    v_and_b32 v{W+3}, 1, v{vT0}
    v_lshrrev_b32 v{W+4}, 1, v{vT0}
    v_lshl_add_u32 v{W+3}, v{W+3}, 1, v{W+4}
    v_and_b32 v{W+4}, 3, v{vLANE}
    v_lshl_add_u32 v{W+3}, v{W+4}, 2, v{W+3}
    s_lshr_b32 s{sT0}, s{sW}, 1
    s_lshl_b32 s{sT0}, s{sT0}, 5
    s_add_u32 s{sT0}, s{sT0}, {L_ZB}
    v_lshl_add_u32 v{W+3}, v{W+3}, 1, s{sT0}
    v_accvgpr_write_b32 a{cZW}, v{W+3}
    """)
    for j in range(4):
        k(f"s_add_u32 s{sT0}, s{sW}, {j}")
        k(f"s_and_b32 s{sT0}, s{sT0}, 3")
        k(f"s_lshl_b32 s{sT0}, s{sT0}, 13")
        k(f"s_add_u32 s{sT0}, s{sT0}, {L_RED + (4096 if j == 2 else 0)}")
        k(f"v_add_u32 v{W+1}, s{sT0}, v{vL16}")
        k(f"v_accvgpr_write_b32 a{cRD0+j}, v{W+1}")
    k(f"""
    s_lshl2_add_u32 s{sT0}, s{sDH}, s{sW}
    s_lshl3_add_u32 s{sT0}, s{sG}, s{sT0}
    s_lshl_b32 s{sT0}, s{sT0}, 14
    s_lshl_b32 s{sT1}, s{sCT}, 7
    s_add_u32 s{sT0}, s{sT0}, s{sT1}
    v_lshl_add_u32 v{W+1}, v{vT1}, 10, s{sT0}
    v_and_b32 v{W+3}, 1, v{vT0}
    v_lshl_add_u32 v{W+1}, v{W+3}, 5, v{W+1}
    v_lshrrev_b32 v{W+3}, 1, v{vT0}
    v_lshl_add_u32 v{W+1}, v{W+3}, 4, v{W+1}
    v_accvgpr_write_b32 a{cOUT}, v{W+1}
    """)

    def xread(q):
        k.vm_wait(("xs", q))
        for ksl in range(4):
            for rb in range(2):
                k.lds(f"ds_read_b128 {vr(act((4*q+ksl) % 8, rb),4)}, v{XR+ksl} offset:{(q%2)*8192 + rb*4096}", ("xr", q))

    SUM0, SQ0, SUM1, SQ1 = vACC + 56, vACC + 57, vACC + 58, vACC + 59
    SUMA, SQA = vACC + 48, vACC + 56
    ONES = vPQ + 4
    NM_A, RS_A, RL_A = vACC + 60, vACC + 62, vACC + 56
    NM_B, RS_B, RL_B = vACC + 32, vACC + 40, vACC + 48
    STG = vACC + 48

    def own_stats():
        a, b, c, d = OWN + 8, OWN + 9, OWN + 10, OWN + 11
        k(f"v_mov_b32 v{OWN+12}, {BF1}")
        k.vm_wait("own")
        for j in range(4):
            r0, r1 = OWN + j, OWN + 4 + j
            k(f"v_dot2_f32_bf16 v{a}, v{OWN+12}, v{r0}, {'0' if j == 0 else f'v{a}'}")
            k(f"v_dot2_f32_bf16 v{c}, v{OWN+12}, v{r1}, {'0' if j == 0 else f'v{c}'}")
            k(f"v_dot2_f32_bf16 v{b}, v{r0}, v{r0}, {'0' if j == 0 else f'v{b}'}")
            k(f"v_dot2_f32_bf16 v{d}, v{r1}, v{r1}, {'0' if j == 0 else f'v{d}'}")
        k(f"""
        s_waitcnt lgkmcnt(0)
        s_mul_i32 s{sTAG}, s{sEP}, 0x9E3779B1
        s_add_u32 s{sTAG}, s{sTAG}, 0x7F4A7C15
        s_add_u32 s{sT8}, s{sEP}, 1
        s_and_b32 s{sT8}, s{sT8}, 0xff
        v_permlane32_swap_b32 v{a}, v{c}
        v_permlane32_swap_b32 v{b}, v{d}
        v_add_f32 v{a}, v{a}, v{c}
        v_add_f32 v{b}, v{b}, v{d}
        v_mov_b32 v{c}, v{a}
        v_mov_b32 v{d}, v{b}
        s_nop 1
        v_permlane16_swap_b32 v{a}, v{c}
        v_permlane16_swap_b32 v{b}, v{d}
        v_add_f32 v{a}, v{a}, v{c}
        v_add_f32 v{b}, v{b}, v{d}
        """)
        for sh in (8, 4, 2, 1):
            k("s_nop 0")
            k(f"v_add_f32_dpp v{a}, v{a}, v{a} row_ror:{sh} row_mask:0xf bank_mask:0xf")
            k(f"v_add_f32_dpp v{b}, v{b}, v{b} row_ror:{sh} row_mask:0xf bank_mask:0xf")
        k(f"""
        v_mul_f32 v{a}, 0xbb000000, v{a}
        v_mul_f32 v{b}, 0x3b000000, v{b}
        v_fma_f32 v{b}, -v{a}, v{a}, v{b}
        v_max_f32 v{b}, 0, v{b}
        v_add_f32 v{b}, 0x3727c5ac, v{b}
        v_rsq_f32 v{b}, v{b}
        v_mov_b32 v{c}, s{sTAG}
        v_mov_b32 v{d}, s{sXCC}
        v_lshrrev_b32 v{vT3}, 1, v{vLANE}
        s_lshl4_add_u32 s{sT2}, s{sW}, s{sC}
        s_lshl_b32 s{sT2}, s{sT2}, 7
        s_add_u32 s{sT2}, s{sT2}, s{sGB}
        s_add_u32 s{sT2}, s{sT2}, {G_ST0}
        s_mov_b32 exec_lo, 1
        s_mov_b32 exec_hi, 1
        """)
        k.vmem(f"buffer_store_dwordx4 {vr(a,4)}, v{vT3}, {srd(S_WS)}, s{sT2} offen sc1", "ownst")
        k("s_mov_b64 exec, -1")

    S0 = vACC + 52

    def st0_issue():
        with k.atomic():
            k(f"v_and_b32 v{vT0}, 30, v{vLANE}")
            k(f"v_lshlrev_b32 v{vT0}, 6, v{vT0}")
            k(f"v_and_b32 v{vT1}, 16, v{vL16}")
            k(f"v_add_u32 v{vT0}, v{vT0}, v{vT1}")
            k(f"s_add_u32 s{sT4}, s{sSTg}, {G_ST0}")
            k.vmem(f"buffer_load_dwordx4 {vr(S0,4)}, v{vT0}, {srd(S_WS)}, s{sT4} offen sc1", "st0")

    def st0_use():
        lp, ok = k.label("L_s0"), k.label("L_s0ok")
        with k.atomic():
            k.vm_wait("st0")
            k(f"{lp}:")
            k(f"v_cmp_ne_u32 vcc, s{sTAG}, v{S0+2}")
            k(f"s_cbranch_vccz {ok}")
            k(f"buffer_load_dwordx4 {vr(S0,4)}, v{vT0}, {srd(S_WS)}, s{sT4} offen sc1")
            k("s_waitcnt vmcnt(0)")
            k(f"s_sub_u32 s{sBUD}, s{sBUD}, 1")
            k(f"s_cbranch_scc0 {lp}")
            k(f"s_mov_b32 s{sBUD}, 0")
            k(f"{ok}:")
            k(f"v_cmp_ne_u32 vcc, s{sXCC}, v{S0+3}")
            k("s_nop 4")
            k(f"s_or_b32 s{sSLOW}, vcc_lo, {1 if o.get('forceslow') else 0}")
        k.get(vT0, cSTA)
        k(f"v_and_b32 v{vT1}, 16, v{vLANE}")
        k(f"v_lshl_add_u32 v{vT1}, v{vT1}, 2, v{vT0}")
        k.lds(f"ds_write2_b32 v{vT1}, v{S0}, v{S0+1} offset0:0 offset1:32")
        k.lds(f"ds_read2_b32 {vr(NM_A,2)}, v{vT0} offset0:0 offset1:16", "sta")
        k.lds(f"ds_read2_b32 {vr(RS_A,2)}, v{vT0} offset0:32 offset1:48", "sta")

    def stats_finalize(need_rs):
        k.get(vT1, cSTW)
        k.get(vT0, cSTA)
        k(f"""
        v_permlane32_swap_b32 v{SUM0}, v{SUM1}
        v_permlane32_swap_b32 v{SQ0}, v{SQ1}
        v_add_f32 v{SUM0}, v{SUM0}, v{SUM1}
        v_add_f32 v{SQ0}, v{SQ0}, v{SQ1}
        v_mov_b32 v{SUM1}, v{SUM0}
        v_mov_b32 v{SQ1}, v{SQ0}
        s_nop 0
        v_permlane16_swap_b32 v{SUM0}, v{SUM1}
        v_permlane16_swap_b32 v{SQ0}, v{SQ1}
        v_add_f32 v{SUM0}, v{SUM0}, v{SUM1}
        v_add_f32 v{SQ0}, v{SQ0}, v{SQ1}
        v_mul_f32 v{SUM0}, 0xbb000000, v{SUM0}
        v_mul_f32 v{SQ0}, 0x3b000000, v{SQ0}
        v_fma_f32 v{SQ0}, -v{SUM0}, v{SUM0}, v{SQ0}
        v_max_f32 v{SQ0}, 0, v{SQ0}
        v_add_f32 v{SQ0}, 0x3727c5ac, v{SQ0}
        v_rsq_f32 v{SQ0}, v{SQ0}
        s_nop 0
        """)
        k.lds(f"ds_write2_b32 v{vT1}, v{SUM0}, v{SQ0} offset0:0 offset1:32")
        k.lds(f"ds_read2_b32 {vr(NM_A,2)}, v{vT0} offset0:0 offset1:16", "sta")
        if need_rs:
            k.lds(f"ds_read2_b32 {vr(RS_A,2)}, v{vT0} offset0:32 offset1:48", "sta")

    def stats_b():
        k.get(vT1, cSTB)
        for rb in range(2):
            k.lds(f"ds_read_b128 {vr(NM_B+4*rb,4)}, v{vT1} offset:{64*rb}", "sta")
            k.lds(f"ds_read_b128 {vr(RS_B+4*rb,4)}, v{vT1} offset:{128+64*rb}", "sta")

    def stats_scale():
        k.ds_wait("sta")
        for j in range(8):
            k(f"v_mul_f32 v{RL_B+j}, 0x3fb8aa3b, v{RS_B+j}")
        for j in range(2):
            k(f"v_mul_f32 v{RL_A+j}, 0x3fb8aa3b, v{RS_A+j}")

    def set_ones(r):
        for j in range(4):
            k(f"v_mov_b32 v{r+j}, {BF1}")

    def cs_put(first, sblk, src=None):
        k.get(vT0, cCSA)
        k(f"s_lshl_b32 s{sT5}, s{sblk}, 6")
        k(f"v_add_u32 v{vT0}, s{sT5}, v{vT0}")
        k.lds(f"ds_write_b32 v{vT0}, {f'v{src}' if src else f'a{aCS}'} offset:{first*64}")

    def phi_block(acc, nm, cs, rl, rs, dst, tmp, lay):
        s1, s2, s3, s4, s5 = [], [], [], [], []
        for p in range(2):
            a2 = vr(acc + 2*p, 2)
            t2 = vr(tmp + 2*p, 2)
            if lay == "b":
                c2, m = bcast(cs, 1, 3)
                s1.append(f"v_pk_fma_f32 {a2}, {vr(nm+2*p,2)}, {c2}, {a2}{m}")
                s2.append(f"v_pk_mul_f32 {t2}, {a2}, {vr(rl+2*p,2)}")
                s4.append(f"v_pk_fma_f32 {a2}, {a2}, {vr(rs+2*p,2)}, {t2}")
            else:
                c2, m = bcast(nm, 1, 3)
                s1.append(f"v_pk_fma_f32 {a2}, {vr(cs+2*p,2)}, {c2}, {a2}{m}")
                c2, m = bcast(rl, 1, 2)
                s2.append(f"v_pk_mul_f32 {t2}, {a2}, {c2}{m}")
                c2, m = bcast(rs, 1, 3)
                s4.append(f"v_pk_fma_f32 {a2}, {a2}, {c2}, {t2}{m}")
            for j in range(2):
                s3.append(f"v_exp_f32 v{tmp+2*p+j}, v{tmp+2*p+j} clamp")
            s5.append(f"v_pk_add_f32 {a2}, {a2}, s[{sEPS}:{sEPS+1}]")
        for s in s1 + s2 + s3:
            k(s)
        for j in range(4):
            k(f"v_max_f32 v{acc+j}, 0, v{acc+j}")
        for s in s4 + s5:
            k(s)
        for p in range(2):
            k(f"v_cvt_pk_bf16_f32 v{dst+p}, v{acc+2*p}, v{acc+2*p+1}")

    def ring(ks, rb):
        return vACT + 8 * (ks % 6) + 4 * rb
    QA, vPARK = vACT + 48, vACT + 64

    def act_loads(bufoff, act=act):
        for ks in range(16):
            for rb in range(2):
                with k.atomic():
                    if ks % 4 == 0:
                        k(f"s_add_u32 s{sT2+rb}, s{sACT+rb}, {bufoff + ks*1024}")
                    k.vmem(f"buffer_load_dwordx4 {vr(act(ks,rb),4)}, v{vL16}, {srd(S_WS)}, s{sT2+rb} offen offset:{(ks%4)*1024} sc1",
                           ("act", ks, rb))

    def stat_loads(stoff):
        k(f"s_add_u32 s{sT4}, s{sSTg}, {stoff}")
        for j in range(2):
            k.vmem(f"buffer_load_dwordx4 {vr(STG+4*j,4)}, v{vL16}, {srd(S_WS)}, s{sT4} offen offset:{j*1024} sc1", "stg")

    def stat_sum():
        k.vm_wait("stg")
        for j in range(4):
            k(f"v_add_f32 v{SUM0+j}, v{STG+j}, v{STG+4+j}")

    def mf2(acc, ks, sw, wait, first=None, act=act):
        return [(acc + 4 * rb, act(ks, rb), sw, (ks == 0) if first is None else first,
                 (("act", ks, 1) if ks else ("act", ks, rb)) if wait else None) for rb in range(2)]

    def wo_raw():
        with k.atomic():
            quad_lane(1024)
            k(f"s_lshl_b32 s{sD0}, s{sW}, 17")
            k(f"s_lshl_b32 s{sD1}, s{sCT}, 7")
            k(f"s_add_u32 s{sD0}, s{sD0}, s{sD1}")
            k(f"s_lshl_b32 s{sL0}, s{sW}, 14")
        for j in range(16):
            k.dma(S_WO, vDM, sD0, j * 8 * 1024, sL0, R0 + j * 1024, "wo")

    def w1c1_raw():
        with k.atomic():
            quad_lane(3584, tmp=vACT + 127)
            k(f"s_lshr_b32 s{sD0}, s{sC}, 2")
            k(f"s_mul_i32 s{sD0}, s{sD0}, 896")
            k(f"s_and_b32 s{sD1}, s{sC}, 3")
            k(f"s_lshl_b32 s{sD1}, s{sD1}, 7")
            k(f"s_add_u32 s{sD0}, s{sD0}, s{sD1}")
            k(f"s_mul_i32 s{sD1}, s{sW}, {64*3584}")
            k(f"s_add_u32 s{sD0}, s{sD0}, s{sD1}")
            k(f"s_lshl_b32 s{sL0}, s{sW}, 13")
        for half in range(2):
            for j in range(8):
                k.dma(S_W1, vDM, sD0, (half * 256 + j * 8) * 3584, sL0, R1 + half * 32768 + j * 1024, "w1a")

    def lin_dma(src, dst, n, tag, shared=False):
        for j in range(n):
            with k.atomic():
                if j == 0:
                    k(f"s_mul_i32 s{sL0}, s{sW}, {n*1024}")
                    k(f"s_add_u32 s{sD0}, s{sL0}, s{sPKB}")
                    if shared:
                        k(f"s_mul_i32 s{sD1}, s{sDH}, {8*PK_SZ}")
                        k(f"s_sub_u32 s{sD0}, s{sD0}, s{sD1}")
                if j % 4 == 0:
                    k(f"s_add_u32 m0, s{sL0}, {dst + j*1024}")
                    k(f"s_add_u32 s{sD1}, s{sD0}, {src + j*1024}")
                k.vmem(f"buffer_load_dwordx4 v{vL16}, {srd(S_WS)}, s{sD1} offen offset:{(j%4)*1024} sc1 lds", tag)

    def publish_x(bufoff, stoff, floff, pay_sc1):
        k(f"s_add_u32 s{sT1}, s{sTILE}, {bufoff}")
        k.stores([f"buffer_store_dwordx4 {vr(vRES+4*s,4)}, v{vL16}, {srd(S_WS)}, s{sT1} offen offset:{s*1024}" for s in range(2)], pay_sc1)
        a, b, c, d = vT0, vT1, vT2, vT3
        for j in range(4):
            r0, r1 = vRES + j, vRES + 4 + j
            if j == 0:
                k(f"v_mov_b32 v{vWB+9}, {BF1}")
                k(f"v_dot2_f32_bf16 v{b}, v{r0}, v{r0}, 0")
                k(f"v_dot2_f32_bf16 v{d}, v{r1}, v{r1}, 0")
                k(f"v_dot2_f32_bf16 v{a}, v{vWB+9}, v{r0}, 0")
                k(f"v_dot2_f32_bf16 v{c}, v{vWB+9}, v{r1}, 0")
            else:
                k(f"v_dot2_f32_bf16 v{b}, v{r0}, v{r0}, v{b}")
                k(f"v_dot2_f32_bf16 v{d}, v{r1}, v{r1}, v{d}")
                k(f"v_dot2_f32_bf16 v{a}, v{vWB+9}, v{r0}, v{a}")
                k(f"v_dot2_f32_bf16 v{c}, v{vWB+9}, v{r1}, v{c}")
        k.get(vWB + 8, cSTO)
        k(f"""
        s_add_u32 s{sT3}, s{sSTo}, {stoff}
        v_add_f32 v{b}, v{b}, v{d}
        v_add_f32 v{a}, v{a}, v{c}
        s_nop 1
        v_permlane16_swap_b32 v{a}, v{b}
        v_add_f32 v{a}, v{a}, v{b}
        v_mov_b32 v{b}, v{a}
        s_nop 1
        v_permlane32_swap_b32 v{a}, v{b}
        v_add_f32 v{c}, v{a}, v{b}
        s_mov_b32 exec_hi, 0
        """)
        k.stores([f"buffer_store_dword v{c}, v{vWB+8}, {srd(S_WS)}, s{sT3} offen"], False)
        k("s_mov_b64 exec, -1")
        k.poll_prep(15)

    def unpack_res(dst):
        for f in range(4):
            for p in range(2):
                r = vRES + 2*f + p
                k(f"v_lshlrev_b32 v{dst+4*f+2*p}, 16, v{r}")
                k(f"v_and_b32 v{dst+4*f+2*p+1}, 0xffff0000, v{r}")

    def misc_l1():
        k(f"""
        s_add_u32 s{sT2}, s{sTAG}, s{sXCC}
        s_add_u32 s{sT2}, s{sT2}, 2
        v_mov_b32 v{vT1}, s{sT2}
        s_lshl4_add_u32 s{sT2}, s{sG}, s{sC}
        s_lshl_b32 s{sT2}, s{sT2}, 7
        s_add_u32 s{sT2}, s{sT2}, {WS_XID}
        """)
        with k.atomic():
            k(f"s_cmp_lg_u32 s{sW}, 0")
            k(f"s_cselect_b32 s{sT2}, {OOB}, s{sT2}")
            k("s_mov_b64 exec, 1")
            k.vmem(f"buffer_store_dword v{vT1}, v{vL16}, {srd(S_WS)}, s{sT2} offen sc1", "xid")
            k("s_mov_b64 exec, -1")

    def res_load():
        k.get(vT0, cOUT)
        for s_ in range(2):
            k.vmem(f"buffer_load_dwordx4 {vr(vRES+4*s_,4)}, v{vT0}, {srd(S_X)}, 0 offen offset:{64*s_}", "res")

    def touch(kind, vSP=vSP):
        with k.atomic():
            k(f"s_lshl2_add_u32 s{sD3}, s{sC}, s{sW}")
            sD2 = sD3
            if kind == "h":
                k(f"s_mul_i32 s{sD2}, s{sD2}, 7168")
                k(f"s_add_u32 s{sD2}, s{sD2}, s{sGB}")
                k(f"s_add_u32 s{sD2}, s{sD2}, {G_H}")
                k(f"v_lshlrev_b32 v{vSP}, 7, v{vLANE}")
                k("s_mov_b32 exec_hi, 0xffffff")
                k.vmem(f"buffer_load_dword a{aDUM}, v{vSP}, {srd(S_WS)}, s{sD2} offen sc1", "touch")
                k("s_mov_b32 exec_hi, -1")
            else:
                k(f"v_lshlrev_b32 v{vSP}, 7, v{vLANE}")
                k(f"s_lshl_b32 s{sT5}, s{sD2}, 11")
                k(f"s_add_u32 s{sT5}, s{sT5}, s{sGB}")
                k(f"s_add_u32 s{sT5}, s{sT5}, {G_X1}")
                k("s_mov_b64 exec, 0xffff")
                k.vmem(f"buffer_load_dword a{aDUM}, v{vSP}, {srd(S_WS)}, s{sT5} offen sc1", "touch")
                k(f"s_lshl_b32 s{sD2}, s{sD2}, 7")
                k(f"s_add_u32 s{sD2}, s{sD2}, s{sGB}")
                k("s_mov_b64 exec, 1")
                k(f"s_add_u32 s{sD2}, s{sD2}, {G_ST1}")
                k.vmem(f"buffer_load_dword a{aDUM}, v{vSP}, {srd(S_WS)}, s{sD2} offen sc1", "touch")
                k("s_mov_b64 exec, -1")

    def touch_early(mode):
        with k.atomic():
            k(f"s_lshl2_add_u32 s{sJ0}, s{sC}, s{sW}")
            vT3 = vACT + 126
            k(f"v_lshlrev_b32 v{vT3}, 7, v{vLANE}")
            if mode & 1:
                k(f"s_lshl_b32 s{sT5}, s{sJ0}, 11")
                k(f"s_add_u32 s{sT5}, s{sT5}, s{sGB}")
                k(f"s_add_u32 s{sT5}, s{sT5}, {G_X1}")
                k("s_mov_b64 exec, 0xffff")
                k.vmem(f"buffer_load_dword a{aDUM}, v{vT3}, {srd(S_WS)}, s{sT5} offen sc1", "touch")
            if mode & 6:
                n, first = {2: (16, 0), 4: (8, 16), 6: (24, 0)}[mode & 6]
                k(f"s_lshr_b32 s{sT5}, s{sJ0}, 3")
                k(f"s_mul_i32 s{sT5}, s{sT5}, 57344")
                k(f"s_and_b32 s{sJ0}, s{sJ0}, 7")
                k(f"s_mul_i32 s{sJ0}, s{sJ0}, {n*128}")
                k(f"s_add_u32 s{sT5}, s{sT5}, s{sJ0}")
                k(f"s_add_u32 s{sT5}, s{sT5}, s{sGB}")
                k(f"s_add_u32 s{sT5}, s{sT5}, {G_H + first*1024}")
                k(f"s_mov_b64 exec, {(1 << n) - 1}")
                k.vmem(f"buffer_load_dword a{aDUM}, v{vT3}, {srd(S_WS)}, s{sT5} offen sc1", "touch")
            k("s_mov_b64 exec, -1")

    def packN_issue():
        with k.atomic():
            quad_lane(1024)
            k(f"""
            s_movk_i32 s{sD2}, 8192
            s_lshl_b32 s{sD0}, s{sG}, 15
            s_lshl_b32 s{sD1}, s{sCT}, 7
            s_add_u32 s{sD0}, s{sD0}, s{sD1}
            s_lshl_b32 s{sPDA}, s{sG}, 12
            s_add_u32 s{sPDA}, s{sPDA}, s{sPKB}
            s_add_u32 s{sPDA}, s{sPDA}, {PK_WO}
            s_lshl2_add_u32 s{sD1}, s{sDH}, s{sW}
            s_cmp_lg_u32 s{sD1}, 3
            s_cbranch_scc1 L_nskip
            """)
            for j in range(4):
                dma_raw(S_WO, j * 1024, j == 0)
            k("L_nskip:")

    def packN_finish(T):
        k(f"s_lshl2_add_u32 s{sD1}, s{sDH}, s{sW}")
        k(f"s_cmp_lg_u32 s{sD1}, 3")
        k("s_cbranch_scc1 L_nfskip")
        for f in range(4):
            k(f"v_add_u32 v{T+16+f}, {L_XST + 3*16384}, v{vQ0+f}")
        for f in range(4):
            for hh in range(2):
                k(f"ds_read_b64_tr_b16 {vr(T+4*f+2*hh,2)}, v{T+16+f} offset:{hh*2048}")
        k("s_waitcnt lgkmcnt(0)")
        for f in range(4):
            k(f"buffer_store_dwordx4 {vr(T+4*f,4)}, v{vL16}, {srd(S_WS)}, s{sPDA} offen offset:{f*1024} sc1")
        k("L_nfskip:")

    def pack_finish(T, base, shift, quad_if_3, tag="pk", sPDA=sPDA):
        lb, le = k.label("L_qb"), k.label("L_qe")
        k(f"s_lshl_b32 s{sT5}, s{sW}, {shift}")
        k(f"s_add_u32 s{sT5}, s{sT5}, {base}")
        k.vm_wait(tag)
        k.ds_all()
        k(f"s_cmp_eq_u32 s{sW}, 3")
        k(f"s_cbranch_scc{0 if quad_if_3 else 1} {lb}")
        for f in range(4):
            k(f"v_add_u32 v{T+16+f}, s{sT5}, v{vQ0+f}")
        for f in range(4):
            for hh in range(2):
                k(f"ds_read_b64_tr_b16 {vr(T+4*f+2*hh,2)}, v{T+16+f} offset:{hh*2048}")
        k("s_waitcnt lgkmcnt(0)")
        for f in range(4):
            k(f"buffer_store_dwordx4 {vr(T+4*f,4)}, v{vL16}, {srd(S_WS)}, s{sPDA} offen offset:{f*1024} sc1")
        k(f"s_branch {le}")
        k(f"{lb}:")
        k(f"v_add_u32 v{T+16}, s{sT5}, v{vTR0}")
        k(f"v_add_u32 v{T+17}, s{sT5}, v{vTR1}")
        k(f"v_lshl_add_u32 v{T+18}, v{vLANE}, 3, s{sT5}")
        for f in range(2):
            for hh in range(2):
                k(f"ds_read_b64_tr_b16 {vr(T+4*f+2*hh,2)}, v{T+16+f} offset:{hh*1024}")
        nf = 2 if quad_if_3 else 3
        if nf == 3:
            for hh in range(2):
                k(f"ds_read_b64_tr_b16 {vr(T+8+2*hh,2)}, v{T+18} offset:{2048+hh*512}")
        k("s_waitcnt lgkmcnt(0)")
        for f in range(nf):
            k(f"buffer_store_dwordx4 {vr(T+4*f,4)}, v{vL16}, {srd(S_WS)}, s{sPDA} offen offset:{f*1024} sc1")
        if nf == 3:
            k(f"buffer_load_dword a{aDUM}, v{vL16}, {srd(S_W1)}, s{S_W1+2} offen")
            nf = 4
        k(f"{le}:")
        k.vm_note(nf, "pst")

    def pack_flag(off=0):
        k(f"""
        s_lshl_b32 s{sT5}, s2, 7
        s_add_u32 s{sT5}, s{sT5}, {WS_PD + off}
        s_cmp_lg_u32 s{sW}, 0
        s_cselect_b32 s{sT5}, {OOB}, s{sT5}
        v_mov_b32 v{vT1}, s{sTAG}
        s_mov_b64 exec, 1
        """)
        k.vmem(f"buffer_store_dword v{vT1}, v{vL16}, {srd(S_WS)}, s{sT5} offen sc1")
        k("s_mov_b64 exec, -1")

    def pack_check_issue(off, va, vd, sb):
        with k.atomic():
            k(f"v_and_b32 v{va}, 1, v{vLANE}")
            k(f"v_lshlrev_b32 v{va}, 7, v{va}")
            k(f"v_lshrrev_b32 v{vd}, 1, v{vLANE}")
            k(f"v_and_b32 v{vd}, 7, v{vd}")
            k(f"s_lshl_b32 s{sT5}, s{sC}, 3")
            k(f"v_add3_u32 v{va}, v{va}, v{vd}, s{sT5}")
            k("s_mov_b32 exec_lo, 0")
            k(f"v_and_b32 v{va}, 0xbf, v{va}")
            k("s_mov_b32 exec_lo, -1")
            k(f"v_min_u32 v{vd}, 29, v{vLANE}")
            k(f"s_mul_i32 s{sT5}, s{sW}, 56")
            k(f"s_lshr_b32 s{sb}, s{sCT}, 1")
            k(f"s_add_u32 s{sT5}, s{sT5}, s{sb}")
            k(f"s_sub_u32 s{sT5}, s{sT5}, 64")
            k(f"v_lshl_add_u32 v{vd}, v{vd}, 2, s{sT5}")
            k("s_mov_b32 vcc_lo, 0xffff")
            k("s_mov_b32 vcc_hi, -1")
            k(f"s_mov_b32 s{sb}, {WS_PD + off}")
            k(f"v_cndmask_b32 v{va}, v{vd}, v{va}, vcc")
            k(f"v_lshlrev_b32 v{va}, 7, v{va}")
            k.vmem(f"buffer_load_dword v{vd}, v{va}, {srd(S_WS)}, s{sb} offen sc1", "pc")

    def pack_check(va, vd, sb):
        lp, ok = k.label("L_pc"), k.label("L_pcok")
        with k.atomic():
            k.vm_wait("pc")
            k(f"{lp}:")
            k(f"v_cmp_ne_u32 vcc, s{sTAG}, v{vd}")
            k(f"s_cbranch_vccz {ok}")
            k(f"buffer_load_dword v{vd}, v{va}, {srd(S_WS)}, s{sb} offen sc1")
            k("s_waitcnt vmcnt(0)")
            k(f"s_sub_u32 s{sBUD}, s{sBUD}, 1")
            k(f"s_cbranch_scc0 {lp}")
            k(f"s_mov_b32 s{sBUD}, 0")
            k(f"{ok}:")

    aPK = 128

    def park_addr(va, base, shift):
        k(f"v_bfe_u32 v{va}, v{vLANE}, 4, 1")
        k(f"v_lshlrev_b32 v{va}, 10, v{va}")
        k(f"v_lshrrev_b32 v{va+1}, 5, v{vLANE}")
        k(f"v_mul_u32_u24 v{va+1}, 0x120, v{va+1}")
        k(f"v_add_u32 v{va}, v{va}, v{va+1}")
        k(f"v_and_b32 v{va+1}, 0xd8, v{vTR0}")
        k(f"s_lshl_b32 s{sT5}, s{sW}, {shift}")
        k(f"s_add_u32 s{sT5}, s{sT5}, {base}")
        k(f"v_add3_u32 v{va}, v{va}, v{va+1}, s{sT5}")
        k(f"v_xor_b32 v{va+1}, 32, v{va}")

    def park_kv(va):
        for r in range(4):
            for blk in range(4):
                for hh in range(2):
                    k.lds(f"ds_read_b64_tr_b16 {ar(aPK + 32 + 16*r + 4*blk + 2*hh, 2)}, v{va + (blk & 1)} offset:{r*16384 + (blk >> 1)*2048 + hh*512}")

    def park_q(va):
        for r in range(4):
            for b in range(2):
                for hh in range(2):
                    k.lds(f"ds_read_b64_tr_b16 {ar(aPK + 8*r + 4*b + 2*hh, 2)}, v{va + b} offset:{r*8192 + hh*512}")

    def unpark(va):
        with k.atomic():
            k(f"s_lshr_b32 s{sD0}, s{sC}, 1")
            k(f"s_xor_b32 s{sD0}, s{sD0}, s{sG}")
            k(f"s_and_b32 s{sD0}, s{sD0}, 1")
            k(f"s_and_b32 s{sD1}, s{sC}, 1")
            k(f"s_lshl1_add_u32 s{sD0}, s{sD0}, s{sD1}")
        for kind in (1, 0):
            for r in range(4):
                for b in range(2 if kind else 4):
                    with k.atomic():
                        if b == 0:
                            k(f"s_add_u32 s{sD1}, s{sD0}, {r}")
                            k(f"s_and_b32 s{sD1}, s{sD1}, 3")
                            k(f"s_lshl2_add_u32 s{sD1}, s{sD1}, s{sW}")
                            k(f"s_lshl_b32 s{sD1}, s{sD1}, {11 if kind else 12}")
                            if kind:
                                k(f"s_add_u32 s{sD1}, s{sD1}, {R1}")
                            k(f"v_add_u32 v{va}, s{sD1}, v{vL16}")
                        j = 2 * r + b if kind else 8 + 4 * r + b
                        k.lds(f"ds_write_b128 v{va}, {ar(aPK + 4*j, 4)} offset:{b*1024}", ("up", j // 4))

    def wq_raw():
        k(f"s_lshl_b32 s{sL1}, s{sW}, 11")
        with k.atomic():
            k(f"v_and_b32 v{vT2}, 3, v{vP}")
            k(f"v_lshrrev_b32 v{vDM}, 4, v{vLANE}")
            k(f"v_lshl_add_u32 v{vT2}, v{vDM}, 3, v{vT2}")
            k(f"s_movk_i32 s{sD3}, 3072")
            k(f"v_mad_u32_u24 v{vDM}, v{vT2}, s{sD3}, v{vCH}")
        for r in range(4):
            for hh in range(2):
                k.dma(S_WQKV, vDM, sRB + r, hh * 4 * 3072, sL1, R1 + r * 8192 + hh * 1024, "wq")

    def async_check(tag, soff, imm):
        ok = k.label("L_aok")
        with k.atomic():
            k.vm_wait(tag)
            k(f"v_cmp_ne_u32 vcc, s{sTAG}, v{vT0}")
            k(f"s_cbranch_vccz {ok}")
            k.save_vm()
            k.poll(soff, imm, False)
            k.restore_vm()
            k(f"{ok}:")

    CSK = vT0
    gA = None
    for layer in range(1 if o.get("one") else 2):
        L1 = layer == 0
        sc = o.get("sc1", 0x05)
        psc = lambda i: bool(sc >> (4 * layer + i) & 1)
        PRE = o.get("pre", 8)

        def w2t_loads():
            for j in range(56):
                with k.atomic():
                    if j == 0:
                        k(f"s_lshl2_add_u32 s{sPDB}, s{sCT}, s{sW}")
                        k(f"s_mul_i32 s{sPDB}, s{sPDB}, 57344")
                        k(f"s_add_u32 s{sPDB}, s{sPDB}, {WS_W2T}")
                    if j % 4 == 0:
                        k(f"s_add_u32 s{sJ0}, s{sPDB}, {j*1024}")
                    k.vmem(f"buffer_load_dwordx4 {ar(4*j,4)}, v{vL16}, {srd(S_WS)}, s{sJ0} offen offset:{(j%4)*1024} sc1", ("w2t", j // 4))

        w2 = k.rec(w2t_loads) if L1 else []

        def takew2(name, dflt):
            nonlocal w2
            n = min(o.get(name, dflt), len(w2) - 24) if L1 else 0
            r, w2 = w2[:n], w2[n:]
            return r

        def kv_consts():
            k.get(vPQ, cCSA)
            k.lds(f"ds_read2_b32 {vr(CSK,2)}, v{vPQ} offset0:0 offset1:16", "cs")
            k.lds(f"ds_read2_b32 {vr(CSK+2,2)}, v{vPQ} offset0:32 offset1:48", "cs")
        if L1:
            Q1, CQ, PT = vACT + 64, vACT + 80, vACT + 84
            act8 = lambda ks, rb: act(ks % 8, rb)
            k(f"s_and_b32 s{sT0}, s{sW}, 1")
            k(f"s_lshl_b32 s{sT1}, s{sT0}, 5")
            k(f"v_xor_b32 v{vPQ+3}, s{sT1}, v{vTR0}")
            k(f"s_lshr_b32 s{sT1}, s{sW}, 1")
            k(f"s_lshl_b32 s{sT1}, s{sT1}, 11")
            k(f"v_add_u32 v{vPQ+2}, s{sT1}, v{vPQ+3}")
            k(f"v_add_u32 v{vPQ+3}, {R1}, v{vPQ+3}")
            k(f"v_add_u32 v{vPQ+4}, {R1}, v{vTR0}")
            k(f"v_add_u32 v{vPQ+5}, {R1}, v{vTR1}")
            k(f"s_lshl_b32 s{sT1}, s{sW}, 5")
            k(f"v_xor_b32 v{vPQ+6}, s{sT1}, v{vQ0}")
            own_stats()
            if o.get("pads", 0):
                k("PADCALL")
            xslot(0); xslot(1, range(o.get("x1pre", 4)))
            pack_finish(PT, R1 + 16384, 12, False, "pu", sPDB)
            xread(0)

            def rnd_begin(r):
                k.vm_wait(("wkv", r))
                k.barrier(True)
                fr = []
                for ks in range(4 * r, 4 * r + 4):
                    fr.append(dict(addr=vPQ + 2, offs=(R0 + ks * 4096, R0 + ks * 4096 + 1024), mf=[(None, None, False, ks == 0, None)]))
                    fr.append(dict(addr=vPQ + 3, offs=(ks * 2048, ks * 2048 + 1024), mf=[(CQ, None, False, ks == 0, None)]))
                for ks in range(4 * r, 4 * r + 4):
                    for pr in range(2):
                        for b in range(2):
                            base = R0 + ks * 4096 + pr * 2048
                            fr.append(dict(addr=(vTR0, vTR1)[b], offs=(base, base + 1024), mf=mf2(vACC + 16 * pr + 8 * b, ks, False, False, act=act8)))
                    for b in range(2):
                        fr.append(dict(addr=vPQ + 4 + b, offs=(ks * 2048, ks * 2048 + 1024), mf=mf2(Q1 + 8 * b, ks, True, False, act=act8)))
                return k.gemm_begin(fr)

            def wo_pack():
                for hh in range(2):
                    k.lds(f"ds_read_b64_tr_b16 {vr(PT+20+2*hh,2)}, v{vPQ+6} offset:{R0 + 49152 + hh*2048}", "wp")
                k.play([lambda: None] * 2)
                with k.atomic():
                    k.ds_wait("wp")
                    k.vmem(f"buffer_store_dwordx4 {vr(PT+20,4)}, v{vL16}, {srd(S_WS)}, s{sPDA} offen sc1", "pst")
            xslot(1, range(o.get("x1pre", 4), 8))
            g = rnd_begin(0)
            k.stamp("x0")
            RS_ = o.get("rs", 3)
            f = {}; spread(f, k.rec(wo_pack), 0, 1); spread(f, k.rec(lambda: (wkv_raw(1), xslot(2))), 5, RS_); spread(f, k.rec(lambda: xread(1)), 48, 1, 2); k.gemm_run(g, f)
            k.stamp("r0")
            g = rnd_begin(1)
            f = {}; spread(f, k.rec(pack_flag), 1, 0); spread(f, k.rec(lambda: (wkv_raw(2), xslot(3))), 0, RS_); spread(f, k.rec(lambda: xread(2)), 48, 1, 2); k.gemm_run(g, f)
            k.stamp("r1")
            g = rnd_begin(2)
            f = {}; e = spread(f, k.rec(lambda: (wkv_raw(3), st0_issue())), 0, RS_)
            pci = k.rec(lambda: pack_check_issue(0, vRES, vRES + 1, sPDB))
            if o.get("pci", 76) < 56:
                spread(f, pci, o.get("pci", 76), 1)
            spread(f, k.rec(lambda: xread(3)), 48, 1, 2); k.gemm_run(g, f)
            k.stamp("r2")
            g = rnd_begin(3)
            f = {}
            spread(f, k.rec(st0_use), 0, 1)
            spread(f, k.rec(lambda: (cs_put(0, sW), cs_put(4, sT0, CQ))), 12, 0)
            spread(f, k.rec(stats_b), 14, 1)
            spread(f, k.rec(stats_scale), 28, 1)
            spread(f, k.rec(lambda: k("s_barrier")), 40, 0)
            spread(f, k.rec(kv_consts), 42, 1)
            bgl = k.rec(lambda: (pack_check(vRES, vRES + 1, sPDB), lin_dma(PK_WO + 32768, R2, 8, "wo", True)))
            if o.get("pci", 76) >= 56:
                spread(f, pci, o.get("pci", 76) - 56, 1)
            n3 = o.get("n3", 0)
            spread(f, bgl[:n3], o.get("pcc", 20), 7); bgl = bgl[n3:]
            k.gemm_run(g, f)
            k.stamp("A.kv")
        else:
            k.poll(sFXp, G_FX2)
            k.stamp("A.poll")
            al = k.rec(lambda: act_loads(G_X2, ring))
            PA = o.get("prea", 6)
            k.play(al[:PA])
            k(f"s_add_u32 s{sTAG}, s{sTAG}, 1")
            fill = {}
            sl = k.rec(lambda: stat_loads(G_ST2))
            e = spread(fill, al[PA:12] + [lambda: k.play(sl[:2]), sl[2]], 0, 4)
            for i_ in range(12, 32):
                pos = max(12 * (i_ // 2 - 6) + 11 + 6 * (i_ & 1), e)
                spread(fill, [al[i_]], pos, 1)
                e = pos + 3
            e2 = spread(fill, k.rec(lambda: (stat_sum(), stats_finalize(True), stats_b())), 70, 1.5)
            e2 = spread(fill, k.rec(stats_scale), e2 + 6, 1.5)
            spread(fill, k.rec(kv_consts), e2, 1.5)
            spread(fill, k.rec(lambda: lin_dma(PK_WO + 32768, R2, 8, "wo", True)), e, o.get("wos", 6))
            QL = o.get("qlag", 0)
            if QL:
                pe = k.rec(lambda: (k.ds_wait("cs"), [phi_block(vACC + 4*rb, NM_B + 4*rb, CSK, RL_B + 4*rb, RS_B + 4*rb, vPQ + 2*rb, vACT + 40, "b") for rb in range(2)]))
                spread(fill, pe, 192 - 4 * QL, 4 * QL / len(pe))
            k.gemm_run(gA, fill)
            k.stamp("A.kv")
            k("s_barrier")
            bg = []
        k("s_nop 2")
        k.get(vWB + 22, cKW1 if L1 else cKW)
        k.get(vWB + 23, cKR1 if L1 else cKR)
        k.ds_all()
        PK, PV, TMP = vPQ, vACC, vWB + 24
        KVA = vACC + 16

        def kv_epi():
            for h in range(1 if (not L1 and o.get("qlag", 0)) else 0, 2):
                for rb in range(2):
                    phi_block(vACC + 8*h + 4*rb, NM_B + 4*rb, CSK + h, RL_B + 4*rb, RS_B + 4*rb, PK + 4*h + 2*rb, TMP, "b")
            for h in range(2):
                for rb in range(2):
                    a = vACC + 16 + 8*h + 4*rb
                    c2, m = bcast(CSK + 2 + h, 1, 3)
                    for p in range(2):
                        k(f"v_pk_fma_f32 {vr(a+2*p,2)}, {vr(NM_B+4*rb+2*p,2)}, {c2}, {vr(a+2*p,2)}{m}")
                    for p in range(2):
                        k(f"v_pk_mul_f32 {vr(a+2*p,2)}, {vr(a+2*p,2)}, {vr(RS_B+4*rb+2*p,2)}")
                    for p in range(2):
                        k(f"v_cvt_pk_bf16_f32 v{PV+4*h+2*rb+p}, v{a+2*p}, v{a+2*p+1}")
                    if rb == 0:
                        k(f"v_mfma_f32_16x16x32_bf16 {vr(vACC+8+4*h,4)}, {vr(PK+4*h,4)}, {ar(aONES,4)}, 0")
                if h == 0:
                    pass
        if L1:
            we = bgl + takew2("w2e", 0)
            k.play(mix(k.rec(kv_epi), we, 100 // len(we)))
        else:
            wod = k.rec(lambda: lin_dma(PK_WO, R1, 8, "wo", True))
            nwo = o.get("nwo", 0)
            k.play(mix(k.rec(kv_epi), wod[:nwo], 100 // max(nwo, 1))); wod = wod[nwo:]
        KRO = [0, 4096, 8192, 12288] if L1 else [0, 16384, 32768, 36864]
        k.lds(f"ds_write_b128 v{vWB+22}, {vr(vACC+8,4)} offset:{KRO[2]}")
        for h in range(2):
            k(f"v_mfma_f32_16x16x32_bf16 {vr(KVA+4*h,4)}, {vr(PK+4*h,4)}, {vr(PV+4*h,4)}, 0")
        k.lds(f"ds_write_b128 v{vWB+22}, {vr(vACC+12,4)} offset:{KRO[3]}")
        k.get(vWB + 21, cKVS)
        k("s_nop 4")
        for h in range(2):
            k.lds(f"ds_write_b128 v{vWB+22}, {vr(KVA+4*h,4)} offset:{KRO[h]}")
        k.barrier()
        for s in range(4):
            k.lds(f"ds_read_b128 {vr(vWB+4*s,4)}, v{vWB+23} offset:{s*1024}", ("kr", s))
        KO = vACC + 32
        k.ds_wait(("kr", 1))
        for p in range(2):
            k(f"v_pk_add_f32 {vr(vWB+2*p,2)}, {vr(vWB+2*p,2)}, {vr(vWB+4+2*p,2)}")
        k.ds_wait(("kr", 3))
        for p in range(2):
            k(f"v_pk_add_f32 {vr(vWB+8+2*p,2)}, {vr(vWB+8+2*p,2)}, {vr(vWB+12+2*p,2)}")
        for p in range(2):
            k(f"v_pk_add_f32 {vr(KO+2*p,2)}, {vr(vWB+2*p,2)}, {vr(vWB+8+2*p,2)}")
        k(f"v_and_b32 v{KO}, 0xffffff00, v{KO}")
        k(f"v_or_b32 v{KO}, s{sT8}, v{KO}")
        k(f"s_mov_b64 exec, s[{sKM}:{sKM+1}]")
        k.vmem(f"buffer_store_dwordx4 {vr(KO,4)}, v{vWB+21}, {srd(S_WS)}, s{sKVP} offen sc1", "kvst")
        k("s_mov_b64 exec, -1")
        k.stamp("A.kvpub")
        fill = {}
        fr = []
        CSQ = vACC + 24

        def q_consts():
            k.get(vT0, cCSB)
            for h in range(2):
                k.lds(f"ds_read_b128 {vr(CSQ+4*h,4)}, v{vT0} offset:{(4+h)*64}")
        q_consts()
        lp2, done2 = k.label("L_kp"), k.label("L_kd")
        SM = vWB + 8
        ZL = vACT + 32

        def kv_loads(track):
            ins = [(f"buffer_load_dwordx4 {vr(ZL,4)}, v{vT2}, {srd(S_WS)}, s{sKVC} offen sc1", "zl")]
            for j in range(8):
                ins.append((f"buffer_load_dwordx4 {vr(vACT+4*j,4)}, v{vL16}, {srd(S_WS)}, s{sKVC if j < 4 else sT2} offen offset:{(j%4)*1024} sc1", ("kv", j)))
            for i_, t_ in ins:
                if track:
                    k.vmem(i_, t_)
                else:
                    k(i_)
        w1a = k.rec(lambda: (lin_dma(PK_WO, R1, 8, "wo", True), lin_dma(PK_W1A, R0, 16, "w1a"), lin_dma(PK_W1B, R3, 6, "w1c2"))) if L1 else []
        kl = k.rec(lambda: kv_loads(True))
        QS = Q1 if L1 else QA
        ph = k.rec(lambda: [phi_block(QS + 8*h + 4*rb, NM_A + rb, CSQ + 4*h, RL_A + rb, RS_A + rb, vPQ + 4*h + 2*rb, vWB, "a")
                            for h in range(2) for rb in range(2)])
        if not L1:
            k.get(vT2, cZL)
            k(f"s_add_u32 s{sT2}, s{sKVC}, 4096")
        if L1:
            park_addr(vWB + 4, R0, 12)
            park_addr(vWB + 6, R1, 11)
            k.ds_all()
            pr_ = k.rec(lambda: (park_q(vWB + 6), park_kv(vWB + 4)))
            bq = k.rec(lambda: (arm(o.get("arm", 3)), res_load())) + takew2("w2q", 4)
            k.play(mix(mix(ph, pr_, 2), bq, 130 // len(bq)))
            k.get(vT2, cZL)
            k(f"s_add_u32 s{sT2}, s{sKVC}, 4096")
            k(f"v_add_u32 v{vTR0}, {R1}, v{vL16}")
            k.barrier()
            k.play(kl)
            na = o.get("w1a0", 4)
            k.play(w1a[:na]); w1a = w1a[na:]
        else:
            def unpark_w1():
                for j in range(16):
                    k.lds(f"ds_write_b128 v{vT3}, {vr(vPARK+4*j,4)} offset:{j*1024}")
            k(f"s_lshl_b32 s{sT5}, s{sW}, 14")
            k(f"v_add_u32 v{vT3}, s{sT5}, v{vL16}")
            k.play(wod[:4]); wod = wod[4:]
            k.ds_all()
            uw = k.rec(unpark_w1)
            nu = o.get("nu", 16)
            k.play(mix(mix(ph, uw[:nu], 5), wod, 10))
            k.play(mix(kl, uw[nu:], 1))
        k.stamp("A.q")
        k.get(vT1, cXW)
        k.get(vWB + 18, cZW)
        k.get(vWB + 16, cXR)
        k.get(vWB + 17, cZR)
        k(f"s_branch {lp2}_s")
        k(f"{lp2}:")
        kv_loads(False)
        k("s_waitcnt vmcnt(0)")
        k(f"{lp2}_s:")
        k.vm_wait("zl")
        k(f"""
        v_mov_b32 v{SM+4}, v{ZL}
        v_mov_b32 v{SM+5}, v{ZL}
        v_permlane32_swap_b32 v{ZL}, v{ZL+1}
        v_permlane32_swap_b32 v{ZL+2}, v{ZL+3}
        v_add_f32 v{ZL}, v{ZL}, v{ZL+1}
        v_add_f32 v{ZL+2}, v{ZL+2}, v{ZL+3}
        s_nop 1
        v_permlane16_swap_b32 v{ZL}, v{ZL+2}
        v_add_f32 v{ZL}, v{ZL}, v{ZL+2}
        s_nop 1
        v_add_f32_dpp v{ZL}, v{ZL}, v{ZL} row_ror:4 row_mask:0xf bank_mask:0xf
        s_nop 1
        v_add_f32_dpp v{ZL}, v{ZL}, v{ZL} row_ror:8 row_mask:0xf bank_mask:0xf
        v_cvt_pk_bf16_f32 v{ZL}, v{ZL}, v{ZL}
        ds_write_b16 v{vWB+18}, v{ZL}
        """)
        for j in range(0, 8, 2):
            a, b = vACT + 4*j, vACT + 4*j + 4
            k.vm_wait(("kv", j + 1))
            k(f"v_and_b32 v{SM+4}, v{SM+4}, v{a}")
            k(f"v_and_b32 v{SM+4}, v{SM+4}, v{b}")
            k(f"v_or3_b32 v{SM+5}, v{SM+5}, v{a}, v{b}")
            if j == 0:
                for p in range(2):
                    k(f"v_pk_add_f32 {vr(SM+2*p,2)}, {vr(a+2*p,2)}, {vr(b+2*p,2)}")
            else:
                for p in range(2):
                    k(f"v_pk_add_f32 {vr(a+2*p,2)}, {vr(a+2*p,2)}, {vr(b+2*p,2)}")
                for p in range(2):
                    k(f"v_pk_add_f32 {vr(SM+2*p,2)}, {vr(SM+2*p,2)}, {vr(a+2*p,2)}")
        k(f"""
        ds_write_b128 v{vT1}, {vr(SM,4)}
        v_xor_b32 v{SM+4}, s{sT8}, v{SM+4}
        v_xor_b32 v{SM+5}, s{sT8}, v{SM+5}
        v_or_b32 v{SM+4}, v{SM+4}, v{SM+5}
        v_and_b32 v{SM+4}, 0xff, v{SM+4}
        v_cmp_ne_u32 vcc, 0, v{SM+4}
        s_cbranch_vccz {done2}
        s_waitcnt lgkmcnt(0)
        s_sub_u32 s{sBUD}, s{sBUD}, 4
        s_cbranch_scc0 {lp2}
        s_mov_b32 s{sBUD}, 0
        {done2}:
        """)
        k.stamp("A.kvget")
        n1 = o.get("w1a1", 4) if L1 else 0
        k.play(w1a[:n1]); w1a = w1a[n1:]
        k.barrier(True)
        for h in range(2):
            k.lds(f"ds_read_b64 {vr(vWB+4*h+2,2)}, v{vWB+17} offset:{h*32}", "zf")
        for j in range(4):
            k.lds(f"ds_read_b128 {vr(vACT+4*j,4)}, v{vWB+16} offset:{1024*j}")
        k.ds_wait("zf")
        OA = vACC + 16
        for rb in range(2):
            for h in range(2):
                d = OA + 16*rb + 8*h
                k(f"v_mfma_f32_16x16x16_bf16 {vr(d+4,4)}, {vr(vWB+4*h+2,2)}, {vr(vPQ+4*h+2*rb,2)}, 0")
        k.ds_all()
        for h in range(2):
            for p in range(2):
                k(f"v_pk_add_f32 {vr(vACT+8*h+2*p,2)}, {vr(vACT+8*h+2*p,2)}, {vr(vACT+8*h+4+2*p,2)}")
        for h in range(2):
            for p in range(2):
                k(f"v_cvt_pk_bf16_f32 v{vWB+4*h+p}, v{vACT+8*h+2*p}, v{vACT+8*h+2*p+1}")
        for rb in range(2):
            for h in range(2):
                d = OA + 16*rb + 8*h
                k(f"v_add_f32 v{d+4}, s{sEPS}, v{d+4}")
        for rb in range(2):
            for h in range(2):
                d = OA + 16*rb + 8*h
                k(f"v_mfma_f32_16x16x16_bf16 {vr(d,4)}, {vr(vWB+4*h,2)}, {vr(vPQ+4*h+2*rb,2)}, 0")
        for rb in range(2):
            for h in range(2):
                d = OA + 16*rb + 8*h
                k(f"v_rcp_f32 v{d+4}, v{d+4}")
        k("s_nop 1")
        for rb in range(2):
            for h in range(2):
                d = OA + 16*rb + 8*h
                for p in range(2):
                    k(f"v_pk_mul_f32 {vr(d+2*p,2)}, {vr(d+2*p,2)}, {vr(d+4,2)} op_sel_hi:[1,0]")
                for p in range(2):
                    k(f"v_cvt_pk_bf16_f32 v{vPQ+4*rb+2*h+p}, v{d+2*p}, v{d+2*p+1}")
        k.stores([f"buffer_store_dwordx4 {vr(vPQ+4*rb,4)}, v{vL16}, {srd(S_WS)}, s{sOST+rb} offen" for rb in range(2)], psc(0))
        nb = o.get("w1a_pre1", 6) if L1 else o.get("w1a_pre", 0)
        assert len(w1a) - nb <= 22
        k.play(w1a[:nb])
        if L1:
            for s_ in range(2):
                for p in range(2):
                    k(f"v_permlane16_swap_b32 v{vRES+4*s_+p}, v{vRES+4*s_+2+p}")
        unpack_res(vACC)
        fr = []
        for ks in range(16):
            for f in range(4):
                mf = [(vACC + 4 * f, vACT + 4 * ks, True, False, ("act", ks))]
                fr.append(dict(addr=vTR0, offs=(ks * 4096 + f * 1024,), mf=mf))
        if not L1:
            g = k.gemm_begin(fr, 7)
        k.poll_prep(15)
        k.flag(sFOo, G_FO)
        if L1:
            k.vm_wait("wo")
            k("s_barrier")
            g = k.gemm_begin(fr, 7)
        k.stamp("A.opub")
        k.poll(sFOp, G_FO)
        k.stamp("B.poll")

        def b_loads():
            for ks in range(16):
                with k.atomic():
                    if ks % 4 == 0:
                        k(f"s_add_u32 s{sT2}, s{sBACT}, {G_O + ks*1024}")
                    k.vmem(f"buffer_load_dwordx4 {vr(vACT+4*ks,4)}, v{vL16}, {srd(S_WS)}, s{sT2} offen offset:{(ks%4)*1024} sc1", ("act", ks))
        bl = k.rec(b_loads)
        PB = o.get("preb", PRE)
        k.play(bl[:PB])
        fill = {}
        e = spread(fill, bl[PB:], 0, 3)
        e = spread(fill, w1a[nb:], e, o.get("w1st", 3))
        if L1 and o.get("txb", 1):
            e = spread(fill, k.rec(lambda: touch("x")), e, 1)
        spread(fill, takew2("w2b", 0), e, 4)
        k.gemm_run(g, fill)
        k.stamp("B.mm")
        k("s_nop 7")
        for f in range(4):
            for p in range(2):
                k(f"v_cvt_pk_bf16_f32 v{vRES+2*f+p}, v{vACC+4*f+2*p}, v{vACC+4*f+2*p+1}")
        publish_x(G_X1, G_ST1, G_FX1, psc(1))
        k.play(takew2("w2x", 0))
        k.flag(sFXo, G_FX1)
        k.stamp("B.pub")
        k("s_barrier")
        w1c2 = k.rec(lambda: lin_dma(PK_W1B + 24576, R1, 6, "w1c2"))
        nc = o.get("w1c2_pre1", 0) if L1 else o.get("w1c2_pre", 0)
        k.play(w1c2[:nc])
        if L1:
            k(f"s_lshl_b32 s{sT2}, s{sW}, 10")
            k(f"v_add_u32 v{vPQ}, s{sT2}, v{vL16}")
            fr = []
            for j in range(16):
                fr.append(dict(addr=vPQ, offs=(j * 4096,), mf=[(None, None, False, j == 0, None)]))
            k.gemm(fr, D=7)
            k("s_nop 5")
            cs_put(6, sW)
        C2 = vACC + 32
        vC1, vC2, vCc, vCd = vL16, vDM, vP, vCH
        k(f"v_add_u32 v{vC2}, {R3}, v{vL16}")
        if L1:
            k(f"s_min_u32 s{sPDA}, s{sW}, 2")
            k(f"s_lshl_b32 s{sT2}, s{sPDA}, 10")
            k(f"v_add_u32 v{vCd}, s{sT2}, v{vTR0}")
            k(f"v_add_u32 v{vCc}, s{sT2}, v{vC2}")
        fr = []
        for ks in range(16):
            for f in range(4):
                fr.append(dict(addr=vC1, offs=(ks * 4096 + f * 1024,), mf=mf2(vACC + 8 * f, ks, True, True)))
        for ks in range(16):
            if L1:
                fr.append(dict(addr=vCc if ks < 8 else vCd, offs=((ks % 8) * 3072,), mf=[(None, None, False, ks == 0, None)]))
            for b in range(3):
                fr.append(dict(addr=vC2 if ks < 8 else vTR0, offs=((ks % 8) * 3072 + b * 1024,), mf=mf2(C2 + 8 * b, ks, True, False, None if L1 else False)))
        MK = 7 if L1 else 6
        NM = 128 + 16 * MK
        g = k.gemm_begin(fr)
        k.poll(sFXp, G_FX1)
        k.stamp("C.poll")
        CS1 = [vPQ, vPQ + 4, vACC + 56, vQ0]

        def c2_init():
            k.get(vT0, cCSB)
            for b in range(3):
                k.lds(f"ds_read_b128 {vr(C2+8*b+4,4)}, v{vT0} offset:{(10+b)*64}", "cs2")
            for _ in range(4):
                k.play([lambda: None])
            k.ds_wait("cs2")
            for b in range(3):
                for rb in range(2):
                    for j in range(4):
                        k(f"v_mul_f32 v{C2+8*b+4*rb+j}, v{C2+8*b+4+j}, v{NM_A+rb}")

        def relu_block(acc, cs, rb, dst):
            if cs is not None:
                for j in range(4):
                    k(f"v_fmac_f32 v{acc+j}, v{cs+j}, v{NM_A+rb}")
            for p in range(2):
                k(f"v_cvt_pk_bf16_f32 v{dst+p}, v{acc+2*p}, v{acc+2*p+1}")
            for p in range(2):
                k(f"v_pk_max_i16 v{dst+p}, v{dst+p}, 0")

        def cs1_reads():
            k.get(vT2, cCSB)
            for b in range(4):
                k.lds(f"ds_read_b128 {vr(CS1[b],4)}, v{vT2} offset:{(6+b)*64}", "cs")

        def epi1():
            k.ds_wait("cs")
            for s in range(2):
                for rb in range(2):
                    for b in range(2):
                        relu_block(vACC + 16*s + 8*b + 4*rb, CS1[2*s+b], rb, vACC + 16*s + 4*rb + 2*b)
                k.stores([f"buffer_store_dwordx4 {vr(vACC+16*s+4*rb,4)}, v{vL16}, {srd(S_WS)}, s{sH1+rb} offen offset:{s*1024}"
                          for rb in range(2)], psc(2))

        def d_setup():
            if L1:
                with k.atomic():
                    k(f"s_lshl_b32 s{sT1}, s{sW}, 13")
                    k(f"s_add_u32 s{sT1}, s{sT1}, s{sGB}")
                with k.atomic():
                    k(f"s_lshl_b32 s{sDK}, s{sW}, 11")
                    k(f"s_add_u32 s{sDK}, s{sDK}, {28*1024}")
                k(f"s_add_u32 s{sT1}, s{sT1}, {G_H + 24*1024}")
                for j in range(4):
                    with k.atomic():
                        k(f"s_add_u32 s{sT0}, s{sW}, {j}")
                        k(f"s_and_b32 s{sT0}, s{sT0}, 3")
                    with k.atomic():
                        k(f"s_lshl2_add_u32 s{sT0}, s{sDH}, s{sT0}")
                        k(f"s_mul_i32 s{sT0}, s{sT0}, 57344")
                    k(f"s_add_u32 s{sRB+j}, s{sT0}, s{sT1}")
            k.poll_prep(7)
        seq = [(ksl, j) for ksl in range(11) for j in range(4)] + [(ksl, j) for j in (1, 2, 3, 0) for ksl in (11, 12, 13)]
        hb = [0, 0, 0, 0]

        def hload(t):
            ksl, j = seq[t]
            with k.atomic():
                if ksl // 4 != hb[j]:
                    if ksl == 8:
                        k(f"s_sub_u32 s{sRB+j}, s{sRB+j}, s{sDK}")
                    else:
                        k(f"s_add_u32 s{sRB+j}, s{sRB+j}, 4096")
                    hb[j] += 1
                k.vmem(f"buffer_load_dwordx4 {vr(vACT+4*(t%16),4)}, v{vL16}, {srd(S_WS)}, s{sRB+j} offen offset:{(ksl%4)*1024} sc1", ("h", t))
        PC = o.get("prec", PRE)
        al = k.rec(lambda: act_loads(G_X1))
        k.play(al[:PC])
        fill = {}
        sl = k.rec(lambda: stat_loads(G_ST1))
        e = spread(fill, al[PC:PC+4] + [lambda: k.play(sl[:2]), sl[2]] + al[PC+4:], 0, 4)
        e2 = spread(fill, k.rec(lambda: (stat_sum(), stats_finalize(False))), 52, 1)
        if not L1:
            spread(fill, k.rec(c2_init), e2 + 2, 1)
        if L1:
            spread(fill, k.rec(lambda: k("s_barrier")), 100, 0)
        e = spread(fill, w1c2[nc:], e, 3)
        if o.get("th", 0) >> layer & 1:
            e = spread(fill, k.rec(lambda: touch("h", vT0)), e, 1)
        spread(fill, k.rec(cs1_reads), 119, 1)
        if o.get("diagd"):
            spread(fill, k.rec(lambda: k.stamp("C.mm1")), 127, 0)
        e1 = spread(fill, k.rec(epi1), 129, 1 / o.get("epr", 4))
        spread(fill, k.rec(lambda: (k.vm_wait("w1c2"), k("s_barrier"))), 128 + 5 * MK, 0)
        spread(fill, k.rec(d_setup), e1, 1)
        pf = min(e1 + (o.get("fl11", 50) if L1 else o.get("fl1", 20)), NM - 2)
        spread(fill, k.rec(lambda: k.flag(sFHo, G_FH)), pf, 1)
        NE = o.get("ne1", 0) if L1 else o.get("ne", 6)
        pp = NM - 1 if NE == 0 else NM - 3 * NE - 18
        assert pp > pf
        spread(fill, k.rec(lambda: k.vmem(f"buffer_load_dword v{vT0}, v{vT3}, {srd(S_WS)}, s{sFHp} offen offset:{G_FH} sc1", "p1")), pp, 1)
        if NE:
            spread(fill, k.rec(lambda: async_check("p1", sFHp, G_FH)), NM - 3 * NE - 1, 1)
            spread(fill, k.rec(lambda: [hload(t) for t in range(NE)]), NM - 3 * NE, 3)
        if L1:
            wc = takew2("nw2", 24)
            spread(fill, wc, e, (pp - 1 - e) / max(len(wc), 1))
        k.gemm_run(g, fill)
        k.stamp("C.mm2")
        HO = vWB + 16
        LA = o.get("dla1", 10) if L1 else o.get("dla", 10)
        if L1:
            k.get(vT1, cCSA)
            k(f"s_lshl_b32 s{sT5}, s{sPDA}, 6")
            k(f"v_add_u32 v{vT1}, s{sT5}, v{vT1}")
            k.lds(f"ds_write_b32 v{vT1}, a{aCS} offset:{10*64}")
            k.barrier()
            k.get(vT2, cCSB)
            for b in range(3):
                k.lds(f"ds_read_b128 {vr(vWB+4*b,4)}, v{vT2} offset:{(10+b)*64}")
            k.ds_all()
        else:
            k("s_nop 3")
        epi2 = k.rec(lambda: [relu_block(C2 + 8*b + 4*rb, vWB + 4*b if L1 else None, rb, HO + 8*rb + 2*b) for b in range(3) for rb in range(2)])
        h2sc = psc(2) and not o.get("h2plain", 1)
        its = []
        for rb in range(2):
            its.append(f"buffer_store_dwordx4 {vr(HO+8*rb,4)}, v{vL16}, {srd(S_WS)}, s{sH2+rb} offen")
            its.append(f"buffer_store_dwordx2 {vr(HO+8*rb+4,2)}, v{vL16}, {srd(S_WS)}, s{sH3+rb} offen")
        tail = []
        up = []
        if L1:
            def park_w1():
                with k.atomic():
                    k(f"s_lshl_b32 s{sT5}, s{sW}, 14")
                    k(f"v_add_u32 v{vCH}, s{sT5}, v{vL16}")
                for j in range(0, 16, 2):
                    with k.atomic():
                        for jj in (j, j + 1):
                            k.lds(f"ds_read_b128 {vr(vPARK+4*jj,4)}, v{vCH} offset:{jj*1024}", "pw")
            u_ = k.rec(lambda: unpark(vP))
            bar = k.rec(lambda: (k.ds_wait("pw"), k("s_barrier")))
            up = k.rec(park_w1) + u_[:9] + [lambda: k.play(bar)] + u_[9:]
        if NE:
            n2 = o.get("ne2", 2)
            k.play(mix(epi2, k.rec(lambda: [hload(t) for t in range(NE, NE + n2)]), 10))
            k.stores(its, h2sc)
            nxt = NE + n2
            FL2 = o.get("fl2", 5)
        else:
            k.play(epi2)
            k.stores(its, h2sc)
            async_check("p1", sFHp, G_FH)
            for t in range(LA):
                hload(t)
                if len(w2) > 24 and t % 2:
                    k.play(w2[:1]); w2 = w2[1:]
                k.play(up[:1]); up = up[1:]
            k.flag(sFHo, G_FH + 1024)
            nxt = LA
            FL2 = -1
        k.stamp("D.poll1")
        RSD = vPQ
        k.get(vPQ + 1, cRSD)
        k.lds(f"ds_read_b32 v{RSD}, v{vPQ+1}", "rsd")
        for j in range(4):
            k.get(vPQ + 4 + j, cRD0 + j)
        ur = k.rec(lambda: unpack_res(vWB))
        wr = []
        for t in range(56):
            ksl, j = seq[t]
            if L1:
                k.vm_wait(("w2t", ksl))
            k.vm_wait(("h", t))
            if o.get("diagd") and t in (0, 8, 16, 24, 32, 40, 48):
                k.stamp(f"D.t{t}")
            for f in range(4):
                a = vACC + 16*j + 4*f
                c = "0" if ksl == 0 else vr(a, 4)
                k(f"v_mfma_f32_16x16x32_bf16 {vr(a,4)}, {ar((ksl*4+f)*4,4)}, {vr(vACT+4*(t%16),4)}, {c}")
                if f in (0, 2) and nxt < 56 and nxt <= t + LA and (f == 0 or nxt < t + LA):
                    if nxt == 32 - 6:
                        k.vmem(f"buffer_load_dword v{vT0}, v{vT3}, {srd(S_WS)}, s{sFHp} offen offset:{G_FH+1024} sc1", "p2")
                    if nxt == 32:
                        async_check("p2", sFHp, G_FH + 1024)
                    hload(nxt)
                    nxt += 1
                    if nxt == 56 and not L1 and o.get("wb", 0):
                        lw = k.label("L_wb")
                        k(f"s_lshl3_add_u32 s{sT0}, s{sW}, s2")
                        k(f"s_cmp_ge_u32 s{sT0}, 8")
                        k(f"s_cbranch_scc1 {lw}")
                        k("buffer_wbl2 sc1")
                        k(f"s_branch {lw}_e")
                        k(f"{lw}:")
                        k(f"buffer_load_dword a{aDUM}, v{vT3}, {srd(S_WS)}, s{sFHp} offen offset:{G_FH} sc1")
                        k(f"{lw}_e:")
                        k.vm_note(1, "wb")
                if f in ((1, 3) if t < o.get("up2", 3) else (1,)) and up:
                    k.play(up[:1]); up = up[1:]
                if f == 2:
                    nup = 24 - len(up) + (1 if len(up) > 16 else 0)
                    if w2 and (len(w2) > 24 or not up or nup >= 4 * ((24 - len(w2)) // 4 + 1) + 1):
                        if len(w2) <= 24:
                            k.ds_wait(("up", (24 - len(w2)) // 4))
                        k.play(w2[:1]); w2 = w2[1:]
                    elif t >= o.get("tl0", 46) and tail:
                        nn = o.get("tln", 2)
                        k.play(tail[:nn]); tail = tail[nn:]
                if f == 3 and t == FL2:
                    k.flag(sFHo, G_FH + 1024)
                if 4 * t + f == 203:
                    k.ds_wait(("rw", 1))
                    k("s_barrier")
                    for f_ in range(4):
                        k.lds(f"ds_read_b128 {vr(vACC+16+4*f_,4)}, v{vPQ+4} offset:{f_*1024}", "rd0")
                if 4 * t + f == 215:
                    k.ds_wait("rd0")
                    k("s_barrier")
                if f == 3 and t == o.get("tx", 30) and L1:
                    touch("x", vDM)
                if f == 1 and t >= 8 and ur:
                    k.play(ur[:1]); ur = ur[1:]
                if wr and wr[0][0] <= 4 * t + f:
                    k.lds(*wr.pop(0)[1:])
            if ksl == 13 and j:
                for f in range(4):
                    wr.append((4 * t + 9 + 2 * f, f"ds_write_b128 v{vPQ+4+j}, {vr(vACC+16*j+4*f,4)} offset:{f*1024}", ("rw", j)))
        assert not w2 and not ur and not wr and not up
        k.stamp("D.mm")
        if not L1:
            k.get(vT2, cOUT)
        k("s_nop 3")
        for f in range(4):
            for p in range(2):
                k(f"v_pk_add_f32 {vr(vACC+4*f+2*p,2)}, {vr(vACC+4*f+2*p,2)}, {vr(vACC+16+4*f+2*p,2)}")
        k.barrier()
        for f in range(4):
            for j in range(2):
                k.lds(f"ds_read_b128 {vr(vACC+32+16*j+4*f,4)}, v{vPQ+4} offset:{j*4096+f*1024}", ("rd", f))
        for f in range(4):
            k.ds_wait(("rd", f))
            for j in range(2):
                for p in range(2):
                    k(f"v_pk_add_f32 {vr(vACC+4*f+2*p,2)}, {vr(vACC+4*f+2*p,2)}, {vr(vACC+32+16*j+4*f+2*p,2)}")
            for p in range(2):
                k(f"v_pk_fma_f32 {vr(vACC+4*f+2*p,2)}, {vr(vACC+4*f+2*p,2)}, {vr(RSD,2)}, {vr(vWB+4*f+2*p,2)} op_sel_hi:[1,0,1]")
            for p in range(2):
                k(f"v_cvt_pk_bf16_f32 v{vRES+2*f+p}, v{vACC+4*f+2*p}, v{vACC+4*f+2*p+1}")
        k.stamp("D.red")
        if L1:
            publish_x(G_X2, G_ST2, G_FX2, psc(3))
            k(f"s_sub_u32 s{sT0}, s{sDK}, 8192")
            for j in range(4):
                k(f"s_add_u32 s{sRB+j}, s{sRB+j}, s{sT0}")
            k(f"s_add_u32 s{sKVC}, s{sKVC}, 0x100000")
            k(f"s_add_u32 s{sKVP}, s{sKVP}, 0x100000")
            k.flag(sFXo, G_FX2)
            k.stamp("D.pub")
            k("s_barrier")
            fr = []
            late = []
            for ks in range(16):
                fq = [dict(addr=vTR0, offs=(ks * 2048 + b * 1024,), mf=mf2(QA + 8 * b, ks, True, True, act=ring)) for b in range(2)]
                fk = [dict(addr=vL16, offs=(R0 + ks * 4096 + b * 1024,), mf=mf2(vACC + 8 * b, ks, False, True, act=ring)) for b in range(4)]
                if ks < 16 - o.get("qlag", 0):
                    fr += fk + fq
                else:
                    fr += fk
                    late += fq
            fr += late
            gA = k.gemm_begin(fr)
        else:
            k("s_nop 1")
            for s in range(2):
                for p in range(2):
                    k(f"v_permlane16_swap_b32 v{vRES+4*s+p}, v{vRES+4*s+2+p}")
                k.vmem(f"buffer_store_dwordx4 {vr(vRES+4*s,4)}, v{vT2}, {srd(S_OUT)}, 0 offen offset:{64*s}{' sc1' if o.get('outsc1', 1) else ''}")
            le = k.label("L_ep")
            k(f"s_or_b32 s{sT2}, s2, s{sW}")
            k(f"s_cbranch_scc1 {le}")
            k(f"s_add_u32 s{sEP}, s{sEP}, 1")
            k(f"v_mov_b32 v{vT1}, s{sEP}")
            k("s_mov_b64 exec, 1")
            k(f"buffer_store_dword v{vT1}, v{vL16}, {srd(S_WS)}, 0 offen offset:{WS_EPOCH}")
            k("s_mov_b64 exec, -1")
            k(f"{le}:")
            if stamps:
                k.vm_all()
                k.stamp("end")
                k(f"s_memrealtime s[{sST}:{sST+1}]")
                k("s_waitcnt lgkmcnt(0)")
                k(f"v_writelane_b32 v{vSTAMP}, s{sST}, 61")
                k(f"v_writelane_b32 v{vSTAMP}, s{sBUD}, 60")
                k(f"v_writelane_b32 v{vSTAMP}, s{sSLOW}, 59")
                k(f"s_lshl2_add_u32 s{sT2}, s2, s{sW}")
                k(f"s_lshl_b32 s{sT2}, s{sT2}, 8")
                k(f"s_add_u32 s{sT2}, s{sT2}, {WS_STAMP}")
                k(f"v_lshrrev_b32 v{vT0}, 2, v{vL16}")
                k(f"buffer_store_dword v{vSTAMP}, v{vT0}, {srd(S_WS)}, s{sT2} offen")
    k("L_end:")
    lines = merge_waits(k.lines)
    if o.get("pads", 0):
        lines = add_pads(lines, k.tailcode, o["pads"])
    body = "\n".join(lines)
    tailc = "\n".join(k.tailcode)
    hdr = open("interleave_layers__linear_attn_block__dense_activation_relu__prompt.s.ref").read().split("; Override")[0]
    txt = f"""{hdr}; Generated by a hand-written generator (persistent kernel, one workgroup per CU).
; @launch grid=(256,1,1) block=(256,1,1) lds={LDS_BYTES}
.amdgcn_target "amdgcn-amd-amdhsa--gfx950"
.text
.globl {NAME}
.p2align 8
.type {NAME},@function
.set CODE_BYTES, L_code_end - L_pcref - 4
{NAME}:
{body}
    s_endpgm
L_code_end:
{tailc}
.section .rodata,"a"
.p2align 6
.amdhsa_kernel {NAME}
  .amdhsa_next_free_vgpr 512
  .amdhsa_next_free_sgpr 102
  .amdhsa_accum_offset 256
  .amdhsa_group_segment_fixed_size 0
  .amdhsa_kernarg_size 72
  .amdhsa_user_sgpr_count 2
  .amdhsa_user_sgpr_kernarg_segment_ptr 1
  .amdhsa_system_sgpr_workgroup_id_x 1
.end_amdhsa_kernel
"""
    return txt, k.stamp_names


if __name__ == "__main__":
    out = sys.argv[1]
    stamps = "stamps" in sys.argv[2:]
    opts = {}
    for a in sys.argv[2:]:
        if "=" in a:
            x, y = a.split("=")
            opts[x] = int(y)
    txt, names = gen(stamps, opts)
    open(out, "w").write(txt)
    if stamps:
        open(out + ".names", "w").write("\n".join(names))
```

```python
import sys
from contextlib import contextmanager

NAME = "interleave_layers__linear_attn_block__dense_activation_relu__prompt_kernel"

WS_EPOCH = 0
WS_XID = 0x8000
WS_PD = 0x10000
GRP0 = 0x100000
G_FO, G_FX1, G_FX2, G_FH = 0, 512, 1024, 1536
G_ST1 = 0x1000
G_ST2 = G_ST1
G_ST0 = 0x4000
G_X1 = 0x8000
G_X2 = G_X1
G_H = G_X1 + 0x20000
G_O = G_H
WS_KVX = 0x1200000
KVX_C = 0x9000
WS_W2T = 0x1400000
WS_PK = 0x1600000
PK_KV, PK_Q, PK_W1A, PK_W1B, PK_WO, PK_SZ = 0, 65536, 98304, 163840, 212992, 278528
WS_STAMP = 0x1B00000
WS_USED = 0x1C00000
OOB = 0x7f000000

R0, R1, R2, R3 = 0, 65536, 98304, 131072
L_SM = 161792
L_CS = L_SM
L_ZB = L_SM + 896
L_STAT = L_SM + 1024
L_XB = L_SM - 4096
W1B_N1 = 8
L_XST = 98304
L_RED = R2
L_PST = R2
LDS_BYTES = 163840

S_X, S_WQKV, S_WO, S_W1, S_W2, S_OUT, S_WS = 4, 8, 12, 16, 20, 24, 28
(sW, sC, sG, sTAG, sSLOW, sGB, sBUD, sEP, sEPS, _e1, sT0, sT1, sT2, sT3, sT4, sT5,
 sACT, sACT1, sBACT, sTILE, sOST, sOST1, sFOo, sFOp, sFXo, sFXp, sSTo, sSTg,
 sH1, sH1b, sH2, sH2b, sH3, sH3b, sFHo, sFHp, sRB, _r1, _r2, _r3, sKVC, sKVP,
 sDH, sCT, sXCC, sT8, sD0, sD1, sD2, sD3, sL0, sL1, sPKB, sPDA, sPDB, sJ0) = range(32, 88)
assert sEPS % 2 == 0
sRHO = sT8
S_A, S_B = 88, 92
sKEX = 88
sDK = 92
sKM = 96
sST = 98
sPC = 100

vLANE, vL16, vTR0, vTR1, vQ0, vQ1, vQ2, vQ3, vP, vCH, vDM, vSTAMP = range(12)
vT0, vT1, vT2, vT3 = 12, 13, 14, 15
vSP, vSP2 = vP, vCH
vRES = 16
vPQ = 24
vWB = 32
vACC = 64
vACT = 128
BF1 = "0x3f803f80"
(cCSA, cCSB, cP16, aDUM, cSTO, cSTW, cSTA, cSTB, cKW, cKR, cKW1, cKR1, cKVS, cXW, cXR, cZR,
 cRD0, cRD1, cRD2, cRD3, cRSD, cOUT, cZL, cZW) = range(224, 248)
aONES, aCS = 248, 252


def srd(s):
    return f"s[{s}:{s+3}]"


def vr(a, n=1):
    return f"v{a}" if n == 1 else f"v[{a}:{a+n-1}]"


def ar(a, n=1):
    return f"a{a}" if n == 1 else f"a[{a}:{a+n-1}]"


def bcast(r, pos, n):
    lo = [0] * n
    hi = [1] * n
    if r % 2 == 0:
        hi[pos] = 0
    else:
        lo[pos] = 1
    f = lambda x: "[" + ",".join(map(str, x)) + "]"
    return vr(r & ~1, 2), f" op_sel:{f(lo)} op_sel_hi:{f(hi)}"


class K:
    def __init__(self, stamps=False, opts=None):
        self.lines = []
        self.nlab = 0
        self.vm = []
        self.ds = []
        self.stamps = stamps
        self.stamp_names = []
        self.o = opts or {}
        self._rec = None
        self.seen = set()
        self.tailcode = []

    def _do(self, fn, cost=None):
        if cost is not None:
            fn.cost = cost
        if self._rec is not None:
            self._rec.append(fn)
        else:
            fn()

    def rec(self, f):
        assert self._rec is None
        self._rec = []
        f()
        r, self._rec = self._rec, None
        return r

    @contextmanager
    def atomic(self):
        if self._rec is None:
            yield
            return
        outer, self._rec = self._rec, []
        yield
        inner, self._rec = self._rec, outer
        g = lambda: [x() for x in inner]
        g.cost = sum(getattr(x, "cost", 4) for x in inner)
        outer.append(g)

    def play(self, items):
        for x in items:
            self._do(x)

    def _emit(self, l):
        self.lines.append(("" if l.endswith(":") else "    ") + l)

    def __call__(self, s):
        for l in s.split("\n"):
            l = l.strip()
            if l:
                self._do(lambda l=l: self._emit(l), 8 if l.startswith(("v_exp", "v_rsq", "v_rcp", "buffer_")) else 0 if l.endswith(":") else 4)

    def label(self, base="L"):
        self.nlab += 1
        return f"{base}_{self.nlab}"

    def vmem(self, s, tag=None):
        def f():
            self._emit(s)
            self.vm.append(tag)
            self.seen.add(tag)
        self._do(f, 8)

    def vm_note(self, n, tag=None):
        self._do(lambda: (self.vm.extend([tag] * n), self.seen.add(tag)))

    def _wait(self, lst, tag, name, mx):
        if tag not in lst:
            return lst
        idx = len(lst) - 1 - lst[::-1].index(tag)
        n = min(len(lst) - idx - 1, mx)
        self._emit(f"s_waitcnt {name}({n})")
        return lst[len(lst) - n:] if n else []

    def vm_wait(self, tag):
        def f():
            assert tag in self.seen, tag
            self.vm = self._wait(self.vm, tag, "vmcnt", 63)
        self._do(f)

    def save_vm(self):
        def f():
            self._sv = list(self.vm)
        self._do(f)

    def restore_vm(self):
        def f():
            self.vm = self._sv
        self._do(f)

    def vm_all(self):
        def f():
            self._emit("s_waitcnt vmcnt(0)")
            self.vm = []
        self._do(f)

    def lds(self, s, tag=None):
        def f():
            self._emit(s)
            self.ds.append(tag)
        self._do(f)

    def ds_wait(self, tag):
        def f():
            self.ds = self._wait(self.ds, tag, "lgkmcnt", 15)
        self._do(f)

    def ds_all(self, force=False):
        def f():
            if self.ds or force:
                self._emit("s_waitcnt lgkmcnt(0)")
            self.ds = []
        self._do(f)

    def barrier(self, force=False):
        self.ds_all(force)
        self("s_barrier")

    def stamp(self, name):
        if not self.stamps:
            return
        self.nst = getattr(self, "nst", 0) + 1
        if self.o.get("lite") and name not in ("end", "D.pub"):
            return
        i = len(self.stamp_names)
        assert i < 59
        self.stamp_names.append(name)
        self(f"{'s_memrealtime' if self.o.get('rt') else 's_memtime'} s[{sST}:{sST+1}]")
        self.ds_all(True)
        self(f"v_writelane_b32 v{vSTAMP}, s{sST}, {i}")

    def dma(self, sr, voff, soff, simm, lreg, limm, tag=None, flag=""):
        with self.atomic():
            self(f"s_add_u32 m0, s{lreg}, {limm}")
            self(f"s_add_u32 s{sT5}, s{soff}, {simm}")
            self.vmem(f"buffer_load_dwordx4 v{voff}, {srd(sr)}, s{sT5} offen{flag} lds", tag)

    def get(self, v, c):
        self(f"v_accvgpr_read_b32 v{v}, a{c}")

    def poll_prep(self, mask):
        self.get(vT3, cP16)
        if mask == 7:
            self(f"v_and_b32 v{vT3}, 28, v{vT3}")

    def poll(self, soff, imm, clear=True):
        if clear:
            self.seen = {t for t in self.seen if not (isinstance(t, tuple) and t[0] in ("act", "h"))}
        lp, done = self.label("L_poll"), self.label("L_pd")
        with self.atomic():
            self(f"{lp}:")
            self(f"buffer_load_dword v{vT0}, v{vT3}, {srd(S_WS)}, s{soff} offen offset:{imm} sc1")
            self.vm_all()
            self(f"v_cmp_ne_u32 vcc, s{sTAG}, v{vT0}")
            self(f"s_cbranch_vccz {done}")
            self(f"s_sub_u32 s{sBUD}, s{sBUD}, 1")
            self(f"s_cbranch_scc0 {lp}")
            self(f"s_mov_b32 s{sBUD}, 0")
            self(f"{done}:")

    def stores(self, items, force_sc1, tag="st"):
        with self.atomic():
            if force_sc1:
                for it in items:
                    self.vmem(it + " sc1", tag)
                return
            ls, le = self.label("L_ss"), self.label("L_se")
            self(f"s_cmp_lg_u32 s{sSLOW}, 0")
            self(f"s_cbranch_scc1 {ls}")
            for it in items:
                self.vmem(it, tag)
            self(f"{le}:")
            self.tailcode += [f"{ls}:"] + ["    " + it + " sc1" for it in items] + [f"    s_branch {le}"]

    def flag(self, soff, imm):
        with self.atomic():
            self(f"v_mov_b32 v{vT1}, s{sTAG}")
            self.vm_wait("st")
            self("s_mov_b64 exec, 1")
            self.stores([f"buffer_store_dword v{vT1}, v{vL16}, {srd(S_WS)}, s{soff} offen offset:{imm}"], False, "flag")
            self("s_mov_b64 exec, -1")

    def gemm_begin(self, frags, D=6):
        self.gid = getattr(self, "gid", 0) + 1
        g = dict(frags=frags, D=D, gid=self.gid, rp=0, reads=[])
        for t, f in enumerate(frags):
            s = vWB + 4 * (t % 8)
            if len(f["offs"]) == 2:
                for hh in range(2):
                    g["reads"].append((t, f"ds_read_b64_tr_b16 {vr(s + 2*hh, 2)}, v{f['addr']} offset:{f['offs'][hh]}"))
            else:
                g["reads"].append((t, f"ds_read_b128 {vr(s, 4)}, v{f['addr']} offset:{f['offs'][0]}"))
        self._issue(g, D - 1, 99)
        return g

    def _issue(self, g, tmax, maxn):
        c = 0
        reads = g["reads"]
        while g["rp"] < len(reads) and reads[g["rp"]][0] <= tmax and c < maxn:
            self.lds(reads[g["rp"]][1], ("w", g["gid"], reads[g["rp"]][0]))
            g["rp"] += 1
            c += 1

    def gemm_run(self, g, fill=None):
        fill = fill or {}
        frags, D, gid = g["frags"], g["D"], g["gid"]
        n = len(frags)
        mi = 0
        pend = []
        LATE = self.o.get("late", 3)
        for t, f in enumerate(frags):
            s = vWB + 4 * (t % 8)
            if t % 2 == 0:
                self.ds_wait(("w", gid, min(t + 1, n - 1)))
            nm = len(f["mf"])
            for j, (acc, act_, sw, first, wt) in enumerate(f["mf"]):
                if wt is not None:
                    self.vm_wait(wt)
                c = "0" if first else vr(acc, 4) if acc is not None else ar(aCS, 4)
                if acc is None:
                    self(f"v_mfma_f32_16x16x32_bf16 {ar(aCS,4)}, {ar(aONES,4)}, {vr(s,4)}, {c}")
                elif sw:
                    self(f"v_mfma_f32_16x16x32_bf16 {vr(acc,4)}, {vr(s,4)}, {vr(act_,4)}, {c}")
                else:
                    self(f"v_mfma_f32_16x16x32_bf16 {vr(acc,4)}, {vr(act_,4)}, {vr(s,4)}, {c}")
                rp0 = g["rp"]
                self._issue(g, t + D, 99 if j == nm - 1 else 1)
                room = 8 - 4 * (g["rp"] - rp0) - (4 if (j == nm - 1 and t % 2 == 1) else 0)
                pend += [(mi, x) for x in fill.pop(mi, [])]
                while pend:
                    cst = getattr(pend[0][1], "cost", 4)
                    if cst <= room or (room == 8 and cst > 8) or mi - pend[0][0] >= LATE:
                        self.play([pend.pop(0)[1]])
                        room -= cst
                    else:
                        break
                mi += 1
        self.play([x for _, x in pend])
        for key in sorted(fill):
            self.play(fill[key])

    def gemm(self, frags, fill=None, D=6):
        self.gemm_run(self.gemm_begin(frags, D), fill)


def merge_waits(lines):
    import re
    out = []
    for l in lines:
        m = re.match(r"\s*s_waitcnt (\w+)\((\d+)\)$", l)
        if m and out:
            p = re.match(r"\s*s_waitcnt (\w+)\((\d+)\)$", out[-1])
            if p and p.group(1) != m.group(1):
                out[-1] = out[-1] + f" {m.group(1)}({m.group(2)})"
                continue
        out.append(l)
    return out


def spread(fill, items, start, step, per=1):
    p = start
    if step == 0:
        g = lambda: [x() for x in items]
        g.cost = sum(getattr(x, "cost", 4) for x in items)
        fill.setdefault(int(p), []).append(g)
        return p
    for i in range(0, len(items), per):
        fill.setdefault(int(p), []).extend(items[i:i + per])
        p += step
    return p


def insn_sizes(lines, tailcode):
    import subprocess, tempfile, re, os
    src = [".amdgcn_target \"amdgcn-amd-amdhsa--gfx950\"", ".text", ".set CODE_BYTES, 0x12345"]
    for i, l in enumerate(lines):
        src.append(f"Lz{i}:")
        src.append(l)
    src.append(f"Lz{len(lines)}:")
    src += tailcode
    with tempfile.TemporaryDirectory() as d:
        open(d + "/a.s", "w").write("\n".join(src) + "\n")
        subprocess.run(["clang", "-x", "assembler", "-target", "amdgcn-amd-amdhsa", "-mcpu=gfx950", "-c", d + "/a.s", "-o", d + "/a.o"], check=True)
        out = subprocess.run(["llvm-objdump", "-t", d + "/a.o"], capture_output=True, text=True, check=True).stdout
    addr = {}
    for l in out.splitlines():
        m = re.match(r"([0-9a-f]+) .*\sLz(\d+)$", l)
        if m:
            addr[int(m.group(2))] = int(m.group(1), 16)
    return [addr[i + 1] - addr[i] for i in range(len(lines))]


def add_pads(lines, tailcode, step):
    ci = [i for i, l in enumerate(lines) if l.strip() == "PADCALL"][0]
    lines = lines[:ci] + lines[ci + 1:]
    sz = insn_sizes(lines, tailcode)
    body, pos, nxt, n = [], 4, step, 0
    for i in range(ci, len(lines)):
        if pos >= nxt and sz[i] > 0:
            body.append(("PAD", n))
            n += 1
            pos += 4
            nxt = (pos // step + 1) * step
        body.append(lines[i])
        pos += sz[i]
    out = lines[:ci]
    out += ["    s_mov_b64 exec, 0"]
    for w in range(3):
        out += [f"    s_cmp_eq_u32 s{sW}, {w}", f"    s_cbranch_scc1 L_pad{w}"]
    out += ["    s_branch L_pad3", ".p2align 12", "L_padret:", "    s_mov_b64 exec, -1"]
    for x in body:
        if isinstance(x, tuple):
            j = x[1]
            out += [f"L_pad{j}:", f"    s_cbranch_execz {'L_pad%d' % (j + 4) if j + 4 < n else 'L_padret'}"]
        else:
            out.append(x)
    return out


def mix(a, b, ratio):
    out = []
    bi = 0
    for i, x in enumerate(a):
        out.append(x)
        if (i + 1) % ratio == 0 and bi < len(b):
            out.append(b[bi]); bi += 1
    out.extend(b[bi:])
    return out


def act(ks, rb):
    return vACT + 8 * ks + 4 * rb


def gen(stamps=False, opts=None):
    k = K(stamps, opts)
    o = k.o
    if stamps:
        k(f"{'s_memrealtime' if o.get('rt') else 's_memtime'} s[{sST}:{sST+1}]")
        k(f"s_memrealtime s[{sPC}:{sPC+1}]")
    k(f"""
    s_cmp_ge_u32 s2, 256
    s_cbranch_scc1 L_end
    s_load_dwordx2 s[{S_X}:{S_X+1}], s[0:1], 0
    s_load_dwordx2 s[{S_WQKV}:{S_WQKV+1}], s[0:1], 8
    s_load_dwordx2 s[{S_WS}:{S_WS+1}], s[0:1], 64
    s_load_dwordx2 s[{S_WO}:{S_WO+1}], s[0:1], 16
    s_load_dwordx2 s[{S_W1}:{S_W1+1}], s[0:1], 32
    s_load_dwordx2 s[{S_W2}:{S_W2+1}], s[0:1], 40
    s_load_dwordx2 s[{S_OUT}:{S_OUT+1}], s[0:1], 48
    """)
    if o.get("cw0", 1):
        k(f"""
        s_getpc_b64 s[{S_A}:{S_A+1}]
        L_pcref:
        s_lshr_b32 s{sT2}, s2, 3
        s_lshl_b32 s{sT2}, s{sT2}, 11
        v_lshlrev_b32 v{vT3}, 3, v0
        v_add_u32 v{vT3}, s{sT2}, v{vT3}
        v_min_u32 v{vT3}, CODE_BYTES, v{vT3}
        s_mov_b32 exec_lo, 0x10001
        s_mov_b32 exec_hi, 0x10001
        global_load_dword a{aDUM}, v{vT3}, s[{S_A}:{S_A+1}]
        s_mov_b64 exec, -1
        """)
    k(f"""
    v_lshrrev_b32 v{vT0}, 6, v0
    v_and_b32 v{vLANE}, 63, v0
    s_mov_b32 s{S_X+2}, {2048*1024}
    v_readfirstlane_b32 s{sW}, v{vT0}
    s_mov_b32 s{S_X+3}, 0x20000
    s_mov_b32 s{S_WQKV+2}, {512*3072}
    s_mov_b32 s{S_WQKV+3}, 0x20000
    s_lshr_b32 s{sT0}, s2, 3
    s_and_b32 s{sC}, s{sT0}, 15
    s_lshr_b32 s{sT0}, s{sT0}, 4
    s_and_b32 s{sG}, s2, 7
    s_lshl1_add_u32 s{sG}, s{sG}, s{sT0}
    s_lshr_b32 s{sT1}, s{sC}, 1
    s_xor_b32 s{sT1}, s{sT1}, s{sT0}
    s_and_b32 s{sT1}, s{sT1}, 1
    s_and_b32 s{sRHO}, s{sC}, 1
    s_lshl1_add_u32 s{sRHO}, s{sT1}, s{sRHO}
    v_lshlrev_b32 v{vL16}, 4, v{vLANE}
    """)
    if stamps:
        k(f"v_mov_b32 v{vSTAMP}, 0")
    XS, XR, X2R = vRES, vRES + 4, act(15, 1)
    aRES = 246
    k(f"""
    v_lshrrev_b32 v{vT0}, 4, v{vLANE}
    v_and_b32 v{vT1}, 15, v{vLANE}
    v_xor_b32 v{vT2}, v{vT0}, v{vT1}
    v_lshlrev_b32 v{vT2}, 4, v{vT2}
    v_lshl_add_u32 v{XS}, v{vT0}, 10, v{vT2}
    v_xor_b32 v{XS+1}, 64, v{XS}
    v_xor_b32 v{XS+2}, 0x80, v{XS}
    v_xor_b32 v{XS+3}, 0xc0, v{XS}
    v_lshrrev_b32 v{vP}, 2, v{vLANE}
    v_and_b32 v{vCH}, 3, v{vLANE}
    v_lshrrev_b32 v{vT3}, 3, v{vLANE}
    v_and_b32 v{vT3}, 2, v{vT3}
    v_xor_b32 v{vCH}, v{vCH}, v{vT3}
    v_lshlrev_b32 v{vCH}, 4, v{vCH}
    v_and_b32 v{vT3}, 3, v{vP}
    v_lshl_add_u32 v{vT3}, v{vT0}, 3, v{vT3}
    s_movk_i32 s{sT1}, 3072
    v_mad_u32_u24 v{vDM}, v{vT3}, s{sT1}, v{vCH}
    s_lshl_b32 s{sL0}, s{sW}, 14
    s_add_u32 s{sL0}, s{sL0}, {L_XST}
    s_lshl_b32 s{sT1}, s{sG}, 17
    s_lshl_b32 s{sT2}, s{sW}, 15
    s_add_u32 s{sT1}, s{sT1}, s{sT2}
    s_lshl_b32 s{sL1}, s{sW}, 12
    """)
    for r in range(4):
        k(f"""
        s_add_u32 s{sT2}, s{sRHO}, {r}
        s_and_b32 s{sT2}, s{sT2}, 3
        s_lshl_b32 s{sT3}, s{sT2}, 8
        s_add_u32 s{sD0+r}, s{sT1}, s{sT3}
        s_lshl2_add_u32 s{sT2}, s{sT2}, s{sW}
        s_mul_i32 s{sT2}, s{sT2}, {32*3072}
        s_lshl_b32 s{sT3}, s{sC}, 6
        s_add_u32 s{sRB+r}, s{sT2}, s{sT3}
        """)
    k("s_waitcnt lgkmcnt(0)")
    k(f"s_load_dword s{sEP}, s[{S_WS}:{S_WS+1}], {WS_EPOCH}")
    if stamps:
        k(f"v_writelane_b32 v{vSTAMP}, s{sST}, 62")
        k(f"v_writelane_b32 v{vSTAMP}, s{sPC}, 63")

    def xslot(q, js=range(8)):
        for j in js:
            k.dma(S_X, XS + (j & 3), sD0 + q, j * 4096, sL0, (q & 1) * 8192 + j * 1024, ("xs", q))

    def wkv_raw(r):
        for pr in range(2):
            for hh in range(2):
                k.dma(S_WQKV, vDM, sRB + r, hh * 4 * 3072 + 1024 * (pr + 1), sL1, R0 + r * 16384 + pr * 2048 + hh * 1024, ("wkv", r))

    def quad_lane(pitch, dst=vDM, tmp=vT2):
        vT2 = tmp
        k(f"v_lshrrev_b32 v{dst}, 3, v{vLANE}")
        k(f"v_and_b32 v{vT2}, 6, v{dst}")
        k(f"v_xor_b32 v{vT2}, v{vT2}, v{vLANE}")
        k(f"v_and_b32 v{vT2}, 7, v{vT2}")
        k(f"v_lshlrev_b32 v{vT2}, 4, v{vT2}")
        if isinstance(pitch, int):
            k(f"s_movk_i32 s{sD3}, {pitch}")
            pitch = f"s{sD3}"
        k(f"v_mad_u32_u24 v{dst}, v{dst}, {pitch}, v{vT2}")

    def dma_raw(sr, lds_imm, first, R=None):
        sD0_, sD2_, sL0_, vDM_ = R or (sD0, sD2, sL0, vDM)
        with k.atomic():
            k(f"s_add_u32 m0, s{sL0_}, {lds_imm}")
            k("s_nop 0" if first else f"s_add_u32 s{sD0_}, s{sD0_}, s{sD2_}")
            k(f"buffer_load_dwordx4 v{vDM_}, {srd(sr)}, s{sD0_} offen lds")

    def packU_issue(base, sD0, sD1, sD2, sD3, sL0, vDM, sPDA, shift=12):
        R = (sD0, sD2, sL0, vDM)
        l2, l3, lq, le = k.label("L_u2"), k.label("L_u3"), k.label("L_uq"), k.label("L_ue")
        with k.atomic():
            k(f"""
            s_lshl_b32 s{sL0}, s{sW}, {shift}
            s_add_u32 s{sL0}, s{sL0}, {base}
            s_lshr_b32 s{sD0}, s{sC}, 2
            s_mul_i32 s{sD0}, s{sD0}, 896
            s_mul_i32 s{sD1}, s{sG}, {32*3584}
            s_add_u32 s{sD0}, s{sD0}, s{sD1}
            s_and_b32 s{sD1}, s{sC}, 3
            s_cmp_eq_u32 s{sW}, 3
            s_cbranch_scc1 {l3}
            s_cmp_eq_u32 s{sW}, 2
            s_cbranch_scc1 {l2}
            s_mov_b32 s{S_A}, s{S_W2}
            s_mov_b32 s{S_A+1}, s{S_W2+1}
            s_mov_b32 s{S_A+2}, {1792*1024}
            s_movk_i32 s{sD2}, 1024
            s_lshl1_add_u32 s{sD0}, s2, s{sW}
            s_lshr_b32 s{sD1}, s{sD0}, 3
            s_and_b32 s{sD0}, s{sD0}, 7
            s_mul_i32 s{sPDA}, s{sD0}, 56
            s_add_u32 s{sPDA}, s{sPDA}, s{sD1}
            s_lshl_b32 s{sPDA}, s{sPDA}, 12
            s_add_u32 s{sPDA}, s{sPDA}, {WS_W2T}
            s_cmp_ge_u32 s{sD1}, 56
            s_cselect_b32 s{sPDA}, {OOB}, s{sPDA}
            s_lshl_b32 s{sD1}, s{sD1}, 15
            s_lshl_b32 s{sD0}, s{sD0}, 7
            s_add_u32 s{sD0}, s{sD0}, s{sD1}
            s_branch {lq}
            {l2}:
            s_mov_b32 s{S_A}, s{S_W1}
            s_mov_b32 s{S_A+1}, s{S_W1+1}
            s_mov_b32 s{S_A+2}, {512*3584}
            s_movk_i32 s{sD2}, 3584
            s_lshl_b32 s{sD1}, s{sD1}, 7
            s_add_u32 s{sD0}, s{sD0}, s{sD1}
            s_lshl_b32 s{sPDA}, s{sG}, 12
            s_add_u32 s{sPDA}, s{sPDA}, s{sPKB}
            s_add_u32 s{sPDA}, s{sPDA}, {PK_W1A}
            {lq}:
            s_mov_b32 s{S_A+3}, 0x20000
            """)
            quad_lane(f"s{sD2}", vDM, vT2 if shift == 14 else vACT + 127)
            k(f"s_lshl_b32 s{sD2}, s{sD2}, 3")
            for j in range(4):
                dma_raw(S_A, j * 1024, j == 0, R)
            k(f"""
            s_branch {le}
            {l3}:
            s_movk_i32 s{sD3}, 3584
            s_mul_i32 s{sPDA}, s{sG}, 3072
            s_add_u32 s{sPDA}, s{sPDA}, s{sPKB}
            s_add_u32 s{sPDA}, s{sPDA}, {PK_W1B}
            s_lshr_b32 s{sT5}, s{sD1}, 1
            s_mul_i32 s{sT5}, s{sT5}, 6
            s_and_b32 s{sD2}, s{sD1}, 1
            s_add_u32 s{sT5}, s{sT5}, s{sD2}
            s_add_u32 s{sT5}, s{sT5}, 18
            s_lshl_b32 s{sT5}, s{sT5}, 5
            s_add_u32 s{sT5}, s{sT5}, s{sD0}
            v_lshrrev_b32 v{vDM}, 1, v{vLANE}
            v_and_b32 v{vT2 if shift == 14 else vACT + 127}, 16, v{vL16}
            v_mad_u32_u24 v{vDM}, v{vDM}, s{sD3}, v{vT2 if shift == 14 else vACT + 127}
            s_add_u32 m0, s{sL0}, 2048
            s_mul_i32 s{sD1}, s{sD1}, 3
            buffer_load_dwordx4 v{vDM}, {srd(S_W1)}, s{sT5} offen lds
            s_add_u32 s{sD1}, s{sD1}, 17
            s_lshr_b32 s{sD1}, s{sD1}, 1
            s_lshl_b32 s{sD1}, s{sD1}, 6
            s_add_u32 s{sD0}, s{sD0}, s{sD1}
            s_mov_b32 s{sD2}, {16*3584}
            v_mad_u32_u24 v{vDM}, v{vP}, s{sD3}, v{vCH}
            """)
            for hh in range(2):
                dma_raw(S_W1, hh * 1024, hh == 0, R)
            k(f"buffer_load_dword a{aDUM}, v{vL16}, {srd(S_W1)}, s{S_W1+2} offen")
            k(f"{le}:")
            k.vm_note(4, "pu")

    def warm():
        k(f"v_lshlrev_b32 v{vT3}, 7, v{vLANE}")
        k("s_mov_b64 exec, 0xf")
        if not o.get("cw0", 1):
            k(f"""
            s_getpc_b64 s[{sPC}:{sPC+1}]
            L_pcref:
            s_lshr_b32 s{sT2}, s2, 3
            s_lshl2_add_u32 s{sT2}, s{sT2}, s{sW}
            s_lshl_b32 s{sT2}, s{sT2}, 9
            s_min_u32 s{sT2}, s{sT2}, CODE_BYTES
            s_add_u32 s{sPC}, s{sPC}, s{sT2}
            s_addc_u32 s{sPC+1}, s{sPC+1}, 0
            """)
            k.vmem(f"global_load_dword a{aDUM}, v{vT3}, s[{sPC}:{sPC+1}]")
        if o.get("warm", 1) >= 1:
            k(f"s_lshl2_add_u32 s{sT2}, s2, s{sW}")
            k(f"s_lshr_b32 s{sT3}, s{sT2}, 1")
            k(f"s_mul_i32 s{sT3}, s{sT3}, 3072")
            k(f"s_and_b32 s{sT4}, s{sT2}, 1")
            k(f"s_lshl_b32 s{sT4}, s{sT4}, 9")
            k(f"s_add_u32 s{sT3}, s{sT3}, s{sT4}")
            k.vmem(f"buffer_load_dword a{aDUM}, v{vT3}, {srd(S_WQKV)}, s{sT3} offen")
            k(f"s_lshl_b32 s{sT3}, s{sT2}, 9")
            k.vmem(f"buffer_load_dword a{aDUM}, v{vT3}, {srd(S_WO)}, s{sT3} offen")
        if o.get("tlb", 0):
            k("s_mov_b64 exec, 1")
            k(f"s_mul_i32 s{sT3}, s{sT2}, 1792")
            k.vmem(f"buffer_load_dword a{aDUM}, v{vT3}, {srd(S_W1)}, s{sT3} offen")
            k.vmem(f"buffer_load_dword a{aDUM}, v{vT3}, {srd(S_W2)}, s{sT3} offen")
            if o["tlb"] > 1:
                k("s_mov_b64 exec, 0x1f")
                k(f"v_lshlrev_b32 v{vWB}, 21, v{vLANE}")
                k(f"s_mov_b32 s{sT3}, {WS_KVX + 0x1f0000}")
                k.vmem(f"buffer_load_dword a{aDUM}, v{vWB}, {srd(S_WS)}, s{sT3} offen")
        if o.get("warm", 1) >= 2:
            k(f"s_mul_i32 s{sT3}, s{sT2}, 1792")
            k("s_mov_b64 exec, 0x3fff")
            k.vmem(f"buffer_load_dword a{aDUM}, v{vT3}, {srd(S_W1)}, s{sT3} offen")
            k.vmem(f"buffer_load_dword a{aDUM}, v{vT3}, {srd(S_W2)}, s{sT3} offen")
        k(f"s_lshl2_add_u32 s{sT2}, s{sC}, s{sW}")
        k(f"s_lshl_b32 s{sT2}, s{sT2}, 8")
        k(f"s_add_u32 s{sT2}, s{sT2}, s{sGB}")
        k("s_mov_b64 exec, 3")
        k.vmem(f"buffer_load_dword a{aDUM}, v{vT3}, {srd(S_WS)}, s{sT2} offen sc1", "touch")
        k("s_mov_b64 exec, -1")

    OWN = vACC
    k(f"s_lshl_b32 s{sT2}, s{sC}, 11")
    k(f"s_add_u32 s{sT2}, s{sT2}, s{sT1}")
    for r in range(2):
        k.vmem(f"buffer_load_dwordx4 {vr(OWN+4*r,4)}, v{vL16}, {srd(S_X)}, s{sT2} offen offset:{r*1024}", "own")
    wkv_raw(0)
    k(f"""
    s_mov_b32 s{S_WO+2}, {512*1024}
    s_mov_b32 s{S_WO+3}, 0x20000
    s_mov_b32 s{S_W1+2}, {512*3584}
    s_mov_b32 s{S_W1+3}, 0x20000
    s_mov_b32 s{S_W2+2}, {1792*1024}
    s_mov_b32 s{S_W2+3}, 0x20000
    s_mov_b32 s{S_WS+2}, {WS_USED}
    s_mov_b32 s{S_WS+3}, 0x20000
    s_lshl_b32 s{sGB}, s{sG}, 20
    s_add_u32 s{sGB}, s{sGB}, {GRP0}
    """)
    warm()
    UF = o.get("uf", 1)
    k(f"s_mul_i32 s{sPKB}, s{sC}, {PK_SZ}")
    k(f"s_add_u32 s{sPKB}, s{sPKB}, {WS_PK}")
    if UF == 1:
        packU_issue(R1, sH1, sH1b, sH2, sH2b, sH3, vWB + 8, sPDB)

    def arm(mode):
        with k.atomic():
            k(f"s_lshl2_add_u32 s{sT2}, s{sC}, s{sW}")
            k(f"s_lshl_b32 s{sT3}, s{sT2}, 11")
            k(f"s_add_u32 s{sT3}, s{sT3}, s{sGB}")
            k(f"s_add_u32 s{sT3}, s{sT3}, {G_X1}")
            k(f"s_lshr_b32 s{sT4}, s{sT2}, 3")
            k(f"s_mul_i32 s{sT4}, s{sT4}, 57344")
            k(f"s_and_b32 s{sT2}, s{sT2}, 7")
            k(f"s_mul_i32 s{sT2}, s{sT2}, {5120 if mode & 4 else 1024}")
            k(f"s_add_u32 s{sT4}, s{sT4}, s{sT2}")
            k(f"s_add_u32 s{sT4}, s{sT4}, s{sGB}")
            k(f"s_add_u32 s{sT4}, s{sT4}, {G_H + 16*1024}")
            k(f"s_add_u32 s{sT2}, s{sT4}, 4096")
        if mode & 1:
            for j in range(2):
                k.vmem(f"buffer_store_dwordx4 {vr(vQ0,4)}, v{vL16}, {srd(S_WS)}, s{sT3} offen offset:{j*1024} sc1", "arm")
        for j in range(5 if mode & 4 else 1 if mode & 2 else 0):
            k.vmem(f"buffer_store_dwordx4 {vr(vQ0,4)}, v{vL16}, {srd(S_WS)}, s{sT4 if j < 4 else sT2} offen offset:{(j%4)*1024} sc1", "arm")

    k(f"""
    s_mov_b32 s{S_OUT+2}, {2048*1024}
    s_mov_b32 s{S_OUT+3}, 0x20000
    s_lshr_b32 s{sDH}, s{sC}, 3
    s_and_b32 s{sCT}, s{sC}, 7
    s_mov_b32 s{sBUD}, 150000
    s_mov_b32 s{sEPS}, 0x358637bd
    s_mov_b32 s{sEPS+1}, 0x358637bd
    s_getreg_b32 s{sXCC}, hwreg(HW_REG_XCC_ID, 0, 4)
    s_lshl_b32 s{sACT}, s{sW}, 15
    s_add_u32 s{sACT}, s{sACT}, s{sGB}
    s_add_u32 s{sACT1}, s{sACT}, 16384
    s_lshl2_add_u32 s{sT0}, s{sDH}, s{sW}
    s_lshl_b32 s{sBACT}, s{sT0}, 14
    s_add_u32 s{sBACT}, s{sBACT}, s{sGB}
    s_lshl_b32 s{sTILE}, s{sCT}, 11
    s_add_u32 s{sTILE}, s{sTILE}, s{sBACT}
    s_mul_i32 s{sBACT}, s{sT0}, 57344
    s_add_u32 s{sBACT}, s{sBACT}, s{sGB}
    s_mul_i32 s{sOST}, s{sW}, {2*57344}
    s_lshl_b32 s{sOST1}, s{sC}, 10
    s_add_u32 s{sOST}, s{sOST}, s{sOST1}
    s_add_u32 s{sOST}, s{sOST}, s{sGB}
    s_add_u32 s{sOST}, s{sOST}, {G_O}
    s_add_u32 s{sOST1}, s{sOST}, 57344
    s_lshl_b32 s{sFXp}, s{sW}, 7
    s_add_u32 s{sFXp}, s{sFXp}, s{sGB}
    s_lshl2_add_u32 s{sFOo}, s{sC}, s{sFXp}
    s_lshl_b32 s{sFHp}, s{sT0}, 7
    s_add_u32 s{sFHp}, s{sFHp}, s{sGB}
    s_lshr_b32 s{sT0}, s{sT0}, 1
    s_mov_b32 s{sT1}, s{sT0}
    s_lshl_b32 s{sFOp}, s{sT0}, 7
    s_add_u32 s{sFOp}, s{sFOp}, s{sGB}
    s_and_b32 s{sT2}, s{sW}, 1
    s_lshl1_add_u32 s{sT3}, s{sCT}, s{sT2}
    s_lshl2_add_u32 s{sFXo}, s{sT3}, s{sFOp}
    s_lshl3_add_u32 s{sT3}, s{sT0}, s{sCT}
    s_lshl_b32 s{sT3}, s{sT3}, 8
    s_lshl3_add_u32 s{sT3}, s{sT2}, s{sT3}
    s_add_u32 s{sSTo}, s{sT3}, s{sGB}
    s_lshl_b32 s{sSTg}, s{sW}, 11
    s_add_u32 s{sSTg}, s{sSTg}, s{sGB}
    s_lshl2_add_u32 s{sT1}, s{sT1}, s{sT2}
    s_lshl_b32 s{sT1}, s{sT1}, 6
    s_add_u32 s{sT1}, s{sT1}, {L_STAT + 128}
    v_lshl_add_u32 v{vT3}, v{vT1}, 2, s{sT1}
    v_accvgpr_write_b32 a{cRSD}, v{vT3}
    s_mul_i32 s{sT0}, s{sW}, {2*57344}
    s_add_u32 s{sT0}, s{sT0}, s{sGB}
    s_lshr_b32 s{sT3}, s{sC}, 2
    s_add_u32 s{sT0}, s{sT0}, {G_H}
    s_lshl_b32 s{sH1}, s{sC}, 11
    s_add_u32 s{sH1}, s{sH1}, {24*1024}
    s_add_u32 s{sH1}, s{sH1}, s{sT0}
    s_add_u32 s{sH1b}, s{sH1}, 57344
    s_mul_i32 s{sT4}, s{sT3}, 6144
    s_add_u32 s{sT0}, s{sT0}, s{sT4}
    s_and_b32 s{sT4}, s{sC}, 3
    s_mul_i32 s{sH2}, s{sT4}, 3
    s_add_u32 s{sH2}, s{sH2}, 1
    s_lshr_b32 s{sH2}, s{sH2}, 1
    s_lshl_b32 s{sH2}, s{sH2}, 10
    s_add_u32 s{sH2}, s{sH2}, s{sT0}
    s_add_u32 s{sH2b}, s{sH2}, 57344
    s_lshr_b32 s{sH3}, s{sT4}, 1
    s_mul_i32 s{sH3}, s{sH3}, 3072
    s_and_b32 s{sH3b}, s{sT4}, 1
    s_lshl3_add_u32 s{sH3}, s{sH3b}, s{sH3}
    s_add_u32 s{sH3}, s{sH3}, 1024
    s_add_u32 s{sH3}, s{sH3}, s{sT0}
    s_add_u32 s{sH3b}, s{sH3}, 57344
    s_lshr_b32 s{sT0}, s{sW}, 1
    s_lshl2_add_u32 s{sT0}, s{sT0}, s{sT3}
    s_lshl_b32 s{sT0}, s{sT0}, 7
    s_lshl1_add_u32 s{sT2}, s{sT4}, s{sT2}
    s_lshl2_add_u32 s{sT0}, s{sT2}, s{sT0}
    s_add_u32 s{sFHo}, s{sT0}, s{sGB}
    """)
    k(f"""
    s_mul_i32 s{sT0}, s{sC}, {KVX_C}
    s_add_u32 s{sT0}, s{sT0}, {WS_KVX}
    s_lshl_b32 s{sT1}, s{sW}, 13
    s_add_u32 s{sKVC}, s{sT0}, s{sT1}
    s_lshl_b32 s{sT2}, s{sW}, 14
    s_lshl_b32 s{sT3}, s{sG}, 10
    s_lshl_b32 s{sT4}, s{sG}, 7
    s_cmp_lt_u32 s{sW}, 2
    s_cselect_b32 s{sT3}, s{sT3}, s{sT4}
    s_cselect_b32 s{sKM}, -1, 0x30003
    s_cselect_b32 s{sKM+1}, -1, 0x30003
    s_cselect_b64 vcc, -1, 0
    s_add_u32 s{sKVP}, s{sT0}, s{sT2}
    s_add_u32 s{sKVP}, s{sKVP}, s{sT3}
    s_cmp_eq_u32 s{sW}, 3
    s_cselect_b32 s{sKVP}, {OOB}, s{sKVP}
    v_lshlrev_b32 v{vT3}, 4, v{vT0}
    v_lshl_add_u32 v{vT3}, v{vT1}, 6, v{vT3}
    v_cndmask_b32 v{vT3}, v{vT3}, v{vL16}, vcc
    v_accvgpr_write_b32 a{cKVS}, v{vT3}
    v_lshlrev_b32 v{vT3}, 2, v{vL16}
    v_and_b32 v{vT3}, 0xf00, v{vT3}
    v_lshrrev_b32 v{vT3}, 1, v{vT3}
    v_and_b32 v{vWB}, 48, v{vL16}
    s_lshr_b32 s{sT2}, s{sW}, 1
    s_lshl_b32 s{sT2}, s{sT2}, 6
    s_add_u32 s{sT2}, s{sT2}, 32768
    s_sub_u32 s{sT2}, s{sT2}, s{sT1}
    v_add3_u32 v{vT3}, v{vT3}, v{vWB}, s{sT2}
    v_accvgpr_write_b32 a{cZL}, v{vT3}
    v_and_b32 v{vWB+5}, 1, v{vLANE}
    v_cndmask_b32 v{vWB+5}, v{vWB+5}, 0, vcc
    s_min_u32 s{sT5}, s{sW}, 2
    """)
    W = vWB
    k(f"""
    v_lshl_add_u32 v{XR}, v{vT1}, 8, v{vT2}
    v_add_u32 v{XR}, s{sL0}, v{XR}
    v_xor_b32 v{XR+1}, 64, v{XR}
    v_xor_b32 v{XR+2}, 0x80, v{XR}
    v_xor_b32 v{XR+3}, 0xc0, v{XR}
    v_and_b32 v{vT3}, 3, v{vLANE}
    v_lshlrev_b32 v{vT3}, 3, v{vT3}
    v_lshl_add_u32 v{vTR0}, v{vP}, 6, v{vT3}
    v_lshl_add_u32 v{vQ0}, v{vP}, 7, v{vT3}
    v_and_b32 v{vT3}, 1, v{vT0}
    v_lshlrev_b32 v{vT3}, 5, v{vT3}
    v_add_u32 v{vTR0}, v{vTR0}, v{vT3}
    v_xor_b32 v{vTR1}, 32, v{vTR0}
    v_bfe_u32 v{vT3}, v{vLANE}, 3, 2
    v_lshl_add_u32 v{vQ0}, v{vT3}, 5, v{vQ0}
    v_xor_b32 v{vQ1}, 32, v{vQ0}
    v_xor_b32 v{vQ2}, 64, v{vQ0}
    v_xor_b32 v{vQ3}, 0x60, v{vQ0}
    v_lshlrev_b32 v{W}, 2, v{vT1}
    v_accvgpr_write_b32 a{cP16}, v{W}
    v_mov_b32 v{W+1}, {BF1}
    v_accvgpr_write_b32 a{aONES}, v{W+1}
    v_accvgpr_write_b32 a{aONES+1}, v{W+1}
    v_accvgpr_write_b32 a{aONES+2}, v{W+1}
    v_accvgpr_write_b32 a{aONES+3}, v{W+1}
    v_add_u32 v{W+1}, {L_CS}, v{W}
    v_accvgpr_write_b32 a{cCSA}, v{W+1}
    v_and_b32 v{W+2}, 48, v{vLANE}
    v_add_u32 v{W+1}, {L_CS}, v{W+2}
    v_accvgpr_write_b32 a{cCSB}, v{W+1}
    v_lshlrev_b32 v{W+1}, 2, v{vT0}
    v_lshl_add_u32 v{W+1}, v{vT1}, 4, v{W+1}
    v_accvgpr_write_b32 a{cSTO}, v{W+1}
    s_lshl_b32 s{sT0}, s{sW}, 8
    s_add_u32 s{sT0}, s{sT0}, {L_STAT}
    v_add_u32 v{W+1}, s{sT0}, v{W}
    v_accvgpr_write_b32 a{cSTA}, v{W+1}
    v_and_b32 v{W+3}, 32, v{vLANE}
    v_lshl_add_u32 v{W+1}, v{W+3}, 1, v{W+1}
    v_accvgpr_write_b32 a{cSTW}, v{W+1}
    v_add_u32 v{W+1}, s{sT0}, v{W+2}
    v_accvgpr_write_b32 a{cSTB}, v{W+1}
    s_lshl_b32 s{sT0}, s{sW}, 10
    v_add_u32 v{W+1}, s{sT0}, v{vL16}
    v_accvgpr_write_b32 a{cKW}, v{W+1}
    v_add_u32 v{W+3}, {R2 + 8192}, v{W+1}
    v_accvgpr_write_b32 a{cKW1}, v{W+3}
    s_lshl_b32 s{sT0}, s{sT5}, 14
    v_add_u32 v{W+1}, s{sT0}, v{vL16}
    v_lshl_add_u32 v{W+1}, v{W+5}, 12, v{W+1}
    v_accvgpr_write_b32 a{cKR}, v{W+1}
    s_lshl_b32 s{sT0}, s{sT5}, 14
    s_add_u32 s{sT0}, s{sT0}, {R2 + 8192}
    v_add_u32 v{W+1}, s{sT0}, v{vL16}
    v_lshl_add_u32 v{W+1}, v{W+5}, 14, v{W+1}
    v_accvgpr_write_b32 a{cKR1}, v{W+1}
    v_add_u32 v{W+1}, {L_XB}, v{vL16}
    v_accvgpr_write_b32 a{cXR}, v{W+1}
    v_lshlrev_b32 v{W+3}, 3, v{vT0}
    v_add_u32 v{W+3}, {L_ZB}, v{W+3}
    v_accvgpr_write_b32 a{cZR}, v{W+3}
    """)
    k(f"""
    s_lshl_b32 s{sT0}, s{sW}, 10
    v_add_u32 v{W+1}, s{sT0}, v{W+1}
    v_accvgpr_write_b32 a{cXW}, v{W+1}
    v_and_b32 v{W+3}, 1, v{vT0}
    v_lshrrev_b32 v{W+4}, 1, v{vT0}
    v_lshl_add_u32 v{W+3}, v{W+3}, 1, v{W+4}
    v_and_b32 v{W+4}, 3, v{vLANE}
    v_lshl_add_u32 v{W+3}, v{W+4}, 2, v{W+3}
    s_lshr_b32 s{sT0}, s{sW}, 1
    s_lshl_b32 s{sT0}, s{sT0}, 5
    s_add_u32 s{sT0}, s{sT0}, {L_ZB}
    v_lshl_add_u32 v{W+3}, v{W+3}, 1, s{sT0}
    v_accvgpr_write_b32 a{cZW}, v{W+3}
    """)
    for j in range(4):
        k(f"s_add_u32 s{sT0}, s{sW}, {j}")
        k(f"s_and_b32 s{sT0}, s{sT0}, 3")
        k(f"s_lshl_b32 s{sT0}, s{sT0}, 13")
        k(f"s_add_u32 s{sT0}, s{sT0}, {L_RED + (4096 if j == 2 else 0)}")
        k(f"v_add_u32 v{W+1}, s{sT0}, v{vL16}")
        k(f"v_accvgpr_write_b32 a{cRD0+j}, v{W+1}")
    k(f"""
    s_lshl2_add_u32 s{sT0}, s{sDH}, s{sW}
    s_lshl3_add_u32 s{sT0}, s{sG}, s{sT0}
    s_lshl_b32 s{sT0}, s{sT0}, 14
    s_lshl_b32 s{sT1}, s{sCT}, 7
    s_add_u32 s{sT0}, s{sT0}, s{sT1}
    v_lshl_add_u32 v{W+1}, v{vT1}, 10, s{sT0}
    v_and_b32 v{W+3}, 1, v{vT0}
    v_lshl_add_u32 v{W+1}, v{W+3}, 5, v{W+1}
    v_lshrrev_b32 v{W+3}, 1, v{vT0}
    v_lshl_add_u32 v{W+1}, v{W+3}, 4, v{W+1}
    v_accvgpr_write_b32 a{cOUT}, v{W+1}
    """)

    def xread(q):
        k.vm_wait(("xs", q))
        for ksl in range(4):
            for rb in range(2):
                k.lds(f"ds_read_b128 {vr(act(4*q+ksl, rb),4)}, v{XR+ksl} offset:{(q%2)*8192 + rb*4096}", ("xr", q))

    SUM0, SQ0, SUM1, SQ1 = vACC + 56, vACC + 57, vACC + 58, vACC + 59
    SUMA, SQA = vACC + 48, vACC + 56
    ONES = vPQ + 4
    NM_A, RS_A, RL_A = vACC + 60, vACC + 62, vACC + 56
    NM_B, RS_B, RL_B = vACC + 32, vACC + 40, vACC + 48
    STG = vACC + 48

    def own_stats():
        a, b, c, d = OWN + 8, OWN + 9, OWN + 10, OWN + 11
        k(f"v_mov_b32 v{OWN+12}, {BF1}")
        k.vm_wait("own")
        for j in range(4):
            r0, r1 = OWN + j, OWN + 4 + j
            k(f"v_dot2_f32_bf16 v{a}, v{OWN+12}, v{r0}, {'0' if j == 0 else f'v{a}'}")
            k(f"v_dot2_f32_bf16 v{c}, v{OWN+12}, v{r1}, {'0' if j == 0 else f'v{c}'}")
            k(f"v_dot2_f32_bf16 v{b}, v{r0}, v{r0}, {'0' if j == 0 else f'v{b}'}")
            k(f"v_dot2_f32_bf16 v{d}, v{r1}, v{r1}, {'0' if j == 0 else f'v{d}'}")
        k(f"""
        s_waitcnt lgkmcnt(0)
        s_mul_i32 s{sTAG}, s{sEP}, 0x9E3779B1
        s_add_u32 s{sTAG}, s{sTAG}, 0x7F4A7C15
        s_add_u32 s{sT8}, s{sEP}, 1
        s_and_b32 s{sT8}, s{sT8}, 0xff
        v_permlane32_swap_b32 v{a}, v{c}
        v_permlane32_swap_b32 v{b}, v{d}
        v_add_f32 v{a}, v{a}, v{c}
        v_add_f32 v{b}, v{b}, v{d}
        v_mov_b32 v{c}, v{a}
        v_mov_b32 v{d}, v{b}
        s_nop 1
        v_permlane16_swap_b32 v{a}, v{c}
        v_permlane16_swap_b32 v{b}, v{d}
        v_add_f32 v{a}, v{a}, v{c}
        v_add_f32 v{b}, v{b}, v{d}
        """)
        for sh in (8, 4, 2, 1):
            k("s_nop 0")
            k(f"v_add_f32_dpp v{a}, v{a}, v{a} row_ror:{sh} row_mask:0xf bank_mask:0xf")
            k(f"v_add_f32_dpp v{b}, v{b}, v{b} row_ror:{sh} row_mask:0xf bank_mask:0xf")
        k(f"""
        v_mul_f32 v{a}, 0xbb000000, v{a}
        v_mul_f32 v{b}, 0x3b000000, v{b}
        v_fma_f32 v{b}, -v{a}, v{a}, v{b}
        v_max_f32 v{b}, 0, v{b}
        v_add_f32 v{b}, 0x3727c5ac, v{b}
        v_rsq_f32 v{b}, v{b}
        v_mov_b32 v{c}, s{sTAG}
        v_lshrrev_b32 v{vT3}, 1, v{vLANE}
        s_lshl4_add_u32 s{sT2}, s{sW}, s{sC}
        s_lshl_b32 s{sT2}, s{sT2}, 7
        s_add_u32 s{sT2}, s{sT2}, s{sGB}
        s_add_u32 s{sT2}, s{sT2}, {G_ST0}
        s_mov_b32 exec_lo, 1
        s_mov_b32 exec_hi, 1
        """)
        k.vmem(f"buffer_store_dwordx4 {vr(a,4)}, v{vT3}, {srd(S_WS)}, s{sT2} offen sc1", "ownst")
        k("s_mov_b64 exec, -1")

    S0 = vACC + 52

    def st0_issue():
        with k.atomic():
            k(f"v_and_b32 v{vT0}, 30, v{vLANE}")
            k(f"v_lshlrev_b32 v{vT0}, 6, v{vT0}")
            k(f"v_and_b32 v{vT1}, 16, v{vL16}")
            k(f"v_add_u32 v{vT0}, v{vT0}, v{vT1}")
            k(f"s_add_u32 s{sT4}, s{sSTg}, {G_ST0}")
            k.vmem(f"buffer_load_dwordx4 {vr(S0,4)}, v{vT0}, {srd(S_WS)}, s{sT4} offen sc1", "st0")

    def st0_use():
        lp, ok = k.label("L_s0"), k.label("L_s0ok")
        with k.atomic():
            k.vm_wait("st0")
            k(f"{lp}:")
            k(f"v_cmp_ne_u32 vcc, s{sTAG}, v{S0+2}")
            k(f"s_cbranch_vccz {ok}")
            k(f"buffer_load_dwordx4 {vr(S0,4)}, v{vT0}, {srd(S_WS)}, s{sT4} offen sc1")
            k("s_waitcnt vmcnt(0)")
            k(f"s_sub_u32 s{sBUD}, s{sBUD}, 1")
            k(f"s_cbranch_scc0 {lp}")
            k(f"s_mov_b32 s{sBUD}, 0")
            k(f"{ok}:")
        k.get(vT0, cSTA)
        k(f"v_and_b32 v{vT1}, 16, v{vLANE}")
        k(f"v_lshl_add_u32 v{vT1}, v{vT1}, 2, v{vT0}")
        k.lds(f"ds_write2_b32 v{vT1}, v{S0}, v{S0+1} offset0:0 offset1:32")
        k.lds(f"ds_read2_b32 {vr(NM_A,2)}, v{vT0} offset0:0 offset1:16", "sta")
        k.lds(f"ds_read2_b32 {vr(RS_A,2)}, v{vT0} offset0:32 offset1:48", "sta")

    def stats_finalize(need_rs):
        k.get(vT1, cSTW)
        k.get(vT0, cSTA)
        k(f"""
        v_permlane32_swap_b32 v{SUM0}, v{SUM1}
        v_permlane32_swap_b32 v{SQ0}, v{SQ1}
        v_add_f32 v{SUM0}, v{SUM0}, v{SUM1}
        v_add_f32 v{SQ0}, v{SQ0}, v{SQ1}
        v_mov_b32 v{SUM1}, v{SUM0}
        v_mov_b32 v{SQ1}, v{SQ0}
        s_nop 0
        v_permlane16_swap_b32 v{SUM0}, v{SUM1}
        v_permlane16_swap_b32 v{SQ0}, v{SQ1}
        v_add_f32 v{SUM0}, v{SUM0}, v{SUM1}
        v_add_f32 v{SQ0}, v{SQ0}, v{SQ1}
        v_mul_f32 v{SUM0}, 0xbb000000, v{SUM0}
        v_mul_f32 v{SQ0}, 0x3b000000, v{SQ0}
        v_fma_f32 v{SQ0}, -v{SUM0}, v{SUM0}, v{SQ0}
        v_max_f32 v{SQ0}, 0, v{SQ0}
        v_add_f32 v{SQ0}, 0x3727c5ac, v{SQ0}
        v_rsq_f32 v{SQ0}, v{SQ0}
        s_nop 0
        """)
        k.lds(f"ds_write2_b32 v{vT1}, v{SUM0}, v{SQ0} offset0:0 offset1:32")
        k.lds(f"ds_read2_b32 {vr(NM_A,2)}, v{vT0} offset0:0 offset1:16", "sta")
        if need_rs:
            k.lds(f"ds_read2_b32 {vr(RS_A,2)}, v{vT0} offset0:32 offset1:48", "sta")

    def stats_b():
        k.get(vT1, cSTB)
        for rb in range(2):
            k.lds(f"ds_read_b128 {vr(NM_B+4*rb,4)}, v{vT1} offset:{64*rb}", "sta")
            k.lds(f"ds_read_b128 {vr(RS_B+4*rb,4)}, v{vT1} offset:{128+64*rb}", "sta")

    def stats_scale():
        k.ds_wait("sta")
        for j in range(8):
            k(f"v_mul_f32 v{RL_B+j}, 0x3fb8aa3b, v{RS_B+j}")
        for j in range(2):
            k(f"v_mul_f32 v{RL_A+j}, 0x3fb8aa3b, v{RS_A+j}")

    def set_ones(r):
        for j in range(4):
            k(f"v_mov_b32 v{r+j}, {BF1}")

    def cs_put(first, sblk):
        k.get(vT0, cCSA)
        k(f"s_lshl_b32 s{sT5}, s{sblk}, 6")
        k(f"v_add_u32 v{vT0}, s{sT5}, v{vT0}")
        k.lds(f"ds_write_b32 v{vT0}, a{aCS} offset:{first*64}")

    def phi_block(acc, nm, cs, rl, rs, dst, tmp, lay):
        s1, s2, s3, s4, s5 = [], [], [], [], []
        for p in range(2):
            a2 = vr(acc + 2*p, 2)
            t2 = vr(tmp + 2*p, 2)
            if lay == "b":
                c2, m = bcast(cs, 1, 3)
                s1.append(f"v_pk_fma_f32 {a2}, {vr(nm+2*p,2)}, {c2}, {a2}{m}")
                s2.append(f"v_pk_mul_f32 {t2}, {a2}, {vr(rl+2*p,2)}")
                s4.append(f"v_pk_fma_f32 {a2}, {a2}, {vr(rs+2*p,2)}, {t2}")
            else:
                c2, m = bcast(nm, 1, 3)
                s1.append(f"v_pk_fma_f32 {a2}, {vr(cs+2*p,2)}, {c2}, {a2}{m}")
                c2, m = bcast(rl, 1, 2)
                s2.append(f"v_pk_mul_f32 {t2}, {a2}, {c2}{m}")
                c2, m = bcast(rs, 1, 3)
                s4.append(f"v_pk_fma_f32 {a2}, {a2}, {c2}, {t2}{m}")
            for j in range(2):
                s3.append(f"v_exp_f32 v{tmp+2*p+j}, v{tmp+2*p+j} clamp")
            s5.append(f"v_pk_add_f32 {a2}, {a2}, s[{sEPS}:{sEPS+1}]")
        for s in s1 + s2 + s3:
            k(s)
        for j in range(4):
            k(f"v_max_f32 v{acc+j}, 0, v{acc+j}")
        for s in s4 + s5:
            k(s)
        for p in range(2):
            k(f"v_cvt_pk_bf16_f32 v{dst+p}, v{acc+2*p}, v{acc+2*p+1}")

    def ring(ks, rb):
        return vACT + 8 * (ks % 6) + 4 * rb
    QA, vPARK = vACT + 48, vACT + 64

    def act_loads(bufoff, act=act):
        for ks in range(16):
            for rb in range(2):
                with k.atomic():
                    if ks % 4 == 0:
                        k(f"s_add_u32 s{sT2+rb}, s{sACT+rb}, {bufoff + ks*1024}")
                    k.vmem(f"buffer_load_dwordx4 {vr(act(ks,rb),4)}, v{vL16}, {srd(S_WS)}, s{sT2+rb} offen offset:{(ks%4)*1024} sc1",
                           ("act", ks, rb))

    def stat_loads(stoff):
        k(f"s_add_u32 s{sT4}, s{sSTg}, {stoff}")
        for j in range(2):
            k.vmem(f"buffer_load_dwordx4 {vr(STG+4*j,4)}, v{vL16}, {srd(S_WS)}, s{sT4} offen offset:{j*1024} sc1", "stg")

    def stat_sum():
        k.vm_wait("stg")
        for j in range(4):
            k(f"v_add_f32 v{SUM0+j}, v{STG+j}, v{STG+4+j}")

    def mf2(acc, ks, sw, wait, first=None, act=act):
        return [(acc + 4 * rb, act(ks, rb), sw, (ks == 0) if first is None else first,
                 (("act", ks, 1) if ks else ("act", ks, rb)) if wait else None) for rb in range(2)]

    def wo_raw():
        with k.atomic():
            quad_lane(1024)
            k(f"s_lshl_b32 s{sD0}, s{sW}, 17")
            k(f"s_lshl_b32 s{sD1}, s{sCT}, 7")
            k(f"s_add_u32 s{sD0}, s{sD0}, s{sD1}")
            k(f"s_lshl_b32 s{sL0}, s{sW}, 14")
        for j in range(16):
            k.dma(S_WO, vDM, sD0, j * 8 * 1024, sL0, R0 + j * 1024, "wo")

    def w1c1_raw():
        with k.atomic():
            quad_lane(3584, tmp=vACT + 127)
            k(f"s_lshr_b32 s{sD0}, s{sC}, 2")
            k(f"s_mul_i32 s{sD0}, s{sD0}, 896")
            k(f"s_and_b32 s{sD1}, s{sC}, 3")
            k(f"s_lshl_b32 s{sD1}, s{sD1}, 7")
            k(f"s_add_u32 s{sD0}, s{sD0}, s{sD1}")
            k(f"s_mul_i32 s{sD1}, s{sW}, {64*3584}")
            k(f"s_add_u32 s{sD0}, s{sD0}, s{sD1}")
            k(f"s_lshl_b32 s{sL0}, s{sW}, 13")
        for half in range(2):
            for j in range(8):
                k.dma(S_W1, vDM, sD0, (half * 256 + j * 8) * 3584, sL0, R1 + half * 32768 + j * 1024, "w1a")

    def lin_dma(src, dst, n, tag, shared=False):
        for j in range(n):
            with k.atomic():
                if j == 0:
                    k(f"s_mul_i32 s{sL0}, s{sW}, {n*1024}")
                    k(f"s_add_u32 s{sD0}, s{sL0}, s{sPKB}")
                    if shared:
                        k(f"s_mul_i32 s{sD1}, s{sDH}, {8*PK_SZ}")
                        k(f"s_sub_u32 s{sD0}, s{sD0}, s{sD1}")
                if j % 4 == 0:
                    k(f"s_add_u32 m0, s{sL0}, {dst + j*1024}")
                    k(f"s_add_u32 s{sD1}, s{sD0}, {src + j*1024}")
                k.vmem(f"buffer_load_dwordx4 v{vL16}, {srd(S_WS)}, s{sD1} offen offset:{(j%4)*1024} sc1 lds", tag)

    def publish_x(bufoff, stoff, floff, pay_sc1):
        k(f"s_add_u32 s{sT1}, s{sTILE}, {bufoff}")
        k.stores([f"buffer_store_dwordx4 {vr(vRES+4*s,4)}, v{vL16}, {srd(S_WS)}, s{sT1} offen offset:{s*1024}" for s in range(2)], pay_sc1)
        a, b, c, d = vT0, vT1, vT2, vT3
        for j in range(4):
            r0, r1 = vRES + j, vRES + 4 + j
            if j == 0:
                k(f"v_mov_b32 v{vWB+9}, {BF1}")
                k(f"v_dot2_f32_bf16 v{b}, v{r0}, v{r0}, 0")
                k(f"v_dot2_f32_bf16 v{d}, v{r1}, v{r1}, 0")
                k(f"v_dot2_f32_bf16 v{a}, v{vWB+9}, v{r0}, 0")
                k(f"v_dot2_f32_bf16 v{c}, v{vWB+9}, v{r1}, 0")
            else:
                k(f"v_dot2_f32_bf16 v{b}, v{r0}, v{r0}, v{b}")
                k(f"v_dot2_f32_bf16 v{d}, v{r1}, v{r1}, v{d}")
                k(f"v_dot2_f32_bf16 v{a}, v{vWB+9}, v{r0}, v{a}")
                k(f"v_dot2_f32_bf16 v{c}, v{vWB+9}, v{r1}, v{c}")
        k.get(vWB + 8, cSTO)
        k(f"""
        s_add_u32 s{sT3}, s{sSTo}, {stoff}
        v_add_f32 v{b}, v{b}, v{d}
        v_add_f32 v{a}, v{a}, v{c}
        s_nop 1
        v_permlane16_swap_b32 v{a}, v{b}
        v_add_f32 v{a}, v{a}, v{b}
        v_mov_b32 v{b}, v{a}
        s_nop 1
        v_permlane32_swap_b32 v{a}, v{b}
        v_add_f32 v{c}, v{a}, v{b}
        s_mov_b32 exec_hi, 0
        """)
        k.stores([f"buffer_store_dword v{c}, v{vWB+8}, {srd(S_WS)}, s{sT3} offen"], False)
        k("s_mov_b64 exec, -1")
        k.poll_prep(15)

    def unpack_res(dst):
        for f in range(4):
            for p in range(2):
                r = vRES + 2*f + p
                k(f"v_lshlrev_b32 v{dst+4*f+2*p}, 16, v{r}")
                k(f"v_and_b32 v{dst+4*f+2*p+1}, 0xffff0000, v{r}")

    def misc_l1():
        k(f"""
        s_add_u32 s{sT2}, s{sTAG}, s{sXCC}
        s_add_u32 s{sT2}, s{sT2}, 2
        v_mov_b32 v{vT1}, s{sT2}
        s_lshl4_add_u32 s{sT2}, s{sG}, s{sC}
        s_lshl_b32 s{sT2}, s{sT2}, 7
        s_add_u32 s{sT2}, s{sT2}, {WS_XID}
        """)
        with k.atomic():
            k(f"s_cmp_lg_u32 s{sW}, 0")
            k(f"s_cselect_b32 s{sT2}, {OOB}, s{sT2}")
            k("s_mov_b64 exec, 1")
            k.vmem(f"buffer_store_dword v{vT1}, v{vL16}, {srd(S_WS)}, s{sT2} offen sc1", "xid")
            k("s_mov_b64 exec, -1")

    def res_load():
        k.get(vT0, cOUT)
        for s_ in range(2):
            k.vmem(f"buffer_load_dwordx4 {vr(vRES+4*s_,4)}, v{vT0}, {srd(S_X)}, 0 offen offset:{64*s_}", "res")

    def touch(kind, vSP=vSP):
        with k.atomic():
            k(f"s_lshl2_add_u32 s{sD3}, s{sC}, s{sW}")
            sD2 = sD3
            if kind == "h":
                k(f"s_mul_i32 s{sD2}, s{sD2}, 7168")
                k(f"s_add_u32 s{sD2}, s{sD2}, s{sGB}")
                k(f"s_add_u32 s{sD2}, s{sD2}, {G_H}")
                k(f"v_lshlrev_b32 v{vSP}, 7, v{vLANE}")
                k("s_mov_b32 exec_hi, 0xffffff")
                k.vmem(f"buffer_load_dword a{aDUM}, v{vSP}, {srd(S_WS)}, s{sD2} offen sc1", "touch")
                k("s_mov_b32 exec_hi, -1")
            else:
                k(f"v_lshlrev_b32 v{vSP}, 7, v{vLANE}")
                k(f"s_lshl_b32 s{sT5}, s{sD2}, 11")
                k(f"s_add_u32 s{sT5}, s{sT5}, s{sGB}")
                k(f"s_add_u32 s{sT5}, s{sT5}, {G_X1}")
                k("s_mov_b64 exec, 0xffff")
                k.vmem(f"buffer_load_dword a{aDUM}, v{vSP}, {srd(S_WS)}, s{sT5} offen sc1", "touch")
                k(f"s_lshl_b32 s{sD2}, s{sD2}, 7")
                k(f"s_add_u32 s{sD2}, s{sD2}, s{sGB}")
                k("s_mov_b64 exec, 1")
                k(f"s_add_u32 s{sD2}, s{sD2}, {G_ST1}")
                k.vmem(f"buffer_load_dword a{aDUM}, v{vSP}, {srd(S_WS)}, s{sD2} offen sc1", "touch")
                k("s_mov_b64 exec, -1")

    def touch_early(mode):
        with k.atomic():
            k(f"s_lshl2_add_u32 s{sJ0}, s{sC}, s{sW}")
            vT3 = vACT + 126
            k(f"v_lshlrev_b32 v{vT3}, 7, v{vLANE}")
            if mode & 1:
                k(f"s_lshl_b32 s{sT5}, s{sJ0}, 11")
                k(f"s_add_u32 s{sT5}, s{sT5}, s{sGB}")
                k(f"s_add_u32 s{sT5}, s{sT5}, {G_X1}")
                k("s_mov_b64 exec, 0xffff")
                k.vmem(f"buffer_load_dword a{aDUM}, v{vT3}, {srd(S_WS)}, s{sT5} offen sc1", "touch")
            if mode & 6:
                n, first = {2: (16, 0), 4: (8, 16), 6: (24, 0)}[mode & 6]
                k(f"s_lshr_b32 s{sT5}, s{sJ0}, 3")
                k(f"s_mul_i32 s{sT5}, s{sT5}, 57344")
                k(f"s_and_b32 s{sJ0}, s{sJ0}, 7")
                k(f"s_mul_i32 s{sJ0}, s{sJ0}, {n*128}")
                k(f"s_add_u32 s{sT5}, s{sT5}, s{sJ0}")
                k(f"s_add_u32 s{sT5}, s{sT5}, s{sGB}")
                k(f"s_add_u32 s{sT5}, s{sT5}, {G_H + first*1024}")
                k(f"s_mov_b64 exec, {(1 << n) - 1}")
                k.vmem(f"buffer_load_dword a{aDUM}, v{vT3}, {srd(S_WS)}, s{sT5} offen sc1", "touch")
            k("s_mov_b64 exec, -1")

    def packN_issue():
        with k.atomic():
            quad_lane(1024)
            k(f"""
            s_movk_i32 s{sD2}, 8192
            s_lshl_b32 s{sD0}, s{sG}, 15
            s_lshl_b32 s{sD1}, s{sCT}, 7
            s_add_u32 s{sD0}, s{sD0}, s{sD1}
            s_lshl_b32 s{sPDA}, s{sG}, 12
            s_add_u32 s{sPDA}, s{sPDA}, s{sPKB}
            s_add_u32 s{sPDA}, s{sPDA}, {PK_WO}
            s_lshl2_add_u32 s{sD1}, s{sDH}, s{sW}
            s_cmp_lg_u32 s{sD1}, 3
            s_cbranch_scc1 L_nskip
            """)
            for j in range(4):
                dma_raw(S_WO, j * 1024, j == 0)
            k("L_nskip:")

    def packN_finish(T):
        k(f"s_lshl2_add_u32 s{sD1}, s{sDH}, s{sW}")
        k(f"s_cmp_lg_u32 s{sD1}, 3")
        k("s_cbranch_scc1 L_nfskip")
        for f in range(4):
            k(f"v_add_u32 v{T+16+f}, {L_XST + 3*16384}, v{vQ0+f}")
        for f in range(4):
            for hh in range(2):
                k(f"ds_read_b64_tr_b16 {vr(T+4*f+2*hh,2)}, v{T+16+f} offset:{hh*2048}")
        k("s_waitcnt lgkmcnt(0)")
        for f in range(4):
            k(f"buffer_store_dwordx4 {vr(T+4*f,4)}, v{vL16}, {srd(S_WS)}, s{sPDA} offen offset:{f*1024} sc1")
        k("L_nfskip:")

    def pack_finish(T, base, shift, quad_if_3, tag="pk", sPDA=sPDA):
        lb, le = k.label("L_qb"), k.label("L_qe")
        k(f"s_lshl_b32 s{sT5}, s{sW}, {shift}")
        k(f"s_add_u32 s{sT5}, s{sT5}, {base}")
        k.vm_wait(tag)
        k.ds_all()
        k(f"s_cmp_eq_u32 s{sW}, 3")
        k(f"s_cbranch_scc{0 if quad_if_3 else 1} {lb}")
        for f in range(4):
            k(f"v_add_u32 v{T+16+f}, s{sT5}, v{vQ0+f}")
        for f in range(4):
            for hh in range(2):
                k(f"ds_read_b64_tr_b16 {vr(T+4*f+2*hh,2)}, v{T+16+f} offset:{hh*2048}")
        k("s_waitcnt lgkmcnt(0)")
        for f in range(4):
            k(f"buffer_store_dwordx4 {vr(T+4*f,4)}, v{vL16}, {srd(S_WS)}, s{sPDA} offen offset:{f*1024} sc1")
        k(f"s_branch {le}")
        k(f"{lb}:")
        k(f"v_add_u32 v{T+16}, s{sT5}, v{vTR0}")
        k(f"v_add_u32 v{T+17}, s{sT5}, v{vTR1}")
        k(f"v_lshl_add_u32 v{T+18}, v{vLANE}, 3, s{sT5}")
        for f in range(2):
            for hh in range(2):
                k(f"ds_read_b64_tr_b16 {vr(T+4*f+2*hh,2)}, v{T+16+f} offset:{hh*1024}")
        nf = 2 if quad_if_3 else 3
        if nf == 3:
            for hh in range(2):
                k(f"ds_read_b64_tr_b16 {vr(T+8+2*hh,2)}, v{T+18} offset:{2048+hh*512}")
        k("s_waitcnt lgkmcnt(0)")
        for f in range(nf):
            k(f"buffer_store_dwordx4 {vr(T+4*f,4)}, v{vL16}, {srd(S_WS)}, s{sPDA} offen offset:{f*1024} sc1")
        if nf == 3:
            k(f"buffer_load_dword a{aDUM}, v{vL16}, {srd(S_W1)}, s{S_W1+2} offen")
            nf = 4
        k(f"{le}:")
        k.vm_note(nf, "pst")

    def pack_flag(off=0):
        k(f"""
        s_lshl_b32 s{sT5}, s2, 7
        s_add_u32 s{sT5}, s{sT5}, {WS_PD + off}
        s_cmp_lg_u32 s{sW}, 0
        s_cselect_b32 s{sT5}, {OOB}, s{sT5}
        v_mov_b32 v{vT1}, s{sTAG}
        s_mov_b64 exec, 1
        """)
        k.vmem(f"buffer_store_dword v{vT1}, v{vL16}, {srd(S_WS)}, s{sT5} offen sc1")
        k("s_mov_b64 exec, -1")

    def pack_check_issue(off, va, vd, sb):
        with k.atomic():
            k(f"v_and_b32 v{va}, 1, v{vLANE}")
            k(f"v_lshlrev_b32 v{va}, 7, v{va}")
            k(f"v_lshrrev_b32 v{vd}, 1, v{vLANE}")
            k(f"s_lshl_b32 s{sT5}, s{sCT if off else sC}, 3")
            k(f"v_add3_u32 v{va}, v{va}, v{vd}, s{sT5}")
            k(f"v_min_u32 v{vd}, 29, v{vLANE}")
            k(f"s_mul_i32 s{sT5}, s{sW}, 56")
            k(f"s_lshr_b32 s{sb}, s{sCT}, 1")
            k(f"s_add_u32 s{sT5}, s{sT5}, s{sb}")
            k(f"s_sub_u32 s{sT5}, s{sT5}, 64")
            k(f"v_lshl_add_u32 v{vd}, v{vd}, 2, s{sT5}")
            k(f"v_cmp_gt_u32 vcc, 16, v{vLANE}")
            k(f"s_mov_b32 s{sb}, {WS_PD + off}")
            k("s_nop 0")
            k(f"v_cndmask_b32 v{va}, v{vd}, v{va}, vcc")
            k(f"v_lshlrev_b32 v{va}, 7, v{va}")
            k.vmem(f"buffer_load_dword v{vd}, v{va}, {srd(S_WS)}, s{sb} offen sc1", "pc")

    def pack_check(va, vd, sb):
        lp, ok = k.label("L_pc"), k.label("L_pcok")
        with k.atomic():
            k.vm_wait("pc")
            k(f"{lp}:")
            k(f"v_cmp_ne_u32 vcc, s{sTAG}, v{vd}")
            k(f"s_cbranch_vccz {ok}")
            k(f"buffer_load_dword v{vd}, v{va}, {srd(S_WS)}, s{sb} offen sc1")
            k("s_waitcnt vmcnt(0)")
            k(f"s_sub_u32 s{sBUD}, s{sBUD}, 1")
            k(f"s_cbranch_scc0 {lp}")
            k(f"s_mov_b32 s{sBUD}, 0")
            k(f"{ok}:")

    aPK = 128

    def park_addr(va, base, shift):
        k(f"v_bfe_u32 v{va}, v{vLANE}, 4, 1")
        k(f"v_lshlrev_b32 v{va}, 10, v{va}")
        k(f"v_lshrrev_b32 v{va+1}, 5, v{vLANE}")
        k(f"v_mul_u32_u24 v{va+1}, 0x120, v{va+1}")
        k(f"v_add_u32 v{va}, v{va}, v{va+1}")
        k(f"v_and_b32 v{va+1}, 0xd8, v{vTR0}")
        k(f"s_lshl_b32 s{sT5}, s{sW}, {shift}")
        k(f"s_add_u32 s{sT5}, s{sT5}, {base}")
        k(f"v_add3_u32 v{va}, v{va}, v{va+1}, s{sT5}")
        k(f"v_xor_b32 v{va+1}, 32, v{va}")

    def park_kv(va):
        for r in range(4):
            for blk in range(4):
                for hh in range(2):
                    k.lds(f"ds_read_b64_tr_b16 {ar(aPK + 16*r + 4*blk + 2*hh, 2)}, v{va + (blk & 1)} offset:{r*16384 + (blk >> 1)*2048 + hh*512}")

    def park_q(va):
        for r in range(4):
            for b in range(2):
                for hh in range(2):
                    k.lds(f"ds_read_b64_tr_b16 {ar(aPK + 64 + 8*r + 4*b + 2*hh, 2)}, v{va + b} offset:{r*8192 + hh*512}")

    def unpark(va):
        with k.atomic():
            k(f"s_lshr_b32 s{sD0}, s{sC}, 1")
            k(f"s_xor_b32 s{sD0}, s{sD0}, s{sG}")
            k(f"s_and_b32 s{sD0}, s{sD0}, 1")
            k(f"s_and_b32 s{sD1}, s{sC}, 1")
            k(f"s_lshl1_add_u32 s{sD0}, s{sD0}, s{sD1}")
        for kind in range(2):
            for r in range(4):
                for b in range(2 if kind else 4):
                    with k.atomic():
                        if b == 0:
                            k(f"s_add_u32 s{sD1}, s{sD0}, {r}")
                            k(f"s_and_b32 s{sD1}, s{sD1}, 3")
                            k(f"s_lshl2_add_u32 s{sD1}, s{sD1}, s{sW}")
                            k(f"s_lshl_b32 s{sD1}, s{sD1}, {11 if kind else 12}")
                            if kind:
                                k(f"s_add_u32 s{sD1}, s{sD1}, {R1}")
                            k(f"v_add_u32 v{va}, s{sD1}, v{vL16}")
                        j = 16 + 2 * r + b if kind else 4 * r + b
                        k.lds(f"ds_write_b128 v{va}, {ar(aPK + 4*j, 4)} offset:{b*1024}", ("up", j // 4))

    def wq_raw():
        k(f"s_lshl_b32 s{sL1}, s{sW}, 11")
        with k.atomic():
            k(f"v_and_b32 v{vT2}, 3, v{vP}")
            k(f"v_lshrrev_b32 v{vDM}, 4, v{vLANE}")
            k(f"v_lshl_add_u32 v{vT2}, v{vDM}, 3, v{vT2}")
            k(f"s_movk_i32 s{sD3}, 3072")
            k(f"v_mad_u32_u24 v{vDM}, v{vT2}, s{sD3}, v{vCH}")
        for r in range(4):
            for hh in range(2):
                k.dma(S_WQKV, vDM, sRB + r, hh * 4 * 3072, sL1, R1 + r * 8192 + hh * 1024, "wq")

    def async_check(tag, soff, imm):
        ok = k.label("L_aok")
        with k.atomic():
            k.vm_wait(tag)
            k(f"v_cmp_ne_u32 vcc, s{sTAG}, v{vT0}")
            k(f"s_cbranch_vccz {ok}")
            k.save_vm()
            k.poll(soff, imm, False)
            k.restore_vm()
            k(f"{ok}:")

    CSK = vT0
    gA = None
    for layer in range(1 if o.get("one") else 2):
        L1 = layer == 0
        sc = o.get("sc1", 0x05)
        psc = lambda i: bool(sc >> (4 * layer + i) & 1)
        PRE = o.get("pre", 8)

        def w2t_loads():
            for j in range(56):
                with k.atomic():
                    if j == 0:
                        k(f"s_lshl2_add_u32 s{sPDB}, s{sCT}, s{sW}")
                        k(f"s_mul_i32 s{sPDB}, s{sPDB}, 57344")
                        k(f"s_add_u32 s{sPDB}, s{sPDB}, {WS_W2T}")
                    if j % 4 == 0:
                        k(f"s_add_u32 s{sJ0}, s{sPDB}, {j*1024}")
                    k.vmem(f"buffer_load_dwordx4 {ar(4*j,4)}, v{vL16}, {srd(S_WS)}, s{sJ0} offen offset:{(j%4)*1024} sc1", ("w2t", j // 4))

        w2 = k.rec(w2t_loads) if L1 else []

        def takew2(name, dflt):
            nonlocal w2
            n = min(o.get(name, dflt), len(w2) - 24) if L1 else 0
            r, w2 = w2[:n], w2[n:]
            return r

        def kv_consts():
            k.get(vPQ, cCSA)
            k.lds(f"ds_read2_b32 {vr(CSK,2)}, v{vPQ} offset0:0 offset1:16", "cs")
            k.lds(f"ds_read2_b32 {vr(CSK+2,2)}, v{vPQ} offset0:32 offset1:48", "cs")
        if L1:
            CSA = vACC + 32
            k(f"s_and_b32 s{sT0}, s{sW}, 1")
            k(f"s_lshl_b32 s{sT0}, s{sT0}, 5")
            k(f"v_xor_b32 v{vPQ+3}, s{sT0}, v{vTR0}")
            k(f"s_lshr_b32 s{sT0}, s{sW}, 1")
            k(f"s_lshl_b32 s{sT0}, s{sT0}, 11")
            k(f"v_add_u32 v{vPQ+2}, s{sT0}, v{vPQ+3}")
            own_stats()
            if o.get("pads", 0):
                k("PADCALL")
            xslot(0); xslot(1, range(o.get("x1pre", 4)))
            if UF == 1:
                pack_finish(vACT + 64, R1, 12, False, "pu", sPDB)
            xread(0)
            def rnd_begin(r):
                k.vm_wait(("wkv", r))
                k.barrier(True)
                fr = []
                for ks in range(4 * r, 4 * r + 4):
                    fr.append(dict(addr=vPQ + 2, offs=(R0 + ks * 4096, R0 + ks * 4096 + 1024), mf=[(None, None, False, ks == 0, None)]))
                for ks in range(4 * r, 4 * r + 4):
                    for pr in range(2):
                        for b in range(2):
                            base = R0 + ks * 4096 + pr * 2048
                            fr.append(dict(addr=(vTR0, vTR1)[b], offs=(base, base + 1024), mf=mf2(vACC + 16 * pr + 8 * b, ks, False, False)))
                return k.gemm_begin(fr)
            wq = k.rec(wq_raw)
            xslot(1, range(o.get("x1pre", 4), 8))
            g = rnd_begin(0)
            k.stamp("x0")
            f = {}; spread(f, k.rec(lambda: (wkv_raw(1), xslot(2))), 0, 3); spread(f, k.rec(lambda: xread(1)), 30, 1, 2); k.gemm_run(g, f)
            k.stamp("r0")
            g = rnd_begin(1)
            f = {}
            if UF == 1:
                spread(f, k.rec(pack_flag), 1, 0)
            spread(f, k.rec(lambda: (wkv_raw(2), xslot(3))), 0, 3); spread(f, k.rec(lambda: xread(2)), 31, 1, 2); k.gemm_run(g, f)
            k.stamp("r1")
            g = rnd_begin(2)
            nq = o.get("nq", 6)
            if UF == 2:
                pu_ = k.rec(lambda: packU_issue(L_XST + 4096, sD0, sD1, sD2, sD3, sJ0, vDM, sPDB, 14))
                wq = pu_ + wq if o.get("pufirst", 1) else wq + pu_
            f = {}; spread(f, k.rec(lambda: (wkv_raw(3), st0_issue())) + wq[:nq], 0, 3); spread(f, k.rec(lambda: xread(3)), 31, 1, 2); k.gemm_run(g, f)
            k.stamp("r2")
            g = rnd_begin(3)
            f = {}
            spread(f, k.rec(st0_use), 0, 1)
            spread(f, k.rec(lambda: cs_put(0, sW)), 8, 0)
            spread(f, k.rec(stats_b), 10, 1)
            spread(f, k.rec(stats_scale), 24, 1)
            spread(f, k.rec(lambda: park_addr(vRES + 2, R0, 12)), 15, 0)
            pn = k.rec(lambda: (packN_issue(), k.vmem(f"buffer_load_dword a{aDUM}, v{vL16}, {srd(S_W1)}, s{S_W1+2} offen", "pn")))
            pci = k.rec(lambda: pack_check_issue(0, vRES, vRES + 1, sPDB)) if UF == 1 else []
            if o.get("w2e", 8):
                spread(f, wq[nq:] + pci, 1, o.get("r3s", 5))
            else:
                spread(f, wq[nq:] + pn + pci, 1, o.get("r3s", 5))
            bg = k.rec(misc_l1)
            k.gemm_run(g, f)
            k.stamp("A.kv")
            k.barrier()
            kv_consts()
        else:
            k.poll(sFXp, G_FX2)
            k.stamp("A.poll")
            al = k.rec(lambda: act_loads(G_X2, ring))
            PA = o.get("prea", 6)
            k.play(al[:PA])
            k(f"s_add_u32 s{sTAG}, s{sTAG}, 1")
            fill = {}
            sl = k.rec(lambda: stat_loads(G_ST2))
            e = spread(fill, al[PA:12] + [lambda: k.play(sl[:2]), sl[2]], 0, 4)
            for i_ in range(12, 32):
                pos = max(12 * (i_ // 2 - 6) + 11 + 6 * (i_ & 1), e)
                spread(fill, [al[i_]], pos, 1)
                e = pos + 3
            e2 = spread(fill, k.rec(lambda: (stat_sum(), stats_finalize(True), stats_b())), 70, 1.5)
            e2 = spread(fill, k.rec(stats_scale), e2 + 6, 1.5)
            spread(fill, k.rec(kv_consts), e2, 1.5)
            spread(fill, k.rec(lambda: lin_dma(PK_WO + 32768, R2, 8, "wo", True)), e, o.get("wos", 6))
            QL = o.get("qlag", 0)
            if QL:
                pe = k.rec(lambda: (k.ds_wait("cs"), [phi_block(vACC + 4*rb, NM_B + 4*rb, CSK, RL_B + 4*rb, RS_B + 4*rb, vPQ + 2*rb, vACT + 40, "b") for rb in range(2)]))
                spread(fill, pe, 192 - 4 * QL, 4 * QL / len(pe))
            k.gemm_run(gA, fill)
            k.stamp("A.kv")
            k("s_barrier")
            bg = []
        k("s_nop 2")
        k.get(vWB + 22, cKW1 if L1 else cKW)
        k.get(vWB + 23, cKR1 if L1 else cKR)
        k.ds_all()
        PK, PV, TMP = vPQ, vACC, vWB + 24
        KVA = vACC + 16

        def kv_epi():
            for h in range(1 if (not L1 and o.get("qlag", 0)) else 0, 2):
                for rb in range(2):
                    phi_block(vACC + 8*h + 4*rb, NM_B + 4*rb, CSK + h, RL_B + 4*rb, RS_B + 4*rb, PK + 4*h + 2*rb, TMP, "b")
            for h in range(2):
                for rb in range(2):
                    a = vACC + 16 + 8*h + 4*rb
                    c2, m = bcast(CSK + 2 + h, 1, 3)
                    for p in range(2):
                        k(f"v_pk_fma_f32 {vr(a+2*p,2)}, {vr(NM_B+4*rb+2*p,2)}, {c2}, {vr(a+2*p,2)}{m}")
                    for p in range(2):
                        k(f"v_pk_mul_f32 {vr(a+2*p,2)}, {vr(a+2*p,2)}, {vr(RS_B+4*rb+2*p,2)}")
                    for p in range(2):
                        k(f"v_cvt_pk_bf16_f32 v{PV+4*h+2*rb+p}, v{a+2*p}, v{a+2*p+1}")
                    if rb == 0:
                        k(f"v_mfma_f32_16x16x32_bf16 {vr(vACC+8+4*h,4)}, {vr(PK+4*h,4)}, {ar(aONES,4)}, 0")
                if h == 0:
                    pass
        if L1:
            we = takew2("w2e", 8)
            ke = mix(k.rec(kv_epi), k.rec(lambda: park_kv(vRES + 2)), 3)
            if we:
                c0 = o.get("w2c", 40)
                k.play(ke[:c0])
                pack_check(vRES, vRES + 1, sPDB)
                ke = mix(ke[c0:], we, (135 - c0) // len(we))
            k.play(ke)
        else:
            wod = k.rec(lambda: lin_dma(PK_WO, R1, 8, "wo", True))
            nwo = o.get("nwo", 0)
            k.play(mix(k.rec(kv_epi), wod[:nwo], 100 // max(nwo, 1))); wod = wod[nwo:]
        KRO = [0, 16384, 32768, 49152 if L1 else 36864]
        k.lds(f"ds_write_b128 v{vWB+22}, {vr(vACC+8,4)} offset:{KRO[2]}")
        for h in range(2):
            k(f"v_mfma_f32_16x16x32_bf16 {vr(KVA+4*h,4)}, {vr(PK+4*h,4)}, {vr(PV+4*h,4)}, 0")
        k.lds(f"ds_write_b128 v{vWB+22}, {vr(vACC+12,4)} offset:{KRO[3]}")
        k.get(vWB + 21, cKVS)
        k("s_nop 4")
        for h in range(2):
            k.lds(f"ds_write_b128 v{vWB+22}, {vr(KVA+4*h,4)} offset:{KRO[h]}")
        if L1 and UF == 1:
            k.vm_wait("wq")
        k.barrier()
        for s in range(4):
            k.lds(f"ds_read_b128 {vr(vWB+4*s,4)}, v{vWB+23} offset:{s*1024}", ("kr", s))
        KO = vACC + 32
        k.ds_wait(("kr", 1))
        for p in range(2):
            k(f"v_pk_add_f32 {vr(vWB+2*p,2)}, {vr(vWB+2*p,2)}, {vr(vWB+4+2*p,2)}")
        k.ds_wait(("kr", 3))
        for p in range(2):
            k(f"v_pk_add_f32 {vr(vWB+8+2*p,2)}, {vr(vWB+8+2*p,2)}, {vr(vWB+12+2*p,2)}")
        for p in range(2):
            k(f"v_pk_add_f32 {vr(KO+2*p,2)}, {vr(vWB+2*p,2)}, {vr(vWB+8+2*p,2)}")
        k(f"v_and_b32 v{KO}, 0xffffff00, v{KO}")
        k(f"v_or_b32 v{KO}, s{sT8}, v{KO}")
        k(f"s_mov_b64 exec, s[{sKM}:{sKM+1}]")
        k.vmem(f"buffer_store_dwordx4 {vr(KO,4)}, v{vWB+21}, {srd(S_WS)}, s{sKVP} offen sc1", "kvst")
        k("s_mov_b64 exec, -1")
        k.stamp("A.kvpub")
        fill = {}
        fr = []
        CSQ = vACC + 24

        def q_consts():
            k.get(vT0, cCSB)
            for h in range(2):
                k.lds(f"ds_read_b128 {vr(CSQ+4*h,4)}, v{vT0} offset:{(4+h)*64}")
        if L1:
            if UF == 1:
                if not o.get("w2e", 8):
                    pack_check(vRES, vRES + 1, sPDB)
            else:
                pack_finish(vWB, L_XST + 4096, 14, False, "pu", sPDB)
                k.vm_wait("pn")
                k("s_barrier")
            if not o.get("w2e", 8):
                packN_finish(vWB)
            park_addr(vPQ + 4, R1, 11)
            if o.get("diag"): k.stamp("q.pf")
            k(f"v_add_u32 v{vPQ}, {R1}, v{vTR0}")
            k(f"v_add_u32 v{vPQ+1}, {R1}, v{vTR1}")
            k(f"s_and_b32 s{sT0}, s{sW}, 1")
            k(f"s_lshl_b32 s{sT1}, s{sT0}, 5")
            k(f"v_xor_b32 v{vPQ+2}, s{sT1}, v{vPQ}")
            for j in range(16):
                fr.append(dict(addr=vPQ + 2, offs=(j * 2048, j * 2048 + 1024), mf=[(None, None, False, j == 0, None)]))
            for ks in range(16):
                for b in range(2):
                    fr.append(dict(addr=vPQ + b, offs=(ks * 2048, ks * 2048 + 1024), mf=mf2(vACC + 8 * b, ks, True, False)))
            wor = k.rec(wo_raw)
            e = spread(fill, bg + k.rec(res_load), 0, 1)
            if o.get("arm", 3):
                e = spread(fill, k.rec(lambda: arm(o.get("arm", 3))), e, 2)
            if o.get("tq", 0) & 1:
                e = spread(fill, k.rec(lambda: touch("x")), e, 1)
            if o.get("tq", 0) & 4:
                e = spread(fill, k.rec(lambda: touch("h")), e, 1)
            e = spread(fill, wor, e, o.get("wors", 3))
            spread(fill, takew2("w2q", 4), e, 4)
            spread(fill, k.rec(lambda: park_q(vPQ + 4)), 20, 3)
            k.gemm(fr, fill)
            if o.get("diag"): k.stamp("q.mm")
            cs_put(4, sT0)
            if UF == 2:
                k.vm_wait("pst")
            k.barrier()
            if o.get("diag"): k.stamp("q.bar")
            q_consts()
            if UF == 2:
                pack_flag()
        else:
            q_consts()
        lp2, done2 = k.label("L_kp"), k.label("L_kd")
        SM = vWB + 8
        ZL = vACT + 32

        def kv_loads(track):
            ins = [(f"buffer_load_dwordx4 {vr(ZL,4)}, v{vT2}, {srd(S_WS)}, s{sKVC} offen sc1", "zl")]
            for j in range(8):
                ins.append((f"buffer_load_dwordx4 {vr(vACT+4*j,4)}, v{vL16}, {srd(S_WS)}, s{sKVC if j < 4 else sT2} offen offset:{(j%4)*1024} sc1", ("kv", j)))
            for i_, t_ in ins:
                if track:
                    k.vmem(i_, t_)
                else:
                    k(i_)
        if L1:
            lp, done = k.label("L_xp"), k.label("L_xd")
            k(f"s_lshl_b32 s{sT4}, s{sG}, 11")
            k(f"s_add_u32 s{sT4}, s{sT4}, {WS_XID}")
            k(f"s_add_u32 s{sT3}, s{sTAG}, 2")
            k.poll_prep(15)
            k(f"v_lshlrev_b32 v{vT3}, 5, v{vT3}")
            k.vmem(f"buffer_load_dword v{vT0}, v{vT3}, {srd(S_WS)}, s{sT4} offen sc1", "xidl")
            w1a = k.rec(lambda: (lin_dma(PK_W1A, R1, 16, "w1a"), lin_dma(PK_W1B, R3, 6, "w1c2")))
        else:
            w1a = []
        k.get(vT2, cZL)
        k(f"s_add_u32 s{sT2}, s{sKVC}, 4096")
        kl = k.rec(lambda: kv_loads(True))
        QS = vACC if L1 else QA
        ph = k.rec(lambda: [phi_block(QS + 8*h + 4*rb, NM_A + rb, CSQ + 4*h, RL_A + rb, RS_A + rb, vPQ + 4*h + 2*rb, vWB, "a")
                            for h in range(2) for rb in range(2)])
        if L1:
            k.play(kl[:5])
            k.ds_all()
            if o.get("diag"): k.stamp("q.kl5")
            na = o.get("w1a0", 4) if UF == 1 else 0
            k.play(mix(ph, kl[5:] + w1a[:na], o.get("phr", 10)))
            w1a = w1a[na:]
        else:
            def unpark_w1():
                for j in range(16):
                    k.lds(f"ds_write_b128 v{vT3}, {vr(vPARK+4*j,4)} offset:{j*1024}")
            k(f"s_lshl_b32 s{sT5}, s{sW}, 14")
            k(f"v_add_u32 v{vT3}, s{sT5}, v{vL16}")
            k.play(wod[:4]); wod = wod[4:]
            k.ds_all()
            uw = k.rec(unpark_w1)
            nu = o.get("nu", 16)
            k.play(mix(mix(ph, uw[:nu], 5), wod, 10))
            k.play(mix(kl, uw[nu:], 1))
        k.stamp("A.q")
        k.get(vT1, cXW)
        k.get(vWB + 18, cZW)
        k.get(vWB + 16, cXR)
        k.get(vWB + 17, cZR)
        k(f"s_branch {lp2}_s")
        k(f"{lp2}:")
        kv_loads(False)
        k("s_waitcnt vmcnt(0)")
        k(f"{lp2}_s:")
        k.vm_wait("zl")
        k(f"""
        v_mov_b32 v{SM+4}, v{ZL}
        v_mov_b32 v{SM+5}, v{ZL}
        v_permlane32_swap_b32 v{ZL}, v{ZL+1}
        v_permlane32_swap_b32 v{ZL+2}, v{ZL+3}
        v_add_f32 v{ZL}, v{ZL}, v{ZL+1}
        v_add_f32 v{ZL+2}, v{ZL+2}, v{ZL+3}
        s_nop 1
        v_permlane16_swap_b32 v{ZL}, v{ZL+2}
        v_add_f32 v{ZL}, v{ZL}, v{ZL+2}
        s_nop 1
        v_add_f32_dpp v{ZL}, v{ZL}, v{ZL} row_ror:4 row_mask:0xf bank_mask:0xf
        s_nop 1
        v_add_f32_dpp v{ZL}, v{ZL}, v{ZL} row_ror:8 row_mask:0xf bank_mask:0xf
        v_cvt_pk_bf16_f32 v{ZL}, v{ZL}, v{ZL}
        ds_write_b16 v{vWB+18}, v{ZL}
        """)
        for j in range(0, 8, 2):
            a, b = vACT + 4*j, vACT + 4*j + 4
            k.vm_wait(("kv", j + 1))
            k(f"v_and_b32 v{SM+4}, v{SM+4}, v{a}")
            k(f"v_and_b32 v{SM+4}, v{SM+4}, v{b}")
            k(f"v_or3_b32 v{SM+5}, v{SM+5}, v{a}, v{b}")
            if j == 0:
                for p in range(2):
                    k(f"v_pk_add_f32 {vr(SM+2*p,2)}, {vr(a+2*p,2)}, {vr(b+2*p,2)}")
            else:
                for p in range(2):
                    k(f"v_pk_add_f32 {vr(a+2*p,2)}, {vr(a+2*p,2)}, {vr(b+2*p,2)}")
                for p in range(2):
                    k(f"v_pk_add_f32 {vr(SM+2*p,2)}, {vr(SM+2*p,2)}, {vr(a+2*p,2)}")
        k(f"""
        ds_write_b128 v{vT1}, {vr(SM,4)}
        v_xor_b32 v{SM+4}, s{sT8}, v{SM+4}
        v_xor_b32 v{SM+5}, s{sT8}, v{SM+5}
        v_or_b32 v{SM+4}, v{SM+4}, v{SM+5}
        v_and_b32 v{SM+4}, 0xff, v{SM+4}
        v_cmp_ne_u32 vcc, 0, v{SM+4}
        s_cbranch_vccz {done2}
        s_waitcnt lgkmcnt(0)
        s_sub_u32 s{sBUD}, s{sBUD}, 4
        s_cbranch_scc0 {lp2}
        s_mov_b32 s{sBUD}, 0
        {done2}:
        """)
        k.stamp("A.kvget")
        n1 = o.get("w1a1", 4) if L1 and UF == 1 else 0
        if L1 and UF == 2:
            pack_check_issue(0, vTR0, vTR1, sPDB)
        k.play(w1a[:n1]); w1a = w1a[n1:]
        k.barrier(True)
        for h in range(2):
            k.lds(f"ds_read_b64 {vr(vWB+4*h+2,2)}, v{vWB+17} offset:{h*32}", "zf")
        for j in range(4):
            k.lds(f"ds_read_b128 {vr(vACT+4*j,4)}, v{vWB+16} offset:{1024*j}")
        if L1:
            k(f"{lp}:")
            k(f"v_subrev_u32 v{vT0}, s{sT3}, v{vT0}")
            k(f"v_cmp_lt_u32 vcc, 8, v{vT0}")
            k(f"s_cbranch_vccz {done}")
            k(f"buffer_load_dword v{vT0}, v{vT3}, {srd(S_WS)}, s{sT4} offen sc1")
            k("s_waitcnt vmcnt(0)")
            k(f"s_sub_u32 s{sBUD}, s{sBUD}, 1")
            k(f"s_cbranch_scc0 {lp}")
            k(f"s_mov_b32 s{sBUD}, 0")
            k(f"{done}:")
            k(f"v_cmp_ne_u32 vcc, s{sXCC}, v{vT0}")
            k("s_nop 4")
            k(f"s_or_b32 s{sSLOW}, vcc_lo, {1 if o.get('forceslow') else 0}")
        k.ds_wait("zf")
        OA = vACC + 16
        for rb in range(2):
            for h in range(2):
                d = OA + 16*rb + 8*h
                k(f"v_mfma_f32_16x16x16_bf16 {vr(d+4,4)}, {vr(vWB+4*h+2,2)}, {vr(vPQ+4*h+2*rb,2)}, 0")
        k.ds_all()
        for h in range(2):
            for p in range(2):
                k(f"v_pk_add_f32 {vr(vACT+8*h+2*p,2)}, {vr(vACT+8*h+2*p,2)}, {vr(vACT+8*h+4+2*p,2)}")
        for h in range(2):
            for p in range(2):
                k(f"v_cvt_pk_bf16_f32 v{vWB+4*h+p}, v{vACT+8*h+2*p}, v{vACT+8*h+2*p+1}")
        for rb in range(2):
            for h in range(2):
                d = OA + 16*rb + 8*h
                k(f"v_add_f32 v{d+4}, s{sEPS}, v{d+4}")
        for rb in range(2):
            for h in range(2):
                d = OA + 16*rb + 8*h
                k(f"v_mfma_f32_16x16x16_bf16 {vr(d,4)}, {vr(vWB+4*h,2)}, {vr(vPQ+4*h+2*rb,2)}, 0")
        for rb in range(2):
            for h in range(2):
                d = OA + 16*rb + 8*h
                k(f"v_rcp_f32 v{d+4}, v{d+4}")
        k("s_nop 1")
        for rb in range(2):
            for h in range(2):
                d = OA + 16*rb + 8*h
                for p in range(2):
                    k(f"v_pk_mul_f32 {vr(d+2*p,2)}, {vr(d+2*p,2)}, {vr(d+4,2)} op_sel_hi:[1,0]")
                for p in range(2):
                    k(f"v_cvt_pk_bf16_f32 v{vPQ+4*rb+2*h+p}, v{d+2*p}, v{d+2*p+1}")
        k.stores([f"buffer_store_dwordx4 {vr(vPQ+4*rb,4)}, v{vL16}, {srd(S_WS)}, s{sOST+rb} offen" for rb in range(2)], psc(0))
        nb = o.get("w1a_pre1", 6) if L1 else o.get("w1a_pre", 0)
        if L1 and UF == 2:
            pack_check(vTR0, vTR1, sPDB)
        k.play(w1a[:nb])
        if L1:
            for s_ in range(2):
                for p in range(2):
                    k(f"v_permlane16_swap_b32 v{vRES+4*s_+p}, v{vRES+4*s_+2+p}")
        unpack_res(vACC)
        fr = []
        for ks in range(16):
            for f in range(4):
                mf = [(vACC + 4 * f, vACT + 4 * ks, True, False, ("act", ks))]
                if L1:
                    fr.append(dict(addr=vQ0 + f, offs=(R0 + ks * 4096, R0 + ks * 4096 + 2048), mf=mf))
                else:
                    fr.append(dict(addr=vTR0, offs=(ks * 4096 + f * 1024,), mf=mf))
        g = k.gemm_begin(fr, 7)
        k.poll_prep(15)
        k.flag(sFOo, G_FO)
        k.stamp("A.opub")
        k.poll(sFOp, G_FO)
        k.stamp("B.poll")

        def b_loads():
            for ks in range(16):
                with k.atomic():
                    if ks % 4 == 0:
                        k(f"s_add_u32 s{sT2}, s{sBACT}, {G_O + ks*1024}")
                    k.vmem(f"buffer_load_dwordx4 {vr(vACT+4*ks,4)}, v{vL16}, {srd(S_WS)}, s{sT2} offen offset:{(ks%4)*1024} sc1", ("act", ks))
        bl = k.rec(b_loads)
        PB = o.get("preb", PRE)
        k.play(bl[:PB])
        fill = {}
        e = spread(fill, bl[PB:], 0, 3)
        e = spread(fill, w1a[nb:], e, o.get("w1st", 3))
        if L1 and o.get("txb", 1):
            e = spread(fill, k.rec(lambda: touch("x")), e, 1)
        spread(fill, takew2("w2b", 0), e, 4)
        k.gemm_run(g, fill)
        k.stamp("B.mm")
        k(f"v_add_u32 v{vTR1}, {R1}, v{vL16}")
        k("s_nop 6")
        for f in range(4):
            for p in range(2):
                k(f"v_cvt_pk_bf16_f32 v{vRES+2*f+p}, v{vACC+4*f+2*p}, v{vACC+4*f+2*p+1}")
        publish_x(G_X1, G_ST1, G_FX1, psc(1))
        k.play(takew2("w2x", 0))
        k.flag(sFXo, G_FX1)
        k.stamp("B.pub")
        if L1 and o.get("w2e", 8):
            k(f"s_lshl2_add_u32 s{sD1}, s{sDH}, s{sW}")
            k(f"s_cmp_lg_u32 s{sD1}, 3")
            k("s_cbranch_scc1 L_nfskip")
            k(f"s_lshl_b32 s{sT5}, s{sG}, 12")
            for f in range(4):
                k(f"v_add_u32 v{vWB+16+f}, s{sT5}, v{vQ0+f}")
            for f in range(4):
                for hh in range(2):
                    k(f"ds_read_b64_tr_b16 {vr(vACC+4*f+2*hh,2)}, v{vWB+16+f} offset:{hh*2048}")
            k(f"s_add_u32 s{sT5}, s{sT5}, s{sPKB}")
            k(f"s_add_u32 s{sT5}, s{sT5}, {PK_WO}")
            k("s_waitcnt lgkmcnt(0)")
            for f in range(4):
                k(f"buffer_store_dwordx4 {vr(vACC+4*f,4)}, v{vL16}, {srd(S_WS)}, s{sT5} offen offset:{f*1024} sc1")
            k("L_nfskip:")
        k("s_barrier")
        w1c2 = k.rec(lambda: lin_dma(PK_W1B + 24576, R0 if L1 else R1, 6, "w1c2"))
        if L1 and not o.get("w2e", 8):
            pack_flag(0x8000)
        nc = o.get("w1c2_pre1", 0) if L1 else o.get("w1c2_pre", 0)
        k.play(w1c2[:nc])
        if L1:
            k(f"s_lshl_b32 s{sT2}, s{sW}, 10")
            k(f"v_add_u32 v{vPQ}, s{sT2}, v{vTR1}")
            fr = []
            for j in range(16):
                fr.append(dict(addr=vPQ, offs=(j * 4096,), mf=[(None, None, False, j == 0, None)]))
            k.gemm(fr, D=7)
            k("s_nop 5")
            cs_put(6, sW)
        C2 = vACC + 32
        vC1, vC2, vCc, vCd = (vTR1 if L1 else vL16), vDM, vP, vCH
        k(f"v_add_u32 v{vC2}, {R3}, v{vL16}")
        if L1:
            k(f"s_min_u32 s{sPDA}, s{sW}, 2")
            k(f"s_lshl_b32 s{sT2}, s{sPDA}, 10")
            k(f"v_add_u32 v{vCd}, s{sT2}, v{vL16}")
            k(f"v_add_u32 v{vCc}, {R3}, v{vCd}")
        fr = []
        for ks in range(16):
            for f in range(4):
                fr.append(dict(addr=vC1, offs=(ks * 4096 + f * 1024,), mf=mf2(vACC + 8 * f, ks, True, True)))
        for ks in range(16):
            if L1:
                fr.append(dict(addr=vCc if ks < 8 else vCd, offs=((ks % 8) * 3072,), mf=[(None, None, False, ks == 0, None)]))
            for b in range(3):
                fr.append(dict(addr=vC2 if ks < 8 else vL16 if L1 else vTR1, offs=((ks % 8) * 3072 + b * 1024,), mf=mf2(C2 + 8 * b, ks, True, False, None if L1 else False)))
        MK = 7 if L1 else 6
        NM = 128 + 16 * MK
        g = k.gemm_begin(fr)
        k.poll(sFXp, G_FX1)
        k.stamp("C.poll")
        CS1 = [vPQ, vPQ + 4, vACC + 56, vQ0]

        def c2_init():
            k.get(vT0, cCSB)
            for b in range(3):
                k.lds(f"ds_read_b128 {vr(C2+8*b+4,4)}, v{vT0} offset:{(10+b)*64}", "cs2")
            for _ in range(4):
                k.play([lambda: None])
            k.ds_wait("cs2")
            for b in range(3):
                for rb in range(2):
                    for j in range(4):
                        k(f"v_mul_f32 v{C2+8*b+4*rb+j}, v{C2+8*b+4+j}, v{NM_A+rb}")

        def relu_block(acc, cs, rb, dst):
            if cs is not None:
                for j in range(4):
                    k(f"v_fmac_f32 v{acc+j}, v{cs+j}, v{NM_A+rb}")
            for p in range(2):
                k(f"v_cvt_pk_bf16_f32 v{dst+p}, v{acc+2*p}, v{acc+2*p+1}")
            for p in range(2):
                k(f"v_pk_max_i16 v{dst+p}, v{dst+p}, 0")

        def cs1_reads():
            k.get(vT2, cCSB)
            for b in range(4):
                k.lds(f"ds_read_b128 {vr(CS1[b],4)}, v{vT2} offset:{(6+b)*64}", "cs")

        def epi1():
            k.ds_wait("cs")
            for s in range(2):
                for rb in range(2):
                    for b in range(2):
                        relu_block(vACC + 16*s + 8*b + 4*rb, CS1[2*s+b], rb, vACC + 16*s + 4*rb + 2*b)
                k.stores([f"buffer_store_dwordx4 {vr(vACC+16*s+4*rb,4)}, v{vL16}, {srd(S_WS)}, s{sH1+rb} offen offset:{s*1024}"
                          for rb in range(2)], psc(2))

        def d_setup():
            if L1:
                with k.atomic():
                    k(f"s_lshl_b32 s{sT1}, s{sW}, 13")
                    k(f"s_add_u32 s{sT1}, s{sT1}, s{sGB}")
                with k.atomic():
                    k(f"s_lshl_b32 s{sDK}, s{sW}, 11")
                    k(f"s_add_u32 s{sDK}, s{sDK}, {28*1024}")
                k(f"s_add_u32 s{sT1}, s{sT1}, {G_H + 24*1024}")
                for j in range(4):
                    with k.atomic():
                        k(f"s_add_u32 s{sT0}, s{sW}, {j}")
                        k(f"s_and_b32 s{sT0}, s{sT0}, 3")
                    with k.atomic():
                        k(f"s_lshl2_add_u32 s{sT0}, s{sDH}, s{sT0}")
                        k(f"s_mul_i32 s{sT0}, s{sT0}, 57344")
                    k(f"s_add_u32 s{sRB+j}, s{sT0}, s{sT1}")
            k.poll_prep(7)
        seq = [(ksl, j) for ksl in range(11) for j in range(4)] + [(ksl, j) for j in (1, 2, 3, 0) for ksl in (11, 12, 13)]
        hb = [0, 0, 0, 0]

        def hload(t):
            ksl, j = seq[t]
            with k.atomic():
                if ksl // 4 != hb[j]:
                    if ksl == 8:
                        k(f"s_sub_u32 s{sRB+j}, s{sRB+j}, s{sDK}")
                    else:
                        k(f"s_add_u32 s{sRB+j}, s{sRB+j}, 4096")
                    hb[j] += 1
                k.vmem(f"buffer_load_dwordx4 {vr(vACT+4*(t%16),4)}, v{vL16}, {srd(S_WS)}, s{sRB+j} offen offset:{(ksl%4)*1024} sc1", ("h", t))
        PC = o.get("prec", PRE)
        al = k.rec(lambda: act_loads(G_X1))
        k.play(al[:PC])
        fill = {}
        sl = k.rec(lambda: stat_loads(G_ST1))
        e = spread(fill, al[PC:PC+4] + [lambda: k.play(sl[:2]), sl[2]] + al[PC+4:], 0, 4)
        e2 = spread(fill, k.rec(lambda: (stat_sum(), stats_finalize(False))), 52, 1)
        if not L1:
            spread(fill, k.rec(c2_init), e2 + 2, 1)
        if L1:
            spread(fill, k.rec(lambda: k("s_barrier")), 100, 0)
            if o.get("w2e", 8):
                spread(fill, k.rec(lambda: pack_flag(0x8000)), 102, 0)
        e = spread(fill, w1c2[nc:], e, 3)
        if o.get("th", 0) >> layer & 1:
            e = spread(fill, k.rec(lambda: touch("h", vT0)), e, 1)
        spread(fill, k.rec(cs1_reads), 119, 1)
        if o.get("diagd"):
            spread(fill, k.rec(lambda: k.stamp("C.mm1")), 127, 0)
        e1 = spread(fill, k.rec(epi1), 129, 1 / o.get("epr", 4))
        spread(fill, k.rec(lambda: (k.vm_wait("w1c2"), k("s_barrier"))), 128 + 5 * MK, 0)
        spread(fill, k.rec(d_setup), e1, 1)
        pf = min(e1 + (o.get("fl11", 50) if L1 else o.get("fl1", 20)), NM - 2)
        spread(fill, k.rec(lambda: k.flag(sFHo, G_FH)), pf, 1)
        NE = o.get("ne1", 0) if L1 else o.get("ne", 6)
        pp = NM - 1 if NE == 0 else NM - 3 * NE - 18
        assert pp > pf
        spread(fill, k.rec(lambda: k.vmem(f"buffer_load_dword v{vT0}, v{vT3}, {srd(S_WS)}, s{sFHp} offen offset:{G_FH} sc1", "p1")), pp, 1)
        if NE:
            spread(fill, k.rec(lambda: async_check("p1", sFHp, G_FH)), NM - 3 * NE - 1, 1)
            spread(fill, k.rec(lambda: [hload(t) for t in range(NE)]), NM - 3 * NE, 3)
        if L1:
            wc = takew2("nw2", 24)
            spread(fill, wc, e, (pp - 1 - e) / max(len(wc), 1))
        k.gemm_run(g, fill)
        k.stamp("C.mm2")
        HO = vWB + 16
        LA = o.get("dla1", 10) if L1 else o.get("dla", 10)
        if L1:
            k.get(vT1, cCSA)
            k(f"s_lshl_b32 s{sT5}, s{sPDA}, 6")
            k(f"v_add_u32 v{vT1}, s{sT5}, v{vT1}")
            k.lds(f"ds_write_b32 v{vT1}, a{aCS} offset:{10*64}")
            k.barrier()
            k.get(vT2, cCSB)
            for b in range(3):
                k.lds(f"ds_read_b128 {vr(vWB+4*b,4)}, v{vT2} offset:{(10+b)*64}")
            k.ds_all()
        else:
            k("s_nop 3")
        epi2 = k.rec(lambda: [relu_block(C2 + 8*b + 4*rb, vWB + 4*b if L1 else None, rb, HO + 8*rb + 2*b) for b in range(3) for rb in range(2)])
        h2sc = psc(2) and not o.get("h2plain", 1)
        its = []
        for rb in range(2):
            its.append(f"buffer_store_dwordx4 {vr(HO+8*rb,4)}, v{vL16}, {srd(S_WS)}, s{sH2+rb} offen")
            its.append(f"buffer_store_dwordx2 {vr(HO+8*rb+4,2)}, v{vL16}, {srd(S_WS)}, s{sH3+rb} offen")
        tail = []
        up = []
        if L1:
            def park_w1():
                with k.atomic():
                    k(f"s_lshl_b32 s{sT5}, s{sW}, 14")
                    k(f"s_add_u32 s{sT5}, s{sT5}, {R1}")
                    k(f"v_add_u32 v{vCH}, s{sT5}, v{vL16}")
                for j in range(0, 16, 2):
                    with k.atomic():
                        for jj in (j, j + 1):
                            k.lds(f"ds_read_b128 {vr(vPARK+4*jj,4)}, v{vCH} offset:{jj*1024}", "pw")
            u_ = k.rec(lambda: unpark(vP))
            bar = k.rec(lambda: (k.ds_wait("pw"), k("s_barrier")))
            up = k.rec(park_w1) + u_[:17] + [lambda: k.play(bar)] + u_[17:]
        if NE:
            n2 = o.get("ne2", 2)
            k.play(mix(epi2, k.rec(lambda: [hload(t) for t in range(NE, NE + n2)]), 10))
            k.stores(its, h2sc)
            nxt = NE + n2
            FL2 = o.get("fl2", 5)
        else:
            k.play(epi2)
            k.stores(its, h2sc)
            async_check("p1", sFHp, G_FH)
            for t in range(LA):
                hload(t)
                if len(w2) > 24 and t % 2:
                    k.play(w2[:1]); w2 = w2[1:]
                k.play(up[:1]); up = up[1:]
            k.flag(sFHo, G_FH + 1024)
            nxt = LA
            FL2 = -1
        k.stamp("D.poll1")
        RSD = vPQ
        k.get(vPQ + 1, cRSD)
        k.lds(f"ds_read_b32 v{RSD}, v{vPQ+1}", "rsd")
        for j in range(4):
            k.get(vPQ + 4 + j, cRD0 + j)
        ur = k.rec(lambda: unpack_res(vWB))
        wr = []
        for t in range(56):
            ksl, j = seq[t]
            if L1:
                k.vm_wait(("w2t", ksl))
            k.vm_wait(("h", t))
            if o.get("diagd") and t in (0, 8, 16, 24, 32, 40, 48):
                k.stamp(f"D.t{t}")
            for f in range(4):
                a = vACC + 16*j + 4*f
                c = "0" if ksl == 0 else vr(a, 4)
                k(f"v_mfma_f32_16x16x32_bf16 {vr(a,4)}, {ar((ksl*4+f)*4,4)}, {vr(vACT+4*(t%16),4)}, {c}")
                if f in (0, 2) and nxt < 56 and nxt <= t + LA and (f == 0 or nxt < t + LA):
                    if nxt == 32 - 6:
                        k.vmem(f"buffer_load_dword v{vT0}, v{vT3}, {srd(S_WS)}, s{sFHp} offen offset:{G_FH+1024} sc1", "p2")
                    if nxt == 32:
                        async_check("p2", sFHp, G_FH + 1024)
                    hload(nxt)
                    nxt += 1
                    if nxt == 56 and not L1 and o.get("wb", 0):
                        lw = k.label("L_wb")
                        k(f"s_lshl3_add_u32 s{sT0}, s{sW}, s2")
                        k(f"s_cmp_ge_u32 s{sT0}, 8")
                        k(f"s_cbranch_scc1 {lw}")
                        k("buffer_wbl2 sc1")
                        k(f"s_branch {lw}_e")
                        k(f"{lw}:")
                        k(f"buffer_load_dword a{aDUM}, v{vT3}, {srd(S_WS)}, s{sFHp} offen offset:{G_FH} sc1")
                        k(f"{lw}_e:")
                        k.vm_note(1, "wb")
                if f in ((1, 3) if t < o.get("up2", 3) else (1,)) and up:
                    k.play(up[:1]); up = up[1:]
                if f == 2:
                    nup = 24 - len(up) + (1 if len(up) > 8 else 0)
                    if w2 and (len(w2) > 24 or not up or nup >= 4 * ((24 - len(w2)) // 4 + 1) + 1):
                        if len(w2) <= 24:
                            k.ds_wait(("up", (24 - len(w2)) // 4))
                        k.play(w2[:1]); w2 = w2[1:]
                    elif t >= o.get("tl0", 46) and tail:
                        nn = o.get("tln", 2)
                        k.play(tail[:nn]); tail = tail[nn:]
                if f == 3 and t == FL2:
                    k.flag(sFHo, G_FH + 1024)
                if 4 * t + f == 203:
                    k.ds_wait(("rw", 1))
                    k("s_barrier")
                    for f_ in range(4):
                        k.lds(f"ds_read_b128 {vr(vACC+16+4*f_,4)}, v{vPQ+4} offset:{f_*1024}", "rd0")
                if 4 * t + f == 215:
                    k.ds_wait("rd0")
                    k("s_barrier")
                if f == 3 and t == 2 and L1:
                    pack_check_issue(0x8000, vTR0, vTR1, sPDA)
                if f == 3 and t == 14 and L1:
                    pack_check(vTR0, vTR1, sPDA)
                if f == 3 and t == o.get("tx", 30) and L1:
                    touch("x", vDM)
                if f == 1 and t >= 8 and ur:
                    k.play(ur[:1]); ur = ur[1:]
                if wr and wr[0][0] <= 4 * t + f:
                    k.lds(*wr.pop(0)[1:])
            if ksl == 13 and j:
                for f in range(4):
                    wr.append((4 * t + 9 + 2 * f, f"ds_write_b128 v{vPQ+4+j}, {vr(vACC+16*j+4*f,4)} offset:{f*1024}", ("rw", j)))
        assert not w2 and not ur and not wr and not up
        k.stamp("D.mm")
        if not L1:
            k.get(vT2, cOUT)
        k("s_nop 3")
        for f in range(4):
            for p in range(2):
                k(f"v_pk_add_f32 {vr(vACC+4*f+2*p,2)}, {vr(vACC+4*f+2*p,2)}, {vr(vACC+16+4*f+2*p,2)}")
        k.barrier()
        for f in range(4):
            for j in range(2):
                k.lds(f"ds_read_b128 {vr(vACC+32+16*j+4*f,4)}, v{vPQ+4} offset:{j*4096+f*1024}", ("rd", f))
        for f in range(4):
            k.ds_wait(("rd", f))
            for j in range(2):
                for p in range(2):
                    k(f"v_pk_add_f32 {vr(vACC+4*f+2*p,2)}, {vr(vACC+4*f+2*p,2)}, {vr(vACC+32+16*j+4*f+2*p,2)}")
            for p in range(2):
                k(f"v_pk_fma_f32 {vr(vACC+4*f+2*p,2)}, {vr(vACC+4*f+2*p,2)}, {vr(RSD,2)}, {vr(vWB+4*f+2*p,2)} op_sel_hi:[1,0,1]")
            for p in range(2):
                k(f"v_cvt_pk_bf16_f32 v{vRES+2*f+p}, v{vACC+4*f+2*p}, v{vACC+4*f+2*p+1}")
        k.stamp("D.red")
        if L1:
            publish_x(G_X2, G_ST2, G_FX2, psc(3))
            k(f"s_sub_u32 s{sT0}, s{sDK}, 8192")
            for j in range(4):
                k(f"s_add_u32 s{sRB+j}, s{sRB+j}, s{sT0}")
            k(f"s_add_u32 s{sKVC}, s{sKVC}, 0x100000")
            k(f"s_add_u32 s{sKVP}, s{sKVP}, 0x100000")
            k.flag(sFXo, G_FX2)
            k.stamp("D.pub")
            k("s_barrier")
            fr = []
            k(f"v_add_u32 v{vTR0}, {R1}, v{vL16}")
            late = []
            for ks in range(16):
                fq = [dict(addr=vTR0, offs=(ks * 2048 + b * 1024,), mf=mf2(QA + 8 * b, ks, True, True, act=ring)) for b in range(2)]
                fk = [dict(addr=vL16, offs=(R0 + ks * 4096 + b * 1024,), mf=mf2(vACC + 8 * b, ks, False, True, act=ring)) for b in range(4)]
                if ks < 16 - o.get("qlag", 0):
                    fr += fk + fq
                else:
                    fr += fk
                    late += fq
            fr += late
            gA = k.gemm_begin(fr)
        else:
            k("s_nop 1")
            for s in range(2):
                for p in range(2):
                    k(f"v_permlane16_swap_b32 v{vRES+4*s+p}, v{vRES+4*s+2+p}")
                k.vmem(f"buffer_store_dwordx4 {vr(vRES+4*s,4)}, v{vT2}, {srd(S_OUT)}, 0 offen offset:{64*s}{' sc1' if o.get('outsc1', 1) else ''}")
            le = k.label("L_ep")
            k(f"s_or_b32 s{sT2}, s2, s{sW}")
            k(f"s_cbranch_scc1 {le}")
            k(f"s_add_u32 s{sEP}, s{sEP}, 1")
            k(f"v_mov_b32 v{vT1}, s{sEP}")
            k("s_mov_b64 exec, 1")
            k(f"buffer_store_dword v{vT1}, v{vL16}, {srd(S_WS)}, 0 offen offset:{WS_EPOCH}")
            k("s_mov_b64 exec, -1")
            k(f"{le}:")
            if stamps:
                k.vm_all()
                k.stamp("end")
                k(f"s_memrealtime s[{sST}:{sST+1}]")
                k("s_waitcnt lgkmcnt(0)")
                k(f"v_writelane_b32 v{vSTAMP}, s{sST}, 61")
                k(f"v_writelane_b32 v{vSTAMP}, s{sBUD}, 60")
                k(f"v_writelane_b32 v{vSTAMP}, s{sSLOW}, 59")
                k(f"s_lshl2_add_u32 s{sT2}, s2, s{sW}")
                k(f"s_lshl_b32 s{sT2}, s{sT2}, 8")
                k(f"s_add_u32 s{sT2}, s{sT2}, {WS_STAMP}")
                k(f"v_lshrrev_b32 v{vT0}, 2, v{vL16}")
                k(f"buffer_store_dword v{vSTAMP}, v{vT0}, {srd(S_WS)}, s{sT2} offen")
    k("L_end:")
    lines = merge_waits(k.lines)
    if o.get("pads", 0):
        lines = add_pads(lines, k.tailcode, o["pads"])
    body = "\n".join(lines)
    tailc = "\n".join(k.tailcode)
    hdr = open("interleave_layers__linear_attn_block__dense_activation_relu__prompt.s.ref").read().split("; Override")[0]
    txt = f"""{hdr}; Generated by a hand-written generator (persistent kernel, one workgroup per CU).
; @launch grid=(256,1,1) block=(256,1,1) lds={LDS_BYTES}
.amdgcn_target "amdgcn-amd-amdhsa--gfx950"
.text
.globl {NAME}
.p2align 8
.type {NAME},@function
.set CODE_BYTES, L_code_end - L_pcref - 512
{NAME}:
{body}
    s_endpgm
L_code_end:
{tailc}
.section .rodata,"a"
.p2align 6
.amdhsa_kernel {NAME}
  .amdhsa_next_free_vgpr 512
  .amdhsa_next_free_sgpr 102
  .amdhsa_accum_offset 256
  .amdhsa_group_segment_fixed_size 0
  .amdhsa_kernarg_size 72
  .amdhsa_user_sgpr_count 2
  .amdhsa_user_sgpr_kernarg_segment_ptr 1
  .amdhsa_system_sgpr_workgroup_id_x 1
.end_amdhsa_kernel
"""
    return txt, k.stamp_names


if __name__ == "__main__":
    out = sys.argv[1]
    stamps = "stamps" in sys.argv[2:]
    opts = {}
    for a in sys.argv[2:]:
        if "=" in a:
            x, y = a.split("=")
            opts[x] = int(y)
    txt, names = gen(stamps, opts)
    open(out, "w").write(txt)
    if stamps:
        open(out + ".names", "w").write("\n".join(names))
```

```python
import sys
from contextlib import contextmanager

NAME = "interleave_layers__linear_attn_block__dense_activation_relu__prompt_kernel"

WS_EPOCH = 0
WS_XID = 0x8000
WS_PD = 0x10000
GRP0 = 0x100000
G_FO, G_FX1, G_FX2, G_FH = 0, 512, 1024, 1536
G_ST1 = 0x1000
G_ST2 = G_ST1
G_ST0 = 0x4000
G_X1 = 0x8000
G_X2 = G_X1
G_H = G_X1 + 0x20000
G_O = G_H
WS_KVX = 0x1200000
KVX_C = 0x9000
WS_W2T = 0x1400000
WS_PK = 0x1600000
PK_KV, PK_Q, PK_W1A, PK_W1B, PK_WO, PK_SZ = 0, 65536, 98304, 163840, 212992, 278528
WS_STAMP = 0x1B00000
WS_USED = 0x1C00000
OOB = 0x7f000000

R0, R1, R2, R3 = 0, 65536, 98304, 131072
L_SM = 161792
L_CS = L_SM
L_ZB = L_SM + 896
L_STAT = L_SM + 1024
L_XB = L_SM - 4096
W1B_N1 = 8
L_XST = 98304
L_RED = R2
L_PST = R2
LDS_BYTES = 163840

S_X, S_WQKV, S_WO, S_W1, S_W2, S_OUT, S_WS = 4, 8, 12, 16, 20, 24, 28
(sW, sC, sG, sTAG, sSLOW, sGB, sBUD, sEP, sEPS, _e1, sT0, sT1, sT2, sT3, sT4, sT5,
 sACT, sACT1, sBACT, sTILE, sOST, sOST1, sFOo, sFOp, sFXo, sFXp, sSTo, sSTg,
 sH1, sH1b, sH2, sH2b, sH3, sH3b, sFHo, sFHp, sRB, _r1, _r2, _r3, sKVC, sKVP,
 sDH, sCT, sXCC, sT8, sD0, sD1, sD2, sD3, sL0, sL1, sPKB, sPDA, sPDB, sJ0) = range(32, 88)
assert sEPS % 2 == 0
sRHO = sT8
S_A, S_B = 88, 92
sKEX = 88
sDK = 92
sS8 = 93
sKM = 96
sST = 98
sPC = 100

vLANE, vL16, vTR0, vTR1, vQ0, vQ1, vQ2, vQ3, vP, vCH, vDM, vSTAMP = range(12)
vT0, vT1, vT2, vT3 = 12, 13, 14, 15
vSP, vSP2 = vP, vCH
vRES = 16
vPQ = 24
vWB = 32
vACC = 64
vACT = 128
BF1 = "0x3f803f80"
(cCSA, cCSB, cP16, aDUM, cSTO, cSTW, cSTA, cSTB, cKW, cKR, cKW1, cKR1, cKVS, cXW, cXR, cZR,
 cRD0, cRD1, cRD2, cRD3, cRSD, cOUT, cZL, cZW) = range(224, 248)
aONES, aCS = 248, 252


def srd(s):
    return f"s[{s}:{s+3}]"


def vr(a, n=1):
    return f"v{a}" if n == 1 else f"v[{a}:{a+n-1}]"


def ar(a, n=1):
    return f"a{a}" if n == 1 else f"a[{a}:{a+n-1}]"


def bcast(r, pos, n):
    lo = [0] * n
    hi = [1] * n
    if r % 2 == 0:
        hi[pos] = 0
    else:
        lo[pos] = 1
    f = lambda x: "[" + ",".join(map(str, x)) + "]"
    return vr(r & ~1, 2), f" op_sel:{f(lo)} op_sel_hi:{f(hi)}"


class K:
    def __init__(self, stamps=False, opts=None):
        self.lines = []
        self.nlab = 0
        self.vm = []
        self.ds = []
        self.stamps = stamps
        self.stamp_names = []
        self.o = opts or {}
        self._rec = None
        self.seen = set()
        self.tailcode = []

    def _do(self, fn, cost=None):
        if cost is not None:
            fn.cost = cost
        if self._rec is not None:
            self._rec.append(fn)
        else:
            fn()

    def rec(self, f):
        assert self._rec is None
        self._rec = []
        f()
        r, self._rec = self._rec, None
        return r

    @contextmanager
    def atomic(self):
        if self._rec is None:
            yield
            return
        outer, self._rec = self._rec, []
        yield
        inner, self._rec = self._rec, outer
        g = lambda: [x() for x in inner]
        g.cost = sum(getattr(x, "cost", 4) for x in inner)
        outer.append(g)

    def play(self, items):
        for x in items:
            self._do(x)

    def _emit(self, l):
        self.lines.append(("" if l.endswith(":") else "    ") + l)

    def __call__(self, s):
        for l in s.split("\n"):
            l = l.strip()
            if l:
                self._do(lambda l=l: self._emit(l), 8 if l.startswith(("v_exp", "v_rsq", "v_rcp", "buffer_")) else 0 if l.endswith(":") else 4)

    def label(self, base="L"):
        self.nlab += 1
        return f"{base}_{self.nlab}"

    def vmem(self, s, tag=None):
        def f():
            self._emit(s)
            self.vm.append(tag)
            self.seen.add(tag)
        self._do(f, 8)

    def vm_note(self, n, tag=None):
        self._do(lambda: (self.vm.extend([tag] * n), self.seen.add(tag)))

    def _wait(self, lst, tag, name, mx):
        if tag not in lst:
            return lst
        idx = len(lst) - 1 - lst[::-1].index(tag)
        n = min(len(lst) - idx - 1, mx)
        self._emit(f"s_waitcnt {name}({n})")
        return lst[len(lst) - n:] if n else []

    def vm_wait(self, tag):
        def f():
            assert tag in self.seen, tag
            self.vm = self._wait(self.vm, tag, "vmcnt", 63)
        self._do(f)

    def save_vm(self):
        def f():
            self._sv = list(self.vm)
        self._do(f)

    def restore_vm(self):
        def f():
            self.vm = self._sv
        self._do(f)

    def vm_all(self):
        def f():
            self._emit("s_waitcnt vmcnt(0)")
            self.vm = []
        self._do(f)

    def lds(self, s, tag=None):
        def f():
            self._emit(s)
            self.ds.append(tag)
        self._do(f)

    def ds_wait(self, tag):
        def f():
            self.ds = self._wait(self.ds, tag, "lgkmcnt", 15)
        self._do(f)

    def ds_all(self, force=False):
        def f():
            if self.ds or force:
                self._emit("s_waitcnt lgkmcnt(0)")
            self.ds = []
        self._do(f)

    def barrier(self, force=False):
        self.ds_all(force)
        self("s_barrier")

    def stamp(self, name):
        if not self.stamps:
            return
        self.nst = getattr(self, "nst", 0) + 1
        if self.o.get("lite") and name not in ("end", "D.pub"):
            return
        i = len(self.stamp_names)
        assert i < 59
        self.stamp_names.append(name)
        self(f"{'s_memrealtime' if self.o.get('rt') else 's_memtime'} s[{sST}:{sST+1}]")
        self.ds_all(True)
        self(f"v_writelane_b32 v{vSTAMP}, s{sST}, {i}")

    def dma(self, sr, voff, soff, simm, lreg, limm, tag=None, flag=""):
        with self.atomic():
            self(f"s_add_u32 m0, s{lreg}, {limm}")
            self(f"s_add_u32 s{sT5}, s{soff}, {simm}")
            self.vmem(f"buffer_load_dwordx4 v{voff}, {srd(sr)}, s{sT5} offen{flag} lds", tag)

    def get(self, v, c):
        self(f"v_accvgpr_read_b32 v{v}, a{c}")

    def poll_prep(self, mask):
        self.get(vT3, cP16)
        if mask == 7:
            self(f"v_and_b32 v{vT3}, 28, v{vT3}")

    def poll(self, soff, imm, clear=True):
        if clear:
            self.seen = {t for t in self.seen if not (isinstance(t, tuple) and t[0] in ("act", "h"))}
        lp, done = self.label("L_poll"), self.label("L_pd")
        with self.atomic():
            self(f"{lp}:")
            self(f"buffer_load_dword v{vT0}, v{vT3}, {srd(S_WS)}, s{soff} offen offset:{imm} sc1")
            self.vm_all()
            self(f"v_cmp_ne_u32 vcc, s{sTAG}, v{vT0}")
            self(f"s_cbranch_vccz {done}")
            self(f"s_sub_u32 s{sBUD}, s{sBUD}, 1")
            self(f"s_cbranch_scc0 {lp}")
            self(f"s_mov_b32 s{sBUD}, 0")
            self(f"{done}:")

    def poll_a(self, soff, imm):
        if self.o.get("pp", 1):
            self.vmem(f"buffer_load_dword v{vT0}, v{vT3}, {srd(S_WS)}, s{soff} offen offset:{imm} sc1", "pa")

    def poll_b(self, soff, imm):
        if not self.o.get("pp", 1):
            return self.poll(soff, imm)
        self.seen = {t for t in self.seen if not (isinstance(t, tuple) and t[0] in ("act", "h"))}
        lp, done = self.label("L_poll"), self.label("L_pd")
        ld = lambda v: f"buffer_load_dword v{v}, v{vT3}, {srd(S_WS)}, s{soff} offen offset:{imm} sc1"
        self(f"{lp}:")
        self(ld(vT2))
        self("s_waitcnt vmcnt(1)")
        self(f"v_cmp_ne_u32 vcc, s{sTAG}, v{vT0}")
        self(f"s_cbranch_vccz {done}")
        self(ld(vT0))
        self("s_waitcnt vmcnt(1)")
        self(f"v_cmp_ne_u32 vcc, s{sTAG}, v{vT2}")
        self(f"s_cbranch_vccz {done}")
        self(f"s_sub_u32 s{sBUD}, s{sBUD}, 1")
        self(f"s_cbranch_scc0 {lp}")
        self(f"s_mov_b32 s{sBUD}, 0")
        self(f"{done}:")
        self.vm = ["pb"]

    def stores(self, items, force_sc1, tag="st"):
        with self.atomic():
            if force_sc1:
                for it in items:
                    self.vmem(it + " sc1", tag)
                return
            ls, le = self.label("L_ss"), self.label("L_se")
            self(f"s_cmp_lg_u32 s{sSLOW}, 0")
            self(f"s_cbranch_scc1 {ls}")
            for it in items:
                self.vmem(it, tag)
            self(f"{le}:")
            self.tailcode += [f"{ls}:"] + ["    " + it + " sc1" for it in items] + [f"    s_branch {le}"]

    def flag(self, soff, imm):
        with self.atomic():
            self(f"v_mov_b32 v{vT1}, s{sTAG}")
            self.vm_wait("st")
            self("s_mov_b64 exec, 1")
            self.stores([f"buffer_store_dword v{vT1}, v{vL16}, {srd(S_WS)}, s{soff} offen offset:{imm}"], False, "flag")
            self("s_mov_b64 exec, -1")

    def gemm_begin(self, frags, D=6):
        self.gid = getattr(self, "gid", 0) + 1
        g = dict(frags=frags, D=D, gid=self.gid, rp=0, reads=[])
        for t, f in enumerate(frags):
            s = vWB + 4 * (t % 8)
            if len(f["offs"]) == 2:
                for hh in range(2):
                    g["reads"].append((t, f"ds_read_b64_tr_b16 {vr(s + 2*hh, 2)}, v{f['addr']} offset:{f['offs'][hh]}"))
            else:
                g["reads"].append((t, f"ds_read_b128 {vr(s, 4)}, v{f['addr']} offset:{f['offs'][0]}"))
        self._issue(g, D - 1, 99)
        return g

    def _issue(self, g, tmax, maxn):
        c = 0
        reads = g["reads"]
        while g["rp"] < len(reads) and reads[g["rp"]][0] <= tmax and c < maxn:
            self.lds(reads[g["rp"]][1], ("w", g["gid"], reads[g["rp"]][0]))
            g["rp"] += 1
            c += 1

    def gemm_run(self, g, fill=None):
        fill = fill or {}
        frags, D, gid = g["frags"], g["D"], g["gid"]
        n = len(frags)
        mi = 0
        pend = []
        LATE = self.o.get("late", 3)
        for t, f in enumerate(frags):
            s = vWB + 4 * (t % 8)
            if t % 2 == 0:
                self.ds_wait(("w", gid, min(t + 1, n - 1)))
            nm = len(f["mf"])
            for j, (acc, act_, sw, first, wt) in enumerate(f["mf"]):
                if wt is not None:
                    self.vm_wait(wt)
                c = "0" if first else vr(acc, 4) if acc is not None else ar(aCS, 4)
                if acc is None:
                    self(f"v_mfma_f32_16x16x32_bf16 {ar(aCS,4)}, {ar(aONES,4)}, {vr(s,4)}, {c}")
                elif sw:
                    self(f"v_mfma_f32_16x16x32_bf16 {vr(acc,4)}, {vr(s,4)}, {vr(act_,4)}, {c}")
                else:
                    self(f"v_mfma_f32_16x16x32_bf16 {vr(acc,4)}, {vr(act_,4)}, {vr(s,4)}, {c}")
                rp0 = g["rp"]
                self._issue(g, t + D, 99 if j == nm - 1 else 1)
                room = 8 - 4 * (g["rp"] - rp0) - (4 if (j == nm - 1 and t % 2 == 1) else 0)
                pend += [(mi, x) for x in fill.pop(mi, [])]
                while pend:
                    cst = getattr(pend[0][1], "cost", 4)
                    if cst <= room or (room == 8 and cst > 8) or mi - pend[0][0] >= LATE:
                        self.play([pend.pop(0)[1]])
                        room -= cst
                    else:
                        break
                mi += 1
        self.play([x for _, x in pend])
        for key in sorted(fill):
            self.play(fill[key])

    def gemm(self, frags, fill=None, D=6):
        self.gemm_run(self.gemm_begin(frags, D), fill)


def merge_waits(lines):
    import re
    out = []
    for l in lines:
        m = re.match(r"\s*s_waitcnt (\w+)\((\d+)\)$", l)
        if m and out:
            p = re.match(r"\s*s_waitcnt (\w+)\((\d+)\)$", out[-1])
            if p and p.group(1) != m.group(1):
                out[-1] = out[-1] + f" {m.group(1)}({m.group(2)})"
                continue
        out.append(l)
    return out


def spread(fill, items, start, step, per=1):
    p = start
    if step == 0:
        g = lambda: [x() for x in items]
        g.cost = sum(getattr(x, "cost", 4) for x in items)
        fill.setdefault(int(p), []).append(g)
        return p
    for i in range(0, len(items), per):
        fill.setdefault(int(p), []).extend(items[i:i + per])
        p += step
    return p


def insn_sizes(lines, tailcode):
    import subprocess, tempfile, re, os
    src = [".amdgcn_target \"amdgcn-amd-amdhsa--gfx950\"", ".text", ".set CODE_BYTES, 0x12345"]
    for i, l in enumerate(lines):
        src.append(f"Lz{i}:")
        src.append(l)
    src.append(f"Lz{len(lines)}:")
    src += tailcode
    with tempfile.TemporaryDirectory() as d:
        open(d + "/a.s", "w").write("\n".join(src) + "\n")
        subprocess.run(["clang", "-x", "assembler", "-target", "amdgcn-amd-amdhsa", "-mcpu=gfx950", "-c", d + "/a.s", "-o", d + "/a.o"], check=True)
        out = subprocess.run(["llvm-objdump", "-t", d + "/a.o"], capture_output=True, text=True, check=True).stdout
    addr = {}
    for l in out.splitlines():
        m = re.match(r"([0-9a-f]+) .*\sLz(\d+)$", l)
        if m:
            addr[int(m.group(2))] = int(m.group(1), 16)
    return [addr[i + 1] - addr[i] for i in range(len(lines))]


def add_pads(lines, tailcode, step):
    ci = [i for i, l in enumerate(lines) if l.strip() == "PADCALL"][0]
    lines = lines[:ci] + lines[ci + 1:]
    sz = insn_sizes(lines, tailcode)
    body, pos, nxt, n = [], 4, step, 0
    for i in range(ci, len(lines)):
        if pos >= nxt and sz[i] > 0:
            body.append(("PAD", n))
            n += 1
            pos += 4
            nxt = (pos // step + 1) * step
        body.append(lines[i])
        pos += sz[i]
    out = lines[:ci]
    out += ["    s_mov_b64 exec, 0"]
    for w in range(3):
        out += [f"    s_cmp_eq_u32 s{sW}, {w}", f"    s_cbranch_scc1 L_pad{w}"]
    out += ["    s_branch L_pad3", ".p2align 12", "L_padret:", "    s_mov_b64 exec, -1"]
    for x in body:
        if isinstance(x, tuple):
            j = x[1]
            out += [f"L_pad{j}:", f"    s_cbranch_execz {'L_pad%d' % (j + 4) if j + 4 < n else 'L_padret'}"]
        else:
            out.append(x)
    return out


def mix(a, b, ratio):
    out = []
    bi = 0
    for i, x in enumerate(a):
        out.append(x)
        if (i + 1) % ratio == 0 and bi < len(b):
            out.append(b[bi]); bi += 1
    out.extend(b[bi:])
    return out


def act(ks, rb):
    return vACT + 8 * ks + 4 * rb


def gen(stamps=False, opts=None):
    k = K(stamps, opts)
    o = k.o
    if stamps:
        k(f"{'s_memrealtime' if o.get('rt') else 's_memtime'} s[{sST}:{sST+1}]")
        k(f"s_memrealtime s[{sPC}:{sPC+1}]")
    k(f"""
    s_cmp_ge_u32 s2, 256
    s_cbranch_scc1 L_end
    s_load_dwordx2 s[{S_X}:{S_X+1}], s[0:1], 0
    s_load_dwordx2 s[{S_WQKV}:{S_WQKV+1}], s[0:1], 8
    s_load_dwordx2 s[{S_WS}:{S_WS+1}], s[0:1], 64
    s_load_dwordx2 s[{S_WO}:{S_WO+1}], s[0:1], 16
    s_load_dwordx2 s[{S_W1}:{S_W1+1}], s[0:1], 32
    s_load_dwordx2 s[{S_W2}:{S_W2+1}], s[0:1], 40
    s_load_dwordx2 s[{S_OUT}:{S_OUT+1}], s[0:1], 48
    """)
    if o.get("cw0", 1):
        k(f"""
        s_getpc_b64 s[{S_A}:{S_A+1}]
        L_pcref:
        s_lshr_b32 s{sT2}, s2, 3
        s_lshl_b32 s{sT2}, s{sT2}, 11
        v_lshlrev_b32 v{vT3}, 3, v0
        v_add_u32 v{vT3}, s{sT2}, v{vT3}
        v_min_u32 v{vT3}, CODE_BYTES, v{vT3}
        s_mov_b32 exec_lo, 0x10001
        s_mov_b32 exec_hi, 0x10001
        global_load_dword a{aDUM}, v{vT3}, s[{S_A}:{S_A+1}]
        s_mov_b64 exec, -1
        """)
    k(f"""
    v_lshrrev_b32 v{vT0}, 6, v0
    v_and_b32 v{vLANE}, 63, v0
    s_mov_b32 s{S_X+2}, {2048*1024}
    v_readfirstlane_b32 s{sW}, v{vT0}
    s_mov_b32 s{S_X+3}, 0x20000
    s_mov_b32 s{S_WQKV+2}, {512*3072}
    s_mov_b32 s{S_WQKV+3}, 0x20000
    s_lshr_b32 s{sT0}, s2, 3
    s_and_b32 s{sC}, s{sT0}, 15
    s_lshr_b32 s{sT0}, s{sT0}, 4
    s_and_b32 s{sG}, s2, 7
    s_lshl1_add_u32 s{sG}, s{sG}, s{sT0}
    s_lshr_b32 s{sT1}, s{sC}, 1
    s_xor_b32 s{sT1}, s{sT1}, s{sT0}
    s_and_b32 s{sT1}, s{sT1}, 1
    s_and_b32 s{sRHO}, s{sC}, 1
    s_lshl1_add_u32 s{sRHO}, s{sT1}, s{sRHO}
    v_lshlrev_b32 v{vL16}, 4, v{vLANE}
    """)
    if stamps:
        k(f"v_mov_b32 v{vSTAMP}, 0")
    NTP = " nt" if o.get("nt", 3) & 1 else ""
    NTX = " nt" if o.get("nt", 3) & 2 else ""
    XS, XR, X2R = vRES, vRES + 4, act(15, 1)
    aRES = 246
    k(f"""
    v_lshrrev_b32 v{vT0}, 4, v{vLANE}
    v_and_b32 v{vT1}, 15, v{vLANE}
    v_xor_b32 v{vT2}, v{vT0}, v{vT1}
    v_lshlrev_b32 v{vT2}, 4, v{vT2}
    v_lshl_add_u32 v{XS}, v{vT0}, 10, v{vT2}
    v_xor_b32 v{XS+1}, 64, v{XS}
    v_xor_b32 v{XS+2}, 0x80, v{XS}
    v_xor_b32 v{XS+3}, 0xc0, v{XS}
    v_lshrrev_b32 v{vP}, 2, v{vLANE}
    v_and_b32 v{vCH}, 3, v{vLANE}
    v_lshrrev_b32 v{vT3}, 3, v{vLANE}
    v_and_b32 v{vT3}, 2, v{vT3}
    v_xor_b32 v{vCH}, v{vCH}, v{vT3}
    v_lshlrev_b32 v{vCH}, 4, v{vCH}
    v_and_b32 v{vT3}, 3, v{vP}
    v_lshl_add_u32 v{vT3}, v{vT0}, 3, v{vT3}
    s_movk_i32 s{sT1}, 3072
    v_mad_u32_u24 v{vDM}, v{vT3}, s{sT1}, v{vCH}
    s_lshl_b32 s{sL0}, s{sW}, 14
    s_add_u32 s{sL0}, s{sL0}, {L_XST}
    s_lshl_b32 s{sT1}, s{sG}, 17
    s_lshl_b32 s{sT2}, s{sW}, 15
    s_add_u32 s{sT1}, s{sT1}, s{sT2}
    s_lshl_b32 s{sL1}, s{sW}, 12
    """)
    for r in range(4):
        k(f"""
        s_add_u32 s{sT2}, s{sRHO}, {r}
        s_and_b32 s{sT2}, s{sT2}, 3
        s_lshl_b32 s{sT3}, s{sT2}, 8
        s_add_u32 s{sD0+r}, s{sT1}, s{sT3}
        s_lshl2_add_u32 s{sT2}, s{sT2}, s{sW}
        s_mul_i32 s{sT2}, s{sT2}, {32*3072}
        s_lshl_b32 s{sT3}, s{sC}, 6
        s_add_u32 s{sRB+r}, s{sT2}, s{sT3}
        """)
    k("s_waitcnt lgkmcnt(0)")
    k(f"s_load_dword s{sEP}, s[{S_WS}:{S_WS+1}], {WS_EPOCH}")
    if stamps:
        k(f"v_writelane_b32 v{vSTAMP}, s{sST}, 62")
        k(f"v_writelane_b32 v{vSTAMP}, s{sPC}, 63")

    def xslot(q, js=range(8)):
        for j in js:
            k.dma(S_X, XS + (j & 3), sD0 + q, j * 4096, sL0, (q & 1) * 8192 + j * 1024, ("xs", q), " nt" if o.get("nt", 3) & 4 else "")

    def wkv_raw(r):
        for pr in range(2):
            for hh in range(2):
                k.dma(S_WQKV, vDM, sRB + r, hh * 4 * 3072 + 1024 * (pr + 1), sL1, R0 + r * 16384 + pr * 2048 + hh * 1024, ("wkv", r))

    def quad_lane(pitch, dst=vDM, tmp=vT2, sD3=sD3):
        vT2 = tmp
        k(f"v_lshrrev_b32 v{dst}, 3, v{vLANE}")
        k(f"v_and_b32 v{vT2}, 6, v{dst}")
        k(f"v_xor_b32 v{vT2}, v{vT2}, v{vLANE}")
        k(f"v_and_b32 v{vT2}, 7, v{vT2}")
        k(f"v_lshlrev_b32 v{vT2}, 4, v{vT2}")
        if isinstance(pitch, int):
            k(f"s_movk_i32 s{sD3}, {pitch}")
            pitch = f"s{sD3}"
        k(f"v_mad_u32_u24 v{dst}, v{dst}, {pitch}, v{vT2}")

    def dma_raw(sr, lds_imm, first, R=None):
        sD0_, sD2_, sL0_, vDM_ = R or (sD0, sD2, sL0, vDM)
        with k.atomic():
            k(f"s_add_u32 m0, s{sL0_}, {lds_imm}")
            k("s_nop 0" if first else f"s_add_u32 s{sD0_}, s{sD0_}, s{sD2_}")
            k(f"buffer_load_dwordx4 v{vDM_}, {srd(sr)}, s{sD0_} offen{NTP} lds")

    def packU_issue(base, sD0, sD1, sD2, sD3, sL0, vDM, sPDA, shift=12):
        R = (sD0, sD2, sL0, vDM)
        l2, l3, lq, le = k.label("L_u2"), k.label("L_u3"), k.label("L_uq"), k.label("L_ue")
        with k.atomic():
            k(f"""
            s_lshl_b32 s{sL0}, s{sW}, {shift}
            s_add_u32 s{sL0}, s{sL0}, {base}
            s_lshr_b32 s{sD0}, s{sC}, 2
            s_mul_i32 s{sD0}, s{sD0}, 896
            s_mul_i32 s{sD1}, s{sG}, {32*3584}
            s_add_u32 s{sD0}, s{sD0}, s{sD1}
            s_and_b32 s{sD1}, s{sC}, 3
            s_cmp_eq_u32 s{sW}, 3
            s_cbranch_scc1 {l3}
            s_cmp_eq_u32 s{sW}, 2
            s_cbranch_scc1 {l2}
            s_mov_b32 s{S_A}, s{S_W2}
            s_mov_b32 s{S_A+1}, s{S_W2+1}
            s_mov_b32 s{S_A+2}, {1792*1024}
            s_movk_i32 s{sD2}, 1024
            s_lshl1_add_u32 s{sD0}, s2, s{sW}
            s_lshr_b32 s{sD1}, s{sD0}, 3
            s_and_b32 s{sD0}, s{sD0}, 7
            s_mul_i32 s{sPDA}, s{sD0}, 56
            s_add_u32 s{sPDA}, s{sPDA}, s{sD1}
            s_lshl_b32 s{sPDA}, s{sPDA}, 12
            s_add_u32 s{sPDA}, s{sPDA}, {WS_W2T}
            s_cmp_ge_u32 s{sD1}, 56
            s_cselect_b32 s{sPDA}, {OOB}, s{sPDA}
            s_lshl_b32 s{sD1}, s{sD1}, 15
            s_lshl_b32 s{sD0}, s{sD0}, 7
            s_add_u32 s{sD0}, s{sD0}, s{sD1}
            s_branch {lq}
            {l2}:
            s_mov_b32 s{S_A}, s{S_W1}
            s_mov_b32 s{S_A+1}, s{S_W1+1}
            s_mov_b32 s{S_A+2}, {512*3584}
            s_movk_i32 s{sD2}, 3584
            s_lshl_b32 s{sD1}, s{sD1}, 7
            s_add_u32 s{sD0}, s{sD0}, s{sD1}
            s_lshl_b32 s{sPDA}, s{sG}, 12
            s_add_u32 s{sPDA}, s{sPDA}, s{sPKB}
            s_add_u32 s{sPDA}, s{sPDA}, {PK_W1A}
            {lq}:
            s_mov_b32 s{S_A+3}, 0x20000
            """)
            quad_lane(f"s{sD2}", vDM, vT2 if shift == 14 else vACT + 127)
            k(f"s_lshl_b32 s{sD2}, s{sD2}, 3")
            for j in range(4):
                dma_raw(S_A, j * 1024, j == 0, R)
            k(f"""
            s_branch {le}
            {l3}:
            s_movk_i32 s{sD3}, 3584
            s_mul_i32 s{sPDA}, s{sG}, 3072
            s_add_u32 s{sPDA}, s{sPDA}, s{sPKB}
            s_add_u32 s{sPDA}, s{sPDA}, {PK_W1B}
            s_lshr_b32 s{sT5}, s{sD1}, 1
            s_mul_i32 s{sT5}, s{sT5}, 6
            s_and_b32 s{sD2}, s{sD1}, 1
            s_add_u32 s{sT5}, s{sT5}, s{sD2}
            s_add_u32 s{sT5}, s{sT5}, 18
            s_lshl_b32 s{sT5}, s{sT5}, 5
            s_add_u32 s{sT5}, s{sT5}, s{sD0}
            v_lshrrev_b32 v{vDM}, 1, v{vLANE}
            v_and_b32 v{vT2 if shift == 14 else vACT + 127}, 16, v{vL16}
            v_mad_u32_u24 v{vDM}, v{vDM}, s{sD3}, v{vT2 if shift == 14 else vACT + 127}
            s_add_u32 m0, s{sL0}, 2048
            s_mul_i32 s{sD1}, s{sD1}, 3
            buffer_load_dwordx4 v{vDM}, {srd(S_W1)}, s{sT5} offen{NTP} lds
            s_add_u32 s{sD1}, s{sD1}, 17
            s_lshr_b32 s{sD1}, s{sD1}, 1
            s_lshl_b32 s{sD1}, s{sD1}, 6
            s_add_u32 s{sD0}, s{sD0}, s{sD1}
            s_mov_b32 s{sD2}, {16*3584}
            v_mad_u32_u24 v{vDM}, v{vP}, s{sD3}, v{vCH}
            """)
            for hh in range(2):
                dma_raw(S_W1, hh * 1024, hh == 0, R)
            k(f"buffer_load_dword a{aDUM}, v{vL16}, {srd(S_W1)}, s{S_W1+2} offen")
            k(f"{le}:")
            k.vm_note(4, "pu")

    WP = o.get("wp", 1)

    def warm():
        k(f"v_lshlrev_b32 v{vT3}, 7, v{vLANE}")
        k("s_mov_b64 exec, 0xf")
        if not o.get("cw0", 1):
            k(f"""
            s_getpc_b64 s[{sPC}:{sPC+1}]
            L_pcref:
            s_lshr_b32 s{sT2}, s2, 3
            s_lshl2_add_u32 s{sT2}, s{sT2}, s{sW}
            s_lshl_b32 s{sT2}, s{sT2}, 9
            s_min_u32 s{sT2}, s{sT2}, CODE_BYTES
            s_add_u32 s{sPC}, s{sPC}, s{sT2}
            s_addc_u32 s{sPC+1}, s{sPC+1}, 0
            """)
            k.vmem(f"global_load_dword a{aDUM}, v{vT3}, s[{sPC}:{sPC+1}]")
        if o.get("warm", 1) >= 1:
            k(f"s_lshl2_add_u32 s{sT2}, s2, s{sW}")
            k(f"s_lshr_b32 s{sT3}, s{sT2}, 1")
            k(f"s_mul_i32 s{sT3}, s{sT3}, 3072")
            k(f"s_and_b32 s{sT4}, s{sT2}, 1")
            k(f"s_lshl_b32 s{sT4}, s{sT4}, 9")
            k(f"s_add_u32 s{sT3}, s{sT3}, s{sT4}")
            k.vmem(f"buffer_load_dword a{aDUM}, v{vT3}, {srd(S_WQKV)}, s{sT3} offen")
            if not WP:
                k(f"s_lshl_b32 s{sT3}, s{sT2}, 9")
                k.vmem(f"buffer_load_dword a{aDUM}, v{vT3}, {srd(S_WO)}, s{sT3} offen")
        if o.get("tlb", 0):
            k("s_mov_b64 exec, 1")
            k(f"s_mul_i32 s{sT3}, s{sT2}, 1792")
            k.vmem(f"buffer_load_dword a{aDUM}, v{vT3}, {srd(S_W1)}, s{sT3} offen")
            k.vmem(f"buffer_load_dword a{aDUM}, v{vT3}, {srd(S_W2)}, s{sT3} offen")
            if o["tlb"] > 1:
                k("s_mov_b64 exec, 0x1f")
                k(f"v_lshlrev_b32 v{vWB}, 21, v{vLANE}")
                k(f"s_mov_b32 s{sT3}, {WS_KVX + 0x1f0000}")
                k.vmem(f"buffer_load_dword a{aDUM}, v{vWB}, {srd(S_WS)}, s{sT3} offen")
        if o.get("warm", 1) >= 2:
            k(f"s_mul_i32 s{sT3}, s{sT2}, 1792")
            k("s_mov_b64 exec, 0x3fff")
            k.vmem(f"buffer_load_dword a{aDUM}, v{vT3}, {srd(S_W1)}, s{sT3} offen")
            k.vmem(f"buffer_load_dword a{aDUM}, v{vT3}, {srd(S_W2)}, s{sT3} offen")
        k(f"s_lshl2_add_u32 s{sT2}, s{sC}, s{sW}")
        k(f"s_lshl_b32 s{sT2}, s{sT2}, 8")
        k(f"s_add_u32 s{sT2}, s{sT2}, s{sGB}")
        k("s_mov_b64 exec, 3")
        k.vmem(f"buffer_load_dword a{aDUM}, v{vT3}, {srd(S_WS)}, s{sT2} offen sc1", "touch")
        k("s_mov_b64 exec, -1")

    OWN = vACC
    k(f"s_lshl_b32 s{sT2}, s{sC}, 11")
    k(f"s_add_u32 s{sT2}, s{sT2}, s{sT1}")
    for r in range(2):
        k.vmem(f"buffer_load_dwordx4 {vr(OWN+4*r,4)}, v{vL16}, {srd(S_X)}, s{sT2} offen offset:{r*1024}{NTX}", "own")
    w0_ = k.rec(lambda: wkv_raw(0))
    nw0 = o.get("nw0", 4)
    k.play(w0_[:nw0])
    k(f"""
    s_mov_b32 s{S_WO+2}, {512*1024}
    s_mov_b32 s{S_WO+3}, 0x20000
    s_mov_b32 s{S_W1+2}, {512*3584}
    s_mov_b32 s{S_W1+3}, 0x20000
    s_mov_b32 s{S_W2+2}, {1792*1024}
    s_mov_b32 s{S_W2+3}, 0x20000
    s_mov_b32 s{S_WS+2}, {WS_USED}
    s_mov_b32 s{S_WS+3}, 0x20000
    s_lshl_b32 s{sGB}, s{sG}, 20
    s_add_u32 s{sGB}, s{sGB}, {GRP0}
    """)
    warm()
    UF = o.get("uf", 1)
    k(f"s_mul_i32 s{sPKB}, s{sC}, {PK_SZ}")
    k(f"s_add_u32 s{sPKB}, s{sPKB}, {WS_PK}")
    if UF == 1:
        packU_issue(R1, sH1, sH1b, sH2, sH2b, sH3, vWB + 8, sPDB)
    if WP:
        quad_lane(1024, vWB + 8, vACT + 127, sH2b)
        k(f"""
        s_lshl2_add_u32 s{sH1}, s{sG}, s{sW}
        s_lshl_b32 s{sPDA}, s{sH1}, 10
        s_add_u32 s{sPDA}, s{sPDA}, s{sPKB}
        s_add_u32 s{sPDA}, s{sPDA}, {PK_WO}
        s_lshl_b32 s{sH1}, s{sH1}, 13
        s_lshl_b32 s{sH1b}, s{sC}, 7
        s_add_u32 s{sH1}, s{sH1}, s{sH1b}
        s_cmp_ge_u32 s{sC}, 8
        s_cselect_b32 s{sH1}, {OOB}, s{sH1}
        s_cselect_b32 s{sPDA}, {OOB}, s{sPDA}
        s_lshl_b32 s{sH1b}, s{sW}, 10
        s_add_u32 m0, s{sH1b}, {R0 + 49152}
        s_nop 0
        """)
        k.vmem(f"buffer_load_dwordx4 v{vWB+8}, {srd(S_WO)}, s{sH1} offen{NTP} lds", "pwo")

    k.play(w0_[nw0:])

    def arm(mode):
        with k.atomic():
            k(f"s_lshl2_add_u32 s{sT2}, s{sC}, s{sW}")
            k(f"s_lshl_b32 s{sT3}, s{sT2}, 11")
            k(f"s_add_u32 s{sT3}, s{sT3}, s{sGB}")
            k(f"s_add_u32 s{sT3}, s{sT3}, {G_X1}")
            k(f"s_lshr_b32 s{sT4}, s{sT2}, 3")
            k(f"s_mul_i32 s{sT4}, s{sT4}, 57344")
            k(f"s_and_b32 s{sT2}, s{sT2}, 7")
            k(f"s_mul_i32 s{sT2}, s{sT2}, {5120 if mode & 4 else 1024}")
            k(f"s_add_u32 s{sT4}, s{sT4}, s{sT2}")
            k(f"s_add_u32 s{sT4}, s{sT4}, s{sGB}")
            k(f"s_add_u32 s{sT4}, s{sT4}, {G_H + 16*1024}")
            k(f"s_add_u32 s{sT2}, s{sT4}, 4096")
        if mode & 1:
            for j in range(2):
                k.vmem(f"buffer_store_dwordx4 {vr(vQ0,4)}, v{vL16}, {srd(S_WS)}, s{sT3} offen offset:{j*1024} sc1", "arm")
        for j in range(5 if mode & 4 else 1 if mode & 2 else 0):
            k.vmem(f"buffer_store_dwordx4 {vr(vQ0,4)}, v{vL16}, {srd(S_WS)}, s{sT4 if j < 4 else sT2} offen offset:{(j%4)*1024} sc1", "arm")

    k(f"""
    s_mov_b32 s{S_OUT+2}, {2048*1024}
    s_mov_b32 s{S_OUT+3}, 0x20000
    s_lshr_b32 s{sDH}, s{sC}, 3
    s_and_b32 s{sCT}, s{sC}, 7
    s_mov_b32 s{sBUD}, 150000
    s_mov_b32 s{sEPS}, 0x358637bd
    s_mov_b32 s{sEPS+1}, 0x358637bd
    s_getreg_b32 s{sXCC}, hwreg(HW_REG_XCC_ID, 0, 4)
    s_lshl_b32 s{sACT}, s{sW}, 15
    s_add_u32 s{sACT}, s{sACT}, s{sGB}
    s_add_u32 s{sACT1}, s{sACT}, 16384
    s_lshl2_add_u32 s{sT0}, s{sDH}, s{sW}
    s_lshl_b32 s{sBACT}, s{sT0}, 14
    s_add_u32 s{sBACT}, s{sBACT}, s{sGB}
    s_lshl_b32 s{sTILE}, s{sCT}, 11
    s_add_u32 s{sTILE}, s{sTILE}, s{sBACT}
    s_mul_i32 s{sBACT}, s{sT0}, 57344
    s_add_u32 s{sBACT}, s{sBACT}, s{sGB}
    s_mul_i32 s{sOST}, s{sW}, {2*57344}
    s_lshl_b32 s{sOST1}, s{sC}, 10
    s_add_u32 s{sOST}, s{sOST}, s{sOST1}
    s_add_u32 s{sOST}, s{sOST}, s{sGB}
    s_add_u32 s{sOST}, s{sOST}, {G_O}
    s_add_u32 s{sOST1}, s{sOST}, 57344
    s_lshl_b32 s{sFXp}, s{sW}, 7
    s_add_u32 s{sFXp}, s{sFXp}, s{sGB}
    s_lshl2_add_u32 s{sFOo}, s{sC}, s{sFXp}
    s_lshl_b32 s{sFHp}, s{sT0}, 7
    s_add_u32 s{sFHp}, s{sFHp}, s{sGB}
    s_lshr_b32 s{sT0}, s{sT0}, 1
    s_mov_b32 s{sT1}, s{sT0}
    s_lshl_b32 s{sFOp}, s{sT0}, 7
    s_add_u32 s{sFOp}, s{sFOp}, s{sGB}
    s_and_b32 s{sT2}, s{sW}, 1
    s_lshl1_add_u32 s{sT3}, s{sCT}, s{sT2}
    s_lshl2_add_u32 s{sFXo}, s{sT3}, s{sFOp}
    s_lshl3_add_u32 s{sT3}, s{sT0}, s{sCT}
    s_lshl_b32 s{sT3}, s{sT3}, 8
    s_lshl3_add_u32 s{sT3}, s{sT2}, s{sT3}
    s_add_u32 s{sSTo}, s{sT3}, s{sGB}
    s_lshl_b32 s{sSTg}, s{sW}, 11
    s_add_u32 s{sSTg}, s{sSTg}, s{sGB}
    s_lshl2_add_u32 s{sT1}, s{sT1}, s{sT2}
    s_lshl_b32 s{sT1}, s{sT1}, 6
    s_add_u32 s{sT1}, s{sT1}, {L_STAT + 128}
    v_lshl_add_u32 v{vT3}, v{vT1}, 2, s{sT1}
    v_accvgpr_write_b32 a{cRSD}, v{vT3}
    s_mul_i32 s{sT0}, s{sW}, {2*57344}
    s_add_u32 s{sT0}, s{sT0}, s{sGB}
    s_lshr_b32 s{sT3}, s{sC}, 2
    s_add_u32 s{sT0}, s{sT0}, {G_H}
    s_lshl_b32 s{sH1}, s{sC}, 11
    s_add_u32 s{sH1}, s{sH1}, {24*1024}
    s_add_u32 s{sH1}, s{sH1}, s{sT0}
    s_add_u32 s{sH1b}, s{sH1}, 57344
    s_mul_i32 s{sT4}, s{sT3}, 6144
    s_add_u32 s{sT0}, s{sT0}, s{sT4}
    s_and_b32 s{sT4}, s{sC}, 3
    s_mul_i32 s{sH2}, s{sT4}, 3
    s_add_u32 s{sH2}, s{sH2}, 1
    s_lshr_b32 s{sH2}, s{sH2}, 1
    s_lshl_b32 s{sH2}, s{sH2}, 10
    s_add_u32 s{sH2}, s{sH2}, s{sT0}
    s_add_u32 s{sH2b}, s{sH2}, 57344
    s_lshr_b32 s{sH3}, s{sT4}, 1
    s_mul_i32 s{sH3}, s{sH3}, 3072
    s_and_b32 s{sH3b}, s{sT4}, 1
    s_lshl3_add_u32 s{sH3}, s{sH3b}, s{sH3}
    s_add_u32 s{sH3}, s{sH3}, 1024
    s_add_u32 s{sH3}, s{sH3}, s{sT0}
    s_add_u32 s{sH3b}, s{sH3}, 57344
    s_lshr_b32 s{sT0}, s{sW}, 1
    s_lshl2_add_u32 s{sT0}, s{sT0}, s{sT3}
    s_lshl_b32 s{sT0}, s{sT0}, 7
    s_lshl1_add_u32 s{sT2}, s{sT4}, s{sT2}
    s_lshl2_add_u32 s{sT0}, s{sT2}, s{sT0}
    s_add_u32 s{sFHo}, s{sT0}, s{sGB}
    """)
    k(f"""
    s_mul_i32 s{sT0}, s{sC}, {KVX_C}
    s_add_u32 s{sT0}, s{sT0}, {WS_KVX}
    s_lshl_b32 s{sT1}, s{sW}, 13
    s_add_u32 s{sKVC}, s{sT0}, s{sT1}
    s_lshl_b32 s{sT2}, s{sW}, 14
    s_lshl_b32 s{sT3}, s{sG}, 10
    s_lshl_b32 s{sT4}, s{sG}, 7
    s_cmp_lt_u32 s{sW}, 2
    s_cselect_b32 s{sT3}, s{sT3}, s{sT4}
    s_cselect_b32 s{sKM}, -1, 0x30003
    s_cselect_b32 s{sKM+1}, -1, 0x30003
    s_cselect_b64 vcc, -1, 0
    s_add_u32 s{sKVP}, s{sT0}, s{sT2}
    s_add_u32 s{sKVP}, s{sKVP}, s{sT3}
    s_cmp_eq_u32 s{sW}, 3
    s_cselect_b32 s{sKVP}, {OOB}, s{sKVP}
    v_lshlrev_b32 v{vT3}, 4, v{vT0}
    v_lshl_add_u32 v{vT3}, v{vT1}, 6, v{vT3}
    v_cndmask_b32 v{vT3}, v{vT3}, v{vL16}, vcc
    v_accvgpr_write_b32 a{cKVS}, v{vT3}
    v_lshlrev_b32 v{vT3}, 2, v{vL16}
    v_and_b32 v{vT3}, 0xf00, v{vT3}
    v_lshrrev_b32 v{vT3}, 1, v{vT3}
    v_and_b32 v{vWB}, 48, v{vL16}
    s_lshr_b32 s{sT2}, s{sW}, 1
    s_lshl_b32 s{sT2}, s{sT2}, 6
    s_add_u32 s{sT2}, s{sT2}, 32768
    s_sub_u32 s{sT2}, s{sT2}, s{sT1}
    v_add3_u32 v{vT3}, v{vT3}, v{vWB}, s{sT2}
    v_accvgpr_write_b32 a{cZL}, v{vT3}
    v_and_b32 v{vWB+5}, 1, v{vLANE}
    v_cndmask_b32 v{vWB+5}, v{vWB+5}, 0, vcc
    s_min_u32 s{sT5}, s{sW}, 2
    """)
    W = vWB
    k(f"""
    v_lshl_add_u32 v{XR}, v{vT1}, 8, v{vT2}
    v_add_u32 v{XR}, s{sL0}, v{XR}
    v_xor_b32 v{XR+1}, 64, v{XR}
    v_xor_b32 v{XR+2}, 0x80, v{XR}
    v_xor_b32 v{XR+3}, 0xc0, v{XR}
    v_and_b32 v{vT3}, 3, v{vLANE}
    v_lshlrev_b32 v{vT3}, 3, v{vT3}
    v_lshl_add_u32 v{vTR0}, v{vP}, 6, v{vT3}
    v_lshl_add_u32 v{vQ0}, v{vP}, 7, v{vT3}
    v_and_b32 v{vT3}, 1, v{vT0}
    v_lshlrev_b32 v{vT3}, 5, v{vT3}
    v_add_u32 v{vTR0}, v{vTR0}, v{vT3}
    v_xor_b32 v{vTR1}, 32, v{vTR0}
    v_bfe_u32 v{vT3}, v{vLANE}, 3, 2
    v_lshl_add_u32 v{vQ0}, v{vT3}, 5, v{vQ0}
    v_xor_b32 v{vQ1}, 32, v{vQ0}
    v_xor_b32 v{vQ2}, 64, v{vQ0}
    v_xor_b32 v{vQ3}, 0x60, v{vQ0}
    v_lshlrev_b32 v{W}, 2, v{vT1}
    v_accvgpr_write_b32 a{cP16}, v{W}
    v_mov_b32 v{W+1}, {BF1}
    v_accvgpr_write_b32 a{aONES}, v{W+1}
    v_accvgpr_write_b32 a{aONES+1}, v{W+1}
    v_accvgpr_write_b32 a{aONES+2}, v{W+1}
    v_accvgpr_write_b32 a{aONES+3}, v{W+1}
    v_add_u32 v{W+1}, {L_CS}, v{W}
    v_accvgpr_write_b32 a{cCSA}, v{W+1}
    v_and_b32 v{W+2}, 48, v{vLANE}
    v_add_u32 v{W+1}, {L_CS}, v{W+2}
    v_accvgpr_write_b32 a{cCSB}, v{W+1}
    v_lshlrev_b32 v{W+1}, 2, v{vT0}
    v_lshl_add_u32 v{W+1}, v{vT1}, 4, v{W+1}
    v_accvgpr_write_b32 a{cSTO}, v{W+1}
    s_lshl_b32 s{sT0}, s{sW}, 8
    s_add_u32 s{sT0}, s{sT0}, {L_STAT}
    v_add_u32 v{W+1}, s{sT0}, v{W}
    v_accvgpr_write_b32 a{cSTA}, v{W+1}
    v_and_b32 v{W+3}, 32, v{vLANE}
    v_lshl_add_u32 v{W+1}, v{W+3}, 1, v{W+1}
    v_accvgpr_write_b32 a{cSTW}, v{W+1}
    v_add_u32 v{W+1}, s{sT0}, v{W+2}
    v_accvgpr_write_b32 a{cSTB}, v{W+1}
    s_lshl_b32 s{sT0}, s{sW}, 10
    v_add_u32 v{W+1}, s{sT0}, v{vL16}
    v_accvgpr_write_b32 a{cKW}, v{W+1}
    v_add_u32 v{W+3}, {R2 + 8192}, v{W+1}
    v_accvgpr_write_b32 a{cKW1}, v{W+3}
    s_lshl_b32 s{sT0}, s{sT5}, 14
    v_add_u32 v{W+1}, s{sT0}, v{vL16}
    v_lshl_add_u32 v{W+1}, v{W+5}, 12, v{W+1}
    v_accvgpr_write_b32 a{cKR}, v{W+1}
    s_lshl_b32 s{sT0}, s{sT5}, 14
    s_add_u32 s{sT0}, s{sT0}, {R2 + 8192}
    v_add_u32 v{W+1}, s{sT0}, v{vL16}
    v_lshl_add_u32 v{W+1}, v{W+5}, 14, v{W+1}
    v_accvgpr_write_b32 a{cKR1}, v{W+1}
    v_add_u32 v{W+1}, {L_XB}, v{vL16}
    v_accvgpr_write_b32 a{cXR}, v{W+1}
    v_lshlrev_b32 v{W+3}, 3, v{vT0}
    v_add_u32 v{W+3}, {L_ZB}, v{W+3}
    v_accvgpr_write_b32 a{cZR}, v{W+3}
    """)
    k(f"""
    s_lshl_b32 s{sT0}, s{sW}, 10
    v_add_u32 v{W+1}, s{sT0}, v{W+1}
    v_accvgpr_write_b32 a{cXW}, v{W+1}
    v_and_b32 v{W+3}, 1, v{vT0}
    v_lshrrev_b32 v{W+4}, 1, v{vT0}
    v_lshl_add_u32 v{W+3}, v{W+3}, 1, v{W+4}
    v_and_b32 v{W+4}, 3, v{vLANE}
    v_lshl_add_u32 v{W+3}, v{W+4}, 2, v{W+3}
    s_lshr_b32 s{sT0}, s{sW}, 1
    s_lshl_b32 s{sT0}, s{sT0}, 5
    s_add_u32 s{sT0}, s{sT0}, {L_ZB}
    v_lshl_add_u32 v{W+3}, v{W+3}, 1, s{sT0}
    v_accvgpr_write_b32 a{cZW}, v{W+3}
    """)
    for j in range(4):
        k(f"s_add_u32 s{sT0}, s{sW}, {j}")
        k(f"s_and_b32 s{sT0}, s{sT0}, 3")
        k(f"s_lshl_b32 s{sT0}, s{sT0}, 13")
        k(f"s_add_u32 s{sT0}, s{sT0}, {L_RED + (4096 if j == 2 else 0)}")
        k(f"v_add_u32 v{W+1}, s{sT0}, v{vL16}")
        k(f"v_accvgpr_write_b32 a{cRD0+j}, v{W+1}")
    k(f"""
    s_lshl2_add_u32 s{sT0}, s{sDH}, s{sW}
    s_lshl3_add_u32 s{sT0}, s{sG}, s{sT0}
    s_lshl_b32 s{sT0}, s{sT0}, 14
    s_lshl_b32 s{sT1}, s{sCT}, 7
    s_add_u32 s{sT0}, s{sT0}, s{sT1}
    v_lshl_add_u32 v{W+1}, v{vT1}, 10, s{sT0}
    v_and_b32 v{W+3}, 1, v{vT0}
    v_lshl_add_u32 v{W+1}, v{W+3}, 5, v{W+1}
    v_lshrrev_b32 v{W+3}, 1, v{vT0}
    v_lshl_add_u32 v{W+1}, v{W+3}, 4, v{W+1}
    v_accvgpr_write_b32 a{cOUT}, v{W+1}
    """)

    def xread(q):
        k.vm_wait(("xs", q))
        for ksl in range(4):
            for rb in range(2):
                k.lds(f"ds_read_b128 {vr(act(4*q+ksl, rb),4)}, v{XR+ksl} offset:{(q%2)*8192 + rb*4096}", ("xr", q))

    SUM0, SQ0, SUM1, SQ1 = vACC + 56, vACC + 57, vACC + 58, vACC + 59
    SUMA, SQA = vACC + 48, vACC + 56
    ONES = vPQ + 4
    NM_A, RS_A, RL_A = vACC + 60, vACC + 62, vACC + 56
    NM_B, RS_B, RL_B = vACC + 32, vACC + 40, vACC + 48
    STG = vACC + 48

    def own_stats():
        a, b, c, d = OWN + 8, OWN + 9, OWN + 10, OWN + 11
        k(f"v_mov_b32 v{OWN+12}, {BF1}")
        k.vm_wait("own")
        for j in range(4):
            r0, r1 = OWN + j, OWN + 4 + j
            k(f"v_dot2_f32_bf16 v{a}, v{OWN+12}, v{r0}, {'0' if j == 0 else f'v{a}'}")
            k(f"v_dot2_f32_bf16 v{c}, v{OWN+12}, v{r1}, {'0' if j == 0 else f'v{c}'}")
            k(f"v_dot2_f32_bf16 v{b}, v{r0}, v{r0}, {'0' if j == 0 else f'v{b}'}")
            k(f"v_dot2_f32_bf16 v{d}, v{r1}, v{r1}, {'0' if j == 0 else f'v{d}'}")
        k(f"""
        s_waitcnt lgkmcnt(0)
        s_mul_i32 s{sTAG}, s{sEP}, 0x9E3779B1
        s_add_u32 s{sTAG}, s{sTAG}, 0x7F4A7C15
        s_add_u32 s{sT8}, s{sEP}, 1
        s_and_b32 s{sT8}, s{sT8}, 0xff
        s_mov_b32 s{sS8}, s{sEP}
        v_permlane32_swap_b32 v{a}, v{c}
        v_permlane32_swap_b32 v{b}, v{d}
        v_add_f32 v{a}, v{a}, v{c}
        v_add_f32 v{b}, v{b}, v{d}
        v_mov_b32 v{c}, v{a}
        v_mov_b32 v{d}, v{b}
        s_nop 1
        v_permlane16_swap_b32 v{a}, v{c}
        v_permlane16_swap_b32 v{b}, v{d}
        v_add_f32 v{a}, v{a}, v{c}
        v_add_f32 v{b}, v{b}, v{d}
        """)
        for sh in (8, 4, 2, 1):
            k("s_nop 0")
            k(f"v_add_f32_dpp v{a}, v{a}, v{a} row_ror:{sh} row_mask:0xf bank_mask:0xf")
            k(f"v_add_f32_dpp v{b}, v{b}, v{b} row_ror:{sh} row_mask:0xf bank_mask:0xf")
        k(f"""
        v_mul_f32 v{a}, 0xbb000000, v{a}
        v_mul_f32 v{b}, 0x3b000000, v{b}
        v_fma_f32 v{b}, -v{a}, v{a}, v{b}
        v_max_f32 v{b}, 0, v{b}
        v_add_f32 v{b}, 0x3727c5ac, v{b}
        v_rsq_f32 v{b}, v{b}
        v_mov_b32 v{c}, s{sTAG}
        v_mov_b32 v{d}, s{sXCC}
        v_lshrrev_b32 v{vT3}, 1, v{vLANE}
        s_lshl4_add_u32 s{sT2}, s{sW}, s{sC}
        s_lshl_b32 s{sT2}, s{sT2}, 7
        s_add_u32 s{sT2}, s{sT2}, s{sGB}
        s_add_u32 s{sT2}, s{sT2}, {G_ST0}
        s_mov_b32 exec_lo, 1
        s_mov_b32 exec_hi, 1
        """)
        k.vmem(f"buffer_store_dwordx4 {vr(a,4)}, v{vT3}, {srd(S_WS)}, s{sT2} offen sc1", "ownst")
        k("s_mov_b64 exec, -1")

    S0 = vACC + 52

    def st0_issue():
        with k.atomic():
            k(f"v_and_b32 v{vT0}, 30, v{vLANE}")
            k(f"v_lshlrev_b32 v{vT0}, 6, v{vT0}")
            k(f"v_and_b32 v{vT1}, 16, v{vL16}")
            k(f"v_add_u32 v{vT0}, v{vT0}, v{vT1}")
            k(f"s_add_u32 s{sT4}, s{sSTg}, {G_ST0}")
            k.vmem(f"buffer_load_dwordx4 {vr(S0,4)}, v{vT0}, {srd(S_WS)}, s{sT4} offen sc1", "st0")

    def st0_use():
        lp, ok = k.label("L_s0"), k.label("L_s0ok")
        with k.atomic():
            k.vm_wait("st0")
            k(f"{lp}:")
            k(f"v_cmp_ne_u32 vcc, s{sTAG}, v{S0+2}")
            k(f"s_cbranch_vccz {ok}")
            k(f"buffer_load_dwordx4 {vr(S0,4)}, v{vT0}, {srd(S_WS)}, s{sT4} offen sc1")
            k("s_waitcnt vmcnt(0)")
            k(f"s_sub_u32 s{sBUD}, s{sBUD}, 1")
            k(f"s_cbranch_scc0 {lp}")
            k(f"s_mov_b32 s{sBUD}, 0")
            k(f"{ok}:")
            k(f"v_cmp_ne_u32 vcc, s{sXCC}, v{S0+3}")
            k("s_nop 4")
            k(f"s_or_b32 s{sSLOW}, vcc_lo, {1 if o.get('forceslow') else 0}")
        k.get(vT0, cSTA)
        k(f"v_and_b32 v{vT1}, 16, v{vLANE}")
        k(f"v_lshl_add_u32 v{vT1}, v{vT1}, 2, v{vT0}")
        k.lds(f"ds_write2_b32 v{vT1}, v{S0}, v{S0+1} offset0:0 offset1:32")
        k.lds(f"ds_read2_b32 {vr(NM_A,2)}, v{vT0} offset0:0 offset1:16", "sta")
        k.lds(f"ds_read2_b32 {vr(RS_A,2)}, v{vT0} offset0:32 offset1:48", "sta")

    def stats_finalize(need_rs):
        k.get(vT1, cSTW)
        k.get(vT0, cSTA)
        k(f"""
        v_permlane32_swap_b32 v{SUM0}, v{SUM1}
        v_permlane32_swap_b32 v{SQ0}, v{SQ1}
        v_add_f32 v{SUM0}, v{SUM0}, v{SUM1}
        v_add_f32 v{SQ0}, v{SQ0}, v{SQ1}
        v_mov_b32 v{SUM1}, v{SUM0}
        v_mov_b32 v{SQ1}, v{SQ0}
        s_nop 0
        v_permlane16_swap_b32 v{SUM0}, v{SUM1}
        v_permlane16_swap_b32 v{SQ0}, v{SQ1}
        v_add_f32 v{SUM0}, v{SUM0}, v{SUM1}
        v_add_f32 v{SQ0}, v{SQ0}, v{SQ1}
        v_mul_f32 v{SUM0}, 0xbb000000, v{SUM0}
        v_mul_f32 v{SQ0}, 0x3b000000, v{SQ0}
        v_fma_f32 v{SQ0}, -v{SUM0}, v{SUM0}, v{SQ0}
        v_max_f32 v{SQ0}, 0, v{SQ0}
        v_add_f32 v{SQ0}, 0x3727c5ac, v{SQ0}
        v_rsq_f32 v{SQ0}, v{SQ0}
        s_nop 0
        """)
        k.lds(f"ds_write2_b32 v{vT1}, v{SUM0}, v{SQ0} offset0:0 offset1:32")
        k.lds(f"ds_read2_b32 {vr(NM_A,2)}, v{vT0} offset0:0 offset1:16", "sta")
        if need_rs:
            k.lds(f"ds_read2_b32 {vr(RS_A,2)}, v{vT0} offset0:32 offset1:48", "sta")

    def stats_b():
        k.get(vT1, cSTB)
        for rb in range(2):
            k.lds(f"ds_read_b128 {vr(NM_B+4*rb,4)}, v{vT1} offset:{64*rb}", "sta")
            k.lds(f"ds_read_b128 {vr(RS_B+4*rb,4)}, v{vT1} offset:{128+64*rb}", "sta")

    def stats_scale():
        k.ds_wait("sta")
        for j in range(8):
            k(f"v_mul_f32 v{RL_B+j}, 0x3fb8aa3b, v{RS_B+j}")
        for j in range(2):
            k(f"v_mul_f32 v{RL_A+j}, 0x3fb8aa3b, v{RS_A+j}")

    def set_ones(r):
        for j in range(4):
            k(f"v_mov_b32 v{r+j}, {BF1}")

    def cs_put(first, sblk):
        k.get(vT0, cCSA)
        k(f"s_lshl_b32 s{sT5}, s{sblk}, 6")
        k(f"v_add_u32 v{vT0}, s{sT5}, v{vT0}")
        k.lds(f"ds_write_b32 v{vT0}, a{aCS} offset:{first*64}")

    def phi_block(acc, nm, cs, rl, rs, dst, tmp, lay):
        s1, s2, s3, s4, s5 = [], [], [], [], []
        for p in range(2):
            a2 = vr(acc + 2*p, 2)
            t2 = vr(tmp + 2*p, 2)
            if lay == "b":
                c2, m = bcast(cs, 1, 3)
                s1.append(f"v_pk_fma_f32 {a2}, {vr(nm+2*p,2)}, {c2}, {a2}{m}")
                s2.append(f"v_pk_mul_f32 {t2}, {a2}, {vr(rl+2*p,2)}")
                s4.append(f"v_pk_fma_f32 {a2}, {a2}, {vr(rs+2*p,2)}, {t2}")
            else:
                c2, m = bcast(nm, 1, 3)
                s1.append(f"v_pk_fma_f32 {a2}, {vr(cs+2*p,2)}, {c2}, {a2}{m}")
                c2, m = bcast(rl, 1, 2)
                s2.append(f"v_pk_mul_f32 {t2}, {a2}, {c2}{m}")
                c2, m = bcast(rs, 1, 3)
                s4.append(f"v_pk_fma_f32 {a2}, {a2}, {c2}, {t2}{m}")
            for j in range(2):
                s3.append(f"v_exp_f32 v{tmp+2*p+j}, v{tmp+2*p+j} clamp")
            s5.append(f"v_pk_add_f32 {a2}, {a2}, s[{sEPS}:{sEPS+1}]")
        for s in s1 + s2 + s3:
            k(s)
        for j in range(4):
            k(f"v_max_f32 v{acc+j}, 0, v{acc+j}")
        for s in s4 + s5:
            k(s)
        for p in range(2):
            k(f"v_cvt_pk_bf16_f32 v{dst+p}, v{acc+2*p}, v{acc+2*p+1}")

    def ring(ks, rb):
        return vACT + 8 * (ks % 6) + 4 * rb
    QA, vPARK = vACT + 48, vACT + 64

    def act_loads(bufoff, act=act):
        for ks in range(16):
            for rb in range(2):
                with k.atomic():
                    if ks % 4 == 0:
                        k(f"s_add_u32 s{sT2+rb}, s{sACT+rb}, {bufoff + ks*1024}")
                    k.vmem(f"buffer_load_dwordx4 {vr(act(ks,rb),4)}, v{vL16}, {srd(S_WS)}, s{sT2+rb} offen offset:{(ks%4)*1024} sc1",
                           ("act", ks, rb))

    def stat_loads(stoff):
        k(f"s_add_u32 s{sT4}, s{sSTg}, {stoff}")
        for j in range(2):
            k.vmem(f"buffer_load_dwordx4 {vr(STG+4*j,4)}, v{vL16}, {srd(S_WS)}, s{sT4} offen offset:{j*1024} sc1", "stg")

    def stat_sum():
        lp, ok = k.label("L_sg"), k.label("L_sgok")
        k.vm_wait("stg")

        def chk():
            k(f"v_and_b32 v{SUM0}, v{STG}, v{STG+1}")
            k(f"v_or3_b32 v{SUM0+1}, v{STG}, v{STG+1}, v{STG+2}")
            k(f"v_and_b32 v{SUM0+2}, v{STG+2}, v{STG+3}")
            k(f"v_or3_b32 v{SUM0+1}, v{SUM0+1}, v{STG+3}, v{STG+4}")
            k(f"v_and_b32 v{SUM0}, v{SUM0}, v{STG+4}")
            k(f"v_or3_b32 v{SUM0+1}, v{SUM0+1}, v{STG+5}, v{STG+6}")
            k(f"v_and_b32 v{SUM0+2}, v{SUM0+2}, v{STG+5}")
            k(f"v_and_b32 v{SUM0}, v{SUM0}, v{STG+6}")
            k(f"v_and_b32 v{SUM0+2}, v{SUM0+2}, v{STG+7}")
            k(f"v_or_b32 v{SUM0+1}, v{SUM0+1}, v{STG+7}")
            k(f"v_and_b32 v{SUM0}, v{SUM0}, v{SUM0+2}")
            k(f"v_xor_b32 v{SUM0+1}, s{sS8}, v{SUM0+1}")
            k(f"v_xor_b32 v{SUM0}, s{sS8}, v{SUM0}")
            k(f"v_or_b32 v{SUM0}, v{SUM0}, v{SUM0+1}")
            k(f"v_and_b32 v{SUM0}, 0xff, v{SUM0}")
        chk()
        with k.atomic():
            k(f"v_cmp_ne_u32 vcc, 0, v{SUM0}")
            k(f"s_cbranch_vccnz {lp}")
            k(f"{ok}:")
        sv, k._rec = k._rec, None
        n0 = len(k.lines)
        k(f"{lp}:")
        for j in range(2):
            k(f"buffer_load_dwordx4 {vr(STG+4*j,4)}, v{vL16}, {srd(S_WS)}, s{sT4} offen offset:{j*1024} sc1")
        k("s_waitcnt vmcnt(0)")
        chk()
        k(f"v_cmp_ne_u32 vcc, 0, v{SUM0}")
        k(f"s_cbranch_vccz {ok}")
        k(f"s_sub_u32 s{sBUD}, s{sBUD}, 1")
        k(f"s_cbranch_scc0 {lp}")
        k(f"s_mov_b32 s{sBUD}, 0")
        k(f"s_branch {ok}")
        k.tailcode += k.lines[n0:]
        del k.lines[n0:]
        k._rec = sv
        for j in range(4):
            k(f"v_add_f32 v{SUM0+j}, v{STG+j}, v{STG+4+j}")

    def mf2(acc, ks, sw, wait, first=None, act=act):
        return [(acc + 4 * rb, act(ks, rb), sw, (ks == 0) if first is None else first,
                 (("act", ks, 1) if ks else ("act", ks, rb)) if wait else None) for rb in range(2)]

    def wo_raw():
        with k.atomic():
            quad_lane(1024)
            k(f"s_lshl_b32 s{sD0}, s{sW}, 17")
            k(f"s_lshl_b32 s{sD1}, s{sCT}, 7")
            k(f"s_add_u32 s{sD0}, s{sD0}, s{sD1}")
            k(f"s_lshl_b32 s{sL0}, s{sW}, 14")
        for j in range(16):
            k.dma(S_WO, vDM, sD0, j * 8 * 1024, sL0, R0 + j * 1024, "wo")

    def w1c1_raw():
        with k.atomic():
            quad_lane(3584, tmp=vACT + 127)
            k(f"s_lshr_b32 s{sD0}, s{sC}, 2")
            k(f"s_mul_i32 s{sD0}, s{sD0}, 896")
            k(f"s_and_b32 s{sD1}, s{sC}, 3")
            k(f"s_lshl_b32 s{sD1}, s{sD1}, 7")
            k(f"s_add_u32 s{sD0}, s{sD0}, s{sD1}")
            k(f"s_mul_i32 s{sD1}, s{sW}, {64*3584}")
            k(f"s_add_u32 s{sD0}, s{sD0}, s{sD1}")
            k(f"s_lshl_b32 s{sL0}, s{sW}, 13")
        for half in range(2):
            for j in range(8):
                k.dma(S_W1, vDM, sD0, (half * 256 + j * 8) * 3584, sL0, R1 + half * 32768 + j * 1024, "w1a")

    def lin_dma(src, dst, n, tag, shared=False):
        for j in range(n):
            with k.atomic():
                if j == 0:
                    k(f"s_mul_i32 s{sL0}, s{sW}, {n*1024}")
                    k(f"s_add_u32 s{sD0}, s{sL0}, s{sPKB}")
                    if shared:
                        k(f"s_mul_i32 s{sD1}, s{sDH}, {8*PK_SZ}")
                        k(f"s_sub_u32 s{sD0}, s{sD0}, s{sD1}")
                if j % 4 == 0:
                    k(f"s_add_u32 m0, s{sL0}, {dst + j*1024}")
                    k(f"s_add_u32 s{sD1}, s{sD0}, {src + j*1024}")
                k.vmem(f"buffer_load_dwordx4 v{vL16}, {srd(S_WS)}, s{sD1} offen offset:{(j%4)*1024} sc1 lds", tag)

    def publish_x(bufoff, stoff, floff, pay_sc1):
        k(f"s_add_u32 s{sT1}, s{sTILE}, {bufoff}")
        k.stores([f"buffer_store_dwordx4 {vr(vRES+4*s,4)}, v{vL16}, {srd(S_WS)}, s{sT1} offen offset:{s*1024}" for s in range(2)], pay_sc1)
        a, b, c, d = vT0, vT1, vT2, vT3
        for j in range(4):
            r0, r1 = vRES + j, vRES + 4 + j
            if j == 0:
                k(f"v_mov_b32 v{vWB+9}, {BF1}")
                k(f"v_dot2_f32_bf16 v{b}, v{r0}, v{r0}, 0")
                k(f"v_dot2_f32_bf16 v{d}, v{r1}, v{r1}, 0")
                k(f"v_dot2_f32_bf16 v{a}, v{vWB+9}, v{r0}, 0")
                k(f"v_dot2_f32_bf16 v{c}, v{vWB+9}, v{r1}, 0")
            else:
                k(f"v_dot2_f32_bf16 v{b}, v{r0}, v{r0}, v{b}")
                k(f"v_dot2_f32_bf16 v{d}, v{r1}, v{r1}, v{d}")
                k(f"v_dot2_f32_bf16 v{a}, v{vWB+9}, v{r0}, v{a}")
                k(f"v_dot2_f32_bf16 v{c}, v{vWB+9}, v{r1}, v{c}")
        k.get(vWB + 8, cSTO)
        k(f"""
        s_add_u32 s{sT3}, s{sSTo}, {stoff}
        v_add_f32 v{b}, v{b}, v{d}
        v_add_f32 v{a}, v{a}, v{c}
        s_nop 1
        v_permlane16_swap_b32 v{a}, v{b}
        v_add_f32 v{a}, v{a}, v{b}
        v_mov_b32 v{b}, v{a}
        s_nop 1
        v_permlane32_swap_b32 v{a}, v{b}
        v_add_f32 v{c}, v{a}, v{b}
        s_add_u32 s{sS8}, s{sS8}, 1
        s_and_b32 s{sS8}, s{sS8}, 0xff
        v_and_b32 v{c}, 0xffffff00, v{c}
        v_or_b32 v{c}, s{sS8}, v{c}
        s_mov_b32 exec_hi, 0
        """)
        k.stores([f"buffer_store_dword v{c}, v{vWB+8}, {srd(S_WS)}, s{sT3} offen"], False, "sts" if o.get("sto", 1) else "st")
        k("s_mov_b64 exec, -1")
        k.poll_prep(15)

    def unpack_res(dst):
        for f in range(4):
            for p in range(2):
                r = vRES + 2*f + p
                k(f"v_lshlrev_b32 v{dst+4*f+2*p}, 16, v{r}")
                k(f"v_and_b32 v{dst+4*f+2*p+1}, 0xffff0000, v{r}")

    def misc_l1():
        k(f"""
        s_add_u32 s{sT2}, s{sTAG}, s{sXCC}
        s_add_u32 s{sT2}, s{sT2}, 2
        v_mov_b32 v{vT1}, s{sT2}
        s_lshl4_add_u32 s{sT2}, s{sG}, s{sC}
        s_lshl_b32 s{sT2}, s{sT2}, 7
        s_add_u32 s{sT2}, s{sT2}, {WS_XID}
        """)
        with k.atomic():
            k(f"s_cmp_lg_u32 s{sW}, 0")
            k(f"s_cselect_b32 s{sT2}, {OOB}, s{sT2}")
            k("s_mov_b64 exec, 1")
            k.vmem(f"buffer_store_dword v{vT1}, v{vL16}, {srd(S_WS)}, s{sT2} offen sc1", "xid")
            k("s_mov_b64 exec, -1")

    def res_load():
        k.get(vT0, cOUT)
        for s_ in range(2):
            k.vmem(f"buffer_load_dwordx4 {vr(vRES+4*s_,4)}, v{vT0}, {srd(S_X)}, 0 offen offset:{64*s_}", "res")

    def touch(kind, vSP=vSP):
        with k.atomic():
            k(f"s_lshl2_add_u32 s{sD3}, s{sC}, s{sW}")
            sD2 = sD3
            if kind == "h":
                k(f"s_mul_i32 s{sD2}, s{sD2}, 7168")
                k(f"s_add_u32 s{sD2}, s{sD2}, s{sGB}")
                k(f"s_add_u32 s{sD2}, s{sD2}, {G_H}")
                k(f"v_lshlrev_b32 v{vSP}, 7, v{vLANE}")
                k("s_mov_b32 exec_hi, 0xffffff")
                k.vmem(f"buffer_load_dword a{aDUM}, v{vSP}, {srd(S_WS)}, s{sD2} offen sc1", "touch")
                k("s_mov_b32 exec_hi, -1")
            else:
                k(f"v_lshlrev_b32 v{vSP}, 7, v{vLANE}")
                k(f"s_lshl_b32 s{sT5}, s{sD2}, 11")
                k(f"s_add_u32 s{sT5}, s{sT5}, s{sGB}")
                k(f"s_add_u32 s{sT5}, s{sT5}, {G_X1}")
                k("s_mov_b64 exec, 0xffff")
                k.vmem(f"buffer_load_dword a{aDUM}, v{vSP}, {srd(S_WS)}, s{sT5} offen sc1", "touch")
                k(f"s_lshl_b32 s{sD2}, s{sD2}, 7")
                k(f"s_add_u32 s{sD2}, s{sD2}, s{sGB}")
                k("s_mov_b64 exec, 1")
                k(f"s_add_u32 s{sD2}, s{sD2}, {G_ST1}")
                k.vmem(f"buffer_load_dword a{aDUM}, v{vSP}, {srd(S_WS)}, s{sD2} offen sc1", "touch")
                k("s_mov_b64 exec, -1")

    def touch_early(mode):
        with k.atomic():
            k(f"s_lshl2_add_u32 s{sJ0}, s{sC}, s{sW}")
            vT3 = vACT + 126
            k(f"v_lshlrev_b32 v{vT3}, 7, v{vLANE}")
            if mode & 1:
                k(f"s_lshl_b32 s{sT5}, s{sJ0}, 11")
                k(f"s_add_u32 s{sT5}, s{sT5}, s{sGB}")
                k(f"s_add_u32 s{sT5}, s{sT5}, {G_X1}")
                k("s_mov_b64 exec, 0xffff")
                k.vmem(f"buffer_load_dword a{aDUM}, v{vT3}, {srd(S_WS)}, s{sT5} offen sc1", "touch")
            if mode & 6:
                n, first = {2: (16, 0), 4: (8, 16), 6: (24, 0)}[mode & 6]
                k(f"s_lshr_b32 s{sT5}, s{sJ0}, 3")
                k(f"s_mul_i32 s{sT5}, s{sT5}, 57344")
                k(f"s_and_b32 s{sJ0}, s{sJ0}, 7")
                k(f"s_mul_i32 s{sJ0}, s{sJ0}, {n*128}")
                k(f"s_add_u32 s{sT5}, s{sT5}, s{sJ0}")
                k(f"s_add_u32 s{sT5}, s{sT5}, s{sGB}")
                k(f"s_add_u32 s{sT5}, s{sT5}, {G_H + first*1024}")
                k(f"s_mov_b64 exec, {(1 << n) - 1}")
                k.vmem(f"buffer_load_dword a{aDUM}, v{vT3}, {srd(S_WS)}, s{sT5} offen sc1", "touch")
            k("s_mov_b64 exec, -1")

    def packN_issue():
        with k.atomic():
            quad_lane(1024)
            k(f"""
            s_movk_i32 s{sD2}, 8192
            s_lshl_b32 s{sD0}, s{sG}, 15
            s_lshl_b32 s{sD1}, s{sCT}, 7
            s_add_u32 s{sD0}, s{sD0}, s{sD1}
            s_lshl_b32 s{sPDA}, s{sG}, 12
            s_add_u32 s{sPDA}, s{sPDA}, s{sPKB}
            s_add_u32 s{sPDA}, s{sPDA}, {PK_WO}
            s_lshl2_add_u32 s{sD1}, s{sDH}, s{sW}
            s_cmp_lg_u32 s{sD1}, 3
            s_cbranch_scc1 L_nskip
            """)
            for j in range(4):
                dma_raw(S_WO, j * 1024, j == 0)
            k("L_nskip:")

    def packN_finish(T):
        k(f"s_lshl2_add_u32 s{sD1}, s{sDH}, s{sW}")
        k(f"s_cmp_lg_u32 s{sD1}, 3")
        k("s_cbranch_scc1 L_nfskip")
        for f in range(4):
            k(f"v_add_u32 v{T+16+f}, {L_XST + 3*16384}, v{vQ0+f}")
        for f in range(4):
            for hh in range(2):
                k(f"ds_read_b64_tr_b16 {vr(T+4*f+2*hh,2)}, v{T+16+f} offset:{hh*2048}")
        k("s_waitcnt lgkmcnt(0)")
        for f in range(4):
            k(f"buffer_store_dwordx4 {vr(T+4*f,4)}, v{vL16}, {srd(S_WS)}, s{sPDA} offen offset:{f*1024} sc1")
        k("L_nfskip:")

    def pack_finish(T, base, shift, quad_if_3, tag="pk", sPDA=sPDA):
        lb, le = k.label("L_qb"), k.label("L_qe")
        k(f"s_lshl_b32 s{sT5}, s{sW}, {shift}")
        k(f"s_add_u32 s{sT5}, s{sT5}, {base}")
        k.vm_wait(tag)
        k.ds_all()
        k(f"s_cmp_eq_u32 s{sW}, 3")
        k(f"s_cbranch_scc{0 if quad_if_3 else 1} {lb}")
        for f in range(4):
            k(f"v_add_u32 v{T+16+f}, s{sT5}, v{vQ0+f}")
        for f in range(4):
            for hh in range(2):
                k(f"ds_read_b64_tr_b16 {vr(T+4*f+2*hh,2)}, v{T+16+f} offset:{hh*2048}")
        k("s_waitcnt lgkmcnt(0)")
        for f in range(4):
            k(f"buffer_store_dwordx4 {vr(T+4*f,4)}, v{vL16}, {srd(S_WS)}, s{sPDA} offen offset:{f*1024} sc1")
        k(f"s_branch {le}")
        k(f"{lb}:")
        k(f"v_add_u32 v{T+16}, s{sT5}, v{vTR0}")
        k(f"v_add_u32 v{T+17}, s{sT5}, v{vTR1}")
        k(f"v_lshl_add_u32 v{T+18}, v{vLANE}, 3, s{sT5}")
        for f in range(2):
            for hh in range(2):
                k(f"ds_read_b64_tr_b16 {vr(T+4*f+2*hh,2)}, v{T+16+f} offset:{hh*1024}")
        nf = 2 if quad_if_3 else 3
        if nf == 3:
            for hh in range(2):
                k(f"ds_read_b64_tr_b16 {vr(T+8+2*hh,2)}, v{T+18} offset:{2048+hh*512}")
        k("s_waitcnt lgkmcnt(0)")
        for f in range(nf):
            k(f"buffer_store_dwordx4 {vr(T+4*f,4)}, v{vL16}, {srd(S_WS)}, s{sPDA} offen offset:{f*1024} sc1")
        if nf == 3:
            k(f"buffer_load_dword a{aDUM}, v{vL16}, {srd(S_W1)}, s{S_W1+2} offen")
            nf = 4
        k(f"{le}:")
        k.vm_note(nf, "pst")

    def pack_flag(off=0):
        k(f"""
        s_lshl_b32 s{sT5}, s2, 7
        s_add_u32 s{sT5}, s{sT5}, {WS_PD + off}
        s_cmp_lg_u32 s{sW}, 0
        s_cselect_b32 s{sT5}, {OOB}, s{sT5}
        v_mov_b32 v{vT1}, s{sTAG}
        s_mov_b64 exec, 1
        """)
        k.vmem(f"buffer_store_dword v{vT1}, v{vL16}, {srd(S_WS)}, s{sT5} offen sc1")
        k("s_mov_b64 exec, -1")

    def pack_check_issue(off, va, vd, sb):
        with k.atomic():
            k(f"v_and_b32 v{va}, 1, v{vLANE}")
            k(f"v_lshlrev_b32 v{va}, 7, v{va}")
            k(f"v_lshrrev_b32 v{vd}, 1, v{vLANE}")
            k(f"v_and_b32 v{vd}, 7, v{vd}")
            k(f"s_lshl_b32 s{sT5}, s{sCT if off else sC}, 3")
            k(f"v_add3_u32 v{va}, v{va}, v{vd}, s{sT5}")
            if WP:
                k("s_mov_b32 exec_lo, 0")
                k(f"v_and_b32 v{va}, 0xbf, v{va}")
                k("s_mov_b32 exec_lo, -1")
            k(f"v_min_u32 v{vd}, 29, v{vLANE}")
            k(f"s_mul_i32 s{sT5}, s{sW}, 56")
            k(f"s_lshr_b32 s{sb}, s{sCT}, 1")
            k(f"s_add_u32 s{sT5}, s{sT5}, s{sb}")
            k(f"s_sub_u32 s{sT5}, s{sT5}, 64")
            k(f"v_lshl_add_u32 v{vd}, v{vd}, 2, s{sT5}")
            k("s_mov_b32 vcc_lo, 0xffff")
            k("s_mov_b32 vcc_hi, -1")
            k(f"s_mov_b32 s{sb}, {WS_PD + off}")
            k(f"v_cndmask_b32 v{va}, v{vd}, v{va}, vcc")
            k(f"v_lshlrev_b32 v{va}, 7, v{va}")
            k.vmem(f"buffer_load_dword v{vd}, v{va}, {srd(S_WS)}, s{sb} offen sc1", "pc")

    def pack_check(va, vd, sb):
        lp, ok = k.label("L_pc"), k.label("L_pcok")
        with k.atomic():
            k.vm_wait("pc")
            k(f"{lp}:")
            k(f"v_cmp_ne_u32 vcc, s{sTAG}, v{vd}")
            k(f"s_cbranch_vccz {ok}")
            k(f"buffer_load_dword v{vd}, v{va}, {srd(S_WS)}, s{sb} offen sc1")
            k("s_waitcnt vmcnt(0)")
            k(f"s_sub_u32 s{sBUD}, s{sBUD}, 1")
            k(f"s_cbranch_scc0 {lp}")
            k(f"s_mov_b32 s{sBUD}, 0")
            k(f"{ok}:")

    aPK = 128

    def park_addr(va, base, shift):
        k(f"v_bfe_u32 v{va}, v{vLANE}, 4, 1")
        k(f"v_lshlrev_b32 v{va}, 10, v{va}")
        k(f"v_lshrrev_b32 v{va+1}, 5, v{vLANE}")
        k(f"v_mul_u32_u24 v{va+1}, 0x120, v{va+1}")
        k(f"v_add_u32 v{va}, v{va}, v{va+1}")
        k(f"v_and_b32 v{va+1}, 0xd8, v{vTR0}")
        k(f"s_lshl_b32 s{sT5}, s{sW}, {shift}")
        k(f"s_add_u32 s{sT5}, s{sT5}, {base}")
        k(f"v_add3_u32 v{va}, v{va}, v{va+1}, s{sT5}")
        k(f"v_xor_b32 v{va+1}, 32, v{va}")

    def park_kv(va):
        for r in range(4):
            for blk in range(4):
                for hh in range(2):
                    k.lds(f"ds_read_b64_tr_b16 {ar(aPK + 16*r + 4*blk + 2*hh, 2)}, v{va + (blk & 1)} offset:{r*16384 + (blk >> 1)*2048 + hh*512}")

    def park_q(va):
        for r in range(4):
            for b in range(2):
                for hh in range(2):
                    k.lds(f"ds_read_b64_tr_b16 {ar(aPK + 64 + 8*r + 4*b + 2*hh, 2)}, v{va + b} offset:{r*8192 + hh*512}")

    def unpark(va):
        with k.atomic():
            k(f"s_lshr_b32 s{sD0}, s{sC}, 1")
            k(f"s_xor_b32 s{sD0}, s{sD0}, s{sG}")
            k(f"s_and_b32 s{sD0}, s{sD0}, 1")
            k(f"s_and_b32 s{sD1}, s{sC}, 1")
            k(f"s_lshl1_add_u32 s{sD0}, s{sD0}, s{sD1}")
        for kind in range(2):
            for r in range(4):
                for b in range(2 if kind else 4):
                    with k.atomic():
                        if b == 0:
                            k(f"s_add_u32 s{sD1}, s{sD0}, {r}")
                            k(f"s_and_b32 s{sD1}, s{sD1}, 3")
                            k(f"s_lshl2_add_u32 s{sD1}, s{sD1}, s{sW}")
                            k(f"s_lshl_b32 s{sD1}, s{sD1}, {11 if kind else 12}")
                            if kind:
                                k(f"s_add_u32 s{sD1}, s{sD1}, {R1}")
                            k(f"v_add_u32 v{va}, s{sD1}, v{vL16}")
                        j = 16 + 2 * r + b if kind else 4 * r + b
                        k.lds(f"ds_write_b128 v{va}, {ar(aPK + 4*j, 4)} offset:{b*1024}", ("up", j // 4))

    def wq_raw():
        k(f"s_lshl_b32 s{sL1}, s{sW}, 11")
        with k.atomic():
            k(f"v_and_b32 v{vT2}, 3, v{vP}")
            k(f"v_lshrrev_b32 v{vDM}, 4, v{vLANE}")
            k(f"v_lshl_add_u32 v{vT2}, v{vDM}, 3, v{vT2}")
            k(f"s_movk_i32 s{sD3}, 3072")
            k(f"v_mad_u32_u24 v{vDM}, v{vT2}, s{sD3}, v{vCH}")
        for r in range(4):
            for hh in range(2):
                k.dma(S_WQKV, vDM, sRB + r, hh * 4 * 3072, sL1, R1 + r * 8192 + hh * 1024, "wq")

    def async_check(tag, soff, imm):
        ok = k.label("L_aok")
        with k.atomic():
            k.vm_wait(tag)
            k(f"v_cmp_ne_u32 vcc, s{sTAG}, v{vT0}")
            k(f"s_cbranch_vccz {ok}")
            k.save_vm()
            k.poll(soff, imm, False)
            k.restore_vm()
            k(f"{ok}:")

    CSK = vT0
    gA = None
    for layer in range(1 if o.get("one") else 2):
        L1 = layer == 0
        sc = o.get("sc1", 0x05)
        psc = lambda i: bool(sc >> (4 * layer + i) & 1)
        PRE = o.get("pre", 8)

        def w2t_loads():
            for j in range(56):
                with k.atomic():
                    if j == 0:
                        k(f"s_lshl2_add_u32 s{sPDB}, s{sCT}, s{sW}")
                        k(f"s_mul_i32 s{sPDB}, s{sPDB}, 57344")
                        k(f"s_add_u32 s{sPDB}, s{sPDB}, {WS_W2T}")
                    if j % 4 == 0:
                        k(f"s_add_u32 s{sJ0}, s{sPDB}, {j*1024}")
                    k.vmem(f"buffer_load_dwordx4 {ar(4*j,4)}, v{vL16}, {srd(S_WS)}, s{sJ0} offen offset:{(j%4)*1024} sc1", ("w2t", j // 4))

        w2 = k.rec(w2t_loads) if L1 else []

        def takew2(name, dflt):
            nonlocal w2
            n = min(o.get(name, dflt), len(w2) - 24) if L1 else 0
            r, w2 = w2[:n], w2[n:]
            return r

        def kv_consts():
            k.get(vPQ, cCSA)
            k.lds(f"ds_read2_b32 {vr(CSK,2)}, v{vPQ} offset0:0 offset1:16", "cs")
            k.lds(f"ds_read2_b32 {vr(CSK+2,2)}, v{vPQ} offset0:32 offset1:48", "cs")
        if L1:
            CSA = vACC + 32
            k(f"s_and_b32 s{sT0}, s{sW}, 1")
            k(f"s_lshl_b32 s{sT0}, s{sT0}, 5")
            k(f"v_xor_b32 v{vPQ+3}, s{sT0}, v{vTR0}")
            k(f"s_lshr_b32 s{sT0}, s{sW}, 1")
            k(f"s_lshl_b32 s{sT0}, s{sT0}, 11")
            k(f"v_add_u32 v{vPQ+2}, s{sT0}, v{vPQ+3}")
            k(f"s_lshl_b32 s{sT1}, s{sW}, 5")
            k(f"v_xor_b32 v{vPQ+6}, s{sT1}, v{vQ0}")

            def wo_pack():
                T_ = vACT + 96
                for hh in range(2):
                    k.lds(f"ds_read_b64_tr_b16 {vr(T_+2*hh,2)}, v{vPQ+6} offset:{R0 + 49152 + hh*2048}", "wp")
                k.play([lambda: None] * 2)
                with k.atomic():
                    k.ds_wait("wp")
                    k.vmem(f"buffer_store_dwordx4 {vr(T_,4)}, v{vL16}, {srd(S_WS)}, s{sPDA} offen sc1", "pst")
            own_stats()
            if o.get("pads", 2048):
                k("PADCALL")
            xslot(0); xslot(1, range(o.get("x1pre", 4)))
            if UF == 1:
                pack_finish(vACT + 64, R1, 12, False, "pu", sPDB)
            xread(0)
            def rnd_begin(r):
                k.vm_wait(("wkv", r))
                k.barrier(True)
                fr = []
                for ks in range(4 * r, 4 * r + 4):
                    fr.append(dict(addr=vPQ + 2, offs=(R0 + ks * 4096, R0 + ks * 4096 + 1024), mf=[(None, None, False, ks == 0, None)]))
                for ks in range(4 * r, 4 * r + 4):
                    for pr in range(2):
                        for b in range(2):
                            base = R0 + ks * 4096 + pr * 2048
                            fr.append(dict(addr=(vTR0, vTR1)[b], offs=(base, base + 1024), mf=mf2(vACC + 16 * pr + 8 * b, ks, False, False)))
                return k.gemm_begin(fr)
            wq = k.rec(wq_raw)
            xslot(1, range(o.get("x1pre", 4), 8))
            g = rnd_begin(0)
            k.stamp("x0")
            f = {}
            if WP:
                w1_ = k.rec(lambda: wkv_raw(1))
                spread(f, w1_[:2], 0, 2); spread(f, k.rec(wo_pack), 0, 1); spread(f, w1_[2:] + k.rec(lambda: xslot(2)), 6, 3)
            else:
                spread(f, k.rec(lambda: (wkv_raw(1), xslot(2))), 0, 3)
            spread(f, k.rec(lambda: xread(1)), 30, 1, 2); k.gemm_run(g, f)
            k.stamp("r0")
            g = rnd_begin(1)
            f = {}
            if UF == 1:
                spread(f, k.rec(pack_flag), 1, 0)
            spread(f, k.rec(lambda: (wkv_raw(2), xslot(3))), 0, 3); spread(f, k.rec(lambda: xread(2)), 31, 1, 2); k.gemm_run(g, f)
            k.stamp("r1")
            g = rnd_begin(2)
            nq = o.get("nq", 6)
            if UF == 2:
                pu_ = k.rec(lambda: packU_issue(L_XST + 4096, sD0, sD1, sD2, sD3, sJ0, vDM, sPDB, 14))
                wq = pu_ + wq if o.get("pufirst", 1) else wq + pu_
            f = {}; spread(f, k.rec(lambda: (wkv_raw(3), st0_issue())) + wq[:nq], 0, 3); spread(f, k.rec(lambda: xread(3)), 31, 1, 2); k.gemm_run(g, f)
            k.stamp("r2")
            g = rnd_begin(3)
            f = {}
            spread(f, k.rec(st0_use), 0, 1)
            spread(f, k.rec(lambda: cs_put(0, sW)), 8, 0)
            spread(f, k.rec(stats_b), 10, 1)
            spread(f, k.rec(stats_scale), 24, 1)
            spread(f, k.rec(lambda: park_addr(vRES + 2, R0, 12)), 15, 0)
            pn = k.rec(lambda: (packN_issue(), k.vmem(f"buffer_load_dword a{aDUM}, v{vL16}, {srd(S_W1)}, s{S_W1+2} offen", "pn")))
            pci = k.rec(lambda: pack_check_issue(0, vRES, vRES + 1, sPDB)) if UF == 1 else []
            if o.get("w2e", 8):
                spread(f, wq[nq:] + pci, 1, o.get("r3s", 5))
            else:
                spread(f, wq[nq:] + pn + pci, 1, o.get("r3s", 5))
            bg = []
            k.gemm_run(g, f)
            k.stamp("A.kv")
            k.barrier()
            kv_consts()
        else:
            k.poll_b(sFXp, G_FX2)
            k.stamp("A.poll")
            al = k.rec(lambda: act_loads(G_X2, ring))
            PA = o.get("prea", 6)
            k.play(al[:PA])
            k(f"s_add_u32 s{sTAG}, s{sTAG}, 1")
            fill = {}
            sl = k.rec(lambda: stat_loads(G_ST2))
            e = spread(fill, al[PA:12] + [lambda: k.play(sl[:2]), sl[2]], 0, 4)
            for i_ in range(12, 32):
                pos = max(12 * (i_ // 2 - 6) + 11 + 6 * (i_ & 1), e)
                spread(fill, [al[i_]], pos, 1)
                e = pos + 3
            e2 = spread(fill, k.rec(lambda: (stat_sum(), stats_finalize(True), stats_b())), 64, 1.5)
            e2 = spread(fill, k.rec(stats_scale), e2 + 6, 1.5)
            spread(fill, k.rec(kv_consts), e2, 1.5)
            spread(fill, k.rec(lambda: lin_dma(PK_WO + 32768, R2, 8, "wo", True)), e, o.get("wos", 6))
            QL = o.get("qlag", 0)
            if QL:
                pe = k.rec(lambda: (k.ds_wait("cs"), [phi_block(vACC + 4*rb, NM_B + 4*rb, CSK, RL_B + 4*rb, RS_B + 4*rb, vPQ + 2*rb, vACT + 40, "b") for rb in range(2)]))
                spread(fill, pe, 192 - 4 * QL, 4 * QL / len(pe))
            k.gemm_run(gA, fill)
            k.stamp("A.kv")
            k("s_barrier")
            bg = []
        k("s_nop 2")
        k.get(vWB + 22, cKW1 if L1 else cKW)
        k.get(vWB + 23, cKR1 if L1 else cKR)
        k.ds_all()
        PK, PV, TMP = vPQ, vACC, vWB + 24
        KVA = vACC + 16

        def kv_epi():
            for h in range(1 if (not L1 and o.get("qlag", 0)) else 0, 2):
                for rb in range(2):
                    phi_block(vACC + 8*h + 4*rb, NM_B + 4*rb, CSK + h, RL_B + 4*rb, RS_B + 4*rb, PK + 4*h + 2*rb, TMP, "b")
            for h in range(2):
                for rb in range(2):
                    a = vACC + 16 + 8*h + 4*rb
                    c2, m = bcast(CSK + 2 + h, 1, 3)
                    for p in range(2):
                        k(f"v_pk_fma_f32 {vr(a+2*p,2)}, {vr(NM_B+4*rb+2*p,2)}, {c2}, {vr(a+2*p,2)}{m}")
                    for p in range(2):
                        k(f"v_pk_mul_f32 {vr(a+2*p,2)}, {vr(a+2*p,2)}, {vr(RS_B+4*rb+2*p,2)}")
                    for p in range(2):
                        k(f"v_cvt_pk_bf16_f32 v{PV+4*h+2*rb+p}, v{a+2*p}, v{a+2*p+1}")
                    if rb == 0:
                        k(f"v_mfma_f32_16x16x32_bf16 {vr(vACC+8+4*h,4)}, {vr(PK+4*h,4)}, {ar(aONES,4)}, 0")
                if h == 0:
                    pass
        if L1:
            we = takew2("w2e", 8)
            ke = mix(k.rec(kv_epi), k.rec(lambda: park_kv(vRES + 2)), 3)
            if we:
                c0 = o.get("w2c", 40)
                k.play(ke[:c0])
                pack_check(vRES, vRES + 1, sPDB)
                ke = mix(ke[c0:], we, (135 - c0) // len(we))
            k.play(ke)
        else:
            wod = k.rec(lambda: lin_dma(PK_WO, R1, 8, "wo", True))
            nwo = o.get("nwo", 0)
            k.play(mix(k.rec(kv_epi), wod[:nwo], 100 // max(nwo, 1))); wod = wod[nwo:]
        KRO = [0, 16384, 32768, 49152 if L1 else 36864]
        k.lds(f"ds_write_b128 v{vWB+22}, {vr(vACC+8,4)} offset:{KRO[2]}")
        for h in range(2):
            k(f"v_mfma_f32_16x16x32_bf16 {vr(KVA+4*h,4)}, {vr(PK+4*h,4)}, {vr(PV+4*h,4)}, 0")
        k.lds(f"ds_write_b128 v{vWB+22}, {vr(vACC+12,4)} offset:{KRO[3]}")
        k.get(vWB + 21, cKVS)
        k("s_nop 4")
        for h in range(2):
            k.lds(f"ds_write_b128 v{vWB+22}, {vr(KVA+4*h,4)} offset:{KRO[h]}")
        if L1 and UF == 1:
            k.vm_wait("wq")
        k.barrier()
        for s in range(4):
            k.lds(f"ds_read_b128 {vr(vWB+4*s,4)}, v{vWB+23} offset:{s*1024}", ("kr", s))
        KO = vACC + 32
        k.ds_wait(("kr", 1))
        for p in range(2):
            k(f"v_pk_add_f32 {vr(vWB+2*p,2)}, {vr(vWB+2*p,2)}, {vr(vWB+4+2*p,2)}")
        k.ds_wait(("kr", 3))
        for p in range(2):
            k(f"v_pk_add_f32 {vr(vWB+8+2*p,2)}, {vr(vWB+8+2*p,2)}, {vr(vWB+12+2*p,2)}")
        for p in range(2):
            k(f"v_pk_add_f32 {vr(KO+2*p,2)}, {vr(vWB+2*p,2)}, {vr(vWB+8+2*p,2)}")
        k(f"v_and_b32 v{KO}, 0xffffff00, v{KO}")
        k(f"v_or_b32 v{KO}, s{sT8}, v{KO}")
        k(f"s_mov_b64 exec, s[{sKM}:{sKM+1}]")
        k.vmem(f"buffer_store_dwordx4 {vr(KO,4)}, v{vWB+21}, {srd(S_WS)}, s{sKVP} offen sc1", "kvst")
        k("s_mov_b64 exec, -1")
        k.stamp("A.kvpub")
        fill = {}
        fr = []
        CSQ = vACC + 24

        def q_consts():
            k.get(vT0, cCSB)
            for h in range(2):
                k.lds(f"ds_read_b128 {vr(CSQ+4*h,4)}, v{vT0} offset:{(4+h)*64}")
        if L1:
            if UF == 1:
                if not o.get("w2e", 8):
                    pack_check(vRES, vRES + 1, sPDB)
            else:
                pack_finish(vWB, L_XST + 4096, 14, False, "pu", sPDB)
                k.vm_wait("pn")
                k("s_barrier")
            if not o.get("w2e", 8):
                packN_finish(vWB)
            park_addr(vPQ + 4, R1, 11)
            if o.get("diag"): k.stamp("q.pf")
            k(f"v_add_u32 v{vPQ}, {R1}, v{vTR0}")
            k(f"v_add_u32 v{vPQ+1}, {R1}, v{vTR1}")
            k(f"s_and_b32 s{sT0}, s{sW}, 1")
            k(f"s_lshl_b32 s{sT1}, s{sT0}, 5")
            k(f"v_xor_b32 v{vPQ+2}, s{sT1}, v{vPQ}")
            for j in range(16):
                fr.append(dict(addr=vPQ + 2, offs=(j * 2048, j * 2048 + 1024), mf=[(None, None, False, j == 0, None)]))
            for ks in range(16):
                for b in range(2):
                    fr.append(dict(addr=vPQ + b, offs=(ks * 2048, ks * 2048 + 1024), mf=mf2(vACC + 8 * b, ks, True, False)))
            wor = k.rec(lambda: lin_dma(PK_WO, R0, 16, "wo", True)) if WP else k.rec(wo_raw)
            e = spread(fill, bg + k.rec(res_load), 0, 1)
            if o.get("arm", 3):
                e = spread(fill, k.rec(lambda: arm(o.get("arm", 3))), e, 2)
            if o.get("tq", 0) & 1:
                e = spread(fill, k.rec(lambda: touch("x")), e, 1)
            if o.get("tq", 0) & 4:
                e = spread(fill, k.rec(lambda: touch("h")), e, 1)
            e = spread(fill, wor, e, o.get("wors", 2))
            spread(fill, takew2("w2q", 8), e, 4)
            spread(fill, k.rec(lambda: park_q(vPQ + 4)), 20, 3)
            k.gemm(fr, fill)
            if o.get("diag"): k.stamp("q.mm")
            cs_put(4, sT0)
            if UF == 2:
                k.vm_wait("pst")
            k.barrier()
            if o.get("diag"): k.stamp("q.bar")
            q_consts()
            if UF == 2:
                pack_flag()
        else:
            q_consts()
        lp2, done2 = k.label("L_kp"), k.label("L_kd")
        SM = vWB + 8
        ZL = vACT + 32

        def kv_loads(track):
            ins = [(f"buffer_load_dwordx4 {vr(ZL,4)}, v{vT2}, {srd(S_WS)}, s{sKVC} offen sc1", "zl")]
            for j in range(8):
                ins.append((f"buffer_load_dwordx4 {vr(vACT+4*j,4)}, v{vL16}, {srd(S_WS)}, s{sKVC if j < 4 else sT2} offen offset:{(j%4)*1024} sc1", ("kv", j)))
            for i_, t_ in ins:
                if track:
                    k.vmem(i_, t_)
                else:
                    k(i_)
        if L1:
            w1a = k.rec(lambda: (lin_dma(PK_W1A, R1, 16, "w1a"), lin_dma(PK_W1B, R3, 6, "w1c2")))
        else:
            w1a = []
        k.get(vT2, cZL)
        k(f"s_add_u32 s{sT2}, s{sKVC}, 4096")
        kl = k.rec(lambda: kv_loads(True))
        QS = vACC if L1 else QA
        ph = k.rec(lambda: [phi_block(QS + 8*h + 4*rb, NM_A + rb, CSQ + 4*h, RL_A + rb, RS_A + rb, vPQ + 4*h + 2*rb, vWB, "a")
                            for h in range(2) for rb in range(2)])
        if L1:
            k.play(kl[:5])
            k.ds_all()
            if o.get("diag"): k.stamp("q.kl5")
            na = o.get("w1a0", 4) if UF == 1 else 0
            k.play(mix(ph, kl[5:] + w1a[:na], o.get("phr", 10)))
            w1a = w1a[na:]
        else:
            def unpark_w1():
                for j in range(16):
                    k.lds(f"ds_write_b128 v{vT3}, {vr(vPARK+4*j,4)} offset:{j*1024}")
            k(f"s_lshl_b32 s{sT5}, s{sW}, 14")
            k(f"v_add_u32 v{vT3}, s{sT5}, v{vL16}")
            k.play(wod[:4]); wod = wod[4:]
            k.ds_all()
            uw = k.rec(unpark_w1)
            nu = o.get("nu", 16)
            k.play(mix(mix(ph, uw[:nu], 5), wod, 10))
            k.play(mix(kl, uw[nu:], 1))
        k.stamp("A.q")
        k.get(vT1, cXW)
        k.get(vWB + 18, cZW)
        k.get(vWB + 16, cXR)
        k.get(vWB + 17, cZR)
        k(f"s_branch {lp2}_s")
        k(f"{lp2}:")
        kv_loads(False)
        k("s_waitcnt vmcnt(0)")
        k(f"{lp2}_s:")
        k.vm_wait("zl")
        k(f"""
        v_mov_b32 v{SM+4}, v{ZL}
        v_mov_b32 v{SM+5}, v{ZL}
        v_permlane32_swap_b32 v{ZL}, v{ZL+1}
        v_permlane32_swap_b32 v{ZL+2}, v{ZL+3}
        v_add_f32 v{ZL}, v{ZL}, v{ZL+1}
        v_add_f32 v{ZL+2}, v{ZL+2}, v{ZL+3}
        s_nop 1
        v_permlane16_swap_b32 v{ZL}, v{ZL+2}
        v_add_f32 v{ZL}, v{ZL}, v{ZL+2}
        s_nop 1
        v_add_f32_dpp v{ZL}, v{ZL}, v{ZL} row_ror:4 row_mask:0xf bank_mask:0xf
        s_nop 1
        v_add_f32_dpp v{ZL}, v{ZL}, v{ZL} row_ror:8 row_mask:0xf bank_mask:0xf
        v_cvt_pk_bf16_f32 v{ZL}, v{ZL}, v{ZL}
        ds_write_b16 v{vWB+18}, v{ZL}
        """)
        for j in range(0, 8, 2):
            a, b = vACT + 4*j, vACT + 4*j + 4
            k.vm_wait(("kv", j + 1))
            k(f"v_and_b32 v{SM+4}, v{SM+4}, v{a}")
            k(f"v_and_b32 v{SM+4}, v{SM+4}, v{b}")
            k(f"v_or3_b32 v{SM+5}, v{SM+5}, v{a}, v{b}")
            if j == 0:
                for p in range(2):
                    k(f"v_pk_add_f32 {vr(SM+2*p,2)}, {vr(a+2*p,2)}, {vr(b+2*p,2)}")
            else:
                for p in range(2):
                    k(f"v_pk_add_f32 {vr(a+2*p,2)}, {vr(a+2*p,2)}, {vr(b+2*p,2)}")
                for p in range(2):
                    k(f"v_pk_add_f32 {vr(SM+2*p,2)}, {vr(SM+2*p,2)}, {vr(a+2*p,2)}")
        k(f"""
        ds_write_b128 v{vT1}, {vr(SM,4)}
        v_xor_b32 v{SM+4}, s{sT8}, v{SM+4}
        v_xor_b32 v{SM+5}, s{sT8}, v{SM+5}
        v_or_b32 v{SM+4}, v{SM+4}, v{SM+5}
        v_and_b32 v{SM+4}, 0xff, v{SM+4}
        v_cmp_ne_u32 vcc, 0, v{SM+4}
        s_cbranch_vccz {done2}
        s_waitcnt lgkmcnt(0)
        s_sub_u32 s{sBUD}, s{sBUD}, 4
        s_cbranch_scc0 {lp2}
        s_mov_b32 s{sBUD}, 0
        {done2}:
        """)
        k.stamp("A.kvget")
        n1 = o.get("w1a1", 4) if L1 and UF == 1 else 0
        if L1 and UF == 2:
            pack_check_issue(0, vTR0, vTR1, sPDB)
        k.play(w1a[:n1]); w1a = w1a[n1:]
        k.barrier(True)
        for h in range(2):
            k.lds(f"ds_read_b64 {vr(vWB+4*h+2,2)}, v{vWB+17} offset:{h*32}", "zf")
        for j in range(4):
            k.lds(f"ds_read_b128 {vr(vACT+4*j,4)}, v{vWB+16} offset:{1024*j}")
        k.ds_wait("zf")
        OA = vACC + 16
        for rb in range(2):
            for h in range(2):
                d = OA + 16*rb + 8*h
                k(f"v_mfma_f32_16x16x16_bf16 {vr(d+4,4)}, {vr(vWB+4*h+2,2)}, {vr(vPQ+4*h+2*rb,2)}, 0")
        k.ds_all()
        for h in range(2):
            for p in range(2):
                k(f"v_pk_add_f32 {vr(vACT+8*h+2*p,2)}, {vr(vACT+8*h+2*p,2)}, {vr(vACT+8*h+4+2*p,2)}")
        for h in range(2):
            for p in range(2):
                k(f"v_cvt_pk_bf16_f32 v{vWB+4*h+p}, v{vACT+8*h+2*p}, v{vACT+8*h+2*p+1}")
        for rb in range(2):
            for h in range(2):
                d = OA + 16*rb + 8*h
                k(f"v_add_f32 v{d+4}, s{sEPS}, v{d+4}")
        for rb in range(2):
            for h in range(2):
                d = OA + 16*rb + 8*h
                k(f"v_mfma_f32_16x16x16_bf16 {vr(d,4)}, {vr(vWB+4*h,2)}, {vr(vPQ+4*h+2*rb,2)}, 0")
        for rb in range(2):
            for h in range(2):
                d = OA + 16*rb + 8*h
                k(f"v_rcp_f32 v{d+4}, v{d+4}")
        k("s_nop 1")
        for rb in range(2):
            for h in range(2):
                d = OA + 16*rb + 8*h
                for p in range(2):
                    k(f"v_pk_mul_f32 {vr(d+2*p,2)}, {vr(d+2*p,2)}, {vr(d+4,2)} op_sel_hi:[1,0]")
                for p in range(2):
                    k(f"v_cvt_pk_bf16_f32 v{vPQ+4*rb+2*h+p}, v{d+2*p}, v{d+2*p+1}")
        k.stores([f"buffer_store_dwordx4 {vr(vPQ+4*rb,4)}, v{vL16}, {srd(S_WS)}, s{sOST+rb} offen" for rb in range(2)], psc(0))
        nb = o.get("w1a_pre1", 6) if L1 else o.get("w1a_pre", 0)
        if L1 and UF == 2:
            pack_check(vTR0, vTR1, sPDB)
        k.play(w1a[:nb])
        if L1:
            for s_ in range(2):
                for p in range(2):
                    k(f"v_permlane16_swap_b32 v{vRES+4*s_+p}, v{vRES+4*s_+2+p}")
        urs = k.rec(lambda: unpack_res(vACC))
        fr = []
        for ks in range(16):
            for f in range(4):
                mf = [(vACC + 4 * f, vACT + 4 * ks, True, False, ("act", ks))]
                if L1 and WP:
                    fr.append(dict(addr=vL16, offs=(R0 + ks * 4096 + f * 1024,), mf=mf))
                elif L1:
                    fr.append(dict(addr=vQ0 + f, offs=(R0 + ks * 4096, R0 + ks * 4096 + 2048), mf=mf))
                else:
                    fr.append(dict(addr=vTR0, offs=(ks * 4096 + f * 1024,), mf=mf))
        k.poll_prep(15)
        k.flag(sFOo, G_FO)
        k.poll_a(sFOp, G_FO)
        g = k.gemm_begin(fr, 7)
        k.play(urs)
        k.stamp("A.opub")
        k.poll_b(sFOp, G_FO)
        k.stamp("B.poll")

        def b_loads():
            for ks in range(16):
                with k.atomic():
                    if ks % 4 == 0:
                        k(f"s_add_u32 s{sT2}, s{sBACT}, {G_O + ks*1024}")
                    k.vmem(f"buffer_load_dwordx4 {vr(vACT+4*ks,4)}, v{vL16}, {srd(S_WS)}, s{sT2} offen offset:{(ks%4)*1024} sc1", ("act", ks))
        bl = k.rec(b_loads)
        PB = o.get("preb", PRE)
        k.play(bl[:PB])
        fill = {}
        e = spread(fill, bl[PB:], 0, 3)
        e = spread(fill, w1a[nb:], e, o.get("w1st", 3))
        if L1 and o.get("txb", 1):
            e = spread(fill, k.rec(lambda: touch("x")), e, 1)
        spread(fill, takew2("w2b", 0), e, 4)
        k.gemm_run(g, fill)
        k.stamp("B.mm")
        k(f"v_add_u32 v{vTR1}, {R1}, v{vL16}")
        k("s_nop 6")
        for f in range(4):
            for p in range(2):
                k(f"v_cvt_pk_bf16_f32 v{vRES+2*f+p}, v{vACC+4*f+2*p}, v{vACC+4*f+2*p+1}")
        publish_x(G_X1, G_ST1, G_FX1, psc(1))
        k.play(takew2("w2x", 0))
        k.flag(sFXo, G_FX1)
        if not L1:
            k.poll_a(sFXp, G_FX1)
        k.stamp("B.pub")
        if L1 and o.get("w2e", 8) and not WP:
            k(f"s_lshl2_add_u32 s{sD1}, s{sDH}, s{sW}")
            k(f"s_cmp_lg_u32 s{sD1}, 3")
            k("s_cbranch_scc1 L_nfskip")
            k(f"s_lshl_b32 s{sT5}, s{sG}, 12")
            for f in range(4):
                k(f"v_add_u32 v{vWB+16+f}, s{sT5}, v{vQ0+f}")
            for f in range(4):
                for hh in range(2):
                    k(f"ds_read_b64_tr_b16 {vr(vACC+4*f+2*hh,2)}, v{vWB+16+f} offset:{hh*2048}")
            k(f"s_add_u32 s{sT5}, s{sT5}, s{sPKB}")
            k(f"s_add_u32 s{sT5}, s{sT5}, {PK_WO}")
            k("s_waitcnt lgkmcnt(0)")
            for f in range(4):
                k(f"buffer_store_dwordx4 {vr(vACC+4*f,4)}, v{vL16}, {srd(S_WS)}, s{sT5} offen offset:{f*1024} sc1")
            k("L_nfskip:")
        k("s_barrier")
        w1c2 = k.rec(lambda: lin_dma(PK_W1B + 24576, R0 if L1 else R1, 6, "w1c2"))
        if L1 and not o.get("w2e", 8):
            pack_flag(0x8000)
        nc = o.get("w1c2_pre1", 0) if L1 else o.get("w1c2_pre", 0)
        k.play(w1c2[:nc])
        if L1:
            k(f"s_lshl_b32 s{sT2}, s{sW}, 10")
            k(f"v_add_u32 v{vPQ}, s{sT2}, v{vTR1}")
            fr = []
            for j in range(16):
                fr.append(dict(addr=vPQ, offs=(j * 4096,), mf=[(None, None, False, j == 0, None)]))
            k.gemm(fr, D=7)
            k("s_nop 5")
            cs_put(6, sW)
        C2 = vACC + 32
        vC1, vC2, vCc, vCd = (vTR1 if L1 else vL16), vDM, vP, vCH
        k(f"v_add_u32 v{vC2}, {R3}, v{vL16}")
        if L1:
            k(f"s_min_u32 s{sPDA}, s{sW}, 2")
            k(f"s_lshl_b32 s{sT2}, s{sPDA}, 10")
            k(f"v_add_u32 v{vCd}, s{sT2}, v{vL16}")
            k(f"v_add_u32 v{vCc}, {R3}, v{vCd}")
        fr = []
        for ks in range(16):
            for f in range(4):
                fr.append(dict(addr=vC1, offs=(ks * 4096 + f * 1024,), mf=mf2(vACC + 8 * f, ks, True, True)))
        for ks in range(16):
            if L1:
                fr.append(dict(addr=vCc if ks < 8 else vCd, offs=((ks % 8) * 3072,), mf=[(None, None, False, ks == 0, None)]))
            for b in range(3):
                fr.append(dict(addr=vC2 if ks < 8 else vL16 if L1 else vTR1, offs=((ks % 8) * 3072 + b * 1024,), mf=mf2(C2 + 8 * b, ks, True, False, None if L1 else False)))
        MK = 7 if L1 else 6
        NM = 128 + 16 * MK
        if L1:
            k.poll_a(sFXp, G_FX1)
        g = k.gemm_begin(fr)
        k.poll_b(sFXp, G_FX1)
        k.stamp("C.poll")
        CS1 = [vPQ, vPQ + 4, vACC + 56, vQ0]

        def c2_init():
            k.get(vT0, cCSB)
            for b in range(3):
                k.lds(f"ds_read_b128 {vr(C2+8*b+4,4)}, v{vT0} offset:{(10+b)*64}", "cs2")
            for _ in range(4):
                k.play([lambda: None])
            k.ds_wait("cs2")
            for b in range(3):
                for rb in range(2):
                    for j in range(4):
                        k(f"v_mul_f32 v{C2+8*b+4*rb+j}, v{C2+8*b+4+j}, v{NM_A+rb}")

        def relu_block(acc, cs, rb, dst):
            if cs is not None:
                for j in range(4):
                    k(f"v_fmac_f32 v{acc+j}, v{cs+j}, v{NM_A+rb}")
            for p in range(2):
                k(f"v_cvt_pk_bf16_f32 v{dst+p}, v{acc+2*p}, v{acc+2*p+1}")
            for p in range(2):
                k(f"v_pk_max_i16 v{dst+p}, v{dst+p}, 0")

        def cs1_reads():
            k.get(vT2, cCSB)
            for b in range(4):
                k.lds(f"ds_read_b128 {vr(CS1[b],4)}, v{vT2} offset:{(6+b)*64}", "cs")

        def epi1():
            k.ds_wait("cs")
            for s in range(2):
                for rb in range(2):
                    for b in range(2):
                        relu_block(vACC + 16*s + 8*b + 4*rb, CS1[2*s+b], rb, vACC + 16*s + 4*rb + 2*b)
                k.stores([f"buffer_store_dwordx4 {vr(vACC+16*s+4*rb,4)}, v{vL16}, {srd(S_WS)}, s{sH1+rb} offen offset:{s*1024}"
                          for rb in range(2)], psc(2))

        def d_setup():
            if L1:
                with k.atomic():
                    k(f"s_lshl_b32 s{sT1}, s{sW}, 13")
                    k(f"s_add_u32 s{sT1}, s{sT1}, s{sGB}")
                with k.atomic():
                    k(f"s_lshl_b32 s{sDK}, s{sW}, 11")
                    k(f"s_add_u32 s{sDK}, s{sDK}, {28*1024}")
                k(f"s_add_u32 s{sT1}, s{sT1}, {G_H + 24*1024}")
                for j in range(4):
                    with k.atomic():
                        k(f"s_add_u32 s{sT0}, s{sW}, {j}")
                        k(f"s_and_b32 s{sT0}, s{sT0}, 3")
                    with k.atomic():
                        k(f"s_lshl2_add_u32 s{sT0}, s{sDH}, s{sT0}")
                        k(f"s_mul_i32 s{sT0}, s{sT0}, 57344")
                    k(f"s_add_u32 s{sRB+j}, s{sT0}, s{sT1}")
            k.poll_prep(7)
        seq = [(ksl, j) for ksl in range(11) for j in range(4)] + [(ksl, j) for j in (1, 2, 3, 0) for ksl in (11, 12, 13)]
        hb = [0, 0, 0, 0]

        def hload(t):
            ksl, j = seq[t]
            with k.atomic():
                if ksl // 4 != hb[j]:
                    if ksl == 8:
                        k(f"s_sub_u32 s{sRB+j}, s{sRB+j}, s{sDK}")
                    else:
                        k(f"s_add_u32 s{sRB+j}, s{sRB+j}, 4096")
                    hb[j] += 1
                k.vmem(f"buffer_load_dwordx4 {vr(vACT+4*(t%16),4)}, v{vL16}, {srd(S_WS)}, s{sRB+j} offen offset:{(ksl%4)*1024} sc1", ("h", t))
        PC = o.get("prec", PRE)
        al = k.rec(lambda: act_loads(G_X1))
        k.play(al[:PC])
        fill = {}
        sl = k.rec(lambda: stat_loads(G_ST1))
        e = spread(fill, al[PC:PC+4] + [lambda: k.play(sl[:2]), sl[2]] + al[PC+4:], 0, 4)
        e2 = spread(fill, k.rec(lambda: (stat_sum(), stats_finalize(False))), 44, 0.9)
        if not L1:
            spread(fill, k.rec(c2_init), e2 + 1, 0.95)
        if L1:
            spread(fill, k.rec(lambda: k("s_barrier")), 100, 0)
            if o.get("w2e", 8) and not WP:
                spread(fill, k.rec(lambda: pack_flag(0x8000)), 102, 0)
        e = spread(fill, w1c2[nc:], e, 3)
        if o.get("th", 0) >> layer & 1:
            e = spread(fill, k.rec(lambda: touch("h", vT0)), e, 1)
        spread(fill, k.rec(cs1_reads), 119, 1)
        if o.get("diagd"):
            spread(fill, k.rec(lambda: k.stamp("C.mm1")), 127, 0)
        e1 = spread(fill, k.rec(epi1), 129, 1 / o.get("epr", 4))
        spread(fill, k.rec(lambda: (k.vm_wait("w1c2"), k("s_barrier"))), 128 + 5 * MK, 0)
        spread(fill, k.rec(d_setup), e1, 1)
        pf = min(e1 + (o.get("fl11", 50) if L1 else o.get("fl1", 20)), NM - 2)
        spread(fill, k.rec(lambda: k.flag(sFHo, G_FH)), pf, 1)
        NE = o.get("ne1", 0) if L1 else o.get("ne", 6)
        pp = NM - 1 if NE == 0 else NM - 3 * NE - 18
        assert pp > pf
        spread(fill, k.rec(lambda: k.vmem(f"buffer_load_dword v{vT0}, v{vT3}, {srd(S_WS)}, s{sFHp} offen offset:{G_FH} sc1", "p1")), pp, 1)
        if NE:
            spread(fill, k.rec(lambda: async_check("p1", sFHp, G_FH)), NM - 3 * NE - 1, 1)
            spread(fill, k.rec(lambda: [hload(t) for t in range(NE)]), NM - 3 * NE, 3)
        if L1:
            wc = takew2("nw2", 24)
            spread(fill, wc, e, (pp - 1 - e) / max(len(wc), 1))
        k.gemm_run(g, fill)
        k.stamp("C.mm2")
        HO = vWB + 16
        LA = o.get("dla1", 10) if L1 else o.get("dla", 10)
        if L1:
            k.get(vT1, cCSA)
            k(f"s_lshl_b32 s{sT5}, s{sPDA}, 6")
            k(f"v_add_u32 v{vT1}, s{sT5}, v{vT1}")
            k.lds(f"ds_write_b32 v{vT1}, a{aCS} offset:{10*64}")
            k.barrier()
            k.get(vT2, cCSB)
            for b in range(3):
                k.lds(f"ds_read_b128 {vr(vWB+4*b,4)}, v{vT2} offset:{(10+b)*64}")
            k.ds_all()
        else:
            k("s_nop 3")
        epi2 = k.rec(lambda: [relu_block(C2 + 8*b + 4*rb, vWB + 4*b if L1 else None, rb, HO + 8*rb + 2*b) for b in range(3) for rb in range(2)])
        h2sc = psc(2) and not o.get("h2plain", 1)
        its = []
        for rb in range(2):
            its.append(f"buffer_store_dwordx4 {vr(HO+8*rb,4)}, v{vL16}, {srd(S_WS)}, s{sH2+rb} offen")
            its.append(f"buffer_store_dwordx2 {vr(HO+8*rb+4,2)}, v{vL16}, {srd(S_WS)}, s{sH3+rb} offen")
        tail = []
        up = []
        if L1:
            def park_w1():
                with k.atomic():
                    k(f"s_lshl_b32 s{sT5}, s{sW}, 14")
                    k(f"s_add_u32 s{sT5}, s{sT5}, {R1}")
                    k(f"v_add_u32 v{vCH}, s{sT5}, v{vL16}")
                for j in range(0, 16, 2):
                    with k.atomic():
                        for jj in (j, j + 1):
                            k.lds(f"ds_read_b128 {vr(vPARK+4*jj,4)}, v{vCH} offset:{jj*1024}", "pw")
            u_ = k.rec(lambda: unpark(vP))
            bar = k.rec(lambda: (k.ds_wait("pw"), k("s_barrier")))
            up = k.rec(park_w1) + u_[:17] + [lambda: k.play(bar)] + u_[17:]
        if NE:
            n2 = o.get("ne2", 2)
            k.play(mix(epi2, k.rec(lambda: [hload(t) for t in range(NE, NE + n2)]), 10))
            k.stores(its, h2sc)
            nxt = NE + n2
            FL2 = o.get("fl2", 5)
        else:
            k.play(epi2)
            k.stores(its, h2sc)
            async_check("p1", sFHp, G_FH)
            for t in range(LA):
                hload(t)
                if len(w2) > 24 and t % 2:
                    k.play(w2[:1]); w2 = w2[1:]
                k.play(up[:1]); up = up[1:]
            k.flag(sFHo, G_FH + 1024)
            nxt = LA
            FL2 = -1
        k.stamp("D.poll1")
        RSD = vPQ
        k.get(vPQ + 1, cRSD)
        k.lds(f"ds_read_b32 v{RSD}, v{vPQ+1}", "rsd")
        for j in range(4):
            k.get(vPQ + 4 + j, cRD0 + j)
        ur = k.rec(lambda: unpack_res(vWB))
        wr = []
        for t in range(56):
            ksl, j = seq[t]
            if L1:
                k.vm_wait(("w2t", ksl))
            k.vm_wait(("h", t))
            if o.get("diagd") and t in (0, 8, 16, 24, 32, 40, 48):
                k.stamp(f"D.t{t}")
            for f in range(4):
                a = vACC + 16*j + 4*f
                c = "0" if ksl == 0 else vr(a, 4)
                k(f"v_mfma_f32_16x16x32_bf16 {vr(a,4)}, {ar((ksl*4+f)*4,4)}, {vr(vACT+4*(t%16),4)}, {c}")
                if f in (0, 2) and nxt < 56 and nxt <= t + LA and (f == 0 or nxt < t + LA):
                    if nxt == 32 - 6:
                        k.vmem(f"buffer_load_dword v{vT0}, v{vT3}, {srd(S_WS)}, s{sFHp} offen offset:{G_FH+1024} sc1", "p2")
                    if nxt == 32:
                        async_check("p2", sFHp, G_FH + 1024)
                    hload(nxt)
                    nxt += 1
                    if nxt == 56 and not L1 and o.get("wb", 0):
                        lw = k.label("L_wb")
                        k(f"s_lshl3_add_u32 s{sT0}, s{sW}, s2")
                        k(f"s_cmp_ge_u32 s{sT0}, 8")
                        k(f"s_cbranch_scc1 {lw}")
                        k("buffer_wbl2 sc1")
                        k(f"s_branch {lw}_e")
                        k(f"{lw}:")
                        k(f"buffer_load_dword a{aDUM}, v{vT3}, {srd(S_WS)}, s{sFHp} offen offset:{G_FH} sc1")
                        k(f"{lw}_e:")
                        k.vm_note(1, "wb")
                if f in ((1, 3) if t < o.get("up2", 3) else (1,)) and up:
                    k.play(up[:1]); up = up[1:]
                if f == 2:
                    nup = 24 - len(up) + (1 if len(up) > 8 else 0)
                    if w2 and (len(w2) > 24 or not up or nup >= 4 * ((24 - len(w2)) // 4 + 1) + 1):
                        if len(w2) <= 24:
                            k.ds_wait(("up", (24 - len(w2)) // 4))
                        k.play(w2[:1]); w2 = w2[1:]
                    elif t >= o.get("tl0", 46) and tail:
                        nn = o.get("tln", 2)
                        k.play(tail[:nn]); tail = tail[nn:]
                if f == 3 and t == FL2:
                    k.flag(sFHo, G_FH + 1024)
                if 4 * t + f == 203:
                    k.ds_wait(("rw", 1))
                    k("s_barrier")
                    for f_ in range(4):
                        k.lds(f"ds_read_b128 {vr(vACC+16+4*f_,4)}, v{vPQ+4} offset:{f_*1024}", "rd0")
                if 4 * t + f == 215:
                    k.ds_wait("rd0")
                    k("s_barrier")
                if f == 3 and t == 2 and L1 and not WP:
                    pack_check_issue(0x8000, vTR0, vTR1, sPDA)
                if f == 3 and t == 14 and L1 and not WP:
                    pack_check(vTR0, vTR1, sPDA)
                if f == 3 and t == o.get("tx", 99) and L1:
                    touch("x", vDM)
                if f == 1 and t >= 8 and ur:
                    k.play(ur[:1]); ur = ur[1:]
                if wr and wr[0][0] <= 4 * t + f:
                    k.lds(*wr.pop(0)[1:])
            if ksl == 13 and j:
                for f in range(4):
                    wr.append((4 * t + 9 + 2 * f, f"ds_write_b128 v{vPQ+4+j}, {vr(vACC+16*j+4*f,4)} offset:{f*1024}", ("rw", j)))
        assert not w2 and not ur and not wr and not up
        k.stamp("D.mm")
        if not L1:
            k.get(vT2, cOUT)
        k("s_nop 3")
        for f in range(4):
            for p in range(2):
                k(f"v_pk_add_f32 {vr(vACC+4*f+2*p,2)}, {vr(vACC+4*f+2*p,2)}, {vr(vACC+16+4*f+2*p,2)}")
        k.barrier()
        for f in range(4):
            for j in range(2):
                k.lds(f"ds_read_b128 {vr(vACC+32+16*j+4*f,4)}, v{vPQ+4} offset:{j*4096+f*1024}", ("rd", f))
        for f in range(4):
            k.ds_wait(("rd", f))
            for j in range(2):
                for p in range(2):
                    k(f"v_pk_add_f32 {vr(vACC+4*f+2*p,2)}, {vr(vACC+4*f+2*p,2)}, {vr(vACC+32+16*j+4*f+2*p,2)}")
            for p in range(2):
                k(f"v_pk_fma_f32 {vr(vACC+4*f+2*p,2)}, {vr(vACC+4*f+2*p,2)}, {vr(RSD,2)}, {vr(vWB+4*f+2*p,2)} op_sel_hi:[1,0,1]")
            for p in range(2):
                k(f"v_cvt_pk_bf16_f32 v{vRES+2*f+p}, v{vACC+4*f+2*p}, v{vACC+4*f+2*p+1}")
        k.stamp("D.red")
        if L1:
            publish_x(G_X2, G_ST2, G_FX2, psc(3))
            k(f"s_sub_u32 s{sT0}, s{sDK}, 8192")
            for j in range(4):
                k(f"s_add_u32 s{sRB+j}, s{sRB+j}, s{sT0}")
            k(f"s_add_u32 s{sKVC}, s{sKVC}, 0x100000")
            k(f"s_add_u32 s{sKVP}, s{sKVP}, 0x100000")
            k.flag(sFXo, G_FX2)
            k.poll_a(sFXp, G_FX2)
            k.stamp("D.pub")
            k("s_barrier")
            fr = []
            k(f"v_add_u32 v{vTR0}, {R1}, v{vL16}")
            late = []
            for ks in range(16):
                fq = [dict(addr=vTR0, offs=(ks * 2048 + b * 1024,), mf=mf2(QA + 8 * b, ks, True, True, act=ring)) for b in range(2)]
                fk = [dict(addr=vL16, offs=(R0 + ks * 4096 + b * 1024,), mf=mf2(vACC + 8 * b, ks, False, True, act=ring)) for b in range(4)]
                if ks < 16 - o.get("qlag", 0):
                    fr += fk + fq
                else:
                    fr += fk
                    late += fq
            fr += late
            gA = k.gemm_begin(fr)
        else:
            k("s_nop 1")
            for s in range(2):
                for p in range(2):
                    k(f"v_permlane16_swap_b32 v{vRES+4*s+p}, v{vRES+4*s+2+p}")
                k.vmem(f"buffer_store_dwordx4 {vr(vRES+4*s,4)}, v{vT2}, {srd(S_OUT)}, 0 offen offset:{64*s}{['', ' sc1', ' sc1 nt', ' nt'][o.get('outsc1', 1)]}")
            le = k.label("L_ep")
            k(f"s_or_b32 s{sT2}, s2, s{sW}")
            k(f"s_cbranch_scc1 {le}")
            k(f"s_add_u32 s{sEP}, s{sEP}, 1")
            k(f"v_mov_b32 v{vT1}, s{sEP}")
            k("s_mov_b64 exec, 1")
            k(f"buffer_store_dword v{vT1}, v{vL16}, {srd(S_WS)}, 0 offen offset:{WS_EPOCH}")
            k("s_mov_b64 exec, -1")
            k(f"{le}:")
            if stamps:
                k.vm_all()
                k.stamp("end")
                k(f"s_memrealtime s[{sST}:{sST+1}]")
                k("s_waitcnt lgkmcnt(0)")
                k(f"v_writelane_b32 v{vSTAMP}, s{sST}, 61")
                k(f"v_writelane_b32 v{vSTAMP}, s{sBUD}, 60")
                k(f"v_writelane_b32 v{vSTAMP}, s{sSLOW}, 59")
                k(f"s_lshl2_add_u32 s{sT2}, s2, s{sW}")
                k(f"s_lshl_b32 s{sT2}, s{sT2}, 8")
                k(f"s_add_u32 s{sT2}, s{sT2}, {WS_STAMP}")
                k(f"v_lshrrev_b32 v{vT0}, 2, v{vL16}")
                k(f"buffer_store_dword v{vSTAMP}, v{vT0}, {srd(S_WS)}, s{sT2} offen")
    k("L_end:")
    lines = merge_waits(k.lines)
    if o.get("pads", 2048):
        lines = add_pads(lines, k.tailcode, o.get("pads", 2048))
    body = "\n".join(lines)
    tailc = "\n".join(k.tailcode)
    hdr = open("interleave_layers__linear_attn_block__dense_activation_relu__prompt.s.ref").read().split("; Override")[0]
    txt = f"""{hdr}; Generated by a hand-written generator (persistent kernel, one workgroup per CU).
; @launch grid=(256,1,1) block=(256,1,1) lds={LDS_BYTES}
.amdgcn_target "amdgcn-amd-amdhsa--gfx950"
.text
.globl {NAME}
.p2align 8
.type {NAME},@function
.set CODE_BYTES, L_code_end - L_pcref - 512
{NAME}:
{body}
    s_endpgm
L_code_end:
{tailc}
.section .rodata,"a"
.p2align 6
.amdhsa_kernel {NAME}
  .amdhsa_next_free_vgpr 512
  .amdhsa_next_free_sgpr 102
  .amdhsa_accum_offset 256
  .amdhsa_group_segment_fixed_size 0
  .amdhsa_kernarg_size 72
  .amdhsa_user_sgpr_count 2
  .amdhsa_user_sgpr_kernarg_segment_ptr 1
  .amdhsa_system_sgpr_workgroup_id_x 1
.end_amdhsa_kernel
"""
    return txt, k.stamp_names


if __name__ == "__main__":
    out = sys.argv[1]
    stamps = "stamps" in sys.argv[2:]
    opts = {}
    for a in sys.argv[2:]:
        if "=" in a:
            x, y = a.split("=")
            opts[x] = int(y)
    txt, names = gen(stamps, opts)
    open(out, "w").write(txt)
    if stamps:
        open(out + ".names", "w").write("\n".join(names))
```

```python
import sys
from contextlib import contextmanager

NAME = "interleave_layers__linear_attn_block__dense_activation_relu__prompt_kernel"

WS_EPOCH = 0
WS_XID = 0x8000
WS_PD = 0x10000
GRP0 = 0x100000
G_FO, G_FX1, G_FX2, G_FH = 0, 512, 1024, 1536
G_ST1 = 0x1000
G_ST2 = G_ST1
G_ST0 = 0x4000
G_X1 = 0x8000
G_X2 = G_X1
G_H = G_X1 + 0x20000
G_O = G_H
WS_KVX = 0x1200000
KVX_C = 0x9000
WS_W2T = 0x1400000
WS_PK = 0x1600000
PK_KV, PK_Q, PK_W1A, PK_W1B, PK_WO, PK_SZ = 0, 65536, 98304, 163840, 212992, 278528
WS_STAMP = 0x1B00000
WS_USED = 0x1C00000
OOB = 0x7f000000

R0, R1, R2, R3 = 0, 65536, 98304, 131072
L_SM = 161792
L_CS = L_SM
L_ZB = L_SM + 896
L_STAT = L_SM + 1024
L_XB = L_SM - 4096
W1B_N1 = 8
L_XST = 98304
L_RED = R2
L_PST = R2
LDS_BYTES = 163840

S_X, S_WQKV, S_WO, S_W1, S_W2, S_OUT, S_WS = 4, 8, 12, 16, 20, 24, 28
(sW, sC, sG, sTAG, sSLOW, sGB, sBUD, sEP, sEPS, _e1, sT0, sT1, sT2, sT3, sT4, sT5,
 sACT, sACT1, sBACT, sTILE, sOST, sOST1, sFOo, sFOp, sFXo, sFXp, sSTo, sSTg,
 sH1, sH1b, sH2, sH2b, sH3, sH3b, sFHo, sFHp, sRB, _r1, _r2, _r3, sKVC, sKVP,
 sDH, sCT, sXCC, sT8, sD0, sD1, sD2, sD3, sL0, sL1, sPKB, sPDA, sPDB, sJ0) = range(32, 88)
assert sEPS % 2 == 0
sRHO = sT8
S_A, S_B = 88, 92
sKEX = 88
sDK = 92
sS8 = 93
sKM = 96
sST = 98
sPC = 100

vLANE, vL16, vTR0, vTR1, vQ0, vQ1, vQ2, vQ3, vP, vCH, vDM, vSTAMP = range(12)
vT0, vT1, vT2, vT3 = 12, 13, 14, 15
vSP, vSP2 = vP, vCH
vRES = 16
vPQ = 24
vWB = 32
vACC = 64
vACT = 128
BF1 = "0x3f803f80"
(cCSA, cCSB, cP16, aDUM, cSTO, cSTW, cSTA, cSTB, cKW, cKR, cKW1, cKR1, cKVS, cXW, cXR, cZR,
 cRD0, cRD1, cRD2, cRD3, cRSD, cOUT, cZL, cZW) = range(224, 248)
aONES, aCS = 248, 252


def srd(s):
    return f"s[{s}:{s+3}]"


def vr(a, n=1):
    return f"v{a}" if n == 1 else f"v[{a}:{a+n-1}]"


def ar(a, n=1):
    return f"a{a}" if n == 1 else f"a[{a}:{a+n-1}]"


def bcast(r, pos, n):
    lo = [0] * n
    hi = [1] * n
    if r % 2 == 0:
        hi[pos] = 0
    else:
        lo[pos] = 1
    f = lambda x: "[" + ",".join(map(str, x)) + "]"
    return vr(r & ~1, 2), f" op_sel:{f(lo)} op_sel_hi:{f(hi)}"


class K:
    def __init__(self, stamps=False, opts=None):
        self.lines = []
        self.nlab = 0
        self.vm = []
        self.ds = []
        self.stamps = stamps
        self.stamp_names = []
        self.o = opts or {}
        self._rec = None
        self.seen = set()
        self.tailcode = []
        self.lights = []

    def _do(self, fn, cost=None):
        if cost is not None:
            fn.cost = cost
        if self._rec is not None:
            self._rec.append(fn)
        else:
            fn()

    def rec(self, f):
        assert self._rec is None
        self._rec = []
        f()
        r, self._rec = self._rec, None
        return r

    @contextmanager
    def atomic(self):
        if self._rec is None:
            yield
            return
        outer, self._rec = self._rec, []
        yield
        inner, self._rec = self._rec, outer
        g = lambda: [x() for x in inner]
        g.cost = sum(getattr(x, "cost", 4) for x in inner)
        outer.append(g)

    def play(self, items):
        for x in items:
            self._do(x)

    def _emit(self, l):
        self.lines.append(("" if l.endswith(":") else "    ") + l)

    def __call__(self, s):
        for l in s.split("\n"):
            l = l.strip()
            if l:
                self._do(lambda l=l: self._emit(l), 8 if l.startswith(("v_exp", "v_rsq", "v_rcp", "buffer_")) else 0 if l.endswith(":") else 4)

    def label(self, base="L"):
        self.nlab += 1
        return f"{base}_{self.nlab}"

    def vmem(self, s, tag=None):
        def f():
            self._emit(s)
            self.vm.append(tag)
            self.seen.add(tag)
        self._do(f, 8)

    def vm_note(self, n, tag=None):
        self._do(lambda: (self.vm.extend([tag] * n), self.seen.add(tag)))

    def _wait(self, lst, tag, name, mx):
        if tag not in lst:
            return lst
        idx = len(lst) - 1 - lst[::-1].index(tag)
        n = min(len(lst) - idx - 1, mx)
        self._emit(f"s_waitcnt {name}({n})")
        return lst[len(lst) - n:] if n else []

    def vm_wait(self, tag):
        def f():
            assert tag in self.seen, tag
            self.vm = self._wait(self.vm, tag, "vmcnt", 63)
        self._do(f)

    def save_vm(self):
        def f():
            self._sv = list(self.vm)
        self._do(f)

    def restore_vm(self):
        def f():
            self.vm = self._sv
        self._do(f)

    def vm_all(self):
        def f():
            self._emit("s_waitcnt vmcnt(0)")
            self.vm = []
        self._do(f)

    def lds(self, s, tag=None):
        def f():
            self._emit(s)
            self.ds.append(tag)
        self._do(f)

    def ds_wait(self, tag):
        def f():
            self.ds = self._wait(self.ds, tag, "lgkmcnt", 15)
        self._do(f)

    def ds_all(self, force=False):
        def f():
            if self.ds or force:
                self._emit("s_waitcnt lgkmcnt(0)")
            self.ds = []
        self._do(f)

    def barrier(self, force=False):
        self.ds_all(force)
        self("s_barrier")

    def stamp(self, name, light=False):
        if not self.stamps:
            return
        if light:
            i = len(self.stamp_names)
            self.stamp_names.append(name)
            r = 4 + 2 * len(self.lights)
            self.lights.append((r, i))
            self(f"s_memtime s[{r}:{r+1}]")
            return
        self.nst = getattr(self, "nst", 0) + 1
        if self.o.get("lite") and name not in ("end", "D.pub"):
            return
        i = len(self.stamp_names)
        assert i < 59
        self.stamp_names.append(name)
        self(f"{'s_memrealtime' if self.o.get('rt') else 's_memtime'} s[{sST}:{sST+1}]")
        self.ds_all(True)
        self(f"v_writelane_b32 v{vSTAMP}, s{sST}, {i}")
        for r, j in self.lights:
            self(f"v_writelane_b32 v{vSTAMP}, s{r}, {j}")
        self.lights = []

    def dma(self, sr, voff, soff, simm, lreg, limm, tag=None, flag=""):
        with self.atomic():
            self(f"s_add_u32 m0, s{lreg}, {limm}")
            self(f"s_add_u32 s{sT5}, s{soff}, {simm}")
            self.vmem(f"buffer_load_dwordx4 v{voff}, {srd(sr)}, s{sT5} offen{flag} lds", tag)

    def get(self, v, c):
        self(f"v_accvgpr_read_b32 v{v}, a{c}")

    def poll_prep(self, mask):
        self.get(vT3, cP16)
        if mask == 7:
            self(f"v_and_b32 v{vT3}, 28, v{vT3}")

    def poll(self, soff, imm, clear=True):
        if clear:
            self.seen = {t for t in self.seen if not (isinstance(t, tuple) and t[0] in ("act", "h"))}
        lp, done = self.label("L_poll"), self.label("L_pd")
        with self.atomic():
            self(f"{lp}:")
            self(f"buffer_load_dword v{vT0}, v{vT3}, {srd(S_WS)}, s{soff} offen offset:{imm} sc1")
            self.vm_all()
            self(f"v_cmp_ne_u32 vcc, s{sTAG}, v{vT0}")
            self(f"s_cbranch_vccz {done}")
            self(f"s_sub_u32 s{sBUD}, s{sBUD}, 1")
            self(f"s_cbranch_scc0 {lp}")
            self(f"s_mov_b32 s{sBUD}, 0")
            self(f"{done}:")

    def poll_a(self, soff, imm):
        if self.o.get("pp", 1):
            self.vmem(f"buffer_load_dword v{vT0}, v{vT3}, {srd(S_WS)}, s{soff} offen offset:{imm} sc1", "pa")

    def poll_b(self, soff, imm):
        if not self.o.get("pp", 1):
            return self.poll(soff, imm)
        self.seen = {t for t in self.seen if not (isinstance(t, tuple) and t[0] in ("act", "h"))}
        lp, done = self.label("L_poll"), self.label("L_pd")
        ld = lambda v: f"buffer_load_dword v{v}, v{vT3}, {srd(S_WS)}, s{soff} offen offset:{imm} sc1"
        self(f"{lp}:")
        self(ld(vT2))
        self("s_waitcnt vmcnt(1)")
        self(f"v_cmp_ne_u32 vcc, s{sTAG}, v{vT0}")
        self(f"s_cbranch_vccz {done}")
        self(ld(vT0))
        self("s_waitcnt vmcnt(1)")
        self(f"v_cmp_ne_u32 vcc, s{sTAG}, v{vT2}")
        self(f"s_cbranch_vccz {done}")
        self(f"s_sub_u32 s{sBUD}, s{sBUD}, 1")
        self(f"s_cbranch_scc0 {lp}")
        self(f"s_mov_b32 s{sBUD}, 0")
        self(f"{done}:")
        self.vm = ["pb"]

    def stores(self, items, force_sc1, tag="st"):
        with self.atomic():
            if force_sc1:
                for it in items:
                    self.vmem(it + " sc1", tag)
                return
            ls, le = self.label("L_ss"), self.label("L_se")
            self(f"s_cmp_lg_u32 s{sSLOW}, 0")
            self(f"s_cbranch_scc1 {ls}")
            for it in items:
                self.vmem(it, tag)
            self(f"{le}:")
            self.tailcode += [f"{ls}:"] + ["    " + it + " sc1" for it in items] + [f"    s_branch {le}"]

    def flag(self, soff, imm):
        with self.atomic():
            self(f"v_mov_b32 v{vT1}, s{sTAG}")
            self.vm_wait("st")
            self("s_mov_b64 exec, 1")
            self.stores([f"buffer_store_dword v{vT1}, v{vL16}, {srd(S_WS)}, s{soff} offen offset:{imm}"], False, "flag")
            self("s_mov_b64 exec, -1")

    def gemm_begin(self, frags, D=6):
        self.gid = getattr(self, "gid", 0) + 1
        g = dict(frags=frags, D=D, gid=self.gid, rp=0, reads=[])
        for t, f in enumerate(frags):
            s = vWB + 4 * (t % 8)
            if len(f["offs"]) == 2:
                for hh in range(2):
                    g["reads"].append((t, f"ds_read_b64_tr_b16 {vr(s + 2*hh, 2)}, v{f['addr']} offset:{f['offs'][hh]}"))
            else:
                g["reads"].append((t, f"ds_read_b128 {vr(s, 4)}, v{f['addr']} offset:{f['offs'][0]}"))
        self._issue(g, D - 1, 99)
        return g

    def _issue(self, g, tmax, maxn):
        c = 0
        reads = g["reads"]
        while g["rp"] < len(reads) and reads[g["rp"]][0] <= tmax and c < maxn:
            self.lds(reads[g["rp"]][1], ("w", g["gid"], reads[g["rp"]][0]))
            g["rp"] += 1
            c += 1

    def gemm_run(self, g, fill=None):
        fill = fill or {}
        frags, D, gid = g["frags"], g["D"], g["gid"]
        n = len(frags)
        mi = 0
        pend = []
        LATE = self.o.get("late", 3)
        for t, f in enumerate(frags):
            s = vWB + 4 * (t % 8)
            if t % 2 == 0:
                self.ds_wait(("w", gid, min(t + 1, n - 1)))
            nm = len(f["mf"])
            for j, (acc, act_, sw, first, wt) in enumerate(f["mf"]):
                if wt is not None:
                    self.vm_wait(wt)
                c = "0" if first else vr(acc, 4) if acc is not None else ar(aCS, 4)
                if acc is None:
                    self(f"v_mfma_f32_16x16x32_bf16 {ar(aCS,4)}, {ar(aONES,4)}, {vr(s,4)}, {c}")
                elif sw:
                    self(f"v_mfma_f32_16x16x32_bf16 {vr(acc,4)}, {vr(s,4)}, {vr(act_,4)}, {c}")
                else:
                    self(f"v_mfma_f32_16x16x32_bf16 {vr(acc,4)}, {vr(act_,4)}, {vr(s,4)}, {c}")
                rp0 = g["rp"]
                self._issue(g, t + D, 99 if j == nm - 1 else 1)
                room = 8 - 4 * (g["rp"] - rp0) - (4 if (j == nm - 1 and t % 2 == 1) else 0)
                pend += [(mi, x) for x in fill.pop(mi, [])]
                while pend:
                    cst = getattr(pend[0][1], "cost", 4)
                    if cst <= room or (room == 8 and cst > 8) or mi - pend[0][0] >= LATE:
                        self.play([pend.pop(0)[1]])
                        room -= cst
                    else:
                        break
                mi += 1
        self.play([x for _, x in pend])
        for key in sorted(fill):
            self.play(fill[key])

    def gemm(self, frags, fill=None, D=6):
        self.gemm_run(self.gemm_begin(frags, D), fill)


def merge_waits(lines):
    import re
    out = []
    for l in lines:
        m = re.match(r"\s*s_waitcnt (\w+)\((\d+)\)$", l)
        if m and out:
            p = re.match(r"\s*s_waitcnt (\w+)\((\d+)\)$", out[-1])
            if p and p.group(1) != m.group(1):
                out[-1] = out[-1] + f" {m.group(1)}({m.group(2)})"
                continue
        out.append(l)
    return out


def spread(fill, items, start, step, per=1):
    p = start
    if step == 0:
        g = lambda: [x() for x in items]
        g.cost = sum(getattr(x, "cost", 4) for x in items)
        fill.setdefault(int(p), []).append(g)
        return p
    for i in range(0, len(items), per):
        fill.setdefault(int(p), []).extend(items[i:i + per])
        p += step
    return p


def insn_sizes(lines, tailcode):
    import subprocess, tempfile, re, os
    src = [".amdgcn_target \"amdgcn-amd-amdhsa--gfx950\"", ".text", ".set CODE_BYTES, 0x12345"]
    for i, l in enumerate(lines):
        src.append(f"Lz{i}:")
        src.append(l)
    src.append(f"Lz{len(lines)}:")
    src += tailcode
    with tempfile.TemporaryDirectory() as d:
        open(d + "/a.s", "w").write("\n".join(src) + "\n")
        subprocess.run(["clang", "-x", "assembler", "-target", "amdgcn-amd-amdhsa", "-mcpu=gfx950", "-c", d + "/a.s", "-o", d + "/a.o"], check=True)
        out = subprocess.run(["llvm-objdump", "-t", d + "/a.o"], capture_output=True, text=True, check=True).stdout
    addr = {}
    for l in out.splitlines():
        m = re.match(r"([0-9a-f]+) .*\sLz(\d+)$", l)
        if m:
            addr[int(m.group(2))] = int(m.group(1), 16)
    return [addr[i + 1] - addr[i] for i in range(len(lines))]


def add_pads(lines, tailcode, step, splits):
    def call(first, ret):
        c = ["    s_mov_b64 exec, 0"]
        for w in range(3):
            c += [f"    s_cmp_eq_u32 s{sW}, {w}", f"    s_cbranch_scc1 L_pad{first + w}"]
        return c + [f"    s_branch L_pad{first + 3}"]
    src = []
    for l in lines:
        t = l.strip()
        if t.startswith("PADCALL") and t != "PADCALL":
            g = int(t[7:])
            if g <= len(splits):
                src += ["    s_nop 0 ; CALL%d" % g] * 9
        else:
            src.append(l)
    ci = [i for i, l in enumerate(src) if l.strip() == "PADCALL"][0]
    src = src[:ci] + src[ci + 1:]
    sz = insn_sizes(src, tailcode)
    body, pos, nxt, n = [], 4, step, 0
    for i in range(ci, len(src)):
        if pos >= nxt and sz[i] > 0 and "; CALL" not in src[i]:
            body.append(("PAD", n))
            n += 1
            pos += 4
            nxt = (pos // step + 1) * step
        body.append(src[i])
        pos += sz[i]
    bounds = [0] + list(splits) + [n]
    assert all(bounds[i + 1] - bounds[i] >= 4 for i in range(len(bounds) - 1)), (bounds, n)
    out = src[:ci] + call(0, 0) + [".p2align 12", "L_padret0:", "    s_mov_b64 exec, -1"]
    done = set()
    for x in body:
        if isinstance(x, tuple):
            j = x[1]
            g = max(i for i in range(len(bounds) - 1) if bounds[i] <= j)
            out += [f"L_pad{j}:", f"    s_cbranch_execz {'L_pad%d' % (j + 4) if j + 4 < bounds[g + 1] else 'L_padret%d' % g}"]
        elif "; CALL" in x:
            g = int(x.split("CALL")[1])
            if g not in done:
                done.add(g)
                out += call(bounds[g], g) + [f"L_padret{g}:", "    s_mov_b64 exec, -1"]
        else:
            out.append(x)
    return out


def mix(a, b, ratio):
    out = []
    bi = 0
    for i, x in enumerate(a):
        out.append(x)
        if (i + 1) % ratio == 0 and bi < len(b):
            out.append(b[bi]); bi += 1
    out.extend(b[bi:])
    return out


def act(ks, rb):
    return vACT + 8 * ks + 4 * rb


def gen(stamps=False, opts=None):
    k = K(stamps, opts)
    o = k.o
    if stamps:
        k(f"{'s_memrealtime' if o.get('rt') else 's_memtime'} s[{sST}:{sST+1}]")
        k(f"s_memrealtime s[{sPC}:{sPC+1}]")
    k(f"""
    s_cmp_ge_u32 s2, 256
    s_cbranch_scc1 L_end
    s_load_dwordx2 s[{S_X}:{S_X+1}], s[0:1], 0
    s_load_dwordx2 s[{S_WQKV}:{S_WQKV+1}], s[0:1], 8
    s_load_dwordx2 s[{S_WS}:{S_WS+1}], s[0:1], 64
    s_load_dwordx2 s[{S_WO}:{S_WO+1}], s[0:1], 16
    s_load_dwordx2 s[{S_W1}:{S_W1+1}], s[0:1], 32
    s_load_dwordx2 s[{S_W2}:{S_W2+1}], s[0:1], 40
    s_load_dwordx2 s[{S_OUT}:{S_OUT+1}], s[0:1], 48
    """)
    if o.get("cw0", 1):
        k(f"""
        s_getpc_b64 s[{S_A}:{S_A+1}]
        L_pcref:
        s_lshr_b32 s{sT2}, s2, 3
        s_lshl_b32 s{sT2}, s{sT2}, 11
        v_lshlrev_b32 v{vT3}, 3, v0
        v_add_u32 v{vT3}, s{sT2}, v{vT3}
        v_min_u32 v{vT3}, CODE_BYTES, v{vT3}
        s_mov_b32 exec_lo, 0x10001
        s_mov_b32 exec_hi, 0x10001
        global_load_dword a{aDUM}, v{vT3}, s[{S_A}:{S_A+1}]
        s_mov_b64 exec, -1
        """)
    k(f"""
    v_lshrrev_b32 v{vT0}, 6, v0
    v_and_b32 v{vLANE}, 63, v0
    s_mov_b32 s{S_X+2}, {2048*1024}
    v_readfirstlane_b32 s{sW}, v{vT0}
    s_mov_b32 s{S_X+3}, 0x20000
    s_mov_b32 s{S_WQKV+2}, {512*3072}
    s_mov_b32 s{S_WQKV+3}, 0x20000
    s_lshr_b32 s{sT0}, s2, 3
    s_and_b32 s{sC}, s{sT0}, 15
    s_lshr_b32 s{sT0}, s{sT0}, 4
    s_and_b32 s{sG}, s2, 7
    s_lshl1_add_u32 s{sG}, s{sG}, s{sT0}
    s_lshr_b32 s{sT1}, s{sC}, 1
    s_xor_b32 s{sT1}, s{sT1}, s{sT0}
    s_and_b32 s{sT1}, s{sT1}, 1
    s_and_b32 s{sRHO}, s{sC}, 1
    s_lshl1_add_u32 s{sRHO}, s{sT1}, s{sRHO}
    v_lshlrev_b32 v{vL16}, 4, v{vLANE}
    """)
    if stamps:
        k(f"v_mov_b32 v{vSTAMP}, 0")
    NTP = " nt" if o.get("nt", 0) & 1 else ""
    NTX = " nt" if o.get("nt", 0) & 2 else ""
    XS, XR, X2R = vRES, vRES + 4, act(15, 1)
    aRES = 246
    k(f"""
    v_lshrrev_b32 v{vT0}, 4, v{vLANE}
    v_and_b32 v{vT1}, 15, v{vLANE}
    v_xor_b32 v{vT2}, v{vT0}, v{vT1}
    v_lshlrev_b32 v{vT2}, 4, v{vT2}
    v_lshl_add_u32 v{XS}, v{vT0}, 10, v{vT2}
    v_xor_b32 v{XS+1}, 64, v{XS}
    v_xor_b32 v{XS+2}, 0x80, v{XS}
    v_xor_b32 v{XS+3}, 0xc0, v{XS}
    v_lshrrev_b32 v{vP}, 2, v{vLANE}
    v_and_b32 v{vCH}, 3, v{vLANE}
    v_lshrrev_b32 v{vT3}, 3, v{vLANE}
    v_and_b32 v{vT3}, 2, v{vT3}
    v_xor_b32 v{vCH}, v{vCH}, v{vT3}
    v_lshlrev_b32 v{vCH}, 4, v{vCH}
    v_and_b32 v{vT3}, 3, v{vP}
    v_lshl_add_u32 v{vT3}, v{vT0}, 3, v{vT3}
    s_movk_i32 s{sT1}, 3072
    v_mad_u32_u24 v{vDM}, v{vT3}, s{sT1}, v{vCH}
    s_lshl_b32 s{sL0}, s{sW}, 14
    s_add_u32 s{sL0}, s{sL0}, {L_XST}
    s_lshl_b32 s{sT1}, s{sG}, 17
    s_lshl_b32 s{sT2}, s{sW}, 15
    s_add_u32 s{sT1}, s{sT1}, s{sT2}
    s_lshl_b32 s{sL1}, s{sW}, 12
    """)
    for r in range(4):
        k(f"""
        s_add_u32 s{sT2}, s{sRHO}, {r}
        s_and_b32 s{sT2}, s{sT2}, 3
        s_lshl_b32 s{sT3}, s{sT2}, 8
        s_add_u32 s{sD0+r}, s{sT1}, s{sT3}
        s_lshl2_add_u32 s{sT2}, s{sT2}, s{sW}
        s_mul_i32 s{sT2}, s{sT2}, {32*3072}
        s_lshl_b32 s{sT3}, s{sC}, 6
        s_add_u32 s{sRB+r}, s{sT2}, s{sT3}
        """)
    k("s_waitcnt lgkmcnt(0)")
    k(f"s_load_dword s{sEP}, s[{S_WS}:{S_WS+1}], {WS_EPOCH}")
    if stamps:
        k(f"v_writelane_b32 v{vSTAMP}, s{sST}, 62")
        k(f"v_writelane_b32 v{vSTAMP}, s{sPC}, 63")

    def xslot(q, js=range(8)):
        for j in js:
            k.dma(S_X, XS + (j & 3), sD0 + q, j * 4096, sL0, (q & 1) * 8192 + j * 1024, ("xs", q), " nt" if o.get("nt", 0) & 4 else "")

    def wkv_raw(r):
        for pr in range(2):
            for hh in range(2):
                k.dma(S_WQKV, vDM, sRB + r, hh * 4 * 3072 + 1024 * (pr + 1), sL1, R0 + r * 16384 + pr * 2048 + hh * 1024, ("wkv", r))

    def quad_lane(pitch, dst=vDM, tmp=vT2, sD3=sD3):
        vT2 = tmp
        k(f"v_lshrrev_b32 v{dst}, 3, v{vLANE}")
        k(f"v_and_b32 v{vT2}, 6, v{dst}")
        k(f"v_xor_b32 v{vT2}, v{vT2}, v{vLANE}")
        k(f"v_and_b32 v{vT2}, 7, v{vT2}")
        k(f"v_lshlrev_b32 v{vT2}, 4, v{vT2}")
        if isinstance(pitch, int):
            k(f"s_movk_i32 s{sD3}, {pitch}")
            pitch = f"s{sD3}"
        k(f"v_mad_u32_u24 v{dst}, v{dst}, {pitch}, v{vT2}")

    def dma_raw(sr, lds_imm, first, R=None):
        sD0_, sD2_, sL0_, vDM_ = R or (sD0, sD2, sL0, vDM)
        with k.atomic():
            k(f"s_add_u32 m0, s{sL0_}, {lds_imm}")
            k("s_nop 0" if first else f"s_add_u32 s{sD0_}, s{sD0_}, s{sD2_}")
            k(f"buffer_load_dwordx4 v{vDM_}, {srd(sr)}, s{sD0_} offen{NTP} lds")

    def packU_issue(base, sD0, sD1, sD2, sD3, sL0, vDM, sPDA, shift=12):
        R = (sD0, sD2, sL0, vDM)
        l2, l3, lq, le = k.label("L_u2"), k.label("L_u3"), k.label("L_uq"), k.label("L_ue")
        with k.atomic():
            k(f"""
            s_lshl_b32 s{sL0}, s{sW}, {shift}
            s_add_u32 s{sL0}, s{sL0}, {base}
            s_lshr_b32 s{sD0}, s{sC}, 2
            s_mul_i32 s{sD0}, s{sD0}, 896
            s_mul_i32 s{sD1}, s{sG}, {32*3584}
            s_add_u32 s{sD0}, s{sD0}, s{sD1}
            s_and_b32 s{sD1}, s{sC}, 3
            s_cmp_eq_u32 s{sW}, 3
            s_cbranch_scc1 {l3}
            s_cmp_eq_u32 s{sW}, 2
            s_cbranch_scc1 {l2}
            s_mov_b32 s{S_A}, s{S_W2}
            s_mov_b32 s{S_A+1}, s{S_W2+1}
            s_mov_b32 s{S_A+2}, {1792*1024}
            s_movk_i32 s{sD2}, 1024
            s_lshl1_add_u32 s{sD0}, s2, s{sW}
            s_lshr_b32 s{sD1}, s{sD0}, 3
            s_and_b32 s{sD0}, s{sD0}, 7
            s_mul_i32 s{sPDA}, s{sD0}, 56
            s_add_u32 s{sPDA}, s{sPDA}, s{sD1}
            s_lshl_b32 s{sPDA}, s{sPDA}, 12
            s_add_u32 s{sPDA}, s{sPDA}, {WS_W2T}
            s_cmp_ge_u32 s{sD1}, 56
            s_cselect_b32 s{sPDA}, {OOB}, s{sPDA}
            s_lshl_b32 s{sD1}, s{sD1}, 15
            s_lshl_b32 s{sD0}, s{sD0}, 7
            s_add_u32 s{sD0}, s{sD0}, s{sD1}
            s_branch {lq}
            {l2}:
            s_mov_b32 s{S_A}, s{S_W1}
            s_mov_b32 s{S_A+1}, s{S_W1+1}
            s_mov_b32 s{S_A+2}, {512*3584}
            s_movk_i32 s{sD2}, 3584
            s_lshl_b32 s{sD1}, s{sD1}, 7
            s_add_u32 s{sD0}, s{sD0}, s{sD1}
            s_lshl_b32 s{sPDA}, s{sG}, 12
            s_add_u32 s{sPDA}, s{sPDA}, s{sPKB}
            s_add_u32 s{sPDA}, s{sPDA}, {PK_W1A}
            {lq}:
            s_mov_b32 s{S_A+3}, 0x20000
            """)
            quad_lane(f"s{sD2}", vDM, vT2 if shift == 14 else vACT + 127)
            k(f"s_lshl_b32 s{sD2}, s{sD2}, 3")
            for j in range(4):
                dma_raw(S_A, j * 1024, j == 0, R)
            k(f"""
            s_branch {le}
            {l3}:
            s_movk_i32 s{sD3}, 3584
            s_mul_i32 s{sPDA}, s{sG}, 3072
            s_add_u32 s{sPDA}, s{sPDA}, s{sPKB}
            s_add_u32 s{sPDA}, s{sPDA}, {PK_W1B}
            s_lshr_b32 s{sT5}, s{sD1}, 1
            s_mul_i32 s{sT5}, s{sT5}, 6
            s_and_b32 s{sD2}, s{sD1}, 1
            s_add_u32 s{sT5}, s{sT5}, s{sD2}
            s_add_u32 s{sT5}, s{sT5}, 18
            s_lshl_b32 s{sT5}, s{sT5}, 5
            s_add_u32 s{sT5}, s{sT5}, s{sD0}
            v_lshrrev_b32 v{vDM}, 1, v{vLANE}
            v_and_b32 v{vT2 if shift == 14 else vACT + 127}, 16, v{vL16}
            v_mad_u32_u24 v{vDM}, v{vDM}, s{sD3}, v{vT2 if shift == 14 else vACT + 127}
            s_add_u32 m0, s{sL0}, 2048
            s_mul_i32 s{sD1}, s{sD1}, 3
            buffer_load_dwordx4 v{vDM}, {srd(S_W1)}, s{sT5} offen{NTP} lds
            s_add_u32 s{sD1}, s{sD1}, 17
            s_lshr_b32 s{sD1}, s{sD1}, 1
            s_lshl_b32 s{sD1}, s{sD1}, 6
            s_add_u32 s{sD0}, s{sD0}, s{sD1}
            s_mov_b32 s{sD2}, {16*3584}
            v_mad_u32_u24 v{vDM}, v{vP}, s{sD3}, v{vCH}
            """)
            for hh in range(2):
                dma_raw(S_W1, hh * 1024, hh == 0, R)
            k(f"buffer_load_dword a{aDUM}, v{vL16}, {srd(S_W1)}, s{S_W1+2} offen")
            k(f"{le}:")
            k.vm_note(4, "pu")

    WP = o.get("wp", 1)

    def warm():
        k(f"v_lshlrev_b32 v{vT3}, 7, v{vLANE}")
        k("s_mov_b64 exec, 0xf")
        if not o.get("cw0", 1):
            k(f"""
            s_getpc_b64 s[{sPC}:{sPC+1}]
            L_pcref:
            s_lshr_b32 s{sT2}, s2, 3
            s_lshl2_add_u32 s{sT2}, s{sT2}, s{sW}
            s_lshl_b32 s{sT2}, s{sT2}, 9
            s_min_u32 s{sT2}, s{sT2}, CODE_BYTES
            s_add_u32 s{sPC}, s{sPC}, s{sT2}
            s_addc_u32 s{sPC+1}, s{sPC+1}, 0
            """)
            k.vmem(f"global_load_dword a{aDUM}, v{vT3}, s[{sPC}:{sPC+1}]")
        if o.get("warm", 0) >= 1:
            k(f"s_lshl2_add_u32 s{sT2}, s2, s{sW}")
            k(f"s_lshr_b32 s{sT3}, s{sT2}, 1")
            k(f"s_mul_i32 s{sT3}, s{sT3}, 3072")
            k(f"s_and_b32 s{sT4}, s{sT2}, 1")
            k(f"s_lshl_b32 s{sT4}, s{sT4}, 9")
            k(f"s_add_u32 s{sT3}, s{sT3}, s{sT4}")
            k.vmem(f"buffer_load_dword a{aDUM}, v{vT3}, {srd(S_WQKV)}, s{sT3} offen")
            if not WP:
                k(f"s_lshl_b32 s{sT3}, s{sT2}, 9")
                k.vmem(f"buffer_load_dword a{aDUM}, v{vT3}, {srd(S_WO)}, s{sT3} offen")
        if o.get("tlb", 0):
            k("s_mov_b64 exec, 1")
            k(f"s_mul_i32 s{sT3}, s{sT2}, 1792")
            k.vmem(f"buffer_load_dword a{aDUM}, v{vT3}, {srd(S_W1)}, s{sT3} offen")
            k.vmem(f"buffer_load_dword a{aDUM}, v{vT3}, {srd(S_W2)}, s{sT3} offen")
            if o["tlb"] > 1:
                k("s_mov_b64 exec, 0x1f")
                k(f"v_lshlrev_b32 v{vWB}, 21, v{vLANE}")
                k(f"s_mov_b32 s{sT3}, {WS_KVX + 0x1f0000}")
                k.vmem(f"buffer_load_dword a{aDUM}, v{vWB}, {srd(S_WS)}, s{sT3} offen")
        if o.get("warm", 0) >= 2:
            k(f"s_mul_i32 s{sT3}, s{sT2}, 1792")
            k("s_mov_b64 exec, 0x3fff")
            k.vmem(f"buffer_load_dword a{aDUM}, v{vT3}, {srd(S_W1)}, s{sT3} offen")
            k.vmem(f"buffer_load_dword a{aDUM}, v{vT3}, {srd(S_W2)}, s{sT3} offen")
        k(f"s_lshl2_add_u32 s{sT2}, s{sC}, s{sW}")
        k(f"s_lshl_b32 s{sT2}, s{sT2}, 8")
        k(f"s_add_u32 s{sT2}, s{sT2}, s{sGB}")
        k("s_mov_b64 exec, 3")
        k.vmem(f"buffer_load_dword a{aDUM}, v{vT3}, {srd(S_WS)}, s{sT2} offen sc1", "touch")
        k("s_mov_b64 exec, -1")

    OWN = vACC
    k(f"s_lshl_b32 s{sT2}, s{sC}, 11")
    k(f"s_add_u32 s{sT2}, s{sT2}, s{sT1}")
    for r in range(2):
        k.vmem(f"buffer_load_dwordx4 {vr(OWN+4*r,4)}, v{vL16}, {srd(S_X)}, s{sT2} offen offset:{r*1024}{NTX}", "own")
    w0_ = k.rec(lambda: wkv_raw(0))
    nw0 = o.get("nw0", 0)
    k.play(w0_[:nw0])
    k(f"""
    s_mov_b32 s{S_WO+2}, {512*1024}
    s_mov_b32 s{S_WO+3}, 0x20000
    s_mov_b32 s{S_W1+2}, {512*3584}
    s_mov_b32 s{S_W1+3}, 0x20000
    s_mov_b32 s{S_W2+2}, {1792*1024}
    s_mov_b32 s{S_W2+3}, 0x20000
    s_mov_b32 s{S_WS+2}, {WS_USED}
    s_mov_b32 s{S_WS+3}, 0x20000
    s_lshl_b32 s{sGB}, s{sG}, 20
    s_add_u32 s{sGB}, s{sGB}, {GRP0}
    """)
    warm()
    UF = o.get("uf", 1)
    k(f"s_mul_i32 s{sPKB}, s{sC}, {PK_SZ}")
    k(f"s_add_u32 s{sPKB}, s{sPKB}, {WS_PK}")
    if UF == 1:
        packU_issue(R1, sH1, sH1b, sH2, sH2b, sH3, vWB + 8, sPDB)
    if WP:
        quad_lane(1024, vWB + 8, vACT + 127, sH2b)
        k(f"""
        s_lshl2_add_u32 s{sH1}, s{sG}, s{sW}
        s_lshl_b32 s{sPDA}, s{sH1}, 10
        s_add_u32 s{sPDA}, s{sPDA}, s{sPKB}
        s_add_u32 s{sPDA}, s{sPDA}, {PK_WO}
        s_lshl_b32 s{sH1}, s{sH1}, 13
        s_lshl_b32 s{sH1b}, s{sC}, 7
        s_add_u32 s{sH1}, s{sH1}, s{sH1b}
        s_cmp_ge_u32 s{sC}, 8
        s_cselect_b32 s{sH1}, {OOB}, s{sH1}
        s_cselect_b32 s{sPDA}, {OOB}, s{sPDA}
        s_lshl_b32 s{sH1b}, s{sW}, 10
        s_add_u32 m0, s{sH1b}, {R0 + 49152}
        s_nop 0
        """)
        k.vmem(f"buffer_load_dwordx4 v{vWB+8}, {srd(S_WO)}, s{sH1} offen{NTP} lds", "pwo")

    k.play(w0_[nw0:])

    if o.get("diags"): k.stamp("iss0")

    def arm(mode):
        with k.atomic():
            k(f"s_lshl2_add_u32 s{sT2}, s{sC}, s{sW}")
            k(f"s_lshl_b32 s{sT3}, s{sT2}, 11")
            k(f"s_add_u32 s{sT3}, s{sT3}, s{sGB}")
            k(f"s_add_u32 s{sT3}, s{sT3}, {G_X1}")
            k(f"s_lshr_b32 s{sT4}, s{sT2}, 3")
            k(f"s_mul_i32 s{sT4}, s{sT4}, 57344")
            k(f"s_and_b32 s{sT2}, s{sT2}, 7")
            k(f"s_mul_i32 s{sT2}, s{sT2}, {5120 if mode & 4 else 1024}")
            k(f"s_add_u32 s{sT4}, s{sT4}, s{sT2}")
            k(f"s_add_u32 s{sT4}, s{sT4}, s{sGB}")
            k(f"s_add_u32 s{sT4}, s{sT4}, {G_H + 16*1024}")
            k(f"s_add_u32 s{sT2}, s{sT4}, 4096")
        if mode & 1:
            for j in range(2):
                k.vmem(f"buffer_store_dwordx4 {vr(vQ0,4)}, v{vL16}, {srd(S_WS)}, s{sT3} offen offset:{j*1024} sc1", "arm")
        for j in range(5 if mode & 4 else 1 if mode & 2 else 0):
            k.vmem(f"buffer_store_dwordx4 {vr(vQ0,4)}, v{vL16}, {srd(S_WS)}, s{sT4 if j < 4 else sT2} offen offset:{(j%4)*1024} sc1", "arm")

    k(f"""
    s_mov_b32 s{S_OUT+2}, {2048*1024}
    s_mov_b32 s{S_OUT+3}, 0x20000
    s_lshr_b32 s{sDH}, s{sC}, 3
    s_and_b32 s{sCT}, s{sC}, 7
    s_mov_b32 s{sBUD}, 150000
    s_mov_b32 s{sEPS}, 0x358637bd
    s_mov_b32 s{sEPS+1}, 0x358637bd
    s_getreg_b32 s{sXCC}, hwreg(HW_REG_XCC_ID, 0, 4)
    s_lshl_b32 s{sACT}, s{sW}, 15
    s_add_u32 s{sACT}, s{sACT}, s{sGB}
    s_add_u32 s{sACT1}, s{sACT}, 16384
    s_lshl2_add_u32 s{sT0}, s{sDH}, s{sW}
    s_lshl_b32 s{sBACT}, s{sT0}, 14
    s_add_u32 s{sBACT}, s{sBACT}, s{sGB}
    s_lshl_b32 s{sTILE}, s{sCT}, 11
    s_add_u32 s{sTILE}, s{sTILE}, s{sBACT}
    s_mul_i32 s{sBACT}, s{sT0}, 57344
    s_add_u32 s{sBACT}, s{sBACT}, s{sGB}
    s_mul_i32 s{sOST}, s{sW}, {2*57344}
    s_lshl_b32 s{sOST1}, s{sC}, 10
    s_add_u32 s{sOST}, s{sOST}, s{sOST1}
    s_add_u32 s{sOST}, s{sOST}, s{sGB}
    s_add_u32 s{sOST}, s{sOST}, {G_O}
    s_add_u32 s{sOST1}, s{sOST}, 57344
    s_lshl_b32 s{sFXp}, s{sW}, 7
    s_add_u32 s{sFXp}, s{sFXp}, s{sGB}
    s_lshl2_add_u32 s{sFOo}, s{sC}, s{sFXp}
    s_lshl_b32 s{sFHp}, s{sT0}, 7
    s_add_u32 s{sFHp}, s{sFHp}, s{sGB}
    s_lshr_b32 s{sT0}, s{sT0}, 1
    s_mov_b32 s{sT1}, s{sT0}
    s_lshl_b32 s{sFOp}, s{sT0}, 7
    s_add_u32 s{sFOp}, s{sFOp}, s{sGB}
    s_and_b32 s{sT2}, s{sW}, 1
    s_lshl1_add_u32 s{sT3}, s{sCT}, s{sT2}
    s_lshl2_add_u32 s{sFXo}, s{sT3}, s{sFOp}
    s_lshl3_add_u32 s{sT3}, s{sT0}, s{sCT}
    s_lshl_b32 s{sT3}, s{sT3}, 8
    s_lshl3_add_u32 s{sT3}, s{sT2}, s{sT3}
    s_add_u32 s{sSTo}, s{sT3}, s{sGB}
    s_lshl_b32 s{sSTg}, s{sW}, 11
    s_add_u32 s{sSTg}, s{sSTg}, s{sGB}
    s_lshl2_add_u32 s{sT1}, s{sT1}, s{sT2}
    s_lshl_b32 s{sT1}, s{sT1}, 6
    s_add_u32 s{sT1}, s{sT1}, {L_STAT + 128}
    v_lshl_add_u32 v{vT3}, v{vT1}, 2, s{sT1}
    v_accvgpr_write_b32 a{cRSD}, v{vT3}
    s_mul_i32 s{sT0}, s{sW}, {2*57344}
    s_add_u32 s{sT0}, s{sT0}, s{sGB}
    s_lshr_b32 s{sT3}, s{sC}, 2
    s_add_u32 s{sT0}, s{sT0}, {G_H}
    s_lshl_b32 s{sH1}, s{sC}, 11
    s_add_u32 s{sH1}, s{sH1}, {24*1024}
    s_add_u32 s{sH1}, s{sH1}, s{sT0}
    s_add_u32 s{sH1b}, s{sH1}, 57344
    s_mul_i32 s{sT4}, s{sT3}, 6144
    s_add_u32 s{sT0}, s{sT0}, s{sT4}
    s_and_b32 s{sT4}, s{sC}, 3
    s_mul_i32 s{sH2}, s{sT4}, 3
    s_add_u32 s{sH2}, s{sH2}, 1
    s_lshr_b32 s{sH2}, s{sH2}, 1
    s_lshl_b32 s{sH2}, s{sH2}, 10
    s_add_u32 s{sH2}, s{sH2}, s{sT0}
    s_add_u32 s{sH2b}, s{sH2}, 57344
    s_lshr_b32 s{sH3}, s{sT4}, 1
    s_mul_i32 s{sH3}, s{sH3}, 3072
    s_and_b32 s{sH3b}, s{sT4}, 1
    s_lshl3_add_u32 s{sH3}, s{sH3b}, s{sH3}
    s_add_u32 s{sH3}, s{sH3}, 1024
    s_add_u32 s{sH3}, s{sH3}, s{sT0}
    s_add_u32 s{sH3b}, s{sH3}, 57344
    s_lshr_b32 s{sT0}, s{sW}, 1
    s_lshl2_add_u32 s{sT0}, s{sT0}, s{sT3}
    s_lshl_b32 s{sT0}, s{sT0}, 7
    s_lshl1_add_u32 s{sT2}, s{sT4}, s{sT2}
    s_lshl2_add_u32 s{sT0}, s{sT2}, s{sT0}
    s_add_u32 s{sFHo}, s{sT0}, s{sGB}
    """)
    k(f"""
    s_mul_i32 s{sT0}, s{sC}, {KVX_C}
    s_add_u32 s{sT0}, s{sT0}, {WS_KVX}
    s_lshl_b32 s{sT1}, s{sW}, 13
    s_add_u32 s{sKVC}, s{sT0}, s{sT1}
    s_lshl_b32 s{sT2}, s{sW}, 14
    s_lshl_b32 s{sT3}, s{sG}, 10
    s_lshl_b32 s{sT4}, s{sG}, 7
    s_cmp_lt_u32 s{sW}, 2
    s_cselect_b32 s{sT3}, s{sT3}, s{sT4}
    s_cselect_b32 s{sKM}, -1, 0x30003
    s_cselect_b32 s{sKM+1}, -1, 0x30003
    s_cselect_b64 vcc, -1, 0
    s_add_u32 s{sKVP}, s{sT0}, s{sT2}
    s_add_u32 s{sKVP}, s{sKVP}, s{sT3}
    s_cmp_eq_u32 s{sW}, 3
    s_cselect_b32 s{sKVP}, {OOB}, s{sKVP}
    v_lshlrev_b32 v{vT3}, 4, v{vT0}
    v_lshl_add_u32 v{vT3}, v{vT1}, 6, v{vT3}
    v_cndmask_b32 v{vT3}, v{vT3}, v{vL16}, vcc
    v_accvgpr_write_b32 a{cKVS}, v{vT3}
    v_lshlrev_b32 v{vT3}, 2, v{vL16}
    v_and_b32 v{vT3}, 0xf00, v{vT3}
    v_lshrrev_b32 v{vT3}, 1, v{vT3}
    v_and_b32 v{vWB}, 48, v{vL16}
    s_lshr_b32 s{sT2}, s{sW}, 1
    s_lshl_b32 s{sT2}, s{sT2}, 6
    s_add_u32 s{sT2}, s{sT2}, 32768
    s_sub_u32 s{sT2}, s{sT2}, s{sT1}
    v_add3_u32 v{vT3}, v{vT3}, v{vWB}, s{sT2}
    v_accvgpr_write_b32 a{cZL}, v{vT3}
    v_and_b32 v{vWB+5}, 1, v{vLANE}
    v_cndmask_b32 v{vWB+5}, v{vWB+5}, 0, vcc
    s_min_u32 s{sT5}, s{sW}, 2
    """)
    W = vWB
    k(f"""
    v_lshl_add_u32 v{XR}, v{vT1}, 8, v{vT2}
    v_add_u32 v{XR}, s{sL0}, v{XR}
    v_xor_b32 v{XR+1}, 64, v{XR}
    v_xor_b32 v{XR+2}, 0x80, v{XR}
    v_xor_b32 v{XR+3}, 0xc0, v{XR}
    v_and_b32 v{vT3}, 3, v{vLANE}
    v_lshlrev_b32 v{vT3}, 3, v{vT3}
    v_lshl_add_u32 v{vTR0}, v{vP}, 6, v{vT3}
    v_lshl_add_u32 v{vQ0}, v{vP}, 7, v{vT3}
    v_and_b32 v{vT3}, 1, v{vT0}
    v_lshlrev_b32 v{vT3}, 5, v{vT3}
    v_add_u32 v{vTR0}, v{vTR0}, v{vT3}
    v_xor_b32 v{vTR1}, 32, v{vTR0}
    v_bfe_u32 v{vT3}, v{vLANE}, 3, 2
    v_lshl_add_u32 v{vQ0}, v{vT3}, 5, v{vQ0}
    v_xor_b32 v{vQ1}, 32, v{vQ0}
    v_xor_b32 v{vQ2}, 64, v{vQ0}
    v_xor_b32 v{vQ3}, 0x60, v{vQ0}
    v_lshlrev_b32 v{W}, 2, v{vT1}
    v_accvgpr_write_b32 a{cP16}, v{W}
    v_mov_b32 v{W+1}, {BF1}
    v_accvgpr_write_b32 a{aONES}, v{W+1}
    v_accvgpr_write_b32 a{aONES+1}, v{W+1}
    v_accvgpr_write_b32 a{aONES+2}, v{W+1}
    v_accvgpr_write_b32 a{aONES+3}, v{W+1}
    v_add_u32 v{W+1}, {L_CS}, v{W}
    v_accvgpr_write_b32 a{cCSA}, v{W+1}
    v_and_b32 v{W+2}, 48, v{vLANE}
    v_add_u32 v{W+1}, {L_CS}, v{W+2}
    v_accvgpr_write_b32 a{cCSB}, v{W+1}
    v_lshlrev_b32 v{W+1}, 2, v{vT0}
    v_lshl_add_u32 v{W+1}, v{vT1}, 4, v{W+1}
    v_accvgpr_write_b32 a{cSTO}, v{W+1}
    s_lshl_b32 s{sT0}, s{sW}, 8
    s_add_u32 s{sT0}, s{sT0}, {L_STAT}
    v_add_u32 v{W+1}, s{sT0}, v{W}
    v_accvgpr_write_b32 a{cSTA}, v{W+1}
    v_and_b32 v{W+3}, 32, v{vLANE}
    v_lshl_add_u32 v{W+1}, v{W+3}, 1, v{W+1}
    v_accvgpr_write_b32 a{cSTW}, v{W+1}
    v_add_u32 v{W+1}, s{sT0}, v{W+2}
    v_accvgpr_write_b32 a{cSTB}, v{W+1}
    s_lshl_b32 s{sT0}, s{sW}, 10
    v_add_u32 v{W+1}, s{sT0}, v{vL16}
    v_accvgpr_write_b32 a{cKW}, v{W+1}
    v_add_u32 v{W+3}, {R2 + 8192}, v{W+1}
    v_accvgpr_write_b32 a{cKW1}, v{W+3}
    s_lshl_b32 s{sT0}, s{sT5}, 14
    v_add_u32 v{W+1}, s{sT0}, v{vL16}
    v_lshl_add_u32 v{W+1}, v{W+5}, 12, v{W+1}
    v_accvgpr_write_b32 a{cKR}, v{W+1}
    s_lshl_b32 s{sT0}, s{sT5}, 14
    s_add_u32 s{sT0}, s{sT0}, {R2 + 8192}
    v_add_u32 v{W+1}, s{sT0}, v{vL16}
    v_lshl_add_u32 v{W+1}, v{W+5}, 14, v{W+1}
    v_accvgpr_write_b32 a{cKR1}, v{W+1}
    v_add_u32 v{W+1}, {L_XB}, v{vL16}
    v_accvgpr_write_b32 a{cXR}, v{W+1}
    v_lshlrev_b32 v{W+3}, 3, v{vT0}
    v_add_u32 v{W+3}, {L_ZB}, v{W+3}
    v_accvgpr_write_b32 a{cZR}, v{W+3}
    """)
    k(f"""
    s_lshl_b32 s{sT0}, s{sW}, 10
    v_add_u32 v{W+1}, s{sT0}, v{W+1}
    v_accvgpr_write_b32 a{cXW}, v{W+1}
    v_and_b32 v{W+3}, 1, v{vT0}
    v_lshrrev_b32 v{W+4}, 1, v{vT0}
    v_lshl_add_u32 v{W+3}, v{W+3}, 1, v{W+4}
    v_and_b32 v{W+4}, 3, v{vLANE}
    v_lshl_add_u32 v{W+3}, v{W+4}, 2, v{W+3}
    s_lshr_b32 s{sT0}, s{sW}, 1
    s_lshl_b32 s{sT0}, s{sT0}, 5
    s_add_u32 s{sT0}, s{sT0}, {L_ZB}
    v_lshl_add_u32 v{W+3}, v{W+3}, 1, s{sT0}
    v_accvgpr_write_b32 a{cZW}, v{W+3}
    """)
    for j in range(4):
        k(f"s_add_u32 s{sT0}, s{sW}, {j}")
        k(f"s_and_b32 s{sT0}, s{sT0}, 3")
        k(f"s_lshl_b32 s{sT0}, s{sT0}, 13")
        k(f"s_add_u32 s{sT0}, s{sT0}, {L_RED + (4096 if j == 2 else 0)}")
        k(f"v_add_u32 v{W+1}, s{sT0}, v{vL16}")
        k(f"v_accvgpr_write_b32 a{cRD0+j}, v{W+1}")
    k(f"""
    s_lshl2_add_u32 s{sT0}, s{sDH}, s{sW}
    s_lshl3_add_u32 s{sT0}, s{sG}, s{sT0}
    s_lshl_b32 s{sT0}, s{sT0}, 14
    s_lshl_b32 s{sT1}, s{sCT}, 7
    s_add_u32 s{sT0}, s{sT0}, s{sT1}
    v_lshl_add_u32 v{W+1}, v{vT1}, 10, s{sT0}
    v_and_b32 v{W+3}, 1, v{vT0}
    v_lshl_add_u32 v{W+1}, v{W+3}, 5, v{W+1}
    v_lshrrev_b32 v{W+3}, 1, v{vT0}
    v_lshl_add_u32 v{W+1}, v{W+3}, 4, v{W+1}
    v_accvgpr_write_b32 a{cOUT}, v{W+1}
    """)

    def xread(q):
        k.vm_wait(("xs", q))
        for ksl in range(4):
            for rb in range(2):
                k.lds(f"ds_read_b128 {vr(act(4*q+ksl, rb),4)}, v{XR+ksl} offset:{(q%2)*8192 + rb*4096}", ("xr", q))

    SUM0, SQ0, SUM1, SQ1 = vACC + 56, vACC + 57, vACC + 58, vACC + 59
    SUMA, SQA = vACC + 48, vACC + 56
    ONES = vPQ + 4
    NM_A, RS_A, RL_A = vACC + 60, vACC + 62, vACC + 56
    NM_B, RS_B, RL_B = vACC + 32, vACC + 40, vACC + 48
    STG = vACC + 48

    def own_stats():
        a, b, c, d = OWN + 8, OWN + 9, OWN + 10, OWN + 11
        k(f"v_mov_b32 v{OWN+12}, {BF1}")
        k.vm_wait("own")
        for j in range(4):
            r0, r1 = OWN + j, OWN + 4 + j
            k(f"v_dot2_f32_bf16 v{a}, v{OWN+12}, v{r0}, {'0' if j == 0 else f'v{a}'}")
            k(f"v_dot2_f32_bf16 v{c}, v{OWN+12}, v{r1}, {'0' if j == 0 else f'v{c}'}")
            k(f"v_dot2_f32_bf16 v{b}, v{r0}, v{r0}, {'0' if j == 0 else f'v{b}'}")
            k(f"v_dot2_f32_bf16 v{d}, v{r1}, v{r1}, {'0' if j == 0 else f'v{d}'}")
        k(f"""
        s_waitcnt lgkmcnt(0)
        s_mul_i32 s{sTAG}, s{sEP}, 0x9E3779B1
        s_add_u32 s{sTAG}, s{sTAG}, 0x7F4A7C15
        s_add_u32 s{sT8}, s{sEP}, 1
        s_and_b32 s{sT8}, s{sT8}, 0xff
        s_mov_b32 s{sS8}, s{sEP}
        v_permlane32_swap_b32 v{a}, v{c}
        v_permlane32_swap_b32 v{b}, v{d}
        v_add_f32 v{a}, v{a}, v{c}
        v_add_f32 v{b}, v{b}, v{d}
        v_mov_b32 v{c}, v{a}
        v_mov_b32 v{d}, v{b}
        s_nop 1
        v_permlane16_swap_b32 v{a}, v{c}
        v_permlane16_swap_b32 v{b}, v{d}
        v_add_f32 v{a}, v{a}, v{c}
        v_add_f32 v{b}, v{b}, v{d}
        """)
        for sh in (8, 4, 2, 1):
            k("s_nop 0")
            k(f"v_add_f32_dpp v{a}, v{a}, v{a} row_ror:{sh} row_mask:0xf bank_mask:0xf")
            k(f"v_add_f32_dpp v{b}, v{b}, v{b} row_ror:{sh} row_mask:0xf bank_mask:0xf")
        k(f"""
        v_mul_f32 v{a}, 0xbb000000, v{a}
        v_mul_f32 v{b}, 0x3b000000, v{b}
        v_fma_f32 v{b}, -v{a}, v{a}, v{b}
        v_max_f32 v{b}, 0, v{b}
        v_add_f32 v{b}, 0x3727c5ac, v{b}
        v_rsq_f32 v{b}, v{b}
        v_mov_b32 v{c}, s{sTAG}
        v_mov_b32 v{d}, s{sXCC}
        v_lshrrev_b32 v{vT3}, 1, v{vLANE}
        s_lshl4_add_u32 s{sT2}, s{sW}, s{sC}
        s_lshl_b32 s{sT2}, s{sT2}, 7
        s_add_u32 s{sT2}, s{sT2}, s{sGB}
        s_add_u32 s{sT2}, s{sT2}, {G_ST0}
        s_mov_b32 exec_lo, 1
        s_mov_b32 exec_hi, 1
        """)
        k.vmem(f"buffer_store_dwordx4 {vr(a,4)}, v{vT3}, {srd(S_WS)}, s{sT2} offen sc1", "ownst")
        k("s_mov_b64 exec, -1")

    S0 = vACC + 52

    def st0_issue():
        with k.atomic():
            k(f"v_and_b32 v{vT0}, 30, v{vLANE}")
            k(f"v_lshlrev_b32 v{vT0}, 6, v{vT0}")
            k(f"v_and_b32 v{vT1}, 16, v{vL16}")
            k(f"v_add_u32 v{vT0}, v{vT0}, v{vT1}")
            k(f"s_add_u32 s{sT4}, s{sSTg}, {G_ST0}")
            k.vmem(f"buffer_load_dwordx4 {vr(S0,4)}, v{vT0}, {srd(S_WS)}, s{sT4} offen sc1", "st0")

    def st0_use():
        lp, ok = k.label("L_s0"), k.label("L_s0ok")
        with k.atomic():
            k.vm_wait("st0")
            k(f"{lp}:")
            k(f"v_cmp_ne_u32 vcc, s{sTAG}, v{S0+2}")
            k(f"s_cbranch_vccz {ok}")
            k(f"buffer_load_dwordx4 {vr(S0,4)}, v{vT0}, {srd(S_WS)}, s{sT4} offen sc1")
            k("s_waitcnt vmcnt(0)")
            k(f"s_sub_u32 s{sBUD}, s{sBUD}, 1")
            k(f"s_cbranch_scc0 {lp}")
            k(f"s_mov_b32 s{sBUD}, 0")
            k(f"{ok}:")
            k(f"v_cmp_ne_u32 vcc, s{sXCC}, v{S0+3}")
            k("s_nop 4")
            k(f"s_or_b32 s{sSLOW}, vcc_lo, {1 if o.get('forceslow') else 0}")
        k.get(vT0, cSTA)
        k(f"v_and_b32 v{vT1}, 16, v{vLANE}")
        k(f"v_lshl_add_u32 v{vT1}, v{vT1}, 2, v{vT0}")
        k.lds(f"ds_write2_b32 v{vT1}, v{S0}, v{S0+1} offset0:0 offset1:32")
        k.lds(f"ds_read2_b32 {vr(NM_A,2)}, v{vT0} offset0:0 offset1:16", "sta")
        k.lds(f"ds_read2_b32 {vr(RS_A,2)}, v{vT0} offset0:32 offset1:48", "sta")

    def stats_finalize(need_rs):
        k.get(vT1, cSTW)
        k.get(vT0, cSTA)
        k(f"""
        v_permlane32_swap_b32 v{SUM0}, v{SUM1}
        v_permlane32_swap_b32 v{SQ0}, v{SQ1}
        v_add_f32 v{SUM0}, v{SUM0}, v{SUM1}
        v_add_f32 v{SQ0}, v{SQ0}, v{SQ1}
        v_mov_b32 v{SUM1}, v{SUM0}
        v_mov_b32 v{SQ1}, v{SQ0}
        s_nop 0
        v_permlane16_swap_b32 v{SUM0}, v{SUM1}
        v_permlane16_swap_b32 v{SQ0}, v{SQ1}
        v_add_f32 v{SUM0}, v{SUM0}, v{SUM1}
        v_add_f32 v{SQ0}, v{SQ0}, v{SQ1}
        v_mul_f32 v{SUM0}, 0xbb000000, v{SUM0}
        v_mul_f32 v{SQ0}, 0x3b000000, v{SQ0}
        v_fma_f32 v{SQ0}, -v{SUM0}, v{SUM0}, v{SQ0}
        v_max_f32 v{SQ0}, 0, v{SQ0}
        v_add_f32 v{SQ0}, 0x3727c5ac, v{SQ0}
        v_rsq_f32 v{SQ0}, v{SQ0}
        s_nop 0
        """)
        k.lds(f"ds_write2_b32 v{vT1}, v{SUM0}, v{SQ0} offset0:0 offset1:32")
        k.lds(f"ds_read2_b32 {vr(NM_A,2)}, v{vT0} offset0:0 offset1:16", "sta")
        if need_rs:
            k.lds(f"ds_read2_b32 {vr(RS_A,2)}, v{vT0} offset0:32 offset1:48", "sta")

    def stats_b():
        k.get(vT1, cSTB)
        for rb in range(2):
            k.lds(f"ds_read_b128 {vr(NM_B+4*rb,4)}, v{vT1} offset:{64*rb}", "sta")
            k.lds(f"ds_read_b128 {vr(RS_B+4*rb,4)}, v{vT1} offset:{128+64*rb}", "sta")

    def stats_scale():
        k.ds_wait("sta")
        for j in range(8):
            k(f"v_mul_f32 v{RL_B+j}, 0x3fb8aa3b, v{RS_B+j}")
        for j in range(2):
            k(f"v_mul_f32 v{RL_A+j}, 0x3fb8aa3b, v{RS_A+j}")

    def set_ones(r):
        for j in range(4):
            k(f"v_mov_b32 v{r+j}, {BF1}")

    def cs_put(first, sblk):
        k.get(vT0, cCSA)
        k(f"s_lshl_b32 s{sT5}, s{sblk}, 6")
        k(f"v_add_u32 v{vT0}, s{sT5}, v{vT0}")
        k.lds(f"ds_write_b32 v{vT0}, a{aCS} offset:{first*64}")

    def phi_block(acc, nm, cs, rl, rs, dst, tmp, lay):
        s1, s2, s3, s4, s5 = [], [], [], [], []
        for p in range(2):
            a2 = vr(acc + 2*p, 2)
            t2 = vr(tmp + 2*p, 2)
            if lay == "b":
                c2, m = bcast(cs, 1, 3)
                s1.append(f"v_pk_fma_f32 {a2}, {vr(nm+2*p,2)}, {c2}, {a2}{m}")
                s2.append(f"v_pk_mul_f32 {t2}, {a2}, {vr(rl+2*p,2)}")
                s4.append(f"v_pk_fma_f32 {a2}, {a2}, {vr(rs+2*p,2)}, {t2}")
            else:
                c2, m = bcast(nm, 1, 3)
                s1.append(f"v_pk_fma_f32 {a2}, {vr(cs+2*p,2)}, {c2}, {a2}{m}")
                c2, m = bcast(rl, 1, 2)
                s2.append(f"v_pk_mul_f32 {t2}, {a2}, {c2}{m}")
                c2, m = bcast(rs, 1, 3)
                s4.append(f"v_pk_fma_f32 {a2}, {a2}, {c2}, {t2}{m}")
            for j in range(2):
                s3.append(f"v_exp_f32 v{tmp+2*p+j}, v{tmp+2*p+j} clamp")
            s5.append(f"v_pk_add_f32 {a2}, {a2}, s[{sEPS}:{sEPS+1}]")
        for s in s1 + s2 + s3:
            k(s)
        for j in range(4):
            k(f"v_max_f32 v{acc+j}, 0, v{acc+j}")
        for s in s4 + s5:
            k(s)
        for p in range(2):
            k(f"v_cvt_pk_bf16_f32 v{dst+p}, v{acc+2*p}, v{acc+2*p+1}")

    def ring(ks, rb):
        return vACT + 8 * (ks % 6) + 4 * rb
    QA, vPARK = vACT + 48, vACT + 64

    def act_loads(bufoff, act=act):
        for ks in range(16):
            for rb in range(2):
                with k.atomic():
                    if ks % 4 == 0:
                        k(f"s_add_u32 s{sT2+rb}, s{sACT+rb}, {bufoff + ks*1024}")
                    k.vmem(f"buffer_load_dwordx4 {vr(act(ks,rb),4)}, v{vL16}, {srd(S_WS)}, s{sT2+rb} offen offset:{(ks%4)*1024} sc1",
                           ("act", ks, rb))

    def stat_loads(stoff, STG=STG):
        k(f"s_add_u32 s{sT4}, s{sSTg}, {stoff}")
        for j in range(2):
            k.vmem(f"buffer_load_dwordx4 {vr(STG+4*j,4)}, v{vL16}, {srd(S_WS)}, s{sT4} offen offset:{j*1024} sc1", "stg")

    def stat_sum(STG=STG):
        lp, ok = k.label("L_sg"), k.label("L_sgok")
        k.vm_wait("stg")

        def chk():
            k(f"v_and_b32 v{SUM0}, v{STG}, v{STG+1}")
            k(f"v_or3_b32 v{SUM0+1}, v{STG}, v{STG+1}, v{STG+2}")
            k(f"v_and_b32 v{SUM0+2}, v{STG+2}, v{STG+3}")
            k(f"v_or3_b32 v{SUM0+1}, v{SUM0+1}, v{STG+3}, v{STG+4}")
            k(f"v_and_b32 v{SUM0}, v{SUM0}, v{STG+4}")
            k(f"v_or3_b32 v{SUM0+1}, v{SUM0+1}, v{STG+5}, v{STG+6}")
            k(f"v_and_b32 v{SUM0+2}, v{SUM0+2}, v{STG+5}")
            k(f"v_and_b32 v{SUM0}, v{SUM0}, v{STG+6}")
            k(f"v_and_b32 v{SUM0+2}, v{SUM0+2}, v{STG+7}")
            k(f"v_or_b32 v{SUM0+1}, v{SUM0+1}, v{STG+7}")
            k(f"v_and_b32 v{SUM0}, v{SUM0}, v{SUM0+2}")
            k(f"v_xor_b32 v{SUM0+1}, s{sS8}, v{SUM0+1}")
            k(f"v_xor_b32 v{SUM0}, s{sS8}, v{SUM0}")
            k(f"v_or_b32 v{SUM0}, v{SUM0}, v{SUM0+1}")
            k(f"v_and_b32 v{SUM0}, 0xff, v{SUM0}")
        chk()
        with k.atomic():
            k(f"v_cmp_ne_u32 vcc, 0, v{SUM0}")
            k(f"s_cbranch_vccnz {lp}")
            k(f"{ok}:")
        sv, k._rec = k._rec, None
        n0 = len(k.lines)
        k(f"{lp}:")
        for j in range(2):
            k(f"buffer_load_dwordx4 {vr(STG+4*j,4)}, v{vL16}, {srd(S_WS)}, s{sT4} offen offset:{j*1024} sc1")
        k("s_waitcnt vmcnt(0)")
        chk()
        k(f"v_cmp_ne_u32 vcc, 0, v{SUM0}")
        k(f"s_cbranch_vccz {ok}")
        k(f"s_sub_u32 s{sBUD}, s{sBUD}, 1")
        k(f"s_cbranch_scc0 {lp}")
        k(f"s_mov_b32 s{sBUD}, 0")
        k(f"s_branch {ok}")
        k.tailcode += k.lines[n0:]
        del k.lines[n0:]
        k._rec = sv
        for j in range(4):
            k(f"v_add_f32 v{SUM0+j}, v{STG+j}, v{STG+4+j}")

    def mf2(acc, ks, sw, wait, first=None, act=act):
        return [(acc + 4 * rb, act(ks, rb), sw, (ks == 0) if first is None else first,
                 (("act", ks, 1) if ks else ("act", ks, rb)) if wait else None) for rb in range(2)]

    def wo_raw():
        with k.atomic():
            quad_lane(1024)
            k(f"s_lshl_b32 s{sD0}, s{sW}, 17")
            k(f"s_lshl_b32 s{sD1}, s{sCT}, 7")
            k(f"s_add_u32 s{sD0}, s{sD0}, s{sD1}")
            k(f"s_lshl_b32 s{sL0}, s{sW}, 14")
        for j in range(16):
            k.dma(S_WO, vDM, sD0, j * 8 * 1024, sL0, R0 + j * 1024, "wo")

    def w1c1_raw():
        with k.atomic():
            quad_lane(3584, tmp=vACT + 127)
            k(f"s_lshr_b32 s{sD0}, s{sC}, 2")
            k(f"s_mul_i32 s{sD0}, s{sD0}, 896")
            k(f"s_and_b32 s{sD1}, s{sC}, 3")
            k(f"s_lshl_b32 s{sD1}, s{sD1}, 7")
            k(f"s_add_u32 s{sD0}, s{sD0}, s{sD1}")
            k(f"s_mul_i32 s{sD1}, s{sW}, {64*3584}")
            k(f"s_add_u32 s{sD0}, s{sD0}, s{sD1}")
            k(f"s_lshl_b32 s{sL0}, s{sW}, 13")
        for half in range(2):
            for j in range(8):
                k.dma(S_W1, vDM, sD0, (half * 256 + j * 8) * 3584, sL0, R1 + half * 32768 + j * 1024, "w1a")

    def lin_dma(src, dst, n, tag, shared=False):
        for j in range(n):
            with k.atomic():
                if j == 0:
                    k(f"s_mul_i32 s{sL0}, s{sW}, {n*1024}")
                    k(f"s_add_u32 s{sD0}, s{sL0}, s{sPKB}")
                    if shared:
                        k(f"s_mul_i32 s{sD1}, s{sDH}, {8*PK_SZ}")
                        k(f"s_sub_u32 s{sD0}, s{sD0}, s{sD1}")
                if j % 4 == 0:
                    k(f"s_add_u32 m0, s{sL0}, {dst + j*1024}")
                    k(f"s_add_u32 s{sD1}, s{sD0}, {src + j*1024}")
                k.vmem(f"buffer_load_dwordx4 v{vL16}, {srd(S_WS)}, s{sD1} offen offset:{(j%4)*1024} sc1 lds", tag)

    def publish_x(bufoff, stoff, floff, pay_sc1):
        k(f"s_add_u32 s{sT1}, s{sTILE}, {bufoff}")
        k.stores([f"buffer_store_dwordx4 {vr(vRES+4*s,4)}, v{vL16}, {srd(S_WS)}, s{sT1} offen offset:{s*1024}" for s in range(2)], pay_sc1)
        a, b, c, d = vT0, vT1, vT2, vT3
        for j in range(4):
            r0, r1 = vRES + j, vRES + 4 + j
            if j == 0:
                k(f"v_mov_b32 v{vWB+9}, {BF1}")
                k(f"v_dot2_f32_bf16 v{b}, v{r0}, v{r0}, 0")
                k(f"v_dot2_f32_bf16 v{d}, v{r1}, v{r1}, 0")
                k(f"v_dot2_f32_bf16 v{a}, v{vWB+9}, v{r0}, 0")
                k(f"v_dot2_f32_bf16 v{c}, v{vWB+9}, v{r1}, 0")
            else:
                k(f"v_dot2_f32_bf16 v{b}, v{r0}, v{r0}, v{b}")
                k(f"v_dot2_f32_bf16 v{d}, v{r1}, v{r1}, v{d}")
                k(f"v_dot2_f32_bf16 v{a}, v{vWB+9}, v{r0}, v{a}")
                k(f"v_dot2_f32_bf16 v{c}, v{vWB+9}, v{r1}, v{c}")
        k.get(vWB + 8, cSTO)
        k(f"""
        s_add_u32 s{sT3}, s{sSTo}, {stoff}
        v_add_f32 v{b}, v{b}, v{d}
        v_add_f32 v{a}, v{a}, v{c}
        s_nop 1
        v_permlane16_swap_b32 v{a}, v{b}
        v_add_f32 v{a}, v{a}, v{b}
        v_mov_b32 v{b}, v{a}
        s_nop 1
        v_permlane32_swap_b32 v{a}, v{b}
        v_add_f32 v{c}, v{a}, v{b}
        s_add_u32 s{sS8}, s{sS8}, 1
        s_and_b32 s{sS8}, s{sS8}, 0xff
        v_and_b32 v{c}, 0xffffff00, v{c}
        v_or_b32 v{c}, s{sS8}, v{c}
        s_mov_b32 exec_hi, 0
        """)
        k.stores([f"buffer_store_dword v{c}, v{vWB+8}, {srd(S_WS)}, s{sT3} offen"], False, "sts" if o.get("sto", 1) else "st")
        k("s_mov_b64 exec, -1")
        k.poll_prep(15)

    def unpack_res(dst):
        for f in range(4):
            for p in range(2):
                r = vRES + 2*f + p
                k(f"v_lshlrev_b32 v{dst+4*f+2*p}, 16, v{r}")
                k(f"v_and_b32 v{dst+4*f+2*p+1}, 0xffff0000, v{r}")

    def misc_l1():
        k(f"""
        s_add_u32 s{sT2}, s{sTAG}, s{sXCC}
        s_add_u32 s{sT2}, s{sT2}, 2
        v_mov_b32 v{vT1}, s{sT2}
        s_lshl4_add_u32 s{sT2}, s{sG}, s{sC}
        s_lshl_b32 s{sT2}, s{sT2}, 7
        s_add_u32 s{sT2}, s{sT2}, {WS_XID}
        """)
        with k.atomic():
            k(f"s_cmp_lg_u32 s{sW}, 0")
            k(f"s_cselect_b32 s{sT2}, {OOB}, s{sT2}")
            k("s_mov_b64 exec, 1")
            k.vmem(f"buffer_store_dword v{vT1}, v{vL16}, {srd(S_WS)}, s{sT2} offen sc1", "xid")
            k("s_mov_b64 exec, -1")

    def res_load():
        k.get(vT0, cOUT)
        for s_ in range(2):
            k.vmem(f"buffer_load_dwordx4 {vr(vRES+4*s_,4)}, v{vT0}, {srd(S_X)}, 0 offen offset:{64*s_}", "res")

    def touch(kind, vSP=vSP):
        with k.atomic():
            k(f"s_lshl2_add_u32 s{sD3}, s{sC}, s{sW}")
            sD2 = sD3
            if kind == "h":
                k(f"s_mul_i32 s{sD2}, s{sD2}, 7168")
                k(f"s_add_u32 s{sD2}, s{sD2}, s{sGB}")
                k(f"s_add_u32 s{sD2}, s{sD2}, {G_H}")
                k(f"v_lshlrev_b32 v{vSP}, 7, v{vLANE}")
                k("s_mov_b32 exec_hi, 0xffffff")
                k.vmem(f"buffer_load_dword a{aDUM}, v{vSP}, {srd(S_WS)}, s{sD2} offen sc1", "touch")
                k("s_mov_b32 exec_hi, -1")
            else:
                k(f"v_lshlrev_b32 v{vSP}, 7, v{vLANE}")
                k(f"s_lshl_b32 s{sT5}, s{sD2}, 11")
                k(f"s_add_u32 s{sT5}, s{sT5}, s{sGB}")
                k(f"s_add_u32 s{sT5}, s{sT5}, {G_X1}")
                k("s_mov_b64 exec, 0xffff")
                k.vmem(f"buffer_load_dword a{aDUM}, v{vSP}, {srd(S_WS)}, s{sT5} offen sc1", "touch")
                k(f"s_lshl_b32 s{sD2}, s{sD2}, 7")
                k(f"s_add_u32 s{sD2}, s{sD2}, s{sGB}")
                k("s_mov_b64 exec, 1")
                k(f"s_add_u32 s{sD2}, s{sD2}, {G_ST1}")
                k.vmem(f"buffer_load_dword a{aDUM}, v{vSP}, {srd(S_WS)}, s{sD2} offen sc1", "touch")
                k("s_mov_b64 exec, -1")

    def touch_early(mode):
        with k.atomic():
            k(f"s_lshl2_add_u32 s{sJ0}, s{sC}, s{sW}")
            vT3 = vACT + 126
            k(f"v_lshlrev_b32 v{vT3}, 7, v{vLANE}")
            if mode & 1:
                k(f"s_lshl_b32 s{sT5}, s{sJ0}, 11")
                k(f"s_add_u32 s{sT5}, s{sT5}, s{sGB}")
                k(f"s_add_u32 s{sT5}, s{sT5}, {G_X1}")
                k("s_mov_b64 exec, 0xffff")
                k.vmem(f"buffer_load_dword a{aDUM}, v{vT3}, {srd(S_WS)}, s{sT5} offen sc1", "touch")
            if mode & 6:
                n, first = {2: (16, 0), 4: (8, 16), 6: (24, 0)}[mode & 6]
                k(f"s_lshr_b32 s{sT5}, s{sJ0}, 3")
                k(f"s_mul_i32 s{sT5}, s{sT5}, 57344")
                k(f"s_and_b32 s{sJ0}, s{sJ0}, 7")
                k(f"s_mul_i32 s{sJ0}, s{sJ0}, {n*128}")
                k(f"s_add_u32 s{sT5}, s{sT5}, s{sJ0}")
                k(f"s_add_u32 s{sT5}, s{sT5}, s{sGB}")
                k(f"s_add_u32 s{sT5}, s{sT5}, {G_H + first*1024}")
                k(f"s_mov_b64 exec, {(1 << n) - 1}")
                k.vmem(f"buffer_load_dword a{aDUM}, v{vT3}, {srd(S_WS)}, s{sT5} offen sc1", "touch")
            k("s_mov_b64 exec, -1")

    def packN_issue():
        with k.atomic():
            quad_lane(1024)
            k(f"""
            s_movk_i32 s{sD2}, 8192
            s_lshl_b32 s{sD0}, s{sG}, 15
            s_lshl_b32 s{sD1}, s{sCT}, 7
            s_add_u32 s{sD0}, s{sD0}, s{sD1}
            s_lshl_b32 s{sPDA}, s{sG}, 12
            s_add_u32 s{sPDA}, s{sPDA}, s{sPKB}
            s_add_u32 s{sPDA}, s{sPDA}, {PK_WO}
            s_lshl2_add_u32 s{sD1}, s{sDH}, s{sW}
            s_cmp_lg_u32 s{sD1}, 3
            s_cbranch_scc1 L_nskip
            """)
            for j in range(4):
                dma_raw(S_WO, j * 1024, j == 0)
            k("L_nskip:")

    def packN_finish(T):
        k(f"s_lshl2_add_u32 s{sD1}, s{sDH}, s{sW}")
        k(f"s_cmp_lg_u32 s{sD1}, 3")
        k("s_cbranch_scc1 L_nfskip")
        for f in range(4):
            k(f"v_add_u32 v{T+16+f}, {L_XST + 3*16384}, v{vQ0+f}")
        for f in range(4):
            for hh in range(2):
                k(f"ds_read_b64_tr_b16 {vr(T+4*f+2*hh,2)}, v{T+16+f} offset:{hh*2048}")
        k("s_waitcnt lgkmcnt(0)")
        for f in range(4):
            k(f"buffer_store_dwordx4 {vr(T+4*f,4)}, v{vL16}, {srd(S_WS)}, s{sPDA} offen offset:{f*1024} sc1")
        k("L_nfskip:")

    def pack_finish(T, base, shift, quad_if_3, tag="pk", sPDA=sPDA):
        lb, le = k.label("L_qb"), k.label("L_qe")
        k(f"s_lshl_b32 s{sT5}, s{sW}, {shift}")
        k(f"s_add_u32 s{sT5}, s{sT5}, {base}")
        k.vm_wait(tag)
        k.ds_all()
        k(f"s_cmp_eq_u32 s{sW}, 3")
        k(f"s_cbranch_scc{0 if quad_if_3 else 1} {lb}")
        for f in range(4):
            k(f"v_add_u32 v{T+16+f}, s{sT5}, v{vQ0+f}")
        for f in range(4):
            for hh in range(2):
                k(f"ds_read_b64_tr_b16 {vr(T+4*f+2*hh,2)}, v{T+16+f} offset:{hh*2048}")
        k("s_waitcnt lgkmcnt(0)")
        for f in range(4):
            k(f"buffer_store_dwordx4 {vr(T+4*f,4)}, v{vL16}, {srd(S_WS)}, s{sPDA} offen offset:{f*1024} sc1")
        k(f"s_branch {le}")
        k(f"{lb}:")
        k(f"v_add_u32 v{T+16}, s{sT5}, v{vTR0}")
        k(f"v_add_u32 v{T+17}, s{sT5}, v{vTR1}")
        k(f"v_lshl_add_u32 v{T+18}, v{vLANE}, 3, s{sT5}")
        for f in range(2):
            for hh in range(2):
                k(f"ds_read_b64_tr_b16 {vr(T+4*f+2*hh,2)}, v{T+16+f} offset:{hh*1024}")
        nf = 2 if quad_if_3 else 3
        if nf == 3:
            for hh in range(2):
                k(f"ds_read_b64_tr_b16 {vr(T+8+2*hh,2)}, v{T+18} offset:{2048+hh*512}")
        k("s_waitcnt lgkmcnt(0)")
        for f in range(nf):
            k(f"buffer_store_dwordx4 {vr(T+4*f,4)}, v{vL16}, {srd(S_WS)}, s{sPDA} offen offset:{f*1024} sc1")
        if nf == 3:
            k(f"buffer_load_dword a{aDUM}, v{vL16}, {srd(S_W1)}, s{S_W1+2} offen")
            nf = 4
        k(f"{le}:")
        k.vm_note(nf, "pst")

    def pack_flag(off=0):
        k(f"""
        s_lshl_b32 s{sT5}, s2, 7
        s_add_u32 s{sT5}, s{sT5}, {WS_PD + off}
        s_cmp_lg_u32 s{sW}, 0
        s_cselect_b32 s{sT5}, {OOB}, s{sT5}
        v_mov_b32 v{vT1}, s{sTAG}
        s_mov_b64 exec, 1
        """)
        k.vmem(f"buffer_store_dword v{vT1}, v{vL16}, {srd(S_WS)}, s{sT5} offen sc1")
        k("s_mov_b64 exec, -1")

    def pack_check_issue(off, va, vd, sb):
        with k.atomic():
            k(f"v_and_b32 v{va}, 1, v{vLANE}")
            k(f"v_lshlrev_b32 v{va}, 7, v{va}")
            k(f"v_lshrrev_b32 v{vd}, 1, v{vLANE}")
            k(f"v_and_b32 v{vd}, 7, v{vd}")
            k(f"s_lshl_b32 s{sT5}, s{sCT if off else sC}, 3")
            k(f"v_add3_u32 v{va}, v{va}, v{vd}, s{sT5}")
            if WP:
                k("s_mov_b32 exec_lo, 0")
                k(f"v_and_b32 v{va}, 0xbf, v{va}")
                k("s_mov_b32 exec_lo, -1")
            k(f"v_min_u32 v{vd}, 29, v{vLANE}")
            k(f"s_mul_i32 s{sT5}, s{sW}, 56")
            k(f"s_lshr_b32 s{sb}, s{sCT}, 1")
            k(f"s_add_u32 s{sT5}, s{sT5}, s{sb}")
            k(f"s_sub_u32 s{sT5}, s{sT5}, 64")
            k(f"v_lshl_add_u32 v{vd}, v{vd}, 2, s{sT5}")
            k("s_mov_b32 vcc_lo, 0xffff")
            k("s_mov_b32 vcc_hi, -1")
            k(f"s_mov_b32 s{sb}, {WS_PD + off}")
            k(f"v_cndmask_b32 v{va}, v{vd}, v{va}, vcc")
            k(f"v_lshlrev_b32 v{va}, 7, v{va}")
            k.vmem(f"buffer_load_dword v{vd}, v{va}, {srd(S_WS)}, s{sb} offen sc1", "pc")

    def pack_check(va, vd, sb):
        lp, ok = k.label("L_pc"), k.label("L_pcok")
        with k.atomic():
            k.vm_wait("pc")
            k(f"{lp}:")
            k(f"v_cmp_ne_u32 vcc, s{sTAG}, v{vd}")
            k(f"s_cbranch_vccz {ok}")
            k(f"buffer_load_dword v{vd}, v{va}, {srd(S_WS)}, s{sb} offen sc1")
            k("s_waitcnt vmcnt(0)")
            k(f"s_sub_u32 s{sBUD}, s{sBUD}, 1")
            k(f"s_cbranch_scc0 {lp}")
            k(f"s_mov_b32 s{sBUD}, 0")
            k(f"{ok}:")

    aPK = 128

    def park_addr(va, base, shift):
        k(f"v_bfe_u32 v{va}, v{vLANE}, 4, 1")
        k(f"v_lshlrev_b32 v{va}, 10, v{va}")
        k(f"v_lshrrev_b32 v{va+1}, 5, v{vLANE}")
        k(f"v_mul_u32_u24 v{va+1}, 0x120, v{va+1}")
        k(f"v_add_u32 v{va}, v{va}, v{va+1}")
        k(f"v_and_b32 v{va+1}, 0xd8, v{vTR0}")
        k(f"s_lshl_b32 s{sT5}, s{sW}, {shift}")
        k(f"s_add_u32 s{sT5}, s{sT5}, {base}")
        k(f"v_add3_u32 v{va}, v{va}, v{va+1}, s{sT5}")
        k(f"v_xor_b32 v{va+1}, 32, v{va}")

    def park_kv(va):
        for r in range(4):
            for blk in range(4):
                for hh in range(2):
                    k.lds(f"ds_read_b64_tr_b16 {ar(aPK + 16*r + 4*blk + 2*hh, 2)}, v{va + (blk & 1)} offset:{r*16384 + (blk >> 1)*2048 + hh*512}")

    def park_q(va):
        for r in range(4):
            for b in range(2):
                for hh in range(2):
                    k.lds(f"ds_read_b64_tr_b16 {ar(aPK + 64 + 8*r + 4*b + 2*hh, 2)}, v{va + b} offset:{r*8192 + hh*512}")

    def unpark(va):
        with k.atomic():
            k(f"s_lshr_b32 s{sD0}, s{sC}, 1")
            k(f"s_xor_b32 s{sD0}, s{sD0}, s{sG}")
            k(f"s_and_b32 s{sD0}, s{sD0}, 1")
            k(f"s_and_b32 s{sD1}, s{sC}, 1")
            k(f"s_lshl1_add_u32 s{sD0}, s{sD0}, s{sD1}")
        for kind in range(2):
            for r in range(4):
                for b in range(2 if kind else 4):
                    with k.atomic():
                        if b == 0:
                            k(f"s_add_u32 s{sD1}, s{sD0}, {r}")
                            k(f"s_and_b32 s{sD1}, s{sD1}, 3")
                            k(f"s_lshl2_add_u32 s{sD1}, s{sD1}, s{sW}")
                            k(f"s_lshl_b32 s{sD1}, s{sD1}, {11 if kind else 12}")
                            if kind:
                                k(f"s_add_u32 s{sD1}, s{sD1}, {R1}")
                            k(f"v_add_u32 v{va}, s{sD1}, v{vL16}")
                        j = 16 + 2 * r + b if kind else 4 * r + b
                        k.lds(f"ds_write_b128 v{va}, {ar(aPK + 4*j, 4)} offset:{b*1024}", ("up", j // 4))

    def wq_raw():
        k(f"s_lshl_b32 s{sL1}, s{sW}, 11")
        with k.atomic():
            k(f"v_and_b32 v{vT2}, 3, v{vP}")
            k(f"v_lshrrev_b32 v{vDM}, 4, v{vLANE}")
            k(f"v_lshl_add_u32 v{vT2}, v{vDM}, 3, v{vT2}")
            k(f"s_movk_i32 s{sD3}, 3072")
            k(f"v_mad_u32_u24 v{vDM}, v{vT2}, s{sD3}, v{vCH}")
        for r in range(4):
            for hh in range(2):
                k.dma(S_WQKV, vDM, sRB + r, hh * 4 * 3072, sL1, R1 + r * 8192 + hh * 1024, "wq")

    def async_check(tag, soff, imm):
        ok = k.label("L_aok")
        with k.atomic():
            k.vm_wait(tag)
            k(f"v_cmp_ne_u32 vcc, s{sTAG}, v{vT0}")
            k(f"s_cbranch_vccz {ok}")
            k.save_vm()
            k.poll(soff, imm, False)
            k.restore_vm()
            k(f"{ok}:")

    CSK = vT0
    gA = None
    for layer in range(1 if o.get("one") else 2):
        L1 = layer == 0
        sc = o.get("sc1", 0x05)
        psc = lambda i: bool(sc >> (4 * layer + i) & 1)
        PRE = o.get("pre", 8)

        def w2t_loads():
            for j in range(56):
                with k.atomic():
                    if j == 0:
                        k(f"s_lshl2_add_u32 s{sPDB}, s{sCT}, s{sW}")
                        k(f"s_mul_i32 s{sPDB}, s{sPDB}, 57344")
                        k(f"s_add_u32 s{sPDB}, s{sPDB}, {WS_W2T}")
                    if j % 4 == 0:
                        k(f"s_add_u32 s{sJ0}, s{sPDB}, {j*1024}")
                    k.vmem(f"buffer_load_dwordx4 {ar(4*j,4)}, v{vL16}, {srd(S_WS)}, s{sJ0} offen offset:{(j%4)*1024} sc1", ("w2t", j // 4))

        w2 = k.rec(w2t_loads) if L1 else []

        def takew2(name, dflt):
            nonlocal w2
            n = min(o.get(name, dflt), len(w2) - 24) if L1 else 0
            r, w2 = w2[:n], w2[n:]
            return r

        def kv_consts():
            k.get(vPQ, cCSA)
            k.lds(f"ds_read2_b32 {vr(CSK,2)}, v{vPQ} offset0:0 offset1:16", "cs")
            k.lds(f"ds_read2_b32 {vr(CSK+2,2)}, v{vPQ} offset0:32 offset1:48", "cs")
        if L1:
            CSA = vACC + 32
            k(f"s_and_b32 s{sT0}, s{sW}, 1")
            k(f"s_lshl_b32 s{sT0}, s{sT0}, 5")
            k(f"v_xor_b32 v{vPQ+3}, s{sT0}, v{vTR0}")
            k(f"s_lshr_b32 s{sT0}, s{sW}, 1")
            k(f"s_lshl_b32 s{sT0}, s{sT0}, 11")
            k(f"v_add_u32 v{vPQ+2}, s{sT0}, v{vPQ+3}")
            k(f"s_lshl_b32 s{sT1}, s{sW}, 5")
            k(f"v_xor_b32 v{vPQ+6}, s{sT1}, v{vQ0}")

            def wo_pack():
                T_ = vACT + 96
                for hh in range(2):
                    k.lds(f"ds_read_b64_tr_b16 {vr(T_+2*hh,2)}, v{vPQ+6} offset:{R0 + 49152 + hh*2048}", "wp")
                k.play([lambda: None] * 2)
                with k.atomic():
                    k.ds_wait("wp")
                    k.vmem(f"buffer_store_dwordx4 {vr(T_,4)}, v{vL16}, {srd(S_WS)}, s{sPDA} offen sc1", "pst")
            if o.get("diags"): k.stamp("setup")
            PADP = o.get("padp", 0)
            if PADP == 1:
                k("PADCALL")
            own_stats()
            if o.get("diags"): k.stamp("own")
            nx0 = o.get("nx0", 0)
            xslot(0, range(nx0))
            if o.get("pads", 2048) and PADP == 0:
                k("PADCALL")
            if o.get("diags"): k.stamp("pad")
            if o.get("pf1", 0):
                pack_finish(vACT + 64, R1, 12, False, "pu", sPDB)
            xslot(0, range(nx0, 8)); xslot(1, range(o.get("x1pre", 4)))
            if o.get("diags"): k.stamp("xiss")
            if UF == 1 and not o.get("pf1", 0):
                pack_finish(vACT + 64, R1, 12, False, "pu", sPDB)
            if o.get("diags"): k.stamp("pfin")
            xread(0)
            def rnd_begin(r):
                k.vm_wait(("wkv", r))
                k.barrier(True)
                fr = []
                for ks in range(4 * r, 4 * r + 4):
                    fr.append(dict(addr=vPQ + 2, offs=(R0 + ks * 4096, R0 + ks * 4096 + 1024), mf=[(None, None, False, ks == 0, None)]))
                for ks in range(4 * r, 4 * r + 4):
                    for pr in range(2):
                        for b in range(2):
                            base = R0 + ks * 4096 + pr * 2048
                            fr.append(dict(addr=(vTR0, vTR1)[b], offs=(base, base + 1024), mf=mf2(vACC + 16 * pr + 8 * b, ks, False, False)))
                return k.gemm_begin(fr)
            wq = k.rec(wq_raw)
            xslot(1, range(o.get("x1pre", 4), 8))
            g = rnd_begin(0)
            k.stamp("x0")
            f = {}
            if WP:
                w1_ = k.rec(lambda: wkv_raw(1))
                spread(f, w1_[:2], 0, 2); spread(f, k.rec(wo_pack), 0, 1); spread(f, w1_[2:] + k.rec(lambda: xslot(2)), 6, 3)
            else:
                spread(f, k.rec(lambda: (wkv_raw(1), xslot(2))), 0, 3)
            spread(f, k.rec(lambda: xread(1)), 30, 1, 2); k.gemm_run(g, f)
            k.stamp("r0")
            g = rnd_begin(1)
            f = {}
            if UF == 1:
                spread(f, k.rec(pack_flag), 1, 0)
            spread(f, k.rec(lambda: (wkv_raw(2), xslot(3))), 0, 3); spread(f, k.rec(lambda: xread(2)), 31, 1, 2); k.gemm_run(g, f)
            k.stamp("r1")
            g = rnd_begin(2)
            nq = o.get("nq", 6)
            if UF == 2:
                pu_ = k.rec(lambda: packU_issue(L_XST + 4096, sD0, sD1, sD2, sD3, sJ0, vDM, sPDB, 14))
                wq = pu_ + wq if o.get("pufirst", 1) else wq + pu_
            f = {}; spread(f, k.rec(lambda: (wkv_raw(3), st0_issue())) + wq[:nq], 0, 3); spread(f, k.rec(lambda: xread(3)), 31, 1, 2); k.gemm_run(g, f)
            k.stamp("r2")
            g = rnd_begin(3)
            f = {}
            spread(f, k.rec(st0_use), 0, 1)
            spread(f, k.rec(lambda: cs_put(0, sW)), 8, 0)
            spread(f, k.rec(stats_b), 10, 1)
            spread(f, k.rec(stats_scale), 24, 1)
            spread(f, k.rec(lambda: park_addr(vRES + 2, R0, 12)), 15, 0)
            pn = k.rec(lambda: (packN_issue(), k.vmem(f"buffer_load_dword a{aDUM}, v{vL16}, {srd(S_W1)}, s{S_W1+2} offen", "pn")))
            pci = k.rec(lambda: pack_check_issue(0, vRES, vRES + 1, sPDB)) if UF == 1 else []
            if o.get("w2e", 8):
                spread(f, wq[nq:] + pci, 1, o.get("r3s", 5))
            else:
                spread(f, wq[nq:] + pn + pci, 1, o.get("r3s", 5))
            bg = []
            k.gemm_run(g, f)
            k.stamp("A.kv")
            k.barrier()
            kv_consts()
        else:
            k.poll_b(sFXp, G_FX2)
            k.stamp("A.poll")
            al = k.rec(lambda: act_loads(G_X2, ring))
            PA = o.get("prea", 4)
            k.play(al[:PA])
            k(f"s_add_u32 s{sTAG}, s{sTAG}, 1")
            fill = {}
            sl = k.rec(lambda: stat_loads(G_ST2))
            e = spread(fill, al[PA:12] + [lambda: k.play(sl[:2]), sl[2]], 0, 4)
            for i_ in range(12, 32):
                pos = max(12 * (i_ // 2 - 6) + 11 + 6 * (i_ & 1), e)
                spread(fill, [al[i_]], pos, 1)
                e = pos + 3
            e2 = spread(fill, k.rec(lambda: (stat_sum(), stats_finalize(True), stats_b())), 64, 1.5)
            e2 = spread(fill, k.rec(stats_scale), e2 + 6, 1.5)
            spread(fill, k.rec(kv_consts), e2, 1.5)
            spread(fill, k.rec(lambda: lin_dma(PK_WO + 32768, R2, 8, "wo", True)), e, o.get("wos", 6))
            if o.get("diagc"):
                for ix in (0, 23, 47, 95, 143):
                    spread(fill, k.rec(lambda: k.stamp(f"A.m{ix}", True)), ix, 0)
            QL = o.get("qlag", 0)
            if QL:
                pe = k.rec(lambda: (k.ds_wait("cs"), [phi_block(vACC + 4*rb, NM_B + 4*rb, CSK, RL_B + 4*rb, RS_B + 4*rb, vPQ + 2*rb, vACT + 40, "b") for rb in range(2)]))
                spread(fill, pe, 192 - 4 * QL, 4 * QL / len(pe))
            k.gemm_run(gA, fill)
            k.stamp("A.kv")
            k("s_barrier")
            bg = []
        k("s_nop 2")
        k.get(vWB + 22, cKW1 if L1 else cKW)
        k.get(vWB + 23, cKR1 if L1 else cKR)
        k.ds_all()
        PK, PV, TMP = vPQ, vACC, vWB + 24
        KVA = vACC + 16

        def kv_epi():
            for h in range(1 if (not L1 and o.get("qlag", 0)) else 0, 2):
                for rb in range(2):
                    phi_block(vACC + 8*h + 4*rb, NM_B + 4*rb, CSK + h, RL_B + 4*rb, RS_B + 4*rb, PK + 4*h + 2*rb, TMP, "b")
            for h in range(2):
                for rb in range(2):
                    a = vACC + 16 + 8*h + 4*rb
                    c2, m = bcast(CSK + 2 + h, 1, 3)
                    for p in range(2):
                        k(f"v_pk_fma_f32 {vr(a+2*p,2)}, {vr(NM_B+4*rb+2*p,2)}, {c2}, {vr(a+2*p,2)}{m}")
                    for p in range(2):
                        k(f"v_pk_mul_f32 {vr(a+2*p,2)}, {vr(a+2*p,2)}, {vr(RS_B+4*rb+2*p,2)}")
                    for p in range(2):
                        k(f"v_cvt_pk_bf16_f32 v{PV+4*h+2*rb+p}, v{a+2*p}, v{a+2*p+1}")
                    if rb == 0:
                        k(f"v_mfma_f32_16x16x32_bf16 {vr(vACC+8+4*h,4)}, {vr(PK+4*h,4)}, {ar(aONES,4)}, 0")
                if h == 0:
                    pass
        if L1:
            we = takew2("w2e", 8)
            ke = mix(k.rec(kv_epi), k.rec(lambda: park_kv(vRES + 2)), 3)
            if we:
                c0 = o.get("w2c", 40)
                k.play(ke[:c0])
                pack_check(vRES, vRES + 1, sPDB)
                ke = mix(ke[c0:], we, (135 - c0) // len(we))
            k.play(ke)
        else:
            wod = k.rec(lambda: lin_dma(PK_WO, R1, 8, "wo", True))
            nwo = o.get("nwo", 0)
            k.play(mix(k.rec(kv_epi), wod[:nwo], 100 // max(nwo, 1))); wod = wod[nwo:]
        KRO = [0, 16384, 32768, 49152 if L1 else 36864]
        k.lds(f"ds_write_b128 v{vWB+22}, {vr(vACC+8,4)} offset:{KRO[2]}")
        for h in range(2):
            k(f"v_mfma_f32_16x16x32_bf16 {vr(KVA+4*h,4)}, {vr(PK+4*h,4)}, {vr(PV+4*h,4)}, 0")
        k.lds(f"ds_write_b128 v{vWB+22}, {vr(vACC+12,4)} offset:{KRO[3]}")
        k.get(vWB + 21, cKVS)
        k("s_nop 4")
        for h in range(2):
            k.lds(f"ds_write_b128 v{vWB+22}, {vr(KVA+4*h,4)} offset:{KRO[h]}")
        if L1 and UF == 1:
            k.vm_wait("wq")
        k.barrier()
        for s in range(4):
            k.lds(f"ds_read_b128 {vr(vWB+4*s,4)}, v{vWB+23} offset:{s*1024}", ("kr", s))
        KO = vACC + 32
        k.ds_wait(("kr", 1))
        for p in range(2):
            k(f"v_pk_add_f32 {vr(vWB+2*p,2)}, {vr(vWB+2*p,2)}, {vr(vWB+4+2*p,2)}")
        k.ds_wait(("kr", 3))
        for p in range(2):
            k(f"v_pk_add_f32 {vr(vWB+8+2*p,2)}, {vr(vWB+8+2*p,2)}, {vr(vWB+12+2*p,2)}")
        for p in range(2):
            k(f"v_pk_add_f32 {vr(KO+2*p,2)}, {vr(vWB+2*p,2)}, {vr(vWB+8+2*p,2)}")
        k(f"v_and_b32 v{KO}, 0xffffff00, v{KO}")
        k(f"v_or_b32 v{KO}, s{sT8}, v{KO}")
        k(f"s_mov_b64 exec, s[{sKM}:{sKM+1}]")
        k.vmem(f"buffer_store_dwordx4 {vr(KO,4)}, v{vWB+21}, {srd(S_WS)}, s{sKVP} offen sc1", "kvst")
        k("s_mov_b64 exec, -1")
        k.stamp("A.kvpub")
        fill = {}
        fr = []
        CSQ = vACC + 24

        def q_consts():
            k.get(vT0, cCSB)
            for h in range(2):
                k.lds(f"ds_read_b128 {vr(CSQ+4*h,4)}, v{vT0} offset:{(4+h)*64}")
        if L1:
            if UF == 1:
                if not o.get("w2e", 8):
                    pack_check(vRES, vRES + 1, sPDB)
            else:
                pack_finish(vWB, L_XST + 4096, 14, False, "pu", sPDB)
                k.vm_wait("pn")
                k("s_barrier")
            if not o.get("w2e", 8):
                packN_finish(vWB)
            park_addr(vPQ + 4, R1, 11)
            if o.get("diag"): k.stamp("q.pf")
            k(f"v_add_u32 v{vPQ}, {R1}, v{vTR0}")
            k(f"v_add_u32 v{vPQ+1}, {R1}, v{vTR1}")
            k(f"s_and_b32 s{sT0}, s{sW}, 1")
            k(f"s_lshl_b32 s{sT1}, s{sT0}, 5")
            k(f"v_xor_b32 v{vPQ+2}, s{sT1}, v{vPQ}")
            for j in range(16):
                fr.append(dict(addr=vPQ + 2, offs=(j * 2048, j * 2048 + 1024), mf=[(None, None, False, j == 0, None)]))
            for ks in range(16):
                for b in range(2):
                    fr.append(dict(addr=vPQ + b, offs=(ks * 2048, ks * 2048 + 1024), mf=mf2(vACC + 8 * b, ks, True, False)))
            wor = k.rec(lambda: lin_dma(PK_WO, R0, 16, "wo", True)) if WP else k.rec(wo_raw)
            e = spread(fill, bg + k.rec(res_load), 0, 1)
            if o.get("arm", 3):
                e = spread(fill, k.rec(lambda: arm(o.get("arm", 3))), e, 2)
            if o.get("tq", 0) & 1:
                e = spread(fill, k.rec(lambda: touch("x")), e, 1)
            if o.get("tq", 0) & 4:
                e = spread(fill, k.rec(lambda: touch("h")), e, 1)
            e = spread(fill, wor, e, o.get("wors", 2))
            spread(fill, takew2("w2q", 8), e, 4)
            spread(fill, k.rec(lambda: park_q(vPQ + 4)), 20, 3)
            k.gemm(fr, fill)
            if o.get("diag"): k.stamp("q.mm")
            cs_put(4, sT0)
            if UF == 2:
                k.vm_wait("pst")
            k.barrier()
            if o.get("diag"): k.stamp("q.bar")
            q_consts()
            if UF == 2:
                pack_flag()
        else:
            q_consts()
        lp2, done2 = k.label("L_kp"), k.label("L_kd")
        SM = vWB + 8
        ZL = vACT + 32

        def kv_loads(track):
            ins = [(f"buffer_load_dwordx4 {vr(ZL,4)}, v{vT2}, {srd(S_WS)}, s{sKVC} offen sc1", "zl")]
            for j in range(8):
                ins.append((f"buffer_load_dwordx4 {vr(vACT+4*j,4)}, v{vL16}, {srd(S_WS)}, s{sKVC if j < 4 else sT2} offen offset:{(j%4)*1024} sc1", ("kv", j)))
            for i_, t_ in ins:
                if track:
                    k.vmem(i_, t_)
                else:
                    k(i_)
        if L1:
            w1a = k.rec(lambda: (lin_dma(PK_W1A, R1, 16, "w1a"), lin_dma(PK_W1B, R3, 6, "w1c2")))
        else:
            w1a = []
        k.get(vT2, cZL)
        k(f"s_add_u32 s{sT2}, s{sKVC}, 4096")
        kl = k.rec(lambda: kv_loads(True))
        QS = vACC if L1 else QA
        ph = k.rec(lambda: [phi_block(QS + 8*h + 4*rb, NM_A + rb, CSQ + 4*h, RL_A + rb, RS_A + rb, vPQ + 4*h + 2*rb, vWB, "a")
                            for h in range(2) for rb in range(2)])
        if L1:
            k.play(kl[:5])
            k.ds_all()
            if o.get("diag"): k.stamp("q.kl5")
            na = o.get("w1a0", 4) if UF == 1 else 0
            k.play(mix(ph, kl[5:] + w1a[:na], o.get("phr", 10)))
            w1a = w1a[na:]
        else:
            def unpark_w1():
                for j in range(16):
                    k.lds(f"ds_write_b128 v{vT3}, {vr(vPARK+4*j,4)} offset:{j*1024}")
            k(f"s_lshl_b32 s{sT5}, s{sW}, 14")
            k(f"v_add_u32 v{vT3}, s{sT5}, v{vL16}")
            k.play(wod[:4]); wod = wod[4:]
            k.ds_all()
            uw = k.rec(unpark_w1)
            nu = o.get("nu", 16)
            k.play(mix(mix(ph, uw[:nu], 5), wod, 10))
            k.play(mix(kl, uw[nu:], 1))
        k.stamp("A.q")
        if L1:
            k("PADCALL1")
        k.get(vT1, cXW)
        k.get(vWB + 18, cZW)
        k.get(vWB + 16, cXR)
        k.get(vWB + 17, cZR)
        k(f"s_branch {lp2}_s")
        k(f"{lp2}:")
        kv_loads(False)
        k("s_waitcnt vmcnt(0)")
        k(f"{lp2}_s:")
        k.vm_wait("zl")
        k(f"""
        v_mov_b32 v{SM+4}, v{ZL}
        v_mov_b32 v{SM+5}, v{ZL}
        v_permlane32_swap_b32 v{ZL}, v{ZL+1}
        v_permlane32_swap_b32 v{ZL+2}, v{ZL+3}
        v_add_f32 v{ZL}, v{ZL}, v{ZL+1}
        v_add_f32 v{ZL+2}, v{ZL+2}, v{ZL+3}
        s_nop 1
        v_permlane16_swap_b32 v{ZL}, v{ZL+2}
        v_add_f32 v{ZL}, v{ZL}, v{ZL+2}
        s_nop 1
        v_add_f32_dpp v{ZL}, v{ZL}, v{ZL} row_ror:4 row_mask:0xf bank_mask:0xf
        s_nop 1
        v_add_f32_dpp v{ZL}, v{ZL}, v{ZL} row_ror:8 row_mask:0xf bank_mask:0xf
        v_cvt_pk_bf16_f32 v{ZL}, v{ZL}, v{ZL}
        ds_write_b16 v{vWB+18}, v{ZL}
        """)
        for j in range(0, 8, 2):
            a, b = vACT + 4*j, vACT + 4*j + 4
            k.vm_wait(("kv", j + 1))
            k(f"v_and_b32 v{SM+4}, v{SM+4}, v{a}")
            k(f"v_and_b32 v{SM+4}, v{SM+4}, v{b}")
            k(f"v_or3_b32 v{SM+5}, v{SM+5}, v{a}, v{b}")
            if j == 0:
                for p in range(2):
                    k(f"v_pk_add_f32 {vr(SM+2*p,2)}, {vr(a+2*p,2)}, {vr(b+2*p,2)}")
            else:
                for p in range(2):
                    k(f"v_pk_add_f32 {vr(a+2*p,2)}, {vr(a+2*p,2)}, {vr(b+2*p,2)}")
                for p in range(2):
                    k(f"v_pk_add_f32 {vr(SM+2*p,2)}, {vr(SM+2*p,2)}, {vr(a+2*p,2)}")
        k(f"""
        ds_write_b128 v{vT1}, {vr(SM,4)}
        v_xor_b32 v{SM+4}, s{sT8}, v{SM+4}
        v_xor_b32 v{SM+5}, s{sT8}, v{SM+5}
        v_or_b32 v{SM+4}, v{SM+4}, v{SM+5}
        v_and_b32 v{SM+4}, 0xff, v{SM+4}
        v_cmp_ne_u32 vcc, 0, v{SM+4}
        s_cbranch_vccz {done2}
        s_waitcnt lgkmcnt(0)
        s_sub_u32 s{sBUD}, s{sBUD}, 4
        s_cbranch_scc0 {lp2}
        s_mov_b32 s{sBUD}, 0
        {done2}:
        """)
        k.stamp("A.kvget")
        n1 = o.get("w1a1", 4) if L1 and UF == 1 else 0
        if L1 and UF == 2:
            pack_check_issue(0, vTR0, vTR1, sPDB)
        k.play(w1a[:n1]); w1a = w1a[n1:]
        k.barrier(True)
        for h in range(2):
            k.lds(f"ds_read_b64 {vr(vWB+4*h+2,2)}, v{vWB+17} offset:{h*32}", "zf")
        for j in range(4):
            k.lds(f"ds_read_b128 {vr(vACT+4*j,4)}, v{vWB+16} offset:{1024*j}")
        k.ds_wait("zf")
        OA = vACC + 16
        for rb in range(2):
            for h in range(2):
                d = OA + 16*rb + 8*h
                k(f"v_mfma_f32_16x16x16_bf16 {vr(d+4,4)}, {vr(vWB+4*h+2,2)}, {vr(vPQ+4*h+2*rb,2)}, 0")
        k.ds_all()
        for h in range(2):
            for p in range(2):
                k(f"v_pk_add_f32 {vr(vACT+8*h+2*p,2)}, {vr(vACT+8*h+2*p,2)}, {vr(vACT+8*h+4+2*p,2)}")
        for h in range(2):
            for p in range(2):
                k(f"v_cvt_pk_bf16_f32 v{vWB+4*h+p}, v{vACT+8*h+2*p}, v{vACT+8*h+2*p+1}")
        for rb in range(2):
            for h in range(2):
                d = OA + 16*rb + 8*h
                k(f"v_add_f32 v{d+4}, s{sEPS}, v{d+4}")
        for rb in range(2):
            for h in range(2):
                d = OA + 16*rb + 8*h
                k(f"v_mfma_f32_16x16x16_bf16 {vr(d,4)}, {vr(vWB+4*h,2)}, {vr(vPQ+4*h+2*rb,2)}, 0")
        for rb in range(2):
            for h in range(2):
                d = OA + 16*rb + 8*h
                k(f"v_rcp_f32 v{d+4}, v{d+4}")
        k("s_nop 1")
        for rb in range(2):
            for h in range(2):
                d = OA + 16*rb + 8*h
                for p in range(2):
                    k(f"v_pk_mul_f32 {vr(d+2*p,2)}, {vr(d+2*p,2)}, {vr(d+4,2)} op_sel_hi:[1,0]")
                for p in range(2):
                    k(f"v_cvt_pk_bf16_f32 v{vPQ+4*rb+2*h+p}, v{d+2*p}, v{d+2*p+1}")
        k.stores([f"buffer_store_dwordx4 {vr(vPQ+4*rb,4)}, v{vL16}, {srd(S_WS)}, s{sOST+rb} offen" for rb in range(2)], psc(0))
        nb = o.get("w1a_pre1", 6) if L1 else o.get("w1a_pre", 0)
        if L1 and UF == 2:
            pack_check(vTR0, vTR1, sPDB)
        k.play(w1a[:nb])
        if L1:
            for s_ in range(2):
                for p in range(2):
                    k(f"v_permlane16_swap_b32 v{vRES+4*s_+p}, v{vRES+4*s_+2+p}")
        urs = k.rec(lambda: unpack_res(vACC))
        fr = []
        for ks in range(16):
            for f in range(4):
                mf = [(vACC + 4 * f, vACT + 4 * ks, True, False, ("act", ks))]
                if L1 and WP:
                    fr.append(dict(addr=vL16, offs=(R0 + ks * 4096 + f * 1024,), mf=mf))
                elif L1:
                    fr.append(dict(addr=vQ0 + f, offs=(R0 + ks * 4096, R0 + ks * 4096 + 2048), mf=mf))
                else:
                    fr.append(dict(addr=vTR0, offs=(ks * 4096 + f * 1024,), mf=mf))
        if L1:
            k("PADCALL2")
        k.poll_prep(15)
        k.flag(sFOo, G_FO)
        k.poll_a(sFOp, G_FO)
        g = k.gemm_begin(fr, 7)
        k.play(urs)
        k.stamp("A.opub")
        k.poll_b(sFOp, G_FO)
        k.stamp("B.poll")

        def b_loads():
            for ks in range(16):
                with k.atomic():
                    if ks % 4 == 0:
                        k(f"s_add_u32 s{sT2}, s{sBACT}, {G_O + ks*1024}")
                    k.vmem(f"buffer_load_dwordx4 {vr(vACT+4*ks,4)}, v{vL16}, {srd(S_WS)}, s{sT2} offen offset:{(ks%4)*1024} sc1", ("act", ks))
        bl = k.rec(b_loads)
        PB = o.get("preb", PRE)
        k.play(bl[:PB])
        fill = {}
        e = spread(fill, bl[PB:], 0, 3)
        e = spread(fill, w1a[nb:], e, o.get("w1st", 3))
        if o.get("txb", 1) >> layer & 1:
            e = spread(fill, k.rec(lambda: touch("x")), e, 1)
        if o.get("thb", 0) >> layer & 1:
            e = spread(fill, k.rec(lambda: touch("h")), e, 1)
        spread(fill, takew2("w2b", 0), e, 4)
        k.gemm_run(g, fill)
        k.stamp("B.mm")
        k(f"v_add_u32 v{vTR1}, {R1}, v{vL16}")
        k("s_nop 6")
        for f in range(4):
            for p in range(2):
                k(f"v_cvt_pk_bf16_f32 v{vRES+2*f+p}, v{vACC+4*f+2*p}, v{vACC+4*f+2*p+1}")
        publish_x(G_X1, G_ST1, G_FX1, psc(1))
        k.play(takew2("w2x", 0))
        k.flag(sFXo, G_FX1)
        if not L1:
            k.poll_a(sFXp, G_FX1)
        k.stamp("B.pub")
        if L1 and o.get("w2e", 8) and not WP:
            k(f"s_lshl2_add_u32 s{sD1}, s{sDH}, s{sW}")
            k(f"s_cmp_lg_u32 s{sD1}, 3")
            k("s_cbranch_scc1 L_nfskip")
            k(f"s_lshl_b32 s{sT5}, s{sG}, 12")
            for f in range(4):
                k(f"v_add_u32 v{vWB+16+f}, s{sT5}, v{vQ0+f}")
            for f in range(4):
                for hh in range(2):
                    k(f"ds_read_b64_tr_b16 {vr(vACC+4*f+2*hh,2)}, v{vWB+16+f} offset:{hh*2048}")
            k(f"s_add_u32 s{sT5}, s{sT5}, s{sPKB}")
            k(f"s_add_u32 s{sT5}, s{sT5}, {PK_WO}")
            k("s_waitcnt lgkmcnt(0)")
            for f in range(4):
                k(f"buffer_store_dwordx4 {vr(vACC+4*f,4)}, v{vL16}, {srd(S_WS)}, s{sT5} offen offset:{f*1024} sc1")
            k("L_nfskip:")
        k("s_barrier")
        w1c2 = k.rec(lambda: lin_dma(PK_W1B + 24576, R0 if L1 else R1, 6, "w1c2"))
        if L1 and not o.get("w2e", 8):
            pack_flag(0x8000)
        nc = o.get("w1c2_pre1", 0) if L1 else o.get("w1c2_pre", 0)
        k.play(w1c2[:nc])
        if L1:
            k(f"s_lshl_b32 s{sT2}, s{sW}, 10")
            k(f"v_add_u32 v{vPQ}, s{sT2}, v{vTR1}")
            fr = []
            for j in range(16):
                fr.append(dict(addr=vPQ, offs=(j * 4096,), mf=[(None, None, False, j == 0, None)]))
            k.gemm(fr, D=7)
            k("s_nop 5")
            cs_put(6, sW)
        C2 = vACC + 32
        vC1, vC2, vCc, vCd = (vTR1 if L1 else vL16), vDM, vP, vCH
        k(f"v_add_u32 v{vC2}, {R3}, v{vL16}")
        if L1:
            k(f"s_min_u32 s{sPDA}, s{sW}, 2")
            k(f"s_lshl_b32 s{sT2}, s{sPDA}, 10")
            k(f"v_add_u32 v{vCd}, s{sT2}, v{vL16}")
            k(f"v_add_u32 v{vCc}, {R3}, v{vCd}")
        NX = o.get("nx1", 0) if L1 else o.get("nx", 0)
        INIT2 = not L1 and NX == 0
        f2 = []
        for ks in range(16):
            if L1:
                f2.append(dict(addr=vCc if ks < 8 else vCd, offs=((ks % 8) * 3072,), mf=[(None, None, False, ks == 0, None)], late=ks >= 8))
            for b in range(3):
                f2.append(dict(addr=vC2 if ks < 8 else vL16 if L1 else vTR1, offs=((ks % 8) * 3072 + b * 1024,),
                               mf=mf2(C2 + 8 * b, ks, True, False, False if INIT2 else None), late=ks >= 8))
        fr = []
        XS0 = o.get("xs0", 2)
        for ks in range(16):
            if ks >= XS0:
                n_ = (NX * (ks - XS0 + 1)) // (16 - XS0) - (NX * (ks - XS0)) // (16 - XS0)
                fr += f2[:n_]; f2 = f2[n_:]
            for f in range(4):
                fr.append(dict(addr=vC1, offs=(ks * 4096 + f * 1024,), mf=mf2(vACC + 8 * f, ks, True, True)))
        M1 = sum(len(f["mf"]) for f in fr)
        fr += f2
        NM = sum(len(f["mf"]) for f in fr)
        tl = [i for i, f in enumerate(fr) if f.get("late")][0]
        MB = sum(len(f["mf"]) for f in fr[:tl - 6]) - 4
        if L1:
            k.poll_a(sFXp, G_FX1)
        g = k.gemm_begin(fr)
        k.poll_b(sFXp, G_FX1)
        k.stamp("C.poll")
        CS1 = [vPQ, vPQ + 4, vACC + 56, vQ0]

        def c2_init():
            k.get(vT0, cCSB)
            for b in range(3):
                k.lds(f"ds_read_b128 {vr(C2+8*b+4,4)}, v{vT0} offset:{(10+b)*64}", "cs2")
            for _ in range(4):
                k.play([lambda: None])
            k.ds_wait("cs2")
            for b in range(3):
                for rb in range(2):
                    for j in range(4):
                        k(f"v_mul_f32 v{C2+8*b+4*rb+j}, v{C2+8*b+4+j}, v{NM_A+rb}")

        def relu_block(acc, cs, rb, dst):
            if cs is not None:
                for j in range(4):
                    k(f"v_fmac_f32 v{acc+j}, v{cs+j}, v{NM_A+rb}")
            for p in range(2):
                k(f"v_cvt_pk_bf16_f32 v{dst+p}, v{acc+2*p}, v{acc+2*p+1}")
            for p in range(2):
                k(f"v_pk_max_i16 v{dst+p}, v{dst+p}, 0")

        def cs1_reads():
            k.get(vT2, cCSB)
            for b in range(4):
                k.lds(f"ds_read_b128 {vr(CS1[b],4)}, v{vT2} offset:{(6+b)*64}", "cs")

        def epi1():
            k.ds_wait("cs")
            for s in range(2):
                for rb in range(2):
                    for b in range(2):
                        relu_block(vACC + 16*s + 8*b + 4*rb, CS1[2*s+b], rb, vACC + 16*s + 4*rb + 2*b)
                k.stores([f"buffer_store_dwordx4 {vr(vACC+16*s+4*rb,4)}, v{vL16}, {srd(S_WS)}, s{sH1+rb} offen offset:{s*1024}"
                          for rb in range(2)], psc(2))

        def d_setup():
            if L1:
                with k.atomic():
                    k(f"s_lshl_b32 s{sT1}, s{sW}, 13")
                    k(f"s_add_u32 s{sT1}, s{sT1}, s{sGB}")
                with k.atomic():
                    k(f"s_lshl_b32 s{sDK}, s{sW}, 11")
                    k(f"s_add_u32 s{sDK}, s{sDK}, {28*1024}")
                k(f"s_add_u32 s{sT1}, s{sT1}, {G_H + 24*1024}")
                for j in range(4):
                    with k.atomic():
                        k(f"s_add_u32 s{sT0}, s{sW}, {j}")
                        k(f"s_and_b32 s{sT0}, s{sT0}, 3")
                    with k.atomic():
                        k(f"s_lshl2_add_u32 s{sT0}, s{sDH}, s{sT0}")
                        k(f"s_mul_i32 s{sT0}, s{sT0}, 57344")
                    k(f"s_add_u32 s{sRB+j}, s{sT0}, s{sT1}")
            k.poll_prep(7)
        TD = 3 if L1 else o.get("td", 4)
        seq = [(ksl, j) for ksl in range(14 - TD) for j in range(4)] + [(ksl, j) for j in (1, 2, 3, 0) for ksl in range(14 - TD, 14)]
        hb = [0, 0, 0, 0]

        def hload(t):
            ksl, j = seq[t]
            with k.atomic():
                if ksl // 4 != hb[j]:
                    if ksl == 8:
                        k(f"s_sub_u32 s{sRB+j}, s{sRB+j}, s{sDK}")
                    else:
                        k(f"s_add_u32 s{sRB+j}, s{sRB+j}, 4096")
                    hb[j] += 1
                k.vmem(f"buffer_load_dwordx4 {vr(vACT+4*(t%16),4)}, v{vL16}, {srd(S_WS)}, s{sRB+j} offen offset:{(ksl%4)*1024} sc1", ("h", t))
        PC = o.get("prec", PRE)
        al = k.rec(lambda: act_loads(G_X1))
        k.play(al[:PC])
        fill = {}
        sl = k.rec(lambda: stat_loads(G_ST1, vPQ))
        SP = o.get("stp", 0)
        e = spread(fill, al[PC:PC+SP] + [lambda: k.play(sl[:2]), sl[2]] + al[PC+SP:], 0, o.get("cstep", 40) / 10)
        e2 = spread(fill, k.rec(lambda: (stat_sum(vPQ), stats_finalize(False))), 44, 0.9 if INIT2 else 1.3)
        if INIT2:
            spread(fill, k.rec(c2_init), e2 + 1, 0.95)
        if L1:
            spread(fill, k.rec(lambda: k("s_barrier")), 104, 0)
            if o.get("w2e", 8) and not WP:
                spread(fill, k.rec(lambda: pack_flag(0x8000)), 102, 0)
        e = spread(fill, w1c2[nc:], e, 3)
        if o.get("th", 0) >> layer & 1:
            e = spread(fill, k.rec(lambda: touch("h", vT0)), e, 1)
        spread(fill, k.rec(cs1_reads), M1 - 9, 1)
        if o.get("diagc") and not L1:
            for ix in (0, 31, 63, 95, 127, 151, 175, 199):
                spread(fill, k.rec(lambda: k.stamp(f"C.m{ix}", True)), ix, 0)
        if o.get("diagd"):
            spread(fill, k.rec(lambda: k.stamp("C.mm1")), 127, 0)
        e1 = spread(fill, k.rec(epi1), M1 + 1, 1 / o.get("epr", 4))
        spread(fill, k.rec(lambda: (k.vm_wait("w1c2"), k("s_barrier"))), MB, 0)
        assert e < MB
        e3 = spread(fill, k.rec(d_setup), e1, 1)
        if not L1 and not INIT2:
            spread(fill, k.rec(lambda: [k.lds(f"ds_read_b128 {vr(CS1[b],4)}, v{vT2} offset:{(10+b)*64}") for b in range(3)]), e3 + 2, 2)
        pf = min(e1 + (o.get("fl11", 50) if L1 else o.get("fl1", 20)), NM - 2)
        spread(fill, k.rec(lambda: k.flag(sFHo, G_FH)), pf, 1)
        NE = o.get("ne1", 0) if L1 else o.get("ne", 6)
        pp = NM - 1 if NE == 0 else NM - 3 * NE - o.get("ppd", 18)
        assert pp > pf
        spread(fill, k.rec(lambda: k.vmem(f"buffer_load_dword v{vT0}, v{vT3}, {srd(S_WS)}, s{sFHp} offen offset:{G_FH} sc1", "p1")), pp, 1)
        if NE:
            spread(fill, k.rec(lambda: async_check("p1", sFHp, G_FH)), NM - 3 * NE - 1, 1)
            spread(fill, k.rec(lambda: [hload(t) for t in range(NE)]), NM - 3 * NE, 3)
        if L1:
            wc = takew2("nw2", 24)
            spread(fill, wc, e, (pp - 1 - e) / max(len(wc), 1))
        k.gemm_run(g, fill)
        k.stamp("C.mm2")
        HO = vWB + 16
        LA = o.get("dla1", 10) if L1 else o.get("dla", 10)
        if L1:
            k.get(vT1, cCSA)
            k(f"s_lshl_b32 s{sT5}, s{sPDA}, 6")
            k(f"v_add_u32 v{vT1}, s{sT5}, v{vT1}")
            k.lds(f"ds_write_b32 v{vT1}, a{aCS} offset:{10*64}")
            k.barrier()
            k.get(vT2, cCSB)
            for b in range(3):
                k.lds(f"ds_read_b128 {vr(vWB+4*b,4)}, v{vT2} offset:{(10+b)*64}")
            k.ds_all()
        else:
            k("s_nop 3")
            k.ds_all()
        epi2 = k.rec(lambda: [relu_block(C2 + 8*b + 4*rb, vWB + 4*b if L1 else None if INIT2 else CS1[b], rb, HO + 8*rb + 2*b) for b in range(3) for rb in range(2)])
        h2sc = psc(2) and not o.get("h2plain", 1)
        its = []
        for rb in range(2):
            its.append(f"buffer_store_dwordx4 {vr(HO+8*rb,4)}, v{vL16}, {srd(S_WS)}, s{sH2+rb} offen")
            its.append(f"buffer_store_dwordx2 {vr(HO+8*rb+4,2)}, v{vL16}, {srd(S_WS)}, s{sH3+rb} offen")
        tail = []
        up = []
        if L1:
            def park_w1():
                with k.atomic():
                    k(f"s_lshl_b32 s{sT5}, s{sW}, 14")
                    k(f"s_add_u32 s{sT5}, s{sT5}, {R1}")
                    k(f"v_add_u32 v{vCH}, s{sT5}, v{vL16}")
                for j in range(0, 16, 2):
                    with k.atomic():
                        for jj in (j, j + 1):
                            k.lds(f"ds_read_b128 {vr(vPARK+4*jj,4)}, v{vCH} offset:{jj*1024}", "pw")
            u_ = k.rec(lambda: unpark(vP))
            bar = k.rec(lambda: (k.ds_wait("pw"), k("s_barrier")))
            up = k.rec(park_w1) + u_[:17] + [lambda: k.play(bar)] + u_[17:]
        if NE:
            n2 = o.get("ne2", 2)
            k.play(mix(epi2, k.rec(lambda: [hload(t) for t in range(NE, NE + n2)]), 10))
            k.stores(its, h2sc)
            nxt = NE + n2
            FL2 = o.get("fl2", 5)
        else:
            k.play(epi2)
            k.stores(its, h2sc)
            async_check("p1", sFHp, G_FH)
            for t in range(LA):
                hload(t)
                if len(w2) > 24 and t % 2:
                    k.play(w2[:1]); w2 = w2[1:]
                k.play(up[:1]); up = up[1:]
            k.flag(sFHo, G_FH + 1024)
            nxt = LA
            FL2 = -1
        k.stamp("D.poll1")
        RSD = vPQ
        k.get(vPQ + 1, cRSD)
        k.lds(f"ds_read_b32 v{RSD}, v{vPQ+1}", "rsd")
        def red_addr():
            for j in range(4):
                if L1:
                    k.get(vPQ + 4 + j, cRD0 + j)
                else:
                    with k.atomic():
                        k(f"s_add_u32 s{sT0}, s{sW}, {j}")
                        k(f"s_and_b32 s{sT0}, s{sT0}, 3")
                    with k.atomic():
                        k(f"s_lshl_b32 s{sT0}, s{sT0}, 14")
                        k(f"s_add_u32 s{sT0}, s{sT0}, {max(j-1, 0)*4096}")
                    k(f"v_add_u32 v{vPQ+4+j}, s{sT0}, v{vL16}")
        ur = k.rec(lambda: (unpack_res(vWB), red_addr()))
        wr = []
        for t in range(56):
            ksl, j = seq[t]
            if L1:
                k.vm_wait(("w2t", ksl))
            k.vm_wait(("h", t))
            if o.get("diagd") and t in (0, 8, 16, 24, 32, 40, 48):
                k.stamp(f"D.t{t}")
            if o.get("diagc") and not L1 and t in (0, 4, 8, 16, 24, 32, 40, 48):
                k.stamp(f"D.t{t}", True)
            for f in range(4):
                a = vACC + 16*j + 4*f
                c = "0" if ksl == 0 else vr(a, 4)
                k(f"v_mfma_f32_16x16x32_bf16 {vr(a,4)}, {ar((ksl*4+f)*4,4)}, {vr(vACT+4*(t%16),4)}, {c}")
                if f in (0, 2) and nxt < 56 and nxt <= t + LA and (f == 0 or nxt < t + LA):
                    if nxt == 32 - o.get("p2d", 11):
                        k.vmem(f"buffer_load_dword v{vT0}, v{vT3}, {srd(S_WS)}, s{sFHp} offen offset:{G_FH+1024} sc1", "p2")
                    if nxt == 32:
                        async_check("p2", sFHp, G_FH + 1024)
                    hload(nxt)
                    nxt += 1
                    if nxt == 56 and not L1 and o.get("wb", 0):
                        lw = k.label("L_wb")
                        k(f"s_lshl3_add_u32 s{sT0}, s{sW}, s2")
                        k(f"s_cmp_ge_u32 s{sT0}, 8")
                        k(f"s_cbranch_scc1 {lw}")
                        k("buffer_wbl2 sc1")
                        k(f"s_branch {lw}_e")
                        k(f"{lw}:")
                        k(f"buffer_load_dword a{aDUM}, v{vT3}, {srd(S_WS)}, s{sFHp} offen offset:{G_FH} sc1")
                        k(f"{lw}_e:")
                        k.vm_note(1, "wb")
                if f in ((1, 3) if t < o.get("up2", 3) else (1,)) and up:
                    k.play(up[:1]); up = up[1:]
                if f == 2:
                    nup = 24 - len(up) + (1 if len(up) > 8 else 0)
                    if w2 and (len(w2) > 24 or not up or nup >= 4 * ((24 - len(w2)) // 4 + 1) + 1):
                        if len(w2) <= 24:
                            k.ds_wait(("up", (24 - len(w2)) // 4))
                        k.play(w2[:1]); w2 = w2[1:]
                    elif t >= o.get("tl0", 46) and tail:
                        nn = o.get("tln", 2)
                        k.play(tail[:nn]); tail = tail[nn:]
                if f == 3 and t == FL2:
                    k.flag(sFHo, G_FH + 1024)
                if 4 * t + f == 203 and L1:
                    k.ds_wait(("rw", 1))
                    k("s_barrier")
                    for f_ in range(4):
                        k.lds(f"ds_read_b128 {vr(vACC+16+4*f_,4)}, v{vPQ+4} offset:{f_*1024}", "rd0")
                if 4 * t + f == 215 and L1:
                    k.ds_wait("rd0")
                    k("s_barrier")
                if f == 3 and t == 2 and L1 and not WP:
                    pack_check_issue(0x8000, vTR0, vTR1, sPDA)
                if f == 3 and t == 14 and L1 and not WP:
                    pack_check(vTR0, vTR1, sPDA)
                if f == 3 and t == o.get("tx", 99) and L1:
                    touch("x", vDM)
                if f == 1 and t >= 8 and ur:
                    k.play(ur[:1]); ur = ur[1:]
                if wr and wr[0][0] <= 4 * t + f:
                    k.lds(*wr.pop(0)[1:])
            if ksl == 13 and j:
                for f in range(4):
                    wr.append((4 * t + 9 + 2 * f, f"ds_write_b128 v{vPQ+4+j}, {vr(vACC+16*j+4*f,4)} offset:{f*1024}", ("rw", j)))
        assert not w2 and not ur and not wr and not up
        k.stamp("D.mm")
        if not L1:
            k.get(vT2, cOUT)
        if L1:
            k("s_nop 3")
            for f in range(4):
                for p in range(2):
                    k(f"v_pk_add_f32 {vr(vACC+4*f+2*p,2)}, {vr(vACC+4*f+2*p,2)}, {vr(vACC+16+4*f+2*p,2)}")
        k.barrier()
        NJ = 2 if L1 else 3
        RB_ = vACC + 64 - 16 * NJ
        for f in range(4):
            for j in range(NJ):
                k.lds(f"ds_read_b128 {vr(RB_+16*j+4*f,4)}, v{vPQ+4} offset:{j*4096+f*1024}", ("rd", f))
        for f in range(4):
            k.ds_wait(("rd", f))
            for j in range(NJ):
                for p in range(2):
                    k(f"v_pk_add_f32 {vr(vACC+4*f+2*p,2)}, {vr(vACC+4*f+2*p,2)}, {vr(RB_+16*j+4*f+2*p,2)}")
            for p in range(2):
                k(f"v_pk_fma_f32 {vr(vACC+4*f+2*p,2)}, {vr(vACC+4*f+2*p,2)}, {vr(RSD,2)}, {vr(vWB+4*f+2*p,2)} op_sel_hi:[1,0,1]")
            for p in range(2):
                k(f"v_cvt_pk_bf16_f32 v{vRES+2*f+p}, v{vACC+4*f+2*p}, v{vACC+4*f+2*p+1}")
        k.stamp("D.red")
        if L1:
            publish_x(G_X2, G_ST2, G_FX2, psc(3))
            k(f"s_sub_u32 s{sT0}, s{sDK}, 8192")
            for j in range(4):
                k(f"s_add_u32 s{sRB+j}, s{sRB+j}, s{sT0}")
            k(f"s_add_u32 s{sKVC}, s{sKVC}, 0x100000")
            k(f"s_add_u32 s{sKVP}, s{sKVP}, 0x100000")
            k.flag(sFXo, G_FX2)
            k.poll_a(sFXp, G_FX2)
            k.stamp("D.pub")
            k("s_barrier")
            fr = []
            k(f"v_add_u32 v{vTR0}, {R1}, v{vL16}")
            late = []
            for ks in range(16):
                fq = [dict(addr=vTR0, offs=(ks * 2048 + b * 1024,), mf=mf2(QA + 8 * b, ks, True, True, act=ring)) for b in range(2)]
                fk = [dict(addr=vL16, offs=(R0 + ks * 4096 + b * 1024,), mf=mf2(vACC + 8 * b, ks, False, True, act=ring)) for b in range(4)]
                if ks < 16 - o.get("qlag", 0):
                    fr += fk + fq
                else:
                    fr += fk
                    late += fq
            fr += late
            gA = k.gemm_begin(fr)
        else:
            k("s_nop 1")
            for s in range(2):
                for p in range(2):
                    k(f"v_permlane16_swap_b32 v{vRES+4*s+p}, v{vRES+4*s+2+p}")
                k.vmem(f"buffer_store_dwordx4 {vr(vRES+4*s,4)}, v{vT2}, {srd(S_OUT)}, 0 offen offset:{64*s}{['', ' sc1', ' sc1 nt', ' nt'][o.get('outsc1', 1)]}")
            le = k.label("L_ep")
            k(f"s_or_b32 s{sT2}, s2, s{sW}")
            k(f"s_cbranch_scc1 {le}")
            k(f"s_add_u32 s{sEP}, s{sEP}, 1")
            k(f"v_mov_b32 v{vT1}, s{sEP}")
            k("s_mov_b64 exec, 1")
            k(f"buffer_store_dword v{vT1}, v{vL16}, {srd(S_WS)}, 0 offen offset:{WS_EPOCH}")
            k("s_mov_b64 exec, -1")
            k(f"{le}:")
            if stamps:
                k.vm_all()
                k.stamp("end")
                k(f"s_memrealtime s[{sST}:{sST+1}]")
                k("s_waitcnt lgkmcnt(0)")
                k(f"v_writelane_b32 v{vSTAMP}, s{sST}, 61")
                k(f"v_writelane_b32 v{vSTAMP}, s{sBUD}, 60")
                k(f"v_writelane_b32 v{vSTAMP}, s{sSLOW}, 59")
                k(f"s_lshl2_add_u32 s{sT2}, s2, s{sW}")
                k(f"s_lshl_b32 s{sT2}, s{sT2}, 8")
                k(f"s_add_u32 s{sT2}, s{sT2}, {WS_STAMP}")
                k(f"v_lshrrev_b32 v{vT0}, 2, v{vL16}")
                k(f"buffer_store_dword v{vSTAMP}, v{vT0}, {srd(S_WS)}, s{sT2} offen")
    k("L_end:")
    lines = merge_waits(k.lines)
    if o.get("pads", 2048):
        lines = add_pads(lines, k.tailcode, o.get("pads", 2048), [x for x in (o.get("ps1", 0), o.get("ps2", 0)) if x])
    body = "\n".join(lines)
    tailc = "\n".join(k.tailcode)
    hdr = open("interleave_layers__linear_attn_block__dense_activation_relu__prompt.s.ref").read().split("; Override")[0]
    txt = f"""{hdr}; Generated by a hand-written generator (persistent kernel, one workgroup per CU).
; @launch grid=(256,1,1) block=(256,1,1) lds={LDS_BYTES}
.amdgcn_target "amdgcn-amd-amdhsa--gfx950"
.text
.globl {NAME}
.p2align 8
.type {NAME},@function
.set CODE_BYTES, L_code_end - L_pcref - 512
{NAME}:
{body}
    s_endpgm
L_code_end:
{tailc}
.section .rodata,"a"
.p2align 6
.amdhsa_kernel {NAME}
  .amdhsa_next_free_vgpr 512
  .amdhsa_next_free_sgpr 102
  .amdhsa_accum_offset 256
  .amdhsa_group_segment_fixed_size 0
  .amdhsa_kernarg_size 72
  .amdhsa_user_sgpr_count 2
  .amdhsa_user_sgpr_kernarg_segment_ptr 1
  .amdhsa_system_sgpr_workgroup_id_x 1
.end_amdhsa_kernel
"""
    return txt, k.stamp_names


if __name__ == "__main__":
    out = sys.argv[1]
    stamps = "stamps" in sys.argv[2:]
    opts = {}
    for a in sys.argv[2:]:
        if "=" in a:
            x, y = a.split("=")
            opts[x] = int(y)
    txt, names = gen(stamps, opts)
    open(out, "w").write(txt)
    if stamps:
        open(out + ".names", "w").write("\n".join(names))
```

```python
import sys
from contextlib import contextmanager

NAME = "interleave_layers__linear_attn_block__dense_activation_relu__prompt_kernel"

WS_EPOCH = 0
WS_XID = 0x8000
WS_PD = 0x10000
GRP0 = 0x100000
G_FO, G_FX1, G_FX2, G_FH = 0, 512, 1024, 1536
G_ST1 = 0x1000
G_ST2 = G_ST1
G_ST0 = 0x4000
G_X1 = 0x8000
G_X2 = G_X1
G_H = G_X1 + 0x20000
G_O = G_H
WS_KVX = 0x1200000
KVX_C = 0x9000
WS_W2T = 0x1400000
WS_PK = 0x1600000
PK_KV, PK_Q, PK_W1A, PK_W1B, PK_WO, PK_SZ = 0, 65536, 98304, 163840, 212992, 278528
WS_STAMP = 0x1B00000
WS_USED = 0x1C00000
OOB = 0x7f000000

R0, R1, R2, R3 = 0, 65536, 98304, 131072
L_SM = 161792
L_CS = L_SM
L_ZB = L_SM + 896
L_STAT = L_SM + 1024
L_XB = L_SM - 4096
W1B_N1 = 8
L_XST = 98304
L_RED = R2
L_PST = R2
LDS_BYTES = 163840

S_X, S_WQKV, S_WO, S_W1, S_W2, S_OUT, S_WS = 4, 8, 12, 16, 20, 24, 28
(sW, sC, sG, sTAG, sSLOW, sGB, sBUD, sEP, sEPS, _e1, sT0, sT1, sT2, sT3, sT4, sT5,
 sACT, sACT1, sBACT, sTILE, sOST, sOST1, sFOo, sFOp, sFXo, sFXp, sSTo, sSTg,
 sH1, sH1b, sH2, sH2b, sH3, sH3b, sFHo, sFHp, sRB, _r1, _r2, _r3, sKVC, sKVP,
 sDH, sCT, sXCC, sT8, sD0, sD1, sD2, sD3, sL0, sL1, sPKB, sPDA, sPDB, sJ0) = range(32, 88)
assert sEPS % 2 == 0
sRHO = sT8
S_A, S_B = 88, 92
sKEX = 88
sDK = 92
sS8 = 93
sKM = 96
sST = 98
sPC = 100

vLANE, vL16, vTR0, vTR1, vQ0, vQ1, vQ2, vQ3, vP, vCH, vDM, vSTAMP = range(12)
vT0, vT1, vT2, vT3 = 12, 13, 14, 15
vSP, vSP2 = vP, vCH
vRES = 16
vPQ = 24
vWB = 32
vACC = 64
vACT = 128
BF1 = "0x3f803f80"
(cCSA, cCSB, cP16, aDUM, cSTO, cSTW, cSTA, cSTB, cKW, cKR, cKW1, cKR1, cKVS, cXW, cXR, cZR,
 cRD0, cRD1, cRD2, cRD3, cRSD, cOUT, cZL, cZW) = range(224, 248)
aONES, aCS = 248, 252


def srd(s):
    return f"s[{s}:{s+3}]"


def vr(a, n=1):
    return f"v{a}" if n == 1 else f"v[{a}:{a+n-1}]"


def ar(a, n=1):
    return f"a{a}" if n == 1 else f"a[{a}:{a+n-1}]"


def bcast(r, pos, n):
    lo = [0] * n
    hi = [1] * n
    if r % 2 == 0:
        hi[pos] = 0
    else:
        lo[pos] = 1
    f = lambda x: "[" + ",".join(map(str, x)) + "]"
    return vr(r & ~1, 2), f" op_sel:{f(lo)} op_sel_hi:{f(hi)}"


class K:
    def __init__(self, stamps=False, opts=None):
        self.lines = []
        self.nlab = 0
        self.vm = []
        self.ds = []
        self.stamps = stamps
        self.stamp_names = []
        self.o = opts or {}
        self._rec = None
        self.seen = set()
        self.tailcode = []
        self.lights = []

    def _do(self, fn, cost=None):
        if cost is not None:
            fn.cost = cost
        if self._rec is not None:
            self._rec.append(fn)
        else:
            fn()

    def rec(self, f):
        assert self._rec is None
        self._rec = []
        f()
        r, self._rec = self._rec, None
        return r

    @contextmanager
    def atomic(self):
        if self._rec is None:
            yield
            return
        outer, self._rec = self._rec, []
        yield
        inner, self._rec = self._rec, outer
        g = lambda: [x() for x in inner]
        g.cost = sum(getattr(x, "cost", 4) for x in inner)
        outer.append(g)

    def play(self, items):
        for x in items:
            self._do(x)

    def _emit(self, l):
        self.lines.append(("" if l.endswith(":") else "    ") + l)

    def __call__(self, s):
        for l in s.split("\n"):
            l = l.strip()
            if l:
                self._do(lambda l=l: self._emit(l), 8 if l.startswith(("v_exp", "v_rsq", "v_rcp", "buffer_")) else 0 if l.endswith(":") else 4)

    def label(self, base="L"):
        self.nlab += 1
        return f"{base}_{self.nlab}"

    def vmem(self, s, tag=None):
        def f():
            self._emit(s)
            self.vm.append(tag)
            self.seen.add(tag)
        self._do(f, 8)

    def vm_note(self, n, tag=None):
        self._do(lambda: (self.vm.extend([tag] * n), self.seen.add(tag)))

    def _wait(self, lst, tag, name, mx):
        if tag not in lst:
            return lst
        idx = len(lst) - 1 - lst[::-1].index(tag)
        n = min(len(lst) - idx - 1, mx)
        self._emit(f"s_waitcnt {name}({n})")
        return lst[len(lst) - n:] if n else []

    def vm_wait(self, tag):
        def f():
            assert tag in self.seen, tag
            self.vm = self._wait(self.vm, tag, "vmcnt", 63)
        self._do(f)

    def save_vm(self):
        def f():
            self._sv = list(self.vm)
        self._do(f)

    def restore_vm(self):
        def f():
            self.vm = self._sv
        self._do(f)

    def vm_all(self):
        def f():
            self._emit("s_waitcnt vmcnt(0)")
            self.vm = []
        self._do(f)

    def lds(self, s, tag=None):
        def f():
            self._emit(s)
            self.ds.append(tag)
        self._do(f)

    def ds_wait(self, tag):
        def f():
            self.ds = self._wait(self.ds, tag, "lgkmcnt", 15)
        self._do(f)

    def ds_all(self, force=False):
        def f():
            if self.ds or force:
                self._emit("s_waitcnt lgkmcnt(0)")
            self.ds = []
        self._do(f)

    def barrier(self, force=False):
        self.ds_all(force)
        self("s_barrier")

    def stamp(self, name, light=False):
        if not self.stamps:
            return
        if light:
            i = len(self.stamp_names)
            self.stamp_names.append(name)
            r = 4 + 2 * len(self.lights)
            self.lights.append((r, i))
            self(f"s_memtime s[{r}:{r+1}]")
            return
        self.nst = getattr(self, "nst", 0) + 1
        if self.o.get("lite") and name not in ("end", "D.pub"):
            return
        i = len(self.stamp_names)
        assert i < 59
        self.stamp_names.append(name)
        self(f"{'s_memrealtime' if self.o.get('rt') else 's_memtime'} s[{sST}:{sST+1}]")
        self.ds_all(True)
        self(f"v_writelane_b32 v{vSTAMP}, s{sST}, {i}")
        for r, j in self.lights:
            self(f"v_writelane_b32 v{vSTAMP}, s{r}, {j}")
        self.lights = []

    def dma(self, sr, voff, soff, simm, lreg, limm, tag=None, flag=""):
        with self.atomic():
            self(f"s_add_u32 m0, s{lreg}, {limm}")
            self(f"s_add_u32 s{sT5}, s{soff}, {simm}")
            self.vmem(f"buffer_load_dwordx4 v{voff}, {srd(sr)}, s{sT5} offen{flag} lds", tag)

    def get(self, v, c):
        self(f"v_accvgpr_read_b32 v{v}, a{c}")

    def poll_prep(self, mask):
        self.get(vT3, cP16)
        if mask == 7:
            self(f"v_and_b32 v{vT3}, 28, v{vT3}")

    def poll(self, soff, imm, clear=True):
        if clear:
            self.seen = {t for t in self.seen if not (isinstance(t, tuple) and t[0] in ("act", "h"))}
        lp, done = self.label("L_poll"), self.label("L_pd")
        with self.atomic():
            self(f"{lp}:")
            self(f"buffer_load_dword v{vT0}, v{vT3}, {srd(S_WS)}, s{soff} offen offset:{imm} sc1")
            self.vm_all()
            self(f"v_cmp_ne_u32 vcc, s{sTAG}, v{vT0}")
            self(f"s_cbranch_vccz {done}")
            self(f"s_sub_u32 s{sBUD}, s{sBUD}, 1")
            self(f"s_cbranch_scc0 {lp}")
            self(f"s_mov_b32 s{sBUD}, 0")
            self(f"{done}:")

    def poll_a(self, soff, imm):
        if self.o.get("pp", 1):
            self.vmem(f"buffer_load_dword v{vT0}, v{vT3}, {srd(S_WS)}, s{soff} offen offset:{imm} sc1", "pa")

    def poll_b(self, soff, imm):
        if not self.o.get("pp", 1):
            return self.poll(soff, imm)
        self.seen = {t for t in self.seen if not (isinstance(t, tuple) and t[0] in ("act", "h"))}
        lp, done = self.label("L_poll"), self.label("L_pd")
        ld = lambda v: f"buffer_load_dword v{v}, v{vT3}, {srd(S_WS)}, s{soff} offen offset:{imm} sc1"
        self(f"{lp}:")
        self(ld(vT2))
        self("s_waitcnt vmcnt(1)")
        self(f"v_cmp_ne_u32 vcc, s{sTAG}, v{vT0}")
        self(f"s_cbranch_vccz {done}")
        self(ld(vT0))
        self("s_waitcnt vmcnt(1)")
        self(f"v_cmp_ne_u32 vcc, s{sTAG}, v{vT2}")
        self(f"s_cbranch_vccz {done}")
        self(f"s_sub_u32 s{sBUD}, s{sBUD}, 1")
        self(f"s_cbranch_scc0 {lp}")
        self(f"s_mov_b32 s{sBUD}, 0")
        self(f"{done}:")
        self.vm = ["pb"]

    def stores(self, items, force_sc1, tag="st"):
        with self.atomic():
            if force_sc1:
                for it in items:
                    self.vmem(it + " sc1", tag)
                return
            ls, le = self.label("L_ss"), self.label("L_se")
            self(f"s_cmp_lg_u32 s{sSLOW}, 0")
            self(f"s_cbranch_scc1 {ls}")
            for it in items:
                self.vmem(it, tag)
            self(f"{le}:")
            self.tailcode += [f"{ls}:"] + ["    " + it + " sc1" for it in items] + [f"    s_branch {le}"]

    def flag(self, soff, imm):
        with self.atomic():
            self(f"v_mov_b32 v{vT1}, s{sTAG}")
            self.vm_wait("st")
            self("s_mov_b64 exec, 1")
            self.stores([f"buffer_store_dword v{vT1}, v{vL16}, {srd(S_WS)}, s{soff} offen offset:{imm}"], False, "flag")
            self("s_mov_b64 exec, -1")

    def gemm_begin(self, frags, D=6):
        self.gid = getattr(self, "gid", 0) + 1
        g = dict(frags=frags, D=D, gid=self.gid, rp=0, reads=[])
        for t, f in enumerate(frags):
            s = vWB + 4 * (t % 8)
            if len(f["offs"]) == 2:
                for hh in range(2):
                    g["reads"].append((t, f"ds_read_b64_tr_b16 {vr(s + 2*hh, 2)}, v{f['addr']} offset:{f['offs'][hh]}"))
            else:
                g["reads"].append((t, f"ds_read_b128 {vr(s, 4)}, v{f['addr']} offset:{f['offs'][0]}"))
        self._issue(g, D - 1, 99)
        return g

    def _issue(self, g, tmax, maxn):
        c = 0
        reads = g["reads"]
        while g["rp"] < len(reads) and reads[g["rp"]][0] <= tmax and c < maxn:
            self.lds(reads[g["rp"]][1], ("w", g["gid"], reads[g["rp"]][0]))
            g["rp"] += 1
            c += 1

    def gemm_run(self, g, fill=None):
        fill = fill or {}
        frags, D, gid = g["frags"], g["D"], g["gid"]
        n = len(frags)
        mi = 0
        pend = []
        LATE = self.o.get("late", 3)
        for t, f in enumerate(frags):
            s = vWB + 4 * (t % 8)
            if t % 2 == 0:
                self.ds_wait(("w", gid, min(t + 1, n - 1)))
            nm = len(f["mf"])
            for j, (acc, act_, sw, first, wt) in enumerate(f["mf"]):
                if wt is not None:
                    self.vm_wait(wt)
                c = "0" if first else vr(acc, 4) if acc is not None else ar(aCS, 4)
                if acc is None:
                    self(f"v_mfma_f32_16x16x32_bf16 {ar(aCS,4)}, {ar(aONES,4)}, {vr(s,4)}, {c}")
                elif sw:
                    self(f"v_mfma_f32_16x16x32_bf16 {vr(acc,4)}, {vr(s,4)}, {vr(act_,4)}, {c}")
                else:
                    self(f"v_mfma_f32_16x16x32_bf16 {vr(acc,4)}, {vr(act_,4)}, {vr(s,4)}, {c}")
                rp0 = g["rp"]
                self._issue(g, t + D, 99 if j == nm - 1 else 1)
                room = 8 - 4 * (g["rp"] - rp0) - (4 if (j == nm - 1 and t % 2 == 1) else 0)
                pend += [(mi, x) for x in fill.pop(mi, [])]
                while pend:
                    cst = getattr(pend[0][1], "cost", 4)
                    if cst <= room or (room == 8 and cst > 8) or mi - pend[0][0] >= LATE:
                        self.play([pend.pop(0)[1]])
                        room -= cst
                    else:
                        break
                mi += 1
        self.play([x for _, x in pend])
        for key in sorted(fill):
            self.play(fill[key])

    def gemm(self, frags, fill=None, D=6):
        self.gemm_run(self.gemm_begin(frags, D), fill)


def merge_waits(lines):
    import re
    out = []
    for l in lines:
        m = re.match(r"\s*s_waitcnt (\w+)\((\d+)\)$", l)
        if m and out:
            p = re.match(r"\s*s_waitcnt (\w+)\((\d+)\)$", out[-1])
            if p and p.group(1) != m.group(1):
                out[-1] = out[-1] + f" {m.group(1)}({m.group(2)})"
                continue
        out.append(l)
    return out


def spread(fill, items, start, step, per=1):
    p = start
    if step == 0:
        g = lambda: [x() for x in items]
        g.cost = sum(getattr(x, "cost", 4) for x in items)
        fill.setdefault(int(p), []).append(g)
        return p
    for i in range(0, len(items), per):
        fill.setdefault(int(p), []).extend(items[i:i + per])
        p += step
    return p


def insn_sizes(lines, tailcode):
    import subprocess, tempfile, re, os
    src = [".amdgcn_target \"amdgcn-amd-amdhsa--gfx950\"", ".text", ".set CODE_BYTES, 0x12345"]
    for i, l in enumerate(lines):
        src.append(f"Lz{i}:")
        src.append(l)
    src.append(f"Lz{len(lines)}:")
    src += tailcode
    with tempfile.TemporaryDirectory() as d:
        open(d + "/a.s", "w").write("\n".join(src) + "\n")
        subprocess.run(["clang", "-x", "assembler", "-target", "amdgcn-amd-amdhsa", "-mcpu=gfx950", "-c", d + "/a.s", "-o", d + "/a.o"], check=True)
        out = subprocess.run(["llvm-objdump", "-t", d + "/a.o"], capture_output=True, text=True, check=True).stdout
    addr = {}
    for l in out.splitlines():
        m = re.match(r"([0-9a-f]+) .*\sLz(\d+)$", l)
        if m:
            addr[int(m.group(2))] = int(m.group(1), 16)
    return [addr[i + 1] - addr[i] for i in range(len(lines))]


def add_pads(lines, tailcode, step, splits):
    def call(first, ret):
        c = ["    s_mov_b64 exec, 0"]
        for w in range(3):
            c += [f"    s_cmp_eq_u32 s{sW}, {w}", f"    s_cbranch_scc1 L_pad{first + w}"]
        return c + [f"    s_branch L_pad{first + 3}"]
    src = []
    for l in lines:
        t = l.strip()
        if t.startswith("PADCALL") and t != "PADCALL":
            g = int(t[7:])
            if g <= len(splits):
                src += ["    s_nop 0 ; CALL%d" % g] * 9
        else:
            src.append(l)
    ci = [i for i, l in enumerate(src) if l.strip() == "PADCALL"][0]
    src = src[:ci] + src[ci + 1:]
    sz = insn_sizes(src, tailcode)
    body, pos, nxt, n = [], 4, step, 0
    for i in range(ci, len(src)):
        if pos >= nxt and sz[i] > 0 and "; CALL" not in src[i]:
            body.append(("PAD", n))
            n += 1
            pos += 4
            nxt = (pos // step + 1) * step
        body.append(src[i])
        pos += sz[i]
    bounds = [0] + list(splits) + [n]
    assert all(bounds[i + 1] - bounds[i] >= 4 for i in range(len(bounds) - 1)), (bounds, n)
    out = src[:ci] + call(0, 0) + [".p2align 12", "L_padret0:", "    s_mov_b64 exec, -1"]
    done = set()
    for x in body:
        if isinstance(x, tuple):
            j = x[1]
            g = max(i for i in range(len(bounds) - 1) if bounds[i] <= j)
            out += [f"L_pad{j}:", f"    s_cbranch_execz {'L_pad%d' % (j + 4) if j + 4 < bounds[g + 1] else 'L_padret%d' % g}"]
        elif "; CALL" in x:
            g = int(x.split("CALL")[1])
            if g not in done:
                done.add(g)
                out += call(bounds[g], g) + [f"L_padret{g}:", "    s_mov_b64 exec, -1"]
        else:
            out.append(x)
    return out


def mix(a, b, ratio):
    out = []
    bi = 0
    for i, x in enumerate(a):
        out.append(x)
        if (i + 1) % ratio == 0 and bi < len(b):
            out.append(b[bi]); bi += 1
    out.extend(b[bi:])
    return out


def act(ks, rb):
    return vACT + 8 * ks + 4 * rb


def gen(stamps=False, opts=None):
    k = K(stamps, opts)
    o = k.o
    if stamps:
        k(f"{'s_memrealtime' if o.get('rt') else 's_memtime'} s[{sST}:{sST+1}]")
        k(f"s_memrealtime s[{sPC}:{sPC+1}]")
    k(f"""
    s_cmp_ge_u32 s2, 256
    s_cbranch_scc1 L_end
    s_load_dwordx2 s[{S_X}:{S_X+1}], s[0:1], 0
    s_load_dwordx2 s[{S_WQKV}:{S_WQKV+1}], s[0:1], 8
    s_load_dwordx2 s[{S_WS}:{S_WS+1}], s[0:1], 64
    s_load_dwordx2 s[{S_WO}:{S_WO+1}], s[0:1], 16
    s_load_dwordx2 s[{S_W1}:{S_W1+1}], s[0:1], 32
    s_load_dwordx2 s[{S_W2}:{S_W2+1}], s[0:1], 40
    s_load_dwordx2 s[{S_OUT}:{S_OUT+1}], s[0:1], 48
    """)
    if o.get("cw0", 1):
        k(f"""
        s_getpc_b64 s[{S_A}:{S_A+1}]
        L_pcref:
        s_lshr_b32 s{sT2}, s2, 3
        s_lshl_b32 s{sT2}, s{sT2}, 11
        v_lshlrev_b32 v{vT3}, 3, v0
        v_add_u32 v{vT3}, s{sT2}, v{vT3}
        v_min_u32 v{vT3}, CODE_BYTES, v{vT3}
        s_mov_b32 exec_lo, 0x10001
        s_mov_b32 exec_hi, 0x10001
        global_load_dword a{aDUM}, v{vT3}, s[{S_A}:{S_A+1}]
        s_mov_b64 exec, -1
        """)
    k(f"""
    v_lshrrev_b32 v{vT0}, 6, v0
    v_and_b32 v{vLANE}, 63, v0
    s_mov_b32 s{S_X+2}, {2048*1024}
    v_readfirstlane_b32 s{sW}, v{vT0}
    s_mov_b32 s{S_X+3}, 0x20000
    s_mov_b32 s{S_WQKV+2}, {512*3072}
    s_mov_b32 s{S_WQKV+3}, 0x20000
    s_lshr_b32 s{sT0}, s2, 3
    s_and_b32 s{sC}, s{sT0}, 15
    s_lshr_b32 s{sT0}, s{sT0}, 4
    s_and_b32 s{sG}, s2, 7
    s_lshl1_add_u32 s{sG}, s{sG}, s{sT0}
    s_lshr_b32 s{sT1}, s{sC}, 1
    s_xor_b32 s{sT1}, s{sT1}, s{sT0}
    s_and_b32 s{sT1}, s{sT1}, 1
    s_and_b32 s{sRHO}, s{sC}, 1
    s_lshl1_add_u32 s{sRHO}, s{sT1}, s{sRHO}
    v_lshlrev_b32 v{vL16}, 4, v{vLANE}
    """)
    if stamps:
        k(f"v_mov_b32 v{vSTAMP}, 0")
    NTP = " nt" if o.get("nt", 0) & 1 else ""
    NTX = " nt" if o.get("nt", 0) & 2 else ""
    XS, XR, X2R = vRES, vRES + 4, act(15, 1)
    aRES = 246
    k(f"""
    v_lshrrev_b32 v{vT0}, 4, v{vLANE}
    v_and_b32 v{vT1}, 15, v{vLANE}
    v_xor_b32 v{vT2}, v{vT0}, v{vT1}
    v_lshlrev_b32 v{vT2}, 4, v{vT2}
    v_lshl_add_u32 v{XS}, v{vT0}, 10, v{vT2}
    v_xor_b32 v{XS+1}, 64, v{XS}
    v_xor_b32 v{XS+2}, 0x80, v{XS}
    v_xor_b32 v{XS+3}, 0xc0, v{XS}
    v_lshrrev_b32 v{vP}, 2, v{vLANE}
    v_and_b32 v{vCH}, 3, v{vLANE}
    v_lshrrev_b32 v{vT3}, 3, v{vLANE}
    v_and_b32 v{vT3}, 2, v{vT3}
    v_xor_b32 v{vCH}, v{vCH}, v{vT3}
    v_lshlrev_b32 v{vCH}, 4, v{vCH}
    v_and_b32 v{vT3}, 3, v{vP}
    v_lshl_add_u32 v{vT3}, v{vT0}, 3, v{vT3}
    s_movk_i32 s{sT1}, 3072
    v_mad_u32_u24 v{vDM}, v{vT3}, s{sT1}, v{vCH}
    s_lshl_b32 s{sL0}, s{sW}, 14
    s_add_u32 s{sL0}, s{sL0}, {L_XST}
    s_lshl_b32 s{sT1}, s{sG}, 17
    s_lshl_b32 s{sT2}, s{sW}, 15
    s_add_u32 s{sT1}, s{sT1}, s{sT2}
    s_lshl_b32 s{sL1}, s{sW}, 12
    """)
    for r in range(4):
        k(f"""
        s_add_u32 s{sT2}, s{sRHO}, {r}
        s_and_b32 s{sT2}, s{sT2}, 3
        s_lshl_b32 s{sT3}, s{sT2}, 8
        s_add_u32 s{sD0+r}, s{sT1}, s{sT3}
        s_lshl2_add_u32 s{sT2}, s{sT2}, s{sW}
        s_mul_i32 s{sT2}, s{sT2}, {32*3072}
        s_lshl_b32 s{sT3}, s{sC}, 6
        s_add_u32 s{sRB+r}, s{sT2}, s{sT3}
        """)
    k("s_waitcnt lgkmcnt(0)")
    k(f"s_load_dword s{sEP}, s[{S_WS}:{S_WS+1}], {WS_EPOCH}")
    if stamps:
        k(f"v_writelane_b32 v{vSTAMP}, s{sST}, 62")
        k(f"v_writelane_b32 v{vSTAMP}, s{sPC}, 63")

    def xslot(q, js=range(8)):
        for j in js:
            k.dma(S_X, XS + (j & 3), sD0 + q, j * 4096, sL0, (q & 1) * 8192 + j * 1024, ("xs", q), " nt" if o.get("nt", 0) & 4 else "")

    def wkv_raw(r):
        for pr in range(2):
            for hh in range(2):
                k.dma(S_WQKV, vDM, sRB + r, hh * 4 * 3072 + 1024 * (pr + 1), sL1, R0 + r * 16384 + pr * 2048 + hh * 1024, ("wkv", r))

    def quad_lane(pitch, dst=vDM, tmp=vT2, sD3=sD3):
        vT2 = tmp
        k(f"v_lshrrev_b32 v{dst}, 3, v{vLANE}")
        k(f"v_and_b32 v{vT2}, 6, v{dst}")
        k(f"v_xor_b32 v{vT2}, v{vT2}, v{vLANE}")
        k(f"v_and_b32 v{vT2}, 7, v{vT2}")
        k(f"v_lshlrev_b32 v{vT2}, 4, v{vT2}")
        if isinstance(pitch, int):
            k(f"s_movk_i32 s{sD3}, {pitch}")
            pitch = f"s{sD3}"
        k(f"v_mad_u32_u24 v{dst}, v{dst}, {pitch}, v{vT2}")

    def dma_raw(sr, lds_imm, first, R=None):
        sD0_, sD2_, sL0_, vDM_ = R or (sD0, sD2, sL0, vDM)
        with k.atomic():
            k(f"s_add_u32 m0, s{sL0_}, {lds_imm}")
            k("s_nop 0" if first else f"s_add_u32 s{sD0_}, s{sD0_}, s{sD2_}")
            k(f"buffer_load_dwordx4 v{vDM_}, {srd(sr)}, s{sD0_} offen{NTP} lds")

    def packU_issue(base, sD0, sD1, sD2, sD3, sL0, vDM, sPDA, shift=12):
        R = (sD0, sD2, sL0, vDM)
        l2, l3, lq, le = k.label("L_u2"), k.label("L_u3"), k.label("L_uq"), k.label("L_ue")
        with k.atomic():
            k(f"""
            s_lshl_b32 s{sL0}, s{sW}, {shift}
            s_add_u32 s{sL0}, s{sL0}, {base}
            s_lshr_b32 s{sD0}, s{sC}, 2
            s_mul_i32 s{sD0}, s{sD0}, 896
            s_mul_i32 s{sD1}, s{sG}, {32*3584}
            s_add_u32 s{sD0}, s{sD0}, s{sD1}
            s_and_b32 s{sD1}, s{sC}, 3
            s_cmp_eq_u32 s{sW}, 3
            s_cbranch_scc1 {l3}
            s_cmp_eq_u32 s{sW}, 2
            s_cbranch_scc1 {l2}
            s_mov_b32 s{S_A}, s{S_W2}
            s_mov_b32 s{S_A+1}, s{S_W2+1}
            s_mov_b32 s{S_A+2}, {1792*1024}
            s_movk_i32 s{sD2}, 1024
            s_lshl1_add_u32 s{sD0}, s2, s{sW}
            s_lshr_b32 s{sD1}, s{sD0}, 3
            s_and_b32 s{sD0}, s{sD0}, 7
            s_mul_i32 s{sPDA}, s{sD0}, 56
            s_add_u32 s{sPDA}, s{sPDA}, s{sD1}
            s_lshl_b32 s{sPDA}, s{sPDA}, 12
            s_add_u32 s{sPDA}, s{sPDA}, {WS_W2T}
            s_cmp_ge_u32 s{sD1}, 56
            s_cselect_b32 s{sPDA}, {OOB}, s{sPDA}
            s_lshl_b32 s{sD1}, s{sD1}, 15
            s_lshl_b32 s{sD0}, s{sD0}, 7
            s_add_u32 s{sD0}, s{sD0}, s{sD1}
            s_branch {lq}
            {l2}:
            s_mov_b32 s{S_A}, s{S_W1}
            s_mov_b32 s{S_A+1}, s{S_W1+1}
            s_mov_b32 s{S_A+2}, {512*3584}
            s_movk_i32 s{sD2}, 3584
            s_lshl_b32 s{sD1}, s{sD1}, 7
            s_add_u32 s{sD0}, s{sD0}, s{sD1}
            s_lshl_b32 s{sPDA}, s{sG}, 12
            s_add_u32 s{sPDA}, s{sPDA}, s{sPKB}
            s_add_u32 s{sPDA}, s{sPDA}, {PK_W1A}
            {lq}:
            s_mov_b32 s{S_A+3}, 0x20000
            """)
            quad_lane(f"s{sD2}", vDM, vT2 if shift == 14 else vACT + 127)
            k(f"s_lshl_b32 s{sD2}, s{sD2}, 3")
            for j in range(4):
                dma_raw(S_A, j * 1024, j == 0, R)
            k(f"""
            s_branch {le}
            {l3}:
            s_movk_i32 s{sD3}, 3584
            s_mul_i32 s{sPDA}, s{sG}, 3072
            s_add_u32 s{sPDA}, s{sPDA}, s{sPKB}
            s_add_u32 s{sPDA}, s{sPDA}, {PK_W1B}
            s_lshr_b32 s{sT5}, s{sD1}, 1
            s_mul_i32 s{sT5}, s{sT5}, 6
            s_and_b32 s{sD2}, s{sD1}, 1
            s_add_u32 s{sT5}, s{sT5}, s{sD2}
            s_add_u32 s{sT5}, s{sT5}, 18
            s_lshl_b32 s{sT5}, s{sT5}, 5
            s_add_u32 s{sT5}, s{sT5}, s{sD0}
            v_lshrrev_b32 v{vDM}, 1, v{vLANE}
            v_and_b32 v{vT2 if shift == 14 else vACT + 127}, 16, v{vL16}
            v_mad_u32_u24 v{vDM}, v{vDM}, s{sD3}, v{vT2 if shift == 14 else vACT + 127}
            s_add_u32 m0, s{sL0}, 2048
            s_mul_i32 s{sD1}, s{sD1}, 3
            buffer_load_dwordx4 v{vDM}, {srd(S_W1)}, s{sT5} offen{NTP} lds
            s_add_u32 s{sD1}, s{sD1}, 17
            s_lshr_b32 s{sD1}, s{sD1}, 1
            s_lshl_b32 s{sD1}, s{sD1}, 6
            s_add_u32 s{sD0}, s{sD0}, s{sD1}
            s_mov_b32 s{sD2}, {16*3584}
            v_mad_u32_u24 v{vDM}, v{vP}, s{sD3}, v{vCH}
            """)
            for hh in range(2):
                dma_raw(S_W1, hh * 1024, hh == 0, R)
            k(f"buffer_load_dword a{aDUM}, v{vL16}, {srd(S_W1)}, s{S_W1+2} offen")
            k(f"{le}:")
            k.vm_note(4, "pu")

    WP = o.get("wp", 1)

    def warm():
        k(f"v_lshlrev_b32 v{vT3}, 7, v{vLANE}")
        k("s_mov_b64 exec, 0xf")
        if not o.get("cw0", 1):
            k(f"""
            s_getpc_b64 s[{sPC}:{sPC+1}]
            L_pcref:
            s_lshr_b32 s{sT2}, s2, 3
            s_lshl2_add_u32 s{sT2}, s{sT2}, s{sW}
            s_lshl_b32 s{sT2}, s{sT2}, 9
            s_min_u32 s{sT2}, s{sT2}, CODE_BYTES
            s_add_u32 s{sPC}, s{sPC}, s{sT2}
            s_addc_u32 s{sPC+1}, s{sPC+1}, 0
            """)
            k.vmem(f"global_load_dword a{aDUM}, v{vT3}, s[{sPC}:{sPC+1}]")
        if o.get("warm", 1) >= 1:
            k(f"s_lshl2_add_u32 s{sT2}, s2, s{sW}")
            k(f"s_lshr_b32 s{sT3}, s{sT2}, 1")
            k(f"s_mul_i32 s{sT3}, s{sT3}, 3072")
            k(f"s_and_b32 s{sT4}, s{sT2}, 1")
            k(f"s_lshl_b32 s{sT4}, s{sT4}, 9")
            k(f"s_add_u32 s{sT3}, s{sT3}, s{sT4}")
            k.vmem(f"buffer_load_dword a{aDUM}, v{vT3}, {srd(S_WQKV)}, s{sT3} offen")
            if not WP:
                k(f"s_lshl_b32 s{sT3}, s{sT2}, 9")
                k.vmem(f"buffer_load_dword a{aDUM}, v{vT3}, {srd(S_WO)}, s{sT3} offen")
        if o.get("tlb", 0):
            k("s_mov_b64 exec, 1")
            k(f"s_mul_i32 s{sT3}, s{sT2}, 1792")
            k.vmem(f"buffer_load_dword a{aDUM}, v{vT3}, {srd(S_W1)}, s{sT3} offen")
            k.vmem(f"buffer_load_dword a{aDUM}, v{vT3}, {srd(S_W2)}, s{sT3} offen")
            if o["tlb"] > 1:
                k("s_mov_b64 exec, 0x1f")
                k(f"v_lshlrev_b32 v{vWB}, 21, v{vLANE}")
                k(f"s_mov_b32 s{sT3}, {WS_KVX + 0x1f0000}")
                k.vmem(f"buffer_load_dword a{aDUM}, v{vWB}, {srd(S_WS)}, s{sT3} offen")
        if o.get("warm", 1) >= 2:
            k(f"s_mul_i32 s{sT3}, s{sT2}, 1792")
            k("s_mov_b64 exec, 0x3fff")
            k.vmem(f"buffer_load_dword a{aDUM}, v{vT3}, {srd(S_W1)}, s{sT3} offen")
            k.vmem(f"buffer_load_dword a{aDUM}, v{vT3}, {srd(S_W2)}, s{sT3} offen")
        k(f"s_lshl2_add_u32 s{sT2}, s{sC}, s{sW}")
        k(f"s_lshl_b32 s{sT2}, s{sT2}, 8")
        k(f"s_add_u32 s{sT2}, s{sT2}, s{sGB}")
        k("s_mov_b64 exec, 3")
        k.vmem(f"buffer_load_dword a{aDUM}, v{vT3}, {srd(S_WS)}, s{sT2} offen sc1", "touch")
        k("s_mov_b64 exec, -1")

    OWN = vACC
    k(f"s_lshl_b32 s{sT2}, s{sC}, 11")
    k(f"s_add_u32 s{sT2}, s{sT2}, s{sT1}")
    for r in range(2):
        k.vmem(f"buffer_load_dwordx4 {vr(OWN+4*r,4)}, v{vL16}, {srd(S_X)}, s{sT2} offen offset:{r*1024}{NTX}", "own")
    w0_ = k.rec(lambda: wkv_raw(0))
    nw0 = o.get("nw0", 2)
    k.play(w0_[:nw0])
    k(f"""
    s_mov_b32 s{S_WO+2}, {512*1024}
    s_mov_b32 s{S_WO+3}, 0x20000
    s_mov_b32 s{S_W1+2}, {512*3584}
    s_mov_b32 s{S_W1+3}, 0x20000
    s_mov_b32 s{S_W2+2}, {1792*1024}
    s_mov_b32 s{S_W2+3}, 0x20000
    s_mov_b32 s{S_WS+2}, {WS_USED}
    s_mov_b32 s{S_WS+3}, 0x20000
    s_lshl_b32 s{sGB}, s{sG}, 20
    s_add_u32 s{sGB}, s{sGB}, {GRP0}
    """)
    warm()
    UF = o.get("uf", 1)
    k(f"s_mul_i32 s{sPKB}, s{sC}, {PK_SZ}")
    k(f"s_add_u32 s{sPKB}, s{sPKB}, {WS_PK}")
    if UF == 1:
        packU_issue(R1, sH1, sH1b, sH2, sH2b, sH3, vWB + 8, sPDB)
    if WP:
        quad_lane(1024, vWB + 8, vACT + 127, sH2b)
        k(f"""
        s_lshl2_add_u32 s{sH1}, s{sG}, s{sW}
        s_lshl_b32 s{sPDA}, s{sH1}, 10
        s_add_u32 s{sPDA}, s{sPDA}, s{sPKB}
        s_add_u32 s{sPDA}, s{sPDA}, {PK_WO}
        s_lshl_b32 s{sH1}, s{sH1}, 13
        s_lshl_b32 s{sH1b}, s{sC}, 7
        s_add_u32 s{sH1}, s{sH1}, s{sH1b}
        s_cmp_ge_u32 s{sC}, 8
        s_cselect_b32 s{sH1}, {OOB}, s{sH1}
        s_cselect_b32 s{sPDA}, {OOB}, s{sPDA}
        s_lshl_b32 s{sH1b}, s{sW}, 10
        s_add_u32 m0, s{sH1b}, {R0 + 49152}
        s_nop 0
        """)
        k.vmem(f"buffer_load_dwordx4 v{vWB+8}, {srd(S_WO)}, s{sH1} offen{NTP} lds", "pwo")

    k.play(w0_[nw0:])

    if o.get("diags"): k.stamp("iss0")

    def arm(mode):
        with k.atomic():
            k(f"s_lshl2_add_u32 s{sT2}, s{sC}, s{sW}")
            k(f"s_lshl_b32 s{sT3}, s{sT2}, 11")
            k(f"s_add_u32 s{sT3}, s{sT3}, s{sGB}")
            k(f"s_add_u32 s{sT3}, s{sT3}, {G_X1}")
            k(f"s_lshr_b32 s{sT4}, s{sT2}, 3")
            k(f"s_mul_i32 s{sT4}, s{sT4}, 57344")
            k(f"s_and_b32 s{sT2}, s{sT2}, 7")
            k(f"s_mul_i32 s{sT2}, s{sT2}, {5120 if mode & 4 else 1024}")
            k(f"s_add_u32 s{sT4}, s{sT4}, s{sT2}")
            k(f"s_add_u32 s{sT4}, s{sT4}, s{sGB}")
            k(f"s_add_u32 s{sT4}, s{sT4}, {G_H + 16*1024}")
            k(f"s_add_u32 s{sT2}, s{sT4}, 4096")
        if mode & 1:
            for j in range(2):
                k.vmem(f"buffer_store_dwordx4 {vr(vQ0,4)}, v{vL16}, {srd(S_WS)}, s{sT3} offen offset:{j*1024} sc1", "arm")
        for j in range(5 if mode & 4 else 1 if mode & 2 else 0):
            k.vmem(f"buffer_store_dwordx4 {vr(vQ0,4)}, v{vL16}, {srd(S_WS)}, s{sT4 if j < 4 else sT2} offen offset:{(j%4)*1024} sc1", "arm")

    k(f"""
    s_mov_b32 s{S_OUT+2}, {2048*1024}
    s_mov_b32 s{S_OUT+3}, 0x20000
    s_lshr_b32 s{sDH}, s{sC}, 3
    s_and_b32 s{sCT}, s{sC}, 7
    s_mov_b32 s{sBUD}, 150000
    s_mov_b32 s{sEPS}, 0x358637bd
    s_mov_b32 s{sEPS+1}, 0x358637bd
    s_getreg_b32 s{sXCC}, hwreg(HW_REG_XCC_ID, 0, 4)
    s_lshl_b32 s{sACT}, s{sW}, 15
    s_add_u32 s{sACT}, s{sACT}, s{sGB}
    s_add_u32 s{sACT1}, s{sACT}, 16384
    s_lshl2_add_u32 s{sT0}, s{sDH}, s{sW}
    s_lshl_b32 s{sBACT}, s{sT0}, 14
    s_add_u32 s{sBACT}, s{sBACT}, s{sGB}
    s_lshl_b32 s{sTILE}, s{sCT}, 11
    s_add_u32 s{sTILE}, s{sTILE}, s{sBACT}
    s_mul_i32 s{sBACT}, s{sT0}, 57344
    s_add_u32 s{sBACT}, s{sBACT}, s{sGB}
    s_mul_i32 s{sOST}, s{sW}, {2*57344}
    s_lshl_b32 s{sOST1}, s{sC}, 10
    s_add_u32 s{sOST}, s{sOST}, s{sOST1}
    s_add_u32 s{sOST}, s{sOST}, s{sGB}
    s_add_u32 s{sOST}, s{sOST}, {G_O}
    s_add_u32 s{sOST1}, s{sOST}, 57344
    s_lshl_b32 s{sFXp}, s{sW}, 7
    s_add_u32 s{sFXp}, s{sFXp}, s{sGB}
    s_lshl2_add_u32 s{sFOo}, s{sC}, s{sFXp}
    s_lshl_b32 s{sFHp}, s{sT0}, 7
    s_add_u32 s{sFHp}, s{sFHp}, s{sGB}
    s_lshr_b32 s{sT0}, s{sT0}, 1
    s_mov_b32 s{sT1}, s{sT0}
    s_lshl_b32 s{sFOp}, s{sT0}, 7
    s_add_u32 s{sFOp}, s{sFOp}, s{sGB}
    s_and_b32 s{sT2}, s{sW}, 1
    s_lshl1_add_u32 s{sT3}, s{sCT}, s{sT2}
    s_lshl2_add_u32 s{sFXo}, s{sT3}, s{sFOp}
    s_lshl3_add_u32 s{sT3}, s{sT0}, s{sCT}
    s_lshl_b32 s{sT3}, s{sT3}, 8
    s_lshl3_add_u32 s{sT3}, s{sT2}, s{sT3}
    s_add_u32 s{sSTo}, s{sT3}, s{sGB}
    s_lshl_b32 s{sSTg}, s{sW}, 11
    s_add_u32 s{sSTg}, s{sSTg}, s{sGB}
    s_lshl2_add_u32 s{sT1}, s{sT1}, s{sT2}
    s_lshl_b32 s{sT1}, s{sT1}, 6
    s_add_u32 s{sT1}, s{sT1}, {L_STAT + 128}
    v_lshl_add_u32 v{vT3}, v{vT1}, 2, s{sT1}
    v_accvgpr_write_b32 a{cRSD}, v{vT3}
    s_mul_i32 s{sT0}, s{sW}, {2*57344}
    s_add_u32 s{sT0}, s{sT0}, s{sGB}
    s_lshr_b32 s{sT3}, s{sC}, 2
    s_add_u32 s{sT0}, s{sT0}, {G_H}
    s_lshl_b32 s{sH1}, s{sC}, 11
    s_add_u32 s{sH1}, s{sH1}, {24*1024}
    s_add_u32 s{sH1}, s{sH1}, s{sT0}
    s_add_u32 s{sH1b}, s{sH1}, 57344
    s_mul_i32 s{sT4}, s{sT3}, 6144
    s_add_u32 s{sT0}, s{sT0}, s{sT4}
    s_and_b32 s{sT4}, s{sC}, 3
    s_mul_i32 s{sH2}, s{sT4}, 3
    s_add_u32 s{sH2}, s{sH2}, 1
    s_lshr_b32 s{sH2}, s{sH2}, 1
    s_lshl_b32 s{sH2}, s{sH2}, 10
    s_add_u32 s{sH2}, s{sH2}, s{sT0}
    s_add_u32 s{sH2b}, s{sH2}, 57344
    s_lshr_b32 s{sH3}, s{sT4}, 1
    s_mul_i32 s{sH3}, s{sH3}, 3072
    s_and_b32 s{sH3b}, s{sT4}, 1
    s_lshl3_add_u32 s{sH3}, s{sH3b}, s{sH3}
    s_add_u32 s{sH3}, s{sH3}, 1024
    s_add_u32 s{sH3}, s{sH3}, s{sT0}
    s_add_u32 s{sH3b}, s{sH3}, 57344
    s_lshr_b32 s{sT0}, s{sW}, 1
    s_lshl2_add_u32 s{sT0}, s{sT0}, s{sT3}
    s_lshl_b32 s{sT0}, s{sT0}, 7
    s_lshl1_add_u32 s{sT2}, s{sT4}, s{sT2}
    s_lshl2_add_u32 s{sT0}, s{sT2}, s{sT0}
    s_add_u32 s{sFHo}, s{sT0}, s{sGB}
    """)
    k(f"""
    s_mul_i32 s{sT0}, s{sC}, {KVX_C}
    s_add_u32 s{sT0}, s{sT0}, {WS_KVX}
    s_lshl_b32 s{sT1}, s{sW}, 13
    s_add_u32 s{sKVC}, s{sT0}, s{sT1}
    s_lshl_b32 s{sT2}, s{sW}, 14
    s_lshl_b32 s{sT3}, s{sG}, 10
    s_lshl_b32 s{sT4}, s{sG}, 7
    s_cmp_lt_u32 s{sW}, 2
    s_cselect_b32 s{sT3}, s{sT3}, s{sT4}
    s_cselect_b32 s{sKM}, -1, 0x30003
    s_cselect_b32 s{sKM+1}, -1, 0x30003
    s_cselect_b64 vcc, -1, 0
    s_add_u32 s{sKVP}, s{sT0}, s{sT2}
    s_add_u32 s{sKVP}, s{sKVP}, s{sT3}
    s_cmp_eq_u32 s{sW}, 3
    s_cselect_b32 s{sKVP}, {OOB}, s{sKVP}
    v_lshlrev_b32 v{vT3}, 4, v{vT0}
    v_lshl_add_u32 v{vT3}, v{vT1}, 6, v{vT3}
    v_cndmask_b32 v{vT3}, v{vT3}, v{vL16}, vcc
    v_accvgpr_write_b32 a{cKVS}, v{vT3}
    v_lshlrev_b32 v{vT3}, 2, v{vL16}
    v_and_b32 v{vT3}, 0xf00, v{vT3}
    v_lshrrev_b32 v{vT3}, 1, v{vT3}
    v_and_b32 v{vWB}, 48, v{vL16}
    s_lshr_b32 s{sT2}, s{sW}, 1
    s_lshl_b32 s{sT2}, s{sT2}, 6
    s_add_u32 s{sT2}, s{sT2}, 32768
    s_sub_u32 s{sT2}, s{sT2}, s{sT1}
    v_add3_u32 v{vT3}, v{vT3}, v{vWB}, s{sT2}
    v_accvgpr_write_b32 a{cZL}, v{vT3}
    v_and_b32 v{vWB+5}, 1, v{vLANE}
    v_cndmask_b32 v{vWB+5}, v{vWB+5}, 0, vcc
    s_min_u32 s{sT5}, s{sW}, 2
    """)
    W = vWB
    k(f"""
    v_lshl_add_u32 v{XR}, v{vT1}, 8, v{vT2}
    v_add_u32 v{XR}, s{sL0}, v{XR}
    v_xor_b32 v{XR+1}, 64, v{XR}
    v_xor_b32 v{XR+2}, 0x80, v{XR}
    v_xor_b32 v{XR+3}, 0xc0, v{XR}
    v_and_b32 v{vT3}, 3, v{vLANE}
    v_lshlrev_b32 v{vT3}, 3, v{vT3}
    v_lshl_add_u32 v{vTR0}, v{vP}, 6, v{vT3}
    v_lshl_add_u32 v{vQ0}, v{vP}, 7, v{vT3}
    v_and_b32 v{vT3}, 1, v{vT0}
    v_lshlrev_b32 v{vT3}, 5, v{vT3}
    v_add_u32 v{vTR0}, v{vTR0}, v{vT3}
    v_xor_b32 v{vTR1}, 32, v{vTR0}
    v_bfe_u32 v{vT3}, v{vLANE}, 3, 2
    v_lshl_add_u32 v{vQ0}, v{vT3}, 5, v{vQ0}
    v_xor_b32 v{vQ1}, 32, v{vQ0}
    v_xor_b32 v{vQ2}, 64, v{vQ0}
    v_xor_b32 v{vQ3}, 0x60, v{vQ0}
    v_lshlrev_b32 v{W}, 2, v{vT1}
    v_accvgpr_write_b32 a{cP16}, v{W}
    v_mov_b32 v{W+1}, {BF1}
    v_accvgpr_write_b32 a{aONES}, v{W+1}
    v_accvgpr_write_b32 a{aONES+1}, v{W+1}
    v_accvgpr_write_b32 a{aONES+2}, v{W+1}
    v_accvgpr_write_b32 a{aONES+3}, v{W+1}
    v_add_u32 v{W+1}, {L_CS}, v{W}
    v_accvgpr_write_b32 a{cCSA}, v{W+1}
    v_and_b32 v{W+2}, 48, v{vLANE}
    v_add_u32 v{W+1}, {L_CS}, v{W+2}
    v_accvgpr_write_b32 a{cCSB}, v{W+1}
    v_lshlrev_b32 v{W+1}, 2, v{vT0}
    v_lshl_add_u32 v{W+1}, v{vT1}, 4, v{W+1}
    v_accvgpr_write_b32 a{cSTO}, v{W+1}
    s_lshl_b32 s{sT0}, s{sW}, 8
    s_add_u32 s{sT0}, s{sT0}, {L_STAT}
    v_add_u32 v{W+1}, s{sT0}, v{W}
    v_accvgpr_write_b32 a{cSTA}, v{W+1}
    v_and_b32 v{W+3}, 32, v{vLANE}
    v_lshl_add_u32 v{W+1}, v{W+3}, 1, v{W+1}
    v_accvgpr_write_b32 a{cSTW}, v{W+1}
    v_add_u32 v{W+1}, s{sT0}, v{W+2}
    v_accvgpr_write_b32 a{cSTB}, v{W+1}
    s_lshl_b32 s{sT0}, s{sW}, 10
    v_add_u32 v{W+1}, s{sT0}, v{vL16}
    v_accvgpr_write_b32 a{cKW}, v{W+1}
    v_add_u32 v{W+3}, {R2 + 8192}, v{W+1}
    v_accvgpr_write_b32 a{cKW1}, v{W+3}
    s_lshl_b32 s{sT0}, s{sT5}, 14
    v_add_u32 v{W+1}, s{sT0}, v{vL16}
    v_lshl_add_u32 v{W+1}, v{W+5}, 12, v{W+1}
    v_accvgpr_write_b32 a{cKR}, v{W+1}
    s_lshl_b32 s{sT0}, s{sT5}, 14
    s_add_u32 s{sT0}, s{sT0}, {R2 + 8192}
    v_add_u32 v{W+1}, s{sT0}, v{vL16}
    v_lshl_add_u32 v{W+1}, v{W+5}, 14, v{W+1}
    v_accvgpr_write_b32 a{cKR1}, v{W+1}
    v_add_u32 v{W+1}, {L_XB}, v{vL16}
    v_accvgpr_write_b32 a{cXR}, v{W+1}
    v_lshlrev_b32 v{W+3}, 3, v{vT0}
    v_add_u32 v{W+3}, {L_ZB}, v{W+3}
    v_accvgpr_write_b32 a{cZR}, v{W+3}
    """)
    k(f"""
    s_lshl_b32 s{sT0}, s{sW}, 10
    v_add_u32 v{W+1}, s{sT0}, v{W+1}
    v_accvgpr_write_b32 a{cXW}, v{W+1}
    v_and_b32 v{W+3}, 1, v{vT0}
    v_lshrrev_b32 v{W+4}, 1, v{vT0}
    v_lshl_add_u32 v{W+3}, v{W+3}, 1, v{W+4}
    v_and_b32 v{W+4}, 3, v{vLANE}
    v_lshl_add_u32 v{W+3}, v{W+4}, 2, v{W+3}
    s_lshr_b32 s{sT0}, s{sW}, 1
    s_lshl_b32 s{sT0}, s{sT0}, 5
    s_add_u32 s{sT0}, s{sT0}, {L_ZB}
    v_lshl_add_u32 v{W+3}, v{W+3}, 1, s{sT0}
    v_accvgpr_write_b32 a{cZW}, v{W+3}
    """)
    for j in range(4):
        k(f"s_add_u32 s{sT0}, s{sW}, {j}")
        k(f"s_and_b32 s{sT0}, s{sT0}, 3")
        k(f"s_lshl_b32 s{sT0}, s{sT0}, 13")
        k(f"s_add_u32 s{sT0}, s{sT0}, {L_RED + (4096 if j == 2 else 0)}")
        k(f"v_add_u32 v{W+1}, s{sT0}, v{vL16}")
        k(f"v_accvgpr_write_b32 a{cRD0+j}, v{W+1}")
    k(f"""
    s_lshl2_add_u32 s{sT0}, s{sDH}, s{sW}
    s_lshl3_add_u32 s{sT0}, s{sG}, s{sT0}
    s_lshl_b32 s{sT0}, s{sT0}, 14
    s_lshl_b32 s{sT1}, s{sCT}, 7
    s_add_u32 s{sT0}, s{sT0}, s{sT1}
    v_lshl_add_u32 v{W+1}, v{vT1}, 10, s{sT0}
    v_and_b32 v{W+3}, 1, v{vT0}
    v_lshl_add_u32 v{W+1}, v{W+3}, 5, v{W+1}
    v_lshrrev_b32 v{W+3}, 1, v{vT0}
    v_lshl_add_u32 v{W+1}, v{W+3}, 4, v{W+1}
    v_accvgpr_write_b32 a{cOUT}, v{W+1}
    """)

    def xread(q):
        k.vm_wait(("xs", q))
        for ksl in range(4):
            for rb in range(2):
                k.lds(f"ds_read_b128 {vr(act(4*q+ksl, rb),4)}, v{XR+ksl} offset:{(q%2)*8192 + rb*4096}", ("xr", q))

    SUM0, SQ0, SUM1, SQ1 = vACC + 56, vACC + 57, vACC + 58, vACC + 59
    SUMA, SQA = vACC + 48, vACC + 56
    ONES = vPQ + 4
    NM_A, RS_A, RL_A = vACC + 60, vACC + 62, vACC + 56
    NM_B, RS_B, RL_B = vACC + 32, vACC + 40, vACC + 48
    STG = vACC + 48

    def own_stats():
        a, b, c, d = OWN + 8, OWN + 9, OWN + 10, OWN + 11
        k(f"v_mov_b32 v{OWN+12}, {BF1}")
        k.vm_wait("own")
        for j in range(4):
            r0, r1 = OWN + j, OWN + 4 + j
            k(f"v_dot2_f32_bf16 v{a}, v{OWN+12}, v{r0}, {'0' if j == 0 else f'v{a}'}")
            k(f"v_dot2_f32_bf16 v{c}, v{OWN+12}, v{r1}, {'0' if j == 0 else f'v{c}'}")
            k(f"v_dot2_f32_bf16 v{b}, v{r0}, v{r0}, {'0' if j == 0 else f'v{b}'}")
            k(f"v_dot2_f32_bf16 v{d}, v{r1}, v{r1}, {'0' if j == 0 else f'v{d}'}")
        k(f"""
        s_waitcnt lgkmcnt(0)
        s_mul_i32 s{sTAG}, s{sEP}, 0x9E3779B1
        s_add_u32 s{sTAG}, s{sTAG}, 0x7F4A7C15
        s_add_u32 s{sT8}, s{sEP}, 1
        s_and_b32 s{sT8}, s{sT8}, 0xff
        s_mov_b32 s{sS8}, s{sEP}
        v_permlane32_swap_b32 v{a}, v{c}
        v_permlane32_swap_b32 v{b}, v{d}
        v_add_f32 v{a}, v{a}, v{c}
        v_add_f32 v{b}, v{b}, v{d}
        v_mov_b32 v{c}, v{a}
        v_mov_b32 v{d}, v{b}
        s_nop 1
        v_permlane16_swap_b32 v{a}, v{c}
        v_permlane16_swap_b32 v{b}, v{d}
        v_add_f32 v{a}, v{a}, v{c}
        v_add_f32 v{b}, v{b}, v{d}
        """)
        for sh in (8, 4, 2, 1):
            k("s_nop 0")
            k(f"v_add_f32_dpp v{a}, v{a}, v{a} row_ror:{sh} row_mask:0xf bank_mask:0xf")
            k(f"v_add_f32_dpp v{b}, v{b}, v{b} row_ror:{sh} row_mask:0xf bank_mask:0xf")
        k(f"""
        v_mul_f32 v{a}, 0xbb000000, v{a}
        v_mul_f32 v{b}, 0x3b000000, v{b}
        v_fma_f32 v{b}, -v{a}, v{a}, v{b}
        v_max_f32 v{b}, 0, v{b}
        v_add_f32 v{b}, 0x3727c5ac, v{b}
        v_rsq_f32 v{b}, v{b}
        v_mov_b32 v{c}, s{sTAG}
        v_mov_b32 v{d}, s{sXCC}
        v_lshrrev_b32 v{vT3}, 1, v{vLANE}
        s_lshl4_add_u32 s{sT2}, s{sW}, s{sC}
        s_lshl_b32 s{sT2}, s{sT2}, 7
        s_add_u32 s{sT2}, s{sT2}, s{sGB}
        s_add_u32 s{sT2}, s{sT2}, {G_ST0}
        s_mov_b32 exec_lo, 1
        s_mov_b32 exec_hi, 1
        """)
        k.vmem(f"buffer_store_dwordx4 {vr(a,4)}, v{vT3}, {srd(S_WS)}, s{sT2} offen sc1", "ownst")
        k("s_mov_b64 exec, -1")

    S0 = vACC + 52

    def st0_issue():
        with k.atomic():
            k(f"v_and_b32 v{vT0}, 30, v{vLANE}")
            k(f"v_lshlrev_b32 v{vT0}, 6, v{vT0}")
            k(f"v_and_b32 v{vT1}, 16, v{vL16}")
            k(f"v_add_u32 v{vT0}, v{vT0}, v{vT1}")
            k(f"s_add_u32 s{sT4}, s{sSTg}, {G_ST0}")
            k.vmem(f"buffer_load_dwordx4 {vr(S0,4)}, v{vT0}, {srd(S_WS)}, s{sT4} offen sc1", "st0")

    def st0_use():
        lp, ok = k.label("L_s0"), k.label("L_s0ok")
        with k.atomic():
            k.vm_wait("st0")
            k(f"{lp}:")
            k(f"v_cmp_ne_u32 vcc, s{sTAG}, v{S0+2}")
            k(f"s_cbranch_vccz {ok}")
            k(f"buffer_load_dwordx4 {vr(S0,4)}, v{vT0}, {srd(S_WS)}, s{sT4} offen sc1")
            k("s_waitcnt vmcnt(0)")
            k(f"s_sub_u32 s{sBUD}, s{sBUD}, 1")
            k(f"s_cbranch_scc0 {lp}")
            k(f"s_mov_b32 s{sBUD}, 0")
            k(f"{ok}:")
            k(f"v_cmp_ne_u32 vcc, s{sXCC}, v{S0+3}")
            k("s_nop 4")
            k(f"s_or_b32 s{sSLOW}, vcc_lo, {1 if o.get('forceslow') else 0}")
        k.get(vT0, cSTA)
        k(f"v_and_b32 v{vT1}, 16, v{vLANE}")
        k(f"v_lshl_add_u32 v{vT1}, v{vT1}, 2, v{vT0}")
        k.lds(f"ds_write2_b32 v{vT1}, v{S0}, v{S0+1} offset0:0 offset1:32")
        k.lds(f"ds_read2_b32 {vr(NM_A,2)}, v{vT0} offset0:0 offset1:16", "sta")
        k.lds(f"ds_read2_b32 {vr(RS_A,2)}, v{vT0} offset0:32 offset1:48", "sta")

    def stats_finalize(need_rs):
        k.get(vT1, cSTW)
        k.get(vT0, cSTA)
        k(f"""
        v_permlane32_swap_b32 v{SUM0}, v{SUM1}
        v_permlane32_swap_b32 v{SQ0}, v{SQ1}
        v_add_f32 v{SUM0}, v{SUM0}, v{SUM1}
        v_add_f32 v{SQ0}, v{SQ0}, v{SQ1}
        v_mov_b32 v{SUM1}, v{SUM0}
        v_mov_b32 v{SQ1}, v{SQ0}
        s_nop 0
        v_permlane16_swap_b32 v{SUM0}, v{SUM1}
        v_permlane16_swap_b32 v{SQ0}, v{SQ1}
        v_add_f32 v{SUM0}, v{SUM0}, v{SUM1}
        v_add_f32 v{SQ0}, v{SQ0}, v{SQ1}
        v_mul_f32 v{SUM0}, 0xbb000000, v{SUM0}
        v_mul_f32 v{SQ0}, 0x3b000000, v{SQ0}
        v_fma_f32 v{SQ0}, -v{SUM0}, v{SUM0}, v{SQ0}
        v_max_f32 v{SQ0}, 0, v{SQ0}
        v_add_f32 v{SQ0}, 0x3727c5ac, v{SQ0}
        v_rsq_f32 v{SQ0}, v{SQ0}
        s_nop 0
        """)
        k.lds(f"ds_write2_b32 v{vT1}, v{SUM0}, v{SQ0} offset0:0 offset1:32")
        k.lds(f"ds_read2_b32 {vr(NM_A,2)}, v{vT0} offset0:0 offset1:16", "sta")
        if need_rs:
            k.lds(f"ds_read2_b32 {vr(RS_A,2)}, v{vT0} offset0:32 offset1:48", "sta")

    def stats_b():
        k.get(vT1, cSTB)
        for rb in range(2):
            k.lds(f"ds_read_b128 {vr(NM_B+4*rb,4)}, v{vT1} offset:{64*rb}", "sta")
            k.lds(f"ds_read_b128 {vr(RS_B+4*rb,4)}, v{vT1} offset:{128+64*rb}", "sta")

    def stats_scale():
        k.ds_wait("sta")
        for j in range(8):
            k(f"v_mul_f32 v{RL_B+j}, 0x3fb8aa3b, v{RS_B+j}")
        for j in range(2):
            k(f"v_mul_f32 v{RL_A+j}, 0x3fb8aa3b, v{RS_A+j}")

    def set_ones(r):
        for j in range(4):
            k(f"v_mov_b32 v{r+j}, {BF1}")

    def cs_put(first, sblk):
        k.get(vT0, cCSA)
        k(f"s_lshl_b32 s{sT5}, s{sblk}, 6")
        k(f"v_add_u32 v{vT0}, s{sT5}, v{vT0}")
        k.lds(f"ds_write_b32 v{vT0}, a{aCS} offset:{first*64}")

    def phi_block(acc, nm, cs, rl, rs, dst, tmp, lay):
        s1, s2, s3, s4, s5 = [], [], [], [], []
        for p in range(2):
            a2 = vr(acc + 2*p, 2)
            t2 = vr(tmp + 2*p, 2)
            if lay == "b":
                c2, m = bcast(cs, 1, 3)
                s1.append(f"v_pk_fma_f32 {a2}, {vr(nm+2*p,2)}, {c2}, {a2}{m}")
                s2.append(f"v_pk_mul_f32 {t2}, {a2}, {vr(rl+2*p,2)}")
                s4.append(f"v_pk_fma_f32 {a2}, {a2}, {vr(rs+2*p,2)}, {t2}")
            else:
                c2, m = bcast(nm, 1, 3)
                s1.append(f"v_pk_fma_f32 {a2}, {vr(cs+2*p,2)}, {c2}, {a2}{m}")
                c2, m = bcast(rl, 1, 2)
                s2.append(f"v_pk_mul_f32 {t2}, {a2}, {c2}{m}")
                c2, m = bcast(rs, 1, 3)
                s4.append(f"v_pk_fma_f32 {a2}, {a2}, {c2}, {t2}{m}")
            for j in range(2):
                s3.append(f"v_exp_f32 v{tmp+2*p+j}, v{tmp+2*p+j} clamp")
            s5.append(f"v_pk_add_f32 {a2}, {a2}, s[{sEPS}:{sEPS+1}]")
        for s in s1 + s2 + s3:
            k(s)
        for j in range(4):
            k(f"v_max_f32 v{acc+j}, 0, v{acc+j}")
        for s in s4 + s5:
            k(s)
        for p in range(2):
            k(f"v_cvt_pk_bf16_f32 v{dst+p}, v{acc+2*p}, v{acc+2*p+1}")

    def ring(ks, rb):
        return vACT + 8 * (ks % 6) + 4 * rb
    QA, vPARK = vACT + 48, vACT + 64

    def act_loads(bufoff, act=act):
        for ks in range(16):
            for rb in range(2):
                with k.atomic():
                    if ks % 4 == 0:
                        k(f"s_add_u32 s{sT2+rb}, s{sACT+rb}, {bufoff + ks*1024}")
                    k.vmem(f"buffer_load_dwordx4 {vr(act(ks,rb),4)}, v{vL16}, {srd(S_WS)}, s{sT2+rb} offen offset:{(ks%4)*1024} sc1",
                           ("act", ks, rb))

    def stat_loads(stoff, STG=STG):
        k(f"s_add_u32 s{sT4}, s{sSTg}, {stoff}")
        for j in range(2):
            k.vmem(f"buffer_load_dwordx4 {vr(STG+4*j,4)}, v{vL16}, {srd(S_WS)}, s{sT4} offen offset:{j*1024} sc1", "stg")

    def stat_sum(STG=STG):
        lp, ok = k.label("L_sg"), k.label("L_sgok")
        k.vm_wait("stg")

        def chk():
            k(f"v_and_b32 v{SUM0}, v{STG}, v{STG+1}")
            k(f"v_or3_b32 v{SUM0+1}, v{STG}, v{STG+1}, v{STG+2}")
            k(f"v_and_b32 v{SUM0+2}, v{STG+2}, v{STG+3}")
            k(f"v_or3_b32 v{SUM0+1}, v{SUM0+1}, v{STG+3}, v{STG+4}")
            k(f"v_and_b32 v{SUM0}, v{SUM0}, v{STG+4}")
            k(f"v_or3_b32 v{SUM0+1}, v{SUM0+1}, v{STG+5}, v{STG+6}")
            k(f"v_and_b32 v{SUM0+2}, v{SUM0+2}, v{STG+5}")
            k(f"v_and_b32 v{SUM0}, v{SUM0}, v{STG+6}")
            k(f"v_and_b32 v{SUM0+2}, v{SUM0+2}, v{STG+7}")
            k(f"v_or_b32 v{SUM0+1}, v{SUM0+1}, v{STG+7}")
            k(f"v_and_b32 v{SUM0}, v{SUM0}, v{SUM0+2}")
            k(f"v_xor_b32 v{SUM0+1}, s{sS8}, v{SUM0+1}")
            k(f"v_xor_b32 v{SUM0}, s{sS8}, v{SUM0}")
            k(f"v_or_b32 v{SUM0}, v{SUM0}, v{SUM0+1}")
            k(f"v_and_b32 v{SUM0}, 0xff, v{SUM0}")
        chk()
        with k.atomic():
            k(f"v_cmp_ne_u32 vcc, 0, v{SUM0}")
            k(f"s_cbranch_vccnz {lp}")
            k(f"{ok}:")
        sv, k._rec = k._rec, None
        n0 = len(k.lines)
        k(f"{lp}:")
        for j in range(2):
            k(f"buffer_load_dwordx4 {vr(STG+4*j,4)}, v{vL16}, {srd(S_WS)}, s{sT4} offen offset:{j*1024} sc1")
        k("s_waitcnt vmcnt(0)")
        chk()
        k(f"v_cmp_ne_u32 vcc, 0, v{SUM0}")
        k(f"s_cbranch_vccz {ok}")
        k(f"s_sub_u32 s{sBUD}, s{sBUD}, 1")
        k(f"s_cbranch_scc0 {lp}")
        k(f"s_mov_b32 s{sBUD}, 0")
        k(f"s_branch {ok}")
        k.tailcode += k.lines[n0:]
        del k.lines[n0:]
        k._rec = sv
        for j in range(4):
            k(f"v_add_f32 v{SUM0+j}, v{STG+j}, v{STG+4+j}")

    def mf2(acc, ks, sw, wait, first=None, act=act):
        return [(acc + 4 * rb, act(ks, rb), sw, (ks == 0) if first is None else first,
                 (("act", ks, 1) if ks else ("act", ks, rb)) if wait else None) for rb in range(2)]

    def wo_raw():
        with k.atomic():
            quad_lane(1024)
            k(f"s_lshl_b32 s{sD0}, s{sW}, 17")
            k(f"s_lshl_b32 s{sD1}, s{sCT}, 7")
            k(f"s_add_u32 s{sD0}, s{sD0}, s{sD1}")
            k(f"s_lshl_b32 s{sL0}, s{sW}, 14")
        for j in range(16):
            k.dma(S_WO, vDM, sD0, j * 8 * 1024, sL0, R0 + j * 1024, "wo")

    def w1c1_raw():
        with k.atomic():
            quad_lane(3584, tmp=vACT + 127)
            k(f"s_lshr_b32 s{sD0}, s{sC}, 2")
            k(f"s_mul_i32 s{sD0}, s{sD0}, 896")
            k(f"s_and_b32 s{sD1}, s{sC}, 3")
            k(f"s_lshl_b32 s{sD1}, s{sD1}, 7")
            k(f"s_add_u32 s{sD0}, s{sD0}, s{sD1}")
            k(f"s_mul_i32 s{sD1}, s{sW}, {64*3584}")
            k(f"s_add_u32 s{sD0}, s{sD0}, s{sD1}")
            k(f"s_lshl_b32 s{sL0}, s{sW}, 13")
        for half in range(2):
            for j in range(8):
                k.dma(S_W1, vDM, sD0, (half * 256 + j * 8) * 3584, sL0, R1 + half * 32768 + j * 1024, "w1a")

    def lin_dma(src, dst, n, tag, shared=False):
        for j in range(n):
            with k.atomic():
                if j == 0:
                    k(f"s_mul_i32 s{sL0}, s{sW}, {n*1024}")
                    k(f"s_add_u32 s{sD0}, s{sL0}, s{sPKB}")
                    if shared:
                        k(f"s_mul_i32 s{sD1}, s{sDH}, {8*PK_SZ}")
                        k(f"s_sub_u32 s{sD0}, s{sD0}, s{sD1}")
                if j % 4 == 0:
                    k(f"s_add_u32 m0, s{sL0}, {dst + j*1024}")
                    k(f"s_add_u32 s{sD1}, s{sD0}, {src + j*1024}")
                k.vmem(f"buffer_load_dwordx4 v{vL16}, {srd(S_WS)}, s{sD1} offen offset:{(j%4)*1024} sc1 lds", tag)

    def publish_x(bufoff, stoff, floff, pay_sc1):
        k(f"s_add_u32 s{sT1}, s{sTILE}, {bufoff}")
        k.stores([f"buffer_store_dwordx4 {vr(vRES+4*s,4)}, v{vL16}, {srd(S_WS)}, s{sT1} offen offset:{s*1024}" for s in range(2)], pay_sc1)
        a, b, c, d = vT0, vT1, vT2, vT3
        for j in range(4):
            r0, r1 = vRES + j, vRES + 4 + j
            if j == 0:
                k(f"v_mov_b32 v{vWB+9}, {BF1}")
                k(f"v_dot2_f32_bf16 v{b}, v{r0}, v{r0}, 0")
                k(f"v_dot2_f32_bf16 v{d}, v{r1}, v{r1}, 0")
                k(f"v_dot2_f32_bf16 v{a}, v{vWB+9}, v{r0}, 0")
                k(f"v_dot2_f32_bf16 v{c}, v{vWB+9}, v{r1}, 0")
            else:
                k(f"v_dot2_f32_bf16 v{b}, v{r0}, v{r0}, v{b}")
                k(f"v_dot2_f32_bf16 v{d}, v{r1}, v{r1}, v{d}")
                k(f"v_dot2_f32_bf16 v{a}, v{vWB+9}, v{r0}, v{a}")
                k(f"v_dot2_f32_bf16 v{c}, v{vWB+9}, v{r1}, v{c}")
        k.get(vWB + 8, cSTO)
        k(f"""
        s_add_u32 s{sT3}, s{sSTo}, {stoff}
        v_add_f32 v{b}, v{b}, v{d}
        v_add_f32 v{a}, v{a}, v{c}
        s_nop 1
        v_permlane16_swap_b32 v{a}, v{b}
        v_add_f32 v{a}, v{a}, v{b}
        v_mov_b32 v{b}, v{a}
        s_nop 1
        v_permlane32_swap_b32 v{a}, v{b}
        v_add_f32 v{c}, v{a}, v{b}
        s_add_u32 s{sS8}, s{sS8}, 1
        s_and_b32 s{sS8}, s{sS8}, 0xff
        v_and_b32 v{c}, 0xffffff00, v{c}
        v_or_b32 v{c}, s{sS8}, v{c}
        s_mov_b32 exec_hi, 0
        """)
        k.stores([f"buffer_store_dword v{c}, v{vWB+8}, {srd(S_WS)}, s{sT3} offen"], False, "sts" if o.get("sto", 1) else "st")
        k("s_mov_b64 exec, -1")
        k.poll_prep(15)

    def unpack_res(dst):
        for f in range(4):
            for p in range(2):
                r = vRES + 2*f + p
                k(f"v_lshlrev_b32 v{dst+4*f+2*p}, 16, v{r}")
                k(f"v_and_b32 v{dst+4*f+2*p+1}, 0xffff0000, v{r}")

    def misc_l1():
        k(f"""
        s_add_u32 s{sT2}, s{sTAG}, s{sXCC}
        s_add_u32 s{sT2}, s{sT2}, 2
        v_mov_b32 v{vT1}, s{sT2}
        s_lshl4_add_u32 s{sT2}, s{sG}, s{sC}
        s_lshl_b32 s{sT2}, s{sT2}, 7
        s_add_u32 s{sT2}, s{sT2}, {WS_XID}
        """)
        with k.atomic():
            k(f"s_cmp_lg_u32 s{sW}, 0")
            k(f"s_cselect_b32 s{sT2}, {OOB}, s{sT2}")
            k("s_mov_b64 exec, 1")
            k.vmem(f"buffer_store_dword v{vT1}, v{vL16}, {srd(S_WS)}, s{sT2} offen sc1", "xid")
            k("s_mov_b64 exec, -1")

    def res_load():
        k.get(vT0, cOUT)
        for s_ in range(2):
            k.vmem(f"buffer_load_dwordx4 {vr(vRES+4*s_,4)}, v{vT0}, {srd(S_X)}, 0 offen offset:{64*s_}", "res")

    def touch(kind, vSP=vSP):
        with k.atomic():
            k(f"s_lshl2_add_u32 s{sD3}, s{sC}, s{sW}")
            sD2 = sD3
            if kind == "h":
                k(f"s_mul_i32 s{sD2}, s{sD2}, 7168")
                k(f"s_add_u32 s{sD2}, s{sD2}, s{sGB}")
                k(f"s_add_u32 s{sD2}, s{sD2}, {G_H}")
                k(f"v_lshlrev_b32 v{vSP}, 7, v{vLANE}")
                k("s_mov_b32 exec_hi, 0xffffff")
                k.vmem(f"buffer_load_dword a{aDUM}, v{vSP}, {srd(S_WS)}, s{sD2} offen sc1", "touch")
                k("s_mov_b32 exec_hi, -1")
            else:
                k(f"v_lshlrev_b32 v{vSP}, 7, v{vLANE}")
                k(f"s_lshl_b32 s{sT5}, s{sD2}, 11")
                k(f"s_add_u32 s{sT5}, s{sT5}, s{sGB}")
                k(f"s_add_u32 s{sT5}, s{sT5}, {G_X1}")
                k("s_mov_b64 exec, 0xffff")
                k.vmem(f"buffer_load_dword a{aDUM}, v{vSP}, {srd(S_WS)}, s{sT5} offen sc1", "touch")
                k(f"s_lshl_b32 s{sD2}, s{sD2}, 7")
                k(f"s_add_u32 s{sD2}, s{sD2}, s{sGB}")
                k("s_mov_b64 exec, 1")
                k(f"s_add_u32 s{sD2}, s{sD2}, {G_ST1}")
                k.vmem(f"buffer_load_dword a{aDUM}, v{vSP}, {srd(S_WS)}, s{sD2} offen sc1", "touch")
                k("s_mov_b64 exec, -1")

    def touch_slots(first, n, va=vSP):
        with k.atomic():
            k(f"s_lshl2_add_u32 s{sD3}, s{sC}, s{sW}")
            k(f"v_lshlrev_b32 v{va}, 7, v{vLANE}")
            k(f"s_lshr_b32 s{sT5}, s{sD3}, 3")
            k(f"s_mul_i32 s{sT5}, s{sT5}, 57344")
            k(f"s_and_b32 s{sD3}, s{sD3}, 7")
            k(f"s_mul_i32 s{sD3}, s{sD3}, {n*128}")
            k(f"s_add_u32 s{sT5}, s{sT5}, s{sD3}")
            k(f"s_add_u32 s{sT5}, s{sT5}, s{sGB}")
            k(f"s_add_u32 s{sT5}, s{sT5}, {G_H + first*1024}")
            k(f"s_mov_b32 exec_lo, {(1 << min(n, 32)) - 1}")
            k(f"s_mov_b32 exec_hi, {(1 << max(n - 32, 0)) - 1}")
            k.vmem(f"buffer_load_dword a{aDUM}, v{va}, {srd(S_WS)}, s{sT5} offen sc1", "touch")
            k("s_mov_b64 exec, -1")

    def touches(code, va=vSP):
        if code & 1:
            touch("x", va)
        r = {0: None, 1: (0, 16), 2: (16, 8), 3: (0, 24), 4: (24, 32), 6: (16, 40), 7: (0, 56)}[code >> 1]
        if r:
            touch_slots(r[0], r[1], va)

    def packN_issue():
        with k.atomic():
            quad_lane(1024)
            k(f"""
            s_movk_i32 s{sD2}, 8192
            s_lshl_b32 s{sD0}, s{sG}, 15
            s_lshl_b32 s{sD1}, s{sCT}, 7
            s_add_u32 s{sD0}, s{sD0}, s{sD1}
            s_lshl_b32 s{sPDA}, s{sG}, 12
            s_add_u32 s{sPDA}, s{sPDA}, s{sPKB}
            s_add_u32 s{sPDA}, s{sPDA}, {PK_WO}
            s_lshl2_add_u32 s{sD1}, s{sDH}, s{sW}
            s_cmp_lg_u32 s{sD1}, 3
            s_cbranch_scc1 L_nskip
            """)
            for j in range(4):
                dma_raw(S_WO, j * 1024, j == 0)
            k("L_nskip:")

    def packN_finish(T):
        k(f"s_lshl2_add_u32 s{sD1}, s{sDH}, s{sW}")
        k(f"s_cmp_lg_u32 s{sD1}, 3")
        k("s_cbranch_scc1 L_nfskip")
        for f in range(4):
            k(f"v_add_u32 v{T+16+f}, {L_XST + 3*16384}, v{vQ0+f}")
        for f in range(4):
            for hh in range(2):
                k(f"ds_read_b64_tr_b16 {vr(T+4*f+2*hh,2)}, v{T+16+f} offset:{hh*2048}")
        k("s_waitcnt lgkmcnt(0)")
        for f in range(4):
            k(f"buffer_store_dwordx4 {vr(T+4*f,4)}, v{vL16}, {srd(S_WS)}, s{sPDA} offen offset:{f*1024} sc1")
        k("L_nfskip:")

    def pack_finish(T, base, shift, quad_if_3, tag="pk", sPDA=sPDA):
        lb, le = k.label("L_qb"), k.label("L_qe")
        k(f"s_lshl_b32 s{sT5}, s{sW}, {shift}")
        k(f"s_add_u32 s{sT5}, s{sT5}, {base}")
        k.vm_wait(tag)
        k.ds_all()
        k(f"s_cmp_eq_u32 s{sW}, 3")
        k(f"s_cbranch_scc{0 if quad_if_3 else 1} {lb}")
        for f in range(4):
            k(f"v_add_u32 v{T+16+f}, s{sT5}, v{vQ0+f}")
        for f in range(4):
            for hh in range(2):
                k(f"ds_read_b64_tr_b16 {vr(T+4*f+2*hh,2)}, v{T+16+f} offset:{hh*2048}")
        k("s_waitcnt lgkmcnt(0)")
        for f in range(4):
            k(f"buffer_store_dwordx4 {vr(T+4*f,4)}, v{vL16}, {srd(S_WS)}, s{sPDA} offen offset:{f*1024} sc1")
        k(f"s_branch {le}")
        k(f"{lb}:")
        k(f"v_add_u32 v{T+16}, s{sT5}, v{vTR0}")
        k(f"v_add_u32 v{T+17}, s{sT5}, v{vTR1}")
        k(f"v_lshl_add_u32 v{T+18}, v{vLANE}, 3, s{sT5}")
        for f in range(2):
            for hh in range(2):
                k(f"ds_read_b64_tr_b16 {vr(T+4*f+2*hh,2)}, v{T+16+f} offset:{hh*1024}")
        nf = 2 if quad_if_3 else 3
        if nf == 3:
            for hh in range(2):
                k(f"ds_read_b64_tr_b16 {vr(T+8+2*hh,2)}, v{T+18} offset:{2048+hh*512}")
        k("s_waitcnt lgkmcnt(0)")
        for f in range(nf):
            k(f"buffer_store_dwordx4 {vr(T+4*f,4)}, v{vL16}, {srd(S_WS)}, s{sPDA} offen offset:{f*1024} sc1")
        if nf == 3:
            k(f"buffer_load_dword a{aDUM}, v{vL16}, {srd(S_W1)}, s{S_W1+2} offen")
            nf = 4
        k(f"{le}:")
        k.vm_note(nf, "pst")

    def pack_flag(off=0):
        k(f"""
        s_lshl_b32 s{sT5}, s2, 7
        s_add_u32 s{sT5}, s{sT5}, {WS_PD + off}
        s_cmp_lg_u32 s{sW}, 0
        s_cselect_b32 s{sT5}, {OOB}, s{sT5}
        v_mov_b32 v{vT1}, s{sTAG}
        s_mov_b64 exec, 1
        """)
        k.vmem(f"buffer_store_dword v{vT1}, v{vL16}, {srd(S_WS)}, s{sT5} offen sc1")
        k("s_mov_b64 exec, -1")

    def pack_check_issue(off, va, vd, sb):
        with k.atomic():
            k(f"v_and_b32 v{va}, 1, v{vLANE}")
            k(f"v_lshlrev_b32 v{va}, 7, v{va}")
            k(f"v_lshrrev_b32 v{vd}, 1, v{vLANE}")
            k(f"v_and_b32 v{vd}, 7, v{vd}")
            k(f"s_lshl_b32 s{sT5}, s{sCT if off else sC}, 3")
            k(f"v_add3_u32 v{va}, v{va}, v{vd}, s{sT5}")
            if WP:
                k("s_mov_b32 exec_lo, 0")
                k(f"v_and_b32 v{va}, 0xbf, v{va}")
                k("s_mov_b32 exec_lo, -1")
            k(f"v_min_u32 v{vd}, 29, v{vLANE}")
            k(f"s_mul_i32 s{sT5}, s{sW}, 56")
            k(f"s_lshr_b32 s{sb}, s{sCT}, 1")
            k(f"s_add_u32 s{sT5}, s{sT5}, s{sb}")
            k(f"s_sub_u32 s{sT5}, s{sT5}, 64")
            k(f"v_lshl_add_u32 v{vd}, v{vd}, 2, s{sT5}")
            k("s_mov_b32 vcc_lo, 0xffff")
            k("s_mov_b32 vcc_hi, -1")
            k(f"s_mov_b32 s{sb}, {WS_PD + off}")
            k(f"v_cndmask_b32 v{va}, v{vd}, v{va}, vcc")
            k(f"v_lshlrev_b32 v{va}, 7, v{va}")
            k.vmem(f"buffer_load_dword v{vd}, v{va}, {srd(S_WS)}, s{sb} offen sc1", "pc")

    def pack_check(va, vd, sb):
        lp, ok = k.label("L_pc"), k.label("L_pcok")
        with k.atomic():
            k.vm_wait("pc")
            k(f"{lp}:")
            k(f"v_cmp_ne_u32 vcc, s{sTAG}, v{vd}")
            k(f"s_cbranch_vccz {ok}")
            k(f"buffer_load_dword v{vd}, v{va}, {srd(S_WS)}, s{sb} offen sc1")
            k("s_waitcnt vmcnt(0)")
            k(f"s_sub_u32 s{sBUD}, s{sBUD}, 1")
            k(f"s_cbranch_scc0 {lp}")
            k(f"s_mov_b32 s{sBUD}, 0")
            k(f"{ok}:")

    aPK = 128

    def park_addr(va, base, shift):
        k(f"v_bfe_u32 v{va}, v{vLANE}, 4, 1")
        k(f"v_lshlrev_b32 v{va}, 10, v{va}")
        k(f"v_lshrrev_b32 v{va+1}, 5, v{vLANE}")
        k(f"v_mul_u32_u24 v{va+1}, 0x120, v{va+1}")
        k(f"v_add_u32 v{va}, v{va}, v{va+1}")
        k(f"v_and_b32 v{va+1}, 0xd8, v{vTR0}")
        k(f"s_lshl_b32 s{sT5}, s{sW}, {shift}")
        k(f"s_add_u32 s{sT5}, s{sT5}, {base}")
        k(f"v_add3_u32 v{va}, v{va}, v{va+1}, s{sT5}")
        k(f"v_xor_b32 v{va+1}, 32, v{va}")

    def park_kv(va):
        for r in range(4):
            for blk in range(4):
                for hh in range(2):
                    k.lds(f"ds_read_b64_tr_b16 {ar(aPK + 16*r + 4*blk + 2*hh, 2)}, v{va + (blk & 1)} offset:{r*16384 + (blk >> 1)*2048 + hh*512}")

    def park_q(va):
        for r in range(4):
            for b in range(2):
                for hh in range(2):
                    k.lds(f"ds_read_b64_tr_b16 {ar(aPK + 64 + 8*r + 4*b + 2*hh, 2)}, v{va + b} offset:{r*8192 + hh*512}")

    def unpark(va):
        with k.atomic():
            k(f"s_lshr_b32 s{sD0}, s{sC}, 1")
            k(f"s_xor_b32 s{sD0}, s{sD0}, s{sG}")
            k(f"s_and_b32 s{sD0}, s{sD0}, 1")
            k(f"s_and_b32 s{sD1}, s{sC}, 1")
            k(f"s_lshl1_add_u32 s{sD0}, s{sD0}, s{sD1}")
        for kind in range(2):
            for r in range(4):
                for b in range(2 if kind else 4):
                    with k.atomic():
                        if b == 0:
                            k(f"s_add_u32 s{sD1}, s{sD0}, {r}")
                            k(f"s_and_b32 s{sD1}, s{sD1}, 3")
                            k(f"s_lshl2_add_u32 s{sD1}, s{sD1}, s{sW}")
                            k(f"s_lshl_b32 s{sD1}, s{sD1}, {11 if kind else 12}")
                            if kind:
                                k(f"s_add_u32 s{sD1}, s{sD1}, {R1}")
                            k(f"v_add_u32 v{va}, s{sD1}, v{vL16}")
                        j = 16 + 2 * r + b if kind else 4 * r + b
                        k.lds(f"ds_write_b128 v{va}, {ar(aPK + 4*j, 4)} offset:{b*1024}", ("up", j // 4))

    def wq_raw():
        k(f"s_lshl_b32 s{sL1}, s{sW}, 11")
        with k.atomic():
            k(f"v_and_b32 v{vT2}, 3, v{vP}")
            k(f"v_lshrrev_b32 v{vDM}, 4, v{vLANE}")
            k(f"v_lshl_add_u32 v{vT2}, v{vDM}, 3, v{vT2}")
            k(f"s_movk_i32 s{sD3}, 3072")
            k(f"v_mad_u32_u24 v{vDM}, v{vT2}, s{sD3}, v{vCH}")
        for r in range(4):
            for hh in range(2):
                k.dma(S_WQKV, vDM, sRB + r, hh * 4 * 3072, sL1, R1 + r * 8192 + hh * 1024, "wq")

    def async_check(tag, soff, imm):
        ok = k.label("L_aok")
        with k.atomic():
            k.vm_wait(tag)
            k(f"v_cmp_ne_u32 vcc, s{sTAG}, v{vT0}")
            k(f"s_cbranch_vccz {ok}")
            k.save_vm()
            k.poll(soff, imm, False)
            k.restore_vm()
            k(f"{ok}:")

    CSK = vT0
    gA = None
    for layer in range(1 if o.get("one") else 2):
        L1 = layer == 0
        sc = o.get("sc1", 0x05)
        psc = lambda i: bool(sc >> (4 * layer + i) & 1)
        PRE = o.get("pre", 8)

        def w2t_loads():
            for j in range(56):
                with k.atomic():
                    if j == 0:
                        k(f"s_lshl2_add_u32 s{sPDB}, s{sCT}, s{sW}")
                        k(f"s_mul_i32 s{sPDB}, s{sPDB}, 57344")
                        k(f"s_add_u32 s{sPDB}, s{sPDB}, {WS_W2T}")
                    if j % 4 == 0:
                        k(f"s_add_u32 s{sJ0}, s{sPDB}, {j*1024}")
                    k.vmem(f"buffer_load_dwordx4 {ar(4*j,4)}, v{vL16}, {srd(S_WS)}, s{sJ0} offen offset:{(j%4)*1024} sc1", ("w2t", j // 4))

        w2 = k.rec(w2t_loads) if L1 else []

        def takew2(name, dflt):
            nonlocal w2
            n = min(o.get(name, dflt), len(w2) - 24) if L1 else 0
            r, w2 = w2[:n], w2[n:]
            return r

        def kv_consts():
            k.get(vPQ, cCSA)
            k.lds(f"ds_read2_b32 {vr(CSK,2)}, v{vPQ} offset0:0 offset1:16", "cs")
            k.lds(f"ds_read2_b32 {vr(CSK+2,2)}, v{vPQ} offset0:32 offset1:48", "cs")
        if L1:
            CSA = vACC + 32
            k(f"s_and_b32 s{sT0}, s{sW}, 1")
            k(f"s_lshl_b32 s{sT0}, s{sT0}, 5")
            k(f"v_xor_b32 v{vPQ+3}, s{sT0}, v{vTR0}")
            k(f"s_lshr_b32 s{sT0}, s{sW}, 1")
            k(f"s_lshl_b32 s{sT0}, s{sT0}, 11")
            k(f"v_add_u32 v{vPQ+2}, s{sT0}, v{vPQ+3}")
            k(f"s_lshl_b32 s{sT1}, s{sW}, 5")
            k(f"v_xor_b32 v{vPQ+6}, s{sT1}, v{vQ0}")

            def wo_pack():
                T_ = vACT + 96
                for hh in range(2):
                    k.lds(f"ds_read_b64_tr_b16 {vr(T_+2*hh,2)}, v{vPQ+6} offset:{R0 + 49152 + hh*2048}", "wp")
                k.play([lambda: None] * 2)
                with k.atomic():
                    k.ds_wait("wp")
                    k.vmem(f"buffer_store_dwordx4 {vr(T_,4)}, v{vL16}, {srd(S_WS)}, s{sPDA} offen sc1", "pst")
            if o.get("diags"): k.stamp("setup")
            PADP = o.get("padp", 0)
            if PADP == 1:
                k("PADCALL")
            own_stats()
            if o.get("diags"): k.stamp("own")
            nx0 = o.get("nx0", 0)
            xslot(0, range(nx0))
            if o.get("pads", 2048) and PADP == 0:
                k("PADCALL")
            if o.get("diags"): k.stamp("pad")
            if o.get("pf1", 0):
                pack_finish(vACT + 64, R1, 12, False, "pu", sPDB)
            xslot(0, range(nx0, 8)); xslot(1, range(o.get("x1pre", 4)))
            if o.get("diags"): k.stamp("xiss")
            if UF == 1 and not o.get("pf1", 0):
                pack_finish(vACT + 64, R1, 12, False, "pu", sPDB)
            if o.get("diags"): k.stamp("pfin")
            xread(0)
            def rnd_begin(r):
                k.vm_wait(("wkv", r))
                k.barrier(True)
                fr = []
                for ks in range(4 * r, 4 * r + 4):
                    fr.append(dict(addr=vPQ + 2, offs=(R0 + ks * 4096, R0 + ks * 4096 + 1024), mf=[(None, None, False, ks == 0, None)]))
                for ks in range(4 * r, 4 * r + 4):
                    for pr in range(2):
                        for b in range(2):
                            base = R0 + ks * 4096 + pr * 2048
                            fr.append(dict(addr=(vTR0, vTR1)[b], offs=(base, base + 1024), mf=mf2(vACC + 16 * pr + 8 * b, ks, False, False)))
                return k.gemm_begin(fr)
            wq = k.rec(wq_raw)
            xslot(1, range(o.get("x1pre", 4), 8))
            g = rnd_begin(0)
            k.stamp("x0")
            f = {}
            if WP:
                w1_ = k.rec(lambda: wkv_raw(1))
                spread(f, w1_[:2], 0, 2); spread(f, k.rec(wo_pack), 0, 1); spread(f, w1_[2:] + k.rec(lambda: xslot(2)), 6, 3)
            else:
                spread(f, k.rec(lambda: (wkv_raw(1), xslot(2))), 0, 3)
            spread(f, k.rec(lambda: xread(1)), 30, 1, 2); k.gemm_run(g, f)
            k.stamp("r0")
            g = rnd_begin(1)
            f = {}
            if UF == 1:
                spread(f, k.rec(pack_flag), 1, 0)
            spread(f, k.rec(lambda: (wkv_raw(2), xslot(3))), 0, 3); spread(f, k.rec(lambda: xread(2)), 31, 1, 2); k.gemm_run(g, f)
            k.stamp("r1")
            g = rnd_begin(2)
            nq = o.get("nq", 6)
            if UF == 2:
                pu_ = k.rec(lambda: packU_issue(L_XST + 4096, sD0, sD1, sD2, sD3, sJ0, vDM, sPDB, 14))
                wq = pu_ + wq if o.get("pufirst", 1) else wq + pu_
            f = {}; spread(f, k.rec(lambda: (wkv_raw(3), st0_issue())) + wq[:nq], 0, 3); spread(f, k.rec(lambda: xread(3)), 31, 1, 2); k.gemm_run(g, f)
            k.stamp("r2")
            g = rnd_begin(3)
            f = {}
            spread(f, k.rec(st0_use), 0, 1)
            spread(f, k.rec(lambda: cs_put(0, sW)), 8, 0)
            spread(f, k.rec(stats_b), 10, 1)
            spread(f, k.rec(stats_scale), 24, 1)
            spread(f, k.rec(lambda: park_addr(vRES + 2, R0, 12)), 15, 0)
            pn = k.rec(lambda: (packN_issue(), k.vmem(f"buffer_load_dword a{aDUM}, v{vL16}, {srd(S_W1)}, s{S_W1+2} offen", "pn")))
            pci = k.rec(lambda: pack_check_issue(0, vRES, vRES + 1, sPDB)) if UF == 1 else []
            if o.get("w2e", 8):
                spread(f, wq[nq:] + pci, 1, o.get("r3s", 5))
            else:
                spread(f, wq[nq:] + pn + pci, 1, o.get("r3s", 5))
            bg = []
            k.gemm_run(g, f)
            k.stamp("A.kv")
            k.barrier()
            kv_consts()
        else:
            k.poll_b(sFXp, G_FX2)
            k.stamp("A.poll")
            al = k.rec(lambda: act_loads(G_X2, ring))
            PA = o.get("prea", 4)
            k.play(al[:PA])
            k(f"s_add_u32 s{sTAG}, s{sTAG}, 1")
            fill = {}
            sl = k.rec(lambda: stat_loads(G_ST2))
            e = spread(fill, al[PA:12] + [lambda: k.play(sl[:2]), sl[2]], 0, 4)
            for i_ in range(12, 32):
                pos = max(12 * (i_ // 2 - 6) + 11 + 6 * (i_ & 1), e)
                spread(fill, [al[i_]], pos, 1)
                e = pos + 3
            e2 = spread(fill, k.rec(lambda: (stat_sum(), stats_finalize(True), stats_b())), 64, 1.5)
            e2 = spread(fill, k.rec(stats_scale), e2 + 6, 1.5)
            spread(fill, k.rec(kv_consts), e2, 1.5)
            spread(fill, k.rec(lambda: lin_dma(PK_WO + 32768, R2, 8, "wo", True)), e, o.get("wos", 6))
            if o.get("diagc"):
                for ix in (0, 23, 47, 95, 143):
                    spread(fill, k.rec(lambda: k.stamp(f"A.m{ix}", True)), ix, 0)
            QL = o.get("qlag", 0)
            if QL:
                pe = k.rec(lambda: (k.ds_wait("cs"), [phi_block(vACC + 4*rb, NM_B + 4*rb, CSK, RL_B + 4*rb, RS_B + 4*rb, vPQ + 2*rb, vACT + 40, "b") for rb in range(2)]))
                spread(fill, pe, 192 - 4 * QL, 4 * QL / len(pe))
            k.gemm_run(gA, fill)
            k.stamp("A.kv")
            k("s_barrier")
            bg = []
        k("s_nop 2")
        k.get(vWB + 22, cKW1 if L1 else cKW)
        k.get(vWB + 23, cKR1 if L1 else cKR)
        k.ds_all()
        PK, PV, TMP = vPQ, vACC, vWB + 24
        KVA = vACC + 16

        def kv_epi():
            for h in range(1 if (not L1 and o.get("qlag", 0)) else 0, 2):
                for rb in range(2):
                    phi_block(vACC + 8*h + 4*rb, NM_B + 4*rb, CSK + h, RL_B + 4*rb, RS_B + 4*rb, PK + 4*h + 2*rb, TMP, "b")
            for h in range(2):
                for rb in range(2):
                    a = vACC + 16 + 8*h + 4*rb
                    c2, m = bcast(CSK + 2 + h, 1, 3)
                    for p in range(2):
                        k(f"v_pk_fma_f32 {vr(a+2*p,2)}, {vr(NM_B+4*rb+2*p,2)}, {c2}, {vr(a+2*p,2)}{m}")
                    for p in range(2):
                        k(f"v_pk_mul_f32 {vr(a+2*p,2)}, {vr(a+2*p,2)}, {vr(RS_B+4*rb+2*p,2)}")
                    for p in range(2):
                        k(f"v_cvt_pk_bf16_f32 v{PV+4*h+2*rb+p}, v{a+2*p}, v{a+2*p+1}")
                    if rb == 0:
                        k(f"v_mfma_f32_16x16x32_bf16 {vr(vACC+8+4*h,4)}, {vr(PK+4*h,4)}, {ar(aONES,4)}, 0")
                if h == 0:
                    pass
        if L1:
            we = takew2("w2e", 8)
            ke = mix(k.rec(kv_epi), k.rec(lambda: park_kv(vRES + 2)), 3)
            if we:
                c0 = o.get("w2c", 40)
                touches(o.get("Te", 0), vWB + 20)
                k.play(ke[:c0])
                pack_check(vRES, vRES + 1, sPDB)
                ke = mix(ke[c0:], we, (135 - c0) // len(we))
            k.play(ke)
        else:
            wod = k.rec(lambda: lin_dma(PK_WO, R1, 8, "wo", True))
            nwo = o.get("nwo", 0)
            k.play(mix(k.rec(kv_epi), wod[:nwo], 100 // max(nwo, 1))); wod = wod[nwo:]
        KRO = [0, 16384, 32768, 49152 if L1 else 36864]
        k.lds(f"ds_write_b128 v{vWB+22}, {vr(vACC+8,4)} offset:{KRO[2]}")
        for h in range(2):
            k(f"v_mfma_f32_16x16x32_bf16 {vr(KVA+4*h,4)}, {vr(PK+4*h,4)}, {vr(PV+4*h,4)}, 0")
        k.lds(f"ds_write_b128 v{vWB+22}, {vr(vACC+12,4)} offset:{KRO[3]}")
        k.get(vWB + 21, cKVS)
        k("s_nop 4")
        for h in range(2):
            k.lds(f"ds_write_b128 v{vWB+22}, {vr(KVA+4*h,4)} offset:{KRO[h]}")
        if L1 and UF == 1:
            k.vm_wait("wq")
        k.barrier()
        for s in range(4):
            k.lds(f"ds_read_b128 {vr(vWB+4*s,4)}, v{vWB+23} offset:{s*1024}", ("kr", s))
        KO = vACC + 32
        k.ds_wait(("kr", 1))
        for p in range(2):
            k(f"v_pk_add_f32 {vr(vWB+2*p,2)}, {vr(vWB+2*p,2)}, {vr(vWB+4+2*p,2)}")
        k.ds_wait(("kr", 3))
        for p in range(2):
            k(f"v_pk_add_f32 {vr(vWB+8+2*p,2)}, {vr(vWB+8+2*p,2)}, {vr(vWB+12+2*p,2)}")
        for p in range(2):
            k(f"v_pk_add_f32 {vr(KO+2*p,2)}, {vr(vWB+2*p,2)}, {vr(vWB+8+2*p,2)}")
        k(f"v_and_b32 v{KO}, 0xffffff00, v{KO}")
        k(f"v_or_b32 v{KO}, s{sT8}, v{KO}")
        k(f"s_mov_b64 exec, s[{sKM}:{sKM+1}]")
        k.vmem(f"buffer_store_dwordx4 {vr(KO,4)}, v{vWB+21}, {srd(S_WS)}, s{sKVP} offen sc1", "kvst")
        k("s_mov_b64 exec, -1")
        k.stamp("A.kvpub")
        fill = {}
        fr = []
        CSQ = vACC + 24

        def q_consts():
            k.get(vT0, cCSB)
            for h in range(2):
                k.lds(f"ds_read_b128 {vr(CSQ+4*h,4)}, v{vT0} offset:{(4+h)*64}")
        if L1:
            if UF == 1:
                if not o.get("w2e", 8):
                    pack_check(vRES, vRES + 1, sPDB)
            else:
                pack_finish(vWB, L_XST + 4096, 14, False, "pu", sPDB)
                k.vm_wait("pn")
                k("s_barrier")
            if not o.get("w2e", 8):
                packN_finish(vWB)
            park_addr(vPQ + 4, R1, 11)
            if o.get("diag"): k.stamp("q.pf")
            k(f"v_add_u32 v{vPQ}, {R1}, v{vTR0}")
            k(f"v_add_u32 v{vPQ+1}, {R1}, v{vTR1}")
            k(f"s_and_b32 s{sT0}, s{sW}, 1")
            k(f"s_lshl_b32 s{sT1}, s{sT0}, 5")
            k(f"v_xor_b32 v{vPQ+2}, s{sT1}, v{vPQ}")
            for j in range(16):
                fr.append(dict(addr=vPQ + 2, offs=(j * 2048, j * 2048 + 1024), mf=[(None, None, False, j == 0, None)]))
            for ks in range(16):
                for b in range(2):
                    fr.append(dict(addr=vPQ + b, offs=(ks * 2048, ks * 2048 + 1024), mf=mf2(vACC + 8 * b, ks, True, False)))
            wor = k.rec(lambda: lin_dma(PK_WO, R0, 16, "wo", True)) if WP else k.rec(wo_raw)
            e = spread(fill, bg + k.rec(res_load), 0, 1)
            if o.get("arm", 2):
                e = spread(fill, k.rec(lambda: arm(o.get("arm", 2))), e, 2)
            e = spread(fill, k.rec(lambda: touches(o.get("Tq", 0))), e, 1)
            e = spread(fill, wor, e, o.get("wors", 2))
            spread(fill, takew2("w2q", 8), e, 4)
            spread(fill, k.rec(lambda: park_q(vPQ + 4)), 20, 3)
            k.gemm(fr, fill)
            if o.get("diag"): k.stamp("q.mm")
            cs_put(4, sT0)
            if UF == 2:
                k.vm_wait("pst")
            k.barrier()
            if o.get("diag"): k.stamp("q.bar")
            q_consts()
            if UF == 2:
                pack_flag()
        else:
            q_consts()
        lp2, done2 = k.label("L_kp"), k.label("L_kd")
        SM = vWB + 8
        ZL = vACT + 32

        def kv_loads(track):
            ins = [(f"buffer_load_dwordx4 {vr(ZL,4)}, v{vT2}, {srd(S_WS)}, s{sKVC} offen sc1", "zl")]
            for j in range(8):
                ins.append((f"buffer_load_dwordx4 {vr(vACT+4*j,4)}, v{vL16}, {srd(S_WS)}, s{sKVC if j < 4 else sT2} offen offset:{(j%4)*1024} sc1", ("kv", j)))
            for i_, t_ in ins:
                if track:
                    k.vmem(i_, t_)
                else:
                    k(i_)
        if L1:
            w1a = k.rec(lambda: (lin_dma(PK_W1A, R1, 16, "w1a"), lin_dma(PK_W1B, R3, 6, "w1c2")))
        else:
            w1a = []
        k.get(vT2, cZL)
        k(f"s_add_u32 s{sT2}, s{sKVC}, 4096")
        kl = k.rec(lambda: kv_loads(True))
        QS = vACC if L1 else QA
        ph = k.rec(lambda: [phi_block(QS + 8*h + 4*rb, NM_A + rb, CSQ + 4*h, RL_A + rb, RS_A + rb, vPQ + 4*h + 2*rb, vWB, "a")
                            for h in range(2) for rb in range(2)])
        if L1:
            k.play(kl[:5])
            k.ds_all()
            if o.get("diag"): k.stamp("q.kl5")
            na = o.get("w1a0", 4) if UF == 1 else 0
            k.play(mix(ph, kl[5:] + w1a[:na], o.get("phr", 10)))
            w1a = w1a[na:]
        else:
            def unpark_w1():
                for j in range(16):
                    k.lds(f"ds_write_b128 v{vT3}, {vr(vPARK+4*j,4)} offset:{j*1024}")
            k(f"s_lshl_b32 s{sT5}, s{sW}, 14")
            k(f"v_add_u32 v{vT3}, s{sT5}, v{vL16}")
            k.play(wod[:4]); wod = wod[4:]
            k.ds_all()
            uw = k.rec(unpark_w1)
            nu = o.get("nu", 16)
            k.play(mix(mix(ph, uw[:nu], 5), wod, 10))
            k.play(mix(kl, uw[nu:], 1))
        k.stamp("A.q")
        if L1:
            k("PADCALL1")
        k.get(vT1, cXW)
        k.get(vWB + 18, cZW)
        k.get(vWB + 16, cXR)
        k.get(vWB + 17, cZR)
        k(f"s_branch {lp2}_s")
        k(f"{lp2}:")
        kv_loads(False)
        k("s_waitcnt vmcnt(0)")
        k(f"{lp2}_s:")
        k.vm_wait("zl")
        k(f"""
        v_mov_b32 v{SM+4}, v{ZL}
        v_mov_b32 v{SM+5}, v{ZL}
        v_permlane32_swap_b32 v{ZL}, v{ZL+1}
        v_permlane32_swap_b32 v{ZL+2}, v{ZL+3}
        v_add_f32 v{ZL}, v{ZL}, v{ZL+1}
        v_add_f32 v{ZL+2}, v{ZL+2}, v{ZL+3}
        s_nop 1
        v_permlane16_swap_b32 v{ZL}, v{ZL+2}
        v_add_f32 v{ZL}, v{ZL}, v{ZL+2}
        s_nop 1
        v_add_f32_dpp v{ZL}, v{ZL}, v{ZL} row_ror:4 row_mask:0xf bank_mask:0xf
        s_nop 1
        v_add_f32_dpp v{ZL}, v{ZL}, v{ZL} row_ror:8 row_mask:0xf bank_mask:0xf
        v_cvt_pk_bf16_f32 v{ZL}, v{ZL}, v{ZL}
        ds_write_b16 v{vWB+18}, v{ZL}
        """)
        for j in range(0, 8, 2):
            a, b = vACT + 4*j, vACT + 4*j + 4
            k.vm_wait(("kv", j + 1))
            k(f"v_and_b32 v{SM+4}, v{SM+4}, v{a}")
            k(f"v_and_b32 v{SM+4}, v{SM+4}, v{b}")
            k(f"v_or3_b32 v{SM+5}, v{SM+5}, v{a}, v{b}")
            if j == 0:
                for p in range(2):
                    k(f"v_pk_add_f32 {vr(SM+2*p,2)}, {vr(a+2*p,2)}, {vr(b+2*p,2)}")
            else:
                for p in range(2):
                    k(f"v_pk_add_f32 {vr(a+2*p,2)}, {vr(a+2*p,2)}, {vr(b+2*p,2)}")
                for p in range(2):
                    k(f"v_pk_add_f32 {vr(SM+2*p,2)}, {vr(SM+2*p,2)}, {vr(a+2*p,2)}")
        k(f"""
        ds_write_b128 v{vT1}, {vr(SM,4)}
        v_xor_b32 v{SM+4}, s{sT8}, v{SM+4}
        v_xor_b32 v{SM+5}, s{sT8}, v{SM+5}
        v_or_b32 v{SM+4}, v{SM+4}, v{SM+5}
        v_and_b32 v{SM+4}, 0xff, v{SM+4}
        v_cmp_ne_u32 vcc, 0, v{SM+4}
        s_cbranch_vccz {done2}
        s_waitcnt lgkmcnt(0)
        s_sub_u32 s{sBUD}, s{sBUD}, 4
        s_cbranch_scc0 {lp2}
        s_mov_b32 s{sBUD}, 0
        {done2}:
        """)
        k.stamp("A.kvget")
        if L1:
            touches(o.get("Tk", 0))
        n1 = o.get("w1a1", 4) if L1 and UF == 1 else 0
        if L1 and UF == 2:
            pack_check_issue(0, vTR0, vTR1, sPDB)
        k.play(w1a[:n1]); w1a = w1a[n1:]
        k.barrier(True)
        for h in range(2):
            k.lds(f"ds_read_b64 {vr(vWB+4*h+2,2)}, v{vWB+17} offset:{h*32}", "zf")
        for j in range(4):
            k.lds(f"ds_read_b128 {vr(vACT+4*j,4)}, v{vWB+16} offset:{1024*j}")
        k.ds_wait("zf")
        OA = vACC + 16
        for rb in range(2):
            for h in range(2):
                d = OA + 16*rb + 8*h
                k(f"v_mfma_f32_16x16x16_bf16 {vr(d+4,4)}, {vr(vWB+4*h+2,2)}, {vr(vPQ+4*h+2*rb,2)}, 0")
        k.ds_all()
        for h in range(2):
            for p in range(2):
                k(f"v_pk_add_f32 {vr(vACT+8*h+2*p,2)}, {vr(vACT+8*h+2*p,2)}, {vr(vACT+8*h+4+2*p,2)}")
        for h in range(2):
            for p in range(2):
                k(f"v_cvt_pk_bf16_f32 v{vWB+4*h+p}, v{vACT+8*h+2*p}, v{vACT+8*h+2*p+1}")
        for rb in range(2):
            for h in range(2):
                d = OA + 16*rb + 8*h
                k(f"v_add_f32 v{d+4}, s{sEPS}, v{d+4}")
        for rb in range(2):
            for h in range(2):
                d = OA + 16*rb + 8*h
                k(f"v_mfma_f32_16x16x16_bf16 {vr(d,4)}, {vr(vWB+4*h,2)}, {vr(vPQ+4*h+2*rb,2)}, 0")
        for rb in range(2):
            for h in range(2):
                d = OA + 16*rb + 8*h
                k(f"v_rcp_f32 v{d+4}, v{d+4}")
        k("s_nop 1")
        for rb in range(2):
            for h in range(2):
                d = OA + 16*rb + 8*h
                for p in range(2):
                    k(f"v_pk_mul_f32 {vr(d+2*p,2)}, {vr(d+2*p,2)}, {vr(d+4,2)} op_sel_hi:[1,0]")
                for p in range(2):
                    k(f"v_cvt_pk_bf16_f32 v{vPQ+4*rb+2*h+p}, v{d+2*p}, v{d+2*p+1}")
        k.stores([f"buffer_store_dwordx4 {vr(vPQ+4*rb,4)}, v{vL16}, {srd(S_WS)}, s{sOST+rb} offen" for rb in range(2)], psc(0))
        nb = o.get("w1a_pre1", 6) if L1 else o.get("w1a_pre", 0)
        if L1 and UF == 2:
            pack_check(vTR0, vTR1, sPDB)
        k.play(w1a[:nb])
        if L1:
            for s_ in range(2):
                for p in range(2):
                    k(f"v_permlane16_swap_b32 v{vRES+4*s_+p}, v{vRES+4*s_+2+p}")
        urs = k.rec(lambda: unpack_res(vACC))
        fr = []
        for ks in range(16):
            for f in range(4):
                mf = [(vACC + 4 * f, vACT + 4 * ks, True, False, ("act", ks))]
                if L1 and WP:
                    fr.append(dict(addr=vL16, offs=(R0 + ks * 4096 + f * 1024,), mf=mf))
                elif L1:
                    fr.append(dict(addr=vQ0 + f, offs=(R0 + ks * 4096, R0 + ks * 4096 + 2048), mf=mf))
                else:
                    fr.append(dict(addr=vTR0, offs=(ks * 4096 + f * 1024,), mf=mf))
        if L1:
            k("PADCALL2")
        k.poll_prep(15)
        k.flag(sFOo, G_FO)
        k.poll_a(sFOp, G_FO)
        g = k.gemm_begin(fr, 7)
        k.play(urs)
        k.stamp("A.opub")
        k.poll_b(sFOp, G_FO)
        k.stamp("B.poll")

        def b_loads():
            for ks in range(16):
                with k.atomic():
                    if ks % 4 == 0:
                        k(f"s_add_u32 s{sT2}, s{sBACT}, {G_O + ks*1024}")
                    k.vmem(f"buffer_load_dwordx4 {vr(vACT+4*ks,4)}, v{vL16}, {srd(S_WS)}, s{sT2} offen offset:{(ks%4)*1024} sc1", ("act", ks))
        bl = k.rec(b_loads)
        PB = o.get("preb", PRE)
        k.play(bl[:PB])
        fill = {}
        e = spread(fill, bl[PB:], 0, 3)
        e = spread(fill, w1a[nb:], e, o.get("w1st", 3))
        if L1:
            e = spread(fill, k.rec(lambda: touches(o.get("Tb", 1))), e, 1)
        spread(fill, takew2("w2b", 0), e, 4)
        k.gemm_run(g, fill)
        k.stamp("B.mm")
        k(f"v_add_u32 v{vTR1}, {R1}, v{vL16}")
        k("s_nop 6")
        for f in range(4):
            for p in range(2):
                k(f"v_cvt_pk_bf16_f32 v{vRES+2*f+p}, v{vACC+4*f+2*p}, v{vACC+4*f+2*p+1}")
        publish_x(G_X1, G_ST1, G_FX1, psc(1))
        k.play(takew2("w2x", 0))
        k.flag(sFXo, G_FX1)
        if not L1:
            k.poll_a(sFXp, G_FX1)
        k.stamp("B.pub")
        if L1 and o.get("w2e", 8) and not WP:
            k(f"s_lshl2_add_u32 s{sD1}, s{sDH}, s{sW}")
            k(f"s_cmp_lg_u32 s{sD1}, 3")
            k("s_cbranch_scc1 L_nfskip")
            k(f"s_lshl_b32 s{sT5}, s{sG}, 12")
            for f in range(4):
                k(f"v_add_u32 v{vWB+16+f}, s{sT5}, v{vQ0+f}")
            for f in range(4):
                for hh in range(2):
                    k(f"ds_read_b64_tr_b16 {vr(vACC+4*f+2*hh,2)}, v{vWB+16+f} offset:{hh*2048}")
            k(f"s_add_u32 s{sT5}, s{sT5}, s{sPKB}")
            k(f"s_add_u32 s{sT5}, s{sT5}, {PK_WO}")
            k("s_waitcnt lgkmcnt(0)")
            for f in range(4):
                k(f"buffer_store_dwordx4 {vr(vACC+4*f,4)}, v{vL16}, {srd(S_WS)}, s{sT5} offen offset:{f*1024} sc1")
            k("L_nfskip:")
        k("s_barrier")
        w1c2 = k.rec(lambda: lin_dma(PK_W1B + 24576, R0 if L1 else R1, 6, "w1c2"))
        if L1 and not o.get("w2e", 8):
            pack_flag(0x8000)
        nc = o.get("w1c2_pre1", 0) if L1 else o.get("w1c2_pre", 0)
        k.play(w1c2[:nc])
        if L1:
            k(f"s_lshl_b32 s{sT2}, s{sW}, 10")
            k(f"v_add_u32 v{vPQ}, s{sT2}, v{vTR1}")
            fr = []
            for j in range(16):
                fr.append(dict(addr=vPQ, offs=(j * 4096,), mf=[(None, None, False, j == 0, None)]))
            k.gemm(fr, D=7)
            k("s_nop 5")
            cs_put(6, sW)
        C2 = vACC + 32
        vC1, vC2, vCc, vCd = (vTR1 if L1 else vL16), vDM, vP, vCH
        k(f"v_add_u32 v{vC2}, {R3}, v{vL16}")
        if L1:
            k(f"s_min_u32 s{sPDA}, s{sW}, 2")
            k(f"s_lshl_b32 s{sT2}, s{sPDA}, 10")
            k(f"v_add_u32 v{vCd}, s{sT2}, v{vL16}")
            k(f"v_add_u32 v{vCc}, {R3}, v{vCd}")
        NX = o.get("nx1", 0) if L1 else o.get("nx", 0)
        INIT2 = not L1 and NX == 0
        f2 = []
        for ks in range(16):
            if L1:
                f2.append(dict(addr=vCc if ks < 8 else vCd, offs=((ks % 8) * 3072,), mf=[(None, None, False, ks == 0, None)], late=ks >= 8))
            for b in range(3):
                f2.append(dict(addr=vC2 if ks < 8 else vL16 if L1 else vTR1, offs=((ks % 8) * 3072 + b * 1024,),
                               mf=mf2(C2 + 8 * b, ks, True, False, False if INIT2 else None), late=ks >= 8))
        fr = []
        XS0 = o.get("xs0", 2)
        for ks in range(16):
            if ks >= XS0:
                n_ = (NX * (ks - XS0 + 1)) // (16 - XS0) - (NX * (ks - XS0)) // (16 - XS0)
                fr += f2[:n_]; f2 = f2[n_:]
            for f in range(4):
                fr.append(dict(addr=vC1, offs=(ks * 4096 + f * 1024,), mf=mf2(vACC + 8 * f, ks, True, True)))
        M1 = sum(len(f["mf"]) for f in fr)
        fr += f2
        NM = sum(len(f["mf"]) for f in fr)
        tl = [i for i, f in enumerate(fr) if f.get("late")][0]
        MB = sum(len(f["mf"]) for f in fr[:tl - 6]) - 4
        if L1:
            k.poll_a(sFXp, G_FX1)
        g = k.gemm_begin(fr)
        k.poll_b(sFXp, G_FX1)
        k.stamp("C.poll")
        CS1 = [vPQ, vPQ + 4, vACC + 56, vQ0]

        def c2_init():
            k.get(vT0, cCSB)
            for b in range(3):
                k.lds(f"ds_read_b128 {vr(C2+8*b+4,4)}, v{vT0} offset:{(10+b)*64}", "cs2")
            for _ in range(4):
                k.play([lambda: None])
            k.ds_wait("cs2")
            for b in range(3):
                for rb in range(2):
                    for j in range(4):
                        k(f"v_mul_f32 v{C2+8*b+4*rb+j}, v{C2+8*b+4+j}, v{NM_A+rb}")

        def relu_block(acc, cs, rb, dst):
            if cs is not None:
                for j in range(4):
                    k(f"v_fmac_f32 v{acc+j}, v{cs+j}, v{NM_A+rb}")
            for p in range(2):
                k(f"v_cvt_pk_bf16_f32 v{dst+p}, v{acc+2*p}, v{acc+2*p+1}")
            for p in range(2):
                k(f"v_pk_max_i16 v{dst+p}, v{dst+p}, 0")

        def cs1_reads():
            k.get(vT2, cCSB)
            for b in range(4):
                k.lds(f"ds_read_b128 {vr(CS1[b],4)}, v{vT2} offset:{(6+b)*64}", "cs")

        def epi1():
            k.ds_wait("cs")
            for s in range(2):
                for rb in range(2):
                    for b in range(2):
                        relu_block(vACC + 16*s + 8*b + 4*rb, CS1[2*s+b], rb, vACC + 16*s + 4*rb + 2*b)
                k.stores([f"buffer_store_dwordx4 {vr(vACC+16*s+4*rb,4)}, v{vL16}, {srd(S_WS)}, s{sH1+rb} offen offset:{s*1024}"
                          for rb in range(2)], psc(2))

        def d_setup():
            if L1:
                with k.atomic():
                    k(f"s_lshl_b32 s{sT1}, s{sW}, 13")
                    k(f"s_add_u32 s{sT1}, s{sT1}, s{sGB}")
                with k.atomic():
                    k(f"s_lshl_b32 s{sDK}, s{sW}, 11")
                    k(f"s_add_u32 s{sDK}, s{sDK}, {28*1024}")
                k(f"s_add_u32 s{sT1}, s{sT1}, {G_H + 24*1024}")
                for j in range(4):
                    with k.atomic():
                        k(f"s_add_u32 s{sT0}, s{sW}, {j}")
                        k(f"s_and_b32 s{sT0}, s{sT0}, 3")
                    with k.atomic():
                        k(f"s_lshl2_add_u32 s{sT0}, s{sDH}, s{sT0}")
                        k(f"s_mul_i32 s{sT0}, s{sT0}, 57344")
                    k(f"s_add_u32 s{sRB+j}, s{sT0}, s{sT1}")
            k.poll_prep(7)
        TD = 3 if L1 else o.get("td", 4)
        seq = [(ksl, j) for ksl in range(14 - TD) for j in range(4)] + [(ksl, j) for j in (1, 2, 3, 0) for ksl in range(14 - TD, 14)]
        hb = [0, 0, 0, 0]

        def hload(t):
            ksl, j = seq[t]
            with k.atomic():
                if ksl // 4 != hb[j]:
                    if ksl == 8:
                        k(f"s_sub_u32 s{sRB+j}, s{sRB+j}, s{sDK}")
                    else:
                        k(f"s_add_u32 s{sRB+j}, s{sRB+j}, 4096")
                    hb[j] += 1
                k.vmem(f"buffer_load_dwordx4 {vr(vACT+4*(t%16),4)}, v{vL16}, {srd(S_WS)}, s{sRB+j} offen offset:{(ksl%4)*1024} sc1", ("h", t))
        PC = o.get("prec", PRE)
        al = k.rec(lambda: act_loads(G_X1))
        k.play(al[:PC])
        fill = {}
        sl = k.rec(lambda: stat_loads(G_ST1, vPQ))
        SP = o.get("stp", 0)
        e = spread(fill, al[PC:PC+SP] + [lambda: k.play(sl[:2]), sl[2]] + al[PC+SP:], 0, o.get("cstep", 40) / 10)
        e2 = spread(fill, k.rec(lambda: (stat_sum(vPQ), stats_finalize(False))), 44, 0.9 if INIT2 else 1.3)
        if INIT2:
            spread(fill, k.rec(c2_init), e2 + 1, 0.95)
        if L1:
            spread(fill, k.rec(lambda: k("s_barrier")), 104, 0)
            if o.get("w2e", 8) and not WP:
                spread(fill, k.rec(lambda: pack_flag(0x8000)), 102, 0)
        e = spread(fill, w1c2[nc:], e, 3)
        if L1:
            e = spread(fill, k.rec(lambda: touches(o.get("Tc", 0), vT0)), e, 1)
        spread(fill, k.rec(cs1_reads), M1 - 9, 1)
        if o.get("diagc") and not L1:
            for ix in (0, 31, 63, 95, 127, 151, 175, 199):
                spread(fill, k.rec(lambda: k.stamp(f"C.m{ix}", True)), ix, 0)
        if o.get("diagd"):
            spread(fill, k.rec(lambda: k.stamp("C.mm1")), 127, 0)
        e1 = spread(fill, k.rec(epi1), M1 + 1, 1 / o.get("epr", 4))
        spread(fill, k.rec(lambda: (k.vm_wait("w1c2"), k("s_barrier"))), MB, 0)
        assert e < MB
        e3 = spread(fill, k.rec(d_setup), e1, 1)
        if not L1 and not INIT2:
            spread(fill, k.rec(lambda: [k.lds(f"ds_read_b128 {vr(CS1[b],4)}, v{vT2} offset:{(10+b)*64}") for b in range(3)]), e3 + 2, 2)
        pf = min(e1 + (o.get("fl11", 50) if L1 else o.get("fl1", 20)), NM - 2)
        spread(fill, k.rec(lambda: k.flag(sFHo, G_FH)), pf, 1)
        NE = o.get("ne1", 0) if L1 else o.get("ne", 6)
        pp = NM - 1 if NE == 0 else NM - 3 * NE - o.get("ppd", 18)
        assert pp > pf
        spread(fill, k.rec(lambda: k.vmem(f"buffer_load_dword v{vT0}, v{vT3}, {srd(S_WS)}, s{sFHp} offen offset:{G_FH} sc1", "p1")), pp, 1)
        if NE:
            spread(fill, k.rec(lambda: async_check("p1", sFHp, G_FH)), NM - 3 * NE - 1, 1)
            spread(fill, k.rec(lambda: [hload(t) for t in range(NE)]), NM - 3 * NE, 3)
        if L1:
            wc = takew2("nw2", 24)
            spread(fill, wc, e, (pp - 1 - e) / max(len(wc), 1))
        k.gemm_run(g, fill)
        k.stamp("C.mm2")
        HO = vWB + 16
        LA = o.get("dla1", 10) if L1 else o.get("dla", 10)
        if L1:
            k.get(vT1, cCSA)
            k(f"s_lshl_b32 s{sT5}, s{sPDA}, 6")
            k(f"v_add_u32 v{vT1}, s{sT5}, v{vT1}")
            k.lds(f"ds_write_b32 v{vT1}, a{aCS} offset:{10*64}")
            k.barrier()
            k.get(vT2, cCSB)
            for b in range(3):
                k.lds(f"ds_read_b128 {vr(vWB+4*b,4)}, v{vT2} offset:{(10+b)*64}")
            k.ds_all()
        else:
            k("s_nop 3")
            k.ds_all()
        epi2 = k.rec(lambda: [relu_block(C2 + 8*b + 4*rb, vWB + 4*b if L1 else None if INIT2 else CS1[b], rb, HO + 8*rb + 2*b) for b in range(3) for rb in range(2)])
        h2sc = psc(2) and not o.get("h2plain", 1)
        its = []
        for rb in range(2):
            its.append(f"buffer_store_dwordx4 {vr(HO+8*rb,4)}, v{vL16}, {srd(S_WS)}, s{sH2+rb} offen")
            its.append(f"buffer_store_dwordx2 {vr(HO+8*rb+4,2)}, v{vL16}, {srd(S_WS)}, s{sH3+rb} offen")
        tail = []
        up = []
        if L1:
            def park_w1():
                with k.atomic():
                    k(f"s_lshl_b32 s{sT5}, s{sW}, 14")
                    k(f"s_add_u32 s{sT5}, s{sT5}, {R1}")
                    k(f"v_add_u32 v{vCH}, s{sT5}, v{vL16}")
                for j in range(0, 16, 2):
                    with k.atomic():
                        for jj in (j, j + 1):
                            k.lds(f"ds_read_b128 {vr(vPARK+4*jj,4)}, v{vCH} offset:{jj*1024}", "pw")
            u_ = k.rec(lambda: unpark(vP))
            bar = k.rec(lambda: (k.ds_wait("pw"), k("s_barrier")))
            up = k.rec(park_w1) + u_[:17] + [lambda: k.play(bar)] + u_[17:]
        if NE:
            n2 = o.get("ne2", 2)
            k.play(mix(epi2, k.rec(lambda: [hload(t) for t in range(NE, NE + n2)]), 10))
            k.stores(its, h2sc)
            nxt = NE + n2
            FL2 = o.get("fl2", 5)
        else:
            k.play(epi2)
            k.stores(its, h2sc)
            async_check("p1", sFHp, G_FH)
            for t in range(LA):
                hload(t)
                if len(w2) > 24 and t % 2:
                    k.play(w2[:1]); w2 = w2[1:]
                k.play(up[:1]); up = up[1:]
            k.flag(sFHo, G_FH + 1024)
            nxt = LA
            FL2 = -1
        k.stamp("D.poll1")
        RSD = vPQ
        k.get(vPQ + 1, cRSD)
        k.lds(f"ds_read_b32 v{RSD}, v{vPQ+1}", "rsd")
        def red_addr():
            for j in range(4):
                if L1:
                    k.get(vPQ + 4 + j, cRD0 + j)
                else:
                    with k.atomic():
                        k(f"s_add_u32 s{sT0}, s{sW}, {j}")
                        k(f"s_and_b32 s{sT0}, s{sT0}, 3")
                    with k.atomic():
                        k(f"s_lshl_b32 s{sT0}, s{sT0}, 14")
                        k(f"s_add_u32 s{sT0}, s{sT0}, {max(j-1, 0)*4096}")
                    k(f"v_add_u32 v{vPQ+4+j}, s{sT0}, v{vL16}")
        ur = k.rec(lambda: (unpack_res(vWB), red_addr()))
        wr = []
        for t in range(56):
            ksl, j = seq[t]
            if L1:
                k.vm_wait(("w2t", ksl))
            k.vm_wait(("h", t))
            if o.get("diagd") and t in (0, 8, 16, 24, 32, 40, 48):
                k.stamp(f"D.t{t}")
            if o.get("diagc") and not L1 and t in (0, 4, 8, 16, 24, 32, 40, 48):
                k.stamp(f"D.t{t}", True)
            for f in range(4):
                a = vACC + 16*j + 4*f
                c = "0" if ksl == 0 else vr(a, 4)
                k(f"v_mfma_f32_16x16x32_bf16 {vr(a,4)}, {ar((ksl*4+f)*4,4)}, {vr(vACT+4*(t%16),4)}, {c}")
                if f in (0, 2) and nxt < 56 and nxt <= t + LA and (f == 0 or nxt < t + LA):
                    if nxt == 32 - o.get("p2d", 11):
                        k.vmem(f"buffer_load_dword v{vT0}, v{vT3}, {srd(S_WS)}, s{sFHp} offen offset:{G_FH+1024} sc1", "p2")
                    if nxt == 32:
                        async_check("p2", sFHp, G_FH + 1024)
                    hload(nxt)
                    nxt += 1
                    if nxt == 56 and not L1 and o.get("wb", 0):
                        lw = k.label("L_wb")
                        k(f"s_lshl3_add_u32 s{sT0}, s{sW}, s2")
                        k(f"s_cmp_ge_u32 s{sT0}, 8")
                        k(f"s_cbranch_scc1 {lw}")
                        k("buffer_wbl2 sc1")
                        k(f"s_branch {lw}_e")
                        k(f"{lw}:")
                        k(f"buffer_load_dword a{aDUM}, v{vT3}, {srd(S_WS)}, s{sFHp} offen offset:{G_FH} sc1")
                        k(f"{lw}_e:")
                        k.vm_note(1, "wb")
                if f in ((1, 3) if t < o.get("up2", 3) else (1,)) and up:
                    k.play(up[:1]); up = up[1:]
                if f == 2:
                    nup = 24 - len(up) + (1 if len(up) > 8 else 0)
                    if w2 and (len(w2) > 24 or not up or nup >= 4 * ((24 - len(w2)) // 4 + 1) + 1):
                        if len(w2) <= 24:
                            k.ds_wait(("up", (24 - len(w2)) // 4))
                        k.play(w2[:1]); w2 = w2[1:]
                    elif t >= o.get("tl0", 46) and tail:
                        nn = o.get("tln", 2)
                        k.play(tail[:nn]); tail = tail[nn:]
                if f == 3 and t == FL2:
                    k.flag(sFHo, G_FH + 1024)
                if 4 * t + f == 203 and L1:
                    k.ds_wait(("rw", 1))
                    k("s_barrier")
                    for f_ in range(4):
                        k.lds(f"ds_read_b128 {vr(vACC+16+4*f_,4)}, v{vPQ+4} offset:{f_*1024}", "rd0")
                if 4 * t + f == 215 and L1:
                    k.ds_wait("rd0")
                    k("s_barrier")
                if f == 3 and t == 2 and L1 and not WP:
                    pack_check_issue(0x8000, vTR0, vTR1, sPDA)
                if f == 3 and t == 14 and L1 and not WP:
                    pack_check(vTR0, vTR1, sPDA)
                if f == 3 and t == o.get("tx", 99) and L1:
                    touch("x", vDM)
                if f == 1 and t >= 8 and ur:
                    k.play(ur[:1]); ur = ur[1:]
                if wr and wr[0][0] <= 4 * t + f:
                    k.lds(*wr.pop(0)[1:])
            if ksl == 13 and j:
                for f in range(4):
                    wr.append((4 * t + 9 + 2 * f, f"ds_write_b128 v{vPQ+4+j}, {vr(vACC+16*j+4*f,4)} offset:{f*1024}", ("rw", j)))
        assert not w2 and not ur and not wr and not up
        k.stamp("D.mm")
        if not L1:
            k.get(vT2, cOUT)
        if L1:
            k("s_nop 3")
            for f in range(4):
                for p in range(2):
                    k(f"v_pk_add_f32 {vr(vACC+4*f+2*p,2)}, {vr(vACC+4*f+2*p,2)}, {vr(vACC+16+4*f+2*p,2)}")
        k.barrier()
        NJ = 2 if L1 else 3
        RB_ = vACC + 64 - 16 * NJ
        for f in range(4):
            for j in range(NJ):
                k.lds(f"ds_read_b128 {vr(RB_+16*j+4*f,4)}, v{vPQ+4} offset:{j*4096+f*1024}", ("rd", f))
        for f in range(4):
            k.ds_wait(("rd", f))
            for j in range(NJ):
                for p in range(2):
                    k(f"v_pk_add_f32 {vr(vACC+4*f+2*p,2)}, {vr(vACC+4*f+2*p,2)}, {vr(RB_+16*j+4*f+2*p,2)}")
            for p in range(2):
                k(f"v_pk_fma_f32 {vr(vACC+4*f+2*p,2)}, {vr(vACC+4*f+2*p,2)}, {vr(RSD,2)}, {vr(vWB+4*f+2*p,2)} op_sel_hi:[1,0,1]")
            for p in range(2):
                k(f"v_cvt_pk_bf16_f32 v{vRES+2*f+p}, v{vACC+4*f+2*p}, v{vACC+4*f+2*p+1}")
        k.stamp("D.red")
        if L1:
            publish_x(G_X2, G_ST2, G_FX2, psc(3))
            k(f"s_sub_u32 s{sT0}, s{sDK}, 8192")
            for j in range(4):
                k(f"s_add_u32 s{sRB+j}, s{sRB+j}, s{sT0}")
            k(f"s_add_u32 s{sKVC}, s{sKVC}, 0x100000")
            k(f"s_add_u32 s{sKVP}, s{sKVP}, 0x100000")
            k.flag(sFXo, G_FX2)
            k.poll_a(sFXp, G_FX2)
            k.stamp("D.pub")
            k("s_barrier")
            fr = []
            k(f"v_add_u32 v{vTR0}, {R1}, v{vL16}")
            late = []
            for ks in range(16):
                fq = [dict(addr=vTR0, offs=(ks * 2048 + b * 1024,), mf=mf2(QA + 8 * b, ks, True, True, act=ring)) for b in range(2)]
                fk = [dict(addr=vL16, offs=(R0 + ks * 4096 + b * 1024,), mf=mf2(vACC + 8 * b, ks, False, True, act=ring)) for b in range(4)]
                if ks < 16 - o.get("qlag", 0):
                    fr += fk + fq
                else:
                    fr += fk
                    late += fq
            fr += late
            gA = k.gemm_begin(fr)
        else:
            k("s_nop 1")
            for s in range(2):
                for p in range(2):
                    k(f"v_permlane16_swap_b32 v{vRES+4*s+p}, v{vRES+4*s+2+p}")
                k.vmem(f"buffer_store_dwordx4 {vr(vRES+4*s,4)}, v{vT2}, {srd(S_OUT)}, 0 offen offset:{64*s}{['', ' sc1', ' sc1 nt', ' nt'][o.get('outsc1', 1)]}")
            le = k.label("L_ep")
            k(f"s_or_b32 s{sT2}, s2, s{sW}")
            k(f"s_cbranch_scc1 {le}")
            k(f"s_add_u32 s{sEP}, s{sEP}, 1")
            k(f"v_mov_b32 v{vT1}, s{sEP}")
            k("s_mov_b64 exec, 1")
            k(f"buffer_store_dword v{vT1}, v{vL16}, {srd(S_WS)}, 0 offen offset:{WS_EPOCH}")
            k("s_mov_b64 exec, -1")
            k(f"{le}:")
            if stamps:
                k.vm_all()
                k.stamp("end")
                k(f"s_memrealtime s[{sST}:{sST+1}]")
                k("s_waitcnt lgkmcnt(0)")
                k(f"v_writelane_b32 v{vSTAMP}, s{sST}, 61")
                k(f"v_writelane_b32 v{vSTAMP}, s{sBUD}, 60")
                k(f"v_writelane_b32 v{vSTAMP}, s{sSLOW}, 59")
                k(f"s_lshl2_add_u32 s{sT2}, s2, s{sW}")
                k(f"s_lshl_b32 s{sT2}, s{sT2}, 8")
                k(f"s_add_u32 s{sT2}, s{sT2}, {WS_STAMP}")
                k(f"v_lshrrev_b32 v{vT0}, 2, v{vL16}")
                k(f"buffer_store_dword v{vSTAMP}, v{vT0}, {srd(S_WS)}, s{sT2} offen")
    k("L_end:")
    lines = merge_waits(k.lines)
    if o.get("pads", 2048):
        lines = add_pads(lines, k.tailcode, o.get("pads", 2048), [x for x in (o.get("ps1", 0), o.get("ps2", 0)) if x])
    body = "\n".join(lines)
    tailc = "\n".join(k.tailcode)
    hdr = open("interleave_layers__linear_attn_block__dense_activation_relu__prompt.s.ref").read().split("; Override")[0]
    txt = f"""{hdr}; Generated by a hand-written generator (persistent kernel, one workgroup per CU).
; @launch grid=(256,1,1) block=(256,1,1) lds={LDS_BYTES}
.amdgcn_target "amdgcn-amd-amdhsa--gfx950"
.text
.globl {NAME}
.p2align 8
.type {NAME},@function
.set CODE_BYTES, L_code_end - L_pcref - 512
{NAME}:
{body}
    s_endpgm
L_code_end:
{tailc}
.section .rodata,"a"
.p2align 6
.amdhsa_kernel {NAME}
  .amdhsa_next_free_vgpr 512
  .amdhsa_next_free_sgpr 102
  .amdhsa_accum_offset 256
  .amdhsa_group_segment_fixed_size 0
  .amdhsa_kernarg_size 72
  .amdhsa_user_sgpr_count 2
  .amdhsa_user_sgpr_kernarg_segment_ptr 1
  .amdhsa_system_sgpr_workgroup_id_x 1
.end_amdhsa_kernel
"""
    return txt, k.stamp_names


if __name__ == "__main__":
    out = sys.argv[1]
    stamps = "stamps" in sys.argv[2:]
    opts = {}
    for a in sys.argv[2:]:
        if "=" in a:
            x, y = a.split("=")
            opts[x] = int(y)
    txt, names = gen(stamps, opts)
    open(out, "w").write(txt)
    if stamps:
        open(out + ".names", "w").write("\n".join(names))
```

```python
import sys
from contextlib import contextmanager

NAME = "interleave_layers__linear_attn_block__dense_activation_relu__prompt_kernel"

WS_EPOCH = 0
WS_XID = 0x8000
WS_PD = 0x10000
GRP0 = 0x100000
G_FO, G_FX1, G_FX2, G_FH = 0, 512, 1024, 1536
G_ST1 = 0x1000
G_ST2 = G_ST1
G_ST0 = 0x4000
G_X1 = 0x8000
G_X2 = G_X1
G_H = G_X1 + 0x20000
G_O = G_H
WS_KVX = 0x1200000
KVX_C = 0x9000
WS_W2T = 0x1400000
WS_PK = 0x1600000
PK_KV, PK_Q, PK_W1A, PK_W1B, PK_WO, PK_SZ = 0, 65536, 98304, 163840, 212992, 278528
WS_STAMP = 0x1B00000
WS_USED = 0x1C00000
OOB = 0x7f000000

R0, R1, R2, R3 = 0, 65536, 98304, 131072
L_SM = 161792
L_CS = L_SM
L_ZB = L_SM + 896
L_STAT = L_SM + 1024
L_XB = L_SM - 4096
W1B_N1 = 8
L_XST = 98304
L_RED = R2
L_PST = R2
LDS_BYTES = 163840

S_X, S_WQKV, S_WO, S_W1, S_W2, S_OUT, S_WS = 4, 8, 12, 16, 20, 24, 28
(sW, sC, sG, sTAG, sSLOW, sGB, sBUD, sEP, sEPS, _e1, sT0, sT1, sT2, sT3, sT4, sT5,
 sACT, sACT1, sBACT, sTILE, sOST, sOST1, sFOo, sFOp, sFXo, sFXp, sSTo, sSTg,
 sH1, sH1b, sH2, sH2b, sH3, sH3b, sFHo, sFHp, sRB, _r1, _r2, _r3, sKVC, sKVP,
 sDH, sCT, sXCC, sT8, sD0, sD1, sD2, sD3, sL0, sL1, sPKB, sPDA, sPDB, sJ0) = range(32, 88)
assert sEPS % 2 == 0
sRHO = sT8
S_A, S_B = 88, 92
sKEX = 88
sDK = 92
sS8 = 93
sKM = 96
sST = 98
sPC = 100

vLANE, vL16, vTR0, vTR1, vQ0, vQ1, vQ2, vQ3, vP, vCH, vDM, vSTAMP = range(12)
vT0, vT1, vT2, vT3 = 12, 13, 14, 15
vSP, vSP2 = vP, vCH
vRES = 16
vPQ = 24
vWB = 32
vACC = 64
vACT = 128
BF1 = "0x3f803f80"
(cCSA, cCSB, cP16, aDUM, cSTO, cSTW, cSTA, cSTB, cKW, cKR, cKW1, cKR1, cKVS, cXW, cXR, cZR,
 cRD0, cRD1, cRD2, cRD3, cRSD, cOUT, cZL, cZW) = range(224, 248)
aONES, aCS = 248, 252


def srd(s):
    return f"s[{s}:{s+3}]"


def vr(a, n=1):
    return f"v{a}" if n == 1 else f"v[{a}:{a+n-1}]"


def ar(a, n=1):
    return f"a{a}" if n == 1 else f"a[{a}:{a+n-1}]"


def bcast(r, pos, n):
    lo = [0] * n
    hi = [1] * n
    if r % 2 == 0:
        hi[pos] = 0
    else:
        lo[pos] = 1
    f = lambda x: "[" + ",".join(map(str, x)) + "]"
    return vr(r & ~1, 2), f" op_sel:{f(lo)} op_sel_hi:{f(hi)}"


class K:
    def __init__(self, stamps=False, opts=None):
        self.lines = []
        self.nlab = 0
        self.vm = []
        self.ds = []
        self.stamps = stamps
        self.stamp_names = []
        self.o = opts or {}
        self._rec = None
        self.seen = set()
        self.tailcode = []
        self.lights = []
        self.fast = ""

    def _do(self, fn, cost=None):
        if cost is not None:
            fn.cost = cost
        if self._rec is not None:
            self._rec.append(fn)
        else:
            fn()

    def rec(self, f):
        assert self._rec is None
        self._rec = []
        f()
        r, self._rec = self._rec, None
        return r

    @contextmanager
    def atomic(self):
        if self._rec is None:
            yield
            return
        outer, self._rec = self._rec, []
        yield
        inner, self._rec = self._rec, outer
        g = lambda: [x() for x in inner]
        g.cost = sum(getattr(x, "cost", 4) for x in inner)
        outer.append(g)

    def play(self, items):
        for x in items:
            self._do(x)

    def _emit(self, l):
        self.lines.append(("" if l.endswith(":") else "    ") + l)

    def __call__(self, s):
        for l in s.split("\n"):
            l = l.strip()
            if l:
                self._do(lambda l=l: self._emit(l), 8 if l.startswith(("v_exp", "v_rsq", "v_rcp", "buffer_")) else 0 if l.endswith(":") else 4)

    def label(self, base="L"):
        self.nlab += 1
        return f"{base}_{self.nlab}"

    def vmem(self, s, tag=None):
        def f():
            self._emit(s)
            self.vm.append(tag)
            self.seen.add(tag)
        self._do(f, 8)

    def vm_note(self, n, tag=None):
        self._do(lambda: (self.vm.extend([tag] * n), self.seen.add(tag)))

    def _wait(self, lst, tag, name, mx):
        if tag not in lst:
            return lst
        idx = len(lst) - 1 - lst[::-1].index(tag)
        n = min(len(lst) - idx - 1, mx)
        self._emit(f"s_waitcnt {name}({n})")
        return lst[len(lst) - n:] if n else []

    def vm_wait(self, tag):
        def f():
            assert tag in self.seen, tag
            self.vm = self._wait(self.vm, tag, "vmcnt", 63)
        self._do(f)

    def save_vm(self):
        def f():
            self._sv = list(self.vm)
        self._do(f)

    def restore_vm(self):
        def f():
            self.vm = self._sv
        self._do(f)

    def vm_all(self):
        def f():
            self._emit("s_waitcnt vmcnt(0)")
            self.vm = []
        self._do(f)

    def lds(self, s, tag=None):
        def f():
            self._emit(s)
            self.ds.append(tag)
        self._do(f)

    def ds_wait(self, tag):
        def f():
            self.ds = self._wait(self.ds, tag, "lgkmcnt", 15)
        self._do(f)

    def ds_all(self, force=False):
        def f():
            if self.ds or force:
                self._emit("s_waitcnt lgkmcnt(0)")
            self.ds = []
        self._do(f)

    def barrier(self, force=False):
        self.ds_all(force)
        self("s_barrier")

    def stamp(self, name, light=False):
        if not self.stamps:
            return
        if light:
            i = len(self.stamp_names)
            self.stamp_names.append(name)
            r = 4 + 2 * len(self.lights)
            self.lights.append((r, i))
            self(f"s_memtime s[{r}:{r+1}]")
            return
        self.nst = getattr(self, "nst", 0) + 1
        if self.o.get("lite") and name not in ("end", "D.pub"):
            return
        i = len(self.stamp_names)
        assert i < 59
        self.stamp_names.append(name)
        self(f"{'s_memrealtime' if self.o.get('rt') else 's_memtime'} s[{sST}:{sST+1}]")
        self.ds_all(True)
        self(f"v_writelane_b32 v{vSTAMP}, s{sST}, {i}")
        for r, j in self.lights:
            self(f"v_writelane_b32 v{vSTAMP}, s{r}, {j}")
        self.lights = []

    def dma(self, sr, voff, soff, simm, lreg, limm, tag=None, flag=""):
        with self.atomic():
            self(f"s_add_u32 m0, s{lreg}, {limm}")
            self(f"s_add_u32 s{sT5}, s{soff}, {simm}")
            self.vmem(f"buffer_load_dwordx4 v{voff}, {srd(sr)}, s{sT5} offen{flag} lds", tag)

    def get(self, v, c):
        self(f"v_accvgpr_read_b32 v{v}, a{c}")

    def poll_prep(self, mask):
        self.get(vT3, cP16)
        if mask == 7:
            self(f"v_and_b32 v{vT3}, 28, v{vT3}")

    def poll(self, soff, imm, clear=True):
        if clear:
            self.seen = {t for t in self.seen if not (isinstance(t, tuple) and t[0] in ("act", "h"))}
        lp, done = self.label("L_poll"), self.label("L_pd")
        with self.atomic():
            self(f"{lp}:")
            self(f"buffer_load_dword v{vT0}, v{vT3}, {srd(S_WS)}, s{soff} offen offset:{imm} sc1")
            self.vm_all()
            self(f"v_cmp_ne_u32 vcc, s{sTAG}, v{vT0}")
            self(f"s_cbranch_vccz {done}")
            self(f"s_sub_u32 s{sBUD}, s{sBUD}, 1")
            self(f"s_cbranch_scc0 {lp}")
            self(f"s_mov_b32 s{sBUD}, 0")
            self(f"{done}:")

    def poll_a(self, soff, imm):
        if self.o.get("pp", 1):
            self.vmem(f"buffer_load_dword v{vT0}, v{vT3}, {srd(S_WS)}, s{soff} offen offset:{imm} sc1", "pa")

    def poll_b(self, soff, imm):
        if not self.o.get("pp", 1):
            return self.poll(soff, imm)
        self.seen = {t for t in self.seen if not (isinstance(t, tuple) and t[0] in ("act", "h"))}
        lp, done = self.label("L_poll"), self.label("L_pd")
        ld = lambda v: f"buffer_load_dword v{v}, v{vT3}, {srd(S_WS)}, s{soff} offen offset:{imm} sc1"
        self(f"{lp}:")
        self(ld(vT2))
        self("s_waitcnt vmcnt(1)")
        self(f"v_cmp_ne_u32 vcc, s{sTAG}, v{vT0}")
        self(f"s_cbranch_vccz {done}")
        self(ld(vT0))
        self("s_waitcnt vmcnt(1)")
        self(f"v_cmp_ne_u32 vcc, s{sTAG}, v{vT2}")
        self(f"s_cbranch_vccz {done}")
        self(f"s_sub_u32 s{sBUD}, s{sBUD}, 1")
        self(f"s_cbranch_scc0 {lp}")
        self(f"s_mov_b32 s{sBUD}, 0")
        self(f"{done}:")
        self.vm = ["pb"]

    def stores(self, items, force_sc1, tag="st"):
        with self.atomic():
            if force_sc1:
                for it in items:
                    self.vmem(it + " sc1", tag)
                return
            ls, le = self.label("L_ss"), self.label("L_se")
            self(f"s_cmp_lg_u32 s{sSLOW}, 0")
            self(f"s_cbranch_scc1 {ls}")
            for it in items:
                self.vmem(it + (self.fast if tag == "st" else ""), tag)
            self(f"{le}:")
            self.tailcode += [f"{ls}:"] + ["    " + it + " sc1" for it in items] + [f"    s_branch {le}"]

    def flag(self, soff, imm):
        with self.atomic():
            self(f"v_mov_b32 v{vT1}, s{sTAG}")
            self.vm_wait("st")
            self("s_mov_b64 exec, 1")
            self.stores([f"buffer_store_dword v{vT1}, v{vL16}, {srd(S_WS)}, s{soff} offen offset:{imm}"], False, "flag")
            self("s_mov_b64 exec, -1")

    def gemm_begin(self, frags, D=6):
        self.gid = getattr(self, "gid", 0) + 1
        g = dict(frags=frags, D=D, gid=self.gid, rp=0, reads=[])
        for t, f in enumerate(frags):
            s = vWB + 4 * (t % 8)
            if len(f["offs"]) == 2:
                for hh in range(2):
                    g["reads"].append((t, f"ds_read_b64_tr_b16 {vr(s + 2*hh, 2)}, v{f['addr']} offset:{f['offs'][hh]}"))
            else:
                g["reads"].append((t, f"ds_read_b128 {vr(s, 4)}, v{f['addr']} offset:{f['offs'][0]}"))
        self._issue(g, D - 1, 99)
        return g

    def _issue(self, g, tmax, maxn):
        c = 0
        reads = g["reads"]
        while g["rp"] < len(reads) and reads[g["rp"]][0] <= tmax and c < maxn:
            self.lds(reads[g["rp"]][1], ("w", g["gid"], reads[g["rp"]][0]))
            g["rp"] += 1
            c += 1

    def gemm_run(self, g, fill=None):
        fill = fill or {}
        frags, D, gid = g["frags"], g["D"], g["gid"]
        n = len(frags)
        mi = 0
        pend = []
        LATE = self.o.get("late", 3)
        for t, f in enumerate(frags):
            s = vWB + 4 * (t % 8)
            if t % 2 == 0:
                self.ds_wait(("w", gid, min(t + 1, n - 1)))
            nm = len(f["mf"])
            for j, (acc, act_, sw, first, wt) in enumerate(f["mf"]):
                if wt is not None:
                    self.vm_wait(wt)
                c = "0" if first else vr(acc, 4) if acc is not None else ar(aCS, 4)
                if acc is None:
                    self(f"v_mfma_f32_16x16x32_bf16 {ar(aCS,4)}, {ar(aONES,4)}, {vr(s,4)}, {c}")
                elif sw:
                    self(f"v_mfma_f32_16x16x32_bf16 {vr(acc,4)}, {vr(s,4)}, {vr(act_,4)}, {c}")
                else:
                    self(f"v_mfma_f32_16x16x32_bf16 {vr(acc,4)}, {vr(act_,4)}, {vr(s,4)}, {c}")
                rp0 = g["rp"]
                self._issue(g, t + D, 99 if j == nm - 1 else 1)
                room = 8 - 4 * (g["rp"] - rp0) - (4 if (j == nm - 1 and t % 2 == 1) else 0)
                pend += [(mi, x) for x in fill.pop(mi, [])]
                while pend:
                    cst = getattr(pend[0][1], "cost", 4)
                    if cst <= room or (room == 8 and cst > 8) or mi - pend[0][0] >= LATE:
                        self.play([pend.pop(0)[1]])
                        room -= cst
                    else:
                        break
                mi += 1
        self.play([x for _, x in pend])
        for key in sorted(fill):
            self.play(fill[key])

    def gemm(self, frags, fill=None, D=6):
        self.gemm_run(self.gemm_begin(frags, D), fill)


def merge_waits(lines):
    import re
    out = []
    for l in lines:
        m = re.match(r"\s*s_waitcnt (\w+)\((\d+)\)$", l)
        if m and out:
            p = re.match(r"\s*s_waitcnt (\w+)\((\d+)\)$", out[-1])
            if p and p.group(1) != m.group(1):
                out[-1] = out[-1] + f" {m.group(1)}({m.group(2)})"
                continue
        out.append(l)
    return out


def spread(fill, items, start, step, per=1):
    p = start
    if step == 0:
        g = lambda: [x() for x in items]
        g.cost = sum(getattr(x, "cost", 4) for x in items)
        fill.setdefault(int(p), []).append(g)
        return p
    for i in range(0, len(items), per):
        fill.setdefault(int(p), []).extend(items[i:i + per])
        p += step
    return p


def insn_sizes(lines, tailcode):
    import subprocess, tempfile, re, os
    src = [".amdgcn_target \"amdgcn-amd-amdhsa--gfx950\"", ".text", ".set CODE_BYTES, 0x12345"]
    for i, l in enumerate(lines):
        src.append(f"Lz{i}:")
        src.append(l)
    src.append(f"Lz{len(lines)}:")
    src += tailcode
    with tempfile.TemporaryDirectory() as d:
        open(d + "/a.s", "w").write("\n".join(src) + "\n")
        subprocess.run(["clang", "-x", "assembler", "-target", "amdgcn-amd-amdhsa", "-mcpu=gfx950", "-c", d + "/a.s", "-o", d + "/a.o"], check=True)
        out = subprocess.run(["llvm-objdump", "-t", d + "/a.o"], capture_output=True, text=True, check=True).stdout
    addr = {}
    for l in out.splitlines():
        m = re.match(r"([0-9a-f]+) .*\sLz(\d+)$", l)
        if m:
            addr[int(m.group(2))] = int(m.group(1), 16)
    return [addr[i + 1] - addr[i] for i in range(len(lines))]


def add_pads(lines, tailcode, step, splits):
    def call(first, ret):
        c = ["    s_mov_b64 exec, 0"]
        for w in range(3):
            c += [f"    s_cmp_eq_u32 s{sW}, {w}", f"    s_cbranch_scc1 L_pad{first + w}"]
        return c + [f"    s_branch L_pad{first + 3}"]
    src = []
    for l in lines:
        t = l.strip()
        if t.startswith("PADCALL") and t != "PADCALL":
            g = int(t[7:])
            if g <= len(splits):
                src += ["    s_nop 0 ; CALL%d" % g] * 9
        else:
            src.append(l)
    ci = [i for i, l in enumerate(src) if l.strip() == "PADCALL"][0]
    src = src[:ci] + src[ci + 1:]
    sz = insn_sizes(src, tailcode)
    body, pos, nxt, n = [], 4, step, 0
    for i in range(ci, len(src)):
        if pos >= nxt and sz[i] > 0 and "; CALL" not in src[i]:
            body.append(("PAD", n))
            n += 1
            pos += 4
            nxt = (pos // step + 1) * step
        body.append(src[i])
        pos += sz[i]
    bounds = [0] + list(splits) + [n]
    assert all(bounds[i + 1] - bounds[i] >= 4 for i in range(len(bounds) - 1)), (bounds, n)
    out = src[:ci] + call(0, 0) + [".p2align 12", "L_padret0:", "    s_mov_b64 exec, -1"]
    done = set()
    for x in body:
        if isinstance(x, tuple):
            j = x[1]
            g = max(i for i in range(len(bounds) - 1) if bounds[i] <= j)
            out += [f"L_pad{j}:", f"    s_cbranch_execz {'L_pad%d' % (j + 4) if j + 4 < bounds[g + 1] else 'L_padret%d' % g}"]
        elif "; CALL" in x:
            g = int(x.split("CALL")[1])
            if g not in done:
                done.add(g)
                out += call(bounds[g], g) + [f"L_padret{g}:", "    s_mov_b64 exec, -1"]
        else:
            out.append(x)
    return out


def mix(a, b, ratio):
    out = []
    bi = 0
    for i, x in enumerate(a):
        out.append(x)
        if (i + 1) % ratio == 0 and bi < len(b):
            out.append(b[bi]); bi += 1
    out.extend(b[bi:])
    return out


def act(ks, rb):
    return vACT + 8 * ks + 4 * rb


def gen(stamps=False, opts=None):
    k = K(stamps, opts)
    o = k.o
    if stamps:
        k(f"{'s_memrealtime' if o.get('rt') else 's_memtime'} s[{sST}:{sST+1}]")
        k(f"s_memrealtime s[{sPC}:{sPC+1}]")
    k(f"""
    s_cmp_ge_u32 s2, 256
    s_cbranch_scc1 L_end
    s_load_dwordx2 s[{S_X}:{S_X+1}], s[0:1], 0
    s_load_dwordx2 s[{S_WQKV}:{S_WQKV+1}], s[0:1], 8
    s_load_dwordx2 s[{S_WS}:{S_WS+1}], s[0:1], 64
    s_load_dwordx2 s[{S_WO}:{S_WO+1}], s[0:1], 16
    s_load_dwordx2 s[{S_W1}:{S_W1+1}], s[0:1], 32
    s_load_dwordx2 s[{S_W2}:{S_W2+1}], s[0:1], 40
    s_load_dwordx2 s[{S_OUT}:{S_OUT+1}], s[0:1], 48
    """)
    if o.get("cw0", 1):
        k(f"""
        s_getpc_b64 s[{S_A}:{S_A+1}]
        L_pcref:
        s_lshr_b32 s{sT2}, s2, 3
        s_lshl_b32 s{sT2}, s{sT2}, 11
        v_lshlrev_b32 v{vT3}, 3, v0
        v_add_u32 v{vT3}, s{sT2}, v{vT3}
        v_min_u32 v{vT3}, CODE_BYTES, v{vT3}
        s_mov_b32 exec_lo, 0x10001
        s_mov_b32 exec_hi, 0x10001
        global_load_dword a{aDUM}, v{vT3}, s[{S_A}:{S_A+1}]
        s_mov_b64 exec, -1
        """)
    k(f"""
    v_lshrrev_b32 v{vT0}, 6, v0
    v_and_b32 v{vLANE}, 63, v0
    s_mov_b32 s{S_X+2}, {2048*1024}
    v_readfirstlane_b32 s{sW}, v{vT0}
    s_mov_b32 s{S_X+3}, 0x20000
    s_mov_b32 s{S_WQKV+2}, {512*3072}
    s_mov_b32 s{S_WQKV+3}, 0x20000
    s_lshr_b32 s{sT0}, s2, 3
    s_and_b32 s{sC}, s{sT0}, 15
    s_lshr_b32 s{sT0}, s{sT0}, 4
    s_and_b32 s{sG}, s2, 7
    s_lshl1_add_u32 s{sG}, s{sG}, s{sT0}
    s_lshr_b32 s{sT1}, s{sC}, 1
    s_xor_b32 s{sT1}, s{sT1}, s{sT0}
    s_and_b32 s{sT1}, s{sT1}, 1
    s_and_b32 s{sRHO}, s{sC}, 1
    s_lshl1_add_u32 s{sRHO}, s{sT1}, s{sRHO}
    v_lshlrev_b32 v{vL16}, 4, v{vLANE}
    """)
    if stamps:
        k(f"v_mov_b32 v{vSTAMP}, 0")
    NTP = " nt" if o.get("nt", 0) & 1 else ""
    NTX = " nt" if o.get("nt", 0) & 2 else ""
    XS, XR, X2R = vRES, vRES + 4, act(15, 1)
    aRES = 246
    k(f"""
    v_lshrrev_b32 v{vT0}, 4, v{vLANE}
    v_and_b32 v{vT1}, 15, v{vLANE}
    v_xor_b32 v{vT2}, v{vT0}, v{vT1}
    v_lshlrev_b32 v{vT2}, 4, v{vT2}
    v_lshl_add_u32 v{XS}, v{vT0}, 10, v{vT2}
    v_xor_b32 v{XS+1}, 64, v{XS}
    v_xor_b32 v{XS+2}, 0x80, v{XS}
    v_xor_b32 v{XS+3}, 0xc0, v{XS}
    v_lshrrev_b32 v{vP}, 2, v{vLANE}
    v_and_b32 v{vCH}, 3, v{vLANE}
    v_lshrrev_b32 v{vT3}, 3, v{vLANE}
    v_and_b32 v{vT3}, 2, v{vT3}
    v_xor_b32 v{vCH}, v{vCH}, v{vT3}
    v_lshlrev_b32 v{vCH}, 4, v{vCH}
    v_and_b32 v{vT3}, 3, v{vP}
    v_lshl_add_u32 v{vT3}, v{vT0}, 3, v{vT3}
    s_movk_i32 s{sT1}, 3072
    v_mad_u32_u24 v{vDM}, v{vT3}, s{sT1}, v{vCH}
    s_lshl_b32 s{sL0}, s{sW}, 14
    s_add_u32 s{sL0}, s{sL0}, {L_XST}
    s_lshl_b32 s{sT1}, s{sG}, 17
    s_lshl_b32 s{sT2}, s{sW}, 15
    s_add_u32 s{sT1}, s{sT1}, s{sT2}
    s_lshl_b32 s{sL1}, s{sW}, 12
    """)
    for r in range(4):
        k(f"""
        s_add_u32 s{sT2}, s{sRHO}, {r}
        s_and_b32 s{sT2}, s{sT2}, 3
        s_lshl_b32 s{sT3}, s{sT2}, 8
        s_add_u32 s{sD0+r}, s{sT1}, s{sT3}
        s_lshl2_add_u32 s{sT2}, s{sT2}, s{sW}
        s_mul_i32 s{sT2}, s{sT2}, {32*3072}
        s_lshl_b32 s{sT3}, s{sC}, 6
        s_add_u32 s{sRB+r}, s{sT2}, s{sT3}
        """)
    k("s_waitcnt lgkmcnt(0)")
    k(f"s_load_dword s{sEP}, s[{S_WS}:{S_WS+1}], {WS_EPOCH}")
    if stamps:
        k(f"v_writelane_b32 v{vSTAMP}, s{sST}, 62")
        k(f"v_writelane_b32 v{vSTAMP}, s{sPC}, 63")

    def xslot(q, js=range(8)):
        for j in js:
            k.dma(S_X, XS + (j & 3), sD0 + q, j * 4096, sL0, (q & 1) * 8192 + j * 1024, ("xs", q), " nt" if o.get("nt", 0) & 4 else "")

    def wkv_raw(r):
        for pr in range(2):
            for hh in range(2):
                k.dma(S_WQKV, vDM, sRB + r, hh * 4 * 3072 + 1024 * (pr + 1), sL1, R0 + r * 16384 + pr * 2048 + hh * 1024, ("wkv", r))

    def quad_lane(pitch, dst=vDM, tmp=vT2, sD3=sD3):
        vT2 = tmp
        k(f"v_lshrrev_b32 v{dst}, 3, v{vLANE}")
        k(f"v_and_b32 v{vT2}, 6, v{dst}")
        k(f"v_xor_b32 v{vT2}, v{vT2}, v{vLANE}")
        k(f"v_and_b32 v{vT2}, 7, v{vT2}")
        k(f"v_lshlrev_b32 v{vT2}, 4, v{vT2}")
        if isinstance(pitch, int):
            k(f"s_movk_i32 s{sD3}, {pitch}")
            pitch = f"s{sD3}"
        k(f"v_mad_u32_u24 v{dst}, v{dst}, {pitch}, v{vT2}")

    def dma_raw(sr, lds_imm, first, R=None):
        sD0_, sD2_, sL0_, vDM_ = R or (sD0, sD2, sL0, vDM)
        with k.atomic():
            k(f"s_add_u32 m0, s{sL0_}, {lds_imm}")
            k("s_nop 0" if first else f"s_add_u32 s{sD0_}, s{sD0_}, s{sD2_}")
            k(f"buffer_load_dwordx4 v{vDM_}, {srd(sr)}, s{sD0_} offen{NTP} lds")

    def packU_issue(base, sD0, sD1, sD2, sD3, sL0, vDM, sPDA, shift=12):
        R = (sD0, sD2, sL0, vDM)
        l2, l3, lq, le = k.label("L_u2"), k.label("L_u3"), k.label("L_uq"), k.label("L_ue")
        with k.atomic():
            k(f"""
            s_lshl_b32 s{sL0}, s{sW}, {shift}
            s_add_u32 s{sL0}, s{sL0}, {base}
            s_lshr_b32 s{sD0}, s{sC}, 2
            s_mul_i32 s{sD0}, s{sD0}, 896
            s_mul_i32 s{sD1}, s{sG}, {32*3584}
            s_add_u32 s{sD0}, s{sD0}, s{sD1}
            s_and_b32 s{sD1}, s{sC}, 3
            s_cmp_eq_u32 s{sW}, 3
            s_cbranch_scc1 {l3}
            s_cmp_eq_u32 s{sW}, 2
            s_cbranch_scc1 {l2}
            s_mov_b32 s{S_A}, s{S_W2}
            s_mov_b32 s{S_A+1}, s{S_W2+1}
            s_mov_b32 s{S_A+2}, {1792*1024}
            s_movk_i32 s{sD2}, 1024
            s_lshl1_add_u32 s{sD0}, s2, s{sW}
            s_lshr_b32 s{sD1}, s{sD0}, 3
            s_and_b32 s{sD0}, s{sD0}, 7
            s_mul_i32 s{sPDA}, s{sD0}, 56
            s_add_u32 s{sPDA}, s{sPDA}, s{sD1}
            s_lshl_b32 s{sPDA}, s{sPDA}, 12
            s_add_u32 s{sPDA}, s{sPDA}, {WS_W2T}
            s_cmp_ge_u32 s{sD1}, 56
            s_cselect_b32 s{sPDA}, {OOB}, s{sPDA}
            s_lshl_b32 s{sD1}, s{sD1}, 15
            s_lshl_b32 s{sD0}, s{sD0}, 7
            s_add_u32 s{sD0}, s{sD0}, s{sD1}
            s_branch {lq}
            {l2}:
            s_mov_b32 s{S_A}, s{S_W1}
            s_mov_b32 s{S_A+1}, s{S_W1+1}
            s_mov_b32 s{S_A+2}, {512*3584}
            s_movk_i32 s{sD2}, 3584
            s_lshl_b32 s{sD1}, s{sD1}, 7
            s_add_u32 s{sD0}, s{sD0}, s{sD1}
            s_lshl_b32 s{sPDA}, s{sG}, 12
            s_add_u32 s{sPDA}, s{sPDA}, s{sPKB}
            s_add_u32 s{sPDA}, s{sPDA}, {PK_W1A}
            {lq}:
            s_mov_b32 s{S_A+3}, 0x20000
            """)
            quad_lane(f"s{sD2}", vDM, vT2 if shift == 14 else vACT + 127)
            k(f"s_lshl_b32 s{sD2}, s{sD2}, 3")
            for j in range(4):
                dma_raw(S_A, j * 1024, j == 0, R)
            k(f"""
            s_branch {le}
            {l3}:
            s_movk_i32 s{sD3}, 3584
            s_mul_i32 s{sPDA}, s{sG}, 3072
            s_add_u32 s{sPDA}, s{sPDA}, s{sPKB}
            s_add_u32 s{sPDA}, s{sPDA}, {PK_W1B}
            s_lshr_b32 s{sT5}, s{sD1}, 1
            s_mul_i32 s{sT5}, s{sT5}, 6
            s_and_b32 s{sD2}, s{sD1}, 1
            s_add_u32 s{sT5}, s{sT5}, s{sD2}
            s_add_u32 s{sT5}, s{sT5}, 18
            s_lshl_b32 s{sT5}, s{sT5}, 5
            s_add_u32 s{sT5}, s{sT5}, s{sD0}
            v_lshrrev_b32 v{vDM}, 1, v{vLANE}
            v_and_b32 v{vT2 if shift == 14 else vACT + 127}, 16, v{vL16}
            v_mad_u32_u24 v{vDM}, v{vDM}, s{sD3}, v{vT2 if shift == 14 else vACT + 127}
            s_add_u32 m0, s{sL0}, 2048
            s_mul_i32 s{sD1}, s{sD1}, 3
            buffer_load_dwordx4 v{vDM}, {srd(S_W1)}, s{sT5} offen{NTP} lds
            s_add_u32 s{sD1}, s{sD1}, 17
            s_lshr_b32 s{sD1}, s{sD1}, 1
            s_lshl_b32 s{sD1}, s{sD1}, 6
            s_add_u32 s{sD0}, s{sD0}, s{sD1}
            s_mov_b32 s{sD2}, {16*3584}
            v_mad_u32_u24 v{vDM}, v{vP}, s{sD3}, v{vCH}
            """)
            for hh in range(2):
                dma_raw(S_W1, hh * 1024, hh == 0, R)
            k(f"buffer_load_dword a{aDUM}, v{vL16}, {srd(S_W1)}, s{S_W1+2} offen")
            k(f"{le}:")
            k.vm_note(4, "pu")

    WP = o.get("wp", 1)

    def warm():
        k(f"v_lshlrev_b32 v{vT3}, 7, v{vLANE}")
        k("s_mov_b64 exec, 0xf")
        if not o.get("cw0", 1):
            k(f"""
            s_getpc_b64 s[{sPC}:{sPC+1}]
            L_pcref:
            s_lshr_b32 s{sT2}, s2, 3
            s_lshl2_add_u32 s{sT2}, s{sT2}, s{sW}
            s_lshl_b32 s{sT2}, s{sT2}, 9
            s_min_u32 s{sT2}, s{sT2}, CODE_BYTES
            s_add_u32 s{sPC}, s{sPC}, s{sT2}
            s_addc_u32 s{sPC+1}, s{sPC+1}, 0
            """)
            k.vmem(f"global_load_dword a{aDUM}, v{vT3}, s[{sPC}:{sPC+1}]")
        if o.get("warm", 1) >= 1:
            k(f"s_lshl2_add_u32 s{sT2}, s2, s{sW}")
            k(f"s_lshr_b32 s{sT3}, s{sT2}, 1")
            k(f"s_mul_i32 s{sT3}, s{sT3}, 3072")
            k(f"s_and_b32 s{sT4}, s{sT2}, 1")
            k(f"s_lshl_b32 s{sT4}, s{sT4}, 9")
            k(f"s_add_u32 s{sT3}, s{sT3}, s{sT4}")
            k.vmem(f"buffer_load_dword a{aDUM}, v{vT3}, {srd(S_WQKV)}, s{sT3} offen")
            if not WP:
                k(f"s_lshl_b32 s{sT3}, s{sT2}, 9")
                k.vmem(f"buffer_load_dword a{aDUM}, v{vT3}, {srd(S_WO)}, s{sT3} offen")
        if o.get("tlb", 0):
            k("s_mov_b64 exec, 1")
            k(f"s_mul_i32 s{sT3}, s{sT2}, 1792")
            k.vmem(f"buffer_load_dword a{aDUM}, v{vT3}, {srd(S_W1)}, s{sT3} offen")
            k.vmem(f"buffer_load_dword a{aDUM}, v{vT3}, {srd(S_W2)}, s{sT3} offen")
            if o["tlb"] > 1:
                k("s_mov_b64 exec, 0x1f")
                k(f"v_lshlrev_b32 v{vWB}, 21, v{vLANE}")
                k(f"s_mov_b32 s{sT3}, {WS_KVX + 0x1f0000}")
                k.vmem(f"buffer_load_dword a{aDUM}, v{vWB}, {srd(S_WS)}, s{sT3} offen")
        if o.get("warm", 1) >= 2:
            k(f"s_mul_i32 s{sT3}, s{sT2}, 1792")
            k("s_mov_b64 exec, 0x3fff")
            k.vmem(f"buffer_load_dword a{aDUM}, v{vT3}, {srd(S_W1)}, s{sT3} offen")
            k.vmem(f"buffer_load_dword a{aDUM}, v{vT3}, {srd(S_W2)}, s{sT3} offen")
        k(f"s_lshl2_add_u32 s{sT2}, s{sC}, s{sW}")
        k(f"s_lshl_b32 s{sT2}, s{sT2}, 8")
        k(f"s_add_u32 s{sT2}, s{sT2}, s{sGB}")
        k("s_mov_b64 exec, 3")
        k.vmem(f"buffer_load_dword a{aDUM}, v{vT3}, {srd(S_WS)}, s{sT2} offen sc1", "touch")
        k("s_mov_b64 exec, -1")

    OWN = vACC
    k(f"s_lshl_b32 s{sT2}, s{sC}, 11")
    k(f"s_add_u32 s{sT2}, s{sT2}, s{sT1}")
    for r in range(2):
        k.vmem(f"buffer_load_dwordx4 {vr(OWN+4*r,4)}, v{vL16}, {srd(S_X)}, s{sT2} offen offset:{r*1024}{NTX}", "own")
    w0_ = k.rec(lambda: wkv_raw(0))
    nw0 = o.get("nw0", 2)
    k.play(w0_[:nw0])
    k(f"""
    s_mov_b32 s{S_WO+2}, {512*1024}
    s_mov_b32 s{S_WO+3}, 0x20000
    s_mov_b32 s{S_W1+2}, {512*3584}
    s_mov_b32 s{S_W1+3}, 0x20000
    s_mov_b32 s{S_W2+2}, {1792*1024}
    s_mov_b32 s{S_W2+3}, 0x20000
    s_mov_b32 s{S_WS+2}, {WS_USED}
    s_mov_b32 s{S_WS+3}, 0x20000
    s_lshl_b32 s{sGB}, s{sG}, 20
    s_add_u32 s{sGB}, s{sGB}, {GRP0}
    """)
    warm()
    UF = o.get("uf", 1)
    k(f"s_mul_i32 s{sPKB}, s{sC}, {PK_SZ}")
    k(f"s_add_u32 s{sPKB}, s{sPKB}, {WS_PK}")
    if UF == 1:
        packU_issue(R1, sH1, sH1b, sH2, sH2b, sH3, vWB + 8, sPDB)
    if WP:
        quad_lane(1024, vWB + 8, vACT + 127, sH2b)
        k(f"""
        s_lshl2_add_u32 s{sH1}, s{sG}, s{sW}
        s_lshl_b32 s{sPDA}, s{sH1}, 10
        s_add_u32 s{sPDA}, s{sPDA}, s{sPKB}
        s_add_u32 s{sPDA}, s{sPDA}, {PK_WO}
        s_lshl_b32 s{sH1}, s{sH1}, 13
        s_lshl_b32 s{sH1b}, s{sC}, 7
        s_add_u32 s{sH1}, s{sH1}, s{sH1b}
        s_cmp_ge_u32 s{sC}, 8
        s_cselect_b32 s{sH1}, {OOB}, s{sH1}
        s_cselect_b32 s{sPDA}, {OOB}, s{sPDA}
        s_lshl_b32 s{sH1b}, s{sW}, 10
        s_add_u32 m0, s{sH1b}, {R0 + 49152}
        s_nop 0
        """)
        k.vmem(f"buffer_load_dwordx4 v{vWB+8}, {srd(S_WO)}, s{sH1} offen{NTP} lds", "pwo")

    k.play(w0_[nw0:])

    if o.get("diags"): k.stamp("iss0")

    def arm(mode):
        with k.atomic():
            k(f"s_lshl2_add_u32 s{sT2}, s{sC}, s{sW}")
            k(f"s_lshl_b32 s{sT3}, s{sT2}, 11")
            k(f"s_add_u32 s{sT3}, s{sT3}, s{sGB}")
            k(f"s_add_u32 s{sT3}, s{sT3}, {G_X1}")
            k(f"s_lshr_b32 s{sT4}, s{sT2}, 3")
            k(f"s_mul_i32 s{sT4}, s{sT4}, 57344")
            k(f"s_and_b32 s{sT2}, s{sT2}, 7")
            k(f"s_mul_i32 s{sT2}, s{sT2}, {5120 if mode & 4 else 1024}")
            k(f"s_add_u32 s{sT4}, s{sT4}, s{sT2}")
            k(f"s_add_u32 s{sT4}, s{sT4}, s{sGB}")
            k(f"s_add_u32 s{sT4}, s{sT4}, {G_H + 16*1024}")
            k(f"s_add_u32 s{sT2}, s{sT4}, 4096")
        if mode & 1:
            for j in range(2):
                k.vmem(f"buffer_store_dwordx4 {vr(vQ0,4)}, v{vL16}, {srd(S_WS)}, s{sT3} offen offset:{j*1024} sc1", "arm")
        for j in range(5 if mode & 4 else 1 if mode & 2 else 0):
            k.vmem(f"buffer_store_dwordx4 {vr(vQ0,4)}, v{vL16}, {srd(S_WS)}, s{sT4 if j < 4 else sT2} offen offset:{(j%4)*1024} sc1", "arm")

    k(f"""
    s_mov_b32 s{S_OUT+2}, {2048*1024}
    s_mov_b32 s{S_OUT+3}, 0x20000
    s_lshr_b32 s{sDH}, s{sC}, 3
    s_and_b32 s{sCT}, s{sC}, 7
    s_mov_b32 s{sBUD}, 150000
    s_mov_b32 s{sEPS}, 0x358637bd
    s_mov_b32 s{sEPS+1}, 0x358637bd
    s_getreg_b32 s{sXCC}, hwreg(HW_REG_XCC_ID, 0, 4)
    s_lshl_b32 s{sACT}, s{sW}, 15
    s_add_u32 s{sACT}, s{sACT}, s{sGB}
    s_add_u32 s{sACT1}, s{sACT}, 16384
    s_lshl2_add_u32 s{sT0}, s{sDH}, s{sW}
    s_lshl_b32 s{sBACT}, s{sT0}, 14
    s_add_u32 s{sBACT}, s{sBACT}, s{sGB}
    s_lshl_b32 s{sTILE}, s{sCT}, 11
    s_add_u32 s{sTILE}, s{sTILE}, s{sBACT}
    s_mul_i32 s{sBACT}, s{sT0}, 57344
    s_add_u32 s{sBACT}, s{sBACT}, s{sGB}
    s_mul_i32 s{sOST}, s{sW}, {2*57344}
    s_lshl_b32 s{sOST1}, s{sC}, 10
    s_add_u32 s{sOST}, s{sOST}, s{sOST1}
    s_add_u32 s{sOST}, s{sOST}, s{sGB}
    s_add_u32 s{sOST}, s{sOST}, {G_O}
    s_add_u32 s{sOST1}, s{sOST}, 57344
    s_lshl_b32 s{sFXp}, s{sW}, 7
    s_add_u32 s{sFXp}, s{sFXp}, s{sGB}
    s_lshl2_add_u32 s{sFOo}, s{sC}, s{sFXp}
    s_lshl_b32 s{sFHp}, s{sT0}, 7
    s_add_u32 s{sFHp}, s{sFHp}, s{sGB}
    s_lshr_b32 s{sT0}, s{sT0}, 1
    s_mov_b32 s{sT1}, s{sT0}
    s_lshl_b32 s{sFOp}, s{sT0}, 7
    s_add_u32 s{sFOp}, s{sFOp}, s{sGB}
    s_and_b32 s{sT2}, s{sW}, 1
    s_lshl1_add_u32 s{sT3}, s{sCT}, s{sT2}
    s_lshl2_add_u32 s{sFXo}, s{sT3}, s{sFOp}
    s_lshl3_add_u32 s{sT3}, s{sT0}, s{sCT}
    s_lshl_b32 s{sT3}, s{sT3}, 8
    s_lshl3_add_u32 s{sT3}, s{sT2}, s{sT3}
    s_add_u32 s{sSTo}, s{sT3}, s{sGB}
    s_lshl_b32 s{sSTg}, s{sW}, 11
    s_add_u32 s{sSTg}, s{sSTg}, s{sGB}
    s_lshl2_add_u32 s{sT1}, s{sT1}, s{sT2}
    s_lshl_b32 s{sT1}, s{sT1}, 6
    s_add_u32 s{sT1}, s{sT1}, {L_STAT + 128}
    v_lshl_add_u32 v{vT3}, v{vT1}, 2, s{sT1}
    v_accvgpr_write_b32 a{cRSD}, v{vT3}
    s_mul_i32 s{sT0}, s{sW}, {2*57344}
    s_add_u32 s{sT0}, s{sT0}, s{sGB}
    s_lshr_b32 s{sT3}, s{sC}, 2
    s_add_u32 s{sT0}, s{sT0}, {G_H}
    s_lshl_b32 s{sH1}, s{sC}, 11
    s_add_u32 s{sH1}, s{sH1}, {24*1024}
    s_add_u32 s{sH1}, s{sH1}, s{sT0}
    s_add_u32 s{sH1b}, s{sH1}, 57344
    s_mul_i32 s{sT4}, s{sT3}, 6144
    s_add_u32 s{sT0}, s{sT0}, s{sT4}
    s_and_b32 s{sT4}, s{sC}, 3
    s_mul_i32 s{sH2}, s{sT4}, 3
    s_add_u32 s{sH2}, s{sH2}, 1
    s_lshr_b32 s{sH2}, s{sH2}, 1
    s_lshl_b32 s{sH2}, s{sH2}, 10
    s_add_u32 s{sH2}, s{sH2}, s{sT0}
    s_add_u32 s{sH2b}, s{sH2}, 57344
    s_lshr_b32 s{sH3}, s{sT4}, 1
    s_mul_i32 s{sH3}, s{sH3}, 3072
    s_and_b32 s{sH3b}, s{sT4}, 1
    s_lshl3_add_u32 s{sH3}, s{sH3b}, s{sH3}
    s_add_u32 s{sH3}, s{sH3}, 1024
    s_add_u32 s{sH3}, s{sH3}, s{sT0}
    s_add_u32 s{sH3b}, s{sH3}, 57344
    s_lshr_b32 s{sT0}, s{sW}, 1
    s_lshl2_add_u32 s{sT0}, s{sT0}, s{sT3}
    s_lshl_b32 s{sT0}, s{sT0}, 7
    s_lshl1_add_u32 s{sT2}, s{sT4}, s{sT2}
    s_lshl2_add_u32 s{sT0}, s{sT2}, s{sT0}
    s_add_u32 s{sFHo}, s{sT0}, s{sGB}
    """)
    k(f"""
    s_mul_i32 s{sT0}, s{sC}, {KVX_C}
    s_add_u32 s{sT0}, s{sT0}, {WS_KVX}
    s_lshl_b32 s{sT1}, s{sW}, 13
    s_add_u32 s{sKVC}, s{sT0}, s{sT1}
    s_lshl_b32 s{sT2}, s{sW}, 14
    s_lshl_b32 s{sT3}, s{sG}, 10
    s_lshl_b32 s{sT4}, s{sG}, 7
    s_cmp_lt_u32 s{sW}, 2
    s_cselect_b32 s{sT3}, s{sT3}, s{sT4}
    s_cselect_b32 s{sKM}, -1, 0x30003
    s_cselect_b32 s{sKM+1}, -1, 0x30003
    s_cselect_b64 vcc, -1, 0
    s_add_u32 s{sKVP}, s{sT0}, s{sT2}
    s_add_u32 s{sKVP}, s{sKVP}, s{sT3}
    s_cmp_eq_u32 s{sW}, 3
    s_cselect_b32 s{sKVP}, {OOB}, s{sKVP}
    v_lshlrev_b32 v{vT3}, 4, v{vT0}
    v_lshl_add_u32 v{vT3}, v{vT1}, 6, v{vT3}
    v_cndmask_b32 v{vT3}, v{vT3}, v{vL16}, vcc
    v_accvgpr_write_b32 a{cKVS}, v{vT3}
    v_lshlrev_b32 v{vT3}, 2, v{vL16}
    v_and_b32 v{vT3}, 0xf00, v{vT3}
    v_lshrrev_b32 v{vT3}, 1, v{vT3}
    v_and_b32 v{vWB}, 48, v{vL16}
    s_lshr_b32 s{sT2}, s{sW}, 1
    s_lshl_b32 s{sT2}, s{sT2}, 6
    s_add_u32 s{sT2}, s{sT2}, 32768
    s_sub_u32 s{sT2}, s{sT2}, s{sT1}
    v_add3_u32 v{vT3}, v{vT3}, v{vWB}, s{sT2}
    v_accvgpr_write_b32 a{cZL}, v{vT3}
    v_and_b32 v{vWB+5}, 1, v{vLANE}
    v_cndmask_b32 v{vWB+5}, v{vWB+5}, 0, vcc
    s_min_u32 s{sT5}, s{sW}, 2
    """)
    W = vWB
    k(f"""
    v_lshl_add_u32 v{XR}, v{vT1}, 8, v{vT2}
    v_add_u32 v{XR}, s{sL0}, v{XR}
    v_xor_b32 v{XR+1}, 64, v{XR}
    v_xor_b32 v{XR+2}, 0x80, v{XR}
    v_xor_b32 v{XR+3}, 0xc0, v{XR}
    v_and_b32 v{vT3}, 3, v{vLANE}
    v_lshlrev_b32 v{vT3}, 3, v{vT3}
    v_lshl_add_u32 v{vTR0}, v{vP}, 6, v{vT3}
    v_lshl_add_u32 v{vQ0}, v{vP}, 7, v{vT3}
    v_and_b32 v{vT3}, 1, v{vT0}
    v_lshlrev_b32 v{vT3}, 5, v{vT3}
    v_add_u32 v{vTR0}, v{vTR0}, v{vT3}
    v_xor_b32 v{vTR1}, 32, v{vTR0}
    v_bfe_u32 v{vT3}, v{vLANE}, 3, 2
    v_lshl_add_u32 v{vQ0}, v{vT3}, 5, v{vQ0}
    v_xor_b32 v{vQ1}, 32, v{vQ0}
    v_xor_b32 v{vQ2}, 64, v{vQ0}
    v_xor_b32 v{vQ3}, 0x60, v{vQ0}
    v_lshlrev_b32 v{W}, 2, v{vT1}
    v_accvgpr_write_b32 a{cP16}, v{W}
    v_mov_b32 v{W+1}, {BF1}
    v_accvgpr_write_b32 a{aONES}, v{W+1}
    v_accvgpr_write_b32 a{aONES+1}, v{W+1}
    v_accvgpr_write_b32 a{aONES+2}, v{W+1}
    v_accvgpr_write_b32 a{aONES+3}, v{W+1}
    v_add_u32 v{W+1}, {L_CS}, v{W}
    v_accvgpr_write_b32 a{cCSA}, v{W+1}
    v_and_b32 v{W+2}, 48, v{vLANE}
    v_add_u32 v{W+1}, {L_CS}, v{W+2}
    v_accvgpr_write_b32 a{cCSB}, v{W+1}
    v_lshlrev_b32 v{W+1}, 2, v{vT0}
    v_lshl_add_u32 v{W+1}, v{vT1}, 4, v{W+1}
    v_accvgpr_write_b32 a{cSTO}, v{W+1}
    s_lshl_b32 s{sT0}, s{sW}, 8
    s_add_u32 s{sT0}, s{sT0}, {L_STAT}
    v_add_u32 v{W+1}, s{sT0}, v{W}
    v_accvgpr_write_b32 a{cSTA}, v{W+1}
    v_and_b32 v{W+3}, 32, v{vLANE}
    v_lshl_add_u32 v{W+1}, v{W+3}, 1, v{W+1}
    v_accvgpr_write_b32 a{cSTW}, v{W+1}
    v_add_u32 v{W+1}, s{sT0}, v{W+2}
    v_accvgpr_write_b32 a{cSTB}, v{W+1}
    s_lshl_b32 s{sT0}, s{sW}, 10
    v_add_u32 v{W+1}, s{sT0}, v{vL16}
    v_accvgpr_write_b32 a{cKW}, v{W+1}
    v_add_u32 v{W+3}, {R2 + 8192}, v{W+1}
    v_accvgpr_write_b32 a{cKW1}, v{W+3}
    s_lshl_b32 s{sT0}, s{sT5}, 14
    v_add_u32 v{W+1}, s{sT0}, v{vL16}
    v_lshl_add_u32 v{W+1}, v{W+5}, 12, v{W+1}
    v_accvgpr_write_b32 a{cKR}, v{W+1}
    s_lshl_b32 s{sT0}, s{sT5}, 14
    s_add_u32 s{sT0}, s{sT0}, {R2 + 8192}
    v_add_u32 v{W+1}, s{sT0}, v{vL16}
    v_lshl_add_u32 v{W+1}, v{W+5}, 14, v{W+1}
    v_accvgpr_write_b32 a{cKR1}, v{W+1}
    v_add_u32 v{W+1}, {L_XB}, v{vL16}
    v_accvgpr_write_b32 a{cXR}, v{W+1}
    v_lshlrev_b32 v{W+3}, 3, v{vT0}
    v_add_u32 v{W+3}, {L_ZB}, v{W+3}
    v_accvgpr_write_b32 a{cZR}, v{W+3}
    """)
    k(f"""
    s_lshl_b32 s{sT0}, s{sW}, 10
    v_add_u32 v{W+1}, s{sT0}, v{W+1}
    v_accvgpr_write_b32 a{cXW}, v{W+1}
    v_and_b32 v{W+3}, 1, v{vT0}
    v_lshrrev_b32 v{W+4}, 1, v{vT0}
    v_lshl_add_u32 v{W+3}, v{W+3}, 1, v{W+4}
    v_and_b32 v{W+4}, 3, v{vLANE}
    v_lshl_add_u32 v{W+3}, v{W+4}, 2, v{W+3}
    s_lshr_b32 s{sT0}, s{sW}, 1
    s_lshl_b32 s{sT0}, s{sT0}, 5
    s_add_u32 s{sT0}, s{sT0}, {L_ZB}
    v_lshl_add_u32 v{W+3}, v{W+3}, 1, s{sT0}
    v_accvgpr_write_b32 a{cZW}, v{W+3}
    """)
    for j in range(4):
        k(f"s_add_u32 s{sT0}, s{sW}, {j}")
        k(f"s_and_b32 s{sT0}, s{sT0}, 3")
        k(f"s_lshl_b32 s{sT0}, s{sT0}, 13")
        k(f"s_add_u32 s{sT0}, s{sT0}, {L_RED + (4096 if j == 2 else 0)}")
        k(f"v_add_u32 v{W+1}, s{sT0}, v{vL16}")
        k(f"v_accvgpr_write_b32 a{cRD0+j}, v{W+1}")
    k(f"""
    s_lshl2_add_u32 s{sT0}, s{sDH}, s{sW}
    s_lshl3_add_u32 s{sT0}, s{sG}, s{sT0}
    s_lshl_b32 s{sT0}, s{sT0}, 14
    s_lshl_b32 s{sT1}, s{sCT}, 7
    s_add_u32 s{sT0}, s{sT0}, s{sT1}
    v_lshl_add_u32 v{W+1}, v{vT1}, 10, s{sT0}
    v_and_b32 v{W+3}, 1, v{vT0}
    v_lshl_add_u32 v{W+1}, v{W+3}, 5, v{W+1}
    v_lshrrev_b32 v{W+3}, 1, v{vT0}
    v_lshl_add_u32 v{W+1}, v{W+3}, 4, v{W+1}
    v_accvgpr_write_b32 a{cOUT}, v{W+1}
    """)

    def xread(q):
        k.vm_wait(("xs", q))
        for ksl in range(4):
            for rb in range(2):
                k.lds(f"ds_read_b128 {vr(act(4*q+ksl, rb),4)}, v{XR+ksl} offset:{(q%2)*8192 + rb*4096}", ("xr", q))

    SUM0, SQ0, SUM1, SQ1 = vACC + 56, vACC + 57, vACC + 58, vACC + 59
    SUMA, SQA = vACC + 48, vACC + 56
    ONES = vPQ + 4
    NM_A, RS_A, RL_A = vACC + 60, vACC + 62, vACC + 56
    NM_B, RS_B, RL_B = vACC + 32, vACC + 40, vACC + 48
    STG = vACC + 48

    def own_stats():
        a, b, c, d = OWN + 8, OWN + 9, OWN + 10, OWN + 11
        k(f"v_mov_b32 v{OWN+12}, {BF1}")
        k.vm_wait("own")
        for j in range(4):
            r0, r1 = OWN + j, OWN + 4 + j
            k(f"v_dot2_f32_bf16 v{a}, v{OWN+12}, v{r0}, {'0' if j == 0 else f'v{a}'}")
            k(f"v_dot2_f32_bf16 v{c}, v{OWN+12}, v{r1}, {'0' if j == 0 else f'v{c}'}")
            k(f"v_dot2_f32_bf16 v{b}, v{r0}, v{r0}, {'0' if j == 0 else f'v{b}'}")
            k(f"v_dot2_f32_bf16 v{d}, v{r1}, v{r1}, {'0' if j == 0 else f'v{d}'}")
        k(f"""
        s_waitcnt lgkmcnt(0)
        s_mul_i32 s{sTAG}, s{sEP}, 0x9E3779B1
        s_add_u32 s{sTAG}, s{sTAG}, 0x7F4A7C15
        s_add_u32 s{sT8}, s{sEP}, 1
        s_and_b32 s{sT8}, s{sT8}, 0xff
        s_mov_b32 s{sS8}, s{sEP}
        v_permlane32_swap_b32 v{a}, v{c}
        v_permlane32_swap_b32 v{b}, v{d}
        v_add_f32 v{a}, v{a}, v{c}
        v_add_f32 v{b}, v{b}, v{d}
        v_mov_b32 v{c}, v{a}
        v_mov_b32 v{d}, v{b}
        s_nop 1
        v_permlane16_swap_b32 v{a}, v{c}
        v_permlane16_swap_b32 v{b}, v{d}
        v_add_f32 v{a}, v{a}, v{c}
        v_add_f32 v{b}, v{b}, v{d}
        """)
        for sh in (8, 4, 2, 1):
            k("s_nop 0")
            k(f"v_add_f32_dpp v{a}, v{a}, v{a} row_ror:{sh} row_mask:0xf bank_mask:0xf")
            k(f"v_add_f32_dpp v{b}, v{b}, v{b} row_ror:{sh} row_mask:0xf bank_mask:0xf")
        k(f"""
        v_mul_f32 v{a}, 0xbb000000, v{a}
        v_mul_f32 v{b}, 0x3b000000, v{b}
        v_fma_f32 v{b}, -v{a}, v{a}, v{b}
        v_max_f32 v{b}, 0, v{b}
        v_add_f32 v{b}, 0x3727c5ac, v{b}
        v_rsq_f32 v{b}, v{b}
        v_mov_b32 v{c}, s{sTAG}
        v_mov_b32 v{d}, s{sXCC}
        v_lshrrev_b32 v{vT3}, 1, v{vLANE}
        s_lshl4_add_u32 s{sT2}, s{sW}, s{sC}
        s_lshl_b32 s{sT2}, s{sT2}, 7
        s_add_u32 s{sT2}, s{sT2}, s{sGB}
        s_add_u32 s{sT2}, s{sT2}, {G_ST0}
        s_mov_b32 exec_lo, 1
        s_mov_b32 exec_hi, 1
        """)
        k.vmem(f"buffer_store_dwordx4 {vr(a,4)}, v{vT3}, {srd(S_WS)}, s{sT2} offen sc1", "ownst")
        k("s_mov_b64 exec, -1")

    S0 = vACC + 52

    def st0_issue():
        with k.atomic():
            k(f"v_and_b32 v{vT0}, 30, v{vLANE}")
            k(f"v_lshlrev_b32 v{vT0}, 6, v{vT0}")
            k(f"v_and_b32 v{vT1}, 16, v{vL16}")
            k(f"v_add_u32 v{vT0}, v{vT0}, v{vT1}")
            k(f"s_add_u32 s{sT4}, s{sSTg}, {G_ST0}")
            k.vmem(f"buffer_load_dwordx4 {vr(S0,4)}, v{vT0}, {srd(S_WS)}, s{sT4} offen sc1", "st0")

    def st0_use():
        lp, ok = k.label("L_s0"), k.label("L_s0ok")
        with k.atomic():
            k.vm_wait("st0")
            k(f"{lp}:")
            k(f"v_cmp_ne_u32 vcc, s{sTAG}, v{S0+2}")
            k(f"s_cbranch_vccz {ok}")
            k(f"buffer_load_dwordx4 {vr(S0,4)}, v{vT0}, {srd(S_WS)}, s{sT4} offen sc1")
            k("s_waitcnt vmcnt(0)")
            k(f"s_sub_u32 s{sBUD}, s{sBUD}, 1")
            k(f"s_cbranch_scc0 {lp}")
            k(f"s_mov_b32 s{sBUD}, 0")
            k(f"{ok}:")
            k(f"v_cmp_ne_u32 vcc, s{sXCC}, v{S0+3}")
            k("s_nop 4")
            k(f"s_or_b32 s{sSLOW}, vcc_lo, {1 if o.get('forceslow') else 0}")
        k.get(vT0, cSTA)
        k(f"v_and_b32 v{vT1}, 16, v{vLANE}")
        k(f"v_lshl_add_u32 v{vT1}, v{vT1}, 2, v{vT0}")
        k.lds(f"ds_write2_b32 v{vT1}, v{S0}, v{S0+1} offset0:0 offset1:32")
        k.lds(f"ds_read2_b32 {vr(NM_A,2)}, v{vT0} offset0:0 offset1:16", "sta")
        k.lds(f"ds_read2_b32 {vr(RS_A,2)}, v{vT0} offset0:32 offset1:48", "sta")

    def stats_finalize(need_rs):
        k.get(vT1, cSTW)
        k.get(vT0, cSTA)
        k(f"""
        v_permlane32_swap_b32 v{SUM0}, v{SUM1}
        v_permlane32_swap_b32 v{SQ0}, v{SQ1}
        v_add_f32 v{SUM0}, v{SUM0}, v{SUM1}
        v_add_f32 v{SQ0}, v{SQ0}, v{SQ1}
        v_mov_b32 v{SUM1}, v{SUM0}
        v_mov_b32 v{SQ1}, v{SQ0}
        s_nop 0
        v_permlane16_swap_b32 v{SUM0}, v{SUM1}
        v_permlane16_swap_b32 v{SQ0}, v{SQ1}
        v_add_f32 v{SUM0}, v{SUM0}, v{SUM1}
        v_add_f32 v{SQ0}, v{SQ0}, v{SQ1}
        v_mul_f32 v{SUM0}, 0xbb000000, v{SUM0}
        v_mul_f32 v{SQ0}, 0x3b000000, v{SQ0}
        v_fma_f32 v{SQ0}, -v{SUM0}, v{SUM0}, v{SQ0}
        v_max_f32 v{SQ0}, 0, v{SQ0}
        v_add_f32 v{SQ0}, 0x3727c5ac, v{SQ0}
        v_rsq_f32 v{SQ0}, v{SQ0}
        s_nop 0
        """)
        k.lds(f"ds_write2_b32 v{vT1}, v{SUM0}, v{SQ0} offset0:0 offset1:32")
        k.lds(f"ds_read2_b32 {vr(NM_A,2)}, v{vT0} offset0:0 offset1:16", "sta")
        if need_rs:
            k.lds(f"ds_read2_b32 {vr(RS_A,2)}, v{vT0} offset0:32 offset1:48", "sta")

    def stats_b():
        k.get(vT1, cSTB)
        for rb in range(2):
            k.lds(f"ds_read_b128 {vr(NM_B+4*rb,4)}, v{vT1} offset:{64*rb}", "sta")
            k.lds(f"ds_read_b128 {vr(RS_B+4*rb,4)}, v{vT1} offset:{128+64*rb}", "sta")

    def stats_scale():
        k.ds_wait("sta")
        for j in range(8):
            k(f"v_mul_f32 v{RL_B+j}, 0x3fb8aa3b, v{RS_B+j}")
        for j in range(2):
            k(f"v_mul_f32 v{RL_A+j}, 0x3fb8aa3b, v{RS_A+j}")

    def set_ones(r):
        for j in range(4):
            k(f"v_mov_b32 v{r+j}, {BF1}")

    def cs_put(first, sblk):
        k.get(vT0, cCSA)
        k(f"s_lshl_b32 s{sT5}, s{sblk}, 6")
        k(f"v_add_u32 v{vT0}, s{sT5}, v{vT0}")
        k.lds(f"ds_write_b32 v{vT0}, a{aCS} offset:{first*64}")

    def phi_block(acc, nm, cs, rl, rs, dst, tmp, lay):
        s1, s2, s3, s4, s5 = [], [], [], [], []
        for p in range(2):
            a2 = vr(acc + 2*p, 2)
            t2 = vr(tmp + 2*p, 2)
            if lay == "b":
                c2, m = bcast(cs, 1, 3)
                s1.append(f"v_pk_fma_f32 {a2}, {vr(nm+2*p,2)}, {c2}, {a2}{m}")
                s2.append(f"v_pk_mul_f32 {t2}, {a2}, {vr(rl+2*p,2)}")
                s4.append(f"v_pk_fma_f32 {a2}, {a2}, {vr(rs+2*p,2)}, {t2}")
            else:
                c2, m = bcast(nm, 1, 3)
                s1.append(f"v_pk_fma_f32 {a2}, {vr(cs+2*p,2)}, {c2}, {a2}{m}")
                c2, m = bcast(rl, 1, 2)
                s2.append(f"v_pk_mul_f32 {t2}, {a2}, {c2}{m}")
                c2, m = bcast(rs, 1, 3)
                s4.append(f"v_pk_fma_f32 {a2}, {a2}, {c2}, {t2}{m}")
            for j in range(2):
                s3.append(f"v_exp_f32 v{tmp+2*p+j}, v{tmp+2*p+j} clamp")
            s5.append(f"v_pk_add_f32 {a2}, {a2}, s[{sEPS}:{sEPS+1}]")
        for s in s1 + s2 + s3:
            k(s)
        for j in range(4):
            k(f"v_max_f32 v{acc+j}, 0, v{acc+j}")
        for s in s4 + s5:
            k(s)
        for p in range(2):
            k(f"v_cvt_pk_bf16_f32 v{dst+p}, v{acc+2*p}, v{acc+2*p+1}")

    def ring(ks, rb):
        return vACT + 8 * (ks % 6) + 4 * rb
    QA, vPARK = vACT + 48, vACT + 64

    def act_loads(bufoff, act=act):
        for ks in range(16):
            for rb in range(2):
                with k.atomic():
                    if ks % 4 == 0:
                        k(f"s_add_u32 s{sT2+rb}, s{sACT+rb}, {bufoff + ks*1024}")
                    k.vmem(f"buffer_load_dwordx4 {vr(act(ks,rb),4)}, v{vL16}, {srd(S_WS)}, s{sT2+rb} offen offset:{(ks%4)*1024} sc1",
                           ("act", ks, rb))

    def stat_loads(stoff, STG=STG):
        k(f"s_add_u32 s{sT4}, s{sSTg}, {stoff}")
        for j in range(2):
            k.vmem(f"buffer_load_dwordx4 {vr(STG+4*j,4)}, v{vL16}, {srd(S_WS)}, s{sT4} offen offset:{j*1024} sc1", "stg")

    def stat_sum(STG=STG):
        lp, ok = k.label("L_sg"), k.label("L_sgok")
        k.vm_wait("stg")

        def chk():
            k(f"v_and_b32 v{SUM0}, v{STG}, v{STG+1}")
            k(f"v_or3_b32 v{SUM0+1}, v{STG}, v{STG+1}, v{STG+2}")
            k(f"v_and_b32 v{SUM0+2}, v{STG+2}, v{STG+3}")
            k(f"v_or3_b32 v{SUM0+1}, v{SUM0+1}, v{STG+3}, v{STG+4}")
            k(f"v_and_b32 v{SUM0}, v{SUM0}, v{STG+4}")
            k(f"v_or3_b32 v{SUM0+1}, v{SUM0+1}, v{STG+5}, v{STG+6}")
            k(f"v_and_b32 v{SUM0+2}, v{SUM0+2}, v{STG+5}")
            k(f"v_and_b32 v{SUM0}, v{SUM0}, v{STG+6}")
            k(f"v_and_b32 v{SUM0+2}, v{SUM0+2}, v{STG+7}")
            k(f"v_or_b32 v{SUM0+1}, v{SUM0+1}, v{STG+7}")
            k(f"v_and_b32 v{SUM0}, v{SUM0}, v{SUM0+2}")
            k(f"v_xor_b32 v{SUM0+1}, s{sS8}, v{SUM0+1}")
            k(f"v_xor_b32 v{SUM0}, s{sS8}, v{SUM0}")
            k(f"v_or_b32 v{SUM0}, v{SUM0}, v{SUM0+1}")
            k(f"v_and_b32 v{SUM0}, 0xff, v{SUM0}")
        chk()
        with k.atomic():
            k(f"v_cmp_ne_u32 vcc, 0, v{SUM0}")
            k(f"s_cbranch_vccnz {lp}")
            k(f"{ok}:")
        sv, k._rec = k._rec, None
        n0 = len(k.lines)
        k(f"{lp}:")
        for j in range(2):
            k(f"buffer_load_dwordx4 {vr(STG+4*j,4)}, v{vL16}, {srd(S_WS)}, s{sT4} offen offset:{j*1024} sc1")
        k("s_waitcnt vmcnt(0)")
        chk()
        k(f"v_cmp_ne_u32 vcc, 0, v{SUM0}")
        k(f"s_cbranch_vccz {ok}")
        k(f"s_sub_u32 s{sBUD}, s{sBUD}, 1")
        k(f"s_cbranch_scc0 {lp}")
        k(f"s_mov_b32 s{sBUD}, 0")
        k(f"s_branch {ok}")
        k.tailcode += k.lines[n0:]
        del k.lines[n0:]
        k._rec = sv
        for j in range(4):
            k(f"v_add_f32 v{SUM0+j}, v{STG+j}, v{STG+4+j}")

    def mf2(acc, ks, sw, wait, first=None, act=act):
        return [(acc + 4 * rb, act(ks, rb), sw, (ks == 0) if first is None else first,
                 (("act", ks, 1) if ks else ("act", ks, rb)) if wait else None) for rb in range(2)]

    def wo_raw():
        with k.atomic():
            quad_lane(1024)
            k(f"s_lshl_b32 s{sD0}, s{sW}, 17")
            k(f"s_lshl_b32 s{sD1}, s{sCT}, 7")
            k(f"s_add_u32 s{sD0}, s{sD0}, s{sD1}")
            k(f"s_lshl_b32 s{sL0}, s{sW}, 14")
        for j in range(16):
            k.dma(S_WO, vDM, sD0, j * 8 * 1024, sL0, R0 + j * 1024, "wo")

    def w1c1_raw():
        with k.atomic():
            quad_lane(3584, tmp=vACT + 127)
            k(f"s_lshr_b32 s{sD0}, s{sC}, 2")
            k(f"s_mul_i32 s{sD0}, s{sD0}, 896")
            k(f"s_and_b32 s{sD1}, s{sC}, 3")
            k(f"s_lshl_b32 s{sD1}, s{sD1}, 7")
            k(f"s_add_u32 s{sD0}, s{sD0}, s{sD1}")
            k(f"s_mul_i32 s{sD1}, s{sW}, {64*3584}")
            k(f"s_add_u32 s{sD0}, s{sD0}, s{sD1}")
            k(f"s_lshl_b32 s{sL0}, s{sW}, 13")
        for half in range(2):
            for j in range(8):
                k.dma(S_W1, vDM, sD0, (half * 256 + j * 8) * 3584, sL0, R1 + half * 32768 + j * 1024, "w1a")

    def lin_dma(src, dst, n, tag, shared=False):
        for j in range(n):
            with k.atomic():
                if j == 0:
                    k(f"s_mul_i32 s{sL0}, s{sW}, {n*1024}")
                    k(f"s_add_u32 s{sD0}, s{sL0}, s{sPKB}")
                    if shared:
                        k(f"s_mul_i32 s{sD1}, s{sDH}, {8*PK_SZ}")
                        k(f"s_sub_u32 s{sD0}, s{sD0}, s{sD1}")
                if j % 4 == 0:
                    k(f"s_add_u32 m0, s{sL0}, {dst + j*1024}")
                    k(f"s_add_u32 s{sD1}, s{sD0}, {src + j*1024}")
                k.vmem(f"buffer_load_dwordx4 v{vL16}, {srd(S_WS)}, s{sD1} offen offset:{(j%4)*1024} sc1 lds", tag)

    def publish_x(bufoff, stoff, floff, pay_sc1):
        k(f"s_add_u32 s{sT1}, s{sTILE}, {bufoff}")
        k.stores([f"buffer_store_dwordx4 {vr(vRES+4*s,4)}, v{vL16}, {srd(S_WS)}, s{sT1} offen offset:{s*1024}" for s in range(2)], pay_sc1)
        a, b, c, d = vT0, vT1, vT2, vT3
        for j in range(4):
            r0, r1 = vRES + j, vRES + 4 + j
            if j == 0:
                k(f"v_mov_b32 v{vWB+9}, {BF1}")
                k(f"v_dot2_f32_bf16 v{b}, v{r0}, v{r0}, 0")
                k(f"v_dot2_f32_bf16 v{d}, v{r1}, v{r1}, 0")
                k(f"v_dot2_f32_bf16 v{a}, v{vWB+9}, v{r0}, 0")
                k(f"v_dot2_f32_bf16 v{c}, v{vWB+9}, v{r1}, 0")
            else:
                k(f"v_dot2_f32_bf16 v{b}, v{r0}, v{r0}, v{b}")
                k(f"v_dot2_f32_bf16 v{d}, v{r1}, v{r1}, v{d}")
                k(f"v_dot2_f32_bf16 v{a}, v{vWB+9}, v{r0}, v{a}")
                k(f"v_dot2_f32_bf16 v{c}, v{vWB+9}, v{r1}, v{c}")
        k.get(vWB + 8, cSTO)
        k(f"""
        s_add_u32 s{sT3}, s{sSTo}, {stoff}
        v_add_f32 v{b}, v{b}, v{d}
        v_add_f32 v{a}, v{a}, v{c}
        s_nop 1
        v_permlane16_swap_b32 v{a}, v{b}
        v_add_f32 v{a}, v{a}, v{b}
        v_mov_b32 v{b}, v{a}
        s_nop 1
        v_permlane32_swap_b32 v{a}, v{b}
        v_add_f32 v{c}, v{a}, v{b}
        s_add_u32 s{sS8}, s{sS8}, 1
        s_and_b32 s{sS8}, s{sS8}, 0xff
        v_and_b32 v{c}, 0xffffff00, v{c}
        v_or_b32 v{c}, s{sS8}, v{c}
        s_mov_b32 exec_hi, 0
        """)
        k.stores([f"buffer_store_dword v{c}, v{vWB+8}, {srd(S_WS)}, s{sT3} offen"], False, "sts" if o.get("sto", 1) else "st")
        k("s_mov_b64 exec, -1")
        k.poll_prep(15)

    def unpack_res(dst):
        for f in range(4):
            for p in range(2):
                r = vRES + 2*f + p
                k(f"v_lshlrev_b32 v{dst+4*f+2*p}, 16, v{r}")
                k(f"v_and_b32 v{dst+4*f+2*p+1}, 0xffff0000, v{r}")

    def misc_l1():
        k(f"""
        s_add_u32 s{sT2}, s{sTAG}, s{sXCC}
        s_add_u32 s{sT2}, s{sT2}, 2
        v_mov_b32 v{vT1}, s{sT2}
        s_lshl4_add_u32 s{sT2}, s{sG}, s{sC}
        s_lshl_b32 s{sT2}, s{sT2}, 7
        s_add_u32 s{sT2}, s{sT2}, {WS_XID}
        """)
        with k.atomic():
            k(f"s_cmp_lg_u32 s{sW}, 0")
            k(f"s_cselect_b32 s{sT2}, {OOB}, s{sT2}")
            k("s_mov_b64 exec, 1")
            k.vmem(f"buffer_store_dword v{vT1}, v{vL16}, {srd(S_WS)}, s{sT2} offen sc1", "xid")
            k("s_mov_b64 exec, -1")

    def res_load():
        k.get(vT0, cOUT)
        for s_ in range(2):
            k.vmem(f"buffer_load_dwordx4 {vr(vRES+4*s_,4)}, v{vT0}, {srd(S_X)}, 0 offen offset:{64*s_}", "res")

    def touch(kind, vSP=vSP):
        with k.atomic():
            k(f"s_lshl2_add_u32 s{sD3}, s{sC}, s{sW}")
            sD2 = sD3
            if kind == "h":
                k(f"s_mul_i32 s{sD2}, s{sD2}, 7168")
                k(f"s_add_u32 s{sD2}, s{sD2}, s{sGB}")
                k(f"s_add_u32 s{sD2}, s{sD2}, {G_H}")
                k(f"v_lshlrev_b32 v{vSP}, 7, v{vLANE}")
                k("s_mov_b32 exec_hi, 0xffffff")
                k.vmem(f"buffer_load_dword a{aDUM}, v{vSP}, {srd(S_WS)}, s{sD2} offen sc1", "touch")
                k("s_mov_b32 exec_hi, -1")
            else:
                k(f"v_lshlrev_b32 v{vSP}, 7, v{vLANE}")
                k(f"s_lshl_b32 s{sT5}, s{sD2}, 11")
                k(f"s_add_u32 s{sT5}, s{sT5}, s{sGB}")
                k(f"s_add_u32 s{sT5}, s{sT5}, {G_X1}")
                k("s_mov_b64 exec, 0xffff")
                k.vmem(f"buffer_load_dword a{aDUM}, v{vSP}, {srd(S_WS)}, s{sT5} offen sc1", "touch")
                k(f"s_lshl_b32 s{sD2}, s{sD2}, 7")
                k(f"s_add_u32 s{sD2}, s{sD2}, s{sGB}")
                k("s_mov_b64 exec, 1")
                k(f"s_add_u32 s{sD2}, s{sD2}, {G_ST1}")
                k.vmem(f"buffer_load_dword a{aDUM}, v{vSP}, {srd(S_WS)}, s{sD2} offen sc1", "touch")
                k("s_mov_b64 exec, -1")

    def touch_slots(first, n, va=vSP):
        with k.atomic():
            k(f"s_lshl2_add_u32 s{sD3}, s{sC}, s{sW}")
            k(f"v_lshlrev_b32 v{va}, 7, v{vLANE}")
            k(f"s_lshr_b32 s{sT5}, s{sD3}, 3")
            k(f"s_mul_i32 s{sT5}, s{sT5}, 57344")
            k(f"s_and_b32 s{sD3}, s{sD3}, 7")
            k(f"s_mul_i32 s{sD3}, s{sD3}, {n*128}")
            k(f"s_add_u32 s{sT5}, s{sT5}, s{sD3}")
            k(f"s_add_u32 s{sT5}, s{sT5}, s{sGB}")
            k(f"s_add_u32 s{sT5}, s{sT5}, {G_H + first*1024}")
            k(f"s_mov_b32 exec_lo, {(1 << min(n, 32)) - 1}")
            k(f"s_mov_b32 exec_hi, {(1 << max(n - 32, 0)) - 1}")
            k.vmem(f"buffer_load_dword a{aDUM}, v{va}, {srd(S_WS)}, s{sT5} offen sc1", "touch")
            k("s_mov_b64 exec, -1")

    def touches(code, va=vSP):
        if code & 1:
            touch("x", va)
        r = {0: None, 1: (0, 16), 2: (16, 8), 3: (0, 24), 4: (24, 32), 6: (16, 40), 7: (0, 56)}[code >> 1]
        if r:
            touch_slots(r[0], r[1], va)

    def packN_issue():
        with k.atomic():
            quad_lane(1024)
            k(f"""
            s_movk_i32 s{sD2}, 8192
            s_lshl_b32 s{sD0}, s{sG}, 15
            s_lshl_b32 s{sD1}, s{sCT}, 7
            s_add_u32 s{sD0}, s{sD0}, s{sD1}
            s_lshl_b32 s{sPDA}, s{sG}, 12
            s_add_u32 s{sPDA}, s{sPDA}, s{sPKB}
            s_add_u32 s{sPDA}, s{sPDA}, {PK_WO}
            s_lshl2_add_u32 s{sD1}, s{sDH}, s{sW}
            s_cmp_lg_u32 s{sD1}, 3
            s_cbranch_scc1 L_nskip
            """)
            for j in range(4):
                dma_raw(S_WO, j * 1024, j == 0)
            k("L_nskip:")

    def packN_finish(T):
        k(f"s_lshl2_add_u32 s{sD1}, s{sDH}, s{sW}")
        k(f"s_cmp_lg_u32 s{sD1}, 3")
        k("s_cbranch_scc1 L_nfskip")
        for f in range(4):
            k(f"v_add_u32 v{T+16+f}, {L_XST + 3*16384}, v{vQ0+f}")
        for f in range(4):
            for hh in range(2):
                k(f"ds_read_b64_tr_b16 {vr(T+4*f+2*hh,2)}, v{T+16+f} offset:{hh*2048}")
        k("s_waitcnt lgkmcnt(0)")
        for f in range(4):
            k(f"buffer_store_dwordx4 {vr(T+4*f,4)}, v{vL16}, {srd(S_WS)}, s{sPDA} offen offset:{f*1024} sc1")
        k("L_nfskip:")

    def pack_finish(T, base, shift, quad_if_3, tag="pk", sPDA=sPDA):
        lb, le = k.label("L_qb"), k.label("L_qe")
        k(f"s_lshl_b32 s{sT5}, s{sW}, {shift}")
        k(f"s_add_u32 s{sT5}, s{sT5}, {base}")
        k.vm_wait(tag)
        k.ds_all()
        k(f"s_cmp_eq_u32 s{sW}, 3")
        k(f"s_cbranch_scc{0 if quad_if_3 else 1} {lb}")
        for f in range(4):
            k(f"v_add_u32 v{T+16+f}, s{sT5}, v{vQ0+f}")
        for f in range(4):
            for hh in range(2):
                k(f"ds_read_b64_tr_b16 {vr(T+4*f+2*hh,2)}, v{T+16+f} offset:{hh*2048}")
        k("s_waitcnt lgkmcnt(0)")
        for f in range(4):
            k(f"buffer_store_dwordx4 {vr(T+4*f,4)}, v{vL16}, {srd(S_WS)}, s{sPDA} offen offset:{f*1024} sc1")
        k(f"s_branch {le}")
        k(f"{lb}:")
        k(f"v_add_u32 v{T+16}, s{sT5}, v{vTR0}")
        k(f"v_add_u32 v{T+17}, s{sT5}, v{vTR1}")
        k(f"v_lshl_add_u32 v{T+18}, v{vLANE}, 3, s{sT5}")
        for f in range(2):
            for hh in range(2):
                k(f"ds_read_b64_tr_b16 {vr(T+4*f+2*hh,2)}, v{T+16+f} offset:{hh*1024}")
        nf = 2 if quad_if_3 else 3
        if nf == 3:
            for hh in range(2):
                k(f"ds_read_b64_tr_b16 {vr(T+8+2*hh,2)}, v{T+18} offset:{2048+hh*512}")
        k("s_waitcnt lgkmcnt(0)")
        for f in range(nf):
            k(f"buffer_store_dwordx4 {vr(T+4*f,4)}, v{vL16}, {srd(S_WS)}, s{sPDA} offen offset:{f*1024} sc1")
        if nf == 3:
            k(f"buffer_load_dword a{aDUM}, v{vL16}, {srd(S_W1)}, s{S_W1+2} offen")
            nf = 4
        k(f"{le}:")
        k.vm_note(nf, "pst")

    def pack_flag(off=0):
        k(f"""
        s_lshl_b32 s{sT5}, s2, 7
        s_add_u32 s{sT5}, s{sT5}, {WS_PD + off}
        s_cmp_lg_u32 s{sW}, 0
        s_cselect_b32 s{sT5}, {OOB}, s{sT5}
        v_mov_b32 v{vT1}, s{sTAG}
        s_mov_b64 exec, 1
        """)
        k.vmem(f"buffer_store_dword v{vT1}, v{vL16}, {srd(S_WS)}, s{sT5} offen sc1")
        k("s_mov_b64 exec, -1")

    def pack_check_issue(off, va, vd, sb):
        with k.atomic():
            k(f"v_and_b32 v{va}, 1, v{vLANE}")
            k(f"v_lshlrev_b32 v{va}, 7, v{va}")
            k(f"v_lshrrev_b32 v{vd}, 1, v{vLANE}")
            k(f"v_and_b32 v{vd}, 7, v{vd}")
            k(f"s_lshl_b32 s{sT5}, s{sCT if off else sC}, 3")
            k(f"v_add3_u32 v{va}, v{va}, v{vd}, s{sT5}")
            if WP:
                k("s_mov_b32 exec_lo, 0")
                k(f"v_and_b32 v{va}, 0xbf, v{va}")
                k("s_mov_b32 exec_lo, -1")
            k(f"v_min_u32 v{vd}, 29, v{vLANE}")
            k(f"s_mul_i32 s{sT5}, s{sW}, 56")
            k(f"s_lshr_b32 s{sb}, s{sCT}, 1")
            k(f"s_add_u32 s{sT5}, s{sT5}, s{sb}")
            k(f"s_sub_u32 s{sT5}, s{sT5}, 64")
            k(f"v_lshl_add_u32 v{vd}, v{vd}, 2, s{sT5}")
            k("s_mov_b32 vcc_lo, 0xffff")
            k("s_mov_b32 vcc_hi, -1")
            k(f"s_mov_b32 s{sb}, {WS_PD + off}")
            k(f"v_cndmask_b32 v{va}, v{vd}, v{va}, vcc")
            k(f"v_lshlrev_b32 v{va}, 7, v{va}")
            k.vmem(f"buffer_load_dword v{vd}, v{va}, {srd(S_WS)}, s{sb} offen sc1", "pc")

    def pack_check(va, vd, sb):
        lp, ok = k.label("L_pc"), k.label("L_pcok")
        with k.atomic():
            k.vm_wait("pc")
            k(f"{lp}:")
            k(f"v_cmp_ne_u32 vcc, s{sTAG}, v{vd}")
            k(f"s_cbranch_vccz {ok}")
            k(f"buffer_load_dword v{vd}, v{va}, {srd(S_WS)}, s{sb} offen sc1")
            k("s_waitcnt vmcnt(0)")
            k(f"s_sub_u32 s{sBUD}, s{sBUD}, 1")
            k(f"s_cbranch_scc0 {lp}")
            k(f"s_mov_b32 s{sBUD}, 0")
            k(f"{ok}:")

    aPK = 128

    def park_addr(va, base, shift):
        k(f"v_bfe_u32 v{va}, v{vLANE}, 4, 1")
        k(f"v_lshlrev_b32 v{va}, 10, v{va}")
        k(f"v_lshrrev_b32 v{va+1}, 5, v{vLANE}")
        k(f"v_mul_u32_u24 v{va+1}, 0x120, v{va+1}")
        k(f"v_add_u32 v{va}, v{va}, v{va+1}")
        k(f"v_and_b32 v{va+1}, 0xd8, v{vTR0}")
        k(f"s_lshl_b32 s{sT5}, s{sW}, {shift}")
        k(f"s_add_u32 s{sT5}, s{sT5}, {base}")
        k(f"v_add3_u32 v{va}, v{va}, v{va+1}, s{sT5}")
        k(f"v_xor_b32 v{va+1}, 32, v{va}")

    def park_kv(va):
        for r in range(4):
            for blk in range(4):
                for hh in range(2):
                    k.lds(f"ds_read_b64_tr_b16 {ar(aPK + 16*r + 4*blk + 2*hh, 2)}, v{va + (blk & 1)} offset:{r*16384 + (blk >> 1)*2048 + hh*512}")

    def park_q(va):
        for r in range(4):
            for b in range(2):
                for hh in range(2):
                    k.lds(f"ds_read_b64_tr_b16 {ar(aPK + 64 + 8*r + 4*b + 2*hh, 2)}, v{va + b} offset:{r*8192 + hh*512}")

    def unpark(va):
        with k.atomic():
            k(f"s_lshr_b32 s{sD0}, s{sC}, 1")
            k(f"s_xor_b32 s{sD0}, s{sD0}, s{sG}")
            k(f"s_and_b32 s{sD0}, s{sD0}, 1")
            k(f"s_and_b32 s{sD1}, s{sC}, 1")
            k(f"s_lshl1_add_u32 s{sD0}, s{sD0}, s{sD1}")
        for kind in range(2):
            for r in range(4):
                for b in range(2 if kind else 4):
                    with k.atomic():
                        if b == 0:
                            k(f"s_add_u32 s{sD1}, s{sD0}, {r}")
                            k(f"s_and_b32 s{sD1}, s{sD1}, 3")
                            k(f"s_lshl2_add_u32 s{sD1}, s{sD1}, s{sW}")
                            k(f"s_lshl_b32 s{sD1}, s{sD1}, {11 if kind else 12}")
                            if kind:
                                k(f"s_add_u32 s{sD1}, s{sD1}, {R1}")
                            k(f"v_add_u32 v{va}, s{sD1}, v{vL16}")
                        j = 16 + 2 * r + b if kind else 4 * r + b
                        k.lds(f"ds_write_b128 v{va}, {ar(aPK + 4*j, 4)} offset:{b*1024}", ("up", j // 4))

    def wq_raw():
        k(f"s_lshl_b32 s{sL1}, s{sW}, 11")
        with k.atomic():
            k(f"v_and_b32 v{vT2}, 3, v{vP}")
            k(f"v_lshrrev_b32 v{vDM}, 4, v{vLANE}")
            k(f"v_lshl_add_u32 v{vT2}, v{vDM}, 3, v{vT2}")
            k(f"s_movk_i32 s{sD3}, 3072")
            k(f"v_mad_u32_u24 v{vDM}, v{vT2}, s{sD3}, v{vCH}")
        for r in range(4):
            for hh in range(2):
                k.dma(S_WQKV, vDM, sRB + r, hh * 4 * 3072, sL1, R1 + r * 8192 + hh * 1024, "wq")

    def async_check(tag, soff, imm):
        ok = k.label("L_aok")
        with k.atomic():
            k.vm_wait(tag)
            k(f"v_cmp_ne_u32 vcc, s{sTAG}, v{vT0}")
            k(f"s_cbranch_vccz {ok}")
            k.save_vm()
            k.poll(soff, imm, False)
            k.restore_vm()
            k(f"{ok}:")

    CSK = vT0
    gA = None
    for layer in range(1 if o.get("one") else 2):
        L1 = layer == 0
        sc = o.get("sc1", 0x04)
        psc = lambda i: bool(sc >> (4 * layer + i) & 1)
        PRE = o.get("pre", 8)
        k.fast = ["", " nt", " sc0", " sc0 nt"][o.get("ntst", 0) >> (2 * layer) & 3]

        def w2t_loads():
            for j in range(56):
                with k.atomic():
                    if j == 0:
                        k(f"s_lshl2_add_u32 s{sPDB}, s{sCT}, s{sW}")
                        k(f"s_mul_i32 s{sPDB}, s{sPDB}, 57344")
                        k(f"s_add_u32 s{sPDB}, s{sPDB}, {WS_W2T}")
                    if j % 4 == 0:
                        k(f"s_add_u32 s{sJ0}, s{sPDB}, {j*1024}")
                    k.vmem(f"buffer_load_dwordx4 {ar(4*j,4)}, v{vL16}, {srd(S_WS)}, s{sJ0} offen offset:{(j%4)*1024} sc1", ("w2t", j // 4))

        w2 = k.rec(w2t_loads) if L1 else []

        def takew2(name, dflt):
            nonlocal w2
            n = min(o.get(name, dflt), len(w2) - 24) if L1 else 0
            r, w2 = w2[:n], w2[n:]
            return r

        def kv_consts():
            k.get(vPQ, cCSA)
            k.lds(f"ds_read2_b32 {vr(CSK,2)}, v{vPQ} offset0:0 offset1:16", "cs")
            k.lds(f"ds_read2_b32 {vr(CSK+2,2)}, v{vPQ} offset0:32 offset1:48", "cs")
        if L1:
            CSA = vACC + 32
            k(f"s_and_b32 s{sT0}, s{sW}, 1")
            k(f"s_lshl_b32 s{sT0}, s{sT0}, 5")
            k(f"v_xor_b32 v{vPQ+3}, s{sT0}, v{vTR0}")
            k(f"s_lshr_b32 s{sT0}, s{sW}, 1")
            k(f"s_lshl_b32 s{sT0}, s{sT0}, 11")
            k(f"v_add_u32 v{vPQ+2}, s{sT0}, v{vPQ+3}")
            k(f"s_lshl_b32 s{sT1}, s{sW}, 5")
            k(f"v_xor_b32 v{vPQ+6}, s{sT1}, v{vQ0}")

            def wo_pack():
                T_ = vACT + 96
                for hh in range(2):
                    k.lds(f"ds_read_b64_tr_b16 {vr(T_+2*hh,2)}, v{vPQ+6} offset:{R0 + 49152 + hh*2048}", "wp")
                k.play([lambda: None] * 2)
                with k.atomic():
                    k.ds_wait("wp")
                    k.vmem(f"buffer_store_dwordx4 {vr(T_,4)}, v{vL16}, {srd(S_WS)}, s{sPDA} offen sc1", "pst")
            if o.get("diags"): k.stamp("setup")
            PADP = o.get("padp", 0)
            if PADP == 1:
                k("PADCALL")
            own_stats()
            if o.get("diags"): k.stamp("own")
            nx0 = o.get("nx0", 0)
            xslot(0, range(nx0))
            if o.get("pads", 2048) and PADP == 0:
                k("PADCALL")
            if o.get("diags"): k.stamp("pad")
            if o.get("pf1", 0):
                pack_finish(vACT + 64, R1, 12, False, "pu", sPDB)
            xslot(0, range(nx0, 8)); xslot(1, range(o.get("x1pre", 4)))
            if o.get("diags"): k.stamp("xiss")
            if UF == 1 and not o.get("pf1", 0):
                pack_finish(vACT + 64, R1, 12, False, "pu", sPDB)
            if o.get("diags"): k.stamp("pfin")
            xread(0)
            def rnd_begin(r):
                k.vm_wait(("wkv", r))
                k.barrier(True)
                fr = []
                for ks in range(4 * r, 4 * r + 4):
                    fr.append(dict(addr=vPQ + 2, offs=(R0 + ks * 4096, R0 + ks * 4096 + 1024), mf=[(None, None, False, ks == 0, None)]))
                for ks in range(4 * r, 4 * r + 4):
                    for pr in range(2):
                        for b in range(2):
                            base = R0 + ks * 4096 + pr * 2048
                            fr.append(dict(addr=(vTR0, vTR1)[b], offs=(base, base + 1024), mf=mf2(vACC + 16 * pr + 8 * b, ks, False, False)))
                return k.gemm_begin(fr)
            wq = k.rec(wq_raw)
            xslot(1, range(o.get("x1pre", 4), 8))
            g = rnd_begin(0)
            k.stamp("x0")
            f = {}
            if WP:
                w1_ = k.rec(lambda: wkv_raw(1))
                spread(f, w1_[:2], 0, 2); spread(f, k.rec(wo_pack), 0, 1); spread(f, w1_[2:] + k.rec(lambda: xslot(2)), 6, 3)
            else:
                spread(f, k.rec(lambda: (wkv_raw(1), xslot(2))), 0, 3)
            spread(f, k.rec(lambda: xread(1)), 30, 1, 2); k.gemm_run(g, f)
            k.stamp("r0")
            g = rnd_begin(1)
            f = {}
            if UF == 1:
                spread(f, k.rec(pack_flag), 1, 0)
            spread(f, k.rec(lambda: (wkv_raw(2), xslot(3))), 0, 3); spread(f, k.rec(lambda: xread(2)), 31, 1, 2); k.gemm_run(g, f)
            k.stamp("r1")
            g = rnd_begin(2)
            nq = o.get("nq", 6)
            if UF == 2:
                pu_ = k.rec(lambda: packU_issue(L_XST + 4096, sD0, sD1, sD2, sD3, sJ0, vDM, sPDB, 14))
                wq = pu_ + wq if o.get("pufirst", 1) else wq + pu_
            f = {}; spread(f, k.rec(lambda: (wkv_raw(3), st0_issue())) + wq[:nq], 0, 3); spread(f, k.rec(lambda: xread(3)), 31, 1, 2); k.gemm_run(g, f)
            k.stamp("r2")
            g = rnd_begin(3)
            f = {}
            spread(f, k.rec(st0_use), 0, 1)
            spread(f, k.rec(lambda: cs_put(0, sW)), 8, 0)
            spread(f, k.rec(stats_b), 10, 1)
            spread(f, k.rec(stats_scale), 24, 1)
            spread(f, k.rec(lambda: park_addr(vRES + 2, R0, 12)), 15, 0)
            pn = k.rec(lambda: (packN_issue(), k.vmem(f"buffer_load_dword a{aDUM}, v{vL16}, {srd(S_W1)}, s{S_W1+2} offen", "pn")))
            pci = k.rec(lambda: pack_check_issue(0, vRES, vRES + 1, sPDB)) if UF == 1 else []
            if o.get("w2e", 8):
                spread(f, wq[nq:] + pci, 1, o.get("r3s", 5))
            else:
                spread(f, wq[nq:] + pn + pci, 1, o.get("r3s", 5))
            bg = []
            k.gemm_run(g, f)
            k.stamp("A.kv")
            k.barrier()
            kv_consts()
        else:
            k.poll_b(sFXp, G_FX2)
            k.stamp("A.poll")
            al = k.rec(lambda: act_loads(G_X2, ring))
            PA = o.get("prea", 4)
            k.play(al[:PA])
            k(f"s_add_u32 s{sTAG}, s{sTAG}, 1")
            fill = {}
            sl = k.rec(lambda: stat_loads(G_ST2))
            e = spread(fill, al[PA:12] + [lambda: k.play(sl[:2]), sl[2]], 0, 4)
            for i_ in range(12, 32):
                pos = max(12 * (i_ // 2 - 6) + 11 + 6 * (i_ & 1), e)
                spread(fill, [al[i_]], pos, 1)
                e = pos + 3
            e2 = spread(fill, k.rec(lambda: (stat_sum(), stats_finalize(True), stats_b())), 64, 1.5)
            e2 = spread(fill, k.rec(stats_scale), e2 + 6, 1.5)
            spread(fill, k.rec(kv_consts), e2, 1.5)
            spread(fill, k.rec(lambda: lin_dma(PK_WO + 32768, R2, 8, "wo", True)), e, o.get("wos", 6))
            if o.get("diagc"):
                for ix in (0, 23, 47, 95, 143):
                    spread(fill, k.rec(lambda: k.stamp(f"A.m{ix}", True)), ix, 0)
            QL = o.get("qlag", 0)
            if QL:
                pe = k.rec(lambda: (k.ds_wait("cs"), [phi_block(vACC + 4*rb, NM_B + 4*rb, CSK, RL_B + 4*rb, RS_B + 4*rb, vPQ + 2*rb, vACT + 40, "b") for rb in range(2)]))
                spread(fill, pe, 192 - 4 * QL, 4 * QL / len(pe))
            k.gemm_run(gA, fill)
            k.stamp("A.kv")
            k("s_barrier")
            bg = []
        k("s_nop 2")
        k.get(vWB + 22, cKW1 if L1 else cKW)
        k.get(vWB + 23, cKR1 if L1 else cKR)
        k.ds_all()
        PK, PV, TMP = vPQ, vACC, vWB + 24
        KVA = vACC + 16

        def kv_epi():
            for h in range(1 if (not L1 and o.get("qlag", 0)) else 0, 2):
                for rb in range(2):
                    phi_block(vACC + 8*h + 4*rb, NM_B + 4*rb, CSK + h, RL_B + 4*rb, RS_B + 4*rb, PK + 4*h + 2*rb, TMP, "b")
            for h in range(2):
                for rb in range(2):
                    a = vACC + 16 + 8*h + 4*rb
                    c2, m = bcast(CSK + 2 + h, 1, 3)
                    for p in range(2):
                        k(f"v_pk_fma_f32 {vr(a+2*p,2)}, {vr(NM_B+4*rb+2*p,2)}, {c2}, {vr(a+2*p,2)}{m}")
                    for p in range(2):
                        k(f"v_pk_mul_f32 {vr(a+2*p,2)}, {vr(a+2*p,2)}, {vr(RS_B+4*rb+2*p,2)}")
                    for p in range(2):
                        k(f"v_cvt_pk_bf16_f32 v{PV+4*h+2*rb+p}, v{a+2*p}, v{a+2*p+1}")
                    if rb == 0:
                        k(f"v_mfma_f32_16x16x32_bf16 {vr(vACC+8+4*h,4)}, {vr(PK+4*h,4)}, {ar(aONES,4)}, 0")
                if h == 0:
                    pass
        if L1:
            we = takew2("w2e", 8)
            ke = mix(k.rec(kv_epi), k.rec(lambda: park_kv(vRES + 2)), 3)
            if we:
                c0 = o.get("w2c", 40)
                touches(o.get("Te", 6), vWB + 20)
                k.play(ke[:c0])
                pack_check(vRES, vRES + 1, sPDB)
                ke = mix(ke[c0:], we, (135 - c0) // len(we))
            k.play(ke)
        else:
            wod = k.rec(lambda: lin_dma(PK_WO, R1, 8, "wo", True))
            nwo = o.get("nwo", 0)
            k.play(mix(k.rec(kv_epi), wod[:nwo], 100 // max(nwo, 1))); wod = wod[nwo:]
        KRO = [0, 16384, 32768, 49152 if L1 else 36864]
        k.lds(f"ds_write_b128 v{vWB+22}, {vr(vACC+8,4)} offset:{KRO[2]}")
        for h in range(2):
            k(f"v_mfma_f32_16x16x32_bf16 {vr(KVA+4*h,4)}, {vr(PK+4*h,4)}, {vr(PV+4*h,4)}, 0")
        k.lds(f"ds_write_b128 v{vWB+22}, {vr(vACC+12,4)} offset:{KRO[3]}")
        k.get(vWB + 21, cKVS)
        k("s_nop 4")
        for h in range(2):
            k.lds(f"ds_write_b128 v{vWB+22}, {vr(KVA+4*h,4)} offset:{KRO[h]}")
        if L1 and UF == 1:
            k.vm_wait("wq")
        k.barrier()
        for s in range(4):
            k.lds(f"ds_read_b128 {vr(vWB+4*s,4)}, v{vWB+23} offset:{s*1024}", ("kr", s))
        KO = vACC + 32
        k.ds_wait(("kr", 1))
        for p in range(2):
            k(f"v_pk_add_f32 {vr(vWB+2*p,2)}, {vr(vWB+2*p,2)}, {vr(vWB+4+2*p,2)}")
        k.ds_wait(("kr", 3))
        for p in range(2):
            k(f"v_pk_add_f32 {vr(vWB+8+2*p,2)}, {vr(vWB+8+2*p,2)}, {vr(vWB+12+2*p,2)}")
        for p in range(2):
            k(f"v_pk_add_f32 {vr(KO+2*p,2)}, {vr(vWB+2*p,2)}, {vr(vWB+8+2*p,2)}")
        k(f"v_and_b32 v{KO}, 0xffffff00, v{KO}")
        k(f"v_or_b32 v{KO}, s{sT8}, v{KO}")
        k(f"s_mov_b64 exec, s[{sKM}:{sKM+1}]")
        k.vmem(f"buffer_store_dwordx4 {vr(KO,4)}, v{vWB+21}, {srd(S_WS)}, s{sKVP} offen sc1", "kvst")
        k("s_mov_b64 exec, -1")
        k.stamp("A.kvpub")
        fill = {}
        fr = []
        CSQ = vACC + 24

        def q_consts():
            k.get(vT0, cCSB)
            for h in range(2):
                k.lds(f"ds_read_b128 {vr(CSQ+4*h,4)}, v{vT0} offset:{(4+h)*64}")
        if L1:
            if UF == 1:
                if not o.get("w2e", 8):
                    pack_check(vRES, vRES + 1, sPDB)
            else:
                pack_finish(vWB, L_XST + 4096, 14, False, "pu", sPDB)
                k.vm_wait("pn")
                k("s_barrier")
            if not o.get("w2e", 8):
                packN_finish(vWB)
            park_addr(vPQ + 4, R1, 11)
            if o.get("diag"): k.stamp("q.pf")
            k(f"v_add_u32 v{vPQ}, {R1}, v{vTR0}")
            k(f"v_add_u32 v{vPQ+1}, {R1}, v{vTR1}")
            k(f"s_and_b32 s{sT0}, s{sW}, 1")
            k(f"s_lshl_b32 s{sT1}, s{sT0}, 5")
            k(f"v_xor_b32 v{vPQ+2}, s{sT1}, v{vPQ}")
            for j in range(16):
                fr.append(dict(addr=vPQ + 2, offs=(j * 2048, j * 2048 + 1024), mf=[(None, None, False, j == 0, None)]))
            for ks in range(16):
                for b in range(2):
                    fr.append(dict(addr=vPQ + b, offs=(ks * 2048, ks * 2048 + 1024), mf=mf2(vACC + 8 * b, ks, True, False)))
            wor = k.rec(lambda: lin_dma(PK_WO, R0, 16, "wo", True)) if WP else k.rec(wo_raw)
            e = spread(fill, bg + k.rec(res_load), 0, 1)
            if o.get("arm", 0):
                e = spread(fill, k.rec(lambda: arm(o.get("arm", 0))), e, 2)
            e = spread(fill, k.rec(lambda: touches(o.get("Tq", 0))), e, 1)
            e = spread(fill, wor, e, o.get("wors", 2))
            spread(fill, takew2("w2q", 8), e, 4)
            spread(fill, k.rec(lambda: park_q(vPQ + 4)), 20, 3)
            k.gemm(fr, fill)
            if o.get("diag"): k.stamp("q.mm")
            cs_put(4, sT0)
            if UF == 2:
                k.vm_wait("pst")
            k.barrier()
            if o.get("diag"): k.stamp("q.bar")
            q_consts()
            if UF == 2:
                pack_flag()
        else:
            q_consts()
        lp2, done2 = k.label("L_kp"), k.label("L_kd")
        SM = vWB + 8
        ZL = vACT + 32

        def kv_loads(track):
            ins = [(f"buffer_load_dwordx4 {vr(ZL,4)}, v{vT2}, {srd(S_WS)}, s{sKVC} offen sc1", "zl")]
            for j in range(8):
                ins.append((f"buffer_load_dwordx4 {vr(vACT+4*j,4)}, v{vL16}, {srd(S_WS)}, s{sKVC if j < 4 else sT2} offen offset:{(j%4)*1024} sc1", ("kv", j)))
            for i_, t_ in ins:
                if track:
                    k.vmem(i_, t_)
                else:
                    k(i_)
        if L1:
            w1a = k.rec(lambda: (lin_dma(PK_W1A, R1, 16, "w1a"), lin_dma(PK_W1B, R3, 6, "w1c2")))
        else:
            w1a = []
        k.get(vT2, cZL)
        k(f"s_add_u32 s{sT2}, s{sKVC}, 4096")
        kl = k.rec(lambda: kv_loads(True))
        QS = vACC if L1 else QA
        ph = k.rec(lambda: [phi_block(QS + 8*h + 4*rb, NM_A + rb, CSQ + 4*h, RL_A + rb, RS_A + rb, vPQ + 4*h + 2*rb, vWB, "a")
                            for h in range(2) for rb in range(2)])
        if L1:
            k.play(kl[:5])
            k.ds_all()
            if o.get("diag"): k.stamp("q.kl5")
            na = o.get("w1a0", 4) if UF == 1 else 0
            k.play(mix(ph, kl[5:] + w1a[:na], o.get("phr", 10)))
            w1a = w1a[na:]
        else:
            def unpark_w1():
                for j in range(16):
                    k.lds(f"ds_write_b128 v{vT3}, {vr(vPARK+4*j,4)} offset:{j*1024}")
            k(f"s_lshl_b32 s{sT5}, s{sW}, 14")
            k(f"v_add_u32 v{vT3}, s{sT5}, v{vL16}")
            k.play(wod[:4]); wod = wod[4:]
            k.ds_all()
            uw = k.rec(unpark_w1)
            nu = o.get("nu", 16)
            k.play(mix(mix(ph, uw[:nu], 5), wod, 10))
            k.play(mix(kl, uw[nu:], 1))
        k.stamp("A.q")
        if L1:
            k("PADCALL1")
        k.get(vT1, cXW)
        k.get(vWB + 18, cZW)
        k.get(vWB + 16, cXR)
        k.get(vWB + 17, cZR)
        k(f"s_branch {lp2}_s")
        k(f"{lp2}:")
        kv_loads(False)
        k("s_waitcnt vmcnt(0)")
        k(f"{lp2}_s:")
        k.vm_wait("zl")
        k(f"""
        v_mov_b32 v{SM+4}, v{ZL}
        v_mov_b32 v{SM+5}, v{ZL}
        v_permlane32_swap_b32 v{ZL}, v{ZL+1}
        v_permlane32_swap_b32 v{ZL+2}, v{ZL+3}
        v_add_f32 v{ZL}, v{ZL}, v{ZL+1}
        v_add_f32 v{ZL+2}, v{ZL+2}, v{ZL+3}
        s_nop 1
        v_permlane16_swap_b32 v{ZL}, v{ZL+2}
        v_add_f32 v{ZL}, v{ZL}, v{ZL+2}
        s_nop 1
        v_add_f32_dpp v{ZL}, v{ZL}, v{ZL} row_ror:4 row_mask:0xf bank_mask:0xf
        s_nop 1
        v_add_f32_dpp v{ZL}, v{ZL}, v{ZL} row_ror:8 row_mask:0xf bank_mask:0xf
        v_cvt_pk_bf16_f32 v{ZL}, v{ZL}, v{ZL}
        ds_write_b16 v{vWB+18}, v{ZL}
        """)
        for j in range(0, 8, 2):
            a, b = vACT + 4*j, vACT + 4*j + 4
            k.vm_wait(("kv", j + 1))
            k(f"v_and_b32 v{SM+4}, v{SM+4}, v{a}")
            k(f"v_and_b32 v{SM+4}, v{SM+4}, v{b}")
            k(f"v_or3_b32 v{SM+5}, v{SM+5}, v{a}, v{b}")
            if j == 0:
                for p in range(2):
                    k(f"v_pk_add_f32 {vr(SM+2*p,2)}, {vr(a+2*p,2)}, {vr(b+2*p,2)}")
            else:
                for p in range(2):
                    k(f"v_pk_add_f32 {vr(a+2*p,2)}, {vr(a+2*p,2)}, {vr(b+2*p,2)}")
                for p in range(2):
                    k(f"v_pk_add_f32 {vr(SM+2*p,2)}, {vr(SM+2*p,2)}, {vr(a+2*p,2)}")
        k(f"""
        ds_write_b128 v{vT1}, {vr(SM,4)}
        v_xor_b32 v{SM+4}, s{sT8}, v{SM+4}
        v_xor_b32 v{SM+5}, s{sT8}, v{SM+5}
        v_or_b32 v{SM+4}, v{SM+4}, v{SM+5}
        v_and_b32 v{SM+4}, 0xff, v{SM+4}
        v_cmp_ne_u32 vcc, 0, v{SM+4}
        s_cbranch_vccz {done2}
        s_waitcnt lgkmcnt(0)
        s_sub_u32 s{sBUD}, s{sBUD}, 4
        s_cbranch_scc0 {lp2}
        s_mov_b32 s{sBUD}, 0
        {done2}:
        """)
        k.stamp("A.kvget")
        if L1:
            touches(o.get("Tk", 0))
        n1 = o.get("w1a1", 4) if L1 and UF == 1 else 0
        if L1 and UF == 2:
            pack_check_issue(0, vTR0, vTR1, sPDB)
        k.play(w1a[:n1]); w1a = w1a[n1:]
        k.barrier(True)
        for h in range(2):
            k.lds(f"ds_read_b64 {vr(vWB+4*h+2,2)}, v{vWB+17} offset:{h*32}", "zf")
        for j in range(4):
            k.lds(f"ds_read_b128 {vr(vACT+4*j,4)}, v{vWB+16} offset:{1024*j}")
        k.ds_wait("zf")
        OA = vACC + 16
        for rb in range(2):
            for h in range(2):
                d = OA + 16*rb + 8*h
                k(f"v_mfma_f32_16x16x16_bf16 {vr(d+4,4)}, {vr(vWB+4*h+2,2)}, {vr(vPQ+4*h+2*rb,2)}, 0")
        k.ds_all()
        for h in range(2):
            for p in range(2):
                k(f"v_pk_add_f32 {vr(vACT+8*h+2*p,2)}, {vr(vACT+8*h+2*p,2)}, {vr(vACT+8*h+4+2*p,2)}")
        for h in range(2):
            for p in range(2):
                k(f"v_cvt_pk_bf16_f32 v{vWB+4*h+p}, v{vACT+8*h+2*p}, v{vACT+8*h+2*p+1}")
        for rb in range(2):
            for h in range(2):
                d = OA + 16*rb + 8*h
                k(f"v_add_f32 v{d+4}, s{sEPS}, v{d+4}")
        for rb in range(2):
            for h in range(2):
                d = OA + 16*rb + 8*h
                k(f"v_mfma_f32_16x16x16_bf16 {vr(d,4)}, {vr(vWB+4*h,2)}, {vr(vPQ+4*h+2*rb,2)}, 0")
        for rb in range(2):
            for h in range(2):
                d = OA + 16*rb + 8*h
                k(f"v_rcp_f32 v{d+4}, v{d+4}")
        k("s_nop 1")
        for rb in range(2):
            for h in range(2):
                d = OA + 16*rb + 8*h
                for p in range(2):
                    k(f"v_pk_mul_f32 {vr(d+2*p,2)}, {vr(d+2*p,2)}, {vr(d+4,2)} op_sel_hi:[1,0]")
                for p in range(2):
                    k(f"v_cvt_pk_bf16_f32 v{vPQ+4*rb+2*h+p}, v{d+2*p}, v{d+2*p+1}")
        k.stores([f"buffer_store_dwordx4 {vr(vPQ+4*rb,4)}, v{vL16}, {srd(S_WS)}, s{sOST+rb} offen" for rb in range(2)], psc(0))
        nb = o.get("w1a_pre1", 6) if L1 else o.get("w1a_pre", 0)
        if L1 and UF == 2:
            pack_check(vTR0, vTR1, sPDB)
        k.play(w1a[:nb])
        if L1:
            for s_ in range(2):
                for p in range(2):
                    k(f"v_permlane16_swap_b32 v{vRES+4*s_+p}, v{vRES+4*s_+2+p}")
        urs = k.rec(lambda: unpack_res(vACC))
        fr = []
        for ks in range(16):
            for f in range(4):
                mf = [(vACC + 4 * f, vACT + 4 * ks, True, False, ("act", ks))]
                if L1 and WP:
                    fr.append(dict(addr=vL16, offs=(R0 + ks * 4096 + f * 1024,), mf=mf))
                elif L1:
                    fr.append(dict(addr=vQ0 + f, offs=(R0 + ks * 4096, R0 + ks * 4096 + 2048), mf=mf))
                else:
                    fr.append(dict(addr=vTR0, offs=(ks * 4096 + f * 1024,), mf=mf))
        if L1:
            k("PADCALL2")
        k.poll_prep(15)
        k.flag(sFOo, G_FO)
        k.poll_a(sFOp, G_FO)
        g = k.gemm_begin(fr, 7)
        k.play(urs)
        k.stamp("A.opub")
        k.poll_b(sFOp, G_FO)
        k.stamp("B.poll")

        def b_loads():
            for ks in range(16):
                with k.atomic():
                    if ks % 4 == 0:
                        k(f"s_add_u32 s{sT2}, s{sBACT}, {G_O + ks*1024}")
                    k.vmem(f"buffer_load_dwordx4 {vr(vACT+4*ks,4)}, v{vL16}, {srd(S_WS)}, s{sT2} offen offset:{(ks%4)*1024} sc1", ("act", ks))
        bl = k.rec(b_loads)
        PB = o.get("preb", PRE)
        k.play(bl[:PB])
        fill = {}
        e = spread(fill, bl[PB:], 0, 3)
        e = spread(fill, w1a[nb:], e, o.get("w1st", 3))
        if L1:
            e = spread(fill, k.rec(lambda: touches(o.get("Tb", 1))), e, 1)
        spread(fill, takew2("w2b", 0), e, 4)
        k.gemm_run(g, fill)
        k.stamp("B.mm")
        k(f"v_add_u32 v{vTR1}, {R1}, v{vL16}")
        k("s_nop 6")
        for f in range(4):
            for p in range(2):
                k(f"v_cvt_pk_bf16_f32 v{vRES+2*f+p}, v{vACC+4*f+2*p}, v{vACC+4*f+2*p+1}")
        publish_x(G_X1, G_ST1, G_FX1, psc(1))
        k.play(takew2("w2x", 0))
        k.flag(sFXo, G_FX1)
        if not L1:
            k.poll_a(sFXp, G_FX1)
        k.stamp("B.pub")
        if L1 and o.get("w2e", 8) and not WP:
            k(f"s_lshl2_add_u32 s{sD1}, s{sDH}, s{sW}")
            k(f"s_cmp_lg_u32 s{sD1}, 3")
            k("s_cbranch_scc1 L_nfskip")
            k(f"s_lshl_b32 s{sT5}, s{sG}, 12")
            for f in range(4):
                k(f"v_add_u32 v{vWB+16+f}, s{sT5}, v{vQ0+f}")
            for f in range(4):
                for hh in range(2):
                    k(f"ds_read_b64_tr_b16 {vr(vACC+4*f+2*hh,2)}, v{vWB+16+f} offset:{hh*2048}")
            k(f"s_add_u32 s{sT5}, s{sT5}, s{sPKB}")
            k(f"s_add_u32 s{sT5}, s{sT5}, {PK_WO}")
            k("s_waitcnt lgkmcnt(0)")
            for f in range(4):
                k(f"buffer_store_dwordx4 {vr(vACC+4*f,4)}, v{vL16}, {srd(S_WS)}, s{sT5} offen offset:{f*1024} sc1")
            k("L_nfskip:")
        k("s_barrier")
        w1c2 = k.rec(lambda: lin_dma(PK_W1B + 24576, R0 if L1 else R1, 6, "w1c2"))
        if L1 and not o.get("w2e", 8):
            pack_flag(0x8000)
        nc = o.get("w1c2_pre1", 0) if L1 else o.get("w1c2_pre", 0)
        k.play(w1c2[:nc])
        if L1:
            k(f"s_lshl_b32 s{sT2}, s{sW}, 10")
            k(f"v_add_u32 v{vPQ}, s{sT2}, v{vTR1}")
            fr = []
            for j in range(16):
                fr.append(dict(addr=vPQ, offs=(j * 4096,), mf=[(None, None, False, j == 0, None)]))
            k.gemm(fr, D=7)
            k("s_nop 5")
            cs_put(6, sW)
        C2 = vACC + 32
        vC1, vC2, vCc, vCd = (vTR1 if L1 else vL16), vDM, vP, vCH
        k(f"v_add_u32 v{vC2}, {R3}, v{vL16}")
        if L1:
            k(f"s_min_u32 s{sPDA}, s{sW}, 2")
            k(f"s_lshl_b32 s{sT2}, s{sPDA}, 10")
            k(f"v_add_u32 v{vCd}, s{sT2}, v{vL16}")
            k(f"v_add_u32 v{vCc}, {R3}, v{vCd}")
        NX = o.get("nx1", 0) if L1 else o.get("nx", 0)
        INIT2 = not L1 and NX == 0
        f2 = []
        for ks in range(16):
            if L1:
                f2.append(dict(addr=vCc if ks < 8 else vCd, offs=((ks % 8) * 3072,), mf=[(None, None, False, ks == 0, None)], late=ks >= 8))
            for b in range(3):
                f2.append(dict(addr=vC2 if ks < 8 else vL16 if L1 else vTR1, offs=((ks % 8) * 3072 + b * 1024,),
                               mf=mf2(C2 + 8 * b, ks, True, False, False if INIT2 else None), late=ks >= 8))
        fr = []
        XS0 = o.get("xs0", 2)
        for ks in range(16):
            if ks >= XS0:
                n_ = (NX * (ks - XS0 + 1)) // (16 - XS0) - (NX * (ks - XS0)) // (16 - XS0)
                fr += f2[:n_]; f2 = f2[n_:]
            for f in range(4):
                fr.append(dict(addr=vC1, offs=(ks * 4096 + f * 1024,), mf=mf2(vACC + 8 * f, ks, True, True)))
        M1 = sum(len(f["mf"]) for f in fr)
        fr += f2
        NM = sum(len(f["mf"]) for f in fr)
        tl = [i for i, f in enumerate(fr) if f.get("late")][0]
        MB = sum(len(f["mf"]) for f in fr[:tl - 6]) - 4
        if L1:
            k.poll_a(sFXp, G_FX1)
        g = k.gemm_begin(fr)
        k.poll_b(sFXp, G_FX1)
        k.stamp("C.poll")
        CS1 = [vPQ, vPQ + 4, vACC + 56, vQ0]

        def c2_init():
            k.get(vT0, cCSB)
            for b in range(3):
                k.lds(f"ds_read_b128 {vr(C2+8*b+4,4)}, v{vT0} offset:{(10+b)*64}", "cs2")
            for _ in range(4):
                k.play([lambda: None])
            k.ds_wait("cs2")
            for b in range(3):
                for rb in range(2):
                    for j in range(4):
                        k(f"v_mul_f32 v{C2+8*b+4*rb+j}, v{C2+8*b+4+j}, v{NM_A+rb}")

        def relu_block(acc, cs, rb, dst):
            if cs is not None:
                for j in range(4):
                    k(f"v_fmac_f32 v{acc+j}, v{cs+j}, v{NM_A+rb}")
            for p in range(2):
                k(f"v_cvt_pk_bf16_f32 v{dst+p}, v{acc+2*p}, v{acc+2*p+1}")
            for p in range(2):
                k(f"v_pk_max_i16 v{dst+p}, v{dst+p}, 0")

        def cs1_reads():
            k.get(vT2, cCSB)
            for b in range(4):
                k.lds(f"ds_read_b128 {vr(CS1[b],4)}, v{vT2} offset:{(6+b)*64}", "cs")

        def epi1():
            k.ds_wait("cs")
            for s in range(2):
                for rb in range(2):
                    for b in range(2):
                        relu_block(vACC + 16*s + 8*b + 4*rb, CS1[2*s+b], rb, vACC + 16*s + 4*rb + 2*b)
                k.stores([f"buffer_store_dwordx4 {vr(vACC+16*s+4*rb,4)}, v{vL16}, {srd(S_WS)}, s{sH1+rb} offen offset:{s*1024}"
                          for rb in range(2)], psc(2))

        def d_setup():
            if L1:
                with k.atomic():
                    k(f"s_lshl_b32 s{sT1}, s{sW}, 13")
                    k(f"s_add_u32 s{sT1}, s{sT1}, s{sGB}")
                with k.atomic():
                    k(f"s_lshl_b32 s{sDK}, s{sW}, 11")
                    k(f"s_add_u32 s{sDK}, s{sDK}, {28*1024}")
                k(f"s_add_u32 s{sT1}, s{sT1}, {G_H + 24*1024}")
                for j in range(4):
                    with k.atomic():
                        k(f"s_add_u32 s{sT0}, s{sW}, {j}")
                        k(f"s_and_b32 s{sT0}, s{sT0}, 3")
                    with k.atomic():
                        k(f"s_lshl2_add_u32 s{sT0}, s{sDH}, s{sT0}")
                        k(f"s_mul_i32 s{sT0}, s{sT0}, 57344")
                    k(f"s_add_u32 s{sRB+j}, s{sT0}, s{sT1}")
            k.poll_prep(7)
        TD = 3 if L1 else o.get("td", 4)
        seq = [(ksl, j) for ksl in range(14 - TD) for j in range(4)] + [(ksl, j) for j in (1, 2, 3, 0) for ksl in range(14 - TD, 14)]
        hb = [0, 0, 0, 0]

        def hload(t):
            ksl, j = seq[t]
            with k.atomic():
                if ksl // 4 != hb[j]:
                    if ksl == 8:
                        k(f"s_sub_u32 s{sRB+j}, s{sRB+j}, s{sDK}")
                    else:
                        k(f"s_add_u32 s{sRB+j}, s{sRB+j}, 4096")
                    hb[j] += 1
                k.vmem(f"buffer_load_dwordx4 {vr(vACT+4*(t%16),4)}, v{vL16}, {srd(S_WS)}, s{sRB+j} offen offset:{(ksl%4)*1024} sc1", ("h", t))
        PC = o.get("prec", PRE)
        al = k.rec(lambda: act_loads(G_X1))
        k.play(al[:PC])
        fill = {}
        sl = k.rec(lambda: stat_loads(G_ST1, vPQ))
        SP = o.get("stp", 0)
        e = spread(fill, al[PC:PC+SP] + [lambda: k.play(sl[:2]), sl[2]] + al[PC+SP:], 0, o.get("cstep", 40) / 10)
        e2 = spread(fill, k.rec(lambda: (stat_sum(vPQ), stats_finalize(False))), 44, 0.9 if INIT2 else 1.3)
        if INIT2:
            spread(fill, k.rec(c2_init), e2 + 1, 0.95)
        if L1:
            spread(fill, k.rec(lambda: k("s_barrier")), 104, 0)
            if o.get("w2e", 8) and not WP:
                spread(fill, k.rec(lambda: pack_flag(0x8000)), 102, 0)
        e = spread(fill, w1c2[nc:], e, 3)
        if L1:
            e = spread(fill, k.rec(lambda: touches(o.get("Tc", 0), vT0)), e, 1)
        spread(fill, k.rec(cs1_reads), M1 - 9, 1)
        if o.get("diagc") and not L1:
            for ix in (0, 31, 63, 95, 127, 151, 175, 199):
                spread(fill, k.rec(lambda: k.stamp(f"C.m{ix}", True)), ix, 0)
        if o.get("diagd"):
            spread(fill, k.rec(lambda: k.stamp("C.mm1")), 127, 0)
        e1 = spread(fill, k.rec(epi1), M1 + 1, 1 / o.get("epr", 4))
        spread(fill, k.rec(lambda: (k.vm_wait("w1c2"), k("s_barrier"))), MB, 0)
        assert e < MB
        e3 = spread(fill, k.rec(d_setup), e1, 1)
        if not L1 and not INIT2:
            spread(fill, k.rec(lambda: [k.lds(f"ds_read_b128 {vr(CS1[b],4)}, v{vT2} offset:{(10+b)*64}") for b in range(3)]), e3 + 2, 2)
        pf = min(e1 + (o.get("fl11", 50) if L1 else o.get("fl1", 20)), NM - 2)
        spread(fill, k.rec(lambda: k.flag(sFHo, G_FH)), pf, 1)
        NE = o.get("ne1", 0) if L1 else o.get("ne", 6)
        pp = NM - 1 if NE == 0 else NM - 3 * NE - o.get("ppd", 18)
        assert pp > pf
        spread(fill, k.rec(lambda: k.vmem(f"buffer_load_dword v{vT0}, v{vT3}, {srd(S_WS)}, s{sFHp} offen offset:{G_FH} sc1", "p1")), pp, 1)
        if NE:
            spread(fill, k.rec(lambda: async_check("p1", sFHp, G_FH)), NM - 3 * NE - 1, 1)
            spread(fill, k.rec(lambda: [hload(t) for t in range(NE)]), NM - 3 * NE, 3)
        if L1:
            wc = takew2("nw2", 24)
            spread(fill, wc, e, (pp - 1 - e) / max(len(wc), 1))
        k.gemm_run(g, fill)
        k.stamp("C.mm2")
        HO = vWB + 16
        LA = o.get("dla1", 10) if L1 else o.get("dla", 10)
        if L1:
            k.get(vT1, cCSA)
            k(f"s_lshl_b32 s{sT5}, s{sPDA}, 6")
            k(f"v_add_u32 v{vT1}, s{sT5}, v{vT1}")
            k.lds(f"ds_write_b32 v{vT1}, a{aCS} offset:{10*64}")
            k.barrier()
            k.get(vT2, cCSB)
            for b in range(3):
                k.lds(f"ds_read_b128 {vr(vWB+4*b,4)}, v{vT2} offset:{(10+b)*64}")
            k.ds_all()
        else:
            k("s_nop 3")
            k.ds_all()
        epi2 = k.rec(lambda: [relu_block(C2 + 8*b + 4*rb, vWB + 4*b if L1 else None if INIT2 else CS1[b], rb, HO + 8*rb + 2*b) for b in range(3) for rb in range(2)])
        h2sc = psc(2) and not o.get("h2plain", 1)
        its = []
        for rb in range(2):
            its.append(f"buffer_store_dwordx4 {vr(HO+8*rb,4)}, v{vL16}, {srd(S_WS)}, s{sH2+rb} offen")
            its.append(f"buffer_store_dwordx2 {vr(HO+8*rb+4,2)}, v{vL16}, {srd(S_WS)}, s{sH3+rb} offen")
        tail = []
        up = []
        if L1:
            def park_w1():
                with k.atomic():
                    k(f"s_lshl_b32 s{sT5}, s{sW}, 14")
                    k(f"s_add_u32 s{sT5}, s{sT5}, {R1}")
                    k(f"v_add_u32 v{vCH}, s{sT5}, v{vL16}")
                for j in range(0, 16, 2):
                    with k.atomic():
                        for jj in (j, j + 1):
                            k.lds(f"ds_read_b128 {vr(vPARK+4*jj,4)}, v{vCH} offset:{jj*1024}", "pw")
            u_ = k.rec(lambda: unpark(vP))
            bar = k.rec(lambda: (k.ds_wait("pw"), k("s_barrier")))
            up = k.rec(park_w1) + u_[:17] + [lambda: k.play(bar)] + u_[17:]
        if NE:
            n2 = o.get("ne2", 2)
            k.play(mix(epi2, k.rec(lambda: [hload(t) for t in range(NE, NE + n2)]), 10))
            k.stores(its, h2sc)
            nxt = NE + n2
            FL2 = o.get("fl2", 5)
        else:
            k.play(epi2)
            k.stores(its, h2sc)
            async_check("p1", sFHp, G_FH)
            for t in range(LA):
                hload(t)
                if len(w2) > 24 and t % 2:
                    k.play(w2[:1]); w2 = w2[1:]
                k.play(up[:1]); up = up[1:]
            k.flag(sFHo, G_FH + 1024)
            nxt = LA
            FL2 = -1
        k.stamp("D.poll1")
        RSD = vPQ
        k.get(vPQ + 1, cRSD)
        k.lds(f"ds_read_b32 v{RSD}, v{vPQ+1}", "rsd")
        def red_addr():
            for j in range(4):
                if L1:
                    k.get(vPQ + 4 + j, cRD0 + j)
                else:
                    with k.atomic():
                        k(f"s_add_u32 s{sT0}, s{sW}, {j}")
                        k(f"s_and_b32 s{sT0}, s{sT0}, 3")
                    with k.atomic():
                        k(f"s_lshl_b32 s{sT0}, s{sT0}, 14")
                        k(f"s_add_u32 s{sT0}, s{sT0}, {max(j-1, 0)*4096}")
                    k(f"v_add_u32 v{vPQ+4+j}, s{sT0}, v{vL16}")
        ur = k.rec(lambda: (unpack_res(vWB), red_addr()))
        wr = []
        for t in range(56):
            ksl, j = seq[t]
            if L1:
                k.vm_wait(("w2t", ksl))
            k.vm_wait(("h", t))
            if o.get("diagd") and t in (0, 8, 16, 24, 32, 40, 48):
                k.stamp(f"D.t{t}")
            if o.get("diagc") and not L1 and t in (0, 4, 8, 16, 24, 32, 40, 48):
                k.stamp(f"D.t{t}", True)
            for f in range(4):
                a = vACC + 16*j + 4*f
                c = "0" if ksl == 0 else vr(a, 4)
                k(f"v_mfma_f32_16x16x32_bf16 {vr(a,4)}, {ar((ksl*4+f)*4,4)}, {vr(vACT+4*(t%16),4)}, {c}")
                if f in (0, 2) and nxt < 56 and nxt <= t + LA and (f == 0 or nxt < t + LA):
                    if nxt == 32 - o.get("p2d", 11):
                        k.vmem(f"buffer_load_dword v{vT0}, v{vT3}, {srd(S_WS)}, s{sFHp} offen offset:{G_FH+1024} sc1", "p2")
                    if nxt == 32:
                        async_check("p2", sFHp, G_FH + 1024)
                    hload(nxt)
                    nxt += 1
                    if nxt == 56 and not L1 and o.get("wb", 0):
                        lw = k.label("L_wb")
                        k(f"s_lshl3_add_u32 s{sT0}, s{sW}, s2")
                        k(f"s_cmp_ge_u32 s{sT0}, 8")
                        k(f"s_cbranch_scc1 {lw}")
                        k("buffer_wbl2 sc1")
                        k(f"s_branch {lw}_e")
                        k(f"{lw}:")
                        k(f"buffer_load_dword a{aDUM}, v{vT3}, {srd(S_WS)}, s{sFHp} offen offset:{G_FH} sc1")
                        k(f"{lw}_e:")
                        k.vm_note(1, "wb")
                if f in ((1, 3) if t < o.get("up2", 3) else (1,)) and up:
                    k.play(up[:1]); up = up[1:]
                if f == 2:
                    nup = 24 - len(up) + (1 if len(up) > 8 else 0)
                    if w2 and (len(w2) > 24 or not up or nup >= 4 * ((24 - len(w2)) // 4 + 1) + 1):
                        if len(w2) <= 24:
                            k.ds_wait(("up", (24 - len(w2)) // 4))
                        k.play(w2[:1]); w2 = w2[1:]
                    elif t >= o.get("tl0", 46) and tail:
                        nn = o.get("tln", 2)
                        k.play(tail[:nn]); tail = tail[nn:]
                if f == 3 and t == FL2:
                    k.flag(sFHo, G_FH + 1024)
                if 4 * t + f == 203 and L1:
                    k.ds_wait(("rw", 1))
                    k("s_barrier")
                    for f_ in range(4):
                        k.lds(f"ds_read_b128 {vr(vACC+16+4*f_,4)}, v{vPQ+4} offset:{f_*1024}", "rd0")
                if 4 * t + f == 215 and L1:
                    k.ds_wait("rd0")
                    k("s_barrier")
                if f == 3 and t == 2 and L1 and not WP:
                    pack_check_issue(0x8000, vTR0, vTR1, sPDA)
                if f == 3 and t == 14 and L1 and not WP:
                    pack_check(vTR0, vTR1, sPDA)
                if f == 3 and t == o.get("tx", 99) and L1:
                    touch("x", vDM)
                if f == 1 and t >= 8 and ur:
                    k.play(ur[:1]); ur = ur[1:]
                if wr and wr[0][0] <= 4 * t + f:
                    k.lds(*wr.pop(0)[1:])
            if ksl == 13 and j:
                for f in range(4):
                    wr.append((4 * t + 9 + 2 * f, f"ds_write_b128 v{vPQ+4+j}, {vr(vACC+16*j+4*f,4)} offset:{f*1024}", ("rw", j)))
        assert not w2 and not ur and not wr and not up
        k.stamp("D.mm")
        if not L1:
            k.get(vT2, cOUT)
        if L1:
            k("s_nop 3")
            for f in range(4):
                for p in range(2):
                    k(f"v_pk_add_f32 {vr(vACC+4*f+2*p,2)}, {vr(vACC+4*f+2*p,2)}, {vr(vACC+16+4*f+2*p,2)}")
        k.barrier()
        NJ = 2 if L1 else 3
        RB_ = vACC + 64 - 16 * NJ
        for f in range(4):
            for j in range(NJ):
                k.lds(f"ds_read_b128 {vr(RB_+16*j+4*f,4)}, v{vPQ+4} offset:{j*4096+f*1024}", ("rd", f))
        for f in range(4):
            k.ds_wait(("rd", f))
            for j in range(NJ):
                for p in range(2):
                    k(f"v_pk_add_f32 {vr(vACC+4*f+2*p,2)}, {vr(vACC+4*f+2*p,2)}, {vr(RB_+16*j+4*f+2*p,2)}")
            for p in range(2):
                k(f"v_pk_fma_f32 {vr(vACC+4*f+2*p,2)}, {vr(vACC+4*f+2*p,2)}, {vr(RSD,2)}, {vr(vWB+4*f+2*p,2)} op_sel_hi:[1,0,1]")
            for p in range(2):
                k(f"v_cvt_pk_bf16_f32 v{vRES+2*f+p}, v{vACC+4*f+2*p}, v{vACC+4*f+2*p+1}")
        k.stamp("D.red")
        if L1:
            publish_x(G_X2, G_ST2, G_FX2, psc(3))
            k(f"s_sub_u32 s{sT0}, s{sDK}, 8192")
            for j in range(4):
                k(f"s_add_u32 s{sRB+j}, s{sRB+j}, s{sT0}")
            k(f"s_add_u32 s{sKVC}, s{sKVC}, 0x100000")
            k(f"s_add_u32 s{sKVP}, s{sKVP}, 0x100000")
            k.flag(sFXo, G_FX2)
            k.poll_a(sFXp, G_FX2)
            k.stamp("D.pub")
            k("s_barrier")
            fr = []
            k(f"v_add_u32 v{vTR0}, {R1}, v{vL16}")
            late = []
            for ks in range(16):
                fq = [dict(addr=vTR0, offs=(ks * 2048 + b * 1024,), mf=mf2(QA + 8 * b, ks, True, True, act=ring)) for b in range(2)]
                fk = [dict(addr=vL16, offs=(R0 + ks * 4096 + b * 1024,), mf=mf2(vACC + 8 * b, ks, False, True, act=ring)) for b in range(4)]
                if ks < 16 - o.get("qlag", 0):
                    fr += fk + fq
                else:
                    fr += fk
                    late += fq
            fr += late
            gA = k.gemm_begin(fr)
        else:
            k("s_nop 1")
            for s in range(2):
                for p in range(2):
                    k(f"v_permlane16_swap_b32 v{vRES+4*s+p}, v{vRES+4*s+2+p}")
                k.vmem(f"buffer_store_dwordx4 {vr(vRES+4*s,4)}, v{vT2}, {srd(S_OUT)}, 0 offen offset:{64*s}{['', ' sc1', ' sc1 nt', ' nt'][o.get('outsc1', 1)]}")
            le = k.label("L_ep")
            k(f"s_or_b32 s{sT2}, s2, s{sW}")
            k(f"s_cbranch_scc1 {le}")
            k(f"s_add_u32 s{sEP}, s{sEP}, 1")
            k(f"v_mov_b32 v{vT1}, s{sEP}")
            k("s_mov_b64 exec, 1")
            k(f"buffer_store_dword v{vT1}, v{vL16}, {srd(S_WS)}, 0 offen offset:{WS_EPOCH}")
            k("s_mov_b64 exec, -1")
            k(f"{le}:")
            if stamps:
                k.vm_all()
                k.stamp("end")
                k(f"s_memrealtime s[{sST}:{sST+1}]")
                k("s_waitcnt lgkmcnt(0)")
                k(f"v_writelane_b32 v{vSTAMP}, s{sST}, 61")
                k(f"v_writelane_b32 v{vSTAMP}, s{sBUD}, 60")
                k(f"v_writelane_b32 v{vSTAMP}, s{sSLOW}, 59")
                k(f"s_lshl2_add_u32 s{sT2}, s2, s{sW}")
                k(f"s_lshl_b32 s{sT2}, s{sT2}, 8")
                k(f"s_add_u32 s{sT2}, s{sT2}, {WS_STAMP}")
                k(f"v_lshrrev_b32 v{vT0}, 2, v{vL16}")
                k(f"buffer_store_dword v{vSTAMP}, v{vT0}, {srd(S_WS)}, s{sT2} offen")
    k("L_end:")
    lines = merge_waits(k.lines)
    if o.get("pads", 2048):
        lines = add_pads(lines, k.tailcode, o.get("pads", 2048), [x for x in (o.get("ps1", 0), o.get("ps2", 0)) if x])
    body = "\n".join(lines)
    tailc = "\n".join(k.tailcode)
    hdr = open("interleave_layers__linear_attn_block__dense_activation_relu__prompt.s.ref").read().split("; Override")[0]
    txt = f"""{hdr}; Generated by a hand-written generator (persistent kernel, one workgroup per CU).
; @launch grid=(256,1,1) block=(256,1,1) lds={LDS_BYTES}
.amdgcn_target "amdgcn-amd-amdhsa--gfx950"
.text
.globl {NAME}
.p2align 8
.type {NAME},@function
.set CODE_BYTES, L_code_end - L_pcref - 512
{NAME}:
{body}
    s_endpgm
L_code_end:
{tailc}
.section .rodata,"a"
.p2align 6
.amdhsa_kernel {NAME}
  .amdhsa_next_free_vgpr 512
  .amdhsa_next_free_sgpr 102
  .amdhsa_accum_offset 256
  .amdhsa_group_segment_fixed_size 0
  .amdhsa_kernarg_size 72
  .amdhsa_user_sgpr_count 2
  .amdhsa_user_sgpr_kernarg_segment_ptr 1
  .amdhsa_system_sgpr_workgroup_id_x 1
.end_amdhsa_kernel
"""
    return txt, k.stamp_names


if __name__ == "__main__":
    out = sys.argv[1]
    stamps = "stamps" in sys.argv[2:]
    opts = {}
    for a in sys.argv[2:]:
        if "=" in a:
            x, y = a.split("=")
            opts[x] = int(y)
    txt, names = gen(stamps, opts)
    open(out, "w").write(txt)
    if stamps:
        open(out + ".names", "w").write("\n".join(names))
```

```python
import sys
from contextlib import contextmanager

NAME = "interleave_layers__linear_attn_block__dense_activation_relu__prompt_kernel"

WS_EPOCH = 0
WS_XID = 0x8000
WS_PD = 0x10000
GRP0 = 0x100000
G_FO, G_FX1, G_FX2, G_FH = 0, 512, 1024, 1536
G_ST1 = 0x1000
G_ST2 = G_ST1
G_ST0 = 0x4000
G_X1 = 0x8000
G_X2 = G_X1
G_H = G_X1 + 0x20000
G_O = G_H
WS_KVX = 0x1200000
KVX_C = 0x9000
WS_W2T = 0x1400000
WS_PK = 0x1600000
PK_KV, PK_Q, PK_W1A, PK_W1B, PK_WO, PK_SZ = 0, 65536, 98304, 163840, 212992, 278528
WS_STAMP = 0x1B00000
WS_USED = 0x1C00000
OOB = 0x7f000000

R0, R1, R2, R3 = 0, 65536, 98304, 131072
L_SM = 161792
L_CS = L_SM
L_ZB = L_SM + 896
L_STAT = L_SM + 1024
L_XB = L_SM - 4096
W1B_N1 = 8
L_XST = 98304
L_RED = R2
L_PST = R2
LDS_BYTES = 163840

S_X, S_WQKV, S_WO, S_W1, S_W2, S_OUT, S_WS = 4, 8, 12, 16, 20, 24, 28
(sW, sC, sG, sTAG, sSLOW, sGB, sBUD, sEP, sEPS, _e1, sT0, sT1, sT2, sT3, sT4, sT5,
 sACT, sACT1, sBACT, sTILE, sOST, sOST1, sFOo, sFOp, sFXo, sFXp, sSTo, sSTg,
 sH1, sH1b, sH2, sH2b, sH3, sH3b, sFHo, sFHp, sRB, _r1, _r2, _r3, sKVC, sKVP,
 sDH, sCT, sXCC, sT8, sD0, sD1, sD2, sD3, sL0, sL1, sPKB, sPDA, sPDB, sJ0) = range(32, 88)
assert sEPS % 2 == 0
sRHO = sT8
S_A, S_B = 88, 92
sKEX = 88
sDK = 92
sS8 = 93
sKM = 96
sST = 98
sPC = 100

vLANE, vL16, vTR0, vTR1, vQ0, vQ1, vQ2, vQ3, vP, vCH, vDM, vSTAMP = range(12)
vT0, vT1, vT2, vT3 = 12, 13, 14, 15
vSP, vSP2 = vP, vCH
vRES = 16
vPQ = 24
vWB = 32
vACC = 64
vACT = 128
BF1 = "0x3f803f80"
(cCSA, cCSB, cP16, aDUM, cSTO, cSTW, cSTA, cSTB, cKW, cKR, cKW1, cKR1, cKVS, cXW, cXR, cZR,
 cRD0, cRD1, cRD2, cRD3, cRSD, cOUT, cZL, cZW) = range(224, 248)
aONES, aCS = 248, 252


def srd(s):
    return f"s[{s}:{s+3}]"


def vr(a, n=1):
    return f"v{a}" if n == 1 else f"v[{a}:{a+n-1}]"


def ar(a, n=1):
    return f"a{a}" if n == 1 else f"a[{a}:{a+n-1}]"


def bcast(r, pos, n):
    lo = [0] * n
    hi = [1] * n
    if r % 2 == 0:
        hi[pos] = 0
    else:
        lo[pos] = 1
    f = lambda x: "[" + ",".join(map(str, x)) + "]"
    return vr(r & ~1, 2), f" op_sel:{f(lo)} op_sel_hi:{f(hi)}"


class K:
    def __init__(self, stamps=False, opts=None):
        self.lines = []
        self.nlab = 0
        self.vm = []
        self.ds = []
        self.stamps = stamps
        self.stamp_names = []
        self.o = opts or {}
        self._rec = None
        self.seen = set()
        self.tailcode = []
        self.lights = []
        self.fast = ""

    def _do(self, fn, cost=None):
        if cost is not None:
            fn.cost = cost
        if self._rec is not None:
            self._rec.append(fn)
        else:
            fn()

    def rec(self, f):
        assert self._rec is None
        self._rec = []
        f()
        r, self._rec = self._rec, None
        return r

    @contextmanager
    def atomic(self):
        if self._rec is None:
            yield
            return
        outer, self._rec = self._rec, []
        yield
        inner, self._rec = self._rec, outer
        g = lambda: [x() for x in inner]
        g.cost = sum(getattr(x, "cost", 4) for x in inner)
        outer.append(g)

    def play(self, items):
        for x in items:
            self._do(x)

    def _emit(self, l):
        self.lines.append(("" if l.endswith(":") else "    ") + l)

    def __call__(self, s):
        for l in s.split("\n"):
            l = l.strip()
            if l:
                self._do(lambda l=l: self._emit(l), 8 if l.startswith(("v_exp", "v_rsq", "v_rcp", "buffer_")) else 0 if l.endswith(":") else 4)

    def label(self, base="L"):
        self.nlab += 1
        return f"{base}_{self.nlab}"

    def vmem(self, s, tag=None):
        def f():
            self._emit(s)
            self.vm.append(tag)
            self.seen.add(tag)
        self._do(f, 8)

    def vm_note(self, n, tag=None):
        self._do(lambda: (self.vm.extend([tag] * n), self.seen.add(tag)))

    def _wait(self, lst, tag, name, mx):
        if tag not in lst:
            return lst
        idx = len(lst) - 1 - lst[::-1].index(tag)
        n = min(len(lst) - idx - 1, mx)
        self._emit(f"s_waitcnt {name}({n})")
        return lst[len(lst) - n:] if n else []

    def vm_wait(self, tag):
        def f():
            assert tag in self.seen, tag
            self.vm = self._wait(self.vm, tag, "vmcnt", 63)
        self._do(f)

    def save_vm(self):
        def f():
            self._sv = list(self.vm)
        self._do(f)

    def restore_vm(self):
        def f():
            self.vm = self._sv
        self._do(f)

    def vm_all(self):
        def f():
            self._emit("s_waitcnt vmcnt(0)")
            self.vm = []
        self._do(f)

    def lds(self, s, tag=None):
        def f():
            self._emit(s)
            self.ds.append(tag)
        self._do(f)

    def ds_wait(self, tag):
        def f():
            self.ds = self._wait(self.ds, tag, "lgkmcnt", 15)
        self._do(f)

    def ds_all(self, force=False):
        def f():
            if self.ds or force:
                self._emit("s_waitcnt lgkmcnt(0)")
            self.ds = []
        self._do(f)

    def barrier(self, force=False):
        self.ds_all(force)
        self("s_barrier")

    def stamp(self, name, light=False):
        if not self.stamps:
            return
        if light:
            i = len(self.stamp_names)
            self.stamp_names.append(name)
            r = 4 + 2 * len(self.lights)
            self.lights.append((r, i))
            self(f"s_memtime s[{r}:{r+1}]")
            return
        self.nst = getattr(self, "nst", 0) + 1
        if self.o.get("lite") and name not in ("end", "D.pub"):
            return
        i = len(self.stamp_names)
        assert i < 59
        self.stamp_names.append(name)
        self(f"{'s_memrealtime' if self.o.get('rt') else 's_memtime'} s[{sST}:{sST+1}]")
        self.ds_all(True)
        self(f"v_writelane_b32 v{vSTAMP}, s{sST}, {i}")
        for r, j in self.lights:
            self(f"v_writelane_b32 v{vSTAMP}, s{r}, {j}")
        self.lights = []

    def dma(self, sr, voff, soff, simm, lreg, limm, tag=None, flag=""):
        with self.atomic():
            self(f"s_add_u32 m0, s{lreg}, {limm}")
            self(f"s_add_u32 s{sT5}, s{soff}, {simm}")
            self.vmem(f"buffer_load_dwordx4 v{voff}, {srd(sr)}, s{sT5} offen{flag} lds", tag)

    def get(self, v, c):
        self(f"v_accvgpr_read_b32 v{v}, a{c}")

    def poll_prep(self, mask):
        self.get(vT3, cP16)
        if mask == 7:
            self(f"v_and_b32 v{vT3}, 28, v{vT3}")

    def poll(self, soff, imm, clear=True):
        if clear:
            self.seen = {t for t in self.seen if not (isinstance(t, tuple) and t[0] in ("act", "h"))}
        lp, done = self.label("L_poll"), self.label("L_pd")
        with self.atomic():
            self(f"{lp}:")
            self(f"buffer_load_dword v{vT0}, v{vT3}, {srd(S_WS)}, s{soff} offen offset:{imm} sc1")
            self.vm_all()
            self(f"v_cmp_ne_u32 vcc, s{sTAG}, v{vT0}")
            self(f"s_cbranch_vccz {done}")
            self(f"s_sub_u32 s{sBUD}, s{sBUD}, 1")
            self(f"s_cbranch_scc0 {lp}")
            self(f"s_mov_b32 s{sBUD}, 0")
            self(f"{done}:")

    def poll_a(self, soff, imm):
        if self.o.get("pp", 1):
            self.vmem(f"buffer_load_dword v{vT0}, v{vT3}, {srd(S_WS)}, s{soff} offen offset:{imm} sc1", "pa")

    def poll_b(self, soff, imm):
        if not self.o.get("pp", 1):
            return self.poll(soff, imm)
        self.seen = {t for t in self.seen if not (isinstance(t, tuple) and t[0] in ("act", "h"))}
        lp, done = self.label("L_poll"), self.label("L_pd")
        ld = lambda v: f"buffer_load_dword v{v}, v{vT3}, {srd(S_WS)}, s{soff} offen offset:{imm} sc1"
        self(f"{lp}:")
        self(ld(vT2))
        self("s_waitcnt vmcnt(1)")
        self(f"v_cmp_ne_u32 vcc, s{sTAG}, v{vT0}")
        self(f"s_cbranch_vccz {done}")
        self(ld(vT0))
        self("s_waitcnt vmcnt(1)")
        self(f"v_cmp_ne_u32 vcc, s{sTAG}, v{vT2}")
        self(f"s_cbranch_vccz {done}")
        self(f"s_sub_u32 s{sBUD}, s{sBUD}, 1")
        self(f"s_cbranch_scc0 {lp}")
        self(f"s_mov_b32 s{sBUD}, 0")
        self(f"{done}:")
        self.vm = ["pb"]

    def stores(self, items, force_sc1, tag="st"):
        with self.atomic():
            if force_sc1:
                for it in items:
                    self.vmem(it + " sc1", tag)
                return
            ls, le = self.label("L_ss"), self.label("L_se")
            self(f"s_cmp_lg_u32 s{sSLOW}, 0")
            self(f"s_cbranch_scc1 {ls}")
            for it in items:
                self.vmem(it + (self.fast if tag == "st" else ""), tag)
            self(f"{le}:")
            self.tailcode += [f"{ls}:"] + ["    " + it + " sc1" for it in items] + [f"    s_branch {le}"]

    def flag(self, soff, imm):
        with self.atomic():
            self(f"v_mov_b32 v{vT1}, s{sTAG}")
            self.vm_wait("st")
            self("s_mov_b64 exec, 1")
            self.stores([f"buffer_store_dword v{vT1}, v{vL16}, {srd(S_WS)}, s{soff} offen offset:{imm}"], False, "flag")
            self("s_mov_b64 exec, -1")

    def gemm_begin(self, frags, D=6):
        self.gid = getattr(self, "gid", 0) + 1
        g = dict(frags=frags, D=D, gid=self.gid, rp=0, reads=[])
        for t, f in enumerate(frags):
            s = vWB + 4 * (t % 8)
            if len(f["offs"]) == 2:
                for hh in range(2):
                    g["reads"].append((t, f"ds_read_b64_tr_b16 {vr(s + 2*hh, 2)}, v{f['addr']} offset:{f['offs'][hh]}"))
            else:
                g["reads"].append((t, f"ds_read_b128 {vr(s, 4)}, v{f['addr']} offset:{f['offs'][0]}"))
        self._issue(g, D - 1, 99)
        return g

    def _issue(self, g, tmax, maxn):
        c = 0
        reads = g["reads"]
        while g["rp"] < len(reads) and reads[g["rp"]][0] <= tmax and c < maxn:
            self.lds(reads[g["rp"]][1], ("w", g["gid"], reads[g["rp"]][0]))
            g["rp"] += 1
            c += 1

    def gemm_run(self, g, fill=None):
        fill = fill or {}
        frags, D, gid = g["frags"], g["D"], g["gid"]
        n = len(frags)
        mi = 0
        pend = []
        LATE = self.o.get("late", 3)
        for t, f in enumerate(frags):
            s = vWB + 4 * (t % 8)
            if t % 2 == 0:
                self.ds_wait(("w", gid, min(t + 1, n - 1)))
            nm = len(f["mf"])
            for j, (acc, act_, sw, first, wt) in enumerate(f["mf"]):
                if wt is not None:
                    self.vm_wait(wt)
                c = "0" if first else vr(acc, 4) if acc is not None else ar(aCS, 4)
                if acc is None:
                    self(f"v_mfma_f32_16x16x32_bf16 {ar(aCS,4)}, {ar(aONES,4)}, {vr(s,4)}, {c}")
                elif sw:
                    self(f"v_mfma_f32_16x16x32_bf16 {vr(acc,4)}, {vr(s,4)}, {vr(act_,4)}, {c}")
                else:
                    self(f"v_mfma_f32_16x16x32_bf16 {vr(acc,4)}, {vr(act_,4)}, {vr(s,4)}, {c}")
                rp0 = g["rp"]
                self._issue(g, t + D, 99 if j == nm - 1 else 1)
                room = 8 - 4 * (g["rp"] - rp0) - (4 if (j == nm - 1 and t % 2 == 1) else 0)
                pend += [(mi, x) for x in fill.pop(mi, [])]
                while pend:
                    cst = getattr(pend[0][1], "cost", 4)
                    if cst <= room or (room == 8 and cst > 8) or mi - pend[0][0] >= LATE:
                        self.play([pend.pop(0)[1]])
                        room -= cst
                    else:
                        break
                mi += 1
        self.play([x for _, x in pend])
        for key in sorted(fill):
            self.play(fill[key])

    def gemm(self, frags, fill=None, D=6):
        self.gemm_run(self.gemm_begin(frags, D), fill)


def merge_waits(lines):
    import re
    out = []
    for l in lines:
        m = re.match(r"\s*s_waitcnt (\w+)\((\d+)\)$", l)
        if m and out:
            p = re.match(r"\s*s_waitcnt (\w+)\((\d+)\)$", out[-1])
            if p and p.group(1) != m.group(1):
                out[-1] = out[-1] + f" {m.group(1)}({m.group(2)})"
                continue
        out.append(l)
    return out


def spread(fill, items, start, step, per=1):
    p = start
    if step == 0:
        g = lambda: [x() for x in items]
        g.cost = sum(getattr(x, "cost", 4) for x in items)
        fill.setdefault(int(p), []).append(g)
        return p
    for i in range(0, len(items), per):
        fill.setdefault(int(p), []).extend(items[i:i + per])
        p += step
    return p


def insn_sizes(lines, tailcode):
    import subprocess, tempfile, re, os
    src = [".amdgcn_target \"amdgcn-amd-amdhsa--gfx950\"", ".text", ".set CODE_BYTES, 0x12345"]
    for i, l in enumerate(lines):
        src.append(f"Lz{i}:")
        src.append(l)
    src.append(f"Lz{len(lines)}:")
    src += tailcode
    with tempfile.TemporaryDirectory() as d:
        open(d + "/a.s", "w").write("\n".join(src) + "\n")
        subprocess.run(["clang", "-x", "assembler", "-target", "amdgcn-amd-amdhsa", "-mcpu=gfx950", "-c", d + "/a.s", "-o", d + "/a.o"], check=True)
        out = subprocess.run(["llvm-objdump", "-t", d + "/a.o"], capture_output=True, text=True, check=True).stdout
    addr = {}
    for l in out.splitlines():
        m = re.match(r"([0-9a-f]+) .*\sLz(\d+)$", l)
        if m:
            addr[int(m.group(2))] = int(m.group(1), 16)
    return [addr[i + 1] - addr[i] for i in range(len(lines))]


def add_pads(lines, tailcode, step, splits):
    def call(first, ret):
        c = ["    s_mov_b64 exec, 0"]
        for w in range(3):
            c += [f"    s_cmp_eq_u32 s{sW}, {w}", f"    s_cbranch_scc1 L_pad{first + w}"]
        return c + [f"    s_branch L_pad{first + 3}"]
    src = []
    for l in lines:
        t = l.strip()
        if t.startswith("PADCALL") and t != "PADCALL":
            g = int(t[7:])
            if g <= len(splits):
                src += ["    s_nop 0 ; CALL%d" % g] * 9
        else:
            src.append(l)
    ci = [i for i, l in enumerate(src) if l.strip() == "PADCALL"][0]
    src = src[:ci] + src[ci + 1:]
    sz = insn_sizes(src, tailcode)
    body, pos, nxt, n = [], 4, step, 0
    for i in range(ci, len(src)):
        if pos >= nxt and sz[i] > 0 and "; CALL" not in src[i]:
            body.append(("PAD", n))
            n += 1
            pos += 4
            nxt = (pos // step + 1) * step
        body.append(src[i])
        pos += sz[i]
    bounds = [0] + list(splits) + [n]
    assert all(bounds[i + 1] - bounds[i] >= 4 for i in range(len(bounds) - 1)), (bounds, n)
    out = src[:ci] + call(0, 0) + [".p2align 12", "L_padret0:", "    s_mov_b64 exec, -1"]
    done = set()
    for x in body:
        if isinstance(x, tuple):
            j = x[1]
            g = max(i for i in range(len(bounds) - 1) if bounds[i] <= j)
            out += [f"L_pad{j}:", f"    s_cbranch_execz {'L_pad%d' % (j + 4) if j + 4 < bounds[g + 1] else 'L_padret%d' % g}"]
        elif "; CALL" in x:
            g = int(x.split("CALL")[1])
            if g not in done:
                done.add(g)
                out += call(bounds[g], g) + [f"L_padret{g}:", "    s_mov_b64 exec, -1"]
        else:
            out.append(x)
    return out


def mix(a, b, ratio):
    out = []
    bi = 0
    for i, x in enumerate(a):
        out.append(x)
        if (i + 1) % ratio == 0 and bi < len(b):
            out.append(b[bi]); bi += 1
    out.extend(b[bi:])
    return out


def act(ks, rb):
    return vACT + 8 * ks + 4 * rb


def gen(stamps=False, opts=None):
    k = K(stamps, opts)
    o = k.o
    if stamps:
        k(f"{'s_memrealtime' if o.get('rt') else 's_memtime'} s[{sST}:{sST+1}]")
        k(f"s_memrealtime s[{sPC}:{sPC+1}]")
    k(f"""
    s_cmp_ge_u32 s2, 256
    s_cbranch_scc1 L_end
    s_load_dwordx2 s[{S_X}:{S_X+1}], s[0:1], 0
    s_load_dwordx2 s[{S_WQKV}:{S_WQKV+1}], s[0:1], 8
    s_load_dwordx2 s[{S_WS}:{S_WS+1}], s[0:1], 64
    s_load_dwordx2 s[{S_WO}:{S_WO+1}], s[0:1], 16
    s_load_dwordx2 s[{S_W1}:{S_W1+1}], s[0:1], 32
    s_load_dwordx2 s[{S_W2}:{S_W2+1}], s[0:1], 40
    s_load_dwordx2 s[{S_OUT}:{S_OUT+1}], s[0:1], 48
    """)
    if o.get("cw0", 1):
        k(f"""
        s_getpc_b64 s[{S_A}:{S_A+1}]
        L_pcref:
        s_lshr_b32 s{sT2}, s2, 3
        s_lshl_b32 s{sT2}, s{sT2}, 11
        v_lshlrev_b32 v{vT3}, 3, v0
        v_add_u32 v{vT3}, s{sT2}, v{vT3}
        v_min_u32 v{vT3}, CODE_BYTES, v{vT3}
        s_mov_b32 exec_lo, 0x10001
        s_mov_b32 exec_hi, 0x10001
        global_load_dword a{aDUM}, v{vT3}, s[{S_A}:{S_A+1}]
        s_mov_b64 exec, -1
        """)
    k(f"""
    v_lshrrev_b32 v{vT0}, 6, v0
    v_and_b32 v{vLANE}, 63, v0
    s_mov_b32 s{S_X+2}, {2048*1024}
    v_readfirstlane_b32 s{sW}, v{vT0}
    s_mov_b32 s{S_X+3}, 0x20000
    s_mov_b32 s{S_WQKV+2}, {512*3072}
    s_mov_b32 s{S_WQKV+3}, 0x20000
    s_lshr_b32 s{sT0}, s2, 3
    s_and_b32 s{sC}, s{sT0}, 15
    s_lshr_b32 s{sT0}, s{sT0}, 4
    s_and_b32 s{sG}, s2, 7
    s_lshl1_add_u32 s{sG}, s{sG}, s{sT0}
    s_lshr_b32 s{sT1}, s{sC}, 1
    s_xor_b32 s{sT1}, s{sT1}, s{sT0}
    s_and_b32 s{sT1}, s{sT1}, 1
    s_and_b32 s{sRHO}, s{sC}, 1
    s_lshl1_add_u32 s{sRHO}, s{sT1}, s{sRHO}
    v_lshlrev_b32 v{vL16}, 4, v{vLANE}
    """)
    if stamps:
        k(f"v_mov_b32 v{vSTAMP}, 0")
    NTP = " nt" if o.get("nt", 0) & 1 else ""
    NTX = " nt" if o.get("nt", 0) & 2 else ""
    XS, XR, X2R = vRES, vRES + 4, act(15, 1)
    aRES = 246
    k(f"""
    v_lshrrev_b32 v{vT0}, 4, v{vLANE}
    v_and_b32 v{vT1}, 15, v{vLANE}
    v_xor_b32 v{vT2}, v{vT0}, v{vT1}
    v_lshlrev_b32 v{vT2}, 4, v{vT2}
    v_lshl_add_u32 v{XS}, v{vT0}, 10, v{vT2}
    v_xor_b32 v{XS+1}, 64, v{XS}
    v_xor_b32 v{XS+2}, 0x80, v{XS}
    v_xor_b32 v{XS+3}, 0xc0, v{XS}
    v_lshrrev_b32 v{vP}, 2, v{vLANE}
    v_and_b32 v{vCH}, 3, v{vLANE}
    v_lshrrev_b32 v{vT3}, 3, v{vLANE}
    v_and_b32 v{vT3}, 2, v{vT3}
    v_xor_b32 v{vCH}, v{vCH}, v{vT3}
    v_lshlrev_b32 v{vCH}, 4, v{vCH}
    v_and_b32 v{vT3}, 3, v{vP}
    v_lshl_add_u32 v{vT3}, v{vT0}, 3, v{vT3}
    s_movk_i32 s{sT1}, 3072
    v_mad_u32_u24 v{vDM}, v{vT3}, s{sT1}, v{vCH}
    s_lshl_b32 s{sL0}, s{sW}, 14
    s_add_u32 s{sL0}, s{sL0}, {L_XST}
    s_lshl_b32 s{sT1}, s{sG}, 17
    s_lshl_b32 s{sT2}, s{sW}, 15
    s_add_u32 s{sT1}, s{sT1}, s{sT2}
    s_lshl_b32 s{sL1}, s{sW}, 12
    """)
    for r in range(4):
        k(f"""
        s_add_u32 s{sT2}, s{sRHO}, {r}
        s_and_b32 s{sT2}, s{sT2}, 3
        s_lshl_b32 s{sT3}, s{sT2}, 8
        s_add_u32 s{sD0+r}, s{sT1}, s{sT3}
        s_lshl2_add_u32 s{sT2}, s{sT2}, s{sW}
        s_mul_i32 s{sT2}, s{sT2}, {32*3072}
        s_lshl_b32 s{sT3}, s{sC}, 6
        s_add_u32 s{sRB+r}, s{sT2}, s{sT3}
        """)
    k("s_waitcnt lgkmcnt(0)")
    k(f"s_load_dword s{sEP}, s[{S_WS}:{S_WS+1}], {WS_EPOCH}")
    if stamps:
        k(f"v_writelane_b32 v{vSTAMP}, s{sST}, 62")
        k(f"v_writelane_b32 v{vSTAMP}, s{sPC}, 63")

    def xslot(q, js=range(8)):
        for j in js:
            k.dma(S_X, XS + (j & 3), sD0 + q, j * 4096, sL0, (q & 1) * 8192 + j * 1024, ("xs", q), " nt" if o.get("nt", 0) & 4 else "")

    def wkv_raw(r):
        for pr in range(2):
            for hh in range(2):
                k.dma(S_WQKV, vDM, sRB + r, hh * 4 * 3072 + 1024 * (pr + 1), sL1, R0 + r * 16384 + pr * 2048 + hh * 1024, ("wkv", r))

    def quad_lane(pitch, dst=vDM, tmp=vT2, sD3=sD3):
        vT2 = tmp
        k(f"v_lshrrev_b32 v{dst}, 3, v{vLANE}")
        k(f"v_and_b32 v{vT2}, 6, v{dst}")
        k(f"v_xor_b32 v{vT2}, v{vT2}, v{vLANE}")
        k(f"v_and_b32 v{vT2}, 7, v{vT2}")
        k(f"v_lshlrev_b32 v{vT2}, 4, v{vT2}")
        if isinstance(pitch, int):
            k(f"s_movk_i32 s{sD3}, {pitch}")
            pitch = f"s{sD3}"
        k(f"v_mad_u32_u24 v{dst}, v{dst}, {pitch}, v{vT2}")

    def dma_raw(sr, lds_imm, first, R=None):
        sD0_, sD2_, sL0_, vDM_ = R or (sD0, sD2, sL0, vDM)
        with k.atomic():
            k(f"s_add_u32 m0, s{sL0_}, {lds_imm}")
            k("s_nop 0" if first else f"s_add_u32 s{sD0_}, s{sD0_}, s{sD2_}")
            k(f"buffer_load_dwordx4 v{vDM_}, {srd(sr)}, s{sD0_} offen{NTP} lds")

    def packU_issue(base, sD0, sD1, sD2, sD3, sL0, vDM, sPDA, shift=12):
        R = (sD0, sD2, sL0, vDM)
        l2, l3, lq, le = k.label("L_u2"), k.label("L_u3"), k.label("L_uq"), k.label("L_ue")
        with k.atomic():
            k(f"""
            s_lshl_b32 s{sL0}, s{sW}, {shift}
            s_add_u32 s{sL0}, s{sL0}, {base}
            s_lshr_b32 s{sD0}, s{sC}, 2
            s_mul_i32 s{sD0}, s{sD0}, 896
            s_mul_i32 s{sD1}, s{sG}, {32*3584}
            s_add_u32 s{sD0}, s{sD0}, s{sD1}
            s_and_b32 s{sD1}, s{sC}, 3
            s_cmp_eq_u32 s{sW}, 3
            s_cbranch_scc1 {l3}
            s_cmp_eq_u32 s{sW}, 2
            s_cbranch_scc1 {l2}
            s_mov_b32 s{S_A}, s{S_W2}
            s_mov_b32 s{S_A+1}, s{S_W2+1}
            s_mov_b32 s{S_A+2}, {1792*1024}
            s_movk_i32 s{sD2}, 1024
            s_lshl1_add_u32 s{sD0}, s2, s{sW}
            s_lshr_b32 s{sD1}, s{sD0}, 3
            s_and_b32 s{sD0}, s{sD0}, 7
            s_mul_i32 s{sPDA}, s{sD0}, 56
            s_add_u32 s{sPDA}, s{sPDA}, s{sD1}
            s_lshl_b32 s{sPDA}, s{sPDA}, 12
            s_add_u32 s{sPDA}, s{sPDA}, {WS_W2T}
            s_cmp_ge_u32 s{sD1}, 56
            s_cselect_b32 s{sPDA}, {OOB}, s{sPDA}
            s_lshl_b32 s{sD1}, s{sD1}, 15
            s_lshl_b32 s{sD0}, s{sD0}, 7
            s_add_u32 s{sD0}, s{sD0}, s{sD1}
            s_branch {lq}
            {l2}:
            s_mov_b32 s{S_A}, s{S_W1}
            s_mov_b32 s{S_A+1}, s{S_W1+1}
            s_mov_b32 s{S_A+2}, {512*3584}
            s_movk_i32 s{sD2}, 3584
            s_lshl_b32 s{sD1}, s{sD1}, 7
            s_add_u32 s{sD0}, s{sD0}, s{sD1}
            s_lshl_b32 s{sPDA}, s{sG}, 12
            s_add_u32 s{sPDA}, s{sPDA}, s{sPKB}
            s_add_u32 s{sPDA}, s{sPDA}, {PK_W1A}
            {lq}:
            s_mov_b32 s{S_A+3}, 0x20000
            """)
            quad_lane(f"s{sD2}", vDM, vT2 if shift == 14 else vACT + 127)
            k(f"s_lshl_b32 s{sD2}, s{sD2}, 3")
            for j in range(4):
                dma_raw(S_A, j * 1024, j == 0, R)
            k(f"""
            s_branch {le}
            {l3}:
            s_movk_i32 s{sD3}, 3584
            s_mul_i32 s{sPDA}, s{sG}, 3072
            s_add_u32 s{sPDA}, s{sPDA}, s{sPKB}
            s_add_u32 s{sPDA}, s{sPDA}, {PK_W1B}
            s_lshr_b32 s{sT5}, s{sD1}, 1
            s_mul_i32 s{sT5}, s{sT5}, 6
            s_and_b32 s{sD2}, s{sD1}, 1
            s_add_u32 s{sT5}, s{sT5}, s{sD2}
            s_add_u32 s{sT5}, s{sT5}, 18
            s_lshl_b32 s{sT5}, s{sT5}, 5
            s_add_u32 s{sT5}, s{sT5}, s{sD0}
            v_lshrrev_b32 v{vDM}, 1, v{vLANE}
            v_and_b32 v{vT2 if shift == 14 else vACT + 127}, 16, v{vL16}
            v_mad_u32_u24 v{vDM}, v{vDM}, s{sD3}, v{vT2 if shift == 14 else vACT + 127}
            s_add_u32 m0, s{sL0}, 2048
            s_mul_i32 s{sD1}, s{sD1}, 3
            buffer_load_dwordx4 v{vDM}, {srd(S_W1)}, s{sT5} offen{NTP} lds
            s_add_u32 s{sD1}, s{sD1}, 17
            s_lshr_b32 s{sD1}, s{sD1}, 1
            s_lshl_b32 s{sD1}, s{sD1}, 6
            s_add_u32 s{sD0}, s{sD0}, s{sD1}
            s_mov_b32 s{sD2}, {16*3584}
            v_mad_u32_u24 v{vDM}, v{vP}, s{sD3}, v{vCH}
            """)
            for hh in range(2):
                dma_raw(S_W1, hh * 1024, hh == 0, R)
            k(f"buffer_load_dword a{aDUM}, v{vL16}, {srd(S_W1)}, s{S_W1+2} offen")
            k(f"{le}:")
            k.vm_note(4, "pu")

    WP = o.get("wp", 1)

    def warm():
        k(f"v_lshlrev_b32 v{vT3}, 7, v{vLANE}")
        k("s_mov_b64 exec, 0xf")
        if not o.get("cw0", 1):
            k(f"""
            s_getpc_b64 s[{sPC}:{sPC+1}]
            L_pcref:
            s_lshr_b32 s{sT2}, s2, 3
            s_lshl2_add_u32 s{sT2}, s{sT2}, s{sW}
            s_lshl_b32 s{sT2}, s{sT2}, 9
            s_min_u32 s{sT2}, s{sT2}, CODE_BYTES
            s_add_u32 s{sPC}, s{sPC}, s{sT2}
            s_addc_u32 s{sPC+1}, s{sPC+1}, 0
            """)
            k.vmem(f"global_load_dword a{aDUM}, v{vT3}, s[{sPC}:{sPC+1}]")
        if o.get("warm", 1) >= 1:
            k(f"s_lshl2_add_u32 s{sT2}, s2, s{sW}")
            k(f"s_lshr_b32 s{sT3}, s{sT2}, 1")
            k(f"s_mul_i32 s{sT3}, s{sT3}, 3072")
            k(f"s_and_b32 s{sT4}, s{sT2}, 1")
            k(f"s_lshl_b32 s{sT4}, s{sT4}, 9")
            k(f"s_add_u32 s{sT3}, s{sT3}, s{sT4}")
            k.vmem(f"buffer_load_dword a{aDUM}, v{vT3}, {srd(S_WQKV)}, s{sT3} offen")
            if not WP:
                k(f"s_lshl_b32 s{sT3}, s{sT2}, 9")
                k.vmem(f"buffer_load_dword a{aDUM}, v{vT3}, {srd(S_WO)}, s{sT3} offen")
        if o.get("tlb", 0):
            k("s_mov_b64 exec, 1")
            k(f"s_mul_i32 s{sT3}, s{sT2}, 1792")
            k.vmem(f"buffer_load_dword a{aDUM}, v{vT3}, {srd(S_W1)}, s{sT3} offen")
            k.vmem(f"buffer_load_dword a{aDUM}, v{vT3}, {srd(S_W2)}, s{sT3} offen")
            if o["tlb"] > 1:
                k("s_mov_b64 exec, 0x1f")
                k(f"v_lshlrev_b32 v{vWB}, 21, v{vLANE}")
                k(f"s_mov_b32 s{sT3}, {WS_KVX + 0x1f0000}")
                k.vmem(f"buffer_load_dword a{aDUM}, v{vWB}, {srd(S_WS)}, s{sT3} offen")
        if o.get("warm", 1) >= 2:
            k(f"s_mul_i32 s{sT3}, s{sT2}, 1792")
            k("s_mov_b64 exec, 0x3fff")
            k.vmem(f"buffer_load_dword a{aDUM}, v{vT3}, {srd(S_W1)}, s{sT3} offen")
            k.vmem(f"buffer_load_dword a{aDUM}, v{vT3}, {srd(S_W2)}, s{sT3} offen")
        k(f"s_lshl2_add_u32 s{sT2}, s{sC}, s{sW}")
        k(f"s_lshl_b32 s{sT2}, s{sT2}, 8")
        k(f"s_add_u32 s{sT2}, s{sT2}, s{sGB}")
        k("s_mov_b64 exec, 3")
        k.vmem(f"buffer_load_dword a{aDUM}, v{vT3}, {srd(S_WS)}, s{sT2} offen sc1", "touch")
        k("s_mov_b64 exec, -1")

    OWN = vACC
    k(f"s_lshl_b32 s{sT2}, s{sC}, 11")
    k(f"s_add_u32 s{sT2}, s{sT2}, s{sT1}")
    for r in range(2):
        k.vmem(f"buffer_load_dwordx4 {vr(OWN+4*r,4)}, v{vL16}, {srd(S_X)}, s{sT2} offen offset:{r*1024}{NTX}", "own")
    w0_ = k.rec(lambda: wkv_raw(0))
    nw0 = o.get("nw0", 2)
    k.play(w0_[:nw0])
    k(f"""
    s_mov_b32 s{S_WO+2}, {512*1024}
    s_mov_b32 s{S_WO+3}, 0x20000
    s_mov_b32 s{S_W1+2}, {512*3584}
    s_mov_b32 s{S_W1+3}, 0x20000
    s_mov_b32 s{S_W2+2}, {1792*1024}
    s_mov_b32 s{S_W2+3}, 0x20000
    s_mov_b32 s{S_WS+2}, {WS_USED}
    s_mov_b32 s{S_WS+3}, 0x20000
    s_lshl_b32 s{sGB}, s{sG}, 20
    s_add_u32 s{sGB}, s{sGB}, {GRP0}
    """)
    warm()
    UF = o.get("uf", 1)
    k(f"s_mul_i32 s{sPKB}, s{sC}, {PK_SZ}")
    k(f"s_add_u32 s{sPKB}, s{sPKB}, {WS_PK}")
    if UF == 1:
        packU_issue(R1, sH1, sH1b, sH2, sH2b, sH3, vWB + 8, sPDB)
    if WP:
        quad_lane(1024, vWB + 8, vACT + 127, sH2b)
        k(f"""
        s_lshl2_add_u32 s{sH1}, s{sG}, s{sW}
        s_lshl_b32 s{sPDA}, s{sH1}, 10
        s_add_u32 s{sPDA}, s{sPDA}, s{sPKB}
        s_add_u32 s{sPDA}, s{sPDA}, {PK_WO}
        s_lshl_b32 s{sH1}, s{sH1}, 13
        s_lshl_b32 s{sH1b}, s{sC}, 7
        s_add_u32 s{sH1}, s{sH1}, s{sH1b}
        s_cmp_ge_u32 s{sC}, 8
        s_cselect_b32 s{sH1}, {OOB}, s{sH1}
        s_cselect_b32 s{sPDA}, {OOB}, s{sPDA}
        s_lshl_b32 s{sH1b}, s{sW}, 10
        s_add_u32 m0, s{sH1b}, {R0 + 49152}
        s_nop 0
        """)
        k.vmem(f"buffer_load_dwordx4 v{vWB+8}, {srd(S_WO)}, s{sH1} offen{NTP} lds", "pwo")

    k.play(w0_[nw0:])

    if o.get("diags"): k.stamp("iss0")

    def arm(mode):
        with k.atomic():
            k(f"s_lshl2_add_u32 s{sT2}, s{sC}, s{sW}")
            k(f"s_lshl_b32 s{sT3}, s{sT2}, 11")
            k(f"s_add_u32 s{sT3}, s{sT3}, s{sGB}")
            k(f"s_add_u32 s{sT3}, s{sT3}, {G_X1}")
            k(f"s_lshr_b32 s{sT4}, s{sT2}, 3")
            k(f"s_mul_i32 s{sT4}, s{sT4}, 57344")
            k(f"s_and_b32 s{sT2}, s{sT2}, 7")
            k(f"s_mul_i32 s{sT2}, s{sT2}, {5120 if mode & 4 else 1024}")
            k(f"s_add_u32 s{sT4}, s{sT4}, s{sT2}")
            k(f"s_add_u32 s{sT4}, s{sT4}, s{sGB}")
            k(f"s_add_u32 s{sT4}, s{sT4}, {G_H + 16*1024}")
            k(f"s_add_u32 s{sT2}, s{sT4}, 4096")
        if mode & 1:
            for j in range(2):
                k.vmem(f"buffer_store_dwordx4 {vr(vQ0,4)}, v{vL16}, {srd(S_WS)}, s{sT3} offen offset:{j*1024} sc1", "arm")
        for j in range(5 if mode & 4 else 1 if mode & 2 else 0):
            k.vmem(f"buffer_store_dwordx4 {vr(vQ0,4)}, v{vL16}, {srd(S_WS)}, s{sT4 if j < 4 else sT2} offen offset:{(j%4)*1024} sc1", "arm")

    k(f"""
    s_mov_b32 s{S_OUT+2}, {2048*1024}
    s_mov_b32 s{S_OUT+3}, 0x20000
    s_lshr_b32 s{sDH}, s{sC}, 3
    s_and_b32 s{sCT}, s{sC}, 7
    s_mov_b32 s{sBUD}, 150000
    s_mov_b32 s{sEPS}, 0x358637bd
    s_mov_b32 s{sEPS+1}, 0x358637bd
    s_getreg_b32 s{sXCC}, hwreg(HW_REG_XCC_ID, 0, 4)
    s_lshl_b32 s{sACT}, s{sW}, 15
    s_add_u32 s{sACT}, s{sACT}, s{sGB}
    s_add_u32 s{sACT1}, s{sACT}, 16384
    s_lshl2_add_u32 s{sT0}, s{sDH}, s{sW}
    s_lshl_b32 s{sBACT}, s{sT0}, 14
    s_add_u32 s{sBACT}, s{sBACT}, s{sGB}
    s_lshl_b32 s{sTILE}, s{sCT}, 11
    s_add_u32 s{sTILE}, s{sTILE}, s{sBACT}
    s_mul_i32 s{sBACT}, s{sT0}, 57344
    s_add_u32 s{sBACT}, s{sBACT}, s{sGB}
    s_mul_i32 s{sOST}, s{sW}, {2*57344}
    s_lshl_b32 s{sOST1}, s{sC}, 10
    s_add_u32 s{sOST}, s{sOST}, s{sOST1}
    s_add_u32 s{sOST}, s{sOST}, s{sGB}
    s_add_u32 s{sOST}, s{sOST}, {G_O}
    s_add_u32 s{sOST1}, s{sOST}, 57344
    s_lshl_b32 s{sFXp}, s{sW}, 7
    s_add_u32 s{sFXp}, s{sFXp}, s{sGB}
    s_lshl2_add_u32 s{sFOo}, s{sC}, s{sFXp}
    s_lshl_b32 s{sFHp}, s{sT0}, 7
    s_add_u32 s{sFHp}, s{sFHp}, s{sGB}
    s_lshr_b32 s{sT0}, s{sT0}, 1
    s_mov_b32 s{sT1}, s{sT0}
    s_lshl_b32 s{sFOp}, s{sT0}, 7
    s_add_u32 s{sFOp}, s{sFOp}, s{sGB}
    s_and_b32 s{sT2}, s{sW}, 1
    s_lshl1_add_u32 s{sT3}, s{sCT}, s{sT2}
    s_lshl2_add_u32 s{sFXo}, s{sT3}, s{sFOp}
    s_lshl3_add_u32 s{sT3}, s{sT0}, s{sCT}
    s_lshl_b32 s{sT3}, s{sT3}, 8
    s_lshl3_add_u32 s{sT3}, s{sT2}, s{sT3}
    s_add_u32 s{sSTo}, s{sT3}, s{sGB}
    s_lshl_b32 s{sSTg}, s{sW}, 11
    s_add_u32 s{sSTg}, s{sSTg}, s{sGB}
    s_lshl2_add_u32 s{sT1}, s{sT1}, s{sT2}
    s_lshl_b32 s{sT1}, s{sT1}, 6
    s_add_u32 s{sT1}, s{sT1}, {L_STAT + 128}
    v_lshl_add_u32 v{vT3}, v{vT1}, 2, s{sT1}
    v_accvgpr_write_b32 a{cRSD}, v{vT3}
    s_mul_i32 s{sT0}, s{sW}, {2*57344}
    s_add_u32 s{sT0}, s{sT0}, s{sGB}
    s_lshr_b32 s{sT3}, s{sC}, 2
    s_add_u32 s{sT0}, s{sT0}, {G_H}
    s_lshl_b32 s{sH1}, s{sC}, 11
    s_add_u32 s{sH1}, s{sH1}, {24*1024}
    s_add_u32 s{sH1}, s{sH1}, s{sT0}
    s_add_u32 s{sH1b}, s{sH1}, 57344
    s_mul_i32 s{sT4}, s{sT3}, 6144
    s_add_u32 s{sT0}, s{sT0}, s{sT4}
    s_and_b32 s{sT4}, s{sC}, 3
    s_mul_i32 s{sH2}, s{sT4}, 3
    s_add_u32 s{sH2}, s{sH2}, 1
    s_lshr_b32 s{sH2}, s{sH2}, 1
    s_lshl_b32 s{sH2}, s{sH2}, 10
    s_add_u32 s{sH2}, s{sH2}, s{sT0}
    s_add_u32 s{sH2b}, s{sH2}, 57344
    s_lshr_b32 s{sH3}, s{sT4}, 1
    s_mul_i32 s{sH3}, s{sH3}, 3072
    s_and_b32 s{sH3b}, s{sT4}, 1
    s_lshl3_add_u32 s{sH3}, s{sH3b}, s{sH3}
    s_add_u32 s{sH3}, s{sH3}, 1024
    s_add_u32 s{sH3}, s{sH3}, s{sT0}
    s_add_u32 s{sH3b}, s{sH3}, 57344
    s_lshr_b32 s{sT0}, s{sW}, 1
    s_lshl2_add_u32 s{sT0}, s{sT0}, s{sT3}
    s_lshl_b32 s{sT0}, s{sT0}, 7
    s_lshl1_add_u32 s{sT2}, s{sT4}, s{sT2}
    s_lshl2_add_u32 s{sT0}, s{sT2}, s{sT0}
    s_add_u32 s{sFHo}, s{sT0}, s{sGB}
    """)
    k(f"""
    s_mul_i32 s{sT0}, s{sC}, {KVX_C}
    s_add_u32 s{sT0}, s{sT0}, {WS_KVX}
    s_lshl_b32 s{sT1}, s{sW}, 13
    s_add_u32 s{sKVC}, s{sT0}, s{sT1}
    s_lshl_b32 s{sT2}, s{sW}, 14
    s_lshl_b32 s{sT3}, s{sG}, 10
    s_lshl_b32 s{sT4}, s{sG}, 7
    s_cmp_lt_u32 s{sW}, 2
    s_cselect_b32 s{sT3}, s{sT3}, s{sT4}
    s_cselect_b32 s{sKM}, -1, 0x30003
    s_cselect_b32 s{sKM+1}, -1, 0x30003
    s_cselect_b64 vcc, -1, 0
    s_add_u32 s{sKVP}, s{sT0}, s{sT2}
    s_add_u32 s{sKVP}, s{sKVP}, s{sT3}
    s_cmp_eq_u32 s{sW}, 3
    s_cselect_b32 s{sKVP}, {OOB}, s{sKVP}
    v_lshlrev_b32 v{vT3}, 4, v{vT0}
    v_lshl_add_u32 v{vT3}, v{vT1}, 6, v{vT3}
    v_cndmask_b32 v{vT3}, v{vT3}, v{vL16}, vcc
    v_accvgpr_write_b32 a{cKVS}, v{vT3}
    v_lshlrev_b32 v{vT3}, 2, v{vL16}
    v_and_b32 v{vT3}, 0xf00, v{vT3}
    v_lshrrev_b32 v{vT3}, 1, v{vT3}
    v_and_b32 v{vWB}, 48, v{vL16}
    s_lshr_b32 s{sT2}, s{sW}, 1
    s_lshl_b32 s{sT2}, s{sT2}, 6
    s_add_u32 s{sT2}, s{sT2}, 32768
    s_sub_u32 s{sT2}, s{sT2}, s{sT1}
    v_add3_u32 v{vT3}, v{vT3}, v{vWB}, s{sT2}
    v_accvgpr_write_b32 a{cZL}, v{vT3}
    v_and_b32 v{vWB+5}, 1, v{vLANE}
    v_cndmask_b32 v{vWB+5}, v{vWB+5}, 0, vcc
    s_min_u32 s{sT5}, s{sW}, 2
    """)
    W = vWB
    k(f"""
    v_lshl_add_u32 v{XR}, v{vT1}, 8, v{vT2}
    v_add_u32 v{XR}, s{sL0}, v{XR}
    v_xor_b32 v{XR+1}, 64, v{XR}
    v_xor_b32 v{XR+2}, 0x80, v{XR}
    v_xor_b32 v{XR+3}, 0xc0, v{XR}
    v_and_b32 v{vT3}, 3, v{vLANE}
    v_lshlrev_b32 v{vT3}, 3, v{vT3}
    v_lshl_add_u32 v{vTR0}, v{vP}, 6, v{vT3}
    v_lshl_add_u32 v{vQ0}, v{vP}, 7, v{vT3}
    v_and_b32 v{vT3}, 1, v{vT0}
    v_lshlrev_b32 v{vT3}, 5, v{vT3}
    v_add_u32 v{vTR0}, v{vTR0}, v{vT3}
    v_xor_b32 v{vTR1}, 32, v{vTR0}
    v_bfe_u32 v{vT3}, v{vLANE}, 3, 2
    v_lshl_add_u32 v{vQ0}, v{vT3}, 5, v{vQ0}
    v_xor_b32 v{vQ1}, 32, v{vQ0}
    v_xor_b32 v{vQ2}, 64, v{vQ0}
    v_xor_b32 v{vQ3}, 0x60, v{vQ0}
    v_lshlrev_b32 v{W}, 2, v{vT1}
    v_accvgpr_write_b32 a{cP16}, v{W}
    v_mov_b32 v{W+1}, {BF1}
    v_accvgpr_write_b32 a{aONES}, v{W+1}
    v_accvgpr_write_b32 a{aONES+1}, v{W+1}
    v_accvgpr_write_b32 a{aONES+2}, v{W+1}
    v_accvgpr_write_b32 a{aONES+3}, v{W+1}
    v_add_u32 v{W+1}, {L_CS}, v{W}
    v_accvgpr_write_b32 a{cCSA}, v{W+1}
    v_and_b32 v{W+2}, 48, v{vLANE}
    v_add_u32 v{W+1}, {L_CS}, v{W+2}
    v_accvgpr_write_b32 a{cCSB}, v{W+1}
    v_lshlrev_b32 v{W+1}, 2, v{vT0}
    v_lshl_add_u32 v{W+1}, v{vT1}, 4, v{W+1}
    v_accvgpr_write_b32 a{cSTO}, v{W+1}
    s_lshl_b32 s{sT0}, s{sW}, 8
    s_add_u32 s{sT0}, s{sT0}, {L_STAT}
    v_add_u32 v{W+1}, s{sT0}, v{W}
    v_accvgpr_write_b32 a{cSTA}, v{W+1}
    v_and_b32 v{W+3}, 32, v{vLANE}
    v_lshl_add_u32 v{W+1}, v{W+3}, 1, v{W+1}
    v_accvgpr_write_b32 a{cSTW}, v{W+1}
    v_add_u32 v{W+1}, s{sT0}, v{W+2}
    v_accvgpr_write_b32 a{cSTB}, v{W+1}
    s_lshl_b32 s{sT0}, s{sW}, 10
    v_add_u32 v{W+1}, s{sT0}, v{vL16}
    v_accvgpr_write_b32 a{cKW}, v{W+1}
    v_add_u32 v{W+3}, {R2 + 8192}, v{W+1}
    v_accvgpr_write_b32 a{cKW1}, v{W+3}
    s_lshl_b32 s{sT0}, s{sT5}, 14
    v_add_u32 v{W+1}, s{sT0}, v{vL16}
    v_lshl_add_u32 v{W+1}, v{W+5}, 12, v{W+1}
    v_accvgpr_write_b32 a{cKR}, v{W+1}
    s_lshl_b32 s{sT0}, s{sT5}, 14
    s_add_u32 s{sT0}, s{sT0}, {R2 + 8192}
    v_add_u32 v{W+1}, s{sT0}, v{vL16}
    v_lshl_add_u32 v{W+1}, v{W+5}, 14, v{W+1}
    v_accvgpr_write_b32 a{cKR1}, v{W+1}
    v_add_u32 v{W+1}, {L_XB}, v{vL16}
    v_accvgpr_write_b32 a{cXR}, v{W+1}
    v_lshlrev_b32 v{W+3}, 3, v{vT0}
    v_add_u32 v{W+3}, {L_ZB}, v{W+3}
    v_accvgpr_write_b32 a{cZR}, v{W+3}
    """)
    k(f"""
    s_lshl_b32 s{sT0}, s{sW}, 10
    v_add_u32 v{W+1}, s{sT0}, v{W+1}
    v_accvgpr_write_b32 a{cXW}, v{W+1}
    v_and_b32 v{W+3}, 1, v{vT0}
    v_lshrrev_b32 v{W+4}, 1, v{vT0}
    v_lshl_add_u32 v{W+3}, v{W+3}, 1, v{W+4}
    v_and_b32 v{W+4}, 3, v{vLANE}
    v_lshl_add_u32 v{W+3}, v{W+4}, 2, v{W+3}
    s_lshr_b32 s{sT0}, s{sW}, 1
    s_lshl_b32 s{sT0}, s{sT0}, 5
    s_add_u32 s{sT0}, s{sT0}, {L_ZB}
    v_lshl_add_u32 v{W+3}, v{W+3}, 1, s{sT0}
    v_accvgpr_write_b32 a{cZW}, v{W+3}
    """)
    for j in range(4):
        k(f"s_add_u32 s{sT0}, s{sW}, {j}")
        k(f"s_and_b32 s{sT0}, s{sT0}, 3")
        k(f"s_lshl_b32 s{sT0}, s{sT0}, 13")
        k(f"s_add_u32 s{sT0}, s{sT0}, {L_RED + (4096 if j == 2 else 0)}")
        k(f"v_add_u32 v{W+1}, s{sT0}, v{vL16}")
        k(f"v_accvgpr_write_b32 a{cRD0+j}, v{W+1}")
    k(f"""
    s_lshl2_add_u32 s{sT0}, s{sDH}, s{sW}
    s_lshl3_add_u32 s{sT0}, s{sG}, s{sT0}
    s_lshl_b32 s{sT0}, s{sT0}, 14
    s_lshl_b32 s{sT1}, s{sCT}, 7
    s_add_u32 s{sT0}, s{sT0}, s{sT1}
    v_lshl_add_u32 v{W+1}, v{vT1}, 10, s{sT0}
    v_and_b32 v{W+3}, 1, v{vT0}
    v_lshl_add_u32 v{W+1}, v{W+3}, 5, v{W+1}
    v_lshrrev_b32 v{W+3}, 1, v{vT0}
    v_lshl_add_u32 v{W+1}, v{W+3}, 4, v{W+1}
    v_accvgpr_write_b32 a{cOUT}, v{W+1}
    """)

    def xread(q):
        k.vm_wait(("xs", q))
        for ksl in range(4):
            for rb in range(2):
                k.lds(f"ds_read_b128 {vr(act(4*q+ksl, rb),4)}, v{XR+ksl} offset:{(q%2)*8192 + rb*4096}", ("xr", q))

    SUM0, SQ0, SUM1, SQ1 = vACC + 56, vACC + 57, vACC + 58, vACC + 59
    SUMA, SQA = vACC + 48, vACC + 56
    ONES = vPQ + 4
    NM_A, RS_A, RL_A = vACC + 60, vACC + 62, vACC + 56
    NM_B, RS_B, RL_B = vACC + 32, vACC + 40, vACC + 48
    STG = vACC + 48

    def own_stats():
        a, b, c, d = OWN + 8, OWN + 9, OWN + 10, OWN + 11
        k(f"v_mov_b32 v{OWN+12}, {BF1}")
        k.vm_wait("own")
        for j in range(4):
            r0, r1 = OWN + j, OWN + 4 + j
            k(f"v_dot2_f32_bf16 v{a}, v{OWN+12}, v{r0}, {'0' if j == 0 else f'v{a}'}")
            k(f"v_dot2_f32_bf16 v{c}, v{OWN+12}, v{r1}, {'0' if j == 0 else f'v{c}'}")
            k(f"v_dot2_f32_bf16 v{b}, v{r0}, v{r0}, {'0' if j == 0 else f'v{b}'}")
            k(f"v_dot2_f32_bf16 v{d}, v{r1}, v{r1}, {'0' if j == 0 else f'v{d}'}")
        k(f"""
        s_waitcnt lgkmcnt(0)
        s_mul_i32 s{sTAG}, s{sEP}, 0x9E3779B1
        s_add_u32 s{sTAG}, s{sTAG}, 0x7F4A7C15
        s_add_u32 s{sT8}, s{sEP}, 1
        s_and_b32 s{sT8}, s{sT8}, 0xff
        s_mov_b32 s{sS8}, s{sEP}
        v_permlane32_swap_b32 v{a}, v{c}
        v_permlane32_swap_b32 v{b}, v{d}
        v_add_f32 v{a}, v{a}, v{c}
        v_add_f32 v{b}, v{b}, v{d}
        v_mov_b32 v{c}, v{a}
        v_mov_b32 v{d}, v{b}
        s_nop 1
        v_permlane16_swap_b32 v{a}, v{c}
        v_permlane16_swap_b32 v{b}, v{d}
        v_add_f32 v{a}, v{a}, v{c}
        v_add_f32 v{b}, v{b}, v{d}
        """)
        for sh in (8, 4, 2, 1):
            k("s_nop 0")
            k(f"v_add_f32_dpp v{a}, v{a}, v{a} row_ror:{sh} row_mask:0xf bank_mask:0xf")
            k(f"v_add_f32_dpp v{b}, v{b}, v{b} row_ror:{sh} row_mask:0xf bank_mask:0xf")
        k(f"""
        v_mul_f32 v{a}, 0xbb000000, v{a}
        v_mul_f32 v{b}, 0x3b000000, v{b}
        v_fma_f32 v{b}, -v{a}, v{a}, v{b}
        v_max_f32 v{b}, 0, v{b}
        v_add_f32 v{b}, 0x3727c5ac, v{b}
        v_rsq_f32 v{b}, v{b}
        v_mov_b32 v{c}, s{sTAG}
        v_mov_b32 v{d}, s{sXCC}
        v_lshrrev_b32 v{vT3}, 1, v{vLANE}
        s_lshl4_add_u32 s{sT2}, s{sW}, s{sC}
        s_lshl_b32 s{sT2}, s{sT2}, 7
        s_add_u32 s{sT2}, s{sT2}, s{sGB}
        s_add_u32 s{sT2}, s{sT2}, {G_ST0}
        s_mov_b32 exec_lo, 1
        s_mov_b32 exec_hi, 1
        """)
        k.vmem(f"buffer_store_dwordx4 {vr(a,4)}, v{vT3}, {srd(S_WS)}, s{sT2} offen sc1", "ownst")
        k("s_mov_b64 exec, -1")

    S0 = vACC + 52

    def st0_issue():
        with k.atomic():
            k(f"v_and_b32 v{vT0}, 30, v{vLANE}")
            k(f"v_lshlrev_b32 v{vT0}, 6, v{vT0}")
            k(f"v_and_b32 v{vT1}, 16, v{vL16}")
            k(f"v_add_u32 v{vT0}, v{vT0}, v{vT1}")
            k(f"s_add_u32 s{sT4}, s{sSTg}, {G_ST0}")
            k.vmem(f"buffer_load_dwordx4 {vr(S0,4)}, v{vT0}, {srd(S_WS)}, s{sT4} offen sc1", "st0")

    def st0_use():
        lp, ok = k.label("L_s0"), k.label("L_s0ok")
        with k.atomic():
            k.vm_wait("st0")
            k(f"{lp}:")
            k(f"v_cmp_ne_u32 vcc, s{sTAG}, v{S0+2}")
            k(f"s_cbranch_vccz {ok}")
            k(f"buffer_load_dwordx4 {vr(S0,4)}, v{vT0}, {srd(S_WS)}, s{sT4} offen sc1")
            k("s_waitcnt vmcnt(0)")
            k(f"s_sub_u32 s{sBUD}, s{sBUD}, 1")
            k(f"s_cbranch_scc0 {lp}")
            k(f"s_mov_b32 s{sBUD}, 0")
            k(f"{ok}:")
            k(f"v_cmp_ne_u32 vcc, s{sXCC}, v{S0+3}")
            k("s_nop 4")
            k(f"s_or_b32 s{sSLOW}, vcc_lo, {1 if o.get('forceslow') else 0}")
        k.get(vT0, cSTA)
        k(f"v_and_b32 v{vT1}, 16, v{vLANE}")
        k(f"v_lshl_add_u32 v{vT1}, v{vT1}, 2, v{vT0}")
        k.lds(f"ds_write2_b32 v{vT1}, v{S0}, v{S0+1} offset0:0 offset1:32")
        k.lds(f"ds_read2_b32 {vr(NM_A,2)}, v{vT0} offset0:0 offset1:16", "sta")
        k.lds(f"ds_read2_b32 {vr(RS_A,2)}, v{vT0} offset0:32 offset1:48", "sta")

    def stats_finalize(need_rs):
        k.get(vT1, cSTW)
        k.get(vT0, cSTA)
        k(f"""
        v_permlane32_swap_b32 v{SUM0}, v{SUM1}
        v_permlane32_swap_b32 v{SQ0}, v{SQ1}
        v_add_f32 v{SUM0}, v{SUM0}, v{SUM1}
        v_add_f32 v{SQ0}, v{SQ0}, v{SQ1}
        v_mov_b32 v{SUM1}, v{SUM0}
        v_mov_b32 v{SQ1}, v{SQ0}
        s_nop 0
        v_permlane16_swap_b32 v{SUM0}, v{SUM1}
        v_permlane16_swap_b32 v{SQ0}, v{SQ1}
        v_add_f32 v{SUM0}, v{SUM0}, v{SUM1}
        v_add_f32 v{SQ0}, v{SQ0}, v{SQ1}
        v_mul_f32 v{SUM0}, 0xbb000000, v{SUM0}
        v_mul_f32 v{SQ0}, 0x3b000000, v{SQ0}
        v_fma_f32 v{SQ0}, -v{SUM0}, v{SUM0}, v{SQ0}
        v_max_f32 v{SQ0}, 0, v{SQ0}
        v_add_f32 v{SQ0}, 0x3727c5ac, v{SQ0}
        v_rsq_f32 v{SQ0}, v{SQ0}
        s_nop 0
        """)
        k.lds(f"ds_write2_b32 v{vT1}, v{SUM0}, v{SQ0} offset0:0 offset1:32")
        k.lds(f"ds_read2_b32 {vr(NM_A,2)}, v{vT0} offset0:0 offset1:16", "sta")
        if need_rs:
            k.lds(f"ds_read2_b32 {vr(RS_A,2)}, v{vT0} offset0:32 offset1:48", "sta")

    def stats_b():
        k.get(vT1, cSTB)
        for rb in range(2):
            k.lds(f"ds_read_b128 {vr(NM_B+4*rb,4)}, v{vT1} offset:{64*rb}", "sta")
            k.lds(f"ds_read_b128 {vr(RS_B+4*rb,4)}, v{vT1} offset:{128+64*rb}", "sta")

    def stats_scale():
        k.ds_wait("sta")
        for j in range(8):
            k(f"v_mul_f32 v{RL_B+j}, 0x3fb8aa3b, v{RS_B+j}")
        for j in range(2):
            k(f"v_mul_f32 v{RL_A+j}, 0x3fb8aa3b, v{RS_A+j}")

    def set_ones(r):
        for j in range(4):
            k(f"v_mov_b32 v{r+j}, {BF1}")

    def cs_put(first, sblk):
        k.get(vT0, cCSA)
        k(f"s_lshl_b32 s{sT5}, s{sblk}, 6")
        k(f"v_add_u32 v{vT0}, s{sT5}, v{vT0}")
        k.lds(f"ds_write_b32 v{vT0}, a{aCS} offset:{first*64}")

    def phi_block(acc, nm, cs, rl, rs, dst, tmp, lay):
        s1, s2, s3, s4, s5 = [], [], [], [], []
        for p in range(2):
            a2 = vr(acc + 2*p, 2)
            t2 = vr(tmp + 2*p, 2)
            if lay == "b":
                c2, m = bcast(cs, 1, 3)
                s1.append(f"v_pk_fma_f32 {a2}, {vr(nm+2*p,2)}, {c2}, {a2}{m}")
                s2.append(f"v_pk_mul_f32 {t2}, {a2}, {vr(rl+2*p,2)}")
                s4.append(f"v_pk_fma_f32 {a2}, {a2}, {vr(rs+2*p,2)}, {t2}")
            else:
                c2, m = bcast(nm, 1, 3)
                s1.append(f"v_pk_fma_f32 {a2}, {vr(cs+2*p,2)}, {c2}, {a2}{m}")
                c2, m = bcast(rl, 1, 2)
                s2.append(f"v_pk_mul_f32 {t2}, {a2}, {c2}{m}")
                c2, m = bcast(rs, 1, 3)
                s4.append(f"v_pk_fma_f32 {a2}, {a2}, {c2}, {t2}{m}")
            for j in range(2):
                s3.append(f"v_exp_f32 v{tmp+2*p+j}, v{tmp+2*p+j} clamp")
            s5.append(f"v_pk_add_f32 {a2}, {a2}, s[{sEPS}:{sEPS+1}]")
        for s in s1 + s2 + s3:
            k(s)
        for j in range(4):
            k(f"v_max_f32 v{acc+j}, 0, v{acc+j}")
        for s in s4 + s5:
            k(s)
        for p in range(2):
            k(f"v_cvt_pk_bf16_f32 v{dst+p}, v{acc+2*p}, v{acc+2*p+1}")

    def ring(ks, rb):
        return vACT + 8 * (ks % 6) + 4 * rb
    QA, vPARK = vACT + 48, vACT + 64

    def act_loads(bufoff, act=act):
        for ks in range(16):
            for rb in range(2):
                with k.atomic():
                    if ks % 4 == 0:
                        k(f"s_add_u32 s{sT2+rb}, s{sACT+rb}, {bufoff + ks*1024}")
                    k.vmem(f"buffer_load_dwordx4 {vr(act(ks,rb),4)}, v{vL16}, {srd(S_WS)}, s{sT2+rb} offen offset:{(ks%4)*1024} sc1",
                           ("act", ks, rb))

    def stat_loads(stoff, STG=STG):
        k(f"s_add_u32 s{sT4}, s{sSTg}, {stoff}")
        for j in range(2):
            k.vmem(f"buffer_load_dwordx4 {vr(STG+4*j,4)}, v{vL16}, {srd(S_WS)}, s{sT4} offen offset:{j*1024} sc1", "stg")

    def stat_sum(STG=STG):
        lp, ok = k.label("L_sg"), k.label("L_sgok")
        k.vm_wait("stg")

        def chk():
            k(f"v_and_b32 v{SUM0}, v{STG}, v{STG+1}")
            k(f"v_or3_b32 v{SUM0+1}, v{STG}, v{STG+1}, v{STG+2}")
            k(f"v_and_b32 v{SUM0+2}, v{STG+2}, v{STG+3}")
            k(f"v_or3_b32 v{SUM0+1}, v{SUM0+1}, v{STG+3}, v{STG+4}")
            k(f"v_and_b32 v{SUM0}, v{SUM0}, v{STG+4}")
            k(f"v_or3_b32 v{SUM0+1}, v{SUM0+1}, v{STG+5}, v{STG+6}")
            k(f"v_and_b32 v{SUM0+2}, v{SUM0+2}, v{STG+5}")
            k(f"v_and_b32 v{SUM0}, v{SUM0}, v{STG+6}")
            k(f"v_and_b32 v{SUM0+2}, v{SUM0+2}, v{STG+7}")
            k(f"v_or_b32 v{SUM0+1}, v{SUM0+1}, v{STG+7}")
            k(f"v_and_b32 v{SUM0}, v{SUM0}, v{SUM0+2}")
            k(f"v_xor_b32 v{SUM0+1}, s{sS8}, v{SUM0+1}")
            k(f"v_xor_b32 v{SUM0}, s{sS8}, v{SUM0}")
            k(f"v_or_b32 v{SUM0}, v{SUM0}, v{SUM0+1}")
            k(f"v_and_b32 v{SUM0}, 0xff, v{SUM0}")
        chk()
        with k.atomic():
            k(f"v_cmp_ne_u32 vcc, 0, v{SUM0}")
            k(f"s_cbranch_vccnz {lp}")
            k(f"{ok}:")
        sv, k._rec = k._rec, None
        n0 = len(k.lines)
        k(f"{lp}:")
        for j in range(2):
            k(f"buffer_load_dwordx4 {vr(STG+4*j,4)}, v{vL16}, {srd(S_WS)}, s{sT4} offen offset:{j*1024} sc1")
        k("s_waitcnt vmcnt(0)")
        chk()
        k(f"v_cmp_ne_u32 vcc, 0, v{SUM0}")
        k(f"s_cbranch_vccz {ok}")
        k(f"s_sub_u32 s{sBUD}, s{sBUD}, 1")
        k(f"s_cbranch_scc0 {lp}")
        k(f"s_mov_b32 s{sBUD}, 0")
        k(f"s_branch {ok}")
        k.tailcode += k.lines[n0:]
        del k.lines[n0:]
        k._rec = sv
        for j in range(4):
            k(f"v_add_f32 v{SUM0+j}, v{STG+j}, v{STG+4+j}")

    def mf2(acc, ks, sw, wait, first=None, act=act):
        return [(acc + 4 * rb, act(ks, rb), sw, (ks == 0) if first is None else first,
                 (("act", ks, 1) if ks else ("act", ks, rb)) if wait else None) for rb in range(2)]

    def wo_raw():
        with k.atomic():
            quad_lane(1024)
            k(f"s_lshl_b32 s{sD0}, s{sW}, 17")
            k(f"s_lshl_b32 s{sD1}, s{sCT}, 7")
            k(f"s_add_u32 s{sD0}, s{sD0}, s{sD1}")
            k(f"s_lshl_b32 s{sL0}, s{sW}, 14")
        for j in range(16):
            k.dma(S_WO, vDM, sD0, j * 8 * 1024, sL0, R0 + j * 1024, "wo")

    def w1c1_raw():
        with k.atomic():
            quad_lane(3584, tmp=vACT + 127)
            k(f"s_lshr_b32 s{sD0}, s{sC}, 2")
            k(f"s_mul_i32 s{sD0}, s{sD0}, 896")
            k(f"s_and_b32 s{sD1}, s{sC}, 3")
            k(f"s_lshl_b32 s{sD1}, s{sD1}, 7")
            k(f"s_add_u32 s{sD0}, s{sD0}, s{sD1}")
            k(f"s_mul_i32 s{sD1}, s{sW}, {64*3584}")
            k(f"s_add_u32 s{sD0}, s{sD0}, s{sD1}")
            k(f"s_lshl_b32 s{sL0}, s{sW}, 13")
        for half in range(2):
            for j in range(8):
                k.dma(S_W1, vDM, sD0, (half * 256 + j * 8) * 3584, sL0, R1 + half * 32768 + j * 1024, "w1a")

    def lin_dma(src, dst, n, tag, shared=False):
        for j in range(n):
            with k.atomic():
                if j == 0:
                    k(f"s_mul_i32 s{sL0}, s{sW}, {n*1024}")
                    k(f"s_add_u32 s{sD0}, s{sL0}, s{sPKB}")
                    if shared:
                        k(f"s_mul_i32 s{sD1}, s{sDH}, {8*PK_SZ}")
                        k(f"s_sub_u32 s{sD0}, s{sD0}, s{sD1}")
                if j % 4 == 0:
                    k(f"s_add_u32 m0, s{sL0}, {dst + j*1024}")
                    k(f"s_add_u32 s{sD1}, s{sD0}, {src + j*1024}")
                k.vmem(f"buffer_load_dwordx4 v{vL16}, {srd(S_WS)}, s{sD1} offen offset:{(j%4)*1024} sc1 lds", tag)

    def publish_x(bufoff, stoff, floff, pay_sc1):
        k(f"s_add_u32 s{sT1}, s{sTILE}, {bufoff}")
        k.stores([f"buffer_store_dwordx4 {vr(vRES+4*s,4)}, v{vL16}, {srd(S_WS)}, s{sT1} offen offset:{s*1024}" for s in range(2)], pay_sc1)
        a, b, c, d = vT0, vT1, vT2, vT3
        for j in range(4):
            r0, r1 = vRES + j, vRES + 4 + j
            if j == 0:
                k(f"v_mov_b32 v{vWB+9}, {BF1}")
                k(f"v_dot2_f32_bf16 v{b}, v{r0}, v{r0}, 0")
                k(f"v_dot2_f32_bf16 v{d}, v{r1}, v{r1}, 0")
                k(f"v_dot2_f32_bf16 v{a}, v{vWB+9}, v{r0}, 0")
                k(f"v_dot2_f32_bf16 v{c}, v{vWB+9}, v{r1}, 0")
            else:
                k(f"v_dot2_f32_bf16 v{b}, v{r0}, v{r0}, v{b}")
                k(f"v_dot2_f32_bf16 v{d}, v{r1}, v{r1}, v{d}")
                k(f"v_dot2_f32_bf16 v{a}, v{vWB+9}, v{r0}, v{a}")
                k(f"v_dot2_f32_bf16 v{c}, v{vWB+9}, v{r1}, v{c}")
        k.get(vWB + 8, cSTO)
        k(f"""
        s_add_u32 s{sT3}, s{sSTo}, {stoff}
        v_add_f32 v{b}, v{b}, v{d}
        v_add_f32 v{a}, v{a}, v{c}
        s_nop 1
        v_permlane16_swap_b32 v{a}, v{b}
        v_add_f32 v{a}, v{a}, v{b}
        v_mov_b32 v{b}, v{a}
        s_nop 1
        v_permlane32_swap_b32 v{a}, v{b}
        v_add_f32 v{c}, v{a}, v{b}
        s_add_u32 s{sS8}, s{sS8}, 1
        s_and_b32 s{sS8}, s{sS8}, 0xff
        v_and_b32 v{c}, 0xffffff00, v{c}
        v_or_b32 v{c}, s{sS8}, v{c}
        s_mov_b32 exec_hi, 0
        """)
        k.stores([f"buffer_store_dword v{c}, v{vWB+8}, {srd(S_WS)}, s{sT3} offen"], False, "sts" if o.get("sto", 1) else "st")
        k("s_mov_b64 exec, -1")
        k.poll_prep(15)

    def unpack_res(dst):
        for f in range(4):
            for p in range(2):
                r = vRES + 2*f + p
                k(f"v_lshlrev_b32 v{dst+4*f+2*p}, 16, v{r}")
                k(f"v_and_b32 v{dst+4*f+2*p+1}, 0xffff0000, v{r}")

    def misc_l1():
        k(f"""
        s_add_u32 s{sT2}, s{sTAG}, s{sXCC}
        s_add_u32 s{sT2}, s{sT2}, 2
        v_mov_b32 v{vT1}, s{sT2}
        s_lshl4_add_u32 s{sT2}, s{sG}, s{sC}
        s_lshl_b32 s{sT2}, s{sT2}, 7
        s_add_u32 s{sT2}, s{sT2}, {WS_XID}
        """)
        with k.atomic():
            k(f"s_cmp_lg_u32 s{sW}, 0")
            k(f"s_cselect_b32 s{sT2}, {OOB}, s{sT2}")
            k("s_mov_b64 exec, 1")
            k.vmem(f"buffer_store_dword v{vT1}, v{vL16}, {srd(S_WS)}, s{sT2} offen sc1", "xid")
            k("s_mov_b64 exec, -1")

    def res_load():
        k.get(vT0, cOUT)
        for s_ in range(2):
            k.vmem(f"buffer_load_dwordx4 {vr(vRES+4*s_,4)}, v{vT0}, {srd(S_X)}, 0 offen offset:{64*s_}", "res")

    def touch(kind, vSP=vSP):
        with k.atomic():
            k(f"s_lshl2_add_u32 s{sD3}, s{sC}, s{sW}")
            sD2 = sD3
            if kind == "h":
                k(f"s_mul_i32 s{sD2}, s{sD2}, 7168")
                k(f"s_add_u32 s{sD2}, s{sD2}, s{sGB}")
                k(f"s_add_u32 s{sD2}, s{sD2}, {G_H}")
                k(f"v_lshlrev_b32 v{vSP}, 7, v{vLANE}")
                k("s_mov_b32 exec_hi, 0xffffff")
                k.vmem(f"buffer_load_dword a{aDUM}, v{vSP}, {srd(S_WS)}, s{sD2} offen sc1", "touch")
                k("s_mov_b32 exec_hi, -1")
            else:
                k(f"v_lshlrev_b32 v{vSP}, 7, v{vLANE}")
                k(f"s_lshl_b32 s{sT5}, s{sD2}, 11")
                k(f"s_add_u32 s{sT5}, s{sT5}, s{sGB}")
                k(f"s_add_u32 s{sT5}, s{sT5}, {G_X1}")
                k("s_mov_b64 exec, 0xffff")
                k.vmem(f"buffer_load_dword a{aDUM}, v{vSP}, {srd(S_WS)}, s{sT5} offen sc1", "touch")
                k(f"s_lshl_b32 s{sD2}, s{sD2}, 7")
                k(f"s_add_u32 s{sD2}, s{sD2}, s{sGB}")
                k("s_mov_b64 exec, 1")
                k(f"s_add_u32 s{sD2}, s{sD2}, {G_ST1}")
                k.vmem(f"buffer_load_dword a{aDUM}, v{vSP}, {srd(S_WS)}, s{sD2} offen sc1", "touch")
                k("s_mov_b64 exec, -1")

    def touch_slots(first, n, va=vSP):
        with k.atomic():
            k(f"s_lshl2_add_u32 s{sD3}, s{sC}, s{sW}")
            k(f"v_lshlrev_b32 v{va}, 7, v{vLANE}")
            k(f"s_lshr_b32 s{sT5}, s{sD3}, 3")
            k(f"s_mul_i32 s{sT5}, s{sT5}, 57344")
            k(f"s_and_b32 s{sD3}, s{sD3}, 7")
            k(f"s_mul_i32 s{sD3}, s{sD3}, {n*128}")
            k(f"s_add_u32 s{sT5}, s{sT5}, s{sD3}")
            k(f"s_add_u32 s{sT5}, s{sT5}, s{sGB}")
            k(f"s_add_u32 s{sT5}, s{sT5}, {G_H + first*1024}")
            k(f"s_mov_b32 exec_lo, {(1 << min(n, 32)) - 1}")
            k(f"s_mov_b32 exec_hi, {(1 << max(n - 32, 0)) - 1}")
            k.vmem(f"buffer_load_dword a{aDUM}, v{va}, {srd(S_WS)}, s{sT5} offen sc1", "touch")
            k("s_mov_b64 exec, -1")

    def touches(code, va=vSP):
        if code & 1:
            touch("x", va)
        r = {0: None, 1: (0, 16), 2: (16, 8), 3: (0, 24), 4: (24, 32), 6: (16, 40), 7: (0, 56)}[code >> 1]
        if r:
            touch_slots(r[0], r[1], va)

    def packN_issue():
        with k.atomic():
            quad_lane(1024)
            k(f"""
            s_movk_i32 s{sD2}, 8192
            s_lshl_b32 s{sD0}, s{sG}, 15
            s_lshl_b32 s{sD1}, s{sCT}, 7
            s_add_u32 s{sD0}, s{sD0}, s{sD1}
            s_lshl_b32 s{sPDA}, s{sG}, 12
            s_add_u32 s{sPDA}, s{sPDA}, s{sPKB}
            s_add_u32 s{sPDA}, s{sPDA}, {PK_WO}
            s_lshl2_add_u32 s{sD1}, s{sDH}, s{sW}
            s_cmp_lg_u32 s{sD1}, 3
            s_cbranch_scc1 L_nskip
            """)
            for j in range(4):
                dma_raw(S_WO, j * 1024, j == 0)
            k("L_nskip:")

    def packN_finish(T):
        k(f"s_lshl2_add_u32 s{sD1}, s{sDH}, s{sW}")
        k(f"s_cmp_lg_u32 s{sD1}, 3")
        k("s_cbranch_scc1 L_nfskip")
        for f in range(4):
            k(f"v_add_u32 v{T+16+f}, {L_XST + 3*16384}, v{vQ0+f}")
        for f in range(4):
            for hh in range(2):
                k(f"ds_read_b64_tr_b16 {vr(T+4*f+2*hh,2)}, v{T+16+f} offset:{hh*2048}")
        k("s_waitcnt lgkmcnt(0)")
        for f in range(4):
            k(f"buffer_store_dwordx4 {vr(T+4*f,4)}, v{vL16}, {srd(S_WS)}, s{sPDA} offen offset:{f*1024} sc1")
        k("L_nfskip:")

    def pack_finish(T, base, shift, quad_if_3, tag="pk", sPDA=sPDA):
        lb, le = k.label("L_qb"), k.label("L_qe")
        k(f"s_lshl_b32 s{sT5}, s{sW}, {shift}")
        k(f"s_add_u32 s{sT5}, s{sT5}, {base}")
        k.vm_wait(tag)
        k.ds_all()
        k(f"s_cmp_eq_u32 s{sW}, 3")
        k(f"s_cbranch_scc{0 if quad_if_3 else 1} {lb}")
        for f in range(4):
            k(f"v_add_u32 v{T+16+f}, s{sT5}, v{vQ0+f}")
        for f in range(4):
            for hh in range(2):
                k(f"ds_read_b64_tr_b16 {vr(T+4*f+2*hh,2)}, v{T+16+f} offset:{hh*2048}")
        k("s_waitcnt lgkmcnt(0)")
        for f in range(4):
            k(f"buffer_store_dwordx4 {vr(T+4*f,4)}, v{vL16}, {srd(S_WS)}, s{sPDA} offen offset:{f*1024} sc1")
        k(f"s_branch {le}")
        k(f"{lb}:")
        k(f"v_add_u32 v{T+16}, s{sT5}, v{vTR0}")
        k(f"v_add_u32 v{T+17}, s{sT5}, v{vTR1}")
        k(f"v_lshl_add_u32 v{T+18}, v{vLANE}, 3, s{sT5}")
        for f in range(2):
            for hh in range(2):
                k(f"ds_read_b64_tr_b16 {vr(T+4*f+2*hh,2)}, v{T+16+f} offset:{hh*1024}")
        nf = 2 if quad_if_3 else 3
        if nf == 3:
            for hh in range(2):
                k(f"ds_read_b64_tr_b16 {vr(T+8+2*hh,2)}, v{T+18} offset:{2048+hh*512}")
        k("s_waitcnt lgkmcnt(0)")
        for f in range(nf):
            k(f"buffer_store_dwordx4 {vr(T+4*f,4)}, v{vL16}, {srd(S_WS)}, s{sPDA} offen offset:{f*1024} sc1")
        if nf == 3:
            k(f"buffer_load_dword a{aDUM}, v{vL16}, {srd(S_W1)}, s{S_W1+2} offen")
            nf = 4
        k(f"{le}:")
        k.vm_note(nf, "pst")

    def pack_flag(off=0):
        k(f"""
        s_lshl_b32 s{sT5}, s2, 7
        s_add_u32 s{sT5}, s{sT5}, {WS_PD + off}
        s_cmp_lg_u32 s{sW}, 0
        s_cselect_b32 s{sT5}, {OOB}, s{sT5}
        v_mov_b32 v{vT1}, s{sTAG}
        s_mov_b64 exec, 1
        """)
        k.vmem(f"buffer_store_dword v{vT1}, v{vL16}, {srd(S_WS)}, s{sT5} offen sc1")
        k("s_mov_b64 exec, -1")

    def pack_check_issue(off, va, vd, sb):
        with k.atomic():
            k(f"v_and_b32 v{va}, 1, v{vLANE}")
            k(f"v_lshlrev_b32 v{va}, 7, v{va}")
            k(f"v_lshrrev_b32 v{vd}, 1, v{vLANE}")
            k(f"v_and_b32 v{vd}, 7, v{vd}")
            k(f"s_lshl_b32 s{sT5}, s{sCT if off else sC}, 3")
            k(f"v_add3_u32 v{va}, v{va}, v{vd}, s{sT5}")
            if WP:
                k("s_mov_b32 exec_lo, 0")
                k(f"v_and_b32 v{va}, 0xbf, v{va}")
                k("s_mov_b32 exec_lo, -1")
            k(f"v_min_u32 v{vd}, 29, v{vLANE}")
            k(f"s_mul_i32 s{sT5}, s{sW}, 56")
            k(f"s_lshr_b32 s{sb}, s{sCT}, 1")
            k(f"s_add_u32 s{sT5}, s{sT5}, s{sb}")
            k(f"s_sub_u32 s{sT5}, s{sT5}, 64")
            k(f"v_lshl_add_u32 v{vd}, v{vd}, 2, s{sT5}")
            k("s_mov_b32 vcc_lo, 0xffff")
            k("s_mov_b32 vcc_hi, -1")
            k(f"s_mov_b32 s{sb}, {WS_PD + off}")
            k(f"v_cndmask_b32 v{va}, v{vd}, v{va}, vcc")
            k(f"v_lshlrev_b32 v{va}, 7, v{va}")
            k.vmem(f"buffer_load_dword v{vd}, v{va}, {srd(S_WS)}, s{sb} offen sc1", "pc")

    def pack_check(va, vd, sb):
        lp, ok = k.label("L_pc"), k.label("L_pcok")
        with k.atomic():
            k.vm_wait("pc")
            k(f"{lp}:")
            k(f"v_cmp_ne_u32 vcc, s{sTAG}, v{vd}")
            k(f"s_cbranch_vccz {ok}")
            k(f"buffer_load_dword v{vd}, v{va}, {srd(S_WS)}, s{sb} offen sc1")
            k("s_waitcnt vmcnt(0)")
            k(f"s_sub_u32 s{sBUD}, s{sBUD}, 1")
            k(f"s_cbranch_scc0 {lp}")
            k(f"s_mov_b32 s{sBUD}, 0")
            k(f"{ok}:")

    aPK = 128

    def park_addr(va, base, shift):
        k(f"v_bfe_u32 v{va}, v{vLANE}, 4, 1")
        k(f"v_lshlrev_b32 v{va}, 10, v{va}")
        k(f"v_lshrrev_b32 v{va+1}, 5, v{vLANE}")
        k(f"v_mul_u32_u24 v{va+1}, 0x120, v{va+1}")
        k(f"v_add_u32 v{va}, v{va}, v{va+1}")
        k(f"v_and_b32 v{va+1}, 0xd8, v{vTR0}")
        k(f"s_lshl_b32 s{sT5}, s{sW}, {shift}")
        k(f"s_add_u32 s{sT5}, s{sT5}, {base}")
        k(f"v_add3_u32 v{va}, v{va}, v{va+1}, s{sT5}")
        k(f"v_xor_b32 v{va+1}, 32, v{va}")

    def park_kv(va):
        for r in range(4):
            for blk in range(4):
                for hh in range(2):
                    k.lds(f"ds_read_b64_tr_b16 {ar(aPK + 16*r + 4*blk + 2*hh, 2)}, v{va + (blk & 1)} offset:{r*16384 + (blk >> 1)*2048 + hh*512}")

    def park_q(va):
        for r in range(4):
            for b in range(2):
                for hh in range(2):
                    k.lds(f"ds_read_b64_tr_b16 {ar(aPK + 64 + 8*r + 4*b + 2*hh, 2)}, v{va + b} offset:{r*8192 + hh*512}")

    def unpark(va):
        with k.atomic():
            k(f"s_lshr_b32 s{sD0}, s{sC}, 1")
            k(f"s_xor_b32 s{sD0}, s{sD0}, s{sG}")
            k(f"s_and_b32 s{sD0}, s{sD0}, 1")
            k(f"s_and_b32 s{sD1}, s{sC}, 1")
            k(f"s_lshl1_add_u32 s{sD0}, s{sD0}, s{sD1}")
        for kind in range(2):
            for r in range(4):
                for b in range(2 if kind else 4):
                    with k.atomic():
                        if b == 0:
                            k(f"s_add_u32 s{sD1}, s{sD0}, {r}")
                            k(f"s_and_b32 s{sD1}, s{sD1}, 3")
                            k(f"s_lshl2_add_u32 s{sD1}, s{sD1}, s{sW}")
                            k(f"s_lshl_b32 s{sD1}, s{sD1}, {11 if kind else 12}")
                            if kind:
                                k(f"s_add_u32 s{sD1}, s{sD1}, {R1}")
                            k(f"v_add_u32 v{va}, s{sD1}, v{vL16}")
                        j = 16 + 2 * r + b if kind else 4 * r + b
                        k.lds(f"ds_write_b128 v{va}, {ar(aPK + 4*j, 4)} offset:{b*1024}", ("up", j // 4))

    def wq_raw():
        k(f"s_lshl_b32 s{sL1}, s{sW}, 11")
        with k.atomic():
            k(f"v_and_b32 v{vT2}, 3, v{vP}")
            k(f"v_lshrrev_b32 v{vDM}, 4, v{vLANE}")
            k(f"v_lshl_add_u32 v{vT2}, v{vDM}, 3, v{vT2}")
            k(f"s_movk_i32 s{sD3}, 3072")
            k(f"v_mad_u32_u24 v{vDM}, v{vT2}, s{sD3}, v{vCH}")
        for r in range(4):
            for hh in range(2):
                k.dma(S_WQKV, vDM, sRB + r, hh * 4 * 3072, sL1, R1 + r * 8192 + hh * 1024, "wq")

    def async_check(tag, soff, imm):
        ok = k.label("L_aok")
        with k.atomic():
            k.vm_wait(tag)
            k(f"v_cmp_ne_u32 vcc, s{sTAG}, v{vT0}")
            k(f"s_cbranch_vccz {ok}")
            k.save_vm()
            k.poll(soff, imm, False)
            k.restore_vm()
            k(f"{ok}:")

    CSK = vT0
    gA = None
    for layer in range(1 if o.get("one") else 2):
        L1 = layer == 0
        sc = o.get("sc1", 0x04)
        psc = lambda i: bool(sc >> (4 * layer + i) & 1)
        PRE = o.get("pre", 8)
        k.fast = ["", " nt", " sc0", " sc0 nt"][o.get("ntst", 4) >> (2 * layer) & 3]

        def w2t_loads():
            for j in range(56):
                with k.atomic():
                    if j == 0:
                        k(f"s_lshl2_add_u32 s{sPDB}, s{sCT}, s{sW}")
                        k(f"s_mul_i32 s{sPDB}, s{sPDB}, 57344")
                        k(f"s_add_u32 s{sPDB}, s{sPDB}, {WS_W2T}")
                    if j % 4 == 0:
                        k(f"s_add_u32 s{sJ0}, s{sPDB}, {j*1024}")
                    k.vmem(f"buffer_load_dwordx4 {ar(4*j,4)}, v{vL16}, {srd(S_WS)}, s{sJ0} offen offset:{(j%4)*1024} sc1", ("w2t", j // 4))

        w2 = k.rec(w2t_loads) if L1 else []

        def takew2(name, dflt):
            nonlocal w2
            n = min(o.get(name, dflt), len(w2) - 24) if L1 else 0
            r, w2 = w2[:n], w2[n:]
            return r

        def kv_consts():
            k.get(vPQ, cCSA)
            k.lds(f"ds_read2_b32 {vr(CSK,2)}, v{vPQ} offset0:0 offset1:16", "cs")
            k.lds(f"ds_read2_b32 {vr(CSK+2,2)}, v{vPQ} offset0:32 offset1:48", "cs")
        if L1:
            CSA = vACC + 32
            k(f"s_and_b32 s{sT0}, s{sW}, 1")
            k(f"s_lshl_b32 s{sT0}, s{sT0}, 5")
            k(f"v_xor_b32 v{vPQ+3}, s{sT0}, v{vTR0}")
            k(f"s_lshr_b32 s{sT0}, s{sW}, 1")
            k(f"s_lshl_b32 s{sT0}, s{sT0}, 11")
            k(f"v_add_u32 v{vPQ+2}, s{sT0}, v{vPQ+3}")
            k(f"s_lshl_b32 s{sT1}, s{sW}, 5")
            k(f"v_xor_b32 v{vPQ+6}, s{sT1}, v{vQ0}")

            def wo_pack():
                T_ = vACT + 96
                for hh in range(2):
                    k.lds(f"ds_read_b64_tr_b16 {vr(T_+2*hh,2)}, v{vPQ+6} offset:{R0 + 49152 + hh*2048}", "wp")
                k.play([lambda: None] * 2)
                with k.atomic():
                    k.ds_wait("wp")
                    k.vmem(f"buffer_store_dwordx4 {vr(T_,4)}, v{vL16}, {srd(S_WS)}, s{sPDA} offen sc1", "pst")
            if o.get("diags"): k.stamp("setup")
            PADP = o.get("padp", 0)
            if PADP == 1:
                k("PADCALL")
            own_stats()
            if o.get("diags"): k.stamp("own")
            nx0 = o.get("nx0", 0)
            xslot(0, range(nx0))
            if o.get("pads", 2048) and PADP == 0:
                k("PADCALL")
            if o.get("diags"): k.stamp("pad")
            if o.get("pf1", 0):
                pack_finish(vACT + 64, R1, 12, False, "pu", sPDB)
            xslot(0, range(nx0, 8)); xslot(1, range(o.get("x1pre", 4)))
            if o.get("diags"): k.stamp("xiss")
            if UF == 1 and not o.get("pf1", 0):
                pack_finish(vACT + 64, R1, 12, False, "pu", sPDB)
            if o.get("diags"): k.stamp("pfin")
            xread(0)
            def rnd_begin(r):
                k.vm_wait(("wkv", r))
                k.barrier(True)
                fr = []
                for ks in range(4 * r, 4 * r + 4):
                    fr.append(dict(addr=vPQ + 2, offs=(R0 + ks * 4096, R0 + ks * 4096 + 1024), mf=[(None, None, False, ks == 0, None)]))
                for ks in range(4 * r, 4 * r + 4):
                    for pr in range(2):
                        for b in range(2):
                            base = R0 + ks * 4096 + pr * 2048
                            fr.append(dict(addr=(vTR0, vTR1)[b], offs=(base, base + 1024), mf=mf2(vACC + 16 * pr + 8 * b, ks, False, False)))
                return k.gemm_begin(fr)
            wq = k.rec(wq_raw)
            xslot(1, range(o.get("x1pre", 4), 8))
            g = rnd_begin(0)
            k.stamp("x0")
            f = {}
            if WP:
                w1_ = k.rec(lambda: wkv_raw(1))
                spread(f, w1_[:2], 0, 2); spread(f, k.rec(wo_pack), 0, 1); spread(f, w1_[2:] + k.rec(lambda: xslot(2)), 6, 3)
            else:
                spread(f, k.rec(lambda: (wkv_raw(1), xslot(2))), 0, 3)
            spread(f, k.rec(lambda: xread(1)), 30, 1, 2); k.gemm_run(g, f)
            k.stamp("r0")
            g = rnd_begin(1)
            f = {}
            if UF == 1:
                spread(f, k.rec(pack_flag), 1, 0)
            spread(f, k.rec(lambda: (wkv_raw(2), xslot(3))), 0, 3); spread(f, k.rec(lambda: xread(2)), 31, 1, 2); k.gemm_run(g, f)
            k.stamp("r1")
            g = rnd_begin(2)
            nq = o.get("nq", 6)
            if UF == 2:
                pu_ = k.rec(lambda: packU_issue(L_XST + 4096, sD0, sD1, sD2, sD3, sJ0, vDM, sPDB, 14))
                wq = pu_ + wq if o.get("pufirst", 1) else wq + pu_
            f = {}; spread(f, k.rec(lambda: (wkv_raw(3), st0_issue())) + wq[:nq], 0, 3); spread(f, k.rec(lambda: xread(3)), 31, 1, 2); k.gemm_run(g, f)
            k.stamp("r2")
            g = rnd_begin(3)
            f = {}
            spread(f, k.rec(st0_use), 0, 1)
            spread(f, k.rec(lambda: cs_put(0, sW)), 8, 0)
            spread(f, k.rec(stats_b), 10, 1)
            spread(f, k.rec(stats_scale), 24, 1)
            spread(f, k.rec(lambda: park_addr(vRES + 2, R0, 12)), 15, 0)
            pn = k.rec(lambda: (packN_issue(), k.vmem(f"buffer_load_dword a{aDUM}, v{vL16}, {srd(S_W1)}, s{S_W1+2} offen", "pn")))
            pci = k.rec(lambda: pack_check_issue(0, vRES, vRES + 1, sPDB)) if UF == 1 else []
            if o.get("w2e", 8):
                spread(f, wq[nq:] + pci, 1, o.get("r3s", 5))
            else:
                spread(f, wq[nq:] + pn + pci, 1, o.get("r3s", 5))
            bg = []
            k.gemm_run(g, f)
            k.stamp("A.kv")
            k.barrier()
            kv_consts()
        else:
            k.poll_b(sFXp, G_FX2)
            k.stamp("A.poll")
            al = k.rec(lambda: act_loads(G_X2, ring))
            PA = o.get("prea", 4)
            k.play(al[:PA])
            k(f"s_add_u32 s{sTAG}, s{sTAG}, 1")
            fill = {}
            sl = k.rec(lambda: stat_loads(G_ST2))
            e = spread(fill, al[PA:12] + [lambda: k.play(sl[:2]), sl[2]], 0, 4)
            for i_ in range(12, 32):
                pos = max(12 * (i_ // 2 - 6) + 11 + 4 * (i_ & 1), e)
                spread(fill, [al[i_]], pos, 1)
                e = pos + 3
            e2 = spread(fill, k.rec(lambda: (stat_sum(), stats_finalize(True), stats_b())), 60, 1.3)
            e2 = spread(fill, k.rec(stats_scale), e2 + 6, 1.3)
            spread(fill, k.rec(kv_consts), e2, 1.3)
            spread(fill, k.rec(lambda: lin_dma(PK_WO + 32768, R2, 8, "wo", True)), e, o.get("wos", 5))
            if o.get("diagc"):
                for ix in (0, 23, 47, 95, 143):
                    spread(fill, k.rec(lambda: k.stamp(f"A.m{ix}", True)), ix, 0)
            k.gemm_run(gA, fill)
            k.stamp("A.kv")
            k("s_barrier")
            bg = []
        k("s_nop 2")
        k.get(vWB + 22, cKW1 if L1 else cKW)
        k.get(vWB + 23, cKR1 if L1 else cKR)
        k.ds_all()
        PK, PV, TMP = vPQ, vACC, vWB + 24
        KVA = vACC + 16

        def kv_epi():
            for h in range(2):
                for rb in range(2):
                    phi_block(vACC + 8*h + 4*rb, NM_B + 4*rb, CSK + h, RL_B + 4*rb, RS_B + 4*rb, PK + 4*h + 2*rb, TMP, "b")
            for h in range(2):
                for rb in range(2):
                    a = vACC + 16 + 8*h + 4*rb
                    c2, m = bcast(CSK + 2 + h, 1, 3)
                    for p in range(2):
                        k(f"v_pk_fma_f32 {vr(a+2*p,2)}, {vr(NM_B+4*rb+2*p,2)}, {c2}, {vr(a+2*p,2)}{m}")
                    for p in range(2):
                        k(f"v_pk_mul_f32 {vr(a+2*p,2)}, {vr(a+2*p,2)}, {vr(RS_B+4*rb+2*p,2)}")
                    for p in range(2):
                        k(f"v_cvt_pk_bf16_f32 v{PV+4*h+2*rb+p}, v{a+2*p}, v{a+2*p+1}")
                    if rb == 0:
                        k(f"v_mfma_f32_16x16x32_bf16 {vr(vACC+8+4*h,4)}, {vr(PK+4*h,4)}, {ar(aONES,4)}, 0")
                if h == 0:
                    pass
        if L1:
            we = takew2("w2e", 8)
            ke = mix(k.rec(kv_epi), k.rec(lambda: park_kv(vRES + 2)), 3)
            if we:
                c0 = o.get("w2c", 40)
                touches(o.get("Te", 6), vWB + 20)
                k.play(ke[:c0])
                pack_check(vRES, vRES + 1, sPDB)
                ke = mix(ke[c0:], we, (135 - c0) // len(we))
            k.play(ke)
        else:
            wod = k.rec(lambda: lin_dma(PK_WO, R1, 8, "wo", True))
            nwo = o.get("nwo", 0)
            k.play(mix(k.rec(kv_epi), wod[:nwo], 100 // max(nwo, 1))); wod = wod[nwo:]
        KRO = [0, 16384, 32768, 49152 if L1 else 36864]
        k.lds(f"ds_write_b128 v{vWB+22}, {vr(vACC+8,4)} offset:{KRO[2]}")
        for h in range(2):
            k(f"v_mfma_f32_16x16x32_bf16 {vr(KVA+4*h,4)}, {vr(PK+4*h,4)}, {vr(PV+4*h,4)}, 0")
        k.lds(f"ds_write_b128 v{vWB+22}, {vr(vACC+12,4)} offset:{KRO[3]}")
        k.get(vWB + 21, cKVS)
        k("s_nop 4")
        for h in range(2):
            k.lds(f"ds_write_b128 v{vWB+22}, {vr(KVA+4*h,4)} offset:{KRO[h]}")
        if L1 and UF == 1:
            k.vm_wait("wq")
        k.barrier()
        for s in range(4):
            k.lds(f"ds_read_b128 {vr(vWB+4*s,4)}, v{vWB+23} offset:{s*1024}", ("kr", s))
        KO = vACC + 32
        k.ds_wait(("kr", 1))
        for p in range(2):
            k(f"v_pk_add_f32 {vr(vWB+2*p,2)}, {vr(vWB+2*p,2)}, {vr(vWB+4+2*p,2)}")
        k.ds_wait(("kr", 3))
        for p in range(2):
            k(f"v_pk_add_f32 {vr(vWB+8+2*p,2)}, {vr(vWB+8+2*p,2)}, {vr(vWB+12+2*p,2)}")
        for p in range(2):
            k(f"v_pk_add_f32 {vr(KO+2*p,2)}, {vr(vWB+2*p,2)}, {vr(vWB+8+2*p,2)}")
        k(f"v_and_b32 v{KO}, 0xffffff00, v{KO}")
        k(f"v_or_b32 v{KO}, s{sT8}, v{KO}")
        k(f"s_mov_b64 exec, s[{sKM}:{sKM+1}]")
        k.vmem(f"buffer_store_dwordx4 {vr(KO,4)}, v{vWB+21}, {srd(S_WS)}, s{sKVP} offen sc1", "kvst")
        k("s_mov_b64 exec, -1")
        k.stamp("A.kvpub")
        fill = {}
        fr = []
        CSQ = vACC + 24

        def q_consts():
            k.get(vT0, cCSB)
            for h in range(2):
                k.lds(f"ds_read_b128 {vr(CSQ+4*h,4)}, v{vT0} offset:{(4+h)*64}")
        if L1:
            if UF == 1:
                if not o.get("w2e", 8):
                    pack_check(vRES, vRES + 1, sPDB)
            else:
                pack_finish(vWB, L_XST + 4096, 14, False, "pu", sPDB)
                k.vm_wait("pn")
                k("s_barrier")
            if not o.get("w2e", 8):
                packN_finish(vWB)
            park_addr(vPQ + 4, R1, 11)
            if o.get("diag"): k.stamp("q.pf")
            k(f"v_add_u32 v{vPQ}, {R1}, v{vTR0}")
            k(f"v_add_u32 v{vPQ+1}, {R1}, v{vTR1}")
            k(f"s_and_b32 s{sT0}, s{sW}, 1")
            k(f"s_lshl_b32 s{sT1}, s{sT0}, 5")
            k(f"v_xor_b32 v{vPQ+2}, s{sT1}, v{vPQ}")
            for j in range(16):
                fr.append(dict(addr=vPQ + 2, offs=(j * 2048, j * 2048 + 1024), mf=[(None, None, False, j == 0, None)]))
            for ks in range(16):
                for b in range(2):
                    fr.append(dict(addr=vPQ + b, offs=(ks * 2048, ks * 2048 + 1024), mf=mf2(vACC + 8 * b, ks, True, False)))
            wor = k.rec(lambda: lin_dma(PK_WO, R0, 16, "wo", True)) if WP else k.rec(wo_raw)
            e = spread(fill, bg + k.rec(res_load), 0, 1)
            if o.get("arm", 0):
                e = spread(fill, k.rec(lambda: arm(o.get("arm", 0))), e, 2)
            e = spread(fill, k.rec(lambda: touches(o.get("Tq", 0))), e, 1)
            e = spread(fill, wor, e, o.get("wors", 2))
            spread(fill, takew2("w2q", 8), e, 4)
            spread(fill, k.rec(lambda: park_q(vPQ + 4)), 20, 3)
            k.gemm(fr, fill)
            if o.get("diag"): k.stamp("q.mm")
            cs_put(4, sT0)
            if UF == 2:
                k.vm_wait("pst")
            k.barrier()
            if o.get("diag"): k.stamp("q.bar")
            q_consts()
            if UF == 2:
                pack_flag()
        else:
            q_consts()
        lp2, done2 = k.label("L_kp"), k.label("L_kd")
        SM = vWB + 8
        ZL = vACT + 32

        def kv_loads(track):
            ins = [(f"buffer_load_dwordx4 {vr(ZL,4)}, v{vT2}, {srd(S_WS)}, s{sKVC} offen sc1", "zl")]
            for j in range(8):
                ins.append((f"buffer_load_dwordx4 {vr(vACT+4*j,4)}, v{vL16}, {srd(S_WS)}, s{sKVC if j < 4 else sT2} offen offset:{(j%4)*1024} sc1", ("kv", j)))
            for i_, t_ in ins:
                if track:
                    k.vmem(i_, t_)
                else:
                    k(i_)
        if L1:
            w1a = k.rec(lambda: (lin_dma(PK_W1A, R1, 16, "w1a"), lin_dma(PK_W1B, R3, 6, "w1c2")))
        else:
            w1a = []
        k.get(vT2, cZL)
        k(f"s_add_u32 s{sT2}, s{sKVC}, 4096")
        kl = k.rec(lambda: kv_loads(True))
        QS = vACC if L1 else QA
        ph = k.rec(lambda: [phi_block(QS + 8*h + 4*rb, NM_A + rb, CSQ + 4*h, RL_A + rb, RS_A + rb, vPQ + 4*h + 2*rb, vWB, "a")
                            for h in range(2) for rb in range(2)])
        if L1:
            k.play(kl[:5])
            k.ds_all()
            if o.get("diag"): k.stamp("q.kl5")
            na = o.get("w1a0", 4) if UF == 1 else 0
            k.play(mix(ph, kl[5:] + w1a[:na], o.get("phr", 10)))
            w1a = w1a[na:]
        else:
            def unpark_w1():
                for j in range(16):
                    k.lds(f"ds_write_b128 v{vT3}, {vr(vPARK+4*j,4)} offset:{j*1024}")
            k(f"s_lshl_b32 s{sT5}, s{sW}, 14")
            k(f"v_add_u32 v{vT3}, s{sT5}, v{vL16}")
            uw = k.rec(unpark_w1)
            if late:
                nl = o.get("nul", 6)
                f = {}; spread(f, uw[:nl], 1, 2 * len(late) / max(nl, 1)); uw = uw[nl:]
                k.gemm(late, f)
                k("s_barrier")
                k("s_nop 3")
            k.play(wod[:4]); wod = wod[4:]
            k.ds_all()
            nu = o.get("nu", 16)
            k.play(mix(mix(ph, uw[:nu], 5), wod, 10))
            k.play(mix(kl, uw[nu:], 1))
        k.stamp("A.q")
        if L1:
            k("PADCALL1")
        k.get(vT1, cXW)
        k.get(vWB + 18, cZW)
        k.get(vWB + 16, cXR)
        k.get(vWB + 17, cZR)
        k(f"s_branch {lp2}_s")
        k(f"{lp2}:")
        kv_loads(False)
        k("s_waitcnt vmcnt(0)")
        k(f"{lp2}_s:")
        k.vm_wait("zl")
        k(f"""
        v_mov_b32 v{SM+4}, v{ZL}
        v_mov_b32 v{SM+5}, v{ZL}
        v_permlane32_swap_b32 v{ZL}, v{ZL+1}
        v_permlane32_swap_b32 v{ZL+2}, v{ZL+3}
        v_add_f32 v{ZL}, v{ZL}, v{ZL+1}
        v_add_f32 v{ZL+2}, v{ZL+2}, v{ZL+3}
        s_nop 1
        v_permlane16_swap_b32 v{ZL}, v{ZL+2}
        v_add_f32 v{ZL}, v{ZL}, v{ZL+2}
        s_nop 1
        v_add_f32_dpp v{ZL}, v{ZL}, v{ZL} row_ror:4 row_mask:0xf bank_mask:0xf
        s_nop 1
        v_add_f32_dpp v{ZL}, v{ZL}, v{ZL} row_ror:8 row_mask:0xf bank_mask:0xf
        v_cvt_pk_bf16_f32 v{ZL}, v{ZL}, v{ZL}
        ds_write_b16 v{vWB+18}, v{ZL}
        """)
        for j in range(0, 8, 2):
            a, b = vACT + 4*j, vACT + 4*j + 4
            k.vm_wait(("kv", j + 1))
            k(f"v_and_b32 v{SM+4}, v{SM+4}, v{a}")
            k(f"v_and_b32 v{SM+4}, v{SM+4}, v{b}")
            k(f"v_or3_b32 v{SM+5}, v{SM+5}, v{a}, v{b}")
            if j == 0:
                for p in range(2):
                    k(f"v_pk_add_f32 {vr(SM+2*p,2)}, {vr(a+2*p,2)}, {vr(b+2*p,2)}")
            else:
                for p in range(2):
                    k(f"v_pk_add_f32 {vr(a+2*p,2)}, {vr(a+2*p,2)}, {vr(b+2*p,2)}")
                for p in range(2):
                    k(f"v_pk_add_f32 {vr(SM+2*p,2)}, {vr(SM+2*p,2)}, {vr(a+2*p,2)}")
        k(f"""
        ds_write_b128 v{vT1}, {vr(SM,4)}
        v_xor_b32 v{SM+4}, s{sT8}, v{SM+4}
        v_xor_b32 v{SM+5}, s{sT8}, v{SM+5}
        v_or_b32 v{SM+4}, v{SM+4}, v{SM+5}
        v_and_b32 v{SM+4}, 0xff, v{SM+4}
        v_cmp_ne_u32 vcc, 0, v{SM+4}
        s_cbranch_vccz {done2}
        s_waitcnt lgkmcnt(0)
        s_sub_u32 s{sBUD}, s{sBUD}, 4
        s_cbranch_scc0 {lp2}
        s_mov_b32 s{sBUD}, 0
        {done2}:
        """)
        k.stamp("A.kvget")
        if L1:
            touches(o.get("Tk", 0))
        n1 = o.get("w1a1", 4) if L1 and UF == 1 else 0
        if L1 and UF == 2:
            pack_check_issue(0, vTR0, vTR1, sPDB)
        k.play(w1a[:n1]); w1a = w1a[n1:]
        k.barrier(True)
        for h in range(2):
            k.lds(f"ds_read_b64 {vr(vWB+4*h+2,2)}, v{vWB+17} offset:{h*32}", "zf")
        for j in range(4):
            k.lds(f"ds_read_b128 {vr(vACT+4*j,4)}, v{vWB+16} offset:{1024*j}")
        k.ds_wait("zf")
        OA = vACC + 16
        for rb in range(2):
            for h in range(2):
                d = OA + 16*rb + 8*h
                k(f"v_mfma_f32_16x16x16_bf16 {vr(d+4,4)}, {vr(vWB+4*h+2,2)}, {vr(vPQ+4*h+2*rb,2)}, 0")
        k.ds_all()
        for h in range(2):
            for p in range(2):
                k(f"v_pk_add_f32 {vr(vACT+8*h+2*p,2)}, {vr(vACT+8*h+2*p,2)}, {vr(vACT+8*h+4+2*p,2)}")
        for h in range(2):
            for p in range(2):
                k(f"v_cvt_pk_bf16_f32 v{vWB+4*h+p}, v{vACT+8*h+2*p}, v{vACT+8*h+2*p+1}")
        for rb in range(2):
            for h in range(2):
                d = OA + 16*rb + 8*h
                k(f"v_add_f32 v{d+4}, s{sEPS}, v{d+4}")
        for rb in range(2):
            for h in range(2):
                d = OA + 16*rb + 8*h
                k(f"v_mfma_f32_16x16x16_bf16 {vr(d,4)}, {vr(vWB+4*h,2)}, {vr(vPQ+4*h+2*rb,2)}, 0")
        for rb in range(2):
            for h in range(2):
                d = OA + 16*rb + 8*h
                k(f"v_rcp_f32 v{d+4}, v{d+4}")
        k("s_nop 1")
        for rb in range(2):
            for h in range(2):
                d = OA + 16*rb + 8*h
                for p in range(2):
                    k(f"v_pk_mul_f32 {vr(d+2*p,2)}, {vr(d+2*p,2)}, {vr(d+4,2)} op_sel_hi:[1,0]")
                for p in range(2):
                    k(f"v_cvt_pk_bf16_f32 v{vPQ+4*rb+2*h+p}, v{d+2*p}, v{d+2*p+1}")
        k.stores([f"buffer_store_dwordx4 {vr(vPQ+4*rb,4)}, v{vL16}, {srd(S_WS)}, s{sOST+rb} offen" for rb in range(2)], psc(0))
        nb = o.get("w1a_pre1", 6) if L1 else o.get("w1a_pre", 0)
        if L1 and UF == 2:
            pack_check(vTR0, vTR1, sPDB)
        k.play(w1a[:nb])
        if L1:
            for s_ in range(2):
                for p in range(2):
                    k(f"v_permlane16_swap_b32 v{vRES+4*s_+p}, v{vRES+4*s_+2+p}")
        urs = k.rec(lambda: unpack_res(vACC))
        fr = []
        for ks in range(16):
            for f in range(4):
                mf = [(vACC + 4 * f, vACT + 4 * ks, True, False, ("act", ks))]
                if L1 and WP:
                    fr.append(dict(addr=vL16, offs=(R0 + ks * 4096 + f * 1024,), mf=mf))
                elif L1:
                    fr.append(dict(addr=vQ0 + f, offs=(R0 + ks * 4096, R0 + ks * 4096 + 2048), mf=mf))
                else:
                    fr.append(dict(addr=vTR0, offs=(ks * 4096 + f * 1024,), mf=mf))
        if L1:
            k("PADCALL2")
        k.poll_prep(15)
        k.flag(sFOo, G_FO)
        k.poll_a(sFOp, G_FO)
        g = k.gemm_begin(fr, 7)
        k.play(urs)
        k.stamp("A.opub")
        k.poll_b(sFOp, G_FO)
        k.stamp("B.poll")

        def b_loads():
            for ks in range(16):
                with k.atomic():
                    if ks % 4 == 0:
                        k(f"s_add_u32 s{sT2}, s{sBACT}, {G_O + ks*1024}")
                    k.vmem(f"buffer_load_dwordx4 {vr(vACT+4*ks,4)}, v{vL16}, {srd(S_WS)}, s{sT2} offen offset:{(ks%4)*1024} sc1", ("act", ks))
        bl = k.rec(b_loads)
        PB = o.get("preb", PRE)
        k.play(bl[:PB])
        fill = {}
        e = spread(fill, bl[PB:], 0, 3)
        e = spread(fill, w1a[nb:], e, o.get("w1st", 3))
        if L1:
            e = spread(fill, k.rec(lambda: touches(o.get("Tb", 1))), e, 1)
        spread(fill, takew2("w2b", 0), e, 4)
        k.gemm_run(g, fill)
        k.stamp("B.mm")
        k(f"v_add_u32 v{vTR1}, {R1}, v{vL16}")
        k("s_nop 6")
        for f in range(4):
            for p in range(2):
                k(f"v_cvt_pk_bf16_f32 v{vRES+2*f+p}, v{vACC+4*f+2*p}, v{vACC+4*f+2*p+1}")
        publish_x(G_X1, G_ST1, G_FX1, psc(1))
        k.play(takew2("w2x", 0))
        k.flag(sFXo, G_FX1)
        if not L1:
            k.poll_a(sFXp, G_FX1)
        k.stamp("B.pub")
        if L1 and o.get("w2e", 8) and not WP:
            k(f"s_lshl2_add_u32 s{sD1}, s{sDH}, s{sW}")
            k(f"s_cmp_lg_u32 s{sD1}, 3")
            k("s_cbranch_scc1 L_nfskip")
            k(f"s_lshl_b32 s{sT5}, s{sG}, 12")
            for f in range(4):
                k(f"v_add_u32 v{vWB+16+f}, s{sT5}, v{vQ0+f}")
            for f in range(4):
                for hh in range(2):
                    k(f"ds_read_b64_tr_b16 {vr(vACC+4*f+2*hh,2)}, v{vWB+16+f} offset:{hh*2048}")
            k(f"s_add_u32 s{sT5}, s{sT5}, s{sPKB}")
            k(f"s_add_u32 s{sT5}, s{sT5}, {PK_WO}")
            k("s_waitcnt lgkmcnt(0)")
            for f in range(4):
                k(f"buffer_store_dwordx4 {vr(vACC+4*f,4)}, v{vL16}, {srd(S_WS)}, s{sT5} offen offset:{f*1024} sc1")
            k("L_nfskip:")
        k("s_barrier")
        w1c2 = k.rec(lambda: lin_dma(PK_W1B + 24576, R0 if L1 else R1, 6, "w1c2"))
        if L1 and not o.get("w2e", 8):
            pack_flag(0x8000)
        nc = o.get("w1c2_pre1", 0) if L1 else o.get("w1c2_pre", 0)
        k.play(w1c2[:nc])
        if L1:
            k(f"s_lshl_b32 s{sT2}, s{sW}, 10")
            k(f"v_add_u32 v{vPQ}, s{sT2}, v{vTR1}")
            fr = []
            for j in range(16):
                fr.append(dict(addr=vPQ, offs=(j * 4096,), mf=[(None, None, False, j == 0, None)]))
            k.gemm(fr, D=7)
            k("s_nop 5")
            cs_put(6, sW)
        C2 = vACC + 32
        vC1, vC2, vCc, vCd = (vTR1 if L1 else vL16), vDM, vP, vCH
        k(f"v_add_u32 v{vC2}, {R3}, v{vL16}")
        if L1:
            k(f"s_min_u32 s{sPDA}, s{sW}, 2")
            k(f"s_lshl_b32 s{sT2}, s{sPDA}, 10")
            k(f"v_add_u32 v{vCd}, s{sT2}, v{vL16}")
            k(f"v_add_u32 v{vCc}, {R3}, v{vCd}")
        NX = o.get("nx1", 0) if L1 else o.get("nx", 0)
        INIT2 = not L1 and NX == 0
        f2 = []
        for ks in range(16):
            if L1:
                f2.append(dict(addr=vCc if ks < 8 else vCd, offs=((ks % 8) * 3072,), mf=[(None, None, False, ks == 0, None)], late=ks >= 8))
            for b in range(3):
                f2.append(dict(addr=vC2 if ks < 8 else vL16 if L1 else vTR1, offs=((ks % 8) * 3072 + b * 1024,),
                               mf=mf2(C2 + 8 * b, ks, True, False, False if INIT2 else None), late=ks >= 8))
        fr = []
        XS0 = o.get("xs0", 2)
        for ks in range(16):
            if ks >= XS0:
                n_ = (NX * (ks - XS0 + 1)) // (16 - XS0) - (NX * (ks - XS0)) // (16 - XS0)
                fr += f2[:n_]; f2 = f2[n_:]
            for f in range(4):
                fr.append(dict(addr=vC1, offs=(ks * 4096 + f * 1024,), mf=mf2(vACC + 8 * f, ks, True, True)))
        M1 = sum(len(f["mf"]) for f in fr)
        fr += f2
        NM = sum(len(f["mf"]) for f in fr)
        tl = [i for i, f in enumerate(fr) if f.get("late")][0]
        MB = sum(len(f["mf"]) for f in fr[:tl - 6]) - 4
        if L1:
            k.poll_a(sFXp, G_FX1)
        g = k.gemm_begin(fr)
        k.poll_b(sFXp, G_FX1)
        k.stamp("C.poll")
        CS1 = [vPQ, vPQ + 4, vACC + 56, vQ0]

        def c2_init():
            k.get(vT0, cCSB)
            for b in range(3):
                k.lds(f"ds_read_b128 {vr(C2+8*b+4,4)}, v{vT0} offset:{(10+b)*64}", "cs2")
            for _ in range(4):
                k.play([lambda: None])
            k.ds_wait("cs2")
            for b in range(3):
                for rb in range(2):
                    for j in range(4):
                        k(f"v_mul_f32 v{C2+8*b+4*rb+j}, v{C2+8*b+4+j}, v{NM_A+rb}")

        def relu_block(acc, cs, rb, dst):
            if cs is not None:
                for j in range(4):
                    k(f"v_fmac_f32 v{acc+j}, v{cs+j}, v{NM_A+rb}")
            for p in range(2):
                k(f"v_cvt_pk_bf16_f32 v{dst+p}, v{acc+2*p}, v{acc+2*p+1}")
            for p in range(2):
                k(f"v_pk_max_i16 v{dst+p}, v{dst+p}, 0")

        def cs1_reads():
            k.get(vT2, cCSB)
            for b in range(4):
                k.lds(f"ds_read_b128 {vr(CS1[b],4)}, v{vT2} offset:{(6+b)*64}", "cs")

        def epi1():
            k.ds_wait("cs")
            for s in range(2):
                for rb in range(2):
                    for b in range(2):
                        relu_block(vACC + 16*s + 8*b + 4*rb, CS1[2*s+b], rb, vACC + 16*s + 4*rb + 2*b)
                k.stores([f"buffer_store_dwordx4 {vr(vACC+16*s+4*rb,4)}, v{vL16}, {srd(S_WS)}, s{sH1+rb} offen offset:{s*1024}"
                          for rb in range(2)], psc(2))

        def d_setup():
            if L1:
                with k.atomic():
                    k(f"s_lshl_b32 s{sT1}, s{sW}, 13")
                    k(f"s_add_u32 s{sT1}, s{sT1}, s{sGB}")
                with k.atomic():
                    k(f"s_lshl_b32 s{sDK}, s{sW}, 11")
                    k(f"s_add_u32 s{sDK}, s{sDK}, {28*1024}")
                k(f"s_add_u32 s{sT1}, s{sT1}, {G_H + 24*1024}")
                for j in range(4):
                    with k.atomic():
                        k(f"s_add_u32 s{sT0}, s{sW}, {j}")
                        k(f"s_and_b32 s{sT0}, s{sT0}, 3")
                    with k.atomic():
                        k(f"s_lshl2_add_u32 s{sT0}, s{sDH}, s{sT0}")
                        k(f"s_mul_i32 s{sT0}, s{sT0}, 57344")
                    k(f"s_add_u32 s{sRB+j}, s{sT0}, s{sT1}")
            k.poll_prep(7)
        TD = 3 if L1 else o.get("td", 4)
        seq = [(ksl, j) for ksl in range(14 - TD) for j in range(4)] + [(ksl, j) for j in (1, 2, 3, 0) for ksl in range(14 - TD, 14)]
        hb = [0, 0, 0, 0]

        def hload(t):
            ksl, j = seq[t]
            with k.atomic():
                if ksl // 4 != hb[j]:
                    if ksl == 8:
                        k(f"s_sub_u32 s{sRB+j}, s{sRB+j}, s{sDK}")
                    else:
                        k(f"s_add_u32 s{sRB+j}, s{sRB+j}, 4096")
                    hb[j] += 1
                k.vmem(f"buffer_load_dwordx4 {vr(vACT+4*(t%16),4)}, v{vL16}, {srd(S_WS)}, s{sRB+j} offen offset:{(ksl%4)*1024} sc1", ("h", t))
        PC = o.get("prec", PRE)
        al = k.rec(lambda: act_loads(G_X1))
        k.play(al[:PC])
        fill = {}
        sl = k.rec(lambda: stat_loads(G_ST1, vPQ))
        SP = o.get("stp", 0)
        e = spread(fill, al[PC:PC+SP] + [lambda: k.play(sl[:2]), sl[2]] + al[PC+SP:], 0, o.get("cstep", 40) / 10)
        e2 = spread(fill, k.rec(lambda: (stat_sum(vPQ), stats_finalize(False))), 44, 0.9 if INIT2 else 1.3)
        if INIT2:
            spread(fill, k.rec(c2_init), e2 + 1, 0.95)
        if L1:
            spread(fill, k.rec(lambda: k("s_barrier")), 104, 0)
            if o.get("w2e", 8) and not WP:
                spread(fill, k.rec(lambda: pack_flag(0x8000)), 102, 0)
        e = spread(fill, w1c2[nc:], e, 3)
        if L1:
            e = spread(fill, k.rec(lambda: touches(o.get("Tc", 0), vT0)), e, 1)
        spread(fill, k.rec(cs1_reads), M1 - 9, 1)
        if o.get("diagc") and not L1:
            for ix in (0, 31, 63, 95, 127, 151, 175, 199):
                spread(fill, k.rec(lambda: k.stamp(f"C.m{ix}", True)), ix, 0)
        if o.get("diagd"):
            spread(fill, k.rec(lambda: k.stamp("C.mm1")), 127, 0)
        e1 = spread(fill, k.rec(epi1), M1 + 1, 1 / o.get("epr", 4))
        spread(fill, k.rec(lambda: (k.vm_wait("w1c2"), k("s_barrier"))), MB, 0)
        assert e < MB
        e3 = spread(fill, k.rec(d_setup), e1, 1)
        if not L1 and not INIT2:
            spread(fill, k.rec(lambda: [k.lds(f"ds_read_b128 {vr(CS1[b],4)}, v{vT2} offset:{(10+b)*64}") for b in range(3)]), e3 + 2, 2)
        pf = min(e1 + (o.get("fl11", 50) if L1 else o.get("fl1", 20)), NM - 2)
        spread(fill, k.rec(lambda: k.flag(sFHo, G_FH)), pf, 1)
        NE = o.get("ne1", 0) if L1 else o.get("ne", 6)
        pp = NM - 1 if NE == 0 else NM - 3 * NE - o.get("ppd", 18)
        assert pp > pf
        spread(fill, k.rec(lambda: k.vmem(f"buffer_load_dword v{vT0}, v{vT3}, {srd(S_WS)}, s{sFHp} offen offset:{G_FH} sc1", "p1")), pp, 1)
        if NE:
            spread(fill, k.rec(lambda: async_check("p1", sFHp, G_FH)), NM - 3 * NE - 1, 1)
            spread(fill, k.rec(lambda: [hload(t) for t in range(NE)]), NM - 3 * NE, 3)
        if L1:
            wc = takew2("nw2", 24)
            spread(fill, wc, e, (pp - 1 - e) / max(len(wc), 1))
        k.gemm_run(g, fill)
        k.stamp("C.mm2")
        HO = vWB + 16
        LA = o.get("dla1", 10) if L1 else o.get("dla", 10)
        if L1:
            k.get(vT1, cCSA)
            k(f"s_lshl_b32 s{sT5}, s{sPDA}, 6")
            k(f"v_add_u32 v{vT1}, s{sT5}, v{vT1}")
            k.lds(f"ds_write_b32 v{vT1}, a{aCS} offset:{10*64}")
            k.barrier()
            k.get(vT2, cCSB)
            for b in range(3):
                k.lds(f"ds_read_b128 {vr(vWB+4*b,4)}, v{vT2} offset:{(10+b)*64}")
            k.ds_all()
        else:
            k("s_nop 3")
            k.ds_all()
        epi2 = k.rec(lambda: [relu_block(C2 + 8*b + 4*rb, vWB + 4*b if L1 else None if INIT2 else CS1[b], rb, HO + 8*rb + 2*b) for b in range(3) for rb in range(2)])
        h2sc = psc(2) and not o.get("h2plain", 1)
        its = []
        for rb in range(2):
            its.append(f"buffer_store_dwordx4 {vr(HO+8*rb,4)}, v{vL16}, {srd(S_WS)}, s{sH2+rb} offen")
            its.append(f"buffer_store_dwordx2 {vr(HO+8*rb+4,2)}, v{vL16}, {srd(S_WS)}, s{sH3+rb} offen")
        tail = []
        up = []
        if L1:
            def park_w1():
                with k.atomic():
                    k(f"s_lshl_b32 s{sT5}, s{sW}, 14")
                    k(f"s_add_u32 s{sT5}, s{sT5}, {R1}")
                    k(f"v_add_u32 v{vCH}, s{sT5}, v{vL16}")
                for j in range(0, 16, 2):
                    with k.atomic():
                        for jj in (j, j + 1):
                            k.lds(f"ds_read_b128 {vr(vPARK+4*jj,4)}, v{vCH} offset:{jj*1024}", "pw")
            u_ = k.rec(lambda: unpark(vP))
            bar = k.rec(lambda: (k.ds_wait("pw"), k("s_barrier")))
            up = k.rec(park_w1) + u_[:17] + [lambda: k.play(bar)] + u_[17:]
        if NE:
            n2 = o.get("ne2", 2)
            k.play(mix(epi2, k.rec(lambda: [hload(t) for t in range(NE, NE + n2)]), 10))
            k.stores(its, h2sc)
            nxt = NE + n2
            FL2 = o.get("fl2", 5)
        else:
            k.play(epi2)
            k.stores(its, h2sc)
            async_check("p1", sFHp, G_FH)
            for t in range(LA):
                hload(t)
                if len(w2) > 24 and t % 2:
                    k.play(w2[:1]); w2 = w2[1:]
                k.play(up[:1]); up = up[1:]
            k.flag(sFHo, G_FH + 1024)
            nxt = LA
            FL2 = -1
        k.stamp("D.poll1")
        RSD = vPQ
        k.get(vPQ + 1, cRSD)
        k.lds(f"ds_read_b32 v{RSD}, v{vPQ+1}", "rsd")
        def red_addr():
            for j in range(4):
                if L1:
                    k.get(vPQ + 4 + j, cRD0 + j)
                else:
                    with k.atomic():
                        k(f"s_add_u32 s{sT0}, s{sW}, {j}")
                        k(f"s_and_b32 s{sT0}, s{sT0}, 3")
                    with k.atomic():
                        k(f"s_lshl_b32 s{sT0}, s{sT0}, 14")
                        k(f"s_add_u32 s{sT0}, s{sT0}, {max(j-1, 0)*4096}")
                    k(f"v_add_u32 v{vPQ+4+j}, s{sT0}, v{vL16}")
        ur = k.rec(lambda: (unpack_res(vWB), red_addr()))
        wr = []
        for t in range(56):
            ksl, j = seq[t]
            if L1:
                k.vm_wait(("w2t", ksl))
            k.vm_wait(("h", t))
            if o.get("diagd") and t in (0, 8, 16, 24, 32, 40, 48):
                k.stamp(f"D.t{t}")
            if o.get("diagc") and not L1 and t in (0, 4, 8, 16, 24, 32, 40, 48):
                k.stamp(f"D.t{t}", True)
            for f in range(4):
                a = vACC + 16*j + 4*f
                c = "0" if ksl == 0 else vr(a, 4)
                k(f"v_mfma_f32_16x16x32_bf16 {vr(a,4)}, {ar((ksl*4+f)*4,4)}, {vr(vACT+4*(t%16),4)}, {c}")
                if f in (0, 2) and nxt < 56 and nxt <= t + LA and (f == 0 or nxt < t + LA):
                    if nxt == 32 - o.get("p2d", 11):
                        k.vmem(f"buffer_load_dword v{vT0}, v{vT3}, {srd(S_WS)}, s{sFHp} offen offset:{G_FH+1024} sc1", "p2")
                    if nxt == 32:
                        async_check("p2", sFHp, G_FH + 1024)
                    hload(nxt)
                    nxt += 1
                    if nxt == 56 and not L1 and o.get("wb", 0):
                        lw = k.label("L_wb")
                        k(f"s_lshl3_add_u32 s{sT0}, s{sW}, s2")
                        k(f"s_cmp_ge_u32 s{sT0}, 8")
                        k(f"s_cbranch_scc1 {lw}")
                        k("buffer_wbl2 sc1")
                        k(f"s_branch {lw}_e")
                        k(f"{lw}:")
                        k(f"buffer_load_dword a{aDUM}, v{vT3}, {srd(S_WS)}, s{sFHp} offen offset:{G_FH} sc1")
                        k(f"{lw}_e:")
                        k.vm_note(1, "wb")
                if f in ((1, 3) if t < o.get("up2", 3) else (1,)) and up:
                    k.play(up[:1]); up = up[1:]
                if f == 2:
                    nup = 24 - len(up) + (1 if len(up) > 8 else 0)
                    if w2 and (len(w2) > 24 or not up or nup >= 4 * ((24 - len(w2)) // 4 + 1) + 1):
                        if len(w2) <= 24:
                            k.ds_wait(("up", (24 - len(w2)) // 4))
                        k.play(w2[:1]); w2 = w2[1:]
                    elif t >= o.get("tl0", 46) and tail:
                        nn = o.get("tln", 2)
                        k.play(tail[:nn]); tail = tail[nn:]
                if f == 3 and t == FL2:
                    k.flag(sFHo, G_FH + 1024)
                if 4 * t + f == 203 and L1:
                    k.ds_wait(("rw", 1))
                    k("s_barrier")
                    for f_ in range(4):
                        k.lds(f"ds_read_b128 {vr(vACC+16+4*f_,4)}, v{vPQ+4} offset:{f_*1024}", "rd0")
                if 4 * t + f == 215 and L1:
                    k.ds_wait("rd0")
                    k("s_barrier")
                if f == 3 and t == 2 and L1 and not WP:
                    pack_check_issue(0x8000, vTR0, vTR1, sPDA)
                if f == 3 and t == 14 and L1 and not WP:
                    pack_check(vTR0, vTR1, sPDA)
                if f == 3 and t == o.get("tx", 99) and L1:
                    touch("x", vDM)
                if f == 1 and t >= 8 and ur:
                    k.play(ur[:1]); ur = ur[1:]
                if wr and wr[0][0] <= 4 * t + f:
                    k.lds(*wr.pop(0)[1:])
            if ksl == 13 and j:
                for f in range(4):
                    wr.append((4 * t + 9 + 2 * f, f"ds_write_b128 v{vPQ+4+j}, {vr(vACC+16*j+4*f,4)} offset:{f*1024}", ("rw", j)))
        assert not w2 and not ur and not wr and not up
        k.stamp("D.mm")
        if not L1:
            k.get(vT2, cOUT)
        if L1:
            k("s_nop 3")
            for f in range(4):
                for p in range(2):
                    k(f"v_pk_add_f32 {vr(vACC+4*f+2*p,2)}, {vr(vACC+4*f+2*p,2)}, {vr(vACC+16+4*f+2*p,2)}")
        k.barrier()
        NJ = 2 if L1 else 3
        RB_ = vACC + 64 - 16 * NJ
        for f in range(4):
            for j in range(NJ):
                k.lds(f"ds_read_b128 {vr(RB_+16*j+4*f,4)}, v{vPQ+4} offset:{j*4096+f*1024}", ("rd", f))
        for f in range(4):
            k.ds_wait(("rd", f))
            for j in range(NJ):
                for p in range(2):
                    k(f"v_pk_add_f32 {vr(vACC+4*f+2*p,2)}, {vr(vACC+4*f+2*p,2)}, {vr(RB_+16*j+4*f+2*p,2)}")
            for p in range(2):
                k(f"v_pk_fma_f32 {vr(vACC+4*f+2*p,2)}, {vr(vACC+4*f+2*p,2)}, {vr(RSD,2)}, {vr(vWB+4*f+2*p,2)} op_sel_hi:[1,0,1]")
            for p in range(2):
                k(f"v_cvt_pk_bf16_f32 v{vRES+2*f+p}, v{vACC+4*f+2*p}, v{vACC+4*f+2*p+1}")
        k.stamp("D.red")
        if L1:
            publish_x(G_X2, G_ST2, G_FX2, psc(3))
            k(f"s_sub_u32 s{sT0}, s{sDK}, 8192")
            for j in range(4):
                k(f"s_add_u32 s{sRB+j}, s{sRB+j}, s{sT0}")
            k(f"s_add_u32 s{sKVC}, s{sKVC}, 0x100000")
            k(f"s_add_u32 s{sKVP}, s{sKVP}, 0x100000")
            k.flag(sFXo, G_FX2)
            k.poll_a(sFXp, G_FX2)
            k.stamp("D.pub")
            k("s_barrier")
            fr = []
            k(f"v_add_u32 v{vTR0}, {R1}, v{vL16}")
            late = []
            for ks in range(16):
                fq = [dict(addr=vTR0, offs=(ks * 2048 + b * 1024,), mf=mf2(QA + 8 * b, ks, True, True, act=ring)) for b in range(2)]
                fk = [dict(addr=vL16, offs=(R0 + ks * 4096 + b * 1024,), mf=mf2(vACC + 8 * b, ks, False, True, act=ring)) for b in range(4)]
                if ks < 16 - o.get("qlag", 6):
                    fr += fk + fq
                else:
                    fr += fk
                    late += fq
            gA = k.gemm_begin(fr)
        else:
            k("s_nop 1")
            for s in range(2):
                for p in range(2):
                    k(f"v_permlane16_swap_b32 v{vRES+4*s+p}, v{vRES+4*s+2+p}")
                k.vmem(f"buffer_store_dwordx4 {vr(vRES+4*s,4)}, v{vT2}, {srd(S_OUT)}, 0 offen offset:{64*s}{['', ' sc1', ' sc1 nt', ' nt'][o.get('outsc1', 1)]}")
            le = k.label("L_ep")
            k(f"s_or_b32 s{sT2}, s2, s{sW}")
            k(f"s_cbranch_scc1 {le}")
            k(f"s_add_u32 s{sEP}, s{sEP}, 1")
            k(f"v_mov_b32 v{vT1}, s{sEP}")
            k("s_mov_b64 exec, 1")
            k(f"buffer_store_dword v{vT1}, v{vL16}, {srd(S_WS)}, 0 offen offset:{WS_EPOCH}")
            k("s_mov_b64 exec, -1")
            k(f"{le}:")
            if stamps:
                k.vm_all()
                k.stamp("end")
                k(f"s_memrealtime s[{sST}:{sST+1}]")
                k("s_waitcnt lgkmcnt(0)")
                k(f"v_writelane_b32 v{vSTAMP}, s{sST}, 61")
                k(f"v_writelane_b32 v{vSTAMP}, s{sBUD}, 60")
                k(f"v_writelane_b32 v{vSTAMP}, s{sSLOW}, 59")
                k(f"s_lshl2_add_u32 s{sT2}, s2, s{sW}")
                k(f"s_lshl_b32 s{sT2}, s{sT2}, 8")
                k(f"s_add_u32 s{sT2}, s{sT2}, {WS_STAMP}")
                k(f"v_lshrrev_b32 v{vT0}, 2, v{vL16}")
                k(f"buffer_store_dword v{vSTAMP}, v{vT0}, {srd(S_WS)}, s{sT2} offen")
    k("L_end:")
    lines = merge_waits(k.lines)
    if o.get("pads", 2048):
        lines = add_pads(lines, k.tailcode, o.get("pads", 2048), [x for x in (o.get("ps1", 0), o.get("ps2", 0)) if x])
    body = "\n".join(lines)
    tailc = "\n".join(k.tailcode)
    hdr = open("interleave_layers__linear_attn_block__dense_activation_relu__prompt.s.ref").read().split("; Override")[0]
    txt = f"""{hdr}; Generated by a hand-written generator (persistent kernel, one workgroup per CU).
; @launch grid=(256,1,1) block=(256,1,1) lds={LDS_BYTES}
.amdgcn_target "amdgcn-amd-amdhsa--gfx950"
.text
.globl {NAME}
.p2align 8
.type {NAME},@function
.set CODE_BYTES, L_code_end - L_pcref - 512
{NAME}:
{body}
    s_endpgm
L_code_end:
{tailc}
.section .rodata,"a"
.p2align 6
.amdhsa_kernel {NAME}
  .amdhsa_next_free_vgpr 512
  .amdhsa_next_free_sgpr 102
  .amdhsa_accum_offset 256
  .amdhsa_group_segment_fixed_size 0
  .amdhsa_kernarg_size 72
  .amdhsa_user_sgpr_count 2
  .amdhsa_user_sgpr_kernarg_segment_ptr 1
  .amdhsa_system_sgpr_workgroup_id_x 1
.end_amdhsa_kernel
"""
    return txt, k.stamp_names


if __name__ == "__main__":
    out = sys.argv[1]
    stamps = "stamps" in sys.argv[2:]
    opts = {}
    for a in sys.argv[2:]:
        if "=" in a:
            x, y = a.split("=")
            opts[x] = int(y)
    txt, names = gen(stamps, opts)
    open(out, "w").write(txt)
    if stamps:
        open(out + ".names", "w").write("\n".join(names))
```

```python
import sys
from contextlib import contextmanager

NAME = "interleave_layers__linear_attn_block__dense_activation_relu__prompt_kernel"

WS_EPOCH = 0
WS_XID = 0x8000
WS_PD = 0x10000
GRP0 = 0x100000
G_FO, G_FX1, G_FX2, G_FH = 0, 512, 1024, 1536
G_ST1 = 0x1000
G_ST2 = G_ST1
G_ST0 = 0x4000
G_X1 = 0x8000
G_X2 = G_X1
G_H = G_X1 + 0x20000
G_O = G_H
WS_KVX = 0x1200000
KVX_C = 0x9000
WS_W2T = 0x1400000
WS_PK = 0x1600000
PK_KV, PK_Q, PK_W1A, PK_W1B, PK_WO, PK_SZ = 0, 65536, 98304, 163840, 212992, 278528
WS_STAMP = 0x1B00000
WS_USED = 0x1C00000
OOB = 0x7f000000

R0, R1, R2, R3 = 0, 65536, 98304, 131072
L_SM = 161792
L_CS = L_SM
L_ZB = L_SM + 896
L_STAT = L_SM + 1024
L_XB = L_SM - 4096
W1B_N1 = 8
L_XST = 98304
L_RED = R2
L_PST = R2
LDS_BYTES = 163840

S_X, S_WQKV, S_WO, S_W1, S_W2, S_OUT, S_WS = 4, 8, 12, 16, 20, 24, 28
(sW, sC, sG, sTAG, sSLOW, sGB, sBUD, sEP, sEPS, _e1, sT0, sT1, sT2, sT3, sT4, sT5,
 sACT, sACT1, sBACT, sTILE, sOST, sOST1, sFOo, sFOp, sFXo, sFXp, sSTo, sSTg,
 sH1, sH1b, sH2, sH2b, sH3, sH3b, sFHo, sFHp, sRB, _r1, _r2, _r3, sKVC, sKVP,
 sDH, sCT, sXCC, sT8, sD0, sD1, sD2, sD3, sL0, sL1, sPKB, sPDA, sPDB, sJ0) = range(32, 88)
assert sEPS % 2 == 0
sRHO = sT8
S_A, S_B = 88, 92
sKEX = 88
sDK = 92
sS8 = 93
sKM = 96
sST = 98
sPC = 100

vLANE, vL16, vTR0, vTR1, vQ0, vQ1, vQ2, vQ3, vP, vCH, vDM, vSTAMP = range(12)
vT0, vT1, vT2, vT3 = 12, 13, 14, 15
vSP, vSP2 = vP, vCH
vRES = 16
vPQ = 24
vWB = 32
vACC = 64
vACT = 128
BF1 = "0x3f803f80"
(cCSA, cCSB, cP16, aDUM, cSTO, cSTW, cSTA, cSTB, cKW, cKR, cKW1, cKR1, cKVS, cXW, cXR, cZR,
 cRD0, cRD1, cRD2, cRD3, cRSD, cOUT, cZL, cZW) = range(224, 248)
aONES, aCS = 248, 252


def srd(s):
    return f"s[{s}:{s+3}]"


def vr(a, n=1):
    return f"v{a}" if n == 1 else f"v[{a}:{a+n-1}]"


def ar(a, n=1):
    return f"a{a}" if n == 1 else f"a[{a}:{a+n-1}]"


def bcast(r, pos, n):
    lo = [0] * n
    hi = [1] * n
    if r % 2 == 0:
        hi[pos] = 0
    else:
        lo[pos] = 1
    f = lambda x: "[" + ",".join(map(str, x)) + "]"
    return vr(r & ~1, 2), f" op_sel:{f(lo)} op_sel_hi:{f(hi)}"


class K:
    def __init__(self, stamps=False, opts=None):
        self.lines = []
        self.nlab = 0
        self.vm = []
        self.ds = []
        self.stamps = stamps
        self.stamp_names = []
        self.o = opts or {}
        self._rec = None
        self.seen = set()
        self.tailcode = []
        self.lights = []
        self.fast = ""

    def _do(self, fn, cost=None):
        if cost is not None:
            fn.cost = cost
        if self._rec is not None:
            self._rec.append(fn)
        else:
            fn()

    def rec(self, f):
        assert self._rec is None
        self._rec = []
        f()
        r, self._rec = self._rec, None
        return r

    @contextmanager
    def atomic(self):
        if self._rec is None:
            yield
            return
        outer, self._rec = self._rec, []
        yield
        inner, self._rec = self._rec, outer
        g = lambda: [x() for x in inner]
        g.cost = sum(getattr(x, "cost", 4) for x in inner)
        outer.append(g)

    def play(self, items):
        for x in items:
            self._do(x)

    def _emit(self, l):
        self.lines.append(("" if l.endswith(":") else "    ") + l)

    def __call__(self, s):
        for l in s.split("\n"):
            l = l.strip()
            if l:
                self._do(lambda l=l: self._emit(l), 8 if l.startswith(("v_exp", "v_rsq", "v_rcp", "buffer_")) else 0 if l.endswith(":") else 4)

    def label(self, base="L"):
        self.nlab += 1
        return f"{base}_{self.nlab}"

    def vmem(self, s, tag=None):
        def f():
            self._emit(s)
            self.vm.append(tag)
            self.seen.add(tag)
        self._do(f, 8)

    def vm_note(self, n, tag=None):
        self._do(lambda: (self.vm.extend([tag] * n), self.seen.add(tag)))

    def _wait(self, lst, tag, name, mx):
        if tag not in lst:
            return lst
        idx = len(lst) - 1 - lst[::-1].index(tag)
        n = min(len(lst) - idx - 1, mx)
        self._emit(f"s_waitcnt {name}({n})")
        return lst[len(lst) - n:] if n else []

    def vm_wait(self, tag):
        def f():
            assert tag in self.seen, tag
            self.vm = self._wait(self.vm, tag, "vmcnt", 63)
        self._do(f)

    def save_vm(self):
        def f():
            self._sv = list(self.vm)
        self._do(f)

    def restore_vm(self):
        def f():
            self.vm = self._sv
        self._do(f)

    def vm_all(self):
        def f():
            self._emit("s_waitcnt vmcnt(0)")
            self.vm = []
        self._do(f)

    def lds(self, s, tag=None):
        def f():
            self._emit(s)
            self.ds.append(tag)
        self._do(f)

    def ds_wait(self, tag):
        def f():
            self.ds = self._wait(self.ds, tag, "lgkmcnt", 15)
        self._do(f)

    def ds_all(self, force=False):
        def f():
            if self.ds or force:
                self._emit("s_waitcnt lgkmcnt(0)")
            self.ds = []
        self._do(f)

    def barrier(self, force=False):
        self.ds_all(force)
        self("s_barrier")

    def stamp(self, name, light=False):
        if not self.stamps:
            return
        if light:
            i = len(self.stamp_names)
            self.stamp_names.append(name)
            r = 4 + 2 * len(self.lights)
            self.lights.append((r, i))
            self(f"s_memtime s[{r}:{r+1}]")
            return
        self.nst = getattr(self, "nst", 0) + 1
        if self.o.get("lite") and name not in ("end", "D.pub"):
            return
        i = len(self.stamp_names)
        assert i < 59
        self.stamp_names.append(name)
        self(f"{'s_memrealtime' if self.o.get('rt') else 's_memtime'} s[{sST}:{sST+1}]")
        self.ds_all(True)
        self(f"v_writelane_b32 v{vSTAMP}, s{sST}, {i}")
        for r, j in self.lights:
            self(f"v_writelane_b32 v{vSTAMP}, s{r}, {j}")
        self.lights = []

    def dma(self, sr, voff, soff, simm, lreg, limm, tag=None, flag=""):
        with self.atomic():
            self(f"s_add_u32 m0, s{lreg}, {limm}")
            self(f"s_add_u32 s{sT5}, s{soff}, {simm}")
            self.vmem(f"buffer_load_dwordx4 v{voff}, {srd(sr)}, s{sT5} offen{flag} lds", tag)

    def get(self, v, c):
        self(f"v_accvgpr_read_b32 v{v}, a{c}")

    def poll_prep(self, mask):
        self.get(vT3, cP16)
        if mask == 7:
            self(f"v_and_b32 v{vT3}, 28, v{vT3}")

    def poll(self, soff, imm, clear=True):
        if clear:
            self.seen = {t for t in self.seen if not (isinstance(t, tuple) and t[0] in ("act", "h"))}
        lp, done = self.label("L_poll"), self.label("L_pd")
        with self.atomic():
            self(f"{lp}:")
            self(f"buffer_load_dword v{vT0}, v{vT3}, {srd(S_WS)}, s{soff} offen offset:{imm} sc1")
            self.vm_all()
            self(f"v_cmp_ne_u32 vcc, s{sTAG}, v{vT0}")
            self(f"s_cbranch_vccz {done}")
            self(f"s_sub_u32 s{sBUD}, s{sBUD}, 1")
            self(f"s_cbranch_scc0 {lp}")
            self(f"s_mov_b32 s{sBUD}, 0")
            self(f"{done}:")

    def poll_a(self, soff, imm):
        if self.o.get("pp", 1):
            self.vmem(f"buffer_load_dword v{vT0}, v{vT3}, {srd(S_WS)}, s{soff} offen offset:{imm} sc1", "pa")

    def poll_b(self, soff, imm):
        if not self.o.get("pp", 1):
            return self.poll(soff, imm)
        self.seen = {t for t in self.seen if not (isinstance(t, tuple) and t[0] in ("act", "h"))}
        lp, done = self.label("L_poll"), self.label("L_pd")
        ld = lambda v: f"buffer_load_dword v{v}, v{vT3}, {srd(S_WS)}, s{soff} offen offset:{imm} sc1"
        self(f"{lp}:")
        self(ld(vT2))
        self("s_waitcnt vmcnt(1)")
        self(f"v_cmp_ne_u32 vcc, s{sTAG}, v{vT0}")
        self(f"s_cbranch_vccz {done}")
        self(ld(vT0))
        self("s_waitcnt vmcnt(1)")
        self(f"v_cmp_ne_u32 vcc, s{sTAG}, v{vT2}")
        self(f"s_cbranch_vccz {done}")
        self(f"s_sub_u32 s{sBUD}, s{sBUD}, 1")
        self(f"s_cbranch_scc0 {lp}")
        self(f"s_mov_b32 s{sBUD}, 0")
        self(f"{done}:")
        self.vm = ["pb"]

    def stores(self, items, force_sc1, tag="st"):
        with self.atomic():
            if force_sc1:
                for it in items:
                    self.vmem(it + " sc1", tag)
                return
            ls, le = self.label("L_ss"), self.label("L_se")
            self(f"s_cmp_lg_u32 s{sSLOW}, 0")
            self(f"s_cbranch_scc1 {ls}")
            for it in items:
                self.vmem(it + (self.fast if tag == "st" else ""), tag)
            self(f"{le}:")
            self.tailcode += [f"{ls}:"] + ["    " + it + " sc1" for it in items] + [f"    s_branch {le}"]

    def flag(self, soff, imm):
        with self.atomic():
            self(f"v_mov_b32 v{vT1}, s{sTAG}")
            self.vm_wait("st")
            self("s_mov_b64 exec, 1")
            self.stores([f"buffer_store_dword v{vT1}, v{vL16}, {srd(S_WS)}, s{soff} offen offset:{imm}"], False, "flag")
            self("s_mov_b64 exec, -1")

    def gemm_begin(self, frags, D=6):
        self.gid = getattr(self, "gid", 0) + 1
        g = dict(frags=frags, D=D, gid=self.gid, rp=0, reads=[])
        for t, f in enumerate(frags):
            s = vWB + 4 * (t % 8)
            if len(f["offs"]) == 2:
                for hh in range(2):
                    g["reads"].append((t, f"ds_read_b64_tr_b16 {vr(s + 2*hh, 2)}, v{f['addr']} offset:{f['offs'][hh]}"))
            else:
                g["reads"].append((t, f"ds_read_b128 {vr(s, 4)}, v{f['addr']} offset:{f['offs'][0]}"))
        self._issue(g, D - 1, 99)
        return g

    def _issue(self, g, tmax, maxn):
        c = 0
        reads = g["reads"]
        while g["rp"] < len(reads) and reads[g["rp"]][0] <= tmax and c < maxn:
            self.lds(reads[g["rp"]][1], ("w", g["gid"], reads[g["rp"]][0]))
            g["rp"] += 1
            c += 1

    def gemm_run(self, g, fill=None):
        fill = fill or {}
        frags, D, gid = g["frags"], g["D"], g["gid"]
        n = len(frags)
        mi = 0
        pend = []
        LATE = self.o.get("late", 3)
        for t, f in enumerate(frags):
            s = vWB + 4 * (t % 8)
            if t % 2 == 0:
                self.ds_wait(("w", gid, min(t + 1, n - 1)))
            nm = len(f["mf"])
            for j, (acc, act_, sw, first, wt) in enumerate(f["mf"]):
                if wt is not None:
                    self.vm_wait(wt)
                c = "0" if first else vr(acc, 4) if acc is not None else ar(aCS, 4)
                if acc is None:
                    self(f"v_mfma_f32_16x16x32_bf16 {ar(aCS,4)}, {ar(aONES,4)}, {vr(s,4)}, {c}")
                elif sw:
                    self(f"v_mfma_f32_16x16x32_bf16 {vr(acc,4)}, {vr(s,4)}, {vr(act_,4)}, {c}")
                else:
                    self(f"v_mfma_f32_16x16x32_bf16 {vr(acc,4)}, {vr(act_,4)}, {vr(s,4)}, {c}")
                rp0 = g["rp"]
                self._issue(g, t + D, 99 if j == nm - 1 else 1)
                room = 8 - 4 * (g["rp"] - rp0) - (4 if (j == nm - 1 and t % 2 == 1) else 0)
                pend += [(mi, x) for x in fill.pop(mi, [])]
                while pend:
                    cst = getattr(pend[0][1], "cost", 4)
                    if cst <= room or (room == 8 and cst > 8) or mi - pend[0][0] >= LATE:
                        self.play([pend.pop(0)[1]])
                        room -= cst
                    else:
                        break
                mi += 1
        self.play([x for _, x in pend])
        for key in sorted(fill):
            self.play(fill[key])

    def gemm(self, frags, fill=None, D=6):
        self.gemm_run(self.gemm_begin(frags, D), fill)


def merge_waits(lines):
    import re
    out = []
    for l in lines:
        m = re.match(r"\s*s_waitcnt (\w+)\((\d+)\)$", l)
        if m and out:
            p = re.match(r"\s*s_waitcnt (\w+)\((\d+)\)$", out[-1])
            if p and p.group(1) != m.group(1):
                out[-1] = out[-1] + f" {m.group(1)}({m.group(2)})"
                continue
        out.append(l)
    return out


def spread(fill, items, start, step, per=1):
    p = start
    if step == 0:
        g = lambda: [x() for x in items]
        g.cost = sum(getattr(x, "cost", 4) for x in items)
        fill.setdefault(int(p), []).append(g)
        return p
    for i in range(0, len(items), per):
        fill.setdefault(int(p), []).extend(items[i:i + per])
        p += step
    return p


def insn_sizes(lines, tailcode):
    import subprocess, tempfile, re, os
    src = [".amdgcn_target \"amdgcn-amd-amdhsa--gfx950\"", ".text", ".set CODE_BYTES, 0x12345"]
    for i, l in enumerate(lines):
        src.append(f"Lz{i}:")
        src.append(l)
    src.append(f"Lz{len(lines)}:")
    src += tailcode
    with tempfile.TemporaryDirectory() as d:
        open(d + "/a.s", "w").write("\n".join(src) + "\n")
        subprocess.run(["clang", "-x", "assembler", "-target", "amdgcn-amd-amdhsa", "-mcpu=gfx950", "-c", d + "/a.s", "-o", d + "/a.o"], check=True)
        out = subprocess.run(["llvm-objdump", "-t", d + "/a.o"], capture_output=True, text=True, check=True).stdout
    addr = {}
    for l in out.splitlines():
        m = re.match(r"([0-9a-f]+) .*\sLz(\d+)$", l)
        if m:
            addr[int(m.group(2))] = int(m.group(1), 16)
    return [addr[i + 1] - addr[i] for i in range(len(lines))]


def add_pads(lines, tailcode, step, splits):
    def call(first, ret):
        c = ["    s_mov_b64 exec, 0"]
        for w in range(3):
            c += [f"    s_cmp_eq_u32 s{sW}, {w}", f"    s_cbranch_scc1 L_pad{first + w}"]
        return c + [f"    s_branch L_pad{first + 3}"]
    src = []
    for l in lines:
        t = l.strip()
        if t.startswith("PADCALL") and t != "PADCALL":
            g = int(t[7:])
            if g <= len(splits):
                src += ["    s_nop 0 ; CALL%d" % g] * 9
        else:
            src.append(l)
    ci = [i for i, l in enumerate(src) if l.strip() == "PADCALL"][0]
    src = src[:ci] + src[ci + 1:]
    sz = insn_sizes(src, tailcode)
    body, pos, nxt, n = [], 4, step, 0
    for i in range(ci, len(src)):
        if pos >= nxt and sz[i] > 0 and "; CALL" not in src[i]:
            body.append(("PAD", n))
            n += 1
            pos += 4
            nxt = (pos // step + 1) * step
        body.append(src[i])
        pos += sz[i]
    bounds = [0] + list(splits) + [n]
    assert all(bounds[i + 1] - bounds[i] >= 4 for i in range(len(bounds) - 1)), (bounds, n)
    out = src[:ci] + call(0, 0) + [".p2align 12", "L_padret0:", "    s_mov_b64 exec, -1"]
    done = set()
    for x in body:
        if isinstance(x, tuple):
            j = x[1]
            g = max(i for i in range(len(bounds) - 1) if bounds[i] <= j)
            out += [f"L_pad{j}:", f"    s_cbranch_execz {'L_pad%d' % (j + 4) if j + 4 < bounds[g + 1] else 'L_padret%d' % g}"]
        elif "; CALL" in x:
            g = int(x.split("CALL")[1])
            if g not in done:
                done.add(g)
                out += call(bounds[g], g) + [f"L_padret{g}:", "    s_mov_b64 exec, -1"]
        else:
            out.append(x)
    return out


def mix(a, b, ratio):
    out = []
    bi = 0
    for i, x in enumerate(a):
        out.append(x)
        if (i + 1) % ratio == 0 and bi < len(b):
            out.append(b[bi]); bi += 1
    out.extend(b[bi:])
    return out


def act(ks, rb):
    return vACT + 8 * ks + 4 * rb


def gen(stamps=False, opts=None):
    k = K(stamps, opts)
    o = k.o
    if stamps:
        k(f"{'s_memrealtime' if o.get('rt') else 's_memtime'} s[{sST}:{sST+1}]")
        k(f"s_memrealtime s[{sPC}:{sPC+1}]")
    k(f"""
    s_cmp_ge_u32 s2, 256
    s_cbranch_scc1 L_end
    s_load_dwordx2 s[{S_X}:{S_X+1}], s[0:1], 0
    s_load_dwordx2 s[{S_WQKV}:{S_WQKV+1}], s[0:1], 8
    s_load_dwordx2 s[{S_WS}:{S_WS+1}], s[0:1], 64
    s_load_dwordx2 s[{S_WO}:{S_WO+1}], s[0:1], 16
    s_load_dwordx2 s[{S_W1}:{S_W1+1}], s[0:1], 32
    s_load_dwordx2 s[{S_W2}:{S_W2+1}], s[0:1], 40
    s_load_dwordx2 s[{S_OUT}:{S_OUT+1}], s[0:1], 48
    """)
    if o.get("cw0", 1):
        k(f"""
        s_getpc_b64 s[{S_A}:{S_A+1}]
        L_pcref:
        s_lshr_b32 s{sT2}, s2, 3
        s_lshl_b32 s{sT2}, s{sT2}, 11
        v_lshlrev_b32 v{vT3}, 3, v0
        v_add_u32 v{vT3}, s{sT2}, v{vT3}
        v_min_u32 v{vT3}, CODE_BYTES, v{vT3}
        s_mov_b32 exec_lo, 0x10001
        s_mov_b32 exec_hi, 0x10001
        global_load_dword a{aDUM}, v{vT3}, s[{S_A}:{S_A+1}]
        s_mov_b64 exec, -1
        """)
    k(f"""
    v_lshrrev_b32 v{vT0}, 6, v0
    v_and_b32 v{vLANE}, 63, v0
    s_mov_b32 s{S_X+2}, {2048*1024}
    v_readfirstlane_b32 s{sW}, v{vT0}
    s_mov_b32 s{S_X+3}, 0x20000
    s_mov_b32 s{S_WQKV+2}, {512*3072}
    s_mov_b32 s{S_WQKV+3}, 0x20000
    s_lshr_b32 s{sT0}, s2, 3
    s_and_b32 s{sC}, s{sT0}, 15
    s_lshr_b32 s{sT0}, s{sT0}, 4
    s_and_b32 s{sG}, s2, 7
    s_lshl1_add_u32 s{sG}, s{sG}, s{sT0}
    s_lshr_b32 s{sT1}, s{sC}, 1
    s_xor_b32 s{sT1}, s{sT1}, s{sT0}
    s_and_b32 s{sT1}, s{sT1}, 1
    s_and_b32 s{sRHO}, s{sC}, 1
    s_lshl1_add_u32 s{sRHO}, s{sT1}, s{sRHO}
    v_lshlrev_b32 v{vL16}, 4, v{vLANE}
    """)
    if stamps:
        k(f"v_mov_b32 v{vSTAMP}, 0")
    NTP = " nt" if o.get("nt", 0) & 1 else ""
    NTX = " nt" if o.get("nt", 0) & 2 else ""
    XS, XR, X2R = vRES, vRES + 4, act(15, 1)
    aRES = 246
    k(f"""
    v_lshrrev_b32 v{vT0}, 4, v{vLANE}
    v_and_b32 v{vT1}, 15, v{vLANE}
    v_xor_b32 v{vT2}, v{vT0}, v{vT1}
    v_lshlrev_b32 v{vT2}, 4, v{vT2}
    v_lshl_add_u32 v{XS}, v{vT0}, 10, v{vT2}
    v_xor_b32 v{XS+1}, 64, v{XS}
    v_xor_b32 v{XS+2}, 0x80, v{XS}
    v_xor_b32 v{XS+3}, 0xc0, v{XS}
    v_lshrrev_b32 v{vP}, 2, v{vLANE}
    v_and_b32 v{vCH}, 3, v{vLANE}
    v_lshrrev_b32 v{vT3}, 3, v{vLANE}
    v_and_b32 v{vT3}, 2, v{vT3}
    v_xor_b32 v{vCH}, v{vCH}, v{vT3}
    v_lshlrev_b32 v{vCH}, 4, v{vCH}
    v_and_b32 v{vT3}, 3, v{vP}
    v_lshl_add_u32 v{vT3}, v{vT0}, 3, v{vT3}
    s_movk_i32 s{sT1}, 3072
    v_mad_u32_u24 v{vDM}, v{vT3}, s{sT1}, v{vCH}
    s_lshl_b32 s{sL0}, s{sW}, 14
    s_add_u32 s{sL0}, s{sL0}, {L_XST}
    s_lshl_b32 s{sT1}, s{sG}, 17
    s_lshl_b32 s{sT2}, s{sW}, 15
    s_add_u32 s{sT1}, s{sT1}, s{sT2}
    s_lshl_b32 s{sL1}, s{sW}, 12
    """)
    for r in range(4):
        k(f"""
        s_add_u32 s{sT2}, s{sRHO}, {r}
        s_and_b32 s{sT2}, s{sT2}, 3
        s_lshl_b32 s{sT3}, s{sT2}, 8
        s_add_u32 s{sD0+r}, s{sT1}, s{sT3}
        s_lshl2_add_u32 s{sT2}, s{sT2}, s{sW}
        s_mul_i32 s{sT2}, s{sT2}, {32*3072}
        s_lshl_b32 s{sT3}, s{sC}, 6
        s_add_u32 s{sRB+r}, s{sT2}, s{sT3}
        """)
    k("s_waitcnt lgkmcnt(0)")
    k(f"s_load_dword s{sEP}, s[{S_WS}:{S_WS+1}], {WS_EPOCH}")
    if stamps:
        k(f"v_writelane_b32 v{vSTAMP}, s{sST}, 62")
        k(f"v_writelane_b32 v{vSTAMP}, s{sPC}, 63")

    def xslot(q, js=range(8)):
        for j in js:
            k.dma(S_X, XS + (j & 3), sD0 + q, j * 4096, sL0, (q & 1) * 8192 + j * 1024, ("xs", q), " nt" if o.get("nt", 0) & 4 else "")

    def wkv_raw(r):
        for pr in range(2):
            for hh in range(2):
                k.dma(S_WQKV, vDM, sRB + r, hh * 4 * 3072 + 1024 * (pr + 1), sL1, R0 + r * 16384 + pr * 2048 + hh * 1024, ("wkv", r))

    def quad_lane(pitch, dst=vDM, tmp=vT2, sD3=sD3):
        vT2 = tmp
        k(f"v_lshrrev_b32 v{dst}, 3, v{vLANE}")
        k(f"v_and_b32 v{vT2}, 6, v{dst}")
        k(f"v_xor_b32 v{vT2}, v{vT2}, v{vLANE}")
        k(f"v_and_b32 v{vT2}, 7, v{vT2}")
        k(f"v_lshlrev_b32 v{vT2}, 4, v{vT2}")
        if isinstance(pitch, int):
            k(f"s_movk_i32 s{sD3}, {pitch}")
            pitch = f"s{sD3}"
        k(f"v_mad_u32_u24 v{dst}, v{dst}, {pitch}, v{vT2}")

    def dma_raw(sr, lds_imm, first, R=None):
        sD0_, sD2_, sL0_, vDM_ = R or (sD0, sD2, sL0, vDM)
        with k.atomic():
            k(f"s_add_u32 m0, s{sL0_}, {lds_imm}")
            k("s_nop 0" if first else f"s_add_u32 s{sD0_}, s{sD0_}, s{sD2_}")
            k(f"buffer_load_dwordx4 v{vDM_}, {srd(sr)}, s{sD0_} offen{NTP} lds")

    def packU_issue(base, sD0, sD1, sD2, sD3, sL0, vDM, sPDA, shift=12):
        R = (sD0, sD2, sL0, vDM)
        l2, l3, lq, le = k.label("L_u2"), k.label("L_u3"), k.label("L_uq"), k.label("L_ue")
        with k.atomic():
            k(f"""
            s_lshl_b32 s{sL0}, s{sW}, {shift}
            s_add_u32 s{sL0}, s{sL0}, {base}
            s_lshr_b32 s{sD0}, s{sC}, 2
            s_mul_i32 s{sD0}, s{sD0}, 896
            s_mul_i32 s{sD1}, s{sG}, {32*3584}
            s_add_u32 s{sD0}, s{sD0}, s{sD1}
            s_and_b32 s{sD1}, s{sC}, 3
            s_cmp_eq_u32 s{sW}, 3
            s_cbranch_scc1 {l3}
            s_cmp_eq_u32 s{sW}, 2
            s_cbranch_scc1 {l2}
            s_mov_b32 s{S_A}, s{S_W2}
            s_mov_b32 s{S_A+1}, s{S_W2+1}
            s_mov_b32 s{S_A+2}, {1792*1024}
            s_movk_i32 s{sD2}, 1024
            s_lshl1_add_u32 s{sD0}, s2, s{sW}
            s_lshr_b32 s{sD1}, s{sD0}, 3
            s_and_b32 s{sD0}, s{sD0}, 7
            s_mul_i32 s{sPDA}, s{sD0}, 56
            s_add_u32 s{sPDA}, s{sPDA}, s{sD1}
            s_lshl_b32 s{sPDA}, s{sPDA}, 12
            s_add_u32 s{sPDA}, s{sPDA}, {WS_W2T}
            s_cmp_ge_u32 s{sD1}, 56
            s_cselect_b32 s{sPDA}, {OOB}, s{sPDA}
            s_lshl_b32 s{sD1}, s{sD1}, 15
            s_lshl_b32 s{sD0}, s{sD0}, 7
            s_add_u32 s{sD0}, s{sD0}, s{sD1}
            s_branch {lq}
            {l2}:
            s_mov_b32 s{S_A}, s{S_W1}
            s_mov_b32 s{S_A+1}, s{S_W1+1}
            s_mov_b32 s{S_A+2}, {512*3584}
            s_movk_i32 s{sD2}, 3584
            s_lshl_b32 s{sD1}, s{sD1}, 7
            s_add_u32 s{sD0}, s{sD0}, s{sD1}
            s_lshl_b32 s{sPDA}, s{sG}, 12
            s_add_u32 s{sPDA}, s{sPDA}, s{sPKB}
            s_add_u32 s{sPDA}, s{sPDA}, {PK_W1A}
            {lq}:
            s_mov_b32 s{S_A+3}, 0x20000
            """)
            quad_lane(f"s{sD2}", vDM, vT2 if shift == 14 else vACT + 127)
            k(f"s_lshl_b32 s{sD2}, s{sD2}, 3")
            for j in range(4):
                dma_raw(S_A, j * 1024, j == 0, R)
            k(f"""
            s_branch {le}
            {l3}:
            s_movk_i32 s{sD3}, 3584
            s_mul_i32 s{sPDA}, s{sG}, 3072
            s_add_u32 s{sPDA}, s{sPDA}, s{sPKB}
            s_add_u32 s{sPDA}, s{sPDA}, {PK_W1B}
            s_lshr_b32 s{sT5}, s{sD1}, 1
            s_mul_i32 s{sT5}, s{sT5}, 6
            s_and_b32 s{sD2}, s{sD1}, 1
            s_add_u32 s{sT5}, s{sT5}, s{sD2}
            s_add_u32 s{sT5}, s{sT5}, 18
            s_lshl_b32 s{sT5}, s{sT5}, 5
            s_add_u32 s{sT5}, s{sT5}, s{sD0}
            v_lshrrev_b32 v{vDM}, 1, v{vLANE}
            v_and_b32 v{vT2 if shift == 14 else vACT + 127}, 16, v{vL16}
            v_mad_u32_u24 v{vDM}, v{vDM}, s{sD3}, v{vT2 if shift == 14 else vACT + 127}
            s_add_u32 m0, s{sL0}, 2048
            s_mul_i32 s{sD1}, s{sD1}, 3
            buffer_load_dwordx4 v{vDM}, {srd(S_W1)}, s{sT5} offen{NTP} lds
            s_add_u32 s{sD1}, s{sD1}, 17
            s_lshr_b32 s{sD1}, s{sD1}, 1
            s_lshl_b32 s{sD1}, s{sD1}, 6
            s_add_u32 s{sD0}, s{sD0}, s{sD1}
            s_mov_b32 s{sD2}, {16*3584}
            v_mad_u32_u24 v{vDM}, v{vP}, s{sD3}, v{vCH}
            """)
            for hh in range(2):
                dma_raw(S_W1, hh * 1024, hh == 0, R)
            k(f"buffer_load_dword a{aDUM}, v{vL16}, {srd(S_W1)}, s{S_W1+2} offen")
            k(f"{le}:")
            k.vm_note(4, "pu")

    WP = o.get("wp", 1)

    def warm():
        k(f"v_lshlrev_b32 v{vT3}, 7, v{vLANE}")
        k("s_mov_b64 exec, 0xf")
        if not o.get("cw0", 1):
            k(f"""
            s_getpc_b64 s[{sPC}:{sPC+1}]
            L_pcref:
            s_lshr_b32 s{sT2}, s2, 3
            s_lshl2_add_u32 s{sT2}, s{sT2}, s{sW}
            s_lshl_b32 s{sT2}, s{sT2}, 9
            s_min_u32 s{sT2}, s{sT2}, CODE_BYTES
            s_add_u32 s{sPC}, s{sPC}, s{sT2}
            s_addc_u32 s{sPC+1}, s{sPC+1}, 0
            """)
            k.vmem(f"global_load_dword a{aDUM}, v{vT3}, s[{sPC}:{sPC+1}]")
        if o.get("warm", 1) >= 1:
            k(f"s_lshl2_add_u32 s{sT2}, s2, s{sW}")
            k(f"s_lshr_b32 s{sT3}, s{sT2}, 1")
            k(f"s_mul_i32 s{sT3}, s{sT3}, 3072")
            k(f"s_and_b32 s{sT4}, s{sT2}, 1")
            k(f"s_lshl_b32 s{sT4}, s{sT4}, 9")
            k(f"s_add_u32 s{sT3}, s{sT3}, s{sT4}")
            k.vmem(f"buffer_load_dword a{aDUM}, v{vT3}, {srd(S_WQKV)}, s{sT3} offen")
            if not WP:
                k(f"s_lshl_b32 s{sT3}, s{sT2}, 9")
                k.vmem(f"buffer_load_dword a{aDUM}, v{vT3}, {srd(S_WO)}, s{sT3} offen")
        if o.get("tlb", 0):
            k("s_mov_b64 exec, 1")
            k(f"s_mul_i32 s{sT3}, s{sT2}, 1792")
            k.vmem(f"buffer_load_dword a{aDUM}, v{vT3}, {srd(S_W1)}, s{sT3} offen")
            k.vmem(f"buffer_load_dword a{aDUM}, v{vT3}, {srd(S_W2)}, s{sT3} offen")
            if o["tlb"] > 1:
                k("s_mov_b64 exec, 0x1f")
                k(f"v_lshlrev_b32 v{vWB}, 21, v{vLANE}")
                k(f"s_mov_b32 s{sT3}, {WS_KVX + 0x1f0000}")
                k.vmem(f"buffer_load_dword a{aDUM}, v{vWB}, {srd(S_WS)}, s{sT3} offen")
        if o.get("warm", 1) >= 2:
            k(f"s_mul_i32 s{sT3}, s{sT2}, 1792")
            k("s_mov_b64 exec, 0x3fff")
            k.vmem(f"buffer_load_dword a{aDUM}, v{vT3}, {srd(S_W1)}, s{sT3} offen")
            k.vmem(f"buffer_load_dword a{aDUM}, v{vT3}, {srd(S_W2)}, s{sT3} offen")
        k(f"s_lshl2_add_u32 s{sT2}, s{sC}, s{sW}")
        k(f"s_lshl_b32 s{sT2}, s{sT2}, 8")
        k(f"s_add_u32 s{sT2}, s{sT2}, s{sGB}")
        k("s_mov_b64 exec, 3")
        k.vmem(f"buffer_load_dword a{aDUM}, v{vT3}, {srd(S_WS)}, s{sT2} offen sc1", "touch")
        k("s_mov_b64 exec, -1")

    OWN = vACC
    k(f"s_lshl_b32 s{sT2}, s{sC}, 11")
    k(f"s_add_u32 s{sT2}, s{sT2}, s{sT1}")
    for r in range(2):
        k.vmem(f"buffer_load_dwordx4 {vr(OWN+4*r,4)}, v{vL16}, {srd(S_X)}, s{sT2} offen offset:{r*1024}{NTX}", "own")
    w0_ = k.rec(lambda: wkv_raw(0))
    nw0 = o.get("nw0", 2)
    k.play(w0_[:nw0])
    k(f"""
    s_mov_b32 s{S_WO+2}, {512*1024}
    s_mov_b32 s{S_WO+3}, 0x20000
    s_mov_b32 s{S_W1+2}, {512*3584}
    s_mov_b32 s{S_W1+3}, 0x20000
    s_mov_b32 s{S_W2+2}, {1792*1024}
    s_mov_b32 s{S_W2+3}, 0x20000
    s_mov_b32 s{S_WS+2}, {WS_USED}
    s_mov_b32 s{S_WS+3}, 0x20000
    s_lshl_b32 s{sGB}, s{sG}, 20
    s_add_u32 s{sGB}, s{sGB}, {GRP0}
    """)
    warm()
    UF = o.get("uf", 1)
    k(f"s_mul_i32 s{sPKB}, s{sC}, {PK_SZ}")
    k(f"s_add_u32 s{sPKB}, s{sPKB}, {WS_PK}")
    if UF == 1:
        packU_issue(R1, sH1, sH1b, sH2, sH2b, sH3, vWB + 8, sPDB)
    if WP:
        quad_lane(1024, vWB + 8, vACT + 127, sH2b)
        k(f"""
        s_lshl2_add_u32 s{sH1}, s{sG}, s{sW}
        s_lshl_b32 s{sPDA}, s{sH1}, 10
        s_add_u32 s{sPDA}, s{sPDA}, s{sPKB}
        s_add_u32 s{sPDA}, s{sPDA}, {PK_WO}
        s_lshl_b32 s{sH1}, s{sH1}, 13
        s_lshl_b32 s{sH1b}, s{sC}, 7
        s_add_u32 s{sH1}, s{sH1}, s{sH1b}
        s_cmp_ge_u32 s{sC}, 8
        s_cselect_b32 s{sH1}, {OOB}, s{sH1}
        s_cselect_b32 s{sPDA}, {OOB}, s{sPDA}
        s_lshl_b32 s{sH1b}, s{sW}, 10
        s_add_u32 m0, s{sH1b}, {R0 + 49152}
        s_nop 0
        """)
        k.vmem(f"buffer_load_dwordx4 v{vWB+8}, {srd(S_WO)}, s{sH1} offen{NTP} lds", "pwo")

    W0P = o.get("w0p", 0)
    if W0P == 0:
        k.play(w0_[nw0:])

    if o.get("diags"): k.stamp("iss0")

    def arm(mode):
        with k.atomic():
            k(f"s_lshl2_add_u32 s{sT2}, s{sC}, s{sW}")
            k(f"s_lshl_b32 s{sT3}, s{sT2}, 11")
            k(f"s_add_u32 s{sT3}, s{sT3}, s{sGB}")
            k(f"s_add_u32 s{sT3}, s{sT3}, {G_X1}")
            k(f"s_lshr_b32 s{sT4}, s{sT2}, 3")
            k(f"s_mul_i32 s{sT4}, s{sT4}, 57344")
            k(f"s_and_b32 s{sT2}, s{sT2}, 7")
            k(f"s_mul_i32 s{sT2}, s{sT2}, {5120 if mode & 4 else 1024}")
            k(f"s_add_u32 s{sT4}, s{sT4}, s{sT2}")
            k(f"s_add_u32 s{sT4}, s{sT4}, s{sGB}")
            k(f"s_add_u32 s{sT4}, s{sT4}, {G_H + 16*1024}")
            k(f"s_add_u32 s{sT2}, s{sT4}, 4096")
        if mode & 1:
            for j in range(2):
                k.vmem(f"buffer_store_dwordx4 {vr(vQ0,4)}, v{vL16}, {srd(S_WS)}, s{sT3} offen offset:{j*1024} sc1", "arm")
        for j in range(5 if mode & 4 else 1 if mode & 2 else 0):
            k.vmem(f"buffer_store_dwordx4 {vr(vQ0,4)}, v{vL16}, {srd(S_WS)}, s{sT4 if j < 4 else sT2} offen offset:{(j%4)*1024} sc1", "arm")

    k(f"""
    s_mov_b32 s{S_OUT+2}, {2048*1024}
    s_mov_b32 s{S_OUT+3}, 0x20000
    s_lshr_b32 s{sDH}, s{sC}, 3
    s_and_b32 s{sCT}, s{sC}, 7
    s_mov_b32 s{sBUD}, 150000
    s_mov_b32 s{sEPS}, 0x358637bd
    s_mov_b32 s{sEPS+1}, 0x358637bd
    s_getreg_b32 s{sXCC}, hwreg(HW_REG_XCC_ID, 0, 4)
    s_lshl_b32 s{sACT}, s{sW}, 15
    s_add_u32 s{sACT}, s{sACT}, s{sGB}
    s_add_u32 s{sACT1}, s{sACT}, 16384
    s_lshl2_add_u32 s{sT0}, s{sDH}, s{sW}
    s_lshl_b32 s{sBACT}, s{sT0}, 14
    s_add_u32 s{sBACT}, s{sBACT}, s{sGB}
    s_lshl_b32 s{sTILE}, s{sCT}, 11
    s_add_u32 s{sTILE}, s{sTILE}, s{sBACT}
    s_mul_i32 s{sBACT}, s{sT0}, 57344
    s_add_u32 s{sBACT}, s{sBACT}, s{sGB}
    s_mul_i32 s{sOST}, s{sW}, {2*57344}
    s_lshl_b32 s{sOST1}, s{sC}, 10
    s_add_u32 s{sOST}, s{sOST}, s{sOST1}
    s_add_u32 s{sOST}, s{sOST}, s{sGB}
    s_add_u32 s{sOST}, s{sOST}, {G_O}
    s_add_u32 s{sOST1}, s{sOST}, 57344
    s_lshl_b32 s{sFXp}, s{sW}, 7
    s_add_u32 s{sFXp}, s{sFXp}, s{sGB}
    s_lshl2_add_u32 s{sFOo}, s{sC}, s{sFXp}
    s_lshl_b32 s{sFHp}, s{sT0}, 7
    s_add_u32 s{sFHp}, s{sFHp}, s{sGB}
    s_lshr_b32 s{sT0}, s{sT0}, 1
    s_mov_b32 s{sT1}, s{sT0}
    s_lshl_b32 s{sFOp}, s{sT0}, 7
    s_add_u32 s{sFOp}, s{sFOp}, s{sGB}
    s_and_b32 s{sT2}, s{sW}, 1
    s_lshl1_add_u32 s{sT3}, s{sCT}, s{sT2}
    s_lshl2_add_u32 s{sFXo}, s{sT3}, s{sFOp}
    s_lshl3_add_u32 s{sT3}, s{sT0}, s{sCT}
    s_lshl_b32 s{sT3}, s{sT3}, 8
    s_lshl3_add_u32 s{sT3}, s{sT2}, s{sT3}
    s_add_u32 s{sSTo}, s{sT3}, s{sGB}
    s_lshl_b32 s{sSTg}, s{sW}, 11
    s_add_u32 s{sSTg}, s{sSTg}, s{sGB}
    s_lshl2_add_u32 s{sT1}, s{sT1}, s{sT2}
    s_lshl_b32 s{sT1}, s{sT1}, 6
    s_add_u32 s{sT1}, s{sT1}, {L_STAT + 128}
    v_lshl_add_u32 v{vT3}, v{vT1}, 2, s{sT1}
    v_accvgpr_write_b32 a{cRSD}, v{vT3}
    s_mul_i32 s{sT0}, s{sW}, {2*57344}
    s_add_u32 s{sT0}, s{sT0}, s{sGB}
    s_lshr_b32 s{sT3}, s{sC}, 2
    s_add_u32 s{sT0}, s{sT0}, {G_H}
    s_lshl_b32 s{sH1}, s{sC}, 11
    s_add_u32 s{sH1}, s{sH1}, {24*1024}
    s_add_u32 s{sH1}, s{sH1}, s{sT0}
    s_add_u32 s{sH1b}, s{sH1}, 57344
    s_mul_i32 s{sT4}, s{sT3}, 6144
    s_add_u32 s{sT0}, s{sT0}, s{sT4}
    s_and_b32 s{sT4}, s{sC}, 3
    s_mul_i32 s{sH2}, s{sT4}, 3
    s_add_u32 s{sH2}, s{sH2}, 1
    s_lshr_b32 s{sH2}, s{sH2}, 1
    s_lshl_b32 s{sH2}, s{sH2}, 10
    s_add_u32 s{sH2}, s{sH2}, s{sT0}
    s_add_u32 s{sH2b}, s{sH2}, 57344
    s_lshr_b32 s{sH3}, s{sT4}, 1
    s_mul_i32 s{sH3}, s{sH3}, 3072
    s_and_b32 s{sH3b}, s{sT4}, 1
    s_lshl3_add_u32 s{sH3}, s{sH3b}, s{sH3}
    s_add_u32 s{sH3}, s{sH3}, 1024
    s_add_u32 s{sH3}, s{sH3}, s{sT0}
    s_add_u32 s{sH3b}, s{sH3}, 57344
    s_lshr_b32 s{sT0}, s{sW}, 1
    s_lshl2_add_u32 s{sT0}, s{sT0}, s{sT3}
    s_lshl_b32 s{sT0}, s{sT0}, 7
    s_lshl1_add_u32 s{sT2}, s{sT4}, s{sT2}
    s_lshl2_add_u32 s{sT0}, s{sT2}, s{sT0}
    s_add_u32 s{sFHo}, s{sT0}, s{sGB}
    """)
    k(f"""
    s_mul_i32 s{sT0}, s{sC}, {KVX_C}
    s_add_u32 s{sT0}, s{sT0}, {WS_KVX}
    s_lshl_b32 s{sT1}, s{sW}, 13
    s_add_u32 s{sKVC}, s{sT0}, s{sT1}
    s_lshl_b32 s{sT2}, s{sW}, 14
    s_lshl_b32 s{sT3}, s{sG}, 10
    s_lshl_b32 s{sT4}, s{sG}, 7
    s_cmp_lt_u32 s{sW}, 2
    s_cselect_b32 s{sT3}, s{sT3}, s{sT4}
    s_cselect_b32 s{sKM}, -1, 0x30003
    s_cselect_b32 s{sKM+1}, -1, 0x30003
    s_cselect_b64 vcc, -1, 0
    s_add_u32 s{sKVP}, s{sT0}, s{sT2}
    s_add_u32 s{sKVP}, s{sKVP}, s{sT3}
    s_cmp_eq_u32 s{sW}, 3
    s_cselect_b32 s{sKVP}, {OOB}, s{sKVP}
    v_lshlrev_b32 v{vT3}, 4, v{vT0}
    v_lshl_add_u32 v{vT3}, v{vT1}, 6, v{vT3}
    v_cndmask_b32 v{vT3}, v{vT3}, v{vL16}, vcc
    v_accvgpr_write_b32 a{cKVS}, v{vT3}
    v_lshlrev_b32 v{vT3}, 2, v{vL16}
    v_and_b32 v{vT3}, 0xf00, v{vT3}
    v_lshrrev_b32 v{vT3}, 1, v{vT3}
    v_and_b32 v{vWB}, 48, v{vL16}
    s_lshr_b32 s{sT2}, s{sW}, 1
    s_lshl_b32 s{sT2}, s{sT2}, 6
    s_add_u32 s{sT2}, s{sT2}, 32768
    s_sub_u32 s{sT2}, s{sT2}, s{sT1}
    v_add3_u32 v{vT3}, v{vT3}, v{vWB}, s{sT2}
    v_accvgpr_write_b32 a{cZL}, v{vT3}
    v_and_b32 v{vWB+5}, 1, v{vLANE}
    v_cndmask_b32 v{vWB+5}, v{vWB+5}, 0, vcc
    s_min_u32 s{sT5}, s{sW}, 2
    """)
    W = vWB
    k(f"""
    v_lshl_add_u32 v{XR}, v{vT1}, 8, v{vT2}
    v_add_u32 v{XR}, s{sL0}, v{XR}
    v_xor_b32 v{XR+1}, 64, v{XR}
    v_xor_b32 v{XR+2}, 0x80, v{XR}
    v_xor_b32 v{XR+3}, 0xc0, v{XR}
    v_and_b32 v{vT3}, 3, v{vLANE}
    v_lshlrev_b32 v{vT3}, 3, v{vT3}
    v_lshl_add_u32 v{vTR0}, v{vP}, 6, v{vT3}
    v_lshl_add_u32 v{vQ0}, v{vP}, 7, v{vT3}
    v_and_b32 v{vT3}, 1, v{vT0}
    v_lshlrev_b32 v{vT3}, 5, v{vT3}
    v_add_u32 v{vTR0}, v{vTR0}, v{vT3}
    v_xor_b32 v{vTR1}, 32, v{vTR0}
    v_bfe_u32 v{vT3}, v{vLANE}, 3, 2
    v_lshl_add_u32 v{vQ0}, v{vT3}, 5, v{vQ0}
    v_xor_b32 v{vQ1}, 32, v{vQ0}
    v_xor_b32 v{vQ2}, 64, v{vQ0}
    v_xor_b32 v{vQ3}, 0x60, v{vQ0}
    v_lshlrev_b32 v{W}, 2, v{vT1}
    v_accvgpr_write_b32 a{cP16}, v{W}
    v_mov_b32 v{W+1}, {BF1}
    v_accvgpr_write_b32 a{aONES}, v{W+1}
    v_accvgpr_write_b32 a{aONES+1}, v{W+1}
    v_accvgpr_write_b32 a{aONES+2}, v{W+1}
    v_accvgpr_write_b32 a{aONES+3}, v{W+1}
    v_add_u32 v{W+1}, {L_CS}, v{W}
    v_accvgpr_write_b32 a{cCSA}, v{W+1}
    v_and_b32 v{W+2}, 48, v{vLANE}
    v_add_u32 v{W+1}, {L_CS}, v{W+2}
    v_accvgpr_write_b32 a{cCSB}, v{W+1}
    v_lshlrev_b32 v{W+1}, 2, v{vT0}
    v_lshl_add_u32 v{W+1}, v{vT1}, 4, v{W+1}
    v_accvgpr_write_b32 a{cSTO}, v{W+1}
    s_lshl_b32 s{sT0}, s{sW}, 8
    s_add_u32 s{sT0}, s{sT0}, {L_STAT}
    v_add_u32 v{W+1}, s{sT0}, v{W}
    v_accvgpr_write_b32 a{cSTA}, v{W+1}
    v_and_b32 v{W+3}, 32, v{vLANE}
    v_lshl_add_u32 v{W+1}, v{W+3}, 1, v{W+1}
    v_accvgpr_write_b32 a{cSTW}, v{W+1}
    v_add_u32 v{W+1}, s{sT0}, v{W+2}
    v_accvgpr_write_b32 a{cSTB}, v{W+1}
    s_lshl_b32 s{sT0}, s{sW}, 10
    v_add_u32 v{W+1}, s{sT0}, v{vL16}
    v_accvgpr_write_b32 a{cKW}, v{W+1}
    v_add_u32 v{W+3}, {R2 + 8192}, v{W+1}
    v_accvgpr_write_b32 a{cKW1}, v{W+3}
    s_lshl_b32 s{sT0}, s{sT5}, 14
    v_add_u32 v{W+1}, s{sT0}, v{vL16}
    v_lshl_add_u32 v{W+1}, v{W+5}, 12, v{W+1}
    v_accvgpr_write_b32 a{cKR}, v{W+1}
    s_lshl_b32 s{sT0}, s{sT5}, 14
    s_add_u32 s{sT0}, s{sT0}, {R2 + 8192}
    v_add_u32 v{W+1}, s{sT0}, v{vL16}
    v_lshl_add_u32 v{W+1}, v{W+5}, 14, v{W+1}
    v_accvgpr_write_b32 a{cKR1}, v{W+1}
    v_add_u32 v{W+1}, {L_XB}, v{vL16}
    v_accvgpr_write_b32 a{cXR}, v{W+1}
    v_lshlrev_b32 v{W+3}, 3, v{vT0}
    v_add_u32 v{W+3}, {L_ZB}, v{W+3}
    v_accvgpr_write_b32 a{cZR}, v{W+3}
    """)
    k(f"""
    s_lshl_b32 s{sT0}, s{sW}, 10
    v_add_u32 v{W+1}, s{sT0}, v{W+1}
    v_accvgpr_write_b32 a{cXW}, v{W+1}
    v_and_b32 v{W+3}, 1, v{vT0}
    v_lshrrev_b32 v{W+4}, 1, v{vT0}
    v_lshl_add_u32 v{W+3}, v{W+3}, 1, v{W+4}
    v_and_b32 v{W+4}, 3, v{vLANE}
    v_lshl_add_u32 v{W+3}, v{W+4}, 2, v{W+3}
    s_lshr_b32 s{sT0}, s{sW}, 1
    s_lshl_b32 s{sT0}, s{sT0}, 5
    s_add_u32 s{sT0}, s{sT0}, {L_ZB}
    v_lshl_add_u32 v{W+3}, v{W+3}, 1, s{sT0}
    v_accvgpr_write_b32 a{cZW}, v{W+3}
    """)
    for j in range(4):
        k(f"s_add_u32 s{sT0}, s{sW}, {j}")
        k(f"s_and_b32 s{sT0}, s{sT0}, 3")
        k(f"s_lshl_b32 s{sT0}, s{sT0}, 13")
        k(f"s_add_u32 s{sT0}, s{sT0}, {L_RED + (4096 if j == 2 else 0)}")
        k(f"v_add_u32 v{W+1}, s{sT0}, v{vL16}")
        k(f"v_accvgpr_write_b32 a{cRD0+j}, v{W+1}")
    k(f"""
    s_lshl2_add_u32 s{sT0}, s{sDH}, s{sW}
    s_lshl3_add_u32 s{sT0}, s{sG}, s{sT0}
    s_lshl_b32 s{sT0}, s{sT0}, 14
    s_lshl_b32 s{sT1}, s{sCT}, 7
    s_add_u32 s{sT0}, s{sT0}, s{sT1}
    v_lshl_add_u32 v{W+1}, v{vT1}, 10, s{sT0}
    v_and_b32 v{W+3}, 1, v{vT0}
    v_lshl_add_u32 v{W+1}, v{W+3}, 5, v{W+1}
    v_lshrrev_b32 v{W+3}, 1, v{vT0}
    v_lshl_add_u32 v{W+1}, v{W+3}, 4, v{W+1}
    v_accvgpr_write_b32 a{cOUT}, v{W+1}
    """)

    def xread(q):
        k.vm_wait(("xs", q))
        for ksl in range(4):
            for rb in range(2):
                k.lds(f"ds_read_b128 {vr(act(4*q+ksl, rb),4)}, v{XR+ksl} offset:{(q%2)*8192 + rb*4096}", ("xr", q))

    SUM0, SQ0, SUM1, SQ1 = vACC + 56, vACC + 57, vACC + 58, vACC + 59
    SUMA, SQA = vACC + 48, vACC + 56
    ONES = vPQ + 4
    NM_A, RS_A, RL_A = vACC + 60, vACC + 62, vACC + 56
    NM_B, RS_B, RL_B = vACC + 32, vACC + 40, vACC + 48
    STG = vACC + 48

    def own_stats():
        a, b, c, d = OWN + 8, OWN + 9, OWN + 10, OWN + 11
        k(f"v_mov_b32 v{OWN+12}, {BF1}")
        k.vm_wait("own")
        for j in range(4):
            r0, r1 = OWN + j, OWN + 4 + j
            k(f"v_dot2_f32_bf16 v{a}, v{OWN+12}, v{r0}, {'0' if j == 0 else f'v{a}'}")
            k(f"v_dot2_f32_bf16 v{c}, v{OWN+12}, v{r1}, {'0' if j == 0 else f'v{c}'}")
            k(f"v_dot2_f32_bf16 v{b}, v{r0}, v{r0}, {'0' if j == 0 else f'v{b}'}")
            k(f"v_dot2_f32_bf16 v{d}, v{r1}, v{r1}, {'0' if j == 0 else f'v{d}'}")
        k(f"""
        s_waitcnt lgkmcnt(0)
        s_mul_i32 s{sTAG}, s{sEP}, 0x9E3779B1
        s_add_u32 s{sTAG}, s{sTAG}, 0x7F4A7C15
        s_add_u32 s{sT8}, s{sEP}, 1
        s_and_b32 s{sT8}, s{sT8}, 0xff
        s_mov_b32 s{sS8}, s{sEP}
        v_permlane32_swap_b32 v{a}, v{c}
        v_permlane32_swap_b32 v{b}, v{d}
        v_add_f32 v{a}, v{a}, v{c}
        v_add_f32 v{b}, v{b}, v{d}
        v_mov_b32 v{c}, v{a}
        v_mov_b32 v{d}, v{b}
        s_nop 1
        v_permlane16_swap_b32 v{a}, v{c}
        v_permlane16_swap_b32 v{b}, v{d}
        v_add_f32 v{a}, v{a}, v{c}
        v_add_f32 v{b}, v{b}, v{d}
        """)
        for sh in (8, 4, 2, 1):
            k("s_nop 0")
            k(f"v_add_f32_dpp v{a}, v{a}, v{a} row_ror:{sh} row_mask:0xf bank_mask:0xf")
            k(f"v_add_f32_dpp v{b}, v{b}, v{b} row_ror:{sh} row_mask:0xf bank_mask:0xf")
        k(f"""
        v_mul_f32 v{a}, 0xbb000000, v{a}
        v_mul_f32 v{b}, 0x3b000000, v{b}
        v_fma_f32 v{b}, -v{a}, v{a}, v{b}
        v_max_f32 v{b}, 0, v{b}
        v_add_f32 v{b}, 0x3727c5ac, v{b}
        v_rsq_f32 v{b}, v{b}
        v_mov_b32 v{c}, s{sTAG}
        v_mov_b32 v{d}, s{sXCC}
        v_lshrrev_b32 v{vT3}, 1, v{vLANE}
        s_lshl4_add_u32 s{sT2}, s{sW}, s{sC}
        s_lshl_b32 s{sT2}, s{sT2}, 7
        s_add_u32 s{sT2}, s{sT2}, s{sGB}
        s_add_u32 s{sT2}, s{sT2}, {G_ST0}
        s_mov_b32 exec_lo, 1
        s_mov_b32 exec_hi, 1
        """)
        k.vmem(f"buffer_store_dwordx4 {vr(a,4)}, v{vT3}, {srd(S_WS)}, s{sT2} offen sc1", "ownst")
        k("s_mov_b64 exec, -1")

    S0 = vACC + 52

    def st0_issue():
        with k.atomic():
            k(f"v_and_b32 v{vT0}, 30, v{vLANE}")
            k(f"v_lshlrev_b32 v{vT0}, 6, v{vT0}")
            k(f"v_and_b32 v{vT1}, 16, v{vL16}")
            k(f"v_add_u32 v{vT0}, v{vT0}, v{vT1}")
            k(f"s_add_u32 s{sT4}, s{sSTg}, {G_ST0}")
            k.vmem(f"buffer_load_dwordx4 {vr(S0,4)}, v{vT0}, {srd(S_WS)}, s{sT4} offen sc1", "st0")

    def st0_use():
        lp, ok = k.label("L_s0"), k.label("L_s0ok")
        with k.atomic():
            k.vm_wait("st0")
            k(f"{lp}:")
            k(f"v_cmp_ne_u32 vcc, s{sTAG}, v{S0+2}")
            k(f"s_cbranch_vccz {ok}")
            k(f"buffer_load_dwordx4 {vr(S0,4)}, v{vT0}, {srd(S_WS)}, s{sT4} offen sc1")
            k("s_waitcnt vmcnt(0)")
            k(f"s_sub_u32 s{sBUD}, s{sBUD}, 1")
            k(f"s_cbranch_scc0 {lp}")
            k(f"s_mov_b32 s{sBUD}, 0")
            k(f"{ok}:")
            k(f"v_cmp_ne_u32 vcc, s{sXCC}, v{S0+3}")
            k("s_nop 4")
            k(f"s_or_b32 s{sSLOW}, vcc_lo, {1 if o.get('forceslow') else 0}")
        k.get(vT0, cSTA)
        k(f"v_and_b32 v{vT1}, 16, v{vLANE}")
        k(f"v_lshl_add_u32 v{vT1}, v{vT1}, 2, v{vT0}")
        k.lds(f"ds_write2_b32 v{vT1}, v{S0}, v{S0+1} offset0:0 offset1:32")
        k.lds(f"ds_read2_b32 {vr(NM_A,2)}, v{vT0} offset0:0 offset1:16", "sta")
        k.lds(f"ds_read2_b32 {vr(RS_A,2)}, v{vT0} offset0:32 offset1:48", "sta")

    def stats_finalize(need_rs):
        k.get(vT1, cSTW)
        k.get(vT0, cSTA)
        k(f"""
        v_permlane32_swap_b32 v{SUM0}, v{SUM1}
        v_permlane32_swap_b32 v{SQ0}, v{SQ1}
        v_add_f32 v{SUM0}, v{SUM0}, v{SUM1}
        v_add_f32 v{SQ0}, v{SQ0}, v{SQ1}
        v_mov_b32 v{SUM1}, v{SUM0}
        v_mov_b32 v{SQ1}, v{SQ0}
        s_nop 0
        v_permlane16_swap_b32 v{SUM0}, v{SUM1}
        v_permlane16_swap_b32 v{SQ0}, v{SQ1}
        v_add_f32 v{SUM0}, v{SUM0}, v{SUM1}
        v_add_f32 v{SQ0}, v{SQ0}, v{SQ1}
        v_mul_f32 v{SUM0}, 0xbb000000, v{SUM0}
        v_mul_f32 v{SQ0}, 0x3b000000, v{SQ0}
        v_fma_f32 v{SQ0}, -v{SUM0}, v{SUM0}, v{SQ0}
        v_max_f32 v{SQ0}, 0, v{SQ0}
        v_add_f32 v{SQ0}, 0x3727c5ac, v{SQ0}
        v_rsq_f32 v{SQ0}, v{SQ0}
        s_nop 0
        """)
        k.lds(f"ds_write2_b32 v{vT1}, v{SUM0}, v{SQ0} offset0:0 offset1:32")
        k.lds(f"ds_read2_b32 {vr(NM_A,2)}, v{vT0} offset0:0 offset1:16", "sta")
        if need_rs:
            k.lds(f"ds_read2_b32 {vr(RS_A,2)}, v{vT0} offset0:32 offset1:48", "sta")

    def stats_b():
        k.get(vT1, cSTB)
        for rb in range(2):
            k.lds(f"ds_read_b128 {vr(NM_B+4*rb,4)}, v{vT1} offset:{64*rb}", "sta")
            k.lds(f"ds_read_b128 {vr(RS_B+4*rb,4)}, v{vT1} offset:{128+64*rb}", "sta")

    def stats_scale():
        k.ds_wait("sta")
        for j in range(8):
            k(f"v_mul_f32 v{RL_B+j}, 0x3fb8aa3b, v{RS_B+j}")
        for j in range(2):
            k(f"v_mul_f32 v{RL_A+j}, 0x3fb8aa3b, v{RS_A+j}")

    def set_ones(r):
        for j in range(4):
            k(f"v_mov_b32 v{r+j}, {BF1}")

    def cs_put(first, sblk):
        k.get(vT0, cCSA)
        k(f"s_lshl_b32 s{sT5}, s{sblk}, 6")
        k(f"v_add_u32 v{vT0}, s{sT5}, v{vT0}")
        k.lds(f"ds_write_b32 v{vT0}, a{aCS} offset:{first*64}")

    def phi_block(acc, nm, cs, rl, rs, dst, tmp, lay):
        s1, s2, s3, s4, s5 = [], [], [], [], []
        for p in range(2):
            a2 = vr(acc + 2*p, 2)
            t2 = vr(tmp + 2*p, 2)
            if lay == "b":
                c2, m = bcast(cs, 1, 3)
                s1.append(f"v_pk_fma_f32 {a2}, {vr(nm+2*p,2)}, {c2}, {a2}{m}")
                s2.append(f"v_pk_mul_f32 {t2}, {a2}, {vr(rl+2*p,2)}")
                s4.append(f"v_pk_fma_f32 {a2}, {a2}, {vr(rs+2*p,2)}, {t2}")
            else:
                c2, m = bcast(nm, 1, 3)
                s1.append(f"v_pk_fma_f32 {a2}, {vr(cs+2*p,2)}, {c2}, {a2}{m}")
                c2, m = bcast(rl, 1, 2)
                s2.append(f"v_pk_mul_f32 {t2}, {a2}, {c2}{m}")
                c2, m = bcast(rs, 1, 3)
                s4.append(f"v_pk_fma_f32 {a2}, {a2}, {c2}, {t2}{m}")
            for j in range(2):
                s3.append(f"v_exp_f32 v{tmp+2*p+j}, v{tmp+2*p+j} clamp")
            s5.append(f"v_pk_add_f32 {a2}, {a2}, s[{sEPS}:{sEPS+1}]")
        for s in s1 + s2 + s3:
            k(s)
        for j in range(4):
            k(f"v_max_f32 v{acc+j}, 0, v{acc+j}")
        for s in s4 + s5:
            k(s)
        for p in range(2):
            k(f"v_cvt_pk_bf16_f32 v{dst+p}, v{acc+2*p}, v{acc+2*p+1}")

    def ring(ks, rb):
        return vACT + 8 * (ks % 6) + 4 * rb
    QA, vPARK = vACT + 48, vACT + 64

    def act_loads(bufoff, act=act, rot=False):
        for ks in range(16):
            for rb in range(2):
                with k.atomic():
                    if ks % 4 == 0:
                        k(f"s_add_u32 s{sT2+rb}, s{sACT+rb}, {f's{S_A + ks//4}' if rot else bufoff + ks*1024}")
                    k.vmem(f"buffer_load_dwordx4 {vr(act(ks,rb),4)}, v{vL16}, {srd(S_WS)}, s{sT2+rb} offen offset:{(ks%4)*1024} sc1",
                           ("act", ks, rb))

    def stat_loads(stoff, STG=STG):
        k(f"s_add_u32 s{sT4}, s{sSTg}, {stoff}")
        for j in range(2):
            k.vmem(f"buffer_load_dwordx4 {vr(STG+4*j,4)}, v{vL16}, {srd(S_WS)}, s{sT4} offen offset:{j*1024} sc1", "stg")

    def stat_sum(STG=STG):
        lp, ok = k.label("L_sg"), k.label("L_sgok")
        k.vm_wait("stg")

        def chk():
            k(f"v_and_b32 v{SUM0}, v{STG}, v{STG+1}")
            k(f"v_or3_b32 v{SUM0+1}, v{STG}, v{STG+1}, v{STG+2}")
            k(f"v_and_b32 v{SUM0+2}, v{STG+2}, v{STG+3}")
            k(f"v_or3_b32 v{SUM0+1}, v{SUM0+1}, v{STG+3}, v{STG+4}")
            k(f"v_and_b32 v{SUM0}, v{SUM0}, v{STG+4}")
            k(f"v_or3_b32 v{SUM0+1}, v{SUM0+1}, v{STG+5}, v{STG+6}")
            k(f"v_and_b32 v{SUM0+2}, v{SUM0+2}, v{STG+5}")
            k(f"v_and_b32 v{SUM0}, v{SUM0}, v{STG+6}")
            k(f"v_and_b32 v{SUM0+2}, v{SUM0+2}, v{STG+7}")
            k(f"v_or_b32 v{SUM0+1}, v{SUM0+1}, v{STG+7}")
            k(f"v_and_b32 v{SUM0}, v{SUM0}, v{SUM0+2}")
            k(f"v_xor_b32 v{SUM0+1}, s{sS8}, v{SUM0+1}")
            k(f"v_xor_b32 v{SUM0}, s{sS8}, v{SUM0}")
            k(f"v_or_b32 v{SUM0}, v{SUM0}, v{SUM0+1}")
            k(f"v_and_b32 v{SUM0}, 0xff, v{SUM0}")
        chk()
        with k.atomic():
            k(f"v_cmp_ne_u32 vcc, 0, v{SUM0}")
            k(f"s_cbranch_vccnz {lp}")
            k(f"{ok}:")
        sv, k._rec = k._rec, None
        n0 = len(k.lines)
        k(f"{lp}:")
        for j in range(2):
            k(f"buffer_load_dwordx4 {vr(STG+4*j,4)}, v{vL16}, {srd(S_WS)}, s{sT4} offen offset:{j*1024} sc1")
        k("s_waitcnt vmcnt(0)")
        chk()
        k(f"v_cmp_ne_u32 vcc, 0, v{SUM0}")
        k(f"s_cbranch_vccz {ok}")
        k(f"s_sub_u32 s{sBUD}, s{sBUD}, 1")
        k(f"s_cbranch_scc0 {lp}")
        k(f"s_mov_b32 s{sBUD}, 0")
        k(f"s_branch {ok}")
        k.tailcode += k.lines[n0:]
        del k.lines[n0:]
        k._rec = sv
        for j in range(4):
            k(f"v_add_f32 v{SUM0+j}, v{STG+j}, v{STG+4+j}")

    def mf2(acc, ks, sw, wait, first=None, act=act):
        return [(acc + 4 * rb, act(ks, rb), sw, (ks == 0) if first is None else first,
                 (("act", ks, 1) if ks else ("act", ks, rb)) if wait else None) for rb in range(2)]

    def wo_raw():
        with k.atomic():
            quad_lane(1024)
            k(f"s_lshl_b32 s{sD0}, s{sW}, 17")
            k(f"s_lshl_b32 s{sD1}, s{sCT}, 7")
            k(f"s_add_u32 s{sD0}, s{sD0}, s{sD1}")
            k(f"s_lshl_b32 s{sL0}, s{sW}, 14")
        for j in range(16):
            k.dma(S_WO, vDM, sD0, j * 8 * 1024, sL0, R0 + j * 1024, "wo")

    def w1c1_raw():
        with k.atomic():
            quad_lane(3584, tmp=vACT + 127)
            k(f"s_lshr_b32 s{sD0}, s{sC}, 2")
            k(f"s_mul_i32 s{sD0}, s{sD0}, 896")
            k(f"s_and_b32 s{sD1}, s{sC}, 3")
            k(f"s_lshl_b32 s{sD1}, s{sD1}, 7")
            k(f"s_add_u32 s{sD0}, s{sD0}, s{sD1}")
            k(f"s_mul_i32 s{sD1}, s{sW}, {64*3584}")
            k(f"s_add_u32 s{sD0}, s{sD0}, s{sD1}")
            k(f"s_lshl_b32 s{sL0}, s{sW}, 13")
        for half in range(2):
            for j in range(8):
                k.dma(S_W1, vDM, sD0, (half * 256 + j * 8) * 3584, sL0, R1 + half * 32768 + j * 1024, "w1a")

    def lin_dma(src, dst, n, tag, shared=False):
        for j in range(n):
            with k.atomic():
                if j == 0:
                    k(f"s_mul_i32 s{sL0}, s{sW}, {n*1024}")
                    k(f"s_add_u32 s{sD0}, s{sL0}, s{sPKB}")
                    if shared:
                        k(f"s_mul_i32 s{sD1}, s{sDH}, {8*PK_SZ}")
                        k(f"s_sub_u32 s{sD0}, s{sD0}, s{sD1}")
                if j % 4 == 0:
                    k(f"s_add_u32 m0, s{sL0}, {dst + j*1024}")
                    k(f"s_add_u32 s{sD1}, s{sD0}, {src + j*1024}")
                k.vmem(f"buffer_load_dwordx4 v{vL16}, {srd(S_WS)}, s{sD1} offen offset:{(j%4)*1024} sc1 lds", tag)

    def publish_x(bufoff, stoff, floff, pay_sc1):
        k(f"s_add_u32 s{sT1}, s{sTILE}, {bufoff}")
        k.stores([f"buffer_store_dwordx4 {vr(vRES+4*s,4)}, v{vL16}, {srd(S_WS)}, s{sT1} offen offset:{s*1024}" for s in range(2)], pay_sc1)
        a, b, c, d = vT0, vT1, vT2, vT3
        for j in range(4):
            r0, r1 = vRES + j, vRES + 4 + j
            if j == 0:
                k(f"v_mov_b32 v{vWB+9}, {BF1}")
                k(f"v_dot2_f32_bf16 v{b}, v{r0}, v{r0}, 0")
                k(f"v_dot2_f32_bf16 v{d}, v{r1}, v{r1}, 0")
                k(f"v_dot2_f32_bf16 v{a}, v{vWB+9}, v{r0}, 0")
                k(f"v_dot2_f32_bf16 v{c}, v{vWB+9}, v{r1}, 0")
            else:
                k(f"v_dot2_f32_bf16 v{b}, v{r0}, v{r0}, v{b}")
                k(f"v_dot2_f32_bf16 v{d}, v{r1}, v{r1}, v{d}")
                k(f"v_dot2_f32_bf16 v{a}, v{vWB+9}, v{r0}, v{a}")
                k(f"v_dot2_f32_bf16 v{c}, v{vWB+9}, v{r1}, v{c}")
        k.get(vWB + 8, cSTO)
        k(f"""
        s_add_u32 s{sT3}, s{sSTo}, {stoff}
        v_add_f32 v{b}, v{b}, v{d}
        v_add_f32 v{a}, v{a}, v{c}
        s_nop 1
        v_permlane16_swap_b32 v{a}, v{b}
        v_add_f32 v{a}, v{a}, v{b}
        v_mov_b32 v{b}, v{a}
        s_nop 1
        v_permlane32_swap_b32 v{a}, v{b}
        v_add_f32 v{c}, v{a}, v{b}
        s_add_u32 s{sS8}, s{sS8}, 1
        s_and_b32 s{sS8}, s{sS8}, 0xff
        v_and_b32 v{c}, 0xffffff00, v{c}
        v_or_b32 v{c}, s{sS8}, v{c}
        s_mov_b32 exec_hi, 0
        """)
        k.stores([f"buffer_store_dword v{c}, v{vWB+8}, {srd(S_WS)}, s{sT3} offen"], False, "sts" if o.get("sto", 1) else "st")
        k("s_mov_b64 exec, -1")
        k.poll_prep(15)

    def unpack_res(dst):
        for f in range(4):
            for p in range(2):
                r = vRES + 2*f + p
                k(f"v_lshlrev_b32 v{dst+4*f+2*p}, 16, v{r}")
                k(f"v_and_b32 v{dst+4*f+2*p+1}, 0xffff0000, v{r}")

    def misc_l1():
        k(f"""
        s_add_u32 s{sT2}, s{sTAG}, s{sXCC}
        s_add_u32 s{sT2}, s{sT2}, 2
        v_mov_b32 v{vT1}, s{sT2}
        s_lshl4_add_u32 s{sT2}, s{sG}, s{sC}
        s_lshl_b32 s{sT2}, s{sT2}, 7
        s_add_u32 s{sT2}, s{sT2}, {WS_XID}
        """)
        with k.atomic():
            k(f"s_cmp_lg_u32 s{sW}, 0")
            k(f"s_cselect_b32 s{sT2}, {OOB}, s{sT2}")
            k("s_mov_b64 exec, 1")
            k.vmem(f"buffer_store_dword v{vT1}, v{vL16}, {srd(S_WS)}, s{sT2} offen sc1", "xid")
            k("s_mov_b64 exec, -1")

    def res_load():
        k.get(vT0, cOUT)
        for s_ in range(2):
            k.vmem(f"buffer_load_dwordx4 {vr(vRES+4*s_,4)}, v{vT0}, {srd(S_X)}, 0 offen offset:{64*s_}", "res")

    def touch(kind, vSP=vSP):
        with k.atomic():
            k(f"s_lshl2_add_u32 s{sD3}, s{sC}, s{sW}")
            sD2 = sD3
            if kind == "h":
                k(f"s_mul_i32 s{sD2}, s{sD2}, 7168")
                k(f"s_add_u32 s{sD2}, s{sD2}, s{sGB}")
                k(f"s_add_u32 s{sD2}, s{sD2}, {G_H}")
                k(f"v_lshlrev_b32 v{vSP}, 7, v{vLANE}")
                k("s_mov_b32 exec_hi, 0xffffff")
                k.vmem(f"buffer_load_dword a{aDUM}, v{vSP}, {srd(S_WS)}, s{sD2} offen sc1", "touch")
                k("s_mov_b32 exec_hi, -1")
            else:
                k(f"v_lshlrev_b32 v{vSP}, 7, v{vLANE}")
                k(f"s_lshl_b32 s{sT5}, s{sD2}, 11")
                k(f"s_add_u32 s{sT5}, s{sT5}, s{sGB}")
                k(f"s_add_u32 s{sT5}, s{sT5}, {G_X1}")
                k("s_mov_b64 exec, 0xffff")
                k.vmem(f"buffer_load_dword a{aDUM}, v{vSP}, {srd(S_WS)}, s{sT5} offen sc1", "touch")
                k(f"s_lshl_b32 s{sD2}, s{sD2}, 7")
                k(f"s_add_u32 s{sD2}, s{sD2}, s{sGB}")
                k("s_mov_b64 exec, 1")
                k(f"s_add_u32 s{sD2}, s{sD2}, {G_ST1}")
                k.vmem(f"buffer_load_dword a{aDUM}, v{vSP}, {srd(S_WS)}, s{sD2} offen sc1", "touch")
                k("s_mov_b64 exec, -1")

    def touch_slots(first, n, va=vSP):
        with k.atomic():
            k(f"s_lshl2_add_u32 s{sD3}, s{sC}, s{sW}")
            k(f"v_lshlrev_b32 v{va}, 7, v{vLANE}")
            k(f"s_lshr_b32 s{sT5}, s{sD3}, 3")
            k(f"s_mul_i32 s{sT5}, s{sT5}, 57344")
            k(f"s_and_b32 s{sD3}, s{sD3}, 7")
            k(f"s_mul_i32 s{sD3}, s{sD3}, {n*128}")
            k(f"s_add_u32 s{sT5}, s{sT5}, s{sD3}")
            k(f"s_add_u32 s{sT5}, s{sT5}, s{sGB}")
            k(f"s_add_u32 s{sT5}, s{sT5}, {G_H + first*1024}")
            k(f"s_mov_b32 exec_lo, {(1 << min(n, 32)) - 1}")
            k(f"s_mov_b32 exec_hi, {(1 << max(n - 32, 0)) - 1}")
            k.vmem(f"buffer_load_dword a{aDUM}, v{va}, {srd(S_WS)}, s{sT5} offen sc1", "touch")
            k("s_mov_b64 exec, -1")

    def touches(code, va=vSP):
        if code & 1:
            touch("x", va)
        r = {0: None, 1: (0, 16), 2: (16, 8), 3: (0, 24), 4: (24, 32), 6: (16, 40), 7: (0, 56)}[code >> 1]
        if r:
            touch_slots(r[0], r[1], va)

    def packN_issue():
        with k.atomic():
            quad_lane(1024)
            k(f"""
            s_movk_i32 s{sD2}, 8192
            s_lshl_b32 s{sD0}, s{sG}, 15
            s_lshl_b32 s{sD1}, s{sCT}, 7
            s_add_u32 s{sD0}, s{sD0}, s{sD1}
            s_lshl_b32 s{sPDA}, s{sG}, 12
            s_add_u32 s{sPDA}, s{sPDA}, s{sPKB}
            s_add_u32 s{sPDA}, s{sPDA}, {PK_WO}
            s_lshl2_add_u32 s{sD1}, s{sDH}, s{sW}
            s_cmp_lg_u32 s{sD1}, 3
            s_cbranch_scc1 L_nskip
            """)
            for j in range(4):
                dma_raw(S_WO, j * 1024, j == 0)
            k("L_nskip:")

    def packN_finish(T):
        k(f"s_lshl2_add_u32 s{sD1}, s{sDH}, s{sW}")
        k(f"s_cmp_lg_u32 s{sD1}, 3")
        k("s_cbranch_scc1 L_nfskip")
        for f in range(4):
            k(f"v_add_u32 v{T+16+f}, {L_XST + 3*16384}, v{vQ0+f}")
        for f in range(4):
            for hh in range(2):
                k(f"ds_read_b64_tr_b16 {vr(T+4*f+2*hh,2)}, v{T+16+f} offset:{hh*2048}")
        k("s_waitcnt lgkmcnt(0)")
        for f in range(4):
            k(f"buffer_store_dwordx4 {vr(T+4*f,4)}, v{vL16}, {srd(S_WS)}, s{sPDA} offen offset:{f*1024} sc1")
        k("L_nfskip:")

    def pack_finish(T, base, shift, quad_if_3, tag="pk", sPDA=sPDA):
        lb, le = k.label("L_qb"), k.label("L_qe")
        k(f"s_lshl_b32 s{sT5}, s{sW}, {shift}")
        k(f"s_add_u32 s{sT5}, s{sT5}, {base}")
        k.vm_wait(tag)
        k.ds_all()
        k(f"s_cmp_eq_u32 s{sW}, 3")
        k(f"s_cbranch_scc{0 if quad_if_3 else 1} {lb}")
        for f in range(4):
            k(f"v_add_u32 v{T+16+f}, s{sT5}, v{vQ0+f}")
        for f in range(4):
            for hh in range(2):
                k(f"ds_read_b64_tr_b16 {vr(T+4*f+2*hh,2)}, v{T+16+f} offset:{hh*2048}")
        k("s_waitcnt lgkmcnt(0)")
        for f in range(4):
            k(f"buffer_store_dwordx4 {vr(T+4*f,4)}, v{vL16}, {srd(S_WS)}, s{sPDA} offen offset:{f*1024} sc1")
        k(f"s_branch {le}")
        k(f"{lb}:")
        k(f"v_add_u32 v{T+16}, s{sT5}, v{vTR0}")
        k(f"v_add_u32 v{T+17}, s{sT5}, v{vTR1}")
        k(f"v_lshl_add_u32 v{T+18}, v{vLANE}, 3, s{sT5}")
        for f in range(2):
            for hh in range(2):
                k(f"ds_read_b64_tr_b16 {vr(T+4*f+2*hh,2)}, v{T+16+f} offset:{hh*1024}")
        nf = 2 if quad_if_3 else 3
        if nf == 3:
            for hh in range(2):
                k(f"ds_read_b64_tr_b16 {vr(T+8+2*hh,2)}, v{T+18} offset:{2048+hh*512}")
        k("s_waitcnt lgkmcnt(0)")
        for f in range(nf):
            k(f"buffer_store_dwordx4 {vr(T+4*f,4)}, v{vL16}, {srd(S_WS)}, s{sPDA} offen offset:{f*1024} sc1")
        if nf == 3:
            k(f"buffer_load_dword a{aDUM}, v{vL16}, {srd(S_W1)}, s{S_W1+2} offen")
            nf = 4
        k(f"{le}:")
        k.vm_note(nf, "pst")

    def pack_flag(off=0):
        k(f"""
        s_lshl_b32 s{sT5}, s2, 7
        s_add_u32 s{sT5}, s{sT5}, {WS_PD + off}
        s_cmp_lg_u32 s{sW}, 0
        s_cselect_b32 s{sT5}, {OOB}, s{sT5}
        v_mov_b32 v{vT1}, s{sTAG}
        s_mov_b64 exec, 1
        """)
        k.vmem(f"buffer_store_dword v{vT1}, v{vL16}, {srd(S_WS)}, s{sT5} offen sc1")
        k("s_mov_b64 exec, -1")

    def pack_check_issue(off, va, vd, sb):
        with k.atomic():
            k(f"v_and_b32 v{va}, 1, v{vLANE}")
            k(f"v_lshlrev_b32 v{va}, 7, v{va}")
            k(f"v_lshrrev_b32 v{vd}, 1, v{vLANE}")
            k(f"v_and_b32 v{vd}, 7, v{vd}")
            k(f"s_lshl_b32 s{sT5}, s{sCT if off else sC}, 3")
            k(f"v_add3_u32 v{va}, v{va}, v{vd}, s{sT5}")
            if WP:
                k("s_mov_b32 exec_lo, 0")
                k(f"v_and_b32 v{va}, 0xbf, v{va}")
                k("s_mov_b32 exec_lo, -1")
            k(f"v_min_u32 v{vd}, 29, v{vLANE}")
            k(f"s_mul_i32 s{sT5}, s{sW}, 56")
            k(f"s_lshr_b32 s{sb}, s{sCT}, 1")
            k(f"s_add_u32 s{sT5}, s{sT5}, s{sb}")
            k(f"s_sub_u32 s{sT5}, s{sT5}, 64")
            k(f"v_lshl_add_u32 v{vd}, v{vd}, 2, s{sT5}")
            k("s_mov_b32 vcc_lo, 0xffff")
            k("s_mov_b32 vcc_hi, -1")
            k(f"s_mov_b32 s{sb}, {WS_PD + off}")
            k(f"v_cndmask_b32 v{va}, v{vd}, v{va}, vcc")
            k(f"v_lshlrev_b32 v{va}, 7, v{va}")
            k.vmem(f"buffer_load_dword v{vd}, v{va}, {srd(S_WS)}, s{sb} offen sc1", "pc")

    def pack_check(va, vd, sb):
        lp, ok = k.label("L_pc"), k.label("L_pcok")
        with k.atomic():
            k.vm_wait("pc")
            k(f"{lp}:")
            k(f"v_cmp_ne_u32 vcc, s{sTAG}, v{vd}")
            k(f"s_cbranch_vccz {ok}")
            k(f"buffer_load_dword v{vd}, v{va}, {srd(S_WS)}, s{sb} offen sc1")
            k("s_waitcnt vmcnt(0)")
            k(f"s_sub_u32 s{sBUD}, s{sBUD}, 1")
            k(f"s_cbranch_scc0 {lp}")
            k(f"s_mov_b32 s{sBUD}, 0")
            k(f"{ok}:")

    aPK = 128

    def park_addr(va, base, shift):
        k(f"v_bfe_u32 v{va}, v{vLANE}, 4, 1")
        k(f"v_lshlrev_b32 v{va}, 10, v{va}")
        k(f"v_lshrrev_b32 v{va+1}, 5, v{vLANE}")
        k(f"v_mul_u32_u24 v{va+1}, 0x120, v{va+1}")
        k(f"v_add_u32 v{va}, v{va}, v{va+1}")
        k(f"v_and_b32 v{va+1}, 0xd8, v{vTR0}")
        k(f"s_lshl_b32 s{sT5}, s{sW}, {shift}")
        k(f"s_add_u32 s{sT5}, s{sT5}, {base}")
        k(f"v_add3_u32 v{va}, v{va}, v{va+1}, s{sT5}")
        k(f"v_xor_b32 v{va+1}, 32, v{va}")

    def park_kv(va):
        for r in range(4):
            for blk in range(4):
                for hh in range(2):
                    k.lds(f"ds_read_b64_tr_b16 {ar(aPK + 16*(r ^ 2) + 4*blk + 2*hh, 2)}, v{va + (blk & 1)} offset:{r*16384 + (blk >> 1)*2048 + hh*512}")

    def park_q(va):
        for r in range(4):
            for b in range(2):
                for hh in range(2):
                    k.lds(f"ds_read_b64_tr_b16 {ar(aPK + 64 + 8*r + 4*b + 2*hh, 2)}, v{va + b} offset:{r*8192 + hh*512}")

    def unpark(va, js):
        for j in js:
            with k.atomic():
                if j in (js[0], 16):
                    k(f"s_lshl_b32 s{sT5}, s{sW}, {11 if j >= 16 else 12}")
                    if j >= 16:
                        k(f"s_add_u32 s{sT5}, s{sT5}, {R1}")
                    k(f"v_add_u32 v{va}, s{sT5}, v{vL16}")
                off = ((j - 16) // 2) * 8192 + (j % 2) * 1024 if j >= 16 else ((j // 4) ^ 2) * 16384 + (j % 4) * 1024
                k.lds(f"ds_write_b128 v{va}, {ar(aPK + 4*j, 4)} offset:{off}", ("up", j // 4))

    def rot_setup():
        with k.atomic():
            k(f"s_lshr_b32 s{sD0}, s{sC}, 1")
            k(f"s_xor_b32 s{sD0}, s{sD0}, s{sG}")
            k(f"s_and_b32 s{sD0}, s{sD0}, 1")
            k(f"s_and_b32 s{sD1}, s{sC}, 1")
            k(f"s_lshl1_add_u32 s{sD0}, s{sD0}, s{sD1}")
            for q in range(4):
                k(f"s_add_u32 s{sD1}, s{sD0}, {q}")
                k(f"s_and_b32 s{sD1}, s{sD1}, 3")
                k(f"s_lshl_b32 s{sD1}, s{sD1}, 12")
                k(f"s_add_u32 s{S_A+q}, s{sD1}, {G_X2}")

    def wq_raw():
        k(f"s_lshl_b32 s{sL1}, s{sW}, 11")
        with k.atomic():
            k(f"v_and_b32 v{vT2}, 3, v{vP}")
            k(f"v_lshrrev_b32 v{vDM}, 4, v{vLANE}")
            k(f"v_lshl_add_u32 v{vT2}, v{vDM}, 3, v{vT2}")
            k(f"s_movk_i32 s{sD3}, 3072")
            k(f"v_mad_u32_u24 v{vDM}, v{vT2}, s{sD3}, v{vCH}")
        for r in range(4):
            for hh in range(2):
                k.dma(S_WQKV, vDM, sRB + r, hh * 4 * 3072, sL1, R1 + r * 8192 + hh * 1024, "wq")

    def async_check(tag, soff, imm):
        ok = k.label("L_aok")
        with k.atomic():
            k.vm_wait(tag)
            k(f"v_cmp_ne_u32 vcc, s{sTAG}, v{vT0}")
            k(f"s_cbranch_vccz {ok}")
            k.save_vm()
            k.poll(soff, imm, False)
            k.restore_vm()
            k(f"{ok}:")

    CSK = vT0
    gA = None
    for layer in range(1 if o.get("one") else 2):
        L1 = layer == 0
        sc = o.get("sc1", 0x04)
        psc = lambda i: bool(sc >> (4 * layer + i) & 1)
        PRE = o.get("pre", 8)
        k.fast = ["", " nt", " sc0", " sc0 nt"][o.get("ntst", 4) >> (2 * layer) & 3]

        def w2t_loads():
            for j in range(56):
                with k.atomic():
                    if j == 0:
                        k(f"s_lshl2_add_u32 s{sPDB}, s{sCT}, s{sW}")
                        k(f"s_mul_i32 s{sPDB}, s{sPDB}, 57344")
                        k(f"s_add_u32 s{sPDB}, s{sPDB}, {WS_W2T}")
                    if j % 4 == 0:
                        k(f"s_add_u32 s{sJ0}, s{sPDB}, {j*1024}")
                    k.vmem(f"buffer_load_dwordx4 {ar(4*j,4)}, v{vL16}, {srd(S_WS)}, s{sJ0} offen offset:{(j%4)*1024} sc1", ("w2t", j // 4))

        w2 = k.rec(w2t_loads) if L1 else []

        def takew2(name, dflt, keep=24):
            nonlocal w2
            n = min(o.get(name, dflt), len(w2) - keep) if L1 else 0
            r, w2 = w2[:n], w2[n:]
            return r

        def kv_consts():
            k.get(vPQ, cCSA)
            k.lds(f"ds_read2_b32 {vr(CSK,2)}, v{vPQ} offset0:0 offset1:16", "cs")
            k.lds(f"ds_read2_b32 {vr(CSK+2,2)}, v{vPQ} offset0:32 offset1:48", "cs")
        if L1:
            CSA = vACC + 32
            k(f"s_and_b32 s{sT0}, s{sW}, 1")
            k(f"s_lshl_b32 s{sT0}, s{sT0}, 5")
            k(f"v_xor_b32 v{vPQ+3}, s{sT0}, v{vTR0}")
            k(f"s_lshr_b32 s{sT0}, s{sW}, 1")
            k(f"s_lshl_b32 s{sT0}, s{sT0}, 11")
            k(f"v_add_u32 v{vPQ+2}, s{sT0}, v{vPQ+3}")
            k(f"s_lshl_b32 s{sT1}, s{sW}, 5")
            k(f"v_xor_b32 v{vPQ+6}, s{sT1}, v{vQ0}")

            def wo_pack():
                T_ = vACT + 96
                for hh in range(2):
                    k.lds(f"ds_read_b64_tr_b16 {vr(T_+2*hh,2)}, v{vPQ+6} offset:{R0 + 49152 + hh*2048}", "wp")
                k.play([lambda: None] * 2)
                with k.atomic():
                    k.ds_wait("wp")
                    k.vmem(f"buffer_store_dwordx4 {vr(T_,4)}, v{vL16}, {srd(S_WS)}, s{sPDA} offen sc1", "pst")
            if o.get("diags"): k.stamp("setup")
            PADP = o.get("padp", 0)
            if W0P == 1:
                k.play(w0_[nw0:])
            if PADP == 1:
                k("PADCALL")
            if W0P == 2:
                k.play(w0_[nw0:])
            if o.get("diags"): k.stamp("w0b")
            own_stats()
            if o.get("diags"): k.stamp("own")
            nx0 = o.get("nx0", 0)
            xslot(0, range(nx0))
            if o.get("pads", 2048) and PADP == 0:
                k("PADCALL")
            if o.get("diags"): k.stamp("pad")
            if o.get("pf1", 0):
                pack_finish(vACT + 64, R1, 12, False, "pu", sPDB)
            xslot(0, range(nx0, 8)); xslot(1, range(o.get("x1pre", 4)))
            if o.get("diags"): k.stamp("xiss")
            if UF == 1 and not o.get("pf1", 0):
                pack_finish(vACT + 64, R1, 12, False, "pu", sPDB)
            if o.get("diags"): k.stamp("pfin")
            xread(0)
            def rnd_begin(r):
                k.vm_wait(("wkv", r))
                k.barrier(True)
                fr = []
                for ks in range(4 * r, 4 * r + 4):
                    fr.append(dict(addr=vPQ + 2, offs=(R0 + ks * 4096, R0 + ks * 4096 + 1024), mf=[(None, None, False, ks == 0, None)]))
                for ks in range(4 * r, 4 * r + 4):
                    for pr in range(2):
                        for b in range(2):
                            base = R0 + ks * 4096 + pr * 2048
                            fr.append(dict(addr=(vTR0, vTR1)[b], offs=(base, base + 1024), mf=mf2(vACC + 16 * pr + 8 * b, ks, False, False)))
                return k.gemm_begin(fr)
            wq = k.rec(wq_raw)
            xslot(1, range(o.get("x1pre", 4), 8))
            g = rnd_begin(0)
            k.stamp("x0")
            f = {}
            if WP:
                w1_ = k.rec(lambda: wkv_raw(1))
                spread(f, w1_[:2], 0, 2); spread(f, k.rec(wo_pack), 0, 1); spread(f, w1_[2:] + k.rec(lambda: xslot(2)), 6, 3)
            else:
                spread(f, k.rec(lambda: (wkv_raw(1), xslot(2))), 0, 3)
            spread(f, k.rec(lambda: xread(1)), 30, 1, 2); k.gemm_run(g, f)
            k.stamp("r0")
            g = rnd_begin(1)
            f = {}
            if UF == 1:
                spread(f, k.rec(pack_flag), 1, 0)
            spread(f, k.rec(lambda: (wkv_raw(2), xslot(3))), 0, 3); spread(f, k.rec(lambda: xread(2)), 31, 1, 2); k.gemm_run(g, f)
            k.stamp("r1")
            g = rnd_begin(2)
            nq = o.get("nq", 6)
            if UF == 2:
                pu_ = k.rec(lambda: packU_issue(L_XST + 4096, sD0, sD1, sD2, sD3, sJ0, vDM, sPDB, 14))
                wq = pu_ + wq if o.get("pufirst", 1) else wq + pu_
            f = {}; spread(f, k.rec(lambda: (wkv_raw(3), st0_issue())) + wq[:nq], 0, 3); spread(f, k.rec(lambda: xread(3)), 31, 1, 2); k.gemm_run(g, f)
            k.stamp("r2")
            g = rnd_begin(3)
            f = {}
            spread(f, k.rec(st0_use), 0, 1)
            spread(f, k.rec(lambda: cs_put(0, sW)), 8, 0)
            spread(f, k.rec(stats_b), 10, 1)
            spread(f, k.rec(stats_scale), 24, 1)
            spread(f, k.rec(lambda: park_addr(vRES + 2, R0, 12)), 15, 0)
            pn = k.rec(lambda: (packN_issue(), k.vmem(f"buffer_load_dword a{aDUM}, v{vL16}, {srd(S_W1)}, s{S_W1+2} offen", "pn")))
            pci = k.rec(lambda: pack_check_issue(0, vRES, vRES + 1, sPDB)) if UF == 1 else []
            if o.get("w2e", 8):
                spread(f, wq[nq:] + pci, 1, o.get("r3s", 5))
            else:
                spread(f, wq[nq:] + pn + pci, 1, o.get("r3s", 5))
            bg = []
            k.gemm_run(g, f)
            k.stamp("A.kv")
            k.barrier()
            kv_consts()
        else:
            k.poll_b(sFXp, G_FX2)
            k.stamp("A.poll")
            al = k.rec(lambda: act_loads(G_X2, ring, True))
            PA = o.get("prea", 4)
            k.play(al[:PA])
            k(f"s_add_u32 s{sTAG}, s{sTAG}, 1")
            fill = {}
            sl = k.rec(lambda: stat_loads(G_ST2))
            e = spread(fill, al[PA:12] + [lambda: k.play(sl[:2]), sl[2]], 0, 4)
            for i_ in range(12, 32):
                pos = max(12 * (i_ // 2 - 6) + 11 + 4 * (i_ & 1), e)
                spread(fill, [al[i_]], pos, 1)
                e = pos + 3
            e2 = spread(fill, k.rec(lambda: (stat_sum(), stats_finalize(True), stats_b())), 60, 1.3)
            e2 = spread(fill, k.rec(stats_scale), e2 + 6, 1.3)
            spread(fill, k.rec(kv_consts), e2, 1.3)
            spread(fill, k.rec(lambda: lin_dma(PK_WO + 32768, R2, 8, "wo", True)), e, o.get("wos", 5))
            if o.get("diagc"):
                for ix in (0, 23, 47, 95, 143):
                    spread(fill, k.rec(lambda: k.stamp(f"A.m{ix}", True)), ix, 0)
            k.gemm_run(gA, fill)
            k.stamp("A.kv")
            k("s_barrier")
            bg = []
        k("s_nop 2")
        k.get(vWB + 22, cKW1 if L1 else cKW)
        k.get(vWB + 23, cKR1 if L1 else cKR)
        k.ds_all()
        PK, PV, TMP = vPQ, vACC, vWB + 24
        KVA = vACC + 16

        def kv_epi():
            for h in range(2):
                for rb in range(2):
                    phi_block(vACC + 8*h + 4*rb, NM_B + 4*rb, CSK + h, RL_B + 4*rb, RS_B + 4*rb, PK + 4*h + 2*rb, TMP, "b")
            for h in range(2):
                for rb in range(2):
                    a = vACC + 16 + 8*h + 4*rb
                    c2, m = bcast(CSK + 2 + h, 1, 3)
                    for p in range(2):
                        k(f"v_pk_fma_f32 {vr(a+2*p,2)}, {vr(NM_B+4*rb+2*p,2)}, {c2}, {vr(a+2*p,2)}{m}")
                    for p in range(2):
                        k(f"v_pk_mul_f32 {vr(a+2*p,2)}, {vr(a+2*p,2)}, {vr(RS_B+4*rb+2*p,2)}")
                    for p in range(2):
                        k(f"v_cvt_pk_bf16_f32 v{PV+4*h+2*rb+p}, v{a+2*p}, v{a+2*p+1}")
                    if rb == 0:
                        k(f"v_mfma_f32_16x16x32_bf16 {vr(vACC+8+4*h,4)}, {vr(PK+4*h,4)}, {ar(aONES,4)}, 0")
                if h == 0:
                    pass
        if L1:
            we = takew2("w2e", 8)
            ke = mix(k.rec(kv_epi), k.rec(lambda: park_kv(vRES + 2)), 3)
            if we:
                c0 = o.get("w2c", 40)
                touches(o.get("Te", 6), vWB + 20)
                k.play(ke[:c0])
                pack_check(vRES, vRES + 1, sPDB)
                ke = mix(ke[c0:], we, (135 - c0) // len(we))
            k.play(ke)
        else:
            wod = k.rec(lambda: lin_dma(PK_WO, R1, 8, "wo", True))
            nwo = o.get("nwo", 0)
            k.play(mix(k.rec(kv_epi), wod[:nwo], 100 // max(nwo, 1))); wod = wod[nwo:]
        KRO = [0, 16384, 32768, 49152 if L1 else 36864]
        k.lds(f"ds_write_b128 v{vWB+22}, {vr(vACC+8,4)} offset:{KRO[2]}")
        for h in range(2):
            k(f"v_mfma_f32_16x16x32_bf16 {vr(KVA+4*h,4)}, {vr(PK+4*h,4)}, {vr(PV+4*h,4)}, 0")
        k.lds(f"ds_write_b128 v{vWB+22}, {vr(vACC+12,4)} offset:{KRO[3]}")
        k.get(vWB + 21, cKVS)
        k("s_nop 4")
        for h in range(2):
            k.lds(f"ds_write_b128 v{vWB+22}, {vr(KVA+4*h,4)} offset:{KRO[h]}")
        if L1 and UF == 1:
            k.vm_wait("wq")
        k.barrier()
        for s in range(4):
            k.lds(f"ds_read_b128 {vr(vWB+4*s,4)}, v{vWB+23} offset:{s*1024}", ("kr", s))
        KO = vACC + 32
        k.ds_wait(("kr", 1))
        for p in range(2):
            k(f"v_pk_add_f32 {vr(vWB+2*p,2)}, {vr(vWB+2*p,2)}, {vr(vWB+4+2*p,2)}")
        k.ds_wait(("kr", 3))
        for p in range(2):
            k(f"v_pk_add_f32 {vr(vWB+8+2*p,2)}, {vr(vWB+8+2*p,2)}, {vr(vWB+12+2*p,2)}")
        for p in range(2):
            k(f"v_pk_add_f32 {vr(KO+2*p,2)}, {vr(vWB+2*p,2)}, {vr(vWB+8+2*p,2)}")
        k(f"v_and_b32 v{KO}, 0xffffff00, v{KO}")
        k(f"v_or_b32 v{KO}, s{sT8}, v{KO}")
        k(f"s_mov_b64 exec, s[{sKM}:{sKM+1}]")
        k.vmem(f"buffer_store_dwordx4 {vr(KO,4)}, v{vWB+21}, {srd(S_WS)}, s{sKVP} offen sc1", "kvst")
        k("s_mov_b64 exec, -1")
        k.stamp("A.kvpub")
        fill = {}
        fr = []
        CSQ = vACC + 24

        def q_consts():
            k.get(vT0, cCSB)
            for h in range(2):
                k.lds(f"ds_read_b128 {vr(CSQ+4*h,4)}, v{vT0} offset:{(4+h)*64}")
        if L1:
            if UF == 1:
                if not o.get("w2e", 8):
                    pack_check(vRES, vRES + 1, sPDB)
            else:
                pack_finish(vWB, L_XST + 4096, 14, False, "pu", sPDB)
                k.vm_wait("pn")
                k("s_barrier")
            if not o.get("w2e", 8):
                packN_finish(vWB)
            park_addr(vPQ + 4, R1, 11)
            if o.get("diag"): k.stamp("q.pf")
            k(f"v_add_u32 v{vPQ}, {R1}, v{vTR0}")
            k(f"v_add_u32 v{vPQ+1}, {R1}, v{vTR1}")
            k(f"s_and_b32 s{sT0}, s{sW}, 1")
            k(f"s_lshl_b32 s{sT1}, s{sT0}, 5")
            k(f"v_xor_b32 v{vPQ+2}, s{sT1}, v{vPQ}")
            for j in range(16):
                fr.append(dict(addr=vPQ + 2, offs=(j * 2048, j * 2048 + 1024), mf=[(None, None, False, j == 0, None)]))
            for ks in range(16):
                for b in range(2):
                    fr.append(dict(addr=vPQ + b, offs=(ks * 2048, ks * 2048 + 1024), mf=mf2(vACC + 8 * b, ks, True, False)))
            wor = k.rec(lambda: lin_dma(PK_WO, R0, 16, "wo", True)) if WP else k.rec(wo_raw)
            e = spread(fill, bg + k.rec(res_load), 0, 1)
            if o.get("arm", 0):
                e = spread(fill, k.rec(lambda: arm(o.get("arm", 0))), e, 2)
            e = spread(fill, k.rec(lambda: touches(o.get("Tq", 0))), e, 1)
            e = spread(fill, wor, e, o.get("wors", 2))
            spread(fill, takew2("w2q", 8), e, 4)
            spread(fill, k.rec(lambda: park_q(vPQ + 4)), 20, 3)
            k.gemm(fr, fill)
            if o.get("diag"): k.stamp("q.mm")
            cs_put(4, sT0)
            if UF == 2:
                k.vm_wait("pst")
            k.barrier()
            if o.get("diag"): k.stamp("q.bar")
            q_consts()
            if UF == 2:
                pack_flag()
        else:
            q_consts()
        lp2, done2 = k.label("L_kp"), k.label("L_kd")
        SM = vWB + 8
        ZL = vACT + 32

        def kv_loads(track):
            ins = [(f"buffer_load_dwordx4 {vr(ZL,4)}, v{vT2}, {srd(S_WS)}, s{sKVC} offen sc1", "zl")]
            for j in range(8):
                ins.append((f"buffer_load_dwordx4 {vr(vACT+4*j,4)}, v{vL16}, {srd(S_WS)}, s{sKVC if j < 4 else sT2} offen offset:{(j%4)*1024} sc1", ("kv", j)))
            for i_, t_ in ins:
                if track:
                    k.vmem(i_, t_)
                else:
                    k(i_)
        if L1:
            w1a = k.rec(lambda: (lin_dma(PK_W1A, R1, 16, "w1a"), lin_dma(PK_W1B, R3, 6, "w1c2")))
        else:
            w1a = []
        k.get(vT2, cZL)
        k(f"s_add_u32 s{sT2}, s{sKVC}, 4096")
        kl = k.rec(lambda: kv_loads(True))
        QS = vACC if L1 else QA
        ph = k.rec(lambda: [phi_block(QS + 8*h + 4*rb, NM_A + rb, CSQ + 4*h, RL_A + rb, RS_A + rb, vPQ + 4*h + 2*rb, vWB, "a")
                            for h in range(2) for rb in range(2)])
        if L1:
            k.play(kl[:5])
            k.ds_all()
            if o.get("diag"): k.stamp("q.kl5")
            na = o.get("w1a0", 4) if UF == 1 else 0
            k.play(mix(ph, kl[5:] + w1a[:na], o.get("phr", 10)))
            w1a = w1a[na:]
        else:
            def unpark_w1():
                for j in range(16):
                    k.lds(f"ds_write_b128 v{vT3}, {vr(vPARK+4*j,4)} offset:{j*1024}")
            k(f"s_lshl_b32 s{sT5}, s{sW}, 14")
            k(f"v_add_u32 v{vT3}, s{sT5}, v{vL16}")
            uw = k.rec(unpark_w1)
            if late:
                nl = o.get("nul", 6)
                f = {}; spread(f, uw[:nl], 1, 2 * len(late) / max(nl, 1)); uw = uw[nl:]
                k.gemm(late, f)
                k("s_barrier")
                k("s_nop 3")
            k.play(wod[:4]); wod = wod[4:]
            k.ds_all()
            nu = o.get("nu", 16)
            k.play(mix(mix(ph, uw[:nu], 5), wod, 10))
            k.play(mix(kl, uw[nu:], 1))
        k.stamp("A.q")
        if L1:
            k("PADCALL1")
        k.get(vT1, cXW)
        k.get(vWB + 18, cZW)
        k.get(vWB + 16, cXR)
        k.get(vWB + 17, cZR)
        k(f"s_branch {lp2}_s")
        k(f"{lp2}:")
        kv_loads(False)
        k("s_waitcnt vmcnt(0)")
        k(f"{lp2}_s:")
        k.vm_wait("zl")
        k(f"""
        v_mov_b32 v{SM+4}, v{ZL}
        v_mov_b32 v{SM+5}, v{ZL}
        v_permlane32_swap_b32 v{ZL}, v{ZL+1}
        v_permlane32_swap_b32 v{ZL+2}, v{ZL+3}
        v_add_f32 v{ZL}, v{ZL}, v{ZL+1}
        v_add_f32 v{ZL+2}, v{ZL+2}, v{ZL+3}
        s_nop 1
        v_permlane16_swap_b32 v{ZL}, v{ZL+2}
        v_add_f32 v{ZL}, v{ZL}, v{ZL+2}
        s_nop 1
        v_add_f32_dpp v{ZL}, v{ZL}, v{ZL} row_ror:4 row_mask:0xf bank_mask:0xf
        s_nop 1
        v_add_f32_dpp v{ZL}, v{ZL}, v{ZL} row_ror:8 row_mask:0xf bank_mask:0xf
        v_cvt_pk_bf16_f32 v{ZL}, v{ZL}, v{ZL}
        ds_write_b16 v{vWB+18}, v{ZL}
        """)
        for j in range(0, 8, 2):
            a, b = vACT + 4*j, vACT + 4*j + 4
            k.vm_wait(("kv", j + 1))
            k(f"v_and_b32 v{SM+4}, v{SM+4}, v{a}")
            k(f"v_and_b32 v{SM+4}, v{SM+4}, v{b}")
            k(f"v_or3_b32 v{SM+5}, v{SM+5}, v{a}, v{b}")
            if j == 0:
                for p in range(2):
                    k(f"v_pk_add_f32 {vr(SM+2*p,2)}, {vr(a+2*p,2)}, {vr(b+2*p,2)}")
            else:
                for p in range(2):
                    k(f"v_pk_add_f32 {vr(a+2*p,2)}, {vr(a+2*p,2)}, {vr(b+2*p,2)}")
                for p in range(2):
                    k(f"v_pk_add_f32 {vr(SM+2*p,2)}, {vr(SM+2*p,2)}, {vr(a+2*p,2)}")
        k(f"""
        ds_write_b128 v{vT1}, {vr(SM,4)}
        v_xor_b32 v{SM+4}, s{sT8}, v{SM+4}
        v_xor_b32 v{SM+5}, s{sT8}, v{SM+5}
        v_or_b32 v{SM+4}, v{SM+4}, v{SM+5}
        v_and_b32 v{SM+4}, 0xff, v{SM+4}
        v_cmp_ne_u32 vcc, 0, v{SM+4}
        s_cbranch_vccz {done2}
        s_waitcnt lgkmcnt(0)
        s_sub_u32 s{sBUD}, s{sBUD}, 4
        s_cbranch_scc0 {lp2}
        s_mov_b32 s{sBUD}, 0
        {done2}:
        """)
        k.stamp("A.kvget")
        if L1:
            touches(o.get("Tk", 0))
        n1 = o.get("w1a1", 4) if L1 and UF == 1 else 0
        if L1 and UF == 2:
            pack_check_issue(0, vTR0, vTR1, sPDB)
        k.play(w1a[:n1]); w1a = w1a[n1:]
        k.barrier(True)
        for h in range(2):
            k.lds(f"ds_read_b64 {vr(vWB+4*h+2,2)}, v{vWB+17} offset:{h*32}", "zf")
        for j in range(4):
            k.lds(f"ds_read_b128 {vr(vACT+4*j,4)}, v{vWB+16} offset:{1024*j}")
        k.ds_wait("zf")
        OA = vACC + 16
        for rb in range(2):
            for h in range(2):
                d = OA + 16*rb + 8*h
                k(f"v_mfma_f32_16x16x16_bf16 {vr(d+4,4)}, {vr(vWB+4*h+2,2)}, {vr(vPQ+4*h+2*rb,2)}, 0")
        k.ds_all()
        for h in range(2):
            for p in range(2):
                k(f"v_pk_add_f32 {vr(vACT+8*h+2*p,2)}, {vr(vACT+8*h+2*p,2)}, {vr(vACT+8*h+4+2*p,2)}")
        for h in range(2):
            for p in range(2):
                k(f"v_cvt_pk_bf16_f32 v{vWB+4*h+p}, v{vACT+8*h+2*p}, v{vACT+8*h+2*p+1}")
        for rb in range(2):
            for h in range(2):
                d = OA + 16*rb + 8*h
                k(f"v_add_f32 v{d+4}, s{sEPS}, v{d+4}")
        for rb in range(2):
            for h in range(2):
                d = OA + 16*rb + 8*h
                k(f"v_mfma_f32_16x16x16_bf16 {vr(d,4)}, {vr(vWB+4*h,2)}, {vr(vPQ+4*h+2*rb,2)}, 0")
        for rb in range(2):
            for h in range(2):
                d = OA + 16*rb + 8*h
                k(f"v_rcp_f32 v{d+4}, v{d+4}")
        k("s_nop 1")
        for rb in range(2):
            for h in range(2):
                d = OA + 16*rb + 8*h
                for p in range(2):
                    k(f"v_pk_mul_f32 {vr(d+2*p,2)}, {vr(d+2*p,2)}, {vr(d+4,2)} op_sel_hi:[1,0]")
                for p in range(2):
                    k(f"v_cvt_pk_bf16_f32 v{vPQ+4*rb+2*h+p}, v{d+2*p}, v{d+2*p+1}")
        k.stores([f"buffer_store_dwordx4 {vr(vPQ+4*rb,4)}, v{vL16}, {srd(S_WS)}, s{sOST+rb} offen" for rb in range(2)], psc(0))
        nb = o.get("w1a_pre1", 6) if L1 else o.get("w1a_pre", 0)
        if L1 and UF == 2:
            pack_check(vTR0, vTR1, sPDB)
        k.play(w1a[:nb])
        if L1:
            for s_ in range(2):
                for p in range(2):
                    k(f"v_permlane16_swap_b32 v{vRES+4*s_+p}, v{vRES+4*s_+2+p}")
        urs = k.rec(lambda: unpack_res(vACC))
        fr = []
        for ks in range(16):
            for f in range(4):
                mf = [(vACC + 4 * f, vACT + 4 * ks, True, False, ("act", ks))]
                if L1 and WP:
                    fr.append(dict(addr=vL16, offs=(R0 + ks * 4096 + f * 1024,), mf=mf))
                elif L1:
                    fr.append(dict(addr=vQ0 + f, offs=(R0 + ks * 4096, R0 + ks * 4096 + 2048), mf=mf))
                else:
                    fr.append(dict(addr=vTR0, offs=(ks * 4096 + f * 1024,), mf=mf))
        if L1:
            k("PADCALL2")
        k.poll_prep(15)
        k.flag(sFOo, G_FO)
        k.poll_a(sFOp, G_FO)
        g = k.gemm_begin(fr, 7)
        k.play(urs)
        k.stamp("A.opub")
        k.poll_b(sFOp, G_FO)
        k.stamp("B.poll")

        def b_loads():
            for ks in range(16):
                with k.atomic():
                    if ks % 4 == 0:
                        k(f"s_add_u32 s{sT2}, s{sBACT}, {G_O + ks*1024}")
                    k.vmem(f"buffer_load_dwordx4 {vr(vACT+4*ks,4)}, v{vL16}, {srd(S_WS)}, s{sT2} offen offset:{(ks%4)*1024} sc1", ("act", ks))
        bl = k.rec(b_loads)
        PB = o.get("preb", PRE)
        k.play(bl[:PB])
        fill = {}
        e = spread(fill, bl[PB:], 0, 3)
        e = spread(fill, w1a[nb:], e, o.get("w1st", 3))
        if L1:
            e = spread(fill, k.rec(lambda: touches(o.get("Tb", 1))), e, 1)
        spread(fill, takew2("w2b", 0), e, 4)
        k.gemm_run(g, fill)
        k.stamp("B.mm")
        k(f"v_add_u32 v{vTR1}, {R1}, v{vL16}")
        k("s_nop 6")
        for f in range(4):
            for p in range(2):
                k(f"v_cvt_pk_bf16_f32 v{vRES+2*f+p}, v{vACC+4*f+2*p}, v{vACC+4*f+2*p+1}")
        publish_x(G_X1, G_ST1, G_FX1, psc(1))
        k.play(takew2("w2x", 0))
        k.flag(sFXo, G_FX1)
        if not L1:
            k.poll_a(sFXp, G_FX1)
        k.stamp("B.pub")
        if L1 and o.get("w2e", 8) and not WP:
            k(f"s_lshl2_add_u32 s{sD1}, s{sDH}, s{sW}")
            k(f"s_cmp_lg_u32 s{sD1}, 3")
            k("s_cbranch_scc1 L_nfskip")
            k(f"s_lshl_b32 s{sT5}, s{sG}, 12")
            for f in range(4):
                k(f"v_add_u32 v{vWB+16+f}, s{sT5}, v{vQ0+f}")
            for f in range(4):
                for hh in range(2):
                    k(f"ds_read_b64_tr_b16 {vr(vACC+4*f+2*hh,2)}, v{vWB+16+f} offset:{hh*2048}")
            k(f"s_add_u32 s{sT5}, s{sT5}, s{sPKB}")
            k(f"s_add_u32 s{sT5}, s{sT5}, {PK_WO}")
            k("s_waitcnt lgkmcnt(0)")
            for f in range(4):
                k(f"buffer_store_dwordx4 {vr(vACC+4*f,4)}, v{vL16}, {srd(S_WS)}, s{sT5} offen offset:{f*1024} sc1")
            k("L_nfskip:")
        k("s_barrier")
        w1c2 = k.rec(lambda: lin_dma(PK_W1B + 24576, R0 if L1 else R1, 6, "w1c2"))
        if L1 and not o.get("w2e", 8):
            pack_flag(0x8000)
        nc = o.get("w1c2_pre1", 0) if L1 else o.get("w1c2_pre", 0)
        k.play(w1c2[:nc])
        EU = o.get("eu", 8)
        if L1:
            eup = k.rec(lambda: unpark(vPQ + 1, list(range(EU)))) if EU else []
            k(f"s_lshl_b32 s{sT2}, s{sW}, 10")
            k(f"v_add_u32 v{vPQ}, s{sT2}, v{vTR1}")
            fr = []
            for j in range(16):
                fr.append(dict(addr=vPQ, offs=(j * 4096,), mf=[(None, None, False, j == 0, None)]))
            k.gemm(fr, D=7)
            k.play(eup)
            k("s_nop 5")
            cs_put(6, sW)
        C2 = vACC + 32
        vC1, vC2, vCc, vCd = (vTR1 if L1 else vL16), vDM, vP, vCH
        k(f"v_add_u32 v{vC2}, {R3}, v{vL16}")
        if L1:
            k(f"s_min_u32 s{sPDA}, s{sW}, 2")
            k(f"s_lshl_b32 s{sT2}, s{sPDA}, 10")
            k(f"v_add_u32 v{vCd}, s{sT2}, v{vL16}")
            k(f"v_add_u32 v{vCc}, {R3}, v{vCd}")
        NX = o.get("nx1", 0) if L1 else o.get("nx", 0)
        INIT2 = not L1 and NX == 0
        f2 = []
        fcs = [dict(addr=vCc if ks < 8 else vCd, offs=((ks % 8) * 3072,), mf=[(None, None, False, ks == 0, None)], late=ks >= 8, cs=True) for ks in range(16)]
        for ks in range(16):
            if L1 and ks in (8, 9, 10, 11):
                f2 += fcs[8 + 2 * (ks - 8):10 + 2 * (ks - 8)]
            for b in range(3):
                f2.append(dict(addr=vC2 if ks < 8 else vL16 if L1 else vTR1, offs=((ks % 8) * 3072 + b * 1024,),
                               mf=mf2(C2 + 8 * b, ks, True, False, False if INIT2 else None), late=ks >= 8))
        fr = []
        XS0 = o.get("xs0", 2)
        for ks in range(16):
            if L1 and ks in (4, 6, 8, 10):
                fr += fcs[ks - 4:ks - 2]
            if ks >= XS0:
                n_ = (NX * (ks - XS0 + 1)) // (16 - XS0) - (NX * (ks - XS0)) // (16 - XS0)
                fr += f2[:n_]; f2 = f2[n_:]
            for f in range(4):
                fr.append(dict(addr=vC1, offs=(ks * 4096 + f * 1024,), mf=mf2(vACC + 8 * f, ks, True, True)))
        M1 = sum(len(f["mf"]) for f in fr)
        fr += f2
        NM = sum(len(f["mf"]) for f in fr)
        tl = [i for i, f in enumerate(fr) if f.get("late")][0]
        MB = sum(len(f["mf"]) for f in fr[:tl - 6]) - 4
        if L1:
            tc = [i for i, f in enumerate(fr) if f.get("cs")][-1]
            MC = sum(len(f["mf"]) for f in fr[:tc + 1])
        if L1:
            k.poll_a(sFXp, G_FX1)
        g = k.gemm_begin(fr)
        k.poll_b(sFXp, G_FX1)
        k.stamp("C.poll")
        CS1 = [vPQ, vPQ + 4, vACC + 56, vQ0]

        def c2_init():
            k.get(vT0, cCSB)
            for b in range(3):
                k.lds(f"ds_read_b128 {vr(C2+8*b+4,4)}, v{vT0} offset:{(10+b)*64}", "cs2")
            for _ in range(4):
                k.play([lambda: None])
            k.ds_wait("cs2")
            for b in range(3):
                for rb in range(2):
                    for j in range(4):
                        k(f"v_mul_f32 v{C2+8*b+4*rb+j}, v{C2+8*b+4+j}, v{NM_A+rb}")

        def relu_block(acc, cs, rb, dst):
            if cs is not None:
                for j in range(4):
                    k(f"v_fmac_f32 v{acc+j}, v{cs+j}, v{NM_A+rb}")
            for p in range(2):
                k(f"v_cvt_pk_bf16_f32 v{dst+p}, v{acc+2*p}, v{acc+2*p+1}")
            for p in range(2):
                k(f"v_pk_max_i16 v{dst+p}, v{dst+p}, 0")

        def cs1_reads():
            k.get(vT2, cCSB)
            for b in range(4):
                k.lds(f"ds_read_b128 {vr(CS1[b],4)}, v{vT2} offset:{(6+b)*64}", "cs")

        def epi1():
            k.ds_wait("cs")
            for s in range(2):
                for rb in range(2):
                    for b in range(2):
                        relu_block(vACC + 16*s + 8*b + 4*rb, CS1[2*s+b], rb, vACC + 16*s + 4*rb + 2*b)
                k.stores([f"buffer_store_dwordx4 {vr(vACC+16*s+4*rb,4)}, v{vL16}, {srd(S_WS)}, s{sH1+rb} offen offset:{s*1024}"
                          for rb in range(2)], psc(2))

        def d_setup():
            if L1:
                with k.atomic():
                    k(f"s_lshl_b32 s{sT1}, s{sW}, 13")
                    k(f"s_add_u32 s{sT1}, s{sT1}, s{sGB}")
                with k.atomic():
                    k(f"s_lshl_b32 s{sDK}, s{sW}, 11")
                    k(f"s_add_u32 s{sDK}, s{sDK}, {28*1024}")
                k(f"s_add_u32 s{sT1}, s{sT1}, {G_H + 24*1024}")
                for j in range(4):
                    with k.atomic():
                        k(f"s_add_u32 s{sT0}, s{sW}, {j}")
                        k(f"s_and_b32 s{sT0}, s{sT0}, 3")
                    with k.atomic():
                        k(f"s_lshl2_add_u32 s{sT0}, s{sDH}, s{sT0}")
                        k(f"s_mul_i32 s{sT0}, s{sT0}, 57344")
                    k(f"s_add_u32 s{sRB+j}, s{sT0}, s{sT1}")
            k.poll_prep(7)
        TD = 3 if L1 else o.get("td", 4)
        seq = [(ksl, j) for ksl in range(14 - TD) for j in range(4)] + [(ksl, j) for j in (1, 2, 3, 0) for ksl in range(14 - TD, 14)]
        hb = [0, 0, 0, 0]

        def hload(t):
            ksl, j = seq[t]
            with k.atomic():
                if ksl // 4 != hb[j]:
                    if ksl == 8:
                        k(f"s_sub_u32 s{sRB+j}, s{sRB+j}, s{sDK}")
                    else:
                        k(f"s_add_u32 s{sRB+j}, s{sRB+j}, 4096")
                    hb[j] += 1
                k.vmem(f"buffer_load_dwordx4 {vr(vACT+4*(t%16),4)}, v{vL16}, {srd(S_WS)}, s{sRB+j} offen offset:{(ksl%4)*1024} sc1", ("h", t))
        PC = o.get("prec", PRE)
        al = k.rec(lambda: act_loads(G_X1))
        k.play(al[:PC])
        fill = {}
        sl = k.rec(lambda: stat_loads(G_ST1, vPQ))
        SP = o.get("stp", 0)
        e = spread(fill, al[PC:PC+SP] + [lambda: k.play(sl[:2]), sl[2]] + al[PC+SP:], 0, o.get("cstep", 40) / 10)
        e2 = spread(fill, k.rec(lambda: (stat_sum(vPQ), stats_finalize(False))), 44, 0.9 if INIT2 else 1.3)
        if INIT2:
            spread(fill, k.rec(c2_init), e2 + 1, 0.95)
        if L1:
            spread(fill, k.rec(lambda: k("s_barrier")), 104, 0)
            if o.get("w2e", 8) and not WP:
                spread(fill, k.rec(lambda: pack_flag(0x8000)), 102, 0)
        e = spread(fill, w1c2[nc:], e, 3)
        if L1:
            e = spread(fill, k.rec(lambda: touches(o.get("Tc", 0), vT0)), e, 1)
        spread(fill, k.rec(cs1_reads), M1 - 9, 1)
        if o.get("diagc") and not L1:
            for ix in (0, 31, 63, 95, 127, 151, 175, 199):
                spread(fill, k.rec(lambda: k.stamp(f"C.m{ix}", True)), ix, 0)
        if o.get("diagd"):
            spread(fill, k.rec(lambda: k.stamp("C.mm1")), 127, 0)
        e1 = spread(fill, k.rec(epi1), M1 + 1, 1 / o.get("epr", 4))
        spread(fill, k.rec(lambda: (k.vm_wait("w1c2"), k("s_barrier"))), MB, 0)
        assert e < MB
        e3 = spread(fill, k.rec(d_setup), e1, 1)
        cs2r = k.rec(lambda: [k.lds(f"ds_read_b128 {vr(CS1[b],4)}, v{vT2} offset:{(10+b)*64}") for b in range(3)])
        if not L1 and not INIT2:
            spread(fill, cs2r, e3 + 2, 2)
        if L1:
            def cs2_put():
                k.get(vQ0, cCSA)
                k(f"s_lshl_b32 s{sT5}, s{sPDA}, 6")
                k(f"v_add_u32 v{vQ0}, s{sT5}, v{vQ0}")
                k.lds(f"ds_write_b32 v{vQ0}, a{aCS} offset:{10*64}", "csw")
            assert MC + 6 > e1
            spread(fill, k.rec(cs2_put), MC + 6, 0)
            spread(fill, k.rec(lambda: (k.ds_wait("csw"), k("s_barrier"))), MC + 14, 0)
            spread(fill, cs2r, MC + 16, 2)
        pf = min(e1 + (o.get("fl11", 50) if L1 else o.get("fl1", 20)), NM - 2)
        spread(fill, k.rec(lambda: k.flag(sFHo, G_FH)), pf, 1)
        NE = o.get("ne1", 0) if L1 else o.get("ne", 6)
        pp = NM - 1 if NE == 0 else NM - 3 * NE - o.get("ppd", 18)
        assert pp > pf
        spread(fill, k.rec(lambda: k.vmem(f"buffer_load_dword v{vT0}, v{vT3}, {srd(S_WS)}, s{sFHp} offen offset:{G_FH} sc1", "p1")), pp, 1)
        if NE:
            spread(fill, k.rec(lambda: async_check("p1", sFHp, G_FH)), NM - 3 * NE - 1, 1)
            spread(fill, k.rec(lambda: [hload(t) for t in range(NE)]), NM - 3 * NE, 3)
        if L1:
            wc = takew2("nw2", 24, 24 - EU)
            spread(fill, wc, e, (pp - 1 - e) / max(len(wc), 1))
        k.gemm_run(g, fill)
        k.stamp("C.mm2")
        HO = vWB + 16
        LA = o.get("dla1", 10) if L1 else o.get("dla", 10)
        k("s_nop 3")
        k.ds_all()
        epi2 = k.rec(lambda: [relu_block(C2 + 8*b + 4*rb, None if INIT2 else CS1[b], rb, HO + 8*rb + 2*b) for b in range(3) for rb in range(2)])
        h2sc = psc(2) and not o.get("h2plain", 1)
        its = []
        for rb in range(2):
            its.append(f"buffer_store_dwordx4 {vr(HO+8*rb,4)}, v{vL16}, {srd(S_WS)}, s{sH2+rb} offen")
            its.append(f"buffer_store_dwordx2 {vr(HO+8*rb+4,2)}, v{vL16}, {srd(S_WS)}, s{sH3+rb} offen")
        tail = []
        up = []
        if L1:
            def park_w1():
                with k.atomic():
                    k(f"s_lshl_b32 s{sT5}, s{sW}, 14")
                    k(f"s_add_u32 s{sT5}, s{sT5}, {R1}")
                    k(f"v_add_u32 v{vCH}, s{sT5}, v{vL16}")
                for j in range(0, 16, 2):
                    with k.atomic():
                        for jj in (j, j + 1):
                            k.lds(f"ds_read_b128 {vr(vPARK+4*jj,4)}, v{vCH} offset:{jj*1024}", "pw")
            u_ = k.rec(lambda: (rot_setup(), unpark(vP, list(range(EU, 24)))))
            bar = k.rec(lambda: (k.ds_wait("pw"), k("s_barrier")))
            up = k.rec(park_w1) + u_[:1] + [lambda: k.play(bar)] + u_[1:]
        if NE:
            n2 = o.get("ne2", 2)
            k.play(mix(epi2, k.rec(lambda: [hload(t) for t in range(NE, NE + n2)]), 10))
            k.stores(its, h2sc)
            nxt = NE + n2
            FL2 = o.get("fl2", 5)
        else:
            k.play(epi2)
            k.stores(its, h2sc)
            async_check("p1", sFHp, G_FH)
            for t in range(LA):
                hload(t)
                if len(w2) > 24 - EU and t % 2:
                    k.play(w2[:1]); w2 = w2[1:]
                k.play(up[:1]); up = up[1:]
            k.flag(sFHo, G_FH + 1024)
            nxt = LA
            FL2 = -1
        k.stamp("D.poll1")
        RSD = vPQ
        k.get(vPQ + 1, cRSD)
        k.lds(f"ds_read_b32 v{RSD}, v{vPQ+1}", "rsd")
        def red_addr():
            for j in range(4):
                if L1:
                    k.get(vPQ + 4 + j, cRD0 + j)
                else:
                    with k.atomic():
                        k(f"s_add_u32 s{sT0}, s{sW}, {j}")
                        k(f"s_and_b32 s{sT0}, s{sT0}, 3")
                    with k.atomic():
                        k(f"s_lshl_b32 s{sT0}, s{sT0}, 14")
                        k(f"s_add_u32 s{sT0}, s{sT0}, {max(j-1, 0)*4096}")
                    k(f"v_add_u32 v{vPQ+4+j}, s{sT0}, v{vL16}")
        ur = k.rec(lambda: (unpack_res(vWB), red_addr()))
        wr = []
        for t in range(56):
            ksl, j = seq[t]
            if L1:
                k.vm_wait(("w2t", ksl))
            k.vm_wait(("h", t))
            if o.get("diagd") and t in (0, 8, 16, 24, 32, 40, 48):
                k.stamp(f"D.t{t}")
            if o.get("diagc") and not L1 and t in (0, 4, 8, 16, 24, 32, 40, 48):
                k.stamp(f"D.t{t}", True)
            for f in range(4):
                a = vACC + 16*j + 4*f
                c = "0" if ksl == 0 else vr(a, 4)
                k(f"v_mfma_f32_16x16x32_bf16 {vr(a,4)}, {ar((ksl*4+f)*4,4)}, {vr(vACT+4*(t%16),4)}, {c}")
                if f in (0, 2) and nxt < 56 and nxt <= t + LA and (f == 0 or nxt < t + LA):
                    if nxt == 32 - o.get("p2d", 11):
                        k.vmem(f"buffer_load_dword v{vT0}, v{vT3}, {srd(S_WS)}, s{sFHp} offen offset:{G_FH+1024} sc1", "p2")
                    if nxt == 32:
                        async_check("p2", sFHp, G_FH + 1024)
                    hload(nxt)
                    nxt += 1
                    if nxt == 56 and not L1 and o.get("wb", 0):
                        lw = k.label("L_wb")
                        k(f"s_lshl3_add_u32 s{sT0}, s{sW}, s2")
                        k(f"s_cmp_ge_u32 s{sT0}, 8")
                        k(f"s_cbranch_scc1 {lw}")
                        k("buffer_wbl2 sc1")
                        k(f"s_branch {lw}_e")
                        k(f"{lw}:")
                        k(f"buffer_load_dword a{aDUM}, v{vT3}, {srd(S_WS)}, s{sFHp} offen offset:{G_FH} sc1")
                        k(f"{lw}_e:")
                        k.vm_note(1, "wb")
                if f in ((1, 3) if t < o.get("up2", 3) else (1,)) and up:
                    k.play(up[:1]); up = up[1:]
                if f == 2:
                    nup = 24 - len(up)
                    if w2 and (len(w2) > 24 or not up or nup >= 4 * ((24 - len(w2)) // 4 + 1) + 1):
                        if len(w2) <= 24:
                            k.ds_wait(("up", (24 - len(w2)) // 4))
                        k.play(w2[:1]); w2 = w2[1:]
                    elif t >= o.get("tl0", 46) and tail:
                        nn = o.get("tln", 2)
                        k.play(tail[:nn]); tail = tail[nn:]
                if f == 3 and t == FL2:
                    k.flag(sFHo, G_FH + 1024)
                if 4 * t + f == 203 and L1:
                    k.ds_wait(("rw", 1))
                    k("s_barrier")
                    for f_ in range(4):
                        k.lds(f"ds_read_b128 {vr(vACC+16+4*f_,4)}, v{vPQ+4} offset:{f_*1024}", "rd0")
                if 4 * t + f == 215 and L1:
                    k.ds_wait("rd0")
                    k("s_barrier")
                if f == 3 and t == 2 and L1 and not WP:
                    pack_check_issue(0x8000, vTR0, vTR1, sPDA)
                if f == 3 and t == 14 and L1 and not WP:
                    pack_check(vTR0, vTR1, sPDA)
                if f == 3 and t == o.get("tx", 99) and L1:
                    touch("x", vDM)
                if f == 1 and t >= 8 and ur:
                    k.play(ur[:1]); ur = ur[1:]
                if wr and wr[0][0] <= 4 * t + f:
                    k.lds(*wr.pop(0)[1:])
            if ksl == 13 and j:
                for f in range(4):
                    wr.append((4 * t + 9 + 2 * f, f"ds_write_b128 v{vPQ+4+j}, {vr(vACC+16*j+4*f,4)} offset:{f*1024}", ("rw", j)))
        assert not w2 and not ur and not wr and not up
        k.stamp("D.mm")
        if not L1:
            k.get(vT2, cOUT)
        if L1:
            k("s_nop 3")
            for f in range(4):
                for p in range(2):
                    k(f"v_pk_add_f32 {vr(vACC+4*f+2*p,2)}, {vr(vACC+4*f+2*p,2)}, {vr(vACC+16+4*f+2*p,2)}")
        k.barrier()
        NJ = 2 if L1 else 3
        RB_ = vACC + 64 - 16 * NJ
        for f in range(4):
            for j in range(NJ):
                k.lds(f"ds_read_b128 {vr(RB_+16*j+4*f,4)}, v{vPQ+4} offset:{j*4096+f*1024}", ("rd", f))
        for f in range(4):
            k.ds_wait(("rd", f))
            for j in range(NJ):
                for p in range(2):
                    k(f"v_pk_add_f32 {vr(vACC+4*f+2*p,2)}, {vr(vACC+4*f+2*p,2)}, {vr(RB_+16*j+4*f+2*p,2)}")
            for p in range(2):
                k(f"v_pk_fma_f32 {vr(vACC+4*f+2*p,2)}, {vr(vACC+4*f+2*p,2)}, {vr(RSD,2)}, {vr(vWB+4*f+2*p,2)} op_sel_hi:[1,0,1]")
            for p in range(2):
                k(f"v_cvt_pk_bf16_f32 v{vRES+2*f+p}, v{vACC+4*f+2*p}, v{vACC+4*f+2*p+1}")
        k.stamp("D.red")
        if L1:
            publish_x(G_X2, G_ST2, G_FX2, psc(3))
            k(f"s_sub_u32 s{sT0}, s{sDK}, 8192")
            for j in range(4):
                k(f"s_add_u32 s{sRB+j}, s{sRB+j}, s{sT0}")
            k(f"s_add_u32 s{sKVC}, s{sKVC}, 0x100000")
            k(f"s_add_u32 s{sKVP}, s{sKVP}, 0x100000")
            k.flag(sFXo, G_FX2)
            k.poll_a(sFXp, G_FX2)
            k.stamp("D.pub")
            k("s_barrier")
            fr = []
            k(f"v_add_u32 v{vTR0}, {R1}, v{vL16}")
            late = []
            for ks in range(16):
                fq = [dict(addr=vTR0, offs=(ks * 2048 + b * 1024,), mf=mf2(QA + 8 * b, ks, True, True, act=ring)) for b in range(2)]
                fk = [dict(addr=vL16, offs=(R0 + ks * 4096 + b * 1024,), mf=mf2(vACC + 8 * b, ks, False, True, act=ring)) for b in range(4)]
                if ks < 16 - o.get("qlag", 6):
                    fr += fk + fq
                else:
                    fr += fk
                    late += fq
            gA = k.gemm_begin(fr)
        else:
            k("s_nop 1")
            for s in range(2):
                for p in range(2):
                    k(f"v_permlane16_swap_b32 v{vRES+4*s+p}, v{vRES+4*s+2+p}")
                k.vmem(f"buffer_store_dwordx4 {vr(vRES+4*s,4)}, v{vT2}, {srd(S_OUT)}, 0 offen offset:{64*s}{['', ' sc1', ' sc1 nt', ' nt'][o.get('outsc1', 1)]}")
            le = k.label("L_ep")
            k(f"s_or_b32 s{sT2}, s2, s{sW}")
            k(f"s_cbranch_scc1 {le}")
            k(f"s_add_u32 s{sEP}, s{sEP}, 1")
            k(f"v_mov_b32 v{vT1}, s{sEP}")
            k("s_mov_b64 exec, 1")
            k(f"buffer_store_dword v{vT1}, v{vL16}, {srd(S_WS)}, 0 offen offset:{WS_EPOCH}")
            k("s_mov_b64 exec, -1")
            k(f"{le}:")
            if stamps:
                k.vm_all()
                k.stamp("end")
                k(f"s_memrealtime s[{sST}:{sST+1}]")
                k("s_waitcnt lgkmcnt(0)")
                k(f"v_writelane_b32 v{vSTAMP}, s{sST}, 61")
                k(f"v_writelane_b32 v{vSTAMP}, s{sBUD}, 60")
                k(f"v_writelane_b32 v{vSTAMP}, s{sSLOW}, 59")
                k(f"s_lshl2_add_u32 s{sT2}, s2, s{sW}")
                k(f"s_lshl_b32 s{sT2}, s{sT2}, 8")
                k(f"s_add_u32 s{sT2}, s{sT2}, {WS_STAMP}")
                k(f"v_lshrrev_b32 v{vT0}, 2, v{vL16}")
                k(f"buffer_store_dword v{vSTAMP}, v{vT0}, {srd(S_WS)}, s{sT2} offen")
    k("L_end:")
    lines = merge_waits(k.lines)
    if o.get("pads", 2048):
        lines = add_pads(lines, k.tailcode, o.get("pads", 2048), [x for x in (o.get("ps1", 0), o.get("ps2", 0)) if x])
    body = "\n".join(lines)
    tailc = "\n".join(k.tailcode)
    hdr = open("interleave_layers__linear_attn_block__dense_activation_relu__prompt.s.ref").read().split("; Override")[0]
    txt = f"""{hdr}; Generated by a hand-written generator (persistent kernel, one workgroup per CU).
; @launch grid=(256,1,1) block=(256,1,1) lds={LDS_BYTES}
.amdgcn_target "amdgcn-amd-amdhsa--gfx950"
.text
.globl {NAME}
.p2align 8
.type {NAME},@function
.set CODE_BYTES, L_code_end - L_pcref - 512
{NAME}:
{body}
    s_endpgm
L_code_end:
{tailc}
.section .rodata,"a"
.p2align 6
.amdhsa_kernel {NAME}
  .amdhsa_next_free_vgpr 512
  .amdhsa_next_free_sgpr 102
  .amdhsa_accum_offset 256
  .amdhsa_group_segment_fixed_size 0
  .amdhsa_kernarg_size 72
  .amdhsa_user_sgpr_count 2
  .amdhsa_user_sgpr_kernarg_segment_ptr 1
  .amdhsa_system_sgpr_workgroup_id_x 1
.end_amdhsa_kernel
"""
    return txt, k.stamp_names


if __name__ == "__main__":
    out = sys.argv[1]
    stamps = "stamps" in sys.argv[2:]
    opts = {}
    for a in sys.argv[2:]:
        if "=" in a:
            x, y = a.split("=")
            opts[x] = int(y)
    txt, names = gen(stamps, opts)
    open(out, "w").write(txt)
    if stamps:
        open(out + ".names", "w").write("\n".join(names))
```

```python
import sys
from contextlib import contextmanager

NAME = "interleave_layers__linear_attn_block__dense_activation_relu__prompt_kernel"

WS_EPOCH = 0
WS_XID = 0x8000
WS_PD = 0x10000
GRP0 = 0x100000
G_FO, G_FX1, G_FX2, G_FH = 0, 512, 1024, 1536
G_ST1 = 0x1000
G_ST2 = G_ST1
G_ST0 = 0x4000
G_X1 = 0x8000
G_X2 = G_X1
G_H = G_X1 + 0x20000
G_O = G_H
WS_KVX = 0x1200000
KVX_C = 0x9000
WS_W2T = 0x1400000
WS_PK = 0x1600000
PK_KV, PK_Q, PK_W1A, PK_W1B, PK_WO, PK_SZ = 0, 65536, 98304, 163840, 212992, 278528
WS_STAMP = 0x1B00000
WS_USED = 0x1C00000
OOB = 0x7f000000

R0, R1, R2, R3 = 0, 65536, 98304, 131072
L_SM = 161792
L_CS = L_SM
L_ZB = L_SM + 896
L_STAT = L_SM + 1024
L_XB = L_SM - 4096
W1B_N1 = 8
L_XST = 98304
L_RED = R2
L_PST = R2
LDS_BYTES = 163840

S_X, S_WQKV, S_WO, S_W1, S_W2, S_OUT, S_WS = 4, 8, 12, 16, 20, 24, 28
(sW, sC, sG, sTAG, sSLOW, sGB, sBUD, sEP, sEPS, _e1, sT0, sT1, sT2, sT3, sT4, sT5,
 sACT, sACT1, sBACT, sTILE, sOST, sOST1, sFOo, sFOp, sFXo, sFXp, sSTo, sSTg,
 sH1, sH1b, sH2, sH2b, sH3, sH3b, sFHo, sFHp, sRB, _r1, _r2, _r3, sKVC, sKVP,
 sDH, sCT, sXCC, sT8, sD0, sD1, sD2, sD3, sL0, sL1, sPKB, sPDA, sPDB, sJ0) = range(32, 88)
assert sEPS % 2 == 0
sRHO = sT8
S_A, S_B = 88, 92
sKEX = 88
sDK = 92
sS8 = 93
sKM = 96
sST = 98
sPC = 100

vLANE, vL16, vTR0, vTR1, vQ0, vQ1, vQ2, vQ3, vP, vCH, vDM, vSTAMP = range(12)
vT0, vT1, vT2, vT3 = 12, 13, 14, 15
vSP, vSP2 = vP, vCH
vRES = 16
vPQ = 24
vWB = 32
vACC = 64
vACT = 128
BF1 = "0x3f803f80"
(cCSA, cCSB, cP16, aDUM, cSTO, cSTW, cSTA, cSTB, cKW, cKR, cKW1, cKR1, cKVS, cXW, cXR, cZR,
 cRD0, cRD1, cRD2, cRD3, cRSD, cOUT, cZL, cZW) = range(224, 248)
aONES, aCS = 248, 252


def srd(s):
    return f"s[{s}:{s+3}]"


def vr(a, n=1):
    return f"v{a}" if n == 1 else f"v[{a}:{a+n-1}]"


def ar(a, n=1):
    return f"a{a}" if n == 1 else f"a[{a}:{a+n-1}]"


def bcast(r, pos, n):
    lo = [0] * n
    hi = [1] * n
    if r % 2 == 0:
        hi[pos] = 0
    else:
        lo[pos] = 1
    f = lambda x: "[" + ",".join(map(str, x)) + "]"
    return vr(r & ~1, 2), f" op_sel:{f(lo)} op_sel_hi:{f(hi)}"


class K:
    def __init__(self, stamps=False, opts=None):
        self.lines = []
        self.nlab = 0
        self.vm = []
        self.ds = []
        self.stamps = stamps
        self.stamp_names = []
        self.o = opts or {}
        self._rec = None
        self.seen = set()
        self.tailcode = []
        self.lights = []
        self.fast = ""

    def _do(self, fn, cost=None):
        if cost is not None:
            fn.cost = cost
        if self._rec is not None:
            self._rec.append(fn)
        else:
            fn()

    def rec(self, f):
        assert self._rec is None
        self._rec = []
        f()
        r, self._rec = self._rec, None
        return r

    @contextmanager
    def atomic(self):
        if self._rec is None:
            yield
            return
        outer, self._rec = self._rec, []
        yield
        inner, self._rec = self._rec, outer
        g = lambda: [x() for x in inner]
        g.cost = sum(getattr(x, "cost", 4) for x in inner)
        outer.append(g)

    def play(self, items):
        for x in items:
            self._do(x)

    def _emit(self, l):
        self.lines.append(("" if l.endswith(":") else "    ") + l)

    def __call__(self, s):
        for l in s.split("\n"):
            l = l.strip()
            if l:
                self._do(lambda l=l: self._emit(l), 8 if l.startswith(("v_exp", "v_rsq", "v_rcp", "buffer_")) else 0 if l.endswith(":") else 4)

    def label(self, base="L"):
        self.nlab += 1
        return f"{base}_{self.nlab}"

    def vmem(self, s, tag=None):
        def f():
            self._emit(s)
            self.vm.append(tag)
            self.seen.add(tag)
        self._do(f, 8)

    def vm_note(self, n, tag=None):
        self._do(lambda: (self.vm.extend([tag] * n), self.seen.add(tag)))

    def _wait(self, lst, tag, name, mx):
        if tag not in lst:
            return lst
        idx = len(lst) - 1 - lst[::-1].index(tag)
        n = min(len(lst) - idx - 1, mx)
        self._emit(f"s_waitcnt {name}({n})")
        return lst[len(lst) - n:] if n else []

    def vm_wait(self, tag):
        def f():
            assert tag in self.seen, tag
            self.vm = self._wait(self.vm, tag, "vmcnt", 63)
        self._do(f)

    def save_vm(self):
        def f():
            self._sv = list(self.vm)
        self._do(f)

    def restore_vm(self):
        def f():
            self.vm = self._sv
        self._do(f)

    def vm_all(self):
        def f():
            self._emit("s_waitcnt vmcnt(0)")
            self.vm = []
        self._do(f)

    def lds(self, s, tag=None):
        def f():
            self._emit(s)
            self.ds.append(tag)
        self._do(f)

    def ds_wait(self, tag):
        def f():
            self.ds = self._wait(self.ds, tag, "lgkmcnt", 15)
        self._do(f)

    def ds_all(self, force=False):
        def f():
            if self.ds or force:
                self._emit("s_waitcnt lgkmcnt(0)")
            self.ds = []
        self._do(f)

    def barrier(self, force=False):
        self.ds_all(force)
        self("s_barrier")

    def stamp(self, name, light=False):
        if not self.stamps:
            return
        if light:
            i = len(self.stamp_names)
            self.stamp_names.append(name)
            r = 4 + 2 * len(self.lights)
            self.lights.append((r, i))
            self(f"s_memtime s[{r}:{r+1}]")
            return
        self.nst = getattr(self, "nst", 0) + 1
        if self.o.get("lite") and name not in ("end", "D.pub"):
            return
        i = len(self.stamp_names)
        assert i < 59
        self.stamp_names.append(name)
        self(f"{'s_memrealtime' if self.o.get('rt') else 's_memtime'} s[{sST}:{sST+1}]")
        self.ds_all(True)
        self(f"v_writelane_b32 v{vSTAMP}, s{sST}, {i}")
        for r, j in self.lights:
            self(f"v_writelane_b32 v{vSTAMP}, s{r}, {j}")
        self.lights = []

    def dma(self, sr, voff, soff, simm, lreg, limm, tag=None, flag=""):
        with self.atomic():
            self(f"s_add_u32 m0, s{lreg}, {limm}")
            self(f"s_add_u32 s{sT5}, s{soff}, {simm}")
            self.vmem(f"buffer_load_dwordx4 v{voff}, {srd(sr)}, s{sT5} offen{flag} lds", tag)

    def get(self, v, c):
        self(f"v_accvgpr_read_b32 v{v}, a{c}")

    def poll_prep(self, mask):
        self.get(vT3, cP16)
        if mask == 7:
            self(f"v_and_b32 v{vT3}, 28, v{vT3}")

    def poll(self, soff, imm, clear=True):
        if clear:
            self.seen = {t for t in self.seen if not (isinstance(t, tuple) and t[0] in ("act", "h"))}
        lp, done = self.label("L_poll"), self.label("L_pd")
        with self.atomic():
            self(f"{lp}:")
            self(f"buffer_load_dword v{vT0}, v{vT3}, {srd(S_WS)}, s{soff} offen offset:{imm} sc1")
            self.vm_all()
            self(f"v_cmp_ne_u32 vcc, s{sTAG}, v{vT0}")
            self(f"s_cbranch_vccz {done}")
            self(f"s_sub_u32 s{sBUD}, s{sBUD}, 1")
            self(f"s_cbranch_scc0 {lp}")
            self(f"s_mov_b32 s{sBUD}, 0")
            self(f"{done}:")

    def poll_a(self, soff, imm):
        if self.o.get("pp", 1):
            self.vmem(f"buffer_load_dword v{vT0}, v{vT3}, {srd(S_WS)}, s{soff} offen offset:{imm} sc1", "pa")

    def poll_b(self, soff, imm):
        if not self.o.get("pp", 1):
            return self.poll(soff, imm)
        self.seen = {t for t in self.seen if not (isinstance(t, tuple) and t[0] in ("act", "h"))}
        lp, done = self.label("L_poll"), self.label("L_pd")
        ld = lambda v: f"buffer_load_dword v{v}, v{vT3}, {srd(S_WS)}, s{soff} offen offset:{imm} sc1"
        self(f"{lp}:")
        self(ld(vT2))
        self("s_waitcnt vmcnt(1)")
        self(f"v_cmp_ne_u32 vcc, s{sTAG}, v{vT0}")
        self(f"s_cbranch_vccz {done}")
        self(ld(vT0))
        self("s_waitcnt vmcnt(1)")
        self(f"v_cmp_ne_u32 vcc, s{sTAG}, v{vT2}")
        self(f"s_cbranch_vccz {done}")
        self(f"s_sub_u32 s{sBUD}, s{sBUD}, 1")
        self(f"s_cbranch_scc0 {lp}")
        self(f"s_mov_b32 s{sBUD}, 0")
        self(f"{done}:")
        self.vm = ["pb"]

    def stores(self, items, force_sc1, tag="st"):
        with self.atomic():
            if force_sc1:
                for it in items:
                    self.vmem(it + " sc1", tag)
                return
            ls, le = self.label("L_ss"), self.label("L_se")
            self(f"s_cmp_lg_u32 s{sSLOW}, 0")
            self(f"s_cbranch_scc1 {ls}")
            for it in items:
                self.vmem(it + (self.fast if tag == "st" else ""), tag)
            self(f"{le}:")
            self.tailcode += [f"{ls}:"] + ["    " + it + " sc1" for it in items] + [f"    s_branch {le}"]

    def flag(self, soff, imm):
        with self.atomic():
            self(f"v_mov_b32 v{vT1}, s{sTAG}")
            self.vm_wait("st")
            self("s_mov_b64 exec, 1")
            self.stores([f"buffer_store_dword v{vT1}, v{vL16}, {srd(S_WS)}, s{soff} offen offset:{imm}"], False, "flag")
            self("s_mov_b64 exec, -1")

    def gemm_begin(self, frags, D=6):
        self.gid = getattr(self, "gid", 0) + 1
        g = dict(frags=frags, D=D, gid=self.gid, rp=0, reads=[])
        for t, f in enumerate(frags):
            s = vWB + 4 * (t % 8)
            if len(f["offs"]) == 2:
                for hh in range(2):
                    g["reads"].append((t, f"ds_read_b64_tr_b16 {vr(s + 2*hh, 2)}, v{f['addr']} offset:{f['offs'][hh]}"))
            else:
                g["reads"].append((t, f"ds_read_b128 {vr(s, 4)}, v{f['addr']} offset:{f['offs'][0]}"))
        self._issue(g, D - 1, 99)
        return g

    def _issue(self, g, tmax, maxn):
        c = 0
        reads = g["reads"]
        while g["rp"] < len(reads) and reads[g["rp"]][0] <= tmax and c < maxn:
            self.lds(reads[g["rp"]][1], ("w", g["gid"], reads[g["rp"]][0]))
            g["rp"] += 1
            c += 1

    def gemm_run(self, g, fill=None):
        fill = fill or {}
        frags, D, gid = g["frags"], g["D"], g["gid"]
        n = len(frags)
        mi = 0
        pend = []
        LATE = self.o.get("late", 3)
        for t, f in enumerate(frags):
            s = vWB + 4 * (t % 8)
            if t % 2 == 0:
                self.ds_wait(("w", gid, min(t + 1, n - 1)))
            nm = len(f["mf"])
            for j, (acc, act_, sw, first, wt) in enumerate(f["mf"]):
                if wt is not None:
                    self.vm_wait(wt)
                c = "0" if first else vr(acc, 4) if acc is not None else ar(aCS, 4)
                if acc is None:
                    self(f"v_mfma_f32_16x16x32_bf16 {ar(aCS,4)}, {ar(aONES,4)}, {vr(s,4)}, {c}")
                elif sw:
                    self(f"v_mfma_f32_16x16x32_bf16 {vr(acc,4)}, {vr(s,4)}, {vr(act_,4)}, {c}")
                else:
                    self(f"v_mfma_f32_16x16x32_bf16 {vr(acc,4)}, {vr(act_,4)}, {vr(s,4)}, {c}")
                rp0 = g["rp"]
                self._issue(g, t + D, 99 if j == nm - 1 else 1)
                room = 8 - 4 * (g["rp"] - rp0) - (4 if (j == nm - 1 and t % 2 == 1) else 0)
                pend += [(mi, x) for x in fill.pop(mi, [])]
                while pend:
                    cst = getattr(pend[0][1], "cost", 4)
                    if cst <= room or (room == 8 and cst > 8) or mi - pend[0][0] >= LATE:
                        self.play([pend.pop(0)[1]])
                        room -= cst
                    else:
                        break
                mi += 1
        self.play([x for _, x in pend])
        for key in sorted(fill):
            self.play(fill[key])

    def gemm(self, frags, fill=None, D=6):
        self.gemm_run(self.gemm_begin(frags, D), fill)


def merge_waits(lines):
    import re
    out = []
    for l in lines:
        m = re.match(r"\s*s_waitcnt (\w+)\((\d+)\)$", l)
        if m and out:
            p = re.match(r"\s*s_waitcnt (\w+)\((\d+)\)$", out[-1])
            if p and p.group(1) != m.group(1):
                out[-1] = out[-1] + f" {m.group(1)}({m.group(2)})"
                continue
        out.append(l)
    return out


def spread(fill, items, start, step, per=1):
    p = start
    if step == 0:
        g = lambda: [x() for x in items]
        g.cost = sum(getattr(x, "cost", 4) for x in items)
        fill.setdefault(int(p), []).append(g)
        return p
    for i in range(0, len(items), per):
        fill.setdefault(int(p), []).extend(items[i:i + per])
        p += step
    return p


def insn_sizes(lines, tailcode):
    import subprocess, tempfile, re, os
    src = [".amdgcn_target \"amdgcn-amd-amdhsa--gfx950\"", ".text", ".set CODE_BYTES, 0x12345"]
    for i, l in enumerate(lines):
        src.append(f"Lz{i}:")
        src.append(l)
    src.append(f"Lz{len(lines)}:")
    src += tailcode
    with tempfile.TemporaryDirectory() as d:
        open(d + "/a.s", "w").write("\n".join(src) + "\n")
        subprocess.run(["clang", "-x", "assembler", "-target", "amdgcn-amd-amdhsa", "-mcpu=gfx950", "-c", d + "/a.s", "-o", d + "/a.o"], check=True)
        out = subprocess.run(["llvm-objdump", "-t", d + "/a.o"], capture_output=True, text=True, check=True).stdout
    addr = {}
    for l in out.splitlines():
        m = re.match(r"([0-9a-f]+) .*\sLz(\d+)$", l)
        if m:
            addr[int(m.group(2))] = int(m.group(1), 16)
    return [addr[i + 1] - addr[i] for i in range(len(lines))]


def add_pads(lines, tailcode, step, splits):
    def call(first, ret):
        c = ["    s_mov_b64 exec, 0"]
        for w in range(3):
            c += [f"    s_cmp_eq_u32 s{sW}, {w}", f"    s_cbranch_scc1 L_pad{first + w}"]
        return c + [f"    s_branch L_pad{first + 3}"]
    src = []
    for l in lines:
        t = l.strip()
        if t.startswith("PADCALL") and t != "PADCALL":
            g = int(t[7:])
            if g <= len(splits):
                src += ["    s_nop 0 ; CALL%d" % g] * 9
        else:
            src.append(l)
    ci = [i for i, l in enumerate(src) if l.strip() == "PADCALL"][0]
    src = src[:ci] + src[ci + 1:]
    sz = insn_sizes(src, tailcode)
    body, pos, nxt, n = [], 4, step, 0
    for i in range(ci, len(src)):
        if pos >= nxt and sz[i] > 0 and "; CALL" not in src[i]:
            body.append(("PAD", n))
            n += 1
            pos += 4
            nxt = (pos // step + 1) * step
        body.append(src[i])
        pos += sz[i]
    bounds = [0] + list(splits) + [n]
    assert all(bounds[i + 1] - bounds[i] >= 4 for i in range(len(bounds) - 1)), (bounds, n)
    out = src[:ci] + call(0, 0) + [".p2align 12", "L_padret0:", "    s_mov_b64 exec, -1"]
    done = set()
    for x in body:
        if isinstance(x, tuple):
            j = x[1]
            g = max(i for i in range(len(bounds) - 1) if bounds[i] <= j)
            out += [f"L_pad{j}:", f"    s_cbranch_execz {'L_pad%d' % (j + 4) if j + 4 < bounds[g + 1] else 'L_padret%d' % g}"]
        elif "; CALL" in x:
            g = int(x.split("CALL")[1])
            if g not in done:
                done.add(g)
                out += call(bounds[g], g) + [f"L_padret{g}:", "    s_mov_b64 exec, -1"]
        else:
            out.append(x)
    return out


def mix(a, b, ratio):
    out = []
    bi = 0
    for i, x in enumerate(a):
        out.append(x)
        if (i + 1) % ratio == 0 and bi < len(b):
            out.append(b[bi]); bi += 1
    out.extend(b[bi:])
    return out


def act(ks, rb):
    return vACT + 8 * ks + 4 * rb


def gen(stamps=False, opts=None):
    k = K(stamps, opts)
    o = k.o
    if stamps:
        k(f"{'s_memrealtime' if o.get('rt') else 's_memtime'} s[{sST}:{sST+1}]")
        k(f"s_memrealtime s[{sPC}:{sPC+1}]")
    k(f"""
    s_cmp_ge_u32 s2, 256
    s_cbranch_scc1 L_end
    s_load_dwordx2 s[{S_X}:{S_X+1}], s[0:1], 0
    s_load_dwordx2 s[{S_WQKV}:{S_WQKV+1}], s[0:1], 8
    s_load_dwordx2 s[{S_WS}:{S_WS+1}], s[0:1], 64
    s_load_dwordx2 s[{S_WO}:{S_WO+1}], s[0:1], 16
    s_load_dwordx2 s[{S_W1}:{S_W1+1}], s[0:1], 32
    s_load_dwordx2 s[{S_W2}:{S_W2+1}], s[0:1], 40
    s_load_dwordx2 s[{S_OUT}:{S_OUT+1}], s[0:1], 48
    """)
    if o.get("cw0", 1):
        k(f"""
        s_getpc_b64 s[{S_A}:{S_A+1}]
        L_pcref:
        s_lshr_b32 s{sT2}, s2, 3
        s_lshl_b32 s{sT2}, s{sT2}, 11
        v_lshlrev_b32 v{vT3}, 3, v0
        v_add_u32 v{vT3}, s{sT2}, v{vT3}
        v_min_u32 v{vT3}, CODE_BYTES, v{vT3}
        s_mov_b32 exec_lo, 0x10001
        s_mov_b32 exec_hi, 0x10001
        global_load_dword a{aDUM}, v{vT3}, s[{S_A}:{S_A+1}]
        s_mov_b64 exec, -1
        """)
    k(f"""
    v_lshrrev_b32 v{vT0}, 6, v0
    v_and_b32 v{vLANE}, 63, v0
    s_mov_b32 s{S_X+2}, {2048*1024}
    v_readfirstlane_b32 s{sW}, v{vT0}
    s_mov_b32 s{S_X+3}, 0x20000
    s_mov_b32 s{S_WQKV+2}, {512*3072}
    s_mov_b32 s{S_WQKV+3}, 0x20000
    s_lshr_b32 s{sT0}, s2, 3
    s_and_b32 s{sC}, s{sT0}, 15
    s_lshr_b32 s{sT0}, s{sT0}, 4
    s_and_b32 s{sG}, s2, 7
    s_lshl1_add_u32 s{sG}, s{sG}, s{sT0}
    s_lshr_b32 s{sT1}, s{sC}, 1
    s_xor_b32 s{sT1}, s{sT1}, s{sT0}
    s_and_b32 s{sT1}, s{sT1}, 1
    s_and_b32 s{sRHO}, s{sC}, 1
    s_lshl1_add_u32 s{sRHO}, s{sT1}, s{sRHO}
    v_lshlrev_b32 v{vL16}, 4, v{vLANE}
    """)
    if stamps:
        k(f"v_mov_b32 v{vSTAMP}, 0")
    NTP = " nt" if o.get("nt", 0) & 1 else ""
    NTX = " nt" if o.get("nt", 0) & 2 else ""
    XS, XR, X2R = vRES, vRES + 4, act(15, 1)
    aRES = 246
    k(f"""
    v_lshrrev_b32 v{vT0}, 4, v{vLANE}
    v_and_b32 v{vT1}, 15, v{vLANE}
    v_xor_b32 v{vT2}, v{vT0}, v{vT1}
    v_lshlrev_b32 v{vT2}, 4, v{vT2}
    v_lshl_add_u32 v{XS}, v{vT0}, 10, v{vT2}
    v_xor_b32 v{XS+1}, 64, v{XS}
    v_xor_b32 v{XS+2}, 0x80, v{XS}
    v_xor_b32 v{XS+3}, 0xc0, v{XS}
    v_lshrrev_b32 v{vP}, 2, v{vLANE}
    v_and_b32 v{vCH}, 3, v{vLANE}
    v_lshrrev_b32 v{vT3}, 3, v{vLANE}
    v_and_b32 v{vT3}, 2, v{vT3}
    v_xor_b32 v{vCH}, v{vCH}, v{vT3}
    v_lshlrev_b32 v{vCH}, 4, v{vCH}
    v_and_b32 v{vT3}, 3, v{vP}
    v_lshl_add_u32 v{vT3}, v{vT0}, 3, v{vT3}
    s_movk_i32 s{sT1}, 3072
    v_mad_u32_u24 v{vDM}, v{vT3}, s{sT1}, v{vCH}
    s_lshl_b32 s{sL0}, s{sW}, 14
    s_add_u32 s{sL0}, s{sL0}, {L_XST}
    s_lshl_b32 s{sT1}, s{sG}, 17
    s_lshl_b32 s{sT2}, s{sW}, 15
    s_add_u32 s{sT1}, s{sT1}, s{sT2}
    s_lshl_b32 s{sL1}, s{sW}, 12
    """)
    for r in range(4):
        k(f"""
        s_add_u32 s{sT2}, s{sRHO}, {r}
        s_and_b32 s{sT2}, s{sT2}, 3
        s_lshl_b32 s{sT3}, s{sT2}, 8
        s_add_u32 s{sD0+r}, s{sT1}, s{sT3}
        s_lshl2_add_u32 s{sT2}, s{sT2}, s{sW}
        s_mul_i32 s{sT2}, s{sT2}, {32*3072}
        s_lshl_b32 s{sT3}, s{sC}, 6
        s_add_u32 s{sRB+r}, s{sT2}, s{sT3}
        """)
    k("s_waitcnt lgkmcnt(0)")
    k(f"s_load_dword s{sEP}, s[{S_WS}:{S_WS+1}], {WS_EPOCH}")
    if stamps:
        k(f"v_writelane_b32 v{vSTAMP}, s{sST}, 62")
        k(f"v_writelane_b32 v{vSTAMP}, s{sPC}, 63")

    def xslot(q, js=range(8)):
        for j in js:
            k.dma(S_X, XS + (j & 3), sD0 + q, j * 4096, sL0, (q & 1) * 8192 + j * 1024, ("xs", q), " nt" if o.get("nt", 0) & 4 else "")

    def wkv_raw(r):
        for pr in range(2):
            for hh in range(2):
                k.dma(S_WQKV, vDM, sRB + r, hh * 4 * 3072 + 1024 * (pr + 1), sL1, R0 + r * 16384 + pr * 2048 + hh * 1024, ("wkv", r))

    def quad_lane(pitch, dst=vDM, tmp=vT2, sD3=sD3):
        vT2 = tmp
        k(f"v_lshrrev_b32 v{dst}, 3, v{vLANE}")
        k(f"v_and_b32 v{vT2}, 6, v{dst}")
        k(f"v_xor_b32 v{vT2}, v{vT2}, v{vLANE}")
        k(f"v_and_b32 v{vT2}, 7, v{vT2}")
        k(f"v_lshlrev_b32 v{vT2}, 4, v{vT2}")
        if isinstance(pitch, int):
            k(f"s_movk_i32 s{sD3}, {pitch}")
            pitch = f"s{sD3}"
        k(f"v_mad_u32_u24 v{dst}, v{dst}, {pitch}, v{vT2}")

    def dma_raw(sr, lds_imm, first, R=None):
        sD0_, sD2_, sL0_, vDM_ = R or (sD0, sD2, sL0, vDM)
        with k.atomic():
            k(f"s_add_u32 m0, s{sL0_}, {lds_imm}")
            k("s_nop 0" if first else f"s_add_u32 s{sD0_}, s{sD0_}, s{sD2_}")
            k(f"buffer_load_dwordx4 v{vDM_}, {srd(sr)}, s{sD0_} offen{NTP} lds")

    def packU_issue(base, sD0, sD1, sD2, sD3, sL0, vDM, sPDA, shift=12):
        R = (sD0, sD2, sL0, vDM)
        l2, l3, lq, le = k.label("L_u2"), k.label("L_u3"), k.label("L_uq"), k.label("L_ue")
        with k.atomic():
            k(f"""
            s_lshl_b32 s{sL0}, s{sW}, {shift}
            s_add_u32 s{sL0}, s{sL0}, {base}
            s_lshr_b32 s{sD0}, s{sC}, 2
            s_mul_i32 s{sD0}, s{sD0}, 896
            s_mul_i32 s{sD1}, s{sG}, {32*3584}
            s_add_u32 s{sD0}, s{sD0}, s{sD1}
            s_and_b32 s{sD1}, s{sC}, 3
            s_cmp_eq_u32 s{sW}, 3
            s_cbranch_scc1 {l3}
            s_cmp_eq_u32 s{sW}, 2
            s_cbranch_scc1 {l2}
            s_mov_b32 s{S_A}, s{S_W2}
            s_mov_b32 s{S_A+1}, s{S_W2+1}
            s_mov_b32 s{S_A+2}, {1792*1024}
            s_movk_i32 s{sD2}, 1024
            s_lshl1_add_u32 s{sD0}, s2, s{sW}
            s_lshr_b32 s{sD1}, s{sD0}, 3
            s_and_b32 s{sD0}, s{sD0}, 7
            s_mul_i32 s{sPDA}, s{sD0}, 56
            s_add_u32 s{sPDA}, s{sPDA}, s{sD1}
            s_lshl_b32 s{sPDA}, s{sPDA}, 12
            s_add_u32 s{sPDA}, s{sPDA}, {WS_W2T}
            s_cmp_ge_u32 s{sD1}, 56
            s_cselect_b32 s{sPDA}, {OOB}, s{sPDA}
            s_lshl_b32 s{sD1}, s{sD1}, 15
            s_lshl_b32 s{sD0}, s{sD0}, 7
            s_add_u32 s{sD0}, s{sD0}, s{sD1}
            s_branch {lq}
            {l2}:
            s_mov_b32 s{S_A}, s{S_W1}
            s_mov_b32 s{S_A+1}, s{S_W1+1}
            s_mov_b32 s{S_A+2}, {512*3584}
            s_movk_i32 s{sD2}, 3584
            s_lshl_b32 s{sD1}, s{sD1}, 7
            s_add_u32 s{sD0}, s{sD0}, s{sD1}
            s_lshl_b32 s{sPDA}, s{sG}, 12
            s_add_u32 s{sPDA}, s{sPDA}, s{sPKB}
            s_add_u32 s{sPDA}, s{sPDA}, {PK_W1A}
            {lq}:
            s_mov_b32 s{S_A+3}, 0x20000
            """)
            quad_lane(f"s{sD2}", vDM, vT2 if shift == 14 else vACT + 127)
            k(f"s_lshl_b32 s{sD2}, s{sD2}, 3")
            for j in range(4):
                dma_raw(S_A, j * 1024, j == 0, R)
            k(f"""
            s_branch {le}
            {l3}:
            s_movk_i32 s{sD3}, 3584
            s_mul_i32 s{sPDA}, s{sG}, 3072
            s_add_u32 s{sPDA}, s{sPDA}, s{sPKB}
            s_add_u32 s{sPDA}, s{sPDA}, {PK_W1B}
            s_lshr_b32 s{sT5}, s{sD1}, 1
            s_mul_i32 s{sT5}, s{sT5}, 6
            s_and_b32 s{sD2}, s{sD1}, 1
            s_add_u32 s{sT5}, s{sT5}, s{sD2}
            s_add_u32 s{sT5}, s{sT5}, 18
            s_lshl_b32 s{sT5}, s{sT5}, 5
            s_add_u32 s{sT5}, s{sT5}, s{sD0}
            v_lshrrev_b32 v{vDM}, 1, v{vLANE}
            v_and_b32 v{vT2 if shift == 14 else vACT + 127}, 16, v{vL16}
            v_mad_u32_u24 v{vDM}, v{vDM}, s{sD3}, v{vT2 if shift == 14 else vACT + 127}
            s_add_u32 m0, s{sL0}, 2048
            s_mul_i32 s{sD1}, s{sD1}, 3
            buffer_load_dwordx4 v{vDM}, {srd(S_W1)}, s{sT5} offen{NTP} lds
            s_add_u32 s{sD1}, s{sD1}, 17
            s_lshr_b32 s{sD1}, s{sD1}, 1
            s_lshl_b32 s{sD1}, s{sD1}, 6
            s_add_u32 s{sD0}, s{sD0}, s{sD1}
            s_mov_b32 s{sD2}, {16*3584}
            v_mad_u32_u24 v{vDM}, v{vP}, s{sD3}, v{vCH}
            """)
            for hh in range(2):
                dma_raw(S_W1, hh * 1024, hh == 0, R)
            k(f"buffer_load_dword a{aDUM}, v{vL16}, {srd(S_W1)}, s{S_W1+2} offen")
            k(f"{le}:")
            k.vm_note(4, "pu")

    WP = o.get("wp", 1)

    def warm():
        k(f"v_lshlrev_b32 v{vT3}, 7, v{vLANE}")
        k("s_mov_b64 exec, 0xf")
        if not o.get("cw0", 1):
            k(f"""
            s_getpc_b64 s[{sPC}:{sPC+1}]
            L_pcref:
            s_lshr_b32 s{sT2}, s2, 3
            s_lshl2_add_u32 s{sT2}, s{sT2}, s{sW}
            s_lshl_b32 s{sT2}, s{sT2}, 9
            s_min_u32 s{sT2}, s{sT2}, CODE_BYTES
            s_add_u32 s{sPC}, s{sPC}, s{sT2}
            s_addc_u32 s{sPC+1}, s{sPC+1}, 0
            """)
            k.vmem(f"global_load_dword a{aDUM}, v{vT3}, s[{sPC}:{sPC+1}]")
        if o.get("warm", 1) >= 1:
            k(f"s_lshl2_add_u32 s{sT2}, s2, s{sW}")
            k(f"s_lshr_b32 s{sT3}, s{sT2}, 1")
            k(f"s_mul_i32 s{sT3}, s{sT3}, 3072")
            k(f"s_and_b32 s{sT4}, s{sT2}, 1")
            k(f"s_lshl_b32 s{sT4}, s{sT4}, 9")
            k(f"s_add_u32 s{sT3}, s{sT3}, s{sT4}")
            k.vmem(f"buffer_load_dword a{aDUM}, v{vT3}, {srd(S_WQKV)}, s{sT3} offen")
            if not WP:
                k(f"s_lshl_b32 s{sT3}, s{sT2}, 9")
                k.vmem(f"buffer_load_dword a{aDUM}, v{vT3}, {srd(S_WO)}, s{sT3} offen")
        if o.get("tlb", 0):
            k("s_mov_b64 exec, 1")
            k(f"s_mul_i32 s{sT3}, s{sT2}, 1792")
            k.vmem(f"buffer_load_dword a{aDUM}, v{vT3}, {srd(S_W1)}, s{sT3} offen")
            k.vmem(f"buffer_load_dword a{aDUM}, v{vT3}, {srd(S_W2)}, s{sT3} offen")
            if o["tlb"] > 1:
                k("s_mov_b64 exec, 0x1f")
                k(f"v_lshlrev_b32 v{vWB}, 21, v{vLANE}")
                k(f"s_mov_b32 s{sT3}, {WS_KVX + 0x1f0000}")
                k.vmem(f"buffer_load_dword a{aDUM}, v{vWB}, {srd(S_WS)}, s{sT3} offen")
        if o.get("warm", 1) >= 2:
            k(f"s_mul_i32 s{sT3}, s{sT2}, 1792")
            k("s_mov_b64 exec, 0x3fff")
            k.vmem(f"buffer_load_dword a{aDUM}, v{vT3}, {srd(S_W1)}, s{sT3} offen")
            k.vmem(f"buffer_load_dword a{aDUM}, v{vT3}, {srd(S_W2)}, s{sT3} offen")
        k(f"s_lshl2_add_u32 s{sT2}, s{sC}, s{sW}")
        k(f"s_lshl_b32 s{sT2}, s{sT2}, 8")
        k(f"s_add_u32 s{sT2}, s{sT2}, s{sGB}")
        k("s_mov_b64 exec, 3")
        k.vmem(f"buffer_load_dword a{aDUM}, v{vT3}, {srd(S_WS)}, s{sT2} offen sc1", "touch")
        k("s_mov_b64 exec, -1")

    OWN = vACC
    k(f"s_lshl_b32 s{sT2}, s{sC}, 11")
    k(f"s_add_u32 s{sT2}, s{sT2}, s{sT1}")
    for r in range(2):
        k.vmem(f"buffer_load_dwordx4 {vr(OWN+4*r,4)}, v{vL16}, {srd(S_X)}, s{sT2} offen offset:{r*1024}{NTX}", "own")
    w0_ = k.rec(lambda: wkv_raw(0))
    nw0 = o.get("nw0", 2)
    k.play(w0_[:nw0])
    k(f"""
    s_mov_b32 s{S_WO+2}, {512*1024}
    s_mov_b32 s{S_WO+3}, 0x20000
    s_mov_b32 s{S_W1+2}, {512*3584}
    s_mov_b32 s{S_W1+3}, 0x20000
    s_mov_b32 s{S_W2+2}, {1792*1024}
    s_mov_b32 s{S_W2+3}, 0x20000
    s_mov_b32 s{S_WS+2}, {WS_USED}
    s_mov_b32 s{S_WS+3}, 0x20000
    s_lshl_b32 s{sGB}, s{sG}, 20
    s_add_u32 s{sGB}, s{sGB}, {GRP0}
    """)
    warm()
    UF = o.get("uf", 1)
    k(f"s_mul_i32 s{sPKB}, s{sC}, {PK_SZ}")
    k(f"s_add_u32 s{sPKB}, s{sPKB}, {WS_PK}")
    if UF == 1:
        packU_issue(R1, sH1, sH1b, sH2, sH2b, sH3, vWB + 8, sPDB)
    if WP:
        quad_lane(1024, vWB + 8, vACT + 127, sH2b)
        k(f"""
        s_lshl2_add_u32 s{sH1}, s{sG}, s{sW}
        s_lshl_b32 s{sPDA}, s{sH1}, 10
        s_add_u32 s{sPDA}, s{sPDA}, s{sPKB}
        s_add_u32 s{sPDA}, s{sPDA}, {PK_WO}
        s_lshl_b32 s{sH1}, s{sH1}, 13
        s_lshl_b32 s{sH1b}, s{sC}, 7
        s_add_u32 s{sH1}, s{sH1}, s{sH1b}
        s_cmp_ge_u32 s{sC}, 8
        s_cselect_b32 s{sH1}, {OOB}, s{sH1}
        s_cselect_b32 s{sPDA}, {OOB}, s{sPDA}
        s_lshl_b32 s{sH1b}, s{sW}, 10
        s_add_u32 m0, s{sH1b}, {R0 + 49152}
        s_nop 0
        """)
        k.vmem(f"buffer_load_dwordx4 v{vWB+8}, {srd(S_WO)}, s{sH1} offen{NTP} lds", "pwo")

    W0P = o.get("w0p", 0)
    if W0P == 0:
        k.play(w0_[nw0:])

    if o.get("diags"): k.stamp("iss0")

    def arm(mode):
        with k.atomic():
            k(f"s_lshl2_add_u32 s{sT2}, s{sC}, s{sW}")
            k(f"s_lshl_b32 s{sT3}, s{sT2}, 11")
            k(f"s_add_u32 s{sT3}, s{sT3}, s{sGB}")
            k(f"s_add_u32 s{sT3}, s{sT3}, {G_X1}")
            k(f"s_lshr_b32 s{sT4}, s{sT2}, 3")
            k(f"s_mul_i32 s{sT4}, s{sT4}, 57344")
            k(f"s_and_b32 s{sT2}, s{sT2}, 7")
            k(f"s_mul_i32 s{sT2}, s{sT2}, {5120 if mode & 4 else 1024}")
            k(f"s_add_u32 s{sT4}, s{sT4}, s{sT2}")
            k(f"s_add_u32 s{sT4}, s{sT4}, s{sGB}")
            k(f"s_add_u32 s{sT4}, s{sT4}, {G_H + 16*1024}")
            k(f"s_add_u32 s{sT2}, s{sT4}, 4096")
        if mode & 1:
            for j in range(2):
                k.vmem(f"buffer_store_dwordx4 {vr(vQ0,4)}, v{vL16}, {srd(S_WS)}, s{sT3} offen offset:{j*1024} sc1", "arm")
        for j in range(5 if mode & 4 else 1 if mode & 2 else 0):
            k.vmem(f"buffer_store_dwordx4 {vr(vQ0,4)}, v{vL16}, {srd(S_WS)}, s{sT4 if j < 4 else sT2} offen offset:{(j%4)*1024} sc1", "arm")

    k(f"""
    s_mov_b32 s{S_OUT+2}, {2048*1024}
    s_mov_b32 s{S_OUT+3}, 0x20000
    s_lshr_b32 s{sDH}, s{sC}, 3
    s_and_b32 s{sCT}, s{sC}, 7
    s_mov_b32 s{sBUD}, 150000
    s_mov_b32 s{sEPS}, 0x358637bd
    s_mov_b32 s{sEPS+1}, 0x358637bd
    s_getreg_b32 s{sXCC}, hwreg(HW_REG_XCC_ID, 0, 4)
    s_lshl_b32 s{sACT}, s{sW}, 15
    s_add_u32 s{sACT}, s{sACT}, s{sGB}
    s_add_u32 s{sACT1}, s{sACT}, 16384
    s_lshl2_add_u32 s{sT0}, s{sDH}, s{sW}
    s_lshl_b32 s{sBACT}, s{sT0}, 14
    s_add_u32 s{sBACT}, s{sBACT}, s{sGB}
    s_lshl_b32 s{sTILE}, s{sCT}, 11
    s_add_u32 s{sTILE}, s{sTILE}, s{sBACT}
    s_mul_i32 s{sBACT}, s{sT0}, 57344
    s_add_u32 s{sBACT}, s{sBACT}, s{sGB}
    s_mul_i32 s{sOST}, s{sW}, {2*57344}
    s_lshl_b32 s{sOST1}, s{sC}, 10
    s_add_u32 s{sOST}, s{sOST}, s{sOST1}
    s_add_u32 s{sOST}, s{sOST}, s{sGB}
    s_add_u32 s{sOST}, s{sOST}, {G_O}
    s_add_u32 s{sOST1}, s{sOST}, 57344
    s_lshl_b32 s{sFXp}, s{sW}, 7
    s_add_u32 s{sFXp}, s{sFXp}, s{sGB}
    s_lshl2_add_u32 s{sFOo}, s{sC}, s{sFXp}
    s_lshl_b32 s{sFHp}, s{sT0}, 7
    s_add_u32 s{sFHp}, s{sFHp}, s{sGB}
    s_lshr_b32 s{sT0}, s{sT0}, 1
    s_mov_b32 s{sT1}, s{sT0}
    s_lshl_b32 s{sFOp}, s{sT0}, 7
    s_add_u32 s{sFOp}, s{sFOp}, s{sGB}
    s_and_b32 s{sT2}, s{sW}, 1
    s_lshl1_add_u32 s{sT3}, s{sCT}, s{sT2}
    s_lshl2_add_u32 s{sFXo}, s{sT3}, s{sFOp}
    s_lshl3_add_u32 s{sT3}, s{sT0}, s{sCT}
    s_lshl_b32 s{sT3}, s{sT3}, 8
    s_lshl3_add_u32 s{sT3}, s{sT2}, s{sT3}
    s_add_u32 s{sSTo}, s{sT3}, s{sGB}
    s_lshl_b32 s{sSTg}, s{sW}, 11
    s_add_u32 s{sSTg}, s{sSTg}, s{sGB}
    s_lshl2_add_u32 s{sT1}, s{sT1}, s{sT2}
    s_lshl_b32 s{sT1}, s{sT1}, 6
    s_add_u32 s{sT1}, s{sT1}, {L_STAT + 128}
    v_lshl_add_u32 v{vT3}, v{vT1}, 2, s{sT1}
    v_accvgpr_write_b32 a{cRSD}, v{vT3}
    s_mul_i32 s{sT0}, s{sW}, {2*57344}
    s_add_u32 s{sT0}, s{sT0}, s{sGB}
    s_lshr_b32 s{sT3}, s{sC}, 2
    s_add_u32 s{sT0}, s{sT0}, {G_H}
    s_lshl_b32 s{sH1}, s{sC}, 11
    s_add_u32 s{sH1}, s{sH1}, {24*1024}
    s_add_u32 s{sH1}, s{sH1}, s{sT0}
    s_add_u32 s{sH1b}, s{sH1}, 57344
    s_mul_i32 s{sT4}, s{sT3}, 6144
    s_add_u32 s{sT0}, s{sT0}, s{sT4}
    s_and_b32 s{sT4}, s{sC}, 3
    s_mul_i32 s{sH2}, s{sT4}, 3
    s_add_u32 s{sH2}, s{sH2}, 1
    s_lshr_b32 s{sH2}, s{sH2}, 1
    s_lshl_b32 s{sH2}, s{sH2}, 10
    s_add_u32 s{sH2}, s{sH2}, s{sT0}
    s_add_u32 s{sH2b}, s{sH2}, 57344
    s_lshr_b32 s{sH3}, s{sT4}, 1
    s_mul_i32 s{sH3}, s{sH3}, 3072
    s_and_b32 s{sH3b}, s{sT4}, 1
    s_lshl3_add_u32 s{sH3}, s{sH3b}, s{sH3}
    s_add_u32 s{sH3}, s{sH3}, 1024
    s_add_u32 s{sH3}, s{sH3}, s{sT0}
    s_add_u32 s{sH3b}, s{sH3}, 57344
    s_lshr_b32 s{sT0}, s{sW}, 1
    s_lshl2_add_u32 s{sT0}, s{sT0}, s{sT3}
    s_lshl_b32 s{sT0}, s{sT0}, 7
    s_lshl1_add_u32 s{sT2}, s{sT4}, s{sT2}
    s_lshl2_add_u32 s{sT0}, s{sT2}, s{sT0}
    s_add_u32 s{sFHo}, s{sT0}, s{sGB}
    """)
    k(f"""
    s_mul_i32 s{sT0}, s{sC}, {KVX_C}
    s_add_u32 s{sT0}, s{sT0}, {WS_KVX}
    s_lshl_b32 s{sT1}, s{sW}, 13
    s_add_u32 s{sKVC}, s{sT0}, s{sT1}
    s_lshl_b32 s{sT2}, s{sW}, 14
    s_lshl_b32 s{sT3}, s{sG}, 10
    s_lshl_b32 s{sT4}, s{sG}, 7
    s_cmp_lt_u32 s{sW}, 2
    s_cselect_b32 s{sT3}, s{sT3}, s{sT4}
    s_cselect_b32 s{sKM}, -1, 0x30003
    s_cselect_b32 s{sKM+1}, -1, 0x30003
    s_cselect_b64 vcc, -1, 0
    s_add_u32 s{sKVP}, s{sT0}, s{sT2}
    s_add_u32 s{sKVP}, s{sKVP}, s{sT3}
    s_cmp_eq_u32 s{sW}, 3
    s_cselect_b32 s{sKVP}, {OOB}, s{sKVP}
    v_lshlrev_b32 v{vT3}, 4, v{vT0}
    v_lshl_add_u32 v{vT3}, v{vT1}, 6, v{vT3}
    v_cndmask_b32 v{vT3}, v{vT3}, v{vL16}, vcc
    v_accvgpr_write_b32 a{cKVS}, v{vT3}
    v_lshlrev_b32 v{vT3}, 2, v{vL16}
    v_and_b32 v{vT3}, 0xf00, v{vT3}
    v_lshrrev_b32 v{vT3}, 1, v{vT3}
    v_and_b32 v{vWB}, 48, v{vL16}
    s_lshr_b32 s{sT2}, s{sW}, 1
    s_lshl_b32 s{sT2}, s{sT2}, 6
    s_add_u32 s{sT2}, s{sT2}, 32768
    s_sub_u32 s{sT2}, s{sT2}, s{sT1}
    v_add3_u32 v{vT3}, v{vT3}, v{vWB}, s{sT2}
    v_accvgpr_write_b32 a{cZL}, v{vT3}
    v_and_b32 v{vWB+5}, 1, v{vLANE}
    v_cndmask_b32 v{vWB+5}, v{vWB+5}, 0, vcc
    s_min_u32 s{sT5}, s{sW}, 2
    """)
    W = vWB
    k(f"""
    v_lshl_add_u32 v{XR}, v{vT1}, 8, v{vT2}
    v_add_u32 v{XR}, s{sL0}, v{XR}
    v_xor_b32 v{XR+1}, 64, v{XR}
    v_xor_b32 v{XR+2}, 0x80, v{XR}
    v_xor_b32 v{XR+3}, 0xc0, v{XR}
    v_and_b32 v{vT3}, 3, v{vLANE}
    v_lshlrev_b32 v{vT3}, 3, v{vT3}
    v_lshl_add_u32 v{vTR0}, v{vP}, 6, v{vT3}
    v_lshl_add_u32 v{vQ0}, v{vP}, 7, v{vT3}
    v_and_b32 v{vT3}, 1, v{vT0}
    v_lshlrev_b32 v{vT3}, 5, v{vT3}
    v_add_u32 v{vTR0}, v{vTR0}, v{vT3}
    v_xor_b32 v{vTR1}, 32, v{vTR0}
    v_bfe_u32 v{vT3}, v{vLANE}, 3, 2
    v_lshl_add_u32 v{vQ0}, v{vT3}, 5, v{vQ0}
    v_xor_b32 v{vQ1}, 32, v{vQ0}
    v_xor_b32 v{vQ2}, 64, v{vQ0}
    v_xor_b32 v{vQ3}, 0x60, v{vQ0}
    v_lshlrev_b32 v{W}, 2, v{vT1}
    v_accvgpr_write_b32 a{cP16}, v{W}
    v_mov_b32 v{W+1}, {BF1}
    v_accvgpr_write_b32 a{aONES}, v{W+1}
    v_accvgpr_write_b32 a{aONES+1}, v{W+1}
    v_accvgpr_write_b32 a{aONES+2}, v{W+1}
    v_accvgpr_write_b32 a{aONES+3}, v{W+1}
    v_add_u32 v{W+1}, {L_CS}, v{W}
    v_accvgpr_write_b32 a{cCSA}, v{W+1}
    v_and_b32 v{W+2}, 48, v{vLANE}
    v_add_u32 v{W+1}, {L_CS}, v{W+2}
    v_accvgpr_write_b32 a{cCSB}, v{W+1}
    v_lshlrev_b32 v{W+1}, 2, v{vT0}
    v_lshl_add_u32 v{W+1}, v{vT1}, 4, v{W+1}
    v_accvgpr_write_b32 a{cSTO}, v{W+1}
    s_lshl_b32 s{sT0}, s{sW}, 8
    s_add_u32 s{sT0}, s{sT0}, {L_STAT}
    v_add_u32 v{W+1}, s{sT0}, v{W}
    v_accvgpr_write_b32 a{cSTA}, v{W+1}
    v_and_b32 v{W+3}, 32, v{vLANE}
    v_lshl_add_u32 v{W+1}, v{W+3}, 1, v{W+1}
    v_accvgpr_write_b32 a{cSTW}, v{W+1}
    v_add_u32 v{W+1}, s{sT0}, v{W+2}
    v_accvgpr_write_b32 a{cSTB}, v{W+1}
    s_lshl_b32 s{sT0}, s{sW}, 10
    v_add_u32 v{W+1}, s{sT0}, v{vL16}
    v_accvgpr_write_b32 a{cKW}, v{W+1}
    v_add_u32 v{W+3}, {R2 + 8192}, v{W+1}
    v_accvgpr_write_b32 a{cKW1}, v{W+3}
    s_lshl_b32 s{sT0}, s{sT5}, 14
    v_add_u32 v{W+1}, s{sT0}, v{vL16}
    v_lshl_add_u32 v{W+1}, v{W+5}, 12, v{W+1}
    v_accvgpr_write_b32 a{cKR}, v{W+1}
    s_lshl_b32 s{sT0}, s{sT5}, 14
    s_add_u32 s{sT0}, s{sT0}, {R2 + 8192}
    v_add_u32 v{W+1}, s{sT0}, v{vL16}
    v_lshl_add_u32 v{W+1}, v{W+5}, 14, v{W+1}
    v_accvgpr_write_b32 a{cKR1}, v{W+1}
    v_add_u32 v{W+1}, {L_XB}, v{vL16}
    v_accvgpr_write_b32 a{cXR}, v{W+1}
    v_lshlrev_b32 v{W+3}, 3, v{vT0}
    v_add_u32 v{W+3}, {L_ZB}, v{W+3}
    v_accvgpr_write_b32 a{cZR}, v{W+3}
    """)
    k(f"""
    s_lshl_b32 s{sT0}, s{sW}, 10
    v_add_u32 v{W+1}, s{sT0}, v{W+1}
    v_accvgpr_write_b32 a{cXW}, v{W+1}
    v_and_b32 v{W+3}, 1, v{vT0}
    v_lshrrev_b32 v{W+4}, 1, v{vT0}
    v_lshl_add_u32 v{W+3}, v{W+3}, 1, v{W+4}
    v_and_b32 v{W+4}, 3, v{vLANE}
    v_lshl_add_u32 v{W+3}, v{W+4}, 2, v{W+3}
    s_lshr_b32 s{sT0}, s{sW}, 1
    s_lshl_b32 s{sT0}, s{sT0}, 5
    s_add_u32 s{sT0}, s{sT0}, {L_ZB}
    v_lshl_add_u32 v{W+3}, v{W+3}, 1, s{sT0}
    v_accvgpr_write_b32 a{cZW}, v{W+3}
    """)
    for j in range(4):
        k(f"s_add_u32 s{sT0}, s{sW}, {j}")
        k(f"s_and_b32 s{sT0}, s{sT0}, 3")
        k(f"s_lshl_b32 s{sT0}, s{sT0}, 13")
        k(f"s_add_u32 s{sT0}, s{sT0}, {L_RED + (4096 if j == 2 else 0)}")
        k(f"v_add_u32 v{W+1}, s{sT0}, v{vL16}")
        k(f"v_accvgpr_write_b32 a{cRD0+j}, v{W+1}")
    k(f"""
    s_lshl2_add_u32 s{sT0}, s{sDH}, s{sW}
    s_lshl3_add_u32 s{sT0}, s{sG}, s{sT0}
    s_lshl_b32 s{sT0}, s{sT0}, 14
    s_lshl_b32 s{sT1}, s{sCT}, 7
    s_add_u32 s{sT0}, s{sT0}, s{sT1}
    v_lshl_add_u32 v{W+1}, v{vT1}, 10, s{sT0}
    v_and_b32 v{W+3}, 1, v{vT0}
    v_lshl_add_u32 v{W+1}, v{W+3}, 5, v{W+1}
    v_lshrrev_b32 v{W+3}, 1, v{vT0}
    v_lshl_add_u32 v{W+1}, v{W+3}, 4, v{W+1}
    v_accvgpr_write_b32 a{cOUT}, v{W+1}
    """)

    def xread(q):
        k.vm_wait(("xs", q))
        for ksl in range(4):
            for rb in range(2):
                k.lds(f"ds_read_b128 {vr(act(4*q+ksl, rb),4)}, v{XR+ksl} offset:{(q%2)*8192 + rb*4096}", ("xr", q))

    SUM0, SQ0, SUM1, SQ1 = vACC + 56, vACC + 57, vACC + 58, vACC + 59
    SUMA, SQA = vACC + 48, vACC + 56
    ONES = vPQ + 4
    NM_A, RS_A, RL_A = vACC + 60, vACC + 62, vACC + 56
    NM_B, RS_B, RL_B = vACC + 32, vACC + 40, vACC + 48
    STG = vACC + 48

    def own_stats():
        a, b, c, d = OWN + 8, OWN + 9, OWN + 10, OWN + 11
        k(f"v_mov_b32 v{OWN+12}, {BF1}")
        k.vm_wait("own")
        for j in range(4):
            r0, r1 = OWN + j, OWN + 4 + j
            k(f"v_dot2_f32_bf16 v{a}, v{OWN+12}, v{r0}, {'0' if j == 0 else f'v{a}'}")
            k(f"v_dot2_f32_bf16 v{c}, v{OWN+12}, v{r1}, {'0' if j == 0 else f'v{c}'}")
            k(f"v_dot2_f32_bf16 v{b}, v{r0}, v{r0}, {'0' if j == 0 else f'v{b}'}")
            k(f"v_dot2_f32_bf16 v{d}, v{r1}, v{r1}, {'0' if j == 0 else f'v{d}'}")
        k(f"""
        s_waitcnt lgkmcnt(0)
        s_mul_i32 s{sTAG}, s{sEP}, 0x9E3779B1
        s_add_u32 s{sTAG}, s{sTAG}, 0x7F4A7C15
        s_add_u32 s{sT8}, s{sEP}, 1
        s_and_b32 s{sT8}, s{sT8}, 0xff
        s_mov_b32 s{sS8}, s{sEP}
        v_permlane32_swap_b32 v{a}, v{c}
        v_permlane32_swap_b32 v{b}, v{d}
        v_add_f32 v{a}, v{a}, v{c}
        v_add_f32 v{b}, v{b}, v{d}
        v_mov_b32 v{c}, v{a}
        v_mov_b32 v{d}, v{b}
        s_nop 1
        v_permlane16_swap_b32 v{a}, v{c}
        v_permlane16_swap_b32 v{b}, v{d}
        v_add_f32 v{a}, v{a}, v{c}
        v_add_f32 v{b}, v{b}, v{d}
        """)
        for sh in (8, 4, 2, 1):
            k("s_nop 0")
            k(f"v_add_f32_dpp v{a}, v{a}, v{a} row_ror:{sh} row_mask:0xf bank_mask:0xf")
            k(f"v_add_f32_dpp v{b}, v{b}, v{b} row_ror:{sh} row_mask:0xf bank_mask:0xf")
        k(f"""
        v_mul_f32 v{a}, 0xbb000000, v{a}
        v_mul_f32 v{b}, 0x3b000000, v{b}
        v_fma_f32 v{b}, -v{a}, v{a}, v{b}
        v_max_f32 v{b}, 0, v{b}
        v_add_f32 v{b}, 0x3727c5ac, v{b}
        v_rsq_f32 v{b}, v{b}
        v_mov_b32 v{c}, s{sTAG}
        v_mov_b32 v{d}, s{sXCC}
        v_lshrrev_b32 v{vT3}, 1, v{vLANE}
        s_lshl4_add_u32 s{sT2}, s{sW}, s{sC}
        s_lshl_b32 s{sT2}, s{sT2}, 7
        s_add_u32 s{sT2}, s{sT2}, s{sGB}
        s_add_u32 s{sT2}, s{sT2}, {G_ST0}
        s_mov_b32 exec_lo, 1
        s_mov_b32 exec_hi, 1
        """)
        k.vmem(f"buffer_store_dwordx4 {vr(a,4)}, v{vT3}, {srd(S_WS)}, s{sT2} offen sc1", "ownst")
        k("s_mov_b64 exec, -1")

    S0 = vACC + 52

    def st0_issue():
        with k.atomic():
            k(f"v_and_b32 v{vT0}, 30, v{vLANE}")
            k(f"v_lshlrev_b32 v{vT0}, 6, v{vT0}")
            k(f"v_and_b32 v{vT1}, 16, v{vL16}")
            k(f"v_add_u32 v{vT0}, v{vT0}, v{vT1}")
            k(f"s_add_u32 s{sT4}, s{sSTg}, {G_ST0}")
            k.vmem(f"buffer_load_dwordx4 {vr(S0,4)}, v{vT0}, {srd(S_WS)}, s{sT4} offen sc1", "st0")

    def st0_use():
        lp, ok = k.label("L_s0"), k.label("L_s0ok")
        with k.atomic():
            k.vm_wait("st0")
            k(f"{lp}:")
            k(f"v_cmp_ne_u32 vcc, s{sTAG}, v{S0+2}")
            k(f"s_cbranch_vccz {ok}")
            k(f"buffer_load_dwordx4 {vr(S0,4)}, v{vT0}, {srd(S_WS)}, s{sT4} offen sc1")
            k("s_waitcnt vmcnt(0)")
            k(f"s_sub_u32 s{sBUD}, s{sBUD}, 1")
            k(f"s_cbranch_scc0 {lp}")
            k(f"s_mov_b32 s{sBUD}, 0")
            k(f"{ok}:")
            k(f"v_cmp_ne_u32 vcc, s{sXCC}, v{S0+3}")
            k("s_nop 4")
            k(f"s_or_b32 s{sSLOW}, vcc_lo, {1 if o.get('forceslow') else 0}")
        k.get(vT0, cSTA)
        k(f"v_and_b32 v{vT1}, 16, v{vLANE}")
        k(f"v_lshl_add_u32 v{vT1}, v{vT1}, 2, v{vT0}")
        k.lds(f"ds_write2_b32 v{vT1}, v{S0}, v{S0+1} offset0:0 offset1:32")
        k.lds(f"ds_read2_b32 {vr(NM_A,2)}, v{vT0} offset0:0 offset1:16", "sta")
        k.lds(f"ds_read2_b32 {vr(RS_A,2)}, v{vT0} offset0:32 offset1:48", "sta")

    def stats_finalize(need_rs):
        k.get(vT1, cSTW)
        k.get(vT0, cSTA)
        k(f"""
        v_permlane32_swap_b32 v{SUM0}, v{SUM1}
        v_permlane32_swap_b32 v{SQ0}, v{SQ1}
        v_add_f32 v{SUM0}, v{SUM0}, v{SUM1}
        v_add_f32 v{SQ0}, v{SQ0}, v{SQ1}
        v_mov_b32 v{SUM1}, v{SUM0}
        v_mov_b32 v{SQ1}, v{SQ0}
        s_nop 0
        v_permlane16_swap_b32 v{SUM0}, v{SUM1}
        v_permlane16_swap_b32 v{SQ0}, v{SQ1}
        v_add_f32 v{SUM0}, v{SUM0}, v{SUM1}
        v_add_f32 v{SQ0}, v{SQ0}, v{SQ1}
        v_mul_f32 v{SUM0}, 0xbb000000, v{SUM0}
        v_mul_f32 v{SQ0}, 0x3b000000, v{SQ0}
        v_fma_f32 v{SQ0}, -v{SUM0}, v{SUM0}, v{SQ0}
        v_max_f32 v{SQ0}, 0, v{SQ0}
        v_add_f32 v{SQ0}, 0x3727c5ac, v{SQ0}
        v_rsq_f32 v{SQ0}, v{SQ0}
        s_nop 0
        """)
        k.lds(f"ds_write2_b32 v{vT1}, v{SUM0}, v{SQ0} offset0:0 offset1:32")
        k.lds(f"ds_read2_b32 {vr(NM_A,2)}, v{vT0} offset0:0 offset1:16", "sta")
        if need_rs:
            k.lds(f"ds_read2_b32 {vr(RS_A,2)}, v{vT0} offset0:32 offset1:48", "sta")

    def stats_b():
        k.get(vT1, cSTB)
        for rb in range(2):
            k.lds(f"ds_read_b128 {vr(NM_B+4*rb,4)}, v{vT1} offset:{64*rb}", "sta")
            k.lds(f"ds_read_b128 {vr(RS_B+4*rb,4)}, v{vT1} offset:{128+64*rb}", "sta")

    def stats_scale():
        k.ds_wait("sta")
        for j in range(8):
            k(f"v_mul_f32 v{RL_B+j}, 0x3fb8aa3b, v{RS_B+j}")
        for j in range(2):
            k(f"v_mul_f32 v{RL_A+j}, 0x3fb8aa3b, v{RS_A+j}")

    def set_ones(r):
        for j in range(4):
            k(f"v_mov_b32 v{r+j}, {BF1}")

    def cs_put(first, sblk):
        k.get(vT0, cCSA)
        k(f"s_lshl_b32 s{sT5}, s{sblk}, 6")
        k(f"v_add_u32 v{vT0}, s{sT5}, v{vT0}")
        k.lds(f"ds_write_b32 v{vT0}, a{aCS} offset:{first*64}")

    def phi_block(acc, nm, cs, rl, rs, dst, tmp, lay):
        s1, s2, s3, s4, s5 = [], [], [], [], []
        for p in range(2):
            a2 = vr(acc + 2*p, 2)
            t2 = vr(tmp + 2*p, 2)
            if lay == "b":
                c2, m = bcast(cs, 1, 3)
                s1.append(f"v_pk_fma_f32 {a2}, {vr(nm+2*p,2)}, {c2}, {a2}{m}")
                s2.append(f"v_pk_mul_f32 {t2}, {a2}, {vr(rl+2*p,2)}")
                s4.append(f"v_pk_fma_f32 {a2}, {a2}, {vr(rs+2*p,2)}, {t2}")
            else:
                c2, m = bcast(nm, 1, 3)
                s1.append(f"v_pk_fma_f32 {a2}, {vr(cs+2*p,2)}, {c2}, {a2}{m}")
                c2, m = bcast(rl, 1, 2)
                s2.append(f"v_pk_mul_f32 {t2}, {a2}, {c2}{m}")
                c2, m = bcast(rs, 1, 3)
                s4.append(f"v_pk_fma_f32 {a2}, {a2}, {c2}, {t2}{m}")
            for j in range(2):
                s3.append(f"v_exp_f32 v{tmp+2*p+j}, v{tmp+2*p+j} clamp")
            s5.append(f"v_pk_add_f32 {a2}, {a2}, s[{sEPS}:{sEPS+1}]")
        for s in s1 + s2 + s3:
            k(s)
        for j in range(4):
            k(f"v_max_f32 v{acc+j}, 0, v{acc+j}")
        for s in s4 + s5:
            k(s)
        for p in range(2):
            k(f"v_cvt_pk_bf16_f32 v{dst+p}, v{acc+2*p}, v{acc+2*p+1}")

    def ring(ks, rb):
        return vACT + 8 * (ks % 6) + 4 * rb
    QA, vPARK = vACT + 48, vACT + 64

    def act_loads(bufoff, act=act, rot=False):
        for ks in range(16):
            for rb in range(2):
                with k.atomic():
                    if ks % 4 == 0:
                        k(f"s_add_u32 s{sT2+rb}, s{sACT+rb}, {f's{S_A + ks//4}' if rot else bufoff + ks*1024}")
                    k.vmem(f"buffer_load_dwordx4 {vr(act(ks,rb),4)}, v{vL16}, {srd(S_WS)}, s{sT2+rb} offen offset:{(ks%4)*1024} sc1",
                           ("act", ks, rb))

    def stat_loads(stoff, STG=STG):
        k(f"s_add_u32 s{sT4}, s{sSTg}, {stoff}")
        for j in range(2):
            k.vmem(f"buffer_load_dwordx4 {vr(STG+4*j,4)}, v{vL16}, {srd(S_WS)}, s{sT4} offen offset:{j*1024} sc1", "stg")

    def stat_sum(STG=STG):
        lp, ok = k.label("L_sg"), k.label("L_sgok")
        k.vm_wait("stg")

        def chk():
            for j in range(8):
                k(f"v_xor_b32 v{STG+j}, s{sS8}, v{STG+j}")
            k(f"v_or3_b32 v{SUM0}, v{STG}, v{STG+1}, v{STG+2}")
            k(f"v_or3_b32 v{SUM0+1}, v{STG+3}, v{STG+4}, v{STG+5}")
            k(f"v_or3_b32 v{SUM0}, v{SUM0}, v{STG+6}, v{STG+7}")
            k(f"v_or_b32 v{SUM0}, v{SUM0}, v{SUM0+1}")
            k(f"v_and_b32 v{SUM0}, 0xff, v{SUM0}")
        chk()
        with k.atomic():
            k(f"v_cmp_ne_u32 vcc, 0, v{SUM0}")
            k(f"s_cbranch_vccnz {lp}")
            k(f"{ok}:")
        sv, k._rec = k._rec, None
        n0 = len(k.lines)
        k(f"{lp}:")
        for j in range(2):
            k(f"buffer_load_dwordx4 {vr(STG+4*j,4)}, v{vL16}, {srd(S_WS)}, s{sT4} offen offset:{j*1024} sc1")
        k("s_waitcnt vmcnt(0)")
        chk()
        k(f"v_cmp_ne_u32 vcc, 0, v{SUM0}")
        k(f"s_cbranch_vccz {ok}")
        k(f"s_sub_u32 s{sBUD}, s{sBUD}, 1")
        k(f"s_cbranch_scc0 {lp}")
        k(f"s_mov_b32 s{sBUD}, 0")
        k(f"s_branch {ok}")
        k.tailcode += k.lines[n0:]
        del k.lines[n0:]
        k._rec = sv
        for j in range(4):
            k(f"v_add_f32 v{SUM0+j}, v{STG+j}, v{STG+4+j}")

    def mf2(acc, ks, sw, wait, first=None, act=act):
        return [(acc + 4 * rb, act(ks, rb), sw, (ks == 0) if first is None else first,
                 (("act", ks, 1) if ks else ("act", ks, rb)) if wait else None) for rb in range(2)]

    def wo_raw():
        with k.atomic():
            quad_lane(1024)
            k(f"s_lshl_b32 s{sD0}, s{sW}, 17")
            k(f"s_lshl_b32 s{sD1}, s{sCT}, 7")
            k(f"s_add_u32 s{sD0}, s{sD0}, s{sD1}")
            k(f"s_lshl_b32 s{sL0}, s{sW}, 14")
        for j in range(16):
            k.dma(S_WO, vDM, sD0, j * 8 * 1024, sL0, R0 + j * 1024, "wo")

    def w1c1_raw():
        with k.atomic():
            quad_lane(3584, tmp=vACT + 127)
            k(f"s_lshr_b32 s{sD0}, s{sC}, 2")
            k(f"s_mul_i32 s{sD0}, s{sD0}, 896")
            k(f"s_and_b32 s{sD1}, s{sC}, 3")
            k(f"s_lshl_b32 s{sD1}, s{sD1}, 7")
            k(f"s_add_u32 s{sD0}, s{sD0}, s{sD1}")
            k(f"s_mul_i32 s{sD1}, s{sW}, {64*3584}")
            k(f"s_add_u32 s{sD0}, s{sD0}, s{sD1}")
            k(f"s_lshl_b32 s{sL0}, s{sW}, 13")
        for half in range(2):
            for j in range(8):
                k.dma(S_W1, vDM, sD0, (half * 256 + j * 8) * 3584, sL0, R1 + half * 32768 + j * 1024, "w1a")

    def lin_dma(src, dst, n, tag, shared=False):
        for j in range(n):
            with k.atomic():
                if j == 0:
                    k(f"s_mul_i32 s{sL0}, s{sW}, {n*1024}")
                    k(f"s_add_u32 s{sD0}, s{sL0}, s{sPKB}")
                    if shared:
                        k(f"s_mul_i32 s{sD1}, s{sDH}, {8*PK_SZ}")
                        k(f"s_sub_u32 s{sD0}, s{sD0}, s{sD1}")
                if j % 4 == 0:
                    k(f"s_add_u32 m0, s{sL0}, {dst + j*1024}")
                    k(f"s_add_u32 s{sD1}, s{sD0}, {src + j*1024}")
                k.vmem(f"buffer_load_dwordx4 v{vL16}, {srd(S_WS)}, s{sD1} offen offset:{(j%4)*1024} sc1 lds", tag)

    def publish_x(bufoff, stoff, floff, pay_sc1):
        k(f"s_add_u32 s{sT1}, s{sTILE}, {bufoff}")
        k.stores([f"buffer_store_dwordx4 {vr(vRES+4*s,4)}, v{vL16}, {srd(S_WS)}, s{sT1} offen offset:{s*1024}" for s in range(2)], pay_sc1)
        a, b, c, d = vT0, vT1, vT2, vT3
        for j in range(4):
            r0, r1 = vRES + j, vRES + 4 + j
            if j == 0:
                k(f"v_mov_b32 v{vWB+9}, {BF1}")
                k(f"v_dot2_f32_bf16 v{b}, v{r0}, v{r0}, 0")
                k(f"v_dot2_f32_bf16 v{d}, v{r1}, v{r1}, 0")
                k(f"v_dot2_f32_bf16 v{a}, v{vWB+9}, v{r0}, 0")
                k(f"v_dot2_f32_bf16 v{c}, v{vWB+9}, v{r1}, 0")
            else:
                k(f"v_dot2_f32_bf16 v{b}, v{r0}, v{r0}, v{b}")
                k(f"v_dot2_f32_bf16 v{d}, v{r1}, v{r1}, v{d}")
                k(f"v_dot2_f32_bf16 v{a}, v{vWB+9}, v{r0}, v{a}")
                k(f"v_dot2_f32_bf16 v{c}, v{vWB+9}, v{r1}, v{c}")
        k.get(vWB + 8, cSTO)
        k(f"""
        s_add_u32 s{sT3}, s{sSTo}, {stoff}
        v_add_f32 v{b}, v{b}, v{d}
        v_add_f32 v{a}, v{a}, v{c}
        s_nop 1
        v_permlane16_swap_b32 v{a}, v{b}
        v_add_f32 v{a}, v{a}, v{b}
        v_mov_b32 v{b}, v{a}
        s_nop 1
        v_permlane32_swap_b32 v{a}, v{b}
        v_add_f32 v{c}, v{a}, v{b}
        s_add_u32 s{sS8}, s{sS8}, 1
        s_and_b32 s{sS8}, s{sS8}, 0xff
        v_and_b32 v{c}, 0xffffff00, v{c}
        v_or_b32 v{c}, s{sS8}, v{c}
        s_mov_b32 exec_hi, 0
        """)
        k.stores([f"buffer_store_dword v{c}, v{vWB+8}, {srd(S_WS)}, s{sT3} offen"], False, "sts" if o.get("sto", 1) else "st")
        k("s_mov_b64 exec, -1")
        k.poll_prep(15)

    def unpack_res(dst):
        for f in range(4):
            for p in range(2):
                r = vRES + 2*f + p
                k(f"v_lshlrev_b32 v{dst+4*f+2*p}, 16, v{r}")
                k(f"v_and_b32 v{dst+4*f+2*p+1}, 0xffff0000, v{r}")

    def misc_l1():
        k(f"""
        s_add_u32 s{sT2}, s{sTAG}, s{sXCC}
        s_add_u32 s{sT2}, s{sT2}, 2
        v_mov_b32 v{vT1}, s{sT2}
        s_lshl4_add_u32 s{sT2}, s{sG}, s{sC}
        s_lshl_b32 s{sT2}, s{sT2}, 7
        s_add_u32 s{sT2}, s{sT2}, {WS_XID}
        """)
        with k.atomic():
            k(f"s_cmp_lg_u32 s{sW}, 0")
            k(f"s_cselect_b32 s{sT2}, {OOB}, s{sT2}")
            k("s_mov_b64 exec, 1")
            k.vmem(f"buffer_store_dword v{vT1}, v{vL16}, {srd(S_WS)}, s{sT2} offen sc1", "xid")
            k("s_mov_b64 exec, -1")

    def res_load():
        k.get(vT0, cOUT)
        for s_ in range(2):
            k.vmem(f"buffer_load_dwordx4 {vr(vRES+4*s_,4)}, v{vT0}, {srd(S_X)}, 0 offen offset:{64*s_}", "res")

    def touch(kind, vSP=vSP):
        with k.atomic():
            k(f"s_lshl2_add_u32 s{sD3}, s{sC}, s{sW}")
            sD2 = sD3
            if kind == "h":
                k(f"s_mul_i32 s{sD2}, s{sD2}, 7168")
                k(f"s_add_u32 s{sD2}, s{sD2}, s{sGB}")
                k(f"s_add_u32 s{sD2}, s{sD2}, {G_H}")
                k(f"v_lshlrev_b32 v{vSP}, 7, v{vLANE}")
                k("s_mov_b32 exec_hi, 0xffffff")
                k.vmem(f"buffer_load_dword a{aDUM}, v{vSP}, {srd(S_WS)}, s{sD2} offen sc1", "touch")
                k("s_mov_b32 exec_hi, -1")
            else:
                k(f"v_lshlrev_b32 v{vSP}, 7, v{vLANE}")
                k(f"s_lshl_b32 s{sT5}, s{sD2}, 11")
                k(f"s_add_u32 s{sT5}, s{sT5}, s{sGB}")
                k(f"s_add_u32 s{sT5}, s{sT5}, {G_X1}")
                k("s_mov_b64 exec, 0xffff")
                k.vmem(f"buffer_load_dword a{aDUM}, v{vSP}, {srd(S_WS)}, s{sT5} offen sc1", "touch")
                k(f"s_lshl_b32 s{sD2}, s{sD2}, 7")
                k(f"s_add_u32 s{sD2}, s{sD2}, s{sGB}")
                k("s_mov_b64 exec, 1")
                k(f"s_add_u32 s{sD2}, s{sD2}, {G_ST1}")
                k.vmem(f"buffer_load_dword a{aDUM}, v{vSP}, {srd(S_WS)}, s{sD2} offen sc1", "touch")
                k("s_mov_b64 exec, -1")

    def touch_slots(first, n, va=vSP):
        with k.atomic():
            k(f"s_lshl2_add_u32 s{sD3}, s{sC}, s{sW}")
            k(f"v_lshlrev_b32 v{va}, 7, v{vLANE}")
            k(f"s_lshr_b32 s{sT5}, s{sD3}, 3")
            k(f"s_mul_i32 s{sT5}, s{sT5}, 57344")
            k(f"s_and_b32 s{sD3}, s{sD3}, 7")
            k(f"s_mul_i32 s{sD3}, s{sD3}, {n*128}")
            k(f"s_add_u32 s{sT5}, s{sT5}, s{sD3}")
            k(f"s_add_u32 s{sT5}, s{sT5}, s{sGB}")
            k(f"s_add_u32 s{sT5}, s{sT5}, {G_H + first*1024}")
            k(f"s_mov_b32 exec_lo, {(1 << min(n, 32)) - 1}")
            k(f"s_mov_b32 exec_hi, {(1 << max(n - 32, 0)) - 1}")
            k.vmem(f"buffer_load_dword a{aDUM}, v{va}, {srd(S_WS)}, s{sT5} offen sc1", "touch")
            k("s_mov_b64 exec, -1")

    def touches(code, va=vSP):
        if code & 1:
            touch("x", va)
        r = {0: None, 1: (0, 16), 2: (16, 8), 3: (0, 24), 4: (24, 32), 6: (16, 40), 7: (0, 56)}[code >> 1]
        if r:
            touch_slots(r[0], r[1], va)

    def packN_issue():
        with k.atomic():
            quad_lane(1024)
            k(f"""
            s_movk_i32 s{sD2}, 8192
            s_lshl_b32 s{sD0}, s{sG}, 15
            s_lshl_b32 s{sD1}, s{sCT}, 7
            s_add_u32 s{sD0}, s{sD0}, s{sD1}
            s_lshl_b32 s{sPDA}, s{sG}, 12
            s_add_u32 s{sPDA}, s{sPDA}, s{sPKB}
            s_add_u32 s{sPDA}, s{sPDA}, {PK_WO}
            s_lshl2_add_u32 s{sD1}, s{sDH}, s{sW}
            s_cmp_lg_u32 s{sD1}, 3
            s_cbranch_scc1 L_nskip
            """)
            for j in range(4):
                dma_raw(S_WO, j * 1024, j == 0)
            k("L_nskip:")

    def packN_finish(T):
        k(f"s_lshl2_add_u32 s{sD1}, s{sDH}, s{sW}")
        k(f"s_cmp_lg_u32 s{sD1}, 3")
        k("s_cbranch_scc1 L_nfskip")
        for f in range(4):
            k(f"v_add_u32 v{T+16+f}, {L_XST + 3*16384}, v{vQ0+f}")
        for f in range(4):
            for hh in range(2):
                k(f"ds_read_b64_tr_b16 {vr(T+4*f+2*hh,2)}, v{T+16+f} offset:{hh*2048}")
        k("s_waitcnt lgkmcnt(0)")
        for f in range(4):
            k(f"buffer_store_dwordx4 {vr(T+4*f,4)}, v{vL16}, {srd(S_WS)}, s{sPDA} offen offset:{f*1024} sc1")
        k("L_nfskip:")

    def pack_finish(T, base, shift, quad_if_3, tag="pk", sPDA=sPDA):
        lb, le = k.label("L_qb"), k.label("L_qe")
        k(f"s_lshl_b32 s{sT5}, s{sW}, {shift}")
        k(f"s_add_u32 s{sT5}, s{sT5}, {base}")
        k.vm_wait(tag)
        k.ds_all()
        k(f"s_cmp_eq_u32 s{sW}, 3")
        k(f"s_cbranch_scc{0 if quad_if_3 else 1} {lb}")
        for f in range(4):
            k(f"v_add_u32 v{T+16+f}, s{sT5}, v{vQ0+f}")
        for f in range(4):
            for hh in range(2):
                k(f"ds_read_b64_tr_b16 {vr(T+4*f+2*hh,2)}, v{T+16+f} offset:{hh*2048}")
        k("s_waitcnt lgkmcnt(0)")
        for f in range(4):
            k(f"buffer_store_dwordx4 {vr(T+4*f,4)}, v{vL16}, {srd(S_WS)}, s{sPDA} offen offset:{f*1024} sc1")
        k(f"s_branch {le}")
        k(f"{lb}:")
        k(f"v_add_u32 v{T+16}, s{sT5}, v{vTR0}")
        k(f"v_add_u32 v{T+17}, s{sT5}, v{vTR1}")
        k(f"v_lshl_add_u32 v{T+18}, v{vLANE}, 3, s{sT5}")
        for f in range(2):
            for hh in range(2):
                k(f"ds_read_b64_tr_b16 {vr(T+4*f+2*hh,2)}, v{T+16+f} offset:{hh*1024}")
        nf = 2 if quad_if_3 else 3
        if nf == 3:
            for hh in range(2):
                k(f"ds_read_b64_tr_b16 {vr(T+8+2*hh,2)}, v{T+18} offset:{2048+hh*512}")
        k("s_waitcnt lgkmcnt(0)")
        for f in range(nf):
            k(f"buffer_store_dwordx4 {vr(T+4*f,4)}, v{vL16}, {srd(S_WS)}, s{sPDA} offen offset:{f*1024} sc1")
        if nf == 3:
            k(f"buffer_load_dword a{aDUM}, v{vL16}, {srd(S_W1)}, s{S_W1+2} offen")
            nf = 4
        k(f"{le}:")
        k.vm_note(nf, "pst")

    def pack_flag(off=0):
        k(f"""
        s_lshl_b32 s{sT5}, s2, 7
        s_add_u32 s{sT5}, s{sT5}, {WS_PD + off}
        s_cmp_lg_u32 s{sW}, 0
        s_cselect_b32 s{sT5}, {OOB}, s{sT5}
        v_mov_b32 v{vT1}, s{sTAG}
        s_mov_b64 exec, 1
        """)
        k.vmem(f"buffer_store_dword v{vT1}, v{vL16}, {srd(S_WS)}, s{sT5} offen sc1")
        k("s_mov_b64 exec, -1")

    def pack_check_issue(off, va, vd, sb):
        with k.atomic():
            k(f"v_and_b32 v{va}, 1, v{vLANE}")
            k(f"v_lshlrev_b32 v{va}, 7, v{va}")
            k(f"v_lshrrev_b32 v{vd}, 1, v{vLANE}")
            k(f"v_and_b32 v{vd}, 7, v{vd}")
            k(f"s_lshl_b32 s{sT5}, s{sCT if off else sC}, 3")
            k(f"v_add3_u32 v{va}, v{va}, v{vd}, s{sT5}")
            if WP:
                k("s_mov_b32 exec_lo, 0")
                k(f"v_and_b32 v{va}, 0xbf, v{va}")
                k("s_mov_b32 exec_lo, -1")
            k(f"v_min_u32 v{vd}, 29, v{vLANE}")
            k(f"s_mul_i32 s{sT5}, s{sW}, 56")
            k(f"s_lshr_b32 s{sb}, s{sCT}, 1")
            k(f"s_add_u32 s{sT5}, s{sT5}, s{sb}")
            k(f"s_sub_u32 s{sT5}, s{sT5}, 64")
            k(f"v_lshl_add_u32 v{vd}, v{vd}, 2, s{sT5}")
            k("s_mov_b32 vcc_lo, 0xffff")
            k("s_mov_b32 vcc_hi, -1")
            k(f"s_mov_b32 s{sb}, {WS_PD + off}")
            k(f"v_cndmask_b32 v{va}, v{vd}, v{va}, vcc")
            k(f"v_lshlrev_b32 v{va}, 7, v{va}")
            k.vmem(f"buffer_load_dword v{vd}, v{va}, {srd(S_WS)}, s{sb} offen sc1", "pc")

    def pack_check(va, vd, sb):
        lp, ok = k.label("L_pc"), k.label("L_pcok")
        with k.atomic():
            k.vm_wait("pc")
            k(f"{lp}:")
            k(f"v_cmp_ne_u32 vcc, s{sTAG}, v{vd}")
            k(f"s_cbranch_vccz {ok}")
            k(f"buffer_load_dword v{vd}, v{va}, {srd(S_WS)}, s{sb} offen sc1")
            k("s_waitcnt vmcnt(0)")
            k(f"s_sub_u32 s{sBUD}, s{sBUD}, 1")
            k(f"s_cbranch_scc0 {lp}")
            k(f"s_mov_b32 s{sBUD}, 0")
            k(f"{ok}:")

    aPK = 128

    def park_addr(va, base, shift):
        k(f"v_bfe_u32 v{va}, v{vLANE}, 4, 1")
        k(f"v_lshlrev_b32 v{va}, 10, v{va}")
        k(f"v_lshrrev_b32 v{va+1}, 5, v{vLANE}")
        k(f"v_mul_u32_u24 v{va+1}, 0x120, v{va+1}")
        k(f"v_add_u32 v{va}, v{va}, v{va+1}")
        k(f"v_and_b32 v{va+1}, 0xd8, v{vTR0}")
        k(f"s_lshl_b32 s{sT5}, s{sW}, {shift}")
        k(f"s_add_u32 s{sT5}, s{sT5}, {base}")
        k(f"v_add3_u32 v{va}, v{va}, v{va+1}, s{sT5}")
        k(f"v_xor_b32 v{va+1}, 32, v{va}")

    def park_kv(va):
        for r in range(4):
            for blk in range(4):
                for hh in range(2):
                    k.lds(f"ds_read_b64_tr_b16 {ar(aPK + 16*(r ^ 2) + 4*blk + 2*hh, 2)}, v{va + (blk & 1)} offset:{r*16384 + (blk >> 1)*2048 + hh*512}")

    def park_q(va):
        for r in range(4):
            for b in range(2):
                for hh in range(2):
                    k.lds(f"ds_read_b64_tr_b16 {ar(aPK + 64 + 8*r + 4*b + 2*hh, 2)}, v{va + b} offset:{r*8192 + hh*512}")

    def unpark(va, js):
        for j in js:
            with k.atomic():
                if j in (js[0], 16):
                    k(f"s_lshl_b32 s{sT5}, s{sW}, {11 if j >= 16 else 12}")
                    if j >= 16:
                        k(f"s_add_u32 s{sT5}, s{sT5}, {R1}")
                    k(f"v_add_u32 v{va}, s{sT5}, v{vL16}")
                off = ((j - 16) // 2) * 8192 + (j % 2) * 1024 if j >= 16 else ((j // 4) ^ 2) * 16384 + (j % 4) * 1024
                k.lds(f"ds_write_b128 v{va}, {ar(aPK + 4*j, 4)} offset:{off}", ("up", j // 4))

    def rot_setup():
        with k.atomic():
            k(f"s_lshr_b32 s{sD0}, s{sC}, 1")
            k(f"s_xor_b32 s{sD0}, s{sD0}, s{sG}")
            k(f"s_and_b32 s{sD0}, s{sD0}, 1")
            k(f"s_and_b32 s{sD1}, s{sC}, 1")
            k(f"s_lshl1_add_u32 s{sD0}, s{sD0}, s{sD1}")
            for q in range(4):
                k(f"s_add_u32 s{sD1}, s{sD0}, {q}")
                k(f"s_and_b32 s{sD1}, s{sD1}, 3")
                k(f"s_lshl_b32 s{sD1}, s{sD1}, 12")
                k(f"s_add_u32 s{S_A+q}, s{sD1}, {G_X2}")

    def wq_raw():
        k(f"s_lshl_b32 s{sL1}, s{sW}, 11")
        with k.atomic():
            k(f"v_and_b32 v{vT2}, 3, v{vP}")
            k(f"v_lshrrev_b32 v{vDM}, 4, v{vLANE}")
            k(f"v_lshl_add_u32 v{vT2}, v{vDM}, 3, v{vT2}")
            k(f"s_movk_i32 s{sD3}, 3072")
            k(f"v_mad_u32_u24 v{vDM}, v{vT2}, s{sD3}, v{vCH}")
        for r in range(4):
            for hh in range(2):
                k.dma(S_WQKV, vDM, sRB + r, hh * 4 * 3072, sL1, R1 + r * 8192 + hh * 1024, "wq")

    def async_check(tag, soff, imm):
        ok = k.label("L_aok")
        with k.atomic():
            k.vm_wait(tag)
            k(f"v_cmp_ne_u32 vcc, s{sTAG}, v{vT0}")
            k(f"s_cbranch_vccz {ok}")
            k.save_vm()
            k.poll(soff, imm, False)
            k.restore_vm()
            k(f"{ok}:")

    CSK = vT0
    gA = None
    for layer in range(1 if o.get("one") else 2):
        L1 = layer == 0
        sc = o.get("sc1", 0x04)
        psc = lambda i: bool(sc >> (4 * layer + i) & 1)
        PRE = o.get("pre", 8)
        k.fast = ["", " nt", " sc0", " sc0 nt"][o.get("ntst", 4) >> (2 * layer) & 3]

        def w2t_loads():
            for j in range(56):
                with k.atomic():
                    if j == 0:
                        k(f"s_lshl2_add_u32 s{sPDB}, s{sCT}, s{sW}")
                        k(f"s_mul_i32 s{sPDB}, s{sPDB}, 57344")
                        k(f"s_add_u32 s{sPDB}, s{sPDB}, {WS_W2T}")
                    if j % 4 == 0:
                        k(f"s_add_u32 s{sJ0}, s{sPDB}, {j*1024}")
                    k.vmem(f"buffer_load_dwordx4 {ar(4*j,4)}, v{vL16}, {srd(S_WS)}, s{sJ0} offen offset:{(j%4)*1024} sc1", ("w2t", j // 4))

        w2 = k.rec(w2t_loads) if L1 else []

        def takew2(name, dflt, keep=24):
            nonlocal w2
            n = min(o.get(name, dflt), len(w2) - keep) if L1 else 0
            r, w2 = w2[:n], w2[n:]
            return r

        def kv_consts():
            k.get(vPQ, cCSA)
            k.lds(f"ds_read2_b32 {vr(CSK,2)}, v{vPQ} offset0:0 offset1:16", "cs")
            k.lds(f"ds_read2_b32 {vr(CSK+2,2)}, v{vPQ} offset0:32 offset1:48", "cs")
        if L1:
            CSA = vACC + 32
            k(f"s_and_b32 s{sT0}, s{sW}, 1")
            k(f"s_lshl_b32 s{sT0}, s{sT0}, 5")
            k(f"v_xor_b32 v{vPQ+3}, s{sT0}, v{vTR0}")
            k(f"s_lshr_b32 s{sT0}, s{sW}, 1")
            k(f"s_lshl_b32 s{sT0}, s{sT0}, 11")
            k(f"v_add_u32 v{vPQ+2}, s{sT0}, v{vPQ+3}")
            k(f"s_lshl_b32 s{sT1}, s{sW}, 5")
            k(f"v_xor_b32 v{vPQ+6}, s{sT1}, v{vQ0}")

            def wo_pack():
                T_ = vACT + 96
                for hh in range(2):
                    k.lds(f"ds_read_b64_tr_b16 {vr(T_+2*hh,2)}, v{vPQ+6} offset:{R0 + 49152 + hh*2048}", "wp")
                k.play([lambda: None] * 2)
                with k.atomic():
                    k.ds_wait("wp")
                    k.vmem(f"buffer_store_dwordx4 {vr(T_,4)}, v{vL16}, {srd(S_WS)}, s{sPDA} offen sc1", "pst")
            if o.get("diags"): k.stamp("setup")
            PADP = o.get("padp", 0)
            if W0P == 1:
                k.play(w0_[nw0:])
            if PADP == 1:
                k("PADCALL")
            if W0P == 2:
                k.play(w0_[nw0:])
            if o.get("diags"): k.stamp("w0b")
            own_stats()
            if o.get("diags"): k.stamp("own")
            nx0 = o.get("nx0", 0)
            xslot(0, range(nx0))
            if o.get("pads", 2048) and PADP == 0:
                k("PADCALL")
            if o.get("diags"): k.stamp("pad")
            if o.get("pf1", 0):
                pack_finish(vACT + 64, R1, 12, False, "pu", sPDB)
            xslot(0, range(nx0, 8)); xslot(1, range(o.get("x1pre", 4)))
            if o.get("diags"): k.stamp("xiss")
            if UF == 1 and not o.get("pf1", 0):
                pack_finish(vACT + 64, R1, 12, False, "pu", sPDB)
            if o.get("diags"): k.stamp("pfin")
            xread(0)
            def rnd_begin(r):
                k.vm_wait(("wkv", r))
                k.barrier(True)
                fr = []
                for ks in range(4 * r, 4 * r + 4):
                    fr.append(dict(addr=vPQ + 2, offs=(R0 + ks * 4096, R0 + ks * 4096 + 1024), mf=[(None, None, False, ks == 0, None)]))
                for ks in range(4 * r, 4 * r + 4):
                    for pr in range(2):
                        for b in range(2):
                            base = R0 + ks * 4096 + pr * 2048
                            fr.append(dict(addr=(vTR0, vTR1)[b], offs=(base, base + 1024), mf=mf2(vACC + 16 * pr + 8 * b, ks, False, False)))
                return k.gemm_begin(fr)
            wq = k.rec(wq_raw)
            xslot(1, range(o.get("x1pre", 4), 8))
            g = rnd_begin(0)
            k.stamp("x0")
            f = {}
            if WP:
                w1_ = k.rec(lambda: wkv_raw(1))
                spread(f, w1_[:2], 0, 2); spread(f, k.rec(wo_pack), 0, 1); spread(f, w1_[2:] + k.rec(lambda: xslot(2)), 6, 3)
            else:
                spread(f, k.rec(lambda: (wkv_raw(1), xslot(2))), 0, 3)
            spread(f, k.rec(lambda: xread(1)), 30, 1, 2); k.gemm_run(g, f)
            k.stamp("r0")
            g = rnd_begin(1)
            f = {}
            if UF == 1:
                spread(f, k.rec(pack_flag), 1, 0)
            spread(f, k.rec(lambda: (wkv_raw(2), xslot(3))), 0, 3); spread(f, k.rec(lambda: xread(2)), 31, 1, 2); k.gemm_run(g, f)
            k.stamp("r1")
            g = rnd_begin(2)
            nq = o.get("nq", 6)
            if UF == 2:
                pu_ = k.rec(lambda: packU_issue(L_XST + 4096, sD0, sD1, sD2, sD3, sJ0, vDM, sPDB, 14))
                wq = pu_ + wq if o.get("pufirst", 1) else wq + pu_
            f = {}; spread(f, k.rec(lambda: (wkv_raw(3), st0_issue())) + wq[:nq], 0, 3); spread(f, k.rec(lambda: xread(3)), 31, 1, 2); k.gemm_run(g, f)
            k.stamp("r2")
            g = rnd_begin(3)
            f = {}
            spread(f, k.rec(st0_use), 0, 1)
            spread(f, k.rec(lambda: cs_put(0, sW)), 8, 0)
            spread(f, k.rec(stats_b), 10, 1)
            spread(f, k.rec(stats_scale), 24, 1)
            spread(f, k.rec(lambda: park_addr(vRES + 2, R0, 12)), 15, 0)
            pn = k.rec(lambda: (packN_issue(), k.vmem(f"buffer_load_dword a{aDUM}, v{vL16}, {srd(S_W1)}, s{S_W1+2} offen", "pn")))
            pci = k.rec(lambda: pack_check_issue(0, vRES, vRES + 1, sPDB)) if UF == 1 else []
            if o.get("w2e", 8):
                spread(f, wq[nq:] + pci + k.rec(lambda: touches(o.get("Tr", 0), vT3)), 1, o.get("r3s", 5))
            else:
                spread(f, wq[nq:] + pn + pci, 1, o.get("r3s", 5))
            bg = []
            k.gemm_run(g, f)
            k.stamp("A.kv")
            k.barrier()
            kv_consts()
        else:
            k.poll_b(sFXp, G_FX2)
            k.stamp("A.poll")
            al = k.rec(lambda: act_loads(G_X2, ring, True))
            PA = o.get("prea", 4)
            k.play(al[:PA])
            k(f"s_add_u32 s{sTAG}, s{sTAG}, 1")
            fill = {}
            sl = k.rec(lambda: stat_loads(G_ST2))
            e = spread(fill, al[PA:12] + [lambda: k.play(sl[:2]), sl[2]], 0, 4)
            for i_ in range(12, 32):
                pos = max(12 * (i_ // 2 - 6) + 11 + 4 * (i_ & 1), e)
                spread(fill, [al[i_]], pos, 1)
                e = pos + 3
            e2 = spread(fill, k.rec(lambda: (stat_sum(), stats_finalize(True), stats_b())), 60, 1.3)
            e2 = spread(fill, k.rec(stats_scale), e2 + 6, 1.3)
            spread(fill, k.rec(kv_consts), e2, 1.3)
            spread(fill, k.rec(lambda: lin_dma(PK_WO + 32768, R2, 8, "wo", True)), e, o.get("wos", 5))
            if o.get("diagc"):
                for ix in (0, 23, 47, 95, 143):
                    spread(fill, k.rec(lambda: k.stamp(f"A.m{ix}", True)), ix, 0)
            k.gemm_run(gA, fill)
            k.stamp("A.kv")
            k("s_barrier")
            bg = []
        k("s_nop 2")
        k.get(vWB + 22, cKW1 if L1 else cKW)
        k.get(vWB + 23, cKR1 if L1 else cKR)
        k.ds_all()
        PK, PV, TMP = vPQ, vACC, vWB + 24
        KVA = vACC + 16

        def kv_epi():
            for h in range(2):
                for rb in range(2):
                    phi_block(vACC + 8*h + 4*rb, NM_B + 4*rb, CSK + h, RL_B + 4*rb, RS_B + 4*rb, PK + 4*h + 2*rb, TMP, "b")
            for h in range(2):
                for rb in range(2):
                    a = vACC + 16 + 8*h + 4*rb
                    c2, m = bcast(CSK + 2 + h, 1, 3)
                    for p in range(2):
                        k(f"v_pk_fma_f32 {vr(a+2*p,2)}, {vr(NM_B+4*rb+2*p,2)}, {c2}, {vr(a+2*p,2)}{m}")
                    for p in range(2):
                        k(f"v_pk_mul_f32 {vr(a+2*p,2)}, {vr(a+2*p,2)}, {vr(RS_B+4*rb+2*p,2)}")
                    for p in range(2):
                        k(f"v_cvt_pk_bf16_f32 v{PV+4*h+2*rb+p}, v{a+2*p}, v{a+2*p+1}")
                    if rb == 0:
                        k(f"v_mfma_f32_16x16x32_bf16 {vr(vACC+8+4*h,4)}, {vr(PK+4*h,4)}, {ar(aONES,4)}, 0")
                if h == 0:
                    pass
        if L1:
            we = takew2("w2e", 8)
            ke = mix(k.rec(kv_epi), k.rec(lambda: park_kv(vRES + 2)), 3)
            if we:
                c0 = o.get("w2c", 40)
                touches(o.get("Te", 6), vWB + 20)
                k.play(ke[:c0])
                pack_check(vRES, vRES + 1, sPDB)
                ke = mix(ke[c0:], we, (135 - c0) // len(we))
            k.play(ke)
        else:
            wod = k.rec(lambda: lin_dma(PK_WO, R1, 8, "wo", True))
            nwo = o.get("nwo", 0)
            k.play(mix(k.rec(kv_epi), wod[:nwo], 100 // max(nwo, 1))); wod = wod[nwo:]
        KRO = [0, 16384, 32768, 49152 if L1 else 36864]
        k.lds(f"ds_write_b128 v{vWB+22}, {vr(vACC+8,4)} offset:{KRO[2]}")
        for h in range(2):
            k(f"v_mfma_f32_16x16x32_bf16 {vr(KVA+4*h,4)}, {vr(PK+4*h,4)}, {vr(PV+4*h,4)}, 0")
        k.lds(f"ds_write_b128 v{vWB+22}, {vr(vACC+12,4)} offset:{KRO[3]}")
        k.get(vWB + 21, cKVS)
        k("s_nop 4")
        for h in range(2):
            k.lds(f"ds_write_b128 v{vWB+22}, {vr(KVA+4*h,4)} offset:{KRO[h]}")
        if L1 and UF == 1:
            k.vm_wait("wq")
        k.barrier()
        for s in range(4):
            k.lds(f"ds_read_b128 {vr(vWB+4*s,4)}, v{vWB+23} offset:{s*1024}", ("kr", s))
        KO = vACC + 32
        k.ds_wait(("kr", 1))
        for p in range(2):
            k(f"v_pk_add_f32 {vr(vWB+2*p,2)}, {vr(vWB+2*p,2)}, {vr(vWB+4+2*p,2)}")
        k.ds_wait(("kr", 3))
        for p in range(2):
            k(f"v_pk_add_f32 {vr(vWB+8+2*p,2)}, {vr(vWB+8+2*p,2)}, {vr(vWB+12+2*p,2)}")
        for p in range(2):
            k(f"v_pk_add_f32 {vr(KO+2*p,2)}, {vr(vWB+2*p,2)}, {vr(vWB+8+2*p,2)}")
        k(f"v_and_b32 v{KO}, 0xffffff00, v{KO}")
        k(f"v_or_b32 v{KO}, s{sT8}, v{KO}")
        k(f"s_mov_b64 exec, s[{sKM}:{sKM+1}]")
        k.vmem(f"buffer_store_dwordx4 {vr(KO,4)}, v{vWB+21}, {srd(S_WS)}, s{sKVP} offen sc1", "kvst")
        k("s_mov_b64 exec, -1")
        k.stamp("A.kvpub")
        fill = {}
        fr = []
        CSQ = vACC + 24

        def q_consts():
            k.get(vT0, cCSB)
            for h in range(2):
                k.lds(f"ds_read_b128 {vr(CSQ+4*h,4)}, v{vT0} offset:{(4+h)*64}")
        if L1:
            if UF == 1:
                if not o.get("w2e", 8):
                    pack_check(vRES, vRES + 1, sPDB)
            else:
                pack_finish(vWB, L_XST + 4096, 14, False, "pu", sPDB)
                k.vm_wait("pn")
                k("s_barrier")
            if not o.get("w2e", 8):
                packN_finish(vWB)
            park_addr(vPQ + 4, R1, 11)
            if o.get("diag"): k.stamp("q.pf")
            k(f"v_add_u32 v{vPQ}, {R1}, v{vTR0}")
            k(f"v_add_u32 v{vPQ+1}, {R1}, v{vTR1}")
            k(f"s_and_b32 s{sT0}, s{sW}, 1")
            k(f"s_lshl_b32 s{sT1}, s{sT0}, 5")
            k(f"v_xor_b32 v{vPQ+2}, s{sT1}, v{vPQ}")
            for j in range(16):
                fr.append(dict(addr=vPQ + 2, offs=(j * 2048, j * 2048 + 1024), mf=[(None, None, False, j == 0, None)]))
            for ks in range(16):
                for b in range(2):
                    fr.append(dict(addr=vPQ + b, offs=(ks * 2048, ks * 2048 + 1024), mf=mf2(vACC + 8 * b, ks, True, False)))
            wor = k.rec(lambda: lin_dma(PK_WO, R0, 16, "wo", True)) if WP else k.rec(wo_raw)
            e = spread(fill, bg + k.rec(res_load), 0, 1)
            if o.get("arm", 0):
                e = spread(fill, k.rec(lambda: arm(o.get("arm", 0))), e, 2)
            e = spread(fill, k.rec(lambda: touches(o.get("Tq", 0))), e, 1)
            e = spread(fill, wor, e, o.get("wors", 2))
            spread(fill, takew2("w2q", 8), e, 4)
            spread(fill, k.rec(lambda: park_q(vPQ + 4)), 20, 3)
            k.gemm(fr, fill)
            if o.get("diag"): k.stamp("q.mm")
            cs_put(4, sT0)
            if UF == 2:
                k.vm_wait("pst")
            k.barrier()
            if o.get("diag"): k.stamp("q.bar")
            q_consts()
            if UF == 2:
                pack_flag()
        else:
            q_consts()
        lp2, done2 = k.label("L_kp"), k.label("L_kd")
        SM = vWB + 8
        ZL = vACT + 32

        def kv_loads(track):
            ins = [(f"buffer_load_dwordx4 {vr(ZL,4)}, v{vT2}, {srd(S_WS)}, s{sKVC} offen sc1", "zl")]
            for j in range(8):
                ins.append((f"buffer_load_dwordx4 {vr(vACT+4*j,4)}, v{vL16}, {srd(S_WS)}, s{sKVC if j < 4 else sT2} offen offset:{(j%4)*1024} sc1", ("kv", j)))
            for i_, t_ in ins:
                if track:
                    k.vmem(i_, t_)
                else:
                    k(i_)
        if L1:
            w1a = k.rec(lambda: (lin_dma(PK_W1A, R1, 16, "w1a"), lin_dma(PK_W1B, R3, 6, "w1c2")))
        else:
            w1a = []
        k.get(vT2, cZL)
        k(f"s_add_u32 s{sT2}, s{sKVC}, 4096")
        kl = k.rec(lambda: kv_loads(True))
        QS = vACC if L1 else QA
        ph = k.rec(lambda: [phi_block(QS + 8*h + 4*rb, NM_A + rb, CSQ + 4*h, RL_A + rb, RS_A + rb, vPQ + 4*h + 2*rb, vWB, "a")
                            for h in range(2) for rb in range(2)])
        if L1:
            k.play(kl[:5])
            k.ds_all()
            if o.get("diag"): k.stamp("q.kl5")
            na = o.get("w1a0", 4) if UF == 1 else 0
            k.play(mix(ph, kl[5:] + w1a[:na], o.get("phr", 10)))
            w1a = w1a[na:]
        else:
            def unpark_w1():
                for j in range(16):
                    k.lds(f"ds_write_b128 v{vT3}, {vr(vPARK+4*j,4)} offset:{j*1024}")
            k(f"s_lshl_b32 s{sT5}, s{sW}, 14")
            k(f"v_add_u32 v{vT3}, s{sT5}, v{vL16}")
            uw = k.rec(unpark_w1)
            if late:
                nl = o.get("nul", 6)
                f = {}; spread(f, uw[:nl], 1, 2 * len(late) / max(nl, 1)); uw = uw[nl:]
                k.gemm(late, f)
                k("s_barrier")
                k("s_nop 3")
            k.play(wod[:4]); wod = wod[4:]
            k.ds_all()
            nu = o.get("nu", 16)
            k.play(mix(mix(ph, uw[:nu], 5), wod, 10))
            k.play(mix(kl, uw[nu:], 1))
        k.stamp("A.q")
        if L1:
            k("PADCALL1")
        k.get(vT1, cXW)
        k.get(vWB + 18, cZW)
        k.get(vWB + 16, cXR)
        k.get(vWB + 17, cZR)
        k(f"s_branch {lp2}_s")
        k(f"{lp2}:")
        kv_loads(False)
        k("s_waitcnt vmcnt(0)")
        k(f"{lp2}_s:")
        k.vm_wait("zl")
        k(f"""
        v_xor_b32 v{ZL}, s{sT8}, v{ZL}
        v_mov_b32 v{SM+4}, v{ZL}
        v_permlane32_swap_b32 v{ZL+2}, v{ZL+3}
        v_permlane32_swap_b32 v{ZL}, v{ZL+1}
        v_add_f32 v{ZL}, v{ZL}, v{ZL+1}
        v_add_f32 v{ZL+2}, v{ZL+2}, v{ZL+3}
        s_nop 1
        v_permlane16_swap_b32 v{ZL}, v{ZL+2}
        v_add_f32 v{ZL}, v{ZL}, v{ZL+2}
        s_nop 1
        v_add_f32_dpp v{ZL}, v{ZL}, v{ZL} row_ror:4 row_mask:0xf bank_mask:0xf
        s_nop 1
        v_add_f32_dpp v{ZL}, v{ZL}, v{ZL} row_ror:8 row_mask:0xf bank_mask:0xf
        v_cvt_pk_bf16_f32 v{ZL}, v{ZL}, v{ZL}
        ds_write_b16 v{vWB+18}, v{ZL}
        """)
        for j in range(0, 8, 2):
            a, b = vACT + 4*j, vACT + 4*j + 4
            k.vm_wait(("kv", j + 1))
            k(f"v_xor_b32 v{a}, s{sT8}, v{a}")
            k(f"v_xor_b32 v{b}, s{sT8}, v{b}")
            k(f"v_or3_b32 v{SM+4}, v{SM+4}, v{a}, v{b}")
            if j == 0:
                for p in range(2):
                    k(f"v_pk_add_f32 {vr(SM+2*p,2)}, {vr(a+2*p,2)}, {vr(b+2*p,2)}")
            else:
                for p in range(2):
                    k(f"v_pk_add_f32 {vr(a+2*p,2)}, {vr(a+2*p,2)}, {vr(b+2*p,2)}")
                for p in range(2):
                    k(f"v_pk_add_f32 {vr(SM+2*p,2)}, {vr(SM+2*p,2)}, {vr(a+2*p,2)}")
        k(f"""
        ds_write_b128 v{vT1}, {vr(SM,4)}
        v_and_b32 v{SM+4}, 0xff, v{SM+4}
        v_cmp_ne_u32 vcc, 0, v{SM+4}
        s_cbranch_vccz {done2}
        s_waitcnt lgkmcnt(0)
        s_sub_u32 s{sBUD}, s{sBUD}, 4
        s_cbranch_scc0 {lp2}
        s_mov_b32 s{sBUD}, 0
        {done2}:
        """)
        k.stamp("A.kvget")
        if L1:
            touches(o.get("Tk", 0))
        n1 = o.get("w1a1", 4) if L1 and UF == 1 else 0
        if L1 and UF == 2:
            pack_check_issue(0, vTR0, vTR1, sPDB)
        k.play(w1a[:n1]); w1a = w1a[n1:]
        k.barrier(True)
        for h in range(2):
            k.lds(f"ds_read_b64 {vr(vWB+4*h+2,2)}, v{vWB+17} offset:{h*32}", "zf")
        for j in range(4):
            k.lds(f"ds_read_b128 {vr(vACT+4*j,4)}, v{vWB+16} offset:{1024*j}")
        k.ds_wait("zf")
        OA = vACC + 16
        for rb in range(2):
            for h in range(2):
                d = OA + 16*rb + 8*h
                k(f"v_mfma_f32_16x16x16_bf16 {vr(d+4,4)}, {vr(vWB+4*h+2,2)}, {vr(vPQ+4*h+2*rb,2)}, 0")
        k.ds_all()
        for h in range(2):
            for p in range(2):
                k(f"v_pk_add_f32 {vr(vACT+8*h+2*p,2)}, {vr(vACT+8*h+2*p,2)}, {vr(vACT+8*h+4+2*p,2)}")
        for h in range(2):
            for p in range(2):
                k(f"v_cvt_pk_bf16_f32 v{vWB+4*h+p}, v{vACT+8*h+2*p}, v{vACT+8*h+2*p+1}")
        for rb in range(2):
            for h in range(2):
                d = OA + 16*rb + 8*h
                k(f"v_add_f32 v{d+4}, s{sEPS}, v{d+4}")
        for rb in range(2):
            for h in range(2):
                d = OA + 16*rb + 8*h
                k(f"v_mfma_f32_16x16x16_bf16 {vr(d,4)}, {vr(vWB+4*h,2)}, {vr(vPQ+4*h+2*rb,2)}, 0")
        for rb in range(2):
            for h in range(2):
                d = OA + 16*rb + 8*h
                k(f"v_rcp_f32 v{d+4}, v{d+4}")
        k("s_nop 1")
        for rb in range(2):
            for h in range(2):
                d = OA + 16*rb + 8*h
                for p in range(2):
                    k(f"v_pk_mul_f32 {vr(d+2*p,2)}, {vr(d+2*p,2)}, {vr(d+4,2)} op_sel_hi:[1,0]")
                for p in range(2):
                    k(f"v_cvt_pk_bf16_f32 v{vPQ+4*rb+2*h+p}, v{d+2*p}, v{d+2*p+1}")
        k.stores([f"buffer_store_dwordx4 {vr(vPQ+4*rb,4)}, v{vL16}, {srd(S_WS)}, s{sOST+rb} offen" for rb in range(2)], psc(0))
        nb = o.get("w1a_pre1", 6) if L1 else o.get("w1a_pre", 0)
        if L1 and UF == 2:
            pack_check(vTR0, vTR1, sPDB)
        if L1:
            touches(o.get("To", 0))
        k.play(w1a[:nb])
        if L1:
            for s_ in range(2):
                for p in range(2):
                    k(f"v_permlane16_swap_b32 v{vRES+4*s_+p}, v{vRES+4*s_+2+p}")
        urs = k.rec(lambda: unpack_res(vACC))
        fr = []
        for ks in range(16):
            for f in range(4):
                mf = [(vACC + 4 * f, vACT + 4 * ks, True, False, ("act", ks))]
                if L1 and WP:
                    fr.append(dict(addr=vL16, offs=(R0 + ks * 4096 + f * 1024,), mf=mf))
                elif L1:
                    fr.append(dict(addr=vQ0 + f, offs=(R0 + ks * 4096, R0 + ks * 4096 + 2048), mf=mf))
                else:
                    fr.append(dict(addr=vTR0, offs=(ks * 4096 + f * 1024,), mf=mf))
        if L1:
            k("PADCALL2")
        k.poll_prep(15)
        k.flag(sFOo, G_FO)
        k.poll_a(sFOp, G_FO)
        g = k.gemm_begin(fr, 7)
        k.play(urs)
        k.stamp("A.opub")
        k.poll_b(sFOp, G_FO)
        k.stamp("B.poll")

        def b_loads():
            for ks in range(16):
                with k.atomic():
                    if ks % 4 == 0:
                        k(f"s_add_u32 s{sT2}, s{sBACT}, {G_O + ks*1024}")
                    k.vmem(f"buffer_load_dwordx4 {vr(vACT+4*ks,4)}, v{vL16}, {srd(S_WS)}, s{sT2} offen offset:{(ks%4)*1024} sc1", ("act", ks))
        bl = k.rec(b_loads)
        PB = o.get("preb", PRE)
        k.play(bl[:PB])
        fill = {}
        e = spread(fill, bl[PB:], 0, 3)
        if L1:
            e = spread(fill, k.rec(lambda: touches(o.get("Ta", 0))), e, 1)
        e = spread(fill, w1a[nb:], e, o.get("w1st", 3))
        if L1:
            e = spread(fill, k.rec(lambda: touches(o.get("Tb", 1))), e, 1)
        spread(fill, takew2("w2b", 0), e, 4)
        k.gemm_run(g, fill)
        k.stamp("B.mm")
        k(f"v_add_u32 v{vTR1}, {R1}, v{vL16}")
        k("s_nop 6")
        for f in range(4):
            for p in range(2):
                k(f"v_cvt_pk_bf16_f32 v{vRES+2*f+p}, v{vACC+4*f+2*p}, v{vACC+4*f+2*p+1}")
        publish_x(G_X1, G_ST1, G_FX1, psc(1))
        k.play(takew2("w2x", 0))
        k.flag(sFXo, G_FX1)
        if not L1:
            k.poll_a(sFXp, G_FX1)
        k.stamp("B.pub")
        if L1 and o.get("w2e", 8) and not WP:
            k(f"s_lshl2_add_u32 s{sD1}, s{sDH}, s{sW}")
            k(f"s_cmp_lg_u32 s{sD1}, 3")
            k("s_cbranch_scc1 L_nfskip")
            k(f"s_lshl_b32 s{sT5}, s{sG}, 12")
            for f in range(4):
                k(f"v_add_u32 v{vWB+16+f}, s{sT5}, v{vQ0+f}")
            for f in range(4):
                for hh in range(2):
                    k(f"ds_read_b64_tr_b16 {vr(vACC+4*f+2*hh,2)}, v{vWB+16+f} offset:{hh*2048}")
            k(f"s_add_u32 s{sT5}, s{sT5}, s{sPKB}")
            k(f"s_add_u32 s{sT5}, s{sT5}, {PK_WO}")
            k("s_waitcnt lgkmcnt(0)")
            for f in range(4):
                k(f"buffer_store_dwordx4 {vr(vACC+4*f,4)}, v{vL16}, {srd(S_WS)}, s{sT5} offen offset:{f*1024} sc1")
            k("L_nfskip:")
        k("s_barrier")
        w1c2 = k.rec(lambda: lin_dma(PK_W1B + 24576, R0 if L1 else R1, 6, "w1c2"))
        if L1 and not o.get("w2e", 8):
            pack_flag(0x8000)
        nc = o.get("w1c2_pre1", 0) if L1 else o.get("w1c2_pre", 0)
        k.play(w1c2[:nc])
        EU = o.get("eu", 8)
        if L1:
            eup = k.rec(lambda: unpark(vPQ + 1, list(range(EU)))) if EU else []
            k(f"s_lshl_b32 s{sT2}, s{sW}, 10")
            k(f"v_add_u32 v{vPQ}, s{sT2}, v{vTR1}")
            fr = []
            for j in range(16):
                fr.append(dict(addr=vPQ, offs=(j * 4096,), mf=[(None, None, False, j == 0, None)]))
            k.gemm(fr, D=7)
            k.play(eup)
            k("s_nop 5")
            cs_put(6, sW)
        C2 = vACC + 32
        vC1, vC2, vCc, vCd = (vTR1 if L1 else vL16), vDM, vP, vCH
        k(f"v_add_u32 v{vC2}, {R3}, v{vL16}")
        if L1:
            k(f"s_min_u32 s{sPDA}, s{sW}, 2")
            k(f"s_lshl_b32 s{sT2}, s{sPDA}, 10")
            k(f"v_add_u32 v{vCd}, s{sT2}, v{vL16}")
            k(f"v_add_u32 v{vCc}, {R3}, v{vCd}")
        NX = o.get("nx1", 0) if L1 else o.get("nx", 0)
        INIT2 = not L1 and NX == 0
        f2 = []
        fcs = [dict(addr=vCc if ks < 8 else vCd, offs=((ks % 8) * 3072,), mf=[(None, None, False, ks == 0, None)], late=ks >= 8, cs=True) for ks in range(16)]
        for ks in range(16):
            if L1 and ks in (8, 9, 10, 11):
                f2 += fcs[8 + 2 * (ks - 8):10 + 2 * (ks - 8)]
            for b in range(3):
                f2.append(dict(addr=vC2 if ks < 8 else vL16 if L1 else vTR1, offs=((ks % 8) * 3072 + b * 1024,),
                               mf=mf2(C2 + 8 * b, ks, True, False, False if INIT2 else None), late=ks >= 8))
        fr = []
        XS0 = o.get("xs0", 2)
        for ks in range(16):
            if L1 and ks in (4, 6, 8, 10):
                fr += fcs[ks - 4:ks - 2]
            if ks >= XS0:
                n_ = (NX * (ks - XS0 + 1)) // (16 - XS0) - (NX * (ks - XS0)) // (16 - XS0)
                fr += f2[:n_]; f2 = f2[n_:]
            for f in range(4):
                fr.append(dict(addr=vC1, offs=(ks * 4096 + f * 1024,), mf=mf2(vACC + 8 * f, ks, True, True)))
        M1 = sum(len(f["mf"]) for f in fr)
        fr += f2
        NM = sum(len(f["mf"]) for f in fr)
        tl = [i for i, f in enumerate(fr) if f.get("late")][0]
        MB = sum(len(f["mf"]) for f in fr[:tl - 6]) - 4
        if L1:
            tc = [i for i, f in enumerate(fr) if f.get("cs")][-1]
            MC = sum(len(f["mf"]) for f in fr[:tc + 1])
        if L1:
            k.poll_a(sFXp, G_FX1)
        g = k.gemm_begin(fr)
        k.poll_b(sFXp, G_FX1)
        k.stamp("C.poll")
        CS1 = [vPQ, vPQ + 4, vACC + 56, vQ0]

        def c2_init():
            k.get(vT0, cCSB)
            for b in range(3):
                k.lds(f"ds_read_b128 {vr(C2+8*b+4,4)}, v{vT0} offset:{(10+b)*64}", "cs2")
            for _ in range(4):
                k.play([lambda: None])
            k.ds_wait("cs2")
            for b in range(3):
                for rb in range(2):
                    for j in range(4):
                        k(f"v_mul_f32 v{C2+8*b+4*rb+j}, v{C2+8*b+4+j}, v{NM_A+rb}")

        def relu_block(acc, cs, rb, dst):
            if cs is not None:
                for j in range(4):
                    k(f"v_fmac_f32 v{acc+j}, v{cs+j}, v{NM_A+rb}")
            for p in range(2):
                k(f"v_cvt_pk_bf16_f32 v{dst+p}, v{acc+2*p}, v{acc+2*p+1}")
            for p in range(2):
                k(f"v_pk_max_i16 v{dst+p}, v{dst+p}, 0")

        def cs1_reads():
            k.get(vT2, cCSB)
            for b in range(4):
                k.lds(f"ds_read_b128 {vr(CS1[b],4)}, v{vT2} offset:{(6+b)*64}", "cs")

        def epi1():
            k.ds_wait("cs")
            for s in range(2):
                for rb in range(2):
                    for b in range(2):
                        relu_block(vACC + 16*s + 8*b + 4*rb, CS1[2*s+b], rb, vACC + 16*s + 4*rb + 2*b)
                k.stores([f"buffer_store_dwordx4 {vr(vACC+16*s+4*rb,4)}, v{vL16}, {srd(S_WS)}, s{sH1+rb} offen offset:{s*1024}"
                          for rb in range(2)], psc(2))

        def d_setup():
            if L1:
                with k.atomic():
                    k(f"s_lshl_b32 s{sT1}, s{sW}, 13")
                    k(f"s_add_u32 s{sT1}, s{sT1}, s{sGB}")
                with k.atomic():
                    k(f"s_lshl_b32 s{sDK}, s{sW}, 11")
                    k(f"s_add_u32 s{sDK}, s{sDK}, {28*1024}")
                k(f"s_add_u32 s{sT1}, s{sT1}, {G_H + 24*1024}")
                for j in range(4):
                    with k.atomic():
                        k(f"s_add_u32 s{sT0}, s{sW}, {j}")
                        k(f"s_and_b32 s{sT0}, s{sT0}, 3")
                    with k.atomic():
                        k(f"s_lshl2_add_u32 s{sT0}, s{sDH}, s{sT0}")
                        k(f"s_mul_i32 s{sT0}, s{sT0}, 57344")
                    k(f"s_add_u32 s{sRB+j}, s{sT0}, s{sT1}")
            k.poll_prep(7)
        TD = 3 if L1 else o.get("td", 4)
        seq = [(ksl, j) for ksl in range(14 - TD) for j in range(4)] + [(ksl, j) for j in (1, 2, 3, 0) for ksl in range(14 - TD, 14)]
        hb = [0, 0, 0, 0]

        def hload(t):
            ksl, j = seq[t]
            with k.atomic():
                if ksl // 4 != hb[j]:
                    if ksl == 8:
                        k(f"s_sub_u32 s{sRB+j}, s{sRB+j}, s{sDK}")
                    else:
                        k(f"s_add_u32 s{sRB+j}, s{sRB+j}, 4096")
                    hb[j] += 1
                k.vmem(f"buffer_load_dwordx4 {vr(vACT+4*(t%16),4)}, v{vL16}, {srd(S_WS)}, s{sRB+j} offen offset:{(ksl%4)*1024} sc1", ("h", t))
        PC = o.get("prec", PRE)
        al = k.rec(lambda: act_loads(G_X1))
        k.play(al[:PC])
        fill = {}
        sl = k.rec(lambda: stat_loads(G_ST1, vPQ))
        SP = o.get("stp", 0)
        e = spread(fill, al[PC:PC+SP] + [lambda: k.play(sl[:2]), sl[2]] + al[PC+SP:], 0, o.get("cstep", 40) / 10)
        e2 = spread(fill, k.rec(lambda: (stat_sum(vPQ), stats_finalize(False))), 44, 0.9 if INIT2 else 1.3)
        if INIT2:
            spread(fill, k.rec(c2_init), e2 + 1, 0.95)
        if L1:
            spread(fill, k.rec(lambda: k("s_barrier")), 104, 0)
            if o.get("w2e", 8) and not WP:
                spread(fill, k.rec(lambda: pack_flag(0x8000)), 102, 0)
        e = spread(fill, w1c2[nc:], e, 3)
        if L1:
            e = spread(fill, k.rec(lambda: touches(o.get("Tc", 0), vT0)), e, 1)
        spread(fill, k.rec(cs1_reads), M1 - 9, 1)
        if o.get("diagc") and not L1:
            for ix in (0, 31, 63, 95, 127, 151, 175, 199):
                spread(fill, k.rec(lambda: k.stamp(f"C.m{ix}", True)), ix, 0)
        if o.get("diagd"):
            spread(fill, k.rec(lambda: k.stamp("C.mm1")), 127, 0)
        e1 = spread(fill, k.rec(epi1), M1 + 1, 1 / o.get("epr", 4))
        spread(fill, k.rec(lambda: (k.vm_wait("w1c2"), k("s_barrier"))), MB, 0)
        assert e < MB
        e3 = spread(fill, k.rec(d_setup), e1, 1)
        cs2r = k.rec(lambda: [k.lds(f"ds_read_b128 {vr(CS1[b],4)}, v{vT2} offset:{(10+b)*64}") for b in range(3)])
        if not L1 and not INIT2:
            spread(fill, cs2r, e3 + 2, 2)
        if L1:
            def cs2_put():
                k.get(vQ0, cCSA)
                k(f"s_lshl_b32 s{sT5}, s{sPDA}, 6")
                k(f"v_add_u32 v{vQ0}, s{sT5}, v{vQ0}")
                k.lds(f"ds_write_b32 v{vQ0}, a{aCS} offset:{10*64}", "csw")
            assert MC + 6 > e1
            spread(fill, k.rec(cs2_put), MC + 6, 0)
            spread(fill, k.rec(lambda: (k.ds_wait("csw"), k("s_barrier"))), MC + 14, 0)
            spread(fill, cs2r, MC + 16, 2)
        pf = min(e1 + (o.get("fl11", 50) if L1 else o.get("fl1", 20)), NM - 2)
        spread(fill, k.rec(lambda: k.flag(sFHo, G_FH)), pf, 1)
        NE = o.get("ne1", 0) if L1 else o.get("ne", 6)
        pp = NM - 1 if NE == 0 else NM - 3 * NE - o.get("ppd", 18)
        assert pp > pf
        spread(fill, k.rec(lambda: k.vmem(f"buffer_load_dword v{vT0}, v{vT3}, {srd(S_WS)}, s{sFHp} offen offset:{G_FH} sc1", "p1")), pp, 1)
        if NE:
            spread(fill, k.rec(lambda: async_check("p1", sFHp, G_FH)), NM - 3 * NE - 1, 1)
            spread(fill, k.rec(lambda: [hload(t) for t in range(NE)]), NM - 3 * NE, 3)
        if L1:
            wc = takew2("nw2", 24, 24 - EU)
            spread(fill, wc, e, (pp - 1 - e) / max(len(wc), 1))
        k.gemm_run(g, fill)
        k.stamp("C.mm2")
        HO = vWB + 16
        LA = o.get("dla1", 10) if L1 else o.get("dla", 10)
        k("s_nop 3")
        k.ds_all()
        epi2 = k.rec(lambda: [relu_block(C2 + 8*b + 4*rb, None if INIT2 else CS1[b], rb, HO + 8*rb + 2*b) for b in range(3) for rb in range(2)])
        h2sc = psc(2) and not o.get("h2plain", 1)
        its = []
        for rb in range(2):
            its.append(f"buffer_store_dwordx4 {vr(HO+8*rb,4)}, v{vL16}, {srd(S_WS)}, s{sH2+rb} offen")
            its.append(f"buffer_store_dwordx2 {vr(HO+8*rb+4,2)}, v{vL16}, {srd(S_WS)}, s{sH3+rb} offen")
        tail = []
        up = []
        if L1:
            def park_w1():
                with k.atomic():
                    k(f"s_lshl_b32 s{sT5}, s{sW}, 14")
                    k(f"s_add_u32 s{sT5}, s{sT5}, {R1}")
                    k(f"v_add_u32 v{vCH}, s{sT5}, v{vL16}")
                for j in range(0, 16, 2):
                    with k.atomic():
                        for jj in (j, j + 1):
                            k.lds(f"ds_read_b128 {vr(vPARK+4*jj,4)}, v{vCH} offset:{jj*1024}", "pw")
            u_ = k.rec(lambda: (rot_setup(), unpark(vP, list(range(EU, 24)))))
            bar = k.rec(lambda: (k.ds_wait("pw"), k("s_barrier")))
            up = k.rec(park_w1) + u_[:1] + [lambda: k.play(bar)] + u_[1:]
        if NE:
            n2 = o.get("ne2", 2)
            k.play(mix(epi2, k.rec(lambda: [hload(t) for t in range(NE, NE + n2)]), 10))
            k.stores(its, h2sc)
            nxt = NE + n2
            FL2 = o.get("fl2", 5)
        else:
            k.play(epi2)
            k.stores(its, h2sc)
            async_check("p1", sFHp, G_FH)
            for t in range(LA):
                hload(t)
                if len(w2) > 24 - EU and t % 2:
                    k.play(w2[:1]); w2 = w2[1:]
                k.play(up[:1]); up = up[1:]
            k.flag(sFHo, G_FH + 1024)
            nxt = LA
            FL2 = -1
        k.stamp("D.poll1")
        RSD = vPQ
        k.get(vPQ + 1, cRSD)
        k.lds(f"ds_read_b32 v{RSD}, v{vPQ+1}", "rsd")
        def red_addr():
            for j in range(4):
                if L1:
                    k.get(vPQ + 4 + j, cRD0 + j)
                else:
                    with k.atomic():
                        k(f"s_add_u32 s{sT0}, s{sW}, {j}")
                        k(f"s_and_b32 s{sT0}, s{sT0}, 3")
                    with k.atomic():
                        k(f"s_lshl_b32 s{sT0}, s{sT0}, 14")
                        k(f"s_add_u32 s{sT0}, s{sT0}, {max(j-1, 0)*4096}")
                    k(f"v_add_u32 v{vPQ+4+j}, s{sT0}, v{vL16}")
        ur = k.rec(lambda: (unpack_res(vWB), red_addr()))
        wr = []
        for t in range(56):
            ksl, j = seq[t]
            if L1:
                k.vm_wait(("w2t", ksl))
            k.vm_wait(("h", t))
            if o.get("diagd") and t in (0, 8, 16, 24, 32, 40, 48):
                k.stamp(f"D.t{t}")
            if o.get("diagc") and not L1 and t in (0, 4, 8, 16, 24, 32, 40, 48):
                k.stamp(f"D.t{t}", True)
            for f in range(4):
                a = vACC + 16*j + 4*f
                c = "0" if ksl == 0 else vr(a, 4)
                k(f"v_mfma_f32_16x16x32_bf16 {vr(a,4)}, {ar((ksl*4+f)*4,4)}, {vr(vACT+4*(t%16),4)}, {c}")
                if f in (0, 2) and nxt < 56 and nxt <= t + LA and (f == 0 or nxt < t + LA):
                    if nxt == 32 - o.get("p2d", 11):
                        k.vmem(f"buffer_load_dword v{vT0}, v{vT3}, {srd(S_WS)}, s{sFHp} offen offset:{G_FH+1024} sc1", "p2")
                    if nxt == 32:
                        async_check("p2", sFHp, G_FH + 1024)
                    hload(nxt)
                    nxt += 1
                    if nxt == 56 and not L1 and o.get("wb", 0):
                        lw = k.label("L_wb")
                        k(f"s_lshl3_add_u32 s{sT0}, s{sW}, s2")
                        k(f"s_cmp_ge_u32 s{sT0}, 8")
                        k(f"s_cbranch_scc1 {lw}")
                        k("buffer_wbl2 sc1")
                        k(f"s_branch {lw}_e")
                        k(f"{lw}:")
                        k(f"buffer_load_dword a{aDUM}, v{vT3}, {srd(S_WS)}, s{sFHp} offen offset:{G_FH} sc1")
                        k(f"{lw}_e:")
                        k.vm_note(1, "wb")
                if f in ((1, 3) if t < o.get("up2", 3) else (1,)) and up:
                    k.play(up[:1]); up = up[1:]
                if f == 2:
                    nup = 24 - len(up)
                    if w2 and (len(w2) > 24 or not up or nup >= 4 * ((24 - len(w2)) // 4 + 1) + 1):
                        if len(w2) <= 24:
                            k.ds_wait(("up", (24 - len(w2)) // 4))
                        k.play(w2[:1]); w2 = w2[1:]
                    elif t >= o.get("tl0", 46) and tail:
                        nn = o.get("tln", 2)
                        k.play(tail[:nn]); tail = tail[nn:]
                if f == 3 and t == FL2:
                    k.flag(sFHo, G_FH + 1024)
                if 4 * t + f == 203 and L1:
                    k.ds_wait(("rw", 1))
                    k("s_barrier")
                    for f_ in range(4):
                        k.lds(f"ds_read_b128 {vr(vACC+16+4*f_,4)}, v{vPQ+4} offset:{f_*1024}", "rd0")
                if 4 * t + f == 215 and L1:
                    k.ds_wait("rd0")
                    k("s_barrier")
                if f == 3 and t == 2 and L1 and not WP:
                    pack_check_issue(0x8000, vTR0, vTR1, sPDA)
                if f == 3 and t == 14 and L1 and not WP:
                    pack_check(vTR0, vTR1, sPDA)
                if f == 3 and t == o.get("tx", 99) and L1:
                    touch("x", vDM)
                if f == 1 and t >= 8 and ur:
                    k.play(ur[:1]); ur = ur[1:]
                if wr and wr[0][0] <= 4 * t + f:
                    k.lds(*wr.pop(0)[1:])
            if ksl == 13 and j:
                for f in range(4):
                    wr.append((4 * t + 9 + 2 * f, f"ds_write_b128 v{vPQ+4+j}, {vr(vACC+16*j+4*f,4)} offset:{f*1024}", ("rw", j)))
        assert not w2 and not ur and not wr and not up
        k.stamp("D.mm")
        if not L1:
            k.get(vT2, cOUT)
        if L1:
            k("s_nop 3")
            for f in range(4):
                for p in range(2):
                    k(f"v_pk_add_f32 {vr(vACC+4*f+2*p,2)}, {vr(vACC+4*f+2*p,2)}, {vr(vACC+16+4*f+2*p,2)}")
        k.barrier()
        NJ = 2 if L1 else 3
        RB_ = vACC + 64 - 16 * NJ
        for f in range(4):
            for j in range(NJ):
                k.lds(f"ds_read_b128 {vr(RB_+16*j+4*f,4)}, v{vPQ+4} offset:{j*4096+f*1024}", ("rd", f))
        for f in range(4):
            k.ds_wait(("rd", f))
            for j in range(NJ):
                for p in range(2):
                    k(f"v_pk_add_f32 {vr(vACC+4*f+2*p,2)}, {vr(vACC+4*f+2*p,2)}, {vr(RB_+16*j+4*f+2*p,2)}")
            for p in range(2):
                k(f"v_pk_fma_f32 {vr(vACC+4*f+2*p,2)}, {vr(vACC+4*f+2*p,2)}, {vr(RSD,2)}, {vr(vWB+4*f+2*p,2)} op_sel_hi:[1,0,1]")
            for p in range(2):
                k(f"v_cvt_pk_bf16_f32 v{vRES+2*f+p}, v{vACC+4*f+2*p}, v{vACC+4*f+2*p+1}")
        k.stamp("D.red")
        if L1:
            publish_x(G_X2, G_ST2, G_FX2, psc(3))
            k(f"s_sub_u32 s{sT0}, s{sDK}, 8192")
            for j in range(4):
                k(f"s_add_u32 s{sRB+j}, s{sRB+j}, s{sT0}")
            k(f"s_add_u32 s{sKVC}, s{sKVC}, 0x100000")
            k(f"s_add_u32 s{sKVP}, s{sKVP}, 0x100000")
            k.flag(sFXo, G_FX2)
            k.poll_a(sFXp, G_FX2)
            k.stamp("D.pub")
            k("s_barrier")
            fr = []
            k(f"v_add_u32 v{vTR0}, {R1}, v{vL16}")
            late = []
            for ks in range(16):
                fq = [dict(addr=vTR0, offs=(ks * 2048 + b * 1024,), mf=mf2(QA + 8 * b, ks, True, True, act=ring)) for b in range(2)]
                fk = [dict(addr=vL16, offs=(R0 + ks * 4096 + b * 1024,), mf=mf2(vACC + 8 * b, ks, False, True, act=ring)) for b in range(4)]
                if ks < 16 - o.get("qlag", 6):
                    fr += fk + fq
                else:
                    fr += fk
                    late += fq
            gA = k.gemm_begin(fr)
        else:
            k("s_nop 1")
            for s in range(2):
                for p in range(2):
                    k(f"v_permlane16_swap_b32 v{vRES+4*s+p}, v{vRES+4*s+2+p}")
                k.vmem(f"buffer_store_dwordx4 {vr(vRES+4*s,4)}, v{vT2}, {srd(S_OUT)}, 0 offen offset:{64*s}{['', ' sc1', ' sc1 nt', ' nt'][o.get('outsc1', 1)]}")
            le = k.label("L_ep")
            k(f"s_or_b32 s{sT2}, s2, s{sW}")
            k(f"s_cbranch_scc1 {le}")
            k(f"s_add_u32 s{sEP}, s{sEP}, 1")
            k(f"v_mov_b32 v{vT1}, s{sEP}")
            k("s_mov_b64 exec, 1")
            k(f"buffer_store_dword v{vT1}, v{vL16}, {srd(S_WS)}, 0 offen offset:{WS_EPOCH}")
            k("s_mov_b64 exec, -1")
            k(f"{le}:")
            if stamps:
                k.vm_all()
                k.stamp("end")
                k(f"s_memrealtime s[{sST}:{sST+1}]")
                k("s_waitcnt lgkmcnt(0)")
                k(f"v_writelane_b32 v{vSTAMP}, s{sST}, 61")
                k(f"v_writelane_b32 v{vSTAMP}, s{sBUD}, 60")
                k(f"v_writelane_b32 v{vSTAMP}, s{sSLOW}, 59")
                k(f"s_lshl2_add_u32 s{sT2}, s2, s{sW}")
                k(f"s_lshl_b32 s{sT2}, s{sT2}, 8")
                k(f"s_add_u32 s{sT2}, s{sT2}, {WS_STAMP}")
                k(f"v_lshrrev_b32 v{vT0}, 2, v{vL16}")
                k(f"buffer_store_dword v{vSTAMP}, v{vT0}, {srd(S_WS)}, s{sT2} offen")
    k("L_end:")
    lines = merge_waits(k.lines)
    if o.get("pads", 2048):
        lines = add_pads(lines, k.tailcode, o.get("pads", 2048), [x for x in (o.get("ps1", 0), o.get("ps2", 0)) if x])
    body = "\n".join(lines)
    tailc = "\n".join(k.tailcode)
    hdr = open("interleave_layers__linear_attn_block__dense_activation_relu__prompt.s.ref").read().split("; Override")[0]
    txt = f"""{hdr}; Generated by a hand-written generator (persistent kernel, one workgroup per CU).
; @launch grid=(256,1,1) block=(256,1,1) lds={LDS_BYTES}
.amdgcn_target "amdgcn-amd-amdhsa--gfx950"
.text
.globl {NAME}
.p2align 8
.type {NAME},@function
.set CODE_BYTES, L_code_end - L_pcref - 512
{NAME}:
{body}
    s_endpgm
L_code_end:
{tailc}
.section .rodata,"a"
.p2align 6
.amdhsa_kernel {NAME}
  .amdhsa_next_free_vgpr 512
  .amdhsa_next_free_sgpr 102
  .amdhsa_accum_offset 256
  .amdhsa_group_segment_fixed_size 0
  .amdhsa_kernarg_size 72
  .amdhsa_user_sgpr_count 2
  .amdhsa_user_sgpr_kernarg_segment_ptr 1
  .amdhsa_system_sgpr_workgroup_id_x 1
.end_amdhsa_kernel
"""
    return txt, k.stamp_names


if __name__ == "__main__":
    out = sys.argv[1]
    stamps = "stamps" in sys.argv[2:]
    opts = {}
    for a in sys.argv[2:]:
        if "=" in a:
            x, y = a.split("=")
            opts[x] = int(y)
    txt, names = gen(stamps, opts)
    open(out, "w").write(txt)
    if stamps:
        open(out + ".names", "w").write("\n".join(names))
```

```python
import sys
from contextlib import contextmanager

NAME = "interleave_layers__linear_attn_block__dense_activation_relu__prompt_kernel"

WS_EPOCH = 0
WS_XID = 0x8000
WS_PD = 0x10000
GRP0 = 0x100000
G_FO, G_FX1, G_FX2, G_FH = 0, 512, 1024, 1536
G_ST1 = 0x1000
G_ST2 = G_ST1
G_ST0 = 0x4000
G_X1 = 0x8000
G_X2 = G_X1
G_H = G_X1 + 0x20000
G_O = G_H
WS_KVX = 0x1200000
KVX_C = 0x9000
WS_W2T = 0x1400000
WS_PK = 0x1600000
PK_KV, PK_Q, PK_W1A, PK_W1B, PK_WO, PK_SZ = 0, 65536, 98304, 163840, 212992, 278528
WS_STAMP = 0x1B00000
WS_USED = 0x1C00000
OOB = 0x7f000000

R0, R1, R2, R3 = 0, 65536, 98304, 131072
L_SM = 161792
L_CS = L_SM
L_ZB = L_SM + 896
L_STAT = L_SM + 1024
L_XB = L_SM - 4096
W1B_N1 = 8
L_XST = 98304
L_RED = R2
L_PST = R2
LDS_BYTES = 163840

S_X, S_WQKV, S_WO, S_W1, S_W2, S_OUT, S_WS = 4, 8, 12, 16, 20, 24, 28
(sW, sC, sG, sTAG, sSLOW, sGB, sBUD, sEP, sEPS, _e1, sT0, sT1, sT2, sT3, sT4, sT5,
 sACT, sACT1, sBACT, sTILE, sOST, sOST1, sFOo, sFOp, sFXo, sFXp, sSTo, sSTg,
 sH1, sH1b, sH2, sH2b, sH3, sH3b, sFHo, sFHp, sRB, _r1, _r2, _r3, sKVC, sKVP,
 sDH, sCT, sXCC, sT8, sD0, sD1, sD2, sD3, sL0, sL1, sPKB, sPDA, sPDB, sJ0) = range(32, 88)
assert sEPS % 2 == 0
sRHO = sT8
S_A, S_B = 88, 92
sKEX = 88
sDK = 92
sS8 = 93
sKM = 96
sST = 98
sPC = 100

vLANE, vL16, vTR0, vTR1, vQ0, vQ1, vQ2, vQ3, vP, vCH, vDM, vSTAMP = range(12)
vT0, vT1, vT2, vT3 = 12, 13, 14, 15
vSP, vSP2 = vP, vCH
vRES = 16
vPQ = 24
vWB = 32
vACC = 64
vACT = 128
BF1 = "0x3f803f80"
(cCSA, cCSB, cP16, aDUM, cSTO, cSTW, cSTA, cSTB, cKW, cKR, cKW1, cKR1, cKVS, cXW, cXR, cZR,
 cRD0, cRD1, cRD2, cRD3, cRSD, cOUT, cZL, cZW) = range(224, 248)
aONES, aCS = 248, 252


def srd(s):
    return f"s[{s}:{s+3}]"


def vr(a, n=1):
    return f"v{a}" if n == 1 else f"v[{a}:{a+n-1}]"


def ar(a, n=1):
    return f"a{a}" if n == 1 else f"a[{a}:{a+n-1}]"


def bcast(r, pos, n):
    lo = [0] * n
    hi = [1] * n
    if r % 2 == 0:
        hi[pos] = 0
    else:
        lo[pos] = 1
    f = lambda x: "[" + ",".join(map(str, x)) + "]"
    return vr(r & ~1, 2), f" op_sel:{f(lo)} op_sel_hi:{f(hi)}"


class K:
    def __init__(self, stamps=False, opts=None):
        self.lines = []
        self.nlab = 0
        self.vm = []
        self.ds = []
        self.stamps = stamps
        self.stamp_names = []
        self.o = opts or {}
        self._rec = None
        self.seen = set()
        self.tailcode = []
        self.lights = []
        self.fast = ""

    def _do(self, fn, cost=None):
        if cost is not None:
            fn.cost = cost
        if self._rec is not None:
            self._rec.append(fn)
        else:
            fn()

    def rec(self, f):
        assert self._rec is None
        self._rec = []
        f()
        r, self._rec = self._rec, None
        return r

    @contextmanager
    def atomic(self):
        if self._rec is None:
            yield
            return
        outer, self._rec = self._rec, []
        yield
        inner, self._rec = self._rec, outer
        g = lambda: [x() for x in inner]
        g.cost = sum(getattr(x, "cost", 4) for x in inner)
        outer.append(g)

    def play(self, items):
        for x in items:
            self._do(x)

    def _emit(self, l):
        self.lines.append(("" if l.endswith(":") else "    ") + l)

    def __call__(self, s):
        for l in s.split("\n"):
            l = l.strip()
            if l:
                self._do(lambda l=l: self._emit(l), 8 if l.startswith(("v_exp", "v_rsq", "v_rcp", "buffer_")) else 0 if l.endswith(":") else 4)

    def label(self, base="L"):
        self.nlab += 1
        return f"{base}_{self.nlab}"

    def vmem(self, s, tag=None):
        def f():
            self._emit(s)
            self.vm.append(tag)
            self.seen.add(tag)
        self._do(f, 8)

    def vm_note(self, n, tag=None):
        self._do(lambda: (self.vm.extend([tag] * n), self.seen.add(tag)))

    def _wait(self, lst, tag, name, mx):
        if tag not in lst:
            return lst
        idx = len(lst) - 1 - lst[::-1].index(tag)
        n = min(len(lst) - idx - 1, mx)
        self._emit(f"s_waitcnt {name}({n})")
        return lst[len(lst) - n:] if n else []

    def vm_wait(self, tag):
        def f():
            assert tag in self.seen, tag
            self.vm = self._wait(self.vm, tag, "vmcnt", 63)
        self._do(f)

    def save_vm(self):
        def f():
            self._sv = list(self.vm)
        self._do(f)

    def restore_vm(self):
        def f():
            self.vm = self._sv
        self._do(f)

    def vm_all(self):
        def f():
            self._emit("s_waitcnt vmcnt(0)")
            self.vm = []
        self._do(f)

    def lds(self, s, tag=None):
        def f():
            self._emit(s)
            self.ds.append(tag)
        self._do(f)

    def ds_wait(self, tag):
        def f():
            self.ds = self._wait(self.ds, tag, "lgkmcnt", 15)
        self._do(f)

    def ds_all(self, force=False):
        def f():
            if self.ds or force:
                self._emit("s_waitcnt lgkmcnt(0)")
            self.ds = []
        self._do(f)

    def barrier(self, force=False):
        self.ds_all(force)
        self("s_barrier")

    def stamp(self, name, light=False):
        if not self.stamps:
            return
        if light:
            i = len(self.stamp_names)
            self.stamp_names.append(name)
            r = 4 + 2 * len(self.lights)
            self.lights.append((r, i))
            self(f"s_memtime s[{r}:{r+1}]")
            return
        self.nst = getattr(self, "nst", 0) + 1
        if self.o.get("lite") and name not in ("end", "D.pub"):
            return
        i = len(self.stamp_names)
        assert i < 59
        self.stamp_names.append(name)
        self(f"{'s_memrealtime' if self.o.get('rt') else 's_memtime'} s[{sST}:{sST+1}]")
        self.ds_all(True)
        self(f"v_writelane_b32 v{vSTAMP}, s{sST}, {i}")
        for r, j in self.lights:
            self(f"v_writelane_b32 v{vSTAMP}, s{r}, {j}")
        self.lights = []

    def dma(self, sr, voff, soff, simm, lreg, limm, tag=None, flag=""):
        with self.atomic():
            self(f"s_add_u32 m0, s{lreg}, {limm}")
            self(f"s_add_u32 s{sT5}, s{soff}, {simm}")
            self.vmem(f"buffer_load_dwordx4 v{voff}, {srd(sr)}, s{sT5} offen{flag} lds", tag)

    def get(self, v, c):
        self(f"v_accvgpr_read_b32 v{v}, a{c}")

    def poll_prep(self, mask):
        self.get(vT3, cP16)
        if mask == 7:
            self(f"v_and_b32 v{vT3}, 28, v{vT3}")

    def poll(self, soff, imm, clear=True):
        if clear:
            self.seen = {t for t in self.seen if not (isinstance(t, tuple) and t[0] in ("act", "h"))}
        lp, done = self.label("L_poll"), self.label("L_pd")
        with self.atomic():
            self(f"{lp}:")
            self(f"buffer_load_dword v{vT0}, v{vT3}, {srd(S_WS)}, s{soff} offen offset:{imm} sc1")
            self.vm_all()
            self(f"v_cmp_ne_u32 vcc, s{sTAG}, v{vT0}")
            self(f"s_cbranch_vccz {done}")
            self(f"s_sub_u32 s{sBUD}, s{sBUD}, 1")
            self(f"s_cbranch_scc0 {lp}")
            self(f"s_mov_b32 s{sBUD}, 0")
            self(f"{done}:")

    def poll_a(self, soff, imm):
        if self.o.get("pp", 1):
            self.vmem(f"buffer_load_dword v{vT0}, v{vT3}, {srd(S_WS)}, s{soff} offen offset:{imm} sc1", "pa")

    def poll_b(self, soff, imm):
        if not self.o.get("pp", 1):
            return self.poll(soff, imm)
        self.seen = {t for t in self.seen if not (isinstance(t, tuple) and t[0] in ("act", "h"))}
        lp, done = self.label("L_poll"), self.label("L_pd")
        ld = lambda v: f"buffer_load_dword v{v}, v{vT3}, {srd(S_WS)}, s{soff} offen offset:{imm} sc1"
        self(f"{lp}:")
        self(ld(vT2))
        self("s_waitcnt vmcnt(1)")
        self(f"v_cmp_ne_u32 vcc, s{sTAG}, v{vT0}")
        self(f"s_cbranch_vccz {done}")
        self(ld(vT0))
        self("s_waitcnt vmcnt(1)")
        self(f"v_cmp_ne_u32 vcc, s{sTAG}, v{vT2}")
        self(f"s_cbranch_vccz {done}")
        self(f"s_sub_u32 s{sBUD}, s{sBUD}, 1")
        self(f"s_cbranch_scc0 {lp}")
        self(f"s_mov_b32 s{sBUD}, 0")
        self(f"{done}:")
        self.vm = ["pb"]

    def stores(self, items, force_sc1, tag="st"):
        with self.atomic():
            if force_sc1:
                for it in items:
                    self.vmem(it + " sc1", tag)
                return
            ls, le = self.label("L_ss"), self.label("L_se")
            self(f"s_cmp_lg_u32 s{sSLOW}, 0")
            self(f"s_cbranch_scc1 {ls}")
            for it in items:
                self.vmem(it + (self.fast if tag == "st" else ""), tag)
            self(f"{le}:")
            self.tailcode += [f"{ls}:"] + ["    " + it + " sc1" for it in items] + [f"    s_branch {le}"]

    def flag(self, soff, imm):
        with self.atomic():
            self(f"v_mov_b32 v{vT1}, s{sTAG}")
            self.vm_wait("st")
            self("s_mov_b64 exec, 1")
            self.stores([f"buffer_store_dword v{vT1}, v{vL16}, {srd(S_WS)}, s{soff} offen offset:{imm}"], False, "flag")
            self("s_mov_b64 exec, -1")

    def gemm_begin(self, frags, D=6):
        self.gid = getattr(self, "gid", 0) + 1
        g = dict(frags=frags, D=D, gid=self.gid, rp=0, reads=[])
        for t, f in enumerate(frags):
            s = vWB + 4 * (t % 8)
            if len(f["offs"]) == 2:
                for hh in range(2):
                    g["reads"].append((t, f"ds_read_b64_tr_b16 {vr(s + 2*hh, 2)}, v{f['addr']} offset:{f['offs'][hh]}"))
            else:
                g["reads"].append((t, f"ds_read_b128 {vr(s, 4)}, v{f['addr']} offset:{f['offs'][0]}"))
        self._issue(g, D - 1, 99)
        return g

    def _issue(self, g, tmax, maxn):
        c = 0
        reads = g["reads"]
        while g["rp"] < len(reads) and reads[g["rp"]][0] <= tmax and c < maxn:
            self.lds(reads[g["rp"]][1], ("w", g["gid"], reads[g["rp"]][0]))
            g["rp"] += 1
            c += 1

    def gemm_run(self, g, fill=None):
        fill = fill or {}
        frags, D, gid = g["frags"], g["D"], g["gid"]
        n = len(frags)
        mi = 0
        pend = []
        LATE = self.o.get("late", 3)
        for t, f in enumerate(frags):
            s = vWB + 4 * (t % 8)
            if t % 2 == 0:
                self.ds_wait(("w", gid, min(t + 1, n - 1)))
            nm = len(f["mf"])
            for j, (acc, act_, sw, first, wt) in enumerate(f["mf"]):
                if wt is not None:
                    self.vm_wait(wt)
                c = "0" if first else vr(acc, 4) if acc is not None else ar(aCS, 4)
                if acc is None:
                    self(f"v_mfma_f32_16x16x32_bf16 {ar(aCS,4)}, {ar(aONES,4)}, {vr(s,4)}, {c}")
                elif sw:
                    self(f"v_mfma_f32_16x16x32_bf16 {vr(acc,4)}, {vr(s,4)}, {vr(act_,4)}, {c}")
                else:
                    self(f"v_mfma_f32_16x16x32_bf16 {vr(acc,4)}, {vr(act_,4)}, {vr(s,4)}, {c}")
                rp0 = g["rp"]
                self._issue(g, t + D, 99 if j == nm - 1 else 1)
                room = 8 - 4 * (g["rp"] - rp0) - (4 if (j == nm - 1 and t % 2 == 1) else 0)
                pend += [(mi, x) for x in fill.pop(mi, [])]
                while pend:
                    cst = getattr(pend[0][1], "cost", 4)
                    if cst <= room or (room == 8 and cst > 8) or mi - pend[0][0] >= LATE:
                        self.play([pend.pop(0)[1]])
                        room -= cst
                    else:
                        break
                mi += 1
        self.play([x for _, x in pend])
        for key in sorted(fill):
            self.play(fill[key])

    def gemm(self, frags, fill=None, D=6):
        self.gemm_run(self.gemm_begin(frags, D), fill)


def merge_waits(lines):
    import re
    out = []
    for l in lines:
        m = re.match(r"\s*s_waitcnt (\w+)\((\d+)\)$", l)
        if m and out:
            p = re.match(r"\s*s_waitcnt (\w+)\((\d+)\)$", out[-1])
            if p and p.group(1) != m.group(1):
                out[-1] = out[-1] + f" {m.group(1)}({m.group(2)})"
                continue
        out.append(l)
    return out


def spread(fill, items, start, step, per=1):
    p = start
    if step == 0:
        g = lambda: [x() for x in items]
        g.cost = sum(getattr(x, "cost", 4) for x in items)
        fill.setdefault(int(p), []).append(g)
        return p
    for i in range(0, len(items), per):
        fill.setdefault(int(p), []).extend(items[i:i + per])
        p += step
    return p


def insn_sizes(lines, tailcode):
    import subprocess, tempfile, re, os
    src = [".amdgcn_target \"amdgcn-amd-amdhsa--gfx950\"", ".text", ".set CODE_BYTES, 0x12345"]
    for i, l in enumerate(lines):
        src.append(f"Lz{i}:")
        src.append(l)
    src.append(f"Lz{len(lines)}:")
    src += tailcode
    with tempfile.TemporaryDirectory() as d:
        open(d + "/a.s", "w").write("\n".join(src) + "\n")
        subprocess.run(["clang", "-x", "assembler", "-target", "amdgcn-amd-amdhsa", "-mcpu=gfx950", "-c", d + "/a.s", "-o", d + "/a.o"], check=True)
        out = subprocess.run(["llvm-objdump", "-t", d + "/a.o"], capture_output=True, text=True, check=True).stdout
    addr = {}
    for l in out.splitlines():
        m = re.match(r"([0-9a-f]+) .*\sLz(\d+)$", l)
        if m:
            addr[int(m.group(2))] = int(m.group(1), 16)
    return [addr[i + 1] - addr[i] for i in range(len(lines))]


def add_pads(lines, tailcode, step, splits):
    def call(first, ret):
        c = ["    s_mov_b64 exec, 0"]
        for w in range(3):
            c += [f"    s_cmp_eq_u32 s{sW}, {w}", f"    s_cbranch_scc1 L_pad{first + w}"]
        return c + [f"    s_branch L_pad{first + 3}"]
    src = []
    for l in lines:
        t = l.strip()
        if t.startswith("PADCALL") and t != "PADCALL":
            g = int(t[7:])
            if g <= len(splits):
                src += ["    s_nop 0 ; CALL%d" % g] * 9
        else:
            src.append(l)
    ci = [i for i, l in enumerate(src) if l.strip() == "PADCALL"][0]
    src = src[:ci] + src[ci + 1:]
    sz = insn_sizes(src, tailcode)
    body, pos, nxt, n = [], 4, step, 0
    for i in range(ci, len(src)):
        if pos >= nxt and sz[i] > 0 and "; CALL" not in src[i]:
            body.append(("PAD", n))
            n += 1
            pos += 4
            nxt = (pos // step + 1) * step
        body.append(src[i])
        pos += sz[i]
    bounds = [0] + list(splits) + [n]
    assert all(bounds[i + 1] - bounds[i] >= 4 for i in range(len(bounds) - 1)), (bounds, n)
    out = src[:ci] + call(0, 0) + [".p2align 12", "L_padret0:", "    s_mov_b64 exec, -1"]
    done = set()
    for x in body:
        if isinstance(x, tuple):
            j = x[1]
            g = max(i for i in range(len(bounds) - 1) if bounds[i] <= j)
            out += [f"L_pad{j}:", f"    s_cbranch_execz {'L_pad%d' % (j + 4) if j + 4 < bounds[g + 1] else 'L_padret%d' % g}"]
        elif "; CALL" in x:
            g = int(x.split("CALL")[1])
            if g not in done:
                done.add(g)
                out += call(bounds[g], g) + [f"L_padret{g}:", "    s_mov_b64 exec, -1"]
        else:
            out.append(x)
    return out


def mix(a, b, ratio):
    out = []
    bi = 0
    for i, x in enumerate(a):
        out.append(x)
        if (i + 1) % ratio == 0 and bi < len(b):
            out.append(b[bi]); bi += 1
    out.extend(b[bi:])
    return out


def act(ks, rb):
    return vACT + 8 * ks + 4 * rb


def gen(stamps=False, opts=None):
    k = K(stamps, opts)
    o = k.o
    if stamps:
        k(f"{'s_memrealtime' if o.get('rt') else 's_memtime'} s[{sST}:{sST+1}]")
        k(f"s_memrealtime s[{sPC}:{sPC+1}]")
    k(f"""
    s_cmp_ge_u32 s2, 256
    s_cbranch_scc1 L_end
    s_load_dwordx2 s[{S_X}:{S_X+1}], s[0:1], 0
    s_load_dwordx2 s[{S_WQKV}:{S_WQKV+1}], s[0:1], 8
    s_load_dwordx2 s[{S_WS}:{S_WS+1}], s[0:1], 64
    s_load_dwordx2 s[{S_WO}:{S_WO+1}], s[0:1], 16
    s_load_dwordx2 s[{S_W1}:{S_W1+1}], s[0:1], 32
    s_load_dwordx2 s[{S_W2}:{S_W2+1}], s[0:1], 40
    s_load_dwordx2 s[{S_OUT}:{S_OUT+1}], s[0:1], 48
    """)
    if o.get("cw0", 1):
        k(f"""
        s_getpc_b64 s[{S_A}:{S_A+1}]
        L_pcref:
        s_lshr_b32 s{sT2}, s2, 3
        s_lshl_b32 s{sT2}, s{sT2}, 11
        v_lshlrev_b32 v{vT3}, 3, v0
        v_add_u32 v{vT3}, s{sT2}, v{vT3}
        v_min_u32 v{vT3}, CODE_BYTES, v{vT3}
        s_mov_b32 exec_lo, 0x10001
        s_mov_b32 exec_hi, 0x10001
        global_load_dword a{aDUM}, v{vT3}, s[{S_A}:{S_A+1}]
        s_mov_b64 exec, -1
        """)
    k(f"""
    v_lshrrev_b32 v{vT0}, 6, v0
    v_and_b32 v{vLANE}, 63, v0
    s_mov_b32 s{S_X+2}, {2048*1024}
    v_readfirstlane_b32 s{sW}, v{vT0}
    s_mov_b32 s{S_X+3}, 0x20000
    s_mov_b32 s{S_WQKV+2}, {512*3072}
    s_mov_b32 s{S_WQKV+3}, 0x20000
    s_lshr_b32 s{sT0}, s2, 3
    s_and_b32 s{sC}, s{sT0}, 15
    s_lshr_b32 s{sT0}, s{sT0}, 4
    s_and_b32 s{sG}, s2, 7
    s_lshl1_add_u32 s{sG}, s{sG}, s{sT0}
    s_lshr_b32 s{sT1}, s{sC}, 1
    s_xor_b32 s{sT1}, s{sT1}, s{sT0}
    s_and_b32 s{sT1}, s{sT1}, 1
    s_and_b32 s{sRHO}, s{sC}, 1
    s_lshl1_add_u32 s{sRHO}, s{sT1}, s{sRHO}
    v_lshlrev_b32 v{vL16}, 4, v{vLANE}
    """)
    if stamps:
        k(f"v_mov_b32 v{vSTAMP}, 0")
    NTP = " nt" if o.get("nt", 0) & 1 else ""
    NTX = " nt" if o.get("nt", 0) & 2 else ""
    XS, XR, X2R = vRES, vRES + 4, act(15, 1)
    aRES = 246
    k(f"""
    v_lshrrev_b32 v{vT0}, 4, v{vLANE}
    v_and_b32 v{vT1}, 15, v{vLANE}
    v_xor_b32 v{vT2}, v{vT0}, v{vT1}
    v_lshlrev_b32 v{vT2}, 4, v{vT2}
    v_lshl_add_u32 v{XS}, v{vT0}, 10, v{vT2}
    v_xor_b32 v{XS+1}, 64, v{XS}
    v_xor_b32 v{XS+2}, 0x80, v{XS}
    v_xor_b32 v{XS+3}, 0xc0, v{XS}
    v_lshrrev_b32 v{vP}, 2, v{vLANE}
    v_and_b32 v{vCH}, 3, v{vLANE}
    v_lshrrev_b32 v{vT3}, 3, v{vLANE}
    v_and_b32 v{vT3}, 2, v{vT3}
    v_xor_b32 v{vCH}, v{vCH}, v{vT3}
    v_lshlrev_b32 v{vCH}, 4, v{vCH}
    v_and_b32 v{vT3}, 3, v{vP}
    v_lshl_add_u32 v{vT3}, v{vT0}, 3, v{vT3}
    s_movk_i32 s{sT1}, 3072
    v_mad_u32_u24 v{vDM}, v{vT3}, s{sT1}, v{vCH}
    s_lshl_b32 s{sL0}, s{sW}, 14
    s_add_u32 s{sL0}, s{sL0}, {L_XST}
    s_lshl_b32 s{sT1}, s{sG}, 17
    s_lshl_b32 s{sT2}, s{sW}, 15
    s_add_u32 s{sT1}, s{sT1}, s{sT2}
    s_lshl_b32 s{sL1}, s{sW}, 12
    """)
    for r in range(4):
        k(f"""
        s_add_u32 s{sT2}, s{sRHO}, {r}
        s_and_b32 s{sT2}, s{sT2}, 3
        s_lshl_b32 s{sT3}, s{sT2}, 8
        s_add_u32 s{sD0+r}, s{sT1}, s{sT3}
        s_lshl2_add_u32 s{sT2}, s{sT2}, s{sW}
        s_mul_i32 s{sT2}, s{sT2}, {32*3072}
        s_lshl_b32 s{sT3}, s{sC}, 6
        s_add_u32 s{sRB+r}, s{sT2}, s{sT3}
        """)
    k("s_waitcnt lgkmcnt(0)")
    k(f"s_load_dword s{sEP}, s[{S_WS}:{S_WS+1}], {WS_EPOCH}")
    if stamps:
        k(f"v_writelane_b32 v{vSTAMP}, s{sST}, 62")
        k(f"v_writelane_b32 v{vSTAMP}, s{sPC}, 63")

    def xslot(q, js=range(8)):
        for j in js:
            k.dma(S_X, XS + (j & 3), sD0 + q, j * 4096, sL0, (q & 1) * 8192 + j * 1024, ("xs", q), " nt" if o.get("nt", 0) & 4 else "")

    def wkv_raw(r):
        for pr in range(2):
            for hh in range(2):
                k.dma(S_WQKV, vDM, sRB + r, hh * 4 * 3072 + 1024 * (pr + 1), sL1, R0 + r * 16384 + pr * 2048 + hh * 1024, ("wkv", r))

    def quad_lane(pitch, dst=vDM, tmp=vT2, sD3=sD3):
        vT2 = tmp
        k(f"v_lshrrev_b32 v{dst}, 3, v{vLANE}")
        k(f"v_and_b32 v{vT2}, 6, v{dst}")
        k(f"v_xor_b32 v{vT2}, v{vT2}, v{vLANE}")
        k(f"v_and_b32 v{vT2}, 7, v{vT2}")
        k(f"v_lshlrev_b32 v{vT2}, 4, v{vT2}")
        if isinstance(pitch, int):
            k(f"s_movk_i32 s{sD3}, {pitch}")
            pitch = f"s{sD3}"
        k(f"v_mad_u32_u24 v{dst}, v{dst}, {pitch}, v{vT2}")

    def dma_raw(sr, lds_imm, first, R=None):
        sD0_, sD2_, sL0_, vDM_ = R or (sD0, sD2, sL0, vDM)
        with k.atomic():
            k(f"s_add_u32 m0, s{sL0_}, {lds_imm}")
            k("s_nop 0" if first else f"s_add_u32 s{sD0_}, s{sD0_}, s{sD2_}")
            k(f"buffer_load_dwordx4 v{vDM_}, {srd(sr)}, s{sD0_} offen{NTP} lds")

    def packU_issue(base, sD0, sD1, sD2, sD3, sL0, vDM, sPDA, shift=12):
        R = (sD0, sD2, sL0, vDM)
        l2, l3, lq, le = k.label("L_u2"), k.label("L_u3"), k.label("L_uq"), k.label("L_ue")
        with k.atomic():
            k(f"""
            s_lshl_b32 s{sL0}, s{sW}, {shift}
            s_add_u32 s{sL0}, s{sL0}, {base}
            s_lshr_b32 s{sD0}, s{sC}, 2
            s_mul_i32 s{sD0}, s{sD0}, 896
            s_mul_i32 s{sD1}, s{sG}, {32*3584}
            s_add_u32 s{sD0}, s{sD0}, s{sD1}
            s_and_b32 s{sD1}, s{sC}, 3
            s_cmp_eq_u32 s{sW}, 3
            s_cbranch_scc1 {l3}
            s_cmp_eq_u32 s{sW}, 2
            s_cbranch_scc1 {l2}
            s_mov_b32 s{S_A}, s{S_W2}
            s_mov_b32 s{S_A+1}, s{S_W2+1}
            s_mov_b32 s{S_A+2}, {1792*1024}
            s_movk_i32 s{sD2}, 1024
            s_lshl1_add_u32 s{sD0}, s2, s{sW}
            s_lshr_b32 s{sD1}, s{sD0}, 3
            s_and_b32 s{sD0}, s{sD0}, 7
            s_mul_i32 s{sPDA}, s{sD0}, 56
            s_add_u32 s{sPDA}, s{sPDA}, s{sD1}
            s_lshl_b32 s{sPDA}, s{sPDA}, 12
            s_add_u32 s{sPDA}, s{sPDA}, {WS_W2T}
            s_cmp_ge_u32 s{sD1}, 56
            s_cselect_b32 s{sPDA}, {OOB}, s{sPDA}
            s_lshl_b32 s{sD1}, s{sD1}, 15
            s_lshl_b32 s{sD0}, s{sD0}, 7
            s_add_u32 s{sD0}, s{sD0}, s{sD1}
            s_branch {lq}
            {l2}:
            s_mov_b32 s{S_A}, s{S_W1}
            s_mov_b32 s{S_A+1}, s{S_W1+1}
            s_mov_b32 s{S_A+2}, {512*3584}
            s_movk_i32 s{sD2}, 3584
            s_lshl_b32 s{sD1}, s{sD1}, 7
            s_add_u32 s{sD0}, s{sD0}, s{sD1}
            s_lshl_b32 s{sPDA}, s{sG}, 12
            s_add_u32 s{sPDA}, s{sPDA}, s{sPKB}
            s_add_u32 s{sPDA}, s{sPDA}, {PK_W1A}
            {lq}:
            s_mov_b32 s{S_A+3}, 0x20000
            """)
            quad_lane(f"s{sD2}", vDM, vT2 if shift == 14 else vACT + 127)
            k(f"s_lshl_b32 s{sD2}, s{sD2}, 3")
            for j in range(4):
                dma_raw(S_A, j * 1024, j == 0, R)
            k(f"""
            s_branch {le}
            {l3}:
            s_movk_i32 s{sD3}, 3584
            s_mul_i32 s{sPDA}, s{sG}, 3072
            s_add_u32 s{sPDA}, s{sPDA}, s{sPKB}
            s_add_u32 s{sPDA}, s{sPDA}, {PK_W1B}
            s_lshr_b32 s{sT5}, s{sD1}, 1
            s_mul_i32 s{sT5}, s{sT5}, 6
            s_and_b32 s{sD2}, s{sD1}, 1
            s_add_u32 s{sT5}, s{sT5}, s{sD2}
            s_add_u32 s{sT5}, s{sT5}, 18
            s_lshl_b32 s{sT5}, s{sT5}, 5
            s_add_u32 s{sT5}, s{sT5}, s{sD0}
            v_lshrrev_b32 v{vDM}, 1, v{vLANE}
            v_and_b32 v{vT2 if shift == 14 else vACT + 127}, 16, v{vL16}
            v_mad_u32_u24 v{vDM}, v{vDM}, s{sD3}, v{vT2 if shift == 14 else vACT + 127}
            s_add_u32 m0, s{sL0}, 2048
            s_mul_i32 s{sD1}, s{sD1}, 3
            buffer_load_dwordx4 v{vDM}, {srd(S_W1)}, s{sT5} offen{NTP} lds
            s_add_u32 s{sD1}, s{sD1}, 17
            s_lshr_b32 s{sD1}, s{sD1}, 1
            s_lshl_b32 s{sD1}, s{sD1}, 6
            s_add_u32 s{sD0}, s{sD0}, s{sD1}
            s_mov_b32 s{sD2}, {16*3584}
            v_mad_u32_u24 v{vDM}, v{vP}, s{sD3}, v{vCH}
            """)
            for hh in range(2):
                dma_raw(S_W1, hh * 1024, hh == 0, R)
            k(f"buffer_load_dword a{aDUM}, v{vL16}, {srd(S_W1)}, s{S_W1+2} offen")
            k(f"{le}:")
            k.vm_note(4, "pu")

    WP = o.get("wp", 1)

    def warm():
        k(f"v_lshlrev_b32 v{vT3}, 7, v{vLANE}")
        k("s_mov_b64 exec, 0xf")
        if not o.get("cw0", 1):
            k(f"""
            s_getpc_b64 s[{sPC}:{sPC+1}]
            L_pcref:
            s_lshr_b32 s{sT2}, s2, 3
            s_lshl2_add_u32 s{sT2}, s{sT2}, s{sW}
            s_lshl_b32 s{sT2}, s{sT2}, 9
            s_min_u32 s{sT2}, s{sT2}, CODE_BYTES
            s_add_u32 s{sPC}, s{sPC}, s{sT2}
            s_addc_u32 s{sPC+1}, s{sPC+1}, 0
            """)
            k.vmem(f"global_load_dword a{aDUM}, v{vT3}, s[{sPC}:{sPC+1}]")
        if o.get("warm", 1) >= 1:
            k(f"s_lshl2_add_u32 s{sT2}, s2, s{sW}")
            k(f"s_lshr_b32 s{sT3}, s{sT2}, 1")
            k(f"s_mul_i32 s{sT3}, s{sT3}, 3072")
            k(f"s_and_b32 s{sT4}, s{sT2}, 1")
            k(f"s_lshl_b32 s{sT4}, s{sT4}, 9")
            k(f"s_add_u32 s{sT3}, s{sT3}, s{sT4}")
            k.vmem(f"buffer_load_dword a{aDUM}, v{vT3}, {srd(S_WQKV)}, s{sT3} offen")
            if not WP:
                k(f"s_lshl_b32 s{sT3}, s{sT2}, 9")
                k.vmem(f"buffer_load_dword a{aDUM}, v{vT3}, {srd(S_WO)}, s{sT3} offen")
        if o.get("tlb", 0):
            k("s_mov_b64 exec, 1")
            k(f"s_mul_i32 s{sT3}, s{sT2}, 1792")
            k.vmem(f"buffer_load_dword a{aDUM}, v{vT3}, {srd(S_W1)}, s{sT3} offen")
            k.vmem(f"buffer_load_dword a{aDUM}, v{vT3}, {srd(S_W2)}, s{sT3} offen")
            if o["tlb"] > 1:
                k("s_mov_b64 exec, 0x1f")
                k(f"v_lshlrev_b32 v{vWB}, 21, v{vLANE}")
                k(f"s_mov_b32 s{sT3}, {WS_KVX + 0x1f0000}")
                k.vmem(f"buffer_load_dword a{aDUM}, v{vWB}, {srd(S_WS)}, s{sT3} offen")
        if o.get("warm", 1) >= 2:
            k(f"s_mul_i32 s{sT3}, s{sT2}, 1792")
            k("s_mov_b64 exec, 0x3fff")
            k.vmem(f"buffer_load_dword a{aDUM}, v{vT3}, {srd(S_W1)}, s{sT3} offen")
            k.vmem(f"buffer_load_dword a{aDUM}, v{vT3}, {srd(S_W2)}, s{sT3} offen")
        k(f"s_lshl2_add_u32 s{sT2}, s{sC}, s{sW}")
        k(f"s_lshl_b32 s{sT2}, s{sT2}, 8")
        k(f"s_add_u32 s{sT2}, s{sT2}, s{sGB}")
        k("s_mov_b64 exec, 3")
        k.vmem(f"buffer_load_dword a{aDUM}, v{vT3}, {srd(S_WS)}, s{sT2} offen sc1", "touch")
        k("s_mov_b64 exec, -1")

    OWN = vACC
    k(f"s_lshl_b32 s{sT2}, s{sC}, 11")
    k(f"s_add_u32 s{sT2}, s{sT2}, s{sT1}")
    for r in range(2):
        k.vmem(f"buffer_load_dwordx4 {vr(OWN+4*r,4)}, v{vL16}, {srd(S_X)}, s{sT2} offen offset:{r*1024}{NTX}", "own")
    w0_ = k.rec(lambda: wkv_raw(0))
    nw0 = o.get("nw0", 2)
    k.play(w0_[:nw0])
    k(f"""
    s_mov_b32 s{S_WO+2}, {512*1024}
    s_mov_b32 s{S_WO+3}, 0x20000
    s_mov_b32 s{S_W1+2}, {512*3584}
    s_mov_b32 s{S_W1+3}, 0x20000
    s_mov_b32 s{S_W2+2}, {1792*1024}
    s_mov_b32 s{S_W2+3}, 0x20000
    s_mov_b32 s{S_WS+2}, {WS_USED}
    s_mov_b32 s{S_WS+3}, 0x20000
    s_lshl_b32 s{sGB}, s{sG}, 20
    s_add_u32 s{sGB}, s{sGB}, {GRP0}
    """)
    warm()
    UF = o.get("uf", 1)
    k(f"s_mul_i32 s{sPKB}, s{sC}, {PK_SZ}")
    k(f"s_add_u32 s{sPKB}, s{sPKB}, {WS_PK}")
    if UF == 1:
        packU_issue(R1, sH1, sH1b, sH2, sH2b, sH3, vWB + 8, sPDB)
    if WP:
        quad_lane(1024, vWB + 8, vACT + 127, sH2b)
        k(f"""
        s_lshl2_add_u32 s{sH1}, s{sG}, s{sW}
        s_lshl_b32 s{sPDA}, s{sH1}, 10
        s_add_u32 s{sPDA}, s{sPDA}, s{sPKB}
        s_add_u32 s{sPDA}, s{sPDA}, {PK_WO}
        s_lshl_b32 s{sH1}, s{sH1}, 13
        s_lshl_b32 s{sH1b}, s{sC}, 7
        s_add_u32 s{sH1}, s{sH1}, s{sH1b}
        s_cmp_ge_u32 s{sC}, 8
        s_cselect_b32 s{sH1}, {OOB}, s{sH1}
        s_cselect_b32 s{sPDA}, {OOB}, s{sPDA}
        s_lshl_b32 s{sH1b}, s{sW}, 10
        s_add_u32 m0, s{sH1b}, {R0 + 49152}
        s_nop 0
        """)
        k.vmem(f"buffer_load_dwordx4 v{vWB+8}, {srd(S_WO)}, s{sH1} offen{NTP} lds", "pwo")

    W0P = o.get("w0p", 0)
    if W0P == 0:
        k.play(w0_[nw0:])

    if o.get("diags"): k.stamp("iss0")

    def arm(mode):
        with k.atomic():
            k(f"s_lshl2_add_u32 s{sT2}, s{sC}, s{sW}")
            k(f"s_lshl_b32 s{sT3}, s{sT2}, 11")
            k(f"s_add_u32 s{sT3}, s{sT3}, s{sGB}")
            k(f"s_add_u32 s{sT3}, s{sT3}, {G_X1}")
            k(f"s_lshr_b32 s{sT4}, s{sT2}, 3")
            k(f"s_mul_i32 s{sT4}, s{sT4}, 57344")
            k(f"s_and_b32 s{sT2}, s{sT2}, 7")
            k(f"s_mul_i32 s{sT2}, s{sT2}, {5120 if mode & 4 else 1024}")
            k(f"s_add_u32 s{sT4}, s{sT4}, s{sT2}")
            k(f"s_add_u32 s{sT4}, s{sT4}, s{sGB}")
            k(f"s_add_u32 s{sT4}, s{sT4}, {G_H + 16*1024}")
            k(f"s_add_u32 s{sT2}, s{sT4}, 4096")
        if mode & 1:
            for j in range(2):
                k.vmem(f"buffer_store_dwordx4 {vr(vQ0,4)}, v{vL16}, {srd(S_WS)}, s{sT3} offen offset:{j*1024} sc1", "arm")
        for j in range(5 if mode & 4 else 1 if mode & 2 else 0):
            k.vmem(f"buffer_store_dwordx4 {vr(vQ0,4)}, v{vL16}, {srd(S_WS)}, s{sT4 if j < 4 else sT2} offen offset:{(j%4)*1024} sc1", "arm")

    k(f"""
    s_mov_b32 s{S_OUT+2}, {2048*1024}
    s_mov_b32 s{S_OUT+3}, 0x20000
    s_lshr_b32 s{sDH}, s{sC}, 3
    s_and_b32 s{sCT}, s{sC}, 7
    s_mov_b32 s{sBUD}, 150000
    s_mov_b32 s{sEPS}, 0x358637bd
    s_mov_b32 s{sEPS+1}, 0x358637bd
    s_getreg_b32 s{sXCC}, hwreg(HW_REG_XCC_ID, 0, 4)
    s_lshl_b32 s{sACT}, s{sW}, 15
    s_add_u32 s{sACT}, s{sACT}, s{sGB}
    s_add_u32 s{sACT1}, s{sACT}, 16384
    s_lshl2_add_u32 s{sT0}, s{sDH}, s{sW}
    s_lshl_b32 s{sBACT}, s{sT0}, 14
    s_add_u32 s{sBACT}, s{sBACT}, s{sGB}
    s_lshl_b32 s{sTILE}, s{sCT}, 11
    s_add_u32 s{sTILE}, s{sTILE}, s{sBACT}
    s_mul_i32 s{sBACT}, s{sT0}, 57344
    s_add_u32 s{sBACT}, s{sBACT}, s{sGB}
    s_mul_i32 s{sOST}, s{sW}, {2*57344}
    s_lshl_b32 s{sOST1}, s{sC}, 10
    s_add_u32 s{sOST}, s{sOST}, s{sOST1}
    s_add_u32 s{sOST}, s{sOST}, s{sGB}
    s_add_u32 s{sOST}, s{sOST}, {G_O}
    s_add_u32 s{sOST1}, s{sOST}, 57344
    s_lshl_b32 s{sFXp}, s{sW}, 7
    s_add_u32 s{sFXp}, s{sFXp}, s{sGB}
    s_lshl2_add_u32 s{sFOo}, s{sC}, s{sFXp}
    s_lshl_b32 s{sFHp}, s{sT0}, 7
    s_add_u32 s{sFHp}, s{sFHp}, s{sGB}
    s_lshr_b32 s{sT0}, s{sT0}, 1
    s_mov_b32 s{sT1}, s{sT0}
    s_lshl_b32 s{sFOp}, s{sT0}, 7
    s_add_u32 s{sFOp}, s{sFOp}, s{sGB}
    s_and_b32 s{sT2}, s{sW}, 1
    s_lshl1_add_u32 s{sT3}, s{sCT}, s{sT2}
    s_lshl2_add_u32 s{sFXo}, s{sT3}, s{sFOp}
    s_lshl3_add_u32 s{sT3}, s{sT0}, s{sCT}
    s_lshl_b32 s{sT3}, s{sT3}, 8
    s_lshl3_add_u32 s{sT3}, s{sT2}, s{sT3}
    s_add_u32 s{sSTo}, s{sT3}, s{sGB}
    s_lshl_b32 s{sSTg}, s{sW}, 11
    s_add_u32 s{sSTg}, s{sSTg}, s{sGB}
    s_lshl2_add_u32 s{sT1}, s{sT1}, s{sT2}
    s_lshl_b32 s{sT1}, s{sT1}, 6
    s_add_u32 s{sT1}, s{sT1}, {L_STAT + 128}
    v_lshl_add_u32 v{vT3}, v{vT1}, 2, s{sT1}
    v_accvgpr_write_b32 a{cRSD}, v{vT3}
    s_mul_i32 s{sT0}, s{sW}, {2*57344}
    s_add_u32 s{sT0}, s{sT0}, s{sGB}
    s_lshr_b32 s{sT3}, s{sC}, 2
    s_add_u32 s{sT0}, s{sT0}, {G_H}
    s_lshl_b32 s{sH1}, s{sC}, 11
    s_add_u32 s{sH1}, s{sH1}, {24*1024}
    s_add_u32 s{sH1}, s{sH1}, s{sT0}
    s_add_u32 s{sH1b}, s{sH1}, 57344
    s_mul_i32 s{sT4}, s{sT3}, 6144
    s_add_u32 s{sT0}, s{sT0}, s{sT4}
    s_and_b32 s{sT4}, s{sC}, 3
    s_mul_i32 s{sH2}, s{sT4}, 3
    s_add_u32 s{sH2}, s{sH2}, 1
    s_lshr_b32 s{sH2}, s{sH2}, 1
    s_lshl_b32 s{sH2}, s{sH2}, 10
    s_add_u32 s{sH2}, s{sH2}, s{sT0}
    s_add_u32 s{sH2b}, s{sH2}, 57344
    s_lshr_b32 s{sH3}, s{sT4}, 1
    s_mul_i32 s{sH3}, s{sH3}, 3072
    s_and_b32 s{sH3b}, s{sT4}, 1
    s_lshl3_add_u32 s{sH3}, s{sH3b}, s{sH3}
    s_add_u32 s{sH3}, s{sH3}, 1024
    s_add_u32 s{sH3}, s{sH3}, s{sT0}
    s_add_u32 s{sH3b}, s{sH3}, 57344
    s_lshr_b32 s{sT0}, s{sW}, 1
    s_lshl2_add_u32 s{sT0}, s{sT0}, s{sT3}
    s_lshl_b32 s{sT0}, s{sT0}, 7
    s_lshl1_add_u32 s{sT2}, s{sT4}, s{sT2}
    s_lshl2_add_u32 s{sT0}, s{sT2}, s{sT0}
    s_add_u32 s{sFHo}, s{sT0}, s{sGB}
    """)
    k(f"""
    s_mul_i32 s{sT0}, s{sC}, {KVX_C}
    s_add_u32 s{sT0}, s{sT0}, {WS_KVX}
    s_lshl_b32 s{sT1}, s{sW}, 13
    s_add_u32 s{sKVC}, s{sT0}, s{sT1}
    s_lshl_b32 s{sT2}, s{sW}, 14
    s_lshl_b32 s{sT3}, s{sG}, 10
    s_lshl_b32 s{sT4}, s{sG}, 7
    s_cmp_lt_u32 s{sW}, 2
    s_cselect_b32 s{sT3}, s{sT3}, s{sT4}
    s_cselect_b32 s{sKM}, -1, 0x30003
    s_cselect_b32 s{sKM+1}, -1, 0x30003
    s_cselect_b64 vcc, -1, 0
    s_add_u32 s{sKVP}, s{sT0}, s{sT2}
    s_add_u32 s{sKVP}, s{sKVP}, s{sT3}
    s_cmp_eq_u32 s{sW}, 3
    s_cselect_b32 s{sKVP}, {OOB}, s{sKVP}
    v_lshlrev_b32 v{vT3}, 4, v{vT0}
    v_lshl_add_u32 v{vT3}, v{vT1}, 6, v{vT3}
    v_cndmask_b32 v{vT3}, v{vT3}, v{vL16}, vcc
    v_accvgpr_write_b32 a{cKVS}, v{vT3}
    v_lshlrev_b32 v{vT3}, 2, v{vL16}
    v_and_b32 v{vT3}, 0xf00, v{vT3}
    v_lshrrev_b32 v{vT3}, 1, v{vT3}
    v_and_b32 v{vWB}, 48, v{vL16}
    s_lshr_b32 s{sT2}, s{sW}, 1
    s_lshl_b32 s{sT2}, s{sT2}, 6
    s_add_u32 s{sT2}, s{sT2}, 32768
    s_sub_u32 s{sT2}, s{sT2}, s{sT1}
    v_add3_u32 v{vT3}, v{vT3}, v{vWB}, s{sT2}
    v_accvgpr_write_b32 a{cZL}, v{vT3}
    v_and_b32 v{vWB+5}, 1, v{vLANE}
    v_cndmask_b32 v{vWB+5}, v{vWB+5}, 0, vcc
    s_min_u32 s{sT5}, s{sW}, 2
    """)
    W = vWB
    k(f"""
    v_lshl_add_u32 v{XR}, v{vT1}, 8, v{vT2}
    v_add_u32 v{XR}, s{sL0}, v{XR}
    v_xor_b32 v{XR+1}, 64, v{XR}
    v_xor_b32 v{XR+2}, 0x80, v{XR}
    v_xor_b32 v{XR+3}, 0xc0, v{XR}
    v_and_b32 v{vT3}, 3, v{vLANE}
    v_lshlrev_b32 v{vT3}, 3, v{vT3}
    v_lshl_add_u32 v{vTR0}, v{vP}, 6, v{vT3}
    v_lshl_add_u32 v{vQ0}, v{vP}, 7, v{vT3}
    v_and_b32 v{vT3}, 1, v{vT0}
    v_lshlrev_b32 v{vT3}, 5, v{vT3}
    v_add_u32 v{vTR0}, v{vTR0}, v{vT3}
    v_xor_b32 v{vTR1}, 32, v{vTR0}
    v_bfe_u32 v{vT3}, v{vLANE}, 3, 2
    v_lshl_add_u32 v{vQ0}, v{vT3}, 5, v{vQ0}
    v_xor_b32 v{vQ1}, 32, v{vQ0}
    v_xor_b32 v{vQ2}, 64, v{vQ0}
    v_xor_b32 v{vQ3}, 0x60, v{vQ0}
    v_lshlrev_b32 v{W}, 2, v{vT1}
    v_accvgpr_write_b32 a{cP16}, v{W}
    v_mov_b32 v{W+1}, {BF1}
    v_accvgpr_write_b32 a{aONES}, v{W+1}
    v_accvgpr_write_b32 a{aONES+1}, v{W+1}
    v_accvgpr_write_b32 a{aONES+2}, v{W+1}
    v_accvgpr_write_b32 a{aONES+3}, v{W+1}
    v_add_u32 v{W+1}, {L_CS}, v{W}
    v_accvgpr_write_b32 a{cCSA}, v{W+1}
    v_and_b32 v{W+2}, 48, v{vLANE}
    v_add_u32 v{W+1}, {L_CS}, v{W+2}
    v_accvgpr_write_b32 a{cCSB}, v{W+1}
    v_lshlrev_b32 v{W+1}, 2, v{vT0}
    v_lshl_add_u32 v{W+1}, v{vT1}, 4, v{W+1}
    v_accvgpr_write_b32 a{cSTO}, v{W+1}
    s_lshl_b32 s{sT0}, s{sW}, 8
    s_add_u32 s{sT0}, s{sT0}, {L_STAT}
    v_add_u32 v{W+1}, s{sT0}, v{W}
    v_accvgpr_write_b32 a{cSTA}, v{W+1}
    v_and_b32 v{W+3}, 32, v{vLANE}
    v_lshl_add_u32 v{W+1}, v{W+3}, 1, v{W+1}
    v_accvgpr_write_b32 a{cSTW}, v{W+1}
    v_add_u32 v{W+1}, s{sT0}, v{W+2}
    v_accvgpr_write_b32 a{cSTB}, v{W+1}
    s_lshl_b32 s{sT0}, s{sW}, 10
    v_add_u32 v{W+1}, s{sT0}, v{vL16}
    v_accvgpr_write_b32 a{cKW}, v{W+1}
    v_add_u32 v{W+3}, {R2 + 8192}, v{W+1}
    v_accvgpr_write_b32 a{cKW1}, v{W+3}
    s_lshl_b32 s{sT0}, s{sT5}, 14
    v_add_u32 v{W+1}, s{sT0}, v{vL16}
    v_lshl_add_u32 v{W+1}, v{W+5}, 12, v{W+1}
    v_accvgpr_write_b32 a{cKR}, v{W+1}
    s_lshl_b32 s{sT0}, s{sT5}, 14
    s_add_u32 s{sT0}, s{sT0}, {R2 + 8192}
    v_add_u32 v{W+1}, s{sT0}, v{vL16}
    v_lshl_add_u32 v{W+1}, v{W+5}, 14, v{W+1}
    v_accvgpr_write_b32 a{cKR1}, v{W+1}
    v_add_u32 v{W+1}, {L_XB}, v{vL16}
    v_accvgpr_write_b32 a{cXR}, v{W+1}
    v_lshlrev_b32 v{W+3}, 3, v{vT0}
    v_add_u32 v{W+3}, {L_ZB}, v{W+3}
    v_accvgpr_write_b32 a{cZR}, v{W+3}
    """)
    k(f"""
    s_lshl_b32 s{sT0}, s{sW}, 10
    v_add_u32 v{W+1}, s{sT0}, v{W+1}
    v_accvgpr_write_b32 a{cXW}, v{W+1}
    v_and_b32 v{W+3}, 1, v{vT0}
    v_lshrrev_b32 v{W+4}, 1, v{vT0}
    v_lshl_add_u32 v{W+3}, v{W+3}, 1, v{W+4}
    v_and_b32 v{W+4}, 3, v{vLANE}
    v_lshl_add_u32 v{W+3}, v{W+4}, 2, v{W+3}
    s_lshr_b32 s{sT0}, s{sW}, 1
    s_lshl_b32 s{sT0}, s{sT0}, 5
    s_add_u32 s{sT0}, s{sT0}, {L_ZB}
    v_lshl_add_u32 v{W+3}, v{W+3}, 1, s{sT0}
    v_accvgpr_write_b32 a{cZW}, v{W+3}
    """)
    for j in range(4):
        k(f"s_add_u32 s{sT0}, s{sW}, {j}")
        k(f"s_and_b32 s{sT0}, s{sT0}, 3")
        k(f"s_lshl_b32 s{sT0}, s{sT0}, 13")
        k(f"s_add_u32 s{sT0}, s{sT0}, {L_RED + (4096 if j == 2 else 0)}")
        k(f"v_add_u32 v{W+1}, s{sT0}, v{vL16}")
        k(f"v_accvgpr_write_b32 a{cRD0+j}, v{W+1}")
    k(f"""
    s_lshl2_add_u32 s{sT0}, s{sDH}, s{sW}
    s_lshl3_add_u32 s{sT0}, s{sG}, s{sT0}
    s_lshl_b32 s{sT0}, s{sT0}, 14
    s_lshl_b32 s{sT1}, s{sCT}, 7
    s_add_u32 s{sT0}, s{sT0}, s{sT1}
    v_lshl_add_u32 v{W+1}, v{vT1}, 10, s{sT0}
    v_and_b32 v{W+3}, 1, v{vT0}
    v_lshl_add_u32 v{W+1}, v{W+3}, 5, v{W+1}
    v_lshrrev_b32 v{W+3}, 1, v{vT0}
    v_lshl_add_u32 v{W+1}, v{W+3}, 4, v{W+1}
    v_accvgpr_write_b32 a{cOUT}, v{W+1}
    """)

    def xread(q):
        k.vm_wait(("xs", q))
        for ksl in range(4):
            for rb in range(2):
                k.lds(f"ds_read_b128 {vr(act(4*q+ksl, rb),4)}, v{XR+ksl} offset:{(q%2)*8192 + rb*4096}", ("xr", q))

    SUM0, SQ0, SUM1, SQ1 = vACC + 56, vACC + 57, vACC + 58, vACC + 59
    SUMA, SQA = vACC + 48, vACC + 56
    ONES = vPQ + 4
    NM_A, RS_A, RL_A = vACC + 60, vACC + 62, vACC + 56
    NM_B, RS_B, RL_B = vACC + 32, vACC + 40, vACC + 48
    STG = vACC + 48

    def own_stats():
        a, b, c, d = OWN + 8, OWN + 9, OWN + 10, OWN + 11
        k(f"v_mov_b32 v{OWN+12}, {BF1}")
        k.vm_wait("own")
        for j in range(4):
            r0, r1 = OWN + j, OWN + 4 + j
            k(f"v_dot2_f32_bf16 v{a}, v{OWN+12}, v{r0}, {'0' if j == 0 else f'v{a}'}")
            k(f"v_dot2_f32_bf16 v{c}, v{OWN+12}, v{r1}, {'0' if j == 0 else f'v{c}'}")
            k(f"v_dot2_f32_bf16 v{b}, v{r0}, v{r0}, {'0' if j == 0 else f'v{b}'}")
            k(f"v_dot2_f32_bf16 v{d}, v{r1}, v{r1}, {'0' if j == 0 else f'v{d}'}")
        k(f"""
        s_waitcnt lgkmcnt(0)
        s_mul_i32 s{sTAG}, s{sEP}, 0x9E3779B1
        s_add_u32 s{sTAG}, s{sTAG}, 0x7F4A7C15
        s_add_u32 s{sT8}, s{sEP}, 1
        s_and_b32 s{sT8}, s{sT8}, 0xff
        s_mov_b32 s{sS8}, s{sEP}
        v_permlane32_swap_b32 v{a}, v{c}
        v_permlane32_swap_b32 v{b}, v{d}
        v_add_f32 v{a}, v{a}, v{c}
        v_add_f32 v{b}, v{b}, v{d}
        v_mov_b32 v{c}, v{a}
        v_mov_b32 v{d}, v{b}
        s_nop 1
        v_permlane16_swap_b32 v{a}, v{c}
        v_permlane16_swap_b32 v{b}, v{d}
        v_add_f32 v{a}, v{a}, v{c}
        v_add_f32 v{b}, v{b}, v{d}
        """)
        for sh in (8, 4, 2, 1):
            k("s_nop 0")
            k(f"v_add_f32_dpp v{a}, v{a}, v{a} row_ror:{sh} row_mask:0xf bank_mask:0xf")
            k(f"v_add_f32_dpp v{b}, v{b}, v{b} row_ror:{sh} row_mask:0xf bank_mask:0xf")
        k(f"""
        v_mul_f32 v{a}, 0xbb000000, v{a}
        v_mul_f32 v{b}, 0x3b000000, v{b}
        v_fma_f32 v{b}, -v{a}, v{a}, v{b}
        v_max_f32 v{b}, 0, v{b}
        v_add_f32 v{b}, 0x3727c5ac, v{b}
        v_rsq_f32 v{b}, v{b}
        v_mov_b32 v{c}, s{sTAG}
        v_mov_b32 v{d}, s{sXCC}
        v_lshrrev_b32 v{vT3}, 1, v{vLANE}
        s_lshl4_add_u32 s{sT2}, s{sW}, s{sC}
        s_lshl_b32 s{sT2}, s{sT2}, 7
        s_add_u32 s{sT2}, s{sT2}, s{sGB}
        s_add_u32 s{sT2}, s{sT2}, {G_ST0}
        s_mov_b32 exec_lo, 1
        s_mov_b32 exec_hi, 1
        """)
        k.vmem(f"buffer_store_dwordx4 {vr(a,4)}, v{vT3}, {srd(S_WS)}, s{sT2} offen sc1", "ownst")
        k("s_mov_b64 exec, -1")

    S0 = vACC + 52

    def st0_issue():
        with k.atomic():
            k(f"v_and_b32 v{vT0}, 30, v{vLANE}")
            k(f"v_lshlrev_b32 v{vT0}, 6, v{vT0}")
            k(f"v_and_b32 v{vT1}, 16, v{vL16}")
            k(f"v_add_u32 v{vT0}, v{vT0}, v{vT1}")
            k(f"s_add_u32 s{sT4}, s{sSTg}, {G_ST0}")
            k.vmem(f"buffer_load_dwordx4 {vr(S0,4)}, v{vT0}, {srd(S_WS)}, s{sT4} offen sc1", "st0")

    def st0_use():
        lp, ok = k.label("L_s0"), k.label("L_s0ok")
        with k.atomic():
            k.vm_wait("st0")
            k(f"{lp}:")
            k(f"v_cmp_ne_u32 vcc, s{sTAG}, v{S0+2}")
            k(f"s_cbranch_vccz {ok}")
            k(f"buffer_load_dwordx4 {vr(S0,4)}, v{vT0}, {srd(S_WS)}, s{sT4} offen sc1")
            k("s_waitcnt vmcnt(0)")
            k(f"s_sub_u32 s{sBUD}, s{sBUD}, 1")
            k(f"s_cbranch_scc0 {lp}")
            k(f"s_mov_b32 s{sBUD}, 0")
            k(f"{ok}:")
            k(f"v_cmp_ne_u32 vcc, s{sXCC}, v{S0+3}")
            k("s_nop 4")
            k(f"s_or_b32 s{sSLOW}, vcc_lo, {1 if o.get('forceslow') else 0}")
        k.get(vT0, cSTA)
        k(f"v_and_b32 v{vT1}, 16, v{vLANE}")
        k(f"v_lshl_add_u32 v{vT1}, v{vT1}, 2, v{vT0}")
        k.lds(f"ds_write2_b32 v{vT1}, v{S0}, v{S0+1} offset0:0 offset1:32")
        k.lds(f"ds_read2_b32 {vr(NM_A,2)}, v{vT0} offset0:0 offset1:16", "sta")
        k.lds(f"ds_read2_b32 {vr(RS_A,2)}, v{vT0} offset0:32 offset1:48", "sta")

    def stats_finalize(need_rs):
        k.get(vT1, cSTW)
        k.get(vT0, cSTA)
        k(f"""
        v_permlane32_swap_b32 v{SUM0}, v{SUM1}
        v_permlane32_swap_b32 v{SQ0}, v{SQ1}
        v_add_f32 v{SUM0}, v{SUM0}, v{SUM1}
        v_add_f32 v{SQ0}, v{SQ0}, v{SQ1}
        v_mov_b32 v{SUM1}, v{SUM0}
        v_mov_b32 v{SQ1}, v{SQ0}
        s_nop 0
        v_permlane16_swap_b32 v{SUM0}, v{SUM1}
        v_permlane16_swap_b32 v{SQ0}, v{SQ1}
        v_add_f32 v{SUM0}, v{SUM0}, v{SUM1}
        v_add_f32 v{SQ0}, v{SQ0}, v{SQ1}
        v_mul_f32 v{SUM0}, 0xbb000000, v{SUM0}
        v_mul_f32 v{SQ0}, 0x3b000000, v{SQ0}
        v_fma_f32 v{SQ0}, -v{SUM0}, v{SUM0}, v{SQ0}
        v_max_f32 v{SQ0}, 0, v{SQ0}
        v_add_f32 v{SQ0}, 0x3727c5ac, v{SQ0}
        v_rsq_f32 v{SQ0}, v{SQ0}
        s_nop 0
        """)
        k.lds(f"ds_write2_b32 v{vT1}, v{SUM0}, v{SQ0} offset0:0 offset1:32")
        k.lds(f"ds_read2_b32 {vr(NM_A,2)}, v{vT0} offset0:0 offset1:16", "sta")
        if need_rs:
            k.lds(f"ds_read2_b32 {vr(RS_A,2)}, v{vT0} offset0:32 offset1:48", "sta")

    def stats_b():
        k.get(vT1, cSTB)
        for rb in range(2):
            k.lds(f"ds_read_b128 {vr(NM_B+4*rb,4)}, v{vT1} offset:{64*rb}", "sta")
            k.lds(f"ds_read_b128 {vr(RS_B+4*rb,4)}, v{vT1} offset:{128+64*rb}", "sta")

    def stats_scale():
        k.ds_wait("sta")
        for j in range(8):
            k(f"v_mul_f32 v{RL_B+j}, 0x3fb8aa3b, v{RS_B+j}")
        for j in range(2):
            k(f"v_mul_f32 v{RL_A+j}, 0x3fb8aa3b, v{RS_A+j}")

    def set_ones(r):
        for j in range(4):
            k(f"v_mov_b32 v{r+j}, {BF1}")

    def cs_put(first, sblk):
        k.get(vT0, cCSA)
        k(f"s_lshl_b32 s{sT5}, s{sblk}, 6")
        k(f"v_add_u32 v{vT0}, s{sT5}, v{vT0}")
        k.lds(f"ds_write_b32 v{vT0}, a{aCS} offset:{first*64}")

    def phi_block(acc, nm, cs, rl, rs, dst, tmp, lay):
        s1, s2, s3, s4, s5 = [], [], [], [], []
        for p in range(2):
            a2 = vr(acc + 2*p, 2)
            t2 = vr(tmp + 2*p, 2)
            if lay == "b":
                c2, m = bcast(cs, 1, 3)
                s1.append(f"v_pk_fma_f32 {a2}, {vr(nm+2*p,2)}, {c2}, {a2}{m}")
                s2.append(f"v_pk_mul_f32 {t2}, {a2}, {vr(rl+2*p,2)}")
                s4.append(f"v_pk_fma_f32 {a2}, {a2}, {vr(rs+2*p,2)}, {t2}")
            else:
                c2, m = bcast(nm, 1, 3)
                s1.append(f"v_pk_fma_f32 {a2}, {vr(cs+2*p,2)}, {c2}, {a2}{m}")
                c2, m = bcast(rl, 1, 2)
                s2.append(f"v_pk_mul_f32 {t2}, {a2}, {c2}{m}")
                c2, m = bcast(rs, 1, 3)
                s4.append(f"v_pk_fma_f32 {a2}, {a2}, {c2}, {t2}{m}")
            for j in range(2):
                s3.append(f"v_exp_f32 v{tmp+2*p+j}, v{tmp+2*p+j} clamp")
            s5.append(f"v_pk_add_f32 {a2}, {a2}, s[{sEPS}:{sEPS+1}]")
        for s in s1 + s2 + s3:
            k(s)
        for j in range(4):
            k(f"v_max_f32 v{acc+j}, 0, v{acc+j}")
        for s in s4 + s5:
            k(s)
        for p in range(2):
            k(f"v_cvt_pk_bf16_f32 v{dst+p}, v{acc+2*p}, v{acc+2*p+1}")

    def ring(ks, rb):
        return vACT + 8 * (ks % 6) + 4 * rb
    QA, vPARK = vACT + 48, vACT + 64

    def act_loads(bufoff, act=act, rot=False):
        for ks in range(16):
            for rb in range(2):
                with k.atomic():
                    if ks % 4 == 0:
                        k(f"s_add_u32 s{sT2+rb}, s{sACT+rb}, {f's{S_A + ks//4}' if rot else bufoff + ks*1024}")
                    k.vmem(f"buffer_load_dwordx4 {vr(act(ks,rb),4)}, v{vL16}, {srd(S_WS)}, s{sT2+rb} offen offset:{(ks%4)*1024} sc1",
                           ("act", ks, rb))

    def stat_loads(stoff, STG=STG):
        k(f"s_add_u32 s{sT4}, s{sSTg}, {stoff}")
        for j in range(2):
            k.vmem(f"buffer_load_dwordx4 {vr(STG+4*j,4)}, v{vL16}, {srd(S_WS)}, s{sT4} offen offset:{j*1024} sc1", "stg")

    def stat_sum(STG=STG):
        lp, ok = k.label("L_sg"), k.label("L_sgok")
        k.vm_wait("stg")

        def chk():
            for j in range(8):
                k(f"v_xor_b32 v{STG+j}, s{sS8}, v{STG+j}")
            k(f"v_or3_b32 v{SUM0}, v{STG}, v{STG+1}, v{STG+2}")
            k(f"v_or3_b32 v{SUM0+1}, v{STG+3}, v{STG+4}, v{STG+5}")
            k(f"v_or3_b32 v{SUM0}, v{SUM0}, v{STG+6}, v{STG+7}")
            k(f"v_or_b32 v{SUM0}, v{SUM0}, v{SUM0+1}")
            k(f"v_and_b32 v{SUM0}, 0xff, v{SUM0}")
        chk()
        with k.atomic():
            k(f"v_cmp_ne_u32 vcc, 0, v{SUM0}")
            k(f"s_cbranch_vccnz {lp}")
            k(f"{ok}:")
        sv, k._rec = k._rec, None
        n0 = len(k.lines)
        k(f"{lp}:")
        for j in range(2):
            k(f"buffer_load_dwordx4 {vr(STG+4*j,4)}, v{vL16}, {srd(S_WS)}, s{sT4} offen offset:{j*1024} sc1")
        k("s_waitcnt vmcnt(0)")
        chk()
        k(f"v_cmp_ne_u32 vcc, 0, v{SUM0}")
        k(f"s_cbranch_vccz {ok}")
        k(f"s_sub_u32 s{sBUD}, s{sBUD}, 1")
        k(f"s_cbranch_scc0 {lp}")
        k(f"s_mov_b32 s{sBUD}, 0")
        k(f"s_branch {ok}")
        k.tailcode += k.lines[n0:]
        del k.lines[n0:]
        k._rec = sv
        for j in range(4):
            k(f"v_add_f32 v{SUM0+j}, v{STG+j}, v{STG+4+j}")

    def mf2(acc, ks, sw, wait, first=None, act=act):
        return [(acc + 4 * rb, act(ks, rb), sw, (ks == 0) if first is None else first,
                 (("act", ks, 1) if ks else ("act", ks, rb)) if wait else None) for rb in range(2)]

    def wo_raw():
        with k.atomic():
            quad_lane(1024)
            k(f"s_lshl_b32 s{sD0}, s{sW}, 17")
            k(f"s_lshl_b32 s{sD1}, s{sCT}, 7")
            k(f"s_add_u32 s{sD0}, s{sD0}, s{sD1}")
            k(f"s_lshl_b32 s{sL0}, s{sW}, 14")
        for j in range(16):
            k.dma(S_WO, vDM, sD0, j * 8 * 1024, sL0, R0 + j * 1024, "wo")

    def w1c1_raw():
        with k.atomic():
            quad_lane(3584, tmp=vACT + 127)
            k(f"s_lshr_b32 s{sD0}, s{sC}, 2")
            k(f"s_mul_i32 s{sD0}, s{sD0}, 896")
            k(f"s_and_b32 s{sD1}, s{sC}, 3")
            k(f"s_lshl_b32 s{sD1}, s{sD1}, 7")
            k(f"s_add_u32 s{sD0}, s{sD0}, s{sD1}")
            k(f"s_mul_i32 s{sD1}, s{sW}, {64*3584}")
            k(f"s_add_u32 s{sD0}, s{sD0}, s{sD1}")
            k(f"s_lshl_b32 s{sL0}, s{sW}, 13")
        for half in range(2):
            for j in range(8):
                k.dma(S_W1, vDM, sD0, (half * 256 + j * 8) * 3584, sL0, R1 + half * 32768 + j * 1024, "w1a")

    def lin_dma(src, dst, n, tag, shared=False):
        for j in range(n):
            with k.atomic():
                if j == 0:
                    k(f"s_mul_i32 s{sL0}, s{sW}, {n*1024}")
                    k(f"s_add_u32 s{sD0}, s{sL0}, s{sPKB}")
                    if shared:
                        k(f"s_mul_i32 s{sD1}, s{sDH}, {8*PK_SZ}")
                        k(f"s_sub_u32 s{sD0}, s{sD0}, s{sD1}")
                if j % 4 == 0:
                    k(f"s_add_u32 m0, s{sL0}, {dst + j*1024}")
                    k(f"s_add_u32 s{sD1}, s{sD0}, {src + j*1024}")
                k.vmem(f"buffer_load_dwordx4 v{vL16}, {srd(S_WS)}, s{sD1} offen offset:{(j%4)*1024} sc1 lds", tag)

    def publish_x(bufoff, stoff, floff, pay_sc1):
        k(f"s_add_u32 s{sT1}, s{sTILE}, {bufoff}")
        k.stores([f"buffer_store_dwordx4 {vr(vRES+4*s,4)}, v{vL16}, {srd(S_WS)}, s{sT1} offen offset:{s*1024}" for s in range(2)], pay_sc1)
        a, b, c, d = vT0, vT1, vT2, vT3
        for j in range(4):
            r0, r1 = vRES + j, vRES + 4 + j
            if j == 0:
                k(f"v_mov_b32 v{vWB+9}, {BF1}")
                k(f"v_dot2_f32_bf16 v{b}, v{r0}, v{r0}, 0")
                k(f"v_dot2_f32_bf16 v{d}, v{r1}, v{r1}, 0")
                k(f"v_dot2_f32_bf16 v{a}, v{vWB+9}, v{r0}, 0")
                k(f"v_dot2_f32_bf16 v{c}, v{vWB+9}, v{r1}, 0")
            else:
                k(f"v_dot2_f32_bf16 v{b}, v{r0}, v{r0}, v{b}")
                k(f"v_dot2_f32_bf16 v{d}, v{r1}, v{r1}, v{d}")
                k(f"v_dot2_f32_bf16 v{a}, v{vWB+9}, v{r0}, v{a}")
                k(f"v_dot2_f32_bf16 v{c}, v{vWB+9}, v{r1}, v{c}")
        k.get(vWB + 8, cSTO)
        k(f"""
        s_add_u32 s{sT3}, s{sSTo}, {stoff}
        v_add_f32 v{b}, v{b}, v{d}
        v_add_f32 v{a}, v{a}, v{c}
        s_nop 1
        v_permlane16_swap_b32 v{a}, v{b}
        v_add_f32 v{a}, v{a}, v{b}
        v_mov_b32 v{b}, v{a}
        s_nop 1
        v_permlane32_swap_b32 v{a}, v{b}
        v_add_f32 v{c}, v{a}, v{b}
        s_add_u32 s{sS8}, s{sS8}, 1
        s_and_b32 s{sS8}, s{sS8}, 0xff
        v_and_b32 v{c}, 0xffffff00, v{c}
        v_or_b32 v{c}, s{sS8}, v{c}
        s_mov_b32 exec_hi, 0
        """)
        k.stores([f"buffer_store_dword v{c}, v{vWB+8}, {srd(S_WS)}, s{sT3} offen"], False, "sts" if o.get("sto", 1) else "st")
        k("s_mov_b64 exec, -1")
        k.poll_prep(15)

    def unpack_res(dst):
        for f in range(4):
            for p in range(2):
                r = vRES + 2*f + p
                k(f"v_lshlrev_b32 v{dst+4*f+2*p}, 16, v{r}")
                k(f"v_and_b32 v{dst+4*f+2*p+1}, 0xffff0000, v{r}")

    def misc_l1():
        k(f"""
        s_add_u32 s{sT2}, s{sTAG}, s{sXCC}
        s_add_u32 s{sT2}, s{sT2}, 2
        v_mov_b32 v{vT1}, s{sT2}
        s_lshl4_add_u32 s{sT2}, s{sG}, s{sC}
        s_lshl_b32 s{sT2}, s{sT2}, 7
        s_add_u32 s{sT2}, s{sT2}, {WS_XID}
        """)
        with k.atomic():
            k(f"s_cmp_lg_u32 s{sW}, 0")
            k(f"s_cselect_b32 s{sT2}, {OOB}, s{sT2}")
            k("s_mov_b64 exec, 1")
            k.vmem(f"buffer_store_dword v{vT1}, v{vL16}, {srd(S_WS)}, s{sT2} offen sc1", "xid")
            k("s_mov_b64 exec, -1")

    def res_load():
        k.get(vT0, cOUT)
        for s_ in range(2):
            k.vmem(f"buffer_load_dwordx4 {vr(vRES+4*s_,4)}, v{vT0}, {srd(S_X)}, 0 offen offset:{64*s_}", "res")

    def touch(kind, vSP=vSP):
        with k.atomic():
            k(f"s_lshl2_add_u32 s{sD3}, s{sC}, s{sW}")
            sD2 = sD3
            if kind == "h":
                k(f"s_mul_i32 s{sD2}, s{sD2}, 7168")
                k(f"s_add_u32 s{sD2}, s{sD2}, s{sGB}")
                k(f"s_add_u32 s{sD2}, s{sD2}, {G_H}")
                k(f"v_lshlrev_b32 v{vSP}, 7, v{vLANE}")
                k("s_mov_b32 exec_hi, 0xffffff")
                k.vmem(f"buffer_load_dword a{aDUM}, v{vSP}, {srd(S_WS)}, s{sD2} offen sc1", "touch")
                k("s_mov_b32 exec_hi, -1")
            else:
                k(f"v_lshlrev_b32 v{vSP}, 7, v{vLANE}")
                k(f"s_lshl_b32 s{sT5}, s{sD2}, 11")
                k(f"s_add_u32 s{sT5}, s{sT5}, s{sGB}")
                k(f"s_add_u32 s{sT5}, s{sT5}, {G_X1}")
                k("s_mov_b64 exec, 0xffff")
                k.vmem(f"buffer_load_dword a{aDUM}, v{vSP}, {srd(S_WS)}, s{sT5} offen sc1", "touch")
                k(f"s_lshl_b32 s{sD2}, s{sD2}, 7")
                k(f"s_add_u32 s{sD2}, s{sD2}, s{sGB}")
                k("s_mov_b64 exec, 1")
                k(f"s_add_u32 s{sD2}, s{sD2}, {G_ST1}")
                k.vmem(f"buffer_load_dword a{aDUM}, v{vSP}, {srd(S_WS)}, s{sD2} offen sc1", "touch")
                k("s_mov_b64 exec, -1")

    def touch_slots(first, n, va=vSP):
        with k.atomic():
            k(f"s_lshl2_add_u32 s{sD3}, s{sC}, s{sW}")
            k(f"v_lshlrev_b32 v{va}, 7, v{vLANE}")
            k(f"s_lshr_b32 s{sT5}, s{sD3}, 3")
            k(f"s_mul_i32 s{sT5}, s{sT5}, 57344")
            k(f"s_and_b32 s{sD3}, s{sD3}, 7")
            k(f"s_mul_i32 s{sD3}, s{sD3}, {n*128}")
            k(f"s_add_u32 s{sT5}, s{sT5}, s{sD3}")
            k(f"s_add_u32 s{sT5}, s{sT5}, s{sGB}")
            k(f"s_add_u32 s{sT5}, s{sT5}, {G_H + first*1024}")
            k(f"s_mov_b32 exec_lo, {(1 << min(n, 32)) - 1}")
            k(f"s_mov_b32 exec_hi, {(1 << max(n - 32, 0)) - 1}")
            k.vmem(f"buffer_load_dword a{aDUM}, v{va}, {srd(S_WS)}, s{sT5} offen sc1", "touch")
            k("s_mov_b64 exec, -1")

    def touches(code, va=vSP):
        if code & 1:
            touch("x", va)
        r = {0: None, 1: (0, 16), 2: (16, 8), 3: (0, 24), 4: (24, 32), 6: (16, 40), 7: (0, 56)}[code >> 1]
        if r:
            touch_slots(r[0], r[1], va)

    def packN_issue():
        with k.atomic():
            quad_lane(1024)
            k(f"""
            s_movk_i32 s{sD2}, 8192
            s_lshl_b32 s{sD0}, s{sG}, 15
            s_lshl_b32 s{sD1}, s{sCT}, 7
            s_add_u32 s{sD0}, s{sD0}, s{sD1}
            s_lshl_b32 s{sPDA}, s{sG}, 12
            s_add_u32 s{sPDA}, s{sPDA}, s{sPKB}
            s_add_u32 s{sPDA}, s{sPDA}, {PK_WO}
            s_lshl2_add_u32 s{sD1}, s{sDH}, s{sW}
            s_cmp_lg_u32 s{sD1}, 3
            s_cbranch_scc1 L_nskip
            """)
            for j in range(4):
                dma_raw(S_WO, j * 1024, j == 0)
            k("L_nskip:")

    def packN_finish(T):
        k(f"s_lshl2_add_u32 s{sD1}, s{sDH}, s{sW}")
        k(f"s_cmp_lg_u32 s{sD1}, 3")
        k("s_cbranch_scc1 L_nfskip")
        for f in range(4):
            k(f"v_add_u32 v{T+16+f}, {L_XST + 3*16384}, v{vQ0+f}")
        for f in range(4):
            for hh in range(2):
                k(f"ds_read_b64_tr_b16 {vr(T+4*f+2*hh,2)}, v{T+16+f} offset:{hh*2048}")
        k("s_waitcnt lgkmcnt(0)")
        for f in range(4):
            k(f"buffer_store_dwordx4 {vr(T+4*f,4)}, v{vL16}, {srd(S_WS)}, s{sPDA} offen offset:{f*1024} sc1")
        k("L_nfskip:")

    def pack_finish(T, base, shift, quad_if_3, tag="pk", sPDA=sPDA):
        lb, le = k.label("L_qb"), k.label("L_qe")
        k(f"s_lshl_b32 s{sT5}, s{sW}, {shift}")
        k(f"s_add_u32 s{sT5}, s{sT5}, {base}")
        k.vm_wait(tag)
        k.ds_all()
        k(f"s_cmp_eq_u32 s{sW}, 3")
        k(f"s_cbranch_scc{0 if quad_if_3 else 1} {lb}")
        for f in range(4):
            k(f"v_add_u32 v{T+16+f}, s{sT5}, v{vQ0+f}")
        for f in range(4):
            for hh in range(2):
                k(f"ds_read_b64_tr_b16 {vr(T+4*f+2*hh,2)}, v{T+16+f} offset:{hh*2048}")
        k("s_waitcnt lgkmcnt(0)")
        for f in range(4):
            k(f"buffer_store_dwordx4 {vr(T+4*f,4)}, v{vL16}, {srd(S_WS)}, s{sPDA} offen offset:{f*1024} sc1")
        k(f"s_branch {le}")
        k(f"{lb}:")
        k(f"v_add_u32 v{T+16}, s{sT5}, v{vTR0}")
        k(f"v_add_u32 v{T+17}, s{sT5}, v{vTR1}")
        k(f"v_lshl_add_u32 v{T+18}, v{vLANE}, 3, s{sT5}")
        for f in range(2):
            for hh in range(2):
                k(f"ds_read_b64_tr_b16 {vr(T+4*f+2*hh,2)}, v{T+16+f} offset:{hh*1024}")
        nf = 2 if quad_if_3 else 3
        if nf == 3:
            for hh in range(2):
                k(f"ds_read_b64_tr_b16 {vr(T+8+2*hh,2)}, v{T+18} offset:{2048+hh*512}")
        k("s_waitcnt lgkmcnt(0)")
        for f in range(nf):
            k(f"buffer_store_dwordx4 {vr(T+4*f,4)}, v{vL16}, {srd(S_WS)}, s{sPDA} offen offset:{f*1024} sc1")
        if nf == 3:
            k(f"buffer_load_dword a{aDUM}, v{vL16}, {srd(S_W1)}, s{S_W1+2} offen")
            nf = 4
        k(f"{le}:")
        k.vm_note(nf, "pst")

    def pack_flag(off=0):
        k(f"""
        s_lshl_b32 s{sT5}, s2, 7
        s_add_u32 s{sT5}, s{sT5}, {WS_PD + off}
        s_cmp_lg_u32 s{sW}, 0
        s_cselect_b32 s{sT5}, {OOB}, s{sT5}
        v_mov_b32 v{vT1}, s{sTAG}
        s_mov_b64 exec, 1
        """)
        k.vmem(f"buffer_store_dword v{vT1}, v{vL16}, {srd(S_WS)}, s{sT5} offen sc1")
        k("s_mov_b64 exec, -1")

    def pack_check_issue(off, va, vd, sb):
        with k.atomic():
            k(f"v_and_b32 v{va}, 1, v{vLANE}")
            k(f"v_lshlrev_b32 v{va}, 7, v{va}")
            k(f"v_lshrrev_b32 v{vd}, 1, v{vLANE}")
            k(f"v_and_b32 v{vd}, 7, v{vd}")
            k(f"s_lshl_b32 s{sT5}, s{sCT if off else sC}, 3")
            k(f"v_add3_u32 v{va}, v{va}, v{vd}, s{sT5}")
            if WP:
                k("s_mov_b32 exec_lo, 0")
                k(f"v_and_b32 v{va}, 0xbf, v{va}")
                k("s_mov_b32 exec_lo, -1")
            k(f"v_min_u32 v{vd}, 29, v{vLANE}")
            k(f"s_mul_i32 s{sT5}, s{sW}, 56")
            k(f"s_lshr_b32 s{sb}, s{sCT}, 1")
            k(f"s_add_u32 s{sT5}, s{sT5}, s{sb}")
            k(f"s_sub_u32 s{sT5}, s{sT5}, 64")
            k(f"v_lshl_add_u32 v{vd}, v{vd}, 2, s{sT5}")
            k("s_mov_b32 vcc_lo, 0xffff")
            k("s_mov_b32 vcc_hi, -1")
            k(f"s_mov_b32 s{sb}, {WS_PD + off}")
            k(f"v_cndmask_b32 v{va}, v{vd}, v{va}, vcc")
            k(f"v_lshlrev_b32 v{va}, 7, v{va}")
            k.vmem(f"buffer_load_dword v{vd}, v{va}, {srd(S_WS)}, s{sb} offen sc1", "pc")

    def pack_check(va, vd, sb):
        lp, ok = k.label("L_pc"), k.label("L_pcok")
        with k.atomic():
            k.vm_wait("pc")
            k(f"{lp}:")
            k(f"v_cmp_ne_u32 vcc, s{sTAG}, v{vd}")
            k(f"s_cbranch_vccz {ok}")
            if o.get("bo", 0):
                k(f"s_sleep {o['bo']}")
            k(f"buffer_load_dword v{vd}, v{va}, {srd(S_WS)}, s{sb} offen sc1")
            k("s_waitcnt vmcnt(0)")
            k(f"s_sub_u32 s{sBUD}, s{sBUD}, 1")
            k(f"s_cbranch_scc0 {lp}")
            k(f"s_mov_b32 s{sBUD}, 0")
            k(f"{ok}:")

    aPK = 128

    def park_addr(va, base, shift):
        k(f"v_bfe_u32 v{va}, v{vLANE}, 4, 1")
        k(f"v_lshlrev_b32 v{va}, 10, v{va}")
        k(f"v_lshrrev_b32 v{va+1}, 5, v{vLANE}")
        k(f"v_mul_u32_u24 v{va+1}, 0x120, v{va+1}")
        k(f"v_add_u32 v{va}, v{va}, v{va+1}")
        k(f"v_and_b32 v{va+1}, 0xd8, v{vTR0}")
        k(f"s_lshl_b32 s{sT5}, s{sW}, {shift}")
        k(f"s_add_u32 s{sT5}, s{sT5}, {base}")
        k(f"v_add3_u32 v{va}, v{va}, v{va+1}, s{sT5}")
        k(f"v_xor_b32 v{va+1}, 32, v{va}")

    def park_kv(va):
        for r in range(4):
            for blk in range(4):
                for hh in range(2):
                    k.lds(f"ds_read_b64_tr_b16 {ar(aPK + 16*(r ^ 2) + 4*blk + 2*hh, 2)}, v{va + (blk & 1)} offset:{r*16384 + (blk >> 1)*2048 + hh*512}")

    def park_q(va):
        for r in range(4):
            for b in range(2):
                for hh in range(2):
                    k.lds(f"ds_read_b64_tr_b16 {ar(aPK + 64 + 8*r + 4*b + 2*hh, 2)}, v{va + b} offset:{r*8192 + hh*512}")

    def unpark(va, js):
        for j in js:
            with k.atomic():
                if j in (js[0], 16):
                    k(f"s_lshl_b32 s{sT5}, s{sW}, {11 if j >= 16 else 12}")
                    if j >= 16:
                        k(f"s_add_u32 s{sT5}, s{sT5}, {R1}")
                    k(f"v_add_u32 v{va}, s{sT5}, v{vL16}")
                off = ((j - 16) // 2) * 8192 + (j % 2) * 1024 if j >= 16 else ((j // 4) ^ 2) * 16384 + (j % 4) * 1024
                k.lds(f"ds_write_b128 v{va}, {ar(aPK + 4*j, 4)} offset:{off}", ("up", j // 4))

    def rot_setup():
        with k.atomic():
            k(f"s_lshr_b32 s{sD0}, s{sC}, 1")
            k(f"s_xor_b32 s{sD0}, s{sD0}, s{sG}")
            k(f"s_and_b32 s{sD0}, s{sD0}, 1")
            k(f"s_and_b32 s{sD1}, s{sC}, 1")
            k(f"s_lshl1_add_u32 s{sD0}, s{sD0}, s{sD1}")
            for q in range(4):
                k(f"s_add_u32 s{sD1}, s{sD0}, {q}")
                k(f"s_and_b32 s{sD1}, s{sD1}, 3")
                k(f"s_lshl_b32 s{sD1}, s{sD1}, 12")
                k(f"s_add_u32 s{S_A+q}, s{sD1}, {G_X2}")

    def wq_raw():
        k(f"s_lshl_b32 s{sL1}, s{sW}, 11")
        with k.atomic():
            k(f"v_and_b32 v{vT2}, 3, v{vP}")
            k(f"v_lshrrev_b32 v{vDM}, 4, v{vLANE}")
            k(f"v_lshl_add_u32 v{vT2}, v{vDM}, 3, v{vT2}")
            k(f"s_movk_i32 s{sD3}, 3072")
            k(f"v_mad_u32_u24 v{vDM}, v{vT2}, s{sD3}, v{vCH}")
        for r in range(4):
            for hh in range(2):
                k.dma(S_WQKV, vDM, sRB + r, hh * 4 * 3072, sL1, R1 + r * 8192 + hh * 1024, "wq")

    def async_check(tag, soff, imm):
        ok = k.label("L_aok")
        with k.atomic():
            k.vm_wait(tag)
            k(f"v_cmp_ne_u32 vcc, s{sTAG}, v{vT0}")
            k(f"s_cbranch_vccz {ok}")
            k.save_vm()
            k.poll(soff, imm, False)
            k.restore_vm()
            k(f"{ok}:")

    CSK = vT0
    gA = None
    for layer in range(1 if o.get("one") else 2):
        L1 = layer == 0
        sc = o.get("sc1", 0x04)
        psc = lambda i: bool(sc >> (4 * layer + i) & 1)
        PRE = o.get("pre", 8)
        k.fast = ["", " nt", " sc0", " sc0 nt"][o.get("ntst", 4) >> (2 * layer) & 3]

        def w2t_loads():
            for j in range(56):
                with k.atomic():
                    if j == 0:
                        k(f"s_lshl2_add_u32 s{sPDB}, s{sCT}, s{sW}")
                        k(f"s_mul_i32 s{sPDB}, s{sPDB}, 57344")
                        k(f"s_add_u32 s{sPDB}, s{sPDB}, {WS_W2T}")
                    if j % 4 == 0:
                        k(f"s_add_u32 s{sJ0}, s{sPDB}, {j*1024}")
                    k.vmem(f"buffer_load_dwordx4 {ar(4*j,4)}, v{vL16}, {srd(S_WS)}, s{sJ0} offen offset:{(j%4)*1024} sc1", ("w2t", j // 4))

        w2 = k.rec(w2t_loads) if L1 else []

        def takew2(name, dflt, keep=24):
            nonlocal w2
            n = min(o.get(name, dflt), len(w2) - keep) if L1 else 0
            r, w2 = w2[:n], w2[n:]
            return r

        def kv_consts():
            k.get(vPQ, cCSA)
            k.lds(f"ds_read2_b32 {vr(CSK,2)}, v{vPQ} offset0:0 offset1:16", "cs")
            k.lds(f"ds_read2_b32 {vr(CSK+2,2)}, v{vPQ} offset0:32 offset1:48", "cs")
        if L1:
            CSA = vACC + 32
            k(f"s_and_b32 s{sT0}, s{sW}, 1")
            k(f"s_lshl_b32 s{sT0}, s{sT0}, 5")
            k(f"v_xor_b32 v{vPQ+3}, s{sT0}, v{vTR0}")
            k(f"s_lshr_b32 s{sT0}, s{sW}, 1")
            k(f"s_lshl_b32 s{sT0}, s{sT0}, 11")
            k(f"v_add_u32 v{vPQ+2}, s{sT0}, v{vPQ+3}")
            k(f"s_lshl_b32 s{sT1}, s{sW}, 5")
            k(f"v_xor_b32 v{vPQ+6}, s{sT1}, v{vQ0}")

            def wo_pack():
                T_ = vACT + 96
                for hh in range(2):
                    k.lds(f"ds_read_b64_tr_b16 {vr(T_+2*hh,2)}, v{vPQ+6} offset:{R0 + 49152 + hh*2048}", "wp")
                k.play([lambda: None] * 2)
                with k.atomic():
                    k.ds_wait("wp")
                    k.vmem(f"buffer_store_dwordx4 {vr(T_,4)}, v{vL16}, {srd(S_WS)}, s{sPDA} offen sc1", "pst")
            if o.get("diags"): k.stamp("setup")
            PADP = o.get("padp", 0)
            if W0P == 1:
                k.play(w0_[nw0:])
            if PADP == 1:
                k("PADCALL")
            if W0P == 2:
                k.play(w0_[nw0:])
            if o.get("diags"): k.stamp("w0b")
            own_stats()
            if o.get("diags"): k.stamp("own")
            nx0 = o.get("nx0", 0)
            xslot(0, range(nx0))
            if o.get("pads", 2048) and PADP == 0:
                k("PADCALL")
            if o.get("diags"): k.stamp("pad")
            if o.get("pf1", 0):
                pack_finish(vACT + 64, R1, 12, False, "pu", sPDB)
            xslot(0, range(nx0, 8)); xslot(1, range(o.get("x1pre", 4)))
            if o.get("diags"): k.stamp("xiss")
            if UF == 1 and not o.get("pf1", 0):
                pack_finish(vACT + 64, R1, 12, False, "pu", sPDB)
            if o.get("diags"): k.stamp("pfin")
            xread(0)
            def rnd_begin(r):
                k.vm_wait(("wkv", r))
                k.barrier(True)
                fr = []
                for ks in range(4 * r, 4 * r + 4):
                    fr.append(dict(addr=vPQ + 2, offs=(R0 + ks * 4096, R0 + ks * 4096 + 1024), mf=[(None, None, False, ks == 0, None)]))
                for ks in range(4 * r, 4 * r + 4):
                    for pr in range(2):
                        for b in range(2):
                            base = R0 + ks * 4096 + pr * 2048
                            fr.append(dict(addr=(vTR0, vTR1)[b], offs=(base, base + 1024), mf=mf2(vACC + 16 * pr + 8 * b, ks, False, False)))
                return k.gemm_begin(fr)
            wq = k.rec(wq_raw)
            xslot(1, range(o.get("x1pre", 4), 8))
            g = rnd_begin(0)
            k.stamp("x0")
            f = {}
            if WP:
                w1_ = k.rec(lambda: wkv_raw(1))
                spread(f, w1_[:2], 0, 2); spread(f, k.rec(wo_pack), 0, 1); spread(f, w1_[2:] + k.rec(lambda: xslot(2)), 6, 3)
            else:
                spread(f, k.rec(lambda: (wkv_raw(1), xslot(2))), 0, 3)
            spread(f, k.rec(lambda: xread(1)), 30, 1, 2); k.gemm_run(g, f)
            k.stamp("r0")
            g = rnd_begin(1)
            f = {}
            if UF == 1:
                spread(f, k.rec(pack_flag), 1, 0)
            spread(f, k.rec(lambda: (wkv_raw(2), xslot(3))), 0, 3); spread(f, k.rec(lambda: xread(2)), 31, 1, 2); k.gemm_run(g, f)
            k.stamp("r1")
            g = rnd_begin(2)
            nq = o.get("nq", 6)
            if UF == 2:
                pu_ = k.rec(lambda: packU_issue(L_XST + 4096, sD0, sD1, sD2, sD3, sJ0, vDM, sPDB, 14))
                wq = pu_ + wq if o.get("pufirst", 1) else wq + pu_
            f = {}; spread(f, k.rec(lambda: (wkv_raw(3), st0_issue())) + wq[:nq], 0, 3); spread(f, k.rec(lambda: xread(3)), 31, 1, 2); k.gemm_run(g, f)
            k.stamp("r2")
            g = rnd_begin(3)
            f = {}
            spread(f, k.rec(st0_use), 0, 1)
            spread(f, k.rec(lambda: cs_put(0, sW)), 8, 0)
            spread(f, k.rec(stats_b), 10, 1)
            spread(f, k.rec(stats_scale), 24, 1)
            spread(f, k.rec(lambda: park_addr(vRES + 2, R0, 12)), 15, 0)
            pn = k.rec(lambda: (packN_issue(), k.vmem(f"buffer_load_dword a{aDUM}, v{vL16}, {srd(S_W1)}, s{S_W1+2} offen", "pn")))
            pci = k.rec(lambda: pack_check_issue(0, vRES, vRES + 1, sPDB)) if UF == 1 else []
            if o.get("w2e", 8):
                spread(f, wq[nq:] + ([] if o.get("pcl", 0) else pci) + k.rec(lambda: touches(o.get("Tr", 0), vT3)), 1, o.get("r3s", 5))
            else:
                spread(f, wq[nq:] + pn + pci, 1, o.get("r3s", 5))
            bg = []
            k.gemm_run(g, f)
            k.stamp("A.kv")
            k.barrier()
            kv_consts()
        else:
            k.poll_b(sFXp, G_FX2)
            k.stamp("A.poll")
            al = k.rec(lambda: act_loads(G_X2, ring, True))
            PA = o.get("prea", 4)
            k.play(al[:PA])
            k(f"s_add_u32 s{sTAG}, s{sTAG}, 1")
            fill = {}
            sl = k.rec(lambda: stat_loads(G_ST2))
            e = spread(fill, al[PA:12] + [lambda: k.play(sl[:2]), sl[2]], 0, 4)
            for i_ in range(12, 32):
                pos = max(12 * (i_ // 2 - 6) + 11 + 4 * (i_ & 1), e)
                spread(fill, [al[i_]], pos, 1)
                e = pos + 3
            e2 = spread(fill, k.rec(lambda: (stat_sum(), stats_finalize(True), stats_b())), 60, 1.3)
            e2 = spread(fill, k.rec(stats_scale), e2 + 6, 1.3)
            spread(fill, k.rec(kv_consts), e2, 1.3)
            spread(fill, k.rec(lambda: lin_dma(PK_WO + 32768, R2, 8, "wo", True)), e, o.get("wos", 5))
            if o.get("diagc"):
                for ix in (0, 23, 47, 95, 143):
                    spread(fill, k.rec(lambda: k.stamp(f"A.m{ix}", True)), ix, 0)
            k.gemm_run(gA, fill)
            k.stamp("A.kv")
            k("s_barrier")
            bg = []
        k("s_nop 2")
        k.get(vWB + 22, cKW1 if L1 else cKW)
        k.get(vWB + 23, cKR1 if L1 else cKR)
        k.ds_all()
        PK, PV, TMP = vPQ, vACC, vWB + 24
        KVA = vACC + 16

        def kv_epi():
            for h in range(2):
                for rb in range(2):
                    phi_block(vACC + 8*h + 4*rb, NM_B + 4*rb, CSK + h, RL_B + 4*rb, RS_B + 4*rb, PK + 4*h + 2*rb, TMP, "b")
            for h in range(2):
                for rb in range(2):
                    a = vACC + 16 + 8*h + 4*rb
                    c2, m = bcast(CSK + 2 + h, 1, 3)
                    for p in range(2):
                        k(f"v_pk_fma_f32 {vr(a+2*p,2)}, {vr(NM_B+4*rb+2*p,2)}, {c2}, {vr(a+2*p,2)}{m}")
                    for p in range(2):
                        k(f"v_pk_mul_f32 {vr(a+2*p,2)}, {vr(a+2*p,2)}, {vr(RS_B+4*rb+2*p,2)}")
                    for p in range(2):
                        k(f"v_cvt_pk_bf16_f32 v{PV+4*h+2*rb+p}, v{a+2*p}, v{a+2*p+1}")
                    if rb == 0:
                        k(f"v_mfma_f32_16x16x32_bf16 {vr(vACC+8+4*h,4)}, {vr(PK+4*h,4)}, {ar(aONES,4)}, 0")
                if h == 0:
                    pass
        if L1:
            we = takew2("w2e", 8)
            ke = mix(k.rec(kv_epi), k.rec(lambda: park_kv(vRES + 2)), 3)
            if o.get("pcl", 0):
                w2 = we + w2
                we = []
                touches(o.get("Te", 6), vWB + 20)
                k.play(ke[:o["pcl"]]); ke = ke[o["pcl"]:]
                k.play(pci)
            if we:
                c0 = o.get("w2c", 40)
                touches(o.get("Te", 6), vWB + 20)
                k.play(ke[:c0])
                pack_check(vRES, vRES + 1, sPDB)
                ke = mix(ke[c0:], we, (135 - c0) // len(we))
            k.play(ke)
        else:
            wod = k.rec(lambda: lin_dma(PK_WO, R1, 8, "wo", True))
            nwo = o.get("nwo", 0)
            k.play(mix(k.rec(kv_epi), wod[:nwo], 100 // max(nwo, 1))); wod = wod[nwo:]
        KRO = [0, 16384, 32768, 49152 if L1 else 36864]
        k.lds(f"ds_write_b128 v{vWB+22}, {vr(vACC+8,4)} offset:{KRO[2]}")
        for h in range(2):
            k(f"v_mfma_f32_16x16x32_bf16 {vr(KVA+4*h,4)}, {vr(PK+4*h,4)}, {vr(PV+4*h,4)}, 0")
        k.lds(f"ds_write_b128 v{vWB+22}, {vr(vACC+12,4)} offset:{KRO[3]}")
        k.get(vWB + 21, cKVS)
        k("s_nop 4")
        for h in range(2):
            k.lds(f"ds_write_b128 v{vWB+22}, {vr(KVA+4*h,4)} offset:{KRO[h]}")
        if L1 and UF == 1:
            k.vm_wait("wq")
        k.barrier()
        for s in range(4):
            k.lds(f"ds_read_b128 {vr(vWB+4*s,4)}, v{vWB+23} offset:{s*1024}", ("kr", s))
        KO = vACC + 32
        k.ds_wait(("kr", 1))
        for p in range(2):
            k(f"v_pk_add_f32 {vr(vWB+2*p,2)}, {vr(vWB+2*p,2)}, {vr(vWB+4+2*p,2)}")
        k.ds_wait(("kr", 3))
        for p in range(2):
            k(f"v_pk_add_f32 {vr(vWB+8+2*p,2)}, {vr(vWB+8+2*p,2)}, {vr(vWB+12+2*p,2)}")
        for p in range(2):
            k(f"v_pk_add_f32 {vr(KO+2*p,2)}, {vr(vWB+2*p,2)}, {vr(vWB+8+2*p,2)}")
        k(f"v_and_b32 v{KO}, 0xffffff00, v{KO}")
        k(f"v_or_b32 v{KO}, s{sT8}, v{KO}")
        k(f"s_mov_b64 exec, s[{sKM}:{sKM+1}]")
        k.vmem(f"buffer_store_dwordx4 {vr(KO,4)}, v{vWB+21}, {srd(S_WS)}, s{sKVP} offen sc1", "kvst")
        k("s_mov_b64 exec, -1")
        k.stamp("A.kvpub")
        fill = {}
        fr = []
        CSQ = vACC + 24

        def q_consts():
            k.get(vT0, cCSB)
            for h in range(2):
                k.lds(f"ds_read_b128 {vr(CSQ+4*h,4)}, v{vT0} offset:{(4+h)*64}")
        if L1:
            if UF == 1:
                if not o.get("w2e", 8) or o.get("pcl", 0):
                    pack_check(vRES, vRES + 1, sPDB)
            else:
                pack_finish(vWB, L_XST + 4096, 14, False, "pu", sPDB)
                k.vm_wait("pn")
                k("s_barrier")
            if not o.get("w2e", 8):
                packN_finish(vWB)
            park_addr(vPQ + 4, R1, 11)
            if o.get("diag"): k.stamp("q.pf")
            k(f"v_add_u32 v{vPQ}, {R1}, v{vTR0}")
            k(f"v_add_u32 v{vPQ+1}, {R1}, v{vTR1}")
            k(f"s_and_b32 s{sT0}, s{sW}, 1")
            k(f"s_lshl_b32 s{sT1}, s{sT0}, 5")
            k(f"v_xor_b32 v{vPQ+2}, s{sT1}, v{vPQ}")
            for j in range(16):
                fr.append(dict(addr=vPQ + 2, offs=(j * 2048, j * 2048 + 1024), mf=[(None, None, False, j == 0, None)]))
            for ks in range(16):
                for b in range(2):
                    fr.append(dict(addr=vPQ + b, offs=(ks * 2048, ks * 2048 + 1024), mf=mf2(vACC + 8 * b, ks, True, False)))
            wor = k.rec(lambda: lin_dma(PK_WO, R0, 16, "wo", True)) if WP else k.rec(wo_raw)
            e = spread(fill, bg + k.rec(res_load), 0, 1)
            if o.get("arm", 0):
                e = spread(fill, k.rec(lambda: arm(o.get("arm", 0))), e, 2)
            e = spread(fill, k.rec(lambda: touches(o.get("Tq", 0))), e, 1)
            e = spread(fill, wor, e, o.get("wors", 2))
            spread(fill, takew2("w2q", 8), e, 4)
            spread(fill, k.rec(lambda: park_q(vPQ + 4)), 20, 3)
            k.gemm(fr, fill)
            if o.get("diag"): k.stamp("q.mm")
            cs_put(4, sT0)
            if UF == 2:
                k.vm_wait("pst")
            k.barrier()
            if o.get("diag"): k.stamp("q.bar")
            q_consts()
            if UF == 2:
                pack_flag()
        else:
            q_consts()
        lp2, done2 = k.label("L_kp"), k.label("L_kd")
        SM = vWB + 8
        ZL = vACT + 32

        def kv_loads(track):
            ins = [(f"buffer_load_dwordx4 {vr(ZL,4)}, v{vT2}, {srd(S_WS)}, s{sKVC} offen sc1", "zl")]
            for j in range(8):
                ins.append((f"buffer_load_dwordx4 {vr(vACT+4*j,4)}, v{vL16}, {srd(S_WS)}, s{sKVC if j < 4 else sT2} offen offset:{(j%4)*1024} sc1", ("kv", j)))
            for i_, t_ in ins:
                if track:
                    k.vmem(i_, t_)
                else:
                    k(i_)
        if L1:
            w1a = k.rec(lambda: (lin_dma(PK_W1A, R1, 16, "w1a"), lin_dma(PK_W1B, R3, 6, "w1c2")))
        else:
            w1a = []
        k.get(vT2, cZL)
        k(f"s_add_u32 s{sT2}, s{sKVC}, 4096")
        kl = k.rec(lambda: kv_loads(True))
        QS = vACC if L1 else QA
        ph = k.rec(lambda: [phi_block(QS + 8*h + 4*rb, NM_A + rb, CSQ + 4*h, RL_A + rb, RS_A + rb, vPQ + 4*h + 2*rb, vWB, "a")
                            for h in range(2) for rb in range(2)])
        if L1:
            k.play(kl[:5])
            k.ds_all()
            if o.get("diag"): k.stamp("q.kl5")
            na = o.get("w1a0", 4) if UF == 1 else 0
            k.play(mix(ph, kl[5:] + w1a[:na], o.get("phr", 10)))
            w1a = w1a[na:]
        else:
            def unpark_w1():
                for j in range(16):
                    k.lds(f"ds_write_b128 v{vT3}, {vr(vPARK+4*j,4)} offset:{j*1024}")
            k(f"s_lshl_b32 s{sT5}, s{sW}, 14")
            k(f"v_add_u32 v{vT3}, s{sT5}, v{vL16}")
            uw = k.rec(unpark_w1)
            if late:
                nl = o.get("nul", 6)
                f = {}; spread(f, uw[:nl], 1, 2 * len(late) / max(nl, 1)); uw = uw[nl:]
                k.gemm(late, f)
                k("s_barrier")
                k("s_nop 3")
            k.play(wod[:4]); wod = wod[4:]
            k.ds_all()
            nu = o.get("nu", 16)
            k.play(mix(mix(ph, uw[:nu], 5), wod, 10))
            k.play(mix(kl, uw[nu:], 1))
        k.stamp("A.q")
        if L1:
            k("PADCALL1")
        k.get(vT1, cXW)
        k.get(vWB + 18, cZW)
        k.get(vWB + 16, cXR)
        k.get(vWB + 17, cZR)
        k(f"s_branch {lp2}_s")
        k(f"{lp2}:")
        kv_loads(False)
        k("s_waitcnt vmcnt(0)")
        k(f"{lp2}_s:")
        k.vm_wait("zl")
        k(f"""
        v_xor_b32 v{ZL}, s{sT8}, v{ZL}
        v_mov_b32 v{SM+4}, v{ZL}
        v_permlane32_swap_b32 v{ZL+2}, v{ZL+3}
        v_permlane32_swap_b32 v{ZL}, v{ZL+1}
        v_add_f32 v{ZL}, v{ZL}, v{ZL+1}
        v_add_f32 v{ZL+2}, v{ZL+2}, v{ZL+3}
        s_nop 1
        v_permlane16_swap_b32 v{ZL}, v{ZL+2}
        v_add_f32 v{ZL}, v{ZL}, v{ZL+2}
        s_nop 1
        v_add_f32_dpp v{ZL}, v{ZL}, v{ZL} row_ror:4 row_mask:0xf bank_mask:0xf
        s_nop 1
        v_add_f32_dpp v{ZL}, v{ZL}, v{ZL} row_ror:8 row_mask:0xf bank_mask:0xf
        v_cvt_pk_bf16_f32 v{ZL}, v{ZL}, v{ZL}
        ds_write_b16 v{vWB+18}, v{ZL}
        """)
        for j in range(0, 8, 2):
            a, b = vACT + 4*j, vACT + 4*j + 4
            k.vm_wait(("kv", j + 1))
            k(f"v_xor_b32 v{a}, s{sT8}, v{a}")
            k(f"v_xor_b32 v{b}, s{sT8}, v{b}")
            k(f"v_or3_b32 v{SM+4}, v{SM+4}, v{a}, v{b}")
            if j == 0:
                for p in range(2):
                    k(f"v_pk_add_f32 {vr(SM+2*p,2)}, {vr(a+2*p,2)}, {vr(b+2*p,2)}")
            else:
                for p in range(2):
                    k(f"v_pk_add_f32 {vr(a+2*p,2)}, {vr(a+2*p,2)}, {vr(b+2*p,2)}")
                for p in range(2):
                    k(f"v_pk_add_f32 {vr(SM+2*p,2)}, {vr(SM+2*p,2)}, {vr(a+2*p,2)}")
        k(f"""
        ds_write_b128 v{vT1}, {vr(SM,4)}
        v_and_b32 v{SM+4}, 0xff, v{SM+4}
        v_cmp_ne_u32 vcc, 0, v{SM+4}
        s_cbranch_vccz {done2}
        s_waitcnt lgkmcnt(0)
        s_sub_u32 s{sBUD}, s{sBUD}, 4
        s_cbranch_scc0 {lp2}
        s_mov_b32 s{sBUD}, 0
        {done2}:
        """)
        k.stamp("A.kvget")
        if L1:
            touches(o.get("Tk", 0))
        n1 = o.get("w1a1", 4) if L1 and UF == 1 else 0
        if L1 and UF == 2:
            pack_check_issue(0, vTR0, vTR1, sPDB)
        k.play(w1a[:n1]); w1a = w1a[n1:]
        k.barrier(True)
        for h in range(2):
            k.lds(f"ds_read_b64 {vr(vWB+4*h+2,2)}, v{vWB+17} offset:{h*32}", "zf")
        for j in range(4):
            k.lds(f"ds_read_b128 {vr(vACT+4*j,4)}, v{vWB+16} offset:{1024*j}")
        k.ds_wait("zf")
        OA = vACC + 16
        for rb in range(2):
            for h in range(2):
                d = OA + 16*rb + 8*h
                k(f"v_mfma_f32_16x16x16_bf16 {vr(d+4,4)}, {vr(vWB+4*h+2,2)}, {vr(vPQ+4*h+2*rb,2)}, 0")
        k.ds_all()
        for h in range(2):
            for p in range(2):
                k(f"v_pk_add_f32 {vr(vACT+8*h+2*p,2)}, {vr(vACT+8*h+2*p,2)}, {vr(vACT+8*h+4+2*p,2)}")
        for h in range(2):
            for p in range(2):
                k(f"v_cvt_pk_bf16_f32 v{vWB+4*h+p}, v{vACT+8*h+2*p}, v{vACT+8*h+2*p+1}")
        for rb in range(2):
            for h in range(2):
                d = OA + 16*rb + 8*h
                k(f"v_add_f32 v{d+4}, s{sEPS}, v{d+4}")
        for rb in range(2):
            for h in range(2):
                d = OA + 16*rb + 8*h
                k(f"v_mfma_f32_16x16x16_bf16 {vr(d,4)}, {vr(vWB+4*h,2)}, {vr(vPQ+4*h+2*rb,2)}, 0")
        for rb in range(2):
            for h in range(2):
                d = OA + 16*rb + 8*h
                k(f"v_rcp_f32 v{d+4}, v{d+4}")
        k("s_nop 1")
        for rb in range(2):
            for h in range(2):
                d = OA + 16*rb + 8*h
                for p in range(2):
                    k(f"v_pk_mul_f32 {vr(d+2*p,2)}, {vr(d+2*p,2)}, {vr(d+4,2)} op_sel_hi:[1,0]")
                for p in range(2):
                    k(f"v_cvt_pk_bf16_f32 v{vPQ+4*rb+2*h+p}, v{d+2*p}, v{d+2*p+1}")
        k.stores([f"buffer_store_dwordx4 {vr(vPQ+4*rb,4)}, v{vL16}, {srd(S_WS)}, s{sOST+rb} offen" for rb in range(2)], psc(0))
        nb = o.get("w1a_pre1", 6) if L1 else o.get("w1a_pre", 0)
        if L1 and UF == 2:
            pack_check(vTR0, vTR1, sPDB)
        if L1:
            touches(o.get("To", 0))
        k.play(w1a[:nb])
        if L1:
            for s_ in range(2):
                for p in range(2):
                    k(f"v_permlane16_swap_b32 v{vRES+4*s_+p}, v{vRES+4*s_+2+p}")
        urs = k.rec(lambda: unpack_res(vACC))
        fr = []
        for ks in range(16):
            for f in range(4):
                mf = [(vACC + 4 * f, vACT + 4 * ks, True, False, ("act", ks))]
                if L1 and WP:
                    fr.append(dict(addr=vL16, offs=(R0 + ks * 4096 + f * 1024,), mf=mf))
                elif L1:
                    fr.append(dict(addr=vQ0 + f, offs=(R0 + ks * 4096, R0 + ks * 4096 + 2048), mf=mf))
                else:
                    fr.append(dict(addr=vTR0, offs=(ks * 4096 + f * 1024,), mf=mf))
        if L1:
            k("PADCALL2")
        k.poll_prep(15)
        k.flag(sFOo, G_FO)
        k.poll_a(sFOp, G_FO)
        g = k.gemm_begin(fr, 7)
        k.play(urs)
        k.stamp("A.opub")
        k.poll_b(sFOp, G_FO)
        k.stamp("B.poll")

        def b_loads():
            for ks in range(16):
                with k.atomic():
                    if ks % 4 == 0:
                        k(f"s_add_u32 s{sT2}, s{sBACT}, {G_O + ks*1024}")
                    k.vmem(f"buffer_load_dwordx4 {vr(vACT+4*ks,4)}, v{vL16}, {srd(S_WS)}, s{sT2} offen offset:{(ks%4)*1024} sc1", ("act", ks))
        bl = k.rec(b_loads)
        PB = o.get("preb", PRE)
        k.play(bl[:PB])
        fill = {}
        e = spread(fill, bl[PB:], 0, 3)
        if L1:
            e = spread(fill, k.rec(lambda: touches(o.get("Ta", 0))), e, 1)
        e = spread(fill, w1a[nb:], e, o.get("w1st", 3))
        if L1:
            e = spread(fill, k.rec(lambda: touches(o.get("Tb", 1))), e, 1)
        spread(fill, takew2("w2b", 0), e, 4)
        k.gemm_run(g, fill)
        k.stamp("B.mm")
        k(f"v_add_u32 v{vTR1}, {R1}, v{vL16}")
        k("s_nop 6")
        for f in range(4):
            for p in range(2):
                k(f"v_cvt_pk_bf16_f32 v{vRES+2*f+p}, v{vACC+4*f+2*p}, v{vACC+4*f+2*p+1}")
        publish_x(G_X1, G_ST1, G_FX1, psc(1))
        k.play(takew2("w2x", 0))
        k.flag(sFXo, G_FX1)
        if not L1:
            k.poll_a(sFXp, G_FX1)
        k.stamp("B.pub")
        if L1 and o.get("w2e", 8) and not WP:
            k(f"s_lshl2_add_u32 s{sD1}, s{sDH}, s{sW}")
            k(f"s_cmp_lg_u32 s{sD1}, 3")
            k("s_cbranch_scc1 L_nfskip")
            k(f"s_lshl_b32 s{sT5}, s{sG}, 12")
            for f in range(4):
                k(f"v_add_u32 v{vWB+16+f}, s{sT5}, v{vQ0+f}")
            for f in range(4):
                for hh in range(2):
                    k(f"ds_read_b64_tr_b16 {vr(vACC+4*f+2*hh,2)}, v{vWB+16+f} offset:{hh*2048}")
            k(f"s_add_u32 s{sT5}, s{sT5}, s{sPKB}")
            k(f"s_add_u32 s{sT5}, s{sT5}, {PK_WO}")
            k("s_waitcnt lgkmcnt(0)")
            for f in range(4):
                k(f"buffer_store_dwordx4 {vr(vACC+4*f,4)}, v{vL16}, {srd(S_WS)}, s{sT5} offen offset:{f*1024} sc1")
            k("L_nfskip:")
        k("s_barrier")
        w1c2 = k.rec(lambda: lin_dma(PK_W1B + 24576, R0 if L1 else R1, 6, "w1c2"))
        if L1 and not o.get("w2e", 8):
            pack_flag(0x8000)
        nc = o.get("w1c2_pre1", 0) if L1 else o.get("w1c2_pre", 0)
        k.play(w1c2[:nc])
        EU = o.get("eu", 8)
        if L1:
            eup = k.rec(lambda: unpark(vPQ + 1, list(range(EU)))) if EU else []
            k(f"s_lshl_b32 s{sT2}, s{sW}, 10")
            k(f"v_add_u32 v{vPQ}, s{sT2}, v{vTR1}")
            fr = []
            for j in range(16):
                fr.append(dict(addr=vPQ, offs=(j * 4096,), mf=[(None, None, False, j == 0, None)]))
            k.gemm(fr, D=7)
            k.play(eup)
            k("s_nop 5")
            cs_put(6, sW)
        C2 = vACC + 32
        vC1, vC2, vCc, vCd = (vTR1 if L1 else vL16), vDM, vP, vCH
        k(f"v_add_u32 v{vC2}, {R3}, v{vL16}")
        if L1:
            k(f"s_min_u32 s{sPDA}, s{sW}, 2")
            k(f"s_lshl_b32 s{sT2}, s{sPDA}, 10")
            k(f"v_add_u32 v{vCd}, s{sT2}, v{vL16}")
            k(f"v_add_u32 v{vCc}, {R3}, v{vCd}")
        NX = o.get("nx1", 0) if L1 else o.get("nx", 0)
        INIT2 = not L1 and NX == 0
        f2 = []
        fcs = [dict(addr=vCc if ks < 8 else vCd, offs=((ks % 8) * 3072,), mf=[(None, None, False, ks == 0, None)], late=ks >= 8, cs=True) for ks in range(16)]
        for ks in range(16):
            if L1 and ks in (8, 9, 10, 11):
                f2 += fcs[8 + 2 * (ks - 8):10 + 2 * (ks - 8)]
            for b in range(3):
                f2.append(dict(addr=vC2 if ks < 8 else vL16 if L1 else vTR1, offs=((ks % 8) * 3072 + b * 1024,),
                               mf=mf2(C2 + 8 * b, ks, True, False, False if INIT2 else None), late=ks >= 8))
        fr = []
        XS0 = o.get("xs0", 2)
        for ks in range(16):
            if L1 and ks in (4, 6, 8, 10):
                fr += fcs[ks - 4:ks - 2]
            if ks >= XS0:
                n_ = (NX * (ks - XS0 + 1)) // (16 - XS0) - (NX * (ks - XS0)) // (16 - XS0)
                fr += f2[:n_]; f2 = f2[n_:]
            for f in range(4):
                fr.append(dict(addr=vC1, offs=(ks * 4096 + f * 1024,), mf=mf2(vACC + 8 * f, ks, True, True)))
        M1 = sum(len(f["mf"]) for f in fr)
        fr += f2
        NM = sum(len(f["mf"]) for f in fr)
        tl = [i for i, f in enumerate(fr) if f.get("late")][0]
        MB = sum(len(f["mf"]) for f in fr[:tl - 6]) - 4
        if L1:
            tc = [i for i, f in enumerate(fr) if f.get("cs")][-1]
            MC = sum(len(f["mf"]) for f in fr[:tc + 1])
        if L1:
            k.poll_a(sFXp, G_FX1)
        g = k.gemm_begin(fr)
        k.poll_b(sFXp, G_FX1)
        k.stamp("C.poll")
        CS1 = [vPQ, vPQ + 4, vACC + 56, vQ0]

        def c2_init():
            k.get(vT0, cCSB)
            for b in range(3):
                k.lds(f"ds_read_b128 {vr(C2+8*b+4,4)}, v{vT0} offset:{(10+b)*64}", "cs2")
            for _ in range(4):
                k.play([lambda: None])
            k.ds_wait("cs2")
            for b in range(3):
                for rb in range(2):
                    for j in range(4):
                        k(f"v_mul_f32 v{C2+8*b+4*rb+j}, v{C2+8*b+4+j}, v{NM_A+rb}")

        def relu_block(acc, cs, rb, dst):
            if cs is not None:
                for j in range(4):
                    k(f"v_fmac_f32 v{acc+j}, v{cs+j}, v{NM_A+rb}")
            for p in range(2):
                k(f"v_cvt_pk_bf16_f32 v{dst+p}, v{acc+2*p}, v{acc+2*p+1}")
            for p in range(2):
                k(f"v_pk_max_i16 v{dst+p}, v{dst+p}, 0")

        def cs1_reads():
            k.get(vT2, cCSB)
            for b in range(4):
                k.lds(f"ds_read_b128 {vr(CS1[b],4)}, v{vT2} offset:{(6+b)*64}", "cs")

        def epi1():
            k.ds_wait("cs")
            for s in range(2):
                for rb in range(2):
                    for b in range(2):
                        relu_block(vACC + 16*s + 8*b + 4*rb, CS1[2*s+b], rb, vACC + 16*s + 4*rb + 2*b)
                k.stores([f"buffer_store_dwordx4 {vr(vACC+16*s+4*rb,4)}, v{vL16}, {srd(S_WS)}, s{sH1+rb} offen offset:{s*1024}"
                          for rb in range(2)], psc(2))

        def d_setup():
            if L1:
                with k.atomic():
                    k(f"s_lshl_b32 s{sT1}, s{sW}, 13")
                    k(f"s_add_u32 s{sT1}, s{sT1}, s{sGB}")
                with k.atomic():
                    k(f"s_lshl_b32 s{sDK}, s{sW}, 11")
                    k(f"s_add_u32 s{sDK}, s{sDK}, {28*1024}")
                k(f"s_add_u32 s{sT1}, s{sT1}, {G_H + 24*1024}")
                for j in range(4):
                    with k.atomic():
                        k(f"s_add_u32 s{sT0}, s{sW}, {j}")
                        k(f"s_and_b32 s{sT0}, s{sT0}, 3")
                    with k.atomic():
                        k(f"s_lshl2_add_u32 s{sT0}, s{sDH}, s{sT0}")
                        k(f"s_mul_i32 s{sT0}, s{sT0}, 57344")
                    k(f"s_add_u32 s{sRB+j}, s{sT0}, s{sT1}")
            k.poll_prep(7)
        TD = 3 if L1 else o.get("td", 4)
        seq = [(ksl, j) for ksl in range(14 - TD) for j in range(4)] + [(ksl, j) for j in (1, 2, 3, 0) for ksl in range(14 - TD, 14)]
        hb = [0, 0, 0, 0]

        def hload(t):
            ksl, j = seq[t]
            with k.atomic():
                if ksl // 4 != hb[j]:
                    if ksl == 8:
                        k(f"s_sub_u32 s{sRB+j}, s{sRB+j}, s{sDK}")
                    else:
                        k(f"s_add_u32 s{sRB+j}, s{sRB+j}, 4096")
                    hb[j] += 1
                k.vmem(f"buffer_load_dwordx4 {vr(vACT+4*(t%16),4)}, v{vL16}, {srd(S_WS)}, s{sRB+j} offen offset:{(ksl%4)*1024} sc1", ("h", t))
        PC = o.get("prec", PRE)
        al = k.rec(lambda: act_loads(G_X1))
        k.play(al[:PC])
        fill = {}
        sl = k.rec(lambda: stat_loads(G_ST1, vPQ))
        SP = o.get("stp", 0)
        e = spread(fill, al[PC:PC+SP] + [lambda: k.play(sl[:2]), sl[2]] + al[PC+SP:], 0, o.get("cstep", 40) / 10)
        e2 = spread(fill, k.rec(lambda: (stat_sum(vPQ), stats_finalize(False))), 44, 0.9 if INIT2 else 1.3)
        if INIT2:
            spread(fill, k.rec(c2_init), e2 + 1, 0.95)
        if L1:
            spread(fill, k.rec(lambda: k("s_barrier")), 104, 0)
            if o.get("w2e", 8) and not WP:
                spread(fill, k.rec(lambda: pack_flag(0x8000)), 102, 0)
        e = spread(fill, w1c2[nc:], e, 3)
        if L1:
            e = spread(fill, k.rec(lambda: touches(o.get("Tc", 0), vT0)), e, 1)
        spread(fill, k.rec(cs1_reads), M1 - 9, 1)
        if o.get("diagc") and not L1:
            for ix in (0, 31, 63, 95, 127, 151, 175, 199):
                spread(fill, k.rec(lambda: k.stamp(f"C.m{ix}", True)), ix, 0)
        if o.get("diagd"):
            spread(fill, k.rec(lambda: k.stamp("C.mm1")), 127, 0)
        e1 = spread(fill, k.rec(epi1), M1 + 1, 1 / o.get("epr", 4))
        spread(fill, k.rec(lambda: (k.vm_wait("w1c2"), k("s_barrier"))), MB, 0)
        assert e < MB
        e3 = spread(fill, k.rec(d_setup), e1, 1)
        cs2r = k.rec(lambda: [k.lds(f"ds_read_b128 {vr(CS1[b],4)}, v{vT2} offset:{(10+b)*64}") for b in range(3)])
        if not L1 and not INIT2:
            spread(fill, cs2r, e3 + 2, 2)
        if L1:
            def cs2_put():
                k.get(vQ0, cCSA)
                k(f"s_lshl_b32 s{sT5}, s{sPDA}, 6")
                k(f"v_add_u32 v{vQ0}, s{sT5}, v{vQ0}")
                k.lds(f"ds_write_b32 v{vQ0}, a{aCS} offset:{10*64}", "csw")
            assert MC + 6 > e1
            spread(fill, k.rec(cs2_put), MC + 6, 0)
            spread(fill, k.rec(lambda: (k.ds_wait("csw"), k("s_barrier"))), MC + 14, 0)
            spread(fill, cs2r, MC + 16, 2)
        pf = min(e1 + (o.get("fl11", 50) if L1 else o.get("fl1", 20)), NM - 2)
        spread(fill, k.rec(lambda: k.flag(sFHo, G_FH)), pf, 1)
        NE = o.get("ne1", 0) if L1 else o.get("ne", 6)
        pp = NM - 1 if NE == 0 else NM - 3 * NE - o.get("ppd", 18)
        assert pp > pf
        spread(fill, k.rec(lambda: k.vmem(f"buffer_load_dword v{vT0}, v{vT3}, {srd(S_WS)}, s{sFHp} offen offset:{G_FH} sc1", "p1")), pp, 1)
        if NE:
            spread(fill, k.rec(lambda: async_check("p1", sFHp, G_FH)), NM - 3 * NE - 1, 1)
            spread(fill, k.rec(lambda: [hload(t) for t in range(NE)]), NM - 3 * NE, 3)
        if L1:
            wc = takew2("nw2", 24, 24 - EU)
            spread(fill, wc, e, (pp - 1 - e) / max(len(wc), 1))
        k.gemm_run(g, fill)
        k.stamp("C.mm2")
        HO = vWB + 16
        LA = o.get("dla1", 10) if L1 else o.get("dla", 10)
        k("s_nop 3")
        k.ds_all()
        epi2 = k.rec(lambda: [relu_block(C2 + 8*b + 4*rb, None if INIT2 else CS1[b], rb, HO + 8*rb + 2*b) for b in range(3) for rb in range(2)])
        h2sc = psc(2) and not o.get("h2plain", 1)
        its = []
        for rb in range(2):
            its.append(f"buffer_store_dwordx4 {vr(HO+8*rb,4)}, v{vL16}, {srd(S_WS)}, s{sH2+rb} offen")
            its.append(f"buffer_store_dwordx2 {vr(HO+8*rb+4,2)}, v{vL16}, {srd(S_WS)}, s{sH3+rb} offen")
        tail = []
        up = []
        if L1:
            def park_w1():
                with k.atomic():
                    k(f"s_lshl_b32 s{sT5}, s{sW}, 14")
                    k(f"s_add_u32 s{sT5}, s{sT5}, {R1}")
                    k(f"v_add_u32 v{vCH}, s{sT5}, v{vL16}")
                for j in range(0, 16, 2):
                    with k.atomic():
                        for jj in (j, j + 1):
                            k.lds(f"ds_read_b128 {vr(vPARK+4*jj,4)}, v{vCH} offset:{jj*1024}", "pw")
            u_ = k.rec(lambda: (rot_setup(), unpark(vP, list(range(EU, 24)))))
            bar = k.rec(lambda: (k.ds_wait("pw"), k("s_barrier")))
            up = k.rec(park_w1) + u_[:1] + [lambda: k.play(bar)] + u_[1:]
        if NE:
            n2 = o.get("ne2", 2)
            k.play(mix(epi2, k.rec(lambda: [hload(t) for t in range(NE, NE + n2)]), 10))
            k.stores(its, h2sc)
            nxt = NE + n2
            FL2 = o.get("fl2", 5)
        else:
            k.play(epi2)
            k.stores(its, h2sc)
            async_check("p1", sFHp, G_FH)
            for t in range(LA):
                hload(t)
                if len(w2) > 24 - EU and t % 2:
                    k.play(w2[:1]); w2 = w2[1:]
                k.play(up[:1]); up = up[1:]
            k.flag(sFHo, G_FH + 1024)
            nxt = LA
            FL2 = -1
        k.stamp("D.poll1")
        RSD = vPQ
        k.get(vPQ + 1, cRSD)
        k.lds(f"ds_read_b32 v{RSD}, v{vPQ+1}", "rsd")
        def red_addr():
            for j in range(4):
                if L1:
                    k.get(vPQ + 4 + j, cRD0 + j)
                else:
                    with k.atomic():
                        k(f"s_add_u32 s{sT0}, s{sW}, {j}")
                        k(f"s_and_b32 s{sT0}, s{sT0}, 3")
                    with k.atomic():
                        k(f"s_lshl_b32 s{sT0}, s{sT0}, 14")
                        k(f"s_add_u32 s{sT0}, s{sT0}, {max(j-1, 0)*4096}")
                    k(f"v_add_u32 v{vPQ+4+j}, s{sT0}, v{vL16}")
        ur = k.rec(lambda: (unpack_res(vWB), red_addr()))
        wr = []
        for t in range(56):
            ksl, j = seq[t]
            if L1:
                k.vm_wait(("w2t", ksl))
            k.vm_wait(("h", t))
            if o.get("diagd") and t in (0, 8, 16, 24, 32, 40, 48):
                k.stamp(f"D.t{t}")
            if o.get("diagc") and not L1 and t in (0, 4, 8, 16, 24, 32, 40, 48):
                k.stamp(f"D.t{t}", True)
            for f in range(4):
                a = vACC + 16*j + 4*f
                c = "0" if ksl == 0 else vr(a, 4)
                k(f"v_mfma_f32_16x16x32_bf16 {vr(a,4)}, {ar((ksl*4+f)*4,4)}, {vr(vACT+4*(t%16),4)}, {c}")
                if f in (0, 2) and nxt < 56 and nxt <= t + LA and (f == 0 or nxt < t + LA):
                    if nxt == 32 - o.get("p2d", 11):
                        k.vmem(f"buffer_load_dword v{vT0}, v{vT3}, {srd(S_WS)}, s{sFHp} offen offset:{G_FH+1024} sc1", "p2")
                    if nxt == 32:
                        async_check("p2", sFHp, G_FH + 1024)
                    hload(nxt)
                    nxt += 1
                    if nxt == 56 and not L1 and o.get("wb", 0):
                        lw = k.label("L_wb")
                        k(f"s_lshl3_add_u32 s{sT0}, s{sW}, s2")
                        k(f"s_cmp_ge_u32 s{sT0}, 8")
                        k(f"s_cbranch_scc1 {lw}")
                        k("buffer_wbl2 sc1")
                        k(f"s_branch {lw}_e")
                        k(f"{lw}:")
                        k(f"buffer_load_dword a{aDUM}, v{vT3}, {srd(S_WS)}, s{sFHp} offen offset:{G_FH} sc1")
                        k(f"{lw}_e:")
                        k.vm_note(1, "wb")
                if f in ((1, 3) if t < o.get("up2", 3) else (1,)) and up:
                    k.play(up[:1]); up = up[1:]
                if f == 2:
                    nup = 24 - len(up)
                    if w2 and (len(w2) > 24 or not up or nup >= 4 * ((24 - len(w2)) // 4 + 1) + 1):
                        if len(w2) <= 24:
                            k.ds_wait(("up", (24 - len(w2)) // 4))
                        k.play(w2[:1]); w2 = w2[1:]
                    elif t >= o.get("tl0", 46) and tail:
                        nn = o.get("tln", 2)
                        k.play(tail[:nn]); tail = tail[nn:]
                if f == 3 and t == FL2:
                    k.flag(sFHo, G_FH + 1024)
                if 4 * t + f == 203 and L1:
                    k.ds_wait(("rw", 1))
                    k("s_barrier")
                    for f_ in range(4):
                        k.lds(f"ds_read_b128 {vr(vACC+16+4*f_,4)}, v{vPQ+4} offset:{f_*1024}", "rd0")
                if 4 * t + f == 215 and L1:
                    k.ds_wait("rd0")
                    k("s_barrier")
                if f == 3 and t == 2 and L1 and not WP:
                    pack_check_issue(0x8000, vTR0, vTR1, sPDA)
                if f == 3 and t == 14 and L1 and not WP:
                    pack_check(vTR0, vTR1, sPDA)
                if f == 3 and t == o.get("tx", 99) and L1:
                    touch("x", vDM)
                if f == 1 and t >= 8 and ur:
                    k.play(ur[:1]); ur = ur[1:]
                if wr and wr[0][0] <= 4 * t + f:
                    k.lds(*wr.pop(0)[1:])
            if ksl == 13 and j:
                for f in range(4):
                    wr.append((4 * t + 9 + 2 * f, f"ds_write_b128 v{vPQ+4+j}, {vr(vACC+16*j+4*f,4)} offset:{f*1024}", ("rw", j)))
        assert not w2 and not ur and not wr and not up
        k.stamp("D.mm")
        if not L1:
            k.get(vT2, cOUT)
        if L1:
            k("s_nop 3")
            for f in range(4):
                for p in range(2):
                    k(f"v_pk_add_f32 {vr(vACC+4*f+2*p,2)}, {vr(vACC+4*f+2*p,2)}, {vr(vACC+16+4*f+2*p,2)}")
        k.barrier()
        NJ = 2 if L1 else 3
        RB_ = vACC + 64 - 16 * NJ
        for f in range(4):
            for j in range(NJ):
                k.lds(f"ds_read_b128 {vr(RB_+16*j+4*f,4)}, v{vPQ+4} offset:{j*4096+f*1024}", ("rd", f))
        for f in range(4):
            k.ds_wait(("rd", f))
            for j in range(NJ):
                for p in range(2):
                    k(f"v_pk_add_f32 {vr(vACC+4*f+2*p,2)}, {vr(vACC+4*f+2*p,2)}, {vr(RB_+16*j+4*f+2*p,2)}")
            for p in range(2):
                k(f"v_pk_fma_f32 {vr(vACC+4*f+2*p,2)}, {vr(vACC+4*f+2*p,2)}, {vr(RSD,2)}, {vr(vWB+4*f+2*p,2)} op_sel_hi:[1,0,1]")
            for p in range(2):
                k(f"v_cvt_pk_bf16_f32 v{vRES+2*f+p}, v{vACC+4*f+2*p}, v{vACC+4*f+2*p+1}")
        k.stamp("D.red")
        if L1:
            publish_x(G_X2, G_ST2, G_FX2, psc(3))
            k(f"s_sub_u32 s{sT0}, s{sDK}, 8192")
            for j in range(4):
                k(f"s_add_u32 s{sRB+j}, s{sRB+j}, s{sT0}")
            k(f"s_add_u32 s{sKVC}, s{sKVC}, 0x100000")
            k(f"s_add_u32 s{sKVP}, s{sKVP}, 0x100000")
            k.flag(sFXo, G_FX2)
            k.poll_a(sFXp, G_FX2)
            k.stamp("D.pub")
            k("s_barrier")
            fr = []
            k(f"v_add_u32 v{vTR0}, {R1}, v{vL16}")
            late = []
            for ks in range(16):
                fq = [dict(addr=vTR0, offs=(ks * 2048 + b * 1024,), mf=mf2(QA + 8 * b, ks, True, True, act=ring)) for b in range(2)]
                fk = [dict(addr=vL16, offs=(R0 + ks * 4096 + b * 1024,), mf=mf2(vACC + 8 * b, ks, False, True, act=ring)) for b in range(4)]
                if ks < 16 - o.get("qlag", 6):
                    fr += fk + fq
                else:
                    fr += fk
                    late += fq
            gA = k.gemm_begin(fr)
        else:
            k("s_nop 1")
            for s in range(2):
                for p in range(2):
                    k(f"v_permlane16_swap_b32 v{vRES+4*s+p}, v{vRES+4*s+2+p}")
                k.vmem(f"buffer_store_dwordx4 {vr(vRES+4*s,4)}, v{vT2}, {srd(S_OUT)}, 0 offen offset:{64*s}{['', ' sc1', ' sc1 nt', ' nt'][o.get('outsc1', 1)]}")
            le = k.label("L_ep")
            k(f"s_or_b32 s{sT2}, s2, s{sW}")
            k(f"s_cbranch_scc1 {le}")
            k(f"s_add_u32 s{sEP}, s{sEP}, 1")
            k(f"v_mov_b32 v{vT1}, s{sEP}")
            k("s_mov_b64 exec, 1")
            k(f"buffer_store_dword v{vT1}, v{vL16}, {srd(S_WS)}, 0 offen offset:{WS_EPOCH}")
            k("s_mov_b64 exec, -1")
            k(f"{le}:")
            if stamps:
                k.vm_all()
                k.stamp("end")
                k(f"s_memrealtime s[{sST}:{sST+1}]")
                k("s_waitcnt lgkmcnt(0)")
                k(f"v_writelane_b32 v{vSTAMP}, s{sST}, 61")
                k(f"v_writelane_b32 v{vSTAMP}, s{sBUD}, 60")
                k(f"v_writelane_b32 v{vSTAMP}, s{sSLOW}, 59")
                k(f"s_lshl2_add_u32 s{sT2}, s2, s{sW}")
                k(f"s_lshl_b32 s{sT2}, s{sT2}, 8")
                k(f"s_add_u32 s{sT2}, s{sT2}, {WS_STAMP}")
                k(f"v_lshrrev_b32 v{vT0}, 2, v{vL16}")
                k(f"buffer_store_dword v{vSTAMP}, v{vT0}, {srd(S_WS)}, s{sT2} offen")
    k("L_end:")
    lines = merge_waits(k.lines)
    if o.get("pads", 2048):
        lines = add_pads(lines, k.tailcode, o.get("pads", 2048), [x for x in (o.get("ps1", 0), o.get("ps2", 0)) if x])
    body = "\n".join(lines)
    tailc = "\n".join(k.tailcode)
    hdr = open("interleave_layers__linear_attn_block__dense_activation_relu__prompt.s.ref").read().split("; Override")[0]
    txt = f"""{hdr}; Generated by a hand-written generator (persistent kernel, one workgroup per CU).
; @launch grid=(256,1,1) block=(256,1,1) lds={LDS_BYTES}
.amdgcn_target "amdgcn-amd-amdhsa--gfx950"
.text
.globl {NAME}
.p2align 8
.type {NAME},@function
.set CODE_BYTES, L_code_end - L_pcref - 512
{NAME}:
{body}
    s_endpgm
L_code_end:
{tailc}
.section .rodata,"a"
.p2align 6
.amdhsa_kernel {NAME}
  .amdhsa_next_free_vgpr 512
  .amdhsa_next_free_sgpr 102
  .amdhsa_accum_offset 256
  .amdhsa_group_segment_fixed_size 0
  .amdhsa_kernarg_size 72
  .amdhsa_user_sgpr_count 2
  .amdhsa_user_sgpr_kernarg_segment_ptr 1
  .amdhsa_system_sgpr_workgroup_id_x 1
.end_amdhsa_kernel
"""
    return txt, k.stamp_names


if __name__ == "__main__":
    out = sys.argv[1]
    stamps = "stamps" in sys.argv[2:]
    opts = {}
    for a in sys.argv[2:]:
        if "=" in a:
            x, y = a.split("=")
            opts[x] = int(y)
    txt, names = gen(stamps, opts)
    open(out, "w").write(txt)
    if stamps:
        open(out + ".names", "w").write("\n".join(names))
```

```python
import sys
from contextlib import contextmanager

NAME = "interleave_layers__linear_attn_block__dense_activation_relu__prompt_kernel"

WS_EPOCH = 0
WS_XID = 0x8000
WS_PD = 0x10000
GRP0 = 0x100000
G_FO, G_FX1, G_FX2, G_FH = 0, 512, 1024, 1536
G_ST1 = 0x1000
G_ST2 = G_ST1
G_ST0 = 0x4000
G_X1 = 0x8000
G_X2 = G_X1
G_H = G_X1 + 0x20000
G_O = G_H
WS_KVX = 0x1200000
KVX_C = 0x9000
WS_W2T = 0x1400000
WS_PK = 0x1600000
PK_KV, PK_Q, PK_W1A, PK_W1B, PK_WO, PK_SZ = 0, 65536, 98304, 163840, 212992, 278528
WS_STAMP = 0x1B00000
WS_USED = 0x1C00000
OOB = 0x7f000000

R0, R1, R2, R3 = 0, 65536, 98304, 131072
L_SM = 161792
L_CS = L_SM
L_ZB = L_SM + 896
L_STAT = L_SM + 1024
L_XB = L_SM - 4096
W1B_N1 = 8
L_XST = 98304
L_RED = R2
L_PST = R2
LDS_BYTES = 163840

S_X, S_WQKV, S_WO, S_W1, S_W2, S_OUT, S_WS = 4, 8, 12, 16, 20, 24, 28
(sW, sC, sG, sTAG, sSLOW, sGB, sBUD, sEP, sEPS, _e1, sT0, sT1, sT2, sT3, sT4, sT5,
 sACT, sACT1, sBACT, sTILE, sOST, sOST1, sFOo, sFOp, sFXo, sFXp, sSTo, sSTg,
 sH1, sH1b, sH2, sH2b, sH3, sH3b, sFHo, sFHp, sRB, _r1, _r2, _r3, sKVC, sKVP,
 sDH, sCT, sXCC, sT8, sD0, sD1, sD2, sD3, sL0, sL1, sPKB, sPDA, sPDB, sJ0) = range(32, 88)
assert sEPS % 2 == 0
sRHO = sT8
S_A, S_B = 88, 92
sKEX = 88
sDK = 92
sS8 = 93
sKM = 96
sST = 98
sPC = 100

vLANE, vL16, vTR0, vTR1, vQ0, vQ1, vQ2, vQ3, vP, vCH, vDM, vSTAMP = range(12)
vT0, vT1, vT2, vT3 = 12, 13, 14, 15
vSP, vSP2 = vP, vCH
vRES = 16
vPQ = 24
vWB = 32
vACC = 64
vACT = 128
BF1 = "0x3f803f80"
(cCSA, cCSB, cP16, aDUM, cSTO, cSTW, cSTA, cSTB, cKW, cKR, cKW1, cKR1, cKVS, cXW, cXR, cZR,
 cRD0, cRD1, cRD2, cRD3, cRSD, cOUT, cZL, cZW) = range(224, 248)
aONES, aCS = 248, 252


def srd(s):
    return f"s[{s}:{s+3}]"


def vr(a, n=1):
    return f"v{a}" if n == 1 else f"v[{a}:{a+n-1}]"


def ar(a, n=1):
    return f"a{a}" if n == 1 else f"a[{a}:{a+n-1}]"


def bcast(r, pos, n):
    lo = [0] * n
    hi = [1] * n
    if r % 2 == 0:
        hi[pos] = 0
    else:
        lo[pos] = 1
    f = lambda x: "[" + ",".join(map(str, x)) + "]"
    return vr(r & ~1, 2), f" op_sel:{f(lo)} op_sel_hi:{f(hi)}"


class K:
    def __init__(self, stamps=False, opts=None):
        self.lines = []
        self.nlab = 0
        self.vm = []
        self.ds = []
        self.stamps = stamps
        self.stamp_names = []
        self.o = opts or {}
        self._rec = None
        self.seen = set()
        self.tailcode = []
        self.lights = []
        self.fast = ""

    def _do(self, fn, cost=None):
        if cost is not None:
            fn.cost = cost
        if self._rec is not None:
            self._rec.append(fn)
        else:
            fn()

    def rec(self, f):
        assert self._rec is None
        self._rec = []
        f()
        r, self._rec = self._rec, None
        return r

    @contextmanager
    def atomic(self):
        if self._rec is None:
            yield
            return
        outer, self._rec = self._rec, []
        yield
        inner, self._rec = self._rec, outer
        g = lambda: [x() for x in inner]
        g.cost = sum(getattr(x, "cost", 4) for x in inner)
        outer.append(g)

    def play(self, items):
        for x in items:
            self._do(x)

    def _emit(self, l):
        self.lines.append(("" if l.endswith(":") else "    ") + l)

    def __call__(self, s):
        for l in s.split("\n"):
            l = l.strip()
            if l:
                self._do(lambda l=l: self._emit(l), 8 if l.startswith(("v_exp", "v_rsq", "v_rcp", "buffer_")) else 0 if l.endswith(":") else 4)

    def label(self, base="L"):
        self.nlab += 1
        return f"{base}_{self.nlab}"

    def vmem(self, s, tag=None):
        def f():
            self._emit(s)
            self.vm.append(tag)
            self.seen.add(tag)
        self._do(f, 8)

    def vm_note(self, n, tag=None):
        self._do(lambda: (self.vm.extend([tag] * n), self.seen.add(tag)))

    def _wait(self, lst, tag, name, mx):
        if tag not in lst:
            return lst
        idx = len(lst) - 1 - lst[::-1].index(tag)
        n = min(len(lst) - idx - 1, mx)
        self._emit(f"s_waitcnt {name}({n})")
        return lst[len(lst) - n:] if n else []

    def vm_wait(self, tag):
        def f():
            assert tag in self.seen, tag
            self.vm = self._wait(self.vm, tag, "vmcnt", 63)
        self._do(f)

    def save_vm(self):
        def f():
            self._sv = list(self.vm)
        self._do(f)

    def restore_vm(self):
        def f():
            self.vm = self._sv
        self._do(f)

    def vm_all(self):
        def f():
            self._emit("s_waitcnt vmcnt(0)")
            self.vm = []
        self._do(f)

    def lds(self, s, tag=None):
        def f():
            self._emit(s)
            self.ds.append(tag)
        self._do(f)

    def ds_wait(self, tag):
        def f():
            self.ds = self._wait(self.ds, tag, "lgkmcnt", 15)
        self._do(f)

    def ds_all(self, force=False):
        def f():
            if self.ds or force:
                self._emit("s_waitcnt lgkmcnt(0)")
            self.ds = []
        self._do(f)

    def barrier(self, force=False):
        self.ds_all(force)
        self("s_barrier")

    def stamp(self, name, light=False):
        if not self.stamps:
            return
        if light:
            i = len(self.stamp_names)
            self.stamp_names.append(name)
            r = 4 + 2 * len(self.lights)
            self.lights.append((r, i))
            self(f"s_memtime s[{r}:{r+1}]")
            return
        self.nst = getattr(self, "nst", 0) + 1
        if self.o.get("lite") and name not in ("end", "D.pub"):
            return
        i = len(self.stamp_names)
        assert i < 59
        self.stamp_names.append(name)
        self(f"{'s_memrealtime' if self.o.get('rt') else 's_memtime'} s[{sST}:{sST+1}]")
        self.ds_all(True)
        self(f"v_writelane_b32 v{vSTAMP}, s{sST}, {i}")
        for r, j in self.lights:
            self(f"v_writelane_b32 v{vSTAMP}, s{r}, {j}")
        self.lights = []

    def dma(self, sr, voff, soff, simm, lreg, limm, tag=None, flag=""):
        with self.atomic():
            self(f"s_add_u32 m0, s{lreg}, {limm}")
            self(f"s_add_u32 s{sT5}, s{soff}, {simm}")
            self.vmem(f"buffer_load_dwordx4 v{voff}, {srd(sr)}, s{sT5} offen{flag} lds", tag)

    def get(self, v, c):
        self(f"v_accvgpr_read_b32 v{v}, a{c}")

    def poll_prep(self, mask):
        self.get(vT3, cP16)
        if mask == 7:
            self(f"v_and_b32 v{vT3}, 28, v{vT3}")

    def poll(self, soff, imm, clear=True):
        if clear:
            self.seen = {t for t in self.seen if not (isinstance(t, tuple) and t[0] in ("act", "h"))}
        lp, done = self.label("L_poll"), self.label("L_pd")
        with self.atomic():
            self(f"{lp}:")
            self(f"buffer_load_dword v{vT0}, v{vT3}, {srd(S_WS)}, s{soff} offen offset:{imm} sc1")
            self.vm_all()
            self(f"v_cmp_ne_u32 vcc, s{sTAG}, v{vT0}")
            self(f"s_cbranch_vccz {done}")
            self(f"s_sub_u32 s{sBUD}, s{sBUD}, 1")
            self(f"s_cbranch_scc0 {lp}")
            self(f"s_mov_b32 s{sBUD}, 0")
            self(f"{done}:")

    def poll_a(self, soff, imm):
        if self.o.get("pp", 1):
            self.vmem(f"buffer_load_dword v{vT0}, v{vT3}, {srd(S_WS)}, s{soff} offen offset:{imm} sc1", "pa")

    def poll_b(self, soff, imm):
        if not self.o.get("pp", 1):
            return self.poll(soff, imm)
        self.seen = {t for t in self.seen if not (isinstance(t, tuple) and t[0] in ("act", "h"))}
        lp, done = self.label("L_poll"), self.label("L_pd")
        ld = lambda v: f"buffer_load_dword v{v}, v{vT3}, {srd(S_WS)}, s{soff} offen offset:{imm} sc1"
        self(f"{lp}:")
        self(ld(vT2))
        self("s_waitcnt vmcnt(1)")
        self(f"v_cmp_ne_u32 vcc, s{sTAG}, v{vT0}")
        self(f"s_cbranch_vccz {done}")
        self(ld(vT0))
        self("s_waitcnt vmcnt(1)")
        self(f"v_cmp_ne_u32 vcc, s{sTAG}, v{vT2}")
        self(f"s_cbranch_vccz {done}")
        self(f"s_sub_u32 s{sBUD}, s{sBUD}, 1")
        self(f"s_cbranch_scc0 {lp}")
        self(f"s_mov_b32 s{sBUD}, 0")
        self(f"{done}:")
        self.vm = ["pb"]

    def stores(self, items, force_sc1, tag="st"):
        with self.atomic():
            if force_sc1:
                for it in items:
                    self.vmem(it + " sc1", tag)
                return
            ls, le = self.label("L_ss"), self.label("L_se")
            self(f"s_cmp_lg_u32 s{sSLOW}, 0")
            self(f"s_cbranch_scc1 {ls}")
            for it in items:
                self.vmem(it + (self.fast if tag == "st" else ""), tag)
            self(f"{le}:")
            self.tailcode += [f"{ls}:"] + ["    " + it + " sc1" for it in items] + [f"    s_branch {le}"]

    def flag(self, soff, imm):
        with self.atomic():
            self(f"v_mov_b32 v{vT1}, s{sTAG}")
            self.vm_wait("st")
            self("s_mov_b64 exec, 1")
            self.stores([f"buffer_store_dword v{vT1}, v{vL16}, {srd(S_WS)}, s{soff} offen offset:{imm}"], False, "flag")
            self("s_mov_b64 exec, -1")

    def gemm_begin(self, frags, D=6):
        self.gid = getattr(self, "gid", 0) + 1
        g = dict(frags=frags, D=D, gid=self.gid, rp=0, reads=[])
        for t, f in enumerate(frags):
            s = vWB + 4 * (t % 8)
            if len(f["offs"]) == 2:
                for hh in range(2):
                    g["reads"].append((t, f"ds_read_b64_tr_b16 {vr(s + 2*hh, 2)}, v{f['addr']} offset:{f['offs'][hh]}"))
            else:
                g["reads"].append((t, f"ds_read_b128 {vr(s, 4)}, v{f['addr']} offset:{f['offs'][0]}"))
        self._issue(g, D - 1, 99)
        return g

    def _issue(self, g, tmax, maxn):
        c = 0
        reads = g["reads"]
        while g["rp"] < len(reads) and reads[g["rp"]][0] <= tmax and c < maxn:
            self.lds(reads[g["rp"]][1], ("w", g["gid"], reads[g["rp"]][0]))
            g["rp"] += 1
            c += 1

    def gemm_run(self, g, fill=None):
        fill = fill or {}
        frags, D, gid = g["frags"], g["D"], g["gid"]
        n = len(frags)
        mi = 0
        pend = []
        LATE = self.o.get("late", 3)
        for t, f in enumerate(frags):
            s = vWB + 4 * (t % 8)
            if t % 2 == 0:
                self.ds_wait(("w", gid, min(t + 1, n - 1)))
            nm = len(f["mf"])
            for j, (acc, act_, sw, first, wt) in enumerate(f["mf"]):
                if wt is not None:
                    self.vm_wait(wt)
                c = "0" if first else vr(acc, 4) if acc is not None else ar(aCS, 4)
                if acc is None:
                    self(f"v_mfma_f32_16x16x32_bf16 {ar(aCS,4)}, {ar(aONES,4)}, {vr(s,4)}, {c}")
                elif sw:
                    self(f"v_mfma_f32_16x16x32_bf16 {vr(acc,4)}, {vr(s,4)}, {vr(act_,4)}, {c}")
                else:
                    self(f"v_mfma_f32_16x16x32_bf16 {vr(acc,4)}, {vr(act_,4)}, {vr(s,4)}, {c}")
                rp0 = g["rp"]
                self._issue(g, t + D, 99 if j == nm - 1 else 1)
                room = 8 - 4 * (g["rp"] - rp0) - (4 if (j == nm - 1 and t % 2 == 1) else 0)
                pend += [(mi, x) for x in fill.pop(mi, [])]
                while pend:
                    cst = getattr(pend[0][1], "cost", 4)
                    if cst <= room or (room == 8 and cst > 8) or mi - pend[0][0] >= LATE:
                        self.play([pend.pop(0)[1]])
                        room -= cst
                    else:
                        break
                mi += 1
        self.play([x for _, x in pend])
        for key in sorted(fill):
            self.play(fill[key])

    def gemm(self, frags, fill=None, D=6):
        self.gemm_run(self.gemm_begin(frags, D), fill)


def merge_waits(lines):
    import re
    out = []
    for l in lines:
        m = re.match(r"\s*s_waitcnt (\w+)\((\d+)\)$", l)
        if m and out:
            p = re.match(r"\s*s_waitcnt (\w+)\((\d+)\)$", out[-1])
            if p and p.group(1) != m.group(1):
                out[-1] = out[-1] + f" {m.group(1)}({m.group(2)})"
                continue
        out.append(l)
    return out


def spread(fill, items, start, step, per=1):
    p = start
    if step == 0:
        g = lambda: [x() for x in items]
        g.cost = sum(getattr(x, "cost", 4) for x in items)
        fill.setdefault(int(p), []).append(g)
        return p
    for i in range(0, len(items), per):
        fill.setdefault(int(p), []).extend(items[i:i + per])
        p += step
    return p


def insn_sizes(lines, tailcode):
    import subprocess, tempfile, re, os
    src = [".amdgcn_target \"amdgcn-amd-amdhsa--gfx950\"", ".text", ".set CODE_BYTES, 0x12345"]
    for i, l in enumerate(lines):
        src.append(f"Lz{i}:")
        src.append(l)
    src.append(f"Lz{len(lines)}:")
    src += tailcode
    with tempfile.TemporaryDirectory() as d:
        open(d + "/a.s", "w").write("\n".join(src) + "\n")
        subprocess.run(["clang", "-x", "assembler", "-target", "amdgcn-amd-amdhsa", "-mcpu=gfx950", "-c", d + "/a.s", "-o", d + "/a.o"], check=True)
        out = subprocess.run(["llvm-objdump", "-t", d + "/a.o"], capture_output=True, text=True, check=True).stdout
    addr = {}
    for l in out.splitlines():
        m = re.match(r"([0-9a-f]+) .*\sLz(\d+)$", l)
        if m:
            addr[int(m.group(2))] = int(m.group(1), 16)
    return [addr[i + 1] - addr[i] for i in range(len(lines))]


def add_pads(lines, tailcode, step, splits):
    def call(first, ret):
        c = ["    s_mov_b64 exec, 0"]
        for w in range(3):
            c += [f"    s_cmp_eq_u32 s{sW}, {w}", f"    s_cbranch_scc1 L_pad{first + w}"]
        return c + [f"    s_branch L_pad{first + 3}"]
    src = []
    for l in lines:
        t = l.strip()
        if t.startswith("PADCALL") and t != "PADCALL":
            g = int(t[7:])
            if g <= len(splits):
                src += ["    s_nop 0 ; CALL%d" % g] * 9
        else:
            src.append(l)
    ci = [i for i, l in enumerate(src) if l.strip() == "PADCALL"][0]
    src = src[:ci] + src[ci + 1:]
    sz = insn_sizes(src, tailcode)
    body, pos, nxt, n = [], 4, step, 0
    for i in range(ci, len(src)):
        if pos >= nxt and sz[i] > 0 and "; CALL" not in src[i]:
            body.append(("PAD", n))
            n += 1
            pos += 4
            nxt = (pos // step + 1) * step
        body.append(src[i])
        pos += sz[i]
    bounds = [0] + list(splits) + [n]
    assert all(bounds[i + 1] - bounds[i] >= 4 for i in range(len(bounds) - 1)), (bounds, n)
    out = src[:ci] + call(0, 0) + [".p2align 12", "L_padret0:", "    s_mov_b64 exec, -1"]
    done = set()
    for x in body:
        if isinstance(x, tuple):
            j = x[1]
            g = max(i for i in range(len(bounds) - 1) if bounds[i] <= j)
            out += [f"L_pad{j}:", f"    s_cbranch_execz {'L_pad%d' % (j + 4) if j + 4 < bounds[g + 1] else 'L_padret%d' % g}"]
        elif "; CALL" in x:
            g = int(x.split("CALL")[1])
            if g not in done:
                done.add(g)
                out += call(bounds[g], g) + [f"L_padret{g}:", "    s_mov_b64 exec, -1"]
        else:
            out.append(x)
    return out


def mix(a, b, ratio):
    out = []
    bi = 0
    for i, x in enumerate(a):
        out.append(x)
        if (i + 1) % ratio == 0 and bi < len(b):
            out.append(b[bi]); bi += 1
    out.extend(b[bi:])
    return out


def act(ks, rb):
    return vACT + 8 * ks + 4 * rb


def gen(stamps=False, opts=None):
    k = K(stamps, opts)
    o = k.o
    if stamps:
        k(f"{'s_memrealtime' if o.get('rt') else 's_memtime'} s[{sST}:{sST+1}]")
        k(f"s_memrealtime s[{sPC}:{sPC+1}]")
    k(f"""
    s_cmp_ge_u32 s2, 256
    s_cbranch_scc1 L_end
    s_load_dwordx2 s[{S_X}:{S_X+1}], s[0:1], 0
    s_load_dwordx2 s[{S_WQKV}:{S_WQKV+1}], s[0:1], 8
    s_load_dwordx2 s[{S_WS}:{S_WS+1}], s[0:1], 64
    s_load_dwordx2 s[{S_WO}:{S_WO+1}], s[0:1], 16
    s_load_dwordx2 s[{S_W1}:{S_W1+1}], s[0:1], 32
    s_load_dwordx2 s[{S_W2}:{S_W2+1}], s[0:1], 40
    s_load_dwordx2 s[{S_OUT}:{S_OUT+1}], s[0:1], 48
    """)
    if o.get("cw0", 1):
        k(f"""
        s_getpc_b64 s[{S_A}:{S_A+1}]
        L_pcref:
        s_lshr_b32 s{sT2}, s2, 3
        s_lshl_b32 s{sT2}, s{sT2}, 11
        v_lshlrev_b32 v{vT3}, 3, v0
        v_add_u32 v{vT3}, s{sT2}, v{vT3}
        v_min_u32 v{vT3}, CODE_BYTES, v{vT3}
        s_mov_b32 exec_lo, 0x10001
        s_mov_b32 exec_hi, 0x10001
        global_load_dword a{aDUM}, v{vT3}, s[{S_A}:{S_A+1}]
        s_mov_b64 exec, -1
        """)
    k(f"""
    v_lshrrev_b32 v{vT0}, 6, v0
    v_and_b32 v{vLANE}, 63, v0
    s_mov_b32 s{S_X+2}, {2048*1024}
    v_readfirstlane_b32 s{sW}, v{vT0}
    s_mov_b32 s{S_X+3}, 0x20000
    s_mov_b32 s{S_WQKV+2}, {512*3072}
    s_mov_b32 s{S_WQKV+3}, 0x20000
    s_lshr_b32 s{sT0}, s2, 3
    s_and_b32 s{sC}, s{sT0}, 15
    s_lshr_b32 s{sT0}, s{sT0}, 4
    s_and_b32 s{sG}, s2, 7
    s_lshl1_add_u32 s{sG}, s{sG}, s{sT0}
    s_lshr_b32 s{sT1}, s{sC}, 1
    s_xor_b32 s{sT1}, s{sT1}, s{sT0}
    s_and_b32 s{sT1}, s{sT1}, 1
    s_and_b32 s{sRHO}, s{sC}, 1
    s_lshl1_add_u32 s{sRHO}, s{sT1}, s{sRHO}
    v_lshlrev_b32 v{vL16}, 4, v{vLANE}
    """)
    if stamps:
        k(f"v_mov_b32 v{vSTAMP}, 0")
    NTP = " nt" if o.get("nt", 0) & 1 else ""
    NTX = " nt" if o.get("nt", 0) & 2 else ""
    XS, XR, X2R = vRES, vRES + 4, act(15, 1)
    aRES = 246
    k(f"""
    v_lshrrev_b32 v{vT0}, 4, v{vLANE}
    v_and_b32 v{vT1}, 15, v{vLANE}
    v_xor_b32 v{vT2}, v{vT0}, v{vT1}
    v_lshlrev_b32 v{vT2}, 4, v{vT2}
    v_lshl_add_u32 v{XS}, v{vT0}, 10, v{vT2}
    v_xor_b32 v{XS+1}, 64, v{XS}
    v_xor_b32 v{XS+2}, 0x80, v{XS}
    v_xor_b32 v{XS+3}, 0xc0, v{XS}
    v_lshrrev_b32 v{vP}, 2, v{vLANE}
    v_and_b32 v{vCH}, 3, v{vLANE}
    v_lshrrev_b32 v{vT3}, 3, v{vLANE}
    v_and_b32 v{vT3}, 2, v{vT3}
    v_xor_b32 v{vCH}, v{vCH}, v{vT3}
    v_lshlrev_b32 v{vCH}, 4, v{vCH}
    v_and_b32 v{vT3}, 3, v{vP}
    v_lshl_add_u32 v{vT3}, v{vT0}, 3, v{vT3}
    s_movk_i32 s{sT1}, 3072
    v_mad_u32_u24 v{vDM}, v{vT3}, s{sT1}, v{vCH}
    s_lshl_b32 s{sL0}, s{sW}, 14
    s_add_u32 s{sL0}, s{sL0}, {L_XST}
    s_lshl_b32 s{sT1}, s{sG}, 17
    s_lshl_b32 s{sT2}, s{sW}, 15
    s_add_u32 s{sT1}, s{sT1}, s{sT2}
    s_lshl_b32 s{sL1}, s{sW}, 12
    """)
    for r in range(4):
        k(f"""
        s_add_u32 s{sT2}, s{sRHO}, {r}
        s_and_b32 s{sT2}, s{sT2}, 3
        s_lshl_b32 s{sT3}, s{sT2}, 8
        s_add_u32 s{sD0+r}, s{sT1}, s{sT3}
        s_lshl2_add_u32 s{sT2}, s{sT2}, s{sW}
        s_mul_i32 s{sT2}, s{sT2}, {32*3072}
        s_lshl_b32 s{sT3}, s{sC}, 6
        s_add_u32 s{sRB+r}, s{sT2}, s{sT3}
        """)
    k("s_waitcnt lgkmcnt(0)")
    k(f"s_load_dword s{sEP}, s[{S_WS}:{S_WS+1}], {WS_EPOCH}")
    if stamps:
        k(f"v_writelane_b32 v{vSTAMP}, s{sST}, 62")
        k(f"v_writelane_b32 v{vSTAMP}, s{sPC}, 63")

    def xslot(q, js=range(8)):
        for j in js:
            k.dma(S_X, XS + (j & 3), sD0 + q, j * 4096, sL0, (q & 1) * 8192 + j * 1024, ("xs", q), " nt" if o.get("nt", 0) & 4 else "")

    def wkv_raw(r):
        for pr in range(2):
            for hh in range(2):
                k.dma(S_WQKV, vDM, sRB + r, hh * 4 * 3072 + 1024 * (pr + 1), sL1, R0 + r * 16384 + pr * 2048 + hh * 1024, ("wkv", r))

    def quad_lane(pitch, dst=vDM, tmp=vT2, sD3=sD3):
        vT2 = tmp
        k(f"v_lshrrev_b32 v{dst}, 3, v{vLANE}")
        k(f"v_and_b32 v{vT2}, 6, v{dst}")
        k(f"v_xor_b32 v{vT2}, v{vT2}, v{vLANE}")
        k(f"v_and_b32 v{vT2}, 7, v{vT2}")
        k(f"v_lshlrev_b32 v{vT2}, 4, v{vT2}")
        if isinstance(pitch, int):
            k(f"s_movk_i32 s{sD3}, {pitch}")
            pitch = f"s{sD3}"
        k(f"v_mad_u32_u24 v{dst}, v{dst}, {pitch}, v{vT2}")

    def dma_raw(sr, lds_imm, first, R=None):
        sD0_, sD2_, sL0_, vDM_ = R or (sD0, sD2, sL0, vDM)
        with k.atomic():
            k(f"s_add_u32 m0, s{sL0_}, {lds_imm}")
            k("s_nop 0" if first else f"s_add_u32 s{sD0_}, s{sD0_}, s{sD2_}")
            k(f"buffer_load_dwordx4 v{vDM_}, {srd(sr)}, s{sD0_} offen{NTP} lds")

    def packU_issue(base, sD0, sD1, sD2, sD3, sL0, vDM, sPDA, shift=12):
        R = (sD0, sD2, sL0, vDM)
        l2, l3, lq, le = k.label("L_u2"), k.label("L_u3"), k.label("L_uq"), k.label("L_ue")
        with k.atomic():
            k(f"""
            s_lshl_b32 s{sL0}, s{sW}, {shift}
            s_add_u32 s{sL0}, s{sL0}, {base}
            s_lshr_b32 s{sD0}, s{sC}, 2
            s_mul_i32 s{sD0}, s{sD0}, 896
            s_mul_i32 s{sD1}, s{sG}, {32*3584}
            s_add_u32 s{sD0}, s{sD0}, s{sD1}
            s_and_b32 s{sD1}, s{sC}, 3
            s_cmp_eq_u32 s{sW}, 3
            s_cbranch_scc1 {l3}
            s_cmp_eq_u32 s{sW}, 2
            s_cbranch_scc1 {l2}
            s_mov_b32 s{S_A}, s{S_W2}
            s_mov_b32 s{S_A+1}, s{S_W2+1}
            s_mov_b32 s{S_A+2}, {1792*1024}
            s_movk_i32 s{sD2}, 1024
            s_lshl1_add_u32 s{sD0}, s2, s{sW}
            s_lshr_b32 s{sD1}, s{sD0}, 3
            s_and_b32 s{sD0}, s{sD0}, 7
            s_mul_i32 s{sPDA}, s{sD0}, 56
            s_add_u32 s{sPDA}, s{sPDA}, s{sD1}
            s_lshl_b32 s{sPDA}, s{sPDA}, 12
            s_add_u32 s{sPDA}, s{sPDA}, {WS_W2T}
            s_cmp_ge_u32 s{sD1}, 56
            s_cselect_b32 s{sPDA}, {OOB}, s{sPDA}
            s_lshl_b32 s{sD1}, s{sD1}, 15
            s_lshl_b32 s{sD0}, s{sD0}, 7
            s_add_u32 s{sD0}, s{sD0}, s{sD1}
            s_branch {lq}
            {l2}:
            s_mov_b32 s{S_A}, s{S_W1}
            s_mov_b32 s{S_A+1}, s{S_W1+1}
            s_mov_b32 s{S_A+2}, {512*3584}
            s_movk_i32 s{sD2}, 3584
            s_lshl_b32 s{sD1}, s{sD1}, 7
            s_add_u32 s{sD0}, s{sD0}, s{sD1}
            s_lshl_b32 s{sPDA}, s{sG}, 12
            s_add_u32 s{sPDA}, s{sPDA}, s{sPKB}
            s_add_u32 s{sPDA}, s{sPDA}, {PK_W1A}
            {lq}:
            s_mov_b32 s{S_A+3}, 0x20000
            """)
            quad_lane(f"s{sD2}", vDM, vT2 if shift == 14 else vACT + 127)
            k(f"s_lshl_b32 s{sD2}, s{sD2}, 3")
            for j in range(4):
                dma_raw(S_A, j * 1024, j == 0, R)
            k(f"""
            s_branch {le}
            {l3}:
            s_movk_i32 s{sD3}, 3584
            s_mul_i32 s{sPDA}, s{sG}, 3072
            s_add_u32 s{sPDA}, s{sPDA}, s{sPKB}
            s_add_u32 s{sPDA}, s{sPDA}, {PK_W1B}
            s_lshr_b32 s{sT5}, s{sD1}, 1
            s_mul_i32 s{sT5}, s{sT5}, 6
            s_and_b32 s{sD2}, s{sD1}, 1
            s_add_u32 s{sT5}, s{sT5}, s{sD2}
            s_add_u32 s{sT5}, s{sT5}, 18
            s_lshl_b32 s{sT5}, s{sT5}, 5
            s_add_u32 s{sT5}, s{sT5}, s{sD0}
            v_lshrrev_b32 v{vDM}, 1, v{vLANE}
            v_and_b32 v{vT2 if shift == 14 else vACT + 127}, 16, v{vL16}
            v_mad_u32_u24 v{vDM}, v{vDM}, s{sD3}, v{vT2 if shift == 14 else vACT + 127}
            s_add_u32 m0, s{sL0}, 2048
            s_mul_i32 s{sD1}, s{sD1}, 3
            buffer_load_dwordx4 v{vDM}, {srd(S_W1)}, s{sT5} offen{NTP} lds
            s_add_u32 s{sD1}, s{sD1}, 17
            s_lshr_b32 s{sD1}, s{sD1}, 1
            s_lshl_b32 s{sD1}, s{sD1}, 6
            s_add_u32 s{sD0}, s{sD0}, s{sD1}
            s_mov_b32 s{sD2}, {16*3584}
            v_mad_u32_u24 v{vDM}, v{vP}, s{sD3}, v{vCH}
            """)
            for hh in range(2):
                dma_raw(S_W1, hh * 1024, hh == 0, R)
            k(f"buffer_load_dword a{aDUM}, v{vL16}, {srd(S_W1)}, s{S_W1+2} offen")
            k(f"{le}:")
            k.vm_note(4, "pu")

    WP = o.get("wp", 1)

    def warm():
        k(f"v_lshlrev_b32 v{vT3}, 7, v{vLANE}")
        k("s_mov_b64 exec, 0xf")
        if not o.get("cw0", 1):
            k(f"""
            s_getpc_b64 s[{sPC}:{sPC+1}]
            L_pcref:
            s_lshr_b32 s{sT2}, s2, 3
            s_lshl2_add_u32 s{sT2}, s{sT2}, s{sW}
            s_lshl_b32 s{sT2}, s{sT2}, 9
            s_min_u32 s{sT2}, s{sT2}, CODE_BYTES
            s_add_u32 s{sPC}, s{sPC}, s{sT2}
            s_addc_u32 s{sPC+1}, s{sPC+1}, 0
            """)
            k.vmem(f"global_load_dword a{aDUM}, v{vT3}, s[{sPC}:{sPC+1}]")
        if o.get("warm", 1) >= 1:
            k(f"s_lshl2_add_u32 s{sT2}, s2, s{sW}")
            k(f"s_lshr_b32 s{sT3}, s{sT2}, 1")
            k(f"s_mul_i32 s{sT3}, s{sT3}, 3072")
            k(f"s_and_b32 s{sT4}, s{sT2}, 1")
            k(f"s_lshl_b32 s{sT4}, s{sT4}, 9")
            k(f"s_add_u32 s{sT3}, s{sT3}, s{sT4}")
            k.vmem(f"buffer_load_dword a{aDUM}, v{vT3}, {srd(S_WQKV)}, s{sT3} offen")
            if not WP:
                k(f"s_lshl_b32 s{sT3}, s{sT2}, 9")
                k.vmem(f"buffer_load_dword a{aDUM}, v{vT3}, {srd(S_WO)}, s{sT3} offen")
        if o.get("tlb", 0):
            k("s_mov_b64 exec, 1")
            k(f"s_mul_i32 s{sT3}, s{sT2}, 1792")
            k.vmem(f"buffer_load_dword a{aDUM}, v{vT3}, {srd(S_W1)}, s{sT3} offen")
            k.vmem(f"buffer_load_dword a{aDUM}, v{vT3}, {srd(S_W2)}, s{sT3} offen")
            if o["tlb"] > 1:
                k("s_mov_b64 exec, 0x1f")
                k(f"v_lshlrev_b32 v{vWB}, 21, v{vLANE}")
                k(f"s_mov_b32 s{sT3}, {WS_KVX + 0x1f0000}")
                k.vmem(f"buffer_load_dword a{aDUM}, v{vWB}, {srd(S_WS)}, s{sT3} offen")
        if o.get("warm", 1) >= 2:
            k(f"s_mul_i32 s{sT3}, s{sT2}, 1792")
            k("s_mov_b64 exec, 0x3fff")
            k.vmem(f"buffer_load_dword a{aDUM}, v{vT3}, {srd(S_W1)}, s{sT3} offen")
            k.vmem(f"buffer_load_dword a{aDUM}, v{vT3}, {srd(S_W2)}, s{sT3} offen")
        k(f"s_lshl2_add_u32 s{sT2}, s{sC}, s{sW}")
        k(f"s_lshl_b32 s{sT2}, s{sT2}, 8")
        k(f"s_add_u32 s{sT2}, s{sT2}, s{sGB}")
        k("s_mov_b64 exec, 3")
        k.vmem(f"buffer_load_dword a{aDUM}, v{vT3}, {srd(S_WS)}, s{sT2} offen sc1", "touch")
        k("s_mov_b64 exec, -1")

    OWN = vACC
    k(f"s_lshl_b32 s{sT2}, s{sC}, 11")
    k(f"s_add_u32 s{sT2}, s{sT2}, s{sT1}")
    for r in range(2):
        k.vmem(f"buffer_load_dwordx4 {vr(OWN+4*r,4)}, v{vL16}, {srd(S_X)}, s{sT2} offen offset:{r*1024}{NTX}", "own")
    w0_ = k.rec(lambda: wkv_raw(0))
    nw0 = o.get("nw0", 2)
    k.play(w0_[:nw0])
    k(f"""
    s_mov_b32 s{S_WO+2}, {512*1024}
    s_mov_b32 s{S_WO+3}, 0x20000
    s_mov_b32 s{S_W1+2}, {512*3584}
    s_mov_b32 s{S_W1+3}, 0x20000
    s_mov_b32 s{S_W2+2}, {1792*1024}
    s_mov_b32 s{S_W2+3}, 0x20000
    s_mov_b32 s{S_WS+2}, {WS_USED}
    s_mov_b32 s{S_WS+3}, 0x20000
    s_lshl_b32 s{sGB}, s{sG}, 20
    s_add_u32 s{sGB}, s{sGB}, {GRP0}
    """)
    warm()
    UF = o.get("uf", 1)
    k(f"s_mul_i32 s{sPKB}, s{sC}, {PK_SZ}")
    k(f"s_add_u32 s{sPKB}, s{sPKB}, {WS_PK}")
    if UF == 1:
        packU_issue(R1, sH1, sH1b, sH2, sH2b, sH3, vWB + 8, sPDB)
    if WP:
        quad_lane(1024, vWB + 8, vACT + 127, sH2b)
        k(f"""
        s_lshl2_add_u32 s{sH1}, s{sG}, s{sW}
        s_lshl_b32 s{sPDA}, s{sH1}, 10
        s_add_u32 s{sPDA}, s{sPDA}, s{sPKB}
        s_add_u32 s{sPDA}, s{sPDA}, {PK_WO}
        s_lshl_b32 s{sH1}, s{sH1}, 13
        s_lshl_b32 s{sH1b}, s{sC}, 7
        s_add_u32 s{sH1}, s{sH1}, s{sH1b}
        s_cmp_ge_u32 s{sC}, 8
        s_cselect_b32 s{sH1}, {OOB}, s{sH1}
        s_cselect_b32 s{sPDA}, {OOB}, s{sPDA}
        s_lshl_b32 s{sH1b}, s{sW}, 10
        s_add_u32 m0, s{sH1b}, {R0 + 49152}
        s_nop 0
        """)
        k.vmem(f"buffer_load_dwordx4 v{vWB+8}, {srd(S_WO)}, s{sH1} offen{NTP} lds", "pwo")

    W0P = o.get("w0p", 0)
    if W0P == 0:
        k.play(w0_[nw0:])

    if o.get("diags"): k.stamp("iss0")

    def arm(mode):
        with k.atomic():
            k(f"s_lshl2_add_u32 s{sT2}, s{sC}, s{sW}")
            k(f"s_lshl_b32 s{sT3}, s{sT2}, 11")
            k(f"s_add_u32 s{sT3}, s{sT3}, s{sGB}")
            k(f"s_add_u32 s{sT3}, s{sT3}, {G_X1}")
            k(f"s_lshr_b32 s{sT4}, s{sT2}, 3")
            k(f"s_mul_i32 s{sT4}, s{sT4}, 57344")
            k(f"s_and_b32 s{sT2}, s{sT2}, 7")
            k(f"s_mul_i32 s{sT2}, s{sT2}, {5120 if mode & 4 else 1024}")
            k(f"s_add_u32 s{sT4}, s{sT4}, s{sT2}")
            k(f"s_add_u32 s{sT4}, s{sT4}, s{sGB}")
            k(f"s_add_u32 s{sT4}, s{sT4}, {G_H + 16*1024}")
            k(f"s_add_u32 s{sT2}, s{sT4}, 4096")
        if mode & 1:
            for j in range(2):
                k.vmem(f"buffer_store_dwordx4 {vr(vQ0,4)}, v{vL16}, {srd(S_WS)}, s{sT3} offen offset:{j*1024} sc1", "arm")
        for j in range(5 if mode & 4 else 1 if mode & 2 else 0):
            k.vmem(f"buffer_store_dwordx4 {vr(vQ0,4)}, v{vL16}, {srd(S_WS)}, s{sT4 if j < 4 else sT2} offen offset:{(j%4)*1024} sc1", "arm")

    k(f"""
    s_mov_b32 s{S_OUT+2}, {2048*1024}
    s_mov_b32 s{S_OUT+3}, 0x20000
    s_lshr_b32 s{sDH}, s{sC}, 3
    s_and_b32 s{sCT}, s{sC}, 7
    s_mov_b32 s{sBUD}, 150000
    s_mov_b32 s{sEPS}, 0x358637bd
    s_mov_b32 s{sEPS+1}, 0x358637bd
    s_getreg_b32 s{sXCC}, hwreg(HW_REG_XCC_ID, 0, 4)
    s_lshl_b32 s{sACT}, s{sW}, 15
    s_add_u32 s{sACT}, s{sACT}, s{sGB}
    s_add_u32 s{sACT1}, s{sACT}, 16384
    s_lshl2_add_u32 s{sT0}, s{sDH}, s{sW}
    s_lshl_b32 s{sBACT}, s{sT0}, 14
    s_add_u32 s{sBACT}, s{sBACT}, s{sGB}
    s_lshl_b32 s{sTILE}, s{sCT}, 11
    s_add_u32 s{sTILE}, s{sTILE}, s{sBACT}
    s_mul_i32 s{sBACT}, s{sT0}, 57344
    s_add_u32 s{sBACT}, s{sBACT}, s{sGB}
    s_mul_i32 s{sOST}, s{sW}, {2*57344}
    s_lshl_b32 s{sOST1}, s{sC}, 10
    s_add_u32 s{sOST}, s{sOST}, s{sOST1}
    s_add_u32 s{sOST}, s{sOST}, s{sGB}
    s_add_u32 s{sOST}, s{sOST}, {G_O}
    s_add_u32 s{sOST1}, s{sOST}, 57344
    s_lshl_b32 s{sFXp}, s{sW}, 7
    s_add_u32 s{sFXp}, s{sFXp}, s{sGB}
    s_lshl2_add_u32 s{sFOo}, s{sC}, s{sFXp}
    s_lshl_b32 s{sFHp}, s{sT0}, 7
    s_add_u32 s{sFHp}, s{sFHp}, s{sGB}
    s_lshr_b32 s{sT0}, s{sT0}, 1
    s_mov_b32 s{sT1}, s{sT0}
    s_lshl_b32 s{sFOp}, s{sT0}, 7
    s_add_u32 s{sFOp}, s{sFOp}, s{sGB}
    s_and_b32 s{sT2}, s{sW}, 1
    s_lshl1_add_u32 s{sT3}, s{sCT}, s{sT2}
    s_lshl2_add_u32 s{sFXo}, s{sT3}, s{sFOp}
    s_lshl3_add_u32 s{sT3}, s{sT0}, s{sCT}
    s_lshl_b32 s{sT3}, s{sT3}, 8
    s_lshl3_add_u32 s{sT3}, s{sT2}, s{sT3}
    s_add_u32 s{sSTo}, s{sT3}, s{sGB}
    s_lshl_b32 s{sSTg}, s{sW}, 11
    s_add_u32 s{sSTg}, s{sSTg}, s{sGB}
    s_lshl2_add_u32 s{sT1}, s{sT1}, s{sT2}
    s_lshl_b32 s{sT1}, s{sT1}, 6
    s_add_u32 s{sT1}, s{sT1}, {L_STAT + 128}
    v_lshl_add_u32 v{vT3}, v{vT1}, 2, s{sT1}
    v_accvgpr_write_b32 a{cRSD}, v{vT3}
    s_mul_i32 s{sT0}, s{sW}, {2*57344}
    s_add_u32 s{sT0}, s{sT0}, s{sGB}
    s_lshr_b32 s{sT3}, s{sC}, 2
    s_add_u32 s{sT0}, s{sT0}, {G_H}
    s_lshl_b32 s{sH1}, s{sC}, 11
    s_add_u32 s{sH1}, s{sH1}, {24*1024}
    s_add_u32 s{sH1}, s{sH1}, s{sT0}
    s_add_u32 s{sH1b}, s{sH1}, 57344
    s_mul_i32 s{sT4}, s{sT3}, 6144
    s_add_u32 s{sT0}, s{sT0}, s{sT4}
    s_and_b32 s{sT4}, s{sC}, 3
    s_mul_i32 s{sH2}, s{sT4}, 3
    s_add_u32 s{sH2}, s{sH2}, 1
    s_lshr_b32 s{sH2}, s{sH2}, 1
    s_lshl_b32 s{sH2}, s{sH2}, 10
    s_add_u32 s{sH2}, s{sH2}, s{sT0}
    s_add_u32 s{sH2b}, s{sH2}, 57344
    s_lshr_b32 s{sH3}, s{sT4}, 1
    s_mul_i32 s{sH3}, s{sH3}, 3072
    s_and_b32 s{sH3b}, s{sT4}, 1
    s_lshl3_add_u32 s{sH3}, s{sH3b}, s{sH3}
    s_add_u32 s{sH3}, s{sH3}, 1024
    s_add_u32 s{sH3}, s{sH3}, s{sT0}
    s_add_u32 s{sH3b}, s{sH3}, 57344
    s_lshr_b32 s{sT0}, s{sW}, 1
    s_lshl2_add_u32 s{sT0}, s{sT0}, s{sT3}
    s_lshl_b32 s{sT0}, s{sT0}, 7
    s_lshl1_add_u32 s{sT2}, s{sT4}, s{sT2}
    s_lshl2_add_u32 s{sT0}, s{sT2}, s{sT0}
    s_add_u32 s{sFHo}, s{sT0}, s{sGB}
    """)
    k(f"""
    s_mul_i32 s{sT0}, s{sC}, {KVX_C}
    s_add_u32 s{sT0}, s{sT0}, {WS_KVX}
    s_lshl_b32 s{sT1}, s{sW}, 13
    s_add_u32 s{sKVC}, s{sT0}, s{sT1}
    s_lshl_b32 s{sT2}, s{sW}, 14
    s_lshl_b32 s{sT3}, s{sG}, 10
    s_lshl_b32 s{sT4}, s{sG}, 7
    s_cmp_lt_u32 s{sW}, 2
    s_cselect_b32 s{sT3}, s{sT3}, s{sT4}
    s_cselect_b32 s{sKM}, -1, 0x30003
    s_cselect_b32 s{sKM+1}, -1, 0x30003
    s_cselect_b64 vcc, -1, 0
    s_add_u32 s{sKVP}, s{sT0}, s{sT2}
    s_add_u32 s{sKVP}, s{sKVP}, s{sT3}
    s_cmp_eq_u32 s{sW}, 3
    s_cselect_b32 s{sKVP}, {OOB}, s{sKVP}
    v_lshlrev_b32 v{vT3}, 4, v{vT0}
    v_lshl_add_u32 v{vT3}, v{vT1}, 6, v{vT3}
    v_cndmask_b32 v{vT3}, v{vT3}, v{vL16}, vcc
    v_accvgpr_write_b32 a{cKVS}, v{vT3}
    v_lshlrev_b32 v{vT3}, 2, v{vL16}
    v_and_b32 v{vT3}, 0xf00, v{vT3}
    v_lshrrev_b32 v{vT3}, 1, v{vT3}
    v_and_b32 v{vWB}, 48, v{vL16}
    s_lshr_b32 s{sT2}, s{sW}, 1
    s_lshl_b32 s{sT2}, s{sT2}, 6
    s_add_u32 s{sT2}, s{sT2}, 32768
    s_sub_u32 s{sT2}, s{sT2}, s{sT1}
    v_add3_u32 v{vT3}, v{vT3}, v{vWB}, s{sT2}
    v_accvgpr_write_b32 a{cZL}, v{vT3}
    v_and_b32 v{vWB+5}, 1, v{vLANE}
    v_cndmask_b32 v{vWB+5}, v{vWB+5}, 0, vcc
    s_min_u32 s{sT5}, s{sW}, 2
    """)
    W = vWB
    k(f"""
    v_lshl_add_u32 v{XR}, v{vT1}, 8, v{vT2}
    v_add_u32 v{XR}, s{sL0}, v{XR}
    v_xor_b32 v{XR+1}, 64, v{XR}
    v_xor_b32 v{XR+2}, 0x80, v{XR}
    v_xor_b32 v{XR+3}, 0xc0, v{XR}
    v_and_b32 v{vT3}, 3, v{vLANE}
    v_lshlrev_b32 v{vT3}, 3, v{vT3}
    v_lshl_add_u32 v{vTR0}, v{vP}, 6, v{vT3}
    v_lshl_add_u32 v{vQ0}, v{vP}, 7, v{vT3}
    v_and_b32 v{vT3}, 1, v{vT0}
    v_lshlrev_b32 v{vT3}, 5, v{vT3}
    v_add_u32 v{vTR0}, v{vTR0}, v{vT3}
    v_xor_b32 v{vTR1}, 32, v{vTR0}
    v_bfe_u32 v{vT3}, v{vLANE}, 3, 2
    v_lshl_add_u32 v{vQ0}, v{vT3}, 5, v{vQ0}
    v_xor_b32 v{vQ1}, 32, v{vQ0}
    v_xor_b32 v{vQ2}, 64, v{vQ0}
    v_xor_b32 v{vQ3}, 0x60, v{vQ0}
    v_lshlrev_b32 v{W}, 2, v{vT1}
    v_accvgpr_write_b32 a{cP16}, v{W}
    v_mov_b32 v{W+1}, {BF1}
    v_accvgpr_write_b32 a{aONES}, v{W+1}
    v_accvgpr_write_b32 a{aONES+1}, v{W+1}
    v_accvgpr_write_b32 a{aONES+2}, v{W+1}
    v_accvgpr_write_b32 a{aONES+3}, v{W+1}
    v_add_u32 v{W+1}, {L_CS}, v{W}
    v_accvgpr_write_b32 a{cCSA}, v{W+1}
    v_and_b32 v{W+2}, 48, v{vLANE}
    v_add_u32 v{W+1}, {L_CS}, v{W+2}
    v_accvgpr_write_b32 a{cCSB}, v{W+1}
    v_lshlrev_b32 v{W+1}, 2, v{vT0}
    v_lshl_add_u32 v{W+1}, v{vT1}, 4, v{W+1}
    v_accvgpr_write_b32 a{cSTO}, v{W+1}
    s_lshl_b32 s{sT0}, s{sW}, 8
    s_add_u32 s{sT0}, s{sT0}, {L_STAT}
    v_add_u32 v{W+1}, s{sT0}, v{W}
    v_accvgpr_write_b32 a{cSTA}, v{W+1}
    v_and_b32 v{W+3}, 32, v{vLANE}
    v_lshl_add_u32 v{W+1}, v{W+3}, 1, v{W+1}
    v_accvgpr_write_b32 a{cSTW}, v{W+1}
    v_add_u32 v{W+1}, s{sT0}, v{W+2}
    v_accvgpr_write_b32 a{cSTB}, v{W+1}
    s_lshl_b32 s{sT0}, s{sW}, 10
    v_add_u32 v{W+1}, s{sT0}, v{vL16}
    v_accvgpr_write_b32 a{cKW}, v{W+1}
    v_add_u32 v{W+3}, {R2 + 8192}, v{W+1}
    v_accvgpr_write_b32 a{cKW1}, v{W+3}
    s_lshl_b32 s{sT0}, s{sT5}, 14
    v_add_u32 v{W+1}, s{sT0}, v{vL16}
    v_lshl_add_u32 v{W+1}, v{W+5}, 12, v{W+1}
    v_accvgpr_write_b32 a{cKR}, v{W+1}
    s_lshl_b32 s{sT0}, s{sT5}, 14
    s_add_u32 s{sT0}, s{sT0}, {R2 + 8192}
    v_add_u32 v{W+1}, s{sT0}, v{vL16}
    v_lshl_add_u32 v{W+1}, v{W+5}, 14, v{W+1}
    v_accvgpr_write_b32 a{cKR1}, v{W+1}
    v_add_u32 v{W+1}, {L_XB}, v{vL16}
    v_accvgpr_write_b32 a{cXR}, v{W+1}
    v_lshlrev_b32 v{W+3}, 3, v{vT0}
    v_add_u32 v{W+3}, {L_ZB}, v{W+3}
    v_accvgpr_write_b32 a{cZR}, v{W+3}
    """)
    k(f"""
    s_lshl_b32 s{sT0}, s{sW}, 10
    v_add_u32 v{W+1}, s{sT0}, v{W+1}
    v_accvgpr_write_b32 a{cXW}, v{W+1}
    v_and_b32 v{W+3}, 1, v{vT0}
    v_lshrrev_b32 v{W+4}, 1, v{vT0}
    v_lshl_add_u32 v{W+3}, v{W+3}, 1, v{W+4}
    v_and_b32 v{W+4}, 3, v{vLANE}
    v_lshl_add_u32 v{W+3}, v{W+4}, 2, v{W+3}
    s_lshr_b32 s{sT0}, s{sW}, 1
    s_lshl_b32 s{sT0}, s{sT0}, 5
    s_add_u32 s{sT0}, s{sT0}, {L_ZB}
    v_lshl_add_u32 v{W+3}, v{W+3}, 1, s{sT0}
    v_accvgpr_write_b32 a{cZW}, v{W+3}
    """)
    for j in range(4):
        k(f"s_add_u32 s{sT0}, s{sW}, {j}")
        k(f"s_and_b32 s{sT0}, s{sT0}, 3")
        k(f"s_lshl_b32 s{sT0}, s{sT0}, 13")
        k(f"s_add_u32 s{sT0}, s{sT0}, {L_RED + (4096 if j == 2 else 0)}")
        k(f"v_add_u32 v{W+1}, s{sT0}, v{vL16}")
        k(f"v_accvgpr_write_b32 a{cRD0+j}, v{W+1}")
    k(f"""
    s_lshl2_add_u32 s{sT0}, s{sDH}, s{sW}
    s_lshl3_add_u32 s{sT0}, s{sG}, s{sT0}
    s_lshl_b32 s{sT0}, s{sT0}, 14
    s_lshl_b32 s{sT1}, s{sCT}, 7
    s_add_u32 s{sT0}, s{sT0}, s{sT1}
    v_lshl_add_u32 v{W+1}, v{vT1}, 10, s{sT0}
    v_and_b32 v{W+3}, 1, v{vT0}
    v_lshl_add_u32 v{W+1}, v{W+3}, 5, v{W+1}
    v_lshrrev_b32 v{W+3}, 1, v{vT0}
    v_lshl_add_u32 v{W+1}, v{W+3}, 4, v{W+1}
    v_accvgpr_write_b32 a{cOUT}, v{W+1}
    """)

    def xread(q):
        k.vm_wait(("xs", q))
        for ksl in range(4):
            for rb in range(2):
                k.lds(f"ds_read_b128 {vr(act(4*q+ksl, rb),4)}, v{XR+ksl} offset:{(q%2)*8192 + rb*4096}", ("xr", q))

    SUM0, SQ0, SUM1, SQ1 = vACC + 56, vACC + 57, vACC + 58, vACC + 59
    SUMA, SQA = vACC + 48, vACC + 56
    ONES = vPQ + 4
    NM_A, RS_A, RL_A = vACC + 60, vACC + 62, vACC + 56
    NM_B, RS_B, RL_B = vACC + 32, vACC + 40, vACC + 48
    STG = vACC + 48

    def own_stats():
        a, b, c, d = OWN + 8, OWN + 9, OWN + 10, OWN + 11
        k(f"v_mov_b32 v{OWN+12}, {BF1}")
        k.vm_wait("own")
        for j in range(4):
            r0, r1 = OWN + j, OWN + 4 + j
            k(f"v_dot2_f32_bf16 v{a}, v{OWN+12}, v{r0}, {'0' if j == 0 else f'v{a}'}")
            k(f"v_dot2_f32_bf16 v{c}, v{OWN+12}, v{r1}, {'0' if j == 0 else f'v{c}'}")
            k(f"v_dot2_f32_bf16 v{b}, v{r0}, v{r0}, {'0' if j == 0 else f'v{b}'}")
            k(f"v_dot2_f32_bf16 v{d}, v{r1}, v{r1}, {'0' if j == 0 else f'v{d}'}")
        k(f"""
        s_waitcnt lgkmcnt(0)
        s_mul_i32 s{sTAG}, s{sEP}, 0x9E3779B1
        s_add_u32 s{sTAG}, s{sTAG}, 0x7F4A7C15
        s_add_u32 s{sT8}, s{sEP}, 1
        s_and_b32 s{sT8}, s{sT8}, 0xff
        s_mov_b32 s{sS8}, s{sEP}
        v_permlane32_swap_b32 v{a}, v{c}
        v_permlane32_swap_b32 v{b}, v{d}
        v_add_f32 v{a}, v{a}, v{c}
        v_add_f32 v{b}, v{b}, v{d}
        v_mov_b32 v{c}, v{a}
        v_mov_b32 v{d}, v{b}
        s_nop 1
        v_permlane16_swap_b32 v{a}, v{c}
        v_permlane16_swap_b32 v{b}, v{d}
        v_add_f32 v{a}, v{a}, v{c}
        v_add_f32 v{b}, v{b}, v{d}
        """)
        for sh in (8, 4, 2, 1):
            k("s_nop 0")
            k(f"v_add_f32_dpp v{a}, v{a}, v{a} row_ror:{sh} row_mask:0xf bank_mask:0xf")
            k(f"v_add_f32_dpp v{b}, v{b}, v{b} row_ror:{sh} row_mask:0xf bank_mask:0xf")
        k(f"""
        v_mul_f32 v{a}, 0xbb000000, v{a}
        v_mul_f32 v{b}, 0x3b000000, v{b}
        v_fma_f32 v{b}, -v{a}, v{a}, v{b}
        v_max_f32 v{b}, 0, v{b}
        v_add_f32 v{b}, 0x3727c5ac, v{b}
        v_rsq_f32 v{b}, v{b}
        v_mov_b32 v{c}, s{sTAG}
        v_mov_b32 v{d}, s{sXCC}
        v_lshrrev_b32 v{vT3}, 1, v{vLANE}
        s_lshl4_add_u32 s{sT2}, s{sW}, s{sC}
        s_lshl_b32 s{sT2}, s{sT2}, 7
        s_add_u32 s{sT2}, s{sT2}, s{sGB}
        s_add_u32 s{sT2}, s{sT2}, {G_ST0}
        s_mov_b32 exec_lo, 1
        s_mov_b32 exec_hi, 1
        """)
        k.vmem(f"buffer_store_dwordx4 {vr(a,4)}, v{vT3}, {srd(S_WS)}, s{sT2} offen sc1", "ownst")
        k("s_mov_b64 exec, -1")

    S0 = vACC + 52

    def st0_issue():
        with k.atomic():
            k(f"v_and_b32 v{vT0}, 30, v{vLANE}")
            k(f"v_lshlrev_b32 v{vT0}, 6, v{vT0}")
            k(f"v_and_b32 v{vT1}, 16, v{vL16}")
            k(f"v_add_u32 v{vT0}, v{vT0}, v{vT1}")
            k(f"s_add_u32 s{sT4}, s{sSTg}, {G_ST0}")
            k.vmem(f"buffer_load_dwordx4 {vr(S0,4)}, v{vT0}, {srd(S_WS)}, s{sT4} offen sc1", "st0")

    def st0_use():
        lp, ok = k.label("L_s0"), k.label("L_s0ok")
        with k.atomic():
            k.vm_wait("st0")
            k(f"{lp}:")
            k(f"v_cmp_ne_u32 vcc, s{sTAG}, v{S0+2}")
            k(f"s_cbranch_vccz {ok}")
            k(f"buffer_load_dwordx4 {vr(S0,4)}, v{vT0}, {srd(S_WS)}, s{sT4} offen sc1")
            k("s_waitcnt vmcnt(0)")
            k(f"s_sub_u32 s{sBUD}, s{sBUD}, 1")
            k(f"s_cbranch_scc0 {lp}")
            k(f"s_mov_b32 s{sBUD}, 0")
            k(f"{ok}:")
            k(f"v_cmp_ne_u32 vcc, s{sXCC}, v{S0+3}")
            k("s_nop 4")
            k(f"s_or_b32 s{sSLOW}, vcc_lo, {1 if o.get('forceslow') else 0}")
        k.get(vT0, cSTA)
        k(f"v_and_b32 v{vT1}, 16, v{vLANE}")
        k(f"v_lshl_add_u32 v{vT1}, v{vT1}, 2, v{vT0}")
        k.lds(f"ds_write2_b32 v{vT1}, v{S0}, v{S0+1} offset0:0 offset1:32")
        k.lds(f"ds_read2_b32 {vr(NM_A,2)}, v{vT0} offset0:0 offset1:16", "sta")
        k.lds(f"ds_read2_b32 {vr(RS_A,2)}, v{vT0} offset0:32 offset1:48", "sta")

    def stats_finalize(need_rs):
        k.get(vT1, cSTW)
        k.get(vT0, cSTA)
        k(f"""
        v_permlane32_swap_b32 v{SUM0}, v{SUM1}
        v_permlane32_swap_b32 v{SQ0}, v{SQ1}
        v_add_f32 v{SUM0}, v{SUM0}, v{SUM1}
        v_add_f32 v{SQ0}, v{SQ0}, v{SQ1}
        v_mov_b32 v{SUM1}, v{SUM0}
        v_mov_b32 v{SQ1}, v{SQ0}
        s_nop 0
        v_permlane16_swap_b32 v{SUM0}, v{SUM1}
        v_permlane16_swap_b32 v{SQ0}, v{SQ1}
        v_add_f32 v{SUM0}, v{SUM0}, v{SUM1}
        v_add_f32 v{SQ0}, v{SQ0}, v{SQ1}
        v_mul_f32 v{SUM0}, 0xbb000000, v{SUM0}
        v_mul_f32 v{SQ0}, 0x3b000000, v{SQ0}
        v_fma_f32 v{SQ0}, -v{SUM0}, v{SUM0}, v{SQ0}
        v_max_f32 v{SQ0}, 0, v{SQ0}
        v_add_f32 v{SQ0}, 0x3727c5ac, v{SQ0}
        v_rsq_f32 v{SQ0}, v{SQ0}
        s_nop 0
        """)
        k.lds(f"ds_write2_b32 v{vT1}, v{SUM0}, v{SQ0} offset0:0 offset1:32")
        k.lds(f"ds_read2_b32 {vr(NM_A,2)}, v{vT0} offset0:0 offset1:16", "sta")
        if need_rs:
            k.lds(f"ds_read2_b32 {vr(RS_A,2)}, v{vT0} offset0:32 offset1:48", "sta")

    def stats_b():
        k.get(vT1, cSTB)
        for rb in range(2):
            k.lds(f"ds_read_b128 {vr(NM_B+4*rb,4)}, v{vT1} offset:{64*rb}", "sta")
            k.lds(f"ds_read_b128 {vr(RS_B+4*rb,4)}, v{vT1} offset:{128+64*rb}", "sta")

    def stats_scale():
        k.ds_wait("sta")
        for j in range(8):
            k(f"v_mul_f32 v{RL_B+j}, 0x3fb8aa3b, v{RS_B+j}")
        for j in range(2):
            k(f"v_mul_f32 v{RL_A+j}, 0x3fb8aa3b, v{RS_A+j}")

    def set_ones(r):
        for j in range(4):
            k(f"v_mov_b32 v{r+j}, {BF1}")

    def cs_put(first, sblk):
        k.get(vT0, cCSA)
        k(f"s_lshl_b32 s{sT5}, s{sblk}, 6")
        k(f"v_add_u32 v{vT0}, s{sT5}, v{vT0}")
        k.lds(f"ds_write_b32 v{vT0}, a{aCS} offset:{first*64}")

    def phi_block(acc, nm, cs, rl, rs, dst, tmp, lay):
        s1, s2, s3, s4, s5 = [], [], [], [], []
        for p in range(2):
            a2 = vr(acc + 2*p, 2)
            t2 = vr(tmp + 2*p, 2)
            if lay == "b":
                c2, m = bcast(cs, 1, 3)
                s1.append(f"v_pk_fma_f32 {a2}, {vr(nm+2*p,2)}, {c2}, {a2}{m}")
                s2.append(f"v_pk_mul_f32 {t2}, {a2}, {vr(rl+2*p,2)}")
                s4.append(f"v_pk_fma_f32 {a2}, {a2}, {vr(rs+2*p,2)}, {t2}")
            else:
                c2, m = bcast(nm, 1, 3)
                s1.append(f"v_pk_fma_f32 {a2}, {vr(cs+2*p,2)}, {c2}, {a2}{m}")
                c2, m = bcast(rl, 1, 2)
                s2.append(f"v_pk_mul_f32 {t2}, {a2}, {c2}{m}")
                c2, m = bcast(rs, 1, 3)
                s4.append(f"v_pk_fma_f32 {a2}, {a2}, {c2}, {t2}{m}")
            for j in range(2):
                s3.append(f"v_exp_f32 v{tmp+2*p+j}, v{tmp+2*p+j} clamp")
            s5.append(f"v_pk_add_f32 {a2}, {a2}, s[{sEPS}:{sEPS+1}]")
        for s in s1 + s2 + s3:
            k(s)
        for j in range(4):
            k(f"v_max_f32 v{acc+j}, 0, v{acc+j}")
        for s in s4 + s5:
            k(s)
        for p in range(2):
            k(f"v_cvt_pk_bf16_f32 v{dst+p}, v{acc+2*p}, v{acc+2*p+1}")

    def ring(ks, rb):
        return vACT + 8 * (ks % 6) + 4 * rb
    QA, vPARK = vACT + 48, vACT + 64

    def act_loads(bufoff, act=act, rot=False):
        for ks in range(16):
            for rb in range(2):
                with k.atomic():
                    if ks % 4 == 0:
                        k(f"s_add_u32 s{sT2+rb}, s{sACT+rb}, {f's{S_A + ks//4}' if rot else bufoff + ks*1024}")
                    k.vmem(f"buffer_load_dwordx4 {vr(act(ks,rb),4)}, v{vL16}, {srd(S_WS)}, s{sT2+rb} offen offset:{(ks%4)*1024} sc1",
                           ("act", ks, rb))

    def stat_loads(stoff, STG=STG):
        k(f"s_add_u32 s{sT4}, s{sSTg}, {stoff}")
        for j in range(2):
            k.vmem(f"buffer_load_dwordx4 {vr(STG+4*j,4)}, v{vL16}, {srd(S_WS)}, s{sT4} offen offset:{j*1024} sc1", "stg")

    def stat_sum(STG=STG):
        lp, ok = k.label("L_sg"), k.label("L_sgok")
        k.vm_wait("stg")

        def chk():
            for j in range(8):
                k(f"v_xor_b32 v{STG+j}, s{sS8}, v{STG+j}")
            k(f"v_or3_b32 v{SUM0}, v{STG}, v{STG+1}, v{STG+2}")
            k(f"v_or3_b32 v{SUM0+1}, v{STG+3}, v{STG+4}, v{STG+5}")
            k(f"v_or3_b32 v{SUM0}, v{SUM0}, v{STG+6}, v{STG+7}")
            k(f"v_or_b32 v{SUM0}, v{SUM0}, v{SUM0+1}")
            k(f"v_and_b32 v{SUM0}, 0xff, v{SUM0}")
        chk()
        with k.atomic():
            k(f"v_cmp_ne_u32 vcc, 0, v{SUM0}")
            k(f"s_cbranch_vccnz {lp}")
            k(f"{ok}:")
        sv, k._rec = k._rec, None
        n0 = len(k.lines)
        k(f"{lp}:")
        for j in range(2):
            k(f"buffer_load_dwordx4 {vr(STG+4*j,4)}, v{vL16}, {srd(S_WS)}, s{sT4} offen offset:{j*1024} sc1")
        k("s_waitcnt vmcnt(0)")
        chk()
        k(f"v_cmp_ne_u32 vcc, 0, v{SUM0}")
        k(f"s_cbranch_vccz {ok}")
        k(f"s_sub_u32 s{sBUD}, s{sBUD}, 1")
        k(f"s_cbranch_scc0 {lp}")
        k(f"s_mov_b32 s{sBUD}, 0")
        k(f"s_branch {ok}")
        k.tailcode += k.lines[n0:]
        del k.lines[n0:]
        k._rec = sv
        for j in range(4):
            k(f"v_add_f32 v{SUM0+j}, v{STG+j}, v{STG+4+j}")

    def mf2(acc, ks, sw, wait, first=None, act=act):
        return [(acc + 4 * rb, act(ks, rb), sw, (ks == 0) if first is None else first,
                 (("act", ks, 1) if ks else ("act", ks, rb)) if wait else None) for rb in range(2)]

    def wo_raw():
        with k.atomic():
            quad_lane(1024)
            k(f"s_lshl_b32 s{sD0}, s{sW}, 17")
            k(f"s_lshl_b32 s{sD1}, s{sCT}, 7")
            k(f"s_add_u32 s{sD0}, s{sD0}, s{sD1}")
            k(f"s_lshl_b32 s{sL0}, s{sW}, 14")
        for j in range(16):
            k.dma(S_WO, vDM, sD0, j * 8 * 1024, sL0, R0 + j * 1024, "wo")

    def w1c1_raw():
        with k.atomic():
            quad_lane(3584, tmp=vACT + 127)
            k(f"s_lshr_b32 s{sD0}, s{sC}, 2")
            k(f"s_mul_i32 s{sD0}, s{sD0}, 896")
            k(f"s_and_b32 s{sD1}, s{sC}, 3")
            k(f"s_lshl_b32 s{sD1}, s{sD1}, 7")
            k(f"s_add_u32 s{sD0}, s{sD0}, s{sD1}")
            k(f"s_mul_i32 s{sD1}, s{sW}, {64*3584}")
            k(f"s_add_u32 s{sD0}, s{sD0}, s{sD1}")
            k(f"s_lshl_b32 s{sL0}, s{sW}, 13")
        for half in range(2):
            for j in range(8):
                k.dma(S_W1, vDM, sD0, (half * 256 + j * 8) * 3584, sL0, R1 + half * 32768 + j * 1024, "w1a")

    def lin_dma(src, dst, n, tag, shared=False):
        for j in range(n):
            with k.atomic():
                if j == 0:
                    k(f"s_mul_i32 s{sL0}, s{sW}, {n*1024}")
                    k(f"s_add_u32 s{sD0}, s{sL0}, s{sPKB}")
                    if shared:
                        k(f"s_mul_i32 s{sD1}, s{sDH}, {8*PK_SZ}")
                        k(f"s_sub_u32 s{sD0}, s{sD0}, s{sD1}")
                if j % 4 == 0:
                    k(f"s_add_u32 m0, s{sL0}, {dst + j*1024}")
                    k(f"s_add_u32 s{sD1}, s{sD0}, {src + j*1024}")
                k.vmem(f"buffer_load_dwordx4 v{vL16}, {srd(S_WS)}, s{sD1} offen offset:{(j%4)*1024} sc1 lds", tag)

    def publish_x(bufoff, stoff, floff, pay_sc1):
        k(f"s_add_u32 s{sT1}, s{sTILE}, {bufoff}")
        k.stores([f"buffer_store_dwordx4 {vr(vRES+4*s,4)}, v{vL16}, {srd(S_WS)}, s{sT1} offen offset:{s*1024}" for s in range(2)], pay_sc1)
        a, b, c, d = vT0, vT1, vT2, vT3
        for j in range(4):
            r0, r1 = vRES + j, vRES + 4 + j
            if j == 0:
                k(f"v_mov_b32 v{vWB+9}, {BF1}")
                k(f"v_dot2_f32_bf16 v{b}, v{r0}, v{r0}, 0")
                k(f"v_dot2_f32_bf16 v{d}, v{r1}, v{r1}, 0")
                k(f"v_dot2_f32_bf16 v{a}, v{vWB+9}, v{r0}, 0")
                k(f"v_dot2_f32_bf16 v{c}, v{vWB+9}, v{r1}, 0")
            else:
                k(f"v_dot2_f32_bf16 v{b}, v{r0}, v{r0}, v{b}")
                k(f"v_dot2_f32_bf16 v{d}, v{r1}, v{r1}, v{d}")
                k(f"v_dot2_f32_bf16 v{a}, v{vWB+9}, v{r0}, v{a}")
                k(f"v_dot2_f32_bf16 v{c}, v{vWB+9}, v{r1}, v{c}")
        k.get(vWB + 8, cSTO)
        k(f"""
        s_add_u32 s{sT3}, s{sSTo}, {stoff}
        v_add_f32 v{b}, v{b}, v{d}
        v_add_f32 v{a}, v{a}, v{c}
        s_nop 1
        v_permlane16_swap_b32 v{a}, v{b}
        v_add_f32 v{a}, v{a}, v{b}
        v_mov_b32 v{b}, v{a}
        s_nop 1
        v_permlane32_swap_b32 v{a}, v{b}
        v_add_f32 v{c}, v{a}, v{b}
        s_add_u32 s{sS8}, s{sS8}, 1
        s_and_b32 s{sS8}, s{sS8}, 0xff
        v_and_b32 v{c}, 0xffffff00, v{c}
        v_or_b32 v{c}, s{sS8}, v{c}
        s_mov_b32 exec_hi, 0
        """)
        k.stores([f"buffer_store_dword v{c}, v{vWB+8}, {srd(S_WS)}, s{sT3} offen"], False, "sts" if o.get("sto", 1) else "st")
        k("s_mov_b64 exec, -1")
        k.poll_prep(15)

    def unpack_res(dst):
        for f in range(4):
            for p in range(2):
                r = vRES + 2*f + p
                k(f"v_lshlrev_b32 v{dst+4*f+2*p}, 16, v{r}")
                k(f"v_and_b32 v{dst+4*f+2*p+1}, 0xffff0000, v{r}")

    def misc_l1():
        k(f"""
        s_add_u32 s{sT2}, s{sTAG}, s{sXCC}
        s_add_u32 s{sT2}, s{sT2}, 2
        v_mov_b32 v{vT1}, s{sT2}
        s_lshl4_add_u32 s{sT2}, s{sG}, s{sC}
        s_lshl_b32 s{sT2}, s{sT2}, 7
        s_add_u32 s{sT2}, s{sT2}, {WS_XID}
        """)
        with k.atomic():
            k(f"s_cmp_lg_u32 s{sW}, 0")
            k(f"s_cselect_b32 s{sT2}, {OOB}, s{sT2}")
            k("s_mov_b64 exec, 1")
            k.vmem(f"buffer_store_dword v{vT1}, v{vL16}, {srd(S_WS)}, s{sT2} offen sc1", "xid")
            k("s_mov_b64 exec, -1")

    def res_load():
        k.get(vT0, cOUT)
        for s_ in range(2):
            k.vmem(f"buffer_load_dwordx4 {vr(vRES+4*s_,4)}, v{vT0}, {srd(S_X)}, 0 offen offset:{64*s_}", "res")

    def touch(kind, vSP=vSP):
        with k.atomic():
            k(f"s_lshl2_add_u32 s{sD3}, s{sC}, s{sW}")
            sD2 = sD3
            if kind == "h":
                k(f"s_mul_i32 s{sD2}, s{sD2}, 7168")
                k(f"s_add_u32 s{sD2}, s{sD2}, s{sGB}")
                k(f"s_add_u32 s{sD2}, s{sD2}, {G_H}")
                k(f"v_lshlrev_b32 v{vSP}, 7, v{vLANE}")
                k("s_mov_b32 exec_hi, 0xffffff")
                k.vmem(f"buffer_load_dword a{aDUM}, v{vSP}, {srd(S_WS)}, s{sD2} offen sc1", "touch")
                k("s_mov_b32 exec_hi, -1")
            else:
                k(f"v_lshlrev_b32 v{vSP}, 7, v{vLANE}")
                k(f"s_lshl_b32 s{sT5}, s{sD2}, 11")
                k(f"s_add_u32 s{sT5}, s{sT5}, s{sGB}")
                k(f"s_add_u32 s{sT5}, s{sT5}, {G_X1}")
                k("s_mov_b64 exec, 0xffff")
                k.vmem(f"buffer_load_dword a{aDUM}, v{vSP}, {srd(S_WS)}, s{sT5} offen sc1", "touch")
                k(f"s_lshl_b32 s{sD2}, s{sD2}, 7")
                k(f"s_add_u32 s{sD2}, s{sD2}, s{sGB}")
                k("s_mov_b64 exec, 1")
                k(f"s_add_u32 s{sD2}, s{sD2}, {G_ST1}")
                k.vmem(f"buffer_load_dword a{aDUM}, v{vSP}, {srd(S_WS)}, s{sD2} offen sc1", "touch")
                k("s_mov_b64 exec, -1")

    def touch_slots(first, n, va=vSP):
        with k.atomic():
            k(f"s_lshl2_add_u32 s{sD3}, s{sC}, s{sW}")
            k(f"v_lshlrev_b32 v{va}, 7, v{vLANE}")
            k(f"s_lshr_b32 s{sT5}, s{sD3}, 3")
            k(f"s_mul_i32 s{sT5}, s{sT5}, 57344")
            k(f"s_and_b32 s{sD3}, s{sD3}, 7")
            k(f"s_mul_i32 s{sD3}, s{sD3}, {n*128}")
            k(f"s_add_u32 s{sT5}, s{sT5}, s{sD3}")
            k(f"s_add_u32 s{sT5}, s{sT5}, s{sGB}")
            k(f"s_add_u32 s{sT5}, s{sT5}, {G_H + first*1024}")
            k(f"s_mov_b32 exec_lo, {(1 << min(n, 32)) - 1}")
            k(f"s_mov_b32 exec_hi, {(1 << max(n - 32, 0)) - 1}")
            k.vmem(f"buffer_load_dword a{aDUM}, v{va}, {srd(S_WS)}, s{sT5} offen sc1", "touch")
            k("s_mov_b64 exec, -1")

    def touches(code, va=vSP):
        if code & 1:
            touch("x", va)
        r = {0: None, 1: (0, 16), 2: (16, 8), 3: (0, 24), 4: (24, 32), 6: (16, 40), 7: (0, 56)}[code >> 1]
        if r:
            touch_slots(r[0], r[1], va)

    def packN_issue():
        with k.atomic():
            quad_lane(1024)
            k(f"""
            s_movk_i32 s{sD2}, 8192
            s_lshl_b32 s{sD0}, s{sG}, 15
            s_lshl_b32 s{sD1}, s{sCT}, 7
            s_add_u32 s{sD0}, s{sD0}, s{sD1}
            s_lshl_b32 s{sPDA}, s{sG}, 12
            s_add_u32 s{sPDA}, s{sPDA}, s{sPKB}
            s_add_u32 s{sPDA}, s{sPDA}, {PK_WO}
            s_lshl2_add_u32 s{sD1}, s{sDH}, s{sW}
            s_cmp_lg_u32 s{sD1}, 3
            s_cbranch_scc1 L_nskip
            """)
            for j in range(4):
                dma_raw(S_WO, j * 1024, j == 0)
            k("L_nskip:")

    def packN_finish(T):
        k(f"s_lshl2_add_u32 s{sD1}, s{sDH}, s{sW}")
        k(f"s_cmp_lg_u32 s{sD1}, 3")
        k("s_cbranch_scc1 L_nfskip")
        for f in range(4):
            k(f"v_add_u32 v{T+16+f}, {L_XST + 3*16384}, v{vQ0+f}")
        for f in range(4):
            for hh in range(2):
                k(f"ds_read_b64_tr_b16 {vr(T+4*f+2*hh,2)}, v{T+16+f} offset:{hh*2048}")
        k("s_waitcnt lgkmcnt(0)")
        for f in range(4):
            k(f"buffer_store_dwordx4 {vr(T+4*f,4)}, v{vL16}, {srd(S_WS)}, s{sPDA} offen offset:{f*1024} sc1")
        k("L_nfskip:")

    def pack_finish(T, base, shift, quad_if_3, tag="pk", sPDA=sPDA):
        lb, le = k.label("L_qb"), k.label("L_qe")
        k(f"s_lshl_b32 s{sT5}, s{sW}, {shift}")
        k(f"s_add_u32 s{sT5}, s{sT5}, {base}")
        k.vm_wait(tag)
        k.ds_all()
        k(f"s_cmp_eq_u32 s{sW}, 3")
        k(f"s_cbranch_scc{0 if quad_if_3 else 1} {lb}")
        for f in range(4):
            k(f"v_add_u32 v{T+16+f}, s{sT5}, v{vQ0+f}")
        for f in range(4):
            for hh in range(2):
                k(f"ds_read_b64_tr_b16 {vr(T+4*f+2*hh,2)}, v{T+16+f} offset:{hh*2048}")
        k("s_waitcnt lgkmcnt(0)")
        for f in range(4):
            k(f"buffer_store_dwordx4 {vr(T+4*f,4)}, v{vL16}, {srd(S_WS)}, s{sPDA} offen offset:{f*1024} sc1")
        k(f"s_branch {le}")
        k(f"{lb}:")
        k(f"v_add_u32 v{T+16}, s{sT5}, v{vTR0}")
        k(f"v_add_u32 v{T+17}, s{sT5}, v{vTR1}")
        k(f"v_lshl_add_u32 v{T+18}, v{vLANE}, 3, s{sT5}")
        for f in range(2):
            for hh in range(2):
                k(f"ds_read_b64_tr_b16 {vr(T+4*f+2*hh,2)}, v{T+16+f} offset:{hh*1024}")
        nf = 2 if quad_if_3 else 3
        if nf == 3:
            for hh in range(2):
                k(f"ds_read_b64_tr_b16 {vr(T+8+2*hh,2)}, v{T+18} offset:{2048+hh*512}")
        k("s_waitcnt lgkmcnt(0)")
        for f in range(nf):
            k(f"buffer_store_dwordx4 {vr(T+4*f,4)}, v{vL16}, {srd(S_WS)}, s{sPDA} offen offset:{f*1024} sc1")
        if nf == 3:
            k(f"buffer_load_dword a{aDUM}, v{vL16}, {srd(S_W1)}, s{S_W1+2} offen")
            nf = 4
        k(f"{le}:")
        k.vm_note(nf, "pst")

    def pack_flag(off=0):
        k(f"""
        s_lshl_b32 s{sT5}, s2, 7
        s_add_u32 s{sT5}, s{sT5}, {WS_PD + off}
        s_cmp_lg_u32 s{sW}, 0
        s_cselect_b32 s{sT5}, {OOB}, s{sT5}
        v_mov_b32 v{vT1}, s{sTAG}
        s_mov_b64 exec, 1
        """)
        k.vmem(f"buffer_store_dword v{vT1}, v{vL16}, {srd(S_WS)}, s{sT5} offen sc1")
        k("s_mov_b64 exec, -1")

    def pack_check_issue(off, va, vd, sb):
        with k.atomic():
            k(f"v_and_b32 v{va}, 1, v{vLANE}")
            k(f"v_lshlrev_b32 v{va}, 7, v{va}")
            k(f"v_lshrrev_b32 v{vd}, 1, v{vLANE}")
            if o.get("sub", 0):
                k(f"v_and_b32 v{vd}, 1, v{vd}")
                k(f"s_lshl2_add_u32 s{sT5}, s{sC}, s{sW}")
                k(f"s_lshl_b32 s{sT5}, s{sT5}, 1")
            else:
                k(f"v_and_b32 v{vd}, 7, v{vd}")
                k(f"s_lshl_b32 s{sT5}, s{sCT if off else sC}, 3")
            k(f"v_add3_u32 v{va}, v{va}, v{vd}, s{sT5}")
            if WP:
                k("s_mov_b32 exec_lo, 0")
                k(f"v_and_b32 v{va}, 0xbf, v{va}")
                k("s_mov_b32 exec_lo, -1")
            k(f"v_min_u32 v{vd}, 29, v{vLANE}")
            k(f"s_mul_i32 s{sT5}, s{sW}, 56")
            k(f"s_lshr_b32 s{sb}, s{sCT}, 1")
            k(f"s_add_u32 s{sT5}, s{sT5}, s{sb}")
            k(f"s_sub_u32 s{sT5}, s{sT5}, 64")
            k(f"v_lshl_add_u32 v{vd}, v{vd}, 2, s{sT5}")
            k("s_mov_b32 vcc_lo, 0xffff")
            k("s_mov_b32 vcc_hi, -1")
            k(f"s_mov_b32 s{sb}, {WS_PD + off}")
            k(f"v_cndmask_b32 v{va}, v{vd}, v{va}, vcc")
            k(f"v_lshlrev_b32 v{va}, 7, v{va}")
            k.vmem(f"buffer_load_dword v{vd}, v{va}, {srd(S_WS)}, s{sb} offen sc1", "pc")

    def pack_check(va, vd, sb):
        lp, ok = k.label("L_pc"), k.label("L_pcok")
        with k.atomic():
            k.vm_wait("pc")
            k(f"{lp}:")
            k(f"v_cmp_ne_u32 vcc, s{sTAG}, v{vd}")
            k(f"s_cbranch_vccz {ok}")
            if o.get("bo", 0):
                k(f"s_sleep {o['bo']}")
            if o.get("fl", 0):
                k("s_mov_b64 exec, vcc")
            k(f"buffer_load_dword v{vd}, v{va}, {srd(S_WS)}, s{sb} offen sc1")
            if o.get("fl", 0):
                k("s_mov_b64 exec, -1")
            k("s_waitcnt vmcnt(0)")
            k(f"s_sub_u32 s{sBUD}, s{sBUD}, 1")
            k(f"s_cbranch_scc0 {lp}")
            k(f"s_mov_b32 s{sBUD}, 0")
            k(f"{ok}:")

    aPK = 128

    def park_addr(va, base, shift):
        k(f"v_bfe_u32 v{va}, v{vLANE}, 4, 1")
        k(f"v_lshlrev_b32 v{va}, 10, v{va}")
        k(f"v_lshrrev_b32 v{va+1}, 5, v{vLANE}")
        k(f"v_mul_u32_u24 v{va+1}, 0x120, v{va+1}")
        k(f"v_add_u32 v{va}, v{va}, v{va+1}")
        k(f"v_and_b32 v{va+1}, 0xd8, v{vTR0}")
        k(f"s_lshl_b32 s{sT5}, s{sW}, {shift}")
        k(f"s_add_u32 s{sT5}, s{sT5}, {base}")
        k(f"v_add3_u32 v{va}, v{va}, v{va+1}, s{sT5}")
        k(f"v_xor_b32 v{va+1}, 32, v{va}")

    def park_kv(va):
        for r in range(4):
            for blk in range(4):
                for hh in range(2):
                    k.lds(f"ds_read_b64_tr_b16 {ar(aPK + 16*(r ^ 2) + 4*blk + 2*hh, 2)}, v{va + (blk & 1)} offset:{r*16384 + (blk >> 1)*2048 + hh*512}")

    def park_q(va):
        for r in range(4):
            for b in range(2):
                for hh in range(2):
                    k.lds(f"ds_read_b64_tr_b16 {ar(aPK + 64 + 8*r + 4*b + 2*hh, 2)}, v{va + b} offset:{r*8192 + hh*512}")

    def unpark(va, js):
        for j in js:
            with k.atomic():
                if j in (js[0], 16):
                    k(f"s_lshl_b32 s{sT5}, s{sW}, {11 if j >= 16 else 12}")
                    if j >= 16:
                        k(f"s_add_u32 s{sT5}, s{sT5}, {R1}")
                    k(f"v_add_u32 v{va}, s{sT5}, v{vL16}")
                off = ((j - 16) // 2) * 8192 + (j % 2) * 1024 if j >= 16 else ((j // 4) ^ 2) * 16384 + (j % 4) * 1024
                k.lds(f"ds_write_b128 v{va}, {ar(aPK + 4*j, 4)} offset:{off}", ("up", j // 4))

    def rot_setup():
        with k.atomic():
            k(f"s_lshr_b32 s{sD0}, s{sC}, 1")
            k(f"s_xor_b32 s{sD0}, s{sD0}, s{sG}")
            k(f"s_and_b32 s{sD0}, s{sD0}, 1")
            k(f"s_and_b32 s{sD1}, s{sC}, 1")
            k(f"s_lshl1_add_u32 s{sD0}, s{sD0}, s{sD1}")
            for q in range(4):
                k(f"s_add_u32 s{sD1}, s{sD0}, {q}")
                k(f"s_and_b32 s{sD1}, s{sD1}, 3")
                k(f"s_lshl_b32 s{sD1}, s{sD1}, 12")
                k(f"s_add_u32 s{S_A+q}, s{sD1}, {G_X2}")

    def wq_raw():
        k(f"s_lshl_b32 s{sL1}, s{sW}, 11")
        with k.atomic():
            k(f"v_and_b32 v{vT2}, 3, v{vP}")
            k(f"v_lshrrev_b32 v{vDM}, 4, v{vLANE}")
            k(f"v_lshl_add_u32 v{vT2}, v{vDM}, 3, v{vT2}")
            k(f"s_movk_i32 s{sD3}, 3072")
            k(f"v_mad_u32_u24 v{vDM}, v{vT2}, s{sD3}, v{vCH}")
        for r in range(4):
            for hh in range(2):
                k.dma(S_WQKV, vDM, sRB + r, hh * 4 * 3072, sL1, R1 + r * 8192 + hh * 1024, "wq")

    def async_check(tag, soff, imm):
        ok = k.label("L_aok")
        with k.atomic():
            k.vm_wait(tag)
            k(f"v_cmp_ne_u32 vcc, s{sTAG}, v{vT0}")
            k(f"s_cbranch_vccz {ok}")
            k.save_vm()
            k.poll(soff, imm, False)
            k.restore_vm()
            k(f"{ok}:")

    CSK = vT0
    gA = None
    for layer in range(1 if o.get("one") else 2):
        L1 = layer == 0
        sc = o.get("sc1", 0x04)
        psc = lambda i: bool(sc >> (4 * layer + i) & 1)
        PRE = o.get("pre", 8)
        k.fast = ["", " nt", " sc0", " sc0 nt"][o.get("ntst", 4) >> (2 * layer) & 3]

        def w2t_loads():
            for j in range(56):
                with k.atomic():
                    if j == 0:
                        k(f"s_lshl2_add_u32 s{sPDB}, s{sCT}, s{sW}")
                        k(f"s_mul_i32 s{sPDB}, s{sPDB}, 57344")
                        k(f"s_add_u32 s{sPDB}, s{sPDB}, {WS_W2T}")
                    if j % 4 == 0:
                        k(f"s_add_u32 s{sJ0}, s{sPDB}, {j*1024}")
                    k.vmem(f"buffer_load_dwordx4 {ar(4*j,4)}, v{vL16}, {srd(S_WS)}, s{sJ0} offen offset:{(j%4)*1024} sc1", ("w2t", j // 4))

        w2 = k.rec(w2t_loads) if L1 else []

        def takew2(name, dflt, keep=24):
            nonlocal w2
            n = min(o.get(name, dflt), len(w2) - keep) if L1 else 0
            r, w2 = w2[:n], w2[n:]
            return r

        def kv_consts():
            k.get(vPQ, cCSA)
            k.lds(f"ds_read2_b32 {vr(CSK,2)}, v{vPQ} offset0:0 offset1:16", "cs")
            k.lds(f"ds_read2_b32 {vr(CSK+2,2)}, v{vPQ} offset0:32 offset1:48", "cs")
        if L1:
            CSA = vACC + 32
            k(f"s_and_b32 s{sT0}, s{sW}, 1")
            k(f"s_lshl_b32 s{sT0}, s{sT0}, 5")
            k(f"v_xor_b32 v{vPQ+3}, s{sT0}, v{vTR0}")
            k(f"s_lshr_b32 s{sT0}, s{sW}, 1")
            k(f"s_lshl_b32 s{sT0}, s{sT0}, 11")
            k(f"v_add_u32 v{vPQ+2}, s{sT0}, v{vPQ+3}")
            k(f"s_lshl_b32 s{sT1}, s{sW}, 5")
            k(f"v_xor_b32 v{vPQ+6}, s{sT1}, v{vQ0}")

            def wo_pack():
                T_ = vACT + 96
                for hh in range(2):
                    k.lds(f"ds_read_b64_tr_b16 {vr(T_+2*hh,2)}, v{vPQ+6} offset:{R0 + 49152 + hh*2048}", "wp")
                k.play([lambda: None] * 2)
                with k.atomic():
                    k.ds_wait("wp")
                    k.vmem(f"buffer_store_dwordx4 {vr(T_,4)}, v{vL16}, {srd(S_WS)}, s{sPDA} offen sc1", "pst")
            if o.get("diags"): k.stamp("setup")
            PADP = o.get("padp", 0)
            if W0P == 1:
                k.play(w0_[nw0:])
            if PADP == 1:
                k("PADCALL")
            if W0P == 2:
                k.play(w0_[nw0:])
            if o.get("diags"): k.stamp("w0b")
            own_stats()
            if o.get("diags"): k.stamp("own")
            nx0 = o.get("nx0", 0)
            xslot(0, range(nx0))
            if o.get("pads", 2048) and PADP == 0:
                k("PADCALL")
            if o.get("diags"): k.stamp("pad")
            if o.get("pf1", 0):
                pack_finish(vACT + 64, R1, 12, False, "pu", sPDB)
            xslot(0, range(nx0, 8)); xslot(1, range(o.get("x1pre", 4)))
            if o.get("diags"): k.stamp("xiss")
            if UF == 1 and not o.get("pf1", 0):
                pack_finish(vACT + 64, R1, 12, False, "pu", sPDB)
            if o.get("diags"): k.stamp("pfin")
            xread(0)
            def rnd_begin(r):
                k.vm_wait(("wkv", r))
                k.barrier(True)
                fr = []
                for ks in range(4 * r, 4 * r + 4):
                    fr.append(dict(addr=vPQ + 2, offs=(R0 + ks * 4096, R0 + ks * 4096 + 1024), mf=[(None, None, False, ks == 0, None)]))
                for ks in range(4 * r, 4 * r + 4):
                    for pr in range(2):
                        for b in range(2):
                            base = R0 + ks * 4096 + pr * 2048
                            fr.append(dict(addr=(vTR0, vTR1)[b], offs=(base, base + 1024), mf=mf2(vACC + 16 * pr + 8 * b, ks, False, False)))
                return k.gemm_begin(fr)
            wq = k.rec(wq_raw)
            xslot(1, range(o.get("x1pre", 4), 8))
            g = rnd_begin(0)
            k.stamp("x0")
            f = {}
            if WP:
                w1_ = k.rec(lambda: wkv_raw(1))
                spread(f, w1_[:2], 0, 2); spread(f, k.rec(wo_pack), 0, 1); spread(f, w1_[2:] + k.rec(lambda: xslot(2)), 6, 3)
            else:
                spread(f, k.rec(lambda: (wkv_raw(1), xslot(2))), 0, 3)
            spread(f, k.rec(lambda: xread(1)), 30, 1, 2); k.gemm_run(g, f)
            k.stamp("r0")
            g = rnd_begin(1)
            f = {}
            if UF == 1:
                spread(f, k.rec(pack_flag), 1, 0)
            spread(f, k.rec(lambda: (wkv_raw(2), xslot(3))), 0, 3); spread(f, k.rec(lambda: xread(2)), 31, 1, 2); k.gemm_run(g, f)
            k.stamp("r1")
            g = rnd_begin(2)
            nq = o.get("nq", 6)
            if UF == 2:
                pu_ = k.rec(lambda: packU_issue(L_XST + 4096, sD0, sD1, sD2, sD3, sJ0, vDM, sPDB, 14))
                wq = pu_ + wq if o.get("pufirst", 1) else wq + pu_
            f = {}; spread(f, k.rec(lambda: (wkv_raw(3), st0_issue())) + wq[:nq], 0, 3); spread(f, k.rec(lambda: xread(3)), 31, 1, 2); k.gemm_run(g, f)
            k.stamp("r2")
            g = rnd_begin(3)
            f = {}
            spread(f, k.rec(st0_use), 0, 1)
            spread(f, k.rec(lambda: cs_put(0, sW)), 8, 0)
            spread(f, k.rec(stats_b), 10, 1)
            spread(f, k.rec(stats_scale), 24, 1)
            spread(f, k.rec(lambda: park_addr(vRES + 2, R0, 12)), 15, 0)
            pn = k.rec(lambda: (packN_issue(), k.vmem(f"buffer_load_dword a{aDUM}, v{vL16}, {srd(S_W1)}, s{S_W1+2} offen", "pn")))
            pci = k.rec(lambda: pack_check_issue(0, vRES, vRES + 1, sPDB)) if UF == 1 else []
            if o.get("w2e", 8):
                spread(f, wq[nq:] + ([] if o.get("pcl", 0) else pci) + k.rec(lambda: touches(o.get("Tr", 0), vT3)), 1, o.get("r3s", 5))
            else:
                spread(f, wq[nq:] + pn + pci, 1, o.get("r3s", 5))
            bg = []
            k.gemm_run(g, f)
            k.stamp("A.kv")
            k.barrier()
            kv_consts()
        else:
            k.poll_b(sFXp, G_FX2)
            k.stamp("A.poll")
            al = k.rec(lambda: act_loads(G_X2, ring, True))
            PA = o.get("prea", 4)
            k.play(al[:PA])
            k(f"s_add_u32 s{sTAG}, s{sTAG}, 1")
            fill = {}
            sl = k.rec(lambda: stat_loads(G_ST2))
            e = spread(fill, al[PA:12] + [lambda: k.play(sl[:2]), sl[2]], 0, 4)
            for i_ in range(12, 32):
                pos = max(12 * (i_ // 2 - 6) + 11 + 4 * (i_ & 1), e)
                spread(fill, [al[i_]], pos, 1)
                e = pos + 3
            e2 = spread(fill, k.rec(lambda: (stat_sum(), stats_finalize(True), stats_b())), 60, 1.3)
            e2 = spread(fill, k.rec(stats_scale), e2 + 6, 1.3)
            spread(fill, k.rec(kv_consts), e2, 1.3)
            spread(fill, k.rec(lambda: lin_dma(PK_WO + 32768, R2, 8, "wo", True)), e, o.get("wos", 5))
            if o.get("diagc"):
                for ix in (0, 23, 47, 95, 143):
                    spread(fill, k.rec(lambda: k.stamp(f"A.m{ix}", True)), ix, 0)
            k.gemm_run(gA, fill)
            k.stamp("A.kv")
            k("s_barrier")
            bg = []
        k("s_nop 2")
        k.get(vWB + 22, cKW1 if L1 else cKW)
        k.get(vWB + 23, cKR1 if L1 else cKR)
        k.ds_all()
        PK, PV, TMP = vPQ, vACC, vWB + 24
        KVA = vACC + 16

        def kv_epi():
            for h in range(2):
                for rb in range(2):
                    phi_block(vACC + 8*h + 4*rb, NM_B + 4*rb, CSK + h, RL_B + 4*rb, RS_B + 4*rb, PK + 4*h + 2*rb, TMP, "b")
            for h in range(2):
                for rb in range(2):
                    a = vACC + 16 + 8*h + 4*rb
                    c2, m = bcast(CSK + 2 + h, 1, 3)
                    for p in range(2):
                        k(f"v_pk_fma_f32 {vr(a+2*p,2)}, {vr(NM_B+4*rb+2*p,2)}, {c2}, {vr(a+2*p,2)}{m}")
                    for p in range(2):
                        k(f"v_pk_mul_f32 {vr(a+2*p,2)}, {vr(a+2*p,2)}, {vr(RS_B+4*rb+2*p,2)}")
                    for p in range(2):
                        k(f"v_cvt_pk_bf16_f32 v{PV+4*h+2*rb+p}, v{a+2*p}, v{a+2*p+1}")
                    if rb == 0:
                        k(f"v_mfma_f32_16x16x32_bf16 {vr(vACC+8+4*h,4)}, {vr(PK+4*h,4)}, {ar(aONES,4)}, 0")
                if h == 0:
                    pass
        if L1:
            we = takew2("w2e", 8)
            ke = mix(k.rec(kv_epi), k.rec(lambda: park_kv(vRES + 2)), 3)
            if o.get("pcl", 0):
                w2 = we + w2
                we = []
                touches(o.get("Te", 6), vWB + 20)
                k.play(ke[:o["pcl"]]); ke = ke[o["pcl"]:]
                k.play(pci)
            if we:
                c0 = o.get("w2c", 40)
                touches(o.get("Te", 6), vWB + 20)
                k.play(ke[:c0])
                pack_check(vRES, vRES + 1, sPDB)
                ke = mix(ke[c0:], we, (135 - c0) // len(we))
            k.play(ke)
        else:
            wod = k.rec(lambda: lin_dma(PK_WO, R1, 8, "wo", True))
            nwo = o.get("nwo", 0)
            k.play(mix(k.rec(kv_epi), wod[:nwo], 100 // max(nwo, 1))); wod = wod[nwo:]
        KRO = [0, 16384, 32768, 49152 if L1 else 36864]
        k.lds(f"ds_write_b128 v{vWB+22}, {vr(vACC+8,4)} offset:{KRO[2]}")
        for h in range(2):
            k(f"v_mfma_f32_16x16x32_bf16 {vr(KVA+4*h,4)}, {vr(PK+4*h,4)}, {vr(PV+4*h,4)}, 0")
        k.lds(f"ds_write_b128 v{vWB+22}, {vr(vACC+12,4)} offset:{KRO[3]}")
        k.get(vWB + 21, cKVS)
        k("s_nop 4")
        for h in range(2):
            k.lds(f"ds_write_b128 v{vWB+22}, {vr(KVA+4*h,4)} offset:{KRO[h]}")
        if L1 and UF == 1:
            k.vm_wait("wq")
        k.barrier()
        for s in range(4):
            k.lds(f"ds_read_b128 {vr(vWB+4*s,4)}, v{vWB+23} offset:{s*1024}", ("kr", s))
        KO = vACC + 32
        k.ds_wait(("kr", 1))
        for p in range(2):
            k(f"v_pk_add_f32 {vr(vWB+2*p,2)}, {vr(vWB+2*p,2)}, {vr(vWB+4+2*p,2)}")
        k.ds_wait(("kr", 3))
        for p in range(2):
            k(f"v_pk_add_f32 {vr(vWB+8+2*p,2)}, {vr(vWB+8+2*p,2)}, {vr(vWB+12+2*p,2)}")
        for p in range(2):
            k(f"v_pk_add_f32 {vr(KO+2*p,2)}, {vr(vWB+2*p,2)}, {vr(vWB+8+2*p,2)}")
        k(f"v_and_b32 v{KO}, 0xffffff00, v{KO}")
        k(f"v_or_b32 v{KO}, s{sT8}, v{KO}")
        k(f"s_mov_b64 exec, s[{sKM}:{sKM+1}]")
        k.vmem(f"buffer_store_dwordx4 {vr(KO,4)}, v{vWB+21}, {srd(S_WS)}, s{sKVP} offen sc1", "kvst")
        k("s_mov_b64 exec, -1")
        k.stamp("A.kvpub")
        fill = {}
        fr = []
        CSQ = vACC + 24

        def q_consts():
            k.get(vT0, cCSB)
            for h in range(2):
                k.lds(f"ds_read_b128 {vr(CSQ+4*h,4)}, v{vT0} offset:{(4+h)*64}")
        if L1:
            if UF == 1:
                if not o.get("w2e", 8) or o.get("pcl", 0):
                    pack_check(vRES, vRES + 1, sPDB)
            else:
                pack_finish(vWB, L_XST + 4096, 14, False, "pu", sPDB)
                k.vm_wait("pn")
                k("s_barrier")
            if not o.get("w2e", 8):
                packN_finish(vWB)
            park_addr(vPQ + 4, R1, 11)
            if o.get("diag"): k.stamp("q.pf")
            k(f"v_add_u32 v{vPQ}, {R1}, v{vTR0}")
            k(f"v_add_u32 v{vPQ+1}, {R1}, v{vTR1}")
            k(f"s_and_b32 s{sT0}, s{sW}, 1")
            k(f"s_lshl_b32 s{sT1}, s{sT0}, 5")
            k(f"v_xor_b32 v{vPQ+2}, s{sT1}, v{vPQ}")
            for j in range(16):
                fr.append(dict(addr=vPQ + 2, offs=(j * 2048, j * 2048 + 1024), mf=[(None, None, False, j == 0, None)]))
            for ks in range(16):
                for b in range(2):
                    fr.append(dict(addr=vPQ + b, offs=(ks * 2048, ks * 2048 + 1024), mf=mf2(vACC + 8 * b, ks, True, False)))
            wor = k.rec(lambda: lin_dma(PK_WO, R0, 16, "wo", True)) if WP else k.rec(wo_raw)
            e = spread(fill, bg + k.rec(res_load), 0, 1)
            if o.get("arm", 0):
                e = spread(fill, k.rec(lambda: arm(o.get("arm", 0))), e, 2)
            e = spread(fill, k.rec(lambda: touches(o.get("Tq", 0))), e, 1)
            e = spread(fill, wor, e, o.get("wors", 2))
            spread(fill, takew2("w2q", 8), e, 4)
            spread(fill, k.rec(lambda: park_q(vPQ + 4)), 20, 3)
            k.gemm(fr, fill)
            if o.get("diag"): k.stamp("q.mm")
            cs_put(4, sT0)
            if UF == 2:
                k.vm_wait("pst")
            k.barrier()
            if o.get("diag"): k.stamp("q.bar")
            q_consts()
            if UF == 2:
                pack_flag()
        else:
            q_consts()
        lp2, done2 = k.label("L_kp"), k.label("L_kd")
        SM = vWB + 8
        ZL = vACT + 32

        def kv_loads(track):
            ins = [(f"buffer_load_dwordx4 {vr(ZL,4)}, v{vT2}, {srd(S_WS)}, s{sKVC} offen sc1", "zl")]
            for j in range(8):
                ins.append((f"buffer_load_dwordx4 {vr(vACT+4*j,4)}, v{vL16}, {srd(S_WS)}, s{sKVC if j < 4 else sT2} offen offset:{(j%4)*1024} sc1", ("kv", j)))
            for i_, t_ in ins:
                if track:
                    k.vmem(i_, t_)
                else:
                    k(i_)
        if L1:
            w1a = k.rec(lambda: (lin_dma(PK_W1A, R1, 16, "w1a"), lin_dma(PK_W1B, R3, 6, "w1c2")))
        else:
            w1a = []
        k.get(vT2, cZL)
        k(f"s_add_u32 s{sT2}, s{sKVC}, 4096")
        kl = k.rec(lambda: kv_loads(True))
        QS = vACC if L1 else QA
        ph = k.rec(lambda: [phi_block(QS + 8*h + 4*rb, NM_A + rb, CSQ + 4*h, RL_A + rb, RS_A + rb, vPQ + 4*h + 2*rb, vWB, "a")
                            for h in range(2) for rb in range(2)])
        if L1:
            k.play(kl[:5])
            k.ds_all()
            if o.get("diag"): k.stamp("q.kl5")
            na = o.get("w1a0", 4) if UF == 1 else 0
            k.play(mix(ph, kl[5:] + w1a[:na], o.get("phr", 10)))
            w1a = w1a[na:]
        else:
            def unpark_w1():
                for j in range(16):
                    k.lds(f"ds_write_b128 v{vT3}, {vr(vPARK+4*j,4)} offset:{j*1024}")
            k(f"s_lshl_b32 s{sT5}, s{sW}, 14")
            k(f"v_add_u32 v{vT3}, s{sT5}, v{vL16}")
            uw = k.rec(unpark_w1)
            if late:
                nl = o.get("nul", 6)
                f = {}; spread(f, uw[:nl], 1, 2 * len(late) / max(nl, 1)); uw = uw[nl:]
                k.gemm(late, f)
                k("s_barrier")
                k("s_nop 3")
            k.play(wod[:4]); wod = wod[4:]
            k.ds_all()
            nu = o.get("nu", 16)
            k.play(mix(mix(ph, uw[:nu], 5), wod, 10))
            k.play(mix(kl, uw[nu:], 1))
        k.stamp("A.q")
        if L1:
            k("PADCALL1")
        k.get(vT1, cXW)
        k.get(vWB + 18, cZW)
        k.get(vWB + 16, cXR)
        k.get(vWB + 17, cZR)
        k(f"s_branch {lp2}_s")
        k(f"{lp2}:")
        if o.get("bk", 0):
            k(f"s_sleep {o['bk']}")
        kv_loads(False)
        k("s_waitcnt vmcnt(0)")
        k(f"{lp2}_s:")
        k.vm_wait("zl")
        k(f"""
        v_xor_b32 v{ZL}, s{sT8}, v{ZL}
        v_mov_b32 v{SM+4}, v{ZL}
        v_permlane32_swap_b32 v{ZL+2}, v{ZL+3}
        v_permlane32_swap_b32 v{ZL}, v{ZL+1}
        v_add_f32 v{ZL}, v{ZL}, v{ZL+1}
        v_add_f32 v{ZL+2}, v{ZL+2}, v{ZL+3}
        s_nop 1
        v_permlane16_swap_b32 v{ZL}, v{ZL+2}
        v_add_f32 v{ZL}, v{ZL}, v{ZL+2}
        s_nop 1
        v_add_f32_dpp v{ZL}, v{ZL}, v{ZL} row_ror:4 row_mask:0xf bank_mask:0xf
        s_nop 1
        v_add_f32_dpp v{ZL}, v{ZL}, v{ZL} row_ror:8 row_mask:0xf bank_mask:0xf
        v_cvt_pk_bf16_f32 v{ZL}, v{ZL}, v{ZL}
        ds_write_b16 v{vWB+18}, v{ZL}
        """)
        for j in range(0, 8, 2):
            a, b = vACT + 4*j, vACT + 4*j + 4
            k.vm_wait(("kv", j + 1))
            k(f"v_xor_b32 v{a}, s{sT8}, v{a}")
            k(f"v_xor_b32 v{b}, s{sT8}, v{b}")
            k(f"v_or3_b32 v{SM+4}, v{SM+4}, v{a}, v{b}")
            if j == 0:
                for p in range(2):
                    k(f"v_pk_add_f32 {vr(SM+2*p,2)}, {vr(a+2*p,2)}, {vr(b+2*p,2)}")
            else:
                for p in range(2):
                    k(f"v_pk_add_f32 {vr(a+2*p,2)}, {vr(a+2*p,2)}, {vr(b+2*p,2)}")
                for p in range(2):
                    k(f"v_pk_add_f32 {vr(SM+2*p,2)}, {vr(SM+2*p,2)}, {vr(a+2*p,2)}")
        k(f"""
        ds_write_b128 v{vT1}, {vr(SM,4)}
        v_and_b32 v{SM+4}, 0xff, v{SM+4}
        v_cmp_ne_u32 vcc, 0, v{SM+4}
        s_cbranch_vccz {done2}
        s_waitcnt lgkmcnt(0)
        s_sub_u32 s{sBUD}, s{sBUD}, 4
        s_cbranch_scc0 {lp2}
        s_mov_b32 s{sBUD}, 0
        {done2}:
        """)
        k.stamp("A.kvget")
        if L1:
            touches(o.get("Tk", 0))
        n1 = o.get("w1a1", 4) if L1 and UF == 1 else 0
        if L1 and UF == 2:
            pack_check_issue(0, vTR0, vTR1, sPDB)
        k.play(w1a[:n1]); w1a = w1a[n1:]
        k.barrier(True)
        for h in range(2):
            k.lds(f"ds_read_b64 {vr(vWB+4*h+2,2)}, v{vWB+17} offset:{h*32}", "zf")
        for j in range(4):
            k.lds(f"ds_read_b128 {vr(vACT+4*j,4)}, v{vWB+16} offset:{1024*j}")
        k.ds_wait("zf")
        OA = vACC + 16
        for rb in range(2):
            for h in range(2):
                d = OA + 16*rb + 8*h
                k(f"v_mfma_f32_16x16x16_bf16 {vr(d+4,4)}, {vr(vWB+4*h+2,2)}, {vr(vPQ+4*h+2*rb,2)}, 0")
        k.ds_all()
        for h in range(2):
            for p in range(2):
                k(f"v_pk_add_f32 {vr(vACT+8*h+2*p,2)}, {vr(vACT+8*h+2*p,2)}, {vr(vACT+8*h+4+2*p,2)}")
        for h in range(2):
            for p in range(2):
                k(f"v_cvt_pk_bf16_f32 v{vWB+4*h+p}, v{vACT+8*h+2*p}, v{vACT+8*h+2*p+1}")
        for rb in range(2):
            for h in range(2):
                d = OA + 16*rb + 8*h
                k(f"v_add_f32 v{d+4}, s{sEPS}, v{d+4}")
        for rb in range(2):
            for h in range(2):
                d = OA + 16*rb + 8*h
                k(f"v_mfma_f32_16x16x16_bf16 {vr(d,4)}, {vr(vWB+4*h,2)}, {vr(vPQ+4*h+2*rb,2)}, 0")
        for rb in range(2):
            for h in range(2):
                d = OA + 16*rb + 8*h
                k(f"v_rcp_f32 v{d+4}, v{d+4}")
        k("s_nop 1")
        for rb in range(2):
            for h in range(2):
                d = OA + 16*rb + 8*h
                for p in range(2):
                    k(f"v_pk_mul_f32 {vr(d+2*p,2)}, {vr(d+2*p,2)}, {vr(d+4,2)} op_sel_hi:[1,0]")
                for p in range(2):
                    k(f"v_cvt_pk_bf16_f32 v{vPQ+4*rb+2*h+p}, v{d+2*p}, v{d+2*p+1}")
        k.stores([f"buffer_store_dwordx4 {vr(vPQ+4*rb,4)}, v{vL16}, {srd(S_WS)}, s{sOST+rb} offen" for rb in range(2)], psc(0))
        nb = o.get("w1a_pre1", 6) if L1 else o.get("w1a_pre", 0)
        if L1 and UF == 2:
            pack_check(vTR0, vTR1, sPDB)
        if L1:
            touches(o.get("To", 0))
        k.play(w1a[:nb])
        if L1:
            for s_ in range(2):
                for p in range(2):
                    k(f"v_permlane16_swap_b32 v{vRES+4*s_+p}, v{vRES+4*s_+2+p}")
        urs = k.rec(lambda: unpack_res(vACC))
        fr = []
        for ks in range(16):
            for f in range(4):
                mf = [(vACC + 4 * f, vACT + 4 * ks, True, False, ("act", ks))]
                if L1 and WP:
                    fr.append(dict(addr=vL16, offs=(R0 + ks * 4096 + f * 1024,), mf=mf))
                elif L1:
                    fr.append(dict(addr=vQ0 + f, offs=(R0 + ks * 4096, R0 + ks * 4096 + 2048), mf=mf))
                else:
                    fr.append(dict(addr=vTR0, offs=(ks * 4096 + f * 1024,), mf=mf))
        if L1:
            k("PADCALL2")
        k.poll_prep(15)
        k.flag(sFOo, G_FO)
        k.poll_a(sFOp, G_FO)
        g = k.gemm_begin(fr, 7)
        k.play(urs)
        k.stamp("A.opub")
        k.poll_b(sFOp, G_FO)
        k.stamp("B.poll")

        def b_loads():
            for ks in range(16):
                with k.atomic():
                    if ks % 4 == 0:
                        k(f"s_add_u32 s{sT2}, s{sBACT}, {G_O + ks*1024}")
                    k.vmem(f"buffer_load_dwordx4 {vr(vACT+4*ks,4)}, v{vL16}, {srd(S_WS)}, s{sT2} offen offset:{(ks%4)*1024} sc1", ("act", ks))
        bl = k.rec(b_loads)
        PB = o.get("preb", PRE)
        k.play(bl[:PB])
        fill = {}
        e = spread(fill, bl[PB:], 0, 3)
        if L1:
            e = spread(fill, k.rec(lambda: touches(o.get("Ta", 0))), e, 1)
        e = spread(fill, w1a[nb:], e, o.get("w1st", 3))
        if L1:
            e = spread(fill, k.rec(lambda: touches(o.get("Tb", 1))), e, 1)
        spread(fill, takew2("w2b", 0), e, 4)
        k.gemm_run(g, fill)
        k.stamp("B.mm")
        k(f"v_add_u32 v{vTR1}, {R1}, v{vL16}")
        k("s_nop 6")
        for f in range(4):
            for p in range(2):
                k(f"v_cvt_pk_bf16_f32 v{vRES+2*f+p}, v{vACC+4*f+2*p}, v{vACC+4*f+2*p+1}")
        publish_x(G_X1, G_ST1, G_FX1, psc(1))
        k.play(takew2("w2x", 0))
        k.flag(sFXo, G_FX1)
        if not L1:
            k.poll_a(sFXp, G_FX1)
        k.stamp("B.pub")
        if L1 and o.get("w2e", 8) and not WP:
            k(f"s_lshl2_add_u32 s{sD1}, s{sDH}, s{sW}")
            k(f"s_cmp_lg_u32 s{sD1}, 3")
            k("s_cbranch_scc1 L_nfskip")
            k(f"s_lshl_b32 s{sT5}, s{sG}, 12")
            for f in range(4):
                k(f"v_add_u32 v{vWB+16+f}, s{sT5}, v{vQ0+f}")
            for f in range(4):
                for hh in range(2):
                    k(f"ds_read_b64_tr_b16 {vr(vACC+4*f+2*hh,2)}, v{vWB+16+f} offset:{hh*2048}")
            k(f"s_add_u32 s{sT5}, s{sT5}, s{sPKB}")
            k(f"s_add_u32 s{sT5}, s{sT5}, {PK_WO}")
            k("s_waitcnt lgkmcnt(0)")
            for f in range(4):
                k(f"buffer_store_dwordx4 {vr(vACC+4*f,4)}, v{vL16}, {srd(S_WS)}, s{sT5} offen offset:{f*1024} sc1")
            k("L_nfskip:")
        k("s_barrier")
        w1c2 = k.rec(lambda: lin_dma(PK_W1B + 24576, R0 if L1 else R1, 6, "w1c2"))
        if L1 and not o.get("w2e", 8):
            pack_flag(0x8000)
        nc = o.get("w1c2_pre1", 0) if L1 else o.get("w1c2_pre", 0)
        k.play(w1c2[:nc])
        EU = o.get("eu", 8)
        if L1:
            eup = k.rec(lambda: unpark(vPQ + 1, list(range(EU)))) if EU else []
            k(f"s_lshl_b32 s{sT2}, s{sW}, 10")
            k(f"v_add_u32 v{vPQ}, s{sT2}, v{vTR1}")
            fr = []
            for j in range(16):
                fr.append(dict(addr=vPQ, offs=(j * 4096,), mf=[(None, None, False, j == 0, None)]))
            k.gemm(fr, D=7)
            k.play(eup)
            k("s_nop 5")
            cs_put(6, sW)
        C2 = vACC + 32
        vC1, vC2, vCc, vCd = (vTR1 if L1 else vL16), vDM, vP, vCH
        k(f"v_add_u32 v{vC2}, {R3}, v{vL16}")
        if L1:
            k(f"s_min_u32 s{sPDA}, s{sW}, 2")
            k(f"s_lshl_b32 s{sT2}, s{sPDA}, 10")
            k(f"v_add_u32 v{vCd}, s{sT2}, v{vL16}")
            k(f"v_add_u32 v{vCc}, {R3}, v{vCd}")
        NX = o.get("nx1", 0) if L1 else o.get("nx", 0)
        INIT2 = not L1 and NX == 0
        f2 = []
        fcs = [dict(addr=vCc if ks < 8 else vCd, offs=((ks % 8) * 3072,), mf=[(None, None, False, ks == 0, None)], late=ks >= 8, cs=True) for ks in range(16)]
        for ks in range(16):
            if L1 and ks in (8, 9, 10, 11):
                f2 += fcs[8 + 2 * (ks - 8):10 + 2 * (ks - 8)]
            for b in range(3):
                f2.append(dict(addr=vC2 if ks < 8 else vL16 if L1 else vTR1, offs=((ks % 8) * 3072 + b * 1024,),
                               mf=mf2(C2 + 8 * b, ks, True, False, False if INIT2 else None), late=ks >= 8))
        fr = []
        XS0 = o.get("xs0", 2)
        for ks in range(16):
            if L1 and ks in (4, 6, 8, 10):
                fr += fcs[ks - 4:ks - 2]
            if ks >= XS0:
                n_ = (NX * (ks - XS0 + 1)) // (16 - XS0) - (NX * (ks - XS0)) // (16 - XS0)
                fr += f2[:n_]; f2 = f2[n_:]
            for f in range(4):
                fr.append(dict(addr=vC1, offs=(ks * 4096 + f * 1024,), mf=mf2(vACC + 8 * f, ks, True, True)))
        M1 = sum(len(f["mf"]) for f in fr)
        fr += f2
        NM = sum(len(f["mf"]) for f in fr)
        tl = [i for i, f in enumerate(fr) if f.get("late")][0]
        MB = sum(len(f["mf"]) for f in fr[:tl - 6]) - 4
        if L1:
            tc = [i for i, f in enumerate(fr) if f.get("cs")][-1]
            MC = sum(len(f["mf"]) for f in fr[:tc + 1])
        if L1:
            k.poll_a(sFXp, G_FX1)
        g = k.gemm_begin(fr)
        k.poll_b(sFXp, G_FX1)
        k.stamp("C.poll")
        CS1 = [vPQ, vPQ + 4, vACC + 56, vQ0]

        def c2_init():
            k.get(vT0, cCSB)
            for b in range(3):
                k.lds(f"ds_read_b128 {vr(C2+8*b+4,4)}, v{vT0} offset:{(10+b)*64}", "cs2")
            for _ in range(4):
                k.play([lambda: None])
            k.ds_wait("cs2")
            for b in range(3):
                for rb in range(2):
                    for j in range(4):
                        k(f"v_mul_f32 v{C2+8*b+4*rb+j}, v{C2+8*b+4+j}, v{NM_A+rb}")

        def relu_block(acc, cs, rb, dst):
            if cs is not None:
                for j in range(4):
                    k(f"v_fmac_f32 v{acc+j}, v{cs+j}, v{NM_A+rb}")
            for p in range(2):
                k(f"v_cvt_pk_bf16_f32 v{dst+p}, v{acc+2*p}, v{acc+2*p+1}")
            for p in range(2):
                k(f"v_pk_max_i16 v{dst+p}, v{dst+p}, 0")

        def cs1_reads():
            k.get(vT2, cCSB)
            for b in range(4):
                k.lds(f"ds_read_b128 {vr(CS1[b],4)}, v{vT2} offset:{(6+b)*64}", "cs")

        def epi1():
            k.ds_wait("cs")
            for s in range(2):
                for rb in range(2):
                    for b in range(2):
                        relu_block(vACC + 16*s + 8*b + 4*rb, CS1[2*s+b], rb, vACC + 16*s + 4*rb + 2*b)
                k.stores([f"buffer_store_dwordx4 {vr(vACC+16*s+4*rb,4)}, v{vL16}, {srd(S_WS)}, s{sH1+rb} offen offset:{s*1024}"
                          for rb in range(2)], psc(2))

        def d_setup():
            if L1:
                with k.atomic():
                    k(f"s_lshl_b32 s{sT1}, s{sW}, 13")
                    k(f"s_add_u32 s{sT1}, s{sT1}, s{sGB}")
                with k.atomic():
                    k(f"s_lshl_b32 s{sDK}, s{sW}, 11")
                    k(f"s_add_u32 s{sDK}, s{sDK}, {28*1024}")
                k(f"s_add_u32 s{sT1}, s{sT1}, {G_H + 24*1024}")
                for j in range(4):
                    with k.atomic():
                        k(f"s_add_u32 s{sT0}, s{sW}, {j}")
                        k(f"s_and_b32 s{sT0}, s{sT0}, 3")
                    with k.atomic():
                        k(f"s_lshl2_add_u32 s{sT0}, s{sDH}, s{sT0}")
                        k(f"s_mul_i32 s{sT0}, s{sT0}, 57344")
                    k(f"s_add_u32 s{sRB+j}, s{sT0}, s{sT1}")
            k.poll_prep(7)
        TD = 3 if L1 else o.get("td", 4)
        seq = [(ksl, j) for ksl in range(14 - TD) for j in range(4)] + [(ksl, j) for j in (1, 2, 3, 0) for ksl in range(14 - TD, 14)]
        hb = [0, 0, 0, 0]

        def hload(t):
            ksl, j = seq[t]
            with k.atomic():
                if ksl // 4 != hb[j]:
                    if ksl == 8:
                        k(f"s_sub_u32 s{sRB+j}, s{sRB+j}, s{sDK}")
                    else:
                        k(f"s_add_u32 s{sRB+j}, s{sRB+j}, 4096")
                    hb[j] += 1
                k.vmem(f"buffer_load_dwordx4 {vr(vACT+4*(t%16),4)}, v{vL16}, {srd(S_WS)}, s{sRB+j} offen offset:{(ksl%4)*1024} sc1", ("h", t))
        PC = o.get("prec", PRE)
        al = k.rec(lambda: act_loads(G_X1))
        k.play(al[:PC])
        fill = {}
        sl = k.rec(lambda: stat_loads(G_ST1, vPQ))
        SP = o.get("stp", 0)
        e = spread(fill, al[PC:PC+SP] + [lambda: k.play(sl[:2]), sl[2]] + al[PC+SP:], 0, o.get("cstep", 40) / 10)
        e2 = spread(fill, k.rec(lambda: (stat_sum(vPQ), stats_finalize(False))), 44, 0.9 if INIT2 else 1.3)
        if INIT2:
            spread(fill, k.rec(c2_init), e2 + 1, 0.95)
        if L1:
            spread(fill, k.rec(lambda: k("s_barrier")), 104, 0)
            if o.get("w2e", 8) and not WP:
                spread(fill, k.rec(lambda: pack_flag(0x8000)), 102, 0)
        e = spread(fill, w1c2[nc:], e, 3)
        if L1:
            e = spread(fill, k.rec(lambda: touches(o.get("Tc", 0), vT0)), e, 1)
        spread(fill, k.rec(cs1_reads), M1 - 9, 1)
        if o.get("diagc") and not L1:
            for ix in (0, 31, 63, 95, 127, 151, 175, 199):
                spread(fill, k.rec(lambda: k.stamp(f"C.m{ix}", True)), ix, 0)
        if o.get("diagd"):
            spread(fill, k.rec(lambda: k.stamp("C.mm1")), 127, 0)
        e1 = spread(fill, k.rec(epi1), M1 + 1, 1 / o.get("epr", 4))
        spread(fill, k.rec(lambda: (k.vm_wait("w1c2"), k("s_barrier"))), MB, 0)
        assert e < MB
        e3 = spread(fill, k.rec(d_setup), e1, 1)
        cs2r = k.rec(lambda: [k.lds(f"ds_read_b128 {vr(CS1[b],4)}, v{vT2} offset:{(10+b)*64}") for b in range(3)])
        if not L1 and not INIT2:
            spread(fill, cs2r, e3 + 2, 2)
        if L1:
            def cs2_put():
                k.get(vQ0, cCSA)
                k(f"s_lshl_b32 s{sT5}, s{sPDA}, 6")
                k(f"v_add_u32 v{vQ0}, s{sT5}, v{vQ0}")
                k.lds(f"ds_write_b32 v{vQ0}, a{aCS} offset:{10*64}", "csw")
            assert MC + 6 > e1
            spread(fill, k.rec(cs2_put), MC + 6, 0)
            spread(fill, k.rec(lambda: (k.ds_wait("csw"), k("s_barrier"))), MC + 14, 0)
            spread(fill, cs2r, MC + 16, 2)
        pf = min(e1 + (o.get("fl11", 50) if L1 else o.get("fl1", 20)), NM - 2)
        spread(fill, k.rec(lambda: k.flag(sFHo, G_FH)), pf, 1)
        NE = o.get("ne1", 0) if L1 else o.get("ne", 6)
        pp = NM - 1 if NE == 0 else NM - 3 * NE - o.get("ppd", 18)
        assert pp > pf
        spread(fill, k.rec(lambda: k.vmem(f"buffer_load_dword v{vT0}, v{vT3}, {srd(S_WS)}, s{sFHp} offen offset:{G_FH} sc1", "p1")), pp, 1)
        if NE:
            spread(fill, k.rec(lambda: async_check("p1", sFHp, G_FH)), NM - 3 * NE - 1, 1)
            spread(fill, k.rec(lambda: [hload(t) for t in range(NE)]), NM - 3 * NE, 3)
        if L1:
            wc = takew2("nw2", 24, 24 - EU)
            spread(fill, wc, e, (pp - 1 - e) / max(len(wc), 1))
        k.gemm_run(g, fill)
        k.stamp("C.mm2")
        HO = vWB + 16
        LA = o.get("dla1", 10) if L1 else o.get("dla", 10)
        k("s_nop 3")
        k.ds_all()
        epi2 = k.rec(lambda: [relu_block(C2 + 8*b + 4*rb, None if INIT2 else CS1[b], rb, HO + 8*rb + 2*b) for b in range(3) for rb in range(2)])
        h2sc = psc(2) and not o.get("h2plain", 1)
        its = []
        for rb in range(2):
            its.append(f"buffer_store_dwordx4 {vr(HO+8*rb,4)}, v{vL16}, {srd(S_WS)}, s{sH2+rb} offen")
            its.append(f"buffer_store_dwordx2 {vr(HO+8*rb+4,2)}, v{vL16}, {srd(S_WS)}, s{sH3+rb} offen")
        tail = []
        up = []
        if L1:
            def park_w1():
                with k.atomic():
                    k(f"s_lshl_b32 s{sT5}, s{sW}, 14")
                    k(f"s_add_u32 s{sT5}, s{sT5}, {R1}")
                    k(f"v_add_u32 v{vCH}, s{sT5}, v{vL16}")
                for j in range(0, 16, 2):
                    with k.atomic():
                        for jj in (j, j + 1):
                            k.lds(f"ds_read_b128 {vr(vPARK+4*jj,4)}, v{vCH} offset:{jj*1024}", "pw")
            u_ = k.rec(lambda: (rot_setup(), unpark(vP, list(range(EU, 24)))))
            bar = k.rec(lambda: (k.ds_wait("pw"), k("s_barrier")))
            up = k.rec(park_w1) + u_[:1] + [lambda: k.play(bar)] + u_[1:]
        if NE:
            n2 = o.get("ne2", 2)
            k.play(mix(epi2, k.rec(lambda: [hload(t) for t in range(NE, NE + n2)]), 10))
            k.stores(its, h2sc)
            nxt = NE + n2
            FL2 = o.get("fl2", 5)
        else:
            k.play(epi2)
            k.stores(its, h2sc)
            async_check("p1", sFHp, G_FH)
            for t in range(LA):
                hload(t)
                if len(w2) > 24 - EU and t % 2:
                    k.play(w2[:1]); w2 = w2[1:]
                k.play(up[:1]); up = up[1:]
            k.flag(sFHo, G_FH + 1024)
            nxt = LA
            FL2 = -1
        k.stamp("D.poll1")
        RSD = vPQ
        k.get(vPQ + 1, cRSD)
        k.lds(f"ds_read_b32 v{RSD}, v{vPQ+1}", "rsd")
        def red_addr():
            for j in range(4):
                if L1:
                    k.get(vPQ + 4 + j, cRD0 + j)
                else:
                    with k.atomic():
                        k(f"s_add_u32 s{sT0}, s{sW}, {j}")
                        k(f"s_and_b32 s{sT0}, s{sT0}, 3")
                    with k.atomic():
                        k(f"s_lshl_b32 s{sT0}, s{sT0}, 14")
                        k(f"s_add_u32 s{sT0}, s{sT0}, {max(j-1, 0)*4096}")
                    k(f"v_add_u32 v{vPQ+4+j}, s{sT0}, v{vL16}")
        ur = k.rec(lambda: (unpack_res(vWB), red_addr()))
        wr = []
        for t in range(56):
            ksl, j = seq[t]
            if L1:
                k.vm_wait(("w2t", ksl))
            k.vm_wait(("h", t))
            if o.get("diagd") and t in (0, 8, 16, 24, 32, 40, 48):
                k.stamp(f"D.t{t}")
            if o.get("diagc") and not L1 and t in (0, 4, 8, 16, 24, 32, 40, 48):
                k.stamp(f"D.t{t}", True)
            for f in range(4):
                a = vACC + 16*j + 4*f
                c = "0" if ksl == 0 else vr(a, 4)
                k(f"v_mfma_f32_16x16x32_bf16 {vr(a,4)}, {ar((ksl*4+f)*4,4)}, {vr(vACT+4*(t%16),4)}, {c}")
                if f in (0, 2) and nxt < 56 and nxt <= t + LA and (f == 0 or nxt < t + LA):
                    if nxt == 32 - o.get("p2d", 11):
                        k.vmem(f"buffer_load_dword v{vT0}, v{vT3}, {srd(S_WS)}, s{sFHp} offen offset:{G_FH+1024} sc1", "p2")
                    if nxt == 32:
                        async_check("p2", sFHp, G_FH + 1024)
                    hload(nxt)
                    nxt += 1
                    if nxt == 56 and not L1 and o.get("wb", 0):
                        lw = k.label("L_wb")
                        k(f"s_lshl3_add_u32 s{sT0}, s{sW}, s2")
                        k(f"s_cmp_ge_u32 s{sT0}, 8")
                        k(f"s_cbranch_scc1 {lw}")
                        k("buffer_wbl2 sc1")
                        k(f"s_branch {lw}_e")
                        k(f"{lw}:")
                        k(f"buffer_load_dword a{aDUM}, v{vT3}, {srd(S_WS)}, s{sFHp} offen offset:{G_FH} sc1")
                        k(f"{lw}_e:")
                        k.vm_note(1, "wb")
                if f in ((1, 3) if t < o.get("up2", 3) else (1,)) and up:
                    k.play(up[:1]); up = up[1:]
                if f == 2:
                    nup = 24 - len(up)
                    if w2 and (len(w2) > 24 or not up or nup >= 4 * ((24 - len(w2)) // 4 + 1) + 1):
                        if len(w2) <= 24:
                            k.ds_wait(("up", (24 - len(w2)) // 4))
                        k.play(w2[:1]); w2 = w2[1:]
                    elif t >= o.get("tl0", 46) and tail:
                        nn = o.get("tln", 2)
                        k.play(tail[:nn]); tail = tail[nn:]
                if f == 3 and t == FL2:
                    k.flag(sFHo, G_FH + 1024)
                if 4 * t + f == 203 and L1:
                    k.ds_wait(("rw", 1))
                    k("s_barrier")
                    for f_ in range(4):
                        k.lds(f"ds_read_b128 {vr(vACC+16+4*f_,4)}, v{vPQ+4} offset:{f_*1024}", "rd0")
                if 4 * t + f == 215 and L1:
                    k.ds_wait("rd0")
                    k("s_barrier")
                if f == 3 and t == 2 and L1 and not WP:
                    pack_check_issue(0x8000, vTR0, vTR1, sPDA)
                if f == 3 and t == 14 and L1 and not WP:
                    pack_check(vTR0, vTR1, sPDA)
                if f == 3 and t == o.get("tx", 99) and L1:
                    touch("x", vDM)
                if f == 1 and t >= 8 and ur:
                    k.play(ur[:1]); ur = ur[1:]
                if wr and wr[0][0] <= 4 * t + f:
                    k.lds(*wr.pop(0)[1:])
            if ksl == 13 and j:
                for f in range(4):
                    wr.append((4 * t + 9 + 2 * f, f"ds_write_b128 v{vPQ+4+j}, {vr(vACC+16*j+4*f,4)} offset:{f*1024}", ("rw", j)))
        assert not w2 and not ur and not wr and not up
        k.stamp("D.mm")
        if not L1:
            k.get(vT2, cOUT)
        if L1:
            k("s_nop 3")
            for f in range(4):
                for p in range(2):
                    k(f"v_pk_add_f32 {vr(vACC+4*f+2*p,2)}, {vr(vACC+4*f+2*p,2)}, {vr(vACC+16+4*f+2*p,2)}")
        k.barrier()
        NJ = 2 if L1 else 3
        RB_ = vACC + 64 - 16 * NJ
        for f in range(4):
            for j in range(NJ):
                k.lds(f"ds_read_b128 {vr(RB_+16*j+4*f,4)}, v{vPQ+4} offset:{j*4096+f*1024}", ("rd", f))
        for f in range(4):
            k.ds_wait(("rd", f))
            for j in range(NJ):
                for p in range(2):
                    k(f"v_pk_add_f32 {vr(vACC+4*f+2*p,2)}, {vr(vACC+4*f+2*p,2)}, {vr(RB_+16*j+4*f+2*p,2)}")
            for p in range(2):
                k(f"v_pk_fma_f32 {vr(vACC+4*f+2*p,2)}, {vr(vACC+4*f+2*p,2)}, {vr(RSD,2)}, {vr(vWB+4*f+2*p,2)} op_sel_hi:[1,0,1]")
            for p in range(2):
                k(f"v_cvt_pk_bf16_f32 v{vRES+2*f+p}, v{vACC+4*f+2*p}, v{vACC+4*f+2*p+1}")
        k.stamp("D.red")
        if L1:
            publish_x(G_X2, G_ST2, G_FX2, psc(3))
            k(f"s_sub_u32 s{sT0}, s{sDK}, 8192")
            for j in range(4):
                k(f"s_add_u32 s{sRB+j}, s{sRB+j}, s{sT0}")
            k(f"s_add_u32 s{sKVC}, s{sKVC}, 0x100000")
            k(f"s_add_u32 s{sKVP}, s{sKVP}, 0x100000")
            k.flag(sFXo, G_FX2)
            k.poll_a(sFXp, G_FX2)
            k.stamp("D.pub")
            k("s_barrier")
            fr = []
            k(f"v_add_u32 v{vTR0}, {R1}, v{vL16}")
            late = []
            for ks in range(16):
                fq = [dict(addr=vTR0, offs=(ks * 2048 + b * 1024,), mf=mf2(QA + 8 * b, ks, True, True, act=ring)) for b in range(2)]
                fk = [dict(addr=vL16, offs=(R0 + ks * 4096 + b * 1024,), mf=mf2(vACC + 8 * b, ks, False, True, act=ring)) for b in range(4)]
                if ks < 16 - o.get("qlag", 6):
                    fr += fk + fq
                else:
                    fr += fk
                    late += fq
            gA = k.gemm_begin(fr)
        else:
            k("s_nop 1")
            for s in range(2):
                for p in range(2):
                    k(f"v_permlane16_swap_b32 v{vRES+4*s+p}, v{vRES+4*s+2+p}")
                k.vmem(f"buffer_store_dwordx4 {vr(vRES+4*s,4)}, v{vT2}, {srd(S_OUT)}, 0 offen offset:{64*s}{['', ' sc1', ' sc1 nt', ' nt'][o.get('outsc1', 1)]}")
            le = k.label("L_ep")
            k(f"s_or_b32 s{sT2}, s2, s{sW}")
            k(f"s_cbranch_scc1 {le}")
            k(f"s_add_u32 s{sEP}, s{sEP}, 1")
            k(f"v_mov_b32 v{vT1}, s{sEP}")
            k("s_mov_b64 exec, 1")
            k(f"buffer_store_dword v{vT1}, v{vL16}, {srd(S_WS)}, 0 offen offset:{WS_EPOCH}")
            k("s_mov_b64 exec, -1")
            k(f"{le}:")
            if stamps:
                k.vm_all()
                k.stamp("end")
                k(f"s_memrealtime s[{sST}:{sST+1}]")
                k("s_waitcnt lgkmcnt(0)")
                k(f"v_writelane_b32 v{vSTAMP}, s{sST}, 61")
                k(f"v_writelane_b32 v{vSTAMP}, s{sBUD}, 60")
                k(f"v_writelane_b32 v{vSTAMP}, s{sSLOW}, 59")
                k(f"s_lshl2_add_u32 s{sT2}, s2, s{sW}")
                k(f"s_lshl_b32 s{sT2}, s{sT2}, 8")
                k(f"s_add_u32 s{sT2}, s{sT2}, {WS_STAMP}")
                k(f"v_lshrrev_b32 v{vT0}, 2, v{vL16}")
                k(f"buffer_store_dword v{vSTAMP}, v{vT0}, {srd(S_WS)}, s{sT2} offen")
    k("L_end:")
    lines = merge_waits(k.lines)
    if o.get("pads", 2048):
        lines = add_pads(lines, k.tailcode, o.get("pads", 2048), [x for x in (o.get("ps1", 0), o.get("ps2", 0)) if x])
    body = "\n".join(lines)
    tailc = "\n".join(k.tailcode)
    hdr = open("interleave_layers__linear_attn_block__dense_activation_relu__prompt.s.ref").read().split("; Override")[0]
    txt = f"""{hdr}; Generated by a hand-written generator (persistent kernel, one workgroup per CU).
; @launch grid=(256,1,1) block=(256,1,1) lds={LDS_BYTES}
.amdgcn_target "amdgcn-amd-amdhsa--gfx950"
.text
.globl {NAME}
.p2align 8
.type {NAME},@function
.set CODE_BYTES, L_code_end - L_pcref - 512
{NAME}:
{body}
    s_endpgm
L_code_end:
{tailc}
.section .rodata,"a"
.p2align 6
.amdhsa_kernel {NAME}
  .amdhsa_next_free_vgpr 512
  .amdhsa_next_free_sgpr 102
  .amdhsa_accum_offset 256
  .amdhsa_group_segment_fixed_size 0
  .amdhsa_kernarg_size 72
  .amdhsa_user_sgpr_count 2
  .amdhsa_user_sgpr_kernarg_segment_ptr 1
  .amdhsa_system_sgpr_workgroup_id_x 1
.end_amdhsa_kernel
"""
    return txt, k.stamp_names


if __name__ == "__main__":
    out = sys.argv[1]
    stamps = "stamps" in sys.argv[2:]
    opts = {}
    for a in sys.argv[2:]:
        if "=" in a:
            x, y = a.split("=")
            opts[x] = int(y)
    txt, names = gen(stamps, opts)
    open(out, "w").write(txt)
    if stamps:
        open(out + ".names", "w").write("\n".join(names))
```

```python
import sys
from contextlib import contextmanager

NAME = "interleave_layers__linear_attn_block__dense_activation_relu__prompt_kernel"

WS_EPOCH = 0
WS_XID = 0x8000
WS_PD = 0x10000
GRP0 = 0x100000
G_FO, G_FX1, G_FX2, G_FH = 0, 512, 1024, 1536
G_ST1 = 0x1000
G_ST2 = G_ST1
G_ST0 = 0x4000
G_X1 = 0x8000
G_X2 = G_X1
G_H = G_X1 + 0x20000
G_O = G_H
WS_KVX = 0x1200000
KVX_C = 0x9000
WS_W2T = 0x1400000
WS_PK = 0x1600000
PK_KV, PK_Q, PK_W1A, PK_W1B, PK_WO, PK_SZ = 0, 65536, 98304, 163840, 212992, 278528
WS_STAMP = 0x1B00000
WS_USED = 0x1C00000
OOB = 0x7f000000

R0, R1, R2, R3 = 0, 65536, 98304, 131072
L_SM = 161792
L_CS = L_SM
L_ZB = L_SM + 896
L_STAT = L_SM + 1024
L_XB = L_SM - 4096
W1B_N1 = 8
L_XST = 98304
L_RED = R2
L_PST = R2
LDS_BYTES = 163840

S_X, S_WQKV, S_WO, S_W1, S_W2, S_OUT, S_WS = 4, 8, 12, 16, 20, 24, 28
(sW, sC, sG, sTAG, sSLOW, sGB, sBUD, sEP, sEPS, _e1, sT0, sT1, sT2, sT3, sT4, sT5,
 sACT, sACT1, sBACT, sTILE, sOST, sOST1, sFOo, sFOp, sFXo, sFXp, sSTo, sSTg,
 sH1, sH1b, sH2, sH2b, sH3, sH3b, sFHo, sFHp, sRB, _r1, _r2, _r3, sKVC, sKVP,
 sDH, sCT, sXCC, sT8, sD0, sD1, sD2, sD3, sL0, sL1, sPKB, sPDA, sPDB, sJ0) = range(32, 88)
assert sEPS % 2 == 0
sRHO = sT8
S_A, S_B = 88, 92
sKEX = 88
sDK = 92
sS8 = 93
sKM = 96
sST = 98
sPC = 100

vLANE, vL16, vTR0, vTR1, vQ0, vQ1, vQ2, vQ3, vP, vCH, vDM, vSTAMP = range(12)
vT0, vT1, vT2, vT3 = 12, 13, 14, 15
vSP, vSP2 = vP, vCH
vRES = 16
vPQ = 24
vWB = 32
vACC = 64
vACT = 128
BF1 = "0x3f803f80"
(cCSA, cCSB, cP16, aDUM, cSTO, cSTW, cSTA, cSTB, cKW, cKR, cKW1, cKR1, cKVS, cXW, cXR, cZR,
 cRD0, cRD1, cRD2, cRD3, cRSD, cOUT, cZL, cZW) = range(224, 248)
aONES, aCS = 248, 252


def srd(s):
    return f"s[{s}:{s+3}]"


def vr(a, n=1):
    return f"v{a}" if n == 1 else f"v[{a}:{a+n-1}]"


def ar(a, n=1):
    return f"a{a}" if n == 1 else f"a[{a}:{a+n-1}]"


def bcast(r, pos, n):
    lo = [0] * n
    hi = [1] * n
    if r % 2 == 0:
        hi[pos] = 0
    else:
        lo[pos] = 1
    f = lambda x: "[" + ",".join(map(str, x)) + "]"
    return vr(r & ~1, 2), f" op_sel:{f(lo)} op_sel_hi:{f(hi)}"


class K:
    def __init__(self, stamps=False, opts=None):
        self.lines = []
        self.nlab = 0
        self.vm = []
        self.ds = []
        self.stamps = stamps
        self.stamp_names = []
        self.o = opts or {}
        self._rec = None
        self.seen = set()
        self.tailcode = []
        self.lights = []
        self.fast = ""

    def _do(self, fn, cost=None):
        if cost is not None:
            fn.cost = cost
        if self._rec is not None:
            self._rec.append(fn)
        else:
            fn()

    def rec(self, f):
        assert self._rec is None
        self._rec = []
        f()
        r, self._rec = self._rec, None
        return r

    @contextmanager
    def atomic(self):
        if self._rec is None:
            yield
            return
        outer, self._rec = self._rec, []
        yield
        inner, self._rec = self._rec, outer
        g = lambda: [x() for x in inner]
        g.cost = sum(getattr(x, "cost", 4) for x in inner)
        outer.append(g)

    def play(self, items):
        for x in items:
            self._do(x)

    def _emit(self, l):
        self.lines.append(("" if l.endswith(":") else "    ") + l)

    def __call__(self, s):
        for l in s.split("\n"):
            l = l.strip()
            if l:
                self._do(lambda l=l: self._emit(l), 8 if l.startswith(("v_exp", "v_rsq", "v_rcp", "buffer_")) else 0 if l.endswith(":") else 4)

    def label(self, base="L"):
        self.nlab += 1
        return f"{base}_{self.nlab}"

    def vmem(self, s, tag=None):
        def f():
            self._emit(s)
            self.vm.append(tag)
            self.seen.add(tag)
        self._do(f, 8)

    def vm_note(self, n, tag=None):
        self._do(lambda: (self.vm.extend([tag] * n), self.seen.add(tag)))

    def _wait(self, lst, tag, name, mx):
        if tag not in lst:
            return lst
        idx = len(lst) - 1 - lst[::-1].index(tag)
        n = min(len(lst) - idx - 1, mx)
        self._emit(f"s_waitcnt {name}({n})")
        return lst[len(lst) - n:] if n else []

    def vm_wait(self, tag):
        def f():
            assert tag in self.seen, tag
            self.vm = self._wait(self.vm, tag, "vmcnt", 63)
        self._do(f)

    def save_vm(self):
        def f():
            self._sv = list(self.vm)
        self._do(f)

    def restore_vm(self):
        def f():
            self.vm = self._sv
        self._do(f)

    def vm_all(self):
        def f():
            self._emit("s_waitcnt vmcnt(0)")
            self.vm = []
        self._do(f)

    def lds(self, s, tag=None):
        def f():
            self._emit(s)
            self.ds.append(tag)
        self._do(f)

    def ds_wait(self, tag):
        def f():
            self.ds = self._wait(self.ds, tag, "lgkmcnt", 15)
        self._do(f)

    def ds_all(self, force=False):
        def f():
            if self.ds or force:
                self._emit("s_waitcnt lgkmcnt(0)")
            self.ds = []
        self._do(f)

    def barrier(self, force=False):
        self.ds_all(force)
        self("s_barrier")

    def stamp(self, name, light=False):
        if not self.stamps:
            return
        if light:
            i = len(self.stamp_names)
            self.stamp_names.append(name)
            r = 4 + 2 * len(self.lights)
            self.lights.append((r, i))
            self(f"s_memtime s[{r}:{r+1}]")
            return
        self.nst = getattr(self, "nst", 0) + 1
        if self.o.get("lite") and name not in ("end", "D.pub"):
            return
        i = len(self.stamp_names)
        assert i < 59
        self.stamp_names.append(name)
        self(f"{'s_memrealtime' if self.o.get('rt') else 's_memtime'} s[{sST}:{sST+1}]")
        self.ds_all(True)
        self(f"v_writelane_b32 v{vSTAMP}, s{sST}, {i}")
        for r, j in self.lights:
            self(f"v_writelane_b32 v{vSTAMP}, s{r}, {j}")
        self.lights = []

    def dma(self, sr, voff, soff, simm, lreg, limm, tag=None, flag=""):
        with self.atomic():
            self(f"s_add_u32 m0, s{lreg}, {limm}")
            self(f"s_add_u32 s{sT5}, s{soff}, {simm}")
            self.vmem(f"buffer_load_dwordx4 v{voff}, {srd(sr)}, s{sT5} offen{flag} lds", tag)

    def get(self, v, c):
        self(f"v_accvgpr_read_b32 v{v}, a{c}")

    def poll_prep(self, mask):
        self.get(vT3, cP16)
        if mask == 7:
            self(f"v_and_b32 v{vT3}, 28, v{vT3}")

    def poll(self, soff, imm, clear=True):
        if clear:
            self.seen = {t for t in self.seen if not (isinstance(t, tuple) and t[0] in ("act", "h"))}
        lp, done = self.label("L_poll"), self.label("L_pd")
        with self.atomic():
            self(f"{lp}:")
            self(f"buffer_load_dword v{vT0}, v{vT3}, {srd(S_WS)}, s{soff} offen offset:{imm} sc1")
            self.vm_all()
            self(f"v_cmp_ne_u32 vcc, s{sTAG}, v{vT0}")
            self(f"s_cbranch_vccz {done}")
            self(f"s_sub_u32 s{sBUD}, s{sBUD}, 1")
            self(f"s_cbranch_scc0 {lp}")
            self(f"s_mov_b32 s{sBUD}, 0")
            self(f"{done}:")

    def poll_a(self, soff, imm):
        if self.o.get("pp", 1):
            self.vmem(f"buffer_load_dword v{vT0}, v{vT3}, {srd(S_WS)}, s{soff} offen offset:{imm} sc1", "pa")

    def poll_b(self, soff, imm):
        if not self.o.get("pp", 1):
            return self.poll(soff, imm)
        self.seen = {t for t in self.seen if not (isinstance(t, tuple) and t[0] in ("act", "h"))}
        lp, done = self.label("L_poll"), self.label("L_pd")
        ld = lambda v: f"buffer_load_dword v{v}, v{vT3}, {srd(S_WS)}, s{soff} offen offset:{imm} sc1"
        self(f"{lp}:")
        self(ld(vT2))
        self("s_waitcnt vmcnt(1)")
        self(f"v_cmp_ne_u32 vcc, s{sTAG}, v{vT0}")
        self(f"s_cbranch_vccz {done}")
        self(ld(vT0))
        self("s_waitcnt vmcnt(1)")
        self(f"v_cmp_ne_u32 vcc, s{sTAG}, v{vT2}")
        self(f"s_cbranch_vccz {done}")
        self(f"s_sub_u32 s{sBUD}, s{sBUD}, 1")
        self(f"s_cbranch_scc0 {lp}")
        self(f"s_mov_b32 s{sBUD}, 0")
        self(f"{done}:")
        self.vm = ["pb"]

    def stores(self, items, force_sc1, tag="st"):
        with self.atomic():
            if force_sc1:
                for it in items:
                    self.vmem(it + " sc1", tag)
                return
            ls, le = self.label("L_ss"), self.label("L_se")
            self(f"s_cmp_lg_u32 s{sSLOW}, 0")
            self(f"s_cbranch_scc1 {ls}")
            for it in items:
                self.vmem(it + (self.fast if tag == "st" else ""), tag)
            self(f"{le}:")
            self.tailcode += [f"{ls}:"] + ["    " + it + " sc1" for it in items] + [f"    s_branch {le}"]

    def flag(self, soff, imm):
        with self.atomic():
            self(f"v_mov_b32 v{vT1}, s{sTAG}")
            self.vm_wait("st")
            self("s_mov_b64 exec, 1")
            self.stores([f"buffer_store_dword v{vT1}, v{vL16}, {srd(S_WS)}, s{soff} offen offset:{imm}"], False, "flag")
            self("s_mov_b64 exec, -1")

    def gemm_begin(self, frags, D=6):
        self.gid = getattr(self, "gid", 0) + 1
        g = dict(frags=frags, D=D, gid=self.gid, rp=0, reads=[])
        for t, f in enumerate(frags):
            s = vWB + 4 * (t % 8)
            if len(f["offs"]) == 2:
                for hh in range(2):
                    g["reads"].append((t, f"ds_read_b64_tr_b16 {vr(s + 2*hh, 2)}, v{f['addr']} offset:{f['offs'][hh]}"))
            else:
                g["reads"].append((t, f"ds_read_b128 {vr(s, 4)}, v{f['addr']} offset:{f['offs'][0]}"))
        self._issue(g, D - 1, 99)
        return g

    def _issue(self, g, tmax, maxn):
        c = 0
        reads = g["reads"]
        while g["rp"] < len(reads) and reads[g["rp"]][0] <= tmax and c < maxn:
            self.lds(reads[g["rp"]][1], ("w", g["gid"], reads[g["rp"]][0]))
            g["rp"] += 1
            c += 1

    def gemm_run(self, g, fill=None):
        fill = fill or {}
        frags, D, gid = g["frags"], g["D"], g["gid"]
        n = len(frags)
        mi = 0
        pend = []
        LATE = self.o.get("late", 3)
        for t, f in enumerate(frags):
            s = vWB + 4 * (t % 8)
            if t % 2 == 0:
                self.ds_wait(("w", gid, min(t + 1, n - 1)))
            nm = len(f["mf"])
            for j, (acc, act_, sw, first, wt) in enumerate(f["mf"]):
                if wt is not None:
                    self.vm_wait(wt)
                c = "0" if first else vr(acc, 4) if acc is not None else ar(aCS, 4)
                if acc is None:
                    self(f"v_mfma_f32_16x16x32_bf16 {ar(aCS,4)}, {ar(aONES,4)}, {vr(s,4)}, {c}")
                elif sw:
                    self(f"v_mfma_f32_16x16x32_bf16 {vr(acc,4)}, {vr(s,4)}, {vr(act_,4)}, {c}")
                else:
                    self(f"v_mfma_f32_16x16x32_bf16 {vr(acc,4)}, {vr(act_,4)}, {vr(s,4)}, {c}")
                rp0 = g["rp"]
                self._issue(g, t + D, 99 if j == nm - 1 else 1)
                room = 8 - 4 * (g["rp"] - rp0) - (4 if (j == nm - 1 and t % 2 == 1) else 0)
                pend += [(mi, x) for x in fill.pop(mi, [])]
                while pend:
                    cst = getattr(pend[0][1], "cost", 4)
                    if cst <= room or (room == 8 and cst > 8) or mi - pend[0][0] >= LATE:
                        self.play([pend.pop(0)[1]])
                        room -= cst
                    else:
                        break
                mi += 1
        self.play([x for _, x in pend])
        for key in sorted(fill):
            self.play(fill[key])

    def gemm(self, frags, fill=None, D=6):
        self.gemm_run(self.gemm_begin(frags, D), fill)


def merge_waits(lines):
    import re
    out = []
    for l in lines:
        m = re.match(r"\s*s_waitcnt (\w+)\((\d+)\)$", l)
        if m and out:
            p = re.match(r"\s*s_waitcnt (\w+)\((\d+)\)$", out[-1])
            if p and p.group(1) != m.group(1):
                out[-1] = out[-1] + f" {m.group(1)}({m.group(2)})"
                continue
        out.append(l)
    return out


def spread(fill, items, start, step, per=1):
    p = start
    if step == 0:
        g = lambda: [x() for x in items]
        g.cost = sum(getattr(x, "cost", 4) for x in items)
        fill.setdefault(int(p), []).append(g)
        return p
    for i in range(0, len(items), per):
        fill.setdefault(int(p), []).extend(items[i:i + per])
        p += step
    return p


def insn_sizes(lines, tailcode):
    import subprocess, tempfile, re, os
    src = [".amdgcn_target \"amdgcn-amd-amdhsa--gfx950\"", ".text", ".set CODE_BYTES, 0x12345"]
    for i, l in enumerate(lines):
        src.append(f"Lz{i}:")
        src.append(l)
    src.append(f"Lz{len(lines)}:")
    src += tailcode
    with tempfile.TemporaryDirectory() as d:
        open(d + "/a.s", "w").write("\n".join(src) + "\n")
        subprocess.run(["clang", "-x", "assembler", "-target", "amdgcn-amd-amdhsa", "-mcpu=gfx950", "-c", d + "/a.s", "-o", d + "/a.o"], check=True)
        out = subprocess.run(["llvm-objdump", "-t", d + "/a.o"], capture_output=True, text=True, check=True).stdout
    addr = {}
    for l in out.splitlines():
        m = re.match(r"([0-9a-f]+) .*\sLz(\d+)$", l)
        if m:
            addr[int(m.group(2))] = int(m.group(1), 16)
    return [addr[i + 1] - addr[i] for i in range(len(lines))]


def add_pads(lines, tailcode, step, splits):
    def call(first, ret):
        c = ["    s_mov_b64 exec, 0"]
        for w in range(3):
            c += [f"    s_cmp_eq_u32 s{sW}, {w}", f"    s_cbranch_scc1 L_pad{first + w}"]
        return c + [f"    s_branch L_pad{first + 3}"]
    src = []
    for l in lines:
        t = l.strip()
        if t.startswith("PADCALL") and t != "PADCALL":
            g = int(t[7:])
            if g <= len(splits):
                src += ["    s_nop 0 ; CALL%d" % g] * 9
        else:
            src.append(l)
    ci = [i for i, l in enumerate(src) if l.strip() == "PADCALL"][0]
    src = src[:ci] + src[ci + 1:]
    sz = insn_sizes(src, tailcode)
    body, pos, nxt, n = [], 4, step, 0
    for i in range(ci, len(src)):
        if pos >= nxt and sz[i] > 0 and "; CALL" not in src[i]:
            body.append(("PAD", n))
            n += 1
            pos += 4
            nxt = (pos // step + 1) * step
        body.append(src[i])
        pos += sz[i]
    bounds = [0] + list(splits) + [n]
    assert all(bounds[i + 1] - bounds[i] >= 4 for i in range(len(bounds) - 1)), (bounds, n)
    out = src[:ci] + call(0, 0) + [".p2align 12", "L_padret0:", "    s_mov_b64 exec, -1"]
    done = set()
    for x in body:
        if isinstance(x, tuple):
            j = x[1]
            g = max(i for i in range(len(bounds) - 1) if bounds[i] <= j)
            out += [f"L_pad{j}:", f"    s_cbranch_execz {'L_pad%d' % (j + 4) if j + 4 < bounds[g + 1] else 'L_padret%d' % g}"]
        elif "; CALL" in x:
            g = int(x.split("CALL")[1])
            if g not in done:
                done.add(g)
                out += call(bounds[g], g) + [f"L_padret{g}:", "    s_mov_b64 exec, -1"]
        else:
            out.append(x)
    return out


def mix(a, b, ratio):
    out = []
    bi = 0
    for i, x in enumerate(a):
        out.append(x)
        if (i + 1) % ratio == 0 and bi < len(b):
            out.append(b[bi]); bi += 1
    out.extend(b[bi:])
    return out


def act(ks, rb):
    return vACT + 8 * ks + 4 * rb


def gen(stamps=False, opts=None):
    k = K(stamps, opts)
    o = k.o
    if stamps:
        k(f"{'s_memrealtime' if o.get('rt') else 's_memtime'} s[{sST}:{sST+1}]")
        k(f"s_memrealtime s[{sPC}:{sPC+1}]")
    k(f"""
    s_cmp_ge_u32 s2, 256
    s_cbranch_scc1 L_end
    s_load_dwordx2 s[{S_X}:{S_X+1}], s[0:1], 0
    s_load_dwordx2 s[{S_WQKV}:{S_WQKV+1}], s[0:1], 8
    s_load_dwordx2 s[{S_WS}:{S_WS+1}], s[0:1], 64
    s_load_dwordx2 s[{S_WO}:{S_WO+1}], s[0:1], 16
    s_load_dwordx2 s[{S_W1}:{S_W1+1}], s[0:1], 32
    s_load_dwordx2 s[{S_W2}:{S_W2+1}], s[0:1], 40
    s_load_dwordx2 s[{S_OUT}:{S_OUT+1}], s[0:1], 48
    """)
    if o.get("cw0", 1):
        k(f"""
        s_getpc_b64 s[{S_A}:{S_A+1}]
        L_pcref:
        s_lshr_b32 s{sT2}, s2, 3
        s_lshl_b32 s{sT2}, s{sT2}, 11
        v_lshlrev_b32 v{vT3}, 3, v0
        v_add_u32 v{vT3}, s{sT2}, v{vT3}
        v_min_u32 v{vT3}, CODE_BYTES, v{vT3}
        s_mov_b32 exec_lo, 0x10001
        s_mov_b32 exec_hi, 0x10001
        global_load_dword a{aDUM}, v{vT3}, s[{S_A}:{S_A+1}]
        s_mov_b64 exec, -1
        """)
    k(f"""
    v_lshrrev_b32 v{vT0}, 6, v0
    v_and_b32 v{vLANE}, 63, v0
    s_mov_b32 s{S_X+2}, {2048*1024}
    v_readfirstlane_b32 s{sW}, v{vT0}
    s_mov_b32 s{S_X+3}, 0x20000
    s_mov_b32 s{S_WQKV+2}, {512*3072}
    s_mov_b32 s{S_WQKV+3}, 0x20000
    s_lshr_b32 s{sT0}, s2, 3
    s_and_b32 s{sC}, s{sT0}, 15
    s_lshr_b32 s{sT0}, s{sT0}, 4
    s_and_b32 s{sG}, s2, 7
    s_lshl1_add_u32 s{sG}, s{sG}, s{sT0}
    s_lshr_b32 s{sT1}, s{sC}, 1
    s_xor_b32 s{sT1}, s{sT1}, s{sT0}
    s_and_b32 s{sT1}, s{sT1}, 1
    s_and_b32 s{sRHO}, s{sC}, 1
    s_lshl1_add_u32 s{sRHO}, s{sT1}, s{sRHO}
    v_lshlrev_b32 v{vL16}, 4, v{vLANE}
    """)
    if stamps:
        k(f"v_mov_b32 v{vSTAMP}, 0")
    NTP = " nt" if o.get("nt", 0) & 1 else ""
    NTX = " nt" if o.get("nt", 0) & 2 else ""
    XS, XR, X2R = vRES, vRES + 4, act(15, 1)
    aRES = 246
    k(f"""
    v_lshrrev_b32 v{vT0}, 4, v{vLANE}
    v_and_b32 v{vT1}, 15, v{vLANE}
    v_xor_b32 v{vT2}, v{vT0}, v{vT1}
    v_lshlrev_b32 v{vT2}, 4, v{vT2}
    v_lshl_add_u32 v{XS}, v{vT0}, 10, v{vT2}
    v_xor_b32 v{XS+1}, 64, v{XS}
    v_xor_b32 v{XS+2}, 0x80, v{XS}
    v_xor_b32 v{XS+3}, 0xc0, v{XS}
    v_lshrrev_b32 v{vP}, 2, v{vLANE}
    v_and_b32 v{vCH}, 3, v{vLANE}
    v_lshrrev_b32 v{vT3}, 3, v{vLANE}
    v_and_b32 v{vT3}, 2, v{vT3}
    v_xor_b32 v{vCH}, v{vCH}, v{vT3}
    v_lshlrev_b32 v{vCH}, 4, v{vCH}
    v_and_b32 v{vT3}, 3, v{vP}
    v_lshl_add_u32 v{vT3}, v{vT0}, 3, v{vT3}
    s_movk_i32 s{sT1}, 3072
    v_mad_u32_u24 v{vDM}, v{vT3}, s{sT1}, v{vCH}
    s_lshl_b32 s{sL0}, s{sW}, 14
    s_add_u32 s{sL0}, s{sL0}, {L_XST}
    s_lshl_b32 s{sT1}, s{sG}, 17
    s_lshl_b32 s{sT2}, s{sW}, 15
    s_add_u32 s{sT1}, s{sT1}, s{sT2}
    s_lshl_b32 s{sL1}, s{sW}, 12
    """)
    for r in range(4):
        k(f"""
        s_add_u32 s{sT2}, s{sRHO}, {r}
        s_and_b32 s{sT2}, s{sT2}, 3
        s_lshl_b32 s{sT3}, s{sT2}, 8
        s_add_u32 s{sD0+r}, s{sT1}, s{sT3}
        s_lshl2_add_u32 s{sT2}, s{sT2}, s{sW}
        s_mul_i32 s{sT2}, s{sT2}, {32*3072}
        s_lshl_b32 s{sT3}, s{sC}, 6
        s_add_u32 s{sRB+r}, s{sT2}, s{sT3}
        """)
    k("s_waitcnt lgkmcnt(0)")
    k(f"s_load_dword s{sEP}, s[{S_WS}:{S_WS+1}], {WS_EPOCH}")
    if stamps:
        k(f"v_writelane_b32 v{vSTAMP}, s{sST}, 62")
        k(f"v_writelane_b32 v{vSTAMP}, s{sPC}, 63")

    def xslot(q, js=range(8)):
        for j in js:
            k.dma(S_X, XS + (j & 3), sD0 + q, j * 4096, sL0, (q & 1) * 8192 + j * 1024, ("xs", q), " nt" if o.get("nt", 0) & 4 else "")

    def wkv_raw(r):
        for pr in range(2):
            for hh in range(2):
                k.dma(S_WQKV, vDM, sRB + r, hh * 4 * 3072 + 1024 * (pr + 1), sL1, R0 + r * 16384 + pr * 2048 + hh * 1024, ("wkv", r))

    def quad_lane(pitch, dst=vDM, tmp=vT2, sD3=sD3):
        vT2 = tmp
        k(f"v_lshrrev_b32 v{dst}, 3, v{vLANE}")
        k(f"v_and_b32 v{vT2}, 6, v{dst}")
        k(f"v_xor_b32 v{vT2}, v{vT2}, v{vLANE}")
        k(f"v_and_b32 v{vT2}, 7, v{vT2}")
        k(f"v_lshlrev_b32 v{vT2}, 4, v{vT2}")
        if isinstance(pitch, int):
            k(f"s_movk_i32 s{sD3}, {pitch}")
            pitch = f"s{sD3}"
        k(f"v_mad_u32_u24 v{dst}, v{dst}, {pitch}, v{vT2}")

    def dma_raw(sr, lds_imm, first, R=None):
        sD0_, sD2_, sL0_, vDM_ = R or (sD0, sD2, sL0, vDM)
        with k.atomic():
            k(f"s_add_u32 m0, s{sL0_}, {lds_imm}")
            k("s_nop 0" if first else f"s_add_u32 s{sD0_}, s{sD0_}, s{sD2_}")
            k(f"buffer_load_dwordx4 v{vDM_}, {srd(sr)}, s{sD0_} offen{NTP} lds")

    def packU_issue(base, sD0, sD1, sD2, sD3, sL0, vDM, sPDA, shift=12):
        R = (sD0, sD2, sL0, vDM)
        l2, l3, lq, le = k.label("L_u2"), k.label("L_u3"), k.label("L_uq"), k.label("L_ue")
        with k.atomic():
            k(f"""
            s_lshl_b32 s{sL0}, s{sW}, {shift}
            s_add_u32 s{sL0}, s{sL0}, {base}
            s_lshr_b32 s{sD0}, s{sC}, 2
            s_mul_i32 s{sD0}, s{sD0}, 896
            s_mul_i32 s{sD1}, s{sG}, {32*3584}
            s_add_u32 s{sD0}, s{sD0}, s{sD1}
            s_and_b32 s{sD1}, s{sC}, 3
            s_cmp_eq_u32 s{sW}, 3
            s_cbranch_scc1 {l3}
            s_cmp_eq_u32 s{sW}, 2
            s_cbranch_scc1 {l2}
            s_mov_b32 s{S_A}, s{S_W2}
            s_mov_b32 s{S_A+1}, s{S_W2+1}
            s_mov_b32 s{S_A+2}, {1792*1024}
            s_movk_i32 s{sD2}, 1024
            s_lshl1_add_u32 s{sD0}, s2, s{sW}
            s_lshr_b32 s{sD1}, s{sD0}, 3
            s_and_b32 s{sD0}, s{sD0}, 7
            s_mul_i32 s{sPDA}, s{sD0}, 56
            s_add_u32 s{sPDA}, s{sPDA}, s{sD1}
            s_lshl_b32 s{sPDA}, s{sPDA}, 12
            s_add_u32 s{sPDA}, s{sPDA}, {WS_W2T}
            s_cmp_ge_u32 s{sD1}, 56
            s_cselect_b32 s{sPDA}, {OOB}, s{sPDA}
            s_lshl_b32 s{sD1}, s{sD1}, 15
            s_lshl_b32 s{sD0}, s{sD0}, 7
            s_add_u32 s{sD0}, s{sD0}, s{sD1}
            s_branch {lq}
            {l2}:
            s_mov_b32 s{S_A}, s{S_W1}
            s_mov_b32 s{S_A+1}, s{S_W1+1}
            s_mov_b32 s{S_A+2}, {512*3584}
            s_movk_i32 s{sD2}, 3584
            s_lshl_b32 s{sD1}, s{sD1}, 7
            s_add_u32 s{sD0}, s{sD0}, s{sD1}
            s_lshl_b32 s{sPDA}, s{sG}, 12
            s_add_u32 s{sPDA}, s{sPDA}, s{sPKB}
            s_add_u32 s{sPDA}, s{sPDA}, {PK_W1A}
            {lq}:
            s_mov_b32 s{S_A+3}, 0x20000
            """)
            quad_lane(f"s{sD2}", vDM, vT2 if shift == 14 else vACT + 127)
            k(f"s_lshl_b32 s{sD2}, s{sD2}, 3")
            for j in range(4):
                dma_raw(S_A, j * 1024, j == 0, R)
            k(f"""
            s_branch {le}
            {l3}:
            s_movk_i32 s{sD3}, 3584
            s_mul_i32 s{sPDA}, s{sG}, 3072
            s_add_u32 s{sPDA}, s{sPDA}, s{sPKB}
            s_add_u32 s{sPDA}, s{sPDA}, {PK_W1B}
            s_lshr_b32 s{sT5}, s{sD1}, 1
            s_mul_i32 s{sT5}, s{sT5}, 6
            s_and_b32 s{sD2}, s{sD1}, 1
            s_add_u32 s{sT5}, s{sT5}, s{sD2}
            s_add_u32 s{sT5}, s{sT5}, 18
            s_lshl_b32 s{sT5}, s{sT5}, 5
            s_add_u32 s{sT5}, s{sT5}, s{sD0}
            v_lshrrev_b32 v{vDM}, 1, v{vLANE}
            v_and_b32 v{vT2 if shift == 14 else vACT + 127}, 16, v{vL16}
            v_mad_u32_u24 v{vDM}, v{vDM}, s{sD3}, v{vT2 if shift == 14 else vACT + 127}
            s_add_u32 m0, s{sL0}, 2048
            s_mul_i32 s{sD1}, s{sD1}, 3
            buffer_load_dwordx4 v{vDM}, {srd(S_W1)}, s{sT5} offen{NTP} lds
            s_add_u32 s{sD1}, s{sD1}, 17
            s_lshr_b32 s{sD1}, s{sD1}, 1
            s_lshl_b32 s{sD1}, s{sD1}, 6
            s_add_u32 s{sD0}, s{sD0}, s{sD1}
            s_mov_b32 s{sD2}, {16*3584}
            v_mad_u32_u24 v{vDM}, v{vP}, s{sD3}, v{vCH}
            """)
            for hh in range(2):
                dma_raw(S_W1, hh * 1024, hh == 0, R)
            k(f"buffer_load_dword a{aDUM}, v{vL16}, {srd(S_W1)}, s{S_W1+2} offen")
            k(f"{le}:")
            k.vm_note(4, "pu")

    WP = o.get("wp", 1)

    def warm():
        k(f"v_lshlrev_b32 v{vT3}, 7, v{vLANE}")
        k("s_mov_b64 exec, 0xf")
        if not o.get("cw0", 1):
            k(f"""
            s_getpc_b64 s[{sPC}:{sPC+1}]
            L_pcref:
            s_lshr_b32 s{sT2}, s2, 3
            s_lshl2_add_u32 s{sT2}, s{sT2}, s{sW}
            s_lshl_b32 s{sT2}, s{sT2}, 9
            s_min_u32 s{sT2}, s{sT2}, CODE_BYTES
            s_add_u32 s{sPC}, s{sPC}, s{sT2}
            s_addc_u32 s{sPC+1}, s{sPC+1}, 0
            """)
            k.vmem(f"global_load_dword a{aDUM}, v{vT3}, s[{sPC}:{sPC+1}]")
        if o.get("warm", 1) >= 1:
            k(f"s_lshl2_add_u32 s{sT2}, s2, s{sW}")
            k(f"s_lshr_b32 s{sT3}, s{sT2}, 1")
            k(f"s_mul_i32 s{sT3}, s{sT3}, 3072")
            k(f"s_and_b32 s{sT4}, s{sT2}, 1")
            k(f"s_lshl_b32 s{sT4}, s{sT4}, 9")
            k(f"s_add_u32 s{sT3}, s{sT3}, s{sT4}")
            k.vmem(f"buffer_load_dword a{aDUM}, v{vT3}, {srd(S_WQKV)}, s{sT3} offen")
            if not WP:
                k(f"s_lshl_b32 s{sT3}, s{sT2}, 9")
                k.vmem(f"buffer_load_dword a{aDUM}, v{vT3}, {srd(S_WO)}, s{sT3} offen")
        if o.get("tlb", 0):
            k("s_mov_b64 exec, 1")
            k(f"s_mul_i32 s{sT3}, s{sT2}, 1792")
            k.vmem(f"buffer_load_dword a{aDUM}, v{vT3}, {srd(S_W1)}, s{sT3} offen")
            k.vmem(f"buffer_load_dword a{aDUM}, v{vT3}, {srd(S_W2)}, s{sT3} offen")
            if o["tlb"] > 1:
                k("s_mov_b64 exec, 0x1f")
                k(f"v_lshlrev_b32 v{vWB}, 21, v{vLANE}")
                k(f"s_mov_b32 s{sT3}, {WS_KVX + 0x1f0000}")
                k.vmem(f"buffer_load_dword a{aDUM}, v{vWB}, {srd(S_WS)}, s{sT3} offen")
        if o.get("warm", 1) >= 2:
            k(f"s_mul_i32 s{sT3}, s{sT2}, 1792")
            k("s_mov_b64 exec, 0x3fff")
            k.vmem(f"buffer_load_dword a{aDUM}, v{vT3}, {srd(S_W1)}, s{sT3} offen")
            k.vmem(f"buffer_load_dword a{aDUM}, v{vT3}, {srd(S_W2)}, s{sT3} offen")
        k(f"s_lshl2_add_u32 s{sT2}, s{sC}, s{sW}")
        k(f"s_lshl_b32 s{sT2}, s{sT2}, 8")
        k(f"s_add_u32 s{sT2}, s{sT2}, s{sGB}")
        k("s_mov_b64 exec, 3")
        k.vmem(f"buffer_load_dword a{aDUM}, v{vT3}, {srd(S_WS)}, s{sT2} offen sc1", "touch")
        k("s_mov_b64 exec, -1")

    OWN = vACC
    k(f"s_lshl_b32 s{sT2}, s{sC}, 11")
    k(f"s_add_u32 s{sT2}, s{sT2}, s{sT1}")
    for r in range(2):
        k.vmem(f"buffer_load_dwordx4 {vr(OWN+4*r,4)}, v{vL16}, {srd(S_X)}, s{sT2} offen offset:{r*1024}{NTX}", "own")
    w0_ = k.rec(lambda: wkv_raw(0))
    nw0 = o.get("nw0", 2)
    k.play(w0_[:nw0])
    k(f"""
    s_mov_b32 s{S_WO+2}, {512*1024}
    s_mov_b32 s{S_WO+3}, 0x20000
    s_mov_b32 s{S_W1+2}, {512*3584}
    s_mov_b32 s{S_W1+3}, 0x20000
    s_mov_b32 s{S_W2+2}, {1792*1024}
    s_mov_b32 s{S_W2+3}, 0x20000
    s_mov_b32 s{S_WS+2}, {WS_USED}
    s_mov_b32 s{S_WS+3}, 0x20000
    s_lshl_b32 s{sGB}, s{sG}, 20
    s_add_u32 s{sGB}, s{sGB}, {GRP0}
    """)
    warm()
    UF = o.get("uf", 1)
    k(f"s_mul_i32 s{sPKB}, s{sC}, {PK_SZ}")
    k(f"s_add_u32 s{sPKB}, s{sPKB}, {WS_PK}")
    if UF == 1:
        packU_issue(R1, sH1, sH1b, sH2, sH2b, sH3, vWB + 8, sPDB)
    if WP:
        quad_lane(1024, vWB + 8, vACT + 127, sH2b)
        k(f"""
        s_lshl2_add_u32 s{sH1}, s{sG}, s{sW}
        s_lshl_b32 s{sPDA}, s{sH1}, 10
        s_add_u32 s{sPDA}, s{sPDA}, s{sPKB}
        s_add_u32 s{sPDA}, s{sPDA}, {PK_WO}
        s_lshl_b32 s{sH1}, s{sH1}, 13
        s_lshl_b32 s{sH1b}, s{sC}, 7
        s_add_u32 s{sH1}, s{sH1}, s{sH1b}
        s_cmp_ge_u32 s{sC}, 8
        s_cselect_b32 s{sH1}, {OOB}, s{sH1}
        s_cselect_b32 s{sPDA}, {OOB}, s{sPDA}
        s_lshl_b32 s{sH1b}, s{sW}, 10
        s_add_u32 m0, s{sH1b}, {R0 + 49152}
        s_nop 0
        """)
        k.vmem(f"buffer_load_dwordx4 v{vWB+8}, {srd(S_WO)}, s{sH1} offen{NTP} lds", "pwo")

    W0P = o.get("w0p", 0)
    if W0P == 0:
        k.play(w0_[nw0:])

    if o.get("diags"): k.stamp("iss0")

    def arm(mode):
        with k.atomic():
            k(f"s_lshl2_add_u32 s{sT2}, s{sC}, s{sW}")
            k(f"s_lshl_b32 s{sT3}, s{sT2}, 11")
            k(f"s_add_u32 s{sT3}, s{sT3}, s{sGB}")
            k(f"s_add_u32 s{sT3}, s{sT3}, {G_X1}")
            k(f"s_lshr_b32 s{sT4}, s{sT2}, 3")
            k(f"s_mul_i32 s{sT4}, s{sT4}, 57344")
            k(f"s_and_b32 s{sT2}, s{sT2}, 7")
            k(f"s_mul_i32 s{sT2}, s{sT2}, {5120 if mode & 4 else 1024}")
            k(f"s_add_u32 s{sT4}, s{sT4}, s{sT2}")
            k(f"s_add_u32 s{sT4}, s{sT4}, s{sGB}")
            k(f"s_add_u32 s{sT4}, s{sT4}, {G_H + 16*1024}")
            k(f"s_add_u32 s{sT2}, s{sT4}, 4096")
        if mode & 1:
            for j in range(2):
                k.vmem(f"buffer_store_dwordx4 {vr(vQ0,4)}, v{vL16}, {srd(S_WS)}, s{sT3} offen offset:{j*1024} sc1", "arm")
        for j in range(5 if mode & 4 else 1 if mode & 2 else 0):
            k.vmem(f"buffer_store_dwordx4 {vr(vQ0,4)}, v{vL16}, {srd(S_WS)}, s{sT4 if j < 4 else sT2} offen offset:{(j%4)*1024} sc1", "arm")

    k(f"""
    s_mov_b32 s{S_OUT+2}, {2048*1024}
    s_mov_b32 s{S_OUT+3}, 0x20000
    s_lshr_b32 s{sDH}, s{sC}, 3
    s_and_b32 s{sCT}, s{sC}, 7
    s_mov_b32 s{sBUD}, 150000
    s_mov_b32 s{sEPS}, 0x358637bd
    s_mov_b32 s{sEPS+1}, 0x358637bd
    s_getreg_b32 s{sXCC}, hwreg(HW_REG_XCC_ID, 0, 4)
    s_lshl_b32 s{sACT}, s{sW}, 15
    s_add_u32 s{sACT}, s{sACT}, s{sGB}
    s_add_u32 s{sACT1}, s{sACT}, 16384
    s_lshl2_add_u32 s{sT0}, s{sDH}, s{sW}
    s_lshl_b32 s{sBACT}, s{sT0}, 14
    s_add_u32 s{sBACT}, s{sBACT}, s{sGB}
    s_lshl_b32 s{sTILE}, s{sCT}, 11
    s_add_u32 s{sTILE}, s{sTILE}, s{sBACT}
    s_mul_i32 s{sBACT}, s{sT0}, 57344
    s_add_u32 s{sBACT}, s{sBACT}, s{sGB}
    s_mul_i32 s{sOST}, s{sW}, {2*57344}
    s_lshl_b32 s{sOST1}, s{sC}, 10
    s_add_u32 s{sOST}, s{sOST}, s{sOST1}
    s_add_u32 s{sOST}, s{sOST}, s{sGB}
    s_add_u32 s{sOST}, s{sOST}, {G_O}
    s_add_u32 s{sOST1}, s{sOST}, 57344
    s_lshl_b32 s{sFXp}, s{sW}, 7
    s_add_u32 s{sFXp}, s{sFXp}, s{sGB}
    s_lshl2_add_u32 s{sFOo}, s{sC}, s{sFXp}
    s_lshl_b32 s{sFHp}, s{sT0}, 7
    s_add_u32 s{sFHp}, s{sFHp}, s{sGB}
    s_lshr_b32 s{sT0}, s{sT0}, 1
    s_mov_b32 s{sT1}, s{sT0}
    s_lshl_b32 s{sFOp}, s{sT0}, 7
    s_add_u32 s{sFOp}, s{sFOp}, s{sGB}
    s_and_b32 s{sT2}, s{sW}, 1
    s_lshl1_add_u32 s{sT3}, s{sCT}, s{sT2}
    s_lshl2_add_u32 s{sFXo}, s{sT3}, s{sFOp}
    s_lshl3_add_u32 s{sT3}, s{sT0}, s{sCT}
    s_lshl_b32 s{sT3}, s{sT3}, 8
    s_lshl3_add_u32 s{sT3}, s{sT2}, s{sT3}
    s_add_u32 s{sSTo}, s{sT3}, s{sGB}
    s_lshl_b32 s{sSTg}, s{sW}, 11
    s_add_u32 s{sSTg}, s{sSTg}, s{sGB}
    s_lshl2_add_u32 s{sT1}, s{sT1}, s{sT2}
    s_lshl_b32 s{sT1}, s{sT1}, 6
    s_add_u32 s{sT1}, s{sT1}, {L_STAT + 128}
    v_lshl_add_u32 v{vT3}, v{vT1}, 2, s{sT1}
    v_accvgpr_write_b32 a{cRSD}, v{vT3}
    s_mul_i32 s{sT0}, s{sW}, {2*57344}
    s_add_u32 s{sT0}, s{sT0}, s{sGB}
    s_lshr_b32 s{sT3}, s{sC}, 2
    s_add_u32 s{sT0}, s{sT0}, {G_H}
    s_lshl_b32 s{sH1}, s{sC}, 11
    s_add_u32 s{sH1}, s{sH1}, {24*1024}
    s_add_u32 s{sH1}, s{sH1}, s{sT0}
    s_add_u32 s{sH1b}, s{sH1}, 57344
    s_mul_i32 s{sT4}, s{sT3}, 6144
    s_add_u32 s{sT0}, s{sT0}, s{sT4}
    s_and_b32 s{sT4}, s{sC}, 3
    s_mul_i32 s{sH2}, s{sT4}, 3
    s_add_u32 s{sH2}, s{sH2}, 1
    s_lshr_b32 s{sH2}, s{sH2}, 1
    s_lshl_b32 s{sH2}, s{sH2}, 10
    s_add_u32 s{sH2}, s{sH2}, s{sT0}
    s_add_u32 s{sH2b}, s{sH2}, 57344
    s_lshr_b32 s{sH3}, s{sT4}, 1
    s_mul_i32 s{sH3}, s{sH3}, 3072
    s_and_b32 s{sH3b}, s{sT4}, 1
    s_lshl3_add_u32 s{sH3}, s{sH3b}, s{sH3}
    s_add_u32 s{sH3}, s{sH3}, 1024
    s_add_u32 s{sH3}, s{sH3}, s{sT0}
    s_add_u32 s{sH3b}, s{sH3}, 57344
    s_lshr_b32 s{sT0}, s{sW}, 1
    s_lshl2_add_u32 s{sT0}, s{sT0}, s{sT3}
    s_lshl_b32 s{sT0}, s{sT0}, 7
    s_lshl1_add_u32 s{sT2}, s{sT4}, s{sT2}
    s_lshl2_add_u32 s{sT0}, s{sT2}, s{sT0}
    s_add_u32 s{sFHo}, s{sT0}, s{sGB}
    """)
    k(f"""
    s_mul_i32 s{sT0}, s{sC}, {KVX_C}
    s_add_u32 s{sT0}, s{sT0}, {WS_KVX}
    s_lshl_b32 s{sT1}, s{sW}, 13
    s_add_u32 s{sKVC}, s{sT0}, s{sT1}
    s_lshl_b32 s{sT2}, s{sW}, 14
    s_lshl_b32 s{sT3}, s{sG}, 10
    s_lshl_b32 s{sT4}, s{sG}, 7
    s_cmp_lt_u32 s{sW}, 2
    s_cselect_b32 s{sT3}, s{sT3}, s{sT4}
    s_cselect_b32 s{sKM}, -1, 0x30003
    s_cselect_b32 s{sKM+1}, -1, 0x30003
    s_cselect_b64 vcc, -1, 0
    s_add_u32 s{sKVP}, s{sT0}, s{sT2}
    s_add_u32 s{sKVP}, s{sKVP}, s{sT3}
    s_cmp_eq_u32 s{sW}, 3
    s_cselect_b32 s{sKVP}, {OOB}, s{sKVP}
    v_lshlrev_b32 v{vT3}, 4, v{vT0}
    v_lshl_add_u32 v{vT3}, v{vT1}, 6, v{vT3}
    v_cndmask_b32 v{vT3}, v{vT3}, v{vL16}, vcc
    v_accvgpr_write_b32 a{cKVS}, v{vT3}
    v_lshlrev_b32 v{vT3}, 2, v{vL16}
    v_and_b32 v{vT3}, 0xf00, v{vT3}
    v_lshrrev_b32 v{vT3}, 1, v{vT3}
    v_and_b32 v{vWB}, 48, v{vL16}
    s_lshr_b32 s{sT2}, s{sW}, 1
    s_lshl_b32 s{sT2}, s{sT2}, 6
    s_add_u32 s{sT2}, s{sT2}, 32768
    s_sub_u32 s{sT2}, s{sT2}, s{sT1}
    v_add3_u32 v{vT3}, v{vT3}, v{vWB}, s{sT2}
    v_accvgpr_write_b32 a{cZL}, v{vT3}
    v_and_b32 v{vWB+5}, 1, v{vLANE}
    v_cndmask_b32 v{vWB+5}, v{vWB+5}, 0, vcc
    s_min_u32 s{sT5}, s{sW}, 2
    """)
    W = vWB
    k(f"""
    v_lshl_add_u32 v{XR}, v{vT1}, 8, v{vT2}
    v_add_u32 v{XR}, s{sL0}, v{XR}
    v_xor_b32 v{XR+1}, 64, v{XR}
    v_xor_b32 v{XR+2}, 0x80, v{XR}
    v_xor_b32 v{XR+3}, 0xc0, v{XR}
    v_and_b32 v{vT3}, 3, v{vLANE}
    v_lshlrev_b32 v{vT3}, 3, v{vT3}
    v_lshl_add_u32 v{vTR0}, v{vP}, 6, v{vT3}
    v_lshl_add_u32 v{vQ0}, v{vP}, 7, v{vT3}
    v_and_b32 v{vT3}, 1, v{vT0}
    v_lshlrev_b32 v{vT3}, 5, v{vT3}
    v_add_u32 v{vTR0}, v{vTR0}, v{vT3}
    v_xor_b32 v{vTR1}, 32, v{vTR0}
    v_bfe_u32 v{vT3}, v{vLANE}, 3, 2
    v_lshl_add_u32 v{vQ0}, v{vT3}, 5, v{vQ0}
    v_xor_b32 v{vQ1}, 32, v{vQ0}
    v_xor_b32 v{vQ2}, 64, v{vQ0}
    v_xor_b32 v{vQ3}, 0x60, v{vQ0}
    v_lshlrev_b32 v{W}, 2, v{vT1}
    v_accvgpr_write_b32 a{cP16}, v{W}
    v_mov_b32 v{W+1}, {BF1}
    v_accvgpr_write_b32 a{aONES}, v{W+1}
    v_accvgpr_write_b32 a{aONES+1}, v{W+1}
    v_accvgpr_write_b32 a{aONES+2}, v{W+1}
    v_accvgpr_write_b32 a{aONES+3}, v{W+1}
    v_add_u32 v{W+1}, {L_CS}, v{W}
    v_accvgpr_write_b32 a{cCSA}, v{W+1}
    v_and_b32 v{W+2}, 48, v{vLANE}
    v_add_u32 v{W+1}, {L_CS}, v{W+2}
    v_accvgpr_write_b32 a{cCSB}, v{W+1}
    v_lshlrev_b32 v{W+1}, 2, v{vT0}
    v_lshl_add_u32 v{W+1}, v{vT1}, 4, v{W+1}
    v_accvgpr_write_b32 a{cSTO}, v{W+1}
    s_lshl_b32 s{sT0}, s{sW}, 8
    s_add_u32 s{sT0}, s{sT0}, {L_STAT}
    v_add_u32 v{W+1}, s{sT0}, v{W}
    v_accvgpr_write_b32 a{cSTA}, v{W+1}
    v_and_b32 v{W+3}, 32, v{vLANE}
    v_lshl_add_u32 v{W+1}, v{W+3}, 1, v{W+1}
    v_accvgpr_write_b32 a{cSTW}, v{W+1}
    v_add_u32 v{W+1}, s{sT0}, v{W+2}
    v_accvgpr_write_b32 a{cSTB}, v{W+1}
    s_lshl_b32 s{sT0}, s{sW}, 10
    v_add_u32 v{W+1}, s{sT0}, v{vL16}
    v_accvgpr_write_b32 a{cKW}, v{W+1}
    v_add_u32 v{W+3}, {R2 + 8192}, v{W+1}
    v_accvgpr_write_b32 a{cKW1}, v{W+3}
    s_lshl_b32 s{sT0}, s{sT5}, 14
    v_add_u32 v{W+1}, s{sT0}, v{vL16}
    v_lshl_add_u32 v{W+1}, v{W+5}, 12, v{W+1}
    v_accvgpr_write_b32 a{cKR}, v{W+1}
    s_lshl_b32 s{sT0}, s{sT5}, 14
    s_add_u32 s{sT0}, s{sT0}, {R2 + 8192}
    v_add_u32 v{W+1}, s{sT0}, v{vL16}
    v_lshl_add_u32 v{W+1}, v{W+5}, 14, v{W+1}
    v_accvgpr_write_b32 a{cKR1}, v{W+1}
    v_add_u32 v{W+1}, {L_XB}, v{vL16}
    v_accvgpr_write_b32 a{cXR}, v{W+1}
    v_lshlrev_b32 v{W+3}, 3, v{vT0}
    v_add_u32 v{W+3}, {L_ZB}, v{W+3}
    v_accvgpr_write_b32 a{cZR}, v{W+3}
    """)
    k(f"""
    s_lshl_b32 s{sT0}, s{sW}, 10
    v_add_u32 v{W+1}, s{sT0}, v{W+1}
    v_accvgpr_write_b32 a{cXW}, v{W+1}
    v_and_b32 v{W+3}, 1, v{vT0}
    v_lshrrev_b32 v{W+4}, 1, v{vT0}
    v_lshl_add_u32 v{W+3}, v{W+3}, 1, v{W+4}
    v_and_b32 v{W+4}, 3, v{vLANE}
    v_lshl_add_u32 v{W+3}, v{W+4}, 2, v{W+3}
    s_lshr_b32 s{sT0}, s{sW}, 1
    s_lshl_b32 s{sT0}, s{sT0}, 5
    s_add_u32 s{sT0}, s{sT0}, {L_ZB}
    v_lshl_add_u32 v{W+3}, v{W+3}, 1, s{sT0}
    v_accvgpr_write_b32 a{cZW}, v{W+3}
    """)
    for j in range(4):
        k(f"s_add_u32 s{sT0}, s{sW}, {j}")
        k(f"s_and_b32 s{sT0}, s{sT0}, 3")
        k(f"s_lshl_b32 s{sT0}, s{sT0}, 13")
        k(f"s_add_u32 s{sT0}, s{sT0}, {L_RED + (4096 if j == 2 else 0)}")
        k(f"v_add_u32 v{W+1}, s{sT0}, v{vL16}")
        k(f"v_accvgpr_write_b32 a{cRD0+j}, v{W+1}")
    k(f"""
    s_lshl2_add_u32 s{sT0}, s{sDH}, s{sW}
    s_lshl3_add_u32 s{sT0}, s{sG}, s{sT0}
    s_lshl_b32 s{sT0}, s{sT0}, 14
    s_lshl_b32 s{sT1}, s{sCT}, 7
    s_add_u32 s{sT0}, s{sT0}, s{sT1}
    v_lshl_add_u32 v{W+1}, v{vT1}, 10, s{sT0}
    v_and_b32 v{W+3}, 1, v{vT0}
    v_lshl_add_u32 v{W+1}, v{W+3}, 5, v{W+1}
    v_lshrrev_b32 v{W+3}, 1, v{vT0}
    v_lshl_add_u32 v{W+1}, v{W+3}, 4, v{W+1}
    v_accvgpr_write_b32 a{cOUT}, v{W+1}
    """)

    def xread(q):
        k.vm_wait(("xs", q))
        for ksl in range(4):
            for rb in range(2):
                k.lds(f"ds_read_b128 {vr(act(4*q+ksl, rb),4)}, v{XR+ksl} offset:{(q%2)*8192 + rb*4096}", ("xr", q))

    SUM0, SQ0, SUM1, SQ1 = vACC + 56, vACC + 57, vACC + 58, vACC + 59
    SUMA, SQA = vACC + 48, vACC + 56
    ONES = vPQ + 4
    NM_A, RS_A, RL_A = vACC + 60, vACC + 62, vACC + 56
    NM_B, RS_B, RL_B = vACC + 32, vACC + 40, vACC + 48
    STG = vACC + 48

    def own_stats():
        a, b, c, d = OWN + 8, OWN + 9, OWN + 10, OWN + 11
        k(f"v_mov_b32 v{OWN+12}, {BF1}")
        k.vm_wait("own")
        for j in range(4):
            r0, r1 = OWN + j, OWN + 4 + j
            k(f"v_dot2_f32_bf16 v{a}, v{OWN+12}, v{r0}, {'0' if j == 0 else f'v{a}'}")
            k(f"v_dot2_f32_bf16 v{c}, v{OWN+12}, v{r1}, {'0' if j == 0 else f'v{c}'}")
            k(f"v_dot2_f32_bf16 v{b}, v{r0}, v{r0}, {'0' if j == 0 else f'v{b}'}")
            k(f"v_dot2_f32_bf16 v{d}, v{r1}, v{r1}, {'0' if j == 0 else f'v{d}'}")
        k(f"""
        s_waitcnt lgkmcnt(0)
        s_mul_i32 s{sTAG}, s{sEP}, 0x9E3779B1
        s_add_u32 s{sTAG}, s{sTAG}, 0x7F4A7C15
        s_add_u32 s{sT8}, s{sEP}, 1
        s_and_b32 s{sT8}, s{sT8}, 0xff
        s_mov_b32 s{sS8}, s{sEP}
        v_permlane32_swap_b32 v{a}, v{c}
        v_permlane32_swap_b32 v{b}, v{d}
        v_add_f32 v{a}, v{a}, v{c}
        v_add_f32 v{b}, v{b}, v{d}
        v_mov_b32 v{c}, v{a}
        v_mov_b32 v{d}, v{b}
        s_nop 1
        v_permlane16_swap_b32 v{a}, v{c}
        v_permlane16_swap_b32 v{b}, v{d}
        v_add_f32 v{a}, v{a}, v{c}
        v_add_f32 v{b}, v{b}, v{d}
        """)
        for sh in (8, 4, 2, 1):
            k("s_nop 0")
            k(f"v_add_f32_dpp v{a}, v{a}, v{a} row_ror:{sh} row_mask:0xf bank_mask:0xf")
            k(f"v_add_f32_dpp v{b}, v{b}, v{b} row_ror:{sh} row_mask:0xf bank_mask:0xf")
        k(f"""
        v_mul_f32 v{a}, 0xbb000000, v{a}
        v_mul_f32 v{b}, 0x3b000000, v{b}
        v_fma_f32 v{b}, -v{a}, v{a}, v{b}
        v_max_f32 v{b}, 0, v{b}
        v_add_f32 v{b}, 0x3727c5ac, v{b}
        v_rsq_f32 v{b}, v{b}
        v_mov_b32 v{c}, s{sTAG}
        v_mov_b32 v{d}, s{sXCC}
        v_lshrrev_b32 v{vT3}, 1, v{vLANE}
        s_lshl4_add_u32 s{sT2}, s{sW}, s{sC}
        s_lshl_b32 s{sT2}, s{sT2}, 7
        s_add_u32 s{sT2}, s{sT2}, s{sGB}
        s_add_u32 s{sT2}, s{sT2}, {G_ST0}
        s_mov_b32 exec_lo, 1
        s_mov_b32 exec_hi, 1
        """)
        k.vmem(f"buffer_store_dwordx4 {vr(a,4)}, v{vT3}, {srd(S_WS)}, s{sT2} offen sc1", "ownst")
        k("s_mov_b64 exec, -1")

    S0 = vACC + 52

    def st0_issue():
        with k.atomic():
            k(f"v_and_b32 v{vT0}, 30, v{vLANE}")
            k(f"v_lshlrev_b32 v{vT0}, 6, v{vT0}")
            k(f"v_and_b32 v{vT1}, 16, v{vL16}")
            k(f"v_add_u32 v{vT0}, v{vT0}, v{vT1}")
            k(f"s_add_u32 s{sT4}, s{sSTg}, {G_ST0}")
            k.vmem(f"buffer_load_dwordx4 {vr(S0,4)}, v{vT0}, {srd(S_WS)}, s{sT4} offen sc1", "st0")

    def st0_use():
        lp, ok = k.label("L_s0"), k.label("L_s0ok")
        with k.atomic():
            k.vm_wait("st0")
            k(f"{lp}:")
            k(f"v_cmp_ne_u32 vcc, s{sTAG}, v{S0+2}")
            k(f"s_cbranch_vccz {ok}")
            k(f"buffer_load_dwordx4 {vr(S0,4)}, v{vT0}, {srd(S_WS)}, s{sT4} offen sc1")
            k("s_waitcnt vmcnt(0)")
            k(f"s_sub_u32 s{sBUD}, s{sBUD}, 1")
            k(f"s_cbranch_scc0 {lp}")
            k(f"s_mov_b32 s{sBUD}, 0")
            k(f"{ok}:")
            k(f"v_cmp_ne_u32 vcc, s{sXCC}, v{S0+3}")
            k("s_nop 4")
            k(f"s_or_b32 s{sSLOW}, vcc_lo, {1 if o.get('forceslow') else 0}")
        k.get(vT0, cSTA)
        k(f"v_and_b32 v{vT1}, 16, v{vLANE}")
        k(f"v_lshl_add_u32 v{vT1}, v{vT1}, 2, v{vT0}")
        k.lds(f"ds_write2_b32 v{vT1}, v{S0}, v{S0+1} offset0:0 offset1:32")
        k.lds(f"ds_read2_b32 {vr(NM_A,2)}, v{vT0} offset0:0 offset1:16", "sta")
        k.lds(f"ds_read2_b32 {vr(RS_A,2)}, v{vT0} offset0:32 offset1:48", "sta")

    def stats_finalize(need_rs):
        k.get(vT1, cSTW)
        k.get(vT0, cSTA)
        k(f"""
        v_permlane32_swap_b32 v{SUM0}, v{SUM1}
        v_permlane32_swap_b32 v{SQ0}, v{SQ1}
        v_add_f32 v{SUM0}, v{SUM0}, v{SUM1}
        v_add_f32 v{SQ0}, v{SQ0}, v{SQ1}
        v_mov_b32 v{SUM1}, v{SUM0}
        v_mov_b32 v{SQ1}, v{SQ0}
        s_nop 0
        v_permlane16_swap_b32 v{SUM0}, v{SUM1}
        v_permlane16_swap_b32 v{SQ0}, v{SQ1}
        v_add_f32 v{SUM0}, v{SUM0}, v{SUM1}
        v_add_f32 v{SQ0}, v{SQ0}, v{SQ1}
        v_mul_f32 v{SUM0}, 0xbb000000, v{SUM0}
        v_mul_f32 v{SQ0}, 0x3b000000, v{SQ0}
        v_fma_f32 v{SQ0}, -v{SUM0}, v{SUM0}, v{SQ0}
        v_max_f32 v{SQ0}, 0, v{SQ0}
        v_add_f32 v{SQ0}, 0x3727c5ac, v{SQ0}
        v_rsq_f32 v{SQ0}, v{SQ0}
        s_nop 0
        """)
        k.lds(f"ds_write2_b32 v{vT1}, v{SUM0}, v{SQ0} offset0:0 offset1:32")
        k.lds(f"ds_read2_b32 {vr(NM_A,2)}, v{vT0} offset0:0 offset1:16", "sta")
        if need_rs:
            k.lds(f"ds_read2_b32 {vr(RS_A,2)}, v{vT0} offset0:32 offset1:48", "sta")

    def stats_b():
        k.get(vT1, cSTB)
        for rb in range(2):
            k.lds(f"ds_read_b128 {vr(NM_B+4*rb,4)}, v{vT1} offset:{64*rb}", "sta")
            k.lds(f"ds_read_b128 {vr(RS_B+4*rb,4)}, v{vT1} offset:{128+64*rb}", "sta")

    def stats_scale():
        k.ds_wait("sta")
        for j in range(8):
            k(f"v_mul_f32 v{RL_B+j}, 0x3fb8aa3b, v{RS_B+j}")
        for j in range(2):
            k(f"v_mul_f32 v{RL_A+j}, 0x3fb8aa3b, v{RS_A+j}")

    def set_ones(r):
        for j in range(4):
            k(f"v_mov_b32 v{r+j}, {BF1}")

    def cs_put(first, sblk):
        k.get(vT0, cCSA)
        k(f"s_lshl_b32 s{sT5}, s{sblk}, 6")
        k(f"v_add_u32 v{vT0}, s{sT5}, v{vT0}")
        k.lds(f"ds_write_b32 v{vT0}, a{aCS} offset:{first*64}")

    def phi_block(acc, nm, cs, rl, rs, dst, tmp, lay):
        s1, s2, s3, s4, s5 = [], [], [], [], []
        for p in range(2):
            a2 = vr(acc + 2*p, 2)
            t2 = vr(tmp + 2*p, 2)
            if lay == "b":
                c2, m = bcast(cs, 1, 3)
                s1.append(f"v_pk_fma_f32 {a2}, {vr(nm+2*p,2)}, {c2}, {a2}{m}")
                s2.append(f"v_pk_mul_f32 {t2}, {a2}, {vr(rl+2*p,2)}")
                s4.append(f"v_pk_fma_f32 {a2}, {a2}, {vr(rs+2*p,2)}, {t2}")
            else:
                c2, m = bcast(nm, 1, 3)
                s1.append(f"v_pk_fma_f32 {a2}, {vr(cs+2*p,2)}, {c2}, {a2}{m}")
                c2, m = bcast(rl, 1, 2)
                s2.append(f"v_pk_mul_f32 {t2}, {a2}, {c2}{m}")
                c2, m = bcast(rs, 1, 3)
                s4.append(f"v_pk_fma_f32 {a2}, {a2}, {c2}, {t2}{m}")
            for j in range(2):
                s3.append(f"v_exp_f32 v{tmp+2*p+j}, v{tmp+2*p+j} clamp")
            s5.append(f"v_pk_add_f32 {a2}, {a2}, s[{sEPS}:{sEPS+1}]")
        for s in s1 + s2 + s3:
            k(s)
        for j in range(4):
            k(f"v_max_f32 v{acc+j}, 0, v{acc+j}")
        for s in s4 + s5:
            k(s)
        for p in range(2):
            k(f"v_cvt_pk_bf16_f32 v{dst+p}, v{acc+2*p}, v{acc+2*p+1}")

    def ring(ks, rb):
        return vACT + 8 * (ks % 6) + 4 * rb
    QA, vPARK = vACT + 48, vACT + 64

    def act_loads(bufoff, act=act, rot=False):
        for ks in range(16):
            for rb in range(2):
                with k.atomic():
                    if ks % 4 == 0:
                        k(f"s_add_u32 s{sT2+rb}, s{sACT+rb}, {f's{S_A + ks//4}' if rot else bufoff + ks*1024}")
                    k.vmem(f"buffer_load_dwordx4 {vr(act(ks,rb),4)}, v{vL16}, {srd(S_WS)}, s{sT2+rb} offen offset:{(ks%4)*1024} sc1",
                           ("act", ks, rb))

    def stat_loads(stoff, STG=STG):
        k(f"s_add_u32 s{sT4}, s{sSTg}, {stoff}")
        for j in range(2):
            k.vmem(f"buffer_load_dwordx4 {vr(STG+4*j,4)}, v{vL16}, {srd(S_WS)}, s{sT4} offen offset:{j*1024} sc1", "stg")

    def stat_sum(STG=STG):
        lp, ok = k.label("L_sg"), k.label("L_sgok")
        k.vm_wait("stg")

        def chk():
            for j in range(8):
                k(f"v_xor_b32 v{STG+j}, s{sS8}, v{STG+j}")
            k(f"v_or3_b32 v{SUM0}, v{STG}, v{STG+1}, v{STG+2}")
            k(f"v_or3_b32 v{SUM0+1}, v{STG+3}, v{STG+4}, v{STG+5}")
            k(f"v_or3_b32 v{SUM0}, v{SUM0}, v{STG+6}, v{STG+7}")
            k(f"v_or_b32 v{SUM0}, v{SUM0}, v{SUM0+1}")
            k(f"v_and_b32 v{SUM0}, 0xff, v{SUM0}")
        chk()
        with k.atomic():
            k(f"v_cmp_ne_u32 vcc, 0, v{SUM0}")
            k(f"s_cbranch_vccnz {lp}")
            k(f"{ok}:")
        sv, k._rec = k._rec, None
        n0 = len(k.lines)
        k(f"{lp}:")
        for j in range(2):
            k(f"buffer_load_dwordx4 {vr(STG+4*j,4)}, v{vL16}, {srd(S_WS)}, s{sT4} offen offset:{j*1024} sc1")
        k("s_waitcnt vmcnt(0)")
        chk()
        k(f"v_cmp_ne_u32 vcc, 0, v{SUM0}")
        k(f"s_cbranch_vccz {ok}")
        k(f"s_sub_u32 s{sBUD}, s{sBUD}, 1")
        k(f"s_cbranch_scc0 {lp}")
        k(f"s_mov_b32 s{sBUD}, 0")
        k(f"s_branch {ok}")
        k.tailcode += k.lines[n0:]
        del k.lines[n0:]
        k._rec = sv
        for j in range(4):
            k(f"v_add_f32 v{SUM0+j}, v{STG+j}, v{STG+4+j}")

    def mf2(acc, ks, sw, wait, first=None, act=act):
        return [(acc + 4 * rb, act(ks, rb), sw, (ks == 0) if first is None else first,
                 (("act", ks, 1) if ks else ("act", ks, rb)) if wait else None) for rb in range(2)]

    def wo_raw():
        with k.atomic():
            quad_lane(1024)
            k(f"s_lshl_b32 s{sD0}, s{sW}, 17")
            k(f"s_lshl_b32 s{sD1}, s{sCT}, 7")
            k(f"s_add_u32 s{sD0}, s{sD0}, s{sD1}")
            k(f"s_lshl_b32 s{sL0}, s{sW}, 14")
        for j in range(16):
            k.dma(S_WO, vDM, sD0, j * 8 * 1024, sL0, R0 + j * 1024, "wo")

    def w1c1_raw():
        with k.atomic():
            quad_lane(3584, tmp=vACT + 127)
            k(f"s_lshr_b32 s{sD0}, s{sC}, 2")
            k(f"s_mul_i32 s{sD0}, s{sD0}, 896")
            k(f"s_and_b32 s{sD1}, s{sC}, 3")
            k(f"s_lshl_b32 s{sD1}, s{sD1}, 7")
            k(f"s_add_u32 s{sD0}, s{sD0}, s{sD1}")
            k(f"s_mul_i32 s{sD1}, s{sW}, {64*3584}")
            k(f"s_add_u32 s{sD0}, s{sD0}, s{sD1}")
            k(f"s_lshl_b32 s{sL0}, s{sW}, 13")
        for half in range(2):
            for j in range(8):
                k.dma(S_W1, vDM, sD0, (half * 256 + j * 8) * 3584, sL0, R1 + half * 32768 + j * 1024, "w1a")

    def lin_dma(src, dst, n, tag, shared=False):
        for j in range(n):
            with k.atomic():
                if j == 0:
                    k(f"s_mul_i32 s{sL0}, s{sW}, {n*1024}")
                    k(f"s_add_u32 s{sD0}, s{sL0}, s{sPKB}")
                    if shared:
                        k(f"s_mul_i32 s{sD1}, s{sDH}, {8*PK_SZ}")
                        k(f"s_sub_u32 s{sD0}, s{sD0}, s{sD1}")
                if j % 4 == 0:
                    k(f"s_add_u32 m0, s{sL0}, {dst + j*1024}")
                    k(f"s_add_u32 s{sD1}, s{sD0}, {src + j*1024}")
                k.vmem(f"buffer_load_dwordx4 v{vL16}, {srd(S_WS)}, s{sD1} offen offset:{(j%4)*1024} sc1 lds", tag)

    def publish_x(bufoff, stoff, floff, pay_sc1):
        k(f"s_add_u32 s{sT1}, s{sTILE}, {bufoff}")
        k.stores([f"buffer_store_dwordx4 {vr(vRES+4*s,4)}, v{vL16}, {srd(S_WS)}, s{sT1} offen offset:{s*1024}" for s in range(2)], pay_sc1)
        a, b, c, d = vT0, vT1, vT2, vT3
        for j in range(4):
            r0, r1 = vRES + j, vRES + 4 + j
            if j == 0:
                k(f"v_mov_b32 v{vWB+9}, {BF1}")
                k(f"v_dot2_f32_bf16 v{b}, v{r0}, v{r0}, 0")
                k(f"v_dot2_f32_bf16 v{d}, v{r1}, v{r1}, 0")
                k(f"v_dot2_f32_bf16 v{a}, v{vWB+9}, v{r0}, 0")
                k(f"v_dot2_f32_bf16 v{c}, v{vWB+9}, v{r1}, 0")
            else:
                k(f"v_dot2_f32_bf16 v{b}, v{r0}, v{r0}, v{b}")
                k(f"v_dot2_f32_bf16 v{d}, v{r1}, v{r1}, v{d}")
                k(f"v_dot2_f32_bf16 v{a}, v{vWB+9}, v{r0}, v{a}")
                k(f"v_dot2_f32_bf16 v{c}, v{vWB+9}, v{r1}, v{c}")
        k.get(vWB + 8, cSTO)
        k(f"""
        s_add_u32 s{sT3}, s{sSTo}, {stoff}
        v_add_f32 v{b}, v{b}, v{d}
        v_add_f32 v{a}, v{a}, v{c}
        s_nop 1
        v_permlane16_swap_b32 v{a}, v{b}
        v_add_f32 v{a}, v{a}, v{b}
        v_mov_b32 v{b}, v{a}
        s_nop 1
        v_permlane32_swap_b32 v{a}, v{b}
        v_add_f32 v{c}, v{a}, v{b}
        s_add_u32 s{sS8}, s{sS8}, 1
        s_and_b32 s{sS8}, s{sS8}, 0xff
        v_and_b32 v{c}, 0xffffff00, v{c}
        v_or_b32 v{c}, s{sS8}, v{c}
        s_mov_b32 exec_hi, 0
        """)
        k.stores([f"buffer_store_dword v{c}, v{vWB+8}, {srd(S_WS)}, s{sT3} offen"], False, "sts" if o.get("sto", 1) else "st")
        k("s_mov_b64 exec, -1")
        k.poll_prep(15)

    def unpack_res(dst):
        for f in range(4):
            for p in range(2):
                r = vRES + 2*f + p
                k(f"v_lshlrev_b32 v{dst+4*f+2*p}, 16, v{r}")
                k(f"v_and_b32 v{dst+4*f+2*p+1}, 0xffff0000, v{r}")

    def misc_l1():
        k(f"""
        s_add_u32 s{sT2}, s{sTAG}, s{sXCC}
        s_add_u32 s{sT2}, s{sT2}, 2
        v_mov_b32 v{vT1}, s{sT2}
        s_lshl4_add_u32 s{sT2}, s{sG}, s{sC}
        s_lshl_b32 s{sT2}, s{sT2}, 7
        s_add_u32 s{sT2}, s{sT2}, {WS_XID}
        """)
        with k.atomic():
            k(f"s_cmp_lg_u32 s{sW}, 0")
            k(f"s_cselect_b32 s{sT2}, {OOB}, s{sT2}")
            k("s_mov_b64 exec, 1")
            k.vmem(f"buffer_store_dword v{vT1}, v{vL16}, {srd(S_WS)}, s{sT2} offen sc1", "xid")
            k("s_mov_b64 exec, -1")

    def res_load():
        k.get(vT0, cOUT)
        for s_ in range(2):
            k.vmem(f"buffer_load_dwordx4 {vr(vRES+4*s_,4)}, v{vT0}, {srd(S_X)}, 0 offen offset:{64*s_}", "res")

    def touch(kind, vSP=vSP):
        with k.atomic():
            k(f"s_lshl2_add_u32 s{sD3}, s{sC}, s{sW}")
            sD2 = sD3
            if kind == "h":
                k(f"s_mul_i32 s{sD2}, s{sD2}, 7168")
                k(f"s_add_u32 s{sD2}, s{sD2}, s{sGB}")
                k(f"s_add_u32 s{sD2}, s{sD2}, {G_H}")
                k(f"v_lshlrev_b32 v{vSP}, 7, v{vLANE}")
                k("s_mov_b32 exec_hi, 0xffffff")
                k.vmem(f"buffer_load_dword a{aDUM}, v{vSP}, {srd(S_WS)}, s{sD2} offen sc1", "touch")
                k("s_mov_b32 exec_hi, -1")
            else:
                k(f"v_lshlrev_b32 v{vSP}, 7, v{vLANE}")
                k(f"s_lshl_b32 s{sT5}, s{sD2}, 11")
                k(f"s_add_u32 s{sT5}, s{sT5}, s{sGB}")
                k(f"s_add_u32 s{sT5}, s{sT5}, {G_X1}")
                k("s_mov_b64 exec, 0xffff")
                k.vmem(f"buffer_load_dword a{aDUM}, v{vSP}, {srd(S_WS)}, s{sT5} offen sc1", "touch")
                k(f"s_lshl_b32 s{sD2}, s{sD2}, 7")
                k(f"s_add_u32 s{sD2}, s{sD2}, s{sGB}")
                k("s_mov_b64 exec, 1")
                k(f"s_add_u32 s{sD2}, s{sD2}, {G_ST1}")
                k.vmem(f"buffer_load_dword a{aDUM}, v{vSP}, {srd(S_WS)}, s{sD2} offen sc1", "touch")
                k("s_mov_b64 exec, -1")

    def touch_slots(first, n, va=vSP):
        with k.atomic():
            k(f"s_lshl2_add_u32 s{sD3}, s{sC}, s{sW}")
            k(f"v_lshlrev_b32 v{va}, 7, v{vLANE}")
            k(f"s_lshr_b32 s{sT5}, s{sD3}, 3")
            k(f"s_mul_i32 s{sT5}, s{sT5}, 57344")
            k(f"s_and_b32 s{sD3}, s{sD3}, 7")
            k(f"s_mul_i32 s{sD3}, s{sD3}, {n*128}")
            k(f"s_add_u32 s{sT5}, s{sT5}, s{sD3}")
            k(f"s_add_u32 s{sT5}, s{sT5}, s{sGB}")
            k(f"s_add_u32 s{sT5}, s{sT5}, {G_H + first*1024}")
            k(f"s_mov_b32 exec_lo, {(1 << min(n, 32)) - 1}")
            k(f"s_mov_b32 exec_hi, {(1 << max(n - 32, 0)) - 1}")
            k.vmem(f"buffer_load_dword a{aDUM}, v{va}, {srd(S_WS)}, s{sT5} offen sc1", "touch")
            k("s_mov_b64 exec, -1")

    def touches(code, va=vSP):
        if code & 1:
            touch("x", va)
        r = {0: None, 1: (0, 16), 2: (16, 8), 3: (0, 24), 4: (24, 32), 6: (16, 40), 7: (0, 56)}[code >> 1]
        if r:
            touch_slots(r[0], r[1], va)

    def packN_issue():
        with k.atomic():
            quad_lane(1024)
            k(f"""
            s_movk_i32 s{sD2}, 8192
            s_lshl_b32 s{sD0}, s{sG}, 15
            s_lshl_b32 s{sD1}, s{sCT}, 7
            s_add_u32 s{sD0}, s{sD0}, s{sD1}
            s_lshl_b32 s{sPDA}, s{sG}, 12
            s_add_u32 s{sPDA}, s{sPDA}, s{sPKB}
            s_add_u32 s{sPDA}, s{sPDA}, {PK_WO}
            s_lshl2_add_u32 s{sD1}, s{sDH}, s{sW}
            s_cmp_lg_u32 s{sD1}, 3
            s_cbranch_scc1 L_nskip
            """)
            for j in range(4):
                dma_raw(S_WO, j * 1024, j == 0)
            k("L_nskip:")

    def packN_finish(T):
        k(f"s_lshl2_add_u32 s{sD1}, s{sDH}, s{sW}")
        k(f"s_cmp_lg_u32 s{sD1}, 3")
        k("s_cbranch_scc1 L_nfskip")
        for f in range(4):
            k(f"v_add_u32 v{T+16+f}, {L_XST + 3*16384}, v{vQ0+f}")
        for f in range(4):
            for hh in range(2):
                k(f"ds_read_b64_tr_b16 {vr(T+4*f+2*hh,2)}, v{T+16+f} offset:{hh*2048}")
        k("s_waitcnt lgkmcnt(0)")
        for f in range(4):
            k(f"buffer_store_dwordx4 {vr(T+4*f,4)}, v{vL16}, {srd(S_WS)}, s{sPDA} offen offset:{f*1024} sc1")
        k("L_nfskip:")

    def pack_finish(T, base, shift, quad_if_3, tag="pk", sPDA=sPDA):
        lb, le = k.label("L_qb"), k.label("L_qe")
        k(f"s_lshl_b32 s{sT5}, s{sW}, {shift}")
        k(f"s_add_u32 s{sT5}, s{sT5}, {base}")
        k.vm_wait(tag)
        k.ds_all()
        k(f"s_cmp_eq_u32 s{sW}, 3")
        k(f"s_cbranch_scc{0 if quad_if_3 else 1} {lb}")
        for f in range(4):
            k(f"v_add_u32 v{T+16+f}, s{sT5}, v{vQ0+f}")
        for f in range(4):
            for hh in range(2):
                k(f"ds_read_b64_tr_b16 {vr(T+4*f+2*hh,2)}, v{T+16+f} offset:{hh*2048}")
        k("s_waitcnt lgkmcnt(0)")
        for f in range(4):
            k(f"buffer_store_dwordx4 {vr(T+4*f,4)}, v{vL16}, {srd(S_WS)}, s{sPDA} offen offset:{f*1024} sc1")
        k(f"s_branch {le}")
        k(f"{lb}:")
        k(f"v_add_u32 v{T+16}, s{sT5}, v{vTR0}")
        k(f"v_add_u32 v{T+17}, s{sT5}, v{vTR1}")
        k(f"v_lshl_add_u32 v{T+18}, v{vLANE}, 3, s{sT5}")
        for f in range(2):
            for hh in range(2):
                k(f"ds_read_b64_tr_b16 {vr(T+4*f+2*hh,2)}, v{T+16+f} offset:{hh*1024}")
        nf = 2 if quad_if_3 else 3
        if nf == 3:
            for hh in range(2):
                k(f"ds_read_b64_tr_b16 {vr(T+8+2*hh,2)}, v{T+18} offset:{2048+hh*512}")
        k("s_waitcnt lgkmcnt(0)")
        for f in range(nf):
            k(f"buffer_store_dwordx4 {vr(T+4*f,4)}, v{vL16}, {srd(S_WS)}, s{sPDA} offen offset:{f*1024} sc1")
        if nf == 3:
            k(f"buffer_load_dword a{aDUM}, v{vL16}, {srd(S_W1)}, s{S_W1+2} offen")
            nf = 4
        k(f"{le}:")
        k.vm_note(nf, "pst")

    def pack_flag(off=0):
        k(f"""
        s_lshl_b32 s{sT5}, s2, 7
        s_add_u32 s{sT5}, s{sT5}, {WS_PD + off}
        s_cmp_lg_u32 s{sW}, 0
        s_cselect_b32 s{sT5}, {OOB}, s{sT5}
        v_mov_b32 v{vT1}, s{sTAG}
        s_mov_b64 exec, 1
        """)
        k.vmem(f"buffer_store_dword v{vT1}, v{vL16}, {srd(S_WS)}, s{sT5} offen sc1")
        k("s_mov_b64 exec, -1")

    def pack_check_issue(off, va, vd, sb):
        with k.atomic():
            k(f"v_and_b32 v{va}, 1, v{vLANE}")
            k(f"v_lshlrev_b32 v{va}, 7, v{va}")
            k(f"v_lshrrev_b32 v{vd}, 1, v{vLANE}")
            if o.get("sub", 1):
                k(f"v_and_b32 v{vd}, 1, v{vd}")
                k(f"s_lshl2_add_u32 s{sT5}, s{sC}, s{sW}")
                k(f"s_lshl_b32 s{sT5}, s{sT5}, 1")
            else:
                k(f"v_and_b32 v{vd}, 7, v{vd}")
                k(f"s_lshl_b32 s{sT5}, s{sCT if off else sC}, 3")
            k(f"v_add3_u32 v{va}, v{va}, v{vd}, s{sT5}")
            if WP:
                k("s_mov_b32 exec_lo, 0")
                k(f"v_and_b32 v{va}, 0xbf, v{va}")
                k("s_mov_b32 exec_lo, -1")
            k(f"v_min_u32 v{vd}, 29, v{vLANE}")
            k(f"s_mul_i32 s{sT5}, s{sW}, 56")
            k(f"s_lshr_b32 s{sb}, s{sCT}, 1")
            k(f"s_add_u32 s{sT5}, s{sT5}, s{sb}")
            k(f"s_sub_u32 s{sT5}, s{sT5}, 64")
            k(f"v_lshl_add_u32 v{vd}, v{vd}, 2, s{sT5}")
            k("s_mov_b32 vcc_lo, 0xffff")
            k("s_mov_b32 vcc_hi, -1")
            k(f"s_mov_b32 s{sb}, {WS_PD + off}")
            k(f"v_cndmask_b32 v{va}, v{vd}, v{va}, vcc")
            k(f"v_lshlrev_b32 v{va}, 7, v{va}")
            k.vmem(f"buffer_load_dword v{vd}, v{va}, {srd(S_WS)}, s{sb} offen sc1", "pc")

    def pack_check(va, vd, sb):
        lp, ok = k.label("L_pc"), k.label("L_pcok")
        with k.atomic():
            k.vm_wait("pc")
            k(f"{lp}:")
            k(f"v_cmp_ne_u32 vcc, s{sTAG}, v{vd}")
            k(f"s_cbranch_vccz {ok}")
            if o.get("bo", 0):
                k(f"s_sleep {o['bo']}")
            if o.get("fl", 1):
                k("s_mov_b64 exec, vcc")
            k(f"buffer_load_dword v{vd}, v{va}, {srd(S_WS)}, s{sb} offen sc1")
            if o.get("fl", 1):
                k("s_mov_b64 exec, -1")
            k("s_waitcnt vmcnt(0)")
            k(f"s_sub_u32 s{sBUD}, s{sBUD}, 1")
            k(f"s_cbranch_scc0 {lp}")
            k(f"s_mov_b32 s{sBUD}, 0")
            k(f"{ok}:")

    aPK = 128

    def park_addr(va, base, shift):
        k(f"v_bfe_u32 v{va}, v{vLANE}, 4, 1")
        k(f"v_lshlrev_b32 v{va}, 10, v{va}")
        k(f"v_lshrrev_b32 v{va+1}, 5, v{vLANE}")
        k(f"v_mul_u32_u24 v{va+1}, 0x120, v{va+1}")
        k(f"v_add_u32 v{va}, v{va}, v{va+1}")
        k(f"v_and_b32 v{va+1}, 0xd8, v{vTR0}")
        k(f"s_lshl_b32 s{sT5}, s{sW}, {shift}")
        k(f"s_add_u32 s{sT5}, s{sT5}, {base}")
        k(f"v_add3_u32 v{va}, v{va}, v{va+1}, s{sT5}")
        k(f"v_xor_b32 v{va+1}, 32, v{va}")

    def park_kv(va):
        for r in range(4):
            for blk in range(4):
                for hh in range(2):
                    k.lds(f"ds_read_b64_tr_b16 {ar(aPK + 16*(r ^ 2) + 4*blk + 2*hh, 2)}, v{va + (blk & 1)} offset:{r*16384 + (blk >> 1)*2048 + hh*512}")

    def park_q(va):
        for r in range(4):
            for b in range(2):
                for hh in range(2):
                    k.lds(f"ds_read_b64_tr_b16 {ar(aPK + 64 + 8*r + 4*b + 2*hh, 2)}, v{va + b} offset:{r*8192 + hh*512}")

    def unpark(va, js):
        for j in js:
            with k.atomic():
                if j in (js[0], 16):
                    k(f"s_lshl_b32 s{sT5}, s{sW}, {11 if j >= 16 else 12}")
                    if j >= 16:
                        k(f"s_add_u32 s{sT5}, s{sT5}, {R1}")
                    k(f"v_add_u32 v{va}, s{sT5}, v{vL16}")
                off = ((j - 16) // 2) * 8192 + (j % 2) * 1024 if j >= 16 else ((j // 4) ^ 2) * 16384 + (j % 4) * 1024
                k.lds(f"ds_write_b128 v{va}, {ar(aPK + 4*j, 4)} offset:{off}", ("up", j // 4))

    def rot_setup():
        with k.atomic():
            k(f"s_lshr_b32 s{sD0}, s{sC}, 1")
            k(f"s_xor_b32 s{sD0}, s{sD0}, s{sG}")
            k(f"s_and_b32 s{sD0}, s{sD0}, 1")
            k(f"s_and_b32 s{sD1}, s{sC}, 1")
            k(f"s_lshl1_add_u32 s{sD0}, s{sD0}, s{sD1}")
            for q in range(4):
                k(f"s_add_u32 s{sD1}, s{sD0}, {q}")
                k(f"s_and_b32 s{sD1}, s{sD1}, 3")
                k(f"s_lshl_b32 s{sD1}, s{sD1}, 12")
                k(f"s_add_u32 s{S_A+q}, s{sD1}, {G_X2}")

    def wq_raw():
        k(f"s_lshl_b32 s{sL1}, s{sW}, 11")
        with k.atomic():
            k(f"v_and_b32 v{vT2}, 3, v{vP}")
            k(f"v_lshrrev_b32 v{vDM}, 4, v{vLANE}")
            k(f"v_lshl_add_u32 v{vT2}, v{vDM}, 3, v{vT2}")
            k(f"s_movk_i32 s{sD3}, 3072")
            k(f"v_mad_u32_u24 v{vDM}, v{vT2}, s{sD3}, v{vCH}")
        for r in range(4):
            for hh in range(2):
                k.dma(S_WQKV, vDM, sRB + r, hh * 4 * 3072, sL1, R1 + r * 8192 + hh * 1024, "wq")

    def async_check(tag, soff, imm):
        ok = k.label("L_aok")
        with k.atomic():
            k.vm_wait(tag)
            k(f"v_cmp_ne_u32 vcc, s{sTAG}, v{vT0}")
            k(f"s_cbranch_vccz {ok}")
            k.save_vm()
            k.poll(soff, imm, False)
            k.restore_vm()
            k(f"{ok}:")

    CSK = vT0
    gA = None
    for layer in range(1 if o.get("one") else 2):
        L1 = layer == 0
        sc = o.get("sc1", 0x04)
        psc = lambda i: bool(sc >> (4 * layer + i) & 1)
        PRE = o.get("pre", 8)
        k.fast = ["", " nt", " sc0", " sc0 nt"][o.get("ntst", 4) >> (2 * layer) & 3]

        def w2t_loads():
            for j in range(56):
                with k.atomic():
                    if j == 0:
                        k(f"s_lshl2_add_u32 s{sPDB}, s{sCT}, s{sW}")
                        k(f"s_mul_i32 s{sPDB}, s{sPDB}, 57344")
                        k(f"s_add_u32 s{sPDB}, s{sPDB}, {WS_W2T}")
                    if j % 4 == 0:
                        k(f"s_add_u32 s{sJ0}, s{sPDB}, {j*1024}")
                    k.vmem(f"buffer_load_dwordx4 {ar(4*j,4)}, v{vL16}, {srd(S_WS)}, s{sJ0} offen offset:{(j%4)*1024} sc1", ("w2t", j // 4))

        w2 = k.rec(w2t_loads) if L1 else []

        def takew2(name, dflt, keep=24):
            nonlocal w2
            n = min(o.get(name, dflt), len(w2) - keep) if L1 else 0
            r, w2 = w2[:n], w2[n:]
            return r

        def kv_consts():
            k.get(vPQ, cCSA)
            k.lds(f"ds_read2_b32 {vr(CSK,2)}, v{vPQ} offset0:0 offset1:16", "cs")
            k.lds(f"ds_read2_b32 {vr(CSK+2,2)}, v{vPQ} offset0:32 offset1:48", "cs")
        if L1:
            CSA = vACC + 32
            k(f"s_and_b32 s{sT0}, s{sW}, 1")
            k(f"s_lshl_b32 s{sT0}, s{sT0}, 5")
            k(f"v_xor_b32 v{vPQ+3}, s{sT0}, v{vTR0}")
            k(f"s_lshr_b32 s{sT0}, s{sW}, 1")
            k(f"s_lshl_b32 s{sT0}, s{sT0}, 11")
            k(f"v_add_u32 v{vPQ+2}, s{sT0}, v{vPQ+3}")
            k(f"s_lshl_b32 s{sT1}, s{sW}, 5")
            k(f"v_xor_b32 v{vPQ+6}, s{sT1}, v{vQ0}")

            def wo_pack():
                T_ = vACT + 96
                for hh in range(2):
                    k.lds(f"ds_read_b64_tr_b16 {vr(T_+2*hh,2)}, v{vPQ+6} offset:{R0 + 49152 + hh*2048}", "wp")
                k.play([lambda: None] * 2)
                with k.atomic():
                    k.ds_wait("wp")
                    k.vmem(f"buffer_store_dwordx4 {vr(T_,4)}, v{vL16}, {srd(S_WS)}, s{sPDA} offen sc1", "pst")
            if o.get("diags"): k.stamp("setup")
            PADP = o.get("padp", 0)
            if W0P == 1:
                k.play(w0_[nw0:])
            if PADP == 1:
                k("PADCALL")
            if W0P == 2:
                k.play(w0_[nw0:])
            if o.get("diags"): k.stamp("w0b")
            own_stats()
            if o.get("diags"): k.stamp("own")
            nx0 = o.get("nx0", 0)
            xslot(0, range(nx0))
            if o.get("pads", 2048) and PADP == 0:
                k("PADCALL")
            if o.get("diags"): k.stamp("pad")
            if o.get("pf1", 0):
                pack_finish(vACT + 64, R1, 12, False, "pu", sPDB)
            xslot(0, range(nx0, 8)); xslot(1, range(o.get("x1pre", 4)))
            if o.get("diags"): k.stamp("xiss")
            if UF == 1 and not o.get("pf1", 0):
                pack_finish(vACT + 64, R1, 12, False, "pu", sPDB)
            if o.get("diags"): k.stamp("pfin")
            xread(0)
            def rnd_begin(r):
                k.vm_wait(("wkv", r))
                k.barrier(True)
                fr = []
                for ks in range(4 * r, 4 * r + 4):
                    fr.append(dict(addr=vPQ + 2, offs=(R0 + ks * 4096, R0 + ks * 4096 + 1024), mf=[(None, None, False, ks == 0, None)]))
                for ks in range(4 * r, 4 * r + 4):
                    for pr in range(2):
                        for b in range(2):
                            base = R0 + ks * 4096 + pr * 2048
                            fr.append(dict(addr=(vTR0, vTR1)[b], offs=(base, base + 1024), mf=mf2(vACC + 16 * pr + 8 * b, ks, False, False)))
                return k.gemm_begin(fr)
            wq = k.rec(wq_raw)
            xslot(1, range(o.get("x1pre", 4), 8))
            g = rnd_begin(0)
            k.stamp("x0")
            f = {}
            if WP:
                w1_ = k.rec(lambda: wkv_raw(1))
                spread(f, w1_[:2], 0, 2); spread(f, k.rec(wo_pack), 0, 1); spread(f, w1_[2:] + k.rec(lambda: xslot(2)), 6, 3)
            else:
                spread(f, k.rec(lambda: (wkv_raw(1), xslot(2))), 0, 3)
            spread(f, k.rec(lambda: xread(1)), 30, 1, 2); k.gemm_run(g, f)
            k.stamp("r0")
            g = rnd_begin(1)
            f = {}
            if UF == 1:
                spread(f, k.rec(pack_flag), 1, 0)
            spread(f, k.rec(lambda: (wkv_raw(2), xslot(3))), 0, 3); spread(f, k.rec(lambda: xread(2)), 31, 1, 2); k.gemm_run(g, f)
            k.stamp("r1")
            g = rnd_begin(2)
            nq = o.get("nq", 6)
            if UF == 2:
                pu_ = k.rec(lambda: packU_issue(L_XST + 4096, sD0, sD1, sD2, sD3, sJ0, vDM, sPDB, 14))
                wq = pu_ + wq if o.get("pufirst", 1) else wq + pu_
            f = {}; spread(f, k.rec(lambda: (wkv_raw(3), st0_issue())) + wq[:nq], 0, 3); spread(f, k.rec(lambda: xread(3)), 31, 1, 2); k.gemm_run(g, f)
            k.stamp("r2")
            g = rnd_begin(3)
            f = {}
            spread(f, k.rec(st0_use), 0, 1)
            spread(f, k.rec(lambda: cs_put(0, sW)), 8, 0)
            spread(f, k.rec(stats_b), 10, 1)
            spread(f, k.rec(stats_scale), 24, 1)
            spread(f, k.rec(lambda: park_addr(vRES + 2, R0, 12)), 15, 0)
            pn = k.rec(lambda: (packN_issue(), k.vmem(f"buffer_load_dword a{aDUM}, v{vL16}, {srd(S_W1)}, s{S_W1+2} offen", "pn")))
            pci = k.rec(lambda: pack_check_issue(0, vRES, vRES + 1, sPDB)) if UF == 1 else []
            if o.get("w2e", 8):
                spread(f, wq[nq:] + ([] if o.get("pcl", 0) else pci) + k.rec(lambda: touches(o.get("Tr", 0), vT3)), 1, o.get("r3s", 5))
            else:
                spread(f, wq[nq:] + pn + pci, 1, o.get("r3s", 5))
            bg = []
            k.gemm_run(g, f)
            k.stamp("A.kv")
            k.barrier()
            kv_consts()
        else:
            k.poll_b(sFXp, G_FX2)
            k.stamp("A.poll")
            al = k.rec(lambda: act_loads(G_X2, ring, True))
            PA = o.get("prea", 4)
            k.play(al[:PA])
            k(f"s_add_u32 s{sTAG}, s{sTAG}, 1")
            fill = {}
            sl = k.rec(lambda: stat_loads(G_ST2))
            e = spread(fill, al[PA:12] + [lambda: k.play(sl[:2]), sl[2]], 0, 4)
            for i_ in range(12, 32):
                pos = max(12 * (i_ // 2 - 6) + 11 + 4 * (i_ & 1), e)
                spread(fill, [al[i_]], pos, 1)
                e = pos + 3
            e2 = spread(fill, k.rec(lambda: (stat_sum(), stats_finalize(True), stats_b())), 60, 1.3)
            e2 = spread(fill, k.rec(stats_scale), e2 + 6, 1.3)
            spread(fill, k.rec(kv_consts), e2, 1.3)
            spread(fill, k.rec(lambda: lin_dma(PK_WO + 32768, R2, 8, "wo", True)), e, o.get("wos", 5))
            if o.get("diagc"):
                for ix in (0, 23, 47, 95, 143):
                    spread(fill, k.rec(lambda: k.stamp(f"A.m{ix}", True)), ix, 0)
            k.gemm_run(gA, fill)
            k.stamp("A.kv")
            k("s_barrier")
            bg = []
        k("s_nop 2")
        k.get(vWB + 22, cKW1 if L1 else cKW)
        k.get(vWB + 23, cKR1 if L1 else cKR)
        k.ds_all()
        PK, PV, TMP = vPQ, vACC, vWB + 24
        KVA = vACC + 16

        def kv_epi():
            for h in range(2):
                for rb in range(2):
                    phi_block(vACC + 8*h + 4*rb, NM_B + 4*rb, CSK + h, RL_B + 4*rb, RS_B + 4*rb, PK + 4*h + 2*rb, TMP, "b")
            for h in range(2):
                for rb in range(2):
                    a = vACC + 16 + 8*h + 4*rb
                    c2, m = bcast(CSK + 2 + h, 1, 3)
                    for p in range(2):
                        k(f"v_pk_fma_f32 {vr(a+2*p,2)}, {vr(NM_B+4*rb+2*p,2)}, {c2}, {vr(a+2*p,2)}{m}")
                    for p in range(2):
                        k(f"v_pk_mul_f32 {vr(a+2*p,2)}, {vr(a+2*p,2)}, {vr(RS_B+4*rb+2*p,2)}")
                    for p in range(2):
                        k(f"v_cvt_pk_bf16_f32 v{PV+4*h+2*rb+p}, v{a+2*p}, v{a+2*p+1}")
                    if rb == 0:
                        k(f"v_mfma_f32_16x16x32_bf16 {vr(vACC+8+4*h,4)}, {vr(PK+4*h,4)}, {ar(aONES,4)}, 0")
                if h == 0:
                    pass
        if L1:
            we = takew2("w2e", 8)
            ke = mix(k.rec(kv_epi), k.rec(lambda: park_kv(vRES + 2)), 3)
            if o.get("pcl", 0):
                w2 = we + w2
                we = []
                touches(o.get("Te", 6), vWB + 20)
                k.play(ke[:o["pcl"]]); ke = ke[o["pcl"]:]
                k.play(pci)
            if we:
                c0 = o.get("w2c", 40)
                touches(o.get("Te", 6), vWB + 20)
                k.play(ke[:c0])
                pack_check(vRES, vRES + 1, sPDB)
                ke = mix(ke[c0:], we, (135 - c0) // len(we))
            k.play(ke)
        else:
            wod = k.rec(lambda: lin_dma(PK_WO, R1, 8, "wo", True))
            nwo = o.get("nwo", 0)
            k.play(mix(k.rec(kv_epi), wod[:nwo], 100 // max(nwo, 1))); wod = wod[nwo:]
        KRO = [0, 16384, 32768, 49152 if L1 else 36864]
        k.lds(f"ds_write_b128 v{vWB+22}, {vr(vACC+8,4)} offset:{KRO[2]}")
        for h in range(2):
            k(f"v_mfma_f32_16x16x32_bf16 {vr(KVA+4*h,4)}, {vr(PK+4*h,4)}, {vr(PV+4*h,4)}, 0")
        k.lds(f"ds_write_b128 v{vWB+22}, {vr(vACC+12,4)} offset:{KRO[3]}")
        k.get(vWB + 21, cKVS)
        k("s_nop 4")
        for h in range(2):
            k.lds(f"ds_write_b128 v{vWB+22}, {vr(KVA+4*h,4)} offset:{KRO[h]}")
        if L1 and UF == 1:
            k.vm_wait("wq")
        k.barrier()
        for s in range(4):
            k.lds(f"ds_read_b128 {vr(vWB+4*s,4)}, v{vWB+23} offset:{s*1024}", ("kr", s))
        KO = vACC + 32
        k.ds_wait(("kr", 1))
        for p in range(2):
            k(f"v_pk_add_f32 {vr(vWB+2*p,2)}, {vr(vWB+2*p,2)}, {vr(vWB+4+2*p,2)}")
        k.ds_wait(("kr", 3))
        for p in range(2):
            k(f"v_pk_add_f32 {vr(vWB+8+2*p,2)}, {vr(vWB+8+2*p,2)}, {vr(vWB+12+2*p,2)}")
        for p in range(2):
            k(f"v_pk_add_f32 {vr(KO+2*p,2)}, {vr(vWB+2*p,2)}, {vr(vWB+8+2*p,2)}")
        k(f"v_and_b32 v{KO}, 0xffffff00, v{KO}")
        k(f"v_or_b32 v{KO}, s{sT8}, v{KO}")
        k(f"s_mov_b64 exec, s[{sKM}:{sKM+1}]")
        k.vmem(f"buffer_store_dwordx4 {vr(KO,4)}, v{vWB+21}, {srd(S_WS)}, s{sKVP} offen sc1", "kvst")
        k("s_mov_b64 exec, -1")
        k.stamp("A.kvpub")
        fill = {}
        fr = []
        CSQ = vACC + 24

        def q_consts():
            k.get(vT0, cCSB)
            for h in range(2):
                k.lds(f"ds_read_b128 {vr(CSQ+4*h,4)}, v{vT0} offset:{(4+h)*64}")
        if L1:
            if UF == 1:
                if not o.get("w2e", 8) or o.get("pcl", 0):
                    pack_check(vRES, vRES + 1, sPDB)
            else:
                pack_finish(vWB, L_XST + 4096, 14, False, "pu", sPDB)
                k.vm_wait("pn")
                k("s_barrier")
            if not o.get("w2e", 8):
                packN_finish(vWB)
            park_addr(vPQ + 4, R1, 11)
            if o.get("diag"): k.stamp("q.pf")
            k(f"v_add_u32 v{vPQ}, {R1}, v{vTR0}")
            k(f"v_add_u32 v{vPQ+1}, {R1}, v{vTR1}")
            k(f"s_and_b32 s{sT0}, s{sW}, 1")
            k(f"s_lshl_b32 s{sT1}, s{sT0}, 5")
            k(f"v_xor_b32 v{vPQ+2}, s{sT1}, v{vPQ}")
            for j in range(16):
                fr.append(dict(addr=vPQ + 2, offs=(j * 2048, j * 2048 + 1024), mf=[(None, None, False, j == 0, None)]))
            for ks in range(16):
                for b in range(2):
                    fr.append(dict(addr=vPQ + b, offs=(ks * 2048, ks * 2048 + 1024), mf=mf2(vACC + 8 * b, ks, True, False)))
            wor = k.rec(lambda: lin_dma(PK_WO, R0, 16, "wo", True)) if WP else k.rec(wo_raw)
            e = spread(fill, bg + k.rec(res_load), 0, 1)
            if o.get("arm", 0):
                e = spread(fill, k.rec(lambda: arm(o.get("arm", 0))), e, 2)
            e = spread(fill, k.rec(lambda: touches(o.get("Tq", 0))), e, 1)
            e = spread(fill, wor, e, o.get("wors", 2))
            spread(fill, takew2("w2q", 8), e, 4)
            spread(fill, k.rec(lambda: park_q(vPQ + 4)), 20, 3)
            k.gemm(fr, fill)
            if o.get("diag"): k.stamp("q.mm")
            cs_put(4, sT0)
            if UF == 2:
                k.vm_wait("pst")
            k.barrier()
            if o.get("diag"): k.stamp("q.bar")
            q_consts()
            if UF == 2:
                pack_flag()
        else:
            q_consts()
        lp2, done2 = k.label("L_kp"), k.label("L_kd")
        SM = vWB + 8
        ZL = vACT + 32

        def kv_loads(track):
            ins = [(f"buffer_load_dwordx4 {vr(ZL,4)}, v{vT2}, {srd(S_WS)}, s{sKVC} offen sc1", "zl")]
            for j in range(8):
                ins.append((f"buffer_load_dwordx4 {vr(vACT+4*j,4)}, v{vL16}, {srd(S_WS)}, s{sKVC if j < 4 else sT2} offen offset:{(j%4)*1024} sc1", ("kv", j)))
            for i_, t_ in ins:
                if track:
                    k.vmem(i_, t_)
                else:
                    k(i_)
        if L1:
            w1a = k.rec(lambda: (lin_dma(PK_W1A, R1, 16, "w1a"), lin_dma(PK_W1B, R3, 6, "w1c2")))
        else:
            w1a = []
        k.get(vT2, cZL)
        k(f"s_add_u32 s{sT2}, s{sKVC}, 4096")
        kl = k.rec(lambda: kv_loads(True))
        QS = vACC if L1 else QA
        ph = k.rec(lambda: [phi_block(QS + 8*h + 4*rb, NM_A + rb, CSQ + 4*h, RL_A + rb, RS_A + rb, vPQ + 4*h + 2*rb, vWB, "a")
                            for h in range(2) for rb in range(2)])
        if L1:
            k.play(kl[:5])
            k.ds_all()
            if o.get("diag"): k.stamp("q.kl5")
            na = o.get("w1a0", 4) if UF == 1 else 0
            k.play(mix(ph, kl[5:] + w1a[:na], o.get("phr", 10)))
            w1a = w1a[na:]
        else:
            def unpark_w1():
                for j in range(16):
                    k.lds(f"ds_write_b128 v{vT3}, {vr(vPARK+4*j,4)} offset:{j*1024}")
            k(f"s_lshl_b32 s{sT5}, s{sW}, 14")
            k(f"v_add_u32 v{vT3}, s{sT5}, v{vL16}")
            uw = k.rec(unpark_w1)
            if late:
                nl = o.get("nul", 6)
                f = {}; spread(f, uw[:nl], 1, 2 * len(late) / max(nl, 1)); uw = uw[nl:]
                k.gemm(late, f)
                k("s_barrier")
                k("s_nop 3")
            k.play(wod[:4]); wod = wod[4:]
            k.ds_all()
            nu = o.get("nu", 16)
            k.play(mix(mix(ph, uw[:nu], 5), wod, 10))
            k.play(mix(kl, uw[nu:], 1))
        k.stamp("A.q")
        if L1:
            k("PADCALL1")
        k.get(vT1, cXW)
        k.get(vWB + 18, cZW)
        k.get(vWB + 16, cXR)
        k.get(vWB + 17, cZR)
        k(f"s_branch {lp2}_s")
        k(f"{lp2}:")
        if o.get("zs", 0):
            k(f"buffer_load_dword v{ZL}, v{vT2}, {srd(S_WS)}, s{sKVC} offen sc1")
            k(f"{lp2}_z:")
            k("s_waitcnt vmcnt(0)")
            k(f"v_xor_b32 v{ZL+1}, s{sT8}, v{ZL}")
            k(f"v_and_b32 v{ZL+1}, 0xff, v{ZL+1}")
            k(f"v_cmp_ne_u32 vcc, 0, v{ZL+1}")
            k(f"s_cbranch_vccz {lp2}_y")
            if o.get("bk", 0):
                k(f"s_sleep {o['bk']}")
            k("s_mov_b64 exec, vcc")
            k(f"buffer_load_dword v{ZL}, v{vT2}, {srd(S_WS)}, s{sKVC} offen sc1")
            k("s_mov_b64 exec, -1")
            k(f"s_sub_u32 s{sBUD}, s{sBUD}, 1")
            k(f"s_cbranch_scc0 {lp2}_z")
            k(f"s_mov_b32 s{sBUD}, 0")
            k("s_waitcnt vmcnt(0)")
            k(f"{lp2}_y:")
        elif o.get("bk", 0):
            k(f"s_sleep {o['bk']}")
        kv_loads(False)
        k("s_waitcnt vmcnt(0)")
        k(f"{lp2}_s:")
        k.vm_wait("zl")
        k(f"""
        v_xor_b32 v{ZL}, s{sT8}, v{ZL}
        v_mov_b32 v{SM+4}, v{ZL}
        v_permlane32_swap_b32 v{ZL+2}, v{ZL+3}
        v_permlane32_swap_b32 v{ZL}, v{ZL+1}
        v_add_f32 v{ZL}, v{ZL}, v{ZL+1}
        v_add_f32 v{ZL+2}, v{ZL+2}, v{ZL+3}
        s_nop 1
        v_permlane16_swap_b32 v{ZL}, v{ZL+2}
        v_add_f32 v{ZL}, v{ZL}, v{ZL+2}
        s_nop 1
        v_add_f32_dpp v{ZL}, v{ZL}, v{ZL} row_ror:4 row_mask:0xf bank_mask:0xf
        s_nop 1
        v_add_f32_dpp v{ZL}, v{ZL}, v{ZL} row_ror:8 row_mask:0xf bank_mask:0xf
        v_cvt_pk_bf16_f32 v{ZL}, v{ZL}, v{ZL}
        ds_write_b16 v{vWB+18}, v{ZL}
        """)
        for j in range(0, 8, 2):
            a, b = vACT + 4*j, vACT + 4*j + 4
            k.vm_wait(("kv", j + 1))
            k(f"v_xor_b32 v{a}, s{sT8}, v{a}")
            k(f"v_xor_b32 v{b}, s{sT8}, v{b}")
            k(f"v_or3_b32 v{SM+4}, v{SM+4}, v{a}, v{b}")
            if j == 0:
                for p in range(2):
                    k(f"v_pk_add_f32 {vr(SM+2*p,2)}, {vr(a+2*p,2)}, {vr(b+2*p,2)}")
            else:
                for p in range(2):
                    k(f"v_pk_add_f32 {vr(a+2*p,2)}, {vr(a+2*p,2)}, {vr(b+2*p,2)}")
                for p in range(2):
                    k(f"v_pk_add_f32 {vr(SM+2*p,2)}, {vr(SM+2*p,2)}, {vr(a+2*p,2)}")
        k(f"""
        ds_write_b128 v{vT1}, {vr(SM,4)}
        v_and_b32 v{SM+4}, 0xff, v{SM+4}
        v_cmp_ne_u32 vcc, 0, v{SM+4}
        s_cbranch_vccz {done2}
        s_waitcnt lgkmcnt(0)
        s_sub_u32 s{sBUD}, s{sBUD}, 4
        s_cbranch_scc0 {lp2}
        s_mov_b32 s{sBUD}, 0
        {done2}:
        """)
        k.stamp("A.kvget")
        if L1:
            touches(o.get("Tk", 0))
        n1 = o.get("w1a1", 4) if L1 and UF == 1 else 0
        if L1 and UF == 2:
            pack_check_issue(0, vTR0, vTR1, sPDB)
        k.play(w1a[:n1]); w1a = w1a[n1:]
        k.barrier(True)
        for h in range(2):
            k.lds(f"ds_read_b64 {vr(vWB+4*h+2,2)}, v{vWB+17} offset:{h*32}", "zf")
        for j in range(4):
            k.lds(f"ds_read_b128 {vr(vACT+4*j,4)}, v{vWB+16} offset:{1024*j}")
        k.ds_wait("zf")
        OA = vACC + 16
        for rb in range(2):
            for h in range(2):
                d = OA + 16*rb + 8*h
                k(f"v_mfma_f32_16x16x16_bf16 {vr(d+4,4)}, {vr(vWB+4*h+2,2)}, {vr(vPQ+4*h+2*rb,2)}, 0")
        k.ds_all()
        for h in range(2):
            for p in range(2):
                k(f"v_pk_add_f32 {vr(vACT+8*h+2*p,2)}, {vr(vACT+8*h+2*p,2)}, {vr(vACT+8*h+4+2*p,2)}")
        for h in range(2):
            for p in range(2):
                k(f"v_cvt_pk_bf16_f32 v{vWB+4*h+p}, v{vACT+8*h+2*p}, v{vACT+8*h+2*p+1}")
        for rb in range(2):
            for h in range(2):
                d = OA + 16*rb + 8*h
                k(f"v_add_f32 v{d+4}, s{sEPS}, v{d+4}")
        for rb in range(2):
            for h in range(2):
                d = OA + 16*rb + 8*h
                k(f"v_mfma_f32_16x16x16_bf16 {vr(d,4)}, {vr(vWB+4*h,2)}, {vr(vPQ+4*h+2*rb,2)}, 0")
        for rb in range(2):
            for h in range(2):
                d = OA + 16*rb + 8*h
                k(f"v_rcp_f32 v{d+4}, v{d+4}")
        k("s_nop 1")
        for rb in range(2):
            for h in range(2):
                d = OA + 16*rb + 8*h
                for p in range(2):
                    k(f"v_pk_mul_f32 {vr(d+2*p,2)}, {vr(d+2*p,2)}, {vr(d+4,2)} op_sel_hi:[1,0]")
                for p in range(2):
                    k(f"v_cvt_pk_bf16_f32 v{vPQ+4*rb+2*h+p}, v{d+2*p}, v{d+2*p+1}")
        k.stores([f"buffer_store_dwordx4 {vr(vPQ+4*rb,4)}, v{vL16}, {srd(S_WS)}, s{sOST+rb} offen" for rb in range(2)], psc(0))
        nb = o.get("w1a_pre1", 6) if L1 else o.get("w1a_pre", 0)
        if L1 and UF == 2:
            pack_check(vTR0, vTR1, sPDB)
        if L1:
            touches(o.get("To", 0))
        k.play(w1a[:nb])
        if L1:
            for s_ in range(2):
                for p in range(2):
                    k(f"v_permlane16_swap_b32 v{vRES+4*s_+p}, v{vRES+4*s_+2+p}")
        urs = k.rec(lambda: unpack_res(vACC))
        fr = []
        for ks in range(16):
            for f in range(4):
                mf = [(vACC + 4 * f, vACT + 4 * ks, True, False, ("act", ks))]
                if L1 and WP:
                    fr.append(dict(addr=vL16, offs=(R0 + ks * 4096 + f * 1024,), mf=mf))
                elif L1:
                    fr.append(dict(addr=vQ0 + f, offs=(R0 + ks * 4096, R0 + ks * 4096 + 2048), mf=mf))
                else:
                    fr.append(dict(addr=vTR0, offs=(ks * 4096 + f * 1024,), mf=mf))
        if L1:
            k("PADCALL2")
        k.poll_prep(15)
        k.flag(sFOo, G_FO)
        k.poll_a(sFOp, G_FO)
        g = k.gemm_begin(fr, 7)
        k.play(urs)
        k.stamp("A.opub")
        k.poll_b(sFOp, G_FO)
        k.stamp("B.poll")

        def b_loads():
            for ks in range(16):
                with k.atomic():
                    if ks % 4 == 0:
                        k(f"s_add_u32 s{sT2}, s{sBACT}, {G_O + ks*1024}")
                    k.vmem(f"buffer_load_dwordx4 {vr(vACT+4*ks,4)}, v{vL16}, {srd(S_WS)}, s{sT2} offen offset:{(ks%4)*1024} sc1", ("act", ks))
        bl = k.rec(b_loads)
        PB = o.get("preb", PRE)
        k.play(bl[:PB])
        fill = {}
        e = spread(fill, bl[PB:], 0, 3)
        if L1:
            e = spread(fill, k.rec(lambda: touches(o.get("Ta", 0))), e, 1)
        e = spread(fill, w1a[nb:], e, o.get("w1st", 3))
        if L1:
            e = spread(fill, k.rec(lambda: touches(o.get("Tb", 1))), e, 1)
        spread(fill, takew2("w2b", 0), e, 4)
        k.gemm_run(g, fill)
        k.stamp("B.mm")
        k(f"v_add_u32 v{vTR1}, {R1}, v{vL16}")
        k("s_nop 6")
        for f in range(4):
            for p in range(2):
                k(f"v_cvt_pk_bf16_f32 v{vRES+2*f+p}, v{vACC+4*f+2*p}, v{vACC+4*f+2*p+1}")
        publish_x(G_X1, G_ST1, G_FX1, psc(1))
        k.play(takew2("w2x", 0))
        k.flag(sFXo, G_FX1)
        if not L1:
            k.poll_a(sFXp, G_FX1)
        k.stamp("B.pub")
        if L1 and o.get("w2e", 8) and not WP:
            k(f"s_lshl2_add_u32 s{sD1}, s{sDH}, s{sW}")
            k(f"s_cmp_lg_u32 s{sD1}, 3")
            k("s_cbranch_scc1 L_nfskip")
            k(f"s_lshl_b32 s{sT5}, s{sG}, 12")
            for f in range(4):
                k(f"v_add_u32 v{vWB+16+f}, s{sT5}, v{vQ0+f}")
            for f in range(4):
                for hh in range(2):
                    k(f"ds_read_b64_tr_b16 {vr(vACC+4*f+2*hh,2)}, v{vWB+16+f} offset:{hh*2048}")
            k(f"s_add_u32 s{sT5}, s{sT5}, s{sPKB}")
            k(f"s_add_u32 s{sT5}, s{sT5}, {PK_WO}")
            k("s_waitcnt lgkmcnt(0)")
            for f in range(4):
                k(f"buffer_store_dwordx4 {vr(vACC+4*f,4)}, v{vL16}, {srd(S_WS)}, s{sT5} offen offset:{f*1024} sc1")
            k("L_nfskip:")
        k("s_barrier")
        w1c2 = k.rec(lambda: lin_dma(PK_W1B + 24576, R0 if L1 else R1, 6, "w1c2"))
        if L1 and not o.get("w2e", 8):
            pack_flag(0x8000)
        nc = o.get("w1c2_pre1", 0) if L1 else o.get("w1c2_pre", 0)
        k.play(w1c2[:nc])
        EU = o.get("eu", 8)
        if L1:
            eup = k.rec(lambda: unpark(vPQ + 1, list(range(EU)))) if EU else []
            k(f"s_lshl_b32 s{sT2}, s{sW}, 10")
            k(f"v_add_u32 v{vPQ}, s{sT2}, v{vTR1}")
            fr = []
            for j in range(16):
                fr.append(dict(addr=vPQ, offs=(j * 4096,), mf=[(None, None, False, j == 0, None)]))
            k.gemm(fr, D=7)
            k.play(eup)
            k("s_nop 5")
            cs_put(6, sW)
        C2 = vACC + 32
        vC1, vC2, vCc, vCd = (vTR1 if L1 else vL16), vDM, vP, vCH
        k(f"v_add_u32 v{vC2}, {R3}, v{vL16}")
        if L1:
            k(f"s_min_u32 s{sPDA}, s{sW}, 2")
            k(f"s_lshl_b32 s{sT2}, s{sPDA}, 10")
            k(f"v_add_u32 v{vCd}, s{sT2}, v{vL16}")
            k(f"v_add_u32 v{vCc}, {R3}, v{vCd}")
        NX = o.get("nx1", 0) if L1 else o.get("nx", 0)
        INIT2 = not L1 and NX == 0
        f2 = []
        fcs = [dict(addr=vCc if ks < 8 else vCd, offs=((ks % 8) * 3072,), mf=[(None, None, False, ks == 0, None)], late=ks >= 8, cs=True) for ks in range(16)]
        for ks in range(16):
            if L1 and ks in (8, 9, 10, 11):
                f2 += fcs[8 + 2 * (ks - 8):10 + 2 * (ks - 8)]
            for b in range(3):
                f2.append(dict(addr=vC2 if ks < 8 else vL16 if L1 else vTR1, offs=((ks % 8) * 3072 + b * 1024,),
                               mf=mf2(C2 + 8 * b, ks, True, False, False if INIT2 else None), late=ks >= 8))
        fr = []
        XS0 = o.get("xs0", 2)
        for ks in range(16):
            if L1 and ks in (4, 6, 8, 10):
                fr += fcs[ks - 4:ks - 2]
            if ks >= XS0:
                n_ = (NX * (ks - XS0 + 1)) // (16 - XS0) - (NX * (ks - XS0)) // (16 - XS0)
                fr += f2[:n_]; f2 = f2[n_:]
            for f in range(4):
                fr.append(dict(addr=vC1, offs=(ks * 4096 + f * 1024,), mf=mf2(vACC + 8 * f, ks, True, True)))
        M1 = sum(len(f["mf"]) for f in fr)
        fr += f2
        NM = sum(len(f["mf"]) for f in fr)
        tl = [i for i, f in enumerate(fr) if f.get("late")][0]
        MB = sum(len(f["mf"]) for f in fr[:tl - 6]) - 4
        if L1:
            tc = [i for i, f in enumerate(fr) if f.get("cs")][-1]
            MC = sum(len(f["mf"]) for f in fr[:tc + 1])
        if L1:
            k.poll_a(sFXp, G_FX1)
        g = k.gemm_begin(fr)
        k.poll_b(sFXp, G_FX1)
        k.stamp("C.poll")
        CS1 = [vPQ, vPQ + 4, vACC + 56, vQ0]

        def c2_init():
            k.get(vT0, cCSB)
            for b in range(3):
                k.lds(f"ds_read_b128 {vr(C2+8*b+4,4)}, v{vT0} offset:{(10+b)*64}", "cs2")
            for _ in range(4):
                k.play([lambda: None])
            k.ds_wait("cs2")
            for b in range(3):
                for rb in range(2):
                    for j in range(4):
                        k(f"v_mul_f32 v{C2+8*b+4*rb+j}, v{C2+8*b+4+j}, v{NM_A+rb}")

        def relu_block(acc, cs, rb, dst):
            if cs is not None:
                for j in range(4):
                    k(f"v_fmac_f32 v{acc+j}, v{cs+j}, v{NM_A+rb}")
            for p in range(2):
                k(f"v_cvt_pk_bf16_f32 v{dst+p}, v{acc+2*p}, v{acc+2*p+1}")
            for p in range(2):
                k(f"v_pk_max_i16 v{dst+p}, v{dst+p}, 0")

        def cs1_reads():
            k.get(vT2, cCSB)
            for b in range(4):
                k.lds(f"ds_read_b128 {vr(CS1[b],4)}, v{vT2} offset:{(6+b)*64}", "cs")

        def epi1():
            k.ds_wait("cs")
            for s in range(2):
                for rb in range(2):
                    for b in range(2):
                        relu_block(vACC + 16*s + 8*b + 4*rb, CS1[2*s+b], rb, vACC + 16*s + 4*rb + 2*b)
                k.stores([f"buffer_store_dwordx4 {vr(vACC+16*s+4*rb,4)}, v{vL16}, {srd(S_WS)}, s{sH1+rb} offen offset:{s*1024}"
                          for rb in range(2)], psc(2))

        def d_setup():
            if L1:
                with k.atomic():
                    k(f"s_lshl_b32 s{sT1}, s{sW}, 13")
                    k(f"s_add_u32 s{sT1}, s{sT1}, s{sGB}")
                with k.atomic():
                    k(f"s_lshl_b32 s{sDK}, s{sW}, 11")
                    k(f"s_add_u32 s{sDK}, s{sDK}, {28*1024}")
                k(f"s_add_u32 s{sT1}, s{sT1}, {G_H + 24*1024}")
                for j in range(4):
                    with k.atomic():
                        k(f"s_add_u32 s{sT0}, s{sW}, {j}")
                        k(f"s_and_b32 s{sT0}, s{sT0}, 3")
                    with k.atomic():
                        k(f"s_lshl2_add_u32 s{sT0}, s{sDH}, s{sT0}")
                        k(f"s_mul_i32 s{sT0}, s{sT0}, 57344")
                    k(f"s_add_u32 s{sRB+j}, s{sT0}, s{sT1}")
            k.poll_prep(7)
        TD = 3 if L1 else o.get("td", 4)
        seq = [(ksl, j) for ksl in range(14 - TD) for j in range(4)] + [(ksl, j) for j in (1, 2, 3, 0) for ksl in range(14 - TD, 14)]
        hb = [0, 0, 0, 0]

        def hload(t):
            ksl, j = seq[t]
            with k.atomic():
                if ksl // 4 != hb[j]:
                    if ksl == 8:
                        k(f"s_sub_u32 s{sRB+j}, s{sRB+j}, s{sDK}")
                    else:
                        k(f"s_add_u32 s{sRB+j}, s{sRB+j}, 4096")
                    hb[j] += 1
                k.vmem(f"buffer_load_dwordx4 {vr(vACT+4*(t%16),4)}, v{vL16}, {srd(S_WS)}, s{sRB+j} offen offset:{(ksl%4)*1024} sc1", ("h", t))
        PC = o.get("prec", PRE)
        al = k.rec(lambda: act_loads(G_X1))
        k.play(al[:PC])
        fill = {}
        sl = k.rec(lambda: stat_loads(G_ST1, vPQ))
        SP = o.get("stp", 0)
        e = spread(fill, al[PC:PC+SP] + [lambda: k.play(sl[:2]), sl[2]] + al[PC+SP:], 0, o.get("cstep", 40) / 10)
        e2 = spread(fill, k.rec(lambda: (stat_sum(vPQ), stats_finalize(False))), 44, 0.9 if INIT2 else 1.3)
        if INIT2:
            spread(fill, k.rec(c2_init), e2 + 1, 0.95)
        if L1:
            spread(fill, k.rec(lambda: k("s_barrier")), 104, 0)
            if o.get("w2e", 8) and not WP:
                spread(fill, k.rec(lambda: pack_flag(0x8000)), 102, 0)
        e = spread(fill, w1c2[nc:], e, 3)
        if L1:
            e = spread(fill, k.rec(lambda: touches(o.get("Tc", 0), vT0)), e, 1)
        spread(fill, k.rec(cs1_reads), M1 - 9, 1)
        if o.get("diagc") and not L1:
            for ix in (0, 31, 63, 95, 127, 151, 175, 199):
                spread(fill, k.rec(lambda: k.stamp(f"C.m{ix}", True)), ix, 0)
        if o.get("diagd"):
            spread(fill, k.rec(lambda: k.stamp("C.mm1")), 127, 0)
        e1 = spread(fill, k.rec(epi1), M1 + 1, 1 / o.get("epr", 4))
        spread(fill, k.rec(lambda: (k.vm_wait("w1c2"), k("s_barrier"))), MB, 0)
        assert e < MB
        e3 = spread(fill, k.rec(d_setup), e1, 1)
        cs2r = k.rec(lambda: [k.lds(f"ds_read_b128 {vr(CS1[b],4)}, v{vT2} offset:{(10+b)*64}") for b in range(3)])
        if not L1 and not INIT2:
            spread(fill, cs2r, e3 + 2, 2)
        if L1:
            def cs2_put():
                k.get(vQ0, cCSA)
                k(f"s_lshl_b32 s{sT5}, s{sPDA}, 6")
                k(f"v_add_u32 v{vQ0}, s{sT5}, v{vQ0}")
                k.lds(f"ds_write_b32 v{vQ0}, a{aCS} offset:{10*64}", "csw")
            assert MC + 6 > e1
            spread(fill, k.rec(cs2_put), MC + 6, 0)
            spread(fill, k.rec(lambda: (k.ds_wait("csw"), k("s_barrier"))), MC + 14, 0)
            spread(fill, cs2r, MC + 16, 2)
        pf = min(e1 + (o.get("fl11", 50) if L1 else o.get("fl1", 20)), NM - 2)
        spread(fill, k.rec(lambda: k.flag(sFHo, G_FH)), pf, 1)
        NE = o.get("ne1", 0) if L1 else o.get("ne", 6)
        pp = NM - 1 if NE == 0 else NM - 3 * NE - o.get("ppd", 18)
        assert pp > pf
        spread(fill, k.rec(lambda: k.vmem(f"buffer_load_dword v{vT0}, v{vT3}, {srd(S_WS)}, s{sFHp} offen offset:{G_FH} sc1", "p1")), pp, 1)
        if NE:
            spread(fill, k.rec(lambda: async_check("p1", sFHp, G_FH)), NM - 3 * NE - 1, 1)
            spread(fill, k.rec(lambda: [hload(t) for t in range(NE)]), NM - 3 * NE, 3)
        if L1:
            wc = takew2("nw2", 24, 24 - EU)
            spread(fill, wc, e, (pp - 1 - e) / max(len(wc), 1))
        k.gemm_run(g, fill)
        k.stamp("C.mm2")
        HO = vWB + 16
        LA = o.get("dla1", 10) if L1 else o.get("dla", 10)
        k("s_nop 3")
        k.ds_all()
        epi2 = k.rec(lambda: [relu_block(C2 + 8*b + 4*rb, None if INIT2 else CS1[b], rb, HO + 8*rb + 2*b) for b in range(3) for rb in range(2)])
        h2sc = psc(2) and not o.get("h2plain", 1)
        its = []
        for rb in range(2):
            its.append(f"buffer_store_dwordx4 {vr(HO+8*rb,4)}, v{vL16}, {srd(S_WS)}, s{sH2+rb} offen")
            its.append(f"buffer_store_dwordx2 {vr(HO+8*rb+4,2)}, v{vL16}, {srd(S_WS)}, s{sH3+rb} offen")
        tail = []
        up = []
        if L1:
            def park_w1():
                with k.atomic():
                    k(f"s_lshl_b32 s{sT5}, s{sW}, 14")
                    k(f"s_add_u32 s{sT5}, s{sT5}, {R1}")
                    k(f"v_add_u32 v{vCH}, s{sT5}, v{vL16}")
                for j in range(0, 16, 2):
                    with k.atomic():
                        for jj in (j, j + 1):
                            k.lds(f"ds_read_b128 {vr(vPARK+4*jj,4)}, v{vCH} offset:{jj*1024}", "pw")
            u_ = k.rec(lambda: (rot_setup(), unpark(vP, list(range(EU, 24)))))
            bar = k.rec(lambda: (k.ds_wait("pw"), k("s_barrier")))
            up = k.rec(park_w1) + u_[:1] + [lambda: k.play(bar)] + u_[1:]
        if NE:
            n2 = o.get("ne2", 2)
            k.play(mix(epi2, k.rec(lambda: [hload(t) for t in range(NE, NE + n2)]), 10))
            k.stores(its, h2sc)
            nxt = NE + n2
            FL2 = o.get("fl2", 5)
        else:
            k.play(epi2)
            k.stores(its, h2sc)
            async_check("p1", sFHp, G_FH)
            for t in range(LA):
                hload(t)
                if len(w2) > 24 - EU and t % 2:
                    k.play(w2[:1]); w2 = w2[1:]
                k.play(up[:1]); up = up[1:]
            k.flag(sFHo, G_FH + 1024)
            nxt = LA
            FL2 = -1
        k.stamp("D.poll1")
        RSD = vPQ
        k.get(vPQ + 1, cRSD)
        k.lds(f"ds_read_b32 v{RSD}, v{vPQ+1}", "rsd")
        def red_addr():
            for j in range(4):
                if L1:
                    k.get(vPQ + 4 + j, cRD0 + j)
                else:
                    with k.atomic():
                        k(f"s_add_u32 s{sT0}, s{sW}, {j}")
                        k(f"s_and_b32 s{sT0}, s{sT0}, 3")
                    with k.atomic():
                        k(f"s_lshl_b32 s{sT0}, s{sT0}, 14")
                        k(f"s_add_u32 s{sT0}, s{sT0}, {max(j-1, 0)*4096}")
                    k(f"v_add_u32 v{vPQ+4+j}, s{sT0}, v{vL16}")
        ur = k.rec(lambda: (unpack_res(vWB), red_addr()))
        wr = []
        for t in range(56):
            ksl, j = seq[t]
            if L1:
                k.vm_wait(("w2t", ksl))
            k.vm_wait(("h", t))
            if o.get("diagd") and t in (0, 8, 16, 24, 32, 40, 48):
                k.stamp(f"D.t{t}")
            if o.get("diagc") and not L1 and t in (0, 4, 8, 16, 24, 32, 40, 48):
                k.stamp(f"D.t{t}", True)
            for f in range(4):
                a = vACC + 16*j + 4*f
                c = "0" if ksl == 0 else vr(a, 4)
                k(f"v_mfma_f32_16x16x32_bf16 {vr(a,4)}, {ar((ksl*4+f)*4,4)}, {vr(vACT+4*(t%16),4)}, {c}")
                if f in (0, 2) and nxt < 56 and nxt <= t + LA and (f == 0 or nxt < t + LA):
                    if nxt == 32 - o.get("p2d", 11):
                        k.vmem(f"buffer_load_dword v{vT0}, v{vT3}, {srd(S_WS)}, s{sFHp} offen offset:{G_FH+1024} sc1", "p2")
                    if nxt == 32:
                        async_check("p2", sFHp, G_FH + 1024)
                    hload(nxt)
                    nxt += 1
                    if nxt == 56 and not L1 and o.get("wb", 0):
                        lw = k.label("L_wb")
                        k(f"s_lshl3_add_u32 s{sT0}, s{sW}, s2")
                        k(f"s_cmp_ge_u32 s{sT0}, 8")
                        k(f"s_cbranch_scc1 {lw}")
                        k("buffer_wbl2 sc1")
                        k(f"s_branch {lw}_e")
                        k(f"{lw}:")
                        k(f"buffer_load_dword a{aDUM}, v{vT3}, {srd(S_WS)}, s{sFHp} offen offset:{G_FH} sc1")
                        k(f"{lw}_e:")
                        k.vm_note(1, "wb")
                if f in ((1, 3) if t < o.get("up2", 3) else (1,)) and up:
                    k.play(up[:1]); up = up[1:]
                if f == 2:
                    nup = 24 - len(up)
                    if w2 and (len(w2) > 24 or not up or nup >= 4 * ((24 - len(w2)) // 4 + 1) + 1):
                        if len(w2) <= 24:
                            k.ds_wait(("up", (24 - len(w2)) // 4))
                        k.play(w2[:1]); w2 = w2[1:]
                    elif t >= o.get("tl0", 46) and tail:
                        nn = o.get("tln", 2)
                        k.play(tail[:nn]); tail = tail[nn:]
                if f == 3 and t == FL2:
                    k.flag(sFHo, G_FH + 1024)
                if 4 * t + f == 203 and L1:
                    k.ds_wait(("rw", 1))
                    k("s_barrier")
                    for f_ in range(4):
                        k.lds(f"ds_read_b128 {vr(vACC+16+4*f_,4)}, v{vPQ+4} offset:{f_*1024}", "rd0")
                if 4 * t + f == 215 and L1:
                    k.ds_wait("rd0")
                    k("s_barrier")
                if f == 3 and t == 2 and L1 and not WP:
                    pack_check_issue(0x8000, vTR0, vTR1, sPDA)
                if f == 3 and t == 14 and L1 and not WP:
                    pack_check(vTR0, vTR1, sPDA)
                if f == 3 and t == o.get("tx", 99) and L1:
                    touch("x", vDM)
                if f == 1 and t >= 8 and ur:
                    k.play(ur[:1]); ur = ur[1:]
                if wr and wr[0][0] <= 4 * t + f:
                    k.lds(*wr.pop(0)[1:])
            if ksl == 13 and j:
                for f in range(4):
                    wr.append((4 * t + 9 + 2 * f, f"ds_write_b128 v{vPQ+4+j}, {vr(vACC+16*j+4*f,4)} offset:{f*1024}", ("rw", j)))
        assert not w2 and not ur and not wr and not up
        k.stamp("D.mm")
        if not L1:
            k.get(vT2, cOUT)
        if L1:
            k("s_nop 3")
            for f in range(4):
                for p in range(2):
                    k(f"v_pk_add_f32 {vr(vACC+4*f+2*p,2)}, {vr(vACC+4*f+2*p,2)}, {vr(vACC+16+4*f+2*p,2)}")
        k.barrier()
        NJ = 2 if L1 else 3
        RB_ = vACC + 64 - 16 * NJ
        for f in range(4):
            for j in range(NJ):
                k.lds(f"ds_read_b128 {vr(RB_+16*j+4*f,4)}, v{vPQ+4} offset:{j*4096+f*1024}", ("rd", f))
        for f in range(4):
            k.ds_wait(("rd", f))
            for j in range(NJ):
                for p in range(2):
                    k(f"v_pk_add_f32 {vr(vACC+4*f+2*p,2)}, {vr(vACC+4*f+2*p,2)}, {vr(RB_+16*j+4*f+2*p,2)}")
            for p in range(2):
                k(f"v_pk_fma_f32 {vr(vACC+4*f+2*p,2)}, {vr(vACC+4*f+2*p,2)}, {vr(RSD,2)}, {vr(vWB+4*f+2*p,2)} op_sel_hi:[1,0,1]")
            for p in range(2):
                k(f"v_cvt_pk_bf16_f32 v{vRES+2*f+p}, v{vACC+4*f+2*p}, v{vACC+4*f+2*p+1}")
        k.stamp("D.red")
        if L1:
            publish_x(G_X2, G_ST2, G_FX2, psc(3))
            k(f"s_sub_u32 s{sT0}, s{sDK}, 8192")
            for j in range(4):
                k(f"s_add_u32 s{sRB+j}, s{sRB+j}, s{sT0}")
            k(f"s_add_u32 s{sKVC}, s{sKVC}, 0x100000")
            k(f"s_add_u32 s{sKVP}, s{sKVP}, 0x100000")
            k.flag(sFXo, G_FX2)
            k.poll_a(sFXp, G_FX2)
            k.stamp("D.pub")
            k("s_barrier")
            fr = []
            k(f"v_add_u32 v{vTR0}, {R1}, v{vL16}")
            late = []
            for ks in range(16):
                fq = [dict(addr=vTR0, offs=(ks * 2048 + b * 1024,), mf=mf2(QA + 8 * b, ks, True, True, act=ring)) for b in range(2)]
                fk = [dict(addr=vL16, offs=(R0 + ks * 4096 + b * 1024,), mf=mf2(vACC + 8 * b, ks, False, True, act=ring)) for b in range(4)]
                if ks < 16 - o.get("qlag", 6):
                    fr += fk + fq
                else:
                    fr += fk
                    late += fq
            gA = k.gemm_begin(fr)
        else:
            k("s_nop 1")
            for s in range(2):
                for p in range(2):
                    k(f"v_permlane16_swap_b32 v{vRES+4*s+p}, v{vRES+4*s+2+p}")
                k.vmem(f"buffer_store_dwordx4 {vr(vRES+4*s,4)}, v{vT2}, {srd(S_OUT)}, 0 offen offset:{64*s}{['', ' sc1', ' sc1 nt', ' nt'][o.get('outsc1', 1)]}")
            le = k.label("L_ep")
            k(f"s_or_b32 s{sT2}, s2, s{sW}")
            k(f"s_cbranch_scc1 {le}")
            k(f"s_add_u32 s{sEP}, s{sEP}, 1")
            k(f"v_mov_b32 v{vT1}, s{sEP}")
            k("s_mov_b64 exec, 1")
            k(f"buffer_store_dword v{vT1}, v{vL16}, {srd(S_WS)}, 0 offen offset:{WS_EPOCH}")
            k("s_mov_b64 exec, -1")
            k(f"{le}:")
            if stamps:
                k.vm_all()
                k.stamp("end")
                k(f"s_memrealtime s[{sST}:{sST+1}]")
                k("s_waitcnt lgkmcnt(0)")
                k(f"v_writelane_b32 v{vSTAMP}, s{sST}, 61")
                k(f"v_writelane_b32 v{vSTAMP}, s{sBUD}, 60")
                k(f"v_writelane_b32 v{vSTAMP}, s{sSLOW}, 59")
                k(f"s_lshl2_add_u32 s{sT2}, s2, s{sW}")
                k(f"s_lshl_b32 s{sT2}, s{sT2}, 8")
                k(f"s_add_u32 s{sT2}, s{sT2}, {WS_STAMP}")
                k(f"v_lshrrev_b32 v{vT0}, 2, v{vL16}")
                k(f"buffer_store_dword v{vSTAMP}, v{vT0}, {srd(S_WS)}, s{sT2} offen")
    k("L_end:")
    lines = merge_waits(k.lines)
    if o.get("pads", 2048):
        lines = add_pads(lines, k.tailcode, o.get("pads", 2048), [x for x in (o.get("ps1", 0), o.get("ps2", 0)) if x])
    body = "\n".join(lines)
    tailc = "\n".join(k.tailcode)
    hdr = open("interleave_layers__linear_attn_block__dense_activation_relu__prompt.s.ref").read().split("; Override")[0]
    txt = f"""{hdr}; Generated by a hand-written generator (persistent kernel, one workgroup per CU).
; @launch grid=(256,1,1) block=(256,1,1) lds={LDS_BYTES}
.amdgcn_target "amdgcn-amd-amdhsa--gfx950"
.text
.globl {NAME}
.p2align 8
.type {NAME},@function
.set CODE_BYTES, L_code_end - L_pcref - 512
{NAME}:
{body}
    s_endpgm
L_code_end:
{tailc}
.section .rodata,"a"
.p2align 6
.amdhsa_kernel {NAME}
  .amdhsa_next_free_vgpr 512
  .amdhsa_next_free_sgpr 102
  .amdhsa_accum_offset 256
  .amdhsa_group_segment_fixed_size 0
  .amdhsa_kernarg_size 72
  .amdhsa_user_sgpr_count 2
  .amdhsa_user_sgpr_kernarg_segment_ptr 1
  .amdhsa_system_sgpr_workgroup_id_x 1
.end_amdhsa_kernel
"""
    return txt, k.stamp_names


if __name__ == "__main__":
    out = sys.argv[1]
    stamps = "stamps" in sys.argv[2:]
    opts = {}
    for a in sys.argv[2:]:
        if "=" in a:
            x, y = a.split("=")
            opts[x] = int(y)
    txt, names = gen(stamps, opts)
    open(out, "w").write(txt)
    if stamps:
        open(out + ".names", "w").write("\n".join(names))
```

```python
import sys
from contextlib import contextmanager

NAME = "interleave_layers__linear_attn_block__dense_activation_relu__prompt_kernel"

WS_EPOCH = 0
WS_XID = 0x8000
WS_PD = 0x10000
GRP0 = 0x100000
G_FO, G_FX1, G_FX2, G_FH = 0, 512, 1024, 1536
G_ST1 = 0x1000
G_ST2 = G_ST1
G_ST0 = 0x4000
G_X1 = 0x8000
G_X2 = G_X1
G_H = G_X1 + 0x20000
G_O = G_H
WS_KVX = 0x1200000
KVX_C = 0x9000
WS_W2T = 0x1400000
WS_PK = 0x1600000
PK_KV, PK_Q, PK_W1A, PK_W1B, PK_WO, PK_SZ = 0, 65536, 98304, 163840, 212992, 278528
WS_STAMP = 0x1B00000
WS_USED = 0x1C00000
OOB = 0x7f000000

R0, R1, R2, R3 = 0, 65536, 98304, 131072
L_SM = 161792
L_CS = L_SM
L_ZB = L_SM + 896
L_STAT = L_SM + 1024
L_XB = L_SM - 4096
W1B_N1 = 8
L_XST = 98304
L_RED = R2
L_PST = R2
LDS_BYTES = 163840

S_X, S_WQKV, S_WO, S_W1, S_W2, S_OUT, S_WS = 4, 8, 12, 16, 20, 24, 28
(sW, sC, sG, sTAG, sSLOW, sGB, sBUD, sEP, sEPS, _e1, sT0, sT1, sT2, sT3, sT4, sT5,
 sACT, sACT1, sBACT, sTILE, sOST, sOST1, sFOo, sFOp, sFXo, sFXp, sSTo, sSTg,
 sH1, sH1b, sH2, sH2b, sH3, sH3b, sFHo, sFHp, sRB, _r1, _r2, _r3, sKVC, sKVP,
 sDH, sCT, sXCC, sT8, sD0, sD1, sD2, sD3, sL0, sL1, sPKB, sPDA, sPDB, sJ0) = range(32, 88)
assert sEPS % 2 == 0
sRHO = sT8
S_A, S_B = 88, 92
sKEX = 88
sDK = 92
sS8 = 93
sKM = 96
sST = 98
sPC = 100

vLANE, vL16, vTR0, vTR1, vQ0, vQ1, vQ2, vQ3, vP, vCH, vDM, vSTAMP = range(12)
vT0, vT1, vT2, vT3 = 12, 13, 14, 15
vSP, vSP2 = vP, vCH
vRES = 16
vPQ = 24
vWB = 32
vACC = 64
vACT = 128
BF1 = "0x3f803f80"
(cCSA, cCSB, cP16, aDUM, cSTO, cSTW, cSTA, cSTB, cKW, cKR, cKW1, cKR1, cKVS, cXW, cXR, cZR,
 cRD0, cRD1, cRD2, cRD3, cRSD, cOUT, cZL, cZW) = range(224, 248)
aONES, aCS = 248, 252


def srd(s):
    return f"s[{s}:{s+3}]"


def vr(a, n=1):
    return f"v{a}" if n == 1 else f"v[{a}:{a+n-1}]"


def ar(a, n=1):
    return f"a{a}" if n == 1 else f"a[{a}:{a+n-1}]"


def bcast(r, pos, n):
    lo = [0] * n
    hi = [1] * n
    if r % 2 == 0:
        hi[pos] = 0
    else:
        lo[pos] = 1
    f = lambda x: "[" + ",".join(map(str, x)) + "]"
    return vr(r & ~1, 2), f" op_sel:{f(lo)} op_sel_hi:{f(hi)}"


class K:
    def __init__(self, stamps=False, opts=None):
        self.lines = []
        self.nlab = 0
        self.vm = []
        self.ds = []
        self.stamps = stamps
        self.stamp_names = []
        self.o = opts or {}
        self._rec = None
        self.seen = set()
        self.tailcode = []
        self.lights = []
        self.fast = ""

    def _do(self, fn, cost=None):
        if cost is not None:
            fn.cost = cost
        if self._rec is not None:
            self._rec.append(fn)
        else:
            fn()

    def rec(self, f):
        assert self._rec is None
        self._rec = []
        f()
        r, self._rec = self._rec, None
        return r

    @contextmanager
    def atomic(self):
        if self._rec is None:
            yield
            return
        outer, self._rec = self._rec, []
        yield
        inner, self._rec = self._rec, outer
        g = lambda: [x() for x in inner]
        g.cost = sum(getattr(x, "cost", 4) for x in inner)
        outer.append(g)

    def play(self, items):
        for x in items:
            self._do(x)

    def _emit(self, l):
        self.lines.append(("" if l.endswith(":") else "    ") + l)

    def __call__(self, s):
        for l in s.split("\n"):
            l = l.strip()
            if l:
                self._do(lambda l=l: self._emit(l), 8 if l.startswith(("v_exp", "v_rsq", "v_rcp", "buffer_")) else 0 if l.endswith(":") else 4)

    def label(self, base="L"):
        self.nlab += 1
        return f"{base}_{self.nlab}"

    def vmem(self, s, tag=None):
        def f():
            self._emit(s)
            self.vm.append(tag)
            self.seen.add(tag)
        self._do(f, 8)

    def vm_note(self, n, tag=None):
        self._do(lambda: (self.vm.extend([tag] * n), self.seen.add(tag)))

    def _wait(self, lst, tag, name, mx):
        if tag not in lst:
            return lst
        idx = len(lst) - 1 - lst[::-1].index(tag)
        n = min(len(lst) - idx - 1, mx)
        self._emit(f"s_waitcnt {name}({n})")
        return lst[len(lst) - n:] if n else []

    def vm_wait(self, tag):
        def f():
            assert tag in self.seen, tag
            self.vm = self._wait(self.vm, tag, "vmcnt", 63)
        self._do(f)

    def save_vm(self):
        def f():
            self._sv = list(self.vm)
        self._do(f)

    def restore_vm(self):
        def f():
            self.vm = self._sv
        self._do(f)

    def vm_all(self):
        def f():
            self._emit("s_waitcnt vmcnt(0)")
            self.vm = []
        self._do(f)

    def lds(self, s, tag=None):
        def f():
            self._emit(s)
            self.ds.append(tag)
        self._do(f)

    def ds_wait(self, tag):
        def f():
            self.ds = self._wait(self.ds, tag, "lgkmcnt", 15)
        self._do(f)

    def ds_all(self, force=False):
        def f():
            if self.ds or force:
                self._emit("s_waitcnt lgkmcnt(0)")
            self.ds = []
        self._do(f)

    def barrier(self, force=False):
        self.ds_all(force)
        self("s_barrier")

    def stamp(self, name, light=False):
        if not self.stamps:
            return
        if light:
            i = len(self.stamp_names)
            self.stamp_names.append(name)
            r = 4 + 2 * len(self.lights)
            self.lights.append((r, i))
            self(f"s_memtime s[{r}:{r+1}]")
            return
        self.nst = getattr(self, "nst", 0) + 1
        if self.o.get("lite") and name not in ("end", "D.pub"):
            return
        i = len(self.stamp_names)
        assert i < 59
        self.stamp_names.append(name)
        self(f"{'s_memrealtime' if self.o.get('rt') else 's_memtime'} s[{sST}:{sST+1}]")
        self.ds_all(True)
        self(f"v_writelane_b32 v{vSTAMP}, s{sST}, {i}")
        for r, j in self.lights:
            self(f"v_writelane_b32 v{vSTAMP}, s{r}, {j}")
        self.lights = []

    def dma(self, sr, voff, soff, simm, lreg, limm, tag=None, flag=""):
        with self.atomic():
            self(f"s_add_u32 m0, s{lreg}, {limm}")
            self(f"s_add_u32 s{sT5}, s{soff}, {simm}")
            self.vmem(f"buffer_load_dwordx4 v{voff}, {srd(sr)}, s{sT5} offen{flag} lds", tag)

    def get(self, v, c):
        self(f"v_accvgpr_read_b32 v{v}, a{c}")

    def poll_prep(self, mask):
        self.get(vT3, cP16)
        if mask == 7:
            self(f"v_and_b32 v{vT3}, 28, v{vT3}")

    def poll(self, soff, imm, clear=True):
        if clear:
            self.seen = {t for t in self.seen if not (isinstance(t, tuple) and t[0] in ("act", "h"))}
        lp, done = self.label("L_poll"), self.label("L_pd")
        with self.atomic():
            self(f"{lp}:")
            self(f"buffer_load_dword v{vT0}, v{vT3}, {srd(S_WS)}, s{soff} offen offset:{imm} sc1")
            self.vm_all()
            self(f"v_cmp_ne_u32 vcc, s{sTAG}, v{vT0}")
            self(f"s_cbranch_vccz {done}")
            self(f"s_sub_u32 s{sBUD}, s{sBUD}, 1")
            self(f"s_cbranch_scc0 {lp}")
            self(f"s_mov_b32 s{sBUD}, 0")
            self(f"{done}:")

    def poll_a(self, soff, imm):
        if self.o.get("pp", 1):
            self.vmem(f"buffer_load_dword v{vT0}, v{vT3}, {srd(S_WS)}, s{soff} offen offset:{imm} sc1", "pa")

    def poll_b(self, soff, imm):
        if not self.o.get("pp", 1):
            return self.poll(soff, imm)
        self.seen = {t for t in self.seen if not (isinstance(t, tuple) and t[0] in ("act", "h"))}
        lp, done = self.label("L_poll"), self.label("L_pd")
        ld = lambda v: f"buffer_load_dword v{v}, v{vT3}, {srd(S_WS)}, s{soff} offen offset:{imm} sc1"
        self(f"{lp}:")
        self(ld(vT2))
        self("s_waitcnt vmcnt(1)")
        self(f"v_cmp_ne_u32 vcc, s{sTAG}, v{vT0}")
        self(f"s_cbranch_vccz {done}")
        self(ld(vT0))
        self("s_waitcnt vmcnt(1)")
        self(f"v_cmp_ne_u32 vcc, s{sTAG}, v{vT2}")
        self(f"s_cbranch_vccz {done}")
        self(f"s_sub_u32 s{sBUD}, s{sBUD}, 1")
        self(f"s_cbranch_scc0 {lp}")
        self(f"s_mov_b32 s{sBUD}, 0")
        self(f"{done}:")
        self.vm = ["pb"]

    def stores(self, items, force_sc1, tag="st"):
        with self.atomic():
            if force_sc1:
                for it in items:
                    self.vmem(it + " sc1", tag)
                return
            ls, le = self.label("L_ss"), self.label("L_se")
            self(f"s_cmp_lg_u32 s{sSLOW}, 0")
            self(f"s_cbranch_scc1 {ls}")
            for it in items:
                self.vmem(it + (self.fast if tag in ("st", "sa") else ""), tag)
            self(f"{le}:")
            self.tailcode += [f"{ls}:"] + ["    " + it + " sc1" for it in items] + [f"    s_branch {le}"]

    def flag(self, soff, imm, tag="st"):
        with self.atomic():
            self(f"v_mov_b32 v{vT1}, s{sTAG}")
            self.vm_wait(tag)
            self("s_mov_b64 exec, 1")
            self.stores([f"buffer_store_dword v{vT1}, v{vL16}, {srd(S_WS)}, s{soff} offen offset:{imm}"], False, "flag")
            self("s_mov_b64 exec, -1")

    def gemm_begin(self, frags, D=6):
        self.gid = getattr(self, "gid", 0) + 1
        g = dict(frags=frags, D=D, gid=self.gid, rp=0, reads=[])
        for t, f in enumerate(frags):
            s = vWB + 4 * (t % 8)
            if len(f["offs"]) == 2:
                for hh in range(2):
                    g["reads"].append((t, f"ds_read_b64_tr_b16 {vr(s + 2*hh, 2)}, v{f['addr']} offset:{f['offs'][hh]}"))
            else:
                g["reads"].append((t, f"ds_read_b128 {vr(s, 4)}, v{f['addr']} offset:{f['offs'][0]}"))
        self._issue(g, D - 1, 99)
        return g

    def _issue(self, g, tmax, maxn):
        c = 0
        reads = g["reads"]
        while g["rp"] < len(reads) and reads[g["rp"]][0] <= tmax and c < maxn:
            self.lds(reads[g["rp"]][1], ("w", g["gid"], reads[g["rp"]][0]))
            g["rp"] += 1
            c += 1

    def gemm_run(self, g, fill=None):
        fill = fill or {}
        frags, D, gid = g["frags"], g["D"], g["gid"]
        n = len(frags)
        mi = 0
        pend = []
        LATE = self.o.get("late", 3)
        for t, f in enumerate(frags):
            s = vWB + 4 * (t % 8)
            if t % 2 == 0:
                self.ds_wait(("w", gid, min(t + 1, n - 1)))
            nm = len(f["mf"])
            for j, (acc, act_, sw, first, wt) in enumerate(f["mf"]):
                if wt is not None:
                    self.vm_wait(wt)
                c = "0" if first else vr(acc, 4) if acc is not None else ar(aCS, 4)
                if acc is None:
                    self(f"v_mfma_f32_16x16x32_bf16 {ar(aCS,4)}, {ar(aONES,4)}, {vr(s,4)}, {c}")
                elif sw:
                    self(f"v_mfma_f32_16x16x32_bf16 {vr(acc,4)}, {vr(s,4)}, {vr(act_,4)}, {c}")
                else:
                    self(f"v_mfma_f32_16x16x32_bf16 {vr(acc,4)}, {vr(act_,4)}, {vr(s,4)}, {c}")
                rp0 = g["rp"]
                self._issue(g, t + D, 99 if j == nm - 1 else 1)
                room = 8 - 4 * (g["rp"] - rp0) - (4 if (j == nm - 1 and t % 2 == 1) else 0)
                pend += [(mi, x) for x in fill.pop(mi, [])]
                while pend:
                    cst = getattr(pend[0][1], "cost", 4)
                    if cst <= room or (room == 8 and cst > 8) or mi - pend[0][0] >= LATE:
                        self.play([pend.pop(0)[1]])
                        room -= cst
                    else:
                        break
                mi += 1
        self.play([x for _, x in pend])
        for key in sorted(fill):
            self.play(fill[key])

    def gemm(self, frags, fill=None, D=6):
        self.gemm_run(self.gemm_begin(frags, D), fill)


def merge_waits(lines):
    import re
    out = []
    for l in lines:
        m = re.match(r"\s*s_waitcnt (\w+)\((\d+)\)$", l)
        if m and out:
            p = re.match(r"\s*s_waitcnt (\w+)\((\d+)\)$", out[-1])
            if p and p.group(1) != m.group(1):
                out[-1] = out[-1] + f" {m.group(1)}({m.group(2)})"
                continue
        out.append(l)
    return out


def spread(fill, items, start, step, per=1):
    p = start
    if step == 0:
        g = lambda: [x() for x in items]
        g.cost = sum(getattr(x, "cost", 4) for x in items)
        fill.setdefault(int(p), []).append(g)
        return p
    for i in range(0, len(items), per):
        fill.setdefault(int(p), []).extend(items[i:i + per])
        p += step
    return p


def insn_sizes(lines, tailcode):
    import subprocess, tempfile, re, os
    src = [".amdgcn_target \"amdgcn-amd-amdhsa--gfx950\"", ".text", ".set CODE_BYTES, 0x12345"]
    for i, l in enumerate(lines):
        src.append(f"Lz{i}:")
        src.append(l)
    src.append(f"Lz{len(lines)}:")
    src += tailcode
    with tempfile.TemporaryDirectory() as d:
        open(d + "/a.s", "w").write("\n".join(src) + "\n")
        subprocess.run(["clang", "-x", "assembler", "-target", "amdgcn-amd-amdhsa", "-mcpu=gfx950", "-c", d + "/a.s", "-o", d + "/a.o"], check=True)
        out = subprocess.run(["llvm-objdump", "-t", d + "/a.o"], capture_output=True, text=True, check=True).stdout
    addr = {}
    for l in out.splitlines():
        m = re.match(r"([0-9a-f]+) .*\sLz(\d+)$", l)
        if m:
            addr[int(m.group(2))] = int(m.group(1), 16)
    return [addr[i + 1] - addr[i] for i in range(len(lines))]


def add_pads(lines, tailcode, step, splits):
    def call(first, ret):
        c = ["    s_mov_b64 exec, 0"]
        for w in range(3):
            c += [f"    s_cmp_eq_u32 s{sW}, {w}", f"    s_cbranch_scc1 L_pad{first + w}"]
        return c + [f"    s_branch L_pad{first + 3}"]
    src = []
    for l in lines:
        t = l.strip()
        if t.startswith("PADCALL") and t != "PADCALL":
            g = int(t[7:])
            if g <= len(splits):
                src += ["    s_nop 0 ; CALL%d" % g] * 9
        else:
            src.append(l)
    ci = [i for i, l in enumerate(src) if l.strip() == "PADCALL"][0]
    src = src[:ci] + src[ci + 1:]
    sz = insn_sizes(src, tailcode)
    body, pos, nxt, n = [], 4, step, 0
    for i in range(ci, len(src)):
        if pos >= nxt and sz[i] > 0 and "; CALL" not in src[i]:
            body.append(("PAD", n))
            n += 1
            pos += 4
            nxt = (pos // step + 1) * step
        body.append(src[i])
        pos += sz[i]
    bounds = [0] + list(splits) + [n]
    assert all(bounds[i + 1] - bounds[i] >= 4 for i in range(len(bounds) - 1)), (bounds, n)
    out = src[:ci] + call(0, 0) + [".p2align 12", "L_padret0:", "    s_mov_b64 exec, -1"]
    done = set()
    for x in body:
        if isinstance(x, tuple):
            j = x[1]
            g = max(i for i in range(len(bounds) - 1) if bounds[i] <= j)
            out += [f"L_pad{j}:", f"    s_cbranch_execz {'L_pad%d' % (j + 4) if j + 4 < bounds[g + 1] else 'L_padret%d' % g}"]
        elif "; CALL" in x:
            g = int(x.split("CALL")[1])
            if g not in done:
                done.add(g)
                out += call(bounds[g], g) + [f"L_padret{g}:", "    s_mov_b64 exec, -1"]
        else:
            out.append(x)
    return out


def mix(a, b, ratio):
    out = []
    bi = 0
    for i, x in enumerate(a):
        out.append(x)
        if (i + 1) % ratio == 0 and bi < len(b):
            out.append(b[bi]); bi += 1
    out.extend(b[bi:])
    return out


def act(ks, rb):
    return vACT + 8 * ks + 4 * rb


def gen(stamps=False, opts=None):
    k = K(stamps, opts)
    o = k.o
    if stamps:
        k(f"{'s_memrealtime' if o.get('rt') else 's_memtime'} s[{sST}:{sST+1}]")
        k(f"s_memrealtime s[{sPC}:{sPC+1}]")
    k(f"""
    s_cmp_ge_u32 s2, 256
    s_cbranch_scc1 L_end
    s_load_dwordx2 s[{S_X}:{S_X+1}], s[0:1], 0
    s_load_dwordx2 s[{S_WQKV}:{S_WQKV+1}], s[0:1], 8
    s_load_dwordx2 s[{S_WS}:{S_WS+1}], s[0:1], 64
    s_load_dwordx2 s[{S_WO}:{S_WO+1}], s[0:1], 16
    s_load_dwordx2 s[{S_W1}:{S_W1+1}], s[0:1], 32
    s_load_dwordx2 s[{S_W2}:{S_W2+1}], s[0:1], 40
    s_load_dwordx2 s[{S_OUT}:{S_OUT+1}], s[0:1], 48
    """)
    if o.get("cw0", 1):
        k(f"""
        s_getpc_b64 s[{S_A}:{S_A+1}]
        L_pcref:
        s_lshr_b32 s{sT2}, s2, 3
        s_lshl_b32 s{sT2}, s{sT2}, 11
        v_lshlrev_b32 v{vT3}, 3, v0
        v_add_u32 v{vT3}, s{sT2}, v{vT3}
        v_min_u32 v{vT3}, CODE_BYTES, v{vT3}
        s_mov_b32 exec_lo, 0x10001
        s_mov_b32 exec_hi, 0x10001
        global_load_dword a{aDUM}, v{vT3}, s[{S_A}:{S_A+1}]
        s_mov_b64 exec, -1
        """)
    k(f"""
    v_lshrrev_b32 v{vT0}, 6, v0
    v_and_b32 v{vLANE}, 63, v0
    s_mov_b32 s{S_X+2}, {2048*1024}
    v_readfirstlane_b32 s{sW}, v{vT0}
    s_mov_b32 s{S_X+3}, 0x20000
    s_mov_b32 s{S_WQKV+2}, {512*3072}
    s_mov_b32 s{S_WQKV+3}, 0x20000
    s_lshr_b32 s{sT0}, s2, 3
    s_and_b32 s{sC}, s{sT0}, 15
    s_lshr_b32 s{sT0}, s{sT0}, 4
    s_and_b32 s{sG}, s2, 7
    s_lshl1_add_u32 s{sG}, s{sG}, s{sT0}
    s_lshr_b32 s{sT1}, s{sC}, 1
    s_xor_b32 s{sT1}, s{sT1}, s{sT0}
    s_and_b32 s{sT1}, s{sT1}, 1
    s_and_b32 s{sRHO}, s{sC}, 1
    s_lshl1_add_u32 s{sRHO}, s{sT1}, s{sRHO}
    v_lshlrev_b32 v{vL16}, 4, v{vLANE}
    """)
    if stamps:
        k(f"v_mov_b32 v{vSTAMP}, 0")
    NTP = " nt" if o.get("nt", 0) & 1 else ""
    NTX = " nt" if o.get("nt", 0) & 2 else ""
    XS, XR, X2R = vRES, vRES + 4, act(15, 1)
    aRES = 246
    k(f"""
    v_lshrrev_b32 v{vT0}, 4, v{vLANE}
    v_and_b32 v{vT1}, 15, v{vLANE}
    v_xor_b32 v{vT2}, v{vT0}, v{vT1}
    v_lshlrev_b32 v{vT2}, 4, v{vT2}
    v_lshl_add_u32 v{XS}, v{vT0}, 10, v{vT2}
    v_xor_b32 v{XS+1}, 64, v{XS}
    v_xor_b32 v{XS+2}, 0x80, v{XS}
    v_xor_b32 v{XS+3}, 0xc0, v{XS}
    v_lshrrev_b32 v{vP}, 2, v{vLANE}
    v_and_b32 v{vCH}, 3, v{vLANE}
    v_lshrrev_b32 v{vT3}, 3, v{vLANE}
    v_and_b32 v{vT3}, 2, v{vT3}
    v_xor_b32 v{vCH}, v{vCH}, v{vT3}
    v_lshlrev_b32 v{vCH}, 4, v{vCH}
    v_and_b32 v{vT3}, 3, v{vP}
    v_lshl_add_u32 v{vT3}, v{vT0}, 3, v{vT3}
    s_movk_i32 s{sT1}, 3072
    v_mad_u32_u24 v{vDM}, v{vT3}, s{sT1}, v{vCH}
    s_lshl_b32 s{sL0}, s{sW}, 14
    s_add_u32 s{sL0}, s{sL0}, {L_XST}
    s_lshl_b32 s{sT1}, s{sG}, 17
    s_lshl_b32 s{sT2}, s{sW}, 15
    s_add_u32 s{sT1}, s{sT1}, s{sT2}
    s_lshl_b32 s{sL1}, s{sW}, 12
    """)
    for r in range(4):
        k(f"""
        s_add_u32 s{sT2}, s{sRHO}, {r}
        s_and_b32 s{sT2}, s{sT2}, 3
        s_lshl_b32 s{sT3}, s{sT2}, 8
        s_add_u32 s{sD0+r}, s{sT1}, s{sT3}
        s_lshl2_add_u32 s{sT2}, s{sT2}, s{sW}
        s_mul_i32 s{sT2}, s{sT2}, {32*3072}
        s_lshl_b32 s{sT3}, s{sC}, 6
        s_add_u32 s{sRB+r}, s{sT2}, s{sT3}
        """)
    k("s_waitcnt lgkmcnt(0)")
    k(f"s_load_dword s{sEP}, s[{S_WS}:{S_WS+1}], {WS_EPOCH}")
    if stamps:
        k(f"v_writelane_b32 v{vSTAMP}, s{sST}, 62")
        k(f"v_writelane_b32 v{vSTAMP}, s{sPC}, 63")

    def xslot(q, js=range(8)):
        for j in js:
            k.dma(S_X, XS + (j & 3), sD0 + q, j * 4096, sL0, (q & 1) * 8192 + j * 1024, ("xs", q), " nt" if o.get("nt", 0) & 4 else "")

    def wkv_raw(r):
        for pr in range(2):
            for hh in range(2):
                k.dma(S_WQKV, vDM, sRB + r, hh * 4 * 3072 + 1024 * (pr + 1), sL1, R0 + r * 16384 + pr * 2048 + hh * 1024, ("wkv", r))

    def quad_lane(pitch, dst=vDM, tmp=vT2, sD3=sD3):
        vT2 = tmp
        k(f"v_lshrrev_b32 v{dst}, 3, v{vLANE}")
        k(f"v_and_b32 v{vT2}, 6, v{dst}")
        k(f"v_xor_b32 v{vT2}, v{vT2}, v{vLANE}")
        k(f"v_and_b32 v{vT2}, 7, v{vT2}")
        k(f"v_lshlrev_b32 v{vT2}, 4, v{vT2}")
        if isinstance(pitch, int):
            k(f"s_movk_i32 s{sD3}, {pitch}")
            pitch = f"s{sD3}"
        k(f"v_mad_u32_u24 v{dst}, v{dst}, {pitch}, v{vT2}")

    def dma_raw(sr, lds_imm, first, R=None):
        sD0_, sD2_, sL0_, vDM_ = R or (sD0, sD2, sL0, vDM)
        with k.atomic():
            k(f"s_add_u32 m0, s{sL0_}, {lds_imm}")
            k("s_nop 0" if first else f"s_add_u32 s{sD0_}, s{sD0_}, s{sD2_}")
            k(f"buffer_load_dwordx4 v{vDM_}, {srd(sr)}, s{sD0_} offen{NTP} lds")

    def packU_issue(base, sD0, sD1, sD2, sD3, sL0, vDM, sPDA, shift=12):
        R = (sD0, sD2, sL0, vDM)
        l2, l3, lq, le = k.label("L_u2"), k.label("L_u3"), k.label("L_uq"), k.label("L_ue")
        with k.atomic():
            k(f"""
            s_lshl_b32 s{sL0}, s{sW}, {shift}
            s_add_u32 s{sL0}, s{sL0}, {base}
            s_lshr_b32 s{sD0}, s{sC}, 2
            s_mul_i32 s{sD0}, s{sD0}, 896
            s_mul_i32 s{sD1}, s{sG}, {32*3584}
            s_add_u32 s{sD0}, s{sD0}, s{sD1}
            s_and_b32 s{sD1}, s{sC}, 3
            s_cmp_eq_u32 s{sW}, 3
            s_cbranch_scc1 {l3}
            s_cmp_eq_u32 s{sW}, 2
            s_cbranch_scc1 {l2}
            s_mov_b32 s{S_A}, s{S_W2}
            s_mov_b32 s{S_A+1}, s{S_W2+1}
            s_mov_b32 s{S_A+2}, {1792*1024}
            s_movk_i32 s{sD2}, 1024
            s_lshl1_add_u32 s{sD0}, s2, s{sW}
            s_lshr_b32 s{sD1}, s{sD0}, 3
            s_and_b32 s{sD0}, s{sD0}, 7
            s_mul_i32 s{sPDA}, s{sD0}, 56
            s_add_u32 s{sPDA}, s{sPDA}, s{sD1}
            s_lshl_b32 s{sPDA}, s{sPDA}, 12
            s_add_u32 s{sPDA}, s{sPDA}, {WS_W2T}
            s_cmp_ge_u32 s{sD1}, 56
            s_cselect_b32 s{sPDA}, {OOB}, s{sPDA}
            s_lshl_b32 s{sD1}, s{sD1}, 15
            s_lshl_b32 s{sD0}, s{sD0}, 7
            s_add_u32 s{sD0}, s{sD0}, s{sD1}
            s_branch {lq}
            {l2}:
            s_mov_b32 s{S_A}, s{S_W1}
            s_mov_b32 s{S_A+1}, s{S_W1+1}
            s_mov_b32 s{S_A+2}, {512*3584}
            s_movk_i32 s{sD2}, 3584
            s_lshl_b32 s{sD1}, s{sD1}, 7
            s_add_u32 s{sD0}, s{sD0}, s{sD1}
            s_lshl_b32 s{sPDA}, s{sG}, 12
            s_add_u32 s{sPDA}, s{sPDA}, s{sPKB}
            s_add_u32 s{sPDA}, s{sPDA}, {PK_W1A}
            {lq}:
            s_mov_b32 s{S_A+3}, 0x20000
            """)
            quad_lane(f"s{sD2}", vDM, vT2 if shift == 14 else vACT + 127)
            k(f"s_lshl_b32 s{sD2}, s{sD2}, 3")
            for j in range(4):
                dma_raw(S_A, j * 1024, j == 0, R)
            k(f"""
            s_branch {le}
            {l3}:
            s_movk_i32 s{sD3}, 3584
            s_mul_i32 s{sPDA}, s{sG}, 3072
            s_add_u32 s{sPDA}, s{sPDA}, s{sPKB}
            s_add_u32 s{sPDA}, s{sPDA}, {PK_W1B}
            s_lshr_b32 s{sT5}, s{sD1}, 1
            s_mul_i32 s{sT5}, s{sT5}, 6
            s_and_b32 s{sD2}, s{sD1}, 1
            s_add_u32 s{sT5}, s{sT5}, s{sD2}
            s_add_u32 s{sT5}, s{sT5}, 18
            s_lshl_b32 s{sT5}, s{sT5}, 5
            s_add_u32 s{sT5}, s{sT5}, s{sD0}
            v_lshrrev_b32 v{vDM}, 1, v{vLANE}
            v_and_b32 v{vT2 if shift == 14 else vACT + 127}, 16, v{vL16}
            v_mad_u32_u24 v{vDM}, v{vDM}, s{sD3}, v{vT2 if shift == 14 else vACT + 127}
            s_add_u32 m0, s{sL0}, 2048
            s_mul_i32 s{sD1}, s{sD1}, 3
            buffer_load_dwordx4 v{vDM}, {srd(S_W1)}, s{sT5} offen{NTP} lds
            s_add_u32 s{sD1}, s{sD1}, 17
            s_lshr_b32 s{sD1}, s{sD1}, 1
            s_lshl_b32 s{sD1}, s{sD1}, 6
            s_add_u32 s{sD0}, s{sD0}, s{sD1}
            s_mov_b32 s{sD2}, {16*3584}
            v_mad_u32_u24 v{vDM}, v{vP}, s{sD3}, v{vCH}
            """)
            for hh in range(2):
                dma_raw(S_W1, hh * 1024, hh == 0, R)
            k(f"buffer_load_dword a{aDUM}, v{vL16}, {srd(S_W1)}, s{S_W1+2} offen")
            k(f"{le}:")
            k.vm_note(4, "pu")

    WP = o.get("wp", 1)

    def warm():
        k(f"v_lshlrev_b32 v{vT3}, 7, v{vLANE}")
        k("s_mov_b64 exec, 0xf")
        if not o.get("cw0", 1):
            k(f"""
            s_getpc_b64 s[{sPC}:{sPC+1}]
            L_pcref:
            s_lshr_b32 s{sT2}, s2, 3
            s_lshl2_add_u32 s{sT2}, s{sT2}, s{sW}
            s_lshl_b32 s{sT2}, s{sT2}, 9
            s_min_u32 s{sT2}, s{sT2}, CODE_BYTES
            s_add_u32 s{sPC}, s{sPC}, s{sT2}
            s_addc_u32 s{sPC+1}, s{sPC+1}, 0
            """)
            k.vmem(f"global_load_dword a{aDUM}, v{vT3}, s[{sPC}:{sPC+1}]")
        if o.get("warm", 1) >= 1:
            k(f"s_lshl2_add_u32 s{sT2}, s2, s{sW}")
            k(f"s_lshr_b32 s{sT3}, s{sT2}, 1")
            k(f"s_mul_i32 s{sT3}, s{sT3}, 3072")
            k(f"s_and_b32 s{sT4}, s{sT2}, 1")
            k(f"s_lshl_b32 s{sT4}, s{sT4}, 9")
            k(f"s_add_u32 s{sT3}, s{sT3}, s{sT4}")
            k.vmem(f"buffer_load_dword a{aDUM}, v{vT3}, {srd(S_WQKV)}, s{sT3} offen")
            if not WP:
                k(f"s_lshl_b32 s{sT3}, s{sT2}, 9")
                k.vmem(f"buffer_load_dword a{aDUM}, v{vT3}, {srd(S_WO)}, s{sT3} offen")
        if o.get("tlb", 0):
            k("s_mov_b64 exec, 1")
            k(f"s_mul_i32 s{sT3}, s{sT2}, 1792")
            k.vmem(f"buffer_load_dword a{aDUM}, v{vT3}, {srd(S_W1)}, s{sT3} offen")
            k.vmem(f"buffer_load_dword a{aDUM}, v{vT3}, {srd(S_W2)}, s{sT3} offen")
            if o["tlb"] > 1:
                k("s_mov_b64 exec, 0x1f")
                k(f"v_lshlrev_b32 v{vWB}, 21, v{vLANE}")
                k(f"s_mov_b32 s{sT3}, {WS_KVX + 0x1f0000}")
                k.vmem(f"buffer_load_dword a{aDUM}, v{vWB}, {srd(S_WS)}, s{sT3} offen")
        if o.get("warm", 1) >= 2:
            k(f"s_mul_i32 s{sT3}, s{sT2}, 1792")
            k("s_mov_b64 exec, 0x3fff")
            k.vmem(f"buffer_load_dword a{aDUM}, v{vT3}, {srd(S_W1)}, s{sT3} offen")
            k.vmem(f"buffer_load_dword a{aDUM}, v{vT3}, {srd(S_W2)}, s{sT3} offen")
        k(f"s_lshl2_add_u32 s{sT2}, s{sC}, s{sW}")
        k(f"s_lshl_b32 s{sT2}, s{sT2}, 8")
        k(f"s_add_u32 s{sT2}, s{sT2}, s{sGB}")
        k("s_mov_b64 exec, 3")
        k.vmem(f"buffer_load_dword a{aDUM}, v{vT3}, {srd(S_WS)}, s{sT2} offen sc1", "touch")
        k("s_mov_b64 exec, -1")

    OWN = vACC
    k(f"s_lshl_b32 s{sT2}, s{sC}, 11")
    k(f"s_add_u32 s{sT2}, s{sT2}, s{sT1}")
    for r in range(2):
        k.vmem(f"buffer_load_dwordx4 {vr(OWN+4*r,4)}, v{vL16}, {srd(S_X)}, s{sT2} offen offset:{r*1024}{NTX}", "own")
    w0_ = k.rec(lambda: wkv_raw(0))
    nw0 = o.get("nw0", 2)
    k.play(w0_[:nw0])
    k(f"""
    s_mov_b32 s{S_WO+2}, {512*1024}
    s_mov_b32 s{S_WO+3}, 0x20000
    s_mov_b32 s{S_W1+2}, {512*3584}
    s_mov_b32 s{S_W1+3}, 0x20000
    s_mov_b32 s{S_W2+2}, {1792*1024}
    s_mov_b32 s{S_W2+3}, 0x20000
    s_mov_b32 s{S_WS+2}, {WS_USED}
    s_mov_b32 s{S_WS+3}, 0x20000
    s_lshl_b32 s{sGB}, s{sG}, 20
    s_add_u32 s{sGB}, s{sGB}, {GRP0}
    """)
    warm()
    UF = o.get("uf", 1)
    k(f"s_mul_i32 s{sPKB}, s{sC}, {PK_SZ}")
    k(f"s_add_u32 s{sPKB}, s{sPKB}, {WS_PK}")
    if UF == 1:
        packU_issue(R1, sH1, sH1b, sH2, sH2b, sH3, vWB + 8, sPDB)
    if WP:
        quad_lane(1024, vWB + 8, vACT + 127, sH2b)
        k(f"""
        s_lshl2_add_u32 s{sH1}, s{sG}, s{sW}
        s_lshl_b32 s{sPDA}, s{sH1}, 10
        s_add_u32 s{sPDA}, s{sPDA}, s{sPKB}
        s_add_u32 s{sPDA}, s{sPDA}, {PK_WO}
        s_lshl_b32 s{sH1}, s{sH1}, 13
        s_lshl_b32 s{sH1b}, s{sC}, 7
        s_add_u32 s{sH1}, s{sH1}, s{sH1b}
        s_cmp_ge_u32 s{sC}, 8
        s_cselect_b32 s{sH1}, {OOB}, s{sH1}
        s_cselect_b32 s{sPDA}, {OOB}, s{sPDA}
        s_lshl_b32 s{sH1b}, s{sW}, 10
        s_add_u32 m0, s{sH1b}, {R0 + 49152}
        s_nop 0
        """)
        k.vmem(f"buffer_load_dwordx4 v{vWB+8}, {srd(S_WO)}, s{sH1} offen{NTP} lds", "pwo")

    W0P = o.get("w0p", 0)
    if W0P == 0:
        k.play(w0_[nw0:])

    if o.get("diags"): k.stamp("iss0")

    def arm(mode):
        with k.atomic():
            k(f"s_lshl2_add_u32 s{sT2}, s{sC}, s{sW}")
            k(f"s_lshl_b32 s{sT3}, s{sT2}, 11")
            k(f"s_add_u32 s{sT3}, s{sT3}, s{sGB}")
            k(f"s_add_u32 s{sT3}, s{sT3}, {G_X1}")
            k(f"s_lshr_b32 s{sT4}, s{sT2}, 3")
            k(f"s_mul_i32 s{sT4}, s{sT4}, 57344")
            k(f"s_and_b32 s{sT2}, s{sT2}, 7")
            k(f"s_mul_i32 s{sT2}, s{sT2}, {5120 if mode & 4 else 1024}")
            k(f"s_add_u32 s{sT4}, s{sT4}, s{sT2}")
            k(f"s_add_u32 s{sT4}, s{sT4}, s{sGB}")
            k(f"s_add_u32 s{sT4}, s{sT4}, {G_H + 16*1024}")
            k(f"s_add_u32 s{sT2}, s{sT4}, 4096")
        if mode & 1:
            for j in range(2):
                k.vmem(f"buffer_store_dwordx4 {vr(vQ0,4)}, v{vL16}, {srd(S_WS)}, s{sT3} offen offset:{j*1024} sc1", "arm")
        for j in range(5 if mode & 4 else 1 if mode & 2 else 0):
            k.vmem(f"buffer_store_dwordx4 {vr(vQ0,4)}, v{vL16}, {srd(S_WS)}, s{sT4 if j < 4 else sT2} offen offset:{(j%4)*1024} sc1", "arm")

    k(f"""
    s_mov_b32 s{S_OUT+2}, {2048*1024}
    s_mov_b32 s{S_OUT+3}, 0x20000
    s_lshr_b32 s{sDH}, s{sC}, 3
    s_and_b32 s{sCT}, s{sC}, 7
    s_mov_b32 s{sBUD}, 150000
    s_mov_b32 s{sEPS}, 0x358637bd
    s_mov_b32 s{sEPS+1}, 0x358637bd
    s_getreg_b32 s{sXCC}, hwreg(HW_REG_XCC_ID, 0, 4)
    s_lshl_b32 s{sACT}, s{sW}, 15
    s_add_u32 s{sACT}, s{sACT}, s{sGB}
    s_add_u32 s{sACT1}, s{sACT}, 16384
    s_lshl2_add_u32 s{sT0}, s{sDH}, s{sW}
    s_lshl_b32 s{sBACT}, s{sT0}, 14
    s_add_u32 s{sBACT}, s{sBACT}, s{sGB}
    s_lshl_b32 s{sTILE}, s{sCT}, 11
    s_add_u32 s{sTILE}, s{sTILE}, s{sBACT}
    s_mul_i32 s{sBACT}, s{sT0}, 57344
    s_add_u32 s{sBACT}, s{sBACT}, s{sGB}
    s_mul_i32 s{sOST}, s{sW}, {2*57344}
    s_lshl_b32 s{sOST1}, s{sC}, 10
    s_add_u32 s{sOST}, s{sOST}, s{sOST1}
    s_add_u32 s{sOST}, s{sOST}, s{sGB}
    s_add_u32 s{sOST}, s{sOST}, {G_O}
    s_add_u32 s{sOST1}, s{sOST}, 57344
    s_lshl_b32 s{sFXp}, s{sW}, 7
    s_add_u32 s{sFXp}, s{sFXp}, s{sGB}
    s_lshl2_add_u32 s{sFOo}, s{sC}, s{sFXp}
    s_lshl_b32 s{sFHp}, s{sT0}, 7
    s_add_u32 s{sFHp}, s{sFHp}, s{sGB}
    s_lshr_b32 s{sT0}, s{sT0}, 1
    s_mov_b32 s{sT1}, s{sT0}
    s_lshl_b32 s{sFOp}, s{sT0}, 7
    s_add_u32 s{sFOp}, s{sFOp}, s{sGB}
    s_and_b32 s{sT2}, s{sW}, 1
    s_lshl1_add_u32 s{sT3}, s{sCT}, s{sT2}
    s_lshl2_add_u32 s{sFXo}, s{sT3}, s{sFOp}
    s_lshl3_add_u32 s{sT3}, s{sT0}, s{sCT}
    s_lshl_b32 s{sT3}, s{sT3}, 8
    s_lshl3_add_u32 s{sT3}, s{sT2}, s{sT3}
    s_add_u32 s{sSTo}, s{sT3}, s{sGB}
    s_lshl_b32 s{sSTg}, s{sW}, 11
    s_add_u32 s{sSTg}, s{sSTg}, s{sGB}
    s_lshl2_add_u32 s{sT1}, s{sT1}, s{sT2}
    s_lshl_b32 s{sT1}, s{sT1}, 6
    s_add_u32 s{sT1}, s{sT1}, {L_STAT + 128}
    v_lshl_add_u32 v{vT3}, v{vT1}, 2, s{sT1}
    v_accvgpr_write_b32 a{cRSD}, v{vT3}
    s_mul_i32 s{sT0}, s{sW}, {2*57344}
    s_add_u32 s{sT0}, s{sT0}, s{sGB}
    s_lshr_b32 s{sT3}, s{sC}, 2
    s_add_u32 s{sT0}, s{sT0}, {G_H}
    s_lshl2_add_u32 s{sH1}, s{sT3}, s{sC}
    s_lshl_b32 s{sH1}, s{sH1}, 10
    s_add_u32 s{sH1}, s{sH1}, {24*1024 + 1024}
    s_add_u32 s{sH1}, s{sH1}, s{sT0}
    s_add_u32 s{sH1b}, s{sH1}, 57344
    s_mul_i32 s{sT4}, s{sT3}, 6144
    s_add_u32 s{sT0}, s{sT0}, s{sT4}
    s_and_b32 s{sT4}, s{sC}, 3
    s_mul_i32 s{sH2}, s{sT4}, 3
    s_add_u32 s{sH2}, s{sH2}, 1
    s_lshr_b32 s{sH2}, s{sH2}, 1
    s_lshl_b32 s{sH2}, s{sH2}, 10
    s_add_u32 s{sH2}, s{sH2}, s{sT0}
    s_add_u32 s{sH2b}, s{sH2}, 57344
    s_lshr_b32 s{sH3}, s{sT4}, 1
    s_mul_i32 s{sH3}, s{sH3}, 3072
    s_and_b32 s{sH3b}, s{sT4}, 1
    s_lshl3_add_u32 s{sH3}, s{sH3b}, s{sH3}
    s_add_u32 s{sH3}, s{sH3}, 1024
    s_add_u32 s{sH3}, s{sH3}, s{sT0}
    s_add_u32 s{sH3b}, s{sH3}, 57344
    s_lshr_b32 s{sT0}, s{sW}, 1
    s_lshl2_add_u32 s{sT0}, s{sT0}, s{sT3}
    s_lshl_b32 s{sT0}, s{sT0}, 7
    s_lshl1_add_u32 s{sT2}, s{sT4}, s{sT2}
    s_lshl2_add_u32 s{sT0}, s{sT2}, s{sT0}
    s_add_u32 s{sFHo}, s{sT0}, s{sGB}
    """)
    k(f"""
    s_mul_i32 s{sT0}, s{sC}, {KVX_C}
    s_add_u32 s{sT0}, s{sT0}, {WS_KVX}
    s_lshl_b32 s{sT1}, s{sW}, 13
    s_add_u32 s{sKVC}, s{sT0}, s{sT1}
    s_lshl_b32 s{sT2}, s{sW}, 14
    s_lshl_b32 s{sT3}, s{sG}, 10
    s_lshl_b32 s{sT4}, s{sG}, 7
    s_cmp_lt_u32 s{sW}, 2
    s_cselect_b32 s{sT3}, s{sT3}, s{sT4}
    s_cselect_b32 s{sKM}, -1, 0x30003
    s_cselect_b32 s{sKM+1}, -1, 0x30003
    s_cselect_b64 vcc, -1, 0
    s_add_u32 s{sKVP}, s{sT0}, s{sT2}
    s_add_u32 s{sKVP}, s{sKVP}, s{sT3}
    s_cmp_eq_u32 s{sW}, 3
    s_cselect_b32 s{sKVP}, {OOB}, s{sKVP}
    v_lshlrev_b32 v{vT3}, 4, v{vT0}
    v_lshl_add_u32 v{vT3}, v{vT1}, 6, v{vT3}
    v_cndmask_b32 v{vT3}, v{vT3}, v{vL16}, vcc
    v_accvgpr_write_b32 a{cKVS}, v{vT3}
    v_lshlrev_b32 v{vT3}, 2, v{vL16}
    v_and_b32 v{vT3}, 0xf00, v{vT3}
    v_lshrrev_b32 v{vT3}, 1, v{vT3}
    v_and_b32 v{vWB}, 48, v{vL16}
    s_lshr_b32 s{sT2}, s{sW}, 1
    s_lshl_b32 s{sT2}, s{sT2}, 6
    s_add_u32 s{sT2}, s{sT2}, 32768
    s_sub_u32 s{sT2}, s{sT2}, s{sT1}
    v_add3_u32 v{vT3}, v{vT3}, v{vWB}, s{sT2}
    v_accvgpr_write_b32 a{cZL}, v{vT3}
    v_and_b32 v{vWB+5}, 1, v{vLANE}
    v_cndmask_b32 v{vWB+5}, v{vWB+5}, 0, vcc
    s_min_u32 s{sT5}, s{sW}, 2
    """)
    W = vWB
    k(f"""
    v_lshl_add_u32 v{XR}, v{vT1}, 8, v{vT2}
    v_add_u32 v{XR}, s{sL0}, v{XR}
    v_xor_b32 v{XR+1}, 64, v{XR}
    v_xor_b32 v{XR+2}, 0x80, v{XR}
    v_xor_b32 v{XR+3}, 0xc0, v{XR}
    v_and_b32 v{vT3}, 3, v{vLANE}
    v_lshlrev_b32 v{vT3}, 3, v{vT3}
    v_lshl_add_u32 v{vTR0}, v{vP}, 6, v{vT3}
    v_lshl_add_u32 v{vQ0}, v{vP}, 7, v{vT3}
    v_and_b32 v{vT3}, 1, v{vT0}
    v_lshlrev_b32 v{vT3}, 5, v{vT3}
    v_add_u32 v{vTR0}, v{vTR0}, v{vT3}
    v_xor_b32 v{vTR1}, 32, v{vTR0}
    v_bfe_u32 v{vT3}, v{vLANE}, 3, 2
    v_lshl_add_u32 v{vQ0}, v{vT3}, 5, v{vQ0}
    v_xor_b32 v{vQ1}, 32, v{vQ0}
    v_xor_b32 v{vQ2}, 64, v{vQ0}
    v_xor_b32 v{vQ3}, 0x60, v{vQ0}
    v_lshlrev_b32 v{W}, 2, v{vT1}
    v_accvgpr_write_b32 a{cP16}, v{W}
    v_mov_b32 v{W+1}, {BF1}
    v_accvgpr_write_b32 a{aONES}, v{W+1}
    v_accvgpr_write_b32 a{aONES+1}, v{W+1}
    v_accvgpr_write_b32 a{aONES+2}, v{W+1}
    v_accvgpr_write_b32 a{aONES+3}, v{W+1}
    v_add_u32 v{W+1}, {L_CS}, v{W}
    v_accvgpr_write_b32 a{cCSA}, v{W+1}
    v_and_b32 v{W+2}, 48, v{vLANE}
    v_add_u32 v{W+1}, {L_CS}, v{W+2}
    v_accvgpr_write_b32 a{cCSB}, v{W+1}
    v_lshlrev_b32 v{W+1}, 2, v{vT0}
    v_lshl_add_u32 v{W+1}, v{vT1}, 4, v{W+1}
    v_accvgpr_write_b32 a{cSTO}, v{W+1}
    s_lshl_b32 s{sT0}, s{sW}, 8
    s_add_u32 s{sT0}, s{sT0}, {L_STAT}
    v_add_u32 v{W+1}, s{sT0}, v{W}
    v_accvgpr_write_b32 a{cSTA}, v{W+1}
    v_and_b32 v{W+3}, 32, v{vLANE}
    v_lshl_add_u32 v{W+1}, v{W+3}, 1, v{W+1}
    v_accvgpr_write_b32 a{cSTW}, v{W+1}
    v_add_u32 v{W+1}, s{sT0}, v{W+2}
    v_accvgpr_write_b32 a{cSTB}, v{W+1}
    s_lshl_b32 s{sT0}, s{sW}, 10
    v_add_u32 v{W+1}, s{sT0}, v{vL16}
    v_accvgpr_write_b32 a{cKW}, v{W+1}
    v_add_u32 v{W+3}, {R2 + 8192}, v{W+1}
    v_accvgpr_write_b32 a{cKW1}, v{W+3}
    s_lshl_b32 s{sT0}, s{sT5}, 14
    v_add_u32 v{W+1}, s{sT0}, v{vL16}
    v_lshl_add_u32 v{W+1}, v{W+5}, 12, v{W+1}
    v_accvgpr_write_b32 a{cKR}, v{W+1}
    s_lshl_b32 s{sT0}, s{sT5}, 14
    s_add_u32 s{sT0}, s{sT0}, {R2 + 8192}
    v_add_u32 v{W+1}, s{sT0}, v{vL16}
    v_lshl_add_u32 v{W+1}, v{W+5}, 14, v{W+1}
    v_accvgpr_write_b32 a{cKR1}, v{W+1}
    v_add_u32 v{W+1}, {L_XB}, v{vL16}
    v_accvgpr_write_b32 a{cXR}, v{W+1}
    v_lshlrev_b32 v{W+3}, 3, v{vT0}
    v_add_u32 v{W+3}, {L_ZB}, v{W+3}
    v_accvgpr_write_b32 a{cZR}, v{W+3}
    """)
    k(f"""
    s_lshl_b32 s{sT0}, s{sW}, 10
    v_add_u32 v{W+1}, s{sT0}, v{W+1}
    v_accvgpr_write_b32 a{cXW}, v{W+1}
    v_and_b32 v{W+3}, 1, v{vT0}
    v_lshrrev_b32 v{W+4}, 1, v{vT0}
    v_lshl_add_u32 v{W+3}, v{W+3}, 1, v{W+4}
    v_and_b32 v{W+4}, 3, v{vLANE}
    v_lshl_add_u32 v{W+3}, v{W+4}, 2, v{W+3}
    s_lshr_b32 s{sT0}, s{sW}, 1
    s_lshl_b32 s{sT0}, s{sT0}, 5
    s_add_u32 s{sT0}, s{sT0}, {L_ZB}
    v_lshl_add_u32 v{W+3}, v{W+3}, 1, s{sT0}
    v_accvgpr_write_b32 a{cZW}, v{W+3}
    """)
    for j in range(4):
        k(f"s_add_u32 s{sT0}, s{sW}, {j}")
        k(f"s_and_b32 s{sT0}, s{sT0}, 3")
        k(f"s_lshl_b32 s{sT0}, s{sT0}, 13")
        k(f"s_add_u32 s{sT0}, s{sT0}, {L_RED + (4096 if j == 2 else 0)}")
        k(f"v_add_u32 v{W+1}, s{sT0}, v{vL16}")
        k(f"v_accvgpr_write_b32 a{cRD0+j}, v{W+1}")
    k(f"""
    s_lshl2_add_u32 s{sT0}, s{sDH}, s{sW}
    s_lshl3_add_u32 s{sT0}, s{sG}, s{sT0}
    s_lshl_b32 s{sT0}, s{sT0}, 14
    s_lshl_b32 s{sT1}, s{sCT}, 7
    s_add_u32 s{sT0}, s{sT0}, s{sT1}
    v_lshl_add_u32 v{W+1}, v{vT1}, 10, s{sT0}
    v_and_b32 v{W+3}, 1, v{vT0}
    v_lshl_add_u32 v{W+1}, v{W+3}, 5, v{W+1}
    v_lshrrev_b32 v{W+3}, 1, v{vT0}
    v_lshl_add_u32 v{W+1}, v{W+3}, 4, v{W+1}
    v_accvgpr_write_b32 a{cOUT}, v{W+1}
    """)

    def xread(q):
        k.vm_wait(("xs", q))
        for ksl in range(4):
            for rb in range(2):
                k.lds(f"ds_read_b128 {vr(act(4*q+ksl, rb),4)}, v{XR+ksl} offset:{(q%2)*8192 + rb*4096}", ("xr", q))

    SUM0, SQ0, SUM1, SQ1 = vACC + 56, vACC + 57, vACC + 58, vACC + 59
    SUMA, SQA = vACC + 48, vACC + 56
    ONES = vPQ + 4
    NM_A, RS_A, RL_A = vACC + 60, vACC + 62, vACC + 56
    NM_B, RS_B, RL_B = vACC + 32, vACC + 40, vACC + 48
    STG = vACC + 48

    def own_stats():
        a, b, c, d = OWN + 8, OWN + 9, OWN + 10, OWN + 11
        k(f"v_mov_b32 v{OWN+12}, {BF1}")
        k.vm_wait("own")
        for j in range(4):
            r0, r1 = OWN + j, OWN + 4 + j
            k(f"v_dot2_f32_bf16 v{a}, v{OWN+12}, v{r0}, {'0' if j == 0 else f'v{a}'}")
            k(f"v_dot2_f32_bf16 v{c}, v{OWN+12}, v{r1}, {'0' if j == 0 else f'v{c}'}")
            k(f"v_dot2_f32_bf16 v{b}, v{r0}, v{r0}, {'0' if j == 0 else f'v{b}'}")
            k(f"v_dot2_f32_bf16 v{d}, v{r1}, v{r1}, {'0' if j == 0 else f'v{d}'}")
        k(f"""
        s_waitcnt lgkmcnt(0)
        s_mul_i32 s{sTAG}, s{sEP}, 0x9E3779B1
        s_add_u32 s{sTAG}, s{sTAG}, 0x7F4A7C15
        s_add_u32 s{sT8}, s{sEP}, 1
        s_and_b32 s{sT8}, s{sT8}, 0xff
        s_mov_b32 s{sS8}, s{sEP}
        v_permlane32_swap_b32 v{a}, v{c}
        v_permlane32_swap_b32 v{b}, v{d}
        v_add_f32 v{a}, v{a}, v{c}
        v_add_f32 v{b}, v{b}, v{d}
        v_mov_b32 v{c}, v{a}
        v_mov_b32 v{d}, v{b}
        s_nop 1
        v_permlane16_swap_b32 v{a}, v{c}
        v_permlane16_swap_b32 v{b}, v{d}
        v_add_f32 v{a}, v{a}, v{c}
        v_add_f32 v{b}, v{b}, v{d}
        """)
        for sh in (8, 4, 2, 1):
            k("s_nop 0")
            k(f"v_add_f32_dpp v{a}, v{a}, v{a} row_ror:{sh} row_mask:0xf bank_mask:0xf")
            k(f"v_add_f32_dpp v{b}, v{b}, v{b} row_ror:{sh} row_mask:0xf bank_mask:0xf")
        k(f"""
        v_mul_f32 v{a}, 0xbb000000, v{a}
        v_mul_f32 v{b}, 0x3b000000, v{b}
        v_fma_f32 v{b}, -v{a}, v{a}, v{b}
        v_max_f32 v{b}, 0, v{b}
        v_add_f32 v{b}, 0x3727c5ac, v{b}
        v_rsq_f32 v{b}, v{b}
        v_mov_b32 v{c}, s{sTAG}
        v_mov_b32 v{d}, s{sXCC}
        v_lshrrev_b32 v{vT3}, 1, v{vLANE}
        s_lshl4_add_u32 s{sT2}, s{sW}, s{sC}
        s_lshl_b32 s{sT2}, s{sT2}, 7
        s_add_u32 s{sT2}, s{sT2}, s{sGB}
        s_add_u32 s{sT2}, s{sT2}, {G_ST0}
        s_mov_b32 exec_lo, 1
        s_mov_b32 exec_hi, 1
        """)
        k.vmem(f"buffer_store_dwordx4 {vr(a,4)}, v{vT3}, {srd(S_WS)}, s{sT2} offen sc1", "ownst")
        k("s_mov_b64 exec, -1")

    S0 = vACC + 52

    def st0_issue():
        with k.atomic():
            k(f"v_and_b32 v{vT0}, 30, v{vLANE}")
            k(f"v_lshlrev_b32 v{vT0}, 6, v{vT0}")
            k(f"v_and_b32 v{vT1}, 16, v{vL16}")
            k(f"v_add_u32 v{vT0}, v{vT0}, v{vT1}")
            k(f"s_add_u32 s{sT4}, s{sSTg}, {G_ST0}")
            k.vmem(f"buffer_load_dwordx4 {vr(S0,4)}, v{vT0}, {srd(S_WS)}, s{sT4} offen sc1", "st0")

    def st0_use():
        lp, ok = k.label("L_s0"), k.label("L_s0ok")
        with k.atomic():
            k.vm_wait("st0")
            k(f"{lp}:")
            k(f"v_cmp_ne_u32 vcc, s{sTAG}, v{S0+2}")
            k(f"s_cbranch_vccz {ok}")
            k(f"buffer_load_dwordx4 {vr(S0,4)}, v{vT0}, {srd(S_WS)}, s{sT4} offen sc1")
            k("s_waitcnt vmcnt(0)")
            k(f"s_sub_u32 s{sBUD}, s{sBUD}, 1")
            k(f"s_cbranch_scc0 {lp}")
            k(f"s_mov_b32 s{sBUD}, 0")
            k(f"{ok}:")
            k(f"v_cmp_ne_u32 vcc, s{sXCC}, v{S0+3}")
            k("s_nop 4")
            k(f"s_or_b32 s{sSLOW}, vcc_lo, {1 if o.get('forceslow') else 0}")
        k.get(vT0, cSTA)
        k(f"v_and_b32 v{vT1}, 16, v{vLANE}")
        k(f"v_lshl_add_u32 v{vT1}, v{vT1}, 2, v{vT0}")
        k.lds(f"ds_write2_b32 v{vT1}, v{S0}, v{S0+1} offset0:0 offset1:32")
        k.lds(f"ds_read2_b32 {vr(NM_A,2)}, v{vT0} offset0:0 offset1:16", "sta")
        k.lds(f"ds_read2_b32 {vr(RS_A,2)}, v{vT0} offset0:32 offset1:48", "sta")

    def stats_finalize(need_rs):
        k.get(vT1, cSTW)
        k.get(vT0, cSTA)
        k(f"""
        v_permlane32_swap_b32 v{SUM0}, v{SUM1}
        v_permlane32_swap_b32 v{SQ0}, v{SQ1}
        v_add_f32 v{SUM0}, v{SUM0}, v{SUM1}
        v_add_f32 v{SQ0}, v{SQ0}, v{SQ1}
        v_mov_b32 v{SUM1}, v{SUM0}
        v_mov_b32 v{SQ1}, v{SQ0}
        s_nop 0
        v_permlane16_swap_b32 v{SUM0}, v{SUM1}
        v_permlane16_swap_b32 v{SQ0}, v{SQ1}
        v_add_f32 v{SUM0}, v{SUM0}, v{SUM1}
        v_add_f32 v{SQ0}, v{SQ0}, v{SQ1}
        v_mul_f32 v{SUM0}, 0xbb000000, v{SUM0}
        v_mul_f32 v{SQ0}, 0x3b000000, v{SQ0}
        v_fma_f32 v{SQ0}, -v{SUM0}, v{SUM0}, v{SQ0}
        v_max_f32 v{SQ0}, 0, v{SQ0}
        v_add_f32 v{SQ0}, 0x3727c5ac, v{SQ0}
        v_rsq_f32 v{SQ0}, v{SQ0}
        s_nop 0
        """)
        k.lds(f"ds_write2_b32 v{vT1}, v{SUM0}, v{SQ0} offset0:0 offset1:32")
        k.lds(f"ds_read2_b32 {vr(NM_A,2)}, v{vT0} offset0:0 offset1:16", "sta")
        if need_rs:
            k.lds(f"ds_read2_b32 {vr(RS_A,2)}, v{vT0} offset0:32 offset1:48", "sta")

    def stats_b():
        k.get(vT1, cSTB)
        for rb in range(2):
            k.lds(f"ds_read_b128 {vr(NM_B+4*rb,4)}, v{vT1} offset:{64*rb}", "sta")
            k.lds(f"ds_read_b128 {vr(RS_B+4*rb,4)}, v{vT1} offset:{128+64*rb}", "sta")

    def stats_scale():
        k.ds_wait("sta")
        for j in range(8):
            k(f"v_mul_f32 v{RL_B+j}, 0x3fb8aa3b, v{RS_B+j}")
        for j in range(2):
            k(f"v_mul_f32 v{RL_A+j}, 0x3fb8aa3b, v{RS_A+j}")

    def set_ones(r):
        for j in range(4):
            k(f"v_mov_b32 v{r+j}, {BF1}")

    def cs_put(first, sblk):
        k.get(vT0, cCSA)
        k(f"s_lshl_b32 s{sT5}, s{sblk}, 6")
        k(f"v_add_u32 v{vT0}, s{sT5}, v{vT0}")
        k.lds(f"ds_write_b32 v{vT0}, a{aCS} offset:{first*64}")

    def phi_block(acc, nm, cs, rl, rs, dst, tmp, lay):
        s1, s2, s3, s4, s5 = [], [], [], [], []
        for p in range(2):
            a2 = vr(acc + 2*p, 2)
            t2 = vr(tmp + 2*p, 2)
            if lay == "b":
                c2, m = bcast(cs, 1, 3)
                s1.append(f"v_pk_fma_f32 {a2}, {vr(nm+2*p,2)}, {c2}, {a2}{m}")
                s2.append(f"v_pk_mul_f32 {t2}, {a2}, {vr(rl+2*p,2)}")
                s4.append(f"v_pk_fma_f32 {a2}, {a2}, {vr(rs+2*p,2)}, {t2}")
            else:
                c2, m = bcast(nm, 1, 3)
                s1.append(f"v_pk_fma_f32 {a2}, {vr(cs+2*p,2)}, {c2}, {a2}{m}")
                c2, m = bcast(rl, 1, 2)
                s2.append(f"v_pk_mul_f32 {t2}, {a2}, {c2}{m}")
                c2, m = bcast(rs, 1, 3)
                s4.append(f"v_pk_fma_f32 {a2}, {a2}, {c2}, {t2}{m}")
            for j in range(2):
                s3.append(f"v_exp_f32 v{tmp+2*p+j}, v{tmp+2*p+j} clamp")
            s5.append(f"v_pk_add_f32 {a2}, {a2}, s[{sEPS}:{sEPS+1}]")
        for s in s1 + s2 + s3:
            k(s)
        for j in range(4):
            k(f"v_max_f32 v{acc+j}, 0, v{acc+j}")
        for s in s4 + s5:
            k(s)
        for p in range(2):
            k(f"v_cvt_pk_bf16_f32 v{dst+p}, v{acc+2*p}, v{acc+2*p+1}")

    def ring(ks, rb):
        return vACT + 8 * (ks % 6) + 4 * rb
    QA, vPARK = vACT + 48, vACT + 64

    def act_loads(bufoff, act=act, rot=False):
        for ks in range(16):
            for rb in range(2):
                with k.atomic():
                    if ks % 4 == 0:
                        k(f"s_add_u32 s{sT2+rb}, s{sACT+rb}, {f's{S_A + ks//4}' if rot else bufoff + ks*1024}")
                    k.vmem(f"buffer_load_dwordx4 {vr(act(ks,rb),4)}, v{vL16}, {srd(S_WS)}, s{sT2+rb} offen offset:{(ks%4)*1024} sc1",
                           ("act", ks, rb))

    def stat_loads(stoff, STG=STG):
        k(f"s_add_u32 s{sT4}, s{sSTg}, {stoff}")
        for j in range(2):
            k.vmem(f"buffer_load_dwordx4 {vr(STG+4*j,4)}, v{vL16}, {srd(S_WS)}, s{sT4} offen offset:{j*1024} sc1", "stg")

    def stat_sum(STG=STG):
        lp, ok = k.label("L_sg"), k.label("L_sgok")
        k.vm_wait("stg")

        def chk():
            for j in range(8):
                k(f"v_xor_b32 v{STG+j}, s{sS8}, v{STG+j}")
            k(f"v_or3_b32 v{SUM0}, v{STG}, v{STG+1}, v{STG+2}")
            k(f"v_or3_b32 v{SUM0+1}, v{STG+3}, v{STG+4}, v{STG+5}")
            k(f"v_or3_b32 v{SUM0}, v{SUM0}, v{STG+6}, v{STG+7}")
            k(f"v_or_b32 v{SUM0}, v{SUM0}, v{SUM0+1}")
            k(f"v_and_b32 v{SUM0}, 0xff, v{SUM0}")
        chk()
        with k.atomic():
            k(f"v_cmp_ne_u32 vcc, 0, v{SUM0}")
            k(f"s_cbranch_vccnz {lp}")
            k(f"{ok}:")
        sv, k._rec = k._rec, None
        n0 = len(k.lines)
        k(f"{lp}:")
        for j in range(2):
            k(f"buffer_load_dwordx4 {vr(STG+4*j,4)}, v{vL16}, {srd(S_WS)}, s{sT4} offen offset:{j*1024} sc1")
        k("s_waitcnt vmcnt(0)")
        chk()
        k(f"v_cmp_ne_u32 vcc, 0, v{SUM0}")
        k(f"s_cbranch_vccz {ok}")
        k(f"s_sub_u32 s{sBUD}, s{sBUD}, 1")
        k(f"s_cbranch_scc0 {lp}")
        k(f"s_mov_b32 s{sBUD}, 0")
        k(f"s_branch {ok}")
        k.tailcode += k.lines[n0:]
        del k.lines[n0:]
        k._rec = sv
        for j in range(4):
            k(f"v_add_f32 v{SUM0+j}, v{STG+j}, v{STG+4+j}")

    def mf2(acc, ks, sw, wait, first=None, act=act):
        return [(acc + 4 * rb, act(ks, rb), sw, (ks == 0) if first is None else first,
                 (("act", ks, 1) if ks else ("act", ks, rb)) if wait else None) for rb in range(2)]

    def wo_raw():
        with k.atomic():
            quad_lane(1024)
            k(f"s_lshl_b32 s{sD0}, s{sW}, 17")
            k(f"s_lshl_b32 s{sD1}, s{sCT}, 7")
            k(f"s_add_u32 s{sD0}, s{sD0}, s{sD1}")
            k(f"s_lshl_b32 s{sL0}, s{sW}, 14")
        for j in range(16):
            k.dma(S_WO, vDM, sD0, j * 8 * 1024, sL0, R0 + j * 1024, "wo")

    def w1c1_raw():
        with k.atomic():
            quad_lane(3584, tmp=vACT + 127)
            k(f"s_lshr_b32 s{sD0}, s{sC}, 2")
            k(f"s_mul_i32 s{sD0}, s{sD0}, 896")
            k(f"s_and_b32 s{sD1}, s{sC}, 3")
            k(f"s_lshl_b32 s{sD1}, s{sD1}, 7")
            k(f"s_add_u32 s{sD0}, s{sD0}, s{sD1}")
            k(f"s_mul_i32 s{sD1}, s{sW}, {64*3584}")
            k(f"s_add_u32 s{sD0}, s{sD0}, s{sD1}")
            k(f"s_lshl_b32 s{sL0}, s{sW}, 13")
        for half in range(2):
            for j in range(8):
                k.dma(S_W1, vDM, sD0, (half * 256 + j * 8) * 3584, sL0, R1 + half * 32768 + j * 1024, "w1a")

    def lin_dma(src, dst, n, tag, shared=False):
        for j in range(n):
            with k.atomic():
                if j == 0:
                    k(f"s_mul_i32 s{sL0}, s{sW}, {n*1024}")
                    k(f"s_add_u32 s{sD0}, s{sL0}, s{sPKB}")
                    if shared:
                        k(f"s_mul_i32 s{sD1}, s{sDH}, {8*PK_SZ}")
                        k(f"s_sub_u32 s{sD0}, s{sD0}, s{sD1}")
                if j % 4 == 0:
                    k(f"s_add_u32 m0, s{sL0}, {dst + j*1024}")
                    k(f"s_add_u32 s{sD1}, s{sD0}, {src + j*1024}")
                k.vmem(f"buffer_load_dwordx4 v{vL16}, {srd(S_WS)}, s{sD1} offen offset:{(j%4)*1024} sc1 lds", tag)

    def publish_x(bufoff, stoff, floff, pay_sc1):
        k(f"s_add_u32 s{sT1}, s{sTILE}, {bufoff}")
        k.stores([f"buffer_store_dwordx4 {vr(vRES+4*s,4)}, v{vL16}, {srd(S_WS)}, s{sT1} offen offset:{s*1024}" for s in range(2)], pay_sc1)
        a, b, c, d = vT0, vT1, vT2, vT3
        for j in range(4):
            r0, r1 = vRES + j, vRES + 4 + j
            if j == 0:
                k(f"v_mov_b32 v{vWB+9}, {BF1}")
                k(f"v_dot2_f32_bf16 v{b}, v{r0}, v{r0}, 0")
                k(f"v_dot2_f32_bf16 v{d}, v{r1}, v{r1}, 0")
                k(f"v_dot2_f32_bf16 v{a}, v{vWB+9}, v{r0}, 0")
                k(f"v_dot2_f32_bf16 v{c}, v{vWB+9}, v{r1}, 0")
            else:
                k(f"v_dot2_f32_bf16 v{b}, v{r0}, v{r0}, v{b}")
                k(f"v_dot2_f32_bf16 v{d}, v{r1}, v{r1}, v{d}")
                k(f"v_dot2_f32_bf16 v{a}, v{vWB+9}, v{r0}, v{a}")
                k(f"v_dot2_f32_bf16 v{c}, v{vWB+9}, v{r1}, v{c}")
        k.get(vWB + 8, cSTO)
        k(f"""
        s_add_u32 s{sT3}, s{sSTo}, {stoff}
        v_add_f32 v{b}, v{b}, v{d}
        v_add_f32 v{a}, v{a}, v{c}
        s_nop 1
        v_permlane16_swap_b32 v{a}, v{b}
        v_add_f32 v{a}, v{a}, v{b}
        v_mov_b32 v{b}, v{a}
        s_nop 1
        v_permlane32_swap_b32 v{a}, v{b}
        v_add_f32 v{c}, v{a}, v{b}
        s_add_u32 s{sS8}, s{sS8}, 1
        s_and_b32 s{sS8}, s{sS8}, 0xff
        v_and_b32 v{c}, 0xffffff00, v{c}
        v_or_b32 v{c}, s{sS8}, v{c}
        s_mov_b32 exec_hi, 0
        """)
        k.stores([f"buffer_store_dword v{c}, v{vWB+8}, {srd(S_WS)}, s{sT3} offen"], False, "sts" if o.get("sto", 1) else "st")
        k("s_mov_b64 exec, -1")
        k.poll_prep(15)

    def unpack_res(dst):
        for f in range(4):
            for p in range(2):
                r = vRES + 2*f + p
                k(f"v_lshlrev_b32 v{dst+4*f+2*p}, 16, v{r}")
                k(f"v_and_b32 v{dst+4*f+2*p+1}, 0xffff0000, v{r}")

    def misc_l1():
        k(f"""
        s_add_u32 s{sT2}, s{sTAG}, s{sXCC}
        s_add_u32 s{sT2}, s{sT2}, 2
        v_mov_b32 v{vT1}, s{sT2}
        s_lshl4_add_u32 s{sT2}, s{sG}, s{sC}
        s_lshl_b32 s{sT2}, s{sT2}, 7
        s_add_u32 s{sT2}, s{sT2}, {WS_XID}
        """)
        with k.atomic():
            k(f"s_cmp_lg_u32 s{sW}, 0")
            k(f"s_cselect_b32 s{sT2}, {OOB}, s{sT2}")
            k("s_mov_b64 exec, 1")
            k.vmem(f"buffer_store_dword v{vT1}, v{vL16}, {srd(S_WS)}, s{sT2} offen sc1", "xid")
            k("s_mov_b64 exec, -1")

    def res_load():
        k.get(vT0, cOUT)
        for s_ in range(2):
            k.vmem(f"buffer_load_dwordx4 {vr(vRES+4*s_,4)}, v{vT0}, {srd(S_X)}, 0 offen offset:{64*s_}", "res")

    def touch(kind, vSP=vSP):
        with k.atomic():
            k(f"s_lshl2_add_u32 s{sD3}, s{sC}, s{sW}")
            sD2 = sD3
            if kind == "h":
                k(f"s_mul_i32 s{sD2}, s{sD2}, 7168")
                k(f"s_add_u32 s{sD2}, s{sD2}, s{sGB}")
                k(f"s_add_u32 s{sD2}, s{sD2}, {G_H}")
                k(f"v_lshlrev_b32 v{vSP}, 7, v{vLANE}")
                k("s_mov_b32 exec_hi, 0xffffff")
                k.vmem(f"buffer_load_dword a{aDUM}, v{vSP}, {srd(S_WS)}, s{sD2} offen sc1", "touch")
                k("s_mov_b32 exec_hi, -1")
            else:
                k(f"v_lshlrev_b32 v{vSP}, 7, v{vLANE}")
                k(f"s_lshl_b32 s{sT5}, s{sD2}, 11")
                k(f"s_add_u32 s{sT5}, s{sT5}, s{sGB}")
                k(f"s_add_u32 s{sT5}, s{sT5}, {G_X1}")
                k("s_mov_b64 exec, 0xffff")
                k.vmem(f"buffer_load_dword a{aDUM}, v{vSP}, {srd(S_WS)}, s{sT5} offen sc1", "touch")
                k(f"s_lshl_b32 s{sD2}, s{sD2}, 7")
                k(f"s_add_u32 s{sD2}, s{sD2}, s{sGB}")
                k("s_mov_b64 exec, 1")
                k(f"s_add_u32 s{sD2}, s{sD2}, {G_ST1}")
                k.vmem(f"buffer_load_dword a{aDUM}, v{vSP}, {srd(S_WS)}, s{sD2} offen sc1", "touch")
                k("s_mov_b64 exec, -1")

    def touch_slots(first, n, va=vSP):
        with k.atomic():
            k(f"s_lshl2_add_u32 s{sD3}, s{sC}, s{sW}")
            k(f"v_lshlrev_b32 v{va}, 7, v{vLANE}")
            k(f"s_lshr_b32 s{sT5}, s{sD3}, 3")
            k(f"s_mul_i32 s{sT5}, s{sT5}, 57344")
            k(f"s_and_b32 s{sD3}, s{sD3}, 7")
            k(f"s_mul_i32 s{sD3}, s{sD3}, {n*128}")
            k(f"s_add_u32 s{sT5}, s{sT5}, s{sD3}")
            k(f"s_add_u32 s{sT5}, s{sT5}, s{sGB}")
            k(f"s_add_u32 s{sT5}, s{sT5}, {G_H + first*1024}")
            k(f"s_mov_b32 exec_lo, {(1 << min(n, 32)) - 1}")
            k(f"s_mov_b32 exec_hi, {(1 << max(n - 32, 0)) - 1}")
            k.vmem(f"buffer_load_dword a{aDUM}, v{va}, {srd(S_WS)}, s{sT5} offen sc1", "touch")
            k("s_mov_b64 exec, -1")

    def touches(code, va=vSP):
        if code & 1:
            touch("x", va)
        r = {0: None, 1: (0, 16), 2: (16, 8), 3: (0, 24), 4: (24, 32), 6: (16, 40), 7: (0, 56)}[code >> 1]
        if r:
            touch_slots(r[0], r[1], va)

    def packN_issue():
        with k.atomic():
            quad_lane(1024)
            k(f"""
            s_movk_i32 s{sD2}, 8192
            s_lshl_b32 s{sD0}, s{sG}, 15
            s_lshl_b32 s{sD1}, s{sCT}, 7
            s_add_u32 s{sD0}, s{sD0}, s{sD1}
            s_lshl_b32 s{sPDA}, s{sG}, 12
            s_add_u32 s{sPDA}, s{sPDA}, s{sPKB}
            s_add_u32 s{sPDA}, s{sPDA}, {PK_WO}
            s_lshl2_add_u32 s{sD1}, s{sDH}, s{sW}
            s_cmp_lg_u32 s{sD1}, 3
            s_cbranch_scc1 L_nskip
            """)
            for j in range(4):
                dma_raw(S_WO, j * 1024, j == 0)
            k("L_nskip:")

    def packN_finish(T):
        k(f"s_lshl2_add_u32 s{sD1}, s{sDH}, s{sW}")
        k(f"s_cmp_lg_u32 s{sD1}, 3")
        k("s_cbranch_scc1 L_nfskip")
        for f in range(4):
            k(f"v_add_u32 v{T+16+f}, {L_XST + 3*16384}, v{vQ0+f}")
        for f in range(4):
            for hh in range(2):
                k(f"ds_read_b64_tr_b16 {vr(T+4*f+2*hh,2)}, v{T+16+f} offset:{hh*2048}")
        k("s_waitcnt lgkmcnt(0)")
        for f in range(4):
            k(f"buffer_store_dwordx4 {vr(T+4*f,4)}, v{vL16}, {srd(S_WS)}, s{sPDA} offen offset:{f*1024} sc1")
        k("L_nfskip:")

    def pack_finish(T, base, shift, quad_if_3, tag="pk", sPDA=sPDA):
        lb, le = k.label("L_qb"), k.label("L_qe")
        k(f"s_lshl_b32 s{sT5}, s{sW}, {shift}")
        k(f"s_add_u32 s{sT5}, s{sT5}, {base}")
        k.vm_wait(tag)
        k.ds_all()
        k(f"s_cmp_eq_u32 s{sW}, 3")
        k(f"s_cbranch_scc{0 if quad_if_3 else 1} {lb}")
        for f in range(4):
            k(f"v_add_u32 v{T+16+f}, s{sT5}, v{vQ0+f}")
        for f in range(4):
            for hh in range(2):
                k(f"ds_read_b64_tr_b16 {vr(T+4*f+2*hh,2)}, v{T+16+f} offset:{hh*2048}")
        k("s_waitcnt lgkmcnt(0)")
        for f in range(4):
            k(f"buffer_store_dwordx4 {vr(T+4*f,4)}, v{vL16}, {srd(S_WS)}, s{sPDA} offen offset:{f*1024} sc1")
        k(f"s_branch {le}")
        k(f"{lb}:")
        k(f"v_add_u32 v{T+16}, s{sT5}, v{vTR0}")
        k(f"v_add_u32 v{T+17}, s{sT5}, v{vTR1}")
        k(f"v_lshl_add_u32 v{T+18}, v{vLANE}, 3, s{sT5}")
        for f in range(2):
            for hh in range(2):
                k(f"ds_read_b64_tr_b16 {vr(T+4*f+2*hh,2)}, v{T+16+f} offset:{hh*1024}")
        nf = 2 if quad_if_3 else 3
        if nf == 3:
            for hh in range(2):
                k(f"ds_read_b64_tr_b16 {vr(T+8+2*hh,2)}, v{T+18} offset:{2048+hh*512}")
        k("s_waitcnt lgkmcnt(0)")
        for f in range(nf):
            k(f"buffer_store_dwordx4 {vr(T+4*f,4)}, v{vL16}, {srd(S_WS)}, s{sPDA} offen offset:{f*1024} sc1")
        if nf == 3:
            k(f"buffer_load_dword a{aDUM}, v{vL16}, {srd(S_W1)}, s{S_W1+2} offen")
            nf = 4
        k(f"{le}:")
        k.vm_note(nf, "pst")

    def pack_flag(off=0):
        k(f"""
        s_lshl_b32 s{sT5}, s2, 7
        s_add_u32 s{sT5}, s{sT5}, {WS_PD + off}
        s_cmp_lg_u32 s{sW}, 0
        s_cselect_b32 s{sT5}, {OOB}, s{sT5}
        v_mov_b32 v{vT1}, s{sTAG}
        s_mov_b64 exec, 1
        """)
        k.vmem(f"buffer_store_dword v{vT1}, v{vL16}, {srd(S_WS)}, s{sT5} offen sc1")
        k("s_mov_b64 exec, -1")

    def pack_check_issue(off, va, vd, sb):
        with k.atomic():
            k(f"v_and_b32 v{va}, 1, v{vLANE}")
            k(f"v_lshlrev_b32 v{va}, 7, v{va}")
            k(f"v_lshrrev_b32 v{vd}, 1, v{vLANE}")
            if o.get("sub", 1):
                k(f"v_and_b32 v{vd}, 1, v{vd}")
                k(f"s_lshl2_add_u32 s{sT5}, s{sC}, s{sW}")
                k(f"s_lshl_b32 s{sT5}, s{sT5}, 1")
            else:
                k(f"v_and_b32 v{vd}, 7, v{vd}")
                k(f"s_lshl_b32 s{sT5}, s{sCT if off else sC}, 3")
            k(f"v_add3_u32 v{va}, v{va}, v{vd}, s{sT5}")
            if WP:
                k("s_mov_b32 exec_lo, 0")
                k(f"v_and_b32 v{va}, 0xbf, v{va}")
                k("s_mov_b32 exec_lo, -1")
            k(f"v_min_u32 v{vd}, 29, v{vLANE}")
            k(f"s_mul_i32 s{sT5}, s{sW}, 56")
            k(f"s_lshr_b32 s{sb}, s{sCT}, 1")
            k(f"s_add_u32 s{sT5}, s{sT5}, s{sb}")
            k(f"s_sub_u32 s{sT5}, s{sT5}, 64")
            k(f"v_lshl_add_u32 v{vd}, v{vd}, 2, s{sT5}")
            k("s_mov_b32 vcc_lo, 0xffff")
            k("s_mov_b32 vcc_hi, -1")
            k(f"s_mov_b32 s{sb}, {WS_PD + off}")
            k(f"v_cndmask_b32 v{va}, v{vd}, v{va}, vcc")
            k(f"v_lshlrev_b32 v{va}, 7, v{va}")
            k.vmem(f"buffer_load_dword v{vd}, v{va}, {srd(S_WS)}, s{sb} offen sc1", "pc")

    def pack_check(va, vd, sb):
        lp, ok = k.label("L_pc"), k.label("L_pcok")
        with k.atomic():
            k.vm_wait("pc")
            k(f"{lp}:")
            k(f"v_cmp_ne_u32 vcc, s{sTAG}, v{vd}")
            k(f"s_cbranch_vccz {ok}")
            if o.get("bo", 0):
                k(f"s_sleep {o['bo']}")
            if o.get("fl", 1):
                k("s_mov_b64 exec, vcc")
            k(f"buffer_load_dword v{vd}, v{va}, {srd(S_WS)}, s{sb} offen sc1")
            if o.get("fl", 1):
                k("s_mov_b64 exec, -1")
            k("s_waitcnt vmcnt(0)")
            k(f"s_sub_u32 s{sBUD}, s{sBUD}, 1")
            k(f"s_cbranch_scc0 {lp}")
            k(f"s_mov_b32 s{sBUD}, 0")
            k(f"{ok}:")

    aPK = 128

    def park_addr(va, base, shift):
        k(f"v_bfe_u32 v{va}, v{vLANE}, 4, 1")
        k(f"v_lshlrev_b32 v{va}, 10, v{va}")
        k(f"v_lshrrev_b32 v{va+1}, 5, v{vLANE}")
        k(f"v_mul_u32_u24 v{va+1}, 0x120, v{va+1}")
        k(f"v_add_u32 v{va}, v{va}, v{va+1}")
        k(f"v_and_b32 v{va+1}, 0xd8, v{vTR0}")
        k(f"s_lshl_b32 s{sT5}, s{sW}, {shift}")
        k(f"s_add_u32 s{sT5}, s{sT5}, {base}")
        k(f"v_add3_u32 v{va}, v{va}, v{va+1}, s{sT5}")
        k(f"v_xor_b32 v{va+1}, 32, v{va}")

    def park_kv(va):
        for r in range(4):
            for blk in range(4):
                for hh in range(2):
                    k.lds(f"ds_read_b64_tr_b16 {ar(aPK + 16*(r ^ 2) + 4*blk + 2*hh, 2)}, v{va + (blk & 1)} offset:{r*16384 + (blk >> 1)*2048 + hh*512}")

    def park_q(va):
        for r in range(4):
            for b in range(2):
                for hh in range(2):
                    k.lds(f"ds_read_b64_tr_b16 {ar(aPK + 64 + 8*r + 4*b + 2*hh, 2)}, v{va + b} offset:{r*8192 + hh*512}")

    def unpark(va, js):
        for j in js:
            with k.atomic():
                if j in (js[0], 16):
                    k(f"s_lshl_b32 s{sT5}, s{sW}, {11 if j >= 16 else 12}")
                    if j >= 16:
                        k(f"s_add_u32 s{sT5}, s{sT5}, {R1}")
                    k(f"v_add_u32 v{va}, s{sT5}, v{vL16}")
                off = ((j - 16) // 2) * 8192 + (j % 2) * 1024 if j >= 16 else ((j // 4) ^ 2) * 16384 + (j % 4) * 1024
                k.lds(f"ds_write_b128 v{va}, {ar(aPK + 4*j, 4)} offset:{off}", ("up", j // 4))

    def rot_setup():
        with k.atomic():
            k(f"s_lshr_b32 s{sD0}, s{sC}, 1")
            k(f"s_xor_b32 s{sD0}, s{sD0}, s{sG}")
            k(f"s_and_b32 s{sD0}, s{sD0}, 1")
            k(f"s_and_b32 s{sD1}, s{sC}, 1")
            k(f"s_lshl1_add_u32 s{sD0}, s{sD0}, s{sD1}")
            for q in range(4):
                k(f"s_add_u32 s{sD1}, s{sD0}, {q}")
                k(f"s_and_b32 s{sD1}, s{sD1}, 3")
                k(f"s_lshl_b32 s{sD1}, s{sD1}, 12")
                k(f"s_add_u32 s{S_A+q}, s{sD1}, {G_X2}")

    def wq_raw():
        k(f"s_lshl_b32 s{sL1}, s{sW}, 11")
        with k.atomic():
            k(f"v_and_b32 v{vT2}, 3, v{vP}")
            k(f"v_lshrrev_b32 v{vDM}, 4, v{vLANE}")
            k(f"v_lshl_add_u32 v{vT2}, v{vDM}, 3, v{vT2}")
            k(f"s_movk_i32 s{sD3}, 3072")
            k(f"v_mad_u32_u24 v{vDM}, v{vT2}, s{sD3}, v{vCH}")
        for r in range(4):
            for hh in range(2):
                k.dma(S_WQKV, vDM, sRB + r, hh * 4 * 3072, sL1, R1 + r * 8192 + hh * 1024, "wq")

    def async_check(tag, soff, imm):
        ok, lp = k.label("L_aok"), k.label("L_ap")
        with k.atomic():
            k.vm_wait(tag)
            k(f"v_cmp_ne_u32 vcc, s{sTAG}, v{vT0}")
            k(f"s_cbranch_vccnz {lp}")
            k(f"{ok}:")
        cnt = [f"    s_add_u32 s95, s95, {1 << (8 * ('p1', 'pb2', 'p2').index(tag))}"] if o.get("cnt") else []
        k.tailcode += [f"{lp}:"] + cnt + [
            f"    buffer_load_dword v{vT0}, v{vT3}, {srd(S_WS)}, s{soff} offen offset:{imm} sc1",
            "    s_waitcnt vmcnt(0)",
            f"    v_cmp_ne_u32 vcc, s{sTAG}, v{vT0}",
            f"    s_cbranch_vccz {ok}",
            f"    s_sub_u32 s{sBUD}, s{sBUD}, 1",
            f"    s_cbranch_scc0 {lp}",
            f"    s_mov_b32 s{sBUD}, 0",
            f"    s_branch {ok}"]

    CSK = vT0
    gA = None
    for layer in range(1 if o.get("one") else 2):
        L1 = layer == 0
        sc = o.get("sc1", 0x04)
        psc = lambda i: bool(sc >> (4 * layer + i) & 1)
        PRE = o.get("pre", 8)
        k.fast = ["", " nt", " sc0", " sc0 nt"][o.get("ntst", 4) >> (2 * layer) & 3]

        def w2t_loads():
            for j in range(56):
                with k.atomic():
                    if j == 0:
                        k(f"s_lshl2_add_u32 s{sPDB}, s{sCT}, s{sW}")
                        k(f"s_mul_i32 s{sPDB}, s{sPDB}, 57344")
                        k(f"s_add_u32 s{sPDB}, s{sPDB}, {WS_W2T}")
                    if j % 4 == 0:
                        k(f"s_add_u32 s{sJ0}, s{sPDB}, {j*1024}")
                    k.vmem(f"buffer_load_dwordx4 {ar(4*j,4)}, v{vL16}, {srd(S_WS)}, s{sJ0} offen offset:{(j%4)*1024} sc1", ("w2t", j // 4))

        w2 = k.rec(w2t_loads) if L1 else []

        def takew2(name, dflt, keep=24):
            nonlocal w2
            n = min(o.get(name, dflt), len(w2) - keep) if L1 else 0
            r, w2 = w2[:n], w2[n:]
            return r

        def kv_consts():
            k.get(vPQ, cCSA)
            k.lds(f"ds_read2_b32 {vr(CSK,2)}, v{vPQ} offset0:0 offset1:16", "cs")
            k.lds(f"ds_read2_b32 {vr(CSK+2,2)}, v{vPQ} offset0:32 offset1:48", "cs")
        if L1:
            CSA = vACC + 32
            k(f"s_and_b32 s{sT0}, s{sW}, 1")
            k(f"s_lshl_b32 s{sT0}, s{sT0}, 5")
            k(f"v_xor_b32 v{vPQ+3}, s{sT0}, v{vTR0}")
            k(f"s_lshr_b32 s{sT0}, s{sW}, 1")
            k(f"s_lshl_b32 s{sT0}, s{sT0}, 11")
            k(f"v_add_u32 v{vPQ+2}, s{sT0}, v{vPQ+3}")
            k(f"s_lshl_b32 s{sT1}, s{sW}, 5")
            k(f"v_xor_b32 v{vPQ+6}, s{sT1}, v{vQ0}")

            def wo_pack():
                T_ = vACT + 96
                for hh in range(2):
                    k.lds(f"ds_read_b64_tr_b16 {vr(T_+2*hh,2)}, v{vPQ+6} offset:{R0 + 49152 + hh*2048}", "wp")
                k.play([lambda: None] * 2)
                with k.atomic():
                    k.ds_wait("wp")
                    k.vmem(f"buffer_store_dwordx4 {vr(T_,4)}, v{vL16}, {srd(S_WS)}, s{sPDA} offen sc1", "pst")
            if o.get("diags"): k.stamp("setup")
            PADP = o.get("padp", 0)
            if W0P == 1:
                k.play(w0_[nw0:])
            if PADP == 1:
                k("PADCALL")
            if W0P == 2:
                k.play(w0_[nw0:])
            if o.get("diags"): k.stamp("w0b")
            own_stats()
            if o.get("diags"): k.stamp("own")
            nx0 = o.get("nx0", 0)
            xslot(0, range(nx0))
            if o.get("pads", 2048) and PADP == 0:
                k("PADCALL")
            if o.get("diags"): k.stamp("pad")
            if o.get("pf1", 0):
                pack_finish(vACT + 64, R1, 12, False, "pu", sPDB)
            xslot(0, range(nx0, 8)); xslot(1, range(o.get("x1pre", 4)))
            if o.get("diags"): k.stamp("xiss")
            if UF == 1 and not o.get("pf1", 0):
                pack_finish(vACT + 64, R1, 12, False, "pu", sPDB)
            if o.get("diags"): k.stamp("pfin")
            xread(0)
            def rnd_begin(r):
                k.vm_wait(("wkv", r))
                k.barrier(True)
                fr = []
                for ks in range(4 * r, 4 * r + 4):
                    fr.append(dict(addr=vPQ + 2, offs=(R0 + ks * 4096, R0 + ks * 4096 + 1024), mf=[(None, None, False, ks == 0, None)]))
                for ks in range(4 * r, 4 * r + 4):
                    for pr in range(2):
                        for b in range(2):
                            base = R0 + ks * 4096 + pr * 2048
                            fr.append(dict(addr=(vTR0, vTR1)[b], offs=(base, base + 1024), mf=mf2(vACC + 16 * pr + 8 * b, ks, False, False)))
                return k.gemm_begin(fr)
            wq = k.rec(wq_raw)
            xslot(1, range(o.get("x1pre", 4), 8))
            g = rnd_begin(0)
            k.stamp("x0")
            f = {}
            if WP:
                w1_ = k.rec(lambda: wkv_raw(1))
                spread(f, w1_[:2], 0, 2); spread(f, k.rec(wo_pack), 0, 1); spread(f, w1_[2:] + k.rec(lambda: xslot(2)), 6, 3)
            else:
                spread(f, k.rec(lambda: (wkv_raw(1), xslot(2))), 0, 3)
            spread(f, k.rec(lambda: xread(1)), 30, 1, 2); k.gemm_run(g, f)
            k.stamp("r0")
            g = rnd_begin(1)
            f = {}
            if UF == 1:
                spread(f, k.rec(pack_flag), 1, 0)
            spread(f, k.rec(lambda: (wkv_raw(2), xslot(3))), 0, 3); spread(f, k.rec(lambda: xread(2)), 31, 1, 2); k.gemm_run(g, f)
            k.stamp("r1")
            g = rnd_begin(2)
            nq = o.get("nq", 6)
            if UF == 2:
                pu_ = k.rec(lambda: packU_issue(L_XST + 4096, sD0, sD1, sD2, sD3, sJ0, vDM, sPDB, 14))
                wq = pu_ + wq if o.get("pufirst", 1) else wq + pu_
            f = {}; spread(f, k.rec(lambda: (wkv_raw(3), st0_issue())) + wq[:nq], 0, 3); spread(f, k.rec(lambda: xread(3)), 31, 1, 2); k.gemm_run(g, f)
            k.stamp("r2")
            g = rnd_begin(3)
            f = {}
            spread(f, k.rec(st0_use), 0, 1)
            spread(f, k.rec(lambda: cs_put(0, sW)), 8, 0)
            spread(f, k.rec(stats_b), 10, 1)
            spread(f, k.rec(stats_scale), 24, 1)
            spread(f, k.rec(lambda: park_addr(vRES + 2, R0, 12)), 15, 0)
            pn = k.rec(lambda: (packN_issue(), k.vmem(f"buffer_load_dword a{aDUM}, v{vL16}, {srd(S_W1)}, s{S_W1+2} offen", "pn")))
            pci = k.rec(lambda: pack_check_issue(0, vRES, vRES + 1, sPDB)) if UF == 1 else []
            if o.get("w2e", 8):
                spread(f, wq[nq:] + ([] if o.get("pcl", 0) else pci) + k.rec(lambda: touches(o.get("Tr", 0), vT3)), 1, o.get("r3s", 5))
            else:
                spread(f, wq[nq:] + pn + pci, 1, o.get("r3s", 5))
            bg = []
            k.gemm_run(g, f)
            k.stamp("A.kv")
            k.barrier()
            kv_consts()
        else:
            k.poll_b(sFXp, G_FX2)
            k.stamp("A.poll")
            al = k.rec(lambda: act_loads(G_X2, ring, True))
            PA = o.get("prea", 4)
            k.play(al[:PA])
            k(f"s_add_u32 s{sTAG}, s{sTAG}, 1")
            fill = {}
            sl = k.rec(lambda: stat_loads(G_ST2))
            e = spread(fill, al[PA:12] + [lambda: k.play(sl[:2]), sl[2]], 0, 4)
            for i_ in range(12, 32):
                pos = max(12 * (i_ // 2 - 6) + 11 + 4 * (i_ & 1), e)
                spread(fill, [al[i_]], pos, 1)
                e = pos + 3
            e2 = spread(fill, k.rec(lambda: (stat_sum(), stats_finalize(True), stats_b())), 60, 1.3)
            e2 = spread(fill, k.rec(stats_scale), e2 + 6, 1.3)
            spread(fill, k.rec(kv_consts), e2, 1.3)
            spread(fill, k.rec(lambda: lin_dma(PK_WO + 32768, R2, 8, "wo", True)), e, o.get("wos", 5))
            if o.get("diagc"):
                for ix in (0, 23, 47, 95, 143):
                    spread(fill, k.rec(lambda: k.stamp(f"A.m{ix}", True)), ix, 0)
            k.gemm_run(gA, fill)
            k.stamp("A.kv")
            k("s_barrier")
            bg = []
        k("s_nop 2")
        k.get(vWB + 22, cKW1 if L1 else cKW)
        k.get(vWB + 23, cKR1 if L1 else cKR)
        k.ds_all()
        PK, PV, TMP = vPQ, vACC, vWB + 24
        KVA = vACC + 16

        def kv_epi():
            for h in range(2):
                for rb in range(2):
                    phi_block(vACC + 8*h + 4*rb, NM_B + 4*rb, CSK + h, RL_B + 4*rb, RS_B + 4*rb, PK + 4*h + 2*rb, TMP, "b")
            for h in range(2):
                for rb in range(2):
                    a = vACC + 16 + 8*h + 4*rb
                    c2, m = bcast(CSK + 2 + h, 1, 3)
                    for p in range(2):
                        k(f"v_pk_fma_f32 {vr(a+2*p,2)}, {vr(NM_B+4*rb+2*p,2)}, {c2}, {vr(a+2*p,2)}{m}")
                    for p in range(2):
                        k(f"v_pk_mul_f32 {vr(a+2*p,2)}, {vr(a+2*p,2)}, {vr(RS_B+4*rb+2*p,2)}")
                    for p in range(2):
                        k(f"v_cvt_pk_bf16_f32 v{PV+4*h+2*rb+p}, v{a+2*p}, v{a+2*p+1}")
                    if rb == 0:
                        k(f"v_mfma_f32_16x16x32_bf16 {vr(vACC+8+4*h,4)}, {vr(PK+4*h,4)}, {ar(aONES,4)}, 0")
                if h == 0:
                    pass
        if L1:
            we = takew2("w2e", 8)
            ke = mix(k.rec(kv_epi), k.rec(lambda: park_kv(vRES + 2)), 3)
            if o.get("pcl", 0):
                w2 = we + w2
                we = []
                touches(o.get("Te", 6), vWB + 20)
                k.play(ke[:o["pcl"]]); ke = ke[o["pcl"]:]
                k.play(pci)
            if we:
                c0 = o.get("w2c", 40)
                touches(o.get("Te", 6), vWB + 20)
                k.play(ke[:c0])
                pack_check(vRES, vRES + 1, sPDB)
                ke = mix(ke[c0:], we, (135 - c0) // len(we))
            k.play(ke)
        else:
            wod = k.rec(lambda: lin_dma(PK_WO, R1, 8, "wo", True))
            nwo = o.get("nwo", 0)
            k.play(mix(k.rec(kv_epi), wod[:nwo], 100 // max(nwo, 1))); wod = wod[nwo:]
        KRO = [0, 16384, 32768, 49152 if L1 else 36864]
        k.lds(f"ds_write_b128 v{vWB+22}, {vr(vACC+8,4)} offset:{KRO[2]}")
        for h in range(2):
            k(f"v_mfma_f32_16x16x32_bf16 {vr(KVA+4*h,4)}, {vr(PK+4*h,4)}, {vr(PV+4*h,4)}, 0")
        k.lds(f"ds_write_b128 v{vWB+22}, {vr(vACC+12,4)} offset:{KRO[3]}")
        k.get(vWB + 21, cKVS)
        k("s_nop 4")
        for h in range(2):
            k.lds(f"ds_write_b128 v{vWB+22}, {vr(KVA+4*h,4)} offset:{KRO[h]}")
        if L1 and UF == 1:
            k.vm_wait("wq")
        k.barrier()
        for s in range(4):
            k.lds(f"ds_read_b128 {vr(vWB+4*s,4)}, v{vWB+23} offset:{s*1024}", ("kr", s))
        KO = vACC + 32
        k.ds_wait(("kr", 1))
        for p in range(2):
            k(f"v_pk_add_f32 {vr(vWB+2*p,2)}, {vr(vWB+2*p,2)}, {vr(vWB+4+2*p,2)}")
        k.ds_wait(("kr", 3))
        for p in range(2):
            k(f"v_pk_add_f32 {vr(vWB+8+2*p,2)}, {vr(vWB+8+2*p,2)}, {vr(vWB+12+2*p,2)}")
        for p in range(2):
            k(f"v_pk_add_f32 {vr(KO+2*p,2)}, {vr(vWB+2*p,2)}, {vr(vWB+8+2*p,2)}")
        k(f"v_and_b32 v{KO}, 0xffffff00, v{KO}")
        k(f"v_or_b32 v{KO}, s{sT8}, v{KO}")
        k(f"s_mov_b64 exec, s[{sKM}:{sKM+1}]")
        k.vmem(f"buffer_store_dwordx4 {vr(KO,4)}, v{vWB+21}, {srd(S_WS)}, s{sKVP} offen sc1", "kvst")
        k("s_mov_b64 exec, -1")
        k.stamp("A.kvpub")
        fill = {}
        fr = []
        CSQ = vACC + 24

        def q_consts():
            k.get(vT0, cCSB)
            for h in range(2):
                k.lds(f"ds_read_b128 {vr(CSQ+4*h,4)}, v{vT0} offset:{(4+h)*64}")
        if L1:
            if UF == 1:
                if not o.get("w2e", 8) or o.get("pcl", 0):
                    pack_check(vRES, vRES + 1, sPDB)
            else:
                pack_finish(vWB, L_XST + 4096, 14, False, "pu", sPDB)
                k.vm_wait("pn")
                k("s_barrier")
            if not o.get("w2e", 8):
                packN_finish(vWB)
            park_addr(vPQ + 4, R1, 11)
            if o.get("diag"): k.stamp("q.pf")
            k(f"v_add_u32 v{vPQ}, {R1}, v{vTR0}")
            k(f"v_add_u32 v{vPQ+1}, {R1}, v{vTR1}")
            k(f"s_and_b32 s{sT0}, s{sW}, 1")
            k(f"s_lshl_b32 s{sT1}, s{sT0}, 5")
            k(f"v_xor_b32 v{vPQ+2}, s{sT1}, v{vPQ}")
            for j in range(16):
                fr.append(dict(addr=vPQ + 2, offs=(j * 2048, j * 2048 + 1024), mf=[(None, None, False, j == 0, None)]))
            for ks in range(16):
                for b in range(2):
                    fr.append(dict(addr=vPQ + b, offs=(ks * 2048, ks * 2048 + 1024), mf=mf2(vACC + 8 * b, ks, True, False)))
            wor = k.rec(lambda: lin_dma(PK_WO, R0, 16, "wo", True)) if WP else k.rec(wo_raw)
            e = spread(fill, bg + k.rec(res_load), 0, 1)
            if o.get("arm", 0):
                e = spread(fill, k.rec(lambda: arm(o.get("arm", 0))), e, 2)
            e = spread(fill, k.rec(lambda: touches(o.get("Tq", 0))), e, 1)
            e = spread(fill, wor, e, o.get("wors", 2))
            spread(fill, takew2("w2q", 8), e, 4)
            spread(fill, k.rec(lambda: park_q(vPQ + 4)), 20, 3)
            k.gemm(fr, fill)
            if o.get("diag"): k.stamp("q.mm")
            cs_put(4, sT0)
            if UF == 2:
                k.vm_wait("pst")
            k.barrier()
            if o.get("diag"): k.stamp("q.bar")
            q_consts()
            if UF == 2:
                pack_flag()
        else:
            q_consts()
        lp2, done2 = k.label("L_kp"), k.label("L_kd")
        SM = vWB + 8
        ZL = vACT + 32

        def kv_loads(track):
            ins = [(f"buffer_load_dwordx4 {vr(ZL,4)}, v{vT2}, {srd(S_WS)}, s{sKVC} offen sc1", "zl")]
            for j in range(8):
                ins.append((f"buffer_load_dwordx4 {vr(vACT+4*j,4)}, v{vL16}, {srd(S_WS)}, s{sKVC if j < 4 else sT2} offen offset:{(j%4)*1024} sc1", ("kv", j)))
            for i_, t_ in ins:
                if track:
                    k.vmem(i_, t_)
                else:
                    k(i_)
        if L1:
            w1a = k.rec(lambda: (lin_dma(PK_W1A, R1, 16, "w1a"), lin_dma(PK_W1B, R3, 6, "w1c2")))
        else:
            w1a = []
        k.get(vT2, cZL)
        k(f"s_add_u32 s{sT2}, s{sKVC}, 4096")
        kl = k.rec(lambda: kv_loads(True))
        QS = vACC if L1 else QA
        ph = k.rec(lambda: [phi_block(QS + 8*h + 4*rb, NM_A + rb, CSQ + 4*h, RL_A + rb, RS_A + rb, vPQ + 4*h + 2*rb, vWB, "a")
                            for h in range(2) for rb in range(2)])
        if L1:
            k.play(kl[:5])
            k.ds_all()
            if o.get("diag"): k.stamp("q.kl5")
            na = o.get("w1a0", 4) if UF == 1 else 0
            k.play(mix(ph, kl[5:] + w1a[:na], o.get("phr", 10)))
            w1a = w1a[na:]
        else:
            def unpark_w1():
                for j in range(16):
                    k.lds(f"ds_write_b128 v{vT3}, {vr(vPARK+4*j,4)} offset:{j*1024}")
            k(f"s_lshl_b32 s{sT5}, s{sW}, 14")
            k(f"v_add_u32 v{vT3}, s{sT5}, v{vL16}")
            uw = k.rec(unpark_w1)
            if late:
                nl = o.get("nul", 6)
                f = {}; spread(f, uw[:nl], 1, 2 * len(late) / max(nl, 1)); uw = uw[nl:]
                k.gemm(late, f)
                k("s_barrier")
                k("s_nop 3")
            k.play(wod[:4]); wod = wod[4:]
            k.ds_all()
            nu = o.get("nu", 16)
            k.play(mix(mix(ph, uw[:nu], 5), wod, 10))
            k.play(mix(kl, uw[nu:], 1))
        k.stamp("A.q")
        if L1:
            k("PADCALL1")
        k.get(vT1, cXW)
        k.get(vWB + 18, cZW)
        k.get(vWB + 16, cXR)
        k.get(vWB + 17, cZR)
        k(f"s_branch {lp2}_s")
        k(f"{lp2}:")
        if o.get("zs", 0):
            k(f"buffer_load_dword v{ZL}, v{vT2}, {srd(S_WS)}, s{sKVC} offen sc1")
            k(f"{lp2}_z:")
            k("s_waitcnt vmcnt(0)")
            k(f"v_xor_b32 v{ZL+1}, s{sT8}, v{ZL}")
            k(f"v_and_b32 v{ZL+1}, 0xff, v{ZL+1}")
            k(f"v_cmp_ne_u32 vcc, 0, v{ZL+1}")
            k(f"s_cbranch_vccz {lp2}_y")
            if o.get("bk", 0):
                k(f"s_sleep {o['bk']}")
            k("s_mov_b64 exec, vcc")
            k(f"buffer_load_dword v{ZL}, v{vT2}, {srd(S_WS)}, s{sKVC} offen sc1")
            k("s_mov_b64 exec, -1")
            k(f"s_sub_u32 s{sBUD}, s{sBUD}, 1")
            k(f"s_cbranch_scc0 {lp2}_z")
            k(f"s_mov_b32 s{sBUD}, 0")
            k("s_waitcnt vmcnt(0)")
            k(f"{lp2}_y:")
        elif o.get("bk", 0):
            k(f"s_sleep {o['bk']}")
        kv_loads(False)
        k("s_waitcnt vmcnt(0)")
        k(f"{lp2}_s:")
        k.vm_wait("zl")
        k(f"""
        v_xor_b32 v{ZL}, s{sT8}, v{ZL}
        v_mov_b32 v{SM+4}, v{ZL}
        v_permlane32_swap_b32 v{ZL+2}, v{ZL+3}
        v_permlane32_swap_b32 v{ZL}, v{ZL+1}
        v_add_f32 v{ZL}, v{ZL}, v{ZL+1}
        v_add_f32 v{ZL+2}, v{ZL+2}, v{ZL+3}
        s_nop 1
        v_permlane16_swap_b32 v{ZL}, v{ZL+2}
        v_add_f32 v{ZL}, v{ZL}, v{ZL+2}
        s_nop 1
        v_add_f32_dpp v{ZL}, v{ZL}, v{ZL} row_ror:4 row_mask:0xf bank_mask:0xf
        s_nop 1
        v_add_f32_dpp v{ZL}, v{ZL}, v{ZL} row_ror:8 row_mask:0xf bank_mask:0xf
        v_cvt_pk_bf16_f32 v{ZL}, v{ZL}, v{ZL}
        ds_write_b16 v{vWB+18}, v{ZL}
        """)
        for j in range(0, 8, 2):
            a, b = vACT + 4*j, vACT + 4*j + 4
            k.vm_wait(("kv", j + 1))
            k(f"v_xor_b32 v{a}, s{sT8}, v{a}")
            k(f"v_xor_b32 v{b}, s{sT8}, v{b}")
            k(f"v_or3_b32 v{SM+4}, v{SM+4}, v{a}, v{b}")
            if j == 0:
                for p in range(2):
                    k(f"v_pk_add_f32 {vr(SM+2*p,2)}, {vr(a+2*p,2)}, {vr(b+2*p,2)}")
            else:
                for p in range(2):
                    k(f"v_pk_add_f32 {vr(a+2*p,2)}, {vr(a+2*p,2)}, {vr(b+2*p,2)}")
                for p in range(2):
                    k(f"v_pk_add_f32 {vr(SM+2*p,2)}, {vr(SM+2*p,2)}, {vr(a+2*p,2)}")
        k(f"""
        ds_write_b128 v{vT1}, {vr(SM,4)}
        v_and_b32 v{SM+4}, 0xff, v{SM+4}
        v_cmp_ne_u32 vcc, 0, v{SM+4}
        s_cbranch_vccz {done2}
        s_waitcnt lgkmcnt(0)
        s_sub_u32 s{sBUD}, s{sBUD}, 4
        s_cbranch_scc0 {lp2}
        s_mov_b32 s{sBUD}, 0
        {done2}:
        """)
        k.stamp("A.kvget")
        if L1:
            touches(o.get("Tk", 0))
        n1 = o.get("w1a1", 4) if L1 and UF == 1 else 0
        if L1 and UF == 2:
            pack_check_issue(0, vTR0, vTR1, sPDB)
        k.play(w1a[:n1]); w1a = w1a[n1:]
        k.barrier(True)
        for h in range(2):
            k.lds(f"ds_read_b64 {vr(vWB+4*h+2,2)}, v{vWB+17} offset:{h*32}", "zf")
        for j in range(4):
            k.lds(f"ds_read_b128 {vr(vACT+4*j,4)}, v{vWB+16} offset:{1024*j}")
        k.ds_wait("zf")
        OA = vACC + 16
        for rb in range(2):
            for h in range(2):
                d = OA + 16*rb + 8*h
                k(f"v_mfma_f32_16x16x16_bf16 {vr(d+4,4)}, {vr(vWB+4*h+2,2)}, {vr(vPQ+4*h+2*rb,2)}, 0")
        k.ds_all()
        for h in range(2):
            for p in range(2):
                k(f"v_pk_add_f32 {vr(vACT+8*h+2*p,2)}, {vr(vACT+8*h+2*p,2)}, {vr(vACT+8*h+4+2*p,2)}")
        for h in range(2):
            for p in range(2):
                k(f"v_cvt_pk_bf16_f32 v{vWB+4*h+p}, v{vACT+8*h+2*p}, v{vACT+8*h+2*p+1}")
        for rb in range(2):
            for h in range(2):
                d = OA + 16*rb + 8*h
                k(f"v_add_f32 v{d+4}, s{sEPS}, v{d+4}")
        for rb in range(2):
            for h in range(2):
                d = OA + 16*rb + 8*h
                k(f"v_mfma_f32_16x16x16_bf16 {vr(d,4)}, {vr(vWB+4*h,2)}, {vr(vPQ+4*h+2*rb,2)}, 0")
        for rb in range(2):
            for h in range(2):
                d = OA + 16*rb + 8*h
                k(f"v_rcp_f32 v{d+4}, v{d+4}")
        k("s_nop 1")
        for rb in range(2):
            for h in range(2):
                d = OA + 16*rb + 8*h
                for p in range(2):
                    k(f"v_pk_mul_f32 {vr(d+2*p,2)}, {vr(d+2*p,2)}, {vr(d+4,2)} op_sel_hi:[1,0]")
                for p in range(2):
                    k(f"v_cvt_pk_bf16_f32 v{vPQ+4*rb+2*h+p}, v{d+2*p}, v{d+2*p+1}")
        k.stores([f"buffer_store_dwordx4 {vr(vPQ+4*rb,4)}, v{vL16}, {srd(S_WS)}, s{sOST+rb} offen" for rb in range(2)], psc(0))
        nb = o.get("w1a_pre1", 6) if L1 else o.get("w1a_pre", 0)
        if L1 and UF == 2:
            pack_check(vTR0, vTR1, sPDB)
        if L1:
            touches(o.get("To", 0))
        k.play(w1a[:nb])
        if L1:
            for s_ in range(2):
                for p in range(2):
                    k(f"v_permlane16_swap_b32 v{vRES+4*s_+p}, v{vRES+4*s_+2+p}")
        urs = k.rec(lambda: unpack_res(vACC))
        fr = []
        for ks in range(16):
            for f in range(4):
                mf = [(vACC + 4 * f, vACT + 4 * ks, True, False, ("act", ks))]
                if L1 and WP:
                    fr.append(dict(addr=vL16, offs=(R0 + ks * 4096 + f * 1024,), mf=mf))
                elif L1:
                    fr.append(dict(addr=vQ0 + f, offs=(R0 + ks * 4096, R0 + ks * 4096 + 2048), mf=mf))
                else:
                    fr.append(dict(addr=vTR0, offs=(ks * 4096 + f * 1024,), mf=mf))
        if L1:
            k("PADCALL2")
        k.poll_prep(15)
        k.flag(sFOo, G_FO)
        k.poll_a(sFOp, G_FO)
        g = k.gemm_begin(fr, 7)
        k.play(urs)
        k.stamp("A.opub")
        k.poll_b(sFOp, G_FO)
        k.stamp("B.poll")

        def b_loads():
            for ks in range(16):
                with k.atomic():
                    if ks % 4 == 0:
                        k(f"s_add_u32 s{sT2}, s{sBACT}, {G_O + ks*1024}")
                    k.vmem(f"buffer_load_dwordx4 {vr(vACT+4*ks,4)}, v{vL16}, {srd(S_WS)}, s{sT2} offen offset:{(ks%4)*1024} sc1", ("act", ks))
        bl = k.rec(b_loads)
        PB = o.get("preb", PRE)
        k.play(bl[:PB])
        fill = {}
        e = spread(fill, bl[PB:], 0, 3)
        if L1:
            e = spread(fill, k.rec(lambda: touches(o.get("Ta", 0))), e, 1)
        e = spread(fill, w1a[nb:], e, o.get("w1st", 3))
        if L1:
            e = spread(fill, k.rec(lambda: touches(o.get("Tb", 1))), e, 1)
        spread(fill, takew2("w2b", 0), e, 4)
        k.gemm_run(g, fill)
        k.stamp("B.mm")
        k(f"v_add_u32 v{vTR1}, {R1}, v{vL16}")
        k("s_nop 6")
        for f in range(4):
            for p in range(2):
                k(f"v_cvt_pk_bf16_f32 v{vRES+2*f+p}, v{vACC+4*f+2*p}, v{vACC+4*f+2*p+1}")
        publish_x(G_X1, G_ST1, G_FX1, psc(1))
        k.play(takew2("w2x", 0))
        k.flag(sFXo, G_FX1)
        if not L1:
            k.poll_a(sFXp, G_FX1)
        k.stamp("B.pub")
        if L1 and o.get("w2e", 8) and not WP:
            k(f"s_lshl2_add_u32 s{sD1}, s{sDH}, s{sW}")
            k(f"s_cmp_lg_u32 s{sD1}, 3")
            k("s_cbranch_scc1 L_nfskip")
            k(f"s_lshl_b32 s{sT5}, s{sG}, 12")
            for f in range(4):
                k(f"v_add_u32 v{vWB+16+f}, s{sT5}, v{vQ0+f}")
            for f in range(4):
                for hh in range(2):
                    k(f"ds_read_b64_tr_b16 {vr(vACC+4*f+2*hh,2)}, v{vWB+16+f} offset:{hh*2048}")
            k(f"s_add_u32 s{sT5}, s{sT5}, s{sPKB}")
            k(f"s_add_u32 s{sT5}, s{sT5}, {PK_WO}")
            k("s_waitcnt lgkmcnt(0)")
            for f in range(4):
                k(f"buffer_store_dwordx4 {vr(vACC+4*f,4)}, v{vL16}, {srd(S_WS)}, s{sT5} offen offset:{f*1024} sc1")
            k("L_nfskip:")
        k("s_barrier")
        w1c2 = k.rec(lambda: lin_dma(PK_W1B + 24576, R0 if L1 else R1, 6, "w1c2"))
        if L1 and not o.get("w2e", 8):
            pack_flag(0x8000)
        nc = o.get("w1c2_pre1", 0) if L1 else o.get("w1c2_pre", 0)
        k.play(w1c2[:nc])
        EU = o.get("eu", 8)
        if L1:
            eup = k.rec(lambda: unpark(vPQ + 1, list(range(EU)))) if EU else []
            k(f"s_lshl_b32 s{sT2}, s{sW}, 10")
            k(f"v_add_u32 v{vPQ}, s{sT2}, v{vTR1}")
            fr = []
            for j in range(16):
                fr.append(dict(addr=vPQ, offs=(j * 4096,), mf=[(None, None, False, j == 0, None)]))
            k.gemm(fr, D=7)
            k.play(eup)
            k("s_nop 5")
            cs_put(6, sW)
        C2 = vACC + 32
        vC1, vC2, vCc, vCd = (vTR1 if L1 else vL16), vDM, vP, vCH
        k(f"v_add_u32 v{vC2}, {R3}, v{vL16}")
        if L1:
            k(f"s_min_u32 s{sPDA}, s{sW}, 2")
            k(f"s_lshl_b32 s{sT2}, s{sPDA}, 10")
            k(f"v_add_u32 v{vCd}, s{sT2}, v{vL16}")
            k(f"v_add_u32 v{vCc}, {R3}, v{vCd}")
        NX = o.get("nx1", 0) if L1 else o.get("nx", 0)
        INIT2 = not L1 and NX == 0
        f2 = []
        fcs = [dict(addr=vCc if ks < 8 else vCd, offs=((ks % 8) * 3072,), mf=[(None, None, False, ks == 0, None)], late=ks >= 8, cs=True) for ks in range(16)]
        for ks in range(16):
            if L1 and ks in (8, 9, 10, 11):
                f2 += fcs[8 + 2 * (ks - 8):10 + 2 * (ks - 8)]
            for b in range(3):
                f2.append(dict(addr=vC2 if ks < 8 else vL16 if L1 else vTR1, offs=((ks % 8) * 3072 + b * 1024,),
                               mf=mf2(C2 + 8 * b, ks, True, False, False if INIT2 else None), late=ks >= 8))
        fr = []
        XS0 = o.get("xs0", 2)
        for ks in range(16):
            if L1 and ks in (4, 6, 8, 10):
                fr += fcs[ks - 4:ks - 2]
            if ks >= XS0:
                n_ = (NX * (ks - XS0 + 1)) // (16 - XS0) - (NX * (ks - XS0)) // (16 - XS0)
                fr += f2[:n_]; f2 = f2[n_:]
            for f in range(4):
                fr.append(dict(addr=vC1, offs=(ks * 4096 + f * 1024,), mf=mf2(vACC + 8 * f, ks, True, True)))
        M1 = sum(len(f["mf"]) for f in fr)
        fr += f2
        NM = sum(len(f["mf"]) for f in fr)
        tl = [i for i, f in enumerate(fr) if f.get("late")][0]
        MB = sum(len(f["mf"]) for f in fr[:tl - 6]) - 4
        if L1:
            tc = [i for i, f in enumerate(fr) if f.get("cs")][-1]
            MC = sum(len(f["mf"]) for f in fr[:tc + 1])
        if L1:
            k.poll_a(sFXp, G_FX1)
        g = k.gemm_begin(fr)
        k.poll_b(sFXp, G_FX1)
        k.stamp("C.poll")
        CS1 = [vPQ, vPQ + 4, vACC + 56, vQ0]

        def c2_init():
            k.get(vT0, cCSB)
            for b in range(3):
                k.lds(f"ds_read_b128 {vr(C2+8*b+4,4)}, v{vT0} offset:{(10+b)*64}", "cs2")
            for _ in range(4):
                k.play([lambda: None])
            k.ds_wait("cs2")
            for b in range(3):
                for rb in range(2):
                    for j in range(4):
                        k(f"v_mul_f32 v{C2+8*b+4*rb+j}, v{C2+8*b+4+j}, v{NM_A+rb}")

        def relu_block(acc, cs, rb, dst):
            if cs is not None:
                for j in range(4):
                    k(f"v_fmac_f32 v{acc+j}, v{cs+j}, v{NM_A+rb}")
            for p in range(2):
                k(f"v_cvt_pk_bf16_f32 v{dst+p}, v{acc+2*p}, v{acc+2*p+1}")
            for p in range(2):
                k(f"v_pk_max_i16 v{dst+p}, v{dst+p}, 0")

        def cs1_reads():
            k.get(vT2, cCSB)
            for b in range(4):
                k.lds(f"ds_read_b128 {vr(CS1[b],4)}, v{vT2} offset:{(6+b)*64}", "cs")

        def epi1(s):
            if s == 0:
                k.ds_wait("cs")
            for rb in range(2):
                for b in range(2):
                    relu_block(vACC + 16*s + 8*b + 4*rb, CS1[2*s+b], rb, vACC + 16*s + 4*rb + 2*b)
            with k.atomic():
                if s == 0:
                    k(f"s_sub_u32 s{sT2}, s{sH1}, 1024")
                    k(f"s_sub_u32 s{sT3}, s{sH1b}, 1024")
                    k.stores([f"buffer_store_dwordx4 {vr(vACC+4*rb,4)}, v{vL16}, {srd(S_WS)}, s{sT2+rb} offen" for rb in range(2)], psc(2), "sa")
                else:
                    k.stores([f"buffer_store_dwordx4 {vr(vACC+16+4*rb,4)}, v{vL16}, {srd(S_WS)}, s{sH1+rb} offen offset:3072" for rb in range(2)], psc(2))

        def d_setup():
            if L1:
                with k.atomic():
                    k(f"s_lshl_b32 s{sT1}, s{sW}, 13")
                    k(f"s_add_u32 s{sT1}, s{sT1}, s{sGB}")
                with k.atomic():
                    k(f"s_lshl_b32 s{sDK}, s{sW}, 11")
                    k(f"s_add_u32 s{sDK}, s{sDK}, {28*1024}")
                k(f"s_add_u32 s{sT1}, s{sT1}, {G_H + 24*1024}")
                for j in range(4):
                    with k.atomic():
                        k(f"s_add_u32 s{sT0}, s{sW}, {j}")
                        k(f"s_and_b32 s{sT0}, s{sT0}, 3")
                    with k.atomic():
                        k(f"s_lshl2_add_u32 s{sT0}, s{sDH}, s{sT0}")
                        k(f"s_mul_i32 s{sT0}, s{sT0}, 57344")
                    k(f"s_add_u32 s{sRB+j}, s{sT0}, s{sT1}")
            k.poll_prep(7)
        TD = 3 if L1 else o.get("td", 4)
        seq = [(ksl, j) for ksl in range(14 - TD) for j in range(4)] + [(ksl, j) for j in (1, 2, 3, 0) for ksl in range(14 - TD, 14)]
        hb = [0, 0, 0, 0]

        def hload(t):
            ksl, j = seq[t]
            with k.atomic():
                if ksl // 4 != hb[j]:
                    if ksl == 8:
                        k(f"s_sub_u32 s{sRB+j}, s{sRB+j}, s{sDK}")
                    else:
                        k(f"s_add_u32 s{sRB+j}, s{sRB+j}, 4096")
                    hb[j] += 1
                k.vmem(f"buffer_load_dwordx4 {vr(vACT+4*(t%16),4)}, v{vL16}, {srd(S_WS)}, s{sRB+j} offen offset:{(ksl%4)*1024} sc1", ("h", t))
        PC = o.get("prec", PRE)
        al = k.rec(lambda: act_loads(G_X1))
        k.play(al[:PC])
        fill = {}
        sl = k.rec(lambda: stat_loads(G_ST1, vPQ))
        SP = o.get("stp", 0)
        e = spread(fill, al[PC:PC+SP] + [lambda: k.play(sl[:2]), sl[2]] + al[PC+SP:], 0, o.get("cstep", 40) / 10)
        e2 = spread(fill, k.rec(lambda: (stat_sum(vPQ), stats_finalize(False))), 44, 0.9 if INIT2 else 1.3)
        if INIT2:
            spread(fill, k.rec(c2_init), e2 + 1, 0.95)
        if L1:
            spread(fill, k.rec(lambda: k("s_barrier")), 104, 0)
            if o.get("w2e", 8) and not WP:
                spread(fill, k.rec(lambda: pack_flag(0x8000)), 102, 0)
        e = spread(fill, w1c2[nc:], e, 3)
        if L1:
            e = spread(fill, k.rec(lambda: touches(o.get("Tc", 0), vT0)), e, 1)
        spread(fill, k.rec(cs1_reads), M1 - 9, 1)
        if o.get("diagc") and not L1:
            for ix in (0, 31, 63, 95, 127, 151, 175, 199):
                spread(fill, k.rec(lambda: k.stamp(f"C.m{ix}", True)), ix, 0)
        if o.get("diagd"):
            spread(fill, k.rec(lambda: k.stamp("C.mm1")), 127, 0)
        e0 = spread(fill, k.rec(lambda: epi1(0)), M1 + 1, 1 / o.get("epr", 4))
        e1 = spread(fill, k.rec(lambda: epi1(1)), e0, 1 / (o.get("epr", 4) if L1 else o.get("eps", 4)))
        spread(fill, k.rec(lambda: (k.vm_wait("w1c2"), k("s_barrier"))), MB, 0)
        assert e < MB
        e3 = spread(fill, k.rec(d_setup), e1, 1)
        cs2r = k.rec(lambda: [k.lds(f"ds_read_b128 {vr(CS1[b],4)}, v{vT2} offset:{(10+b)*64}") for b in range(3)])
        if not L1 and not INIT2:
            spread(fill, cs2r, e3 + 2, 2)
        if L1:
            def cs2_put():
                k.get(vQ0, cCSA)
                k(f"s_lshl_b32 s{sT5}, s{sPDA}, 6")
                k(f"v_add_u32 v{vQ0}, s{sT5}, v{vQ0}")
                k.lds(f"ds_write_b32 v{vQ0}, a{aCS} offset:{10*64}", "csw")
            assert MC + 6 > e1
            spread(fill, k.rec(cs2_put), MC + 6, 0)
            spread(fill, k.rec(lambda: (k.ds_wait("csw"), k("s_barrier"))), MC + 14, 0)
            spread(fill, cs2r, MC + 16, 2)
        pf = min(e1 + (o.get("fl11", 50) if L1 else o.get("fl1", 20)), NM - 2)
        spread(fill, k.rec(lambda: k.flag(sFHo, G_FH)), pf, 1)
        NE = o.get("ne1", 0) if L1 else o.get("ne", 6)
        TWO = NE and o.get("two", 0)
        FA = G_FH + 64 if TWO else G_FH
        HS = o.get("hs", 3)
        pp = NM - 1 if NE == 0 else NM - HS * NE - o.get("ppd", 18)
        if TWO:
            pfa = e0 + o.get("fla", 18)
            spread(fill, k.rec(lambda: k.flag(sFHo, FA, "sa")), pfa, 1)
            assert pp > pfa and pp > e3
        else:
            assert pp > pf
        spread(fill, k.rec(lambda: k.vmem(f"buffer_load_dword v{vT0}, v{vT3}, {srd(S_WS)}, s{sFHp} offen offset:{FA} sc1", "p1")), pp, 1)
        if NE:
            spread(fill, k.rec(lambda: async_check("p1", sFHp, FA)), NM - HS * NE - 1, 1)
            hl = k.rec(lambda: [hload(t) for t in range(NE)])
            if TWO:
                nb_ = o.get("pbn", NE - 4)
                hl = hl[:nb_] + k.rec(lambda: k.vmem(f"buffer_load_dword v{vT0}, v{vT3}, {srd(S_WS)}, s{sFHp} offen offset:{G_FH} sc1", "pb2")) + hl[nb_:]
            spread(fill, hl, NM - HS * NE, HS * NE / len(hl))
        if L1:
            wc = takew2("nw2", 24, 24 - EU)
            spread(fill, wc, e, (pp - 1 - e) / max(len(wc), 1))
        k.gemm_run(g, fill)
        k.stamp("C.mm2")
        HO = vWB + 16
        LA = o.get("dla1", 10) if L1 else o.get("dla", 10)
        k("s_nop 3")
        k.ds_all()
        epi2 = k.rec(lambda: [relu_block(C2 + 8*b + 4*rb, None if INIT2 else CS1[b], rb, HO + 8*rb + 2*b) for b in range(3) for rb in range(2)])
        h2sc = psc(2) and not o.get("h2plain", 1)
        its = []
        for rb in range(2):
            its.append(f"buffer_store_dwordx4 {vr(HO+8*rb,4)}, v{vL16}, {srd(S_WS)}, s{sH2+rb} offen")
            its.append(f"buffer_store_dwordx2 {vr(HO+8*rb+4,2)}, v{vL16}, {srd(S_WS)}, s{sH3+rb} offen")
        tail = []
        up = []
        if L1:
            def park_w1():
                with k.atomic():
                    k(f"s_lshl_b32 s{sT5}, s{sW}, 14")
                    k(f"s_add_u32 s{sT5}, s{sT5}, {R1}")
                    k(f"v_add_u32 v{vCH}, s{sT5}, v{vL16}")
                for j in range(0, 16, 2):
                    with k.atomic():
                        for jj in (j, j + 1):
                            k.lds(f"ds_read_b128 {vr(vPARK+4*jj,4)}, v{vCH} offset:{jj*1024}", "pw")
            u_ = k.rec(lambda: (rot_setup(), unpark(vP, list(range(EU, 24)))))
            bar = k.rec(lambda: (k.ds_wait("pw"), k("s_barrier")))
            up = k.rec(park_w1) + u_[:1] + [lambda: k.play(bar)] + u_[1:]
        if NE:
            n2 = o.get("ne2", 2)
            k.play(mix(epi2, k.rec(lambda: [hload(t) for t in range(NE, NE + n2)]), 10))
            k.stores(its, h2sc)
            nxt = NE + n2
            FL2 = o.get("fl2", 5)
        else:
            k.play(epi2)
            k.stores(its, h2sc)
            async_check("p1", sFHp, G_FH)
            for t in range(LA):
                hload(t)
                if len(w2) > 24 - EU and t % 2:
                    k.play(w2[:1]); w2 = w2[1:]
                k.play(up[:1]); up = up[1:]
            k.flag(sFHo, G_FH + 1024)
            nxt = LA
            FL2 = -1
        k.stamp("D.poll1")
        RSD = vPQ
        k.get(vPQ + 1, cRSD)
        k.lds(f"ds_read_b32 v{RSD}, v{vPQ+1}", "rsd")
        def red_addr():
            for j in range(4):
                if L1:
                    k.get(vPQ + 4 + j, cRD0 + j)
                else:
                    with k.atomic():
                        k(f"s_add_u32 s{sT0}, s{sW}, {j}")
                        k(f"s_and_b32 s{sT0}, s{sT0}, 3")
                    with k.atomic():
                        k(f"s_lshl_b32 s{sT0}, s{sT0}, 14")
                        k(f"s_add_u32 s{sT0}, s{sT0}, {max(j-1, 0)*4096}")
                    k(f"v_add_u32 v{vPQ+4+j}, s{sT0}, v{vL16}")
        ur = k.rec(lambda: (unpack_res(vWB), red_addr()))
        wr = []
        for t in range(56):
            ksl, j = seq[t]
            kw = [0, 2, 4, 6, 1, 3, 5, 7][ksl] if ksl < 8 else ksl
            if L1:
                k.vm_wait(("w2t", kw))
            k.vm_wait(("h", t))
            if o.get("diagd") and t in (0, 8, 16, 24, 32, 40, 48):
                k.stamp(f"D.t{t}")
            if o.get("diagc") and not L1 and t in (0, 4, 8, 16, 24, 32, 40, 48):
                k.stamp(f"D.t{t}", True)
            for f in range(4):
                a = vACC + 16*j + 4*f
                c = "0" if ksl == 0 else vr(a, 4)
                k(f"v_mfma_f32_16x16x32_bf16 {vr(a,4)}, {ar((kw*4+f)*4,4)}, {vr(vACT+4*(t%16),4)}, {c}")
                if f in (0, 2) and nxt < 56 and nxt <= t + LA and (f == 0 or nxt < t + LA):
                    if nxt == 32 - o.get("p2d", 11):
                        k.vmem(f"buffer_load_dword v{vT0}, v{vT3}, {srd(S_WS)}, s{sFHp} offen offset:{G_FH+1024} sc1", "p2")
                    if nxt == 16 and TWO:
                        async_check("pb2", sFHp, G_FH)
                    if nxt == 32:
                        async_check("p2", sFHp, G_FH + 1024)
                    hload(nxt)
                    nxt += 1
                    if nxt == 56 and not L1 and o.get("wb", 0):
                        lw = k.label("L_wb")
                        k(f"s_lshl3_add_u32 s{sT0}, s{sW}, s2")
                        k(f"s_cmp_ge_u32 s{sT0}, 8")
                        k(f"s_cbranch_scc1 {lw}")
                        k("buffer_wbl2 sc1")
                        k(f"s_branch {lw}_e")
                        k(f"{lw}:")
                        k(f"buffer_load_dword a{aDUM}, v{vT3}, {srd(S_WS)}, s{sFHp} offen offset:{G_FH} sc1")
                        k(f"{lw}_e:")
                        k.vm_note(1, "wb")
                if f in ((1, 3) if t < o.get("up2", 3) else (1,)) and up:
                    k.play(up[:1]); up = up[1:]
                if f == 2:
                    nup = 24 - len(up)
                    if w2 and (len(w2) > 24 or not up or nup >= 4 * ((24 - len(w2)) // 4 + 1) + 1):
                        if len(w2) <= 24:
                            k.ds_wait(("up", (24 - len(w2)) // 4))
                        k.play(w2[:1]); w2 = w2[1:]
                    elif t >= o.get("tl0", 46) and tail:
                        nn = o.get("tln", 2)
                        k.play(tail[:nn]); tail = tail[nn:]
                if f == 3 and t == FL2:
                    k.flag(sFHo, G_FH + 1024)
                if 4 * t + f == 203 and L1:
                    k.ds_wait(("rw", 1))
                    k("s_barrier")
                    for f_ in range(4):
                        k.lds(f"ds_read_b128 {vr(vACC+16+4*f_,4)}, v{vPQ+4} offset:{f_*1024}", "rd0")
                if 4 * t + f == 215 and L1:
                    k.ds_wait("rd0")
                    k("s_barrier")
                if f == 3 and t == 2 and L1 and not WP:
                    pack_check_issue(0x8000, vTR0, vTR1, sPDA)
                if f == 3 and t == 14 and L1 and not WP:
                    pack_check(vTR0, vTR1, sPDA)
                if f == 3 and t == o.get("tx", 99) and L1:
                    touch("x", vDM)
                if f == 1 and t >= 8 and ur:
                    k.play(ur[:1]); ur = ur[1:]
                if wr and wr[0][0] <= 4 * t + f:
                    k.lds(*wr.pop(0)[1:])
            if ksl == 13 and j:
                for f in range(4):
                    wr.append((4 * t + 9 + 2 * f, f"ds_write_b128 v{vPQ+4+j}, {vr(vACC+16*j+4*f,4)} offset:{f*1024}", ("rw", j)))
        assert not w2 and not ur and not wr and not up
        k.stamp("D.mm")
        if not L1:
            k.get(vT2, cOUT)
        if L1:
            k("s_nop 3")
            for f in range(4):
                for p in range(2):
                    k(f"v_pk_add_f32 {vr(vACC+4*f+2*p,2)}, {vr(vACC+4*f+2*p,2)}, {vr(vACC+16+4*f+2*p,2)}")
        k.barrier()
        NJ = 2 if L1 else 3
        RB_ = vACC + 64 - 16 * NJ
        for f in range(4):
            for j in range(NJ):
                k.lds(f"ds_read_b128 {vr(RB_+16*j+4*f,4)}, v{vPQ+4} offset:{j*4096+f*1024}", ("rd", f))
        for f in range(4):
            k.ds_wait(("rd", f))
            for j in range(NJ):
                for p in range(2):
                    k(f"v_pk_add_f32 {vr(vACC+4*f+2*p,2)}, {vr(vACC+4*f+2*p,2)}, {vr(RB_+16*j+4*f+2*p,2)}")
            for p in range(2):
                k(f"v_pk_fma_f32 {vr(vACC+4*f+2*p,2)}, {vr(vACC+4*f+2*p,2)}, {vr(RSD,2)}, {vr(vWB+4*f+2*p,2)} op_sel_hi:[1,0,1]")
            for p in range(2):
                k(f"v_cvt_pk_bf16_f32 v{vRES+2*f+p}, v{vACC+4*f+2*p}, v{vACC+4*f+2*p+1}")
        k.stamp("D.red")
        if L1:
            publish_x(G_X2, G_ST2, G_FX2, psc(3))
            k(f"s_sub_u32 s{sT0}, s{sDK}, 8192")
            for j in range(4):
                k(f"s_add_u32 s{sRB+j}, s{sRB+j}, s{sT0}")
            if o.get("cnt"):
                k("s_mov_b32 s95, 0")
            k(f"s_add_u32 s{sKVC}, s{sKVC}, 0x100000")
            k(f"s_add_u32 s{sKVP}, s{sKVP}, 0x100000")
            k.flag(sFXo, G_FX2)
            k.poll_a(sFXp, G_FX2)
            k.stamp("D.pub")
            k("s_barrier")
            fr = []
            k(f"v_add_u32 v{vTR0}, {R1}, v{vL16}")
            late = []
            for ks in range(16):
                fq = [dict(addr=vTR0, offs=(ks * 2048 + b * 1024,), mf=mf2(QA + 8 * b, ks, True, True, act=ring)) for b in range(2)]
                fk = [dict(addr=vL16, offs=(R0 + ks * 4096 + b * 1024,), mf=mf2(vACC + 8 * b, ks, False, True, act=ring)) for b in range(4)]
                if ks < 16 - o.get("qlag", 6):
                    fr += fk + fq
                else:
                    fr += fk
                    late += fq
            gA = k.gemm_begin(fr)
        else:
            k("s_nop 1")
            for s in range(2):
                for p in range(2):
                    k(f"v_permlane16_swap_b32 v{vRES+4*s+p}, v{vRES+4*s+2+p}")
                k.vmem(f"buffer_store_dwordx4 {vr(vRES+4*s,4)}, v{vT2}, {srd(S_OUT)}, 0 offen offset:{64*s}{['', ' sc1', ' sc1 nt', ' nt'][o.get('outsc1', 1)]}")
            le = k.label("L_ep")
            k(f"s_or_b32 s{sT2}, s2, s{sW}")
            k(f"s_cbranch_scc1 {le}")
            k(f"s_add_u32 s{sEP}, s{sEP}, 1")
            k(f"v_mov_b32 v{vT1}, s{sEP}")
            k("s_mov_b64 exec, 1")
            k(f"buffer_store_dword v{vT1}, v{vL16}, {srd(S_WS)}, 0 offen offset:{WS_EPOCH}")
            k("s_mov_b64 exec, -1")
            k(f"{le}:")
            if stamps:
                k.vm_all()
                k.stamp("end")
                k(f"s_memrealtime s[{sST}:{sST+1}]")
                k("s_waitcnt lgkmcnt(0)")
                k(f"v_writelane_b32 v{vSTAMP}, s{sST}, 61")
                k(f"v_writelane_b32 v{vSTAMP}, s{sBUD}, 60")
                k(f"v_writelane_b32 v{vSTAMP}, s{95 if o.get('cnt') else sSLOW}, 59")
                k(f"s_lshl2_add_u32 s{sT2}, s2, s{sW}")
                k(f"s_lshl_b32 s{sT2}, s{sT2}, 8")
                k(f"s_add_u32 s{sT2}, s{sT2}, {WS_STAMP}")
                k(f"v_lshrrev_b32 v{vT0}, 2, v{vL16}")
                k(f"buffer_store_dword v{vSTAMP}, v{vT0}, {srd(S_WS)}, s{sT2} offen")
    k("L_end:")
    lines = merge_waits(k.lines)
    if o.get("pads", 2048):
        lines = add_pads(lines, k.tailcode, o.get("pads", 2048), [x for x in (o.get("ps1", 0), o.get("ps2", 0)) if x])
    body = "\n".join(lines)
    tailc = "\n".join(k.tailcode)
    hdr = open("interleave_layers__linear_attn_block__dense_activation_relu__prompt.s.ref").read().split("; Override")[0]
    txt = f"""{hdr}; Generated by a hand-written generator (persistent kernel, one workgroup per CU).
; @launch grid=(256,1,1) block=(256,1,1) lds={LDS_BYTES}
.amdgcn_target "amdgcn-amd-amdhsa--gfx950"
.text
.globl {NAME}
.p2align 8
.type {NAME},@function
.set CODE_BYTES, L_code_end - L_pcref - 512
{NAME}:
{body}
    s_endpgm
L_code_end:
{tailc}
.section .rodata,"a"
.p2align 6
.amdhsa_kernel {NAME}
  .amdhsa_next_free_vgpr 512
  .amdhsa_next_free_sgpr 102
  .amdhsa_accum_offset 256
  .amdhsa_group_segment_fixed_size 0
  .amdhsa_kernarg_size 72
  .amdhsa_user_sgpr_count 2
  .amdhsa_user_sgpr_kernarg_segment_ptr 1
  .amdhsa_system_sgpr_workgroup_id_x 1
.end_amdhsa_kernel
"""
    return txt, k.stamp_names


if __name__ == "__main__":
    out = sys.argv[1]
    stamps = "stamps" in sys.argv[2:]
    opts = {}
    for a in sys.argv[2:]:
        if "=" in a:
            x, y = a.split("=")
            opts[x] = int(y)
    txt, names = gen(stamps, opts)
    open(out, "w").write(txt)
    if stamps:
        open(out + ".names", "w").write("\n".join(names))
```

```python
import sys
from contextlib import contextmanager

NAME = "interleave_layers__linear_attn_block__dense_activation_relu__prompt_kernel"

WS_EPOCH = 0
WS_XID = 0x8000
WS_PD = 0x10000
GRP0 = 0x100000
G_FO, G_FX1, G_FX2, G_FH = 0, 512, 1024, 1536
G_ST1 = 0x1000
G_ST2 = G_ST1
G_ST0 = 0x4000
G_X1 = 0x8000
G_X2 = G_X1
G_H = G_X1 + 0x20000
G_O = G_H
WS_KVX = 0x1200000
KVX_C = 0x9000
WS_W2T = 0x1400000
WS_PK = 0x1600000
PK_KV, PK_Q, PK_W1A, PK_W1B, PK_WO, PK_SZ = 0, 65536, 98304, 163840, 212992, 278528
WS_STAMP = 0x1B00000
WS_USED = 0x1C00000
OOB = 0x7f000000

R0, R1, R2, R3 = 0, 65536, 98304, 131072
L_SM = 161792
L_CS = L_SM
L_ZB = L_SM + 896
L_STAT = L_SM + 1024
L_XB = L_SM - 4096
W1B_N1 = 8
L_XST = 98304
L_RED = R2
L_PST = R2
LDS_BYTES = 163840

S_X, S_WQKV, S_WO, S_W1, S_W2, S_OUT, S_WS = 4, 8, 12, 16, 20, 24, 28
(sW, sC, sG, sTAG, sSLOW, sGB, sBUD, sEP, sEPS, _e1, sT0, sT1, sT2, sT3, sT4, sT5,
 sACT, sACT1, sBACT, sTILE, sOST, sOST1, sFOo, sFOp, sFXo, sFXp, sSTo, sSTg,
 sH1, sH1b, sH2, sH2b, sH3, sH3b, sFHo, sFHp, sRB, _r1, _r2, _r3, sKVC, sKVP,
 sDH, sCT, sXCC, sT8, sD0, sD1, sD2, sD3, sL0, sL1, sPKB, sPDA, sPDB, sJ0) = range(32, 88)
assert sEPS % 2 == 0
sRHO = sT8
S_A, S_B = 88, 92
sKEX = 88
sDK = 92
sS8 = 93
sKM = 96
sST = 98
sPC = 100

vLANE, vL16, vTR0, vTR1, vQ0, vQ1, vQ2, vQ3, vP, vCH, vDM, vSTAMP = range(12)
vT0, vT1, vT2, vT3 = 12, 13, 14, 15
vSP, vSP2 = vP, vCH
vRES = 16
vPQ = 24
vWB = 32
vACC = 64
vACT = 128
BF1 = "0x3f803f80"
(cCSA, cCSB, cP16, aDUM, cSTO, cSTW, cSTA, cSTB, cKW, cKR, cKW1, cKR1, cKVS, cXW, cXR, cZR,
 cRD0, cRD1, cRD2, cRD3, cRSD, cOUT, cZL, cZW) = range(224, 248)
aONES, aCS = 248, 252


def srd(s):
    return f"s[{s}:{s+3}]"


def vr(a, n=1):
    return f"v{a}" if n == 1 else f"v[{a}:{a+n-1}]"


def ar(a, n=1):
    return f"a{a}" if n == 1 else f"a[{a}:{a+n-1}]"


def bcast(r, pos, n):
    lo = [0] * n
    hi = [1] * n
    if r % 2 == 0:
        hi[pos] = 0
    else:
        lo[pos] = 1
    f = lambda x: "[" + ",".join(map(str, x)) + "]"
    return vr(r & ~1, 2), f" op_sel:{f(lo)} op_sel_hi:{f(hi)}"


class K:
    def __init__(self, stamps=False, opts=None):
        self.lines = []
        self.nlab = 0
        self.vm = []
        self.ds = []
        self.stamps = stamps
        self.stamp_names = []
        self.o = opts or {}
        self._rec = None
        self.seen = set()
        self.tailcode = []
        self.lights = []
        self.fast = ""

    def _do(self, fn, cost=None):
        if cost is not None:
            fn.cost = cost
        if self._rec is not None:
            self._rec.append(fn)
        else:
            fn()

    def rec(self, f):
        assert self._rec is None
        self._rec = []
        f()
        r, self._rec = self._rec, None
        return r

    @contextmanager
    def atomic(self):
        if self._rec is None:
            yield
            return
        outer, self._rec = self._rec, []
        yield
        inner, self._rec = self._rec, outer
        g = lambda: [x() for x in inner]
        g.cost = sum(getattr(x, "cost", 4) for x in inner)
        outer.append(g)

    def play(self, items):
        for x in items:
            self._do(x)

    def _emit(self, l):
        self.lines.append(("" if l.endswith(":") else "    ") + l)

    def __call__(self, s):
        for l in s.split("\n"):
            l = l.strip()
            if l:
                self._do(lambda l=l: self._emit(l), 8 if l.startswith(("v_exp", "v_rsq", "v_rcp", "buffer_")) else 0 if l.endswith(":") else 4)

    def label(self, base="L"):
        self.nlab += 1
        return f"{base}_{self.nlab}"

    def vmem(self, s, tag=None):
        def f():
            self._emit(s)
            self.vm.append(tag)
            self.seen.add(tag)
        self._do(f, 8)

    def vm_note(self, n, tag=None):
        self._do(lambda: (self.vm.extend([tag] * n), self.seen.add(tag)))

    def _wait(self, lst, tag, name, mx):
        if tag not in lst:
            return lst
        idx = len(lst) - 1 - lst[::-1].index(tag)
        n = min(len(lst) - idx - 1, mx)
        self._emit(f"s_waitcnt {name}({n})")
        return lst[len(lst) - n:] if n else []

    def vm_wait(self, tag):
        def f():
            assert tag in self.seen, tag
            self.vm = self._wait(self.vm, tag, "vmcnt", 63)
        self._do(f)

    def save_vm(self):
        def f():
            self._sv = list(self.vm)
        self._do(f)

    def restore_vm(self):
        def f():
            self.vm = self._sv
        self._do(f)

    def vm_all(self):
        def f():
            self._emit("s_waitcnt vmcnt(0)")
            self.vm = []
        self._do(f)

    def lds(self, s, tag=None):
        def f():
            self._emit(s)
            self.ds.append(tag)
        self._do(f)

    def ds_wait(self, tag):
        def f():
            self.ds = self._wait(self.ds, tag, "lgkmcnt", 15)
        self._do(f)

    def ds_all(self, force=False):
        def f():
            if self.ds or force:
                self._emit("s_waitcnt lgkmcnt(0)")
            self.ds = []
        self._do(f)

    def barrier(self, force=False):
        self.ds_all(force)
        self("s_barrier")

    def stamp(self, name, light=False):
        if not self.stamps:
            return
        if light:
            i = len(self.stamp_names)
            self.stamp_names.append(name)
            r = 4 + 2 * len(self.lights)
            self.lights.append((r, i))
            self(f"s_memtime s[{r}:{r+1}]")
            return
        self.nst = getattr(self, "nst", 0) + 1
        if self.o.get("lite") and name not in ("end", "D.pub"):
            return
        i = len(self.stamp_names)
        assert i < 59
        self.stamp_names.append(name)
        self(f"{'s_memrealtime' if self.o.get('rt') else 's_memtime'} s[{sST}:{sST+1}]")
        self.ds_all(True)
        self(f"v_writelane_b32 v{vSTAMP}, s{sST}, {i}")
        for r, j in self.lights:
            self(f"v_writelane_b32 v{vSTAMP}, s{r}, {j}")
        self.lights = []

    def dma(self, sr, voff, soff, simm, lreg, limm, tag=None, flag=""):
        with self.atomic():
            self(f"s_add_u32 m0, s{lreg}, {limm}")
            self(f"s_add_u32 s{sT5}, s{soff}, {simm}")
            self.vmem(f"buffer_load_dwordx4 v{voff}, {srd(sr)}, s{sT5} offen{flag} lds", tag)

    def get(self, v, c):
        self(f"v_accvgpr_read_b32 v{v}, a{c}")

    def poll_prep(self, mask):
        self.get(vT3, cP16)
        if mask == 7:
            self(f"v_and_b32 v{vT3}, 28, v{vT3}")

    def poll(self, soff, imm, clear=True):
        if clear:
            self.seen = {t for t in self.seen if not (isinstance(t, tuple) and t[0] in ("act", "h"))}
        lp, done = self.label("L_poll"), self.label("L_pd")
        with self.atomic():
            self(f"{lp}:")
            self(f"buffer_load_dword v{vT0}, v{vT3}, {srd(S_WS)}, s{soff} offen offset:{imm} sc1")
            self.vm_all()
            self(f"v_cmp_ne_u32 vcc, s{sTAG}, v{vT0}")
            self(f"s_cbranch_vccz {done}")
            self(f"s_sub_u32 s{sBUD}, s{sBUD}, 1")
            self(f"s_cbranch_scc0 {lp}")
            self(f"s_mov_b32 s{sBUD}, 0")
            self(f"{done}:")

    def poll_a(self, soff, imm):
        if self.o.get("pp", 1):
            self.vmem(f"buffer_load_dword v{vT0}, v{vT3}, {srd(S_WS)}, s{soff} offen offset:{imm} sc1", "pa")

    def poll_b(self, soff, imm):
        if not self.o.get("pp", 1):
            return self.poll(soff, imm)
        self.seen = {t for t in self.seen if not (isinstance(t, tuple) and t[0] in ("act", "h"))}
        lp, done = self.label("L_poll"), self.label("L_pd")
        ld = lambda v: f"buffer_load_dword v{v}, v{vT3}, {srd(S_WS)}, s{soff} offen offset:{imm} sc1"
        self(f"{lp}:")
        self(ld(vT2))
        self("s_waitcnt vmcnt(1)")
        self(f"v_cmp_ne_u32 vcc, s{sTAG}, v{vT0}")
        self(f"s_cbranch_vccz {done}")
        self(ld(vT0))
        self("s_waitcnt vmcnt(1)")
        self(f"v_cmp_ne_u32 vcc, s{sTAG}, v{vT2}")
        self(f"s_sub_u32 s{sBUD}, s{sBUD}, 1")
        self(f"s_cbranch_scc1 {lp}_t")
        self(f"s_cbranch_vccnz {lp}")
        self(f"{done}:")
        self.tailcode += [f"{lp}_t:", f"    s_mov_b32 s{sBUD}, 0", f"    s_branch {done}"]
        self.vm = ["pb"]

    def stores(self, items, force_sc1, tag="st"):
        with self.atomic():
            if force_sc1:
                for it in items:
                    self.vmem(it + " sc1", tag)
                return
            ls, le = self.label("L_ss"), self.label("L_se")
            self(f"s_cmp_lg_u32 s{sSLOW}, 0")
            self(f"s_cbranch_scc1 {ls}")
            for it in items:
                self.vmem(it + (self.fast if tag in ("st", "sa") else ""), tag)
            self(f"{le}:")
            self.tailcode += [f"{ls}:"] + ["    " + it + " sc1" for it in items] + [f"    s_branch {le}"]

    def flag(self, soff, imm, tag="st"):
        with self.atomic():
            self(f"v_mov_b32 v{vT1}, s{sTAG}")
            self.vm_wait(tag)
            self("s_mov_b64 exec, 1")
            self.stores([f"buffer_store_dword v{vT1}, v{vL16}, {srd(S_WS)}, s{soff} offen offset:{imm}"], False, "flag")
            self("s_mov_b64 exec, -1")

    def gemm_begin(self, frags, D=6):
        self.gid = getattr(self, "gid", 0) + 1
        g = dict(frags=frags, D=D, gid=self.gid, rp=0, reads=[])
        for t, f in enumerate(frags):
            s = vWB + 4 * (t % 8)
            if len(f["offs"]) == 2:
                for hh in range(2):
                    g["reads"].append((t, f"ds_read_b64_tr_b16 {vr(s + 2*hh, 2)}, v{f['addr']} offset:{f['offs'][hh]}"))
            else:
                g["reads"].append((t, f"ds_read_b128 {vr(s, 4)}, v{f['addr']} offset:{f['offs'][0]}"))
        self._issue(g, D - 1, 99)
        return g

    def _issue(self, g, tmax, maxn):
        c = 0
        reads = g["reads"]
        while g["rp"] < len(reads) and reads[g["rp"]][0] <= tmax and c < maxn:
            self.lds(reads[g["rp"]][1], ("w", g["gid"], reads[g["rp"]][0]))
            g["rp"] += 1
            c += 1

    def gemm_run(self, g, fill=None):
        fill = fill or {}
        frags, D, gid = g["frags"], g["D"], g["gid"]
        n = len(frags)
        mi = 0
        pend = []
        LATE = self.o.get("late", 3)
        for t, f in enumerate(frags):
            s = vWB + 4 * (t % 8)
            if t % 2 == 0:
                self.ds_wait(("w", gid, min(t + 1, n - 1)))
            nm = len(f["mf"])
            for j, (acc, act_, sw, first, wt) in enumerate(f["mf"]):
                if wt is not None:
                    self.vm_wait(wt)
                c = "0" if first else vr(acc, 4) if acc is not None else ar(aCS, 4)
                if acc is None:
                    self(f"v_mfma_f32_16x16x32_bf16 {ar(aCS,4)}, {ar(aONES,4)}, {vr(s,4)}, {c}")
                elif sw:
                    self(f"v_mfma_f32_16x16x32_bf16 {vr(acc,4)}, {vr(s,4)}, {vr(act_,4)}, {c}")
                else:
                    self(f"v_mfma_f32_16x16x32_bf16 {vr(acc,4)}, {vr(act_,4)}, {vr(s,4)}, {c}")
                rp0 = g["rp"]
                self._issue(g, t + D, 99 if j == nm - 1 else 1)
                room = 8 - 4 * (g["rp"] - rp0) - (4 if (j == nm - 1 and t % 2 == 1) else 0)
                pend += [(mi, x) for x in fill.pop(mi, [])]
                while pend:
                    cst = getattr(pend[0][1], "cost", 4)
                    if cst <= room or (room == 8 and cst > 8) or mi - pend[0][0] >= LATE:
                        self.play([pend.pop(0)[1]])
                        room -= cst
                    else:
                        break
                mi += 1
        self.play([x for _, x in pend])
        for key in sorted(fill):
            self.play(fill[key])

    def gemm(self, frags, fill=None, D=6):
        self.gemm_run(self.gemm_begin(frags, D), fill)


def merge_waits(lines):
    import re
    out = []
    for l in lines:
        m = re.match(r"\s*s_waitcnt (\w+)\((\d+)\)$", l)
        if m and out:
            p = re.match(r"\s*s_waitcnt (\w+)\((\d+)\)$", out[-1])
            if p and p.group(1) != m.group(1):
                out[-1] = out[-1] + f" {m.group(1)}({m.group(2)})"
                continue
        out.append(l)
    return out


def spread(fill, items, start, step, per=1):
    p = start
    if step == 0:
        g = lambda: [x() for x in items]
        g.cost = sum(getattr(x, "cost", 4) for x in items)
        fill.setdefault(int(p), []).append(g)
        return p
    for i in range(0, len(items), per):
        fill.setdefault(int(p), []).extend(items[i:i + per])
        p += step
    return p


def insn_sizes(lines, tailcode):
    import subprocess, tempfile, re, os
    src = [".amdgcn_target \"amdgcn-amd-amdhsa--gfx950\"", ".text", ".set CODE_BYTES, 0x12345"]
    for i, l in enumerate(lines):
        src.append(f"Lz{i}:")
        src.append(l)
    src.append(f"Lz{len(lines)}:")
    src += tailcode
    with tempfile.TemporaryDirectory() as d:
        open(d + "/a.s", "w").write("\n".join(src) + "\n")
        subprocess.run(["clang", "-x", "assembler", "-target", "amdgcn-amd-amdhsa", "-mcpu=gfx950", "-c", d + "/a.s", "-o", d + "/a.o"], check=True)
        out = subprocess.run(["llvm-objdump", "-t", d + "/a.o"], capture_output=True, text=True, check=True).stdout
    addr = {}
    for l in out.splitlines():
        m = re.match(r"([0-9a-f]+) .*\sLz(\d+)$", l)
        if m:
            addr[int(m.group(2))] = int(m.group(1), 16)
    return [addr[i + 1] - addr[i] for i in range(len(lines))]


def add_pads(lines, tailcode, step, splits):
    def call(first, ret):
        c = ["    s_mov_b64 exec, 0"]
        for w in range(3):
            c += [f"    s_cmp_eq_u32 s{sW}, {w}", f"    s_cbranch_scc1 L_pad{first + w}"]
        return c + [f"    s_branch L_pad{first + 3}"]
    src = []
    for l in lines:
        t = l.strip()
        if t.startswith("PADCALL") and t != "PADCALL":
            g = int(t[7:])
            if g <= len(splits):
                src += ["    s_nop 0 ; CALL%d" % g] * 9
        else:
            src.append(l)
    ci = [i for i, l in enumerate(src) if l.strip() == "PADCALL"][0]
    src = src[:ci] + src[ci + 1:]
    sz = insn_sizes(src, tailcode)
    body, pos, nxt, n = [], 4, step, 0
    for i in range(ci, len(src)):
        if pos >= nxt and sz[i] > 0 and "; CALL" not in src[i]:
            body.append(("PAD", n))
            n += 1
            pos += 4
            nxt = (pos // step + 1) * step
        body.append(src[i])
        pos += sz[i]
    bounds = [0] + list(splits) + [n]
    assert all(bounds[i + 1] - bounds[i] >= 4 for i in range(len(bounds) - 1)), (bounds, n)
    out = src[:ci] + call(0, 0) + [".p2align 12", "L_padret0:", "    s_mov_b64 exec, -1"]
    done = set()
    for x in body:
        if isinstance(x, tuple):
            j = x[1]
            g = max(i for i in range(len(bounds) - 1) if bounds[i] <= j)
            out += [f"L_pad{j}:", f"    s_cbranch_execz {'L_pad%d' % (j + 4) if j + 4 < bounds[g + 1] else 'L_padret%d' % g}"]
        elif "; CALL" in x:
            g = int(x.split("CALL")[1])
            if g not in done:
                done.add(g)
                out += call(bounds[g], g) + [f"L_padret{g}:", "    s_mov_b64 exec, -1"]
        else:
            out.append(x)
    return out


def mix(a, b, ratio):
    out = []
    bi = 0
    for i, x in enumerate(a):
        out.append(x)
        if (i + 1) % ratio == 0 and bi < len(b):
            out.append(b[bi]); bi += 1
    out.extend(b[bi:])
    return out


def act(ks, rb):
    return vACT + 8 * ks + 4 * rb


def gen(stamps=False, opts=None):
    k = K(stamps, opts)
    o = k.o
    if stamps:
        k(f"{'s_memrealtime' if o.get('rt') else 's_memtime'} s[{sST}:{sST+1}]")
        k(f"s_memrealtime s[{sPC}:{sPC+1}]")
    k(f"""
    s_cmp_ge_u32 s2, 256
    s_cbranch_scc1 L_end
    s_load_dwordx2 s[{S_X}:{S_X+1}], s[0:1], 0
    s_load_dwordx2 s[{S_WQKV}:{S_WQKV+1}], s[0:1], 8
    s_load_dwordx2 s[{S_WS}:{S_WS+1}], s[0:1], 64
    s_load_dwordx2 s[{S_WO}:{S_WO+1}], s[0:1], 16
    s_load_dwordx2 s[{S_W1}:{S_W1+1}], s[0:1], 32
    s_load_dwordx2 s[{S_W2}:{S_W2+1}], s[0:1], 40
    s_load_dwordx2 s[{S_OUT}:{S_OUT+1}], s[0:1], 48
    """)
    if o.get("cw0", 1):
        k(f"""
        s_getpc_b64 s[{S_A}:{S_A+1}]
        L_pcref:
        s_lshr_b32 s{sT2}, s2, 3
        s_lshl_b32 s{sT2}, s{sT2}, 11
        v_lshlrev_b32 v{vT3}, 3, v0
        v_add_u32 v{vT3}, s{sT2}, v{vT3}
        v_min_u32 v{vT3}, CODE_BYTES, v{vT3}
        s_mov_b32 exec_lo, 0x10001
        s_mov_b32 exec_hi, 0x10001
        global_load_dword a{aDUM}, v{vT3}, s[{S_A}:{S_A+1}]
        s_mov_b64 exec, -1
        """)
    k(f"""
    v_lshrrev_b32 v{vT0}, 6, v0
    v_and_b32 v{vLANE}, 63, v0
    s_mov_b32 s{S_X+2}, {2048*1024}
    v_readfirstlane_b32 s{sW}, v{vT0}
    s_mov_b32 s{S_X+3}, 0x20000
    s_mov_b32 s{S_WQKV+2}, {512*3072}
    s_mov_b32 s{S_WQKV+3}, 0x20000
    s_lshr_b32 s{sT0}, s2, 3
    s_and_b32 s{sC}, s{sT0}, 15
    s_lshr_b32 s{sT0}, s{sT0}, 4
    s_and_b32 s{sG}, s2, 7
    s_lshl1_add_u32 s{sG}, s{sG}, s{sT0}
    s_lshr_b32 s{sT1}, s{sC}, 1
    s_xor_b32 s{sT1}, s{sT1}, s{sT0}
    s_and_b32 s{sT1}, s{sT1}, 1
    s_and_b32 s{sRHO}, s{sC}, 1
    s_lshl1_add_u32 s{sRHO}, s{sT1}, s{sRHO}
    v_lshlrev_b32 v{vL16}, 4, v{vLANE}
    """)
    if stamps:
        k(f"v_mov_b32 v{vSTAMP}, 0")
    NTP = " nt" if o.get("nt", 0) & 1 else ""
    NTX = " nt" if o.get("nt", 0) & 2 else ""
    XS, XR, X2R = vRES, vRES + 4, act(15, 1)
    aRES = 246
    k(f"""
    v_lshrrev_b32 v{vT0}, 4, v{vLANE}
    v_and_b32 v{vT1}, 15, v{vLANE}
    v_xor_b32 v{vT2}, v{vT0}, v{vT1}
    v_lshlrev_b32 v{vT2}, 4, v{vT2}
    v_lshl_add_u32 v{XS}, v{vT0}, 10, v{vT2}
    v_xor_b32 v{XS+1}, 64, v{XS}
    v_xor_b32 v{XS+2}, 0x80, v{XS}
    v_xor_b32 v{XS+3}, 0xc0, v{XS}
    v_lshrrev_b32 v{vP}, 2, v{vLANE}
    v_and_b32 v{vCH}, 3, v{vLANE}
    v_lshrrev_b32 v{vT3}, 3, v{vLANE}
    v_and_b32 v{vT3}, 2, v{vT3}
    v_xor_b32 v{vCH}, v{vCH}, v{vT3}
    v_lshlrev_b32 v{vCH}, 4, v{vCH}
    v_and_b32 v{vT3}, 3, v{vP}
    v_lshl_add_u32 v{vT3}, v{vT0}, 3, v{vT3}
    s_movk_i32 s{sT1}, 3072
    v_mad_u32_u24 v{vDM}, v{vT3}, s{sT1}, v{vCH}
    s_lshl_b32 s{sL0}, s{sW}, 14
    s_add_u32 s{sL0}, s{sL0}, {L_XST}
    s_lshl_b32 s{sT1}, s{sG}, 17
    s_lshl_b32 s{sT2}, s{sW}, 15
    s_add_u32 s{sT1}, s{sT1}, s{sT2}
    s_lshl_b32 s{sL1}, s{sW}, 12
    """)
    for r in range(4):
        k(f"""
        s_add_u32 s{sT2}, s{sRHO}, {r}
        s_and_b32 s{sT2}, s{sT2}, 3
        s_lshl_b32 s{sT3}, s{sT2}, 8
        s_add_u32 s{sD0+r}, s{sT1}, s{sT3}
        s_lshl2_add_u32 s{sT2}, s{sT2}, s{sW}
        s_mul_i32 s{sT2}, s{sT2}, {32*3072}
        s_lshl_b32 s{sT3}, s{sC}, 6
        s_add_u32 s{sRB+r}, s{sT2}, s{sT3}
        """)
    k("s_waitcnt lgkmcnt(0)")
    k(f"s_load_dword s{sEP}, s[{S_WS}:{S_WS+1}], {WS_EPOCH}")
    if stamps:
        k(f"v_writelane_b32 v{vSTAMP}, s{sST}, 62")
        k(f"v_writelane_b32 v{vSTAMP}, s{sPC}, 63")

    def xslot(q, js=range(8)):
        for j in js:
            k.dma(S_X, XS + (j & 3), sD0 + q, j * 4096, sL0, (q & 1) * 8192 + j * 1024, ("xs", q), " nt" if o.get("nt", 0) & 4 else "")

    def wkv_raw(r):
        for pr in range(2):
            for hh in range(2):
                k.dma(S_WQKV, vDM, sRB + r, hh * 4 * 3072 + 1024 * (pr + 1), sL1, R0 + r * 16384 + pr * 2048 + hh * 1024, ("wkv", r))

    def quad_lane(pitch, dst=vDM, tmp=vT2, sD3=sD3):
        vT2 = tmp
        k(f"v_lshrrev_b32 v{dst}, 3, v{vLANE}")
        k(f"v_and_b32 v{vT2}, 6, v{dst}")
        k(f"v_xor_b32 v{vT2}, v{vT2}, v{vLANE}")
        k(f"v_and_b32 v{vT2}, 7, v{vT2}")
        k(f"v_lshlrev_b32 v{vT2}, 4, v{vT2}")
        if isinstance(pitch, int):
            k(f"s_movk_i32 s{sD3}, {pitch}")
            pitch = f"s{sD3}"
        k(f"v_mad_u32_u24 v{dst}, v{dst}, {pitch}, v{vT2}")

    def dma_raw(sr, lds_imm, first, R=None):
        sD0_, sD2_, sL0_, vDM_ = R or (sD0, sD2, sL0, vDM)
        with k.atomic():
            k(f"s_add_u32 m0, s{sL0_}, {lds_imm}")
            k("s_nop 0" if first else f"s_add_u32 s{sD0_}, s{sD0_}, s{sD2_}")
            k(f"buffer_load_dwordx4 v{vDM_}, {srd(sr)}, s{sD0_} offen{NTP} lds")

    def packU_issue(base, sD0, sD1, sD2, sD3, sL0, vDM, sPDA, shift=12):
        R = (sD0, sD2, sL0, vDM)
        l2, l3, lq, le = k.label("L_u2"), k.label("L_u3"), k.label("L_uq"), k.label("L_ue")
        with k.atomic():
            k(f"""
            s_lshl_b32 s{sL0}, s{sW}, {shift}
            s_add_u32 s{sL0}, s{sL0}, {base}
            s_lshr_b32 s{sD0}, s{sC}, 2
            s_mul_i32 s{sD0}, s{sD0}, 896
            s_mul_i32 s{sD1}, s{sG}, {32*3584}
            s_add_u32 s{sD0}, s{sD0}, s{sD1}
            s_and_b32 s{sD1}, s{sC}, 3
            s_cmp_eq_u32 s{sW}, 3
            s_cbranch_scc1 {l3}
            s_cmp_eq_u32 s{sW}, 2
            s_cbranch_scc1 {l2}
            s_mov_b32 s{S_A}, s{S_W2}
            s_mov_b32 s{S_A+1}, s{S_W2+1}
            s_mov_b32 s{S_A+2}, {1792*1024}
            s_movk_i32 s{sD2}, 1024
            s_lshl1_add_u32 s{sD0}, s2, s{sW}
            s_lshr_b32 s{sD1}, s{sD0}, 3
            s_and_b32 s{sD0}, s{sD0}, 7
            s_mul_i32 s{sPDA}, s{sD0}, 56
            s_add_u32 s{sPDA}, s{sPDA}, s{sD1}
            s_lshl_b32 s{sPDA}, s{sPDA}, 12
            s_add_u32 s{sPDA}, s{sPDA}, {WS_W2T}
            s_cmp_ge_u32 s{sD1}, 56
            s_cselect_b32 s{sPDA}, {OOB}, s{sPDA}
            s_lshl_b32 s{sD1}, s{sD1}, 15
            s_lshl_b32 s{sD0}, s{sD0}, 7
            s_add_u32 s{sD0}, s{sD0}, s{sD1}
            s_branch {lq}
            {l2}:
            s_mov_b32 s{S_A}, s{S_W1}
            s_mov_b32 s{S_A+1}, s{S_W1+1}
            s_mov_b32 s{S_A+2}, {512*3584}
            s_movk_i32 s{sD2}, 3584
            s_lshl_b32 s{sD1}, s{sD1}, 7
            s_add_u32 s{sD0}, s{sD0}, s{sD1}
            s_lshl_b32 s{sPDA}, s{sG}, 12
            s_add_u32 s{sPDA}, s{sPDA}, s{sPKB}
            s_add_u32 s{sPDA}, s{sPDA}, {PK_W1A}
            {lq}:
            s_mov_b32 s{S_A+3}, 0x20000
            """)
            quad_lane(f"s{sD2}", vDM, vT2 if shift == 14 else vACT + 127)
            k(f"s_lshl_b32 s{sD2}, s{sD2}, 3")
            for j in range(4):
                dma_raw(S_A, j * 1024, j == 0, R)
            k(f"""
            s_branch {le}
            {l3}:
            s_movk_i32 s{sD3}, 3584
            s_mul_i32 s{sPDA}, s{sG}, 3072
            s_add_u32 s{sPDA}, s{sPDA}, s{sPKB}
            s_add_u32 s{sPDA}, s{sPDA}, {PK_W1B}
            s_lshr_b32 s{sT5}, s{sD1}, 1
            s_mul_i32 s{sT5}, s{sT5}, 6
            s_and_b32 s{sD2}, s{sD1}, 1
            s_add_u32 s{sT5}, s{sT5}, s{sD2}
            s_add_u32 s{sT5}, s{sT5}, 18
            s_lshl_b32 s{sT5}, s{sT5}, 5
            s_add_u32 s{sT5}, s{sT5}, s{sD0}
            v_lshrrev_b32 v{vDM}, 1, v{vLANE}
            v_and_b32 v{vT2 if shift == 14 else vACT + 127}, 16, v{vL16}
            v_mad_u32_u24 v{vDM}, v{vDM}, s{sD3}, v{vT2 if shift == 14 else vACT + 127}
            s_add_u32 m0, s{sL0}, 2048
            s_mul_i32 s{sD1}, s{sD1}, 3
            buffer_load_dwordx4 v{vDM}, {srd(S_W1)}, s{sT5} offen{NTP} lds
            s_add_u32 s{sD1}, s{sD1}, 17
            s_lshr_b32 s{sD1}, s{sD1}, 1
            s_lshl_b32 s{sD1}, s{sD1}, 6
            s_add_u32 s{sD0}, s{sD0}, s{sD1}
            s_mov_b32 s{sD2}, {16*3584}
            v_mad_u32_u24 v{vDM}, v{vP}, s{sD3}, v{vCH}
            """)
            for hh in range(2):
                dma_raw(S_W1, hh * 1024, hh == 0, R)
            k(f"buffer_load_dword a{aDUM}, v{vL16}, {srd(S_W1)}, s{S_W1+2} offen")
            k(f"{le}:")
            k.vm_note(4, "pu")

    WP = o.get("wp", 1)

    def warm():
        k(f"v_lshlrev_b32 v{vT3}, 7, v{vLANE}")
        k("s_mov_b64 exec, 0xf")
        if not o.get("cw0", 1):
            k(f"""
            s_getpc_b64 s[{sPC}:{sPC+1}]
            L_pcref:
            s_lshr_b32 s{sT2}, s2, 3
            s_lshl2_add_u32 s{sT2}, s{sT2}, s{sW}
            s_lshl_b32 s{sT2}, s{sT2}, 9
            s_min_u32 s{sT2}, s{sT2}, CODE_BYTES
            s_add_u32 s{sPC}, s{sPC}, s{sT2}
            s_addc_u32 s{sPC+1}, s{sPC+1}, 0
            """)
            k.vmem(f"global_load_dword a{aDUM}, v{vT3}, s[{sPC}:{sPC+1}]")
        if o.get("warm", 1) >= 1:
            k(f"s_lshl2_add_u32 s{sT2}, s2, s{sW}")
            k(f"s_lshr_b32 s{sT3}, s{sT2}, 1")
            k(f"s_mul_i32 s{sT3}, s{sT3}, 3072")
            k(f"s_and_b32 s{sT4}, s{sT2}, 1")
            k(f"s_lshl_b32 s{sT4}, s{sT4}, 9")
            k(f"s_add_u32 s{sT3}, s{sT3}, s{sT4}")
            k.vmem(f"buffer_load_dword a{aDUM}, v{vT3}, {srd(S_WQKV)}, s{sT3} offen")
            if not WP:
                k(f"s_lshl_b32 s{sT3}, s{sT2}, 9")
                k.vmem(f"buffer_load_dword a{aDUM}, v{vT3}, {srd(S_WO)}, s{sT3} offen")
        if o.get("tlb", 0):
            k("s_mov_b64 exec, 1")
            k(f"s_mul_i32 s{sT3}, s{sT2}, 1792")
            k.vmem(f"buffer_load_dword a{aDUM}, v{vT3}, {srd(S_W1)}, s{sT3} offen")
            k.vmem(f"buffer_load_dword a{aDUM}, v{vT3}, {srd(S_W2)}, s{sT3} offen")
            if o["tlb"] > 1:
                k("s_mov_b64 exec, 0x1f")
                k(f"v_lshlrev_b32 v{vWB}, 21, v{vLANE}")
                k(f"s_mov_b32 s{sT3}, {WS_KVX + 0x1f0000}")
                k.vmem(f"buffer_load_dword a{aDUM}, v{vWB}, {srd(S_WS)}, s{sT3} offen")
        if o.get("warm", 1) >= 2:
            k(f"s_mul_i32 s{sT3}, s{sT2}, 1792")
            k("s_mov_b64 exec, 0x3fff")
            k.vmem(f"buffer_load_dword a{aDUM}, v{vT3}, {srd(S_W1)}, s{sT3} offen")
            k.vmem(f"buffer_load_dword a{aDUM}, v{vT3}, {srd(S_W2)}, s{sT3} offen")
        k(f"s_lshl2_add_u32 s{sT2}, s{sC}, s{sW}")
        k(f"s_lshl_b32 s{sT2}, s{sT2}, 8")
        k(f"s_add_u32 s{sT2}, s{sT2}, s{sGB}")
        k("s_mov_b64 exec, 3")
        k.vmem(f"buffer_load_dword a{aDUM}, v{vT3}, {srd(S_WS)}, s{sT2} offen sc1", "touch")
        k("s_mov_b64 exec, -1")

    OWN = vACC
    k(f"s_lshl_b32 s{sT2}, s{sC}, 11")
    k(f"s_add_u32 s{sT2}, s{sT2}, s{sT1}")
    for r in range(2):
        k.vmem(f"buffer_load_dwordx4 {vr(OWN+4*r,4)}, v{vL16}, {srd(S_X)}, s{sT2} offen offset:{r*1024}{NTX}", "own")
    w0_ = k.rec(lambda: wkv_raw(0))
    nw0 = o.get("nw0", 2)
    k.play(w0_[:nw0])
    k(f"""
    s_mov_b32 s{S_WO+2}, {512*1024}
    s_mov_b32 s{S_WO+3}, 0x20000
    s_mov_b32 s{S_W1+2}, {512*3584}
    s_mov_b32 s{S_W1+3}, 0x20000
    s_mov_b32 s{S_W2+2}, {1792*1024}
    s_mov_b32 s{S_W2+3}, 0x20000
    s_mov_b32 s{S_WS+2}, {WS_USED}
    s_mov_b32 s{S_WS+3}, 0x20000
    s_lshl_b32 s{sGB}, s{sG}, 20
    s_add_u32 s{sGB}, s{sGB}, {GRP0}
    """)
    warm()
    UF = o.get("uf", 1)
    k(f"s_mul_i32 s{sPKB}, s{sC}, {PK_SZ}")
    k(f"s_add_u32 s{sPKB}, s{sPKB}, {WS_PK}")
    if UF == 1:
        packU_issue(R1, sH1, sH1b, sH2, sH2b, sH3, vWB + 8, sPDB)
    if WP:
        quad_lane(1024, vWB + 8, vACT + 127, sH2b)
        k(f"""
        s_lshl2_add_u32 s{sH1}, s{sG}, s{sW}
        s_lshl_b32 s{sPDA}, s{sH1}, 10
        s_add_u32 s{sPDA}, s{sPDA}, s{sPKB}
        s_add_u32 s{sPDA}, s{sPDA}, {PK_WO}
        s_lshl_b32 s{sH1}, s{sH1}, 13
        s_lshl_b32 s{sH1b}, s{sC}, 7
        s_add_u32 s{sH1}, s{sH1}, s{sH1b}
        s_cmp_ge_u32 s{sC}, 8
        s_cselect_b32 s{sH1}, {OOB}, s{sH1}
        s_cselect_b32 s{sPDA}, {OOB}, s{sPDA}
        s_lshl_b32 s{sH1b}, s{sW}, 10
        s_add_u32 m0, s{sH1b}, {R0 + 49152}
        s_nop 0
        """)
        k.vmem(f"buffer_load_dwordx4 v{vWB+8}, {srd(S_WO)}, s{sH1} offen{NTP} lds", "pwo")

    W0P = o.get("w0p", 0)
    if W0P == 0:
        k.play(w0_[nw0:])

    if o.get("diags"): k.stamp("iss0")

    def arm(mode):
        with k.atomic():
            k(f"s_lshl2_add_u32 s{sT2}, s{sC}, s{sW}")
            k(f"s_lshl_b32 s{sT3}, s{sT2}, 11")
            k(f"s_add_u32 s{sT3}, s{sT3}, s{sGB}")
            k(f"s_add_u32 s{sT3}, s{sT3}, {G_X1}")
            k(f"s_lshr_b32 s{sT4}, s{sT2}, 3")
            k(f"s_mul_i32 s{sT4}, s{sT4}, 57344")
            k(f"s_and_b32 s{sT2}, s{sT2}, 7")
            k(f"s_mul_i32 s{sT2}, s{sT2}, {5120 if mode & 4 else 1024}")
            k(f"s_add_u32 s{sT4}, s{sT4}, s{sT2}")
            k(f"s_add_u32 s{sT4}, s{sT4}, s{sGB}")
            k(f"s_add_u32 s{sT4}, s{sT4}, {G_H + 16*1024}")
            k(f"s_add_u32 s{sT2}, s{sT4}, 4096")
        if mode & 1:
            for j in range(2):
                k.vmem(f"buffer_store_dwordx4 {vr(vQ0,4)}, v{vL16}, {srd(S_WS)}, s{sT3} offen offset:{j*1024} sc1", "arm")
        for j in range(5 if mode & 4 else 1 if mode & 2 else 0):
            k.vmem(f"buffer_store_dwordx4 {vr(vQ0,4)}, v{vL16}, {srd(S_WS)}, s{sT4 if j < 4 else sT2} offen offset:{(j%4)*1024} sc1", "arm")

    k(f"""
    s_mov_b32 s{S_OUT+2}, {2048*1024}
    s_mov_b32 s{S_OUT+3}, 0x20000
    s_lshr_b32 s{sDH}, s{sC}, 3
    s_and_b32 s{sCT}, s{sC}, 7
    s_mov_b32 s{sBUD}, 150000
    s_mov_b32 s{sEPS}, 0x358637bd
    s_mov_b32 s{sEPS+1}, 0x358637bd
    s_getreg_b32 s{sXCC}, hwreg(HW_REG_XCC_ID, 0, 4)
    s_lshl_b32 s{sACT}, s{sW}, 15
    s_add_u32 s{sACT}, s{sACT}, s{sGB}
    s_add_u32 s{sACT1}, s{sACT}, 16384
    s_lshl2_add_u32 s{sT0}, s{sDH}, s{sW}
    s_lshl_b32 s{sBACT}, s{sT0}, 14
    s_add_u32 s{sBACT}, s{sBACT}, s{sGB}
    s_lshl_b32 s{sTILE}, s{sCT}, 11
    s_add_u32 s{sTILE}, s{sTILE}, s{sBACT}
    s_add_u32 s{sTILE}, s{sTILE}, {G_X1}
    s_mul_i32 s{sBACT}, s{sT0}, 57344
    s_add_u32 s{sBACT}, s{sBACT}, s{sGB}
    s_mul_i32 s{sOST}, s{sW}, {2*57344}
    s_lshl_b32 s{sOST1}, s{sC}, 10
    s_add_u32 s{sOST}, s{sOST}, s{sOST1}
    s_add_u32 s{sOST}, s{sOST}, s{sGB}
    s_add_u32 s{sOST}, s{sOST}, {G_O}
    s_add_u32 s{sOST1}, s{sOST}, 57344
    s_lshl_b32 s{sFXp}, s{sW}, 7
    s_add_u32 s{sFXp}, s{sFXp}, s{sGB}
    s_lshl2_add_u32 s{sFOo}, s{sC}, s{sFXp}
    s_lshl_b32 s{sFHp}, s{sT0}, 7
    s_add_u32 s{sFHp}, s{sFHp}, s{sGB}
    s_lshr_b32 s{sT0}, s{sT0}, 1
    s_mov_b32 s{sT1}, s{sT0}
    s_lshl_b32 s{sFOp}, s{sT0}, 7
    s_add_u32 s{sFOp}, s{sFOp}, s{sGB}
    s_and_b32 s{sT2}, s{sW}, 1
    s_lshl1_add_u32 s{sT3}, s{sCT}, s{sT2}
    s_lshl2_add_u32 s{sFXo}, s{sT3}, s{sFOp}
    s_lshl3_add_u32 s{sT3}, s{sT0}, s{sCT}
    s_lshl_b32 s{sT3}, s{sT3}, 8
    s_lshl3_add_u32 s{sT3}, s{sT2}, s{sT3}
    s_add_u32 s{sSTo}, s{sT3}, s{sGB}
    s_lshl_b32 s{sSTg}, s{sW}, 11
    s_add_u32 s{sSTg}, s{sSTg}, s{sGB}
    s_lshl2_add_u32 s{sT1}, s{sT1}, s{sT2}
    s_lshl_b32 s{sT1}, s{sT1}, 6
    s_add_u32 s{sT1}, s{sT1}, {L_STAT + 128}
    v_lshl_add_u32 v{vT3}, v{vT1}, 2, s{sT1}
    v_accvgpr_write_b32 a{cRSD}, v{vT3}
    s_mul_i32 s{sT0}, s{sW}, {2*57344}
    s_add_u32 s{sT0}, s{sT0}, s{sGB}
    s_lshr_b32 s{sT3}, s{sC}, 2
    s_add_u32 s{sT0}, s{sT0}, {G_H}
    s_lshl2_add_u32 s{sH1}, s{sT3}, s{sC}
    s_lshl_b32 s{sH1}, s{sH1}, 10
    s_add_u32 s{sH1}, s{sH1}, {24*1024 + 1024}
    s_add_u32 s{sH1}, s{sH1}, s{sT0}
    s_add_u32 s{sH1b}, s{sH1}, 57344
    s_mul_i32 s{sT4}, s{sT3}, 6144
    s_add_u32 s{sT0}, s{sT0}, s{sT4}
    s_and_b32 s{sT4}, s{sC}, 3
    s_mul_i32 s{sH2}, s{sT4}, 3
    s_add_u32 s{sH2}, s{sH2}, 1
    s_lshr_b32 s{sH2}, s{sH2}, 1
    s_lshl_b32 s{sH2}, s{sH2}, 10
    s_add_u32 s{sH2}, s{sH2}, s{sT0}
    s_add_u32 s{sH2b}, s{sH2}, 57344
    s_lshr_b32 s{sH3}, s{sT4}, 1
    s_mul_i32 s{sH3}, s{sH3}, 3072
    s_and_b32 s{sH3b}, s{sT4}, 1
    s_lshl3_add_u32 s{sH3}, s{sH3b}, s{sH3}
    s_add_u32 s{sH3}, s{sH3}, 1024
    s_add_u32 s{sH3}, s{sH3}, s{sT0}
    s_add_u32 s{sH3b}, s{sH3}, 57344
    s_lshr_b32 s{sT0}, s{sW}, 1
    s_lshl2_add_u32 s{sT0}, s{sT0}, s{sT3}
    s_lshl_b32 s{sT0}, s{sT0}, 7
    s_lshl1_add_u32 s{sT2}, s{sT4}, s{sT2}
    s_lshl2_add_u32 s{sT0}, s{sT2}, s{sT0}
    s_add_u32 s{sFHo}, s{sT0}, s{sGB}
    """)
    k(f"""
    s_mul_i32 s{sT0}, s{sC}, {KVX_C}
    s_add_u32 s{sT0}, s{sT0}, {WS_KVX}
    s_lshl_b32 s{sT1}, s{sW}, 13
    s_add_u32 s{sKVC}, s{sT0}, s{sT1}
    s_lshl_b32 s{sT2}, s{sW}, 14
    s_lshl_b32 s{sT3}, s{sG}, 10
    s_lshl_b32 s{sT4}, s{sG}, 7
    s_cmp_lt_u32 s{sW}, 2
    s_cselect_b32 s{sT3}, s{sT3}, s{sT4}
    s_cselect_b32 s{sKM}, -1, 0x30003
    s_cselect_b32 s{sKM+1}, -1, 0x30003
    s_cselect_b64 vcc, -1, 0
    s_add_u32 s{sKVP}, s{sT0}, s{sT2}
    s_add_u32 s{sKVP}, s{sKVP}, s{sT3}
    s_cmp_eq_u32 s{sW}, 3
    s_cselect_b32 s{sKVP}, {OOB}, s{sKVP}
    v_lshlrev_b32 v{vT3}, 4, v{vT0}
    v_lshl_add_u32 v{vT3}, v{vT1}, 6, v{vT3}
    v_cndmask_b32 v{vT3}, v{vT3}, v{vL16}, vcc
    v_accvgpr_write_b32 a{cKVS}, v{vT3}
    v_lshlrev_b32 v{vT3}, 2, v{vL16}
    v_and_b32 v{vT3}, 0xf00, v{vT3}
    v_lshrrev_b32 v{vT3}, 1, v{vT3}
    v_and_b32 v{vWB}, 48, v{vL16}
    s_lshr_b32 s{sT2}, s{sW}, 1
    s_lshl_b32 s{sT2}, s{sT2}, 6
    s_add_u32 s{sT2}, s{sT2}, 32768
    s_sub_u32 s{sT2}, s{sT2}, s{sT1}
    v_add3_u32 v{vT3}, v{vT3}, v{vWB}, s{sT2}
    v_accvgpr_write_b32 a{cZL}, v{vT3}
    v_and_b32 v{vWB+5}, 1, v{vLANE}
    v_cndmask_b32 v{vWB+5}, v{vWB+5}, 0, vcc
    s_min_u32 s{sT5}, s{sW}, 2
    """)
    W = vWB
    k(f"""
    v_lshl_add_u32 v{XR}, v{vT1}, 8, v{vT2}
    v_add_u32 v{XR}, s{sL0}, v{XR}
    v_xor_b32 v{XR+1}, 64, v{XR}
    v_xor_b32 v{XR+2}, 0x80, v{XR}
    v_xor_b32 v{XR+3}, 0xc0, v{XR}
    v_and_b32 v{vT3}, 3, v{vLANE}
    v_lshlrev_b32 v{vT3}, 3, v{vT3}
    v_lshl_add_u32 v{vTR0}, v{vP}, 6, v{vT3}
    v_lshl_add_u32 v{vQ0}, v{vP}, 7, v{vT3}
    v_and_b32 v{vT3}, 1, v{vT0}
    v_lshlrev_b32 v{vT3}, 5, v{vT3}
    v_add_u32 v{vTR0}, v{vTR0}, v{vT3}
    v_xor_b32 v{vTR1}, 32, v{vTR0}
    v_bfe_u32 v{vT3}, v{vLANE}, 3, 2
    v_lshl_add_u32 v{vQ0}, v{vT3}, 5, v{vQ0}
    v_xor_b32 v{vQ1}, 32, v{vQ0}
    v_xor_b32 v{vQ2}, 64, v{vQ0}
    v_xor_b32 v{vQ3}, 0x60, v{vQ0}
    v_lshlrev_b32 v{W}, 2, v{vT1}
    v_accvgpr_write_b32 a{cP16}, v{W}
    v_mov_b32 v{W+1}, {BF1}
    v_accvgpr_write_b32 a{aONES}, v{W+1}
    v_accvgpr_write_b32 a{aONES+1}, v{W+1}
    v_accvgpr_write_b32 a{aONES+2}, v{W+1}
    v_accvgpr_write_b32 a{aONES+3}, v{W+1}
    v_add_u32 v{W+1}, {L_CS}, v{W}
    v_accvgpr_write_b32 a{cCSA}, v{W+1}
    v_and_b32 v{W+2}, 48, v{vLANE}
    v_add_u32 v{W+1}, {L_CS}, v{W+2}
    v_accvgpr_write_b32 a{cCSB}, v{W+1}
    v_lshlrev_b32 v{W+1}, 2, v{vT0}
    v_lshl_add_u32 v{W+1}, v{vT1}, 4, v{W+1}
    v_accvgpr_write_b32 a{cSTO}, v{W+1}
    s_lshl_b32 s{sT0}, s{sW}, 8
    s_add_u32 s{sT0}, s{sT0}, {L_STAT}
    v_add_u32 v{W+1}, s{sT0}, v{W}
    v_accvgpr_write_b32 a{cSTA}, v{W+1}
    v_and_b32 v{W+3}, 32, v{vLANE}
    v_lshl_add_u32 v{W+1}, v{W+3}, 1, v{W+1}
    v_accvgpr_write_b32 a{cSTW}, v{W+1}
    v_add_u32 v{W+1}, s{sT0}, v{W+2}
    v_accvgpr_write_b32 a{cSTB}, v{W+1}
    s_lshl_b32 s{sT0}, s{sW}, 10
    v_add_u32 v{W+1}, s{sT0}, v{vL16}
    v_accvgpr_write_b32 a{cKW}, v{W+1}
    v_add_u32 v{W+3}, {R2 + 8192}, v{W+1}
    v_accvgpr_write_b32 a{cKW1}, v{W+3}
    s_lshl_b32 s{sT0}, s{sT5}, 14
    v_add_u32 v{W+1}, s{sT0}, v{vL16}
    v_lshl_add_u32 v{W+1}, v{W+5}, 12, v{W+1}
    v_accvgpr_write_b32 a{cKR}, v{W+1}
    s_lshl_b32 s{sT0}, s{sT5}, 14
    s_add_u32 s{sT0}, s{sT0}, {R2 + 8192}
    v_add_u32 v{W+1}, s{sT0}, v{vL16}
    v_lshl_add_u32 v{W+1}, v{W+5}, 14, v{W+1}
    v_accvgpr_write_b32 a{cKR1}, v{W+1}
    v_add_u32 v{W+1}, {L_XB}, v{vL16}
    v_accvgpr_write_b32 a{cXR}, v{W+1}
    v_lshlrev_b32 v{W+3}, 3, v{vT0}
    v_add_u32 v{W+3}, {L_ZB}, v{W+3}
    v_accvgpr_write_b32 a{cZR}, v{W+3}
    """)
    k(f"""
    s_lshl_b32 s{sT0}, s{sW}, 10
    v_add_u32 v{W+1}, s{sT0}, v{W+1}
    v_accvgpr_write_b32 a{cXW}, v{W+1}
    v_and_b32 v{W+3}, 1, v{vT0}
    v_lshrrev_b32 v{W+4}, 1, v{vT0}
    v_lshl_add_u32 v{W+3}, v{W+3}, 1, v{W+4}
    v_and_b32 v{W+4}, 3, v{vLANE}
    v_lshl_add_u32 v{W+3}, v{W+4}, 2, v{W+3}
    s_lshr_b32 s{sT0}, s{sW}, 1
    s_lshl_b32 s{sT0}, s{sT0}, 5
    s_add_u32 s{sT0}, s{sT0}, {L_ZB}
    v_lshl_add_u32 v{W+3}, v{W+3}, 1, s{sT0}
    v_accvgpr_write_b32 a{cZW}, v{W+3}
    """)
    for j in range(4):
        k(f"s_add_u32 s{sT0}, s{sW}, {j}")
        k(f"s_and_b32 s{sT0}, s{sT0}, 3")
        k(f"s_lshl_b32 s{sT0}, s{sT0}, 13")
        k(f"s_add_u32 s{sT0}, s{sT0}, {L_RED + (4096 if j == 2 else 0)}")
        k(f"v_add_u32 v{W+1}, s{sT0}, v{vL16}")
        k(f"v_accvgpr_write_b32 a{cRD0+j}, v{W+1}")
    k(f"""
    s_lshl2_add_u32 s{sT0}, s{sDH}, s{sW}
    s_lshl3_add_u32 s{sT0}, s{sG}, s{sT0}
    s_lshl_b32 s{sT0}, s{sT0}, 14
    s_lshl_b32 s{sT1}, s{sCT}, 7
    s_add_u32 s{sT0}, s{sT0}, s{sT1}
    v_lshl_add_u32 v{W+1}, v{vT1}, 10, s{sT0}
    v_and_b32 v{W+3}, 1, v{vT0}
    v_lshl_add_u32 v{W+1}, v{W+3}, 5, v{W+1}
    v_lshrrev_b32 v{W+3}, 1, v{vT0}
    v_lshl_add_u32 v{W+1}, v{W+3}, 4, v{W+1}
    v_accvgpr_write_b32 a{cOUT}, v{W+1}
    """)

    def xread(q):
        k.vm_wait(("xs", q))
        for ksl in range(4):
            for rb in range(2):
                k.lds(f"ds_read_b128 {vr(act(4*q+ksl, rb),4)}, v{XR+ksl} offset:{(q%2)*8192 + rb*4096}", ("xr", q))

    SUM0, SQ0, SUM1, SQ1 = vACC + 56, vACC + 57, vACC + 58, vACC + 59
    SUMA, SQA = vACC + 48, vACC + 56
    ONES = vPQ + 4
    NM_A, RS_A, RL_A = vACC + 60, vACC + 62, vACC + 56
    NM_B, RS_B, RL_B = vACC + 32, vACC + 40, vACC + 48
    STG = vACC + 48

    def own_stats():
        a, b, c, d = OWN + 8, OWN + 9, OWN + 10, OWN + 11
        k(f"v_mov_b32 v{OWN+12}, {BF1}")
        k.vm_wait("own")
        for j in range(4):
            r0, r1 = OWN + j, OWN + 4 + j
            k(f"v_dot2_f32_bf16 v{a}, v{OWN+12}, v{r0}, {'0' if j == 0 else f'v{a}'}")
            k(f"v_dot2_f32_bf16 v{c}, v{OWN+12}, v{r1}, {'0' if j == 0 else f'v{c}'}")
            k(f"v_dot2_f32_bf16 v{b}, v{r0}, v{r0}, {'0' if j == 0 else f'v{b}'}")
            k(f"v_dot2_f32_bf16 v{d}, v{r1}, v{r1}, {'0' if j == 0 else f'v{d}'}")
        k(f"""
        s_waitcnt lgkmcnt(0)
        s_mul_i32 s{sTAG}, s{sEP}, 0x9E3779B1
        s_add_u32 s{sTAG}, s{sTAG}, 0x7F4A7C15
        s_add_u32 s{sT8}, s{sEP}, 1
        s_and_b32 s{sT8}, s{sT8}, 0xff
        s_mov_b32 s{sS8}, s{sEP}
        v_permlane32_swap_b32 v{a}, v{c}
        v_permlane32_swap_b32 v{b}, v{d}
        v_add_f32 v{a}, v{a}, v{c}
        v_add_f32 v{b}, v{b}, v{d}
        v_mov_b32 v{c}, v{a}
        v_mov_b32 v{d}, v{b}
        s_nop 1
        v_permlane16_swap_b32 v{a}, v{c}
        v_permlane16_swap_b32 v{b}, v{d}
        v_add_f32 v{a}, v{a}, v{c}
        v_add_f32 v{b}, v{b}, v{d}
        """)
        for sh in (8, 4, 2, 1):
            k("s_nop 0")
            k(f"v_add_f32_dpp v{a}, v{a}, v{a} row_ror:{sh} row_mask:0xf bank_mask:0xf")
            k(f"v_add_f32_dpp v{b}, v{b}, v{b} row_ror:{sh} row_mask:0xf bank_mask:0xf")
        k(f"""
        v_mul_f32 v{a}, 0xbb000000, v{a}
        v_mul_f32 v{b}, 0x3b000000, v{b}
        v_fma_f32 v{b}, -v{a}, v{a}, v{b}
        v_max_f32 v{b}, 0, v{b}
        v_add_f32 v{b}, 0x3727c5ac, v{b}
        v_rsq_f32 v{b}, v{b}
        v_mov_b32 v{c}, s{sTAG}
        v_mov_b32 v{d}, s{sXCC}
        v_lshrrev_b32 v{vT3}, 1, v{vLANE}
        s_lshl4_add_u32 s{sT2}, s{sW}, s{sC}
        s_lshl_b32 s{sT2}, s{sT2}, 7
        s_add_u32 s{sT2}, s{sT2}, s{sGB}
        s_add_u32 s{sT2}, s{sT2}, {G_ST0}
        s_mov_b32 exec_lo, 1
        s_mov_b32 exec_hi, 1
        """)
        k.vmem(f"buffer_store_dwordx4 {vr(a,4)}, v{vT3}, {srd(S_WS)}, s{sT2} offen sc1", "ownst")
        k("s_mov_b64 exec, -1")

    S0 = vACC + 52

    def st0_issue():
        with k.atomic():
            k(f"v_and_b32 v{vT0}, 30, v{vLANE}")
            k(f"v_lshlrev_b32 v{vT0}, 6, v{vT0}")
            k(f"v_and_b32 v{vT1}, 16, v{vL16}")
            k(f"v_add_u32 v{vT0}, v{vT0}, v{vT1}")
            k(f"s_add_u32 s{sT4}, s{sSTg}, {G_ST0}")
            k.vmem(f"buffer_load_dwordx4 {vr(S0,4)}, v{vT0}, {srd(S_WS)}, s{sT4} offen sc1", "st0")

    def st0_use():
        lp, ok = k.label("L_s0"), k.label("L_s0ok")
        with k.atomic():
            k.vm_wait("st0")
            k(f"{lp}:")
            k(f"v_cmp_ne_u32 vcc, s{sTAG}, v{S0+2}")
            k(f"s_cbranch_vccz {ok}")
            k(f"buffer_load_dwordx4 {vr(S0,4)}, v{vT0}, {srd(S_WS)}, s{sT4} offen sc1")
            k("s_waitcnt vmcnt(0)")
            k(f"s_sub_u32 s{sBUD}, s{sBUD}, 1")
            k(f"s_cbranch_scc0 {lp}")
            k(f"s_mov_b32 s{sBUD}, 0")
            k(f"{ok}:")
            k(f"v_cmp_ne_u32 vcc, s{sXCC}, v{S0+3}")
            k("s_nop 4")
            k(f"s_or_b32 s{sSLOW}, vcc_lo, {1 if o.get('forceslow') else 0}")
        k.get(vT0, cSTA)
        k(f"v_and_b32 v{vT1}, 16, v{vLANE}")
        k(f"v_lshl_add_u32 v{vT1}, v{vT1}, 2, v{vT0}")
        k.lds(f"ds_write2_b32 v{vT1}, v{S0}, v{S0+1} offset0:0 offset1:32")
        k.lds(f"ds_read2_b32 {vr(NM_A,2)}, v{vT0} offset0:0 offset1:16", "sta")
        k.lds(f"ds_read2_b32 {vr(RS_A,2)}, v{vT0} offset0:32 offset1:48", "sta")

    def stats_finalize(need_rs):
        k.get(vT1, cSTW)
        k.get(vT0, cSTA)
        k(f"""
        v_permlane32_swap_b32 v{SUM0}, v{SUM1}
        v_permlane32_swap_b32 v{SQ0}, v{SQ1}
        v_add_f32 v{SUM0}, v{SUM0}, v{SUM1}
        v_add_f32 v{SQ0}, v{SQ0}, v{SQ1}
        v_mov_b32 v{SUM1}, v{SUM0}
        v_mov_b32 v{SQ1}, v{SQ0}
        s_nop 0
        v_permlane16_swap_b32 v{SUM0}, v{SUM1}
        v_permlane16_swap_b32 v{SQ0}, v{SQ1}
        v_add_f32 v{SUM0}, v{SUM0}, v{SUM1}
        v_add_f32 v{SQ0}, v{SQ0}, v{SQ1}
        v_mul_f32 v{SUM0}, 0xbb000000, v{SUM0}
        v_mul_f32 v{SQ0}, 0x3b000000, v{SQ0}
        v_fma_f32 v{SQ0}, -v{SUM0}, v{SUM0}, v{SQ0}
        v_max_f32 v{SQ0}, 0, v{SQ0}
        v_add_f32 v{SQ0}, 0x3727c5ac, v{SQ0}
        v_rsq_f32 v{SQ0}, v{SQ0}
        s_nop 0
        """)
        k.lds(f"ds_write2_b32 v{vT1}, v{SUM0}, v{SQ0} offset0:0 offset1:32")
        k.lds(f"ds_read2_b32 {vr(NM_A,2)}, v{vT0} offset0:0 offset1:16", "sta")
        if need_rs:
            k.lds(f"ds_read2_b32 {vr(RS_A,2)}, v{vT0} offset0:32 offset1:48", "sta")

    def stats_b():
        k.get(vT1, cSTB)
        for rb in range(2):
            k.lds(f"ds_read_b128 {vr(NM_B+4*rb,4)}, v{vT1} offset:{64*rb}", "sta")
            k.lds(f"ds_read_b128 {vr(RS_B+4*rb,4)}, v{vT1} offset:{128+64*rb}", "sta")

    def stats_scale():
        k.ds_wait("sta")
        for j in range(8):
            k(f"v_mul_f32 v{RL_B+j}, 0x3fb8aa3b, v{RS_B+j}")
        for j in range(2):
            k(f"v_mul_f32 v{RL_A+j}, 0x3fb8aa3b, v{RS_A+j}")

    def set_ones(r):
        for j in range(4):
            k(f"v_mov_b32 v{r+j}, {BF1}")

    def cs_put(first, sblk):
        k.get(vT0, cCSA)
        k(f"s_lshl_b32 s{sT5}, s{sblk}, 6")
        k(f"v_add_u32 v{vT0}, s{sT5}, v{vT0}")
        k.lds(f"ds_write_b32 v{vT0}, a{aCS} offset:{first*64}")

    def phi_block(acc, nm, cs, rl, rs, dst, tmp, lay):
        s1, s2, s3, s4, s5 = [], [], [], [], []
        for p in range(2):
            a2 = vr(acc + 2*p, 2)
            t2 = vr(tmp + 2*p, 2)
            if lay == "b":
                c2, m = bcast(cs, 1, 3)
                s1.append(f"v_pk_fma_f32 {a2}, {vr(nm+2*p,2)}, {c2}, {a2}{m}")
                s2.append(f"v_pk_mul_f32 {t2}, {a2}, {vr(rl+2*p,2)}")
                s4.append(f"v_pk_fma_f32 {a2}, {a2}, {vr(rs+2*p,2)}, {t2}")
            else:
                c2, m = bcast(nm, 1, 3)
                s1.append(f"v_pk_fma_f32 {a2}, {vr(cs+2*p,2)}, {c2}, {a2}{m}")
                c2, m = bcast(rl, 1, 2)
                s2.append(f"v_pk_mul_f32 {t2}, {a2}, {c2}{m}")
                c2, m = bcast(rs, 1, 3)
                s4.append(f"v_pk_fma_f32 {a2}, {a2}, {c2}, {t2}{m}")
            for j in range(2):
                s3.append(f"v_exp_f32 v{tmp+2*p+j}, v{tmp+2*p+j} clamp")
            s5.append(f"v_pk_add_f32 {a2}, {a2}, s[{sEPS}:{sEPS+1}]")
        for s in s1 + s2 + s3:
            k(s)
        for j in range(4):
            k(f"v_max_f32 v{acc+j}, 0, v{acc+j}")
        for s in s4 + s5:
            k(s)
        for p in range(2):
            k(f"v_cvt_pk_bf16_f32 v{dst+p}, v{acc+2*p}, v{acc+2*p+1}")

    def ring(ks, rb):
        return vACT + 8 * (ks % 6) + 4 * rb
    QA, vPARK = vACT + 48, vACT + 64

    def act_loads(bufoff, act=act, rot=False):
        for ks in range(16):
            for rb in range(2):
                with k.atomic():
                    if ks % 4 == 0:
                        k(f"s_add_u32 s{sT2+rb}, s{sACT+rb}, {f's{S_A + ks//4}' if rot else bufoff + ks*1024}")
                    k.vmem(f"buffer_load_dwordx4 {vr(act(ks,rb),4)}, v{vL16}, {srd(S_WS)}, s{sT2+rb} offen offset:{(ks%4)*1024} sc1",
                           ("act", ks, rb))

    def stat_loads(stoff, STG=STG):
        k(f"s_add_u32 s{sT4}, s{sSTg}, {stoff}")
        for j in range(2):
            k.vmem(f"buffer_load_dwordx4 {vr(STG+4*j,4)}, v{vL16}, {srd(S_WS)}, s{sT4} offen offset:{j*1024} sc1", "stg")

    def stat_sum(STG=STG):
        lp, ok = k.label("L_sg"), k.label("L_sgok")
        k.vm_wait("stg")

        def chk():
            for j in range(8):
                k(f"v_xor_b32 v{STG+j}, s{sS8}, v{STG+j}")
            k(f"v_or3_b32 v{SUM0}, v{STG}, v{STG+1}, v{STG+2}")
            k(f"v_or3_b32 v{SUM0+1}, v{STG+3}, v{STG+4}, v{STG+5}")
            k(f"v_or3_b32 v{SUM0}, v{SUM0}, v{STG+6}, v{STG+7}")
            k(f"v_or_b32 v{SUM0}, v{SUM0}, v{SUM0+1}")
            k(f"v_and_b32 v{SUM0}, 0xff, v{SUM0}")
        chk()
        with k.atomic():
            k(f"v_cmp_ne_u32 vcc, 0, v{SUM0}")
            k(f"s_cbranch_vccnz {lp}")
            k(f"{ok}:")
        sv, k._rec = k._rec, None
        n0 = len(k.lines)
        k(f"{lp}:")
        for j in range(2):
            k(f"buffer_load_dwordx4 {vr(STG+4*j,4)}, v{vL16}, {srd(S_WS)}, s{sT4} offen offset:{j*1024} sc1")
        k("s_waitcnt vmcnt(0)")
        chk()
        k(f"v_cmp_ne_u32 vcc, 0, v{SUM0}")
        k(f"s_cbranch_vccz {ok}")
        k(f"s_sub_u32 s{sBUD}, s{sBUD}, 1")
        k(f"s_cbranch_scc0 {lp}")
        k(f"s_mov_b32 s{sBUD}, 0")
        k(f"s_branch {ok}")
        k.tailcode += k.lines[n0:]
        del k.lines[n0:]
        k._rec = sv
        for j in range(4):
            k(f"v_add_f32 v{SUM0+j}, v{STG+j}, v{STG+4+j}")

    def mf2(acc, ks, sw, wait, first=None, act=act):
        return [(acc + 4 * rb, act(ks, rb), sw, (ks == 0) if first is None else first,
                 (("act", ks, 1) if ks else ("act", ks, rb)) if wait else None) for rb in range(2)]

    def wo_raw():
        with k.atomic():
            quad_lane(1024)
            k(f"s_lshl_b32 s{sD0}, s{sW}, 17")
            k(f"s_lshl_b32 s{sD1}, s{sCT}, 7")
            k(f"s_add_u32 s{sD0}, s{sD0}, s{sD1}")
            k(f"s_lshl_b32 s{sL0}, s{sW}, 14")
        for j in range(16):
            k.dma(S_WO, vDM, sD0, j * 8 * 1024, sL0, R0 + j * 1024, "wo")

    def w1c1_raw():
        with k.atomic():
            quad_lane(3584, tmp=vACT + 127)
            k(f"s_lshr_b32 s{sD0}, s{sC}, 2")
            k(f"s_mul_i32 s{sD0}, s{sD0}, 896")
            k(f"s_and_b32 s{sD1}, s{sC}, 3")
            k(f"s_lshl_b32 s{sD1}, s{sD1}, 7")
            k(f"s_add_u32 s{sD0}, s{sD0}, s{sD1}")
            k(f"s_mul_i32 s{sD1}, s{sW}, {64*3584}")
            k(f"s_add_u32 s{sD0}, s{sD0}, s{sD1}")
            k(f"s_lshl_b32 s{sL0}, s{sW}, 13")
        for half in range(2):
            for j in range(8):
                k.dma(S_W1, vDM, sD0, (half * 256 + j * 8) * 3584, sL0, R1 + half * 32768 + j * 1024, "w1a")

    def lin_dma(src, dst, n, tag, shared=False):
        for j in range(n):
            with k.atomic():
                if j == 0:
                    k(f"s_mul_i32 s{sL0}, s{sW}, {n*1024}")
                    k(f"s_add_u32 s{sD0}, s{sL0}, s{sPKB}")
                    if shared:
                        k(f"s_mul_i32 s{sD1}, s{sDH}, {8*PK_SZ}")
                        k(f"s_sub_u32 s{sD0}, s{sD0}, s{sD1}")
                if j % 4 == 0:
                    k(f"s_add_u32 m0, s{sL0}, {dst + j*1024}")
                    k(f"s_add_u32 s{sD1}, s{sD0}, {src + j*1024}")
                k.vmem(f"buffer_load_dwordx4 v{vL16}, {srd(S_WS)}, s{sD1} offen offset:{(j%4)*1024} sc1 lds", tag)

    def x_store(s, pay_sc1):
        k.stores([f"buffer_store_dwordx4 {vr(vRES+4*s,4)}, v{vL16}, {srd(S_WS)}, s{sTILE} offen offset:{s*1024}"], pay_sc1)

    def publish_x(bufoff, stoff, floff, pay_sc1):
        a, b, c, d = vT0, vT1, vT2, vT3
        for j in range(4):
            r0, r1 = vRES + j, vRES + 4 + j
            if j == 0:
                k(f"v_mov_b32 v{vWB+9}, {BF1}")
                k(f"v_dot2_f32_bf16 v{b}, v{r0}, v{r0}, 0")
                k(f"v_dot2_f32_bf16 v{d}, v{r1}, v{r1}, 0")
                k(f"v_dot2_f32_bf16 v{a}, v{vWB+9}, v{r0}, 0")
                k(f"v_dot2_f32_bf16 v{c}, v{vWB+9}, v{r1}, 0")
            else:
                k(f"v_dot2_f32_bf16 v{b}, v{r0}, v{r0}, v{b}")
                k(f"v_dot2_f32_bf16 v{d}, v{r1}, v{r1}, v{d}")
                k(f"v_dot2_f32_bf16 v{a}, v{vWB+9}, v{r0}, v{a}")
                k(f"v_dot2_f32_bf16 v{c}, v{vWB+9}, v{r1}, v{c}")
        k.get(vWB + 8, cSTO)
        k(f"""
        s_add_u32 s{sT3}, s{sSTo}, {stoff}
        v_add_f32 v{b}, v{b}, v{d}
        v_add_f32 v{a}, v{a}, v{c}
        s_nop 1
        v_permlane16_swap_b32 v{a}, v{b}
        v_add_f32 v{a}, v{a}, v{b}
        v_mov_b32 v{b}, v{a}
        s_nop 1
        v_permlane32_swap_b32 v{a}, v{b}
        v_add_f32 v{c}, v{a}, v{b}
        s_add_u32 s{sS8}, s{sS8}, 1
        s_and_b32 s{sS8}, s{sS8}, 0xff
        v_and_b32 v{c}, 0xffffff00, v{c}
        v_or_b32 v{c}, s{sS8}, v{c}
        s_mov_b32 exec_hi, 0
        """)
        k.stores([f"buffer_store_dword v{c}, v{vWB+8}, {srd(S_WS)}, s{sT3} offen"], False, "sts" if o.get("sto", 1) else "st")
        k("s_mov_b64 exec, -1")
        k.poll_prep(15)

    def unpack_res(dst):
        for f in range(4):
            for p in range(2):
                r = vRES + 2*f + p
                k(f"v_lshlrev_b32 v{dst+4*f+2*p}, 16, v{r}")
                k(f"v_and_b32 v{dst+4*f+2*p+1}, 0xffff0000, v{r}")

    def misc_l1():
        k(f"""
        s_add_u32 s{sT2}, s{sTAG}, s{sXCC}
        s_add_u32 s{sT2}, s{sT2}, 2
        v_mov_b32 v{vT1}, s{sT2}
        s_lshl4_add_u32 s{sT2}, s{sG}, s{sC}
        s_lshl_b32 s{sT2}, s{sT2}, 7
        s_add_u32 s{sT2}, s{sT2}, {WS_XID}
        """)
        with k.atomic():
            k(f"s_cmp_lg_u32 s{sW}, 0")
            k(f"s_cselect_b32 s{sT2}, {OOB}, s{sT2}")
            k("s_mov_b64 exec, 1")
            k.vmem(f"buffer_store_dword v{vT1}, v{vL16}, {srd(S_WS)}, s{sT2} offen sc1", "xid")
            k("s_mov_b64 exec, -1")

    def res_load():
        k.get(vT0, cOUT)
        for s_ in range(2):
            k.vmem(f"buffer_load_dwordx4 {vr(vRES+4*s_,4)}, v{vT0}, {srd(S_X)}, 0 offen offset:{64*s_}", "res")

    def touch(kind, vSP=vSP):
        with k.atomic():
            k(f"s_lshl2_add_u32 s{sD3}, s{sC}, s{sW}")
            sD2 = sD3
            if kind == "h":
                k(f"s_mul_i32 s{sD2}, s{sD2}, 7168")
                k(f"s_add_u32 s{sD2}, s{sD2}, s{sGB}")
                k(f"s_add_u32 s{sD2}, s{sD2}, {G_H}")
                k(f"v_lshlrev_b32 v{vSP}, 7, v{vLANE}")
                k("s_mov_b32 exec_hi, 0xffffff")
                k.vmem(f"buffer_load_dword a{aDUM}, v{vSP}, {srd(S_WS)}, s{sD2} offen sc1", "touch")
                k("s_mov_b32 exec_hi, -1")
            else:
                k(f"v_lshlrev_b32 v{vSP}, 7, v{vLANE}")
                k(f"s_lshl_b32 s{sT5}, s{sD2}, 11")
                k(f"s_add_u32 s{sT5}, s{sT5}, s{sGB}")
                k(f"s_add_u32 s{sT5}, s{sT5}, {G_X1}")
                k("s_mov_b64 exec, 0xffff")
                k.vmem(f"buffer_load_dword a{aDUM}, v{vSP}, {srd(S_WS)}, s{sT5} offen sc1", "touch")
                k(f"s_lshl_b32 s{sD2}, s{sD2}, 7")
                k(f"s_add_u32 s{sD2}, s{sD2}, s{sGB}")
                k("s_mov_b64 exec, 1")
                k(f"s_add_u32 s{sD2}, s{sD2}, {G_ST1}")
                k.vmem(f"buffer_load_dword a{aDUM}, v{vSP}, {srd(S_WS)}, s{sD2} offen sc1", "touch")
                k("s_mov_b64 exec, -1")

    def touch_slots(first, n, va=vSP):
        with k.atomic():
            k(f"s_lshl2_add_u32 s{sD3}, s{sC}, s{sW}")
            k(f"v_lshlrev_b32 v{va}, 7, v{vLANE}")
            k(f"s_lshr_b32 s{sT5}, s{sD3}, 3")
            k(f"s_mul_i32 s{sT5}, s{sT5}, 57344")
            k(f"s_and_b32 s{sD3}, s{sD3}, 7")
            k(f"s_mul_i32 s{sD3}, s{sD3}, {n*128}")
            k(f"s_add_u32 s{sT5}, s{sT5}, s{sD3}")
            k(f"s_add_u32 s{sT5}, s{sT5}, s{sGB}")
            k(f"s_add_u32 s{sT5}, s{sT5}, {G_H + first*1024}")
            k(f"s_mov_b32 exec_lo, {(1 << min(n, 32)) - 1}")
            k(f"s_mov_b32 exec_hi, {(1 << max(n - 32, 0)) - 1}")
            k.vmem(f"buffer_load_dword a{aDUM}, v{va}, {srd(S_WS)}, s{sT5} offen sc1", "touch")
            k("s_mov_b64 exec, -1")

    def touches(code, va=vSP):
        if code & 1:
            touch("x", va)
        r = {0: None, 1: (0, 16), 2: (16, 8), 3: (0, 24), 4: (24, 32), 6: (16, 40), 7: (0, 56)}[code >> 1]
        if r:
            touch_slots(r[0], r[1], va)

    def packN_issue():
        with k.atomic():
            quad_lane(1024)
            k(f"""
            s_movk_i32 s{sD2}, 8192
            s_lshl_b32 s{sD0}, s{sG}, 15
            s_lshl_b32 s{sD1}, s{sCT}, 7
            s_add_u32 s{sD0}, s{sD0}, s{sD1}
            s_lshl_b32 s{sPDA}, s{sG}, 12
            s_add_u32 s{sPDA}, s{sPDA}, s{sPKB}
            s_add_u32 s{sPDA}, s{sPDA}, {PK_WO}
            s_lshl2_add_u32 s{sD1}, s{sDH}, s{sW}
            s_cmp_lg_u32 s{sD1}, 3
            s_cbranch_scc1 L_nskip
            """)
            for j in range(4):
                dma_raw(S_WO, j * 1024, j == 0)
            k("L_nskip:")

    def packN_finish(T):
        k(f"s_lshl2_add_u32 s{sD1}, s{sDH}, s{sW}")
        k(f"s_cmp_lg_u32 s{sD1}, 3")
        k("s_cbranch_scc1 L_nfskip")
        for f in range(4):
            k(f"v_add_u32 v{T+16+f}, {L_XST + 3*16384}, v{vQ0+f}")
        for f in range(4):
            for hh in range(2):
                k(f"ds_read_b64_tr_b16 {vr(T+4*f+2*hh,2)}, v{T+16+f} offset:{hh*2048}")
        k("s_waitcnt lgkmcnt(0)")
        for f in range(4):
            k(f"buffer_store_dwordx4 {vr(T+4*f,4)}, v{vL16}, {srd(S_WS)}, s{sPDA} offen offset:{f*1024} sc1")
        k("L_nfskip:")

    def pack_finish(T, base, shift, quad_if_3, tag="pk", sPDA=sPDA):
        lb, le = k.label("L_qb"), k.label("L_qe")
        k(f"s_lshl_b32 s{sT5}, s{sW}, {shift}")
        k(f"s_add_u32 s{sT5}, s{sT5}, {base}")
        k.vm_wait(tag)
        k.ds_all()
        k(f"s_cmp_eq_u32 s{sW}, 3")
        k(f"s_cbranch_scc{0 if quad_if_3 else 1} {lb}")
        for f in range(4):
            k(f"v_add_u32 v{T+16+f}, s{sT5}, v{vQ0+f}")
        for f in range(4):
            for hh in range(2):
                k(f"ds_read_b64_tr_b16 {vr(T+4*f+2*hh,2)}, v{T+16+f} offset:{hh*2048}")
        k("s_waitcnt lgkmcnt(0)")
        for f in range(4):
            k(f"buffer_store_dwordx4 {vr(T+4*f,4)}, v{vL16}, {srd(S_WS)}, s{sPDA} offen offset:{f*1024} sc1")
        k(f"s_branch {le}")
        k(f"{lb}:")
        k(f"v_add_u32 v{T+16}, s{sT5}, v{vTR0}")
        k(f"v_add_u32 v{T+17}, s{sT5}, v{vTR1}")
        k(f"v_lshl_add_u32 v{T+18}, v{vLANE}, 3, s{sT5}")
        for f in range(2):
            for hh in range(2):
                k(f"ds_read_b64_tr_b16 {vr(T+4*f+2*hh,2)}, v{T+16+f} offset:{hh*1024}")
        nf = 2 if quad_if_3 else 3
        if nf == 3:
            for hh in range(2):
                k(f"ds_read_b64_tr_b16 {vr(T+8+2*hh,2)}, v{T+18} offset:{2048+hh*512}")
        k("s_waitcnt lgkmcnt(0)")
        for f in range(nf):
            k(f"buffer_store_dwordx4 {vr(T+4*f,4)}, v{vL16}, {srd(S_WS)}, s{sPDA} offen offset:{f*1024} sc1")
        if nf == 3:
            k(f"buffer_load_dword a{aDUM}, v{vL16}, {srd(S_W1)}, s{S_W1+2} offen")
            nf = 4
        k(f"{le}:")
        k.vm_note(nf, "pst")

    def pack_flag(off=0):
        k(f"""
        s_lshl_b32 s{sT5}, s2, 7
        s_add_u32 s{sT5}, s{sT5}, {WS_PD + off}
        s_cmp_lg_u32 s{sW}, 0
        s_cselect_b32 s{sT5}, {OOB}, s{sT5}
        v_mov_b32 v{vT1}, s{sTAG}
        s_mov_b64 exec, 1
        """)
        k.vmem(f"buffer_store_dword v{vT1}, v{vL16}, {srd(S_WS)}, s{sT5} offen sc1")
        k("s_mov_b64 exec, -1")

    def pack_check_issue(off, va, vd, sb):
        with k.atomic():
            k(f"v_and_b32 v{va}, 1, v{vLANE}")
            k(f"v_lshlrev_b32 v{va}, 7, v{va}")
            k(f"v_lshrrev_b32 v{vd}, 1, v{vLANE}")
            if o.get("sub", 1):
                k(f"v_and_b32 v{vd}, 1, v{vd}")
                k(f"s_lshl2_add_u32 s{sT5}, s{sC}, s{sW}")
                k(f"s_lshl_b32 s{sT5}, s{sT5}, 1")
            else:
                k(f"v_and_b32 v{vd}, 7, v{vd}")
                k(f"s_lshl_b32 s{sT5}, s{sCT if off else sC}, 3")
            k(f"v_add3_u32 v{va}, v{va}, v{vd}, s{sT5}")
            if WP:
                k("s_mov_b32 exec_lo, 0")
                k(f"v_and_b32 v{va}, 0xbf, v{va}")
                k("s_mov_b32 exec_lo, -1")
            k(f"v_min_u32 v{vd}, 29, v{vLANE}")
            k(f"s_mul_i32 s{sT5}, s{sW}, 56")
            k(f"s_lshr_b32 s{sb}, s{sCT}, 1")
            k(f"s_add_u32 s{sT5}, s{sT5}, s{sb}")
            k(f"s_sub_u32 s{sT5}, s{sT5}, 64")
            k(f"v_lshl_add_u32 v{vd}, v{vd}, 2, s{sT5}")
            k("s_mov_b32 vcc_lo, 0xffff")
            k("s_mov_b32 vcc_hi, -1")
            k(f"s_mov_b32 s{sb}, {WS_PD + off}")
            k(f"v_cndmask_b32 v{va}, v{vd}, v{va}, vcc")
            k(f"v_lshlrev_b32 v{va}, 7, v{va}")
            k.vmem(f"buffer_load_dword v{vd}, v{va}, {srd(S_WS)}, s{sb} offen sc1", "pc")

    def pack_check(va, vd, sb):
        lp, ok = k.label("L_pc"), k.label("L_pcok")
        with k.atomic():
            k.vm_wait("pc")
            k(f"{lp}:")
            k(f"v_cmp_ne_u32 vcc, s{sTAG}, v{vd}")
            k(f"s_cbranch_vccz {ok}")
            if o.get("bo", 0):
                k(f"s_sleep {o['bo']}")
            if o.get("fl", 1):
                k("s_mov_b64 exec, vcc")
            k(f"buffer_load_dword v{vd}, v{va}, {srd(S_WS)}, s{sb} offen sc1")
            if o.get("fl", 1):
                k("s_mov_b64 exec, -1")
            k("s_waitcnt vmcnt(0)")
            k(f"s_sub_u32 s{sBUD}, s{sBUD}, 1")
            k(f"s_cbranch_scc0 {lp}")
            k(f"s_mov_b32 s{sBUD}, 0")
            k(f"{ok}:")

    aPK = 128

    def park_addr(va, base, shift):
        k(f"v_bfe_u32 v{va}, v{vLANE}, 4, 1")
        k(f"v_lshlrev_b32 v{va}, 10, v{va}")
        k(f"v_lshrrev_b32 v{va+1}, 5, v{vLANE}")
        k(f"v_mul_u32_u24 v{va+1}, 0x120, v{va+1}")
        k(f"v_add_u32 v{va}, v{va}, v{va+1}")
        k(f"v_and_b32 v{va+1}, 0xd8, v{vTR0}")
        k(f"s_lshl_b32 s{sT5}, s{sW}, {shift}")
        k(f"s_add_u32 s{sT5}, s{sT5}, {base}")
        k(f"v_add3_u32 v{va}, v{va}, v{va+1}, s{sT5}")
        k(f"v_xor_b32 v{va+1}, 32, v{va}")

    def park_kv(va):
        for r in range(4):
            for blk in range(4):
                for hh in range(2):
                    k.lds(f"ds_read_b64_tr_b16 {ar(aPK + 16*(r ^ 2) + 4*blk + 2*hh, 2)}, v{va + (blk & 1)} offset:{r*16384 + (blk >> 1)*2048 + hh*512}")

    def park_q(va):
        for r in range(4):
            for b in range(2):
                for hh in range(2):
                    k.lds(f"ds_read_b64_tr_b16 {ar(aPK + 64 + 8*r + 4*b + 2*hh, 2)}, v{va + b} offset:{r*8192 + hh*512}")

    def unpark(va, js):
        for j in js:
            with k.atomic():
                if j in (js[0], 16):
                    k(f"s_lshl_b32 s{sT5}, s{sW}, {11 if j >= 16 else 12}")
                    if j >= 16:
                        k(f"s_add_u32 s{sT5}, s{sT5}, {R1}")
                    k(f"v_add_u32 v{va}, s{sT5}, v{vL16}")
                off = ((j - 16) // 2) * 8192 + (j % 2) * 1024 if j >= 16 else ((j // 4) ^ 2) * 16384 + (j % 4) * 1024
                k.lds(f"ds_write_b128 v{va}, {ar(aPK + 4*j, 4)} offset:{off}", ("up", j // 4))

    def rot_setup():
        with k.atomic():
            k(f"s_lshr_b32 s{sD0}, s{sC}, 1")
            k(f"s_xor_b32 s{sD0}, s{sD0}, s{sG}")
            k(f"s_and_b32 s{sD0}, s{sD0}, 1")
            k(f"s_and_b32 s{sD1}, s{sC}, 1")
            k(f"s_lshl1_add_u32 s{sD0}, s{sD0}, s{sD1}")
            for q in range(4):
                k(f"s_add_u32 s{sD1}, s{sD0}, {q}")
                k(f"s_and_b32 s{sD1}, s{sD1}, 3")
                k(f"s_lshl_b32 s{sD1}, s{sD1}, 12")
                k(f"s_add_u32 s{S_A+q}, s{sD1}, {G_X2}")

    def wq_raw():
        k(f"s_lshl_b32 s{sL1}, s{sW}, 11")
        with k.atomic():
            k(f"v_and_b32 v{vT2}, 3, v{vP}")
            k(f"v_lshrrev_b32 v{vDM}, 4, v{vLANE}")
            k(f"v_lshl_add_u32 v{vT2}, v{vDM}, 3, v{vT2}")
            k(f"s_movk_i32 s{sD3}, 3072")
            k(f"v_mad_u32_u24 v{vDM}, v{vT2}, s{sD3}, v{vCH}")
        for r in range(4):
            for hh in range(2):
                k.dma(S_WQKV, vDM, sRB + r, hh * 4 * 3072, sL1, R1 + r * 8192 + hh * 1024, "wq")

    def async_check(tag, soff, imm):
        ok, lp = k.label("L_aok"), k.label("L_ap")
        with k.atomic():
            k.vm_wait(tag)
            k(f"v_cmp_ne_u32 vcc, s{sTAG}, v{vT0}")
            k(f"s_cbranch_vccnz {lp}")
            k(f"{ok}:")
        cnt = [f"    s_add_u32 s95, s95, {1 << (8 * ('p1', 'pb2', 'p2').index(tag))}"] if o.get("cnt") else []
        k.tailcode += [f"{lp}:"] + cnt + [
            f"    buffer_load_dword v{vT0}, v{vT3}, {srd(S_WS)}, s{soff} offen offset:{imm} sc1",
            "    s_waitcnt vmcnt(0)",
            f"    v_cmp_ne_u32 vcc, s{sTAG}, v{vT0}",
            f"    s_cbranch_vccz {ok}",
            f"    s_sub_u32 s{sBUD}, s{sBUD}, 1",
            f"    s_cbranch_scc0 {lp}",
            f"    s_mov_b32 s{sBUD}, 0",
            f"    s_branch {ok}"]

    CSK = vT0
    gA = None
    for layer in range(1 if o.get("one") else 2):
        L1 = layer == 0
        sc = o.get("sc1", 0x04)
        psc = lambda i: bool(sc >> (4 * layer + i) & 1)
        PRE = o.get("pre", 8)
        k.fast = ["", " nt", " sc0", " sc0 nt"][o.get("ntst", 4) >> (2 * layer) & 3]

        def w2t_loads():
            for j in range(56):
                with k.atomic():
                    if j == 0:
                        k(f"s_lshl2_add_u32 s{sPDB}, s{sCT}, s{sW}")
                        k(f"s_mul_i32 s{sPDB}, s{sPDB}, 57344")
                        k(f"s_add_u32 s{sPDB}, s{sPDB}, {WS_W2T}")
                    if j % 4 == 0:
                        k(f"s_add_u32 s{sJ0}, s{sPDB}, {j*1024}")
                    k.vmem(f"buffer_load_dwordx4 {ar(4*j,4)}, v{vL16}, {srd(S_WS)}, s{sJ0} offen offset:{(j%4)*1024} sc1", ("w2t", j // 4))

        w2 = k.rec(w2t_loads) if L1 else []

        def takew2(name, dflt, keep=24):
            nonlocal w2
            n = min(o.get(name, dflt), len(w2) - keep) if L1 else 0
            r, w2 = w2[:n], w2[n:]
            return r

        def kv_consts():
            k.get(vPQ, cCSA)
            k.lds(f"ds_read2_b32 {vr(CSK,2)}, v{vPQ} offset0:0 offset1:16", "cs")
            k.lds(f"ds_read2_b32 {vr(CSK+2,2)}, v{vPQ} offset0:32 offset1:48", "cs")
        if L1:
            CSA = vACC + 32
            k(f"s_and_b32 s{sT0}, s{sW}, 1")
            k(f"s_lshl_b32 s{sT0}, s{sT0}, 5")
            k(f"v_xor_b32 v{vPQ+3}, s{sT0}, v{vTR0}")
            k(f"s_lshr_b32 s{sT0}, s{sW}, 1")
            k(f"s_lshl_b32 s{sT0}, s{sT0}, 11")
            k(f"v_add_u32 v{vPQ+2}, s{sT0}, v{vPQ+3}")
            k(f"s_lshl_b32 s{sT1}, s{sW}, 5")
            k(f"v_xor_b32 v{vPQ+6}, s{sT1}, v{vQ0}")

            def wo_pack():
                T_ = vACT + 96
                for hh in range(2):
                    k.lds(f"ds_read_b64_tr_b16 {vr(T_+2*hh,2)}, v{vPQ+6} offset:{R0 + 49152 + hh*2048}", "wp")
                k.play([lambda: None] * 2)
                with k.atomic():
                    k.ds_wait("wp")
                    k.vmem(f"buffer_store_dwordx4 {vr(T_,4)}, v{vL16}, {srd(S_WS)}, s{sPDA} offen sc1", "pst")
            if o.get("diags"): k.stamp("setup")
            PADP = o.get("padp", 0)
            if W0P == 1:
                k.play(w0_[nw0:])
            if PADP == 1:
                k("PADCALL")
            if W0P == 2:
                k.play(w0_[nw0:])
            if o.get("diags"): k.stamp("w0b")
            own_stats()
            if o.get("diags"): k.stamp("own")
            nx0 = o.get("nx0", 0)
            xslot(0, range(nx0))
            if o.get("pads", 2048) and PADP == 0:
                k("PADCALL")
            if o.get("diags"): k.stamp("pad")
            if o.get("pf1", 0):
                pack_finish(vACT + 64, R1, 12, False, "pu", sPDB)
            xslot(0, range(nx0, 8)); xslot(1, range(o.get("x1pre", 4)))
            if o.get("diags"): k.stamp("xiss")
            if UF == 1 and not o.get("pf1", 0):
                pack_finish(vACT + 64, R1, 12, False, "pu", sPDB)
            if o.get("diags"): k.stamp("pfin")
            xread(0)
            def rnd_begin(r):
                k.vm_wait(("wkv", r))
                k.barrier(True)
                fr = []
                for ks in range(4 * r, 4 * r + 4):
                    fr.append(dict(addr=vPQ + 2, offs=(R0 + ks * 4096, R0 + ks * 4096 + 1024), mf=[(None, None, False, ks == 0, None)]))
                for ks in range(4 * r, 4 * r + 4):
                    for pr in range(2):
                        for b in range(2):
                            base = R0 + ks * 4096 + pr * 2048
                            fr.append(dict(addr=(vTR0, vTR1)[b], offs=(base, base + 1024), mf=mf2(vACC + 16 * pr + 8 * b, ks, False, False)))
                return k.gemm_begin(fr)
            wq = k.rec(wq_raw)
            xslot(1, range(o.get("x1pre", 4), 8))
            g = rnd_begin(0)
            k.stamp("x0")
            f = {}
            if WP:
                w1_ = k.rec(lambda: wkv_raw(1))
                spread(f, w1_[:2], 0, 2); spread(f, k.rec(wo_pack), 0, 1); spread(f, w1_[2:] + k.rec(lambda: xslot(2)), 6, 3)
            else:
                spread(f, k.rec(lambda: (wkv_raw(1), xslot(2))), 0, 3)
            spread(f, k.rec(lambda: xread(1)), 30, 1, 2); k.gemm_run(g, f)
            k.stamp("r0")
            g = rnd_begin(1)
            f = {}
            if UF == 1:
                spread(f, k.rec(pack_flag), 1, 0)
            spread(f, k.rec(lambda: (wkv_raw(2), xslot(3))), 0, 3); spread(f, k.rec(lambda: xread(2)), 31, 1, 2); k.gemm_run(g, f)
            k.stamp("r1")
            g = rnd_begin(2)
            nq = o.get("nq", 6)
            if UF == 2:
                pu_ = k.rec(lambda: packU_issue(L_XST + 4096, sD0, sD1, sD2, sD3, sJ0, vDM, sPDB, 14))
                wq = pu_ + wq if o.get("pufirst", 1) else wq + pu_
            f = {}; spread(f, k.rec(lambda: (wkv_raw(3), st0_issue())) + wq[:nq], 0, 3); spread(f, k.rec(lambda: xread(3)), 31, 1, 2); k.gemm_run(g, f)
            k.stamp("r2")
            g = rnd_begin(3)
            f = {}
            spread(f, k.rec(st0_use), 0, 1)
            spread(f, k.rec(lambda: cs_put(0, sW)), 8, 0)
            spread(f, k.rec(stats_b), 10, 1)
            spread(f, k.rec(stats_scale), 24, 1)
            spread(f, k.rec(lambda: park_addr(vRES + 2, R0, 12)), 15, 0)
            pn = k.rec(lambda: (packN_issue(), k.vmem(f"buffer_load_dword a{aDUM}, v{vL16}, {srd(S_W1)}, s{S_W1+2} offen", "pn")))
            pci = k.rec(lambda: pack_check_issue(0, vRES, vRES + 1, sPDB)) if UF == 1 else []
            if o.get("w2e", 8):
                spread(f, wq[nq:] + ([] if o.get("pcl", 0) else pci) + k.rec(lambda: touches(o.get("Tr", 0), vT3)), 1, o.get("r3s", 5))
            else:
                spread(f, wq[nq:] + pn + pci, 1, o.get("r3s", 5))
            bg = []
            k.gemm_run(g, f)
            k.stamp("A.kv")
            k.barrier()
            kv_consts()
        else:
            k.poll_b(sFXp, G_FX2)
            k.stamp("A.poll")
            al = k.rec(lambda: act_loads(G_X2, ring, True))
            PA = o.get("prea", 4)
            k.play(al[:PA])
            k(f"s_add_u32 s{sTAG}, s{sTAG}, 1")
            fill = {}
            sl = k.rec(lambda: stat_loads(G_ST2))
            e = spread(fill, al[PA:12] + [lambda: k.play(sl[:2]), sl[2]], 0, 4)
            for i_ in range(12, 32):
                pos = max(12 * (i_ // 2 - 6) + 11 + 4 * (i_ & 1), e)
                spread(fill, [al[i_]], pos, 1)
                e = pos + 3
            e2 = spread(fill, k.rec(lambda: (stat_sum(), stats_finalize(True), stats_b())), 60, 1.3)
            e2 = spread(fill, k.rec(stats_scale), e2 + 6, 1.3)
            spread(fill, k.rec(kv_consts), e2, 1.3)
            spread(fill, k.rec(lambda: lin_dma(PK_WO + 32768, R2, 8, "wo", True)), e, o.get("wos", 5))
            if o.get("diagc"):
                for ix in (0, 23, 47, 95, 143):
                    spread(fill, k.rec(lambda: k.stamp(f"A.m{ix}", True)), ix, 0)
            k.gemm_run(gA, fill)
            k.stamp("A.kv")
            k("s_barrier")
            bg = []
        k("s_nop 2")
        k.get(vWB + 22, cKW1 if L1 else cKW)
        k.get(vWB + 23, cKR1 if L1 else cKR)
        k.ds_all()
        PK, PV, TMP = vPQ, vACC, vWB + 24
        KVA = vACC + 16

        def kv_epi():
            for h in range(2):
                for rb in range(2):
                    phi_block(vACC + 8*h + 4*rb, NM_B + 4*rb, CSK + h, RL_B + 4*rb, RS_B + 4*rb, PK + 4*h + 2*rb, TMP, "b")
            for h in range(2):
                for rb in range(2):
                    a = vACC + 16 + 8*h + 4*rb
                    c2, m = bcast(CSK + 2 + h, 1, 3)
                    for p in range(2):
                        k(f"v_pk_fma_f32 {vr(a+2*p,2)}, {vr(NM_B+4*rb+2*p,2)}, {c2}, {vr(a+2*p,2)}{m}")
                    for p in range(2):
                        k(f"v_pk_mul_f32 {vr(a+2*p,2)}, {vr(a+2*p,2)}, {vr(RS_B+4*rb+2*p,2)}")
                    for p in range(2):
                        k(f"v_cvt_pk_bf16_f32 v{PV+4*h+2*rb+p}, v{a+2*p}, v{a+2*p+1}")
                    if rb == 0:
                        k(f"v_mfma_f32_16x16x32_bf16 {vr(vACC+8+4*h,4)}, {vr(PK+4*h,4)}, {ar(aONES,4)}, 0")
                if h == 0:
                    pass
        if L1:
            we = takew2("w2e", 8)
            ke = mix(k.rec(kv_epi), k.rec(lambda: park_kv(vRES + 2)), 3)
            if o.get("pcl", 0):
                w2 = we + w2
                we = []
                touches(o.get("Te", 6), vWB + 20)
                k.play(ke[:o["pcl"]]); ke = ke[o["pcl"]:]
                k.play(pci)
            if we:
                c0 = o.get("w2c", 40)
                touches(o.get("Te", 6), vWB + 20)
                k.play(ke[:c0])
                pack_check(vRES, vRES + 1, sPDB)
                ke = mix(ke[c0:], we, (135 - c0) // len(we))
            k.play(ke)
        else:
            wod = k.rec(lambda: lin_dma(PK_WO, R1, 8, "wo", True))
            nwo = o.get("nwo", 0)
            k.play(mix(k.rec(kv_epi), wod[:nwo], 100 // max(nwo, 1))); wod = wod[nwo:]
        KRO = [0, 16384, 32768, 49152 if L1 else 36864]
        k.lds(f"ds_write_b128 v{vWB+22}, {vr(vACC+8,4)} offset:{KRO[2]}")
        for h in range(2):
            k(f"v_mfma_f32_16x16x32_bf16 {vr(KVA+4*h,4)}, {vr(PK+4*h,4)}, {vr(PV+4*h,4)}, 0")
        k.lds(f"ds_write_b128 v{vWB+22}, {vr(vACC+12,4)} offset:{KRO[3]}")
        k.get(vWB + 21, cKVS)
        k("s_nop 4")
        for h in range(2):
            k.lds(f"ds_write_b128 v{vWB+22}, {vr(KVA+4*h,4)} offset:{KRO[h]}")
        if L1 and UF == 1:
            k.vm_wait("wq")
        k.barrier()
        for s in range(4):
            k.lds(f"ds_read_b128 {vr(vWB+4*s,4)}, v{vWB+23} offset:{s*1024}", ("kr", s))
        KO = vACC + 32
        k.ds_wait(("kr", 1))
        for p in range(2):
            k(f"v_pk_add_f32 {vr(vWB+2*p,2)}, {vr(vWB+2*p,2)}, {vr(vWB+4+2*p,2)}")
        k.ds_wait(("kr", 3))
        for p in range(2):
            k(f"v_pk_add_f32 {vr(vWB+8+2*p,2)}, {vr(vWB+8+2*p,2)}, {vr(vWB+12+2*p,2)}")
        for p in range(2):
            k(f"v_pk_add_f32 {vr(KO+2*p,2)}, {vr(vWB+2*p,2)}, {vr(vWB+8+2*p,2)}")
        k(f"v_and_b32 v{KO}, 0xffffff00, v{KO}")
        k(f"v_or_b32 v{KO}, s{sT8}, v{KO}")
        k(f"s_mov_b64 exec, s[{sKM}:{sKM+1}]")
        k.vmem(f"buffer_store_dwordx4 {vr(KO,4)}, v{vWB+21}, {srd(S_WS)}, s{sKVP} offen sc1", "kvst")
        k("s_mov_b64 exec, -1")
        k.stamp("A.kvpub")
        fill = {}
        fr = []
        CSQ = vACC + 24

        def q_consts():
            k.get(vT0, cCSB)
            for h in range(2):
                k.lds(f"ds_read_b128 {vr(CSQ+4*h,4)}, v{vT0} offset:{(4+h)*64}")
        if L1:
            if UF == 1:
                if not o.get("w2e", 8) or o.get("pcl", 0):
                    pack_check(vRES, vRES + 1, sPDB)
            else:
                pack_finish(vWB, L_XST + 4096, 14, False, "pu", sPDB)
                k.vm_wait("pn")
                k("s_barrier")
            if not o.get("w2e", 8):
                packN_finish(vWB)
            park_addr(vPQ + 4, R1, 11)
            if o.get("diag"): k.stamp("q.pf")
            k(f"v_add_u32 v{vPQ}, {R1}, v{vTR0}")
            k(f"v_add_u32 v{vPQ+1}, {R1}, v{vTR1}")
            k(f"s_and_b32 s{sT0}, s{sW}, 1")
            k(f"s_lshl_b32 s{sT1}, s{sT0}, 5")
            k(f"v_xor_b32 v{vPQ+2}, s{sT1}, v{vPQ}")
            for j in range(16):
                fr.append(dict(addr=vPQ + 2, offs=(j * 2048, j * 2048 + 1024), mf=[(None, None, False, j == 0, None)]))
            for ks in range(16):
                for b in range(2):
                    fr.append(dict(addr=vPQ + b, offs=(ks * 2048, ks * 2048 + 1024), mf=mf2(vACC + 8 * b, ks, True, False)))
            wor = k.rec(lambda: lin_dma(PK_WO, R0, 16, "wo", True)) if WP else k.rec(wo_raw)
            e = spread(fill, bg + k.rec(res_load), 0, 1)
            if o.get("arm", 0):
                e = spread(fill, k.rec(lambda: arm(o.get("arm", 0))), e, 2)
            e = spread(fill, k.rec(lambda: touches(o.get("Tq", 0))), e, 1)
            e = spread(fill, wor, e, o.get("wors", 2))
            spread(fill, takew2("w2q", 8), e, 4)
            spread(fill, k.rec(lambda: park_q(vPQ + 4)), 20, 3)
            k.gemm(fr, fill)
            if o.get("diag"): k.stamp("q.mm")
            cs_put(4, sT0)
            if UF == 2:
                k.vm_wait("pst")
            k.barrier()
            if o.get("diag"): k.stamp("q.bar")
            q_consts()
            if UF == 2:
                pack_flag()
        else:
            q_consts()
        lp2, done2 = k.label("L_kp"), k.label("L_kd")
        SM = vWB + 8
        ZL = vACT + 32

        def kv_loads(track):
            ins = [(f"buffer_load_dwordx4 {vr(ZL,4)}, v{vT2}, {srd(S_WS)}, s{sKVC} offen sc1", "zl")]
            for j in range(8):
                ins.append((f"buffer_load_dwordx4 {vr(vACT+4*j,4)}, v{vL16}, {srd(S_WS)}, s{sKVC if j < 4 else sT2} offen offset:{(j%4)*1024} sc1", ("kv", j)))
            for i_, t_ in ins:
                if track:
                    k.vmem(i_, t_)
                else:
                    k(i_)
        if L1:
            w1a = k.rec(lambda: (lin_dma(PK_W1A, R1, 16, "w1a"), lin_dma(PK_W1B, R3, 6, "w1c2")))
        else:
            w1a = []
        k.get(vT2, cZL)
        k(f"s_add_u32 s{sT2}, s{sKVC}, 4096")
        kl = k.rec(lambda: kv_loads(True))
        QS = vACC if L1 else QA
        ph = k.rec(lambda: [phi_block(QS + 8*h + 4*rb, NM_A + rb, CSQ + 4*h, RL_A + rb, RS_A + rb, vPQ + 4*h + 2*rb, vWB, "a")
                            for h in range(2) for rb in range(2)])
        if L1:
            k.play(kl[:5])
            k.ds_all()
            if o.get("diag"): k.stamp("q.kl5")
            na = o.get("w1a0", 4) if UF == 1 else 0
            k.play(mix(ph, kl[5:] + w1a[:na], o.get("phr", 10)))
            w1a = w1a[na:]
        else:
            def unpark_w1():
                for j in range(16):
                    k.lds(f"ds_write_b128 v{vT3}, {vr(vPARK+4*j,4)} offset:{j*1024}")
            k(f"s_lshl_b32 s{sT5}, s{sW}, 14")
            k(f"v_add_u32 v{vT3}, s{sT5}, v{vL16}")
            uw = k.rec(unpark_w1)
            if late:
                nl = o.get("nul", 6)
                f = {}; spread(f, uw[:nl], 1, 2 * len(late) / max(nl, 1)); uw = uw[nl:]
                k.gemm(late, f)
                k("s_barrier")
                k("s_nop 3")
            k.play(wod[:4]); wod = wod[4:]
            k.ds_all()
            nu = o.get("nu", 16)
            k.play(mix(mix(ph, uw[:nu], 5), wod, 10))
            k.play(mix(kl, uw[nu:], 1))
        k.stamp("A.q")
        if L1:
            k("PADCALL1")
        k.get(vT1, cXW)
        k.get(vWB + 18, cZW)
        k.get(vWB + 16, cXR)
        k.get(vWB + 17, cZR)
        n0_ = len(k.lines)
        k(f"{lp2}:")
        k("s_waitcnt lgkmcnt(0)")
        k(f"s_sub_u32 s{sBUD}, s{sBUD}, 4")
        k(f"s_cbranch_scc0 {lp2}_r")
        k(f"s_mov_b32 s{sBUD}, 0")
        k(f"s_branch {done2}")
        k(f"{lp2}_r:")
        kv_loads(False)
        k("s_waitcnt vmcnt(0)")
        k(f"s_branch {lp2}_s")
        k.tailcode += k.lines[n0_:]
        del k.lines[n0_:]
        k(f"{lp2}_s:")
        k.vm_wait("zl")
        k(f"""
        v_xor_b32 v{ZL}, s{sT8}, v{ZL}
        v_mov_b32 v{SM+4}, v{ZL}
        v_permlane32_swap_b32 v{ZL+2}, v{ZL+3}
        v_permlane32_swap_b32 v{ZL}, v{ZL+1}
        v_add_f32 v{ZL}, v{ZL}, v{ZL+1}
        v_add_f32 v{ZL+2}, v{ZL+2}, v{ZL+3}
        s_nop 1
        v_permlane16_swap_b32 v{ZL}, v{ZL+2}
        v_add_f32 v{ZL}, v{ZL}, v{ZL+2}
        s_nop 1
        v_add_f32_dpp v{ZL}, v{ZL}, v{ZL} row_ror:4 row_mask:0xf bank_mask:0xf
        s_nop 1
        v_add_f32_dpp v{ZL}, v{ZL}, v{ZL} row_ror:8 row_mask:0xf bank_mask:0xf
        v_cvt_pk_bf16_f32 v{ZL}, v{ZL}, v{ZL}
        ds_write_b16 v{vWB+18}, v{ZL}
        """)
        for j in range(0, 8, 2):
            a, b = vACT + 4*j, vACT + 4*j + 4
            k.vm_wait(("kv", j + 1))
            k(f"v_xor_b32 v{a}, s{sT8}, v{a}")
            k(f"v_xor_b32 v{b}, s{sT8}, v{b}")
            k(f"v_or3_b32 v{SM+4}, v{SM+4}, v{a}, v{b}")
            if j == 0:
                for p in range(2):
                    k(f"v_pk_add_f32 {vr(SM+2*p,2)}, {vr(a+2*p,2)}, {vr(b+2*p,2)}")
            else:
                for p in range(2):
                    k(f"v_pk_add_f32 {vr(a+2*p,2)}, {vr(a+2*p,2)}, {vr(b+2*p,2)}")
                for p in range(2):
                    k(f"v_pk_add_f32 {vr(SM+2*p,2)}, {vr(SM+2*p,2)}, {vr(a+2*p,2)}")
        k(f"""
        ds_write_b128 v{vT1}, {vr(SM,4)}
        v_and_b32 v{SM+4}, 0xff, v{SM+4}
        v_cmp_ne_u32 vcc, 0, v{SM+4}
        s_cbranch_vccnz {lp2}
        {done2}:
        """)
        k.stamp("A.kvget")
        if L1:
            touches(o.get("Tk", 0))
        n1 = o.get("w1a1", 4) if L1 and UF == 1 else 0
        if L1 and UF == 2:
            pack_check_issue(0, vTR0, vTR1, sPDB)
        k.play(w1a[:n1]); w1a = w1a[n1:]
        k.barrier(True)
        for h in range(2):
            k.lds(f"ds_read_b64 {vr(vWB+4*h+2,2)}, v{vWB+17} offset:{h*32}", "zf")
        for j in range(4):
            k.lds(f"ds_read_b128 {vr(vACT+4*j,4)}, v{vWB+16} offset:{1024*j}")
        k.ds_wait("zf")
        OA = vACC + 16
        for rb in range(2):
            for h in range(2):
                d = OA + 16*rb + 8*h
                k(f"v_mfma_f32_16x16x16_bf16 {vr(d+4,4)}, {vr(vWB+4*h+2,2)}, {vr(vPQ+4*h+2*rb,2)}, 0")
        k.ds_all()
        for h in range(2):
            for p in range(2):
                k(f"v_pk_add_f32 {vr(vACT+8*h+2*p,2)}, {vr(vACT+8*h+2*p,2)}, {vr(vACT+8*h+4+2*p,2)}")
        for h in range(2):
            for p in range(2):
                k(f"v_cvt_pk_bf16_f32 v{vWB+4*h+p}, v{vACT+8*h+2*p}, v{vACT+8*h+2*p+1}")
        for rb in range(2):
            for h in range(2):
                d = OA + 16*rb + 8*h
                k(f"v_add_f32 v{d+4}, s{sEPS}, v{d+4}")
        for rb in range(2):
            for h in range(2):
                d = OA + 16*rb + 8*h
                k(f"v_mfma_f32_16x16x16_bf16 {vr(d,4)}, {vr(vWB+4*h,2)}, {vr(vPQ+4*h+2*rb,2)}, 0")
        for rb in range(2):
            for h in range(2):
                d = OA + 16*rb + 8*h
                k(f"v_rcp_f32 v{d+4}, v{d+4}")
        k("s_nop 1")
        for rb in range(2):
            for h in range(2):
                d = OA + 16*rb + 8*h
                for p in range(2):
                    k(f"v_pk_mul_f32 {vr(d+2*p,2)}, {vr(d+2*p,2)}, {vr(d+4,2)} op_sel_hi:[1,0]")
                for p in range(2):
                    k(f"v_cvt_pk_bf16_f32 v{vPQ+4*rb+2*h+p}, v{d+2*p}, v{d+2*p+1}")
            k.stores([f"buffer_store_dwordx4 {vr(vPQ+4*rb,4)}, v{vL16}, {srd(S_WS)}, s{sOST+rb} offen"], psc(0))
        nb = o.get("w1a_pre1", 6) if L1 else o.get("w1a_pre", 0)
        if L1 and UF == 2:
            pack_check(vTR0, vTR1, sPDB)
        if L1:
            touches(o.get("To", 0))
        k.play(w1a[:nb])
        if L1:
            for s_ in range(2):
                for p in range(2):
                    k(f"v_permlane16_swap_b32 v{vRES+4*s_+p}, v{vRES+4*s_+2+p}")
        urs = k.rec(lambda: unpack_res(vACC))
        fr = []
        for ks in range(16):
            for f in range(4):
                mf = [(vACC + 4 * f, vACT + 4 * ks, True, False, ("act", ks))]
                if L1 and WP:
                    fr.append(dict(addr=vL16, offs=(R0 + ks * 4096 + f * 1024,), mf=mf))
                elif L1:
                    fr.append(dict(addr=vQ0 + f, offs=(R0 + ks * 4096, R0 + ks * 4096 + 2048), mf=mf))
                else:
                    fr.append(dict(addr=vTR0, offs=(ks * 4096 + f * 1024,), mf=mf))
        if L1:
            k("PADCALL2")
        k.poll_prep(15)
        k.flag(sFOo, G_FO)
        k.poll_a(sFOp, G_FO)
        g = k.gemm_begin(fr, 7)
        k.play(urs)
        k.stamp("A.opub")
        k.poll_b(sFOp, G_FO)
        k.stamp("B.poll")

        def b_loads():
            for ks in range(16):
                with k.atomic():
                    if ks % 4 == 0:
                        k(f"s_add_u32 s{sT2}, s{sBACT}, {G_O + ks*1024}")
                    k.vmem(f"buffer_load_dwordx4 {vr(vACT+4*ks,4)}, v{vL16}, {srd(S_WS)}, s{sT2} offen offset:{(ks%4)*1024} sc1", ("act", ks))
        bl = k.rec(b_loads)
        PB = o.get("preb", PRE)
        k.play(bl[:PB])
        fill = {}
        e = spread(fill, bl[PB:], 0, 3)
        if L1:
            e = spread(fill, k.rec(lambda: touches(o.get("Ta", 0))), e, 1)
        e = spread(fill, w1a[nb:], e, o.get("w1st", 3))
        if L1:
            e = spread(fill, k.rec(lambda: touches(o.get("Tb", 1))), e, 1)
        spread(fill, takew2("w2b", 0), e, 4)
        k.gemm_run(g, fill)
        k.stamp("B.mm")
        k(f"v_add_u32 v{vTR1}, {R1}, v{vL16}")
        k("s_nop 3")
        for f in range(4):
            for p in range(2):
                k(f"v_cvt_pk_bf16_f32 v{vRES+2*f+p}, v{vACC+4*f+2*p}, v{vACC+4*f+2*p+1}")
            if f & 1:
                x_store(f >> 1, psc(1))
        publish_x(G_X1, G_ST1, G_FX1, psc(1))
        k.play(takew2("w2x", 0))
        k.flag(sFXo, G_FX1)
        if not L1 or o.get("cin", 1):
            k.poll_a(sFXp, G_FX1)
        k.stamp("B.pub")
        if L1 and o.get("w2e", 8) and not WP:
            k(f"s_lshl2_add_u32 s{sD1}, s{sDH}, s{sW}")
            k(f"s_cmp_lg_u32 s{sD1}, 3")
            k("s_cbranch_scc1 L_nfskip")
            k(f"s_lshl_b32 s{sT5}, s{sG}, 12")
            for f in range(4):
                k(f"v_add_u32 v{vWB+16+f}, s{sT5}, v{vQ0+f}")
            for f in range(4):
                for hh in range(2):
                    k(f"ds_read_b64_tr_b16 {vr(vACC+4*f+2*hh,2)}, v{vWB+16+f} offset:{hh*2048}")
            k(f"s_add_u32 s{sT5}, s{sT5}, s{sPKB}")
            k(f"s_add_u32 s{sT5}, s{sT5}, {PK_WO}")
            k("s_waitcnt lgkmcnt(0)")
            for f in range(4):
                k(f"buffer_store_dwordx4 {vr(vACC+4*f,4)}, v{vL16}, {srd(S_WS)}, s{sT5} offen offset:{f*1024} sc1")
            k("L_nfskip:")
        k("s_barrier")
        w1c2 = k.rec(lambda: lin_dma(PK_W1B + 24576, R0 if L1 else R1, 6, "w1c2"))
        if L1 and not o.get("w2e", 8):
            pack_flag(0x8000)
        nc = o.get("w1c2_pre1", 0) if L1 else o.get("w1c2_pre", 0)
        k.play(w1c2[:nc])
        EU = o.get("eu", 8)
        if L1:
            eup = k.rec(lambda: unpark(vPQ + 1, list(range(EU)))) if EU else []
            k(f"s_lshl_b32 s{sT2}, s{sW}, 10")
            k(f"v_add_u32 v{vPQ}, s{sT2}, v{vTR1}")
            CIN = o.get("cin", 1)
            fc1 = [dict(addr=vQ0 + 1 if CIN else vPQ, offs=(j * 4096,), mf=[(None, None, False, j == 0, None)], c1=True) for j in range(16)]
            if CIN:
                k(f"v_mov_b32 v{vQ0+1}, v{vPQ}")
                eup = k.rec(lambda: unpark(vQ0 + 2, list(range(EU)))) if EU else []
            else:
                k.gemm(fc1, D=7)
                k.play(eup)
                k("s_nop 5")
                cs_put(6, sW)
        C2 = vACC + 32
        vC1, vC2, vCc, vCd = (vTR1 if L1 else vL16), vDM, vP, vCH
        k(f"v_add_u32 v{vC2}, {R3}, v{vL16}")
        if L1:
            k(f"s_min_u32 s{sPDA}, s{sW}, 2")
            k(f"s_lshl_b32 s{sT2}, s{sPDA}, 10")
            k(f"v_add_u32 v{vCd}, s{sT2}, v{vL16}")
            k(f"v_add_u32 v{vCc}, {R3}, v{vCd}")
        NX = o.get("nx1", 0) if L1 else o.get("nx", 0)
        INIT2 = not L1 and NX == 0
        f2 = []
        fcs = [dict(addr=vCc if ks < 8 else vCd, offs=((ks % 8) * 3072,), mf=[(None, None, False, ks == 0, None)], late=ks >= 8, cs=True) for ks in range(16)]
        for ks in range(16):
            if L1 and ks in (8, 9, 10, 11):
                f2 += fcs[8 + 2 * (ks - 8):10 + 2 * (ks - 8)]
            for b in range(3):
                f2.append(dict(addr=vC2 if ks < 8 else vL16 if L1 else vTR1, offs=((ks % 8) * 3072 + b * 1024,),
                               mf=mf2(C2 + 8 * b, ks, True, False, False if INIT2 else None), late=ks >= 8))
        fr = []
        XS0 = o.get("xs0", 2)
        for ks in range(16):
            if L1 and CIN:
                if ks < 8:
                    fr += fc1[2 * ks:2 * ks + 2]
                if ks in (11, 12, 13, 14):
                    fr += fcs[2 * (ks - 11):2 * (ks - 11) + 2]
            elif L1 and ks in (4, 6, 8, 10):
                fr += fcs[ks - 4:ks - 2]
            if ks >= XS0:
                n_ = (NX * (ks - XS0 + 1)) // (16 - XS0) - (NX * (ks - XS0)) // (16 - XS0)
                fr += f2[:n_]; f2 = f2[n_:]
            for f in range(4):
                fr.append(dict(addr=vC1, offs=(ks * 4096 + f * 1024,), mf=mf2(vACC + 8 * f, ks, True, True)))
        M1 = sum(len(f["mf"]) for f in fr)
        fr += f2
        NM = sum(len(f["mf"]) for f in fr)
        tl = [i for i, f in enumerate(fr) if f.get("late")][0]
        MB = sum(len(f["mf"]) for f in fr[:tl - 6]) - 4
        if L1:
            tc = [i for i, f in enumerate(fr) if f.get("cs")][-1]
            MC = sum(len(f["mf"]) for f in fr[:tc + 1])
        if L1 and not o.get("cin", 1):
            k.poll_a(sFXp, G_FX1)
        g = k.gemm_begin(fr)
        k.poll_b(sFXp, G_FX1)
        k.stamp("C.poll")
        CS1 = [vPQ, vPQ + 4, vACC + 56, vQ0]

        def c2_init():
            k.get(vT0, cCSB)
            for b in range(3):
                k.lds(f"ds_read_b128 {vr(C2+8*b+4,4)}, v{vT0} offset:{(10+b)*64}", "cs2")
            for _ in range(4):
                k.play([lambda: None])
            k.ds_wait("cs2")
            for b in range(3):
                for rb in range(2):
                    for j in range(4):
                        k(f"v_mul_f32 v{C2+8*b+4*rb+j}, v{C2+8*b+4+j}, v{NM_A+rb}")

        def relu_block(acc, cs, rb, dst):
            if cs is not None:
                for j in range(4):
                    k(f"v_fmac_f32 v{acc+j}, v{cs+j}, v{NM_A+rb}")
            for p in range(2):
                k(f"v_cvt_pk_bf16_f32 v{dst+p}, v{acc+2*p}, v{acc+2*p+1}")
            for p in range(2):
                k(f"v_pk_max_i16 v{dst+p}, v{dst+p}, 0")

        def cs1_reads():
            k.get(vT2, cCSB)
            for b in range(4):
                k.lds(f"ds_read_b128 {vr(CS1[b],4)}, v{vT2} offset:{(6+b)*64}", "cs")

        def epi1(s):
            if s == 0:
                k.ds_wait("cs")
            for rb in range(2):
                for b in range(2):
                    relu_block(vACC + 16*s + 8*b + 4*rb, CS1[2*s+b], rb, vACC + 16*s + 4*rb + 2*b)
            with k.atomic():
                if s == 0:
                    k(f"s_sub_u32 s{sT2}, s{sH1}, 1024")
                    k(f"s_sub_u32 s{sT3}, s{sH1b}, 1024")
                    k.stores([f"buffer_store_dwordx4 {vr(vACC+4*rb,4)}, v{vL16}, {srd(S_WS)}, s{sT2+rb} offen" for rb in range(2)], psc(2), "sa")
                else:
                    k.stores([f"buffer_store_dwordx4 {vr(vACC+16+4*rb,4)}, v{vL16}, {srd(S_WS)}, s{sH1+rb} offen offset:3072" for rb in range(2)], psc(2))

        def d_setup():
            if L1:
                with k.atomic():
                    k(f"s_lshl_b32 s{sT1}, s{sW}, 13")
                    k(f"s_add_u32 s{sT1}, s{sT1}, s{sGB}")
                with k.atomic():
                    k(f"s_lshl_b32 s{sDK}, s{sW}, 11")
                    k(f"s_add_u32 s{sDK}, s{sDK}, {28*1024}")
                k(f"s_add_u32 s{sT1}, s{sT1}, {G_H + 24*1024}")
                for j in range(4):
                    with k.atomic():
                        k(f"s_add_u32 s{sT0}, s{sW}, {j}")
                        k(f"s_and_b32 s{sT0}, s{sT0}, 3")
                    with k.atomic():
                        k(f"s_lshl2_add_u32 s{sT0}, s{sDH}, s{sT0}")
                        k(f"s_mul_i32 s{sT0}, s{sT0}, 57344")
                    k(f"s_add_u32 s{sRB+j}, s{sT0}, s{sT1}")
            k.poll_prep(7)
        TD = 3 if L1 else o.get("td", 4)
        seq = [(ksl, j) for ksl in range(14 - TD) for j in range(4)] + [(ksl, j) for j in (1, 2, 3, 0) for ksl in range(14 - TD, 14)]
        hb = [0, 0, 0, 0]

        def hload(t):
            ksl, j = seq[t]
            with k.atomic():
                if ksl // 4 != hb[j]:
                    if ksl == 8:
                        k(f"s_sub_u32 s{sRB+j}, s{sRB+j}, s{sDK}")
                    else:
                        k(f"s_add_u32 s{sRB+j}, s{sRB+j}, 4096")
                    hb[j] += 1
                k.vmem(f"buffer_load_dwordx4 {vr(vACT+4*(t%16),4)}, v{vL16}, {srd(S_WS)}, s{sRB+j} offen offset:{(ksl%4)*1024} sc1", ("h", t))
        PC = o.get("prec", PRE)
        al = k.rec(lambda: act_loads(G_X1))
        k.play(al[:PC])
        fill = {}
        sl = k.rec(lambda: stat_loads(G_ST1, vPQ))
        SP = o.get("stp", 0)
        e = spread(fill, al[PC:PC+SP] + [lambda: k.play(sl[:2]), sl[2]] + al[PC+SP:], 0, (o.get("cstep1", 42) if L1 and CIN else o.get("cstep", 36)) / 10)
        e2 = spread(fill, k.rec(lambda: (stat_sum(vPQ), stats_finalize(False))), 44, 0.9 if INIT2 else 1.3)
        if INIT2:
            spread(fill, k.rec(c2_init), e2 + 1, 0.95)
        if L1:
            if CIN:
                def cs1_put():
                    k.get(vQ0, cCSA)
                    k(f"s_lshl_b32 s{sT5}, s{sW}, 6")
                    k(f"v_add_u32 v{vQ0}, s{sT5}, v{vQ0}")
                    k.lds(f"ds_write_b32 v{vQ0}, a{aCS} offset:{6*64}", "c1w")
                spread(fill, eup, 6, 8)
                spread(fill, k.rec(cs1_put), 82, 0)
                spread(fill, k.rec(lambda: k.ds_wait("c1w")), 94, 0)
            spread(fill, k.rec(lambda: k("s_barrier")), M1 - 24, 0)
            if o.get("w2e", 8) and not WP:
                spread(fill, k.rec(lambda: pack_flag(0x8000)), 102, 0)
        e = spread(fill, w1c2[nc:], e, 3)
        if L1:
            e = spread(fill, k.rec(lambda: touches(o.get("Tc", 0), vT0)), e, 1)
        spread(fill, k.rec(cs1_reads), M1 - 9, 1)
        if o.get("diagc") and not L1:
            for ix in (0, 31, 63, 95, 127, 151, 175, 199):
                spread(fill, k.rec(lambda: k.stamp(f"C.m{ix}", True)), ix, 0)
        if o.get("diagd"):
            spread(fill, k.rec(lambda: k.stamp("C.mm1")), 127, 0)
        e0 = spread(fill, k.rec(lambda: epi1(0)), M1 + 1, 1 / o.get("epr", 4))
        e1 = spread(fill, k.rec(lambda: epi1(1)), e0, 1 / (o.get("epr", 4) if L1 else o.get("eps", 2)))
        spread(fill, k.rec(lambda: (k.vm_wait("w1c2"), k("s_barrier"))), MB, 0)
        assert e < MB
        e3 = spread(fill, k.rec(d_setup), e1, 1)
        cs2r = k.rec(lambda: [k.lds(f"ds_read_b128 {vr(CS1[b],4)}, v{vT2} offset:{(10+b)*64}") for b in range(3)])
        if not L1 and not INIT2:
            spread(fill, cs2r, e3 + 2, 2)
        if L1:
            def cs2_put():
                k.get(vQ0, cCSA)
                k(f"s_lshl_b32 s{sT5}, s{sPDA}, 6")
                k(f"v_add_u32 v{vQ0}, s{sT5}, v{vQ0}")
                k.lds(f"ds_write_b32 v{vQ0}, a{aCS} offset:{10*64}", "csw")
            assert MC + 6 > e1
            spread(fill, k.rec(cs2_put), MC + 6, 0)
            spread(fill, k.rec(lambda: (k.ds_wait("csw"), k("s_barrier"))), MC + 14, 0)
            spread(fill, cs2r, MC + 16, 2)
        pf = min(e1 + (o.get("fl11", 50) if L1 else o.get("fl1", 24)), NM - 2)
        spread(fill, k.rec(lambda: k.flag(sFHo, G_FH)), pf, 1)
        NE = o.get("ne1", 0) if L1 else o.get("ne", 9)
        TWO = NE and o.get("two", 1)
        FA = G_FH + 64 if TWO else G_FH
        HS = o.get("hs", 4)
        pp = NM - 1 if NE == 0 else NM - HS * NE - o.get("ppd", 18)
        if TWO:
            pfa = e0 + (o.get("fla1", 40) if L1 else o.get("fla", 16))
            spread(fill, k.rec(lambda: k.flag(sFHo, FA, "sa")), pfa, 1)
            assert pp > pfa and pp > e3
        else:
            assert pp > pf
        spread(fill, k.rec(lambda: k.vmem(f"buffer_load_dword v{vT0}, v{vT3}, {srd(S_WS)}, s{sFHp} offen offset:{FA} sc1", "p1")), pp, 1)
        if NE:
            spread(fill, k.rec(lambda: async_check("p1", sFHp, FA)), NM - HS * NE - 1, 1)
            hl = k.rec(lambda: [hload(t) for t in range(NE)])
            if TWO:
                nb_ = o.get("pbn", NE - 4)
                hl = hl[:nb_] + k.rec(lambda: k.vmem(f"buffer_load_dword v{vT0}, v{vT3}, {srd(S_WS)}, s{sFHp} offen offset:{G_FH} sc1", "pb2")) + hl[nb_:]
            spread(fill, hl, NM - HS * NE, HS * NE / len(hl))
        if L1:
            wc = takew2("nw2", 24, 24 - EU)
            spread(fill, wc, e, (pp - 1 - e) / max(len(wc), 1))
        k.gemm_run(g, fill)
        k.stamp("C.mm2")
        HO = vWB + 16
        LA = o.get("dla1", 10) if L1 else o.get("dla", 9)
        k("s_nop 3")
        k.ds_all()
        epi2 = k.rec(lambda: [relu_block(C2 + 8*b + 4*rb, None if INIT2 else CS1[b], rb, HO + 8*rb + 2*b) for b in range(3) for rb in range(2)])
        h2sc = psc(2) and not o.get("h2plain", 1)
        its = []
        for rb in range(2):
            its.append(f"buffer_store_dwordx4 {vr(HO+8*rb,4)}, v{vL16}, {srd(S_WS)}, s{sH2+rb} offen")
            its.append(f"buffer_store_dwordx2 {vr(HO+8*rb+4,2)}, v{vL16}, {srd(S_WS)}, s{sH3+rb} offen")
        tail = []
        up = []
        if L1:
            def park_w1():
                with k.atomic():
                    k(f"s_lshl_b32 s{sT5}, s{sW}, 14")
                    k(f"s_add_u32 s{sT5}, s{sT5}, {R1}")
                    k(f"v_add_u32 v{vCH}, s{sT5}, v{vL16}")
                for j in range(0, 16, 2):
                    with k.atomic():
                        for jj in (j, j + 1):
                            k.lds(f"ds_read_b128 {vr(vPARK+4*jj,4)}, v{vCH} offset:{jj*1024}", "pw")
            u_ = k.rec(lambda: (rot_setup(), unpark(vP, list(range(EU, 24)))))
            bar = k.rec(lambda: (k.ds_wait("pw"), k("s_barrier")))
            up = k.rec(park_w1) + u_[:1] + [lambda: k.play(bar)] + u_[1:]
        if NE:
            n2 = o.get("ne2", 2)
            k.play(mix(epi2, k.rec(lambda: [hload(t) for t in range(NE, NE + n2)]), 10))
            k.stores(its, h2sc)
            nxt = NE + n2
            FL2 = o.get("fl2", 5)
        else:
            k.play(epi2)
            k.stores(its, h2sc)
            async_check("p1", sFHp, G_FH)
            for t in range(LA):
                hload(t)
                if len(w2) > 24 - EU and t % 2:
                    k.play(w2[:1]); w2 = w2[1:]
                k.play(up[:1]); up = up[1:]
            k.flag(sFHo, G_FH + 1024)
            nxt = LA
            FL2 = -1
        k.stamp("D.poll1")
        RSD = vPQ
        k.get(vPQ + 1, cRSD)
        k.lds(f"ds_read_b32 v{RSD}, v{vPQ+1}", "rsd")
        def red_addr():
            for j in range(4):
                if L1:
                    k.get(vPQ + 4 + j, cRD0 + j)
                else:
                    with k.atomic():
                        k(f"s_add_u32 s{sT0}, s{sW}, {j}")
                        k(f"s_and_b32 s{sT0}, s{sT0}, 3")
                    with k.atomic():
                        k(f"s_lshl_b32 s{sT0}, s{sT0}, 14")
                        k(f"s_add_u32 s{sT0}, s{sT0}, {max(j-1, 0)*4096}")
                    k(f"v_add_u32 v{vPQ+4+j}, s{sT0}, v{vL16}")
        ur = k.rec(lambda: (unpack_res(vWB), red_addr()))
        wr = []
        for t in range(56):
            ksl, j = seq[t]
            kw = [0, 2, 4, 6, 1, 3, 5, 7][ksl] if ksl < 8 else ksl
            if L1:
                k.vm_wait(("w2t", kw))
            k.vm_wait(("h", t))
            if o.get("diagd") and t in (0, 8, 16, 24, 32, 40, 48):
                k.stamp(f"D.t{t}")
            if o.get("diagc") and not L1 and t in (0, 4, 8, 16, 24, 32, 40, 48):
                k.stamp(f"D.t{t}", True)
            for f in range(4):
                a = vACC + 16*j + 4*f
                c = "0" if ksl == 0 else vr(a, 4)
                k(f"v_mfma_f32_16x16x32_bf16 {vr(a,4)}, {ar((kw*4+f)*4,4)}, {vr(vACT+4*(t%16),4)}, {c}")
                if f in (0, 2) and nxt < 56 and nxt <= t + LA and (f == 0 or nxt < t + LA):
                    if nxt == 32 - o.get("p2d", 7):
                        k.vmem(f"buffer_load_dword v{vT0}, v{vT3}, {srd(S_WS)}, s{sFHp} offen offset:{G_FH+1024} sc1", "p2")
                    if nxt == 16 and TWO:
                        async_check("pb2", sFHp, G_FH)
                    if nxt == 32:
                        async_check("p2", sFHp, G_FH + 1024)
                    hload(nxt)
                    nxt += 1
                    if nxt == 56 and not L1 and o.get("wb", 0):
                        lw = k.label("L_wb")
                        k(f"s_lshl3_add_u32 s{sT0}, s{sW}, s2")
                        k(f"s_cmp_ge_u32 s{sT0}, 8")
                        k(f"s_cbranch_scc1 {lw}")
                        k("buffer_wbl2 sc1")
                        k(f"s_branch {lw}_e")
                        k(f"{lw}:")
                        k(f"buffer_load_dword a{aDUM}, v{vT3}, {srd(S_WS)}, s{sFHp} offen offset:{G_FH} sc1")
                        k(f"{lw}_e:")
                        k.vm_note(1, "wb")
                if f in ((1, 3) if t < o.get("up2", 3) else (1,)) and up:
                    k.play(up[:1]); up = up[1:]
                if f == 2:
                    nup = 24 - len(up)
                    if w2 and (len(w2) > 24 or not up or nup >= 4 * ((24 - len(w2)) // 4 + 1) + 1):
                        if len(w2) <= 24:
                            k.ds_wait(("up", (24 - len(w2)) // 4))
                        k.play(w2[:1]); w2 = w2[1:]
                    elif t >= o.get("tl0", 46) and tail:
                        nn = o.get("tln", 2)
                        k.play(tail[:nn]); tail = tail[nn:]
                if f == 3 and t == FL2:
                    k.flag(sFHo, G_FH + 1024)
                if 4 * t + f == 203 and L1:
                    k.ds_wait(("rw", 1))
                    k("s_barrier")
                    for f_ in range(4):
                        k.lds(f"ds_read_b128 {vr(vACC+16+4*f_,4)}, v{vPQ+4} offset:{f_*1024}", "rd0")
                if 4 * t + f == 215 and L1:
                    k.ds_wait("rd0")
                    k("s_barrier")
                if f == 3 and t == 2 and L1 and not WP:
                    pack_check_issue(0x8000, vTR0, vTR1, sPDA)
                if f == 3 and t == 14 and L1 and not WP:
                    pack_check(vTR0, vTR1, sPDA)
                if f == 3 and t == o.get("tx", 99) and L1:
                    touch("x", vDM)
                if f == 1 and t >= 8 and ur:
                    k.play(ur[:1]); ur = ur[1:]
                if wr and wr[0][0] <= 4 * t + f:
                    k.lds(*wr.pop(0)[1:])
            if ksl == 13 and j:
                for f in range(4):
                    wr.append((4 * t + 9 + 2 * f, f"ds_write_b128 v{vPQ+4+j}, {vr(vACC+16*j+4*f,4)} offset:{f*1024}", ("rw", j)))
        assert not w2 and not ur and not wr and not up
        k.stamp("D.mm")
        if not L1:
            k.get(vT2, cOUT)
        if L1:
            k("s_nop 3")
            for f in range(4):
                for p in range(2):
                    k(f"v_pk_add_f32 {vr(vACC+4*f+2*p,2)}, {vr(vACC+4*f+2*p,2)}, {vr(vACC+16+4*f+2*p,2)}")
        k.barrier()
        NJ = 2 if L1 else 3
        RB_ = vACC + 64 - 16 * NJ
        for f in range(4):
            for j in range(NJ):
                k.lds(f"ds_read_b128 {vr(RB_+16*j+4*f,4)}, v{vPQ+4} offset:{j*4096+f*1024}", ("rd", f))
        for f in range(4):
            k.ds_wait(("rd", f))
            for j in range(NJ):
                for p in range(2):
                    k(f"v_pk_add_f32 {vr(vACC+4*f+2*p,2)}, {vr(vACC+4*f+2*p,2)}, {vr(RB_+16*j+4*f+2*p,2)}")
            for p in range(2):
                k(f"v_pk_fma_f32 {vr(vACC+4*f+2*p,2)}, {vr(vACC+4*f+2*p,2)}, {vr(RSD,2)}, {vr(vWB+4*f+2*p,2)} op_sel_hi:[1,0,1]")
            for p in range(2):
                k(f"v_cvt_pk_bf16_f32 v{vRES+2*f+p}, v{vACC+4*f+2*p}, v{vACC+4*f+2*p+1}")
            if f & 1 and L1:
                x_store(f >> 1, psc(3))
            if f & 1 and not L1:
                s_ = f >> 1
                k("s_nop 0")
                for p in range(2):
                    k(f"v_permlane16_swap_b32 v{vRES+4*s_+p}, v{vRES+4*s_+2+p}")
                k.vmem(f"buffer_store_dwordx4 {vr(vRES+4*s_,4)}, v{vT2}, {srd(S_OUT)}, 0 offen offset:{64*s_}{['', ' sc1', ' sc1 nt', ' nt'][o.get('outsc1', 1)]}")
        k.stamp("D.red")
        if L1:
            publish_x(G_X2, G_ST2, G_FX2, psc(3))
            k(f"s_sub_u32 s{sT0}, s{sDK}, 8192")
            for j in range(4):
                k(f"s_add_u32 s{sRB+j}, s{sRB+j}, s{sT0}")
            if o.get("cnt"):
                k("s_mov_b32 s95, 0")
            k(f"s_add_u32 s{sKVC}, s{sKVC}, 0x100000")
            k(f"s_add_u32 s{sKVP}, s{sKVP}, 0x100000")
            k.flag(sFXo, G_FX2)
            k.poll_a(sFXp, G_FX2)
            k.stamp("D.pub")
            k("s_barrier")
            fr = []
            k(f"v_add_u32 v{vTR0}, {R1}, v{vL16}")
            late = []
            for ks in range(16):
                fq = [dict(addr=vTR0, offs=(ks * 2048 + b * 1024,), mf=mf2(QA + 8 * b, ks, True, True, act=ring)) for b in range(2)]
                fk = [dict(addr=vL16, offs=(R0 + ks * 4096 + b * 1024,), mf=mf2(vACC + 8 * b, ks, False, True, act=ring)) for b in range(4)]
                if ks < 16 - o.get("qlag", 6):
                    fr += fk + fq
                else:
                    fr += fk
                    late += fq
            gA = k.gemm_begin(fr)
        else:
            le = k.label("L_ep")
            k(f"s_or_b32 s{sT2}, s2, s{sW}")
            k(f"s_cbranch_scc1 {le}")
            k(f"s_add_u32 s{sEP}, s{sEP}, 1")
            k(f"v_mov_b32 v{vT1}, s{sEP}")
            k("s_mov_b64 exec, 1")
            k(f"buffer_store_dword v{vT1}, v{vL16}, {srd(S_WS)}, 0 offen offset:{WS_EPOCH}")
            k("s_mov_b64 exec, -1")
            k(f"{le}:")
            if stamps:
                k.vm_all()
                k.stamp("end")
                k(f"s_memrealtime s[{sST}:{sST+1}]")
                k("s_waitcnt lgkmcnt(0)")
                k(f"v_writelane_b32 v{vSTAMP}, s{sST}, 61")
                k(f"v_writelane_b32 v{vSTAMP}, s{sBUD}, 60")
                k(f"v_writelane_b32 v{vSTAMP}, s{95 if o.get('cnt') else sSLOW}, 59")
                k(f"s_lshl2_add_u32 s{sT2}, s2, s{sW}")
                k(f"s_lshl_b32 s{sT2}, s{sT2}, 8")
                k(f"s_add_u32 s{sT2}, s{sT2}, {WS_STAMP}")
                k(f"v_lshrrev_b32 v{vT0}, 2, v{vL16}")
                k(f"buffer_store_dword v{vSTAMP}, v{vT0}, {srd(S_WS)}, s{sT2} offen")
    k("L_end:")
    lines = merge_waits(k.lines)
    if o.get("pads", 2048):
        lines = add_pads(lines, k.tailcode, o.get("pads", 2048), [x for x in (o.get("ps1", 0), o.get("ps2", 0)) if x])
    body = "\n".join(lines)
    tailc = "\n".join(k.tailcode)
    hdr = open("interleave_layers__linear_attn_block__dense_activation_relu__prompt.s.ref").read().split("; Override")[0]
    txt = f"""{hdr}; Generated by a hand-written generator (persistent kernel, one workgroup per CU).
; @launch grid=(256,1,1) block=(256,1,1) lds={LDS_BYTES}
.amdgcn_target "amdgcn-amd-amdhsa--gfx950"
.text
.globl {NAME}
.p2align 8
.type {NAME},@function
.set CODE_BYTES, L_code_end - L_pcref - 512
{NAME}:
{body}
    s_endpgm
L_code_end:
{tailc}
.section .rodata,"a"
.p2align 6
.amdhsa_kernel {NAME}
  .amdhsa_next_free_vgpr 512
  .amdhsa_next_free_sgpr 102
  .amdhsa_accum_offset 256
  .amdhsa_group_segment_fixed_size 0
  .amdhsa_kernarg_size 72
  .amdhsa_user_sgpr_count 2
  .amdhsa_user_sgpr_kernarg_segment_ptr 1
  .amdhsa_system_sgpr_workgroup_id_x 1
.end_amdhsa_kernel
"""
    return txt, k.stamp_names


if __name__ == "__main__":
    out = sys.argv[1]
    stamps = "stamps" in sys.argv[2:]
    opts = {}
    for a in sys.argv[2:]:
        if "=" in a:
            x, y = a.split("=")
            opts[x] = int(y)
    txt, names = gen(stamps, opts)
    open(out, "w").write(txt)
    if stamps:
        open(out + ".names", "w").write("\n".join(names))
```
